```python
import torch

def _softmax(x, axis=-1):
    return torch.softmax(x, dim=axis)
def _gelu(x):
    return torch.nn.functional.gelu(x, approximate="tanh")
def _silu(x):
    return torch.nn.functional.silu(x)
def _sigmoid(x):
    return torch.sigmoid(x)
def _layernorm(x, axis=-1, eps=1e-5):
    m = x.mean(dim=axis, keepdim=True)
    v = x.var(dim=axis, keepdim=True, unbiased=False)
    return (x - m) / torch.sqrt(v + eps)
def _scatter_add(tgt, idx, src, axis=0):
    return tgt.clone().index_add_(axis, idx, src)
def _segment_sum(src, seg, n):
    out = torch.zeros((n,) + src.shape[1:], dtype=src.dtype)
    return out.index_add_(0, seg, src)
def _pad(x, pw):
    flat = tuple(v for pair in reversed(pw) for v in pair)
    return torch.nn.functional.pad(x, flat)

kernel_name = 'recurrent_scan__softmax_full_mha__dense_activation_squared_relu__prompt'

def setup_inputs():

    _w = (lambda a: (lambda t: t.to(torch.bfloat16) if t.is_floating_point() else t)(torch.as_tensor(a)))
    def _A_setup():
        B, S, D = 1, 2048, 512
        return {
            "x": _w((lambda *s: torch.randn(*s, dtype=torch.bfloat16) * 0.05)(B, S, D)),
            "wqkv": _w((lambda *s: torch.randn(*s, dtype=torch.bfloat16) * 0.05)(D, 3 * D)),
            "wo": _w((lambda *s: torch.randn(*s, dtype=torch.bfloat16) * 0.05)(D, D)),
        }
    _A_in = _A_setup()

    def _B_setup():
        B, S, D, F = 1, 2048, 512, 1376
        return {
            "x": _w((lambda *s: torch.randn(*s, dtype=torch.bfloat16) * 0.05)(B, S, D)),
            "w1": _w((lambda *s: torch.randn(*s, dtype=torch.bfloat16) * 0.05)(D, F)),
            "b1": _w((lambda *s: torch.randn(*s, dtype=torch.bfloat16) * 0.8)(F)),
            "w2": _w((lambda *s: torch.randn(*s, dtype=torch.bfloat16) * 0.05)(F, D)),
            "b2": _w((lambda *s: torch.randn(*s, dtype=torch.bfloat16) * 1.6)(D)),
        }
    _B_in = _B_setup()

    return {
        "A_x": _A_in["x"],
        "A_wqkv": _A_in["wqkv"],
        "A_wo": _A_in["wo"],
        "B_x": _B_in["x"],
        "B_w1": _B_in["w1"],
        "B_b1": _B_in["b1"],
        "B_w2": _B_in["w2"],
        "B_b2": _B_in["b2"],
    }

def reference(A_x, A_wqkv, A_wo, B_x, B_w1, B_b1, B_w2, B_b2):
    def _A_ref(x, wqkv, wo):
        B, S, D = x.shape
        H = 32; Dh = D // H
        qkv = (lambda x, *d: x.permute(*d))((x @ wqkv).reshape(B, S, 3, H, Dh), 2, 0, 3, 1, 4)
        q, k, v = qkv[0], qkv[1], qkv[2]
        scale = Dh ** -0.5
        scores = torch.einsum("bhqd,bhkd->bhqk", q, k) * scale
        p = _softmax(scores, axis=-1)
        o = torch.einsum("bhqk,bhkd->bhqd", p, v)
        return (lambda x, *d: x.permute(*d))(o, 0, 2, 1, 3).reshape(B, S, D) @ wo

    def _B_ref(x, w1, b1, w2, b2):
        h = torch.einsum("bsd,df->bsf", x, w1) + b1
        zero = torch.zeros_like(h)
        r = torch.where(h > zero, h, zero)
        h = r * r
        out = torch.einsum("bsf,fd->bsd", h, w2) + b2
        return out

    x = A_x
    xn = _layernorm(x, axis=-1)
    s = _A_ref(xn, A_wqkv, A_wo)
    g = _silu(_B_ref(xn, B_w1, B_b1, B_w2, B_b2))
    return x + s * g
```

```python
import re

TRANS = ("v_exp_", "v_log_", "v_rcp_", "v_rsq_", "v_sqrt_", "v_sin_", "v_cos_")
REG_RE = re.compile(r"^(-?\|?|abs\(|-abs\()?([vsa])(\d+)\)?\|?$")
RNG_RE = re.compile(r"^(-?\|?)?([vsa])\[(\d+):(\d+)\]\|?$")


def regs_of(tok):
    tok = tok.strip()
    if tok == "vcc":
        return {("s", 106), ("s", 107)}
    if tok == "vcc_lo":
        return {("s", 106)}
    if tok == "vcc_hi":
        return {("s", 107)}
    if tok == "exec":
        return {("s", 126), ("s", 127)}
    if tok == "exec_lo":
        return {("s", 126)}
    if tok == "m0":
        return {("s", 124)}
    m = RNG_RE.match(tok)
    if m:
        return {(m.group(2), i) for i in range(int(m.group(3)), int(m.group(4)) + 1)}
    m = REG_RE.match(tok)
    if m:
        return {(m.group(2), int(m.group(3)))}
    return set()


def split_ops(rest):
    ops, depth, cur = [], 0, ""
    for ch in rest:
        if ch == "[":
            depth += 1
        elif ch == "]":
            depth -= 1
        if ch == "," and depth == 0:
            ops.append(cur.strip())
            cur = ""
        else:
            cur += ch
    if cur.strip():
        ops.append(cur.strip())
    mods = ""
    if ops:
        parts = ops[-1].split(None, 1)
        ops[-1] = parts[0]
        mods = parts[1] if len(parts) > 1 else ""
    return ops, mods


class Ins:
    def __init__(self, text):
        self.text = text
        body = text.split(";")[0].strip()
        parts = body.split(None, 1)
        self.op = parts[0]
        ops, mods = split_ops(parts[1]) if len(parts) > 1 else ([], "")
        self.ops, self.mods = ops, mods
        op = self.op
        self.kind = "other"
        self.dst, self.src = set(), set()
        self.srcc, self.srcab = set(), set()
        self.passes = 0
        self.states = 1
        self.trans = self.dot = self.dpp = self.perm = self.rdlane = False
        self.wide_store = set()
        R = [regs_of(o) for o in ops]
        if op == "s_nop":
            self.states = int(ops[0], 0) + 1
            self.kind = "salu"
        elif op.startswith("v_mfma") or op.startswith("v_smfmac"):
            self.kind = "mfma"
            self.passes = 8 if "32x32" in op else 4
            self.dst = R[0]
            if op.startswith("v_smfmac"):
                self.srcab = R[1] | R[2] | R[3]
                self.srcc = R[0]
            else:
                self.srcab = R[1] | R[2]
                self.srcc = R[3]
            self.src = self.srcab | self.srcc
        elif op.startswith("v_"):
            self.kind = "valu"
            self.dst = set(R[0])
            srcs = R[1:]
            if "_co_" in op or op.startswith("v_div_scale") or op.startswith("v_mad_u64"):
                self.dst |= R[1]
                srcs = R[2:]
            for r in srcs:
                self.src |= r
            if op.startswith(("v_fmac", "v_dot2c", "v_writelane")) or "_dpp" in op:
                self.src |= R[0]
            if op.startswith("v_permlane"):
                self.perm = True
                self.dst = R[0] | R[1]
                self.src = R[0] | R[1]
            if op.startswith("v_cmpx"):
                self.dst |= regs_of("exec")
            self.trans = op.startswith(TRANS)
            self.dot = op.startswith("v_dot")
            self.dpp = "_dpp" in op
            self.rdlane = op.startswith(("v_readlane", "v_readfirstlane"))
        elif op.startswith("ds_"):
            self.kind = "ds"
            if op.startswith(("ds_read", "ds_bpermute", "ds_permute", "ds_swizzle")) or "_rtn" in op:
                self.dst = R[0]
                for r in R[1:]:
                    self.src |= r
            else:
                for r in R:
                    self.src |= r
        elif op.startswith(("buffer_", "global_")):
            self.kind = "vmem"
            lds = " lds" in (" " + mods) or "_lds_" in op
            if "load" in op and not lds:
                self.dst = R[0]
                for r in R[1:]:
                    self.src |= r
            else:
                for r in R:
                    self.src |= r
                if lds:
                    self.src |= regs_of("m0")
                if "store" in op and ("x3" in op or "x4" in op):
                    self.wide_store = R[0] if op.startswith("buffer_") else R[1]
            self.ldsdma = lds
        elif op.startswith("s_"):
            self.kind = "salu"
            if op.startswith(("s_cmp", "s_cbranch", "s_branch", "s_waitcnt", "s_barrier", "s_endpgm",
                              "s_setprio", "s_sleep", "s_bitcmp")):
                for r in R:
                    self.src |= r
            elif R:
                self.dst = set(R[0])
                for r in R[1:]:
                    self.src |= r
                if "saveexec" in op:
                    self.dst |= regs_of("exec")


def vonly(s):
    return {r for r in s if r[0] in "va"}


def sonly(s):
    return {r for r in s if r[0] == "s"}


MF_RAW = {4: 8, 8: 12}
MF_PART = {4: 6, 8: 10}
MF_WAR = {4: 3, 8: 7}
EXEC = regs_of("exec")
M0 = regs_of("m0")


def need(p, c):
    n = 0
    if p.kind == "valu":
        pv, ps = vonly(p.dst), sonly(p.dst)
        if c.kind == "mfma" and pv & c.src:
            n = max(n, 3 if p.dot else 2)
        if c.kind == "mfma" and ps & EXEC:
            n = max(n, 4)
        if c.kind == "valu":
            if p.trans and not c.trans and pv & c.src:
                n = max(n, 1)
            if (c.dpp or c.perm) and pv & c.src:
                n = max(n, 2)
            if c.rdlane and pv & c.src:
                n = max(n, 1)
            if ps & c.src:
                n = max(n, 4 if c.op.startswith(("v_readlane", "v_writelane")) else 2)
            if ps & EXEC and c.dpp:
                n = max(n, 5)
            if ps & EXEC and (c.rdlane or c.perm):
                n = max(n, 4)
            if p.dot and pv & (c.src | c.dst):
                same_acc = c.op == p.op and not (pv & (c.src - c.dst))
                if not same_acc:
                    n = max(n, 3)
        if p.dot and c.kind in ("vmem", "ds") and pv & c.src:
            n = max(n, 3)
        if c.kind == "vmem" and ps & c.src:
            n = max(n, 5)
        if c.kind == "salu" and (ps - EXEC) & c.src and not c.op.startswith("s_cbranch"):
            n = max(n, 1)
    elif p.kind == "mfma":
        if c.kind == "mfma":
            if p.dst & c.srcab:
                n = max(n, MF_RAW[p.passes])
            if p.dst & c.srcc and not (p.dst == c.srcc and p.passes == c.passes):
                n = max(n, MF_PART[p.passes])
            if p.dst & c.dst and p.dst != c.dst:
                n = max(n, MF_PART[p.passes])
        elif c.kind in ("valu", "vmem", "ds"):
            if p.dst & (c.src | c.dst):
                n = max(n, MF_RAW[p.passes])
            if c.kind == "valu" and p.srcc & c.dst:
                n = max(n, MF_WAR[p.passes])
    elif p.kind == "salu":
        if p.dst & M0 and c.kind == "vmem" and M0 & c.src:
            n = max(n, 1)
    elif p.kind == "vmem":
        if p.wide_store & c.dst:
            n = max(n, 2)
    return n


class Asm:
    def __init__(self):
        self.items = []

    def __call__(self, text):
        for line in text.split("\n"):
            s = line.strip()
            if not s:
                continue
            if s.startswith(";") or s.startswith("."):
                self.items.append(("raw", s))
            elif s.endswith(":"):
                self.items.append(("label", s[:-1]))
            else:
                self.items.append(("ins", Ins(s)))

    def label(self, name):
        self.items.append(("label", name))

    @staticmethod
    def _shortfall(hist, c):
        dist, worst = 0, 0
        for p in reversed(hist):
            worst = max(worst, need(p, c) - dist)
            dist += p.states
            if dist > 24:
                break
        return worst

    def fix(self):
        out, hist, added = [], [], 0
        for kind, v in self.items:
            if kind == "ins":
                k = self._shortfall(hist, v)
                if k > 0:
                    nop = Ins("s_nop %d" % (k - 1))
                    out.append(("ins", nop))
                    hist.append(nop)
                    added += 1
                out.append((kind, v))
                hist.append(v)
                if v.op in ("s_branch", "s_endpgm"):
                    hist = []
            else:
                out.append((kind, v))
        self.items = out
        changed = True
        while changed:
            changed = False
            pos = {v: i for i, (k, v) in enumerate(self.items) if k == "label"}
            for i, (kind, v) in enumerate(self.items):
                if kind != "ins" or not v.op.startswith(("s_cbranch", "s_branch")):
                    continue
                hist = []
                for k2, v2 in reversed(self.items[:i]):
                    if k2 == "ins":
                        if v2.op in ("s_branch", "s_endpgm"):
                            break
                        hist.insert(0, v2)
                        if len(hist) > 24:
                            break
                hist.append(v)
                base = len(hist)
                worst = 0
                j = pos[v.ops[0]]
                steps = 0
                while j < len(self.items) and steps < 24:
                    k2, v2 = self.items[j]
                    j += 1
                    if k2 != "ins":
                        continue
                    dist = sum(h.states for h in hist[base:])
                    for p in reversed(hist[:base]):
                        worst = max(worst, need(p, v2) - dist)
                        dist += p.states
                        if dist > 24:
                            break
                    hist.append(v2)
                    steps += v2.states
                    if v2.op == "s_endpgm":
                        break
                    if v2.op == "s_branch":
                        j = pos[v2.ops[0]]
                if worst > 0:
                    self.items.insert(i, ("ins", Ins("s_nop %d" % (worst - 1))))
                    added += 1
                    changed = True
                    break
        return added

    def text(self):
        lines = []
        for kind, v in self.items:
            if kind == "ins":
                lines.append("    " + v.text)
            elif kind == "label":
                lines.append(v + ":")
            else:
                lines.append(("    " if v.startswith(";") else "") + v)
        return "\n".join(lines) + "\n"


def vr(a, n=1):
    return "v%d" % a if n == 1 else "v[%d:%d]" % (a, a + n - 1)


def sr(a, n=1):
    return "s%d" % a if n == 1 else "s[%d:%d]" % (a, a + n - 1)
```

```python
import sys
import os
sys.path.insert(0, os.path.dirname(os.path.abspath(__file__)))
from asmlib import Asm, vr, sr

NAME = "recurrent_scan__softmax_full_mha__dense_activation_squared_relu__prompt"
KERNEL = NAME + "_kernel"

WS_FLAGQ = 0x1000
WS_FLAGH = 0x2000
WS_STAMP = 0x10000
WS_QF = 0x100000
WS_KV = 0x300000
WS_OF = 0x700000
WS_HF = 0x900000
WS_END = WS_HF + 86 * 65536
EPOCH_INC = 0x9E3779B9
SPIN_MAX = 1 << 18

L_RING = 65536
L_CNT = 69632
L_OPART = 69888
L_W2 = L_OPART + 55296
L_XCH = L_OPART
PART_STRIDE = 272
PART_SIZE = 64 * PART_STRIDE

SX, SWQ, SWO, SW1, SB1, SW2, SB2, SOUT, SWS = 24, 28, 32, 36, 40, 44, 48, 52, 56
sW, sCG, sTB, sROT, sP, sQB, sTBF, sCB, sTAG, sCT0 = 60, 61, 62, 63, 64, 65, 66, 67, 68, 69
sVM = 70
T0, T1, T2, T3 = 72, 73, 74, 75
sXO = 76
sSTAMP = 4

QSCALE = 0x3EB8AA3B
NLOG2E = 0xBFB8AA3B


class Cfg:
    nA = 23
    stamps = False
    force_slow = False
    flag_chunk = 10


def srd(s):
    return sr(s, 4)


def gen(cfg):
    a = Asm()
    nA = cfg.nA
    nB = 32 - nA

    def stamp(i):
        if cfg.stamps:
            a("s_memrealtime %s" % sr(sSTAMP + 2 * i, 2))
            a("s_waitcnt lgkmcnt(0)")

    def mfma32(d, x, y, c):
        a("v_mfma_f32_32x32x16_bf16 %s, %s, %s, %s" % (vr(d, 16), vr(x, 4), vr(y, 4), "0" if c is None else vr(c, 16)))

    def mfma16(d, x, y, c):
        a("v_mfma_f32_16x16x32_bf16 %s, %s, %s, %s" % (vr(d, 4), vr(x, 4), vr(y, 4), "0" if c is None else vr(c, 4)))

    def smf(d, x, y, idx):
        a("v_smfmac_f32_32x32x32_bf16 %s, %s, %s, %s" % (vr(d, 16), vr(x, 4), vr(y, 8), vr(idx)))

    def bload(d, n, va, s, so, off=0, mod=""):
        op = {1: "dword", 2: "dwordx2", 4: "dwordx4"}[n]
        a("buffer_load_%s %s, %s, %s, %s offen offset:%d %s" % (op, vr(d, n), vr(va), srd(s), so, off, mod))

    def bstore(d, n, va, s, so, off=0, mod=""):
        op = {1: "dword", 2: "dwordx2", 4: "dwordx4"}[n]
        a("buffer_store_%s %s, %s, %s, %s offen offset:%d %s" % (op, vr(d, n), vr(va), srd(s), so, off, mod))

    def dma(va, s, so, off=0):
        a("buffer_load_dwordx4 %s, %s, %s offen offset:%d lds" % (vr(va), srd(s), so, off))

    def set_flag(vt, soff):
        a("v_mov_b32 %s, 0" % vr(vt))
        a("v_mov_b32 %s, %s" % (vr(vt + 1), sr(sTAG)))
        a("s_mov_b64 exec, 1")
        bstore(vt + 1, 1, vt, SWS, soff, 0, "sc0 sc1")
        a("s_mov_b64 exec, -1")

    def poll_flags(tag, va, vt, soff):
        a("s_mov_b32 %s, 0" % sr(T3))
        a.label("L_poll_" + tag)
        bload(vt, 1, va, SWS, soff, 0, "sc0 sc1")
        a("s_add_u32 %s, %s, 1" % (sr(T3), sr(T3)))
        a("s_cmp_ge_u32 %s, %d" % (sr(T3), SPIN_MAX))
        a("s_cbranch_scc1 L_polled_" + tag)
        a("s_waitcnt vmcnt(0)")
        a("v_cmp_ne_u32 vcc, %s, %s" % (sr(sTAG), vr(vt)))
        a("s_cbranch_vccnz L_poll_" + tag)
        a.label("L_polled_" + tag)
        a("s_waitcnt vmcnt(0)")

    a("s_cmp_ge_u32 s2, 256")
    a("s_cbranch_scc1 L_end")
    stamp(0)
    for s, off in ((SX, 0), (SWQ, 8), (SWS, 80), (SW1, 32), (SB1, 40), (SWO, 16), (SW2, 48), (SB2, 56), (SOUT, 64)):
        a("s_load_dwordx2 %s, s[0:1], %d" % (sr(s, 2), off))
    a("v_lshrrev_b32 v1, 6, v0")
    a("v_and_b32 v0, 63, v0")
    a("v_readfirstlane_b32 %s, v1" % sr(sW))
    for s, size in ((SX, 2048 * 1024), (SWQ, 512 * 3072), (SWS, WS_END), (SW1, 512 * 2752), (SB1, 2752),
                    (SWO, 512 * 1024), (SW2, 1376 * 1024), (SB2, 1024), (SOUT, 2048 * 1024)):
        a("s_mov_b32 %s, %d" % (sr(s + 2), size))
        a("s_mov_b32 %s, 0x20000" % sr(s + 3))
    a("""
    s_bfe_u32 s72, s2, 0x10003
    s_and_b32 s73, s2, 3
    s_lshl1_add_u32 s61, s73, s72
    s_lshr_b32 s65, s2, 4
    s_and_b32 s73, s2, 4
    s_lshl2_add_u32 s62, s73, s65
    s_and_b32 s63, s65, 7
    s_and_b32 s73, s2, 7
    s_lshl1_add_u32 s64, s73, s72
    s_bfe_u32 s72, s2, 0x20003
    s_lshl2_add_u32 s66, s73, s72
    s_lshr_b32 s67, s2, 5
    s_mul_i32 s69, s61, 43
    s_lshr_b32 s69, s69, 3
    s_mov_b32 s70, 0xffff
    s_mov_b32 s71, 0xffff
    """)
    a("s_cmp_ge_u32 %s, 4" % sr(sW))
    a("s_cbranch_scc1 L_loader")

    RAW = 128
    a("s_lshl_b32 s72, s62, 16")
    a("s_lshl_b32 s73, s60, 14")
    a("s_add_u32 s72, s72, s73")
    for j in range(8):
        a("s_add_u32 s73, s63, %d" % j)
        a("s_and_b32 s73, s73, 7")
        a("s_lshl_b32 s73, s73, 7")
        a("s_add_u32 %s, s72, s73" % sr(sXO + j))
    a("""
    v_lshrrev_b32 v1, 3, v0
    v_and_b32 v2, 7, v0
    v_lshlrev_b32 v3, 10, v1
    v_lshl_add_u32 v14, v2, 4, v3
    v_add_u32 v15, 0x2000, v14
    s_waitcnt lgkmcnt(0)
    """)
    a("s_load_dword %s, %s, 0" % (sr(sTAG), sr(SWS, 2)))
    for j in range(8):
        for rg in range(2):
            bload(RAW + (rg * 8 + j) * 4, 4, 14 + rg, SX, sr(sXO + j))
    a("s_barrier")
    a("""
    v_and_b32 v4, 31, v0
    v_lshrrev_b32 v5, 5, v0
    v_lshlrev_b32 v6, 20, v5
    v_lshl_add_u32 v6, v4, 1, v6
    s_lshr_b32 s74, s60, 1
    s_add_u32 s72, s69, s74
    s_lshl_b32 s72, s72, 6
    """)
    for seg in range(3):
        a("buffer_load_ushort %s, v6, %s, s72 offen offset:%d" % (vr(112 + 4 * seg), srd(SB1), seg * 128))
        for q in range(1, 4):
            a("v_mov_b32 %s, 0" % vr(112 + 4 * seg + q))
    for q in range(4):
        a("v_mov_b32 %s, 0x3f803f80" % vr(124 + q))
    a("""
    s_lshl_b32 s72, s60, 11
    v_lshrrev_b32 v3, 1, v1
    v_xor_b32 v3, v3, v2
    v_lshlrev_b32 v16, 7, v1
    v_lshl_add_u32 v16, v3, 4, v16
    v_add_u32 v16, s72, v16
    v_xor_b32 v17, 64, v16
    v_add_u32 v17, 0x400, v17
    """)
    a("""
    v_lshlrev_b32 v10, 4, v0
    v_and_b32 v1, 0x33, v0
    v_and_b32 v2, 4, v0
    v_lshl_or_b32 v1, v2, 1, v1
    v_and_b32 v2, 8, v0
    v_lshrrev_b32 v2, 1, v2
    v_or_b32 v1, v1, v2
    v_lshlrev_b32 v11, 4, v1
    v_and_b32 v1, 15, v0
    v_lshl_add_u32 v1, v5, 4, v1
    v_lshlrev_b32 v1, 4, v1
    v_bfe_u32 v2, v0, 4, 1
    v_lshl_add_u32 v12, v2, 17, v1
    """)
    a("""
    v_bfe_u32 v1, v0, 2, 2
    v_mul_u32_u24 v8, 3072, v5
    v_lshl_add_u32 v8, v1, 7, v8
    v_lshrrev_b32 v1, 1, v1
    v_xor_b32 v1, s74, v1
    v_lshl_add_u32 v8, v1, 6, v8
    v_lshl_add_u32 v8, v2, 5, v8
    v_and_b32 v1, 3, v0
    v_lshl_add_u32 v8, v1, 3, v8
    """)
    a("v_add_u32 v8, %d, v8" % L_RING)
    a("v_add_u32 v9, %d, v8" % (2 * 24576))
    a("""
    s_and_b32 s75, s60, 1
    s_lshl_b32 s72, s75, 12
    v_bfe_u32 v1, v4, 1, 3
    v_xor_b32 v1, v1, v5
    v_lshlrev_b32 v4, 7, v4
    v_lshl_add_u32 v4, v1, 4, v4
    v_add_u32 v4, s72, v4
    v_xor_b32 v5, 32, v4
    v_xor_b32 v6, 64, v4
    v_xor_b32 v7, 0x60, v4
    """)
    SUM, SQ = (18, 19), (20, 21)
    for r in SUM + SQ:
        a("v_mov_b32 %s, 0" % vr(r))
    for j in range(8):
        a("s_waitcnt vmcnt(%d)" % (3 + 14 - 2 * j))
        for q in range(4):
            for rg in range(2):
                x = RAW + (rg * 8 + j) * 4 + q
                a("v_dot2c_f32_bf16 %s, v124, %s" % (vr(SUM[rg]), vr(x)))
                a("v_dot2c_f32_bf16 %s, %s, %s" % (vr(SQ[rg]), vr(x), vr(x)))
    for ctl in ("quad_perm:[1,0,3,2]", "quad_perm:[2,3,0,1]", "row_half_mirror"):
        for r in SUM + SQ:
            a("v_add_f32_dpp %s, %s, %s %s row_mask:0xf bank_mask:0xf" % (vr(r), vr(r), vr(r), ctl))
    a("""
    v_mul_f32 v18, 0x3b000000, v18
    v_mul_f32 v19, 0x3b000000, v19
    v_mul_f32 v20, 0x3b000000, v20
    v_mul_f32 v21, 0x3b000000, v21
    v_fma_f32 v20, -v18, v18, v20
    v_fma_f32 v21, -v19, v19, v21
    v_max_f32 v20, 0, v20
    v_max_f32 v21, 0, v21
    v_cvt_pk_bf16_f32 v18, v18, v19
    v_cvt_pk_bf16_f32 v20, v20, v21
    v_and_b32 v19, 0xffff0000, v18
    v_lshlrev_b32 v18, 16, v18
    v_and_b32 v21, 0xffff0000, v20
    v_lshlrev_b32 v20, 16, v20
    v_add_f32 v20, 0x3727c5ac, v20
    v_add_f32 v21, 0x3727c5ac, v21
    v_cvt_pk_bf16_f32 v20, v20, v21
    v_and_b32 v21, 0xffff0000, v20
    v_lshlrev_b32 v20, 16, v20
    v_sqrt_f32 v21, v21
    v_sqrt_f32 v20, v20
    v_cvt_pk_bf16_f32 v20, v20, v21
    v_and_b32 v21, 0xffff0000, v20
    v_lshlrev_b32 v20, 16, v20
    v_rcp_f32 v26, v21
    v_rcp_f32 v22, v20
    v_mov_b32 v27, v26
    v_mov_b32 v23, v22
    v_mul_f32 v28, v19, v26
    v_mul_f32 v24, v18, v22
    v_sub_f32 v28, 0, v28
    v_sub_f32 v24, 0, v24
    v_mov_b32 v29, v28
    v_mov_b32 v25, v24
    """)
    for j in range(8):
        for rg in range(2):
            x = RAW + (rg * 8 + j) * 4
            t = 192 + rg * 8
            for q in range(4):
                a("v_lshlrev_b32 %s, 16, %s" % (vr(t + 2 * q), vr(x + q)))
                a("v_and_b32 %s, 0xffff0000, %s" % (vr(t + 2 * q + 1), vr(x + q)))
            for q in range(4):
                a("v_pk_fma_f32 %s, %s, %s, %s" % (vr(t + 2 * q, 2), vr(t + 2 * q, 2), vr(22 + 4 * rg, 2), vr(24 + 4 * rg, 2)))
            for q in range(4):
                a("v_cvt_pk_bf16_f32 %s, %s, %s" % (vr(x + q), vr(t + 2 * q), vr(t + 2 * q + 1)))
            a("ds_write_b128 %s, %s offset:%d" % (vr(16 + rg), vr(x, 4), j * 8192))
    a("s_waitcnt lgkmcnt(0)")
    a("s_add_u32 %s, %s, 0x%x" % (sr(sTAG), sr(sTAG), EPOCH_INC))
    stamp(1)

    ACC = (16, 32, 48)
    WB = (64, 76)
    XF = 128
    PK = 88

    def wread(g, seg):
        c, s = g >> 2, g & 3
        slot = c & 3
        base = 8 + (slot >> 1)
        off = (slot & 1) * 24576 + s * 6144 + seg * 1024
        d = WB[g & 1] + 4 * seg
        a("ds_read_b64_tr_b16 %s, %s offset:%d" % (vr(d, 2), vr(base), off))
        a("ds_read_b64_tr_b16 %s, %s offset:%d" % (vr(d + 2, 2), vr(base), off + 512))

    def xread(g):
        a("ds_read_b128 %s, %s offset:%d" % (vr(XF + 4 * g, 4), vr(4 + (g & 3)), (g >> 2) * 8192))

    def step_mfma(g, seg):
        x = XF + 4 * (g & 31)
        w = WB[g & 1] + 4 * seg
        c = None if g == 0 else ACC[seg]
        if g < 32 and seg == 2:
            mfma32(ACC[seg], x, w, c)
        else:
            mfma32(ACC[seg], w, x, c)

    a("""
    s_lshl1_add_u32 s72, s62, s75
    s_lshl1_add_u32 s73, s61, s74
    s_lshl_b32 s76, s73, 7
    s_add_u32 s76, s76, s72
    s_lshl_b32 s77, s76, 11
    s_lshl_b32 s76, s76, 10
    s_add_u32 s76, s76, %d
    s_add_u32 s77, s77, %d
    s_add_u32 s78, s69, s74
    s_lshl_b32 s78, s78, 7
    s_add_u32 s78, s78, s72
    s_lshl_b32 s78, s78, 10
    s_add_u32 s78, s78, %d
    s_lshl_b32 s79, s73, 6
    s_add_u32 s79, s79, s72
    s_lshl_b32 s79, s79, 2
    s_add_u32 s79, s79, %d
    s_lshl_b32 s80, s62, 3
    s_add_u32 s80, s80, s61
    s_lshl2_add_u32 s80, s80, s60
    s_lshl_b32 s80, s80, 2
    s_add_u32 s80, s80, %d
    """ % (WS_QF, WS_KV, WS_HF, WS_FLAGQ, WS_FLAGH))
    a("s_barrier")
    xread(0)
    for seg in range(3):
        wread(0, seg)
    for g in range(64):
        nxt = g + 1
        has_next = nxt < 64
        nx = 1 if (has_next and nxt < 32) else 0
        boundary = has_next and (nxt & 3) == 0
        if g == 32:
            a("; QKV epilogue: scale Q, pack, publish fragments")
            for i in range(16):
                a("v_mul_f32 %s, 0x%x, %s" % (vr(ACC[0] + i), QSCALE, vr(ACC[0] + i)))
            for t in (1, 2, 0):
                for q in range(8):
                    a("v_cvt_pk_bf16_f32 %s, %s, %s" % (vr(PK + 8 * t + q), vr(ACC[t] + 2 * q), vr(ACC[t] + 2 * q + 1)))
                if t == 1:
                    a("s_add_u32 s72, s77, 0x20000")
                    bstore(PK + 8, 4, 11, SWS, "s77", 0, "sc1")
                    bstore(PK + 12, 4, 11, SWS, "s72", 0, "sc1")
                elif t == 2:
                    bstore(PK + 16, 4, 12, SWS, "s77", 1024, "sc1")
                    bstore(PK + 20, 4, 12, SWS, "s77", 1536, "sc1")
                else:
                    a("s_add_u32 s72, s76, 0x10000")
                    bstore(PK, 4, 10, SWS, "s76", 0, "sc1")
                    bstore(PK + 4, 4, 10, SWS, "s72", 0, "sc1")
            stamp(2)
            a("s_waitcnt vmcnt(6)")
            for seg in range(3):
                mfma32(ACC[seg], 112 + 4 * seg, 124, None)
        if g == 4 * cfg.flag_chunk:
            a("s_waitcnt vmcnt(0)")
            set_flag(14, "s79")
        if boundary:
            a("s_waitcnt lgkmcnt(0)")
            step_mfma(g, 0)
            a("s_barrier")
            step_mfma(g, 1)
            if nx:
                xread(nxt)
            wread(nxt, 0)
            wread(nxt, 1)
            step_mfma(g, 2)
            wread(nxt, 2)
        elif has_next:
            a("s_waitcnt lgkmcnt(4)")
            step_mfma(g, 0)
            if nx:
                xread(nxt)
            wread(nxt, 0)
            a("s_waitcnt lgkmcnt(%d)" % (2 + nx + 2))
            step_mfma(g, 1)
            wread(nxt, 1)
            a("s_waitcnt lgkmcnt(%d)" % (nx + 4))
            step_mfma(g, 2)
            wread(nxt, 2)
        else:
            a("s_waitcnt lgkmcnt(0)")
            for seg in range(3):
                step_mfma(g, seg)
    for seg in range(3):
        for i in range(16):
            a("v_max_f32 %s, 0, %s" % (vr(ACC[seg] + i), vr(ACC[seg] + i)))
        for i in range(16):
            a("v_mul_f32 %s, %s, %s" % (vr(ACC[seg] + i), vr(ACC[seg] + i), vr(ACC[seg] + i)))
        for q in range(8):
            a("v_cvt_pk_bf16_f32 %s, %s, %s" % (vr(PK + 8 * seg + q), vr(ACC[seg] + 2 * q), vr(ACC[seg] + 2 * q + 1)))
        a("s_add_u32 s72, s78, %d" % (seg * 4 * 65536))
        a("s_add_u32 s73, s78, %d" % (seg * 4 * 65536 + 65536))
        bstore(PK + 8 * seg, 4, 10, SWS, "s72", 0, "sc1")
        bstore(PK + 8 * seg + 4, 4, 10, SWS, "s73", 0, "sc1")
    a("s_setprio 2")
    a("s_mov_b32 s81, %d" % nA)
    a("s_mov_b32 s82, %d" % nB)
    a("s_branch L_att")

    a.label("L_loader")
    a("""
    s_getpc_b64 s[72:73]
    L_pc:
    s_sub_u32 s72, s72, L_pc-%s
    s_subb_u32 s73, s73, 0
    s_sub_u32 s74, s60, 4
    s_lshl_b32 s75, s74, 6
    v_add_u32 v1, s75, v0
    v_lshlrev_b32 v1, 7, v1
    v_min_u32 v1, L_code_end-%s-4, v1
    v_mov_b32 v3, s73
    v_add_co_u32 v2, vcc, s72, v1
    v_addc_co_u32 v3, vcc, 0, v3, vcc
    global_load_dword v4, v[2:3], off
    """ % (KERNEL, KERNEL))
    a("""
    v_lshrrev_b32 v1, 3, v0
    v_and_b32 v2, 7, v0
    v_bfe_u32 v3, v1, 1, 1
    v_lshlrev_b32 v3, 2, v3
    v_xor_b32 v3, v3, v2
    v_lshlrev_b32 v3, 4, v3
    v_mul_u32_u24 v5, 3072, v1
    v_add_u32 v5, v5, v3
    v_mul_u32_u24 v6, 2752, v1
    v_add_u32 v6, v6, v3
    v_bfe_u32 v3, v1, 1, 2
    v_lshlrev_b32 v3, 1, v3
    v_xor_b32 v3, v3, v2
    v_lshlrev_b32 v3, 4, v3
    v_lshl_add_u32 v7, v1, 10, v3
    v_lshlrev_b32 v10, 4, v0
    v_mov_b32 v12, -1
    v_mov_b32 v13, -1
    v_mov_b32 v14, -1
    v_mov_b32 v15, -1
    s_and_b32 s72, s74, 1
    s_lshl1_add_u32 s72, s62, s72
    s_lshr_b32 s73, s74, 1
    s_lshl1_add_u32 s73, s61, s73
    s_lshl_b32 s72, s72, 5
    s_add_u32 s72, s72, s73
    s_lshl_b32 s72, s72, 10
    s_add_u32 s72, s72, %d
    s_add_u32 s73, s72, 0x4000
    s_waitcnt lgkmcnt(0)
    """ % WS_OF)
    a("s_load_dword %s, %s, 0" % (sr(sTAG), sr(SWS, 2)))
    bstore(12, 4, 10, SWS, "s72", 0, "sc1")
    bstore(12, 4, 10, SWS, "s73", 0, "sc1")
    a("""
    s_mul_i32 s76, s74, %d
    s_lshl_b32 s72, s61, 7
    s_add_u32 s76, s76, s72
    s_mul_i32 s77, s74, %d
    s_lshl_b32 s72, s69, 6
    s_add_u32 s77, s77, s72
    s_mul_i32 s78, s74, 6144
    s_add_u32 s78, s78, %d
    """ % (16 * 3072, 16 * 2752, L_RING))

    def issue_chunk(c):
        slot = c & 3
        a("s_add_u32 s72, s63, %d" % (c & 7))
        a("s_and_b32 s72, s72, 7")
        if c < 8:
            a("s_mul_i32 s72, s72, %d" % (64 * 3072))
            a("s_add_u32 s72, s72, s76")
            for rg in range(2):
                a("s_add_u32 m0, s78, %d" % (slot * 24576 + rg * 3072))
                if rg:
                    a("s_add_u32 s72, s72, %d" % (8 * 3072))
                for seg in range(3):
                    dma(5, SWQ, "s72", seg * 1024)
        else:
            a("s_mul_i32 s72, s72, %d" % (64 * 2752))
            a("s_add_u32 s72, s72, s77")
            for rg in range(2):
                for seg in range(3):
                    a("s_add_u32 m0, s78, %d" % (slot * 24576 + rg * 3072 + seg * 1024))
                    a("s_add_u32 s73, s72, %d" % (rg * 8 * 2752 + seg * 128))
                    dma(6, SW1, "s73")

    a("s_barrier")
    for c in range(4):
        issue_chunk(c)
    a("s_waitcnt lgkmcnt(0)")
    a("s_add_u32 %s, %s, 0x%x" % (sr(sTAG), sr(sTAG), EPOCH_INC))
    for c in range(16):
        if c == 0:
            n = 18
        elif c <= 12:
            n = 12
        else:
            n = 6 * (15 - c) + 16
        a("s_waitcnt vmcnt(%d)" % n)
        a("s_barrier")
        if c == 0:
            stamp(1)
        if c == 8:
            stamp(2)
        if 1 <= c <= 12:
            issue_chunk(c + 3)
        if c == 12:
            a("; wo tile -> LDS [0, 64K)")
            a("s_lshl_b32 s72, s74, 17")
            a("s_lshl_b32 s73, s67, 7")
            a("s_add_u32 s72, s72, s73")
            a("s_lshl_b32 s75, s74, 14")
            for i in range(16):
                a("s_add_u32 m0, s75, %d" % (i * 1024))
                a("s_add_u32 s73, s72, %d" % (i * 8192))
                dma(7, SWO, "s73")
        if c == 13:
            a("v_mov_b32 v1, %d" % L_CNT)
            a("v_mov_b32 v2, 0")
            a("v_mov_b32 v3, 0")
            a("ds_write_b64 v1, v[2:3]")
    a("s_cmp_lg_u32 s60, 4")
    a("s_cbranch_scc1 L_polled_q")
    a("s_lshl_b32 s72, s64, 8")
    a("s_add_u32 s72, s72, %d" % WS_FLAGQ)
    a("v_lshlrev_b32 v1, 2, v0")
    poll_flags("q", 1, 2, "s72")
    a("s_waitcnt lgkmcnt(0)")
    a("s_setprio 1")
    a("s_mov_b32 s81, %d" % nB)
    a("s_mov_b32 s82, 0")

    QR, OA, SB, KV = 4, 20, 84, 148
    a.label("L_att")
    a("""
    s_and_b32 s74, s60, 1
    s_bfe_u32 s75, s60, 0x10001
    s_lshl1_add_u32 s72, s64, s74
    s_lshl_b32 s83, s72, 17
    s_add_u32 s83, s83, %d
    s_lshl_b32 s73, s75, 5
    s_add_u32 s82, s82, s73
    s_lshl_b32 s82, s82, 11
    s_add_u32 s82, s82, s83
    s_add_u32 s84, s83, %d
    s_lshl_b32 s72, s72, 6
    s_lshl2_add_u32 s72, s65, s72
    s_lshl_b32 s72, s72, 10
    s_add_u32 s72, s72, %d
    s_lshl_b32 s73, s75, 11
    s_add_u32 s76, s72, s73
    s_xor_b32 s73, s73, 0x800
    s_add_u32 s77, s72, s73
    v_lshlrev_b32 v1, 4, v0
    v_and_b32 v2, 15, v0
    v_lshrrev_b32 v3, 5, v0
    v_lshl_add_u32 v2, v3, 4, v2
    v_lshlrev_b32 v2, 4, v2
    v_mov_b32 v3, 0xdddddddd
    """ % (WS_KV, 63 * 2048, WS_QF))
    for i in range(64):
        a("v_mov_b32 %s, 0" % vr(OA + i))
    for b in range(4):
        for q in range(8):
            a("v_mov_b32 %s, 0x3f803f80" % vr(KV + 12 * b + 4 + q))
    a("s_barrier")
    stamp(3)

    def kvload(b):
        bload(KV + 12 * b, 4, 1, SWS, "s82", 0, "sc1")
        a("s_mov_b64 exec, %s" % sr(sVM, 2))
        bload(KV + 12 * b + 4, 4, 2, SWS, "s82", 1024, "sc1")
        bload(KV + 12 * b + 8, 4, 2, SWS, "s82", 1536, "sc1")
        a("s_mov_b64 exec, -1")
        a("s_add_u32 s82, s82, 2048")
        a("s_min_u32 s82, s82, s84")

    bload(QR, 4, 1, SWS, "s76", 0, "sc1")
    kvload(0)
    bload(QR + 4, 4, 1, SWS, "s76", 1024, "sc1")
    bload(QR + 8, 4, 1, SWS, "s77", 0, "sc1")
    bload(QR + 12, 4, 1, SWS, "s77", 1024, "sc1")
    kvload(1)
    kvload(2)
    a("s_waitcnt vmcnt(6)")
    a("s_cmp_ge_u32 s60, 4")
    a("s_cbranch_scc1 L_att_noflag")
    set_flag(196, "s80")
    a.label("L_att_noflag")
    for i in range(8):
        a("v_mov_b32 %s, 0" % vr(SB + 48 + 8 + i))
    mfma32(SB, KV, QR, None)
    a("s_nop 10")
    a(".p2align 3")
    a.label("L_att_loop")
    for b in range(4):
        for t in range(4):
            cur, prv = SB + 16 * t, SB + 16 * ((t + 3) & 3)
            if t == 3:
                a("s_waitcnt vmcnt(6)")
                mfma32(SB, KV + 12 * ((b + 1) & 3), QR, None)
            else:
                mfma32(SB + 16 * (t + 1), KV + 12 * b, QR + 4 * (t + 1), None)
            for i in range(16):
                a("v_exp_f32 %s, %s" % (vr(cur + i), vr(cur + i)))
                if i == 3:
                    pb = b if t else (b + 3) & 3
                    smf(OA + 16 * ((t + 3) & 3), KV + 12 * pb + 8, prv + 8, 3)
                if i == 11:
                    smf(OA + 16 * t, KV + 12 * b + 4, cur, 3)
                if t == 0 and i == 6:
                    kvload((b + 3) & 3)
                if t == 3 and i == 13:
                    a("s_sub_u32 s81, s81, 1")
                    a("s_cmp_eq_u32 s81, 0")
        if b < 3:
            a("s_cbranch_scc1 L_att_exit%d" % b)
        else:
            a("s_cbranch_scc0 L_att_loop")
    for b in (3, 0, 1, 2):
        if b != 3:
            a.label("L_att_exit%d" % b)
        a("s_nop 0")
        smf(OA + 48, KV + 12 * b + 8, SB + 48 + 8, 3)
        if b != 2:
            a("s_branch L_att_done")
    a.label("L_att_done")
    stamp(4)
    a("""
    s_mul_i32 s72, s74, %d
    s_add_u32 s72, s72, %d
    s_mul_i32 s73, s75, %d
    s_add_u32 s76, s72, s73
    s_sub_u32 s77, %d, s73
    s_add_u32 s77, s77, s72
    v_lshlrev_b32 v200, 2, v0
    v_add_u32 v196, s76, v1
    v_add_u32 v197, s77, v1
    v_add_u32 v198, s76, v200
    v_add_u32 v199, s77, v200
    s_lshl_b32 s72, s74, 2
    s_add_u32 s72, s72, %d
    v_mov_b32 v201, s72
    v_mov_b32 v202, 1
    s_cmp_ge_u32 s60, 4
    s_cbranch_scc1 L_tail_b
    """ % (4 * 3 * 2304, L_OPART, 2 * 3 * 2304, 2 * 3 * 2304, L_CNT))

    def dump(t, extra):
        off = (t & 1) * 3 * 2304 + extra
        a("ds_write_b128 %s, %s offset:%d" % (vr(196 + (t >> 1)), vr(OA + 16 * t, 4), off))
        a("ds_write_b128 %s, %s offset:%d" % (vr(196 + (t >> 1)), vr(OA + 16 * t + 4, 4), off + 1024))
        a("ds_write_b32 %s, %s offset:%d" % (vr(198 + (t >> 1)), vr(OA + 16 * t + 8), off + 2048))

    def arrive():
        a("s_waitcnt lgkmcnt(0)")
        a("s_mov_b64 exec, 1")
        a("ds_add_u32 v201, v202")
        a("s_mov_b64 exec, -1")

    a("s_mul_i32 s72, s75, 2304")
    for r in range(196, 200):
        a("v_add_u32 %s, s72, %s" % (vr(r), vr(r)))
    for t in range(4):
        dump(t, 0)
    arrive()
    a("s_lshl_b32 s72, s66, 7")
    a("s_add_u32 s72, s72, %d" % WS_FLAGH)
    a("v_and_b32 v4, 31, v0")
    a("v_lshlrev_b32 v4, 2, v4")
    poll_flags("h", 4, 5, "s72")
    FA, HB, WF = 20, 128, 84
    a("""
    v_lshrrev_b32 v4, 3, v0
    v_and_b32 v5, 7, v0
    v_bfe_u32 v6, v4, 1, 1
    v_lshlrev_b32 v6, 2, v6
    v_xor_b32 v6, v6, v5
    v_lshlrev_b32 v6, 4, v6
    v_lshl_add_u32 v4, v4, 10, v6
    s_lshl_b32 s76, s60, 14
    s_lshl_b32 s72, s67, 7
    s_add_u32 s76, s76, s72
    s_lshl_b32 s77, s60, 6
    s_lshl1_add_u32 s77, s66, s77
    s_lshl_b32 s77, s77, 10
    s_add_u32 s77, s77, %d
    s_lshl_b32 s78, s60, 13
    s_add_u32 s78, s78, %d
    v_bfe_u32 v5, v0, 2, 2
    v_lshrrev_b32 v6, 5, v0
    v_lshl_add_u32 v6, v6, 2, v5
    v_lshlrev_b32 v6, 7, v6
    v_lshrrev_b32 v5, 1, v5
    v_lshl_add_u32 v6, v5, 6, v6
    v_bfe_u32 v5, v0, 4, 1
    v_lshl_add_u32 v6, v5, 5, v6
    v_and_b32 v5, 3, v0
    v_lshl_add_u32 v6, v5, 3, v6
    v_add_u32 v6, s78, v6
    v_xor_b32 v7, 64, v6
    """ % (WS_HF, L_W2))
    NS = 22

    def f2_issue(i):
        a("s_add_u32 m0, s78, %d" % ((i & 3) * 2048))
        a("s_add_u32 s72, s76, %d" % (i * 65536))
        dma(4, SW2, "s72")
        a("s_add_u32 m0, s78, %d" % ((i & 3) * 2048 + 1024))
        a("s_add_u32 s72, s72, 8192")
        dma(4, SW2, "s72")
        a("s_add_u32 s73, s77, %d" % (i * 4 * 65536))
        bload(HB + 8 * (i & 3), 4, 1, SWS, "s73", 0, "sc1")
        bload(HB + 8 * (i & 3) + 4, 4, 1, SWS, "s73", 1024, "sc1")

    def f2_read(i):
        for nt in range(2):
            d = WF + 8 * (i & 1) + 4 * nt
            a("ds_read_b64_tr_b16 %s, %s offset:%d" % (vr(d, 2), vr(6 + nt), (i & 3) * 2048))
            a("ds_read_b64_tr_b16 %s, %s offset:%d" % (vr(d + 2, 2), vr(6 + nt), (i & 3) * 2048 + 1024))

    for i in range(4):
        f2_issue(i)
    a("s_waitcnt vmcnt(12)")
    f2_read(0)
    for i in range(NS):
        if i + 1 < NS:
            a("s_waitcnt vmcnt(%d)" % (4 * min(2, NS - 2 - i)))
            f2_read(i + 1)
            a("s_waitcnt lgkmcnt(4)")
        else:
            a("s_waitcnt vmcnt(0) lgkmcnt(0)")
        for tt in range(2):
            for nt in range(2):
                d = FA + 16 * (2 * tt + nt)
                mfma32(d, WF + 8 * (i & 1) + 4 * nt, HB + 8 * (i & 3) + 4 * tt, None if i == 0 else d)
        if i + 4 < NS:
            f2_issue(i + 4)
    stamp(5)
    a("s_branch L_tail")

    a.label("L_tail_b")
    dump(2, 2 * 2304)
    dump(3, 2 * 2304)
    arrive()
    a("s_mov_b32 s73, 0")
    a.label("L_cnt_poll")
    a("""
    ds_read_b32 v203, v201
    s_add_u32 s73, s73, 1
    s_cmp_ge_u32 s73, %d
    s_cbranch_scc1 L_cnt_done
    s_waitcnt lgkmcnt(0)
    v_cmp_ne_u32 vcc, 4, v203
    s_cbranch_vccnz L_cnt_poll
    """ % (SPIN_MAX * 8))
    a.label("L_cnt_done")
    PR = SB
    for t in range(2):
        for src in range(3):
            d = PR + 10 * (3 * t + src)
            off = t * 3 * 2304 + src * 2304
            a("ds_read_b128 %s, v196 offset:%d" % (vr(d, 4), off))
            a("ds_read_b128 %s, v196 offset:%d" % (vr(d + 4, 4), off + 1024))
            a("ds_read_b32 %s, v198 offset:%d" % (vr(d + 8), off + 2048))
            if t == 1 and src == 1:
                a("s_waitcnt lgkmcnt(12)")
    a("""
    s_lshl_b32 s72, s65, 3
    s_lshl2_add_u32 s72, s75, s72
    s_lshl_b32 s72, s72, 4
    s_add_u32 s72, s72, s64
    s_lshl_b32 s72, s72, 10
    s_lshl_b32 s73, s74, 9
    s_add_u32 s72, s72, s73
    s_add_u32 s76, s72, %d
    s_add_u32 s77, s76, 0x8000
    v_bfe_u32 v204, v0, 4, 1
    v_lshl_add_u32 v204, v204, 14, v2
    """ % WS_OF)
    for t in range(2):
        for src in range(3):
            a("s_waitcnt lgkmcnt(%d)" % (3 * (5 - (3 * t + src))))
            d = PR + 10 * (3 * t + src)
            for i in range(9):
                a("v_add_f32 %s, %s, %s" % (vr(OA + 16 * t + i), vr(OA + 16 * t + i), vr(d + i)))
    for t in range(2):
        a("v_mov_b32 %s, %s" % (vr(205 + t), vr(OA + 16 * t + 8)))
    for i in range(8):
        for t in range(2):
            a("v_fma_f32 %s, %s, 0, %s" % (vr(205 + t), vr(OA + 16 * t + i), vr(205 + t)))
    a("""
    v_cmp_le_f32 vcc, 0x30800000, v205
    s_mov_b64 s[72:73], vcc
    v_cmp_ge_f32 vcc, 0x5d800000, v205
    s_and_b64 s[72:73], s[72:73], vcc
    v_cmp_le_f32 vcc, 0x30800000, v206
    s_and_b64 s[72:73], s[72:73], vcc
    v_cmp_ge_f32 vcc, 0x5d800000, v206
    s_and_b64 s[72:73], s[72:73], vcc
    s_cmp_eq_u64 s[72:73], -1
    """)
    a("s_branch L_slow" if cfg.force_slow else "s_cbranch_scc0 L_slow")
    a.label("L_norm")
    for t in range(2):
        a("v_rcp_f32 %s, %s" % (vr(205 + t), vr(OA + 16 * t + 8)))
    for t in range(2):
        for i in range(8):
            a("v_mul_f32 %s, %s, %s" % (vr(OA + 16 * t + i), vr(205 + t), vr(OA + 16 * t + i)))
        for q in range(4):
            a("v_cvt_pk_bf16_f32 %s, %s, %s" % (vr(208 + 4 * t + q), vr(OA + 16 * t + 2 * q), vr(OA + 16 * t + 2 * q + 1)))
        for q in range(4):
            a("v_min_u32 %s, -2, %s" % (vr(208 + 4 * t + q), vr(208 + 4 * t + q)))
        bstore(208 + 4 * t, 4, 204, SWS, "s76" if t == 0 else "s77", 0, "sc1")
    stamp(5)
    a("s_waitcnt vmcnt(2)")

    WOF, OFR, AC = 128, 84, 4
    a.label("L_tail")
    a("""
    s_and_b32 s74, s60, 3
    s_lshr_b32 s75, s60, 2
    v_bfe_u32 v120, v0, 2, 2
    v_bfe_u32 v121, v0, 4, 1
    v_lshl_add_u32 v120, v121, 2, v120
    v_lshrrev_b32 v121, 1, v120
    s_lshl_b32 s72, s75, 1
    v_xor_b32 v121, s72, v121
    v_lshlrev_b32 v116, 7, v120
    v_lshl_add_u32 v116, v121, 5, v116
    v_lshrrev_b32 v121, 5, v0
    v_lshl_add_u32 v116, v121, 11, v116
    v_and_b32 v121, 3, v0
    v_lshl_add_u32 v116, v121, 3, v116
    s_lshl_b32 s72, s75, 15
    v_add_u32 v116, s72, v116
    v_xor_b32 v117, 32, v116
    v_xor_b32 v118, 64, v116
    v_xor_b32 v119, 0x60, v116
    """)
    for ks in range(8):
        for ct in range(4):
            d = WOF + (ks * 4 + ct) * 4
            a("ds_read_b64_tr_b16 %s, %s offset:%d" % (vr(d, 2), vr(116 + ct), ks * 4096))
            a("ds_read_b64_tr_b16 %s, %s offset:%d" % (vr(d + 2, 2), vr(116 + ct), ks * 4096 + 1024))
    a("""
    v_and_b32 v2, 15, v0
    v_lshrrev_b32 v3, 4, v0
    v_lshlrev_b32 v3, 3, v3
    v_lshl_add_u32 v2, v2, 10, v3
    s_lshl2_add_u32 s72, s66, s74
    s_lshl_b32 s78, s72, 14
    s_lshl1_add_u32 s79, s67, s75
    s_lshl_b32 s79, s79, 6
    s_add_u32 s78, s78, s79
    s_lshl1_add_u32 s76, s72, s75
    s_lshl_b32 s76, s76, 13
    s_add_u32 s76, s76, %d
    s_add_u32 s77, s76, 0x1000
    """ % WS_OF)
    bload(120, 2, 2, SX, "s78", 0)
    bload(122, 2, 2, SX, "s78", 32)
    bload(124, 2, 3, SB2, "s79", 0)
    bload(126, 2, 3, SB2, "s79", 32)
    a("s_waitcnt lgkmcnt(0)")
    a("s_barrier")
    stamp(6)

    def oloads():
        for ks in range(8):
            bload(OFR + 4 * ks, 4, 1, SWS, "s76" if ks < 4 else "s77", (ks & 3) * 1024, "sc1")

    a("s_cmp_ge_u32 s60, 4")
    a("s_cbranch_scc1 L_nodump")
    a("""
    v_and_b32 v4, 31, v0
    v_mul_u32_u24 v4, %d, v4
    v_lshrrev_b32 v5, 5, v0
    v_lshl_add_u32 v4, v5, 4, v4
    s_mul_i32 s72, s60, %d
    v_add_u32 v4, s72, v4
    """ % (PART_STRIDE, PART_SIZE))
    for tt in range(2):
        for nt in range(2):
            for q in range(4):
                a("ds_write_b128 v4, %s offset:%d" % (vr(FA + 16 * (2 * tt + nt) + 4 * q, 4), tt * 32 * PART_STRIDE + nt * 128 + q * 32))
    a.label("L_nodump")
    a("""
    v_and_b32 v4, 15, v0
    s_lshl_b32 s72, s74, 4
    v_add_u32 v4, s72, v4
    v_mul_u32_u24 v4, %d, v4
    v_lshrrev_b32 v5, 4, v0
    v_lshl_add_u32 v4, v5, 4, v4
    s_lshl_b32 s72, s75, 7
    v_add_u32 v4, s72, v4
    s_waitcnt lgkmcnt(0)
    s_barrier
    """ % PART_STRIDE)
    oloads()
    G = 20
    for j in range(4):
        for ct in range(2):
            a("ds_read_b128 %s, v4 offset:%d" % (vr(G + 8 * j + 4 * ct, 4), j * PART_SIZE + ct * 64))
    a("s_waitcnt vmcnt(8)")
    for q in range(4):
        a("v_lshlrev_b32 %s, 16, %s" % (vr(52 + 2 * q), vr(124 + q)))
        a("v_and_b32 %s, 0xffff0000, %s" % (vr(53 + 2 * q), vr(124 + q)))
    for q in range(4):
        a("v_lshlrev_b32 %s, 16, %s" % (vr(60 + 2 * q), vr(120 + q)))
        a("v_and_b32 %s, 0xffff0000, %s" % (vr(61 + 2 * q), vr(120 + q)))
    for j in range(4):
        a("s_waitcnt lgkmcnt(%d)" % (6 - 2 * j))
        for i in range(8):
            a("v_add_f32 %s, %s, %s" % (vr(52 + i), vr(52 + i), vr(G + 8 * j + i)))
    for i in range(8):
        a("v_mul_f32 %s, 0x%x, %s" % (vr(G + i), NLOG2E, vr(52 + i)))
    for i in range(8):
        a("v_exp_f32 %s, %s" % (vr(G + i), vr(G + i)))
    for i in range(8):
        a("v_add_f32 %s, 1.0, %s" % (vr(G + i), vr(G + i)))
    for i in range(8):
        a("v_rcp_f32 %s, %s" % (vr(G + i), vr(G + i)))
    for i in range(8):
        a("v_mul_f32 %s, %s, %s" % (vr(52 + i), vr(52 + i), vr(G + i)))
    a("s_mov_b32 s73, 0")
    a.label("L_ocheck")
    a("s_waitcnt vmcnt(0)")
    a("v_max3_u32 v28, %s, %s, %s" % (vr(OFR), vr(OFR + 1), vr(OFR + 2)))
    a("v_max3_u32 v29, %s, %s, %s" % (vr(OFR + 3), vr(OFR + 4), vr(OFR + 5)))
    for i in range(6, 30, 4):
        a("v_max3_u32 v28, v28, %s, %s" % (vr(OFR + i), vr(OFR + i + 1)))
        a("v_max3_u32 v29, v29, %s, %s" % (vr(OFR + i + 2), vr(OFR + i + 3)))
    a("v_max3_u32 v28, v28, %s, %s" % (vr(OFR + 30), vr(OFR + 31)))
    a("v_max_u32 v28, v28, v29")
    a("v_cmp_eq_u32 vcc, -1, v28")
    a("s_cbranch_vccz L_ovalid")
    a("s_add_u32 s73, s73, 1")
    a("s_cmp_ge_u32 s73, %d" % SPIN_MAX)
    a("s_cbranch_scc1 L_ovalid")
    oloads()
    a("s_branch L_ocheck")
    a.label("L_ovalid")
    stamp(7)
    for ks in range(8):
        for ct in (2, 3, 0, 1):
            d = AC + 4 * ct
            mfma16(d, WOF + (ks * 4 + ct) * 4, OFR + 4 * ks, None if ks == 0 else d)
    a("s_lshl_b32 s72, s60, 11")
    a("s_add_u32 s72, s72, %d" % L_XCH)
    a("v_add_u32 v30, s72, v1")
    a("s_xor_b32 s73, s60, 4")
    a("s_lshl_b32 s73, s73, 11")
    a("s_add_u32 s73, s73, %d" % L_XCH)
    a("v_add_u32 v31, s73, v1")
    a("ds_write_b128 v30, %s" % vr(AC + 8, 4))
    a("ds_write_b128 v30, %s offset:1024" % vr(AC + 12, 4))
    a("s_waitcnt lgkmcnt(0)")
    a("s_barrier")
    a("ds_read_b128 v[32:35], v31")
    a("ds_read_b128 v[36:39], v31 offset:1024")
    for ct in range(2):
        a("s_waitcnt lgkmcnt(%d)" % (1 - ct))
        for i in range(4):
            a("v_add_f32 %s, %s, %s" % (vr(AC + 4 * ct + i), vr(AC + 4 * ct + i), vr(32 + 4 * ct + i)))
        for i in range(4):
            a("v_fma_f32 %s, %s, %s, %s" % (vr(AC + 4 * ct + i), vr(AC + 4 * ct + i), vr(52 + 4 * ct + i), vr(60 + 4 * ct + i)))
        for q in range(2):
            a("v_cvt_pk_bf16_f32 %s, %s, %s" % (vr(40 + 2 * ct + q), vr(AC + 4 * ct + 2 * q), vr(AC + 4 * ct + 2 * q + 1)))
        bstore(40 + 2 * ct, 2, 2, SOUT, "s78", 32 * ct)
    a("s_or_b32 s72, s2, s60")
    a("s_cmp_lg_u32 s72, 0")
    a("s_cbranch_scc1 L_noepoch")
    set_flag(44, "0")
    a.label("L_noepoch")
    if cfg.stamps:
        a("s_waitcnt vmcnt(0)")
        stamp(8)
        a("s_lshl3_add_u32 s72, s2, s60")
        a("s_lshl_b32 s72, s72, 6")
        a("s_add_u32 s72, s72, %d" % WS_STAMP)
        a("v_mov_b32 v44, 0")
        for i in range(9):
            a("v_mov_b32 %s, %s" % (vr(48 + i), sr(sSTAMP + 2 * i)))
        a("s_mov_b64 exec, 1")
        bstore(48, 4, 44, SWS, "s72", 0)
        bstore(52, 4, 44, SWS, "s72", 16)
        bstore(56, 1, 44, SWS, "s72", 32)
    a.label("L_end")
    a("s_endpgm")

    a.label("L_slow")
    MX, CN = 205, SB + 32
    a("s_waitcnt vmcnt(0)")
    a("v_mov_b32 v205, 0xff800000")
    a("v_mov_b32 v206, 0xff800000")
    a("s_mov_b32 s82, s83")
    a("s_mov_b32 s81, 64")
    a.label("L_slow1")
    bload(KV, 4, 1, SWS, "s82", 0, "sc1")
    a("s_add_u32 s82, s82, 2048")
    a("s_waitcnt vmcnt(0)")
    mfma32(SB, KV, QR, None)
    mfma32(SB + 16, KV, QR + 4, None)
    for t in range(2):
        for i in range(0, 16, 2):
            a("v_max3_f32 %s, %s, %s, %s" % (vr(MX + t), vr(MX + t), vr(SB + 16 * t + i), vr(SB + 16 * t + i + 1)))
    a("s_sub_u32 s81, s81, 1")
    a("s_cmp_lg_u32 s81, 0")
    a("s_cbranch_scc1 L_slow1")
    for t in range(2):
        a("v_mov_b32 v207, %s" % vr(MX + t))
        a("v_permlane32_swap_b32 v207, %s" % vr(MX + t))
        a("v_max_f32 %s, v207, %s" % (vr(MX + t), vr(MX + t)))
        for i in range(16):
            a("v_sub_f32 %s, 0, %s" % (vr(CN + 16 * t + i), vr(MX + t)))
            a("v_mov_b32 %s, 0" % vr(OA + 16 * t + i))
    a("s_mov_b32 s82, s83")
    a("s_mov_b32 s81, 64")
    a.label("L_slow2")
    kvload(0)
    a("s_waitcnt vmcnt(0)")
    mfma32(SB, KV, QR, CN)
    mfma32(SB + 16, KV, QR + 4, CN + 16)
    for t in range(2):
        for i in range(16):
            a("v_exp_f32 %s, %s" % (vr(SB + 16 * t + i), vr(SB + 16 * t + i)))
        smf(OA + 16 * t, KV + 4, SB + 16 * t, 3)
        smf(OA + 16 * t, KV + 8, SB + 16 * t + 8, 3)
    a("s_sub_u32 s81, s81, 1")
    a("s_cmp_lg_u32 s81, 0")
    a("s_cbranch_scc1 L_slow2")
    a("s_branch L_norm")
    a.label("L_code_end")
    a("s_endpgm")

    added = a.fix()
    return a.text(), added


HEADER = """; Kernarg layout for this problem (88 bytes, ptrs only, base s[0:1]):
; @launch grid=(256,1,1) block=(512,1,1) lds=163840
.amdgcn_target "amdgcn-amd-amdhsa--gfx950"
.text
.globl {k}
.p2align 8
.type {k},@function
{k}:
"""

FOOTER = """.section .rodata,"a"
.p2align 6
.amdhsa_kernel {k}
  .amdhsa_next_free_vgpr 256
  .amdhsa_next_free_sgpr 96
  .amdhsa_accum_offset 256
  .amdhsa_group_segment_fixed_size 0
  .amdhsa_kernarg_size 88
  .amdhsa_user_sgpr_count 2
  .amdhsa_user_sgpr_kernarg_segment_ptr 1
  .amdhsa_system_sgpr_workgroup_id_x 1
.end_amdhsa_kernel
"""


def build(**kw):
    cfg = Cfg()
    for k, v in kw.items():
        setattr(cfg, k, v)
    body, added = gen(cfg)
    return HEADER.format(k=KERNEL) + body + FOOTER.format(k=KERNEL), added


if __name__ == "__main__":
    out = sys.argv[1] if len(sys.argv) > 1 else "cdna_kernels/%s.s" % NAME
    kw = {}
    for arg in sys.argv[2:]:
        k, v = arg.split("=")
        kw[k] = int(v)
    text, added = build(**kw)
    open(out, "w").write(text)
    print("wrote", out, "lines", text.count("\n"), "nops added", added)
```

```python
import sys
import os
sys.path.insert(0, os.path.dirname(os.path.abspath(__file__)))
from asmlib import Asm, vr, sr

NAME = "recurrent_scan__softmax_full_mha__dense_activation_squared_relu__prompt"
KERNEL = NAME + "_kernel"

WS_FLAGQ = 0x1000
WS_FLAGH = 0x2000
WS_STAMP = 0x10000
WS_QF = 0x100000
WS_KV = 0x300000
WS_OF = 0x700000
WS_HF = 0x900000
WS_END = WS_HF + 86 * 65536
EPOCH_INC = 0x9E3779B9
SPIN_MAX = 1 << 18

L_RING = 65536
L_OPART = 65536
L_W2 = L_OPART + 55296
L_PART = 65536
PART_STRIDE = 272
PART_SIZE = 64 * PART_STRIDE
L_XCH = L_PART + 4 * PART_SIZE

SX, SWQ, SWO, SW1, SB1, SW2, SB2, SOUT, SWS = 24, 28, 32, 36, 40, 44, 48, 52, 56
sW, sCG, sTB, sRW, sP, sQB, sTBF, sCB, sTAG, sCT0 = 60, 61, 62, 63, 64, 65, 66, 67, 68, 69
sVM = 70
sSTAMP = 4

QSCALE = 0x3EB8AA3B
NLOG2E = 0xBFB8AA3B
NS = 22


class Cfg:
    n1 = 5
    n2 = 19
    stamps = 0
    force_slow = 0
    flag_step = 48
    hold = 9
    post = 11
    w0_at = 4
    w1_at = 4
    oearly = 0


def srd(s):
    return sr(s, 4)


class Queue:
    def __init__(self, a, name, maxn):
        self.a, self.name, self.maxn, self.items = a, name, maxn, []

    def push(self, tag):
        self.items.append(tag)

    def wait(self, *tags):
        last = max((i for i, t in enumerate(self.items) if t in tags), default=-1)
        if last < 0:
            return
        n = len(self.items) - 1 - last
        self.a("s_waitcnt %s(%d)" % (self.name, min(n, self.maxn)))
        self.items = self.items[last + 1:]

    def drain(self):
        self.a("s_waitcnt %s(0)" % self.name)
        self.items = []


def gen(cfg):
    a = Asm()
    nA = cfg.n1 + cfg.n2
    nB = 32 - nA
    vm = Queue(a, "vmcnt", 63)
    lg = Queue(a, "lgkmcnt", 15)

    def stamp(i):
        if cfg.stamps:
            a("%s s[22:23]" % ("s_memtime" if cfg.stamps == 2 else "s_memrealtime"))
            a("s_waitcnt lgkmcnt(0)")
            a("s_mov_b32 %s, s22" % sr(sSTAMP + i))

    def mfma32(d, x, y, c):
        a("v_mfma_f32_32x32x16_bf16 %s, %s, %s, %s" % (vr(d, 16), vr(x, 4), vr(y, 4), "0" if c is None else vr(c, 16)))

    def mfma16(d, x, y, c):
        a("v_mfma_f32_16x16x32_bf16 %s, %s, %s, %s" % (vr(d, 4), vr(x, 4), vr(y, 4), "0" if c is None else vr(c, 4)))

    def smf(d, x, y):
        a("v_smfmac_f32_32x32x32_bf16 %s, %s, %s, v3" % (vr(d, 16), vr(x, 4), vr(y, 8)))

    def bload(d, n, va, s, so, off=0, mod="", tag=None):
        op = {1: "dword", 2: "dwordx2", 4: "dwordx4"}[n]
        a("buffer_load_%s %s, %s, %s, %s offen offset:%d %s" % (op, vr(d, n), vr(va), srd(s), so, off, mod))
        vm.push(tag)

    def bstore(d, n, va, s, so, off=0, mod="", tag=None):
        op = {1: "dword", 2: "dwordx2", 4: "dwordx4"}[n]
        a("buffer_store_%s %s, %s, %s, %s offen offset:%d %s" % (op, vr(d, n), vr(va), srd(s), so, off, mod))
        vm.push(tag)

    def dma(va, s, so, off=0, tag=None):
        a("buffer_load_dwordx4 %s, %s, %s offen offset:%d lds" % (vr(va), srd(s), so, off))
        vm.push(tag)

    def dsr(op, d, n, va, off, tag=None):
        a("%s %s, %s offset:%d" % (op, vr(d, n), vr(va), off))
        lg.push(tag)

    def dsw(op, va, d, n, off, tag=None):
        a("%s %s, %s offset:%d" % (op, vr(va), vr(d, n), off))
        lg.push(tag)

    def trread(d, va, off, second, tag=None):
        dsr("ds_read_b64_tr_b16", d, 2, va, off, tag)
        dsr("ds_read_b64_tr_b16", d + 2, 2, va, off + second, tag)

    def set_flag(vt, soff):
        a("v_mov_b32 %s, %s" % (vr(vt), sr(sTAG)))
        a("s_mov_b64 exec, 1")
        bstore(vt, 1, 1, SWS, soff, 0, "sc0 sc1")
        a("s_mov_b64 exec, -1")

    stubs = []

    def check_flags(tag, vt, lanes, soff):
        a("v_cmp_ne_u32 vcc, %s, %s" % (sr(sTAG), vr(vt)))
        a("s_cbranch_vccnz L_poll_" + tag)
        a.label("L_polled_" + tag)
        stubs.append((tag, vt, lanes, soff))

    def flag_load(vt, lanes, soff, tag):
        a("v_and_b32 %s, %d, v0" % (vr(vt), lanes - 1))
        a("v_lshlrev_b32 %s, 2, %s" % (vr(vt), vr(vt)))
        bload(vt, 1, vt, SWS, soff, 0, "sc0 sc1", tag)

    a("s_cmp_ge_u32 s2, 256")
    a("s_cbranch_scc1 L_end")
    stamp(0)
    if cfg.stamps:
        for i in range(1, 16):
            a("s_mov_b32 %s, s22" % sr(sSTAMP + i))
    for s, off in ((SX, 0), (SWQ, 8), (SW1, 32), (SWS, 80), (SB1, 40), (SWO, 16), (SW2, 48), (SB2, 56), (SOUT, 64)):
        a("s_load_dwordx2 %s, s[0:1], %d" % (sr(s, 2), off))
    a("""
    v_lshrrev_b32 v1, 6, v0
    v_and_b32 v0, 63, v0
    v_readfirstlane_b32 s60, v1
    s_getpc_b64 s[72:73]
    L_pc:
    s_and_b32 s74, s2, 0xf8
    s_add_u32 s74, s74, s60
    s_lshl_b32 s74, s74, 8
    v_and_b32 v4, 1, v0
    v_lshl_add_u32 v4, v4, 7, s74
    v_min_u32 v4, L_code_end-L_pc, v4
    v_mov_b32 v5, s73
    v_add_co_u32 v4, vcc, s72, v4
    v_addc_co_u32 v5, vcc, 0, v5, vcc
    global_load_dword v7, v[4:5], off
    """)
    vm.push("pf")
    a("""
    s_bfe_u32 s72, s2, 0x20003
    s_lshr_b32 s67, s2, 5
    s_and_b32 s73, s2, 6
    s_lshl2_add_u32 s62, s73, s67
    s_lshl1_add_u32 s63, s72, s60
    s_and_b32 s63, s63, 7
    s_lshl3_add_u32 s74, s62, s63
    s_lshl_b32 s74, s74, 13
    s_lshl3_add_u32 s75, s2, s60
    s_mul_i32 s75, s75, 768
    v_lshrrev_b32 v4, 3, v0
    v_and_b32 v5, 7, v0
    v_lshlrev_b32 v14, 10, v4
    v_lshl_add_u32 v14, v5, 4, v14
    v_min_u32 v6, 5, v0
    v_lshlrev_b32 v6, 7, v6
    """)
    sizes = {SX: 2048 * 1024, SWQ: 512 * 3072, SWS: WS_END, SW1: 512 * 2752, SB1: 2752,
             SWO: 512 * 1024, SW2: 1376 * 1024, SB2: 1024, SOUT: 2048 * 1024}
    for s in (SX, SWQ, SW1):
        a("s_mov_b32 %s, %d" % (sr(s + 2), sizes[s]))
        a("s_mov_b32 %s, 0x20000" % sr(s + 3))
    a("s_waitcnt lgkmcnt(0)")
    RAW = 128
    bload(7, 1, 6, SWQ, "s75", 0, "", "pf")
    for j in range(8):
        bload(RAW + j * 4, 4, 14, SX, "s74", j * 128, "", ("x", j))
    bload(7, 1, 6, SW1, "s75", 0, "", "pf")
    a("s_load_dword %s, %s, 0" % (sr(sTAG), sr(SWS, 2)))
    for s in (SWS, SB1, SWO, SW2, SB2, SOUT):
        a("s_mov_b32 %s, %d" % (sr(s + 2), sizes[s]))
        a("s_mov_b32 %s, 0x20000" % sr(s + 3))
    a("""
    s_and_b32 s73, s2, 1
    s_lshl2_add_u32 s61, s73, s72
    s_and_b32 s73, s2, 7
    s_lshl2_add_u32 s66, s73, s72
    s_and_b32 s72, s72, 1
    s_lshl1_add_u32 s64, s73, s72
    s_lshr_b32 s65, s2, 4
    s_mul_i32 s69, s61, 43
    s_lshr_b32 s69, s69, 3
    s_mov_b32 s70, 0xffff
    s_mov_b32 s71, 0xffff
    s_mov_b32 s89, 0xffff0000
    s_and_b32 s74, s60, 3
    s_mul_i32 s85, s74, %d
    s_lshl_b32 s72, s61, 7
    s_add_u32 s85, s85, s72
    s_mul_i32 s90, s60, %d
    s_add_u32 s90, s90, s72
    s_mul_i32 s91, s60, 3072
    s_mul_i32 s86, s74, %d
    s_lshl_b32 s72, s69, 6
    s_add_u32 s86, s86, s72
    s_mul_i32 s87, s74, 6144
    s_add_u32 s87, s87, %d
    v_lshlrev_b32 v1, 4, v0
    v_and_b32 v2, 15, v0
    v_lshrrev_b32 v3, 5, v0
    v_lshl_add_u32 v2, v3, 4, v2
    v_lshlrev_b32 v2, 4, v2
    v_bfe_u32 v6, v4, 1, 1
    v_lshlrev_b32 v6, 2, v6
    v_xor_b32 v6, v6, v5
    v_lshlrev_b32 v6, 4, v6
    v_mul_u32_u24 v13, 3072, v4
    v_add_u32 v13, v13, v6
    s_and_b32 s72, s63, 1
    s_lshl_b32 s72, s72, 2
    v_lshrrev_b32 v24, 1, v4
    v_xor_b32 v24, v24, v5
    v_xor_b32 v24, s72, v24
    s_lshl_b32 s72, s63, 10
    v_lshlrev_b32 v15, 7, v4
    v_lshl_add_u32 v15, v24, 4, v15
    v_add_u32 v15, s72, v15
    v_mov_b32 v30, 0x3f803f80
    v_mov_b32 v24, 0
    v_mov_b32 v25, 0
    """ % (16 * 3072, 8 * 3072, 16 * 2752, L_RING))
    a("""
    s_and_b32 s74, s60, 1
    s_lshr_b32 s75, s60, 1
    s_lshl1_add_u32 s72, s64, s74
    s_lshl_b32 s83, s72, 17
    s_add_u32 s83, s83, %d
    s_and_b32 s73, s75, 1
    s_lshl_b32 s73, s73, 16
    s_add_u32 s82, s83, s73
    s_lshl_b32 s72, s72, 6
    s_lshl2_add_u32 s72, s65, s72
    s_lshl_b32 s72, s72, 10
    s_add_u32 s72, s72, %d
    s_mul_i32 s84, s74, %d
    s_add_u32 s84, s84, %d
    """ % (WS_KV, WS_QF, 12 * 2304, L_OPART))
    for t in range(4):
        a("s_xor_b32 s73, s75, %d" % t)
        a("s_mul_i32 %s, s73, %d" % (sr(96 + t), 3 * 2304))
        a("s_lshl_b32 s73, s73, 10")
        a("s_add_u32 %s, s72, s73" % sr(92 + t))
        a("s_add_u32 %s, %s, s84" % (sr(96 + t), sr(96 + t)))
    a("s_cmp_ge_u32 s60, 4")
    a("s_cbranch_scc1 L_setup_b")
    a("""
    s_add_u32 s82, s82, %d
    v_and_b32 v8, 0x33, v0
    v_and_b32 v9, 4, v0
    v_lshl_or_b32 v8, v9, 1, v8
    v_and_b32 v9, 8, v0
    v_lshrrev_b32 v9, 1, v9
    v_or_b32 v8, v8, v9
    v_lshlrev_b32 v11, 4, v8
    v_bfe_u32 v9, v0, 4, 1
    v_lshl_add_u32 v12, v9, 17, v2
    v_lshl_add_u32 v4, v4, 10, v6
    v_bfe_u32 v10, v0, 2, 2
    v_lshlrev_b32 v5, 5, v9
    v_lshl_add_u32 v5, v10, 7, v5
    v_and_b32 v9, 3, v0
    v_lshl_add_u32 v5, v9, 3, v5
    v_lshrrev_b32 v10, 1, v10
    v_mul_u32_u24 v8, 3072, v3
    v_add_u32 v8, v8, v5
    v_xor_b32 v9, s75, v10
    v_lshl_add_u32 v8, v9, 6, v8
    v_add_u32 v8, %d, v8
    v_add_u32 v9, %d, v8
    v_lshl_add_u32 v5, v3, 9, v5
    v_lshl_add_u32 v5, v10, 6, v5
    s_lshl_b32 s84, s60, 13
    s_add_u32 s84, s84, %d
    v_add_u32 v5, s84, v5
    v_xor_b32 v6, 64, v5
    v_and_b32 v10, 31, v0
    s_lshl_b32 s72, s74, 12
    v_bfe_u32 v16, v10, 1, 3
    v_xor_b32 v16, v16, v3
    v_lshlrev_b32 v16, 4, v16
    v_lshl_add_u32 v16, v10, 7, v16
    v_add_u32 v16, s72, v16
    v_xor_b32 v17, 32, v16
    v_xor_b32 v18, 64, v16
    v_xor_b32 v19, 0x60, v16
    v_lshlrev_b32 v10, 1, v10
    v_lshl_add_u32 v10, v3, 20, v10
    """ % (nB * 2048, L_RING, 2 * 24576, L_W2))
    for seg in range(3):
        for q in range(1, 4):
            a("v_mov_b32 %s, 0" % vr(112 + 4 * seg + q))
    for q in range(4):
        a("v_mov_b32 %s, v30" % vr(124 + q))
    a("""
    s_lshl1_add_u32 s72, s62, s74
    s_lshl1_add_u32 s73, s61, s75
    s_lshl_b32 s76, s73, 7
    s_add_u32 s76, s76, s72
    s_lshl_b32 s77, s76, 11
    s_lshl_b32 s76, s76, 10
    s_add_u32 s76, s76, %d
    s_add_u32 s77, s77, %d
    s_add_u32 s81, s69, s75
    s_lshl_b32 s78, s81, 7
    s_add_u32 s78, s78, s72
    s_lshl_b32 s78, s78, 10
    s_add_u32 s78, s78, %d
    s_lshl_b32 s79, s73, 6
    s_add_u32 s79, s79, s72
    s_lshl_b32 s79, s79, 2
    s_add_u32 s79, s79, %d
    s_lshl_b32 s80, s62, 3
    s_add_u32 s80, s80, s61
    s_lshl2_add_u32 s80, s80, s60
    s_lshl_b32 s80, s80, 2
    s_add_u32 s80, s80, %d
    s_mul_i32 s72, s61, 43
    s_add_u32 s72, s72, 43
    s_lshr_b32 s72, s72, 3
    s_add_u32 s73, s81, 4
    s_add_u32 s88, s78, %d
    s_cmp_lt_u32 s73, s72
    s_cselect_b32 s88, s88, 0x40000000
    s_lshl_b32 s81, s81, 6
    """ % (WS_QF, WS_KV, WS_HF, WS_FLAGQ, WS_FLAGH, 8 * 65536))
    a("""
    s_lshl_b32 s85, s60, 14
    s_lshl_b32 s72, s67, 7
    s_add_u32 s85, s85, s72
    s_lshl_b32 s86, s60, 6
    s_lshl1_add_u32 s86, s66, s86
    s_lshl_b32 s86, s86, 10
    s_add_u32 s86, s86, %d
    s_lshl_b32 s87, s66, 7
    s_add_u32 s87, s87, %d
    s_branch L_ln
    """ % (WS_HF, WS_FLAGH))
    a.label("L_setup_b")
    a("""
    v_mul_u32_u24 v12, 2752, v4
    v_add_u32 v12, v12, v6
    v_bfe_u32 v6, v4, 1, 2
    v_lshlrev_b32 v6, 1, v6
    v_xor_b32 v6, v6, v5
    v_lshlrev_b32 v6, 4, v6
    v_lshl_add_u32 v4, v4, 10, v6
    v_min_u32 v5, 10, v0
    v_lshlrev_b32 v5, 7, v5
    v_min_u32 v6, 3, v0
    v_lshlrev_b32 v6, 7, v6
    v_mov_b32 v8, -1
    v_mov_b32 v9, -1
    v_mov_b32 v10, -1
    v_mov_b32 v11, -1
    s_lshl1_add_u32 s72, s62, s74
    s_and_b32 s73, s75, 1
    s_lshl1_add_u32 s73, s61, s73
    s_lshl_b32 s76, s72, 5
    s_add_u32 s76, s76, s73
    s_lshl_b32 s76, s76, 10
    s_add_u32 s76, s76, %d
    s_add_u32 s77, s76, 0x4000
    s_lshl_b32 s79, s64, 8
    s_add_u32 s79, s79, %d
    """ % (WS_OF, WS_FLAGQ))

    a.label("L_ln")

    def coop_chunk(c):
        a("s_add_u32 m0, s91, %d" % (L_RING + c * 24576))
        a("s_add_u32 s72, s90, %d" % (c * 64 * 3072))
        for seg in range(3):
            dma(13, SWQ, "s72", seg * 1024, ("w", c))

    a("v_mov_b32 v3, 0xdddddddd")
    for j in range(8):
        if j == cfg.w0_at:
            coop_chunk(0)
        vm.wait(("x", j))
        for q in range(4):
            x = RAW + j * 4 + q
            a("v_dot2c_f32_bf16 v24, v30, %s" % vr(x))
            a("v_dot2c_f32_bf16 v25, %s, %s" % (vr(x), vr(x)))
    stamp(1)
    for ctl in ("quad_perm:[1,0,3,2]", "quad_perm:[2,3,0,1]", "row_half_mirror"):
        for r in (24, 25):
            a("v_add_f32_dpp %s, %s, %s %s row_mask:0xf bank_mask:0xf" % (vr(r), vr(r), vr(r), ctl))
    a("""
    v_mul_f32 v24, 0x3b000000, v24
    v_mul_f32 v25, 0x3b000000, v25
    v_fma_f32 v25, -v24, v24, v25
    v_max_f32 v25, 0, v25
    v_cvt_pk_bf16_f32 v24, v24, v25
    v_and_b32 v25, s89, v24
    v_add_f32 v25, 0x3727c5ac, v25
    v_cvt_pk_bf16_f32 v25, v25, v25
    v_and_b32 v25, s89, v25
    v_sqrt_f32 v25, v25
    v_lshlrev_b32 v24, 16, v24
    v_cvt_pk_bf16_f32 v25, v25, v25
    v_and_b32 v25, s89, v25
    v_rcp_f32 v26, v25
    v_rcp_f32 v27, v25
    v_mul_f32_e64 v28, -v24, v26
    v_mul_f32_e64 v29, -v24, v26
    """)
    for j in range(8):
        if j == cfg.w1_at:
            coop_chunk(1)
        x = RAW + j * 4
        t = 192 + (j & 1) * 8
        for q in range(4):
            a("v_lshlrev_b32 %s, 16, %s" % (vr(t + 2 * q), vr(x + q)))
            a("v_and_b32 %s, s89, %s" % (vr(t + 2 * q + 1), vr(x + q)))
        for q in range(4):
            a("v_pk_fma_f32 %s, %s, v[26:27], v[28:29]" % (vr(t + 2 * q, 2), vr(t + 2 * q, 2)))
        for q in range(4):
            a("v_cvt_pk_bf16_f32 %s, %s, %s" % (vr(x + q), vr(t + 2 * q), vr(t + 2 * q + 1)))
        a("ds_write_b128 v15, %s offset:%d" % (vr(x, 4), j * 8192))
    stamp(2)
    a("s_cmp_ge_u32 s60, 4")
    a("s_cbranch_scc1 L_loader")
    vm_split = list(vm.items)

    QR, SB, WF, FA, OA, KV, HB = 8, 24, 56, 64, 128, 192, 240

    def att_init_ops():
        ops = ["v_mov_b32 %s, 0" % vr(OA + i) for i in range(64)]
        ops2 = ["v_and_b32 v7, 27, v0", "v_cmp_eq_u32 vcc, 16, v7", "v_mov_b32 v7, 0x3f803f80", "v_cndmask_b32 v7, 0, v7, vcc"]
        ops2 += ["v_mov_b32 %s, v7" % vr(KV + 12 * b + 4 + q) for b in range(4) for q in range(8)]
        return ops, ops2

    def kvload(j):
        b = j & 3
        bload(KV + 12 * b, 4, 1, SWS, "s82", 0, "sc1", ("kv", j))
        a("s_mov_b64 exec, %s" % sr(sVM, 2))
        bload(KV + 12 * b + 4, 4, 2, SWS, "s82", 1024, "sc1", ("kv", j))
        bload(KV + 12 * b + 8, 4, 2, SWS, "s82", 1536, "sc1", ("kv", j))
        a("s_mov_b64 exec, -1")
        a("s_add_u32 s82, s82, 2048")

    def att_loads():
        bload(QR, 4, 1, SWS, "s92", 0, "sc1", "q")
        kvload(0)
        for t in range(1, 4):
            bload(QR + 4 * t, 4, 1, SWS, sr(92 + t), 0, "sc1", "q")
        kvload(1)
        kvload(2)

    def att_run(n, hooks):
        vm.wait("q", ("kv", 0))
        mfma32(SB, KV, QR, None)
        for j in range(n):
            b = j & 3
            for t in range(4):
                cur, oth = SB + 16 * (t & 1), SB + 16 * ((t + 1) & 1)
                for i in range(16):
                    a("v_exp_f32 %s, %s" % (vr(cur + i), vr(cur + i)))
                    if i == 1 and (j, t) != (0, 0):
                        smf(OA + 16 * ((t + 3) & 3), KV + 12 * (b if t else (b + 3) & 3) + 8, oth + 8)
                    if i == 4:
                        if t < 3:
                            mfma32(oth, KV + 12 * b, QR + 4 * (t + 1), None)
                        elif j + 1 < n:
                            vm.wait(("kv", j + 1))
                            mfma32(oth, KV + 12 * ((b + 1) & 3), QR, None)
                    if i == 9:
                        smf(OA + 16 * t, KV + 12 * b + 4, cur)
                    if t == 0 and i == 6 and j + 3 < n:
                        kvload(j + 3)
                    for h in hooks.get((j, t, i), ()):
                        h()
        smf(OA + 48, KV + 12 * ((n - 1) & 3) + 8, SB + 16 + 8)

    ACC = (24, 40, 56)
    WB = (72, 84)
    XF, PK, XA = 128, 96, 16

    def wread(g, seg):
        c, s = g >> 2, g & 3
        slot = c & 3
        trread(WB[g & 1] + 4 * seg, 8 + (slot >> 1), (slot & 1) * 24576 + s * 6144 + seg * 1024, 512, (g, seg))

    def xread(g):
        dsr("ds_read_b128", XF + 4 * g, 4, XA + (g & 3), (g >> 2) * 8192, (g, 0))

    init1, init2 = att_init_ops()
    shadow = []

    def step_mfma(g, seg):
        x = XF + 4 * (g & 31)
        w = WB[g & 1] + 4 * seg
        c = None if g == 0 else ACC[seg]
        lg.wait((g, seg))
        if g < 32 and seg == 2:
            mfma32(ACC[seg], x, w, c)
        else:
            mfma32(ACC[seg], w, x, c)
        for _ in range(2 if g < 60 else 3):
            if shadow:
                a(shadow.pop(0))

    vm.wait(("w", 0))
    a("s_waitcnt lgkmcnt(0)")
    a("s_add_u32 %s, %s, 0x%x" % (sr(sTAG), sr(sTAG), EPOCH_INC))
    a("s_barrier")
    stamp(3)
    xread(0)
    for seg in range(3):
        wread(0, seg)
    for g in range(64):
        nxt = g + 1
        has_next = nxt < 64 and nxt != 32
        boundary = has_next and (nxt & 3) == 0
        if g == 8:
            for seg in range(3):
                a("buffer_load_ushort %s, v10, %s, s81 offen offset:%d" % (vr(112 + 4 * seg), srd(SB1), seg * 128))
                vm.push("b1")
        if g == 32:
            stamp(4)
            for i in range(16):
                a("v_mul_f32 %s, 0x%x, %s" % (vr(ACC[0] + i), QSCALE, vr(ACC[0] + i)))
            for n, t in enumerate((1, 2, 0)):
                pk = PK + 8 * (n & 1)
                for q in range(8):
                    a("v_cvt_pk_bf16_f32 %s, %s, %s" % (vr(pk + q), vr(ACC[t] + 2 * q), vr(ACC[t] + 2 * q + 1)))
                if t == 1:
                    a("s_add_u32 s72, s77, 0x20000")
                    bstore(pk, 4, 11, SWS, "s77", 0, "sc1", "st")
                    bstore(pk + 4, 4, 11, SWS, "s72", 0, "sc1", "st")
                elif t == 2:
                    bstore(pk, 4, 12, SWS, "s77", 1024, "sc1", "st")
                    bstore(pk + 4, 4, 12, SWS, "s77", 1536, "sc1", "st")
                else:
                    a("s_add_u32 s72, s76, 0x10000")
                    bstore(pk, 4, 1, SWS, "s76", 0, "sc1", "st")
                    bstore(pk + 4, 4, 1, SWS, "s72", 0, "sc1", "st")
            stamp(5)
            a("s_barrier")
            vm.wait("b1")
            for seg in range(3):
                mfma32(ACC[seg], 112 + 4 * seg, 124, None)
            a("s_barrier")
            for seg in range(3):
                wread(32, seg)
        if g == cfg.flag_step:
            vm.wait("st")
            set_flag(7, "s79")
            stamp(6)
        if g == 48:
            shadow.extend(init1)
        if g == 60:
            shadow.extend(init2)
        if boundary:
            if nxt == 4:
                vm.wait(("w", 1))
            lg.drain()
            step_mfma(g, 0)
            a("s_barrier")
            step_mfma(g, 1)
            if nxt < 32:
                xread(nxt)
            wread(nxt, 0)
            wread(nxt, 1)
            step_mfma(g, 2)
            wread(nxt, 2)
        elif has_next:
            step_mfma(g, 0)
            if nxt < 32:
                xread(nxt)
            wread(nxt, 0)
            step_mfma(g, 1)
            wread(nxt, 1)
            step_mfma(g, 2)
            wread(nxt, 2)
        else:
            lg.drain()
            for seg in range(3):
                step_mfma(g, seg)
    while shadow:
        a(shadow.pop(0))
    stamp(7)
    a("s_barrier")
    stamp(8)
    a("s_setprio 2")
    att_loads()
    for seg in range(3):
        pk = PK + 8 * (seg & 1)
        for i in range(16):
            a("v_max_f32 %s, 0, %s" % (vr(ACC[seg] + i), vr(ACC[seg] + i)))
        for i in range(16):
            a("v_mul_f32 %s, %s, %s" % (vr(ACC[seg] + i), vr(ACC[seg] + i), vr(ACC[seg] + i)))
        for q in range(8):
            a("v_cvt_pk_bf16_f32 %s, %s, %s" % (vr(pk + q), vr(ACC[seg] + 2 * q), vr(ACC[seg] + 2 * q + 1)))
        if seg < 2:
            a("s_add_u32 s72, s78, %d" % (seg * 4 * 65536))
        else:
            a("s_mov_b32 s72, s88")
        a("s_add_u32 s73, s72, 0x10000")
        bstore(pk, 4, 1, SWS, "s72", 0, "sc1", "hst")
        bstore(pk + 4, 4, 1, SWS, "s73", 0, "sc1", "hst")
    stamp(9)


    def w2dma(i):
        a("s_add_u32 m0, s84, %d" % ((i & 3) * 2048))
        a("s_add_u32 s72, s85, %d" % (i * 65536))
        dma(4, SW2, "s72", 0, ("w2", i))
        a("s_add_u32 m0, s84, %d" % ((i & 3) * 2048 + 1024))
        a("s_add_u32 s72, s72, 8192")
        dma(4, SW2, "s72", 0, ("w2", i))

    hreg = lambda i, tt: HB + 8 * (i & 1) + 4 * tt

    def hload(i, tt, reg=None):
        a("s_add_u32 s72, s86, %d" % (i * 4 * 65536))
        bload(hreg(i, tt) if reg is None else reg, 4, 1, SWS, "s72", tt * 1024, "sc1", ("h", i, tt))

    def w2read(i, nt, reg=None):
        vm.wait(("w2", i))
        trread(WF + 4 * nt if reg is None else reg, 5 + nt, (i & 3) * 2048, 1024, ("wf", i, nt))

    def fmfma(i, tt, nt, wreg=None, hr=None):
        vm.wait(("h", i, tt))
        lg.wait(("wf", i, nt))
        d = FA + 16 * (2 * tt + nt)
        mfma32(d, WF + 4 * nt if wreg is None else wreg, hreg(i, tt) if hr is None else hr, None if i == 0 else d)

    hooks = {}

    def hook(j, t, i, f):
        hooks.setdefault((j, t, i), []).append(f)

    n1, n2 = cfg.n1, cfg.n2
    hook(1, 3, 6, lambda: (vm.wait("hst"), set_flag(7, "s80")))
    hook(n1 - 2, 0, 8, lambda: flag_load(7, 32, "s87", "hf"))
    hook(n1 - 2, 3, 12, lambda: (vm.wait("hf"), check_flags("h", 7, 32, "s87")))
    hook(n1 - 1, 0, 8, lambda: (hload(0, 0), hload(0, 1)))
    hook(n1 - 1, 2, 2, lambda: hload(1, 0))
    for i in range(min(NS, n2 + 3)):
        hook(n1 - 3 + i, 1, 2, lambda i=i: w2dma(i))
    for i in range(min(NS, n2 + 1)):
        hook(n1 - 1 + i, 3, 0, lambda i=i: w2read(i, 1))
    for i in range(n2):
        j = n1 + i
        hook(j, 0, 0, lambda i=i: w2read(i, 0))
        if i + 1 < NS:
            hook(j, 0, 8, lambda i=i: hload(i + 1, 1))
        if i + 2 < NS:
            hook(j, 2, 2, lambda i=i: hload(i + 2, 0))
        for t, (tt, nt) in enumerate(((0, 0), (0, 1), (1, 1), (1, 0))):
            hook(j, t, 13, lambda i=i, tt=tt, nt=nt: fmfma(i, tt, nt))
    att_run(nA, hooks)
    left = list(range(n2, NS))
    hextra = {}
    for i in left:
        for tt in range(2):
            if i <= n2 or (i == n2 + 1 and tt == 0):
                continue
            hextra[(i, tt)] = KV + 12 + 4 * len(hextra)
            hload(i, tt, hextra[(i, tt)])
    vm_a, lg_a = list(vm.items), list(lg.items)
    a("s_branch L_att_done")

    a.label("L_loader")
    vm.items = list(vm_split)
    lg.items = []

    def issue_chunk(c):
        slot = c & 3
        if c < 8:
            for rg in range(2):
                a("s_add_u32 m0, s87, %d" % (slot * 24576 + rg * 3072))
                a("s_add_u32 s72, s85, %d" % ((c * 64 + rg * 8) * 3072))
                for seg in range(3):
                    dma(13, SWQ, "s72", seg * 1024, ("w", c))
        else:
            for rg in range(2):
                for seg in range(3):
                    a("s_add_u32 m0, s87, %d" % (slot * 24576 + rg * 3072 + seg * 1024))
                    a("s_add_u32 s72, s86, %d" % (((c - 8) * 64 + rg * 8) * 2752 + seg * 128))
                    dma(12, SW1, "s72", 0, ("w", c))

    issue_chunk(2)
    a("s_waitcnt lgkmcnt(0)")
    a("s_add_u32 %s, %s, 0x%x" % (sr(sTAG), sr(sTAG), EPOCH_INC))
    issued = 2
    for c in range(16):
        if c == 8:
            a("s_barrier")
            while issued < cfg.post:
                issued += 1
                issue_chunk(issued)
        vm.wait(("w", c))
        a("s_barrier")
        if c in (0, 8, 12, 15):
            stamp({0: 3, 8: 4, 12: 5, 15: 6}[c])
        lim = min(15, c + 3)
        if c < 8:
            lim = min(lim, cfg.hold)
        while issued < lim:
            issued += 1
            issue_chunk(issued)
        if c == 1:
            a("; sentinel prefill of the O fragments this workgroup's Q/K/V flags will release")
            bstore(8, 4, 1, SWS, "s76", 0, "sc1", "pre")
            bstore(8, 4, 1, SWS, "s77", 0, "sc1", "pre")
        if c == 2:
            for op in init1:
                a(op)
        if c == 3:
            for op in init2:
                a(op)
        if c == 12:
            a("; memory-side prefetch of w2 and wo")
            a("s_and_b32 s73, s60, 3")
            a("s_lshl2_add_u32 s73, s2, s73")
            a("s_mul_i32 s72, s73, 1408")
            a("s_lshl_b32 s73, s73, 9")
            bload(14, 1, 5, SW2, "s72", 0, "", "pf")
            bload(14, 1, 6, SWO, "s73", 0, "", "pf")
        if c == 14:
            flag_load(7, 64, "s79", "qf")
    vm.wait("qf")
    check_flags("q", 7, 64, "s79")
    stamp(7)
    att_loads()
    a("s_barrier")
    stamp(8)
    a("s_setprio 1")

    def wo_dma():
        a("; wo tile -> LDS [0, 64K)")
        a("s_and_b32 s78, s60, 3")
        a("s_lshl_b32 s76, s78, 17")
        a("s_lshl_b32 s73, s67, 7")
        a("s_add_u32 s76, s76, s73")
        a("s_lshl_b32 s78, s78, 14")
        for i in range(16):
            a("s_add_u32 m0, s78, %d" % (i * 1024))
            a("s_add_u32 s73, s76, %d" % (i * 8192))
            dma(4, SWO, "s73", 0, "wo")

    att_run(nB, {(1, 1, 2): [wo_dma]})
    vm.drain()

    a.label("L_att_done")
    stamp(10)
    lg.items = []
    a("v_lshlrev_b32 v12, 2, v0")
    for t in range(1, 4):
        a("v_add_u32 %s, %s, v1" % (vr(12 + t), sr(96 + t)))
        a("v_add_u32 %s, %s, v12" % (vr(16 + t), sr(96 + t)))
    for t in range(1, 4):
        off = (t - 1) * 2304
        dsw("ds_write_b128", 12 + t, OA + 16 * t, 4, off)
        dsw("ds_write_b128", 12 + t, OA + 16 * t + 4, 4, off + 1024)
        dsw("ds_write_b32", 16 + t, OA + 16 * t + 8, 1, off + 2048)
    a("""
    v_add_u32 v20, s96, v1
    v_add_u32 v21, s96, v12
    v_bfe_u32 v22, v0, 4, 1
    v_lshl_add_u32 v22, v22, 14, v2
    s_lshr_b32 s75, s60, 1
    s_lshl2_add_u32 s72, s65, s75
    s_lshl_b32 s72, s72, 5
    s_add_u32 s72, s72, s64
    s_lshl_b32 s72, s72, 10
    s_and_b32 s73, s60, 1
    s_lshl_b32 s73, s73, 9
    s_add_u32 s72, s72, s73
    s_add_u32 s76, s72, %d
    """ % WS_OF)
    lg.drain()
    a("s_barrier")
    for src in range(3):
        d = SB + 10 * src
        dsr("ds_read_b128", d, 4, 20, src * 2304, src)
        dsr("ds_read_b128", d + 4, 4, 20, src * 2304 + 1024, src)
        dsr("ds_read_b32", d + 8, 1, 21, src * 2304 + 2048, src)
    for src in range(3):
        lg.wait(src)
        for i in range(9):
            a("v_add_f32 %s, %s, %s" % (vr(OA + i), vr(OA + i), vr(SB + 10 * src + i)))
    a("v_fma_f32 v13, %s, 0, %s" % (vr(OA), vr(OA + 8)))
    for i in range(1, 8):
        a("v_fma_f32 v13, %s, 0, v13" % vr(OA + i))
    a("""
    v_cmp_nle_f32 vcc, 0x30800000, v13
    s_mov_b64 s[72:73], vcc
    v_cmp_nge_f32 vcc, 0x5d800000, v13
    s_or_b64 s[72:73], s[72:73], vcc
    """)
    a("s_branch L_slow" if cfg.force_slow else "s_cbranch_scc1 L_slow")
    a.label("L_norm")
    a("v_rcp_f32 v13, %s" % vr(OA + 8))
    for i in range(8):
        a("v_mul_f32 %s, v13, %s" % (vr(OA + i), vr(OA + i)))
    for q in range(4):
        a("v_cvt_pk_bf16_f32 %s, %s, %s" % (vr(16 + q), vr(OA + 2 * q), vr(OA + 2 * q + 1)))
    for q in range(4):
        a("v_min_u32 %s, -2, %s" % (vr(16 + q), vr(16 + q)))
    vm.items = list(vm_a)
    bstore(16, 4, 22, SWS, "s76", 0, "sc1", "ost")
    stamp(11)
    a("s_cmp_ge_u32 s60, 4")
    a("s_cbranch_scc1 L_tail")
    wl = {}
    for i in left:
        for nt in range(2):
            if i == n2 and nt == 1:
                continue
            wl[(i, nt)] = SB + 4 * len(wl)
            w2read(i, nt, wl[(i, nt)])
    for i in left:
        for tt, nt in ((0, 1), (1, 1), (0, 0), (1, 0)):
            fmfma(i, tt, nt, wl.get((i, nt)), hextra.get((i, tt)))
    vm.wait(*[t for t in vm.items if t != "ost"])

    WOF, OFR, AC = 128, 24, 8
    a.label("L_tail")
    vm.items = ["ost"]
    lg.items = []
    a("""
    s_and_b32 s74, s60, 3
    s_lshr_b32 s75, s60, 2
    v_bfe_u32 v4, v0, 2, 2
    v_bfe_u32 v5, v0, 4, 1
    v_lshl_add_u32 v4, v5, 2, v4
    v_lshrrev_b32 v5, 1, v4
    s_lshl_b32 s72, s75, 1
    v_xor_b32 v5, s72, v5
    v_lshlrev_b32 v12, 7, v4
    v_lshl_add_u32 v12, v5, 5, v12
    v_lshrrev_b32 v5, 5, v0
    v_lshl_add_u32 v12, v5, 11, v12
    v_and_b32 v4, 3, v0
    v_lshl_add_u32 v12, v4, 3, v12
    s_lshl_b32 s72, s75, 15
    v_add_u32 v12, s72, v12
    v_xor_b32 v13, 32, v12
    v_xor_b32 v14, 64, v12
    v_xor_b32 v15, 0x60, v12
    """)
    a("""
    v_and_b32 v6, 15, v0
    v_lshrrev_b32 v7, 4, v0
    v_lshlrev_b32 v3, 3, v7
    v_lshl_add_u32 v2, v6, 10, v3
    s_lshl2_add_u32 s72, s66, s74
    s_lshl_b32 s78, s72, 14
    s_lshl1_add_u32 s79, s67, s75
    s_lshl_b32 s79, s79, 6
    s_add_u32 s78, s78, s79
    s_lshl1_add_u32 s76, s72, s75
    s_lshl_b32 s76, s76, 13
    s_add_u32 s76, s76, %d
    s_add_u32 s77, s76, 0x1000
    """ % WS_OF)
    bload(56, 2, 2, SX, "s78", 0, "", "xb")
    bload(58, 2, 2, SX, "s78", 32, "", "xb")
    bload(60, 2, 3, SB2, "s79", 0, "", "xb")
    bload(62, 2, 3, SB2, "s79", 32, "", "xb")

    def wo_reads():
        for ks in range(8):
            for ct in range(4):
                trread(WOF + (ks * 4 + ct) * 4, 12 + ct, ks * 4096, 1024, ("wo", ks))

    def oloads():
        for ks in range(8):
            bload(OFR + 4 * ks, 4, 1, SWS, "s76" if ks < 4 else "s77", (ks & 3) * 1024, "sc1", ("o", ks))

    a("s_cmp_ge_u32 s60, 4")
    a("s_cbranch_scc1 L_tail_b")
    a("""
    v_and_b32 v4, 31, v0
    v_mul_u32_u24 v4, %d, v4
    v_lshl_add_u32 v4, v5, 4, v4
    s_mul_i32 s72, s60, %d
    s_add_u32 s72, s72, %d
    v_add_u32 v4, s72, v4
    s_barrier
    """ % (PART_STRIDE, PART_SIZE, L_PART))
    for tt in range(2):
        for nt in range(2):
            for q in range(4):
                dsw("ds_write_b128", 4, FA + 16 * (2 * tt + nt) + 4 * q, 4, tt * 32 * PART_STRIDE + nt * 128 + q * 32)
    lg.drain()
    a("s_barrier")
    save = list(vm.items)
    if cfg.oearly:
        oloads()
    wo_reads()
    a("s_branch L_tail_j")
    a.label("L_tail_b")
    vm.items = list(save)
    wo_reads()
    a("s_barrier")
    a("s_barrier")
    if cfg.oearly:
        oloads()
    a.label("L_tail_j")
    stamp(12)
    lg.items = [("wo", 0)]
    a("""
    s_lshl_b32 s72, s74, 4
    v_add_u32 v4, s72, v6
    v_mul_u32_u24 v4, %d, v4
    v_lshl_add_u32 v4, v7, 4, v4
    s_lshl_b32 s72, s75, 7
    s_add_u32 s72, s72, %d
    v_add_u32 v4, s72, v4
    """ % (PART_STRIDE, L_PART))
    G, Z, X = 64, 96, 104
    for j in range(4):
        for ct in range(2):
            dsr("ds_read_b128", G + 8 * j + 4 * ct, 4, 4, j * PART_SIZE + ct * 64, ("g", j))
    if not cfg.oearly:
        oloads()
    vm.wait("xb")
    for q in range(4):
        a("v_lshlrev_b32 %s, 16, %s" % (vr(Z + 2 * q), vr(60 + q)))
        a("v_and_b32 %s, s89, %s" % (vr(Z + 1 + 2 * q), vr(60 + q)))
    for q in range(4):
        a("v_lshlrev_b32 %s, 16, %s" % (vr(X + 2 * q), vr(56 + q)))
        a("v_and_b32 %s, s89, %s" % (vr(X + 1 + 2 * q), vr(56 + q)))
    a("""
    s_lshl_b32 s72, s60, 11
    s_add_u32 s72, s72, %d
    v_add_u32 v5, s72, v1
    s_xor_b32 s73, s60, 4
    s_lshl_b32 s73, s73, 11
    s_add_u32 s73, s73, %d
    v_add_u32 v6, s73, v1
    """ % (L_XCH, L_XCH))
    for j in range(4):
        lg.wait(("g", j))
        for i in range(8):
            a("v_add_f32 %s, %s, %s" % (vr(Z + i), vr(Z + i), vr(G + 8 * j + i)))
    for i in range(8):
        a("v_mul_f32 %s, 0x%x, %s" % (vr(G + i), NLOG2E, vr(Z + i)))
    for i in range(8):
        a("v_exp_f32 %s, %s" % (vr(G + i), vr(G + i)))
    for i in range(8):
        a("v_add_f32 %s, 1.0, %s" % (vr(G + i), vr(G + i)))
    for i in range(8):
        a("v_rcp_f32 %s, %s" % (vr(G + i), vr(G + i)))
    for i in range(8):
        a("v_mul_f32 %s, %s, %s" % (vr(Z + i), vr(Z + i), vr(G + i)))
    a("s_mov_b32 s73, 0")
    a.label("L_wo")
    a("v_mov_b32 v7, 0")
    for ks in range(8):
        vm.wait(("o", ks))
        for n, ct in enumerate((2, 3, 0, 1)):
            d = AC + 4 * ct
            mfma16(d, WOF + (ks * 4 + ct) * 4, OFR + 4 * ks, None if ks == 0 else d)
            if n < 2:
                a("v_max3_u32 v7, v7, %s, %s" % (vr(OFR + 4 * ks + 2 * n), vr(OFR + 4 * ks + 2 * n + 1)))
    a("v_cmp_eq_u32 vcc, -1, v7")
    a("s_cbranch_vccnz L_oretry")
    a.label("L_ovalid")
    stamp(13)
    a("ds_write_b128 v5, %s" % vr(AC + 8, 4))
    a("ds_write_b128 v5, %s offset:1024" % vr(AC + 12, 4))
    a("s_waitcnt lgkmcnt(0)")
    a("s_barrier")
    stamp(14)
    a("ds_read_b128 v[64:67], v6")
    a("ds_read_b128 v[68:71], v6 offset:1024")
    for ct in range(2):
        a("s_waitcnt lgkmcnt(%d)" % (1 - ct))
        for i in range(4):
            a("v_add_f32 %s, %s, %s" % (vr(AC + 4 * ct + i), vr(AC + 4 * ct + i), vr(64 + 4 * ct + i)))
        for i in range(4):
            a("v_fma_f32 %s, %s, %s, %s" % (vr(AC + 4 * ct + i), vr(AC + 4 * ct + i), vr(Z + 4 * ct + i), vr(X + 4 * ct + i)))
        for q in range(2):
            a("v_cvt_pk_bf16_f32 %s, %s, %s" % (vr(72 + 2 * ct + q), vr(AC + 4 * ct + 2 * q), vr(AC + 4 * ct + 2 * q + 1)))
        bstore(72 + 2 * ct, 2, 2, SOUT, "s78", 32 * ct)
    a("s_or_b32 s72, s2, s60")
    a("s_cmp_lg_u32 s72, 0")
    a("s_cbranch_scc1 L_noepoch")
    set_flag(7, "0")
    a.label("L_noepoch")
    if cfg.stamps:
        a("s_waitcnt vmcnt(0)")
        stamp(15)
        a("s_lshl3_add_u32 s72, s2, s60")
        a("s_lshl_b32 s72, s72, 6")
        a("s_add_u32 s72, s72, %d" % WS_STAMP)
        for i in range(16):
            a("v_mov_b32 %s, %s" % (vr(80 + i), sr(sSTAMP + i)))
        a("s_mov_b64 exec, 1")
        for i in range(4):
            bstore(80 + 4 * i, 4, 1, SWS, "s72", 16 * i)
    a.label("L_end")
    a("s_endpgm")

    a.label("L_oretry")
    a("s_add_u32 s73, s73, 1")
    a("s_cmp_ge_u32 s73, %d" % SPIN_MAX)
    a("s_cbranch_scc1 L_ovalid")
    oloads()
    a("s_branch L_wo")

    for tag, vt, lanes, soff in stubs:
        a.label("L_poll_" + tag)
        a("s_mov_b32 s73, 0")
        a.label("L_poll2_" + tag)
        flag_load(vt, lanes, soff, None)
        a("s_add_u32 s73, s73, 1")
        a("s_waitcnt vmcnt(0)")
        a("s_cmp_ge_u32 s73, %d" % SPIN_MAX)
        a("s_cbranch_scc1 L_polled_" + tag)
        a("v_cmp_ne_u32 vcc, %s, %s" % (sr(sTAG), vr(vt)))
        a("s_cbranch_vccnz L_poll2_" + tag)
        a("s_branch L_polled_" + tag)

    a.label("L_slow")
    CN = SB + 16
    a("s_waitcnt vmcnt(0)")
    a("v_mov_b32 v13, 0xff800000")
    a("s_mov_b32 s82, s83")
    a("s_mov_b32 s81, 64")
    a.label("L_slow1")
    bload(KV, 4, 1, SWS, "s82", 0, "sc1")
    a("s_add_u32 s82, s82, 2048")
    a("s_waitcnt vmcnt(0)")
    mfma32(SB, KV, QR, None)
    for i in range(0, 16, 2):
        a("v_max3_f32 v13, v13, %s, %s" % (vr(SB + i), vr(SB + i + 1)))
    a("s_sub_u32 s81, s81, 1")
    a("s_cmp_lg_u32 s81, 0")
    a("s_cbranch_scc1 L_slow1")
    a("v_mov_b32 v14, v13")
    a("v_permlane32_swap_b32 v14, v13")
    a("v_max_f32 v13, v14, v13")
    for i in range(16):
        a("v_sub_f32 %s, 0, v13" % vr(CN + i))
        a("v_mov_b32 %s, 0" % vr(OA + i))
    a("s_mov_b32 s82, s83")
    a("s_mov_b32 s81, 64")
    a.label("L_slow2")
    kvload(0)
    a("s_waitcnt vmcnt(0)")
    mfma32(SB, KV, QR, CN)
    for i in range(16):
        a("v_exp_f32 %s, %s" % (vr(SB + i), vr(SB + i)))
    smf(OA, KV + 4, SB)
    smf(OA, KV + 8, SB + 8)
    a("s_sub_u32 s81, s81, 1")
    a("s_cmp_lg_u32 s81, 0")
    a("s_cbranch_scc1 L_slow2")
    a("s_branch L_norm")
    a.label("L_code_end")
    a("s_endpgm")

    added = a.fix()
    return a.text(), added


HEADER = """; Kernarg layout for this problem (88 bytes, ptrs only, base s[0:1]):
; @launch grid=(256,1,1) block=(512,1,1) lds=163840
.amdgcn_target "amdgcn-amd-amdhsa--gfx950"
.text
.globl {k}
.p2align 8
.type {k},@function
{k}:
"""

FOOTER = """.section .rodata,"a"
.p2align 6
.amdhsa_kernel {k}
  .amdhsa_next_free_vgpr 256
  .amdhsa_next_free_sgpr 102
  .amdhsa_accum_offset 256
  .amdhsa_group_segment_fixed_size 0
  .amdhsa_kernarg_size 88
  .amdhsa_user_sgpr_count 2
  .amdhsa_user_sgpr_kernarg_segment_ptr 1
  .amdhsa_system_sgpr_workgroup_id_x 1
.end_amdhsa_kernel
"""


def build(**kw):
    cfg = Cfg()
    for k, v in kw.items():
        setattr(cfg, k, v)
    body, added = gen(cfg)
    return HEADER.format(k=KERNEL) + body + FOOTER.format(k=KERNEL), added


if __name__ == "__main__":
    out = sys.argv[1] if len(sys.argv) > 1 else "cdna_kernels/%s.s" % NAME
    kw = {}
    for arg in sys.argv[2:]:
        k, v = arg.split("=")
        kw[k] = int(v)
    text, added = build(**kw)
    open(out, "w").write(text)
    print("wrote", out, "lines", text.count("\n"), "nops added", added)
```

```python
import sys
import os
sys.path.insert(0, os.path.dirname(os.path.abspath(__file__)))
from asmlib import Asm, vr, sr

NAME = "recurrent_scan__softmax_full_mha__dense_activation_squared_relu__prompt"
KERNEL = NAME + "_kernel"

WS_FLAGQ = 0x1000
WS_FLAGH = 0x2000
WS_STAMP = 0x10000
WS_QF = 0x100000
WS_KV = 0x300000
WS_OF = 0x700000
WS_HF = 0x900000
WS_END = WS_HF + 86 * 65536
EPOCH_INC = 0x9E3779B9
SPIN_MAX = 1 << 18

L_RING = 65536
L_OPART = 65536
L_W2 = L_OPART + 55296
L_PART = 65536
PART_STRIDE = 272
PART_SIZE = 64 * PART_STRIDE
L_XCH = L_PART + 4 * PART_SIZE

SX, SWQ, SWO, SW1, SB1, SW2, SB2, SOUT, SWS = 24, 28, 32, 36, 40, 44, 48, 52, 56
sW, sCG, sTB, sRW, sP, sQB, sTBF, sCB, sTAG, sCT0 = 60, 61, 62, 63, 64, 65, 66, 67, 68, 69
sVM = 70
sSTAMP = 4

QSCALE = 0x3EB8AA3B
NLOG2E = 0xBFB8AA3B
NS = 22


class Cfg:
    n1 = 5
    n2 = 19
    stamps = 0
    force_slow = 0
    flag_step = 44
    hold = 9
    post = 11
    w0_at = 4
    w1_at = 4
    oearly = 1
    touch = 0


def srd(s):
    return sr(s, 4)


class Queue:
    def __init__(self, a, name, maxn):
        self.a, self.name, self.maxn, self.items = a, name, maxn, []

    def push(self, tag):
        self.items.append(tag)

    def wait(self, *tags):
        last = max((i for i, t in enumerate(self.items) if t in tags), default=-1)
        if last < 0:
            return
        n = len(self.items) - 1 - last
        self.a("s_waitcnt %s(%d)" % (self.name, min(n, self.maxn)))
        self.items = self.items[last + 1:]

    def drain(self):
        self.a("s_waitcnt %s(0)" % self.name)
        self.items = []


def gen(cfg):
    a = Asm()
    nA = cfg.n1 + cfg.n2
    nB = 32 - nA
    vm = Queue(a, "vmcnt", 63)
    lg = Queue(a, "lgkmcnt", 15)

    def stamp(i):
        if cfg.stamps:
            a("%s s[22:23]" % ("s_memtime" if cfg.stamps == 2 else "s_memrealtime"))
            a("s_waitcnt lgkmcnt(0)")
            a("s_mov_b32 %s, s22" % sr(sSTAMP + i))

    def mfma32(d, x, y, c):
        a("v_mfma_f32_32x32x16_bf16 %s, %s, %s, %s" % (vr(d, 16), vr(x, 4), vr(y, 4), "0" if c is None else vr(c, 16)))

    def mfma16(d, x, y, c):
        a("v_mfma_f32_16x16x32_bf16 %s, %s, %s, %s" % (vr(d, 4), vr(x, 4), vr(y, 4), "0" if c is None else vr(c, 4)))

    def smf(d, x, y):
        a("v_smfmac_f32_32x32x32_bf16 %s, %s, %s, v3" % (vr(d, 16), vr(x, 4), vr(y, 8)))

    def bload(d, n, va, s, so, off=0, mod="", tag=None):
        op = {1: "dword", 2: "dwordx2", 4: "dwordx4"}[n]
        a("buffer_load_%s %s, %s, %s, %s offen offset:%d %s" % (op, vr(d, n), vr(va), srd(s), so, off, mod))
        vm.push(tag)

    def bstore(d, n, va, s, so, off=0, mod="", tag=None):
        op = {1: "dword", 2: "dwordx2", 4: "dwordx4"}[n]
        a("buffer_store_%s %s, %s, %s, %s offen offset:%d %s" % (op, vr(d, n), vr(va), srd(s), so, off, mod))
        vm.push(tag)

    def dma(va, s, so, off=0, tag=None):
        a("buffer_load_dwordx4 %s, %s, %s offen offset:%d lds" % (vr(va), srd(s), so, off))
        vm.push(tag)

    def dsr(op, d, n, va, off, tag=None):
        a("%s %s, %s offset:%d" % (op, vr(d, n), vr(va), off))
        lg.push(tag)

    def dsw(op, va, d, n, off, tag=None):
        a("%s %s, %s offset:%d" % (op, vr(va), vr(d, n), off))
        lg.push(tag)

    def trread(d, va, off, second, tag=None):
        dsr("ds_read_b64_tr_b16", d, 2, va, off, tag)
        dsr("ds_read_b64_tr_b16", d + 2, 2, va, off + second, tag)

    def set_flag(vt, soff):
        a("v_mov_b32 %s, %s" % (vr(vt), sr(sTAG)))
        a("s_mov_b64 exec, 1")
        bstore(vt, 1, 1, SWS, soff, 0, "sc0 sc1")
        a("s_mov_b64 exec, -1")

    stubs = []

    def check_flags(tag, vt, lanes, soff):
        a("v_cmp_ne_u32 vcc, %s, %s" % (sr(sTAG), vr(vt)))
        a("s_cbranch_vccnz L_poll_" + tag)
        a.label("L_polled_" + tag)
        stubs.append((tag, vt, lanes, soff))

    def flag_load(vt, lanes, soff, tag):
        a("v_and_b32 %s, %d, v0" % (vr(vt), lanes - 1))
        a("v_lshlrev_b32 %s, 2, %s" % (vr(vt), vr(vt)))
        bload(vt, 1, vt, SWS, soff, 0, "sc0 sc1", tag)

    a("s_cmp_ge_u32 s2, 256")
    a("s_cbranch_scc1 L_end")
    stamp(0)
    if cfg.stamps:
        for i in range(1, 16):
            a("s_mov_b32 %s, s22" % sr(sSTAMP + i))
    for s, off in ((SX, 0), (SWQ, 8), (SW1, 32), (SWS, 80), (SB1, 40), (SWO, 16), (SW2, 48), (SB2, 56), (SOUT, 64)):
        a("s_load_dwordx2 %s, s[0:1], %d" % (sr(s, 2), off))
    a("""
    v_lshrrev_b32 v1, 6, v0
    v_and_b32 v0, 63, v0
    v_readfirstlane_b32 s60, v1
    s_getpc_b64 s[72:73]
    L_pc:
    s_and_b32 s74, s2, 0xf8
    s_add_u32 s74, s74, s60
    s_lshl_b32 s74, s74, 8
    v_and_b32 v4, 1, v0
    v_lshl_add_u32 v4, v4, 7, s74
    v_min_u32 v4, L_code_end-L_pc, v4
    v_mov_b32 v5, s73
    v_add_co_u32 v4, vcc, s72, v4
    v_addc_co_u32 v5, vcc, 0, v5, vcc
    global_load_dword v7, v[4:5], off
    """)
    vm.push("pf")
    a("""
    s_bfe_u32 s72, s2, 0x20003
    s_lshr_b32 s67, s2, 5
    s_and_b32 s73, s2, 6
    s_lshl2_add_u32 s62, s73, s67
    s_lshl1_add_u32 s63, s72, s60
    s_and_b32 s63, s63, 7
    s_lshl3_add_u32 s74, s62, s63
    s_lshl_b32 s74, s74, 13
    s_lshl3_add_u32 s75, s2, s60
    s_mul_i32 s75, s75, 768
    v_lshrrev_b32 v4, 3, v0
    v_and_b32 v5, 7, v0
    v_lshlrev_b32 v14, 10, v4
    v_lshl_add_u32 v14, v5, 4, v14
    v_min_u32 v6, 5, v0
    v_lshlrev_b32 v6, 7, v6
    """)
    sizes = {SX: 2048 * 1024, SWQ: 512 * 3072, SWS: WS_END, SW1: 512 * 2752, SB1: 2752,
             SWO: 512 * 1024, SW2: 1376 * 1024, SB2: 1024, SOUT: 2048 * 1024}
    for s in (SX, SWQ, SW1):
        a("s_mov_b32 %s, %d" % (sr(s + 2), sizes[s]))
        a("s_mov_b32 %s, 0x20000" % sr(s + 3))
    a("s_waitcnt lgkmcnt(0)")
    RAW = 128
    bload(7, 1, 6, SWQ, "s75", 0, "", "pf")
    for j in range(8):
        bload(RAW + j * 4, 4, 14, SX, "s74", j * 128, "", ("x", j))
    bload(7, 1, 6, SW1, "s75", 0, "", "pf")
    a("s_load_dword %s, %s, 0" % (sr(sTAG), sr(SWS, 2)))
    for s in (SWS, SB1, SWO, SW2, SB2, SOUT):
        a("s_mov_b32 %s, %d" % (sr(s + 2), sizes[s]))
        a("s_mov_b32 %s, 0x20000" % sr(s + 3))
    if cfg.touch:
        a("; first touch of every buffer used later, so address translations are fetched early")
        a("v_lshlrev_b32 v20, 18, v0")
        a("s_lshl_b32 s75, s60, 15")
        for s_ in (SWS, SOUT, SWO, SW2):
            bload(7, 1, 20, s_, "s75", 0, "", "pf")
        for s_ in (SB1, SB2):
            bload(7, 1, 20, s_, "0", 0, "", "pf")
    a("""
    s_and_b32 s73, s2, 1
    s_lshl2_add_u32 s61, s73, s72
    s_and_b32 s73, s2, 7
    s_lshl2_add_u32 s66, s73, s72
    s_and_b32 s72, s72, 1
    s_lshl1_add_u32 s64, s73, s72
    s_lshr_b32 s65, s2, 4
    s_mul_i32 s69, s61, 43
    s_lshr_b32 s69, s69, 3
    s_mov_b32 s70, 0xffff
    s_mov_b32 s71, 0xffff
    s_mov_b32 s89, 0xffff0000
    s_and_b32 s74, s60, 3
    s_mul_i32 s85, s74, %d
    s_lshl_b32 s72, s61, 7
    s_add_u32 s85, s85, s72
    s_mul_i32 s90, s60, %d
    s_add_u32 s90, s90, s72
    s_mul_i32 s91, s60, 3072
    s_mul_i32 s86, s74, %d
    s_lshl_b32 s72, s69, 6
    s_add_u32 s86, s86, s72
    s_mul_i32 s87, s74, 6144
    s_add_u32 s87, s87, %d
    v_lshlrev_b32 v1, 4, v0
    v_and_b32 v2, 15, v0
    v_lshrrev_b32 v3, 5, v0
    v_lshl_add_u32 v2, v3, 4, v2
    v_lshlrev_b32 v2, 4, v2
    v_bfe_u32 v6, v4, 1, 1
    v_lshlrev_b32 v6, 2, v6
    v_xor_b32 v6, v6, v5
    v_lshlrev_b32 v6, 4, v6
    v_mul_u32_u24 v13, 3072, v4
    v_add_u32 v13, v13, v6
    s_and_b32 s72, s63, 1
    s_lshl_b32 s72, s72, 2
    v_lshrrev_b32 v24, 1, v4
    v_xor_b32 v24, v24, v5
    v_xor_b32 v24, s72, v24
    s_lshl_b32 s72, s63, 10
    v_lshlrev_b32 v15, 7, v4
    v_lshl_add_u32 v15, v24, 4, v15
    v_add_u32 v15, s72, v15
    v_mov_b32 v30, 0x3f803f80
    v_mov_b32 v24, 0
    v_mov_b32 v25, 0
    """ % (16 * 3072, 8 * 3072, 16 * 2752, L_RING))
    a("""
    s_and_b32 s74, s60, 1
    s_lshr_b32 s75, s60, 1
    s_lshl1_add_u32 s72, s64, s74
    s_lshl_b32 s83, s72, 17
    s_add_u32 s83, s83, %d
    s_and_b32 s73, s75, 1
    s_lshl_b32 s73, s73, 16
    s_add_u32 s82, s83, s73
    s_lshl_b32 s72, s72, 6
    s_lshl2_add_u32 s72, s65, s72
    s_lshl_b32 s72, s72, 10
    s_add_u32 s72, s72, %d
    s_mul_i32 s84, s74, %d
    s_add_u32 s84, s84, %d
    """ % (WS_KV, WS_QF, 12 * 2304, L_OPART))
    for t in range(4):
        a("s_xor_b32 s73, s75, %d" % t)
        a("s_mul_i32 %s, s73, %d" % (sr(96 + t), 3 * 2304))
        a("s_lshl_b32 s73, s73, 10")
        a("s_add_u32 %s, s72, s73" % sr(92 + t))
        a("s_add_u32 %s, %s, s84" % (sr(96 + t), sr(96 + t)))
    a("s_cmp_ge_u32 s60, 4")
    a("s_cbranch_scc1 L_setup_b")
    a("""
    s_add_u32 s82, s82, %d
    v_and_b32 v8, 0x33, v0
    v_and_b32 v9, 4, v0
    v_lshl_or_b32 v8, v9, 1, v8
    v_and_b32 v9, 8, v0
    v_lshrrev_b32 v9, 1, v9
    v_or_b32 v8, v8, v9
    v_lshlrev_b32 v11, 4, v8
    v_bfe_u32 v9, v0, 4, 1
    v_lshl_add_u32 v12, v9, 17, v2
    v_lshl_add_u32 v4, v4, 10, v6
    v_bfe_u32 v10, v0, 2, 2
    v_lshlrev_b32 v5, 5, v9
    v_lshl_add_u32 v5, v10, 7, v5
    v_and_b32 v9, 3, v0
    v_lshl_add_u32 v5, v9, 3, v5
    v_lshrrev_b32 v10, 1, v10
    v_mul_u32_u24 v8, 3072, v3
    v_add_u32 v8, v8, v5
    v_xor_b32 v9, s75, v10
    v_lshl_add_u32 v8, v9, 6, v8
    v_add_u32 v8, %d, v8
    v_add_u32 v9, %d, v8
    v_lshl_add_u32 v5, v3, 9, v5
    v_lshl_add_u32 v5, v10, 6, v5
    s_lshl_b32 s84, s60, 13
    s_add_u32 s84, s84, %d
    v_add_u32 v5, s84, v5
    v_xor_b32 v6, 64, v5
    v_and_b32 v10, 31, v0
    s_lshl_b32 s72, s74, 12
    v_bfe_u32 v16, v10, 1, 3
    v_xor_b32 v16, v16, v3
    v_lshlrev_b32 v16, 4, v16
    v_lshl_add_u32 v16, v10, 7, v16
    v_add_u32 v16, s72, v16
    v_xor_b32 v17, 32, v16
    v_xor_b32 v18, 64, v16
    v_xor_b32 v19, 0x60, v16
    v_lshlrev_b32 v10, 1, v10
    v_lshl_add_u32 v10, v3, 20, v10
    """ % (nB * 2048, L_RING, 2 * 24576, L_W2))
    for seg in range(3):
        for q in range(1, 4):
            a("v_mov_b32 %s, 0" % vr(112 + 4 * seg + q))
    for q in range(4):
        a("v_mov_b32 %s, v30" % vr(124 + q))
    a("""
    s_lshl1_add_u32 s72, s62, s74
    s_lshl1_add_u32 s73, s61, s75
    s_lshl_b32 s76, s73, 7
    s_add_u32 s76, s76, s72
    s_lshl_b32 s77, s76, 11
    s_lshl_b32 s76, s76, 10
    s_add_u32 s76, s76, %d
    s_add_u32 s77, s77, %d
    s_add_u32 s81, s69, s75
    s_lshl_b32 s78, s81, 7
    s_add_u32 s78, s78, s72
    s_lshl_b32 s78, s78, 10
    s_add_u32 s78, s78, %d
    s_lshl_b32 s79, s73, 6
    s_add_u32 s79, s79, s72
    s_lshl_b32 s79, s79, 2
    s_add_u32 s79, s79, %d
    s_lshl_b32 s80, s62, 3
    s_add_u32 s80, s80, s61
    s_lshl2_add_u32 s80, s80, s60
    s_lshl_b32 s80, s80, 2
    s_add_u32 s80, s80, %d
    s_mul_i32 s72, s61, 43
    s_add_u32 s72, s72, 43
    s_lshr_b32 s72, s72, 3
    s_add_u32 s73, s81, 4
    s_add_u32 s88, s78, %d
    s_cmp_lt_u32 s73, s72
    s_cselect_b32 s88, s88, 0x40000000
    s_lshl_b32 s81, s81, 6
    """ % (WS_QF, WS_KV, WS_HF, WS_FLAGQ, WS_FLAGH, 8 * 65536))
    a("""
    s_lshl_b32 s85, s60, 14
    s_lshl_b32 s72, s67, 7
    s_add_u32 s85, s85, s72
    s_lshl_b32 s86, s60, 6
    s_lshl1_add_u32 s86, s66, s86
    s_lshl_b32 s86, s86, 10
    s_add_u32 s86, s86, %d
    s_lshl_b32 s87, s66, 7
    s_add_u32 s87, s87, %d
    s_branch L_ln
    """ % (WS_HF, WS_FLAGH))
    a.label("L_setup_b")
    a("""
    v_mul_u32_u24 v12, 2752, v4
    v_add_u32 v12, v12, v6
    v_bfe_u32 v6, v4, 1, 2
    v_lshlrev_b32 v6, 1, v6
    v_xor_b32 v6, v6, v5
    v_lshlrev_b32 v6, 4, v6
    v_lshl_add_u32 v4, v4, 10, v6
    v_min_u32 v5, 10, v0
    v_lshlrev_b32 v5, 7, v5
    v_min_u32 v6, 3, v0
    v_lshlrev_b32 v6, 7, v6
    v_mov_b32 v8, -1
    v_mov_b32 v9, -1
    v_mov_b32 v10, -1
    v_mov_b32 v11, -1
    s_lshl1_add_u32 s72, s62, s74
    s_and_b32 s73, s75, 1
    s_lshl1_add_u32 s73, s61, s73
    s_lshl_b32 s76, s72, 5
    s_add_u32 s76, s76, s73
    s_lshl_b32 s76, s76, 10
    s_add_u32 s76, s76, %d
    s_add_u32 s77, s76, 0x4000
    s_lshl_b32 s79, s64, 8
    s_add_u32 s79, s79, %d
    """ % (WS_OF, WS_FLAGQ))

    a.label("L_ln")

    def coop_chunk(c):
        a("s_add_u32 m0, s91, %d" % (L_RING + c * 24576))
        a("s_add_u32 s72, s90, %d" % (c * 64 * 3072))
        for seg in range(3):
            dma(13, SWQ, "s72", seg * 1024, ("w", c))

    a("v_mov_b32 v3, 0xdddddddd")
    for j in range(8):
        if j == cfg.w0_at:
            coop_chunk(0)
        vm.wait(("x", j))
        for q in range(4):
            x = RAW + j * 4 + q
            a("v_dot2c_f32_bf16 v24, v30, %s" % vr(x))
            a("v_dot2c_f32_bf16 v25, %s, %s" % (vr(x), vr(x)))
    stamp(1)
    for ctl in ("quad_perm:[1,0,3,2]", "quad_perm:[2,3,0,1]", "row_half_mirror"):
        for r in (24, 25):
            a("v_add_f32_dpp %s, %s, %s %s row_mask:0xf bank_mask:0xf" % (vr(r), vr(r), vr(r), ctl))
    a("""
    v_mul_f32 v24, 0x3b000000, v24
    v_mul_f32 v25, 0x3b000000, v25
    v_fma_f32 v25, -v24, v24, v25
    v_max_f32 v25, 0, v25
    v_cvt_pk_bf16_f32 v24, v24, v25
    v_and_b32 v25, s89, v24
    v_add_f32 v25, 0x3727c5ac, v25
    v_cvt_pk_bf16_f32 v25, v25, v25
    v_and_b32 v25, s89, v25
    v_sqrt_f32 v25, v25
    v_lshlrev_b32 v24, 16, v24
    v_cvt_pk_bf16_f32 v25, v25, v25
    v_and_b32 v25, s89, v25
    v_rcp_f32 v26, v25
    v_rcp_f32 v27, v25
    v_mul_f32_e64 v28, -v24, v26
    v_mul_f32_e64 v29, -v24, v26
    """)
    for j in range(8):
        if j == cfg.w1_at:
            coop_chunk(1)
        x = RAW + j * 4
        t = 192 + (j & 1) * 8
        for q in range(4):
            a("v_lshlrev_b32 %s, 16, %s" % (vr(t + 2 * q), vr(x + q)))
            a("v_and_b32 %s, s89, %s" % (vr(t + 2 * q + 1), vr(x + q)))
        for q in range(4):
            a("v_pk_fma_f32 %s, %s, v[26:27], v[28:29]" % (vr(t + 2 * q, 2), vr(t + 2 * q, 2)))
        for q in range(4):
            a("v_cvt_pk_bf16_f32 %s, %s, %s" % (vr(x + q), vr(t + 2 * q), vr(t + 2 * q + 1)))
        a("ds_write_b128 v15, %s offset:%d" % (vr(x, 4), j * 8192))
    stamp(2)
    a("s_cmp_ge_u32 s60, 4")
    a("s_cbranch_scc1 L_loader")
    vm_split = list(vm.items)

    QR, SB, WF, FA, OA, KV, HB = 8, 24, 56, 64, 128, 192, 240

    def att_init_ops():
        ops = ["v_mov_b32 %s, 0" % vr(OA + i) for i in range(64)]
        ops2 = ["v_and_b32 v7, 27, v0", "v_cmp_eq_u32 vcc, 16, v7", "v_mov_b32 v7, 0x3f803f80", "v_cndmask_b32 v7, 0, v7, vcc"]
        ops2 += ["v_mov_b32 %s, v7" % vr(KV + 12 * b + 4 + q) for b in range(4) for q in range(8)]
        return ops, ops2

    def kvload(j):
        b = j & 3
        bload(KV + 12 * b, 4, 1, SWS, "s82", 0, "sc1", ("kv", j))
        a("s_mov_b64 exec, %s" % sr(sVM, 2))
        bload(KV + 12 * b + 4, 4, 2, SWS, "s82", 1024, "sc1", ("kv", j))
        bload(KV + 12 * b + 8, 4, 2, SWS, "s82", 1536, "sc1", ("kv", j))
        a("s_mov_b64 exec, -1")
        a("s_add_u32 s82, s82, 2048")

    def att_loads():
        bload(QR, 4, 1, SWS, "s92", 0, "sc1", "q")
        kvload(0)
        for t in range(1, 4):
            bload(QR + 4 * t, 4, 1, SWS, sr(92 + t), 0, "sc1", "q")
        kvload(1)
        kvload(2)

    def att_run(n, hooks):
        vm.wait("q", ("kv", 0))
        mfma32(SB, KV, QR, None)
        for j in range(n):
            b = j & 3
            for t in range(4):
                cur, oth = SB + 16 * (t & 1), SB + 16 * ((t + 1) & 1)
                for i in range(16):
                    a("v_exp_f32 %s, %s" % (vr(cur + i), vr(cur + i)))
                    if i == 1 and (j, t) != (0, 0):
                        smf(OA + 16 * ((t + 3) & 3), KV + 12 * (b if t else (b + 3) & 3) + 8, oth + 8)
                    if i == 4:
                        if t < 3:
                            mfma32(oth, KV + 12 * b, QR + 4 * (t + 1), None)
                        elif j + 1 < n:
                            vm.wait(("kv", j + 1))
                            mfma32(oth, KV + 12 * ((b + 1) & 3), QR, None)
                    if i == 9:
                        smf(OA + 16 * t, KV + 12 * b + 4, cur)
                    if t == 0 and i == 6 and j + 3 < n:
                        kvload(j + 3)
                    for h in hooks.get((j, t, i), ()):
                        h()
        smf(OA + 48, KV + 12 * ((n - 1) & 3) + 8, SB + 16 + 8)

    ACC = (24, 40, 56)
    WB = (72, 84)
    XF, PK, XA = 128, 96, 16

    def wread(g, seg):
        c, s = g >> 2, g & 3
        slot = c & 3
        trread(WB[g & 1] + 4 * seg, 8 + (slot >> 1), (slot & 1) * 24576 + s * 6144 + seg * 1024, 512, (g, seg))

    def xread(g):
        dsr("ds_read_b128", XF + 4 * g, 4, XA + (g & 3), (g >> 2) * 8192, (g, 0))

    init1, init2 = att_init_ops()
    shadow = []

    def step_mfma(g, seg):
        x = XF + 4 * (g & 31)
        w = WB[g & 1] + 4 * seg
        c = None if g == 0 else ACC[seg]
        lg.wait((g, seg))
        if g < 32 and seg == 2:
            mfma32(ACC[seg], x, w, c)
        else:
            mfma32(ACC[seg], w, x, c)
        for _ in range(2 if g < 60 else 3):
            if shadow:
                a(shadow.pop(0))

    vm.wait(("w", 0))
    a("s_waitcnt lgkmcnt(0)")
    a("s_add_u32 %s, %s, 0x%x" % (sr(sTAG), sr(sTAG), EPOCH_INC))
    a("s_barrier")
    stamp(3)
    xread(0)
    for seg in range(3):
        wread(0, seg)
    for g in range(64):
        nxt = g + 1
        has_next = nxt < 64 and nxt != 32
        boundary = has_next and (nxt & 3) == 0
        if g == 8:
            for seg in range(3):
                a("buffer_load_ushort %s, v10, %s, s81 offen offset:%d" % (vr(112 + 4 * seg), srd(SB1), seg * 128))
                vm.push("b1")
        if g == 32:
            stamp(4)
            for i in range(16):
                a("v_mul_f32 %s, 0x%x, %s" % (vr(ACC[0] + i), QSCALE, vr(ACC[0] + i)))
            for n, t in enumerate((1, 2, 0)):
                pk = PK + 8 * (n & 1)
                for q in range(8):
                    a("v_cvt_pk_bf16_f32 %s, %s, %s" % (vr(pk + q), vr(ACC[t] + 2 * q), vr(ACC[t] + 2 * q + 1)))
                if t == 1:
                    a("s_add_u32 s72, s77, 0x20000")
                    bstore(pk, 4, 11, SWS, "s77", 0, "sc1", "st")
                    bstore(pk + 4, 4, 11, SWS, "s72", 0, "sc1", "st")
                elif t == 2:
                    bstore(pk, 4, 12, SWS, "s77", 1024, "sc1", "st")
                    bstore(pk + 4, 4, 12, SWS, "s77", 1536, "sc1", "st")
                else:
                    a("s_add_u32 s72, s76, 0x10000")
                    bstore(pk, 4, 1, SWS, "s76", 0, "sc1", "st")
                    bstore(pk + 4, 4, 1, SWS, "s72", 0, "sc1", "st")
            stamp(5)
            a("s_barrier")
            vm.wait("b1")
            for seg in range(3):
                mfma32(ACC[seg], 112 + 4 * seg, 124, None)
            a("s_barrier")
            for seg in range(3):
                wread(32, seg)
        if g == cfg.flag_step:
            vm.wait("st")
            set_flag(7, "s79")
            stamp(6)
        if g == 48:
            shadow.extend(init1)
        if g == 60:
            shadow.extend(init2)
        if boundary:
            if nxt == 4:
                vm.wait(("w", 1))
            lg.drain()
            step_mfma(g, 0)
            a("s_barrier")
            step_mfma(g, 1)
            if nxt < 32:
                xread(nxt)
            wread(nxt, 0)
            wread(nxt, 1)
            step_mfma(g, 2)
            wread(nxt, 2)
        elif has_next:
            step_mfma(g, 0)
            if nxt < 32:
                xread(nxt)
            wread(nxt, 0)
            step_mfma(g, 1)
            wread(nxt, 1)
            step_mfma(g, 2)
            wread(nxt, 2)
        else:
            lg.drain()
            for seg in range(3):
                step_mfma(g, seg)
    while shadow:
        a(shadow.pop(0))
    stamp(7)
    a("s_barrier")
    stamp(8)
    a("s_setprio 2")
    att_loads()
    for seg in range(3):
        pk = PK + 8 * (seg & 1)
        for i in range(16):
            a("v_max_f32 %s, 0, %s" % (vr(ACC[seg] + i), vr(ACC[seg] + i)))
        for i in range(16):
            a("v_mul_f32 %s, %s, %s" % (vr(ACC[seg] + i), vr(ACC[seg] + i), vr(ACC[seg] + i)))
        for q in range(8):
            a("v_cvt_pk_bf16_f32 %s, %s, %s" % (vr(pk + q), vr(ACC[seg] + 2 * q), vr(ACC[seg] + 2 * q + 1)))
        if seg < 2:
            a("s_add_u32 s72, s78, %d" % (seg * 4 * 65536))
        else:
            a("s_mov_b32 s72, s88")
        a("s_add_u32 s73, s72, 0x10000")
        bstore(pk, 4, 1, SWS, "s72", 0, "sc1", "hst")
        bstore(pk + 4, 4, 1, SWS, "s73", 0, "sc1", "hst")
    stamp(9)


    def w2dma(i):
        a("s_add_u32 m0, s84, %d" % ((i & 3) * 2048))
        a("s_add_u32 s72, s85, %d" % (i * 65536))
        dma(4, SW2, "s72", 0, ("w2", i))
        a("s_add_u32 m0, s84, %d" % ((i & 3) * 2048 + 1024))
        a("s_add_u32 s72, s72, 8192")
        dma(4, SW2, "s72", 0, ("w2", i))

    hreg = lambda i, tt: HB + 8 * (i & 1) + 4 * tt

    def hload(i, tt, reg=None):
        a("s_add_u32 s72, s86, %d" % (i * 4 * 65536))
        bload(hreg(i, tt) if reg is None else reg, 4, 1, SWS, "s72", tt * 1024, "sc1", ("h", i, tt))

    def w2read(i, nt, reg=None):
        vm.wait(("w2", i))
        trread(WF + 4 * nt if reg is None else reg, 5 + nt, (i & 3) * 2048, 1024, ("wf", i, nt))

    def fmfma(i, tt, nt, wreg=None, hr=None):
        vm.wait(("h", i, tt))
        lg.wait(("wf", i, nt))
        d = FA + 16 * (2 * tt + nt)
        mfma32(d, WF + 4 * nt if wreg is None else wreg, hreg(i, tt) if hr is None else hr, None if i == 0 else d)

    hooks = {}

    def hook(j, t, i, f):
        hooks.setdefault((j, t, i), []).append(f)

    n1, n2 = cfg.n1, cfg.n2
    hook(1, 3, 6, lambda: (vm.wait("hst"), set_flag(7, "s80")))
    hook(n1 - 2, 0, 8, lambda: flag_load(7, 32, "s87", "hf"))
    hook(n1 - 2, 3, 12, lambda: (vm.wait("hf"), check_flags("h", 7, 32, "s87")))
    hook(n1 - 1, 0, 8, lambda: (hload(0, 0), hload(0, 1)))
    hook(n1 - 1, 2, 2, lambda: hload(1, 0))
    for i in range(min(NS, n2 + 3)):
        hook(n1 - 3 + i, 1, 2, lambda i=i: w2dma(i))
    for i in range(min(NS, n2 + 1)):
        hook(n1 - 1 + i, 3, 0, lambda i=i: w2read(i, 1))
    for i in range(n2):
        j = n1 + i
        hook(j, 0, 0, lambda i=i: w2read(i, 0))
        if i + 1 < NS:
            hook(j, 0, 8, lambda i=i: hload(i + 1, 1))
        if i + 2 < NS:
            hook(j, 2, 2, lambda i=i: hload(i + 2, 0))
        for t, (tt, nt) in enumerate(((0, 0), (0, 1), (1, 1), (1, 0))):
            hook(j, t, 13, lambda i=i, tt=tt, nt=nt: fmfma(i, tt, nt))
    att_run(nA, hooks)
    left = list(range(n2, NS))
    hextra = {}
    for i in left:
        for tt in range(2):
            if i <= n2 or (i == n2 + 1 and tt == 0):
                continue
            hextra[(i, tt)] = KV + 12 + 4 * len(hextra)
            hload(i, tt, hextra[(i, tt)])
    vm_a, lg_a = list(vm.items), list(lg.items)
    a("s_branch L_att_done")

    a.label("L_loader")
    vm.items = list(vm_split)
    lg.items = []

    def issue_chunk(c):
        slot = c & 3
        if c < 8:
            for rg in range(2):
                a("s_add_u32 m0, s87, %d" % (slot * 24576 + rg * 3072))
                a("s_add_u32 s72, s85, %d" % ((c * 64 + rg * 8) * 3072))
                for seg in range(3):
                    dma(13, SWQ, "s72", seg * 1024, ("w", c))
        else:
            for rg in range(2):
                for seg in range(3):
                    a("s_add_u32 m0, s87, %d" % (slot * 24576 + rg * 3072 + seg * 1024))
                    a("s_add_u32 s72, s86, %d" % (((c - 8) * 64 + rg * 8) * 2752 + seg * 128))
                    dma(12, SW1, "s72", 0, ("w", c))

    issue_chunk(2)
    a("s_waitcnt lgkmcnt(0)")
    a("s_add_u32 %s, %s, 0x%x" % (sr(sTAG), sr(sTAG), EPOCH_INC))
    issued = 2
    for c in range(16):
        if c == 8:
            a("s_barrier")
            while issued < cfg.post:
                issued += 1
                issue_chunk(issued)
        vm.wait(("w", c))
        a("s_barrier")
        if c in (0, 8, 12, 15):
            stamp({0: 3, 8: 4, 12: 5, 15: 6}[c])
        lim = min(15, c + 3)
        if c < 8:
            lim = min(lim, cfg.hold)
        while issued < lim:
            issued += 1
            issue_chunk(issued)
        if c == 1:
            a("; sentinel prefill of the O fragments this workgroup's Q/K/V flags will release")
            bstore(8, 4, 1, SWS, "s76", 0, "sc1", "pre")
            bstore(8, 4, 1, SWS, "s77", 0, "sc1", "pre")
        if c == 2:
            for op in init1:
                a(op)
        if c == 3:
            for op in init2:
                a(op)
        if c == 12:
            a("; memory-side prefetch of w2 and wo")
            a("s_and_b32 s73, s60, 3")
            a("s_lshl2_add_u32 s73, s2, s73")
            a("s_mul_i32 s72, s73, 1408")
            a("s_lshl_b32 s73, s73, 9")
            bload(14, 1, 5, SW2, "s72", 0, "", "pf")
            bload(14, 1, 6, SWO, "s73", 0, "", "pf")
        if c == 14:
            flag_load(7, 64, "s79", "qf")
    vm.wait("qf")
    check_flags("q", 7, 64, "s79")
    stamp(7)
    att_loads()
    a("s_barrier")
    stamp(8)
    a("s_setprio 1")

    def wo_dma():
        a("; wo tile -> LDS [0, 64K)")
        a("s_and_b32 s78, s60, 3")
        a("s_lshl_b32 s76, s78, 17")
        a("s_lshl_b32 s73, s67, 7")
        a("s_add_u32 s76, s76, s73")
        a("s_lshl_b32 s78, s78, 14")
        for i in range(16):
            a("s_add_u32 m0, s78, %d" % (i * 1024))
            a("s_add_u32 s73, s76, %d" % (i * 8192))
            dma(4, SWO, "s73", 0, "wo")

    att_run(nB, {(1, 1, 2): [wo_dma]})
    vm.drain()

    a.label("L_att_done")
    stamp(10)
    lg.items = []
    a("v_lshlrev_b32 v12, 2, v0")
    for t in range(1, 4):
        a("v_add_u32 %s, %s, v1" % (vr(12 + t), sr(96 + t)))
        a("v_add_u32 %s, %s, v12" % (vr(16 + t), sr(96 + t)))
    for t in range(1, 4):
        off = (t - 1) * 2304
        dsw("ds_write_b128", 12 + t, OA + 16 * t, 4, off)
        dsw("ds_write_b128", 12 + t, OA + 16 * t + 4, 4, off + 1024)
        dsw("ds_write_b32", 16 + t, OA + 16 * t + 8, 1, off + 2048)
    a("""
    v_add_u32 v20, s96, v1
    v_add_u32 v21, s96, v12
    v_bfe_u32 v22, v0, 4, 1
    v_lshl_add_u32 v22, v22, 14, v2
    s_lshr_b32 s75, s60, 1
    s_lshl2_add_u32 s72, s65, s75
    s_lshl_b32 s72, s72, 5
    s_add_u32 s72, s72, s64
    s_lshl_b32 s72, s72, 10
    s_and_b32 s73, s60, 1
    s_lshl_b32 s73, s73, 9
    s_add_u32 s72, s72, s73
    s_add_u32 s76, s72, %d
    """ % WS_OF)
    lg.drain()
    a("s_barrier")
    for src in range(3):
        d = SB + 10 * src
        dsr("ds_read_b128", d, 4, 20, src * 2304, src)
        dsr("ds_read_b128", d + 4, 4, 20, src * 2304 + 1024, src)
        dsr("ds_read_b32", d + 8, 1, 21, src * 2304 + 2048, src)
    for src in range(3):
        lg.wait(src)
        for i in range(9):
            a("v_add_f32 %s, %s, %s" % (vr(OA + i), vr(OA + i), vr(SB + 10 * src + i)))
    a("v_fma_f32 v13, %s, 0, %s" % (vr(OA), vr(OA + 8)))
    for i in range(1, 8):
        a("v_fma_f32 v13, %s, 0, v13" % vr(OA + i))
    a("""
    v_cmp_nle_f32 vcc, 0x30800000, v13
    s_mov_b64 s[72:73], vcc
    v_cmp_nge_f32 vcc, 0x5d800000, v13
    s_or_b64 s[72:73], s[72:73], vcc
    """)
    a("s_branch L_slow" if cfg.force_slow else "s_cbranch_scc1 L_slow")
    a.label("L_norm")
    a("v_rcp_f32 v13, %s" % vr(OA + 8))
    for i in range(8):
        a("v_mul_f32 %s, v13, %s" % (vr(OA + i), vr(OA + i)))
    for q in range(4):
        a("v_cvt_pk_bf16_f32 %s, %s, %s" % (vr(16 + q), vr(OA + 2 * q), vr(OA + 2 * q + 1)))
    for q in range(4):
        a("v_min_u32 %s, -2, %s" % (vr(16 + q), vr(16 + q)))
    vm.items = list(vm_a)
    bstore(16, 4, 22, SWS, "s76", 0, "sc1", "ost")
    stamp(11)
    a("s_cmp_ge_u32 s60, 4")
    a("s_cbranch_scc1 L_tail")
    wl = {}
    for i in left:
        for nt in range(2):
            if i == n2 and nt == 1:
                continue
            wl[(i, nt)] = SB + 4 * len(wl)
            w2read(i, nt, wl[(i, nt)])
    for i in left:
        for tt, nt in ((0, 1), (1, 1), (0, 0), (1, 0)):
            fmfma(i, tt, nt, wl.get((i, nt)), hextra.get((i, tt)))
    vm.wait(*[t for t in vm.items if t != "ost"])

    WOF, OFR, AC = 128, 24, 8
    a.label("L_tail")
    vm.items = ["ost"]
    lg.items = []
    a("""
    s_and_b32 s74, s60, 3
    s_lshr_b32 s75, s60, 2
    v_bfe_u32 v4, v0, 2, 2
    v_bfe_u32 v5, v0, 4, 1
    v_lshl_add_u32 v4, v5, 2, v4
    v_lshrrev_b32 v5, 1, v4
    s_lshl_b32 s72, s75, 1
    v_xor_b32 v5, s72, v5
    v_lshlrev_b32 v12, 7, v4
    v_lshl_add_u32 v12, v5, 5, v12
    v_lshrrev_b32 v5, 5, v0
    v_lshl_add_u32 v12, v5, 11, v12
    v_and_b32 v4, 3, v0
    v_lshl_add_u32 v12, v4, 3, v12
    s_lshl_b32 s72, s75, 15
    v_add_u32 v12, s72, v12
    v_xor_b32 v13, 32, v12
    v_xor_b32 v14, 64, v12
    v_xor_b32 v15, 0x60, v12
    """)
    a("""
    v_and_b32 v6, 15, v0
    v_lshrrev_b32 v7, 4, v0
    v_lshlrev_b32 v3, 3, v7
    v_lshl_add_u32 v2, v6, 10, v3
    s_lshl2_add_u32 s72, s66, s74
    s_lshl_b32 s78, s72, 14
    s_lshl1_add_u32 s79, s67, s75
    s_lshl_b32 s79, s79, 6
    s_add_u32 s78, s78, s79
    s_lshl1_add_u32 s76, s72, s75
    s_lshl_b32 s76, s76, 13
    s_add_u32 s76, s76, %d
    s_add_u32 s77, s76, 0x1000
    """ % WS_OF)
    bload(56, 2, 2, SX, "s78", 0, "", "xb")
    bload(58, 2, 2, SX, "s78", 32, "", "xb")
    bload(60, 2, 3, SB2, "s79", 0, "", "xb")
    bload(62, 2, 3, SB2, "s79", 32, "", "xb")

    def wo_reads():
        for ks in range(8):
            for ct in range(4):
                trread(WOF + (ks * 4 + ct) * 4, 12 + ct, ks * 4096, 1024, ("wo", ks))

    def oloads():
        for ks in range(8):
            bload(OFR + 4 * ks, 4, 1, SWS, "s76" if ks < 4 else "s77", (ks & 3) * 1024, "sc1", ("o", ks))

    a("s_cmp_ge_u32 s60, 4")
    a("s_cbranch_scc1 L_tail_b")
    a("""
    v_and_b32 v4, 31, v0
    v_mul_u32_u24 v4, %d, v4
    v_lshl_add_u32 v4, v5, 4, v4
    s_mul_i32 s72, s60, %d
    s_add_u32 s72, s72, %d
    v_add_u32 v4, s72, v4
    s_barrier
    """ % (PART_STRIDE, PART_SIZE, L_PART))
    for tt in range(2):
        for nt in range(2):
            for q in range(4):
                dsw("ds_write_b128", 4, FA + 16 * (2 * tt + nt) + 4 * q, 4, tt * 32 * PART_STRIDE + nt * 128 + q * 32)
    lg.drain()
    a("s_barrier")
    save = list(vm.items)
    if cfg.oearly:
        oloads()
    wo_reads()
    a("s_branch L_tail_j")
    a.label("L_tail_b")
    vm.items = list(save)
    wo_reads()
    a("s_barrier")
    a("s_barrier")
    if cfg.oearly:
        oloads()
    a.label("L_tail_j")
    stamp(12)
    lg.items = [("wo", 0)]
    a("""
    s_lshl_b32 s72, s74, 4
    v_add_u32 v4, s72, v6
    v_mul_u32_u24 v4, %d, v4
    v_lshl_add_u32 v4, v7, 4, v4
    s_lshl_b32 s72, s75, 7
    s_add_u32 s72, s72, %d
    v_add_u32 v4, s72, v4
    """ % (PART_STRIDE, L_PART))
    G, Z, X = 64, 96, 104
    for j in range(4):
        for ct in range(2):
            dsr("ds_read_b128", G + 8 * j + 4 * ct, 4, 4, j * PART_SIZE + ct * 64, ("g", j))
    if not cfg.oearly:
        oloads()
    vm.wait("xb")
    for q in range(4):
        a("v_lshlrev_b32 %s, 16, %s" % (vr(Z + 2 * q), vr(60 + q)))
        a("v_and_b32 %s, s89, %s" % (vr(Z + 1 + 2 * q), vr(60 + q)))
    for q in range(4):
        a("v_lshlrev_b32 %s, 16, %s" % (vr(X + 2 * q), vr(56 + q)))
        a("v_and_b32 %s, s89, %s" % (vr(X + 1 + 2 * q), vr(56 + q)))
    a("""
    s_lshl_b32 s72, s60, 11
    s_add_u32 s72, s72, %d
    v_add_u32 v5, s72, v1
    s_xor_b32 s73, s60, 4
    s_lshl_b32 s73, s73, 11
    s_add_u32 s73, s73, %d
    v_add_u32 v6, s73, v1
    """ % (L_XCH, L_XCH))
    for j in range(4):
        lg.wait(("g", j))
        for i in range(8):
            a("v_add_f32 %s, %s, %s" % (vr(Z + i), vr(Z + i), vr(G + 8 * j + i)))
    for i in range(8):
        a("v_mul_f32 %s, 0x%x, %s" % (vr(G + i), NLOG2E, vr(Z + i)))
    for i in range(8):
        a("v_exp_f32 %s, %s" % (vr(G + i), vr(G + i)))
    for i in range(8):
        a("v_add_f32 %s, 1.0, %s" % (vr(G + i), vr(G + i)))
    for i in range(8):
        a("v_rcp_f32 %s, %s" % (vr(G + i), vr(G + i)))
    for i in range(8):
        a("v_mul_f32 %s, %s, %s" % (vr(Z + i), vr(Z + i), vr(G + i)))
    a("s_mov_b32 s73, 0")
    a.label("L_wo")
    a("v_mov_b32 v7, 0")
    for ks in range(8):
        vm.wait(("o", ks))
        for n, ct in enumerate((2, 3, 0, 1)):
            d = AC + 4 * ct
            mfma16(d, WOF + (ks * 4 + ct) * 4, OFR + 4 * ks, None if ks == 0 else d)
            if n < 2:
                a("v_max3_u32 v7, v7, %s, %s" % (vr(OFR + 4 * ks + 2 * n), vr(OFR + 4 * ks + 2 * n + 1)))
    a("v_cmp_eq_u32 vcc, -1, v7")
    a("s_cbranch_vccnz L_oretry")
    a.label("L_ovalid")
    stamp(13)
    a("ds_write_b128 v5, %s" % vr(AC + 8, 4))
    a("ds_write_b128 v5, %s offset:1024" % vr(AC + 12, 4))
    a("s_waitcnt lgkmcnt(0)")
    a("s_barrier")
    stamp(14)
    a("ds_read_b128 v[64:67], v6")
    a("ds_read_b128 v[68:71], v6 offset:1024")
    for ct in range(2):
        a("s_waitcnt lgkmcnt(%d)" % (1 - ct))
        for i in range(4):
            a("v_add_f32 %s, %s, %s" % (vr(AC + 4 * ct + i), vr(AC + 4 * ct + i), vr(64 + 4 * ct + i)))
        for i in range(4):
            a("v_fma_f32 %s, %s, %s, %s" % (vr(AC + 4 * ct + i), vr(AC + 4 * ct + i), vr(Z + 4 * ct + i), vr(X + 4 * ct + i)))
        for q in range(2):
            a("v_cvt_pk_bf16_f32 %s, %s, %s" % (vr(72 + 2 * ct + q), vr(AC + 4 * ct + 2 * q), vr(AC + 4 * ct + 2 * q + 1)))
        bstore(72 + 2 * ct, 2, 2, SOUT, "s78", 32 * ct)
    a("s_or_b32 s72, s2, s60")
    a("s_cmp_lg_u32 s72, 0")
    a("s_cbranch_scc1 L_noepoch")
    set_flag(7, "0")
    a.label("L_noepoch")
    if cfg.stamps:
        a("s_waitcnt vmcnt(0)")
        stamp(15)
        a("s_lshl3_add_u32 s72, s2, s60")
        a("s_lshl_b32 s72, s72, 6")
        a("s_add_u32 s72, s72, %d" % WS_STAMP)
        for i in range(16):
            a("v_mov_b32 %s, %s" % (vr(80 + i), sr(sSTAMP + i)))
        a("s_mov_b64 exec, 1")
        for i in range(4):
            bstore(80 + 4 * i, 4, 1, SWS, "s72", 16 * i)
    a.label("L_end")
    a("s_endpgm")

    a.label("L_oretry")
    a("s_add_u32 s73, s73, 1")
    a("s_cmp_ge_u32 s73, %d" % SPIN_MAX)
    a("s_cbranch_scc1 L_ovalid")
    oloads()
    a("s_branch L_wo")

    for tag, vt, lanes, soff in stubs:
        a.label("L_poll_" + tag)
        a("s_mov_b32 s73, 0")
        a.label("L_poll2_" + tag)
        flag_load(vt, lanes, soff, None)
        a("s_add_u32 s73, s73, 1")
        a("s_waitcnt vmcnt(0)")
        a("s_cmp_ge_u32 s73, %d" % SPIN_MAX)
        a("s_cbranch_scc1 L_polled_" + tag)
        a("v_cmp_ne_u32 vcc, %s, %s" % (sr(sTAG), vr(vt)))
        a("s_cbranch_vccnz L_poll2_" + tag)
        a("s_branch L_polled_" + tag)

    a.label("L_slow")
    CN = SB + 16
    a("s_waitcnt vmcnt(0)")
    a("v_mov_b32 v13, 0xff800000")
    a("s_mov_b32 s82, s83")
    a("s_mov_b32 s81, 64")
    a.label("L_slow1")
    bload(KV, 4, 1, SWS, "s82", 0, "sc1")
    a("s_add_u32 s82, s82, 2048")
    a("s_waitcnt vmcnt(0)")
    mfma32(SB, KV, QR, None)
    for i in range(0, 16, 2):
        a("v_max3_f32 v13, v13, %s, %s" % (vr(SB + i), vr(SB + i + 1)))
    a("s_sub_u32 s81, s81, 1")
    a("s_cmp_lg_u32 s81, 0")
    a("s_cbranch_scc1 L_slow1")
    a("v_mov_b32 v14, v13")
    a("v_permlane32_swap_b32 v14, v13")
    a("v_max_f32 v13, v14, v13")
    for i in range(16):
        a("v_sub_f32 %s, 0, v13" % vr(CN + i))
        a("v_mov_b32 %s, 0" % vr(OA + i))
    a("s_mov_b32 s82, s83")
    a("s_mov_b32 s81, 64")
    a.label("L_slow2")
    kvload(0)
    a("s_waitcnt vmcnt(0)")
    mfma32(SB, KV, QR, CN)
    for i in range(16):
        a("v_exp_f32 %s, %s" % (vr(SB + i), vr(SB + i)))
    smf(OA, KV + 4, SB)
    smf(OA, KV + 8, SB + 8)
    a("s_sub_u32 s81, s81, 1")
    a("s_cmp_lg_u32 s81, 0")
    a("s_cbranch_scc1 L_slow2")
    a("s_branch L_norm")
    a.label("L_code_end")
    a("s_endpgm")

    added = a.fix()
    return a.text(), added


HEADER = """; Kernarg layout for this problem (88 bytes, ptrs only, base s[0:1]):
; @launch grid=(256,1,1) block=(512,1,1) lds=163840
.amdgcn_target "amdgcn-amd-amdhsa--gfx950"
.text
.globl {k}
.p2align 8
.type {k},@function
{k}:
"""

FOOTER = """.section .rodata,"a"
.p2align 6
.amdhsa_kernel {k}
  .amdhsa_next_free_vgpr 256
  .amdhsa_next_free_sgpr 102
  .amdhsa_accum_offset 256
  .amdhsa_group_segment_fixed_size 0
  .amdhsa_kernarg_size 88
  .amdhsa_user_sgpr_count 2
  .amdhsa_user_sgpr_kernarg_segment_ptr 1
  .amdhsa_system_sgpr_workgroup_id_x 1
.end_amdhsa_kernel
"""


def build(**kw):
    cfg = Cfg()
    for k, v in kw.items():
        setattr(cfg, k, v)
    body, added = gen(cfg)
    return HEADER.format(k=KERNEL) + body + FOOTER.format(k=KERNEL), added


if __name__ == "__main__":
    out = sys.argv[1] if len(sys.argv) > 1 else "cdna_kernels/%s.s" % NAME
    kw = {}
    for arg in sys.argv[2:]:
        k, v = arg.split("=")
        kw[k] = int(v)
    text, added = build(**kw)
    open(out, "w").write(text)
    print("wrote", out, "lines", text.count("\n"), "nops added", added)
```

```python
import sys
import os
sys.path.insert(0, os.path.dirname(os.path.abspath(__file__)))
from asmlib import Asm, vr, sr

NAME = "recurrent_scan__softmax_full_mha__dense_activation_squared_relu__prompt"
KERNEL = NAME + "_kernel"

WS_FLAGQ = 0x1000
WS_FLAGH = 0x2000
WS_STAMP = 0x10000
WS_QO = 0x100000
WS_KV = 0x300000
WS_HF = 0x700000
WS_END = WS_HF + 86 * 65536
EPOCH_INC = 0x9E3779B9
SPIN_MAX = 1 << 18

L_RING = 65536
L_OPART = 65536
L_W2 = L_OPART + 55296
L_PART = 65536
PART_STRIDE = 272
PART_SIZE = 64 * PART_STRIDE
L_XCH = L_PART + 4 * PART_SIZE

SX, SWQ, SWO, SW1, SB1, SW2, SB2, SOUT, SWS = 24, 28, 32, 36, 40, 44, 48, 52, 56
sW, sCG, sTB, sRW, sP, sQB, sTBF, sCB, sTAG, sCT0 = 60, 61, 62, 63, 64, 65, 66, 67, 68, 69
sVM = 70
sSTAMP = 4

QSCALE = 0x3EB8AA3B
NLOG2E = 0xBFB8AA3B
NS = 22


class Cfg:
    n1 = 5
    n2 = 19
    stamps = 0
    force_slow = 0
    flag_item = 120
    look = 5
    pfq_at = 4
    qpoll = 14
    sleep = 6
    w0_at = 8
    w1_at = 6
    hpre = 0
    hflag = 5
    touch = 0
    hst = 0


def srd(s):
    return sr(s, 4)


class Queue:
    def __init__(self, a, name, maxn):
        self.a, self.name, self.maxn, self.items = a, name, maxn, []

    def push(self, tag):
        self.items.append(tag)

    def wait(self, *tags):
        last = max((i for i, t in enumerate(self.items) if t in tags), default=-1)
        if last < 0:
            return
        n = len(self.items) - 1 - last
        self.a("s_waitcnt %s(%d)" % (self.name, min(n, self.maxn)))
        self.items = self.items[last + 1:]

    def drain(self):
        self.a("s_waitcnt %s(0)" % self.name)
        self.items = []


def gen(cfg):
    a = Asm()
    nA = cfg.n1 + cfg.n2
    nB = 32 - nA
    vm = Queue(a, "vmcnt", 63)
    lg = Queue(a, "lgkmcnt", 15)

    def stamp(i):
        if cfg.stamps:
            a("%s s[22:23]" % ("s_memtime" if cfg.stamps == 2 else "s_memrealtime"))
            a("s_waitcnt lgkmcnt(0)")
            a("s_mov_b32 %s, s22" % sr(sSTAMP + i))

    def mfma32(d, x, y, c):
        a("v_mfma_f32_32x32x16_bf16 %s, %s, %s, %s" % (vr(d, 16), vr(x, 4), vr(y, 4), "0" if c is None else vr(c, 16)))

    def mfma16(d, x, y, c):
        a("v_mfma_f32_16x16x32_bf16 %s, %s, %s, %s" % (vr(d, 4), vr(x, 4), vr(y, 4), "0" if c is None else vr(c, 4)))

    def smf(d, x, y):
        a("v_smfmac_f32_32x32x32_bf16 %s, %s, %s, v3" % (vr(d, 16), vr(x, 4), vr(y, 8)))

    def bload(d, n, va, s, so, off=0, mod="", tag=None):
        op = {1: "dword", 2: "dwordx2", 4: "dwordx4"}[n]
        a("buffer_load_%s %s, %s, %s, %s offen offset:%d %s" % (op, vr(d, n), vr(va), srd(s), so, off, mod))
        vm.push(tag)

    def bstore(d, n, va, s, so, off=0, mod="", tag=None):
        op = {1: "dword", 2: "dwordx2", 4: "dwordx4"}[n]
        a("buffer_store_%s %s, %s, %s, %s offen offset:%d %s" % (op, vr(d, n), vr(va), srd(s), so, off, mod))
        vm.push(tag)

    def dma(va, s, so, off=0, tag=None):
        a("buffer_load_dwordx4 %s, %s, %s offen offset:%d lds" % (vr(va), srd(s), so, off))
        vm.push(tag)

    def dsr(op, d, n, va, off, tag=None):
        a("%s %s, %s offset:%d" % (op, vr(d, n), vr(va), off))
        lg.push(tag)

    def dsw(op, va, d, n, off, tag=None):
        a("%s %s, %s offset:%d" % (op, vr(va), vr(d, n), off))
        lg.push(tag)

    def trread(d, va, off, second, tag=None):
        dsr("ds_read_b64_tr_b16", d, 2, va, off, tag)
        dsr("ds_read_b64_tr_b16", d + 2, 2, va, off + second, tag)

    def set_flag(vt, soff):
        a("v_mov_b32 %s, %s" % (vr(vt), sr(sTAG)))
        a("s_mov_b64 exec, 1")
        bstore(vt, 1, 1, SWS, soff, 0, "sc0 sc1")
        a("s_mov_b64 exec, -1")

    stubs = []

    def check_flags(tag, vt, lanes, soff):
        a("v_cmp_ne_u32 vcc, %s, %s" % (sr(sTAG), vr(vt)))
        a("s_cbranch_vccnz L_poll_" + tag)
        a.label("L_polled_" + tag)
        stubs.append((tag, vt, lanes, soff))

    def flag_load(vt, lanes, soff, tag):
        a("v_and_b32 %s, %d, v0" % (vr(vt), lanes - 1))
        a("v_lshlrev_b32 %s, 2, %s" % (vr(vt), vr(vt)))
        bload(vt, 1, vt, SWS, soff, 0, "sc0 sc1", tag)

    a("s_cmp_ge_u32 s2, 256")
    a("s_cbranch_scc1 L_end")
    stamp(0)
    if cfg.stamps:
        for i in range(1, 16):
            a("s_mov_b32 %s, s22" % sr(sSTAMP + i))
    for s, off in ((SX, 0), (SWQ, 8), (SW1, 32), (SWS, 80), (SB1, 40), (SWO, 16), (SW2, 48), (SB2, 56), (SOUT, 64)):
        a("s_load_dwordx2 %s, s[0:1], %d" % (sr(s, 2), off))
    a("""
    v_lshrrev_b32 v1, 6, v0
    v_and_b32 v0, 63, v0
    v_readfirstlane_b32 s60, v1
    s_getpc_b64 s[72:73]
    L_pc:
    s_and_b32 s74, s2, 0xf8
    s_add_u32 s74, s74, s60
    s_lshl_b32 s74, s74, 8
    v_and_b32 v4, 1, v0
    v_lshl_add_u32 v4, v4, 7, s74
    v_min_u32 v4, L_code_end-L_pc, v4
    v_mov_b32 v5, s73
    v_add_co_u32 v4, vcc, s72, v4
    v_addc_co_u32 v5, vcc, 0, v5, vcc
    global_load_dword v7, v[4:5], off
    """)
    vm.push("pf")
    a("""
    s_bfe_u32 s72, s2, 0x20003
    s_lshr_b32 s67, s2, 5
    s_and_b32 s73, s2, 6
    s_lshl2_add_u32 s62, s73, s67
    s_lshl1_add_u32 s63, s72, s60
    s_and_b32 s63, s63, 7
    s_lshl3_add_u32 s74, s62, s63
    s_lshl_b32 s74, s74, 13
    s_lshl3_add_u32 s75, s2, s60
    s_mul_i32 s75, s75, 768
    v_lshrrev_b32 v4, 3, v0
    v_and_b32 v5, 7, v0
    v_lshlrev_b32 v14, 10, v4
    v_lshl_add_u32 v14, v5, 4, v14
    v_min_u32 v6, 5, v0
    v_lshlrev_b32 v6, 7, v6
    """)
    sizes = {SX: 2048 * 1024, SWQ: 512 * 3072, SWS: WS_END, SW1: 512 * 2752, SB1: 2752,
             SWO: 512 * 1024, SW2: 1376 * 1024, SB2: 1024, SOUT: 2048 * 1024}
    for s in (SX, SWQ, SW1):
        a("s_mov_b32 %s, %d" % (sr(s + 2), sizes[s]))
        a("s_mov_b32 %s, 0x20000" % sr(s + 3))
    a("s_waitcnt lgkmcnt(0)")
    RAW = 128
    for j in range(8):
        if j == cfg.pfq_at:
            bload(7, 1, 6, SWQ, "s75", 0, "", "pf")
        bload(RAW + j * 4, 4, 14, SX, "s74", j * 128, "", ("x", j))
    if cfg.pfq_at == 8:
        bload(7, 1, 6, SWQ, "s75", 0, "", "pf")
    a("v_mov_b32 v31, v6")
    a("s_mov_b32 s100, s75")
    a("s_load_dword %s, %s, 0" % (sr(sTAG), sr(SWS, 2)))
    for s in (SWS, SB1, SWO, SW2, SB2, SOUT):
        a("s_mov_b32 %s, %d" % (sr(s + 2), sizes[s]))
        a("s_mov_b32 %s, 0x20000" % sr(s + 3))
    if cfg.touch:
        a("; first touch of every buffer used later, so address translations are fetched early")
        a("v_lshlrev_b32 v20, 18, v0")
        a("s_lshl_b32 s75, s60, 15")
        for s_ in (SWS, SOUT, SWO, SW2):
            bload(7, 1, 20, s_, "s75", 0, "", "pf")
        for s_ in (SB1, SB2):
            bload(7, 1, 20, s_, "0", 0, "", "pf")
    a("""
    s_and_b32 s73, s2, 1
    s_lshl2_add_u32 s61, s73, s72
    s_and_b32 s73, s2, 7
    s_lshl2_add_u32 s66, s73, s72
    s_and_b32 s72, s72, 1
    s_lshl1_add_u32 s64, s73, s72
    s_lshr_b32 s65, s2, 4
    s_mul_i32 s69, s61, 43
    s_lshr_b32 s69, s69, 3
    s_mov_b32 s70, 0xffff
    s_mov_b32 s71, 0xffff
    s_mov_b32 s89, 0xffff0000
    s_and_b32 s74, s60, 1
    s_bfe_u32 s75, s60, 0x10001
    s_lshl_b32 s72, s61, 7
    s_mul_i32 s85, s74, %d
    s_add_u32 s85, s85, s72
    s_mul_i32 s86, s75, %d
    s_add_u32 s86, s86, s85
    s_add_u32 s86, s86, 1024
    s_lshl_b32 s73, s75, 11
    s_add_u32 s85, s85, s73
    s_and_b32 s87, s60, 3
    s_lshl_b32 s87, s87, 10
    s_add_u32 s87, s87, %d
    s_lshr_b32 s73, s60, 2
    s_mul_i32 s90, s73, %d
    s_add_u32 s90, s90, s85
    s_mul_i32 s91, s73, 12288
    s_add_u32 s91, s91, s87
    v_lshlrev_b32 v1, 4, v0
    v_and_b32 v2, 15, v0
    v_lshrrev_b32 v3, 5, v0
    v_lshl_add_u32 v2, v3, 4, v2
    v_lshlrev_b32 v2, 4, v2
    v_bfe_u32 v6, v4, 1, 1
    v_lshlrev_b32 v6, 2, v6
    v_xor_b32 v6, v6, v5
    v_lshlrev_b32 v6, 4, v6
    v_mul_u32_u24 v13, 3072, v4
    v_add_u32 v13, v13, v6
    s_and_b32 s72, s63, 1
    s_lshl_b32 s72, s72, 2
    v_lshrrev_b32 v24, 1, v4
    v_xor_b32 v24, v24, v5
    v_xor_b32 v24, s72, v24
    s_lshl_b32 s72, s63, 10
    v_lshlrev_b32 v15, 7, v4
    v_lshl_add_u32 v15, v24, 4, v15
    v_add_u32 v15, s72, v15
    v_mov_b32 v30, 0x3f803f80
    v_mov_b32 v24, 0
    v_mov_b32 v25, 0
    """ % (8 * 3072, 16 * 3072, L_RING, 3 * 16 * 3072))
    a("""
    s_and_b32 s74, s60, 1
    s_lshr_b32 s75, s60, 1
    s_lshl1_add_u32 s72, s64, s74
    s_lshl_b32 s83, s72, 17
    s_add_u32 s83, s83, %d
    s_and_b32 s73, s75, 1
    s_lshl_b32 s73, s73, 16
    s_add_u32 s82, s83, s73
    s_lshl_b32 s72, s65, 6
    s_add_u32 s72, s72, s64
    s_lshl1_add_u32 s72, s72, s74
    s_lshl_b32 s72, s72, 10
    s_add_u32 s72, s72, %d
    s_mul_i32 s84, s74, %d
    s_add_u32 s84, s84, %d
    """ % (WS_KV, WS_QO, 12 * 2304, L_OPART))
    for t in range(4):
        a("s_xor_b32 s73, s75, %d" % t)
        a("s_mul_i32 %s, s73, %d" % (sr(96 + t), 3 * 2304))
        a("s_lshl_b32 s73, s73, 15")
        a("s_add_u32 %s, s72, s73" % sr(92 + t))
        a("s_add_u32 %s, %s, s84" % (sr(96 + t), sr(96 + t)))
    a("s_cmp_ge_u32 s60, 4")
    a("s_cbranch_scc1 L_setup_b")
    a("""
    s_add_u32 s82, s82, %d
    v_and_b32 v8, 0x33, v0
    v_and_b32 v9, 4, v0
    v_lshl_or_b32 v8, v9, 1, v8
    v_and_b32 v9, 8, v0
    v_lshrrev_b32 v9, 1, v9
    v_or_b32 v8, v8, v9
    v_lshlrev_b32 v11, 4, v8
    v_bfe_u32 v9, v0, 4, 1
    v_lshl_add_u32 v12, v9, 17, v2
    v_lshl_add_u32 v4, v4, 10, v6
    v_bfe_u32 v10, v0, 2, 2
    v_lshlrev_b32 v5, 5, v9
    v_lshl_add_u32 v5, v10, 7, v5
    v_and_b32 v9, 3, v0
    v_lshl_add_u32 v5, v9, 3, v5
    v_lshrrev_b32 v10, 1, v10
    v_lshl_add_u32 v8, v3, 10, v5
    v_xor_b32 v9, s75, v10
    v_lshl_add_u32 v8, v9, 6, v8
    v_add_u32 v8, %d, v8
    v_add_u32 v9, %d, v8
    v_lshl_add_u32 v5, v3, 9, v5
    v_lshl_add_u32 v5, v10, 6, v5
    s_lshl_b32 s84, s60, 13
    s_add_u32 s84, s84, %d
    v_add_u32 v5, s84, v5
    v_xor_b32 v6, 64, v5
    v_and_b32 v10, 31, v0
    s_lshl_b32 s72, s74, 12
    v_bfe_u32 v16, v10, 1, 3
    v_xor_b32 v16, v16, v3
    v_lshlrev_b32 v16, 4, v16
    v_lshl_add_u32 v16, v10, 7, v16
    v_add_u32 v16, s72, v16
    v_xor_b32 v17, 32, v16
    v_xor_b32 v18, 64, v16
    v_xor_b32 v19, 0x60, v16
    v_lshlrev_b32 v10, 1, v10
    v_lshl_add_u32 v10, v3, 20, v10
    """ % (nB * 2048, L_RING, 2 * 24576, L_W2))
    for seg in range(3):
        for q in range(1, 4):
            a("v_mov_b32 %s, 0" % vr(112 + 4 * seg + q))
    for q in range(4):
        a("v_mov_b32 %s, v30" % vr(124 + q))
    a("""
    s_lshl1_add_u32 s72, s62, s74
    s_lshl1_add_u32 s73, s61, s75
    s_lshl_b32 s76, s73, 7
    s_add_u32 s76, s76, s72
    s_lshl_b32 s77, s76, 11
    s_lshl4_add_u32 s76, s72, s73
    s_lshl_b32 s76, s76, 11
    s_add_u32 s76, s76, %d
    s_add_u32 s77, s77, %d
    s_add_u32 s81, s69, s75
    s_lshl_b32 s78, s81, 7
    s_add_u32 s78, s78, s72
    s_lshl_b32 s78, s78, 10
    s_add_u32 s78, s78, %d
    s_lshl_b32 s79, s73, 6
    s_add_u32 s79, s79, s72
    s_lshl_b32 s79, s79, 2
    s_add_u32 s79, s79, %d
    s_lshl_b32 s80, s62, 3
    s_add_u32 s80, s80, s61
    s_lshl2_add_u32 s80, s80, s60
    s_lshl_b32 s80, s80, 2
    s_add_u32 s80, s80, %d
    s_mul_i32 s72, s61, 43
    s_add_u32 s72, s72, 43
    s_lshr_b32 s72, s72, 3
    s_add_u32 s73, s81, 4
    s_add_u32 s88, s78, %d
    s_cmp_lt_u32 s73, s72
    s_cselect_b32 s88, s88, 0x40000000
    s_lshl_b32 s81, s81, 6
    """ % (WS_QO, WS_KV, WS_HF, WS_FLAGQ, WS_FLAGH, 8 * 65536))
    a("""
    s_lshl_b32 s85, s60, 14
    s_lshl_b32 s72, s67, 7
    s_add_u32 s85, s85, s72
    s_lshl_b32 s86, s60, 6
    s_lshl1_add_u32 s86, s66, s86
    s_lshl_b32 s86, s86, 10
    s_add_u32 s86, s86, %d
    s_lshl_b32 s87, s66, 7
    s_add_u32 s87, s87, %d
    s_branch L_ln
    """ % (WS_HF, WS_FLAGH))
    a.label("L_setup_b")
    a("""
    v_mul_u32_u24 v12, 2752, v4
    v_add_u32 v12, v12, v6
    v_bfe_u32 v6, v4, 1, 2
    v_lshlrev_b32 v6, 1, v6
    v_xor_b32 v6, v6, v5
    v_lshlrev_b32 v6, 4, v6
    v_lshl_add_u32 v4, v4, 10, v6
    v_min_u32 v5, 10, v0
    v_lshlrev_b32 v5, 7, v5
    v_min_u32 v6, 3, v0
    v_lshlrev_b32 v6, 7, v6
    v_mov_b32 v10, v1
    v_mov_b32 v11, v1
    s_lshl_b32 s79, s64, 8
    s_add_u32 s79, s79, %d
    s_and_b32 s73, s60, 3
    s_lshl_b32 s72, s69, 6
    s_mul_i32 s80, s73, %d
    s_add_u32 s80, s80, s72
    s_mul_i32 s81, s73, 6144
    s_add_u32 s81, s81, %d
    """ % (WS_FLAGQ, 16 * 2752, L_RING))

    a.label("L_ln")

    def coop_chunk(c):
        for m in range(3):
            a("s_add_u32 m0, s91, %d" % (c * 24576 + m * 4096))
            a("s_add_u32 s72, s90, %d" % ((6 * c + m) * 16 * 3072))
            dma(13, SWQ, "s72", 0, ("w", c))

    a("v_mov_b32 v3, 0xdddddddd")
    for j in range(8):
        if j == cfg.w0_at:
            coop_chunk(0)
        vm.wait(("x", j))
        for q in range(4):
            x = RAW + j * 4 + q
            a("v_dot2c_f32_bf16 v24, v30, %s" % vr(x))
            a("v_dot2c_f32_bf16 v25, %s, %s" % (vr(x), vr(x)))
    if cfg.w0_at == 8:
        coop_chunk(0)
    stamp(1)
    for ctl in ("quad_perm:[1,0,3,2]", "quad_perm:[2,3,0,1]", "row_half_mirror"):
        for r in (24, 25):
            a("v_add_f32_dpp %s, %s, %s %s row_mask:0xf bank_mask:0xf" % (vr(r), vr(r), vr(r), ctl))
    a("""
    v_mul_f32 v24, 0x3b000000, v24
    v_mul_f32 v25, 0x3b000000, v25
    v_fma_f32 v25, -v24, v24, v25
    v_max_f32 v25, 0, v25
    v_cvt_pk_bf16_f32 v24, v24, v25
    v_and_b32 v25, s89, v24
    v_add_f32 v25, 0x3727c5ac, v25
    v_cvt_pk_bf16_f32 v25, v25, v25
    v_and_b32 v25, s89, v25
    v_sqrt_f32 v25, v25
    v_lshlrev_b32 v24, 16, v24
    v_cvt_pk_bf16_f32 v25, v25, v25
    v_and_b32 v25, s89, v25
    v_rcp_f32 v26, v25
    v_rcp_f32 v27, v25
    v_mul_f32_e64 v28, -v24, v26
    v_mul_f32_e64 v29, -v24, v26
    """)
    for j in range(8):
        if j == cfg.w1_at:
            coop_chunk(1)
        x = RAW + j * 4
        t = 192 + (j & 1) * 8
        for q in range(4):
            a("v_lshlrev_b32 %s, 16, %s" % (vr(t + 2 * q), vr(x + q)))
            a("v_and_b32 %s, s89, %s" % (vr(t + 2 * q + 1), vr(x + q)))
        for q in range(4):
            a("v_pk_fma_f32 %s, %s, v[26:27], v[28:29]" % (vr(t + 2 * q, 2), vr(t + 2 * q, 2)))
        for q in range(4):
            a("v_cvt_pk_bf16_f32 %s, %s, %s" % (vr(x + q), vr(t + 2 * q), vr(t + 2 * q + 1)))
        a("ds_write_b128 v15, %s offset:%d" % (vr(x, 4), j * 8192))
    if cfg.w1_at == 8:
        coop_chunk(1)
    bload(7, 1, 31, SW1, "s100", 0, "", "pf")
    stamp(2)
    a("s_cmp_ge_u32 s60, 4")
    a("s_cbranch_scc1 L_loader")
    vm_split = list(vm.items)

    QR, SB, WF, FA, OA, KV, HB = 8, 24, 56, 64, 128, 192, 240

    def att_init_ops():
        ops = ["v_mov_b32 %s, 0" % vr(OA + 16 * t + i) for t in range(4) for i in range(9)]
        ops2 = ["v_and_b32 v7, 27, v0", "v_cmp_eq_u32 vcc, 16, v7", "v_mov_b32 v7, 0x3f803f80", "v_cndmask_b32 v7, 0, v7, vcc"]
        ops2 += ["v_mov_b32 %s, v7" % vr(KV + 12 * b + 4 + q) for b in range(4) for q in range(8)]
        return ops, ops2

    def kvload(j):
        b = j & 3
        bload(KV + 12 * b, 4, 1, SWS, "s82", 0, "sc1", ("kv", j))
        a("s_mov_b64 exec, %s" % sr(sVM, 2))
        bload(KV + 12 * b + 4, 4, 2, SWS, "s82", 1024, "sc1", ("kv", j))
        bload(KV + 12 * b + 8, 4, 2, SWS, "s82", 1536, "sc1", ("kv", j))
        a("s_mov_b64 exec, -1")
        a("s_add_u32 s82, s82, 2048")

    def att_loads():
        bload(QR, 4, 1, SWS, "s92", 0, "sc1", "q")
        kvload(0)
        for t in range(1, 4):
            bload(QR + 4 * t, 4, 1, SWS, sr(92 + t), 0, "sc1", "q")
        kvload(1)
        kvload(2)

    def att_run(n, hooks):
        vm.wait("q", ("kv", 0))
        mfma32(SB, KV, QR, None)
        for j in range(n):
            b = j & 3
            for t in range(4):
                cur, oth = SB + 16 * (t & 1), SB + 16 * ((t + 1) & 1)
                for i in range(16):
                    a("v_exp_f32 %s, %s" % (vr(cur + i), vr(cur + i)))
                    if i == 1 and (j, t) != (0, 0):
                        smf(OA + 16 * ((t + 3) & 3), KV + 12 * (b if t else (b + 3) & 3) + 8, oth + 8)
                    if i == 4:
                        if t < 3:
                            mfma32(oth, KV + 12 * b, QR + 4 * (t + 1), None)
                        elif j + 1 < n:
                            vm.wait(("kv", j + 1))
                            mfma32(oth, KV + 12 * ((b + 1) & 3), QR, None)
                    if i == 9:
                        smf(OA + 16 * t, KV + 12 * b + 4, cur)
                    if t == 0 and i == 6 and j + 3 < n:
                        kvload(j + 3)
                    for h in hooks.get((j, t, i), ()):
                        h()
        smf(OA + 48, KV + 12 * ((n - 1) & 3) + 8, SB + 16 + 8)

    ACC = (24, 40, 56)
    WB, NBUF, LA = 72, 6, cfg.look
    XF, PK, XA = 128, 96, 16
    init1, init2 = att_init_ops()

    def item(g):
        if g >= 96:
            return divmod(g - 96, 3)
        return (g >> 1, g & 1) if g < 64 else (g - 64, 2)

    def reads(g):
        ks, sel = item(g)
        c, m = divmod(g, 12)
        slot = c & 3
        if g < 64 and sel == 0:
            dsr("ds_read_b128", XF + 4 * ks, 4, XA + (ks & 3), (ks >> 2) * 8192, g)
        trread(WB + 4 * (g % NBUF), 8 + (slot >> 1), (slot & 1) * 24576 + m * 2048, 512, g)

    def pack(acc, pk):
        return ["v_cvt_pk_bf16_f32 %s, %s, %s" % (vr(pk + q), vr(acc + 2 * q), vr(acc + 2 * q + 1)) for q in range(8)]

    def st2(pk, va, base, delta, tag, imm=(0, 0)):
        def first():
            bstore(pk, 4, va, SWS, base, imm[0], "sc1", tag)

        def second():
            if delta:
                a("s_add_u32 s72, %s, %d" % (base, delta))
            bstore(pk + 4, 4, va, SWS, "s72" if delta else base, imm[1], "sc1", tag)
        return [first, second]

    def relu2(acc):
        return (["v_max_f32 %s, 0, %s" % (vr(acc + i), vr(acc + i)) for i in range(16)]
                + ["v_mul_f32 %s, %s, %s" % (vr(acc + i), vr(acc + i), vr(acc + i)) for i in range(16)])

    def bias(seg):
        return lambda: (vm.wait("b1"), mfma32(ACC[seg], 112 + 4 * seg, 124, None))

    tagq = ["v_or_b32 %s, 1, %s" % (vr(PK + 8 + 4 * q), vr(PK + 8 + 4 * q)) for q in range(2)]
    sched = {
        66: pack(ACC[1], PK) + st2(PK, 12, "s77", 0, "st", (1024, 1536))
            + ["v_mul_f32 %s, 0x%x, %s" % (vr(ACC[0] + i), QSCALE, vr(ACC[0] + i)) for i in range(16)]
            + pack(ACC[0], PK + 8) + tagq + st2(PK + 8, 1, "s76", 0, "st", (0, 1024)) + [bias(0), bias(1)],
        144: init1,
        180: init2,
    }
    shadow = []

    def run_shadow(budget):
        while shadow and budget > 0:
            op = shadow.pop(0)
            if isinstance(op, str):
                a(op)
                budget -= 1
            else:
                op()
                budget -= 3

    vm.wait(("w", 0))
    a("s_waitcnt lgkmcnt(0)")
    a("s_add_u32 %s, %s, 0x%x" % (sr(sTAG), sr(sTAG), EPOCH_INC))
    a("s_barrier")
    stamp(3)
    for g in range(LA):
        reads(g)
    for g in range(192):
        ks, sel = item(g)
        if g == 96:
            run_shadow(1000)
            stamp(4)
        if g == 98:
            shadow.extend(pack(ACC[2], PK) + [bias(2)] + st2(PK, 11, "s77", 0x20000, "st"))
            run_shadow(1000)
            stamp(5)
        lg.wait(g)
        x, w = XF + 4 * ks, WB + 4 * (g % NBUF)
        c = None if (g < 96 and ks == 0) else ACC[sel]
        if g < 96 and sel == 1:
            mfma32(ACC[sel], x, w, c)
        else:
            mfma32(ACC[sel], w, x, c)
        n = g + LA
        if n < 192:
            if n % 12 == 0:
                if n == 12:
                    vm.wait(("w", 1))
                a("s_barrier")
            reads(n)
        if g == 16:
            for seg in range(3):
                a("buffer_load_ushort %s, v10, %s, s81 offen offset:%d" % (vr(112 + 4 * seg), srd(SB1), seg * 128))
                vm.push("b1")
        if g == cfg.flag_item:
            vm.wait("st")
            set_flag(7, "s79")
            stamp(6)
        shadow.extend(sched.get(g, ()))
        run_shadow(3)
    run_shadow(1000)
    stamp(7)
    hepi = []
    for seg in range(3):
        pk = PK + 8 * (seg & 1)
        hepi.append(relu2(ACC[seg]) + pack(ACC[seg], pk) + (["s_add_u32 s78, s78, 0x40000"] if seg == 1 else [])
                    + st2(pk, 1, "s78" if seg < 2 else "s88", 0x10000, "hst"))
    for seg in range(cfg.hpre):
        shadow.extend(hepi[seg])
    run_shadow(1000)
    a("s_barrier")
    stamp(8)
    a("s_setprio 2")
    att_loads()
    for seg in range(cfg.hpre, 3):
        shadow.extend(hepi[seg])
    run_shadow(1000)
    stamp(9)


    def w2dma(i):
        a("s_add_u32 m0, s84, %d" % ((i & 3) * 2048))
        a("s_add_u32 s72, s85, %d" % (i * 65536))
        dma(4, SW2, "s72", 0, ("w2", i))
        a("s_add_u32 s72, s72, 7168")
        dma(4, SW2, "s72", 1024, ("w2", i))

    hreg = lambda i, tt: HB + 8 * (i & 1) + 4 * tt

    def hload(i, tt, reg=None):
        if tt == 0 and i > 0:
            a("s_add_u32 s86, s86, 0x40000")
        bload(hreg(i, tt) if reg is None else reg, 4, 1, SWS, "s86", tt * 1024, "sc1", ("h", i, tt))

    def w2read(i, nt, reg=None):
        vm.wait(("w2", i))
        trread(WF + 4 * nt if reg is None else reg, 5 + nt, (i & 3) * 2048, 1024, ("wf", i, nt))

    def fmfma(i, tt, nt, wreg=None, hr=None):
        vm.wait(("h", i, tt))
        lg.wait(("wf", i, nt))
        d = FA + 16 * (2 * tt + nt)
        mfma32(d, WF + 4 * nt if wreg is None else wreg, hreg(i, tt) if hr is None else hr, None if i == 0 else d)

    hooks = {}

    def hook(j, t, i, f):
        hooks.setdefault((j, t, i), []).append(f)

    n1, n2 = cfg.n1, cfg.n2
    hook(cfg.hflag >> 2, cfg.hflag & 3, 12, lambda: (vm.wait("hst"), set_flag(7, "s80"), stamp(1) if cfg.hst else None))
    hook(n1 - 2, 0, 8, lambda: flag_load(7, 32, "s87", "hf"))
    hook(n1 - 2, 3, 12, lambda: (vm.wait("hf"), stamp(2) if cfg.hst else None, check_flags("h", 7, 32, "s87"), stamp(3) if cfg.hst else None))
    if cfg.hst:
        hook(n1, 0, 1, lambda: stamp(4))
        hook(n1 + 4, 0, 1, lambda: stamp(5))
        hook(n1 + 8, 0, 1, lambda: stamp(6))
        hook(n1 + 12, 0, 1, lambda: stamp(7))
    hook(n1 - 1, 0, 8, lambda: (hload(0, 0), hload(0, 1)))
    hook(n1 - 1, 2, 2, lambda: hload(1, 0))
    for i in range(min(NS, n2 + 3)):
        hook(n1 - 3 + i, 1, 2, lambda i=i: w2dma(i))
    for i in range(min(NS, n2 + 1)):
        hook(n1 - 1 + i, 3, 0, lambda i=i: w2read(i, 1))
    for i in range(n2):
        j = n1 + i
        hook(j, 0, 0, lambda i=i: w2read(i, 0))
        if i + 1 < NS:
            hook(j, 0, 8, lambda i=i: hload(i + 1, 1))
        if i + 2 < NS:
            hook(j, 2, 2, lambda i=i: hload(i + 2, 0))
        for t, (tt, nt) in enumerate(((0, 0), (0, 1), (1, 1), (1, 0))):
            hook(j, t, 13, lambda i=i, tt=tt, nt=nt: fmfma(i, tt, nt))
    att_run(nA, hooks)
    left = list(range(n2, NS))
    hextra = {}
    for i in left:
        for tt in range(2):
            if i <= n2 or (i == n2 + 1 and tt == 0):
                continue
            hextra[(i, tt)] = KV + 12 + 4 * len(hextra)
            hload(i, tt, hextra[(i, tt)])
    vm_a, lg_a = list(vm.items), list(lg.items)
    a("s_branch L_att_done")

    a.label("L_loader")
    vm.items = list(vm_split)
    lg.items = []

    def issue_chunk(c):
        for m in range(6):
            if c < 8:
                p = 6 * c + m
                a("s_add_u32 m0, s87, %d" % ((c & 3) * 24576 + m * 4096))
                if p < 32:
                    a("s_add_u32 s72, s85, %d" % (p * 16 * 3072))
                else:
                    a("s_add_u32 s72, s86, %d" % ((p - 32) * 32 * 3072))
                dma(13, SWQ, "s72", 0, ("w", c))
            else:
                blk, seg = divmod(m, 3)
                a("s_add_u32 m0, s81, %d" % ((c & 3) * 24576 + seg * 2048 + blk * 1024))
                a("s_add_u32 s72, s80, %d" % (((c - 8) * 64 + blk * 8) * 2752 + seg * 128))
                dma(12, SW1, "s72", 0, ("w", c))

    issue_chunk(2)
    a("s_waitcnt lgkmcnt(0)")
    a("s_add_u32 %s, %s, 0x%x" % (sr(sTAG), sr(sTAG), EPOCH_INC))
    issued = 2
    for c in range(16):
        vm.wait(("w", c))
        a("s_barrier")
        if c in (0, 8, 12, 15):
            stamp({0: 3, 8: 4, 12: 5, 15: 6}[c])
        while issued < min(15, max(3, c + 2)):
            issued += 1
            issue_chunk(issued)
        if c == 2:
            for op in init1:
                a(op)
        if c == 3:
            for op in init2:
                a(op)
        if c == cfg.qpoll:
            flag_load(7, 64, "s79", "qf")
    vm.wait("qf")
    check_flags("q", 7, 64, "s79")
    stamp(7)
    att_loads()
    a("s_barrier")
    stamp(8)
    a("s_setprio 1")

    def wo_dma():
        a("; wo tile -> LDS [0, 64K)")
        a("s_and_b32 s78, s60, 3")
        a("s_lshl_b32 s76, s78, 17")
        a("s_lshl_b32 s73, s67, 7")
        a("s_add_u32 s76, s76, s73")
        a("s_lshl_b32 s78, s78, 14")
        for i in range(16):
            a("s_add_u32 m0, s78, %d" % (i * 1024))
            a("s_add_u32 s73, s76, %d" % (i * 8192))
            dma(4, SWO, "s73", 0, "wo")

    def pf_late():
        a("; memory-side prefetch of w2 and wo")
        a("s_and_b32 s73, s60, 3")
        a("s_lshl2_add_u32 s73, s2, s73")
        a("s_mul_i32 s72, s73, 1408")
        a("s_lshl_b32 s73, s73, 9")
        bload(7, 1, 5, SW2, "s72", 0, "", "pf")
        bload(7, 1, 6, SWO, "s73", 0, "", "pf")

    att_run(nB, {(0, 0, 8): [pf_late], (2, 1, 2): [wo_dma]})
    vm.drain()

    a.label("L_att_done")
    stamp(10)
    lg.items = []
    a("v_lshlrev_b32 v12, 2, v0")
    for t in range(1, 4):
        a("v_add_u32 %s, %s, v1" % (vr(12 + t), sr(96 + t)))
        a("v_add_u32 %s, %s, v12" % (vr(16 + t), sr(96 + t)))
    for t in range(1, 4):
        off = (t - 1) * 2304
        dsw("ds_write_b128", 12 + t, OA + 16 * t, 4, off)
        dsw("ds_write_b128", 12 + t, OA + 16 * t + 4, 4, off + 1024)
        dsw("ds_write_b32", 16 + t, OA + 16 * t + 8, 1, off + 2048)
    a("""
    v_add_u32 v20, s96, v1
    v_add_u32 v21, s96, v12
    v_bfe_u32 v22, v0, 4, 1
    v_lshl_add_u32 v22, v22, 10, v2
    s_and_b32 s73, s60, 1
    s_lshl_b32 s73, s73, 9
    s_sub_u32 s76, s92, s73
    """)
    lg.drain()
    a("s_barrier")
    for src in range(3):
        d = SB + 10 * src
        dsr("ds_read_b128", d, 4, 20, src * 2304, src)
        dsr("ds_read_b128", d + 4, 4, 20, src * 2304 + 1024, src)
        dsr("ds_read_b32", d + 8, 1, 21, src * 2304 + 2048, src)
    for src in range(3):
        lg.wait(src)
        for i in range(9):
            a("v_add_f32 %s, %s, %s" % (vr(OA + i), vr(OA + i), vr(SB + 10 * src + i)))
    a("v_fma_f32 v13, %s, 0, %s" % (vr(OA), vr(OA + 8)))
    for i in range(1, 8):
        a("v_fma_f32 v13, %s, 0, v13" % vr(OA + i))
    a("""
    v_cmp_nle_f32 vcc, 0x30800000, v13
    s_mov_b64 s[72:73], vcc
    v_cmp_nge_f32 vcc, 0x5d800000, v13
    s_or_b64 s[72:73], s[72:73], vcc
    """)
    a("s_branch L_slow" if cfg.force_slow else "s_cbranch_scc1 L_slow")
    a.label("L_norm")
    a("v_rcp_f32 v13, %s" % vr(OA + 8))
    for i in range(8):
        a("v_mul_f32 %s, v13, %s" % (vr(OA + i), vr(OA + i)))
    for q in range(4):
        a("v_cvt_pk_bf16_f32 %s, %s, %s" % (vr(16 + q), vr(OA + 2 * q), vr(OA + 2 * q + 1)))
    a("v_and_b32 v16, -2, v16")
    vm.items = list(vm_a)
    bstore(16, 4, 22, SWS, "s76", 0, "sc1", "ost")
    stamp(11)
    a("s_cmp_ge_u32 s60, 4")
    a("s_cbranch_scc1 L_tail")
    wl = {}
    for i in left:
        for nt in range(2):
            if i == n2 and nt == 1:
                continue
            wl[(i, nt)] = SB + 4 * len(wl)
            w2read(i, nt, wl[(i, nt)])
    for i in left:
        for tt, nt in ((0, 1), (1, 1), (0, 0), (1, 0)):
            fmfma(i, tt, nt, wl.get((i, nt)), hextra.get((i, tt)))
    vm.wait(*[t for t in vm.items if t != "ost"])

    WOF, OFR, AC = 128, 24, 8
    a.label("L_tail")
    vm.items = ["ost"]
    lg.items = []
    a("""
    s_and_b32 s74, s60, 3
    s_lshr_b32 s75, s60, 2
    v_bfe_u32 v4, v0, 2, 2
    v_bfe_u32 v5, v0, 4, 1
    v_lshl_add_u32 v4, v5, 2, v4
    v_lshrrev_b32 v5, 1, v4
    s_lshl_b32 s72, s75, 1
    v_xor_b32 v5, s72, v5
    v_lshlrev_b32 v12, 7, v4
    v_lshl_add_u32 v12, v5, 5, v12
    v_lshrrev_b32 v5, 5, v0
    v_lshl_add_u32 v12, v5, 11, v12
    v_and_b32 v4, 3, v0
    v_lshl_add_u32 v12, v4, 3, v12
    s_lshl_b32 s72, s75, 15
    v_add_u32 v12, s72, v12
    v_xor_b32 v13, 32, v12
    v_xor_b32 v14, 64, v12
    v_xor_b32 v15, 0x60, v12
    """)
    a("""
    v_and_b32 v6, 15, v0
    v_lshrrev_b32 v7, 4, v0
    v_lshlrev_b32 v3, 3, v7
    v_lshl_add_u32 v2, v6, 10, v3
    s_lshl2_add_u32 s72, s66, s74
    s_lshl_b32 s78, s72, 14
    s_lshl1_add_u32 s79, s67, s75
    s_lshl_b32 s79, s79, 6
    s_add_u32 s78, s78, s79
    s_lshr_b32 s76, s72, 1
    s_lshl1_add_u32 s76, s76, s75
    s_lshl_b32 s76, s76, 14
    s_and_b32 s72, s72, 1
    s_lshl_b32 s72, s72, 10
    s_add_u32 s76, s76, s72
    s_add_u32 s76, s76, %d
    s_add_u32 s77, s76, 0x1000
    s_add_u32 s80, s76, 0x2000
    s_add_u32 s81, s76, 0x3000
    """ % WS_QO)
    bload(56, 2, 2, SX, "s78", 0, "", "xb")
    bload(58, 2, 2, SX, "s78", 32, "", "xb")
    bload(60, 2, 3, SB2, "s79", 0, "", "xb")
    bload(62, 2, 3, SB2, "s79", 32, "", "xb")

    def oloads():
        for ks in range(8):
            bload(OFR + 4 * ks, 4, 1, SWS, ("s76", "s77", "s80", "s81")[ks >> 1], (ks & 1) * 2048, "sc1", ("o", ks))

    for ks in range(8):
        for ct in range(4):
            trread(WOF + (ks * 4 + ct) * 4, 12 + ct, ks * 4096, 1024, ("wo", ks))
    a("s_barrier")
    oloads()
    a("s_cmp_ge_u32 s60, 4")
    a("s_cbranch_scc1 L_tail_j")
    a("""
    v_and_b32 v4, 31, v0
    v_mul_u32_u24 v4, %d, v4
    v_lshl_add_u32 v4, v5, 4, v4
    s_mul_i32 s72, s60, %d
    s_add_u32 s72, s72, %d
    v_add_u32 v4, s72, v4
    """ % (PART_STRIDE, PART_SIZE, L_PART))
    for tt in range(2):
        for nt in range(2):
            for q in range(4):
                dsw("ds_write_b128", 4, FA + 16 * (2 * tt + nt) + 4 * q, 4, tt * 32 * PART_STRIDE + nt * 128 + q * 32)
    a.label("L_tail_j")
    a("""
    s_lshl_b32 s72, s74, 4
    v_add_u32 v3, s72, v6
    v_mul_u32_u24 v3, %d, v3
    v_lshl_add_u32 v3, v7, 4, v3
    s_lshl_b32 s72, s75, 7
    s_add_u32 s72, s72, %d
    v_add_u32 v3, s72, v3
    """ % (PART_STRIDE, L_PART))
    lg.drain()
    a("s_barrier")
    stamp(12)
    G, Z, X = 64, 96, 104
    for j in range(4):
        for ct in range(2):
            dsr("ds_read_b128", G + 8 * j + 4 * ct, 4, 3, j * PART_SIZE + ct * 64, ("g", j))
    vm.wait("xb")
    for q in range(4):
        a("v_lshlrev_b32 %s, 16, %s" % (vr(Z + 2 * q), vr(60 + q)))
        a("v_and_b32 %s, s89, %s" % (vr(Z + 1 + 2 * q), vr(60 + q)))
    for q in range(4):
        a("v_lshlrev_b32 %s, 16, %s" % (vr(X + 2 * q), vr(56 + q)))
        a("v_and_b32 %s, s89, %s" % (vr(X + 1 + 2 * q), vr(56 + q)))
    a("""
    s_lshl_b32 s72, s60, 11
    s_add_u32 s72, s72, %d
    v_add_u32 v5, s72, v1
    s_xor_b32 s73, s60, 4
    s_lshl_b32 s73, s73, 11
    s_add_u32 s73, s73, %d
    v_add_u32 v6, s73, v1
    """ % (L_XCH, L_XCH))
    for j in range(4):
        lg.wait(("g", j))
        for i in range(8):
            a("v_add_f32 %s, %s, %s" % (vr(Z + i), vr(Z + i), vr(G + 8 * j + i)))
    for i in range(8):
        a("v_mul_f32 %s, 0x%x, %s" % (vr(G + i), NLOG2E, vr(Z + i)))
    for i in range(8):
        a("v_exp_f32 %s, %s" % (vr(G + i), vr(G + i)))
    for i in range(8):
        a("v_add_f32 %s, 1.0, %s" % (vr(G + i), vr(G + i)))
    for i in range(8):
        a("v_rcp_f32 %s, %s" % (vr(G + i), vr(G + i)))
    for i in range(8):
        a("v_mul_f32 %s, %s, %s" % (vr(Z + i), vr(Z + i), vr(G + i)))
    a("s_mov_b32 s73, 0")
    a.label("L_wo")
    a("v_mov_b32 v7, 0")
    for ks in range(8):
        vm.wait(("o", ks))
        for n, ct in enumerate((2, 3, 0, 1)):
            d = AC + 4 * ct
            mfma16(d, WOF + (ks * 4 + ct) * 4, OFR + 4 * ks, None if ks == 0 else d)
            if n == 0:
                a("v_and_or_b32 v7, %s, 1, v7" % vr(OFR + 4 * ks))
            if n == 1 and ks == 7:
                a("v_cmp_ne_u32 vcc, 0, v7")
    a("s_cbranch_vccnz L_oretry")
    a.label("L_ovalid")
    stamp(13)
    a("ds_write_b128 v5, %s" % vr(AC + 8, 4))
    a("ds_write_b128 v5, %s offset:1024" % vr(AC + 12, 4))
    a("s_waitcnt lgkmcnt(0)")
    a("s_barrier")
    stamp(14)
    a("ds_read_b128 v[64:67], v6")
    a("ds_read_b128 v[68:71], v6 offset:1024")
    for ct in range(2):
        a("s_waitcnt lgkmcnt(%d)" % (1 - ct))
        for i in range(4):
            a("v_add_f32 %s, %s, %s" % (vr(AC + 4 * ct + i), vr(AC + 4 * ct + i), vr(64 + 4 * ct + i)))
        for i in range(4):
            a("v_fma_f32 %s, %s, %s, %s" % (vr(AC + 4 * ct + i), vr(AC + 4 * ct + i), vr(Z + 4 * ct + i), vr(X + 4 * ct + i)))
        for q in range(2):
            a("v_cvt_pk_bf16_f32 %s, %s, %s" % (vr(72 + 2 * ct + q), vr(AC + 4 * ct + 2 * q), vr(AC + 4 * ct + 2 * q + 1)))
        bstore(72 + 2 * ct, 2, 2, SOUT, "s78", 32 * ct)
    a("s_or_b32 s72, s2, s60")
    a("s_cmp_lg_u32 s72, 0")
    a("s_cbranch_scc1 L_noepoch")
    set_flag(7, "0")
    a.label("L_noepoch")
    if cfg.stamps:
        a("s_waitcnt vmcnt(0)")
        stamp(15)
        a("s_lshl3_add_u32 s72, s2, s60")
        a("s_lshl_b32 s72, s72, 6")
        a("s_add_u32 s72, s72, %d" % WS_STAMP)
        for i in range(16):
            a("v_mov_b32 %s, %s" % (vr(80 + i), sr(sSTAMP + i)))
        a("s_mov_b64 exec, 1")
        for i in range(4):
            bstore(80 + 4 * i, 4, 1, SWS, "s72", 16 * i)
    a.label("L_end")
    a("s_endpgm")

    a.label("L_oretry")
    a("s_add_u32 s73, s73, 1")
    a("s_cmp_ge_u32 s73, %d" % SPIN_MAX)
    a("s_cbranch_scc1 L_ovalid")
    oloads()
    a("s_branch L_wo")

    for tag, vt, lanes, soff in stubs:
        a.label("L_poll_" + tag)
        a("s_mov_b32 s73, 0")
        a.label("L_poll2_" + tag)
        a("s_sleep %d" % cfg.sleep)
        flag_load(vt, lanes, soff, None)
        a("s_add_u32 s73, s73, 1")
        a("s_waitcnt vmcnt(0)")
        a("s_cmp_ge_u32 s73, %d" % SPIN_MAX)
        a("s_cbranch_scc1 L_polled_" + tag)
        a("v_cmp_ne_u32 vcc, %s, %s" % (sr(sTAG), vr(vt)))
        a("s_cbranch_vccnz L_poll2_" + tag)
        a("s_branch L_polled_" + tag)

    a.label("L_slow")
    CN = SB + 16
    a("s_waitcnt vmcnt(0)")
    a("v_mov_b32 v13, 0xff800000")
    a("s_mov_b32 s82, s83")
    a("s_mov_b32 s81, 64")
    a.label("L_slow1")
    bload(KV, 4, 1, SWS, "s82", 0, "sc1")
    a("s_add_u32 s82, s82, 2048")
    a("s_waitcnt vmcnt(0)")
    mfma32(SB, KV, QR, None)
    for i in range(0, 16, 2):
        a("v_max3_f32 v13, v13, %s, %s" % (vr(SB + i), vr(SB + i + 1)))
    a("s_sub_u32 s81, s81, 1")
    a("s_cmp_lg_u32 s81, 0")
    a("s_cbranch_scc1 L_slow1")
    a("v_mov_b32 v14, v13")
    a("v_permlane32_swap_b32 v14, v13")
    a("v_max_f32 v13, v14, v13")
    for i in range(16):
        a("v_sub_f32 %s, 0, v13" % vr(CN + i))
        a("v_mov_b32 %s, 0" % vr(OA + i))
    a("s_mov_b32 s82, s83")
    a("s_mov_b32 s81, 64")
    a.label("L_slow2")
    kvload(0)
    a("s_waitcnt vmcnt(0)")
    mfma32(SB, KV, QR, CN)
    for i in range(16):
        a("v_exp_f32 %s, %s" % (vr(SB + i), vr(SB + i)))
    smf(OA, KV + 4, SB)
    smf(OA, KV + 8, SB + 8)
    a("s_sub_u32 s81, s81, 1")
    a("s_cmp_lg_u32 s81, 0")
    a("s_cbranch_scc1 L_slow2")
    a("s_branch L_norm")
    a.label("L_code_end")
    a("s_endpgm")

    added = a.fix()
    return a.text(), added


HEADER = """; Kernarg layout for this problem (88 bytes, ptrs only, base s[0:1]):
; @launch grid=(256,1,1) block=(512,1,1) lds=163840
.amdgcn_target "amdgcn-amd-amdhsa--gfx950"
.text
.globl {k}
.p2align 8
.type {k},@function
{k}:
"""

FOOTER = """.section .rodata,"a"
.p2align 6
.amdhsa_kernel {k}
  .amdhsa_next_free_vgpr 256
  .amdhsa_next_free_sgpr 102
  .amdhsa_accum_offset 256
  .amdhsa_group_segment_fixed_size 0
  .amdhsa_kernarg_size 88
  .amdhsa_user_sgpr_count 2
  .amdhsa_user_sgpr_kernarg_segment_ptr 1
  .amdhsa_system_sgpr_workgroup_id_x 1
.end_amdhsa_kernel
"""


def build(**kw):
    cfg = Cfg()
    for k, v in kw.items():
        setattr(cfg, k, v)
    body, added = gen(cfg)
    return HEADER.format(k=KERNEL) + body + FOOTER.format(k=KERNEL), added


if __name__ == "__main__":
    out = sys.argv[1] if len(sys.argv) > 1 else "cdna_kernels/%s.s" % NAME
    kw = {}
    for arg in sys.argv[2:]:
        k, v = arg.split("=")
        kw[k] = int(v)
    text, added = build(**kw)
    open(out, "w").write(text)
    print("wrote", out, "lines", text.count("\n"), "nops added", added)
```

```python
import sys
import os
sys.path.insert(0, os.path.dirname(os.path.abspath(__file__)))
from asmlib import Asm, vr, sr

NAME = "recurrent_scan__softmax_full_mha__dense_activation_squared_relu__prompt"
KERNEL = NAME + "_kernel"

WS_FLAGQ = 0x1000
WS_FLAGH = 0x2000
WS_STAMP = 0x10000
WS_QO = 0x100000
WS_KV = 0x300000
WS_HF = 0x700000
WS_END = WS_HF + 86 * 65536
EPOCH_INC = 0x9E3779B9
SPIN_MAX = 1 << 18

L_RING = 65536
L_OPART = 65536
L_W2 = L_OPART + 55296
L_PART = 65536
PART_STRIDE = 272
PART_SIZE = 64 * PART_STRIDE
L_XCH = L_PART + 4 * PART_SIZE

SX, SWQ, SWO, SW1, SB1, SW2, SB2, SOUT, SWS = 24, 28, 32, 36, 40, 44, 48, 52, 56
sW, sCG, sTB, sRW, sP, sQB, sTBF, sCB, sTAG, sCT0 = 60, 61, 62, 63, 64, 65, 66, 67, 68, 69
sVM = 70
sSTAMP = 4

QSCALE = 0x3EB8AA3B
NLOG2E = 0xBFB8AA3B
NS = 22


class Cfg:
    n1 = 5
    n2 = 19
    stamps = 0
    force_slow = 0
    flag_item = 120
    look = 5
    pfq_at = 4
    qpoll = 14
    sleep = 6
    w0_at = 8
    w1_at = 6
    hpre = 3
    hflag = 1
    probe = None
    omod = 0
    probewg = 100
    touch = 0
    hst = 0


def srd(s):
    return sr(s, 4)


class Queue:
    def __init__(self, a, name, maxn):
        self.a, self.name, self.maxn, self.items = a, name, maxn, []

    def push(self, tag):
        self.items.append(tag)

    def wait(self, *tags):
        last = max((i for i, t in enumerate(self.items) if t in tags), default=-1)
        if last < 0:
            return
        n = len(self.items) - 1 - last
        self.a("s_waitcnt %s(%d)" % (self.name, min(n, self.maxn)))
        self.items = self.items[last + 1:]

    def drain(self):
        self.a("s_waitcnt %s(0)" % self.name)
        self.items = []


def gen(cfg):
    a = Asm()
    nA = cfg.n1 + cfg.n2
    nB = 32 - nA
    vm = Queue(a, "vmcnt", 63)
    lg = Queue(a, "lgkmcnt", 15)

    def stamp(i):
        if cfg.stamps and (cfg.probe is None or i in (0, cfg.probe)):
            a("%s s[22:23]" % ("s_memtime" if cfg.stamps == 2 else "s_memrealtime"))
            a("s_waitcnt lgkmcnt(0)")
            a("s_mov_b32 %s, s22" % sr(sSTAMP + i))

    def mfma32(d, x, y, c):
        a("v_mfma_f32_32x32x16_bf16 %s, %s, %s, %s" % (vr(d, 16), vr(x, 4), vr(y, 4), "0" if c is None else vr(c, 16)))

    def mfma16(d, x, y, c):
        a("v_mfma_f32_16x16x32_bf16 %s, %s, %s, %s" % (vr(d, 4), vr(x, 4), vr(y, 4), "0" if c is None else vr(c, 4)))

    def smf(d, x, y):
        a("v_smfmac_f32_32x32x32_bf16 %s, %s, %s, v3" % (vr(d, 16), vr(x, 4), vr(y, 8)))

    def bload(d, n, va, s, so, off=0, mod="", tag=None):
        op = {1: "dword", 2: "dwordx2", 4: "dwordx4"}[n]
        a("buffer_load_%s %s, %s, %s, %s offen offset:%d %s" % (op, vr(d, n), vr(va), srd(s), so, off, mod))
        vm.push(tag)

    def bstore(d, n, va, s, so, off=0, mod="", tag=None):
        op = {1: "dword", 2: "dwordx2", 4: "dwordx4"}[n]
        a("buffer_store_%s %s, %s, %s, %s offen offset:%d %s" % (op, vr(d, n), vr(va), srd(s), so, off, mod))
        vm.push(tag)

    def dma(va, s, so, off=0, tag=None):
        a("buffer_load_dwordx4 %s, %s, %s offen offset:%d lds" % (vr(va), srd(s), so, off))
        vm.push(tag)

    def dsr(op, d, n, va, off, tag=None):
        a("%s %s, %s offset:%d" % (op, vr(d, n), vr(va), off))
        lg.push(tag)

    def dsw(op, va, d, n, off, tag=None):
        a("%s %s, %s offset:%d" % (op, vr(va), vr(d, n), off))
        lg.push(tag)

    def trread(d, va, off, second, tag=None):
        dsr("ds_read_b64_tr_b16", d, 2, va, off, tag)
        dsr("ds_read_b64_tr_b16", d + 2, 2, va, off + second, tag)

    def set_flag(vt, soff):
        a("v_mov_b32 %s, %s" % (vr(vt), sr(sTAG)))
        a("s_mov_b64 exec, 1")
        bstore(vt, 1, 1, SWS, soff, 0, "sc0 sc1")
        a("s_mov_b64 exec, -1")

    stubs = []

    def check_flags(tag, vt, lanes, soff):
        a("v_cmp_ne_u32 vcc, %s, %s" % (sr(sTAG), vr(vt)))
        a("s_cbranch_vccnz L_poll_" + tag)
        a.label("L_polled_" + tag)
        stubs.append((tag, vt, lanes, soff))

    def flag_load(vt, lanes, soff, tag):
        a("v_and_b32 %s, %d, v0" % (vr(vt), lanes - 1))
        a("v_lshlrev_b32 %s, 2, %s" % (vr(vt), vr(vt)))
        bload(vt, 1, vt, SWS, soff, 0, "sc0 sc1", tag)

    a("s_cmp_ge_u32 s2, 256")
    a("s_cbranch_scc1 L_end")
    stamp(0)
    if cfg.stamps:
        for i in range(1, 16):
            a("s_mov_b32 %s, s22" % sr(sSTAMP + i))
    for s, off in ((SX, 0), (SWQ, 8), (SW1, 32), (SWS, 80), (SB1, 40), (SWO, 16), (SW2, 48), (SB2, 56), (SOUT, 64)):
        a("s_load_dwordx2 %s, s[0:1], %d" % (sr(s, 2), off))
    a("""
    v_lshrrev_b32 v1, 6, v0
    v_and_b32 v0, 63, v0
    v_readfirstlane_b32 s60, v1
    s_getpc_b64 s[72:73]
    L_pc:
    s_and_b32 s74, s2, 0xf8
    s_add_u32 s74, s74, s60
    s_lshl_b32 s74, s74, 8
    v_and_b32 v4, 1, v0
    v_lshl_add_u32 v4, v4, 7, s74
    v_min_u32 v4, L_code_end-L_pc, v4
    v_mov_b32 v5, s73
    v_add_co_u32 v4, vcc, s72, v4
    v_addc_co_u32 v5, vcc, 0, v5, vcc
    global_load_dword v7, v[4:5], off
    """)
    vm.push("pf")
    a("""
    s_bfe_u32 s72, s2, 0x20003
    s_lshr_b32 s67, s2, 5
    s_and_b32 s73, s2, 6
    s_lshl2_add_u32 s62, s73, s67
    s_lshl1_add_u32 s63, s72, s60
    s_and_b32 s63, s63, 7
    s_lshl3_add_u32 s74, s62, s63
    s_lshl_b32 s74, s74, 13
    s_lshl3_add_u32 s75, s2, s60
    s_mul_i32 s75, s75, 768
    v_lshrrev_b32 v4, 3, v0
    v_and_b32 v5, 7, v0
    v_lshlrev_b32 v14, 10, v4
    v_lshl_add_u32 v14, v5, 4, v14
    v_min_u32 v6, 5, v0
    v_lshlrev_b32 v6, 7, v6
    """)
    sizes = {SX: 2048 * 1024, SWQ: 512 * 3072, SWS: WS_END, SW1: 512 * 2752, SB1: 2752,
             SWO: 512 * 1024, SW2: 1376 * 1024, SB2: 1024, SOUT: 2048 * 1024}
    for s in (SX, SWQ, SW1):
        a("s_mov_b32 %s, %d" % (sr(s + 2), sizes[s]))
        a("s_mov_b32 %s, 0x20000" % sr(s + 3))
    a("s_waitcnt lgkmcnt(0)")
    RAW = 128
    for j in range(8):
        if j == cfg.pfq_at:
            bload(7, 1, 6, SWQ, "s75", 0, "", "pf")
        bload(RAW + j * 4, 4, 14, SX, "s74", j * 128, "", ("x", j))
    if cfg.pfq_at == 8:
        bload(7, 1, 6, SWQ, "s75", 0, "", "pf")
    a("v_mov_b32 v31, v6")
    a("s_mov_b32 s100, s75")
    a("s_load_dword %s, %s, 0" % (sr(sTAG), sr(SWS, 2)))
    for s in (SWS, SB1, SWO, SW2, SB2, SOUT):
        a("s_mov_b32 %s, %d" % (sr(s + 2), sizes[s]))
        a("s_mov_b32 %s, 0x20000" % sr(s + 3))
    if cfg.touch:
        a("; first touch of every buffer used later, so address translations are fetched early")
        a("v_lshlrev_b32 v20, 18, v0")
        a("s_lshl_b32 s75, s60, 15")
        for s_ in (SWS, SOUT, SWO, SW2):
            bload(7, 1, 20, s_, "s75", 0, "", "pf")
        for s_ in (SB1, SB2):
            bload(7, 1, 20, s_, "0", 0, "", "pf")
    a("""
    s_and_b32 s73, s2, 1
    s_lshl2_add_u32 s61, s73, s72
    s_and_b32 s73, s2, 7
    s_lshl2_add_u32 s66, s73, s72
    s_and_b32 s72, s72, 1
    s_lshl1_add_u32 s64, s73, s72
    s_lshr_b32 s65, s2, 4
    s_mul_i32 s69, s61, 43
    s_lshr_b32 s69, s69, 3
    s_mov_b32 s70, 0xffff
    s_mov_b32 s71, 0xffff
    s_mov_b32 s89, 0xffff0000
    s_and_b32 s74, s60, 1
    s_bfe_u32 s75, s60, 0x10001
    s_lshl_b32 s72, s61, 7
    s_mul_i32 s85, s74, %d
    s_add_u32 s85, s85, s72
    s_mul_i32 s86, s75, %d
    s_add_u32 s86, s86, s85
    s_add_u32 s86, s86, 1024
    s_lshl_b32 s73, s75, 11
    s_add_u32 s85, s85, s73
    s_and_b32 s87, s60, 3
    s_lshl_b32 s87, s87, 10
    s_add_u32 s87, s87, %d
    s_lshr_b32 s73, s60, 2
    s_mul_i32 s90, s73, %d
    s_add_u32 s90, s90, s85
    s_mul_i32 s91, s73, 12288
    s_add_u32 s91, s91, s87
    v_lshlrev_b32 v1, 4, v0
    v_and_b32 v2, 15, v0
    v_lshrrev_b32 v3, 5, v0
    v_lshl_add_u32 v2, v3, 4, v2
    v_lshlrev_b32 v2, 4, v2
    v_bfe_u32 v6, v4, 1, 1
    v_lshlrev_b32 v6, 2, v6
    v_xor_b32 v6, v6, v5
    v_lshlrev_b32 v6, 4, v6
    v_mul_u32_u24 v13, 3072, v4
    v_add_u32 v13, v13, v6
    s_and_b32 s72, s63, 1
    s_lshl_b32 s72, s72, 2
    v_lshrrev_b32 v24, 1, v4
    v_xor_b32 v24, v24, v5
    v_xor_b32 v24, s72, v24
    s_lshl_b32 s72, s63, 10
    v_lshlrev_b32 v15, 7, v4
    v_lshl_add_u32 v15, v24, 4, v15
    v_add_u32 v15, s72, v15
    v_mov_b32 v30, 0x3f803f80
    v_mov_b32 v24, 0
    v_mov_b32 v25, 0
    """ % (8 * 3072, 16 * 3072, L_RING, 3 * 16 * 3072))
    a("""
    s_and_b32 s74, s60, 1
    s_lshr_b32 s75, s60, 1
    s_lshl1_add_u32 s72, s64, s74
    s_lshl_b32 s83, s72, 17
    s_add_u32 s83, s83, %d
    s_and_b32 s73, s75, 1
    s_lshl_b32 s73, s73, 16
    s_add_u32 s82, s83, s73
    s_lshl_b32 s72, s65, 6
    s_add_u32 s72, s72, s64
    s_lshl1_add_u32 s72, s72, s74
    s_lshl_b32 s72, s72, 10
    s_add_u32 s72, s72, %d
    s_mul_i32 s84, s74, %d
    s_add_u32 s84, s84, %d
    """ % (WS_KV, WS_QO, 12 * 2304, L_OPART))
    for t in range(4):
        a("s_xor_b32 s73, s75, %d" % t)
        a("s_mul_i32 %s, s73, %d" % (sr(96 + t), 3 * 2304))
        a("s_lshl_b32 s73, s73, 15")
        a("s_add_u32 %s, s72, s73" % sr(92 + t))
        a("s_add_u32 %s, %s, s84" % (sr(96 + t), sr(96 + t)))
    a("s_cmp_ge_u32 s60, 4")
    a("s_cbranch_scc1 L_setup_b")
    a("""
    s_add_u32 s82, s82, %d
    v_and_b32 v8, 0x33, v0
    v_and_b32 v9, 4, v0
    v_lshl_or_b32 v8, v9, 1, v8
    v_and_b32 v9, 8, v0
    v_lshrrev_b32 v9, 1, v9
    v_or_b32 v8, v8, v9
    v_lshlrev_b32 v11, 4, v8
    v_bfe_u32 v9, v0, 4, 1
    v_lshl_add_u32 v12, v9, 17, v2
    v_lshl_add_u32 v4, v4, 10, v6
    v_bfe_u32 v10, v0, 2, 2
    v_lshlrev_b32 v5, 5, v9
    v_lshl_add_u32 v5, v10, 7, v5
    v_and_b32 v9, 3, v0
    v_lshl_add_u32 v5, v9, 3, v5
    v_lshrrev_b32 v10, 1, v10
    v_lshl_add_u32 v8, v3, 10, v5
    v_xor_b32 v9, s75, v10
    v_lshl_add_u32 v8, v9, 6, v8
    v_add_u32 v8, %d, v8
    v_add_u32 v9, %d, v8
    v_lshl_add_u32 v5, v3, 9, v5
    v_lshl_add_u32 v5, v10, 6, v5
    s_lshl_b32 s84, s60, 13
    s_add_u32 s84, s84, %d
    v_add_u32 v5, s84, v5
    v_xor_b32 v6, 64, v5
    v_and_b32 v10, 31, v0
    s_lshl_b32 s72, s74, 12
    v_bfe_u32 v16, v10, 1, 3
    v_xor_b32 v16, v16, v3
    v_lshlrev_b32 v16, 4, v16
    v_lshl_add_u32 v16, v10, 7, v16
    v_add_u32 v16, s72, v16
    v_xor_b32 v17, 32, v16
    v_xor_b32 v18, 64, v16
    v_xor_b32 v19, 0x60, v16
    v_lshlrev_b32 v10, 1, v10
    v_lshl_add_u32 v10, v3, 20, v10
    """ % (nB * 2048, L_RING, 2 * 24576, L_W2))
    for seg in range(3):
        for q in range(1, 4):
            a("v_mov_b32 %s, 0" % vr(112 + 4 * seg + q))
    for q in range(4):
        a("v_mov_b32 %s, v30" % vr(124 + q))
    a("""
    s_lshl1_add_u32 s72, s62, s74
    s_lshl1_add_u32 s73, s61, s75
    s_lshl_b32 s76, s73, 7
    s_add_u32 s76, s76, s72
    s_lshl_b32 s77, s76, 11
    s_lshl4_add_u32 s76, s72, s73
    s_lshl_b32 s76, s76, 11
    s_add_u32 s76, s76, %d
    s_add_u32 s77, s77, %d
    s_add_u32 s81, s69, s75
    s_lshl_b32 s78, s81, 7
    s_add_u32 s78, s78, s72
    s_lshl_b32 s78, s78, 10
    s_add_u32 s78, s78, %d
    s_lshl_b32 s79, s73, 6
    s_add_u32 s79, s79, s72
    s_lshl_b32 s79, s79, 2
    s_add_u32 s79, s79, %d
    s_lshl_b32 s80, s62, 3
    s_add_u32 s80, s80, s61
    s_lshl2_add_u32 s80, s80, s60
    s_lshl_b32 s80, s80, 2
    s_add_u32 s80, s80, %d
    s_mul_i32 s72, s61, 43
    s_add_u32 s72, s72, 43
    s_lshr_b32 s72, s72, 3
    s_add_u32 s73, s81, 4
    s_add_u32 s88, s78, %d
    s_cmp_lt_u32 s73, s72
    s_cselect_b32 s88, s88, 0x40000000
    s_lshl_b32 s81, s81, 6
    """ % (WS_QO, WS_KV, WS_HF, WS_FLAGQ, WS_FLAGH, 8 * 65536))
    a("""
    s_lshl_b32 s85, s60, 14
    s_lshl_b32 s72, s67, 7
    s_add_u32 s85, s85, s72
    s_lshl_b32 s86, s60, 6
    s_lshl1_add_u32 s86, s66, s86
    s_lshl_b32 s86, s86, 10
    s_add_u32 s86, s86, %d
    s_lshl_b32 s87, s66, 7
    s_add_u32 s87, s87, %d
    s_branch L_ln
    """ % (WS_HF, WS_FLAGH))
    a.label("L_setup_b")
    a("""
    v_mul_u32_u24 v12, 2752, v4
    v_add_u32 v12, v12, v6
    v_bfe_u32 v6, v4, 1, 2
    v_lshlrev_b32 v6, 1, v6
    v_xor_b32 v6, v6, v5
    v_lshlrev_b32 v6, 4, v6
    v_lshl_add_u32 v4, v4, 10, v6
    v_min_u32 v5, 10, v0
    v_lshlrev_b32 v5, 7, v5
    v_min_u32 v6, 3, v0
    v_lshlrev_b32 v6, 7, v6
    v_mov_b32 v10, v1
    v_mov_b32 v11, v1
    s_lshl_b32 s79, s64, 8
    s_add_u32 s79, s79, %d
    s_and_b32 s73, s60, 3
    s_lshl_b32 s72, s69, 6
    s_mul_i32 s80, s73, %d
    s_add_u32 s80, s80, s72
    s_mul_i32 s81, s73, 6144
    s_add_u32 s81, s81, %d
    """ % (WS_FLAGQ, 16 * 2752, L_RING))

    a.label("L_ln")

    def coop_chunk(c):
        for m in range(3):
            a("s_add_u32 m0, s91, %d" % (c * 24576 + m * 4096))
            a("s_add_u32 s72, s90, %d" % ((6 * c + m) * 16 * 3072))
            dma(13, SWQ, "s72", 0, ("w", c))

    a("v_mov_b32 v3, 0xdddddddd")
    for j in range(8):
        if j == cfg.w0_at:
            coop_chunk(0)
        vm.wait(("x", j))
        for q in range(4):
            x = RAW + j * 4 + q
            a("v_dot2c_f32_bf16 v24, v30, %s" % vr(x))
            a("v_dot2c_f32_bf16 v25, %s, %s" % (vr(x), vr(x)))
    if cfg.w0_at == 8:
        coop_chunk(0)
    stamp(1)
    for ctl in ("quad_perm:[1,0,3,2]", "quad_perm:[2,3,0,1]", "row_half_mirror"):
        for r in (24, 25):
            a("v_add_f32_dpp %s, %s, %s %s row_mask:0xf bank_mask:0xf" % (vr(r), vr(r), vr(r), ctl))
    a("""
    v_mul_f32 v24, 0x3b000000, v24
    v_mul_f32 v25, 0x3b000000, v25
    v_fma_f32 v25, -v24, v24, v25
    v_max_f32 v25, 0, v25
    v_cvt_pk_bf16_f32 v24, v24, v25
    v_and_b32 v25, s89, v24
    v_add_f32 v25, 0x3727c5ac, v25
    v_cvt_pk_bf16_f32 v25, v25, v25
    v_and_b32 v25, s89, v25
    v_sqrt_f32 v25, v25
    v_lshlrev_b32 v24, 16, v24
    v_cvt_pk_bf16_f32 v25, v25, v25
    v_and_b32 v25, s89, v25
    v_rcp_f32 v26, v25
    v_rcp_f32 v27, v25
    v_mul_f32_e64 v28, -v24, v26
    v_mul_f32_e64 v29, -v24, v26
    """)
    for j in range(8):
        if j == cfg.w1_at:
            coop_chunk(1)
        x = RAW + j * 4
        t = 192 + (j & 1) * 8
        for q in range(4):
            a("v_lshlrev_b32 %s, 16, %s" % (vr(t + 2 * q), vr(x + q)))
            a("v_and_b32 %s, s89, %s" % (vr(t + 2 * q + 1), vr(x + q)))
        for q in range(4):
            a("v_pk_fma_f32 %s, %s, v[26:27], v[28:29]" % (vr(t + 2 * q, 2), vr(t + 2 * q, 2)))
        for q in range(4):
            a("v_cvt_pk_bf16_f32 %s, %s, %s" % (vr(x + q), vr(t + 2 * q), vr(t + 2 * q + 1)))
        a("ds_write_b128 v15, %s offset:%d" % (vr(x, 4), j * 8192))
    if cfg.w1_at == 8:
        coop_chunk(1)
    bload(7, 1, 31, SW1, "s100", 0, "", "pf")
    stamp(2)
    a("s_cmp_ge_u32 s60, 4")
    a("s_cbranch_scc1 L_loader")
    vm_split = list(vm.items)

    QR, SB, WF, FA, OA, KV, HB = 8, 24, 56, 64, 128, 192, 240

    def att_init_ops():
        ops = ["v_mov_b32 %s, 0" % vr(OA + 16 * t + i) for t in range(4) for i in range(9)]
        ops2 = ["v_and_b32 v7, 27, v0", "v_cmp_eq_u32 vcc, 16, v7", "v_mov_b32 v7, 0x3f803f80", "v_cndmask_b32 v7, 0, v7, vcc"]
        ops2 += ["v_mov_b32 %s, v7" % vr(KV + 12 * b + 4 + q) for b in range(4) for q in range(8)]
        return ops, ops2

    def kvload(j):
        b = j & 3
        bload(KV + 12 * b, 4, 1, SWS, "s82", 0, "sc1", ("kv", j))
        a("s_mov_b64 exec, %s" % sr(sVM, 2))
        bload(KV + 12 * b + 4, 4, 2, SWS, "s82", 1024, "sc1", ("kv", j))
        bload(KV + 12 * b + 8, 4, 2, SWS, "s82", 1536, "sc1", ("kv", j))
        a("s_mov_b64 exec, -1")
        a("s_add_u32 s82, s82, 2048")

    def att_loads():
        bload(QR, 4, 1, SWS, "s92", 0, "sc1", "q")
        kvload(0)
        for t in range(1, 4):
            bload(QR + 4 * t, 4, 1, SWS, sr(92 + t), 0, "sc1", "q")
        kvload(1)
        kvload(2)

    def att_run(n, hooks):
        vm.wait("q", ("kv", 0))
        mfma32(SB, KV, QR, None)
        for j in range(n):
            b = j & 3
            for t in range(4):
                cur, oth = SB + 16 * (t & 1), SB + 16 * ((t + 1) & 1)
                for i in range(16):
                    a("v_exp_f32 %s, %s" % (vr(cur + i), vr(cur + i)))
                    if i == 1 and (j, t) != (0, 0):
                        smf(OA + 16 * ((t + 3) & 3), KV + 12 * (b if t else (b + 3) & 3) + 8, oth + 8)
                    if i == 4:
                        if t < 3:
                            mfma32(oth, KV + 12 * b, QR + 4 * (t + 1), None)
                        elif j + 1 < n:
                            vm.wait(("kv", j + 1))
                            mfma32(oth, KV + 12 * ((b + 1) & 3), QR, None)
                    if i == 9:
                        smf(OA + 16 * t, KV + 12 * b + 4, cur)
                    if t == 0 and i == 6 and j + 3 < n:
                        kvload(j + 3)
                    for h in hooks.get((j, t, i), ()):
                        h()
        smf(OA + 48, KV + 12 * ((n - 1) & 3) + 8, SB + 16 + 8)

    ACC = (24, 40, 56)
    WB, NBUF, LA = 72, 6, cfg.look
    XF, PK, XA = 128, 96, 16
    init1, init2 = att_init_ops()

    def item(g):
        if g >= 96:
            return divmod(g - 96, 3)
        return (g >> 1, g & 1) if g < 64 else (g - 64, 2)

    def reads(g):
        ks, sel = item(g)
        c, m = divmod(g, 12)
        slot = c & 3
        if g < 64 and sel == 0:
            dsr("ds_read_b128", XF + 4 * ks, 4, XA + (ks & 3), (ks >> 2) * 8192, g)
        trread(WB + 4 * (g % NBUF), 8 + (slot >> 1), (slot & 1) * 24576 + m * 2048, 512, g)

    def pack(acc, pk):
        return ["v_cvt_pk_bf16_f32 %s, %s, %s" % (vr(pk + q), vr(acc + 2 * q), vr(acc + 2 * q + 1)) for q in range(8)]

    def st2(pk, va, base, delta, tag, imm=(0, 0)):
        def first():
            bstore(pk, 4, va, SWS, base, imm[0], "sc1", tag)

        def second():
            if delta:
                a("s_add_u32 s72, %s, %d" % (base, delta))
            bstore(pk + 4, 4, va, SWS, "s72" if delta else base, imm[1], "sc1", tag)
        return [first, second]

    def relu2(acc):
        return (["v_max_f32 %s, 0, %s" % (vr(acc + i), vr(acc + i)) for i in range(16)]
                + ["v_mul_f32 %s, %s, %s" % (vr(acc + i), vr(acc + i), vr(acc + i)) for i in range(16)])

    def bias(seg):
        return lambda: (vm.wait("b1"), mfma32(ACC[seg], 112 + 4 * seg, 124, None))

    tagq = ["v_or_b32 %s, 1, %s" % (vr(PK + 8 + 4 * q), vr(PK + 8 + 4 * q)) for q in range(2)]
    sched = {
        66: pack(ACC[1], PK) + st2(PK, 12, "s77", 0, "st", (1024, 1536))
            + ["v_mul_f32 %s, 0x%x, %s" % (vr(ACC[0] + i), QSCALE, vr(ACC[0] + i)) for i in range(16)]
            + pack(ACC[0], PK + 8) + tagq + st2(PK + 8, 1, "s76", 0, "st", (0, 1024)) + [bias(0), bias(1)],
        144: init1,
        180: init2,
    }
    shadow = []

    def run_shadow(budget):
        while shadow and budget > 0:
            op = shadow.pop(0)
            if isinstance(op, str):
                a(op)
                budget -= 1
            else:
                op()
                budget -= 3

    vm.wait(("w", 0))
    a("s_waitcnt lgkmcnt(0)")
    a("s_add_u32 %s, %s, 0x%x" % (sr(sTAG), sr(sTAG), EPOCH_INC))
    a("s_barrier")
    stamp(3)
    for g in range(LA):
        reads(g)
    for g in range(192):
        ks, sel = item(g)
        if g == 96:
            run_shadow(1000)
            stamp(4)
        if g == 98:
            shadow.extend(pack(ACC[2], PK) + [bias(2)] + st2(PK, 11, "s77", 0x20000, "st"))
            run_shadow(1000)
            stamp(5)
        lg.wait(g)
        x, w = XF + 4 * ks, WB + 4 * (g % NBUF)
        c = None if (g < 96 and ks == 0) else ACC[sel]
        if g < 96 and sel == 1:
            mfma32(ACC[sel], x, w, c)
        else:
            mfma32(ACC[sel], w, x, c)
        n = g + LA
        if n < 192:
            if n % 12 == 0:
                if n == 12:
                    vm.wait(("w", 1))
                a("s_barrier")
            reads(n)
        if g == 16:
            for seg in range(3):
                a("buffer_load_ushort %s, v10, %s, s81 offen offset:%d" % (vr(112 + 4 * seg), srd(SB1), seg * 128))
                vm.push("b1")
        if g == cfg.flag_item:
            vm.wait("st")
            set_flag(7, "s79")
            stamp(6)
        shadow.extend(sched.get(g, ()))
        run_shadow(3)
    run_shadow(1000)
    stamp(7)
    hepi = []
    for seg in range(3):
        pk = PK + 8 * (seg & 1)
        hepi.append(relu2(ACC[seg]) + pack(ACC[seg], pk) + (["s_add_u32 s78, s78, 0x40000"] if seg == 1 else [])
                    + st2(pk, 1, "s78" if seg < 2 else "s88", 0x10000, "hst"))
    for seg in range(cfg.hpre):
        shadow.extend(hepi[seg])
    run_shadow(1000)
    a("s_barrier")
    stamp(8)
    a("s_setprio 2")
    att_loads()
    for seg in range(cfg.hpre, 3):
        shadow.extend(hepi[seg])
    run_shadow(1000)
    stamp(9)


    def w2dma(i):
        a("s_add_u32 m0, s84, %d" % ((i & 3) * 2048))
        a("s_add_u32 s72, s85, %d" % (i * 65536))
        dma(4, SW2, "s72", 0, ("w2", i))
        a("s_add_u32 s72, s72, 7168")
        dma(4, SW2, "s72", 1024, ("w2", i))

    hreg = lambda i, tt: HB + 8 * (i & 1) + 4 * tt

    def hload(i, tt, reg=None):
        if tt == 0 and i > 0:
            a("s_add_u32 s86, s86, 0x40000")
        bload(hreg(i, tt) if reg is None else reg, 4, 1, SWS, "s86", tt * 1024, "sc1", ("h", i, tt))

    def w2read(i, nt, reg=None):
        vm.wait(("w2", i))
        trread(WF + 4 * nt if reg is None else reg, 5 + nt, (i & 3) * 2048, 1024, ("wf", i, nt))

    def fmfma(i, tt, nt, wreg=None, hr=None):
        vm.wait(("h", i, tt))
        lg.wait(("wf", i, nt))
        d = FA + 16 * (2 * tt + nt)
        mfma32(d, WF + 4 * nt if wreg is None else wreg, hreg(i, tt) if hr is None else hr, None if i == 0 else d)

    hooks = {}

    def hook(j, t, i, f):
        hooks.setdefault((j, t, i), []).append(f)

    n1, n2 = cfg.n1, cfg.n2
    hook(cfg.hflag >> 2, cfg.hflag & 3, 12, lambda: (vm.wait("hst"), set_flag(7, "s80"), stamp(1) if cfg.hst else None))
    hook(n1 - 2, 0, 8, lambda: flag_load(7, 32, "s87", "hf"))
    hook(n1 - 2, 3, 12, lambda: (vm.wait("hf"), stamp(2) if cfg.hst else None, check_flags("h", 7, 32, "s87"), stamp(3) if cfg.hst else None))
    if cfg.hst:
        hook(n1, 0, 1, lambda: stamp(4))
        hook(n1 + 4, 0, 1, lambda: stamp(5))
        hook(n1 + 8, 0, 1, lambda: stamp(6))
        hook(n1 + 12, 0, 1, lambda: stamp(7))
    hook(n1 - 1, 0, 8, lambda: (hload(0, 0), hload(0, 1)))
    hook(n1 - 1, 2, 2, lambda: hload(1, 0))
    for i in range(min(NS, n2 + 3)):
        hook(n1 - 3 + i, 1, 2, lambda i=i: w2dma(i))
    for i in range(min(NS, n2 + 1)):
        hook(n1 - 1 + i, 3, 0, lambda i=i: w2read(i, 1))
    for i in range(n2):
        j = n1 + i
        hook(j, 0, 0, lambda i=i: w2read(i, 0))
        if i + 1 < NS:
            hook(j, 0, 8, lambda i=i: hload(i + 1, 1))
        if i + 2 < NS:
            hook(j, 2, 2, lambda i=i: hload(i + 2, 0))
        for t, (tt, nt) in enumerate(((0, 0), (0, 1), (1, 1), (1, 0))):
            hook(j, t, 13, lambda i=i, tt=tt, nt=nt: fmfma(i, tt, nt))
    att_run(nA, hooks)
    left = list(range(n2, NS))
    hextra = {}
    for i in left:
        for tt in range(2):
            if i <= n2 or (i == n2 + 1 and tt == 0):
                continue
            hextra[(i, tt)] = KV + 12 + 4 * len(hextra)
            hload(i, tt, hextra[(i, tt)])
    vm_a, lg_a = list(vm.items), list(lg.items)
    a("s_branch L_att_done")

    a.label("L_loader")
    vm.items = list(vm_split)
    lg.items = []

    def issue_chunk(c):
        for m in range(6):
            if c < 8:
                p = 6 * c + m
                a("s_add_u32 m0, s87, %d" % ((c & 3) * 24576 + m * 4096))
                if p < 32:
                    a("s_add_u32 s72, s85, %d" % (p * 16 * 3072))
                else:
                    a("s_add_u32 s72, s86, %d" % ((p - 32) * 32 * 3072))
                dma(13, SWQ, "s72", 0, ("w", c))
            else:
                blk, seg = divmod(m, 3)
                a("s_add_u32 m0, s81, %d" % ((c & 3) * 24576 + seg * 2048 + blk * 1024))
                a("s_add_u32 s72, s80, %d" % (((c - 8) * 64 + blk * 8) * 2752 + seg * 128))
                dma(12, SW1, "s72", 0, ("w", c))

    issue_chunk(2)
    a("s_waitcnt lgkmcnt(0)")
    a("s_add_u32 %s, %s, 0x%x" % (sr(sTAG), sr(sTAG), EPOCH_INC))
    issued = 2
    for c in range(16):
        vm.wait(("w", c))
        a("s_barrier")
        if c in (0, 8, 12, 15):
            stamp({0: 3, 8: 4, 12: 5, 15: 6}[c])
        while issued < min(15, max(3, c + 2)):
            issued += 1
            issue_chunk(issued)
        if c == 2:
            for op in init1:
                a(op)
        if c == 3:
            for op in init2:
                a(op)
        if c == cfg.qpoll:
            flag_load(7, 64, "s79", "qf")
    vm.wait("qf")
    check_flags("q", 7, 64, "s79")
    stamp(7)
    att_loads()
    a("s_barrier")
    stamp(8)
    a("s_setprio 1")

    def wo_dma():
        a("; wo tile -> LDS [0, 64K)")
        a("s_and_b32 s78, s60, 3")
        a("s_lshl_b32 s76, s78, 17")
        a("s_lshl_b32 s73, s67, 7")
        a("s_add_u32 s76, s76, s73")
        a("s_lshl_b32 s78, s78, 14")
        for i in range(16):
            a("s_add_u32 m0, s78, %d" % (i * 1024))
            a("s_add_u32 s73, s76, %d" % (i * 8192))
            dma(4, SWO, "s73", 0, "wo")

    def pf_late():
        a("; memory-side prefetch of w2 and wo")
        a("s_and_b32 s73, s60, 3")
        a("s_lshl2_add_u32 s73, s2, s73")
        a("s_mul_i32 s72, s73, 1408")
        a("s_lshl_b32 s73, s73, 9")
        bload(7, 1, 5, SW2, "s72", 0, "", "pf")
        bload(7, 1, 6, SWO, "s73", 0, "", "pf")

    att_run(nB, {(0, 0, 8): [pf_late], (2, 1, 2): [wo_dma]})
    vm.drain()

    a.label("L_att_done")
    stamp(10)
    lg.items = []
    a("v_lshlrev_b32 v12, 2, v0")
    for t in range(1, 4):
        a("v_add_u32 %s, %s, v1" % (vr(12 + t), sr(96 + t)))
        a("v_add_u32 %s, %s, v12" % (vr(16 + t), sr(96 + t)))
    for t in range(1, 4):
        off = (t - 1) * 2304
        dsw("ds_write_b128", 12 + t, OA + 16 * t, 4, off)
        dsw("ds_write_b128", 12 + t, OA + 16 * t + 4, 4, off + 1024)
        dsw("ds_write_b32", 16 + t, OA + 16 * t + 8, 1, off + 2048)
    a("""
    v_add_u32 v20, s96, v1
    v_add_u32 v21, s96, v12
    v_bfe_u32 v22, v0, 4, 1
    v_lshl_add_u32 v22, v22, 10, v2
    s_and_b32 s73, s60, 1
    s_lshl_b32 s73, s73, 9
    s_sub_u32 s76, s92, s73
    """)
    lg.drain()
    a("s_barrier")
    for src in range(3):
        d = SB + 10 * src
        dsr("ds_read_b128", d, 4, 20, src * 2304, src)
        dsr("ds_read_b128", d + 4, 4, 20, src * 2304 + 1024, src)
        dsr("ds_read_b32", d + 8, 1, 21, src * 2304 + 2048, src)
    for src in range(3):
        lg.wait(src)
        for i in range(9):
            a("v_add_f32 %s, %s, %s" % (vr(OA + i), vr(OA + i), vr(SB + 10 * src + i)))
    a("v_fma_f32 v13, %s, 0, %s" % (vr(OA), vr(OA + 8)))
    for i in range(1, 8):
        a("v_fma_f32 v13, %s, 0, v13" % vr(OA + i))
    a("""
    v_cmp_nle_f32 vcc, 0x30800000, v13
    s_mov_b64 s[72:73], vcc
    v_cmp_nge_f32 vcc, 0x5d800000, v13
    s_or_b64 s[72:73], s[72:73], vcc
    """)
    a("s_branch L_slow" if cfg.force_slow else "s_cbranch_scc1 L_slow")
    a.label("L_norm")
    a("v_rcp_f32 v13, %s" % vr(OA + 8))
    for i in range(8):
        a("v_mul_f32 %s, v13, %s" % (vr(OA + i), vr(OA + i)))
    for q in range(4):
        a("v_cvt_pk_bf16_f32 %s, %s, %s" % (vr(16 + q), vr(OA + 2 * q), vr(OA + 2 * q + 1)))
    a("v_and_b32 v16, -2, v16")
    vm.items = list(vm_a)
    bstore(16, 4, 22, SWS, "s76", 0, "sc1", "ost")
    stamp(11)
    a("s_cmp_ge_u32 s60, 4")
    a("s_cbranch_scc1 L_tail")
    wl = {}
    for i in left:
        for nt in range(2):
            if i == n2 and nt == 1:
                continue
            wl[(i, nt)] = SB + 4 * len(wl)
            w2read(i, nt, wl[(i, nt)])
    for i in left:
        for tt, nt in ((0, 1), (1, 1), (0, 0), (1, 0)):
            fmfma(i, tt, nt, wl.get((i, nt)), hextra.get((i, tt)))
    vm.wait(*[t for t in vm.items if t != "ost"])

    WOF, OFR, AC = 128, 24, 8
    a.label("L_tail")
    vm.items = ["ost"]
    lg.items = []
    a("""
    s_and_b32 s74, s60, 3
    s_lshr_b32 s75, s60, 2
    v_bfe_u32 v4, v0, 2, 2
    v_bfe_u32 v5, v0, 4, 1
    v_lshl_add_u32 v4, v5, 2, v4
    v_lshrrev_b32 v5, 1, v4
    s_lshl_b32 s72, s75, 1
    v_xor_b32 v5, s72, v5
    v_lshlrev_b32 v12, 7, v4
    v_lshl_add_u32 v12, v5, 5, v12
    v_lshrrev_b32 v5, 5, v0
    v_lshl_add_u32 v12, v5, 11, v12
    v_and_b32 v4, 3, v0
    v_lshl_add_u32 v12, v4, 3, v12
    s_lshl_b32 s72, s75, 15
    v_add_u32 v12, s72, v12
    v_xor_b32 v13, 32, v12
    v_xor_b32 v14, 64, v12
    v_xor_b32 v15, 0x60, v12
    """)
    a("""
    v_and_b32 v6, 15, v0
    v_lshrrev_b32 v7, 4, v0
    v_lshlrev_b32 v3, 3, v7
    v_lshl_add_u32 v2, v6, 10, v3
    s_lshl2_add_u32 s72, s66, s74
    s_lshl_b32 s78, s72, 14
    s_lshl1_add_u32 s79, s67, s75
    s_lshl_b32 s79, s79, 6
    s_add_u32 s78, s78, s79
    s_lshr_b32 s76, s72, 1
    s_lshl1_add_u32 s76, s76, s75
    s_lshl_b32 s76, s76, 14
    s_and_b32 s72, s72, 1
    s_lshl_b32 s72, s72, 10
    s_add_u32 s76, s76, s72
    s_add_u32 s76, s76, %d
    s_add_u32 s77, s76, 0x1000
    s_add_u32 s80, s76, 0x2000
    s_add_u32 s81, s76, 0x3000
    """ % WS_QO)
    bload(56, 2, 2, SX, "s78", 0, "", "xb")
    bload(58, 2, 2, SX, "s78", 32, "", "xb")
    bload(60, 2, 3, SB2, "s79", 0, "", "xb")
    bload(62, 2, 3, SB2, "s79", 32, "", "xb")

    def oloads():
        for ks in range(8):
            bload(OFR + 4 * ks, 4, 1, SWS, ("s76", "s77", "s80", "s81")[ks >> 1], (ks & 1) * 2048, "sc1", ("o", ks))

    for ks in range(8):
        for ct in range(4):
            trread(WOF + (ks * 4 + ct) * 4, 12 + ct, ks * 4096, 1024, ("wo", ks))
    a("s_barrier")
    oloads()
    a("s_cmp_ge_u32 s60, 4")
    a("s_cbranch_scc1 L_tail_j")
    a("""
    v_and_b32 v4, 31, v0
    v_mul_u32_u24 v4, %d, v4
    v_lshl_add_u32 v4, v5, 4, v4
    s_mul_i32 s72, s60, %d
    s_add_u32 s72, s72, %d
    v_add_u32 v4, s72, v4
    """ % (PART_STRIDE, PART_SIZE, L_PART))
    for tt in range(2):
        for nt in range(2):
            for q in range(4):
                dsw("ds_write_b128", 4, FA + 16 * (2 * tt + nt) + 4 * q, 4, tt * 32 * PART_STRIDE + nt * 128 + q * 32)
    a.label("L_tail_j")
    a("""
    s_lshl_b32 s72, s74, 4
    v_add_u32 v3, s72, v6
    v_mul_u32_u24 v3, %d, v3
    v_lshl_add_u32 v3, v7, 4, v3
    s_lshl_b32 s72, s75, 7
    s_add_u32 s72, s72, %d
    v_add_u32 v3, s72, v3
    """ % (PART_STRIDE, L_PART))
    lg.drain()
    a("s_barrier")
    stamp(12)
    G, Z, X = 64, 96, 104
    for j in range(4):
        for ct in range(2):
            dsr("ds_read_b128", G + 8 * j + 4 * ct, 4, 3, j * PART_SIZE + ct * 64, ("g", j))
    vm.wait("xb")
    for q in range(4):
        a("v_lshlrev_b32 %s, 16, %s" % (vr(Z + 2 * q), vr(60 + q)))
        a("v_and_b32 %s, s89, %s" % (vr(Z + 1 + 2 * q), vr(60 + q)))
    for q in range(4):
        a("v_lshlrev_b32 %s, 16, %s" % (vr(X + 2 * q), vr(56 + q)))
        a("v_and_b32 %s, s89, %s" % (vr(X + 1 + 2 * q), vr(56 + q)))
    a("""
    s_lshl_b32 s72, s60, 11
    s_add_u32 s72, s72, %d
    v_add_u32 v5, s72, v1
    s_xor_b32 s73, s60, 4
    s_lshl_b32 s73, s73, 11
    s_add_u32 s73, s73, %d
    v_add_u32 v6, s73, v1
    """ % (L_XCH, L_XCH))
    for j in range(4):
        lg.wait(("g", j))
        for i in range(8):
            a("v_add_f32 %s, %s, %s" % (vr(Z + i), vr(Z + i), vr(G + 8 * j + i)))
    for i in range(8):
        a("v_mul_f32 %s, 0x%x, %s" % (vr(G + i), NLOG2E, vr(Z + i)))
    for i in range(8):
        a("v_exp_f32 %s, %s" % (vr(G + i), vr(G + i)))
    for i in range(8):
        a("v_add_f32 %s, 1.0, %s" % (vr(G + i), vr(G + i)))
    for i in range(8):
        a("v_rcp_f32 %s, %s" % (vr(G + i), vr(G + i)))
    for i in range(8):
        a("v_mul_f32 %s, %s, %s" % (vr(Z + i), vr(Z + i), vr(G + i)))
    a("s_mov_b32 s73, 0")
    a.label("L_wo")
    a("v_mov_b32 v7, 0")
    for ks in range(8):
        vm.wait(("o", ks))
        for n, ct in enumerate((2, 3, 0, 1)):
            d = AC + 4 * ct
            mfma16(d, WOF + (ks * 4 + ct) * 4, OFR + 4 * ks, None if ks == 0 else d)
            if n == 0:
                a("v_and_or_b32 v7, %s, 1, v7" % vr(OFR + 4 * ks))
            if n == 1 and ks == 7:
                a("v_cmp_ne_u32 vcc, 0, v7")
    a("s_cbranch_vccnz L_oretry")
    a.label("L_ovalid")
    stamp(13)
    a("ds_write_b128 v5, %s" % vr(AC + 8, 4))
    a("ds_write_b128 v5, %s offset:1024" % vr(AC + 12, 4))
    a("s_waitcnt lgkmcnt(0)")
    a("s_barrier")
    stamp(14)
    a("ds_read_b128 v[64:67], v6")
    a("ds_read_b128 v[68:71], v6 offset:1024")
    for ct in range(2):
        a("s_waitcnt lgkmcnt(%d)" % (1 - ct))
        for i in range(4):
            a("v_add_f32 %s, %s, %s" % (vr(AC + 4 * ct + i), vr(AC + 4 * ct + i), vr(64 + 4 * ct + i)))
        for i in range(4):
            a("v_fma_f32 %s, %s, %s, %s" % (vr(AC + 4 * ct + i), vr(AC + 4 * ct + i), vr(Z + 4 * ct + i), vr(X + 4 * ct + i)))
        for q in range(2):
            a("v_cvt_pk_bf16_f32 %s, %s, %s" % (vr(72 + 2 * ct + q), vr(AC + 4 * ct + 2 * q), vr(AC + 4 * ct + 2 * q + 1)))
        bstore(72 + 2 * ct, 2, 2, SOUT, "s78", 32 * ct, ("", "sc1", "nt", "sc0 sc1", "sc0 sc1 nt")[cfg.omod])
    a("s_or_b32 s72, s2, s60")
    a("s_cmp_lg_u32 s72, 0")
    a("s_cbranch_scc1 L_noepoch")
    set_flag(7, "0")
    a.label("L_noepoch")
    if cfg.stamps:
        a("s_waitcnt vmcnt(0)")
        stamp(15)
        if cfg.probe is not None:
            a("s_sub_u32 s72, %s, s4" % sr(sSTAMP + cfg.probe))
            if cfg.stamps == 2:
                a("s_lshr_b32 s72, s72, 3")
            else:
                a("s_lshl_b32 s72, s72, 2")
            a("s_cmp_lg_u32 s2, %d" % cfg.probewg)
            a("s_cselect_b32 s72, 0, s72")
            a("s_cmp_lg_u32 s60, 0")
            a("s_cselect_b32 s72, 0, s72")
            a("s_memrealtime s[22:23]")
            a("s_waitcnt lgkmcnt(0)")
            a("s_mov_b32 s73, s22")
            a.label("L_probe")
            a("s_memrealtime s[22:23]")
            a("s_waitcnt lgkmcnt(0)")
            a("s_sub_u32 s22, s22, s73")
            a("s_cmp_lt_u32 s22, s72")
            a("s_cbranch_scc1 L_probe")
        a("s_lshl3_add_u32 s72, s2, s60")
        a("s_lshl_b32 s72, s72, 6")
        a("s_add_u32 s72, s72, %d" % WS_STAMP)
        for i in range(16):
            a("v_mov_b32 %s, %s" % (vr(80 + i), sr(sSTAMP + i)))
        a("s_mov_b64 exec, 1")
        for i in range(4):
            bstore(80 + 4 * i, 4, 1, SWS, "s72", 16 * i)
    a.label("L_end")
    a("s_endpgm")

    a.label("L_oretry")
    a("s_add_u32 s73, s73, 1")
    a("s_cmp_ge_u32 s73, %d" % SPIN_MAX)
    a("s_cbranch_scc1 L_ovalid")
    oloads()
    a("s_branch L_wo")

    for tag, vt, lanes, soff in stubs:
        a.label("L_poll_" + tag)
        a("s_mov_b32 s73, 0")
        a.label("L_poll2_" + tag)
        a("s_sleep %d" % cfg.sleep)
        flag_load(vt, lanes, soff, None)
        a("s_add_u32 s73, s73, 1")
        a("s_waitcnt vmcnt(0)")
        a("s_cmp_ge_u32 s73, %d" % SPIN_MAX)
        a("s_cbranch_scc1 L_polled_" + tag)
        a("v_cmp_ne_u32 vcc, %s, %s" % (sr(sTAG), vr(vt)))
        a("s_cbranch_vccnz L_poll2_" + tag)
        a("s_branch L_polled_" + tag)

    a.label("L_slow")
    CN = SB + 16
    a("s_waitcnt vmcnt(0)")
    a("v_mov_b32 v13, 0xff800000")
    a("s_mov_b32 s82, s83")
    a("s_mov_b32 s81, 64")
    a.label("L_slow1")
    bload(KV, 4, 1, SWS, "s82", 0, "sc1")
    a("s_add_u32 s82, s82, 2048")
    a("s_waitcnt vmcnt(0)")
    mfma32(SB, KV, QR, None)
    for i in range(0, 16, 2):
        a("v_max3_f32 v13, v13, %s, %s" % (vr(SB + i), vr(SB + i + 1)))
    a("s_sub_u32 s81, s81, 1")
    a("s_cmp_lg_u32 s81, 0")
    a("s_cbranch_scc1 L_slow1")
    a("v_mov_b32 v14, v13")
    a("v_permlane32_swap_b32 v14, v13")
    a("v_max_f32 v13, v14, v13")
    for i in range(16):
        a("v_sub_f32 %s, 0, v13" % vr(CN + i))
        a("v_mov_b32 %s, 0" % vr(OA + i))
    a("s_mov_b32 s82, s83")
    a("s_mov_b32 s81, 64")
    a.label("L_slow2")
    kvload(0)
    a("s_waitcnt vmcnt(0)")
    mfma32(SB, KV, QR, CN)
    for i in range(16):
        a("v_exp_f32 %s, %s" % (vr(SB + i), vr(SB + i)))
    smf(OA, KV + 4, SB)
    smf(OA, KV + 8, SB + 8)
    a("s_sub_u32 s81, s81, 1")
    a("s_cmp_lg_u32 s81, 0")
    a("s_cbranch_scc1 L_slow2")
    a("s_branch L_norm")
    a.label("L_code_end")
    a("s_endpgm")

    added = a.fix()
    return a.text(), added


HEADER = """; Kernarg layout for this problem (88 bytes, ptrs only, base s[0:1]):
; @launch grid=(256,1,1) block=(512,1,1) lds=163840
.amdgcn_target "amdgcn-amd-amdhsa--gfx950"
.text
.globl {k}
.p2align 8
.type {k},@function
{k}:
"""

FOOTER = """.section .rodata,"a"
.p2align 6
.amdhsa_kernel {k}
  .amdhsa_next_free_vgpr 256
  .amdhsa_next_free_sgpr 102
  .amdhsa_accum_offset 256
  .amdhsa_group_segment_fixed_size 0
  .amdhsa_kernarg_size 88
  .amdhsa_user_sgpr_count 2
  .amdhsa_user_sgpr_kernarg_segment_ptr 1
  .amdhsa_system_sgpr_workgroup_id_x 1
.end_amdhsa_kernel
"""


def build(**kw):
    cfg = Cfg()
    for k, v in kw.items():
        setattr(cfg, k, v)
    body, added = gen(cfg)
    return HEADER.format(k=KERNEL) + body + FOOTER.format(k=KERNEL), added


if __name__ == "__main__":
    out = sys.argv[1] if len(sys.argv) > 1 else "cdna_kernels/%s.s" % NAME
    kw = {}
    for arg in sys.argv[2:]:
        k, v = arg.split("=")
        kw[k] = int(v)
    text, added = build(**kw)
    open(out, "w").write(text)
    print("wrote", out, "lines", text.count("\n"), "nops added", added)
```

```python
import sys
import os
sys.path.insert(0, os.path.dirname(os.path.abspath(__file__)))
from asmlib import Asm, vr, sr

NAME = "recurrent_scan__softmax_full_mha__dense_activation_squared_relu__prompt"
KERNEL = NAME + "_kernel"

WS_FLAGQ = 0x1200
WS_FLAGH = 0x8000
WS_STAMP = 0x10000
WS_QO = 0x100000
WS_KV = 0x300000
WS_HF = 0x700000
WS_END = WS_HF + 86 * 65536
EPOCH_INC = 0x9E3779B9
SPIN_MAX = 1 << 18

L_RING = 65536
L_OPART = 65536
L_W2 = L_OPART + 55296
W2_REGION = 10240
PART_STRIDE = 144
SUM_STRIDE = 272
SUM_SIZE = 64 * SUM_STRIDE
L_SUM = L_OPART

SX, SWQ, SWO, SW1, SB1, SW2, SB2, SOUT, SWS = 24, 28, 32, 36, 40, 44, 48, 52, 56
sW, sCG, sTB, sRW, sP, sQB, sTBF, sCB, sTAG, sCT0 = 60, 61, 62, 63, 64, 65, 66, 67, 68, 69
sVM = 70
sSTAMP = 4

QSCALE = 0x3EB8AA3B
NLOG2E = 0xBFB8AA3B
NS = 22


class Cfg:
    abl = 0
    bst = 0
    n1 = 8
    nA = 22
    gap = 1
    kvt = 0
    kvi = 4
    dmam = 2
    fpat = 2221
    pf1_at = 11
    w2_at = 10
    pfl = 5
    wol = 10
    won = 1
    stamps = 0
    force_slow = 0
    flag_chunk = 11
    lead = 1
    defer = 1
    look = 5
    pfq_at = 11
    qpoll = 14
    sleep = 6
    w0_at = 8
    w1_at = 8
    hpre = 0
    hflag = 7
    probe = None
    omod = 1
    oat = 4
    probewg = 100
    probew = 0
    probesh = 4
    hst = 0


def srd(s):
    return sr(s, 4)


class Queue:
    def __init__(self, a, name, maxn):
        self.a, self.name, self.maxn, self.items = a, name, maxn, []

    def push(self, tag):
        self.items.append(tag)

    def wait(self, *tags):
        last = max((i for i, t in enumerate(self.items) if t in tags), default=-1)
        if last < 0:
            return
        n = len(self.items) - 1 - last
        self.a("s_waitcnt %s(%d)" % (self.name, min(n, self.maxn)))
        self.items = self.items[last + 1:]

    def drain(self):
        self.a("s_waitcnt %s(0)" % self.name)
        self.items = []


def gen(cfg):
    a = Asm()
    nA = cfg.nA
    nB = 32 - nA
    vm = Queue(a, "vmcnt", 63)
    lg = Queue(a, "lgkmcnt", 15)

    def stamp(i, force=False):
        if cfg.bst and not force and i != 0:
            return
        if cfg.stamps and (cfg.probe is None or i in (0, cfg.probe)):
            a("%s s[22:23]" % ("s_memtime" if cfg.stamps == 2 else "s_memrealtime"))
            a("s_waitcnt lgkmcnt(0)")
            a("s_mov_b32 %s, s22" % sr(sSTAMP + i))

    def mfma32(d, x, y, c):
        a("v_mfma_f32_32x32x16_bf16 %s, %s, %s, %s" % (vr(d, 16), vr(x, 4), vr(y, 4), "0" if c is None else vr(c, 16)))

    def mfma16(d, x, y, c):
        a("v_mfma_f32_16x16x32_bf16 %s, %s, %s, %s" % (vr(d, 4), vr(x, 4), vr(y, 4), "0" if c is None else vr(c, 4)))

    def smf(d, x, y):
        a("v_smfmac_f32_32x32x32_bf16 %s, %s, %s, v3" % (vr(d, 16), vr(x, 4), vr(y, 8)))

    def bload(d, n, va, s, so, off=0, mod="", tag=None):
        op = {1: "dword", 2: "dwordx2", 4: "dwordx4"}[n]
        a("buffer_load_%s %s, %s, %s, %s offen offset:%d %s" % (op, vr(d, n), vr(va), srd(s), so, off, mod))
        vm.push(tag)

    def bstore(d, n, va, s, so, off=0, mod="", tag=None):
        op = {1: "dword", 2: "dwordx2", 4: "dwordx4"}[n]
        a("buffer_store_%s %s, %s, %s, %s offen offset:%d %s" % (op, vr(d, n), vr(va), srd(s), so, off, mod))
        vm.push(tag)

    def dma(va, s, so, off=0, tag=None):
        a("buffer_load_dwordx4 %s, %s, %s offen offset:%d lds" % (vr(va), srd(s), so, off))
        vm.push(tag)

    def dsr(op, d, n, va, off, tag=None):
        a("%s %s, %s offset:%d" % (op, vr(d, n), vr(va), off))
        lg.push(tag)

    def dsw(op, va, d, n, off, tag=None):
        a("%s %s, %s offset:%d" % (op, vr(va), vr(d, n), off))
        lg.push(tag)

    def trread(d, va, off, second, tag=None):
        dsr("ds_read_b64_tr_b16", d, 2, va, off, tag)
        dsr("ds_read_b64_tr_b16", d + 2, 2, va, off + second, tag)

    def set_flag(vt, soff):
        a("v_mov_b32 %s, %s" % (vr(vt), sr(sTAG)))
        a("s_mov_b64 exec, 1")
        bstore(vt, 1, 1, SWS, soff, 0, "sc0 sc1")
        a("s_mov_b64 exec, -1")

    stubs = []

    def check_flags(tag, vt, lanes, soff):
        a("v_cmp_ne_u32 vcc, %s, %s" % (sr(sTAG), vr(vt)))
        a("s_cbranch_vccnz L_poll_" + tag)
        a.label("L_polled_" + tag)
        stubs.append((tag, vt, lanes, soff))

    def flag_load(vt, shift, soff, tag):
        a("v_and_b32 %s, 31, v0" % vr(vt))
        a("v_lshlrev_b32 %s, %d, %s" % (vr(vt), shift, vr(vt)))
        bload(vt, 1, vt, SWS, soff, 0, "sc0 sc1", tag)

    sizes = {SX: 2048 * 1024, SWQ: 512 * 3072, SWS: WS_END, SW1: 512 * 2752, SB1: 2752,
             SWO: 512 * 1024, SW2: 1376 * 1024, SB2: 1024, SOUT: 2048 * 1024}
    RAW = 128

    def xloads():
        for j in range(8):
            bload(RAW + j * 4, 4, 14, SX, "s101", j * 128, "", ("x", j))

    stamp(0)
    a("s_load_dwordx2 %s, s[0:1], 0" % sr(SX, 2))
    a("s_cmpk_ge_u32 s2, 256")
    a("s_cbranch_scc1 L_end")
    a("""
    s_lshl_b32 s72, s2, 4
    v_add_u32 v4, s72, v0
    v_readfirstlane_b32 s60, v0
    v_and_b32 v5, 7, v0
    s_lshr_b32 s67, s2, 5
    s_and_b32 s73, s2, 6
    s_lshl2_add_u32 s62, s73, s67
    s_lshl_b32 s101, s62, 16
    s_and_b32 s72, s72, 0x180
    v_add_u32 v4, s72, v0
    v_bfe_u32 v4, v4, 3, 6
    v_lshlrev_b32 v14, 10, v4
    v_lshl_add_u32 v14, v5, 4, v14
    s_mov_b32 s26, %d
    s_mov_b32 s27, 0x20000
    s_lshr_b32 s60, s60, 6
    v_and_b32 v0, 63, v0
    s_cmp_ge_u32 s60, 4
    s_cbranch_scc1 L_codepf
    s_waitcnt lgkmcnt(0)
    """.replace("    v_add_u32 v4, s72, v0\n    v_readfirstlane", "    v_readfirstlane") % sizes[SX])
    if cfg.bst == 3:
        stamp(1, True)
    xloads()
    if cfg.bst == 3:
        stamp(2, True)
    a("s_branch L_join")
    a.label("L_codepf")
    a("""
    s_getpc_b64 s[72:73]
    L_pc:
    s_lshr_b32 s74, s2, 3
    s_lshl2_add_u32 s74, s74, s60
    s_lshl_b32 s74, s74, 9
    s_sub_u32 s74, s74, 0x800
    v_and_b32 v8, 3, v0
    v_lshl_add_u32 v8, v8, 7, s74
    v_min_u32 v8, L_code_end-L_pc, v8
    v_mov_b32 v9, s73
    v_add_co_u32 v8, vcc, s72, v8
    v_addc_co_u32 v9, vcc, 0, v9, vcc
    global_load_dword v7, v[8:9], off
    """)
    a.label("L_join")
    for s, off in ((SWS, 80), (SWQ, 8), (SW1, 32), (SB1, 40), (SWO, 16), (SW2, 48), (SB2, 56), (SOUT, 64)):
        a("s_load_dwordx2 %s, s[0:1], %d" % (sr(s, 2), off))
    if cfg.stamps:
        for i in range(3 if cfg.bst == 3 else 1, 16):
            a("s_mov_b32 %s, s4" % sr(sSTAMP + i))
    for s in (SWQ, SW1, SWS, SB1, SWO, SW2, SB2, SOUT):
        a("s_mov_b32 %s, %d" % (sr(s + 2), sizes[s]))
        a("s_mov_b32 %s, 0x20000" % sr(s + 3))
    a("""
    v_bfe_u32 v24, v4, 1, 3
    v_xor_b32 v24, v24, v5
    v_lshlrev_b32 v15, 7, v4
    v_lshl_add_u32 v15, v24, 4, v15
    v_lshrrev_b32 v4, 3, v0
    s_and_b32 s73, s60, 3
    s_lshl2_add_u32 s100, s2, s73
    s_mul_i32 s100, s100, 1536
    v_min_u32 v31, 11, v0
    v_lshlrev_b32 v31, 7, v31
    s_bfe_u32 s72, s2, 0x20003
    s_waitcnt lgkmcnt(0)
    """)
    a("s_load_dword %s, %s, 0" % (sr(sTAG), sr(SWS, 2)))
    a("""
    s_and_b32 s73, s2, 1
    s_lshl2_add_u32 s61, s73, s72
    s_and_b32 s73, s2, 7
    s_lshl2_add_u32 s66, s73, s72
    s_and_b32 s72, s72, 1
    s_lshl1_add_u32 s64, s73, s72
    s_lshr_b32 s65, s2, 4
    s_mul_i32 s69, s61, 43
    s_lshr_b32 s69, s69, 3
    s_mov_b32 s70, 0xffff
    s_mov_b32 s71, 0xffff
    s_mov_b32 s89, 0xffff0000
    s_and_b32 s74, s60, 1
    s_bfe_u32 s75, s60, 0x10001
    s_lshl_b32 s72, s61, 7
    s_mul_i32 s85, s74, %d
    s_add_u32 s85, s85, s72
    s_mul_i32 s86, s75, %d
    s_add_u32 s86, s86, s85
    s_add_u32 s86, s86, 1024
    s_lshl_b32 s73, s75, 11
    s_add_u32 s85, s85, s73
    s_and_b32 s87, s60, 3
    s_lshl_b32 s87, s87, 10
    s_add_u32 s87, s87, %d
    v_lshlrev_b32 v1, 4, v0
    v_and_b32 v2, 15, v0
    v_lshrrev_b32 v3, 5, v0
    v_lshl_add_u32 v2, v3, 4, v2
    v_lshlrev_b32 v2, 4, v2
    v_bfe_u32 v6, v4, 1, 1
    v_lshlrev_b32 v6, 2, v6
    v_xor_b32 v6, v6, v5
    v_lshlrev_b32 v6, 4, v6
    v_mul_u32_u24 v13, 3072, v4
    v_add_u32 v13, v13, v6
    v_mov_b32 v30, 0x3f803f80
    v_mov_b32 v24, 0
    v_mov_b32 v25, 0
    """ % (8 * 3072, 16 * 3072, L_RING))
    a("""
    s_and_b32 s74, s60, 1
    s_lshr_b32 s75, s60, 1
    s_lshl1_add_u32 s72, s64, s74
    s_lshl_b32 s83, s72, 17
    s_add_u32 s83, s83, %d
    s_and_b32 s73, s75, 1
    s_lshl_b32 s73, s73, 16
    s_add_u32 s82, s83, s73
    s_lshl_b32 s72, s65, 6
    s_add_u32 s72, s72, s64
    s_lshl1_add_u32 s72, s72, s74
    s_lshl_b32 s72, s72, 10
    s_add_u32 s72, s72, %d
    s_mul_i32 s84, s74, %d
    s_add_u32 s84, s84, %d
    """ % (WS_KV, WS_QO, 12 * 2304, L_OPART))
    for t in range(4):
        a("s_xor_b32 s73, s75, %d" % (t ^ 3))
        a("s_mul_i32 %s, s73, %d" % (sr(96 + t), 3 * 2304))
        a("s_lshl_b32 s73, s73, 15")
        a("s_add_u32 %s, s72, s73" % sr(92 + t))
        a("s_add_u32 %s, %s, s84" % (sr(96 + t), sr(96 + t)))
    a("s_cmp_ge_u32 s60, 4")
    a("s_cbranch_scc1 L_loader")
    a("""
    s_add_u32 s82, s82, %d
    v_and_b32 v8, 0x33, v0
    v_and_b32 v9, 4, v0
    v_lshl_or_b32 v8, v9, 1, v8
    v_and_b32 v9, 8, v0
    v_lshrrev_b32 v9, 1, v9
    v_or_b32 v8, v8, v9
    v_lshlrev_b32 v11, 4, v8
    v_bfe_u32 v9, v0, 4, 1
    v_mul_u32_u24 v12, 0x1fe00, v9
    v_add_u32 v12, v12, v2
    v_mul_u32_u24 v14, 0x1fa00, v9
    v_add_u32 v14, v14, v2
    v_lshl_add_u32 v4, v4, 10, v6
    v_bfe_u32 v10, v0, 2, 2
    v_lshlrev_b32 v5, 5, v9
    v_lshl_add_u32 v5, v10, 7, v5
    v_and_b32 v9, 3, v0
    v_lshl_add_u32 v5, v9, 3, v5
    v_lshrrev_b32 v10, 1, v10
    v_lshl_add_u32 v8, v3, 10, v5
    v_xor_b32 v9, s75, v10
    v_lshl_add_u32 v8, v9, 6, v8
    v_add_u32 v8, %d, v8
    v_add_u32 v9, %d, v8
    v_lshl_add_u32 v5, v3, 9, v5
    v_lshl_add_u32 v5, v10, 6, v5
    v_lshrrev_b32 v10, 1, v0
    v_xor_b32 v10, v10, v0
    v_and_b32 v10, 1, v10
    v_mul_u32_u24 v10, 24, v10
    v_xor_b32 v5, v5, v10
    s_mul_i32 s84, s60, %d
    s_add_u32 s84, s84, %d
    v_add_u32 v5, s84, v5
    v_xor_b32 v6, 64, v5
    v_and_b32 v10, 31, v0
    s_lshl_b32 s72, s74, 12
    v_bfe_u32 v16, v10, 1, 3
    v_xor_b32 v16, v16, v3
    v_lshlrev_b32 v16, 4, v16
    v_lshl_add_u32 v16, v10, 7, v16
    v_add_u32 v16, s72, v16
    v_xor_b32 v17, 32, v16
    v_xor_b32 v18, 64, v16
    v_xor_b32 v19, 0x60, v16
    v_lshlrev_b32 v10, 1, v10
    v_lshl_add_u32 v10, v3, 20, v10
    """ % (nB * 2048, L_RING, 2 * 24576, W2_REGION, L_W2))
    for seg in range(3):
        for q in range(1, 4):
            a("v_mov_b32 %s, 0" % vr(112 + 4 * seg + q))
    for q in range(4):
        a("v_mov_b32 %s, v30" % vr(124 + q))
    a("""
    s_lshl1_add_u32 s72, s62, s74
    s_lshl1_add_u32 s73, s61, s75
    s_lshl_b32 s76, s73, 7
    s_add_u32 s76, s76, s72
    s_lshl_b32 s77, s76, 11
    s_lshl4_add_u32 s76, s72, s73
    s_lshl_b32 s76, s76, 11
    s_add_u32 s76, s76, %d
    s_add_u32 s77, s77, %d
    s_add_u32 s81, s69, s75
    s_lshl_b32 s78, s81, 7
    s_add_u32 s78, s78, s72
    s_lshl_b32 s78, s78, 10
    s_add_u32 s78, s78, %d
    s_lshl_b32 s79, s61, 6
    s_add_u32 s79, s79, s62
    s_lshl_b32 s79, s79, 4
    s_add_u32 s79, s79, %d
    s_lshl_b32 s80, s62, 6
    s_add_u32 s80, s80, s61
    s_lshl2_add_u32 s80, s80, s60
    s_lshl_b32 s80, s80, 2
    s_add_u32 s80, s80, %d
    s_mul_i32 s72, s61, 43
    s_add_u32 s72, s72, 43
    s_lshr_b32 s72, s72, 3
    s_add_u32 s73, s81, 4
    s_add_u32 s88, s78, %d
    s_cmp_lt_u32 s73, s72
    s_cselect_b32 s88, s88, 0x40000000
    s_lshl_b32 s81, s81, 6
    """ % (WS_QO, WS_KV, WS_HF, WS_FLAGQ, WS_FLAGH, 8 * 65536))

    def issue_chunk(c):
        for m in range(6):
            if c < 8:
                p = 6 * c + m
                a("s_add_u32 m0, s87, %d" % ((c & 3) * 24576 + m * 4096))
                if p < 32:
                    a("s_add_u32 s72, s85, %d" % (p * 16 * 3072))
                else:
                    a("s_add_u32 s72, s86, %d" % ((p - 32) * 32 * 3072))
                dma(13, SWQ, "s72", 0, ("w", c))
            else:
                blk, seg = divmod(m, 3)
                a("s_add_u32 m0, s81, %d" % ((c & 3) * 24576 + seg * 2048 + blk * 1024))
                a("s_add_u32 s72, s80, %d" % (((c - 8) * 64 + blk * 8) * 2752 + seg * 128))
                dma(12, SW1, "s72", 0, ("w", c))

    def layernorm(acts):
        def act(p):
            for f in acts.get(p, ()):
                f()
        a("v_mov_b32 v3, 0xdddddddd")
        for j in range(8):
            if cfg.bst == 3 and j == 0:
                stamp(3, True)
            vm.wait(("x", j))
            if cfg.bst == 3 and j in (0, 3, 7):
                stamp({0: 4, 3: 5, 7: 6}[j], True)
            act(j)
            for q in range(4):
                x = RAW + j * 4 + q
                a("v_dot2c_f32_bf16 v24, v30, %s" % vr(x))
                a("v_dot2c_f32_bf16 v25, %s, %s" % (vr(x), vr(x)))
        act(8)
        stamp(1)
        for ctl in ("quad_perm:[1,0,3,2]", "quad_perm:[2,3,0,1]", "row_half_mirror"):
            for r in (24, 25):
                a("v_add_f32_dpp %s, %s, %s %s row_mask:0xf bank_mask:0xf" % (vr(r), vr(r), vr(r), ctl))
        a("""
        v_mul_f32 v24, 0x3b000000, v24
        v_mul_f32 v25, 0x3b000000, v25
        v_fma_f32 v25, -v24, v24, v25
        v_max_f32 v25, 0, v25
        v_cvt_pk_bf16_f32 v24, v24, v25
        v_and_b32 v25, s89, v24
        v_add_f32 v25, 0x3727c5ac, v25
        v_cvt_pk_bf16_f32 v25, v25, v25
        v_and_b32 v25, s89, v25
        v_sqrt_f32 v25, v25
        v_lshlrev_b32 v24, 16, v24
        v_cvt_pk_bf16_f32 v25, v25, v25
        v_and_b32 v25, s89, v25
        v_rcp_f32 v26, v25
        v_mul_f32_e64 v28, -v24, v26
        """)
        for j in range(8):
            x = RAW + j * 4
            t = 192 + (j & 1) * 8
            for q in range(4):
                a("v_lshlrev_b32 %s, 16, %s" % (vr(t + 2 * q), vr(x + q)))
                a("v_and_b32 %s, s89, %s" % (vr(t + 2 * q + 1), vr(x + q)))
            for q in range(4):
                a("v_pk_fma_f32 %s, %s, v[26:27], v[28:29] op_sel_hi:[1,0,0]" % (vr(t + 2 * q, 2), vr(t + 2 * q, 2)))
            for q in range(4):
                a("v_cvt_pk_bf16_f32 %s, %s, %s" % (vr(x + q), vr(t + 2 * q), vr(t + 2 * q + 1)))
            if not cfg.defer:
                a("ds_write_b128 v15, %s offset:%d" % (vr(x, 4), j * 8192))
        if cfg.bst == 3:
            stamp(7, True)
        act(9)
        if cfg.defer:
            for j in range(8):
                a("ds_write_b128 v15, %s offset:%d" % (vr(RAW + j * 4, 4), j * 8192))
        act(10)
        stamp(2)
        if cfg.bst == 3:
            stamp(8, True)

    def pfq():
        a("; memory-side prefetch of Wqkv")
        bload(7, 1, 31, SWQ, "s100", 0, "", "pf")

    def pf1():
        a("; memory-side prefetch of W1")
        bload(7 if cfg.pf1_at <= 10 else 32, 1, 31, SW1, "s100", 0, "", "pf")

    acts = {}
    if cfg.pfq_at <= 10:
        acts.setdefault(cfg.pfq_at, []).append(pfq)
    for c, p in enumerate((cfg.w0_at, cfg.w1_at, cfg.w2_at)[:cfg.lead + 1]):
        acts.setdefault(p, []).append(lambda c=c: issue_chunk(c))
    if cfg.pf1_at <= 10:
        acts.setdefault(cfg.pf1_at, []).append(pf1)
    layernorm(acts)

    QR, SB, WF, FA, OA, KV, HB = 8, 24, 56, 64, 128, 192, 228
    NKV = 3

    def att_init_ops():
        ops = ["v_mov_b32 %s, 0" % vr(OA + 16 * t + i) for t in range(4) for i in range(9)]
        ops2 = ["v_and_b32 v7, 27, v0", "v_cmp_eq_u32 vcc, 16, v7", "v_mov_b32 v7, 0x3f803f80", "v_cndmask_b32 v7, 0, v7, vcc"]
        ops2 += ["v_mov_b32 %s, v7" % vr(KV + 12 * b + 4 + q) for b in range(NKV) for q in range(8)]
        return ops, ops2

    def kvload(j):
        b = j % NKV
        bload(KV + 12 * b, 4, 252, SWS, "s82", 0, "sc1", ("kv", j))
        a("s_mov_b64 exec, %s" % sr(sVM, 2))
        bload(KV + 12 * b + 4, 4, 253, SWS, "s82", 0, "sc1", ("kv", j))
        bload(KV + 12 * b + 8, 4, 254, SWS, "s82", 0, "sc1", ("kv", j))
        a("s_mov_b64 exec, -1")
        a("s_add_u32 s82, s82, 2048")

    def att_loads():
        a("s_and_b32 s72, s60, 1")
        a("s_lshl_b32 s73, s72, 10")
        a("v_add_u32 v252, s73, v1")
        a("s_lshr_b32 s73, 0x400, s72")
        a("v_add_u32 v253, s73, v2")
        a("s_mul_i32 s73, s72, 0x600")
        a("s_sub_u32 s73, 0x600, s73")
        a("v_add_u32 v254, s73, v2")
        bload(QR, 4, 1, SWS, "s92", 0, "sc1", "q")
        kvload(0)
        for t in range(1, 4):
            bload(QR + 4 * t, 4, 1, SWS, sr(92 + t), 0, "sc1", "q")
        kvload(1)

    def dump_addr():
        a("v_lshlrev_b32 v8, 2, v0")
        a("v_add_u32 v9, s99, v1")
        a("v_add_u32 v10, s99, v8")
        a("v_bfe_u32 v11, v0, 4, 1")
        a("v_lshl_add_u32 v11, v11, 10, v2")

    def dump(t):
        a("v_add_u32 v12, %s, v1" % sr(96 + t))
        a("v_add_u32 v13, %s, v8" % sr(96 + t))
        dsw("ds_write_b128", 12, OA + 16 * t, 4, t * 2304)
        dsw("ds_write_b128", 12, OA + 16 * t + 4, 4, t * 2304 + 1024)
        dsw("ds_write_b32", 13, OA + 16 * t + 8, 1, t * 2304 + 2048)

    deferred = []
    cfg_gap = {0: range(16), 1: (1, 10), 2: (1, 4, 10), 3: (4, 10)}[cfg.gap]

    def att_run(n, hooks):
        hooks.setdefault((n - 1, 0, 11), []).append(dump_addr)
        for t in range(3):
            hooks.setdefault((n - 1, t + 1, 12), []).append(lambda t=t: dump(t))
        vm.wait("q", ("kv", 0))
        mfma32(SB, KV, QR, None)
        for j in range(n):
            b = j % NKV
            for t in range(4):
                cur, oth = SB + 16 * (t & 1), SB + 16 * ((t + 1) & 1)
                for i in range(16):
                    a("v_exp_f32 %s, %s" % (vr(cur + i), vr(cur + i)))
                    if i in cfg_gap:
                        while deferred:
                            deferred.pop(0)()
                    if t == cfg.kvt and i == cfg.kvi and j + NKV - 1 < n and not (cfg.abl & 32 and j > 0):
                        kvload(j + NKV - 1)
                    if i == 1 and (j, t) != (0, 0):
                        smf(OA + 16 * ((t + 3) & 3), KV + 12 * (b if t else (j - 1) % NKV) + 8, oth + 8)
                    if i == 4:
                        if t < 3:
                            mfma32(oth, KV + 12 * b, QR + 4 * (t + 1), None)
                        elif j + 1 < n:
                            vm.wait(("kv", j + 1))
                            mfma32(oth, KV + 12 * ((j + 1) % NKV), QR, None)
                    if i == 10:
                        smf(OA + 16 * t, KV + 12 * b + 4, cur)
                    for h in hooks.get((j, t, i), ()):
                        h()
        smf(OA + 48, KV + 12 * ((n - 1) % NKV) + 8, SB + 16 + 8)

    ACC = (24, 40, 56)
    WB, NBUF, LA = 72, 6, cfg.look
    XF, PK, XA = 128, 96, 16
    init1, init2 = att_init_ops()

    def item(g):
        if g >= 96:
            return divmod(g - 96, 3)
        return (g >> 1, g & 1) if g < 64 else (g - 64, 2)

    def reads(g):
        ks, sel = item(g)
        c, m = divmod(g, 12)
        slot = c & 3
        if g < 64 and sel == 0:
            dsr("ds_read_b128", XF + 4 * ks, 4, XA + (ks & 3), (ks >> 2) * 8192, g)
        trread(WB + 4 * (g % NBUF), 8 + (slot >> 1), (slot & 1) * 24576 + m * 2048, 512, g)

    def pack(acc, pk):
        return ["v_cvt_pk_bf16_f32 %s, %s, %s" % (vr(pk + q), vr(acc + 2 * q), vr(acc + 2 * q + 1)) for q in range(8)]

    def st2(pk, va, base, delta, tag, imm=(0, 0), vb=None):
        def first():
            bstore(pk, 4, va, SWS, base, imm[0], "" if cfg.abl & 64 else "sc1", tag)

        def second():
            if delta:
                a("s_add_u32 s72, %s, %d" % (base, delta))
            bstore(pk + 4, 4, vb or va, SWS, "s72" if delta else base, imm[1], "" if cfg.abl & 64 else "sc1", tag)
        return [first, second]

    def relu2(acc):
        return (["v_max_f32 %s, 0, %s" % (vr(acc + i), vr(acc + i)) for i in range(16)]
                + ["v_mul_f32 %s, %s, %s" % (vr(acc + i), vr(acc + i), vr(acc + i)) for i in range(16)])

    def bias(seg):
        return lambda: (vm.wait("b1"), mfma32(ACC[seg], 112 + 4 * seg, 124, None))

    tagq = ["v_or_b32 %s, 1, %s" % (vr(PK + 8 + 4 * q), vr(PK + 8 + 4 * q)) for q in range(2)]
    sched = {
        66: pack(ACC[1], PK) + st2(PK, 12, "s77", 0, "st", (1024, 1536), 14)
            + ["v_mul_f32 %s, 0x%x, %s" % (vr(ACC[0] + i), QSCALE, vr(ACC[0] + i)) for i in range(16)]
            + pack(ACC[0], PK + 8) + tagq + st2(PK + 8, 1, "s76", 0, "st", (0, 1024)) + [bias(0), bias(1)],
        144: init1,
        180: init2,
    }
    shadow = []

    def run_shadow(budget):
        while shadow and budget > 0:
            op = shadow.pop(0)
            if isinstance(op, str):
                a(op)
                budget -= 1
            else:
                op()
                budget -= 3

    a("""
    s_lshl_b32 s85, s60, 14
    s_lshl_b32 s72, s67, 7
    s_add_u32 s85, s85, s72
    s_lshl_b32 s86, s60, 6
    s_lshl1_add_u32 s86, s66, s86
    s_lshl_b32 s86, s86, 10
    s_add_u32 s86, s86, %d
    s_lshl_b32 s87, s66, 10
    s_add_u32 s87, s87, %d
    """ % (WS_HF, WS_FLAGH))
    vm.wait(("w", 0))
    a("s_waitcnt lgkmcnt(0)")
    a("s_add_u32 %s, %s, 0x%x" % (sr(sTAG), sr(sTAG), EPOCH_INC))
    if cfg.bst == 3:
        stamp(9, True)
    a("s_barrier")
    stamp(3)
    if cfg.bst == 3:
        stamp(10, True)
    for g in range(LA):
        reads(g)
    for g in range(192):
        ks, sel = item(g)
        if g == 96:
            run_shadow(1000)
            stamp(4)
        if g == 98:
            shadow.extend(pack(ACC[2], PK) + [bias(2)] + st2(PK, 11, "s77", 0x20400, "st"))
            run_shadow(1000)
            stamp(5)
        lg.wait(g)
        x, w = XF + 4 * ks, WB + 4 * (g % NBUF)
        c = None if (g < 96 and ks == 0) else ACC[sel]
        if g < 96 and sel == 1:
            mfma32(ACC[sel], x, w, c)
        else:
            mfma32(ACC[sel], w, x, c)
        n = g + LA
        if n < 192:
            if n % 12 == 0:
                vm.wait(("w", n // 12))
                if n // 12 == cfg.flag_chunk:
                    vm.wait("st")
                a("s_barrier")
                if n // 12 == cfg.flag_chunk:
                    a("s_cmp_lg_u32 s60, 0")
                    a("s_cselect_b32 s79, 0x40000000, s79")
                    set_flag(7, "s79")
                    stamp(6)
            reads(n)
        if g == 40:
            for seg in range(3):
                a("buffer_load_ushort %s, v10, %s, s81 offen offset:%d" % (vr(112 + 4 * seg), srd(SB1), seg * 128))
                vm.push("b1")
        shadow.extend(sched.get(g, ()))
        run_shadow(3)
    run_shadow(1000)
    stamp(7)
    hepi = []
    for seg in range(3):
        pk = PK + 8 * (seg & 1)
        hepi.append(relu2(ACC[seg]) + pack(ACC[seg], pk) + (["s_add_u32 s78, s78, 0x40000"] if seg == 1 else [])
                    + st2(pk, 1, "s78" if seg < 2 else "s88", 0x10000, "hst"))
    a("s_barrier")
    stamp(8)
    a("s_setprio 2")
    for seg in range(cfg.hpre):
        shadow.extend(hepi[seg])
    run_shadow(1000)
    att_loads()
    for seg in range(cfg.hpre, 3):
        shadow.extend(hepi[seg])
    run_shadow(1000)
    stamp(9)


    def w2dma(i):
        if cfg.abl & 1:
            return
        a("s_add_u32 m0, s84, %d" % ((i & 3) * 2048))
        a("s_add_u32 s72, s85, %d" % (i * 65536))
        dma(4, SW2, "s72", 0, ("w2", i))
        a("s_add_u32 s72, s72, 7168")
        dma(4, SW2, "s72", 1024, ("w2", i))

    hreg = lambda i, tt: HB + 8 * (i % 3) + 4 * tt

    def hload(i):
        if cfg.abl & 1:
            return
        if i > 0:
            a("s_add_u32 s86, s86, 0x40000")
        for tt in range(2):
            bload(hreg(i, tt), 4, 1, SWS, "s86", tt * 1024, "sc1", ("h", i))

    def w2read(i, nt):
        if cfg.abl & 2:
            return
        vm.wait(("w2", i))
        trread(WF + 4 * nt, 5 + nt, (i & 3) * 2048, 1024, ("wf", i, nt))

    def fslot(f):
        i, m = divmod(f, 4)
        nt, tt = ((0, 0), (0, 1), (1, 1), (1, 0))[m]
        vm.wait(("h", i))
        lg.wait(("wf", i, nt))
        d = FA + 16 * (2 * tt + nt)
        if not cfg.abl & 4:
            mfma32(d, WF + 4 * nt, hreg(i, tt), None if i == 0 else d)
        if m == 1 and i + 1 < NS:
            deferred.append(lambda: w2read(i + 1, 0))
        if m == cfg.dmam and i + 4 < NS:
            deferred.append(lambda: w2dma(i + 4))
        if m == 3:
            if i + 1 < NS:
                deferred.append(lambda: w2read(i + 1, 1))
            if i + 3 < NS:
                deferred.append(lambda: hload(i + 3))

    def park(tt, nt):
        d = FA + 16 * (2 * tt + nt)
        for q in range(8):
            a("v_cvt_pk_bf16_f32 %s, %s, %s" % (vr(d + q), vr(d + 2 * q), vr(d + 2 * q + 1)))
        for q in range(2):
            dsw("ds_write_b128", 4, d + 4 * q, 4, tt * 32 * PART_STRIDE + nt * 64 + q * 32)

    def park_addr():
        a("v_and_b32 v4, 31, v0")
        a("v_mul_u32_u24 v4, %d, v4" % PART_STRIDE)
        a("v_lshrrev_b32 v5, 5, v0")
        a("v_lshl_add_u32 v4, v5, 4, v4")
        a("v_add_u32 v4, s84, v4")

    hooks = {}

    def hook(j, t, i, f):
        hooks.setdefault((j, t, i), []).append(f)

    n1 = cfg.n1
    hook(cfg.hflag >> 2, cfg.hflag & 3, 12, lambda: (vm.wait("hst"), set_flag(7, "s80"), stamp(1) if cfg.hst else None))
    hook(n1 - 2, 0, 8, lambda: flag_load(7, 2, "s87", "hf"))
    hook(n1 - 2, 3, 12, lambda: (vm.wait("hf"), stamp(2) if cfg.hst else None, check_flags("h", 7, 2, "s87"), stamp(3) if cfg.hst else None))
    for i in range(4):
        hook(n1 - 3 + (i >> 1), 1 + (i & 1), 7, lambda i=i: w2dma(i))
    for i in range(3):
        hook(n1 - 1, i, 7, lambda i=i: hload(i))
    hook(n1 - 1, 3, 7, lambda: (w2read(0, 0), w2read(0, 1)))
    pat = [int(ch) for ch in str(cfg.fpat)]
    slots = [(j, t, pos) for j in range(n1, nA) for t in range(4) for pos in ((13,), (7, 13))[pat[t] - 1]]
    for f in range(4 * NS):
        hook(*slots[f], lambda f=f: fslot(f))
    tl = slots[4 * NS - 1][0] * 4 + slots[4 * NS - 1][1] + 1
    assert tl + 3 < 4 * nA
    hook(tl >> 2, tl & 3, 6, park_addr)
    for n, (nt, tt) in enumerate(((0, 0), (0, 1), (1, 1), (1, 0))):
        hook((tl + n) >> 2, (tl + n) & 3, 7, lambda tt=tt, nt=nt: park(tt, nt))
    if cfg.hst:
        for n in range(4):
            hook(n1 + 4 * n, 0, 1, lambda n=n: stamp(4 + n))
    att_run(nA, hooks)
    vm.drain()
    a("s_branch L_att_done")

    a.label("L_loader")
    vm.items = ["pf"]
    lg.items = []
    if cfg.pfq_at == 11:
        pfq()
    a("""
    v_mul_u32_u24 v12, 2752, v4
    v_add_u32 v12, v12, v6
    v_bfe_u32 v6, v4, 1, 2
    v_lshlrev_b32 v6, 1, v6
    v_xor_b32 v6, v6, v5
    v_lshlrev_b32 v6, 4, v6
    v_lshl_add_u32 v4, v4, 10, v6
    v_min_u32 v5, 10, v0
    v_lshlrev_b32 v5, 7, v5
    v_min_u32 v6, 3, v0
    v_lshlrev_b32 v6, 7, v6
    s_lshr_b32 s79, s64, 1
    s_lshl_b32 s79, s79, 10
    s_add_u32 s79, s79, %d
    s_and_b32 s73, s60, 3
    s_lshl_b32 s72, s69, 6
    s_mul_i32 s80, s73, %d
    s_add_u32 s80, s80, s72
    s_mul_i32 s81, s73, 6144
    s_add_u32 s81, s81, %d
    """ % (WS_FLAGQ, 16 * 2752, L_RING))

    if cfg.bst == 3:
        stamp(1, True)
    xloads()
    if cfg.bst == 3:
        stamp(2, True)
    if cfg.pfq_at == 12:
        pfq()
    layernorm({10: [pf1]} if cfg.pf1_at == 11 else {})
    issued = cfg.lead
    a("s_waitcnt lgkmcnt(0)")
    a("s_add_u32 %s, %s, 0x%x" % (sr(sTAG), sr(sTAG), EPOCH_INC))
    for c in range(16):
        vm.wait(("w", c))
        if cfg.bst == 2:
            stamp(c, True)
        if cfg.bst == 3 and c == 0:
            stamp(9, True)
        a("s_barrier")
        if cfg.bst == 1:
            stamp(c, True)
        if c in (0, 8, 12, 15):
            stamp({0: 3, 8: 4, 12: 5, 15: 6}[c])
        while issued < min(15, max(3, c + 2)):
            issued += 1
            issue_chunk(issued)
        if cfg.pf1_at == 12 + c:
            pf1()
        if c == 2:
            for op in init1:
                a(op)
        if c == 3:
            for op in init2:
                a(op)
        if c == cfg.qpoll:
            flag_load(7, 4, "s79", "qf")
    vm.wait("qf")
    check_flags("q", 7, 4, "s79")
    stamp(7)
    att_loads()
    a("s_barrier")
    stamp(8)
    a("s_setprio 1")

    def wo_dma(lo, hi):
        if cfg.abl & 8:
            return
        if lo == 0:
            a("; wo tile -> LDS [0, 64K), a few rows per score tile")
            a("s_and_b32 s78, s60, 3")
            a("s_lshl_b32 s76, s78, 17")
            a("s_lshl_b32 s73, s67, 7")
            a("s_add_u32 s76, s76, s73")
            a("s_lshl_b32 s78, s78, 14")
        for i in range(lo, hi):
            a("s_add_u32 m0, s78, %d" % (i * 1024))
            a("s_add_u32 s73, s76, %d" % (i * 8192))
            dma(4, SWO, "s73", 0, "wo")

    def pf_late():
        if cfg.abl & 16:
            return
        a("s_and_b32 s73, s60, 3")
        a("s_lshl2_add_u32 s73, s2, s73")
        a("s_mul_i32 s72, s73, 1408")
        a("s_lshl_b32 s73, s73, 9")
        bload(7, 1, 5, SW2, "s72", 0, "", "pf")
        bload(7, 1, 6, SWO, "s73", 0, "", "pf")

    bhooks = {(cfg.pfl >> 2, cfg.pfl & 3, 7): [pf_late]}
    for n, lo in enumerate(range(0, 16, cfg.won)):
        bhooks[((cfg.wol + n) >> 2, (cfg.wol + n) & 3, 8)] = [lambda lo=lo: wo_dma(lo, lo + cfg.won)]
    att_run(nB, bhooks)
    vm.drain()

    OW = OA + 48
    WOF, OFR, AC, G, Z, X, SR = 128, 24, 8, 64, 96, 104, 112
    a.label("L_att_done")
    stamp(10)
    a("s_setprio 0")
    a("s_and_b32 s73, s60, 1")
    a("s_lshl_b32 s73, s73, 9")
    a("s_sub_u32 s76, s95, s73")
    lg.drain()
    a("s_barrier")
    for src in range(3):
        d = SB + 10 * src
        dsr("ds_read_b128", d, 4, 9, src * 2304, src)
        dsr("ds_read_b128", d + 4, 4, 9, src * 2304 + 1024, src)
        dsr("ds_read_b32", d + 8, 1, 10, src * 2304 + 2048, src)
    for src in range(3):
        lg.wait(src)
        for i in range(0, 8, 2):
            a("v_pk_add_f32 %s, %s, %s" % (vr(OW + i, 2), vr(OW + i, 2), vr(SB + 10 * src + i, 2)))
        a("v_add_f32 %s, %s, %s" % (vr(OW + 8), vr(OW + 8), vr(SB + 10 * src + 8)))
    a("v_pk_mul_f32 v[12:13], %s, 0 op_sel_hi:[1,0]" % vr(OW, 2))
    for i in range(2, 8, 2):
        a("v_pk_fma_f32 v[12:13], %s, 0, v[12:13] op_sel_hi:[1,0,1]" % vr(OW + i, 2))
    a("""
    v_add_f32 v12, v12, %s
    v_add_f32 v12, v12, v13
    v_cmp_nle_f32 vcc, 0x30800000, v12
    s_mov_b64 s[72:73], vcc
    v_cmp_nge_f32 vcc, 0x5d800000, v12
    s_or_b64 s[72:73], s[72:73], vcc
    """ % vr(OW + 8))
    a("s_branch L_slow" if cfg.force_slow else "s_cbranch_scc1 L_slow")
    a.label("L_norm")
    a("v_rcp_f32 v12, %s" % vr(OW + 8))
    for i in range(0, 8, 2):
        a("v_pk_mul_f32 %s, %s, v[12:13] op_sel_hi:[1,0]" % (vr(OW + i, 2), vr(OW + i, 2)))
    for q in range(4):
        a("v_cvt_pk_bf16_f32 %s, %s, %s" % (vr(16 + q), vr(OW + 2 * q), vr(OW + 2 * q + 1)))
    a("v_and_b32 v16, -2, v16")
    bstore(16, 4, 11, SWS, "s76", 0, "sc1", "ost")
    stamp(11)
    a("""
    s_and_b32 s74, s60, 3
    s_lshr_b32 s75, s60, 2
    v_lshrrev_b32 v3, 3, v0
    v_and_b32 v7, 7, v0
    v_lshlrev_b32 v7, 4, v7
    v_lshl_add_u32 v2, v3, 10, v7
    s_lshl3_add_u32 s78, s66, s60
    s_lshl_b32 s78, s78, 13
    s_lshl_b32 s79, s67, 7
    s_add_u32 s78, s78, s79
    """)
    bload(60, 4, 7, SB2, "s79", 0, "", "xb")
    bload(56, 4, 2, SX, "s78", 0, "", "xb")
    a("""
    v_mul_u32_u24 v4, %d, v3
    s_mul_i32 s72, s60, %d
    s_add_u32 s72, s72, %d
    v_add3_u32 v4, v4, v7, s72
    """ % (PART_STRIDE, 8 * PART_STRIDE, L_W2))
    for j in range(4):
        dsr("ds_read_b128", G + 4 * j, 4, 4, j * W2_REGION, "g")
    a("""
    v_bfe_u32 v4, v0, 2, 2
    v_bfe_u32 v5, v0, 4, 1
    v_lshl_add_u32 v4, v5, 2, v4
    v_lshrrev_b32 v5, 1, v4
    v_lshlrev_b32 v92, 7, v4
    v_lshl_add_u32 v92, v5, 5, v92
    v_lshrrev_b32 v6, 5, v0
    v_lshl_add_u32 v92, v6, 11, v92
    v_and_b32 v4, 3, v0
    v_lshl_add_u32 v92, v4, 3, v92
    s_lshl_b32 s72, s75, 15
    v_add_u32 v92, s72, v92
    v_xor_b32 v93, 32, v92
    v_xor_b32 v94, 64, v92
    v_xor_b32 v95, 0x60, v92
    s_barrier
    """)

    def oloads(first=0):
        for ks in range(first, 8):
            bload(OFR + 4 * ks, 4, 1, SWS, ("s76", "s77", "s80", "s81")[ks >> 1], (ks & 1) * 2048, "sc1", ("o", ks))

    fill = ("""
    s_lshl2_add_u32 s72, s66, s74
    s_lshr_b32 s76, s72, 1
    s_lshl1_add_u32 s76, s76, s75
    s_lshl_b32 s76, s76, 14
    s_and_b32 s72, s72, 1
    s_lshl_b32 s72, s72, 10
    s_add_u32 s76, s76, s72
    s_add_u32 s76, s76, %d
    s_add_u32 s77, s76, 0x1000
    s_add_u32 s80, s76, 0x2000
    s_add_u32 s81, s76, 0x3000
    v_mul_u32_u24 v3, %d, v3
    v_lshl_add_u32 v3, v7, 1, v3
    s_mul_i32 s72, s60, %d
    s_add_u32 s72, s72, %d
    v_add_u32 v3, s72, v3
    v_and_b32 v5, 15, v0
    v_mul_u32_u24 v5, %d, v5
    v_and_b32 v4, 48, v0
    s_mul_i32 s72, s60, %d
    s_add_u32 s72, s72, %d
    v_add3_u32 v5, v5, v4, s72
    s_mov_b32 s82, 0x3f80
    s_mov_b32 s83, 0x3f800000
    """ % (WS_QO, SUM_STRIDE, 8 * SUM_STRIDE, L_SUM, SUM_STRIDE, 16 * SUM_STRIDE, L_SUM)).strip().split("\n")
    fill += ["v_mov_b32 %s, 0" % vr(Z + i) for i in range(8)]
    fill.append(lambda: lg.wait("g"))
    for j in range(4):
        for q in range(4):
            fill.append("v_dot2c_f32_bf16 %s, s82, %s" % (vr(Z + 2 * q), vr(G + 4 * j + q)))
            fill.append("v_dot2c_f32_bf16 %s, s83, %s" % (vr(Z + 2 * q + 1), vr(G + 4 * j + q)))
    shadow.extend(fill)
    for ks in range(8):
        for ct in range(4):
            trread(WOF + (ks * 4 + ct) * 4, 92 + ct, ks * 4096, 1024, ("wo", ks))
            run_shadow(2)
        if ks == cfg.oat:
            vm.wait("ost")
            oloads()
    run_shadow(1000)
    stamp(12)
    vm.wait("xb")
    for q in range(4):
        a("v_dot2c_f32_bf16 %s, s82, %s" % (vr(Z + 2 * q), vr(60 + q)))
        a("v_dot2c_f32_bf16 %s, s83, %s" % (vr(Z + 2 * q + 1), vr(60 + q)))
    for q in range(4):
        a("v_lshlrev_b32 %s, 16, %s" % (vr(X + 2 * q), vr(56 + q)))
        a("v_and_b32 %s, s89, %s" % (vr(X + 1 + 2 * q), vr(56 + q)))
    for i in range(8):
        a("v_mul_f32 %s, 0x%x, %s" % (vr(G + i), NLOG2E, vr(Z + i)))
    for i in range(8):
        a("v_exp_f32 %s, %s" % (vr(G + i), vr(G + i)))
    for i in range(8):
        a("v_add_f32 %s, 1.0, %s" % (vr(G + i), vr(G + i)))
    for i in range(8):
        a("v_rcp_f32 %s, %s" % (vr(G + i), vr(G + i)))
    for i in range(8):
        a("v_mul_f32 %s, %s, %s" % (vr(Z + i), vr(Z + i), vr(G + i)))
    a("s_mov_b32 s73, 0")
    lg.drain()
    for ks in range(8):
        a.label("L_wo_%d" % ks)
        vm.wait(("o", ks))
        a("v_and_b32 v6, 1, %s" % vr(OFR + 4 * ks))
        a("v_cmp_ne_u32 vcc, 0, v6")
        a("s_cbranch_vccnz L_oretry_%d" % ks)
        a.label("L_ogo_%d" % ks)
        for ct in range(4):
            d = AC + 4 * ct
            mfma16(d, WOF + (ks * 4 + ct) * 4, OFR + 4 * ks, None if ks == 0 else d)
    stamp(13)
    for ct in range(4):
        dsw("ds_write_b128", 5, AC + 4 * ct, 4, ct * 64)
    lg.drain()
    a("s_barrier")
    stamp(14)
    dsr("ds_read_b128", SR, 4, 3, 0, 0)
    dsr("ds_read_b128", SR + 8, 4, 3, SUM_SIZE, 0)
    dsr("ds_read_b128", SR + 4, 4, 3, 16, 1)
    dsr("ds_read_b128", SR + 12, 4, 3, SUM_SIZE + 16, 1)
    for h in range(2):
        lg.wait(h)
        for i in range(4 * h, 4 * h + 4, 2):
            a("v_pk_add_f32 %s, %s, %s" % (vr(SR + i, 2), vr(SR + i, 2), vr(SR + 8 + i, 2)))
        for i in range(4 * h, 4 * h + 4, 2):
            a("v_pk_fma_f32 %s, %s, %s, %s" % (vr(SR + i, 2), vr(SR + i, 2), vr(Z + i, 2), vr(X + i, 2)))
        for q in range(2 * h, 2 * h + 2):
            a("v_cvt_pk_bf16_f32 %s, %s, %s" % (vr(G + q), vr(SR + 2 * q), vr(SR + 2 * q + 1)))
    bstore(G, 4, 2, SOUT, "s78", 0, ("", "sc1", "nt", "sc0 sc1", "sc0 sc1 nt")[cfg.omod])
    a("s_or_b32 s72, s2, s60")
    a("s_cmp_lg_u32 s72, 0")
    a("s_cbranch_scc1 L_noepoch")
    set_flag(7, "0")
    a.label("L_noepoch")
    if cfg.stamps:
        a("s_waitcnt vmcnt(0)")
        stamp(15)
        if cfg.probe is not None:
            a("s_sub_u32 s72, %s, s4" % sr(sSTAMP + cfg.probe))
            if cfg.stamps == 2:
                a("s_lshr_b32 s72, s72, 3")
            else:
                a("s_lshl_b32 s72, s72, %d" % cfg.probesh)
            a("s_cmp_lg_u32 s2, %d" % cfg.probewg)
            a("s_cselect_b32 s72, 0, s72")
            a("s_cmp_lg_u32 s60, %d" % cfg.probew)
            a("s_cselect_b32 s72, 0, s72")
            a("s_memrealtime s[22:23]")
            a("s_waitcnt lgkmcnt(0)")
            a("s_mov_b32 s73, s22")
            a.label("L_probe")
            a("s_memrealtime s[22:23]")
            a("s_waitcnt lgkmcnt(0)")
            a("s_sub_u32 s22, s22, s73")
            a("s_cmp_lt_u32 s22, s72")
            a("s_cbranch_scc1 L_probe")
        a("s_lshl3_add_u32 s72, s2, s60")
        a("s_lshl_b32 s72, s72, 6")
        a("s_add_u32 s72, s72, %d" % WS_STAMP)
        for i in range(16):
            a("v_mov_b32 %s, %s" % (vr(80 + i), sr(sSTAMP + i)))
        a("s_mov_b64 exec, 1")
        for i in range(4):
            bstore(80 + 4 * i, 4, 1, SWS, "s72", 16 * i)
    a.label("L_end")
    a("s_endpgm")

    for ks in range(8):
        a.label("L_oretry_%d" % ks)
        a("s_add_u32 s73, s73, 1")
        a("s_cmp_ge_u32 s73, %d" % SPIN_MAX)
        a("s_cbranch_scc1 L_ogo_%d" % ks)
        a("s_waitcnt vmcnt(0)")
        oloads(ks)
        a("s_branch L_wo_%d" % ks)

    for tag, vt, lanes, soff in stubs:
        a.label("L_poll_" + tag)
        a("s_mov_b32 s73, 0")
        a.label("L_poll2_" + tag)
        a("s_sleep %d" % cfg.sleep)
        flag_load(vt, lanes, soff, None)
        a("s_add_u32 s73, s73, 1")
        a("s_waitcnt vmcnt(0)")
        a("s_cmp_ge_u32 s73, %d" % SPIN_MAX)
        a("s_cbranch_scc1 L_polled_" + tag)
        a("v_cmp_ne_u32 vcc, %s, %s" % (sr(sTAG), vr(vt)))
        a("s_cbranch_vccnz L_poll2_" + tag)
        a("s_branch L_polled_" + tag)

    a.label("L_slow")
    CN = SB + 16
    a("s_waitcnt vmcnt(0)")
    a("v_mov_b32 v13, 0xff800000")
    a("s_mov_b32 s82, s83")
    a("s_mov_b32 s81, 64")
    a.label("L_slow1")
    bload(KV, 4, 252, SWS, "s82", 0, "sc1")
    a("s_add_u32 s82, s82, 2048")
    a("s_waitcnt vmcnt(0)")
    mfma32(SB, KV, QR + 12, None)
    for i in range(0, 16, 2):
        a("v_max3_f32 v13, v13, %s, %s" % (vr(SB + i), vr(SB + i + 1)))
    a("s_sub_u32 s81, s81, 1")
    a("s_cmp_lg_u32 s81, 0")
    a("s_cbranch_scc1 L_slow1")
    a("v_mov_b32 v14, v13")
    a("v_permlane32_swap_b32 v14, v13")
    a("v_max_f32 v13, v14, v13")
    for i in range(16):
        a("v_sub_f32 %s, 0, v13" % vr(CN + i))
        a("v_mov_b32 %s, 0" % vr(OW + i))
    a("s_mov_b32 s82, s83")
    a("s_mov_b32 s81, 64")
    a.label("L_slow2")
    kvload(0)
    a("s_waitcnt vmcnt(0)")
    mfma32(SB, KV, QR + 12, CN)
    for i in range(16):
        a("v_exp_f32 %s, %s" % (vr(SB + i), vr(SB + i)))
    smf(OW, KV + 4, SB)
    smf(OW, KV + 8, SB + 8)
    a("s_sub_u32 s81, s81, 1")
    a("s_cmp_lg_u32 s81, 0")
    a("s_cbranch_scc1 L_slow2")
    a("s_branch L_norm")
    a.label("L_code_end")
    a("s_endpgm")

    added = a.fix()
    return a.text(), added


HEADER = """; Kernarg layout for this problem (88 bytes, ptrs only, base s[0:1]):
; @launch grid=(256,1,1) block=(512,1,1) lds=163840
.amdgcn_target "amdgcn-amd-amdhsa--gfx950"
.text
.globl {k}
.p2align 8
.type {k},@function
{k}:
"""

FOOTER = """.section .rodata,"a"
.p2align 6
.amdhsa_kernel {k}
  .amdhsa_next_free_vgpr 256
  .amdhsa_next_free_sgpr 102
  .amdhsa_accum_offset 256
  .amdhsa_group_segment_fixed_size 0
  .amdhsa_kernarg_size 88
  .amdhsa_user_sgpr_count 2
  .amdhsa_user_sgpr_kernarg_segment_ptr 1
  .amdhsa_system_sgpr_workgroup_id_x 1
.end_amdhsa_kernel
"""


def build(**kw):
    cfg = Cfg()
    for k, v in kw.items():
        setattr(cfg, k, v)
    body, added = gen(cfg)
    return HEADER.format(k=KERNEL) + body + FOOTER.format(k=KERNEL), added


if __name__ == "__main__":
    out = sys.argv[1] if len(sys.argv) > 1 else "cdna_kernels/%s.s" % NAME
    kw = {}
    for arg in sys.argv[2:]:
        k, v = arg.split("=")
        kw[k] = int(v)
    text, added = build(**kw)
    open(out, "w").write(text)
    print("wrote", out, "lines", text.count("\n"), "nops added", added)
```

```python
import sys
import os
sys.path.insert(0, os.path.dirname(os.path.abspath(__file__)))
from asmlib import Asm, vr, sr

NAME = "recurrent_scan__softmax_full_mha__dense_activation_squared_relu__prompt"
KERNEL = NAME + "_kernel"

WS_FLAGQ = 0x1200
WS_FLAGH = 0x8000
WS_STAMP = 0x10000
WS_QO = 0x100000
WS_KV = 0x300000
WS_HF = 0x700000
WS_END = WS_HF + 86 * 65536
EPOCH_INC = 0x9E3779B9
SPIN_MAX = 1 << 18

L_RING = 65536
L_OPART = 65536
L_W2 = L_OPART + 55296
W2_REGION = 10240
PART_STRIDE = 144
SUM_STRIDE = 272
SUM_SIZE = 64 * SUM_STRIDE
L_SUM = L_OPART

SX, SWQ, SWO, SW1, SB1, SW2, SB2, SOUT, SWS = 24, 28, 32, 36, 40, 44, 48, 52, 56
sW, sCG, sTB, sRW, sP, sQB, sTBF, sCB, sTAG, sCT0 = 60, 61, 62, 63, 64, 65, 66, 67, 68, 69
sVM = 70
sSTAMP = 4

QSCALE = 0x3EB8AA3B
NLOG2E = 0xBFB8AA3B
NS = 22


class Cfg:
    abl = 0
    bst = 0
    n1 = 8
    nA = 22
    gap = 1
    kvt = 0
    kvi = 4
    dmam = 2
    fpat = 2221
    pf1_at = 10
    w2_at = 10
    pfl = 5
    wol = 10
    won = 1
    stamps = 0
    force_slow = 0
    flag_chunk = 11
    lead = 2
    defer = 1
    look = 5
    pfq_at = 8
    qpoll = 14
    sleep = 6
    w0_at = 7
    w1_at = 10
    hpre = 0
    hflag = 7
    probe = None
    omod = 1
    oat = 4
    probewg = 100
    probew = 0
    probesh = 4
    hst = 0


def srd(s):
    return sr(s, 4)


class Queue:
    def __init__(self, a, name, maxn):
        self.a, self.name, self.maxn, self.items = a, name, maxn, []

    def push(self, tag):
        self.items.append(tag)

    def wait(self, *tags):
        last = max((i for i, t in enumerate(self.items) if t in tags), default=-1)
        if last < 0:
            return
        n = len(self.items) - 1 - last
        self.a("s_waitcnt %s(%d)" % (self.name, min(n, self.maxn)))
        self.items = self.items[last + 1:]

    def drain(self):
        self.a("s_waitcnt %s(0)" % self.name)
        self.items = []


def gen(cfg):
    a = Asm()
    nA = cfg.nA
    nB = 32 - nA
    vm = Queue(a, "vmcnt", 63)
    lg = Queue(a, "lgkmcnt", 15)

    def stamp(i, force=False):
        if cfg.bst and not force and i != 0:
            return
        if cfg.stamps and (cfg.probe is None or i in (0, cfg.probe)):
            a("%s s[22:23]" % ("s_memtime" if cfg.stamps == 2 else "s_memrealtime"))
            a("s_waitcnt lgkmcnt(0)")
            a("s_mov_b32 %s, s22" % sr(sSTAMP + i))

    def mfma32(d, x, y, c):
        a("v_mfma_f32_32x32x16_bf16 %s, %s, %s, %s" % (vr(d, 16), vr(x, 4), vr(y, 4), "0" if c is None else vr(c, 16)))

    def mfma16(d, x, y, c):
        a("v_mfma_f32_16x16x32_bf16 %s, %s, %s, %s" % (vr(d, 4), vr(x, 4), vr(y, 4), "0" if c is None else vr(c, 4)))

    def smf(d, x, y):
        a("v_smfmac_f32_32x32x32_bf16 %s, %s, %s, v3" % (vr(d, 16), vr(x, 4), vr(y, 8)))

    def bload(d, n, va, s, so, off=0, mod="", tag=None):
        op = {1: "dword", 2: "dwordx2", 4: "dwordx4"}[n]
        a("buffer_load_%s %s, %s, %s, %s offen offset:%d %s" % (op, vr(d, n), vr(va), srd(s), so, off, mod))
        vm.push(tag)

    def bstore(d, n, va, s, so, off=0, mod="", tag=None):
        op = {1: "dword", 2: "dwordx2", 4: "dwordx4"}[n]
        a("buffer_store_%s %s, %s, %s, %s offen offset:%d %s" % (op, vr(d, n), vr(va), srd(s), so, off, mod))
        vm.push(tag)

    def dma(va, s, so, off=0, tag=None):
        a("buffer_load_dwordx4 %s, %s, %s offen offset:%d lds" % (vr(va), srd(s), so, off))
        vm.push(tag)

    def dsr(op, d, n, va, off, tag=None):
        a("%s %s, %s offset:%d" % (op, vr(d, n), vr(va), off))
        lg.push(tag)

    def dsw(op, va, d, n, off, tag=None):
        a("%s %s, %s offset:%d" % (op, vr(va), vr(d, n), off))
        lg.push(tag)

    def trread(d, va, off, second, tag=None):
        dsr("ds_read_b64_tr_b16", d, 2, va, off, tag)
        dsr("ds_read_b64_tr_b16", d + 2, 2, va, off + second, tag)

    def set_flag(vt, soff):
        a("v_mov_b32 %s, %s" % (vr(vt), sr(sTAG)))
        a("s_mov_b64 exec, 1")
        bstore(vt, 1, 1, SWS, soff, 0, "sc0 sc1")
        a("s_mov_b64 exec, -1")

    stubs = []

    def check_flags(tag, vt, lanes, soff):
        a("v_cmp_ne_u32 vcc, %s, %s" % (sr(sTAG), vr(vt)))
        a("s_cbranch_vccnz L_poll_" + tag)
        a.label("L_polled_" + tag)
        stubs.append((tag, vt, lanes, soff))

    def flag_load(vt, shift, soff, tag):
        a("v_and_b32 %s, 31, v0" % vr(vt))
        a("v_lshlrev_b32 %s, %d, %s" % (vr(vt), shift, vr(vt)))
        bload(vt, 1, vt, SWS, soff, 0, "sc0 sc1", tag)

    sizes = {SX: 2048 * 1024, SWQ: 512 * 3072, SWS: WS_END, SW1: 512 * 2752, SB1: 2752,
             SWO: 512 * 1024, SW2: 1376 * 1024, SB2: 1024, SOUT: 2048 * 1024}
    RAW = 128

    def xloads():
        for j in range(8):
            bload(RAW + j * 4, 4, 14, SX, "s101", j * 128, "", ("x", j))

    stamp(0)
    a("""
    s_load_dwordx2 s[24:25], s[0:1], 0
    s_getpc_b64 s[72:73]
    L_pc:
    s_cmpk_ge_u32 s2, 256
    s_cbranch_scc1 L_end
    s_lshr_b32 s74, s2, 3
    s_lshl_b32 s74, s74, 11
    v_lshrrev_b32 v8, 5, v0
    v_lshl_add_u32 v8, v8, 7, s74
    v_min_u32 v8, L_code_end-L_pc, v8
    v_mov_b32 v9, 0
    v_lshl_add_u64 v[8:9], v[8:9], 0, s[72:73]
    global_load_dword v7, v[8:9], off
    s_lshl_b32 s72, s2, 4
    s_and_b32 s72, s72, 0x180
    v_add_u32 v4, s72, v0
    v_bfe_u32 v4, v4, 3, 6
    v_and_b32 v5, 7, v0
    v_lshlrev_b32 v14, 10, v4
    v_lshl_add_u32 v14, v5, 4, v14
    s_lshr_b32 s67, s2, 5
    s_and_b32 s73, s2, 6
    s_lshl2_add_u32 s62, s73, s67
    s_lshl_b32 s101, s62, 16
    s_mov_b32 s26, %d
    s_mov_b32 s27, 0x20000
    v_bfe_u32 v24, v4, 1, 3
    v_xor_b32 v24, v24, v5
    v_lshlrev_b32 v15, 7, v4
    v_lshl_add_u32 v15, v24, 4, v15
    v_readfirstlane_b32 s60, v0
    v_and_b32 v0, 63, v0
    v_mov_b32 v24, 0
    v_mov_b32 v25, 0
    s_lshr_b32 s60, s60, 6
    s_cmp_ge_u32 s60, 4
    s_waitcnt lgkmcnt(0)
    """ % sizes[SX])
    vm.push("pf")
    if cfg.bst == 3:
        stamp(1, True)
    xloads()
    if cfg.bst == 3:
        stamp(2, True)
    if cfg.stamps:
        for i in range(3 if cfg.bst == 3 else 1, 16):
            a("s_mov_b32 %s, s4" % sr(sSTAMP + i))
    a("s_cbranch_scc1 L_ln")

    def setup1():
        for s, off in ((SWQ, 8), (SWS, 80), (SW1, 32), (SB1, 40), (SWO, 16), (SW2, 48), (SB2, 56), (SOUT, 64)):
            a("s_load_dwordx2 %s, s[0:1], %d" % (sr(s, 2), off))
        a("""
        s_mov_b32 s30, %d
        s_mov_b32 s31, 0x20000
        s_bfe_u32 s72, s2, 0x20003
        s_and_b32 s73, s2, 1
        s_lshl2_add_u32 s61, s73, s72
        s_and_b32 s74, s60, 1
        s_bfe_u32 s75, s60, 0x10001
        s_lshl_b32 s72, s61, 7
        s_mul_i32 s85, s74, %d
        s_add_u32 s85, s85, s72
        s_mul_i32 s86, s75, %d
        s_add_u32 s86, s86, s85
        s_add_u32 s86, s86, 1024
        s_lshl_b32 s73, s75, 11
        s_add_u32 s85, s85, s73
        s_and_b32 s87, s60, 3
        s_lshl_b32 s87, s87, 10
        s_add_u32 s87, s87, %d
        v_lshrrev_b32 v4, 3, v0
        v_bfe_u32 v6, v4, 1, 1
        v_lshlrev_b32 v6, 2, v6
        v_xor_b32 v6, v6, v5
        v_lshlrev_b32 v6, 4, v6
        v_mul_u32_u24 v13, 3072, v4
        v_add_u32 v13, v13, v6
        s_waitcnt lgkmcnt(0)
        """ % (sizes[SWQ], 8 * 3072, 16 * 3072, L_RING))

    def setup2():
        a("s_load_dword %s, %s, 0" % (sr(sTAG), sr(SWS, 2)))
        for s in (SW1, SWS, SB1, SWO, SW2, SB2, SOUT):
            a("s_mov_b32 %s, %d" % (sr(s + 2), sizes[s]))
            a("s_mov_b32 %s, 0x20000" % sr(s + 3))
        a("""
        s_and_b32 s73, s60, 3
        s_lshl2_add_u32 s100, s2, s73
        s_mul_i32 s100, s100, 1536
        v_min_u32 v31, 11, v0
        v_lshlrev_b32 v31, 7, v31
        s_bfe_u32 s72, s2, 0x20003
        s_and_b32 s73, s2, 7
        s_lshl2_add_u32 s66, s73, s72
        s_and_b32 s72, s72, 1
        s_lshl1_add_u32 s64, s73, s72
        s_lshr_b32 s65, s2, 4
        s_mul_i32 s69, s61, 43
        s_lshr_b32 s69, s69, 3
        s_mov_b32 s70, 0xffff
        s_mov_b32 s71, 0xffff
        v_lshlrev_b32 v1, 4, v0
        v_and_b32 v2, 15, v0
        v_lshrrev_b32 v3, 5, v0
        v_lshl_add_u32 v2, v3, 4, v2
        v_lshlrev_b32 v2, 4, v2
        """)

    def setup3():
        a("; attention offsets: s82 = next K/V tile, s83 = head base, s92-s95 = Q tiles, s96-s99 = O partial slots")
        a("""
        s_and_b32 s74, s60, 1
        s_lshr_b32 s75, s60, 1
        s_lshl1_add_u32 s72, s64, s74
        s_lshl_b32 s83, s72, 17
        s_add_u32 s83, s83, %d
        s_and_b32 s73, s75, 1
        s_lshl_b32 s73, s73, 16
        s_add_u32 s82, s83, s73
        s_lshl_b32 s72, s65, 6
        s_add_u32 s72, s72, s64
        s_lshl1_add_u32 s72, s72, s74
        s_lshl_b32 s72, s72, 10
        s_add_u32 s72, s72, %d
        s_mul_i32 s84, s74, %d
        s_add_u32 s84, s84, %d
        """ % (WS_KV, WS_QO, 12 * 2304, L_OPART))
        for t in range(4):
            a("s_xor_b32 s73, s75, %d" % (t ^ 3))
            a("s_mul_i32 %s, s73, %d" % (sr(96 + t), 3 * 2304))
            a("s_lshl_b32 s73, s73, 15")
            a("s_add_u32 %s, s72, s73" % sr(92 + t))
            a("s_add_u32 %s, %s, s84" % (sr(96 + t), sr(96 + t)))

    setup1()
    setup2()
    setup3()
    a("""
    s_add_u32 s82, s82, %d
    v_and_b32 v8, 0x33, v0
    v_and_b32 v9, 4, v0
    v_lshl_or_b32 v8, v9, 1, v8
    v_and_b32 v9, 8, v0
    v_lshrrev_b32 v9, 1, v9
    v_or_b32 v8, v8, v9
    v_lshlrev_b32 v11, 4, v8
    v_bfe_u32 v9, v0, 4, 1
    v_mul_u32_u24 v12, 0x1fe00, v9
    v_add_u32 v12, v12, v2
    v_mul_u32_u24 v14, 0x1fa00, v9
    v_add_u32 v14, v14, v2
    v_lshl_add_u32 v4, v4, 10, v6
    v_bfe_u32 v10, v0, 2, 2
    v_lshlrev_b32 v5, 5, v9
    v_lshl_add_u32 v5, v10, 7, v5
    v_and_b32 v9, 3, v0
    v_lshl_add_u32 v5, v9, 3, v5
    v_lshrrev_b32 v10, 1, v10
    v_lshl_add_u32 v8, v3, 10, v5
    v_xor_b32 v9, s75, v10
    v_lshl_add_u32 v8, v9, 6, v8
    v_add_u32 v8, %d, v8
    v_add_u32 v9, %d, v8
    v_lshl_add_u32 v5, v3, 9, v5
    v_lshl_add_u32 v5, v10, 6, v5
    v_lshrrev_b32 v10, 1, v0
    v_xor_b32 v10, v10, v0
    v_and_b32 v10, 1, v10
    v_mul_u32_u24 v10, 24, v10
    v_xor_b32 v5, v5, v10
    s_mul_i32 s84, s60, %d
    s_add_u32 s84, s84, %d
    v_add_u32 v5, s84, v5
    v_xor_b32 v6, 64, v5
    v_and_b32 v10, 31, v0
    s_lshl_b32 s72, s74, 12
    v_bfe_u32 v16, v10, 1, 3
    v_xor_b32 v16, v16, v3
    v_lshlrev_b32 v16, 4, v16
    v_lshl_add_u32 v16, v10, 7, v16
    v_add_u32 v16, s72, v16
    v_xor_b32 v17, 32, v16
    v_xor_b32 v18, 64, v16
    v_xor_b32 v19, 0x60, v16
    v_lshlrev_b32 v10, 1, v10
    v_lshl_add_u32 v10, v3, 20, v10
    """ % (nB * 2048, L_RING, 2 * 24576, W2_REGION, L_W2))
    for seg in range(3):
        for q in range(1, 4):
            a("v_mov_b32 %s, 0" % vr(112 + 4 * seg + q))
    for q in range(4):
        a("v_mov_b32 %s, 0x3f803f80" % vr(124 + q))
    a("v_mov_b32 v3, 0xdddddddd")
    a("""
    s_lshl1_add_u32 s72, s62, s74
    s_lshl1_add_u32 s73, s61, s75
    s_lshl_b32 s76, s73, 7
    s_add_u32 s76, s76, s72
    s_lshl_b32 s77, s76, 11
    s_lshl4_add_u32 s76, s72, s73
    s_lshl_b32 s76, s76, 11
    s_add_u32 s76, s76, %d
    s_add_u32 s77, s77, %d
    s_add_u32 s81, s69, s75
    s_lshl_b32 s78, s81, 7
    s_add_u32 s78, s78, s72
    s_lshl_b32 s78, s78, 10
    s_add_u32 s78, s78, %d
    s_lshl_b32 s79, s61, 6
    s_add_u32 s79, s79, s62
    s_lshl_b32 s79, s79, 4
    s_add_u32 s79, s79, %d
    s_lshl_b32 s80, s62, 6
    s_add_u32 s80, s80, s61
    s_lshl2_add_u32 s80, s80, s60
    s_lshl_b32 s80, s80, 2
    s_add_u32 s80, s80, %d
    s_mul_i32 s72, s61, 43
    s_add_u32 s72, s72, 43
    s_lshr_b32 s72, s72, 3
    s_add_u32 s73, s81, 4
    s_add_u32 s88, s78, %d
    s_cmp_lt_u32 s73, s72
    s_cselect_b32 s88, s88, 0x40000000
    s_lshl_b32 s81, s81, 6
    """ % (WS_QO, WS_KV, WS_HF, WS_FLAGQ, WS_FLAGH, 8 * 65536))

    def issue_chunk(c):
        for m in range(6):
            if c < 8:
                p = 6 * c + m
                a("s_add_u32 m0, s87, %d" % ((c & 3) * 24576 + m * 4096))
                if p < 32:
                    a("s_add_u32 s72, s85, %d" % (p * 16 * 3072))
                else:
                    a("s_add_u32 s72, s86, %d" % ((p - 32) * 32 * 3072))
                dma(13, SWQ, "s72", 0, ("w", c))
            else:
                blk, seg = divmod(m, 3)
                a("s_add_u32 m0, s81, %d" % ((c & 3) * 24576 + seg * 2048 + blk * 1024))
                a("s_add_u32 s72, s80, %d" % (((c - 8) * 64 + blk * 8) * 2752 + seg * 128))
                dma(12, SW1, "s72", 0, ("w", c))

    def layernorm(acts):
        def act(p):
            if acts.get(p):
                assert p >= 7
                a("s_cmp_ge_u32 s60, 4")
                a("s_cbranch_scc1 L_ln_%d" % p)
                for f in acts[p]:
                    f()
                a.label("L_ln_%d" % p)
        a.label("L_ln")
        a("v_mov_b32 v30, 0x3f803f80")
        a("s_mov_b32 s89, 0xffff0000")
        for j in range(8):
            if cfg.bst == 3 and j == 0:
                stamp(3, True)
            vm.wait(("x", j))
            if cfg.bst == 3 and j in (0, 3, 7):
                stamp({0: 4, 3: 5, 7: 6}[j], True)
            act(j)
            for q in range(4):
                x = RAW + j * 4 + q
                a("v_dot2c_f32_bf16 v24, v30, %s" % vr(x))
                a("v_dot2c_f32_bf16 v25, %s, %s" % (vr(x), vr(x)))
        act(8)
        stamp(1)
        for ctl in ("quad_perm:[1,0,3,2]", "quad_perm:[2,3,0,1]", "row_half_mirror"):
            for r in (24, 25):
                a("v_add_f32_dpp %s, %s, %s %s row_mask:0xf bank_mask:0xf" % (vr(r), vr(r), vr(r), ctl))
        a("""
        v_mul_f32 v24, 0x3b000000, v24
        v_mul_f32 v25, 0x3b000000, v25
        v_fma_f32 v25, -v24, v24, v25
        v_max_f32 v25, 0, v25
        v_cvt_pk_bf16_f32 v24, v24, v25
        v_and_b32 v25, s89, v24
        v_add_f32 v25, 0x3727c5ac, v25
        v_cvt_pk_bf16_f32 v25, v25, v25
        v_and_b32 v25, s89, v25
        v_sqrt_f32 v25, v25
        v_lshlrev_b32 v24, 16, v24
        v_cvt_pk_bf16_f32 v25, v25, v25
        v_and_b32 v25, s89, v25
        v_rcp_f32 v26, v25
        v_mul_f32_e64 v28, -v24, v26
        """)
        for j in range(8):
            x = RAW + j * 4
            t = 192 + (j & 1) * 8
            for q in range(4):
                a("v_lshlrev_b32 %s, 16, %s" % (vr(t + 2 * q), vr(x + q)))
                a("v_and_b32 %s, s89, %s" % (vr(t + 2 * q + 1), vr(x + q)))
            for q in range(4):
                a("v_pk_fma_f32 %s, %s, v[26:27], v[28:29] op_sel_hi:[1,0,0]" % (vr(t + 2 * q, 2), vr(t + 2 * q, 2)))
            for q in range(4):
                a("v_cvt_pk_bf16_f32 %s, %s, %s" % (vr(x + q), vr(t + 2 * q), vr(t + 2 * q + 1)))
            if not cfg.defer:
                a("ds_write_b128 v15, %s offset:%d" % (vr(x, 4), j * 8192))
        if cfg.bst == 3:
            stamp(7, True)
        act(9)
        if cfg.defer:
            for j in range(8):
                a("ds_write_b128 v15, %s offset:%d" % (vr(RAW + j * 4, 4), j * 8192))
        act(10)
        stamp(2)
        if cfg.bst == 3:
            stamp(8, True)

    def pfq():
        a("; memory-side prefetch of Wqkv")
        bload(7, 1, 31, SWQ, "s100", 0, "", "pf")

    def pf1():
        a("; memory-side prefetch of W1")
        bload(7 if cfg.pf1_at <= 10 else 32, 1, 31, SW1, "s100", 0, "", "pf")

    acts = {}
    if cfg.pfq_at == 0:
        save = list(vm.items)
        pfq()
        vm.items = save
    elif cfg.pfq_at <= 10:
        acts.setdefault(cfg.pfq_at, []).append(pfq)
    for c, p in enumerate((cfg.w0_at, cfg.w1_at, cfg.w2_at)[:cfg.lead + 1]):
        acts.setdefault(p, []).append(lambda c=c: issue_chunk(c))
    if cfg.pf1_at <= 10:
        acts.setdefault(cfg.pf1_at, []).append(pf1)
    layernorm(acts)
    a("s_cmp_ge_u32 s60, 4")
    a("s_cbranch_scc1 L_loader")

    QR, SB, WF, FA, OA, KV, HB = 8, 24, 56, 64, 128, 192, 228
    NKV = 3

    def att_init_ops():
        ops = ["v_mov_b32 %s, 0" % vr(OA + 16 * t + i) for t in range(4) for i in range(9)]
        ops2 = ["v_and_b32 v7, 27, v0", "v_cmp_eq_u32 vcc, 16, v7", "v_mov_b32 v7, 0x3f803f80", "v_cndmask_b32 v7, 0, v7, vcc"]
        ops2 += ["v_mov_b32 %s, v7" % vr(KV + 12 * b + 4 + q) for b in range(NKV) for q in range(8)]
        return ops, ops2

    def kvload(j):
        b = j % NKV
        bload(KV + 12 * b, 4, 252, SWS, "s82", 0, "sc1", ("kv", j))
        a("s_mov_b64 exec, %s" % sr(sVM, 2))
        bload(KV + 12 * b + 4, 4, 253, SWS, "s82", 0, "sc1", ("kv", j))
        bload(KV + 12 * b + 8, 4, 254, SWS, "s82", 0, "sc1", ("kv", j))
        a("s_mov_b64 exec, -1")
        a("s_add_u32 s82, s82, 2048")

    def att_loads():
        a("s_and_b32 s72, s60, 1")
        a("s_lshl_b32 s73, s72, 10")
        a("v_add_u32 v252, s73, v1")
        a("s_lshr_b32 s73, 0x400, s72")
        a("v_add_u32 v253, s73, v2")
        a("s_mul_i32 s73, s72, 0x600")
        a("s_sub_u32 s73, 0x600, s73")
        a("v_add_u32 v254, s73, v2")
        bload(QR, 4, 1, SWS, "s92", 0, "sc1", "q")
        kvload(0)
        for t in range(1, 4):
            bload(QR + 4 * t, 4, 1, SWS, sr(92 + t), 0, "sc1", "q")
        kvload(1)

    def dump_addr():
        a("v_lshlrev_b32 v8, 2, v0")
        a("v_add_u32 v9, s99, v1")
        a("v_add_u32 v10, s99, v8")
        a("v_bfe_u32 v11, v0, 4, 1")
        a("v_lshl_add_u32 v11, v11, 10, v2")

    def dump(t):
        a("v_add_u32 v12, %s, v1" % sr(96 + t))
        a("v_add_u32 v13, %s, v8" % sr(96 + t))
        dsw("ds_write_b128", 12, OA + 16 * t, 4, t * 2304)
        dsw("ds_write_b128", 12, OA + 16 * t + 4, 4, t * 2304 + 1024)
        dsw("ds_write_b32", 13, OA + 16 * t + 8, 1, t * 2304 + 2048)

    deferred = []
    cfg_gap = {0: range(16), 1: (1, 10), 2: (1, 4, 10), 3: (4, 10)}[cfg.gap]

    def att_run(n, hooks):
        hooks.setdefault((n - 1, 0, 11), []).append(dump_addr)
        for t in range(3):
            hooks.setdefault((n - 1, t + 1, 12), []).append(lambda t=t: dump(t))
        vm.wait("q", ("kv", 0))
        mfma32(SB, KV, QR, None)
        for j in range(n):
            b = j % NKV
            for t in range(4):
                cur, oth = SB + 16 * (t & 1), SB + 16 * ((t + 1) & 1)
                for i in range(16):
                    a("v_exp_f32 %s, %s" % (vr(cur + i), vr(cur + i)))
                    if i in cfg_gap:
                        while deferred:
                            deferred.pop(0)()
                    if t == cfg.kvt and i == cfg.kvi and j + NKV - 1 < n and not (cfg.abl & 32 and j > 0):
                        kvload(j + NKV - 1)
                    if i == 1 and (j, t) != (0, 0):
                        smf(OA + 16 * ((t + 3) & 3), KV + 12 * (b if t else (j - 1) % NKV) + 8, oth + 8)
                    if i == 4:
                        if t < 3:
                            mfma32(oth, KV + 12 * b, QR + 4 * (t + 1), None)
                        elif j + 1 < n:
                            vm.wait(("kv", j + 1))
                            mfma32(oth, KV + 12 * ((j + 1) % NKV), QR, None)
                    if i == 10:
                        smf(OA + 16 * t, KV + 12 * b + 4, cur)
                    for h in hooks.get((j, t, i), ()):
                        h()
        smf(OA + 48, KV + 12 * ((n - 1) % NKV) + 8, SB + 16 + 8)

    ACC = (24, 40, 56)
    WB, NBUF, LA = 72, 6, cfg.look
    XF, PK, XA = 128, 96, 16
    init1, init2 = att_init_ops()

    def item(g):
        if g >= 96:
            return divmod(g - 96, 3)
        return (g >> 1, g & 1) if g < 64 else (g - 64, 2)

    def reads(g):
        ks, sel = item(g)
        c, m = divmod(g, 12)
        slot = c & 3
        if g < 64 and sel == 0:
            dsr("ds_read_b128", XF + 4 * ks, 4, XA + (ks & 3), (ks >> 2) * 8192, g)
        trread(WB + 4 * (g % NBUF), 8 + (slot >> 1), (slot & 1) * 24576 + m * 2048, 512, g)

    def pack(acc, pk):
        return ["v_cvt_pk_bf16_f32 %s, %s, %s" % (vr(pk + q), vr(acc + 2 * q), vr(acc + 2 * q + 1)) for q in range(8)]

    def st2(pk, va, base, delta, tag, imm=(0, 0), vb=None):
        def first():
            bstore(pk, 4, va, SWS, base, imm[0], "" if cfg.abl & 64 else "sc1", tag)

        def second():
            if delta:
                a("s_add_u32 s72, %s, %d" % (base, delta))
            bstore(pk + 4, 4, vb or va, SWS, "s72" if delta else base, imm[1], "" if cfg.abl & 64 else "sc1", tag)
        return [first, second]

    def relu2(acc):
        return (["v_max_f32 %s, 0, %s" % (vr(acc + i), vr(acc + i)) for i in range(16)]
                + ["v_mul_f32 %s, %s, %s" % (vr(acc + i), vr(acc + i), vr(acc + i)) for i in range(16)])

    def bias(seg):
        return lambda: (vm.wait("b1"), mfma32(ACC[seg], 112 + 4 * seg, 124, None))

    tagq = ["v_or_b32 %s, 1, %s" % (vr(PK + 8 + 4 * q), vr(PK + 8 + 4 * q)) for q in range(2)]
    sched = {
        66: pack(ACC[1], PK) + st2(PK, 12, "s77", 0, "st", (1024, 1536), 14)
            + ["v_mul_f32 %s, 0x%x, %s" % (vr(ACC[0] + i), QSCALE, vr(ACC[0] + i)) for i in range(16)]
            + pack(ACC[0], PK + 8) + tagq + st2(PK + 8, 1, "s76", 0, "st", (0, 1024)) + [bias(0), bias(1)],
        144: init1,
        180: init2,
    }
    shadow = []

    def run_shadow(budget):
        while shadow and budget > 0:
            op = shadow.pop(0)
            if isinstance(op, str):
                a(op)
                budget -= 1
            else:
                op()
                budget -= 3

    a("""
    s_lshl_b32 s85, s60, 14
    s_lshl_b32 s72, s67, 7
    s_add_u32 s85, s85, s72
    s_lshl_b32 s86, s60, 6
    s_lshl1_add_u32 s86, s66, s86
    s_lshl_b32 s86, s86, 10
    s_add_u32 s86, s86, %d
    s_lshl_b32 s87, s66, 10
    s_add_u32 s87, s87, %d
    """ % (WS_HF, WS_FLAGH))
    vm.wait(("w", 0))
    a("s_waitcnt lgkmcnt(0)")
    a("s_add_u32 %s, %s, 0x%x" % (sr(sTAG), sr(sTAG), EPOCH_INC))
    if cfg.bst == 3:
        stamp(9, True)
    a("s_barrier")
    stamp(3)
    if cfg.bst == 3:
        stamp(10, True)
    for g in range(LA):
        reads(g)
    for g in range(192):
        ks, sel = item(g)
        if g == 96:
            run_shadow(1000)
            stamp(4)
        if g == 98:
            shadow.extend(pack(ACC[2], PK) + [bias(2)] + st2(PK, 11, "s77", 0x20400, "st"))
            run_shadow(1000)
            stamp(5)
        lg.wait(g)
        x, w = XF + 4 * ks, WB + 4 * (g % NBUF)
        c = None if (g < 96 and ks == 0) else ACC[sel]
        if g < 96 and sel == 1:
            mfma32(ACC[sel], x, w, c)
        else:
            mfma32(ACC[sel], w, x, c)
        n = g + LA
        if n < 192:
            if n % 12 == 0:
                vm.wait(("w", n // 12))
                if n // 12 == cfg.flag_chunk:
                    vm.wait("st")
                a("s_barrier")
                if n // 12 == cfg.flag_chunk:
                    a("s_cmp_lg_u32 s60, 0")
                    a("s_cselect_b32 s79, 0x40000000, s79")
                    set_flag(7, "s79")
                    stamp(6)
            reads(n)
        if g == 40:
            for seg in range(3):
                a("buffer_load_ushort %s, v10, %s, s81 offen offset:%d" % (vr(112 + 4 * seg), srd(SB1), seg * 128))
                vm.push("b1")
        shadow.extend(sched.get(g, ()))
        run_shadow(3)
    run_shadow(1000)
    stamp(7)
    hepi = []
    for seg in range(3):
        pk = PK + 8 * (seg & 1)
        hepi.append(relu2(ACC[seg]) + pack(ACC[seg], pk) + (["s_add_u32 s78, s78, 0x40000"] if seg == 1 else [])
                    + st2(pk, 1, "s78" if seg < 2 else "s88", 0x10000, "hst"))
    a("s_barrier")
    stamp(8)
    a("s_setprio 2")
    for seg in range(cfg.hpre):
        shadow.extend(hepi[seg])
    run_shadow(1000)
    att_loads()
    for seg in range(cfg.hpre, 3):
        shadow.extend(hepi[seg])
    run_shadow(1000)
    stamp(9)


    def w2dma(i):
        if cfg.abl & 1:
            return
        a("s_add_u32 m0, s84, %d" % ((i & 3) * 2048))
        a("s_add_u32 s72, s85, %d" % (i * 65536))
        dma(4, SW2, "s72", 0, ("w2", i))
        a("s_add_u32 s72, s72, 7168")
        dma(4, SW2, "s72", 1024, ("w2", i))

    hreg = lambda i, tt: HB + 8 * (i % 3) + 4 * tt

    def hload(i):
        if cfg.abl & 1:
            return
        if i > 0:
            a("s_add_u32 s86, s86, 0x40000")
        for tt in range(2):
            bload(hreg(i, tt), 4, 1, SWS, "s86", tt * 1024, "sc1", ("h", i))

    def w2read(i, nt):
        if cfg.abl & 2:
            return
        vm.wait(("w2", i))
        trread(WF + 4 * nt, 5 + nt, (i & 3) * 2048, 1024, ("wf", i, nt))

    def fslot(f):
        i, m = divmod(f, 4)
        nt, tt = ((0, 0), (0, 1), (1, 1), (1, 0))[m]
        vm.wait(("h", i))
        lg.wait(("wf", i, nt))
        d = FA + 16 * (2 * tt + nt)
        if not cfg.abl & 4:
            mfma32(d, WF + 4 * nt, hreg(i, tt), None if i == 0 else d)
        if m == 1 and i + 1 < NS:
            deferred.append(lambda: w2read(i + 1, 0))
        if m == cfg.dmam and i + 4 < NS:
            deferred.append(lambda: w2dma(i + 4))
        if m == 3:
            if i + 1 < NS:
                deferred.append(lambda: w2read(i + 1, 1))
            if i + 3 < NS:
                deferred.append(lambda: hload(i + 3))

    def park(tt, nt):
        d = FA + 16 * (2 * tt + nt)
        for q in range(8):
            a("v_cvt_pk_bf16_f32 %s, %s, %s" % (vr(d + q), vr(d + 2 * q), vr(d + 2 * q + 1)))
        for q in range(2):
            dsw("ds_write_b128", 4, d + 4 * q, 4, tt * 32 * PART_STRIDE + nt * 64 + q * 32)

    def park_addr():
        a("v_and_b32 v4, 31, v0")
        a("v_mul_u32_u24 v4, %d, v4" % PART_STRIDE)
        a("v_lshrrev_b32 v5, 5, v0")
        a("v_lshl_add_u32 v4, v5, 4, v4")
        a("v_add_u32 v4, s84, v4")

    hooks = {}

    def hook(j, t, i, f):
        hooks.setdefault((j, t, i), []).append(f)

    n1 = cfg.n1
    hook(cfg.hflag >> 2, cfg.hflag & 3, 12, lambda: (vm.wait("hst"), set_flag(7, "s80"), stamp(1) if cfg.hst else None))
    hook(n1 - 2, 0, 8, lambda: flag_load(7, 2, "s87", "hf"))
    hook(n1 - 2, 3, 12, lambda: (vm.wait("hf"), stamp(2) if cfg.hst else None, check_flags("h", 7, 2, "s87"), stamp(3) if cfg.hst else None))
    for i in range(4):
        hook(n1 - 3 + (i >> 1), 1 + (i & 1), 7, lambda i=i: w2dma(i))
    for i in range(3):
        hook(n1 - 1, i, 7, lambda i=i: hload(i))
    hook(n1 - 1, 3, 7, lambda: (w2read(0, 0), w2read(0, 1)))
    pat = [int(ch) for ch in str(cfg.fpat)]
    slots = [(j, t, pos) for j in range(n1, nA) for t in range(4) for pos in ((13,), (7, 13))[pat[t] - 1]]
    for f in range(4 * NS):
        hook(*slots[f], lambda f=f: fslot(f))
    tl = slots[4 * NS - 1][0] * 4 + slots[4 * NS - 1][1] + 1
    assert tl + 3 < 4 * nA
    hook(tl >> 2, tl & 3, 6, park_addr)
    for n, (nt, tt) in enumerate(((0, 0), (0, 1), (1, 1), (1, 0))):
        hook((tl + n) >> 2, (tl + n) & 3, 7, lambda tt=tt, nt=nt: park(tt, nt))
    if cfg.hst:
        for n in range(4):
            hook(n1 + 4 * n, 0, 1, lambda n=n: stamp(4 + n))
    att_run(nA, hooks)
    vm.drain()
    a("s_branch L_att_done")

    a.label("L_loader")
    vm.items = []
    lg.items = []

    def b_setup():
        a("; waves 4-7: W1 and wo DMA offsets v12/v4, flagQ row s79")
        a("""
        v_mul_u32_u24 v12, 2752, v4
        v_add_u32 v12, v12, v6
        v_bfe_u32 v6, v4, 1, 2
        v_lshlrev_b32 v6, 1, v6
        v_xor_b32 v6, v6, v5
        v_lshlrev_b32 v6, 4, v6
        v_lshl_add_u32 v4, v4, 10, v6
        v_min_u32 v5, 10, v0
        v_lshlrev_b32 v5, 7, v5
        v_min_u32 v6, 3, v0
        v_lshlrev_b32 v6, 7, v6
        s_lshr_b32 s79, s64, 1
        s_lshl_b32 s79, s79, 10
        s_add_u32 s79, s79, %d
        s_and_b32 s73, s60, 3
        s_lshl_b32 s72, s69, 6
        s_mul_i32 s80, s73, %d
        s_add_u32 s80, s80, s72
        s_mul_i32 s81, s73, 6144
        s_add_u32 s81, s81, %d
        """ % (WS_FLAGQ, 16 * 2752, L_RING))

        a("v_mov_b32 v3, 0xdddddddd")
        a("s_waitcnt lgkmcnt(0)")
        a("s_add_u32 %s, %s, 0x%x" % (sr(sTAG), sr(sTAG), EPOCH_INC))

    issued = cfg.lead
    setup1()
    for c in range(16):
        vm.wait(("w", c))
        if cfg.bst == 2:
            stamp(c, True)
        if cfg.bst == 3 and c == 0:
            stamp(9, True)
        a("s_barrier")
        if cfg.bst == 1:
            stamp(c, True)
        if c in (0, 8, 12, 15):
            stamp({0: 3, 8: 4, 12: 5, 15: 6}[c])
        while issued < min(15, max(3, c + 2)):
            issued += 1
            issue_chunk(issued)
        if c == 1:
            setup2()
        if cfg.pf1_at == 12 + c:
            assert c >= 1
            pf1()
        if c == 2:
            setup3()
        if c == 3:
            b_setup()
        if c == 4:
            for op in init1:
                a(op)
        if c == 5:
            for op in init2:
                a(op)
        if c == cfg.qpoll:
            flag_load(7, 4, "s79", "qf")
    vm.wait("qf")
    check_flags("q", 7, 4, "s79")
    stamp(7)
    att_loads()
    a("s_barrier")
    stamp(8)
    a("s_setprio 1")

    def wo_dma(lo, hi):
        if cfg.abl & 8:
            return
        if lo == 0:
            a("; wo tile -> LDS [0, 64K), a few rows per score tile")
            a("s_and_b32 s78, s60, 3")
            a("s_lshl_b32 s76, s78, 17")
            a("s_lshl_b32 s73, s67, 7")
            a("s_add_u32 s76, s76, s73")
            a("s_lshl_b32 s78, s78, 14")
        for i in range(lo, hi):
            a("s_add_u32 m0, s78, %d" % (i * 1024))
            a("s_add_u32 s73, s76, %d" % (i * 8192))
            dma(4, SWO, "s73", 0, "wo")

    def pf_late():
        if cfg.abl & 16:
            return
        a("s_and_b32 s73, s60, 3")
        a("s_lshl2_add_u32 s73, s2, s73")
        a("s_mul_i32 s72, s73, 1408")
        a("s_lshl_b32 s73, s73, 9")
        bload(7, 1, 5, SW2, "s72", 0, "", "pf")
        bload(7, 1, 6, SWO, "s73", 0, "", "pf")

    bhooks = {(cfg.pfl >> 2, cfg.pfl & 3, 7): [pf_late]}
    for n, lo in enumerate(range(0, 16, cfg.won)):
        bhooks[((cfg.wol + n) >> 2, (cfg.wol + n) & 3, 8)] = [lambda lo=lo: wo_dma(lo, lo + cfg.won)]
    att_run(nB, bhooks)
    vm.drain()

    OW = OA + 48
    WOF, OFR, AC, G, Z, X, SR = 128, 24, 8, 64, 96, 104, 112
    a.label("L_att_done")
    stamp(10)
    a("s_setprio 0")
    a("s_and_b32 s73, s60, 1")
    a("s_lshl_b32 s73, s73, 9")
    a("s_sub_u32 s76, s95, s73")
    lg.drain()
    a("s_barrier")
    for src in range(3):
        d = SB + 10 * src
        dsr("ds_read_b128", d, 4, 9, src * 2304, src)
        dsr("ds_read_b128", d + 4, 4, 9, src * 2304 + 1024, src)
        dsr("ds_read_b32", d + 8, 1, 10, src * 2304 + 2048, src)
    for src in range(3):
        lg.wait(src)
        for i in range(0, 8, 2):
            a("v_pk_add_f32 %s, %s, %s" % (vr(OW + i, 2), vr(OW + i, 2), vr(SB + 10 * src + i, 2)))
        a("v_add_f32 %s, %s, %s" % (vr(OW + 8), vr(OW + 8), vr(SB + 10 * src + 8)))
    a("v_pk_mul_f32 v[12:13], %s, 0 op_sel_hi:[1,0]" % vr(OW, 2))
    for i in range(2, 8, 2):
        a("v_pk_fma_f32 v[12:13], %s, 0, v[12:13] op_sel_hi:[1,0,1]" % vr(OW + i, 2))
    a("""
    v_add_f32 v12, v12, %s
    v_add_f32 v12, v12, v13
    v_cmp_nle_f32 vcc, 0x30800000, v12
    s_mov_b64 s[72:73], vcc
    v_cmp_nge_f32 vcc, 0x5d800000, v12
    s_or_b64 s[72:73], s[72:73], vcc
    """ % vr(OW + 8))
    a("s_branch L_slow" if cfg.force_slow else "s_cbranch_scc1 L_slow")
    a.label("L_norm")
    a("v_rcp_f32 v12, %s" % vr(OW + 8))
    for i in range(0, 8, 2):
        a("v_pk_mul_f32 %s, %s, v[12:13] op_sel_hi:[1,0]" % (vr(OW + i, 2), vr(OW + i, 2)))
    for q in range(4):
        a("v_cvt_pk_bf16_f32 %s, %s, %s" % (vr(16 + q), vr(OW + 2 * q), vr(OW + 2 * q + 1)))
    a("v_and_b32 v16, -2, v16")
    bstore(16, 4, 11, SWS, "s76", 0, "sc1", "ost")
    stamp(11)
    a("""
    s_and_b32 s74, s60, 3
    s_lshr_b32 s75, s60, 2
    v_lshrrev_b32 v3, 3, v0
    v_and_b32 v7, 7, v0
    v_lshlrev_b32 v7, 4, v7
    v_lshl_add_u32 v2, v3, 10, v7
    s_lshl3_add_u32 s78, s66, s60
    s_lshl_b32 s78, s78, 13
    s_lshl_b32 s79, s67, 7
    s_add_u32 s78, s78, s79
    """)
    bload(60, 4, 7, SB2, "s79", 0, "", "xb")
    bload(56, 4, 2, SX, "s78", 0, "", "xb")
    a("""
    v_mul_u32_u24 v4, %d, v3
    s_mul_i32 s72, s60, %d
    s_add_u32 s72, s72, %d
    v_add3_u32 v4, v4, v7, s72
    """ % (PART_STRIDE, 8 * PART_STRIDE, L_W2))
    for j in range(4):
        dsr("ds_read_b128", G + 4 * j, 4, 4, j * W2_REGION, "g")
    a("""
    v_bfe_u32 v4, v0, 2, 2
    v_bfe_u32 v5, v0, 4, 1
    v_lshl_add_u32 v4, v5, 2, v4
    v_lshrrev_b32 v5, 1, v4
    v_lshlrev_b32 v92, 7, v4
    v_lshl_add_u32 v92, v5, 5, v92
    v_lshrrev_b32 v6, 5, v0
    v_lshl_add_u32 v92, v6, 11, v92
    v_and_b32 v4, 3, v0
    v_lshl_add_u32 v92, v4, 3, v92
    s_lshl_b32 s72, s75, 15
    v_add_u32 v92, s72, v92
    v_xor_b32 v93, 32, v92
    v_xor_b32 v94, 64, v92
    v_xor_b32 v95, 0x60, v92
    s_barrier
    """)

    def oloads(first=0):
        for ks in range(first, 8):
            bload(OFR + 4 * ks, 4, 1, SWS, ("s76", "s77", "s80", "s81")[ks >> 1], (ks & 1) * 2048, "sc1", ("o", ks))

    fill = ("""
    s_lshl2_add_u32 s72, s66, s74
    s_lshr_b32 s76, s72, 1
    s_lshl1_add_u32 s76, s76, s75
    s_lshl_b32 s76, s76, 14
    s_and_b32 s72, s72, 1
    s_lshl_b32 s72, s72, 10
    s_add_u32 s76, s76, s72
    s_add_u32 s76, s76, %d
    s_add_u32 s77, s76, 0x1000
    s_add_u32 s80, s76, 0x2000
    s_add_u32 s81, s76, 0x3000
    v_mul_u32_u24 v3, %d, v3
    v_lshl_add_u32 v3, v7, 1, v3
    s_mul_i32 s72, s60, %d
    s_add_u32 s72, s72, %d
    v_add_u32 v3, s72, v3
    v_and_b32 v5, 15, v0
    v_mul_u32_u24 v5, %d, v5
    v_and_b32 v4, 48, v0
    s_mul_i32 s72, s60, %d
    s_add_u32 s72, s72, %d
    v_add3_u32 v5, v5, v4, s72
    s_mov_b32 s82, 0x3f80
    s_mov_b32 s83, 0x3f800000
    """ % (WS_QO, SUM_STRIDE, 8 * SUM_STRIDE, L_SUM, SUM_STRIDE, 16 * SUM_STRIDE, L_SUM)).strip().split("\n")
    fill += ["v_mov_b32 %s, 0" % vr(Z + i) for i in range(8)]
    fill.append(lambda: lg.wait("g"))
    for j in range(4):
        for q in range(4):
            fill.append("v_dot2c_f32_bf16 %s, s82, %s" % (vr(Z + 2 * q), vr(G + 4 * j + q)))
            fill.append("v_dot2c_f32_bf16 %s, s83, %s" % (vr(Z + 2 * q + 1), vr(G + 4 * j + q)))
    shadow.extend(fill)
    for ks in range(8):
        for ct in range(4):
            trread(WOF + (ks * 4 + ct) * 4, 92 + ct, ks * 4096, 1024, ("wo", ks))
            run_shadow(2)
        if ks == cfg.oat:
            vm.wait("ost")
            oloads()
    run_shadow(1000)
    stamp(12)
    vm.wait("xb")
    for q in range(4):
        a("v_dot2c_f32_bf16 %s, s82, %s" % (vr(Z + 2 * q), vr(60 + q)))
        a("v_dot2c_f32_bf16 %s, s83, %s" % (vr(Z + 2 * q + 1), vr(60 + q)))
    for q in range(4):
        a("v_lshlrev_b32 %s, 16, %s" % (vr(X + 2 * q), vr(56 + q)))
        a("v_and_b32 %s, s89, %s" % (vr(X + 1 + 2 * q), vr(56 + q)))
    for i in range(8):
        a("v_mul_f32 %s, 0x%x, %s" % (vr(G + i), NLOG2E, vr(Z + i)))
    for i in range(8):
        a("v_exp_f32 %s, %s" % (vr(G + i), vr(G + i)))
    for i in range(8):
        a("v_add_f32 %s, 1.0, %s" % (vr(G + i), vr(G + i)))
    for i in range(8):
        a("v_rcp_f32 %s, %s" % (vr(G + i), vr(G + i)))
    for i in range(8):
        a("v_mul_f32 %s, %s, %s" % (vr(Z + i), vr(Z + i), vr(G + i)))
    a("s_mov_b32 s73, 0")
    lg.drain()
    for ks in range(8):
        a.label("L_wo_%d" % ks)
        vm.wait(("o", ks))
        a("v_and_b32 v6, 1, %s" % vr(OFR + 4 * ks))
        a("v_cmp_ne_u32 vcc, 0, v6")
        a("s_cbranch_vccnz L_oretry_%d" % ks)
        a.label("L_ogo_%d" % ks)
        for ct in range(4):
            d = AC + 4 * ct
            mfma16(d, WOF + (ks * 4 + ct) * 4, OFR + 4 * ks, None if ks == 0 else d)
    stamp(13)
    for ct in range(4):
        dsw("ds_write_b128", 5, AC + 4 * ct, 4, ct * 64)
    lg.drain()
    a("s_barrier")
    stamp(14)
    dsr("ds_read_b128", SR, 4, 3, 0, 0)
    dsr("ds_read_b128", SR + 8, 4, 3, SUM_SIZE, 0)
    dsr("ds_read_b128", SR + 4, 4, 3, 16, 1)
    dsr("ds_read_b128", SR + 12, 4, 3, SUM_SIZE + 16, 1)
    for h in range(2):
        lg.wait(h)
        for i in range(4 * h, 4 * h + 4, 2):
            a("v_pk_add_f32 %s, %s, %s" % (vr(SR + i, 2), vr(SR + i, 2), vr(SR + 8 + i, 2)))
        for i in range(4 * h, 4 * h + 4, 2):
            a("v_pk_fma_f32 %s, %s, %s, %s" % (vr(SR + i, 2), vr(SR + i, 2), vr(Z + i, 2), vr(X + i, 2)))
        for q in range(2 * h, 2 * h + 2):
            a("v_cvt_pk_bf16_f32 %s, %s, %s" % (vr(G + q), vr(SR + 2 * q), vr(SR + 2 * q + 1)))
    bstore(G, 4, 2, SOUT, "s78", 0, ("", "sc1", "nt", "sc0 sc1", "sc0 sc1 nt")[cfg.omod])
    a("s_or_b32 s72, s2, s60")
    a("s_cmp_lg_u32 s72, 0")
    a("s_cbranch_scc1 L_noepoch")
    set_flag(7, "0")
    a.label("L_noepoch")
    if cfg.stamps:
        a("s_waitcnt vmcnt(0)")
        stamp(15)
        if cfg.probe is not None:
            a("s_sub_u32 s72, %s, s4" % sr(sSTAMP + cfg.probe))
            if cfg.stamps == 2:
                a("s_lshr_b32 s72, s72, 3")
            else:
                a("s_lshl_b32 s72, s72, %d" % cfg.probesh)
            a("s_cmp_lg_u32 s2, %d" % cfg.probewg)
            a("s_cselect_b32 s72, 0, s72")
            a("s_cmp_lg_u32 s60, %d" % cfg.probew)
            a("s_cselect_b32 s72, 0, s72")
            a("s_memrealtime s[22:23]")
            a("s_waitcnt lgkmcnt(0)")
            a("s_mov_b32 s73, s22")
            a.label("L_probe")
            a("s_memrealtime s[22:23]")
            a("s_waitcnt lgkmcnt(0)")
            a("s_sub_u32 s22, s22, s73")
            a("s_cmp_lt_u32 s22, s72")
            a("s_cbranch_scc1 L_probe")
        a("s_lshl3_add_u32 s72, s2, s60")
        a("s_lshl_b32 s72, s72, 6")
        a("s_add_u32 s72, s72, %d" % WS_STAMP)
        for i in range(16):
            a("v_mov_b32 %s, %s" % (vr(80 + i), sr(sSTAMP + i)))
        a("s_mov_b64 exec, 1")
        for i in range(4):
            bstore(80 + 4 * i, 4, 1, SWS, "s72", 16 * i)
    a.label("L_end")
    a("s_endpgm")

    for ks in range(8):
        a.label("L_oretry_%d" % ks)
        a("s_add_u32 s73, s73, 1")
        a("s_cmp_ge_u32 s73, %d" % SPIN_MAX)
        a("s_cbranch_scc1 L_ogo_%d" % ks)
        a("s_waitcnt vmcnt(0)")
        oloads(ks)
        a("s_branch L_wo_%d" % ks)

    for tag, vt, lanes, soff in stubs:
        a.label("L_poll_" + tag)
        a("s_mov_b32 s73, 0")
        a.label("L_poll2_" + tag)
        a("s_sleep %d" % cfg.sleep)
        flag_load(vt, lanes, soff, None)
        a("s_add_u32 s73, s73, 1")
        a("s_waitcnt vmcnt(0)")
        a("s_cmp_ge_u32 s73, %d" % SPIN_MAX)
        a("s_cbranch_scc1 L_polled_" + tag)
        a("v_cmp_ne_u32 vcc, %s, %s" % (sr(sTAG), vr(vt)))
        a("s_cbranch_vccnz L_poll2_" + tag)
        a("s_branch L_polled_" + tag)

    a.label("L_slow")
    CN = SB + 16
    a("s_waitcnt vmcnt(0)")
    a("v_mov_b32 v13, 0xff800000")
    a("s_mov_b32 s82, s83")
    a("s_mov_b32 s81, 64")
    a.label("L_slow1")
    bload(KV, 4, 252, SWS, "s82", 0, "sc1")
    a("s_add_u32 s82, s82, 2048")
    a("s_waitcnt vmcnt(0)")
    mfma32(SB, KV, QR + 12, None)
    for i in range(0, 16, 2):
        a("v_max3_f32 v13, v13, %s, %s" % (vr(SB + i), vr(SB + i + 1)))
    a("s_sub_u32 s81, s81, 1")
    a("s_cmp_lg_u32 s81, 0")
    a("s_cbranch_scc1 L_slow1")
    a("v_mov_b32 v14, v13")
    a("v_permlane32_swap_b32 v14, v13")
    a("v_max_f32 v13, v14, v13")
    for i in range(16):
        a("v_sub_f32 %s, 0, v13" % vr(CN + i))
        a("v_mov_b32 %s, 0" % vr(OW + i))
    a("s_mov_b32 s82, s83")
    a("s_mov_b32 s81, 64")
    a.label("L_slow2")
    kvload(0)
    a("s_waitcnt vmcnt(0)")
    mfma32(SB, KV, QR + 12, CN)
    for i in range(16):
        a("v_exp_f32 %s, %s" % (vr(SB + i), vr(SB + i)))
    smf(OW, KV + 4, SB)
    smf(OW, KV + 8, SB + 8)
    a("s_sub_u32 s81, s81, 1")
    a("s_cmp_lg_u32 s81, 0")
    a("s_cbranch_scc1 L_slow2")
    a("s_branch L_norm")
    a.label("L_code_end")
    a("s_endpgm")

    added = a.fix()
    return a.text(), added


HEADER = """; Kernarg layout for this problem (88 bytes, ptrs only, base s[0:1]):
; @launch grid=(256,1,1) block=(512,1,1) lds=163840
.amdgcn_target "amdgcn-amd-amdhsa--gfx950"
.text
.globl {k}
.p2align 8
.type {k},@function
{k}:
"""

FOOTER = """.section .rodata,"a"
.p2align 6
.amdhsa_kernel {k}
  .amdhsa_next_free_vgpr 256
  .amdhsa_next_free_sgpr 102
  .amdhsa_accum_offset 256
  .amdhsa_group_segment_fixed_size 0
  .amdhsa_kernarg_size 88
  .amdhsa_user_sgpr_count 2
  .amdhsa_user_sgpr_kernarg_segment_ptr 1
  .amdhsa_system_sgpr_workgroup_id_x 1
.end_amdhsa_kernel
"""


def build(**kw):
    cfg = Cfg()
    for k, v in kw.items():
        setattr(cfg, k, v)
    body, added = gen(cfg)
    return HEADER.format(k=KERNEL) + body + FOOTER.format(k=KERNEL), added


if __name__ == "__main__":
    out = sys.argv[1] if len(sys.argv) > 1 else "cdna_kernels/%s.s" % NAME
    kw = {}
    for arg in sys.argv[2:]:
        k, v = arg.split("=")
        kw[k] = int(v)
    text, added = build(**kw)
    open(out, "w").write(text)
    print("wrote", out, "lines", text.count("\n"), "nops added", added)
```

```python
import sys
import os
sys.path.insert(0, os.path.dirname(os.path.abspath(__file__)))
from asmlib import Asm, vr, sr

NAME = "recurrent_scan__softmax_full_mha__dense_activation_squared_relu__prompt"
KERNEL = NAME + "_kernel"

WS_FLAGQ = 0x1200
WS_FLAGH = 0x8000
WS_STAMP = 0x10000
WS_QO = 0x100000
WS_KV = 0x300000
WS_HF = 0x700000
WS_END = WS_HF + 86 * 65536
EPOCH_INC = 0x9E3779B9
SPIN_MAX = 1 << 18

L_RING = 65536
L_OPART = 65536
L_W2 = L_OPART + 55296
W2_REGION = 10240
PART_STRIDE = 144
SUM_STRIDE = 272
SUM_SIZE = 64 * SUM_STRIDE
L_SUM = L_OPART

SX, SWQ, SWO, SW1, SB1, SW2, SB2, SOUT, SWS = 24, 28, 32, 36, 40, 44, 48, 52, 56
sW, sCG, sTB, sRW, sP, sQB, sTBF, sCB, sTAG, sCT0 = 60, 61, 62, 63, 64, 65, 66, 67, 68, 69
sVM = 70
sSTAMP = 4

QSCALE = 0x3EB8AA3B
NLOG2E = 0xBFB8AA3B
NS = 22


class Cfg:
    abl = 0
    bst = 0
    n1 = 8
    nA = 22
    gap = 1
    kvt = 0
    kvi = 4
    dmam = 2
    fpat = 2221
    pf1_at = 10
    pfc_at = 0
    pfc1 = 0
    w2_at = 10
    pfl = 5
    wol = 10
    won = 1
    stamps = 0
    force_slow = 0
    flag_chunk = 11
    lead = 2
    defer = 1
    look = 5
    pfq_at = 8
    bload = 15
    bjoin = 16
    btile = 2
    sleep = 6
    w0_at = 7
    w1_at = 10
    hpre = 0
    hflag = 7
    probe = None
    omod = 1
    oat = 4
    probewg = 100
    probew = 0
    probesh = 4
    hst = 0


def srd(s):
    return sr(s, 4)


class Queue:
    def __init__(self, a, name, maxn):
        self.a, self.name, self.maxn, self.items = a, name, maxn, []

    def push(self, tag):
        self.items.append(tag)

    def wait(self, *tags):
        last = max((i for i, t in enumerate(self.items) if t in tags), default=-1)
        if last < 0:
            return
        n = len(self.items) - 1 - last
        self.a("s_waitcnt %s(%d)" % (self.name, min(n, self.maxn)))
        self.items = self.items[last + 1:]

    def drain(self):
        self.a("s_waitcnt %s(0)" % self.name)
        self.items = []


def gen(cfg):
    a = Asm()
    nA = cfg.nA
    nB = 32 - nA
    vm = Queue(a, "vmcnt", 63)
    lg = Queue(a, "lgkmcnt", 15)

    def stamp(i, force=False):
        if cfg.bst and not force and i != 0:
            return
        if cfg.stamps and (cfg.probe is None or i in (0, cfg.probe)):
            a("%s s[22:23]" % ("s_memtime" if cfg.stamps == 2 else "s_memrealtime"))
            a("s_waitcnt lgkmcnt(0)")
            a("s_mov_b32 %s, s22" % sr(sSTAMP + i))

    def mfma32(d, x, y, c):
        a("v_mfma_f32_32x32x16_bf16 %s, %s, %s, %s" % (vr(d, 16), vr(x, 4), vr(y, 4), "0" if c is None else vr(c, 16)))

    def mfma16(d, x, y, c):
        a("v_mfma_f32_16x16x32_bf16 %s, %s, %s, %s" % (vr(d, 4), vr(x, 4), vr(y, 4), "0" if c is None else vr(c, 4)))

    def smf(d, x, y):
        a("v_smfmac_f32_32x32x32_bf16 %s, %s, %s, v3" % (vr(d, 16), vr(x, 4), vr(y, 8)))

    def bload(d, n, va, s, so, off=0, mod="", tag=None):
        op = {1: "dword", 2: "dwordx2", 4: "dwordx4"}[n]
        a("buffer_load_%s %s, %s, %s, %s offen offset:%d %s" % (op, vr(d, n), vr(va), srd(s), so, off, mod))
        vm.push(tag)

    def bstore(d, n, va, s, so, off=0, mod="", tag=None):
        op = {1: "dword", 2: "dwordx2", 4: "dwordx4"}[n]
        a("buffer_store_%s %s, %s, %s, %s offen offset:%d %s" % (op, vr(d, n), vr(va), srd(s), so, off, mod))
        vm.push(tag)

    def dma(va, s, so, off=0, tag=None):
        a("buffer_load_dwordx4 %s, %s, %s offen offset:%d lds" % (vr(va), srd(s), so, off))
        vm.push(tag)

    def dsr(op, d, n, va, off, tag=None):
        a("%s %s, %s offset:%d" % (op, vr(d, n), vr(va), off))
        lg.push(tag)

    def dsw(op, va, d, n, off, tag=None):
        a("%s %s, %s offset:%d" % (op, vr(va), vr(d, n), off))
        lg.push(tag)

    def trread(d, va, off, second, tag=None):
        dsr("ds_read_b64_tr_b16", d, 2, va, off, tag)
        dsr("ds_read_b64_tr_b16", d + 2, 2, va, off + second, tag)

    def set_flag(vt, soff):
        a("v_mov_b32 %s, %s" % (vr(vt), sr(sTAG)))
        a("s_mov_b64 exec, 1")
        bstore(vt, 1, 1, SWS, soff, 0, "sc0 sc1")
        a("s_mov_b64 exec, -1")

    stubs = []

    def check_flags(tag, vt, lanes, soff):
        a("v_cmp_ne_u32 vcc, %s, %s" % (sr(sTAG), vr(vt)))
        a("s_cbranch_vccnz L_poll_" + tag)
        a.label("L_polled_" + tag)
        stubs.append((tag, vt, lanes, soff))

    def flag_load(vt, shift, soff, tag):
        a("v_and_b32 %s, 31, v0" % vr(vt))
        a("v_lshlrev_b32 %s, %d, %s" % (vr(vt), shift, vr(vt)))
        bload(vt, 1, vt, SWS, soff, 0, "sc0 sc1", tag)

    sizes = {SX: 2048 * 1024, SWQ: 512 * 3072, SWS: WS_END, SW1: 512 * 2752, SB1: 2752,
             SWO: 512 * 1024, SW2: 1376 * 1024, SB2: 1024, SOUT: 2048 * 1024}
    RAW = 128

    def xloads():
        for j in range(8):
            bload(RAW + j * 4, 4, 14, SX, "s101", j * 128, "", ("x", j))

    stamp(0)
    a("""
    s_load_dwordx2 s[24:25], s[0:1], 0
    s_getpc_b64 s[72:73]
    L_pc:
    s_cmpk_ge_u32 s2, 256
    s_cbranch_scc1 L_end
    s_lshr_b32 s74, s2, 3
    s_lshl_b32 s74, s74, 11
    v_lshrrev_b32 v8, 5, v0
    v_lshl_add_u32 v8, v8, 7, s74
    v_min_u32 v8, L_code_end-L_pc, v8
    v_mov_b32 v9, 0
    v_lshl_add_u64 v[8:9], v[8:9], 0, s[72:73]
    global_load_dword v7, v[8:9], off
    s_lshl_b32 s72, s2, 4
    s_and_b32 s72, s72, 0x180
    v_add_u32 v4, s72, v0
    v_bfe_u32 v4, v4, 3, 6
    v_and_b32 v5, 7, v0
    v_lshlrev_b32 v14, 10, v4
    v_lshl_add_u32 v14, v5, 4, v14
    s_lshr_b32 s67, s2, 5
    s_and_b32 s73, s2, 6
    s_lshl2_add_u32 s62, s73, s67
    s_lshl_b32 s101, s62, 16
    s_mov_b32 s26, %d
    s_mov_b32 s27, 0x20000
    v_bfe_u32 v24, v4, 1, 3
    v_xor_b32 v24, v24, v5
    v_lshlrev_b32 v15, 7, v4
    v_lshl_add_u32 v15, v24, 4, v15
    v_readfirstlane_b32 s60, v0
    v_and_b32 v0, 63, v0
    v_mov_b32 v24, 0
    v_mov_b32 v25, 0
    s_lshr_b32 s60, s60, 6
    s_cmp_ge_u32 s60, 4
    s_waitcnt lgkmcnt(0)
    """ % sizes[SX])
    vm.push("pf")
    if cfg.bst == 3:
        stamp(1, True)
    xloads()
    if cfg.bst == 3:
        stamp(2, True)
    if cfg.stamps:
        for i in range(3 if cfg.bst == 3 else 1, 16):
            a("s_mov_b32 %s, s4" % sr(sSTAMP + i))
    a("s_cbranch_scc1 L_ln")

    def setup1():
        for s, off in ((SWQ, 8), (SWS, 80), (SW1, 32), (SB1, 40), (SWO, 16), (SW2, 48), (SB2, 56), (SOUT, 64)):
            a("s_load_dwordx2 %s, s[0:1], %d" % (sr(s, 2), off))
        a("""
        s_mov_b32 s30, %d
        s_mov_b32 s31, 0x20000
        s_bfe_u32 s72, s2, 0x20003
        s_and_b32 s73, s2, 1
        s_lshl2_add_u32 s61, s73, s72
        s_and_b32 s74, s60, 1
        s_bfe_u32 s75, s60, 0x10001
        s_lshl_b32 s72, s61, 7
        s_mul_i32 s85, s74, %d
        s_add_u32 s85, s85, s72
        s_mul_i32 s86, s75, %d
        s_add_u32 s86, s86, s85
        s_add_u32 s86, s86, 1024
        s_lshl_b32 s73, s75, 11
        s_add_u32 s85, s85, s73
        s_and_b32 s87, s60, 3
        s_lshl_b32 s87, s87, 10
        s_add_u32 s87, s87, %d
        v_lshrrev_b32 v4, 3, v0
        v_bfe_u32 v6, v4, 1, 1
        v_lshlrev_b32 v6, 2, v6
        v_xor_b32 v6, v6, v5
        v_lshlrev_b32 v6, 4, v6
        v_mul_u32_u24 v13, 3072, v4
        v_add_u32 v13, v13, v6
        s_waitcnt lgkmcnt(0)
        """ % (sizes[SWQ], 8 * 3072, 16 * 3072, L_RING))

    def setup2():
        a("s_load_dword %s, %s, 0" % (sr(sTAG), sr(SWS, 2)))
        for s in (SW1, SWS, SB1, SWO, SW2, SB2, SOUT):
            a("s_mov_b32 %s, %d" % (sr(s + 2), sizes[s]))
            a("s_mov_b32 %s, 0x20000" % sr(s + 3))
        a("""
        s_and_b32 s73, s60, 3
        s_lshl2_add_u32 s100, s2, s73
        s_mul_i32 s100, s100, 1536
        v_min_u32 v31, 11, v0
        v_lshlrev_b32 v31, 7, v31
        s_bfe_u32 s72, s2, 0x20003
        s_and_b32 s73, s2, 7
        s_lshl2_add_u32 s66, s73, s72
        s_and_b32 s72, s72, 1
        s_lshl1_add_u32 s64, s73, s72
        s_lshr_b32 s65, s2, 4
        s_mul_i32 s69, s61, 43
        s_lshr_b32 s69, s69, 3
        s_mov_b32 s70, 0xffff
        s_mov_b32 s71, 0xffff
        v_lshlrev_b32 v1, 4, v0
        v_and_b32 v2, 15, v0
        v_lshrrev_b32 v3, 5, v0
        v_lshl_add_u32 v2, v3, 4, v2
        v_lshlrev_b32 v2, 4, v2
        """)

    def setup3():
        a("; attention offsets: s82 = next K/V tile, s83 = head base, s92-s95 = Q tiles, s96-s99 = O partial slots")
        a("""
        s_and_b32 s74, s60, 1
        s_lshr_b32 s75, s60, 1
        s_lshl1_add_u32 s72, s64, s74
        s_lshl_b32 s83, s72, 17
        s_add_u32 s83, s83, %d
        s_and_b32 s73, s75, 1
        s_lshl_b32 s73, s73, 16
        s_add_u32 s82, s83, s73
        s_lshl_b32 s72, s65, 6
        s_add_u32 s72, s72, s64
        s_lshl1_add_u32 s72, s72, s74
        s_lshl_b32 s72, s72, 10
        s_add_u32 s72, s72, %d
        s_mul_i32 s84, s74, %d
        s_add_u32 s84, s84, %d
        """ % (WS_KV, WS_QO, 12 * 2304, L_OPART))
        for t in range(4):
            a("s_xor_b32 s73, s75, %d" % (t ^ 3))
            a("s_mul_i32 %s, s73, %d" % (sr(96 + t), 3 * 2304))
            a("s_lshl_b32 s73, s73, 15")
            a("s_add_u32 %s, s72, s73" % sr(92 + t))
            a("s_add_u32 %s, %s, s84" % (sr(96 + t), sr(96 + t)))

    setup1()
    setup2()
    setup3()
    a("""
    s_add_u32 s82, s82, %d
    v_and_b32 v8, 0x33, v0
    v_and_b32 v9, 4, v0
    v_lshl_or_b32 v8, v9, 1, v8
    v_and_b32 v9, 8, v0
    v_lshrrev_b32 v9, 1, v9
    v_or_b32 v8, v8, v9
    v_lshlrev_b32 v11, 4, v8
    v_bfe_u32 v9, v0, 4, 1
    v_mul_u32_u24 v12, 0x1fe00, v9
    v_add_u32 v12, v12, v2
    v_mul_u32_u24 v14, 0x1fa00, v9
    v_add_u32 v14, v14, v2
    v_lshl_add_u32 v4, v4, 10, v6
    v_bfe_u32 v10, v0, 2, 2
    v_lshlrev_b32 v5, 5, v9
    v_lshl_add_u32 v5, v10, 7, v5
    v_and_b32 v9, 3, v0
    v_lshl_add_u32 v5, v9, 3, v5
    v_lshrrev_b32 v10, 1, v10
    v_lshl_add_u32 v8, v3, 10, v5
    v_xor_b32 v9, s75, v10
    v_lshl_add_u32 v8, v9, 6, v8
    v_add_u32 v8, %d, v8
    v_add_u32 v9, %d, v8
    v_lshl_add_u32 v5, v3, 9, v5
    v_lshl_add_u32 v5, v10, 6, v5
    v_lshrrev_b32 v10, 1, v0
    v_xor_b32 v10, v10, v0
    v_and_b32 v10, 1, v10
    v_mul_u32_u24 v10, 24, v10
    v_xor_b32 v5, v5, v10
    s_mul_i32 s84, s60, %d
    s_add_u32 s84, s84, %d
    v_add_u32 v5, s84, v5
    v_xor_b32 v6, 64, v5
    v_and_b32 v10, 31, v0
    s_lshl_b32 s72, s74, 12
    v_bfe_u32 v16, v10, 1, 3
    v_xor_b32 v16, v16, v3
    v_lshlrev_b32 v16, 4, v16
    v_lshl_add_u32 v16, v10, 7, v16
    v_add_u32 v16, s72, v16
    v_xor_b32 v17, 32, v16
    v_xor_b32 v18, 64, v16
    v_xor_b32 v19, 0x60, v16
    v_lshlrev_b32 v10, 1, v10
    v_lshl_add_u32 v10, v3, 20, v10
    """ % (nB * 2048, L_RING, 2 * 24576, W2_REGION, L_W2))
    for seg in range(3):
        for q in range(1, 4):
            a("v_mov_b32 %s, 0" % vr(112 + 4 * seg + q))
    for q in range(4):
        a("v_mov_b32 %s, 0x3f803f80" % vr(124 + q))
    a("v_mov_b32 v3, 0xdddddddd")
    a("""
    s_lshl1_add_u32 s72, s62, s74
    s_lshl1_add_u32 s73, s61, s75
    s_lshl_b32 s76, s73, 7
    s_add_u32 s76, s76, s72
    s_lshl_b32 s77, s76, 11
    s_lshl4_add_u32 s76, s72, s73
    s_lshl_b32 s76, s76, 11
    s_add_u32 s76, s76, %d
    s_add_u32 s77, s77, %d
    s_add_u32 s81, s69, s75
    s_lshl_b32 s78, s81, 7
    s_add_u32 s78, s78, s72
    s_lshl_b32 s78, s78, 10
    s_add_u32 s78, s78, %d
    s_lshl_b32 s79, s61, 6
    s_add_u32 s79, s79, s62
    s_lshl_b32 s79, s79, 4
    s_add_u32 s79, s79, %d
    s_lshl_b32 s80, s62, 6
    s_add_u32 s80, s80, s61
    s_lshl2_add_u32 s80, s80, s60
    s_lshl_b32 s80, s80, 2
    s_add_u32 s80, s80, %d
    s_mul_i32 s72, s61, 43
    s_add_u32 s72, s72, 43
    s_lshr_b32 s72, s72, 3
    s_add_u32 s73, s81, 4
    s_add_u32 s88, s78, %d
    s_cmp_lt_u32 s73, s72
    s_cselect_b32 s88, s88, 0x40000000
    s_lshl_b32 s81, s81, 6
    """ % (WS_QO, WS_KV, WS_HF, WS_FLAGQ, WS_FLAGH, 8 * 65536))

    def issue_chunk(c):
        for m in range(6):
            if c < 8:
                p = 6 * c + m
                a("s_add_u32 m0, s87, %d" % ((c & 3) * 24576 + m * 4096))
                if p < 32:
                    a("s_add_u32 s72, s85, %d" % (p * 16 * 3072))
                else:
                    a("s_add_u32 s72, s86, %d" % ((p - 32) * 32 * 3072))
                dma(13, SWQ, "s72", 0, ("w", c))
            else:
                blk, seg = divmod(m, 3)
                a("s_add_u32 m0, s81, %d" % ((c & 3) * 24576 + seg * 2048 + blk * 1024))
                a("s_add_u32 s72, s80, %d" % (((c - 8) * 64 + blk * 8) * 2752 + seg * 128))
                dma(56, SW1, "s72", 0, ("w", c))

    def layernorm(acts):
        def act(p):
            if acts.get(p):
                assert p >= 7
                a("s_cmp_ge_u32 s60, 4")
                a("s_cbranch_scc1 L_ln_%d" % p)
                for f in acts[p]:
                    f()
                a.label("L_ln_%d" % p)
        a.label("L_ln")
        a("v_mov_b32 v30, 0x3f803f80")
        a("s_mov_b32 s89, 0xffff0000")
        for j in range(8):
            if cfg.bst == 3 and j == 0:
                stamp(3, True)
            vm.wait(("x", j))
            if cfg.bst == 3 and j in (0, 3, 7):
                stamp({0: 4, 3: 5, 7: 6}[j], True)
            act(j)
            for q in range(4):
                x = RAW + j * 4 + q
                a("v_dot2c_f32_bf16 v24, v30, %s" % vr(x))
                a("v_dot2c_f32_bf16 v25, %s, %s" % (vr(x), vr(x)))
        act(8)
        stamp(1)
        for ctl in ("quad_perm:[1,0,3,2]", "quad_perm:[2,3,0,1]", "row_half_mirror"):
            for r in (24, 25):
                a("v_add_f32_dpp %s, %s, %s %s row_mask:0xf bank_mask:0xf" % (vr(r), vr(r), vr(r), ctl))
        a("""
        v_mul_f32 v24, 0x3b000000, v24
        v_mul_f32 v25, 0x3b000000, v25
        v_fma_f32 v25, -v24, v24, v25
        v_max_f32 v25, 0, v25
        v_cvt_pk_bf16_f32 v24, v24, v25
        v_and_b32 v25, s89, v24
        v_add_f32 v25, 0x3727c5ac, v25
        v_cvt_pk_bf16_f32 v25, v25, v25
        v_and_b32 v25, s89, v25
        v_sqrt_f32 v25, v25
        v_lshlrev_b32 v24, 16, v24
        v_cvt_pk_bf16_f32 v25, v25, v25
        v_and_b32 v25, s89, v25
        v_rcp_f32 v26, v25
        v_mul_f32_e64 v28, -v24, v26
        """)
        for j in range(8):
            x = RAW + j * 4
            t = 192 + (j & 1) * 8
            for q in range(4):
                a("v_lshlrev_b32 %s, 16, %s" % (vr(t + 2 * q), vr(x + q)))
                a("v_and_b32 %s, s89, %s" % (vr(t + 2 * q + 1), vr(x + q)))
            for q in range(4):
                a("v_pk_fma_f32 %s, %s, v[26:27], v[28:29] op_sel_hi:[1,0,0]" % (vr(t + 2 * q, 2), vr(t + 2 * q, 2)))
            for q in range(4):
                a("v_cvt_pk_bf16_f32 %s, %s, %s" % (vr(x + q), vr(t + 2 * q), vr(t + 2 * q + 1)))
            if not cfg.defer:
                a("ds_write_b128 v15, %s offset:%d" % (vr(x, 4), j * 8192))
        if cfg.bst == 3:
            stamp(7, True)
        act(9)
        if cfg.defer:
            for j in range(8):
                a("ds_write_b128 v15, %s offset:%d" % (vr(RAW + j * 4, 4), j * 8192))
        act(10)
        stamp(2)
        if cfg.bst == 3:
            stamp(8, True)

    def pfq():
        a("; memory-side prefetch of Wqkv")
        bload(7, 1, 31, SWQ, "s100", 0, "", "pf")

    def pfc(which):
        a("; lines at offset 384 of every KiB stream slowly on a miss: the die's workgroups pull them into L2 together")
        a("s_lshr_b32 s72, s2, 3")
        a("s_lshl2_add_u32 s72, s72, s60")
        a("s_mul_i32 s72, s72, 12288")
        a("v_lshlrev_b32 v20, 3, v31")
        if which == SWQ:
            a("s_bitcmp1_b32 s2, 0")
            a("s_cselect_b32 s72, 0x40000000, s72")
        bload(7, 1, 20, which, "s72", 384, "", "pf")

    def pf1():
        a("; memory-side prefetch of W1")
        bload(7 if cfg.pf1_at <= 10 else 32, 1, 31, SW1, "s100", 0, "", "pf")

    acts = {}
    if cfg.pfc_at == 0:
        save = list(vm.items)
        pfc(SWQ)
        vm.items = save
    elif cfg.pfc_at <= 10:
        acts.setdefault(cfg.pfc_at, []).append(lambda: pfc(SWQ))
    if cfg.pfq_at == 0:
        save = list(vm.items)
        pfq()
        vm.items = save
    elif cfg.pfq_at <= 10:
        acts.setdefault(cfg.pfq_at, []).append(pfq)
    for c, p in enumerate((cfg.w0_at, cfg.w1_at, cfg.w2_at)[:cfg.lead + 1]):
        acts.setdefault(p, []).append(lambda c=c: issue_chunk(c))
    if cfg.pf1_at <= 10:
        acts.setdefault(cfg.pf1_at, []).append(pf1)
    if cfg.pfc1:
        acts.setdefault(10, []).append(lambda: pfc(SW1))
    layernorm(acts)
    a("s_cmp_ge_u32 s60, 4")
    a("s_cbranch_scc1 L_loader")

    QR, SB, WF, FA, OA, KV, HB = 8, 24, 56, 64, 128, 192, 228
    NKV = 3

    def att_init_ops():
        ops = ["v_mov_b32 %s, 0" % vr(OA + 16 * t + i) for t in range(4) for i in range(9)]
        ops2 = ["v_and_b32 v7, 27, v0", "v_cmp_eq_u32 vcc, 16, v7", "v_mov_b32 v7, 0x3f803f80", "v_cndmask_b32 v7, 0, v7, vcc"]
        ops2 += ["v_mov_b32 %s, v7" % vr(KV + 12 * b + 4 + q) for b in range(NKV) for q in range(8)]
        return ops, ops2

    def kvload(j):
        b = j % NKV
        bload(KV + 12 * b, 4, 252, SWS, "s82", 0, "sc1", ("kv", j))
        a("s_mov_b64 exec, %s" % sr(sVM, 2))
        bload(KV + 12 * b + 4, 4, 253, SWS, "s82", 0, "sc1", ("kv", j))
        bload(KV + 12 * b + 8, 4, 254, SWS, "s82", 0, "sc1", ("kv", j))
        a("s_mov_b64 exec, -1")
        a("s_add_u32 s82, s82, 2048")

    def att_loads():
        a("s_and_b32 s72, s60, 1")
        a("s_lshl_b32 s73, s72, 10")
        a("v_add_u32 v252, s73, v1")
        a("s_lshr_b32 s73, 0x400, s72")
        a("v_add_u32 v253, s73, v2")
        a("s_mul_i32 s73, s72, 0x600")
        a("s_sub_u32 s73, 0x600, s73")
        a("v_add_u32 v254, s73, v2")
        bload(QR, 4, 1, SWS, "s92", 0, "sc1", "q")
        kvload(0)
        for t in range(1, 4):
            bload(QR + 4 * t, 4, 1, SWS, sr(92 + t), 0, "sc1", "q")
        kvload(1)

    def dump_addr():
        a("v_lshlrev_b32 v8, 2, v0")
        a("v_add_u32 v9, s99, v1")
        a("v_add_u32 v10, s99, v8")
        a("v_bfe_u32 v11, v0, 4, 1")
        a("v_lshl_add_u32 v11, v11, 10, v2")

    def dump(t):
        a("v_add_u32 v12, %s, v1" % sr(96 + t))
        a("v_add_u32 v13, %s, v8" % sr(96 + t))
        dsw("ds_write_b128", 12, OA + 16 * t, 4, t * 2304)
        dsw("ds_write_b128", 12, OA + 16 * t + 4, 4, t * 2304 + 1024)
        dsw("ds_write_b32", 13, OA + 16 * t + 8, 1, t * 2304 + 2048)

    deferred = []
    cfg_gap = {0: range(16), 1: (1, 10), 2: (1, 4, 10), 3: (4, 10)}[cfg.gap]

    def att_run(n, hooks):
        hooks.setdefault((n - 1, 0, 11), []).append(dump_addr)
        for t in range(3):
            hooks.setdefault((n - 1, t + 1, 12), []).append(lambda t=t: dump(t))
        vm.wait("q", ("kv", 0))
        mfma32(SB, KV, QR, None)
        for j in range(n):
            b = j % NKV
            for t in range(4):
                cur, oth = SB + 16 * (t & 1), SB + 16 * ((t + 1) & 1)
                for i in range(16):
                    a("v_exp_f32 %s, %s" % (vr(cur + i), vr(cur + i)))
                    if i in cfg_gap:
                        while deferred:
                            deferred.pop(0)()
                    if t == cfg.kvt and i == cfg.kvi and j + NKV - 1 < n and not (cfg.abl & 32 and j > 0):
                        kvload(j + NKV - 1)
                    if i == 1 and (j, t) != (0, 0):
                        smf(OA + 16 * ((t + 3) & 3), KV + 12 * (b if t else (j - 1) % NKV) + 8, oth + 8)
                    if i == 4:
                        if t < 3:
                            mfma32(oth, KV + 12 * b, QR + 4 * (t + 1), None)
                        elif j + 1 < n:
                            vm.wait(("kv", j + 1))
                            mfma32(oth, KV + 12 * ((j + 1) % NKV), QR, None)
                    if i == 10:
                        smf(OA + 16 * t, KV + 12 * b + 4, cur)
                    for h in hooks.get((j, t, i), ()):
                        h()
        smf(OA + 48, KV + 12 * ((n - 1) % NKV) + 8, SB + 16 + 8)

    ACC = (24, 40, 56)
    WB, NBUF, LA = 72, 6, cfg.look
    XF, PK, XA = 128, 96, 16
    init1, init2 = att_init_ops()

    def item(g):
        if g >= 96:
            return divmod(g - 96, 3)
        return (g >> 1, g & 1) if g < 64 else (g - 64, 2)

    def reads(g):
        ks, sel = item(g)
        c, m = divmod(g, 12)
        slot = c & 3
        if g < 64 and sel == 0:
            dsr("ds_read_b128", XF + 4 * ks, 4, XA + (ks & 3), (ks >> 2) * 8192, g)
        trread(WB + 4 * (g % NBUF), 8 + (slot >> 1), (slot & 1) * 24576 + m * 2048, 512, g)

    def pack(acc, pk):
        return ["v_cvt_pk_bf16_f32 %s, %s, %s" % (vr(pk + q), vr(acc + 2 * q), vr(acc + 2 * q + 1)) for q in range(8)]

    def st2(pk, va, base, delta, tag, imm=(0, 0), vb=None):
        def first():
            bstore(pk, 4, va, SWS, base, imm[0], "" if cfg.abl & 64 else "sc1", tag)

        def second():
            if delta:
                a("s_add_u32 s72, %s, %d" % (base, delta))
            bstore(pk + 4, 4, vb or va, SWS, "s72" if delta else base, imm[1], "" if cfg.abl & 64 else "sc1", tag)
        return [first, second]

    def relu2(acc):
        return (["v_max_f32 %s, 0, %s" % (vr(acc + i), vr(acc + i)) for i in range(16)]
                + ["v_mul_f32 %s, %s, %s" % (vr(acc + i), vr(acc + i), vr(acc + i)) for i in range(16)])

    def bias(seg):
        return lambda: (vm.wait("b1"), mfma32(ACC[seg], 112 + 4 * seg, 124, None))

    tagq = ["v_or_b32 %s, 1, %s" % (vr(PK + 8 + 4 * q), vr(PK + 8 + 4 * q)) for q in range(2)]
    sched = {
        66: pack(ACC[1], PK) + st2(PK, 12, "s77", 0, "st", (1024, 1536), 14)
            + ["v_mul_f32 %s, 0x%x, %s" % (vr(ACC[0] + i), QSCALE, vr(ACC[0] + i)) for i in range(16)]
            + pack(ACC[0], PK + 8) + tagq + st2(PK + 8, 1, "s76", 0, "st", (0, 1024)) + [bias(0), bias(1)],
        144: init1,
        180: init2,
    }
    shadow = []

    def run_shadow(budget):
        while shadow and budget > 0:
            op = shadow.pop(0)
            if isinstance(op, str):
                a(op)
                budget -= 1
            else:
                op()
                budget -= 3

    a("""
    s_lshl_b32 s85, s60, 14
    s_lshl_b32 s72, s67, 7
    s_add_u32 s85, s85, s72
    s_lshl_b32 s86, s60, 6
    s_lshl1_add_u32 s86, s66, s86
    s_lshl_b32 s86, s86, 10
    s_add_u32 s86, s86, %d
    s_lshl_b32 s87, s66, 10
    s_add_u32 s87, s87, %d
    """ % (WS_HF, WS_FLAGH))
    vm.wait(("w", 0))
    a("s_waitcnt lgkmcnt(0)")
    a("s_add_u32 %s, %s, 0x%x" % (sr(sTAG), sr(sTAG), EPOCH_INC))
    if cfg.bst == 3:
        stamp(9, True)
    a("s_barrier")
    stamp(3)
    if cfg.bst == 3:
        stamp(10, True)
    for g in range(LA):
        reads(g)
    for g in range(192):
        ks, sel = item(g)
        if g == 96:
            run_shadow(1000)
            stamp(4)
        if g == 98:
            shadow.extend(pack(ACC[2], PK) + [bias(2)] + st2(PK, 11, "s77", 0x20400, "st"))
            run_shadow(1000)
            stamp(5)
        lg.wait(g)
        x, w = XF + 4 * ks, WB + 4 * (g % NBUF)
        c = None if (g < 96 and ks == 0) else ACC[sel]
        if g < 96 and sel == 1:
            mfma32(ACC[sel], x, w, c)
        else:
            mfma32(ACC[sel], w, x, c)
        n = g + LA
        if n < 192:
            if n % 12 == 0:
                vm.wait(("w", n // 12))
                if n // 12 == cfg.flag_chunk:
                    vm.wait("st")
                a("s_barrier")
                if n // 12 == cfg.flag_chunk:
                    a("s_cmp_lg_u32 s60, 0")
                    a("s_cselect_b32 s79, 0x40000000, s79")
                    set_flag(7, "s79")
                    stamp(6)
            reads(n)
        if g == 40:
            for seg in range(3):
                a("buffer_load_ushort %s, v10, %s, s81 offen offset:%d" % (vr(112 + 4 * seg), srd(SB1), seg * 128))
                vm.push("b1")
        shadow.extend(sched.get(g, ()))
        run_shadow(3)
    run_shadow(1000)
    stamp(7)
    hepi = []
    for seg in range(3):
        pk = PK + 8 * (seg & 1)
        hepi.append(relu2(ACC[seg]) + pack(ACC[seg], pk) + (["s_add_u32 s78, s78, 0x40000"] if seg == 1 else [])
                    + st2(pk, 1, "s78" if seg < 2 else "s88", 0x10000, "hst"))
    a("s_barrier")
    stamp(8)
    a("s_setprio 2")
    for seg in range(cfg.hpre):
        shadow.extend(hepi[seg])
    run_shadow(1000)
    att_loads()
    for seg in range(cfg.hpre, 3):
        shadow.extend(hepi[seg])
    run_shadow(1000)
    stamp(9)


    def w2dma(i):
        if cfg.abl & 1:
            return
        a("s_add_u32 m0, s84, %d" % ((i & 3) * 2048))
        a("s_add_u32 s72, s85, %d" % (i * 65536))
        dma(4, SW2, "s72", 0, ("w2", i))
        a("s_add_u32 s72, s72, 7168")
        dma(4, SW2, "s72", 1024, ("w2", i))

    hreg = lambda i, tt: HB + 8 * (i % 3) + 4 * tt

    def hload(i):
        if cfg.abl & 1:
            return
        if i > 0:
            a("s_add_u32 s86, s86, 0x40000")
        for tt in range(2):
            bload(hreg(i, tt), 4, 1, SWS, "s86", tt * 1024, "sc1", ("h", i))

    def w2read(i, nt):
        if cfg.abl & 2:
            return
        vm.wait(("w2", i))
        trread(WF + 4 * nt, 5 + nt, (i & 3) * 2048, 1024, ("wf", i, nt))

    def fslot(f):
        i, m = divmod(f, 4)
        nt, tt = ((0, 0), (0, 1), (1, 1), (1, 0))[m]
        vm.wait(("h", i))
        lg.wait(("wf", i, nt))
        d = FA + 16 * (2 * tt + nt)
        if not cfg.abl & 4:
            mfma32(d, WF + 4 * nt, hreg(i, tt), None if i == 0 else d)
        if m == 1 and i + 1 < NS:
            deferred.append(lambda: w2read(i + 1, 0))
        if m == cfg.dmam and i + 4 < NS:
            deferred.append(lambda: w2dma(i + 4))
        if m == 3:
            if i + 1 < NS:
                deferred.append(lambda: w2read(i + 1, 1))
            if i + 3 < NS:
                deferred.append(lambda: hload(i + 3))

    def park(tt, nt):
        d = FA + 16 * (2 * tt + nt)
        for q in range(8):
            a("v_cvt_pk_bf16_f32 %s, %s, %s" % (vr(d + q), vr(d + 2 * q), vr(d + 2 * q + 1)))
        for q in range(2):
            dsw("ds_write_b128", 4, d + 4 * q, 4, tt * 32 * PART_STRIDE + nt * 64 + q * 32)

    def park_addr():
        a("v_and_b32 v4, 31, v0")
        a("v_mul_u32_u24 v4, %d, v4" % PART_STRIDE)
        a("v_lshrrev_b32 v5, 5, v0")
        a("v_lshl_add_u32 v4, v5, 4, v4")
        a("v_add_u32 v4, s84, v4")

    hooks = {}

    def hook(j, t, i, f):
        hooks.setdefault((j, t, i), []).append(f)

    n1 = cfg.n1
    hook(cfg.hflag >> 2, cfg.hflag & 3, 12, lambda: (vm.wait("hst"), set_flag(7, "s80"), stamp(1) if cfg.hst else None))
    hook(n1 - 2, 0, 8, lambda: flag_load(7, 2, "s87", "hf"))
    hook(n1 - 2, 3, 12, lambda: (vm.wait("hf"), stamp(2) if cfg.hst else None, check_flags("h", 7, 2, "s87"), stamp(3) if cfg.hst else None))
    for i in range(4):
        hook(n1 - 3 + (i >> 1), 1 + (i & 1), 7, lambda i=i: w2dma(i))
    for i in range(3):
        hook(n1 - 1, i, 7, lambda i=i: hload(i))
    hook(n1 - 1, 3, 7, lambda: (w2read(0, 0), w2read(0, 1)))
    pat = [int(ch) for ch in str(cfg.fpat)]
    slots = [(j, t, pos) for j in range(n1, nA) for t in range(4) for pos in ((13,), (7, 13))[pat[t] - 1]]
    for f in range(4 * NS):
        hook(*slots[f], lambda f=f: fslot(f))
    tl = slots[4 * NS - 1][0] * 4 + slots[4 * NS - 1][1] + 1
    assert tl + 3 < 4 * nA
    hook(tl >> 2, tl & 3, 6, park_addr)
    for n, (nt, tt) in enumerate(((0, 0), (0, 1), (1, 1), (1, 0))):
        hook((tl + n) >> 2, (tl + n) & 3, 7, lambda tt=tt, nt=nt: park(tt, nt))
    if cfg.hst:
        for n in range(4):
            hook(n1 + 4 * n, 0, 1, lambda n=n: stamp(4 + n))
    att_run(nA, hooks)
    vm.drain()
    a("s_branch L_att_done")

    a.label("L_loader")
    vm.items = []
    lg.items = []

    def b_setup():
        a("; waves 4-7: W1 and wo DMA offsets v56/v4, flagQ row s79")
        a("""
        v_mul_u32_u24 v56, 2752, v4
        v_add_u32 v56, v56, v6
        v_bfe_u32 v6, v4, 1, 2
        v_lshlrev_b32 v6, 1, v6
        v_xor_b32 v6, v6, v5
        v_lshlrev_b32 v6, 4, v6
        v_lshl_add_u32 v4, v4, 10, v6
        v_min_u32 v5, 10, v0
        v_lshlrev_b32 v5, 7, v5
        v_min_u32 v6, 3, v0
        v_lshlrev_b32 v6, 7, v6
        s_lshr_b32 s79, s64, 1
        s_lshl_b32 s79, s79, 10
        s_add_u32 s79, s79, %d
        s_and_b32 s73, s60, 3
        s_lshl_b32 s72, s69, 6
        s_mul_i32 s80, s73, %d
        s_add_u32 s80, s80, s72
        s_mul_i32 s81, s73, 6144
        s_add_u32 s81, s81, %d
        """ % (WS_FLAGQ, 16 * 2752, L_RING))

        a("v_mov_b32 v3, 0xdddddddd")
        a("s_waitcnt lgkmcnt(0)")
        a("s_add_u32 %s, %s, 0x%x" % (sr(sTAG), sr(sTAG), EPOCH_INC))

    issued = cfg.lead
    setup1()
    state = {"issued": issued}

    def b_step(c):
        vm.wait(("w", c))
        if cfg.bst == 2:
            stamp(c, True)
        if cfg.bst == 3 and c == 0:
            stamp(9, True)
        a("s_barrier")
        if cfg.bst == 1:
            stamp(c, True)
        if c in (0, 8, 12, 15):
            stamp({0: 3, 8: 4, 12: 5, 15: 6}[c])
        if c == cfg.bload - 1:
            flag_load(7, 4, "s79", "qf")
        if c == cfg.bload:
            vm.wait("qf")
            check_flags("q", 7, 4, "s79")
            stamp(7)
            att_loads()
        while state["issued"] < min(15, max(3, c + 2)):
            state["issued"] += 1
            issue_chunk(state["issued"])
        if c == 1:
            setup2()
        if cfg.pf1_at == 12 + c:
            assert c >= 1
            pf1()
        if c == 2:
            setup3()
        if c == 3:
            b_setup()
        if c == 4:
            for op in init1:
                a(op)
        if c == 5:
            for op in init2:
                a(op)

    def b_att():
        a("s_barrier")
        stamp(8)
        a("s_setprio 1")

    bhooks = {}
    for c in range(17):
        f = (lambda c=c: b_step(c)) if c < 16 else b_att
        if c <= cfg.bjoin:
            f()
        else:
            tl = (c - cfg.bjoin) * cfg.btile - 1
            bhooks[(tl >> 2, tl & 3, 13)] = [f]

    def wo_dma(lo, hi):
        if cfg.abl & 8:
            return
        if lo == 0:
            a("; wo tile -> LDS [0, 64K), a few rows per score tile")
            a("s_and_b32 s78, s60, 3")
            a("s_lshl_b32 s76, s78, 17")
            a("s_lshl_b32 s73, s67, 7")
            a("s_add_u32 s76, s76, s73")
            a("s_lshl_b32 s78, s78, 14")
        for i in range(lo, hi):
            a("s_add_u32 m0, s78, %d" % (i * 1024))
            a("s_add_u32 s73, s76, %d" % (i * 8192))
            dma(4, SWO, "s73", 0, "wo")

    def pf_late():
        if cfg.abl & 16:
            return
        a("s_and_b32 s73, s60, 3")
        a("s_lshl2_add_u32 s73, s2, s73")
        a("s_mul_i32 s72, s73, 1408")
        a("s_lshl_b32 s73, s73, 9")
        bload(7, 1, 5, SW2, "s72", 0, "", "pf")
        bload(7, 1, 6, SWO, "s73", 0, "", "pf")

    bhooks[(cfg.pfl >> 2, cfg.pfl & 3, 7)] = [pf_late]
    for n, lo in enumerate(range(0, 16, cfg.won)):
        bhooks[((cfg.wol + n) >> 2, (cfg.wol + n) & 3, 8)] = [lambda lo=lo: wo_dma(lo, lo + cfg.won)]
    att_run(nB, bhooks)
    vm.drain()

    OW = OA + 48
    WOF, OFR, AC, G, Z, X, SR = 128, 24, 8, 64, 96, 104, 112
    a.label("L_att_done")
    stamp(10)
    a("s_setprio 0")
    a("s_and_b32 s73, s60, 1")
    a("s_lshl_b32 s73, s73, 9")
    a("s_sub_u32 s76, s95, s73")
    a("""
    s_and_b32 s74, s60, 3
    s_lshr_b32 s75, s60, 2
    v_lshrrev_b32 v14, 3, v0
    v_and_b32 v7, 7, v0
    v_lshlrev_b32 v7, 4, v7
    v_lshl_add_u32 v14, v14, 10, v7
    s_lshl3_add_u32 s78, s66, s60
    s_lshl_b32 s78, s78, 13
    s_lshl_b32 s79, s67, 7
    s_add_u32 s78, s78, s79
    """)
    bload(60, 4, 7, SB2, "s79", 0, "", "xb")
    bload(56, 4, 14, SX, "s78", 0, "", "xb")
    lg.drain()
    a("s_barrier")
    for src in range(3):
        d = SB + 10 * src
        dsr("ds_read_b128", d, 4, 9, src * 2304, src)
        dsr("ds_read_b128", d + 4, 4, 9, src * 2304 + 1024, src)
        dsr("ds_read_b32", d + 8, 1, 10, src * 2304 + 2048, src)
    for src in range(3):
        lg.wait(src)
        for i in range(0, 8, 2):
            a("v_pk_add_f32 %s, %s, %s" % (vr(OW + i, 2), vr(OW + i, 2), vr(SB + 10 * src + i, 2)))
        a("v_add_f32 %s, %s, %s" % (vr(OW + 8), vr(OW + 8), vr(SB + 10 * src + 8)))
    a("v_pk_mul_f32 v[12:13], %s, 0 op_sel_hi:[1,0]" % vr(OW, 2))
    for i in range(2, 8, 2):
        a("v_pk_fma_f32 v[12:13], %s, 0, v[12:13] op_sel_hi:[1,0,1]" % vr(OW + i, 2))
    a("""
    v_add_f32 v12, v12, %s
    v_add_f32 v12, v12, v13
    v_cmp_nle_f32 vcc, 0x30800000, v12
    s_mov_b64 s[72:73], vcc
    v_cmp_nge_f32 vcc, 0x5d800000, v12
    s_or_b64 s[72:73], s[72:73], vcc
    """ % vr(OW + 8))
    a("s_branch L_slow" if cfg.force_slow else "s_cbranch_scc1 L_slow")
    a.label("L_norm")
    a("v_rcp_f32 v12, %s" % vr(OW + 8))
    for i in range(0, 8, 2):
        a("v_pk_mul_f32 %s, %s, v[12:13] op_sel_hi:[1,0]" % (vr(OW + i, 2), vr(OW + i, 2)))
    for q in range(4):
        a("v_cvt_pk_bf16_f32 %s, %s, %s" % (vr(16 + q), vr(OW + 2 * q), vr(OW + 2 * q + 1)))
    a("v_and_b32 v16, -2, v16")
    bstore(16, 4, 11, SWS, "s76", 0, "sc1", "ost")
    stamp(11)
    a("v_mov_b32 v2, v14")
    a("v_lshrrev_b32 v3, 3, v0")
    a("""
    v_mul_u32_u24 v4, %d, v3
    s_mul_i32 s72, s60, %d
    s_add_u32 s72, s72, %d
    v_add3_u32 v4, v4, v7, s72
    """ % (PART_STRIDE, 8 * PART_STRIDE, L_W2))
    for j in range(4):
        dsr("ds_read_b128", G + 4 * j, 4, 4, j * W2_REGION, "g")
    a("""
    v_bfe_u32 v4, v0, 2, 2
    v_bfe_u32 v5, v0, 4, 1
    v_lshl_add_u32 v4, v5, 2, v4
    v_lshrrev_b32 v5, 1, v4
    v_lshlrev_b32 v92, 7, v4
    v_lshl_add_u32 v92, v5, 5, v92
    v_lshrrev_b32 v6, 5, v0
    v_lshl_add_u32 v92, v6, 11, v92
    v_and_b32 v4, 3, v0
    v_lshl_add_u32 v92, v4, 3, v92
    s_lshl_b32 s72, s75, 15
    v_add_u32 v92, s72, v92
    v_xor_b32 v93, 32, v92
    v_xor_b32 v94, 64, v92
    v_xor_b32 v95, 0x60, v92
    s_barrier
    """)

    def oloads(first=0):
        for ks in range(first, 8):
            bload(OFR + 4 * ks, 4, 1, SWS, ("s76", "s77", "s80", "s81")[ks >> 1], (ks & 1) * 2048, "sc1", ("o", ks))

    fill = ("""
    s_lshl2_add_u32 s72, s66, s74
    s_lshr_b32 s76, s72, 1
    s_lshl1_add_u32 s76, s76, s75
    s_lshl_b32 s76, s76, 14
    s_and_b32 s72, s72, 1
    s_lshl_b32 s72, s72, 10
    s_add_u32 s76, s76, s72
    s_add_u32 s76, s76, %d
    s_add_u32 s77, s76, 0x1000
    s_add_u32 s80, s76, 0x2000
    s_add_u32 s81, s76, 0x3000
    v_mul_u32_u24 v3, %d, v3
    v_lshl_add_u32 v3, v7, 1, v3
    s_mul_i32 s72, s60, %d
    s_add_u32 s72, s72, %d
    v_add_u32 v3, s72, v3
    v_and_b32 v5, 15, v0
    v_mul_u32_u24 v5, %d, v5
    v_and_b32 v4, 48, v0
    s_mul_i32 s72, s60, %d
    s_add_u32 s72, s72, %d
    v_add3_u32 v5, v5, v4, s72
    s_mov_b32 s82, 0x3f80
    s_mov_b32 s83, 0x3f800000
    """ % (WS_QO, SUM_STRIDE, 8 * SUM_STRIDE, L_SUM, SUM_STRIDE, 16 * SUM_STRIDE, L_SUM)).strip().split("\n")
    gate = ["v_mov_b32 %s, 0" % vr(Z + i) for i in range(8)]
    gate.append(lambda: lg.wait("g"))
    for j in range(5):
        if j == 4:
            gate.append(lambda: vm.wait("xb"))
        for q in range(4):
            src = G + 4 * j + q if j < 4 else 60 + q
            gate.append("v_dot2c_f32_bf16 %s, s82, %s" % (vr(Z + 2 * q), vr(src)))
            gate.append("v_dot2c_f32_bf16 %s, s83, %s" % (vr(Z + 2 * q + 1), vr(src)))
    for q in range(4):
        gate.append("v_lshlrev_b32 %s, 16, %s" % (vr(X + 2 * q), vr(56 + q)))
        gate.append("v_and_b32 %s, s89, %s" % (vr(X + 1 + 2 * q), vr(56 + q)))
    gate += ["v_mul_f32 %s, 0x%x, %s" % (vr(G + i), NLOG2E, vr(Z + i)) for i in range(8)]
    gate += ["v_exp_f32 %s, %s" % (vr(G + i), vr(G + i)) for i in range(8)]
    gate += ["v_add_f32 %s, 1.0, %s" % (vr(G + i), vr(G + i)) for i in range(8)]
    gate += ["v_rcp_f32 %s, %s" % (vr(G + i), vr(G + i)) for i in range(8)]
    gate += ["v_mul_f32 %s, %s, %s" % (vr(Z + i), vr(Z + i), vr(G + i)) for i in range(8)]

    def wo_reads(oat, per):
        for ks in range(8):
            for ct in range(4):
                trread(WOF + (ks * 4 + ct) * 4, 92 + ct, ks * 4096, 1024, ("wo", ks))
                run_shadow(per)
            if ks == oat:
                run_shadow(1000)
                vm.wait("ost")
                oloads()

    vm_t, lg_t = list(vm.items), list(lg.items)
    a("s_cmp_ge_u32 s60, 4")
    a("s_cbranch_scc1 L_tail_b")
    shadow.extend(fill)
    wo_reads(7, 1)
    shadow.extend(gate)
    run_shadow(1000)
    a("s_branch L_tail_j")
    a.label("L_tail_b")
    vm.items, lg.items = vm_t, lg_t
    shadow.extend(fill + gate)
    run_shadow(1000)
    wo_reads(cfg.oat, 0)
    a.label("L_tail_j")
    stamp(12)
    a("s_mov_b32 s73, 0")
    lg.drain()
    for ks in range(8):
        a.label("L_wo_%d" % ks)
        vm.wait(("o", ks))
        a("v_and_b32 v6, 1, %s" % vr(OFR + 4 * ks))
        a("v_cmp_ne_u32 vcc, 0, v6")
        a("s_cbranch_vccnz L_oretry_%d" % ks)
        a.label("L_ogo_%d" % ks)
        for ct in range(4):
            d = AC + 4 * ct
            mfma16(d, WOF + (ks * 4 + ct) * 4, OFR + 4 * ks, None if ks == 0 else d)
    stamp(13)
    for ct in range(4):
        dsw("ds_write_b128", 5, AC + 4 * ct, 4, ct * 64)
    lg.drain()
    a("s_barrier")
    stamp(14)
    dsr("ds_read_b128", SR, 4, 3, 0, 0)
    dsr("ds_read_b128", SR + 8, 4, 3, SUM_SIZE, 0)
    dsr("ds_read_b128", SR + 4, 4, 3, 16, 1)
    dsr("ds_read_b128", SR + 12, 4, 3, SUM_SIZE + 16, 1)
    for h in range(2):
        lg.wait(h)
        for i in range(4 * h, 4 * h + 4, 2):
            a("v_pk_add_f32 %s, %s, %s" % (vr(SR + i, 2), vr(SR + i, 2), vr(SR + 8 + i, 2)))
        for i in range(4 * h, 4 * h + 4, 2):
            a("v_pk_fma_f32 %s, %s, %s, %s" % (vr(SR + i, 2), vr(SR + i, 2), vr(Z + i, 2), vr(X + i, 2)))
        for q in range(2 * h, 2 * h + 2):
            a("v_cvt_pk_bf16_f32 %s, %s, %s" % (vr(G + q), vr(SR + 2 * q), vr(SR + 2 * q + 1)))
    bstore(G, 4, 2, SOUT, "s78", 0, ("", "sc1", "nt", "sc0 sc1", "sc0 sc1 nt")[cfg.omod])
    a("s_or_b32 s72, s2, s60")
    a("s_cmp_lg_u32 s72, 0")
    a("s_cbranch_scc1 L_noepoch")
    set_flag(7, "0")
    a.label("L_noepoch")
    if cfg.stamps:
        a("s_waitcnt vmcnt(0)")
        stamp(15)
        if cfg.probe is not None:
            a("s_sub_u32 s72, %s, s4" % sr(sSTAMP + cfg.probe))
            if cfg.stamps == 2:
                a("s_lshr_b32 s72, s72, 3")
            else:
                a("s_lshl_b32 s72, s72, %d" % cfg.probesh)
            a("s_cmp_lg_u32 s2, %d" % cfg.probewg)
            a("s_cselect_b32 s72, 0, s72")
            a("s_cmp_lg_u32 s60, %d" % cfg.probew)
            a("s_cselect_b32 s72, 0, s72")
            a("s_memrealtime s[22:23]")
            a("s_waitcnt lgkmcnt(0)")
            a("s_mov_b32 s73, s22")
            a.label("L_probe")
            a("s_memrealtime s[22:23]")
            a("s_waitcnt lgkmcnt(0)")
            a("s_sub_u32 s22, s22, s73")
            a("s_cmp_lt_u32 s22, s72")
            a("s_cbranch_scc1 L_probe")
        a("s_lshl3_add_u32 s72, s2, s60")
        a("s_lshl_b32 s72, s72, 6")
        a("s_add_u32 s72, s72, %d" % WS_STAMP)
        for i in range(16):
            a("v_mov_b32 %s, %s" % (vr(80 + i), sr(sSTAMP + i)))
        a("s_mov_b64 exec, 1")
        for i in range(4):
            bstore(80 + 4 * i, 4, 1, SWS, "s72", 16 * i)
    a.label("L_end")
    a("s_endpgm")

    for ks in range(8):
        a.label("L_oretry_%d" % ks)
        a("s_add_u32 s73, s73, 1")
        a("s_cmp_ge_u32 s73, %d" % SPIN_MAX)
        a("s_cbranch_scc1 L_ogo_%d" % ks)
        a("s_waitcnt vmcnt(0)")
        oloads(ks)
        a("s_branch L_wo_%d" % ks)

    for tag, vt, lanes, soff in stubs:
        a.label("L_poll_" + tag)
        a("s_mov_b32 s73, 0")
        a.label("L_poll2_" + tag)
        a("s_sleep %d" % cfg.sleep)
        flag_load(vt, lanes, soff, None)
        a("s_add_u32 s73, s73, 1")
        a("s_waitcnt vmcnt(0)")
        a("s_cmp_ge_u32 s73, %d" % SPIN_MAX)
        a("s_cbranch_scc1 L_polled_" + tag)
        a("v_cmp_ne_u32 vcc, %s, %s" % (sr(sTAG), vr(vt)))
        a("s_cbranch_vccnz L_poll2_" + tag)
        a("s_branch L_polled_" + tag)

    a.label("L_slow")
    CN = SB + 16
    a("s_waitcnt vmcnt(0)")
    a("v_mov_b32 v13, 0xff800000")
    a("s_mov_b32 s82, s83")
    a("s_mov_b32 s81, 64")
    a.label("L_slow1")
    bload(KV, 4, 252, SWS, "s82", 0, "sc1")
    a("s_add_u32 s82, s82, 2048")
    a("s_waitcnt vmcnt(0)")
    mfma32(SB, KV, QR + 12, None)
    for i in range(0, 16, 2):
        a("v_max3_f32 v13, v13, %s, %s" % (vr(SB + i), vr(SB + i + 1)))
    a("s_sub_u32 s81, s81, 1")
    a("s_cmp_lg_u32 s81, 0")
    a("s_cbranch_scc1 L_slow1")
    a("v_mov_b32 v15, v13")
    a("v_permlane32_swap_b32 v15, v13")
    a("v_max_f32 v13, v15, v13")
    for i in range(16):
        a("v_sub_f32 %s, 0, v13" % vr(CN + i))
        a("v_mov_b32 %s, 0" % vr(OW + i))
    a("s_mov_b32 s82, s83")
    a("s_mov_b32 s81, 64")
    a.label("L_slow2")
    kvload(0)
    a("s_waitcnt vmcnt(0)")
    mfma32(SB, KV, QR + 12, CN)
    for i in range(16):
        a("v_exp_f32 %s, %s" % (vr(SB + i), vr(SB + i)))
    smf(OW, KV + 4, SB)
    smf(OW, KV + 8, SB + 8)
    a("s_sub_u32 s81, s81, 1")
    a("s_cmp_lg_u32 s81, 0")
    a("s_cbranch_scc1 L_slow2")
    a("s_branch L_norm")
    a.label("L_code_end")
    a("s_endpgm")

    added = a.fix()
    return a.text(), added


HEADER = """; Kernarg layout for this problem (88 bytes, ptrs only, base s[0:1]):
; @launch grid=(256,1,1) block=(512,1,1) lds=163840
.amdgcn_target "amdgcn-amd-amdhsa--gfx950"
.text
.globl {k}
.p2align 8
.type {k},@function
{k}:
"""

FOOTER = """.section .rodata,"a"
.p2align 6
.amdhsa_kernel {k}
  .amdhsa_next_free_vgpr 256
  .amdhsa_next_free_sgpr 102
  .amdhsa_accum_offset 256
  .amdhsa_group_segment_fixed_size 0
  .amdhsa_kernarg_size 88
  .amdhsa_user_sgpr_count 2
  .amdhsa_user_sgpr_kernarg_segment_ptr 1
  .amdhsa_system_sgpr_workgroup_id_x 1
.end_amdhsa_kernel
"""


def build(**kw):
    cfg = Cfg()
    for k, v in kw.items():
        setattr(cfg, k, v)
    body, added = gen(cfg)
    return HEADER.format(k=KERNEL) + body + FOOTER.format(k=KERNEL), added


if __name__ == "__main__":
    out = sys.argv[1] if len(sys.argv) > 1 else "cdna_kernels/%s.s" % NAME
    kw = {}
    for arg in sys.argv[2:]:
        k, v = arg.split("=")
        kw[k] = int(v)
    text, added = build(**kw)
    open(out, "w").write(text)
    print("wrote", out, "lines", text.count("\n"), "nops added", added)
```

```python
import sys
import os
sys.path.insert(0, os.path.dirname(os.path.abspath(__file__)))
from asmlib import Asm, vr, sr

NAME = "recurrent_scan__softmax_full_mha__dense_activation_squared_relu__prompt"
KERNEL = NAME + "_kernel"

WS_FLAGQ = 0x1200
WS_FLAGH = 0x8000
WS_STAMP = 0x10000
WS_QO = 0x100000
WS_KV = 0x300000
WS_HF = 0x700000
WS_END = WS_HF + 86 * 65536
EPOCH_INC = 0x9E3779B9
SPIN_MAX = 1 << 18

L_RING = 65536
L_OPART = 65536
L_W2 = L_OPART + 55296
W2_REGION = 10240
PART_STRIDE = 144
SUM_STRIDE = 272
SUM_SIZE = 64 * SUM_STRIDE
L_SUM = L_OPART

SX, SWQ, SWO, SW1, SB1, SW2, SB2, SOUT, SWS = 24, 28, 32, 36, 40, 44, 48, 52, 56
sW, sCG, sTB, sRW, sP, sQB, sTBF, sCB, sTAG, sCT0 = 60, 61, 62, 63, 64, 65, 66, 67, 68, 69
sVM = 70
sSTAMP = 4

QSCALE = 0x3EB8AA3B
NLOG2E = 0xBFB8AA3B
NS = 22


class Cfg:
    abl = 0
    bst = 0
    spf1 = 99
    spf2 = 99
    xslot = 0
    xrun = 2
    n1 = 8
    nA = 22
    gap = 1
    kvt = 0
    kvi = 4
    dmam = 2
    fpat = 2221
    pf1_at = 10
    pfc_at = 0
    pfc1 = 0
    w2_at = 10
    pfl = 5
    wol = 10
    won = 1
    stamps = 0
    force_slow = 0
    flag_chunk = 10
    lead = 2
    defer = 1
    look = 5
    pfq_at = 8
    bload = 15
    bjoin = 16
    btile = 2
    sleep = 6
    w0_at = 7
    w1_at = 10
    hpre = 0
    hflag = 7
    probe = None
    omod = 1
    oat = 4
    probewg = 100
    probew = 0
    probesh = 4
    hst = 0


def srd(s):
    return sr(s, 4)


class Queue:
    def __init__(self, a, name, maxn):
        self.a, self.name, self.maxn, self.items = a, name, maxn, []

    def push(self, tag):
        self.items.append(tag)

    def wait(self, *tags):
        last = max((i for i, t in enumerate(self.items) if t in tags), default=-1)
        if last < 0:
            return
        n = len(self.items) - 1 - last
        self.a("s_waitcnt %s(%d)" % (self.name, min(n, self.maxn)))
        self.items = self.items[last + 1:]

    def drain(self):
        self.a("s_waitcnt %s(0)" % self.name)
        self.items = []


def gen(cfg):
    a = Asm()
    nA = cfg.nA
    nB = 32 - nA
    vm = Queue(a, "vmcnt", 63)
    lg = Queue(a, "lgkmcnt", 15)

    def stamp(i, force=False):
        if cfg.bst and not force and i != 0:
            return
        if cfg.stamps and (cfg.probe is None or i in (0, cfg.probe)):
            a("%s s[22:23]" % ("s_memtime" if cfg.stamps == 2 else "s_memrealtime"))
            a("s_waitcnt lgkmcnt(0)")
            a("s_mov_b32 %s, s22" % sr(sSTAMP + i))

    def mfma32(d, x, y, c):
        a("v_mfma_f32_32x32x16_bf16 %s, %s, %s, %s" % (vr(d, 16), vr(x, 4), vr(y, 4), "0" if c is None else vr(c, 16)))

    def mfma16(d, x, y, c):
        a("v_mfma_f32_16x16x32_bf16 %s, %s, %s, %s" % (vr(d, 4), vr(x, 4), vr(y, 4), "0" if c is None else vr(c, 4)))

    def smf(d, x, y):
        a("v_smfmac_f32_32x32x32_bf16 %s, %s, %s, v3" % (vr(d, 16), vr(x, 4), vr(y, 8)))

    def bload(d, n, va, s, so, off=0, mod="", tag=None):
        op = {1: "dword", 2: "dwordx2", 4: "dwordx4"}[n]
        a("buffer_load_%s %s, %s, %s, %s offen offset:%d %s" % (op, vr(d, n), vr(va), srd(s), so, off, mod))
        vm.push(tag)

    def bstore(d, n, va, s, so, off=0, mod="", tag=None):
        op = {1: "dword", 2: "dwordx2", 4: "dwordx4"}[n]
        a("buffer_store_%s %s, %s, %s, %s offen offset:%d %s" % (op, vr(d, n), vr(va), srd(s), so, off, mod))
        vm.push(tag)

    def dma(va, s, so, off=0, tag=None):
        a("buffer_load_dwordx4 %s, %s, %s offen offset:%d lds" % (vr(va), srd(s), so, off))
        vm.push(tag)

    def dsr(op, d, n, va, off, tag=None):
        a("%s %s, %s offset:%d" % (op, vr(d, n), vr(va), off))
        lg.push(tag)

    def dsw(op, va, d, n, off, tag=None):
        a("%s %s, %s offset:%d" % (op, vr(va), vr(d, n), off))
        lg.push(tag)

    def trread(d, va, off, second, tag=None):
        dsr("ds_read_b64_tr_b16", d, 2, va, off, tag)
        dsr("ds_read_b64_tr_b16", d + 2, 2, va, off + second, tag)

    def set_flag(vt, soff):
        a("v_mov_b32 %s, %s" % (vr(vt), sr(sTAG)))
        a("s_mov_b64 exec, 1")
        bstore(vt, 1, 1, SWS, soff, 0, "sc0 sc1")
        a("s_mov_b64 exec, -1")

    stubs = []

    def check_flags(tag, vt, lanes, soff):
        a("v_cmp_ne_u32 vcc, %s, %s" % (sr(sTAG), vr(vt)))
        a("s_cbranch_vccnz L_poll_" + tag)
        a.label("L_polled_" + tag)
        stubs.append((tag, vt, lanes, soff))

    def flag_load(vt, shift, soff, tag):
        a("v_and_b32 %s, 31, v0" % vr(vt))
        a("v_lshlrev_b32 %s, %d, %s" % (vr(vt), shift, vr(vt)))
        bload(vt, 1, vt, SWS, soff, 0, "sc0 sc1", tag)

    sizes = {SX: 2048 * 1024, SWQ: 512 * 3072, SWS: WS_END, SW1: 512 * 2752, SB1: 2752,
             SWO: 512 * 1024, SW2: 1376 * 1024, SB2: 1024, SOUT: 2048 * 1024}
    RAW = 128

    def xloads():
        for j in range(8):
            bload(RAW + j * 4, 4, 14, SX, "s101", j * 128, "", ("x", j))

    stamp(0)
    a("""
    s_load_dwordx2 s[24:25], s[0:1], 0
    s_getpc_b64 s[72:73]
    L_pc:
    s_cmpk_ge_u32 s2, 256
    s_cbranch_scc1 L_end
    s_lshr_b32 s74, s2, 3
    s_lshl_b32 s74, s74, 11
    v_lshrrev_b32 v8, 5, v0
    v_lshl_add_u32 v8, v8, 7, s74
    v_min_u32 v8, L_code_end-L_pc, v8
    v_mov_b32 v9, 0
    v_lshl_add_u64 v[8:9], v[8:9], 0, s[72:73]
    global_load_dword v7, v[8:9], off
    s_lshl_b32 s72, s2, 4
    s_and_b32 s72, s72, 0x180
    v_add_u32 v4, s72, v0
    v_bfe_u32 v4, v4, 3, 6
    v_and_b32 v5, 7, v0
    v_lshlrev_b32 v14, 10, v4
    v_lshl_add_u32 v14, v5, 4, v14
    s_lshr_b32 s67, s2, 5
    s_and_b32 s73, s2, 6
    s_lshl2_add_u32 s62, s73, s67
    s_lshl_b32 s101, s62, 16
    s_mov_b32 s26, %d
    s_mov_b32 s27, 0x20000
    v_bfe_u32 v24, v4, 1, 3
    v_xor_b32 v24, v24, v5
    v_lshlrev_b32 v15, 7, v4
    v_lshl_add_u32 v15, v24, 4, v15
    v_readfirstlane_b32 s60, v0
    v_and_b32 v0, 63, v0
    v_mov_b32 v24, 0
    v_mov_b32 v25, 0
    s_lshr_b32 s60, s60, 6
    s_cmp_ge_u32 s60, 4
    s_waitcnt lgkmcnt(0)
    """ % sizes[SX])
    vm.push("pf")
    if cfg.bst == 3:
        stamp(1, True)
    xloads()
    if cfg.bst == 3:
        stamp(2, True)
    if cfg.stamps:
        for i in range(3 if cfg.bst == 3 else 1, 16):
            a("s_mov_b32 %s, s4" % sr(sSTAMP + i))
    a("s_cbranch_scc1 L_ln")

    def setup1():
        for s, off in ((SWQ, 8), (SWS, 80), (SW1, 32), (SB1, 40), (SWO, 16), (SW2, 48), (SB2, 56), (SOUT, 64)):
            a("s_load_dwordx2 %s, s[0:1], %d" % (sr(s, 2), off))
        a("""
        s_mov_b32 s30, %d
        s_mov_b32 s31, 0x20000
        s_bfe_u32 s72, s2, 0x20003
        s_and_b32 s73, s2, 1
        s_lshl2_add_u32 s61, s73, s72
        s_and_b32 s74, s60, 3
        s_lshl_b32 s72, s61, 7
        s_mul_i32 s85, s74, %d
        s_add_u32 s85, s85, s72
        s_mul_i32 s87, s74, 6144
        s_add_u32 s87, s87, %d
        v_lshrrev_b32 v4, 3, v0
        v_bfe_u32 v6, v4, 1, 1
        v_lshlrev_b32 v6, 2, v6
        v_xor_b32 v6, v6, v5
        v_lshlrev_b32 v6, 4, v6
        v_mul_u32_u24 v13, 3072, v4
        v_add_u32 v13, v13, v6
        s_waitcnt lgkmcnt(0)
        """ % (sizes[SWQ], 16 * 3072, L_RING))

    def setup2():
        a("s_load_dword %s, %s, 0" % (sr(sTAG), sr(SWS, 2)))
        for s in (SW1, SWS, SB1, SWO, SW2, SB2, SOUT):
            a("s_mov_b32 %s, %d" % (sr(s + 2), sizes[s]))
            a("s_mov_b32 %s, 0x20000" % sr(s + 3))
        a("""
        s_and_b32 s73, s60, 3
        s_lshl2_add_u32 s100, s2, s73
        s_mul_i32 s100, s100, 1536
        v_min_u32 v31, 11, v0
        v_lshlrev_b32 v31, 7, v31
        s_bfe_u32 s72, s2, 0x20003
        s_and_b32 s73, s2, 7
        s_lshl2_add_u32 s66, s73, s72
        s_and_b32 s72, s72, 1
        s_lshl1_add_u32 s64, s73, s72
        s_lshr_b32 s65, s2, 4
        s_mul_i32 s69, s61, 43
        s_lshr_b32 s69, s69, 3
        s_mov_b32 s70, 0xffff
        s_mov_b32 s71, 0xffff
        v_lshlrev_b32 v1, 4, v0
        v_and_b32 v2, 15, v0
        v_lshrrev_b32 v3, 5, v0
        v_lshl_add_u32 v2, v3, 4, v2
        v_lshlrev_b32 v2, 4, v2
        """)

    def setup3():
        a("; attention offsets: s82 = next K/V tile, s83 = head base, s92-s95 = Q tiles, s96-s99 = O partial slots")
        a("""
        s_and_b32 s74, s60, 1
        s_lshr_b32 s75, s60, 1
        s_lshl1_add_u32 s72, s64, s74
        s_lshl_b32 s83, s72, 17
        s_add_u32 s83, s83, %d
        s_and_b32 s73, s75, 1
        s_lshl_b32 s73, s73, 16
        s_add_u32 s82, s83, s73
        s_lshl_b32 s72, s65, 6
        s_add_u32 s72, s72, s64
        s_lshl1_add_u32 s72, s72, s74
        s_lshl_b32 s72, s72, 10
        s_add_u32 s72, s72, %d
        s_mul_i32 s84, s74, %d
        s_add_u32 s84, s84, %d
        """ % (WS_KV, WS_QO, 12 * 2304, L_OPART))
        for t in range(4):
            a("s_xor_b32 s73, s75, %d" % (t ^ 3))
            a("s_mul_i32 %s, s73, %d" % (sr(96 + t), 3 * 2304))
            a("s_lshl_b32 s73, s73, 15")
            a("s_add_u32 %s, s72, s73" % sr(92 + t))
            a("s_add_u32 %s, %s, s84" % (sr(96 + t), sr(96 + t)))

    setup1()
    setup2()
    setup3()
    a("""
    s_add_u32 s82, s82, %d
    v_and_b32 v8, 0x33, v0
    v_and_b32 v9, 4, v0
    v_lshl_or_b32 v8, v9, 1, v8
    v_and_b32 v9, 8, v0
    v_lshrrev_b32 v9, 1, v9
    v_or_b32 v8, v8, v9
    v_lshlrev_b32 v11, 4, v8
    v_bfe_u32 v9, v0, 4, 1
    v_mul_u32_u24 v12, 0x1fe00, v9
    v_add_u32 v12, v12, v2
    v_mul_u32_u24 v14, 0x1fa00, v9
    v_add_u32 v14, v14, v2
    v_lshl_add_u32 v4, v4, 10, v6
    v_bfe_u32 v10, v0, 2, 2
    v_lshlrev_b32 v5, 5, v9
    v_lshl_add_u32 v5, v10, 7, v5
    v_and_b32 v9, 3, v0
    v_lshl_add_u32 v5, v9, 3, v5
    v_lshrrev_b32 v10, 1, v10
    v_lshl_add_u32 v8, v3, 10, v5
    v_xor_b32 v9, s75, v10
    v_lshl_add_u32 v8, v9, 6, v8
    v_add_u32 v8, %d, v8
    v_add_u32 v9, %d, v8
    v_lshl_add_u32 v5, v3, 9, v5
    v_lshl_add_u32 v5, v10, 6, v5
    v_lshrrev_b32 v10, 1, v0
    v_xor_b32 v10, v10, v0
    v_and_b32 v10, 1, v10
    v_mul_u32_u24 v10, 24, v10
    v_xor_b32 v5, v5, v10
    s_mul_i32 s84, s60, %d
    s_add_u32 s84, s84, %d
    v_add_u32 v5, s84, v5
    v_xor_b32 v6, 64, v5
    v_and_b32 v10, 31, v0
    s_lshl_b32 s72, s74, 12
    v_bfe_u32 v16, v10, 1, 3
    v_xor_b32 v16, v16, v3
    v_lshlrev_b32 v16, 4, v16
    v_lshl_add_u32 v16, v10, 7, v16
    v_add_u32 v16, s72, v16
    v_xor_b32 v17, 32, v16
    v_xor_b32 v18, 64, v16
    v_xor_b32 v19, 0x60, v16
    v_lshlrev_b32 v10, 1, v10
    v_lshl_add_u32 v10, v3, 20, v10
    """ % (nB * 2048, L_RING, 2 * 24576, W2_REGION, L_W2))
    for seg in range(3):
        for q in range(1, 4):
            a("v_mov_b32 %s, 0" % vr(112 + 4 * seg + q))
    for q in range(4):
        a("v_mov_b32 %s, 0x3f803f80" % vr(124 + q))
    a("v_mov_b32 v3, 0xdddddddd")
    a("""
    s_lshl1_add_u32 s72, s62, s74
    s_lshl1_add_u32 s73, s61, s75
    s_lshl_b32 s76, s73, 7
    s_add_u32 s76, s76, s72
    s_lshl_b32 s77, s76, 11
    s_lshl4_add_u32 s76, s72, s73
    s_lshl_b32 s76, s76, 11
    s_add_u32 s76, s76, %d
    s_add_u32 s77, s77, %d
    s_add_u32 s81, s69, s75
    s_lshl_b32 s78, s81, 7
    s_add_u32 s78, s78, s72
    s_lshl_b32 s78, s78, 10
    s_add_u32 s78, s78, %d
    s_lshl_b32 s79, s61, 6
    s_add_u32 s79, s79, s62
    s_lshl_b32 s79, s79, 4
    s_add_u32 s79, s79, %d
    s_lshl_b32 s80, s62, 6
    s_add_u32 s80, s80, s61
    s_lshl2_add_u32 s80, s80, s60
    s_lshl_b32 s80, s80, 2
    s_add_u32 s80, s80, %d
    s_mul_i32 s72, s61, 43
    s_add_u32 s72, s72, 43
    s_lshr_b32 s72, s72, 3
    s_add_u32 s73, s81, 4
    s_add_u32 s88, s78, %d
    s_cmp_lt_u32 s73, s72
    s_cselect_b32 s88, s88, 0x40000000
    s_lshl_b32 s81, s81, 6
    """ % (WS_QO, WS_KV, WS_HF, WS_FLAGQ, WS_FLAGH, 8 * 65536))

    def slot_of(c):
        if not cfg.xslot or c < cfg.xslot:
            return (c & 3) * 24576
        return -L_RING if c == cfg.xslot else ((c - 1) & 3) * 24576

    skip_bar = (10,) if cfg.xslot else ()

    def issue_chunk(c):
        for m in range(6):
            blk, seg = divmod(m, 3)
            a("s_add_u32 m0, s87, %d" % (slot_of(c) + seg * 2048 + blk * 1024))
            if c < 8:
                a("s_add_u32 s72, s85, %d" % ((c * 64 + blk * 8) * 3072 + seg * 1024))
                dma(13, SWQ, "s72", 0, ("w", c))
            else:
                a("s_add_u32 s72, s80, %d" % (((c - 8) * 64 + blk * 8) * 2752 + seg * 128))
                dma(57 if seg == 2 else 56, SW1, "s72", 0, ("w", c))

    def layernorm(acts):
        def act(p):
            if acts.get(p):
                assert p >= 7
                a("s_cmp_ge_u32 s60, 4")
                a("s_cbranch_scc1 L_ln_%d" % p)
                for f in acts[p]:
                    f()
                a.label("L_ln_%d" % p)
        a.label("L_ln")
        a("v_mov_b32 v30, 0x3f803f80")
        a("s_mov_b32 s89, 0xffff0000")
        for j in range(8):
            if cfg.bst == 3 and j == 0:
                stamp(3, True)
            vm.wait(("x", j))
            if cfg.bst == 3 and j in (0, 3, 7):
                stamp({0: 4, 3: 5, 7: 6}[j], True)
            act(j)
            for q in range(4):
                x = RAW + j * 4 + q
                a("v_dot2c_f32_bf16 v24, v30, %s" % vr(x))
                a("v_dot2c_f32_bf16 v25, %s, %s" % (vr(x), vr(x)))
        act(8)
        stamp(1)
        for ctl in ("quad_perm:[1,0,3,2]", "quad_perm:[2,3,0,1]", "row_half_mirror"):
            for r in (24, 25):
                a("v_add_f32_dpp %s, %s, %s %s row_mask:0xf bank_mask:0xf" % (vr(r), vr(r), vr(r), ctl))
        a("""
        v_mul_f32 v24, 0x3b000000, v24
        v_mul_f32 v25, 0x3b000000, v25
        v_fma_f32 v25, -v24, v24, v25
        v_max_f32 v25, 0, v25
        v_cvt_pk_bf16_f32 v24, v24, v25
        v_and_b32 v25, s89, v24
        v_add_f32 v25, 0x3727c5ac, v25
        v_cvt_pk_bf16_f32 v25, v25, v25
        v_and_b32 v25, s89, v25
        v_sqrt_f32 v25, v25
        v_lshlrev_b32 v24, 16, v24
        v_cvt_pk_bf16_f32 v25, v25, v25
        v_and_b32 v25, s89, v25
        v_rcp_f32 v26, v25
        v_mul_f32_e64 v28, -v24, v26
        """)
        for j in range(8):
            x = RAW + j * 4
            t = 192 + (j & 1) * 8
            for q in range(4):
                a("v_lshlrev_b32 %s, 16, %s" % (vr(t + 2 * q), vr(x + q)))
                a("v_and_b32 %s, s89, %s" % (vr(t + 2 * q + 1), vr(x + q)))
            for q in range(4):
                a("v_pk_fma_f32 %s, %s, v[26:27], v[28:29] op_sel_hi:[1,0,0]" % (vr(t + 2 * q, 2), vr(t + 2 * q, 2)))
            for q in range(4):
                a("v_cvt_pk_bf16_f32 %s, %s, %s" % (vr(x + q), vr(t + 2 * q), vr(t + 2 * q + 1)))
            if not cfg.defer:
                a("ds_write_b128 v15, %s offset:%d" % (vr(x, 4), j * 8192))
        if cfg.bst == 3:
            stamp(7, True)
        act(9)
        if cfg.defer:
            for j in range(8):
                a("ds_write_b128 v15, %s offset:%d" % (vr(RAW + j * 4, 4), j * 8192))
        act(10)
        stamp(2)
        if cfg.bst == 3:
            stamp(8, True)

    def pfq():
        a("; memory-side prefetch of Wqkv")
        bload(7, 1, 31, SWQ, "s100", 0, "", "pf")

    def pfc(which):
        a("; lines at offset 384 of every KiB stream slowly on a miss: the die's workgroups pull them into L2 together")
        a("s_lshr_b32 s72, s2, 3")
        a("s_lshl2_add_u32 s72, s72, s60")
        a("s_mul_i32 s72, s72, 12288")
        a("v_lshlrev_b32 v20, 3, v31")
        if which == SWQ:
            a("s_bitcmp1_b32 s2, 0")
            a("s_cselect_b32 s72, 0x40000000, s72")
        bload(7, 1, 20, which, "s72", 384, "", "pf")

    def pf1():
        a("; memory-side prefetch of W1")
        bload(7 if cfg.pf1_at <= 10 else 32, 1, 31, SW1, "s100", 0, "", "pf")

    acts = {}
    if cfg.pfc_at == 0:
        save = list(vm.items)
        pfc(SWQ)
        vm.items = save
    elif cfg.pfc_at <= 10:
        acts.setdefault(cfg.pfc_at, []).append(lambda: pfc(SWQ))
    if cfg.pfq_at == 0:
        save = list(vm.items)
        pfq()
        vm.items = save
    elif cfg.pfq_at <= 10:
        acts.setdefault(cfg.pfq_at, []).append(pfq)
    for c, p in enumerate((cfg.w0_at, cfg.w1_at, cfg.w2_at)[:cfg.lead + 1]):
        acts.setdefault(p, []).append(lambda c=c: issue_chunk(c))
    if cfg.pf1_at <= 10:
        acts.setdefault(cfg.pf1_at, []).append(pf1)
    if cfg.pfc1:
        acts.setdefault(10, []).append(lambda: pfc(SW1))
    layernorm(acts)
    a("s_cmp_ge_u32 s60, 4")
    a("s_cbranch_scc1 L_loader")

    QR, SB, WF, FA, OA, KV, HB = 8, 24, 56, 64, 128, 192, 228
    NKV = 3

    def att_init_ops():
        ops = ["v_mov_b32 %s, 0" % vr(OA + 16 * t + i) for t in range(4) for i in range(9)]
        ops2 = ["v_and_b32 v7, 27, v0", "v_cmp_eq_u32 vcc, 16, v7", "v_mov_b32 v7, 0x3f803f80", "v_cndmask_b32 v7, 0, v7, vcc"]
        ops2 += ["v_mov_b32 %s, v7" % vr(KV + 12 * b + 4 + q) for b in range(NKV) for q in range(8)]
        return ops, ops2

    def kvload(j):
        b = j % NKV
        bload(KV + 12 * b, 4, 252, SWS, "s82", 0, "sc1", ("kv", j))
        a("s_mov_b64 exec, %s" % sr(sVM, 2))
        bload(KV + 12 * b + 4, 4, 253, SWS, "s82", 0, "sc1", ("kv", j))
        bload(KV + 12 * b + 8, 4, 254, SWS, "s82", 0, "sc1", ("kv", j))
        a("s_mov_b64 exec, -1")
        a("s_add_u32 s82, s82, 2048")

    def att_loads():
        a("s_and_b32 s72, s60, 1")
        a("s_lshl_b32 s73, s72, 10")
        a("v_add_u32 v252, s73, v1")
        a("s_lshr_b32 s73, 0x400, s72")
        a("v_add_u32 v253, s73, v2")
        a("s_mul_i32 s73, s72, 0x600")
        a("s_sub_u32 s73, 0x600, s73")
        a("v_add_u32 v254, s73, v2")
        bload(QR, 4, 1, SWS, "s92", 0, "sc1", "q")
        kvload(0)
        for t in range(1, 4):
            bload(QR + 4 * t, 4, 1, SWS, sr(92 + t), 0, "sc1", "q")
        kvload(1)

    def dump_addr():
        a("v_lshlrev_b32 v8, 2, v0")
        a("v_add_u32 v9, s99, v1")
        a("v_add_u32 v10, s99, v8")
        a("v_bfe_u32 v11, v0, 4, 1")
        a("v_lshl_add_u32 v11, v11, 10, v2")

    def dump(t):
        a("v_add_u32 v12, %s, v1" % sr(96 + t))
        a("v_add_u32 v13, %s, v8" % sr(96 + t))
        dsw("ds_write_b128", 12, OA + 16 * t, 4, t * 2304)
        dsw("ds_write_b128", 12, OA + 16 * t + 4, 4, t * 2304 + 1024)
        dsw("ds_write_b32", 13, OA + 16 * t + 8, 1, t * 2304 + 2048)

    deferred = []
    cfg_gap = {0: range(16), 1: (1, 10), 2: (1, 4, 10), 3: (4, 10)}[cfg.gap]

    def att_run(n, hooks):
        hooks.setdefault((n - 1, 0, 11), []).append(dump_addr)
        for t in range(3):
            hooks.setdefault((n - 1, t + 1, 12), []).append(lambda t=t: dump(t))
        vm.wait("q", ("kv", 0))
        mfma32(SB, KV, QR, None)
        for j in range(n):
            b = j % NKV
            for t in range(4):
                cur, oth = SB + 16 * (t & 1), SB + 16 * ((t + 1) & 1)
                for i in range(16):
                    a("v_exp_f32 %s, %s" % (vr(cur + i), vr(cur + i)))
                    if i in cfg_gap:
                        while deferred:
                            deferred.pop(0)()
                    if t == cfg.kvt and i == cfg.kvi and j + NKV - 1 < n and not (cfg.abl & 32 and j > 0):
                        kvload(j + NKV - 1)
                    if i == 1 and (j, t) != (0, 0):
                        smf(OA + 16 * ((t + 3) & 3), KV + 12 * (b if t else (j - 1) % NKV) + 8, oth + 8)
                    if i == 4:
                        if t < 3:
                            mfma32(oth, KV + 12 * b, QR + 4 * (t + 1), None)
                        elif j + 1 < n:
                            vm.wait(("kv", j + 1))
                            mfma32(oth, KV + 12 * ((j + 1) % NKV), QR, None)
                    if i == 10:
                        smf(OA + 16 * t, KV + 12 * b + 4, cur)
                    for h in hooks.get((j, t, i), ()):
                        h()
        smf(OA + 48, KV + 12 * ((n - 1) % NKV) + 8, SB + 16 + 8)

    ACC = (24, 40, 56)
    WB, NBUF, LA = 72, 6, cfg.look
    XF, PK, XA = 128, 96, 16
    init1, init2 = att_init_ops()

    def item(g):
        return divmod(g % 96, 3)

    def reads(g):
        ks, sel = item(g)
        c, m = divmod(g, 12)
        so = slot_of(c)
        base, so = (XA, 0) if so < 0 else (8 + so // 49152, so % 49152)
        if g < 96 and sel == 0:
            dsr("ds_read_b128", XF + 4 * ks, 4, XA + (ks & 3), (ks >> 2) * 8192, g)
        trread(WB + 4 * (g % NBUF), base, so + m * 2048, 512, g)

    def pack(acc, pk):
        return ["v_cvt_pk_bf16_f32 %s, %s, %s" % (vr(pk + q), vr(acc + 2 * q), vr(acc + 2 * q + 1)) for q in range(8)]

    def st2(pk, va, base, delta, tag, imm=(0, 0), vb=None):
        def first():
            bstore(pk, 4, va, SWS, base, imm[0], "" if cfg.abl & 64 else "sc1", tag)

        def second():
            if delta:
                a("s_add_u32 s72, %s, %d" % (base, delta))
            bstore(pk + 4, 4, vb or va, SWS, "s72" if delta else base, imm[1], "" if cfg.abl & 64 else "sc1", tag)
        return [first, second]

    def relu2(acc):
        return (["v_max_f32 %s, 0, %s" % (vr(acc + i), vr(acc + i)) for i in range(16)]
                + ["v_mul_f32 %s, %s, %s" % (vr(acc + i), vr(acc + i), vr(acc + i)) for i in range(16)])

    def bias(seg):
        return lambda: (vm.wait("b1"), mfma32(ACC[seg], 112 + 4 * seg, 124, None))

    tagq = ["v_or_b32 %s, 1, %s" % (vr(PK + 4 * q), vr(PK + 4 * q)) for q in range(2)]
    qkv_epi = (["v_mul_f32 %s, 0x%x, %s" % (vr(ACC[0] + i), QSCALE, vr(ACC[0] + i)) for i in range(16)]
               + pack(ACC[0], PK) + tagq + [bias(0)] + st2(PK, 1, "s76", 0, "st", (0, 1024))
               + pack(ACC[1], PK + 8) + [bias(1)] + st2(PK + 8, 11, "s77", 0x20400, "st")
               + pack(ACC[2], PK) + [bias(2)] + st2(PK, 12, "s77", 0, "st", (1024, 1536), 14))
    sched = {100: ["v_subrev_u32 %s, %d, v8" % (vr(XA), L_RING)], 144: init1, 180: init2}
    shadow = []

    def run_shadow(budget):
        while shadow and budget > 0:
            op = shadow.pop(0)
            if isinstance(op, str):
                a(op)
                budget -= 1
            else:
                op()
                budget -= 3

    a("""
    s_lshl_b32 s85, s60, 14
    s_lshl_b32 s72, s67, 7
    s_add_u32 s85, s85, s72
    s_lshl_b32 s86, s60, 6
    s_lshl1_add_u32 s86, s66, s86
    s_lshl_b32 s86, s86, 10
    s_add_u32 s86, s86, %d
    s_lshl_b32 s87, s66, 10
    s_add_u32 s87, s87, %d
    """ % (WS_HF, WS_FLAGH))
    vm.wait(("w", 0))
    a("s_waitcnt lgkmcnt(0)")
    a("s_add_u32 %s, %s, 0x%x" % (sr(sTAG), sr(sTAG), EPOCH_INC))
    if cfg.bst == 3:
        stamp(9, True)
    a("s_barrier")
    stamp(3)
    if cfg.bst == 3:
        stamp(10, True)
    for g in range(LA):
        reads(g)
    for g in range(192):
        ks, sel = item(g)
        if g == 96:
            stamp(4)
            shadow.extend(qkv_epi)
            run_shadow(1000)
            stamp(5)
        lg.wait(g)
        x, w = XF + 4 * ks, WB + 4 * (g % NBUF)
        c = None if (g < 96 and ks == 0) else ACC[sel]
        if g < 96 and sel == 2:
            mfma32(ACC[sel], x, w, c)
        else:
            mfma32(ACC[sel], w, x, c)
        n = g + LA
        if n < 192:
            if n % 12 == 0 and n // 12 not in skip_bar:
                vm.wait(("w", n // 12))
                if n // 12 == cfg.flag_chunk:
                    vm.wait("st")
                a("s_barrier")
                if n // 12 == cfg.flag_chunk:
                    a("s_cmp_lg_u32 s60, 0")
                    a("s_cselect_b32 s79, 0x40000000, s79")
                    set_flag(7, "s79")
                    stamp(6)
            reads(n)
        if g == 40:
            for seg in range(3):
                a("buffer_load_ushort %s, v10, %s, s81 offen offset:%d" % (vr(112 + 4 * seg), srd(SB1), seg * 128))
                vm.push("b1")
        shadow.extend(sched.get(g, ()))
        run_shadow(3)
    run_shadow(1000)
    stamp(7)
    hepi = []
    for seg in range(3):
        pk = PK + 8 * (seg & 1)
        hepi.append(relu2(ACC[seg]) + pack(ACC[seg], pk) + (["s_add_u32 s78, s78, 0x40000"] if seg == 1 else [])
                    + st2(pk, 1, "s78" if seg < 2 else "s88", 0x10000, "hst"))
    a("s_barrier")
    stamp(8)
    a("s_setprio 2")
    for seg in range(cfg.hpre):
        shadow.extend(hepi[seg])
    run_shadow(1000)
    att_loads()
    for seg in range(cfg.hpre, 3):
        shadow.extend(hepi[seg])
    run_shadow(1000)
    stamp(9)


    def w2dma(i):
        if cfg.abl & 1:
            return
        a("s_add_u32 m0, s84, %d" % ((i & 3) * 2048))
        a("s_add_u32 s72, s85, %d" % (i * 65536))
        dma(4, SW2, "s72", 0, ("w2", i))
        a("s_add_u32 s72, s72, 7168")
        dma(4, SW2, "s72", 1024, ("w2", i))

    hreg = lambda i, tt: HB + 8 * (i % 3) + 4 * tt

    def hload(i):
        if cfg.abl & 1:
            return
        if i > 0:
            a("s_add_u32 s86, s86, 0x40000")
        for tt in range(2):
            bload(hreg(i, tt), 4, 1, SWS, "s86", tt * 1024, "sc1", ("h", i))

    def w2read(i, nt):
        if cfg.abl & 2:
            return
        vm.wait(("w2", i))
        trread(WF + 4 * nt, 5 + nt, (i & 3) * 2048, 1024, ("wf", i, nt))

    def fslot(f):
        i, m = divmod(f, 4)
        nt, tt = ((0, 0), (0, 1), (1, 1), (1, 0))[m]
        vm.wait(("h", i))
        lg.wait(("wf", i, nt))
        d = FA + 16 * (2 * tt + nt)
        if not cfg.abl & 4:
            mfma32(d, WF + 4 * nt, hreg(i, tt), None if i == 0 else d)
        if m == 1 and i + 1 < NS:
            deferred.append(lambda: w2read(i + 1, 0))
        if m == cfg.dmam and i + 4 < NS:
            deferred.append(lambda: w2dma(i + 4))
        if m == 3:
            if i + 1 < NS:
                deferred.append(lambda: w2read(i + 1, 1))
            if i + 3 < NS:
                deferred.append(lambda: hload(i + 3))

    def park(tt, nt):
        d = FA + 16 * (2 * tt + nt)
        for q in range(8):
            a("v_cvt_pk_bf16_f32 %s, %s, %s" % (vr(d + q), vr(d + 2 * q), vr(d + 2 * q + 1)))
        for q in range(2):
            dsw("ds_write_b128", 4, d + 4 * q, 4, tt * 32 * PART_STRIDE + nt * 64 + q * 32)

    def park_addr():
        a("v_and_b32 v4, 31, v0")
        a("v_mul_u32_u24 v4, %d, v4" % PART_STRIDE)
        a("v_lshrrev_b32 v5, 5, v0")
        a("v_lshl_add_u32 v4, v5, 4, v4")
        a("v_add_u32 v4, s84, v4")

    hooks = {}

    def hook(j, t, i, f):
        hooks.setdefault((j, t, i), []).append(f)

    n1 = cfg.n1
    hook(cfg.hflag >> 2, cfg.hflag & 3, 12, lambda: (vm.wait("hst"), set_flag(7, "s80"), stamp(1) if cfg.hst else None))
    hook(n1 - 2, 0, 8, lambda: flag_load(7, 2, "s87", "hf"))
    hook(n1 - 2, 3, 12, lambda: (vm.wait("hf"), stamp(2) if cfg.hst else None, check_flags("h", 7, 2, "s87"), stamp(3) if cfg.hst else None))
    for i in range(4):
        hook(n1 - 3 + (i >> 1), 1 + (i & 1), 7, lambda i=i: w2dma(i))
    for i in range(3):
        hook(n1 - 1, i, 7, lambda i=i: hload(i))
    hook(n1 - 1, 3, 7, lambda: (w2read(0, 0), w2read(0, 1)))
    pat = [int(ch) for ch in str(cfg.fpat)]
    slots = [(j, t, pos) for j in range(n1, nA) for t in range(4) for pos in ((13,), (7, 13))[pat[t] - 1]]
    for f in range(4 * NS):
        hook(*slots[f], lambda f=f: fslot(f))
    tl = slots[4 * NS - 1][0] * 4 + slots[4 * NS - 1][1] + 1
    assert tl + 3 < 4 * nA
    hook(tl >> 2, tl & 3, 6, park_addr)
    for n, (nt, tt) in enumerate(((0, 0), (0, 1), (1, 1), (1, 0))):
        hook((tl + n) >> 2, (tl + n) & 3, 7, lambda tt=tt, nt=nt: park(tt, nt))
    if cfg.hst:
        for n in range(4):
            hook(n1 + 4 * n, 0, 1, lambda n=n: stamp(4 + n))
    att_run(nA, hooks)
    vm.drain()
    a("s_branch L_att_done")

    a.label("L_loader")
    vm.items = []
    lg.items = []

    def b_setup():
        a("; waves 4-7: W1 DMA offsets v56/v57 (sixth tile out of range where the next group owns it), wo DMA offset v4, flagQ row s79")
        a("""
        v_mul_u32_u24 v56, 2752, v4
        v_add_u32 v56, v56, v6
        s_lshr_b32 s72, 0x5b, s61
        s_and_b32 s72, s72, 1
        s_lshl_b32 s72, s72, 23
        v_and_b32 v57, 64, v6
        v_mad_u32_u24 v57, v57, s72, v56
        v_bfe_u32 v6, v4, 1, 2
        v_lshlrev_b32 v6, 1, v6
        v_xor_b32 v6, v6, v5
        v_lshlrev_b32 v6, 4, v6
        v_lshl_add_u32 v4, v4, 10, v6
        v_min_u32 v5, 10, v0
        v_lshlrev_b32 v5, 7, v5
        v_min_u32 v6, 3, v0
        v_lshlrev_b32 v6, 7, v6
        s_lshr_b32 s79, s64, 1
        s_lshl_b32 s79, s79, 10
        s_add_u32 s79, s79, %d
        s_and_b32 s73, s60, 3
        s_lshl_b32 s72, s69, 6
        s_mul_i32 s80, s73, %d
        s_add_u32 s80, s80, s72
        """ % (WS_FLAGQ, 16 * 2752))

        a("v_mov_b32 v3, 0xdddddddd")

    issued = cfg.lead
    setup1()
    state = {"issued": issued}

    def b_step(c):
        if c in skip_bar:
            return
        vm.wait(("w", c + 1 if c + 1 in skip_bar else c))
        if cfg.bst == 2:
            stamp(c, True)
        if cfg.bst == 3 and c == 0:
            stamp(9, True)
        a("s_barrier")
        if cfg.bst == 1:
            stamp(c, True)
        if c in (0, 8, 12, 15):
            stamp({0: 3, 8: 4, 12: 5, 15: 6}[c])
        if c == cfg.bload - 1:
            flag_load(7, 4, "s79", "qf")
        if c == cfg.bload:
            vm.wait("qf")
            check_flags("q", 7, 4, "s79")
            stamp(7)
            att_loads()
        lim = c + 2
        if cfg.xslot == 12 and c == 9:
            lim = 12
        if cfg.xslot == 11 and c in (8, 9):
            lim = c + 3
        if cfg.xslot and c >= 11:
            lim = c + cfg.xrun
        while state["issued"] < min(15, max(3, lim)):
            state["issued"] += 1
            issue_chunk(state["issued"])
        if c == 1:
            setup2()
        for at, srd_, per in ((cfg.spf1, SW1, 22), (cfg.spf2, SW2, 22), (cfg.spf2 + 2, SWO, 8)):
            if at < 90 and c in (at, at + 1) and (c - at) * 11 < per:
                a("; memory-side prefetch through the scalar path")
                a("s_and_b32 s73, s60, 3")
                a("s_lshl2_add_u32 s73, s2, s73")
                a("s_mul_i32 s73, s73, %d" % (per * 64))
                for i in range((c - at) * 11, min(per, (c - at) * 11 + 11)):
                    a("s_buffer_load_dword s101, %s, s73 offset:%d" % (srd(srd_), i * 64))
        if c == 15:
            a("s_waitcnt lgkmcnt(0)")
        if cfg.pf1_at == 12 + c:
            assert c >= 1
            pf1()
        if c == 2:
            setup3()
        if c == 3:
            b_setup()
        if c == 4:
            for op in init1:
                a(op)
        if c == 5:
            for op in init2:
                a(op)
        if c == 7:
            a("s_waitcnt lgkmcnt(0)")
            a("s_add_u32 %s, %s, 0x%x" % (sr(sTAG), sr(sTAG), EPOCH_INC))

    def b_att():
        a("s_barrier")
        stamp(8)
        a("s_setprio 1")

    bhooks = {}
    for c in range(17):
        f = (lambda c=c: b_step(c)) if c < 16 else b_att
        if c <= cfg.bjoin:
            f()
        else:
            tl = (c - cfg.bjoin) * cfg.btile - 1
            bhooks[(tl >> 2, tl & 3, 13)] = [f]

    def wo_dma(lo, hi):
        if cfg.abl & 8:
            return
        if lo == 0:
            a("; wo tile -> LDS [0, 64K), a few rows per score tile")
            a("s_and_b32 s78, s60, 3")
            a("s_lshl_b32 s76, s78, 17")
            a("s_lshl_b32 s73, s67, 7")
            a("s_add_u32 s76, s76, s73")
            a("s_lshl_b32 s78, s78, 14")
        for i in range(lo, hi):
            a("s_add_u32 m0, s78, %d" % (i * 1024))
            a("s_add_u32 s73, s76, %d" % (i * 8192))
            dma(4, SWO, "s73", 0, "wo")

    def pf_late():
        if cfg.abl & 16 or cfg.spf2 < 90:
            return
        a("s_and_b32 s73, s60, 3")
        a("s_lshl2_add_u32 s73, s2, s73")
        a("s_mul_i32 s72, s73, 1408")
        a("s_lshl_b32 s73, s73, 9")
        bload(7, 1, 5, SW2, "s72", 0, "", "pf")
        bload(7, 1, 6, SWO, "s73", 0, "", "pf")

    bhooks[(cfg.pfl >> 2, cfg.pfl & 3, 7)] = [pf_late]
    for n, lo in enumerate(range(0, 16, cfg.won)):
        bhooks[((cfg.wol + n) >> 2, (cfg.wol + n) & 3, 8)] = [lambda lo=lo: wo_dma(lo, lo + cfg.won)]
    att_run(nB, bhooks)
    vm.drain()

    OW = OA + 48
    WOF, OFR, AC, G, Z, X, SR = 128, 24, 8, 64, 96, 104, 112
    a.label("L_att_done")
    stamp(10)
    a("s_setprio 0")
    a("s_and_b32 s73, s60, 1")
    a("s_lshl_b32 s73, s73, 9")
    a("s_sub_u32 s76, s95, s73")
    a("""
    s_and_b32 s74, s60, 3
    s_lshr_b32 s75, s60, 2
    v_lshrrev_b32 v14, 3, v0
    v_and_b32 v7, 7, v0
    v_lshlrev_b32 v7, 4, v7
    v_lshl_add_u32 v14, v14, 10, v7
    s_lshl3_add_u32 s78, s66, s60
    s_lshl_b32 s78, s78, 13
    s_lshl_b32 s79, s67, 7
    s_add_u32 s78, s78, s79
    """)
    bload(60, 4, 7, SB2, "s79", 0, "", "xb")
    bload(56, 4, 14, SX, "s78", 0, "", "xb")
    lg.drain()
    a("s_barrier")
    for src in range(3):
        d = SB + 10 * src
        dsr("ds_read_b128", d, 4, 9, src * 2304, src)
        dsr("ds_read_b128", d + 4, 4, 9, src * 2304 + 1024, src)
        dsr("ds_read_b32", d + 8, 1, 10, src * 2304 + 2048, src)
    for src in range(3):
        lg.wait(src)
        for i in range(0, 8, 2):
            a("v_pk_add_f32 %s, %s, %s" % (vr(OW + i, 2), vr(OW + i, 2), vr(SB + 10 * src + i, 2)))
        a("v_add_f32 %s, %s, %s" % (vr(OW + 8), vr(OW + 8), vr(SB + 10 * src + 8)))
    a("v_pk_mul_f32 v[12:13], %s, 0 op_sel_hi:[1,0]" % vr(OW, 2))
    for i in range(2, 8, 2):
        a("v_pk_fma_f32 v[12:13], %s, 0, v[12:13] op_sel_hi:[1,0,1]" % vr(OW + i, 2))
    a("""
    v_add_f32 v12, v12, %s
    v_add_f32 v12, v12, v13
    v_cmp_nle_f32 vcc, 0x30800000, v12
    s_mov_b64 s[72:73], vcc
    v_cmp_nge_f32 vcc, 0x5d800000, v12
    s_or_b64 s[72:73], s[72:73], vcc
    """ % vr(OW + 8))
    a("s_branch L_slow" if cfg.force_slow else "s_cbranch_scc1 L_slow")
    a.label("L_norm")
    a("v_rcp_f32 v12, %s" % vr(OW + 8))
    for i in range(0, 8, 2):
        a("v_pk_mul_f32 %s, %s, v[12:13] op_sel_hi:[1,0]" % (vr(OW + i, 2), vr(OW + i, 2)))
    for q in range(4):
        a("v_cvt_pk_bf16_f32 %s, %s, %s" % (vr(16 + q), vr(OW + 2 * q), vr(OW + 2 * q + 1)))
    a("v_and_b32 v16, -2, v16")
    bstore(16, 4, 11, SWS, "s76", 0, "sc1", "ost")
    stamp(11)
    a("v_mov_b32 v2, v14")
    a("v_lshrrev_b32 v3, 3, v0")
    a("""
    v_mul_u32_u24 v4, %d, v3
    s_mul_i32 s72, s60, %d
    s_add_u32 s72, s72, %d
    v_add3_u32 v4, v4, v7, s72
    """ % (PART_STRIDE, 8 * PART_STRIDE, L_W2))
    for j in range(4):
        dsr("ds_read_b128", G + 4 * j, 4, 4, j * W2_REGION, "g")
    a("""
    v_bfe_u32 v4, v0, 2, 2
    v_bfe_u32 v5, v0, 4, 1
    v_lshl_add_u32 v4, v5, 2, v4
    v_lshrrev_b32 v5, 1, v4
    v_lshlrev_b32 v92, 7, v4
    v_lshl_add_u32 v92, v5, 5, v92
    v_lshrrev_b32 v6, 5, v0
    v_lshl_add_u32 v92, v6, 11, v92
    v_and_b32 v4, 3, v0
    v_lshl_add_u32 v92, v4, 3, v92
    s_lshl_b32 s72, s75, 15
    v_add_u32 v92, s72, v92
    v_xor_b32 v93, 32, v92
    v_xor_b32 v94, 64, v92
    v_xor_b32 v95, 0x60, v92
    s_barrier
    """)

    def oloads(first=0):
        for ks in range(first, 8):
            bload(OFR + 4 * ks, 4, 1, SWS, ("s76", "s77", "s80", "s81")[ks >> 1], (ks & 1) * 2048, "sc1", ("o", ks))

    fill = ("""
    s_lshl2_add_u32 s72, s66, s74
    s_lshr_b32 s76, s72, 1
    s_lshl1_add_u32 s76, s76, s75
    s_lshl_b32 s76, s76, 14
    s_and_b32 s72, s72, 1
    s_lshl_b32 s72, s72, 10
    s_add_u32 s76, s76, s72
    s_add_u32 s76, s76, %d
    s_add_u32 s77, s76, 0x1000
    s_add_u32 s80, s76, 0x2000
    s_add_u32 s81, s76, 0x3000
    v_mul_u32_u24 v3, %d, v3
    v_lshl_add_u32 v3, v7, 1, v3
    s_mul_i32 s72, s60, %d
    s_add_u32 s72, s72, %d
    v_add_u32 v3, s72, v3
    v_and_b32 v5, 15, v0
    v_mul_u32_u24 v5, %d, v5
    v_and_b32 v4, 48, v0
    s_mul_i32 s72, s60, %d
    s_add_u32 s72, s72, %d
    v_add3_u32 v5, v5, v4, s72
    s_mov_b32 s82, 0x3f80
    s_mov_b32 s83, 0x3f800000
    """ % (WS_QO, SUM_STRIDE, 8 * SUM_STRIDE, L_SUM, SUM_STRIDE, 16 * SUM_STRIDE, L_SUM)).strip().split("\n")
    gate = ["v_mov_b32 %s, 0" % vr(Z + i) for i in range(8)]
    gate.append(lambda: lg.wait("g"))
    for j in range(5):
        if j == 4:
            gate.append(lambda: vm.wait("xb"))
        for q in range(4):
            src = G + 4 * j + q if j < 4 else 60 + q
            gate.append("v_dot2c_f32_bf16 %s, s82, %s" % (vr(Z + 2 * q), vr(src)))
            gate.append("v_dot2c_f32_bf16 %s, s83, %s" % (vr(Z + 2 * q + 1), vr(src)))
    for q in range(4):
        gate.append("v_lshlrev_b32 %s, 16, %s" % (vr(X + 2 * q), vr(56 + q)))
        gate.append("v_and_b32 %s, s89, %s" % (vr(X + 1 + 2 * q), vr(56 + q)))
    gate += ["v_mul_f32 %s, 0x%x, %s" % (vr(G + i), NLOG2E, vr(Z + i)) for i in range(8)]
    gate += ["v_exp_f32 %s, %s" % (vr(G + i), vr(G + i)) for i in range(8)]
    gate += ["v_add_f32 %s, 1.0, %s" % (vr(G + i), vr(G + i)) for i in range(8)]
    gate += ["v_rcp_f32 %s, %s" % (vr(G + i), vr(G + i)) for i in range(8)]
    gate += ["v_mul_f32 %s, %s, %s" % (vr(Z + i), vr(Z + i), vr(G + i)) for i in range(8)]

    def wo_reads(oat, per):
        for ks in range(8):
            for ct in range(4):
                trread(WOF + (ks * 4 + ct) * 4, 92 + ct, ks * 4096, 1024, ("wo", ks))
                run_shadow(per)
            if ks == oat:
                run_shadow(1000)
                vm.wait("ost")
                oloads()

    vm_t, lg_t = list(vm.items), list(lg.items)
    a("s_cmp_ge_u32 s60, 4")
    a("s_cbranch_scc1 L_tail_b")
    shadow.extend(fill)
    wo_reads(7, 1)
    shadow.extend(gate)
    run_shadow(1000)
    a("s_branch L_tail_j")
    a.label("L_tail_b")
    vm.items, lg.items = vm_t, lg_t
    shadow.extend(fill + gate)
    run_shadow(1000)
    wo_reads(cfg.oat, 0)
    a.label("L_tail_j")
    stamp(12)
    a("s_mov_b32 s73, 0")
    lg.drain()
    for ks in range(8):
        a.label("L_wo_%d" % ks)
        vm.wait(("o", ks))
        a("v_and_b32 v6, 1, %s" % vr(OFR + 4 * ks))
        a("v_cmp_ne_u32 vcc, 0, v6")
        a("s_cbranch_vccnz L_oretry_%d" % ks)
        a.label("L_ogo_%d" % ks)
        for ct in range(4):
            d = AC + 4 * ct
            mfma16(d, WOF + (ks * 4 + ct) * 4, OFR + 4 * ks, None if ks == 0 else d)
    stamp(13)
    for ct in range(4):
        dsw("ds_write_b128", 5, AC + 4 * ct, 4, ct * 64)
    lg.drain()
    a("s_barrier")
    stamp(14)
    dsr("ds_read_b128", SR, 4, 3, 0, 0)
    dsr("ds_read_b128", SR + 8, 4, 3, SUM_SIZE, 0)
    dsr("ds_read_b128", SR + 4, 4, 3, 16, 1)
    dsr("ds_read_b128", SR + 12, 4, 3, SUM_SIZE + 16, 1)
    for h in range(2):
        lg.wait(h)
        for i in range(4 * h, 4 * h + 4, 2):
            a("v_pk_add_f32 %s, %s, %s" % (vr(SR + i, 2), vr(SR + i, 2), vr(SR + 8 + i, 2)))
        for i in range(4 * h, 4 * h + 4, 2):
            a("v_pk_fma_f32 %s, %s, %s, %s" % (vr(SR + i, 2), vr(SR + i, 2), vr(Z + i, 2), vr(X + i, 2)))
        for q in range(2 * h, 2 * h + 2):
            a("v_cvt_pk_bf16_f32 %s, %s, %s" % (vr(G + q), vr(SR + 2 * q), vr(SR + 2 * q + 1)))
    bstore(G, 4, 2, SOUT, "s78", 0, ("", "sc1", "nt", "sc0 sc1", "sc0 sc1 nt")[cfg.omod])
    a("s_or_b32 s72, s2, s60")
    a("s_cmp_lg_u32 s72, 0")
    a("s_cbranch_scc1 L_noepoch")
    set_flag(7, "0")
    a.label("L_noepoch")
    if cfg.stamps:
        a("s_waitcnt vmcnt(0)")
        stamp(15)
        if cfg.probe is not None:
            a("s_sub_u32 s72, %s, s4" % sr(sSTAMP + cfg.probe))
            if cfg.stamps == 2:
                a("s_lshr_b32 s72, s72, 3")
            else:
                a("s_lshl_b32 s72, s72, %d" % cfg.probesh)
            a("s_cmp_lg_u32 s2, %d" % cfg.probewg)
            a("s_cselect_b32 s72, 0, s72")
            a("s_cmp_lg_u32 s60, %d" % cfg.probew)
            a("s_cselect_b32 s72, 0, s72")
            a("s_memrealtime s[22:23]")
            a("s_waitcnt lgkmcnt(0)")
            a("s_mov_b32 s73, s22")
            a.label("L_probe")
            a("s_memrealtime s[22:23]")
            a("s_waitcnt lgkmcnt(0)")
            a("s_sub_u32 s22, s22, s73")
            a("s_cmp_lt_u32 s22, s72")
            a("s_cbranch_scc1 L_probe")
        a("s_lshl3_add_u32 s72, s2, s60")
        a("s_lshl_b32 s72, s72, 6")
        a("s_add_u32 s72, s72, %d" % WS_STAMP)
        for i in range(16):
            a("v_mov_b32 %s, %s" % (vr(80 + i), sr(sSTAMP + i)))
        a("s_mov_b64 exec, 1")
        for i in range(4):
            bstore(80 + 4 * i, 4, 1, SWS, "s72", 16 * i)
    a.label("L_end")
    a("s_endpgm")

    for ks in range(8):
        a.label("L_oretry_%d" % ks)
        a("s_add_u32 s73, s73, 1")
        a("s_cmp_ge_u32 s73, %d" % SPIN_MAX)
        a("s_cbranch_scc1 L_ogo_%d" % ks)
        a("s_waitcnt vmcnt(0)")
        oloads(ks)
        a("s_branch L_wo_%d" % ks)

    for tag, vt, lanes, soff in stubs:
        a.label("L_poll_" + tag)
        a("s_mov_b32 s73, 0")
        a.label("L_poll2_" + tag)
        a("s_sleep %d" % cfg.sleep)
        flag_load(vt, lanes, soff, None)
        a("s_add_u32 s73, s73, 1")
        a("s_waitcnt vmcnt(0)")
        a("s_cmp_ge_u32 s73, %d" % SPIN_MAX)
        a("s_cbranch_scc1 L_polled_" + tag)
        a("v_cmp_ne_u32 vcc, %s, %s" % (sr(sTAG), vr(vt)))
        a("s_cbranch_vccnz L_poll2_" + tag)
        a("s_branch L_polled_" + tag)

    a.label("L_slow")
    CN = SB + 16
    a("s_waitcnt vmcnt(0)")
    a("v_mov_b32 v13, 0xff800000")
    a("s_mov_b32 s82, s83")
    a("s_mov_b32 s81, 64")
    a.label("L_slow1")
    bload(KV, 4, 252, SWS, "s82", 0, "sc1")
    a("s_add_u32 s82, s82, 2048")
    a("s_waitcnt vmcnt(0)")
    mfma32(SB, KV, QR + 12, None)
    for i in range(0, 16, 2):
        a("v_max3_f32 v13, v13, %s, %s" % (vr(SB + i), vr(SB + i + 1)))
    a("s_sub_u32 s81, s81, 1")
    a("s_cmp_lg_u32 s81, 0")
    a("s_cbranch_scc1 L_slow1")
    a("v_mov_b32 v15, v13")
    a("v_permlane32_swap_b32 v15, v13")
    a("v_max_f32 v13, v15, v13")
    for i in range(16):
        a("v_sub_f32 %s, 0, v13" % vr(CN + i))
        a("v_mov_b32 %s, 0" % vr(OW + i))
    a("s_mov_b32 s82, s83")
    a("s_mov_b32 s81, 64")
    a.label("L_slow2")
    kvload(0)
    a("s_waitcnt vmcnt(0)")
    mfma32(SB, KV, QR + 12, CN)
    for i in range(16):
        a("v_exp_f32 %s, %s" % (vr(SB + i), vr(SB + i)))
    smf(OW, KV + 4, SB)
    smf(OW, KV + 8, SB + 8)
    a("s_sub_u32 s81, s81, 1")
    a("s_cmp_lg_u32 s81, 0")
    a("s_cbranch_scc1 L_slow2")
    a("s_branch L_norm")
    a.label("L_code_end")
    a("s_endpgm")

    added = a.fix()
    return a.text(), added


HEADER = """; Kernarg layout for this problem (88 bytes, ptrs only, base s[0:1]):
; @launch grid=(256,1,1) block=(512,1,1) lds=163840
.amdgcn_target "amdgcn-amd-amdhsa--gfx950"
.text
.globl {k}
.p2align 8
.type {k},@function
{k}:
"""

FOOTER = """.section .rodata,"a"
.p2align 6
.amdhsa_kernel {k}
  .amdhsa_next_free_vgpr 256
  .amdhsa_next_free_sgpr 102
  .amdhsa_accum_offset 256
  .amdhsa_group_segment_fixed_size 0
  .amdhsa_kernarg_size 88
  .amdhsa_user_sgpr_count 2
  .amdhsa_user_sgpr_kernarg_segment_ptr 1
  .amdhsa_system_sgpr_workgroup_id_x 1
.end_amdhsa_kernel
"""


def build(**kw):
    cfg = Cfg()
    for k, v in kw.items():
        setattr(cfg, k, v)
    body, added = gen(cfg)
    return HEADER.format(k=KERNEL) + body + FOOTER.format(k=KERNEL), added


if __name__ == "__main__":
    out = sys.argv[1] if len(sys.argv) > 1 else "cdna_kernels/%s.s" % NAME
    kw = {}
    for arg in sys.argv[2:]:
        k, v = arg.split("=")
        kw[k] = int(v)
    text, added = build(**kw)
    open(out, "w").write(text)
    print("wrote", out, "lines", text.count("\n"), "nops added", added)
```

```python
import sys
import os
sys.path.insert(0, os.path.dirname(os.path.abspath(__file__)))
from asmlib import Asm, vr, sr

NAME = "recurrent_scan__softmax_full_mha__dense_activation_squared_relu__prompt"
KERNEL = NAME + "_kernel"

WS_FLAGQ = 0x1200
WS_FLAGH = 0x8000
WS_STAMP = 0x10000
WS_QO = 0x100000
WS_KV = 0x300000
WS_HF = 0x700000
WS_END = WS_HF + 86 * 65536
EPOCH_INC = 0x9E3779B9
SPIN_MAX = 1 << 18

L_RING = 65536
L_OPART = 65536
L_W2 = L_OPART + 55296
W2_REGION = 10240
PART_STRIDE = 144
SUM_STRIDE = 272
SUM_SIZE = 64 * SUM_STRIDE
L_SUM = L_OPART

SX, SWQ, SWO, SW1, SB1, SW2, SB2, SOUT, SWS = 24, 28, 32, 36, 40, 44, 48, 52, 56
sW, sCG, sTB, sRW, sP, sQB, sTBF, sCB, sTAG, sCT0 = 60, 61, 62, 63, 64, 65, 66, 67, 68, 69
sVM = 70
sSTAMP = 4

QSCALE = 0x3EB8AA3B
NLOG2E = 0xBFB8AA3B
NS = 22


class Cfg:
    abl = 0
    bst = 0
    xslot = 0
    xrun = 2
    n1 = 8
    nA = 22
    gap = 1
    kvt = 0
    kvi = 4
    dmam = 2
    fpat = 2221
    pf1_at = 10
    pfc_at = 0
    pfc1 = 0
    w2_at = 10
    pfl = 7
    wol = 14
    won = 1
    stamps = 0
    force_slow = 0
    flag_chunk = 10
    lead = 2
    defer = 1
    look = 5
    pfq_at = 8
    bload = 15
    bjoin = 16
    btile = 2
    sleep = 6
    w0_at = 7
    w1_at = 10
    hpre = 2
    hbar = 0
    hnow = 2
    hgap = 2
    hoff = 0
    kv3 = 1
    pfn = 11
    alow = 0
    pfg = 1
    hflag = 11
    probe = None
    omod = 1
    oat = 4
    probewg = 100
    probew = 0
    probesh = 4
    hst = 0


def srd(s):
    return sr(s, 4)


class Queue:
    def __init__(self, a, name, maxn):
        self.a, self.name, self.maxn, self.items = a, name, maxn, []

    def push(self, tag):
        self.items.append(tag)

    def wait(self, *tags):
        last = max((i for i, t in enumerate(self.items) if t in tags), default=-1)
        if last < 0:
            return
        n = len(self.items) - 1 - last
        self.a("s_waitcnt %s(%d)" % (self.name, min(n, self.maxn)))
        self.items = self.items[last + 1:]

    def drain(self):
        self.a("s_waitcnt %s(0)" % self.name)
        self.items = []


def gen(cfg):
    a = Asm()
    nA = cfg.nA
    nB = 32 - nA
    vm = Queue(a, "vmcnt", 63)
    lg = Queue(a, "lgkmcnt", 15)

    def stamp(i, force=False):
        if cfg.bst and not force and i != 0:
            return
        if cfg.stamps and (cfg.probe is None or i in (0, cfg.probe)):
            a("%s s[22:23]" % ("s_memtime" if cfg.stamps == 2 else "s_memrealtime"))
            a("s_waitcnt lgkmcnt(0)")
            a("s_mov_b32 %s, s22" % sr(sSTAMP + i))

    def mfma32(d, x, y, c):
        a("v_mfma_f32_32x32x16_bf16 %s, %s, %s, %s" % (vr(d, 16), vr(x, 4), vr(y, 4), "0" if c is None else vr(c, 16)))

    def mfma16(d, x, y, c):
        a("v_mfma_f32_16x16x32_bf16 %s, %s, %s, %s" % (vr(d, 4), vr(x, 4), vr(y, 4), "0" if c is None else vr(c, 4)))

    def smf(d, x, y):
        a("v_smfmac_f32_32x32x32_bf16 %s, %s, %s, v3" % (vr(d, 16), vr(x, 4), vr(y, 8)))

    def bload(d, n, va, s, so, off=0, mod="", tag=None):
        op = {1: "dword", 2: "dwordx2", 4: "dwordx4"}[n]
        a("buffer_load_%s %s, %s, %s, %s offen offset:%d %s" % (op, vr(d, n), vr(va), srd(s), so, off, mod))
        vm.push(tag)

    def bstore(d, n, va, s, so, off=0, mod="", tag=None):
        op = {1: "dword", 2: "dwordx2", 4: "dwordx4"}[n]
        a("buffer_store_%s %s, %s, %s, %s offen offset:%d %s" % (op, vr(d, n), vr(va), srd(s), so, off, mod))
        vm.push(tag)

    def dma(va, s, so, off=0, tag=None):
        a("buffer_load_dwordx4 %s, %s, %s offen offset:%d lds" % (vr(va), srd(s), so, off))
        vm.push(tag)

    def dsr(op, d, n, va, off, tag=None):
        a("%s %s, %s offset:%d" % (op, vr(d, n), vr(va), off))
        lg.push(tag)

    def dsw(op, va, d, n, off, tag=None):
        a("%s %s, %s offset:%d" % (op, vr(va), vr(d, n), off))
        lg.push(tag)

    def trread(d, va, off, second, tag=None):
        dsr("ds_read_b64_tr_b16", d, 2, va, off, tag)
        dsr("ds_read_b64_tr_b16", d + 2, 2, va, off + second, tag)

    def set_flag(vt, soff):
        a("v_mov_b32 %s, %s" % (vr(vt), sr(sTAG)))
        a("s_mov_b64 exec, 1")
        bstore(vt, 1, 1, SWS, soff, 0, "sc0 sc1")
        a("s_mov_b64 exec, -1")

    stubs = []

    def check_flags(tag, vt, lanes, soff):
        a("v_cmp_ne_u32 vcc, %s, %s" % (sr(sTAG), vr(vt)))
        a("s_cbranch_vccnz L_poll_" + tag)
        a.label("L_polled_" + tag)
        stubs.append((tag, vt, lanes, soff))

    def flag_load(vt, shift, soff, tag):
        a("v_and_b32 %s, 31, v0" % vr(vt))
        a("v_lshlrev_b32 %s, %d, %s" % (vr(vt), shift, vr(vt)))
        bload(vt, 1, vt, SWS, soff, 0, "sc0 sc1", tag)

    sizes = {SX: 2048 * 1024, SWQ: 512 * 3072, SWS: WS_END, SW1: 512 * 2752, SB1: 2752,
             SWO: 512 * 1024, SW2: 1376 * 1024, SB2: 1024, SOUT: 2048 * 1024}
    RAW = 128

    def xloads():
        for j in range(8):
            bload(RAW + j * 4, 4, 14, SX, "s101", j * 128, "", ("x", j))

    stamp(0)
    a("""
    s_load_dwordx2 s[24:25], s[0:1], 0
    s_getpc_b64 s[72:73]
    L_pc:
    s_cmpk_ge_u32 s2, 256
    s_cbranch_scc1 L_end
    s_lshr_b32 s74, s2, 3
    s_lshl_b32 s74, s74, 11
    v_lshrrev_b32 v8, 5, v0
    v_lshl_add_u32 v8, v8, 7, s74
    v_min_u32 v8, L_code_end-L_pc, v8
    v_mov_b32 v9, 0
    v_lshl_add_u64 v[8:9], v[8:9], 0, s[72:73]
    global_load_dword v7, v[8:9], off
    s_lshl_b32 s72, s2, 4
    s_and_b32 s72, s72, 0x180
    v_add_u32 v4, s72, v0
    v_bfe_u32 v4, v4, 3, 6
    v_and_b32 v5, 7, v0
    v_lshlrev_b32 v14, 10, v4
    v_lshl_add_u32 v14, v5, 4, v14
    s_lshr_b32 s67, s2, 5
    s_and_b32 s73, s2, 6
    s_lshl2_add_u32 s62, s73, s67
    s_lshl_b32 s101, s62, 16
    s_mov_b32 s26, %d
    s_mov_b32 s27, 0x20000
    v_bfe_u32 v24, v4, 1, 3
    v_xor_b32 v24, v24, v5
    v_lshlrev_b32 v15, 7, v4
    v_lshl_add_u32 v15, v24, 4, v15
    v_readfirstlane_b32 s60, v0
    v_and_b32 v0, 63, v0
    v_mov_b32 v24, 0
    v_mov_b32 v25, 0
    s_lshr_b32 s60, s60, 6
    s_cmp_ge_u32 s60, 4
    s_waitcnt lgkmcnt(0)
    """ % sizes[SX])
    vm.push("pf")
    if cfg.bst == 3:
        stamp(1, True)
    xloads()
    if cfg.bst == 3:
        stamp(2, True)
    if cfg.stamps:
        for i in range(3 if cfg.bst == 3 else 1, 16):
            a("s_mov_b32 %s, s4" % sr(sSTAMP + i))
    a("s_cbranch_scc1 L_ln")

    def setup1():
        for s, off in ((SWQ, 8), (SWS, 80), (SW1, 32), (SB1, 40), (SWO, 16), (SW2, 48), (SB2, 56), (SOUT, 64)):
            a("s_load_dwordx2 %s, s[0:1], %d" % (sr(s, 2), off))
        a("""
        s_mov_b32 s30, %d
        s_mov_b32 s31, 0x20000
        s_bfe_u32 s72, s2, 0x20003
        s_and_b32 s73, s2, 1
        s_lshl2_add_u32 s61, s73, s72
        s_and_b32 s74, s60, 3
        s_lshl_b32 s72, s61, 7
        s_mul_i32 s85, s74, %d
        s_add_u32 s85, s85, s72
        s_mul_i32 s87, s74, 6144
        s_add_u32 s87, s87, %d
        v_lshrrev_b32 v4, 3, v0
        v_bfe_u32 v6, v4, 1, 1
        v_lshlrev_b32 v6, 2, v6
        v_xor_b32 v6, v6, v5
        v_lshlrev_b32 v6, 4, v6
        v_mul_u32_u24 v13, 3072, v4
        v_add_u32 v13, v13, v6
        s_waitcnt lgkmcnt(0)
        """ % (sizes[SWQ], 16 * 3072, L_RING))

    def setup2():
        a("s_load_dword %s, %s, 0" % (sr(sTAG), sr(SWS, 2)))
        for s in (SW1, SWS, SB1, SWO, SW2, SB2, SOUT):
            a("s_mov_b32 %s, %d" % (sr(s + 2), sizes[s]))
            a("s_mov_b32 %s, 0x20000" % sr(s + 3))
        a("""
        s_and_b32 s73, s60, 3
        s_lshl2_add_u32 s100, s2, s73
        s_mul_i32 s100, s100, 1536
        v_min_u32 v31, 11, v0
        v_lshlrev_b32 v31, 7, v31
        s_bfe_u32 s72, s2, 0x20003
        s_and_b32 s73, s2, 7
        s_lshl2_add_u32 s66, s73, s72
        s_and_b32 s72, s72, 1
        s_lshl1_add_u32 s64, s73, s72
        s_lshr_b32 s65, s2, 4
        s_mul_i32 s69, s61, 43
        s_lshr_b32 s69, s69, 3
        s_mov_b32 s70, 0xffff
        s_mov_b32 s71, 0xffff
        v_lshlrev_b32 v1, 4, v0
        v_and_b32 v2, 15, v0
        v_lshrrev_b32 v3, 5, v0
        v_lshl_add_u32 v2, v3, 4, v2
        v_lshlrev_b32 v2, 4, v2
        """)

    def setup3():
        a("; attention offsets: s82 = next K/V tile, s83 = head base, s92-s95 = Q tiles, s96-s99 = O partial slots")
        a("""
        s_and_b32 s74, s60, 1
        s_lshr_b32 s75, s60, 1
        s_lshl1_add_u32 s72, s64, s74
        s_lshl_b32 s83, s72, 17
        s_add_u32 s83, s83, %d
        s_and_b32 s73, s75, 1
        s_lshl_b32 s73, s73, 16
        s_add_u32 s82, s83, s73
        s_lshl_b32 s72, s65, 6
        s_add_u32 s72, s72, s64
        s_lshl1_add_u32 s72, s72, s74
        s_lshl_b32 s72, s72, 10
        s_add_u32 s72, s72, %d
        s_mul_i32 s84, s74, %d
        s_add_u32 s84, s84, %d
        """ % (WS_KV, WS_QO, 12 * 2304, L_OPART))
        for t in range(4):
            a("s_xor_b32 s73, s75, %d" % (t ^ 3))
            a("s_mul_i32 %s, s73, %d" % (sr(96 + t), 3 * 2304))
            a("s_lshl_b32 s73, s73, 15")
            a("s_add_u32 %s, s72, s73" % sr(92 + t))
            a("s_add_u32 %s, %s, s84" % (sr(96 + t), sr(96 + t)))

    setup1()
    setup2()
    setup3()
    a("""
    s_add_u32 s82, s82, %d
    v_and_b32 v8, 0x33, v0
    v_and_b32 v9, 4, v0
    v_lshl_or_b32 v8, v9, 1, v8
    v_and_b32 v9, 8, v0
    v_lshrrev_b32 v9, 1, v9
    v_or_b32 v8, v8, v9
    v_lshlrev_b32 v11, 4, v8
    v_bfe_u32 v9, v0, 4, 1
    v_mul_u32_u24 v12, 0x1fe00, v9
    v_add_u32 v12, v12, v2
    v_mul_u32_u24 v14, 0x1fa00, v9
    v_add_u32 v14, v14, v2
    v_lshl_add_u32 v4, v4, 10, v6
    v_bfe_u32 v10, v0, 2, 2
    v_lshlrev_b32 v5, 5, v9
    v_lshl_add_u32 v5, v10, 7, v5
    v_and_b32 v9, 3, v0
    v_lshl_add_u32 v5, v9, 3, v5
    v_lshrrev_b32 v10, 1, v10
    v_lshl_add_u32 v8, v3, 10, v5
    v_xor_b32 v9, s75, v10
    v_lshl_add_u32 v8, v9, 6, v8
    v_add_u32 v8, %d, v8
    v_add_u32 v9, %d, v8
    v_lshl_add_u32 v5, v3, 9, v5
    v_lshl_add_u32 v5, v10, 6, v5
    v_lshrrev_b32 v10, 1, v0
    v_xor_b32 v10, v10, v0
    v_and_b32 v10, 1, v10
    v_mul_u32_u24 v10, 24, v10
    v_xor_b32 v5, v5, v10
    s_mul_i32 s84, s60, %d
    s_add_u32 s84, s84, %d
    v_add_u32 v5, s84, v5
    v_xor_b32 v6, 64, v5
    v_and_b32 v10, 31, v0
    s_lshl_b32 s72, s74, 12
    v_bfe_u32 v16, v10, 1, 3
    v_xor_b32 v16, v16, v3
    v_lshlrev_b32 v16, 4, v16
    v_lshl_add_u32 v16, v10, 7, v16
    v_add_u32 v16, s72, v16
    v_xor_b32 v17, 32, v16
    v_xor_b32 v18, 64, v16
    v_xor_b32 v19, 0x60, v16
    v_lshlrev_b32 v10, 1, v10
    v_lshl_add_u32 v10, v3, 20, v10
    """ % (nB * 2048, L_RING, 2 * 24576, W2_REGION, L_W2))
    for seg in range(3):
        for q in range(1, 4):
            a("v_mov_b32 %s, 0" % vr(112 + 4 * seg + q))
    for q in range(4):
        a("v_mov_b32 %s, 0x3f803f80" % vr(124 + q))
    a("v_mov_b32 v3, 0xdddddddd")
    a("""
    s_lshl1_add_u32 s72, s62, s74
    s_lshl1_add_u32 s73, s61, s75
    s_lshl_b32 s76, s73, 7
    s_add_u32 s76, s76, s72
    s_lshl_b32 s77, s76, 11
    s_lshl4_add_u32 s76, s72, s73
    s_lshl_b32 s76, s76, 11
    s_add_u32 s76, s76, %d
    s_add_u32 s77, s77, %d
    s_add_u32 s81, s69, s75
    s_lshl_b32 s78, s81, 7
    s_add_u32 s78, s78, s72
    s_lshl_b32 s78, s78, 10
    s_add_u32 s78, s78, %d
    s_lshl_b32 s79, s61, 6
    s_add_u32 s79, s79, s62
    s_lshl_b32 s79, s79, 4
    s_add_u32 s79, s79, %d
    s_lshl_b32 s80, s62, 6
    s_add_u32 s80, s80, s61
    s_lshl2_add_u32 s80, s80, s60
    s_lshl_b32 s80, s80, 2
    s_add_u32 s80, s80, %d
    s_mul_i32 s72, s61, 43
    s_add_u32 s72, s72, 43
    s_lshr_b32 s72, s72, 3
    s_add_u32 s73, s81, 4
    s_add_u32 s88, s78, %d
    s_cmp_lt_u32 s73, s72
    s_cselect_b32 s88, s88, 0x40000000
    s_lshl_b32 s81, s81, 6
    """ % (WS_QO, WS_KV, WS_HF, WS_FLAGQ, WS_FLAGH, 8 * 65536))

    def slot_of(c):
        if not cfg.xslot or c < cfg.xslot:
            return (c & 3) * 24576
        return -L_RING if c == cfg.xslot else ((c - 1) & 3) * 24576

    skip_bar = (10,) if cfg.xslot else ()

    def issue_chunk(c):
        for m in range(6):
            blk, seg = divmod(m, 3)
            a("s_add_u32 m0, s87, %d" % (slot_of(c) + seg * 2048 + blk * 1024))
            if c < 8:
                a("s_add_u32 s72, s85, %d" % ((c * 64 + blk * 8) * 3072 + seg * 1024))
                dma(13, SWQ, "s72", 0, ("w", c))
            else:
                a("s_add_u32 s72, s80, %d" % (((c - 8) * 64 + blk * 8) * 2752 + seg * 128))
                dma(57 if seg == 2 else 56, SW1, "s72", 0, ("w", c))

    def layernorm(acts):
        def act(p):
            if acts.get(p):
                assert p >= 7
                a("s_cmp_ge_u32 s60, 4")
                a("s_cbranch_scc1 L_ln_%d" % p)
                for f in acts[p]:
                    f()
                a.label("L_ln_%d" % p)
        a.label("L_ln")
        a("v_mov_b32 v30, 0x3f803f80")
        a("s_mov_b32 s89, 0xffff0000")
        for j in range(8):
            if cfg.bst == 3 and j == 0:
                stamp(3, True)
            vm.wait(("x", j))
            if cfg.bst == 3 and j in (0, 3, 7):
                stamp({0: 4, 3: 5, 7: 6}[j], True)
            act(j)
            for q in range(4):
                x = RAW + j * 4 + q
                a("v_dot2c_f32_bf16 v24, v30, %s" % vr(x))
                a("v_dot2c_f32_bf16 v25, %s, %s" % (vr(x), vr(x)))
        act(8)
        stamp(1)
        for ctl in ("quad_perm:[1,0,3,2]", "quad_perm:[2,3,0,1]", "row_half_mirror"):
            for r in (24, 25):
                a("v_add_f32_dpp %s, %s, %s %s row_mask:0xf bank_mask:0xf" % (vr(r), vr(r), vr(r), ctl))
        a("""
        v_mul_f32 v24, 0x3b000000, v24
        v_mul_f32 v25, 0x3b000000, v25
        v_fma_f32 v25, -v24, v24, v25
        v_max_f32 v25, 0, v25
        v_cvt_pk_bf16_f32 v24, v24, v25
        v_and_b32 v25, s89, v24
        v_add_f32 v25, 0x3727c5ac, v25
        v_cvt_pk_bf16_f32 v25, v25, v25
        v_and_b32 v25, s89, v25
        v_sqrt_f32 v25, v25
        v_lshlrev_b32 v24, 16, v24
        v_cvt_pk_bf16_f32 v25, v25, v25
        v_and_b32 v25, s89, v25
        v_rcp_f32 v26, v25
        v_mul_f32_e64 v28, -v24, v26
        """)
        for j in range(8):
            x = RAW + j * 4
            t = 192 + (j & 1) * 8
            for q in range(4):
                a("v_lshlrev_b32 %s, 16, %s" % (vr(t + 2 * q), vr(x + q)))
                a("v_and_b32 %s, s89, %s" % (vr(t + 2 * q + 1), vr(x + q)))
            for q in range(4):
                a("v_pk_fma_f32 %s, %s, v[26:27], v[28:29] op_sel_hi:[1,0,0]" % (vr(t + 2 * q, 2), vr(t + 2 * q, 2)))
            for q in range(4):
                a("v_cvt_pk_bf16_f32 %s, %s, %s" % (vr(x + q), vr(t + 2 * q), vr(t + 2 * q + 1)))
            if not cfg.defer:
                a("ds_write_b128 v15, %s offset:%d" % (vr(x, 4), j * 8192))
        if cfg.bst == 3:
            stamp(7, True)
        act(9)
        if cfg.defer:
            for j in range(8):
                a("ds_write_b128 v15, %s offset:%d" % (vr(RAW + j * 4, 4), j * 8192))
        act(10)
        stamp(2)
        if cfg.bst == 3:
            stamp(8, True)

    def pfq():
        a("; memory-side prefetch of Wqkv")
        bload(7, 1, 31, SWQ, "s100", 0, "", "pf")

    def pfc(which):
        a("; lines at offset 384 of every KiB stream slowly on a miss: the die's workgroups pull them into L2 together")
        a("s_lshr_b32 s72, s2, 3")
        a("s_lshl2_add_u32 s72, s72, s60")
        a("s_mul_i32 s72, s72, 12288")
        a("v_lshlrev_b32 v20, 3, v31")
        if which == SWQ:
            a("s_bitcmp1_b32 s2, 0")
            a("s_cselect_b32 s72, 0x40000000, s72")
        bload(7, 1, 20, which, "s72", 384, "", "pf")

    def pf1():
        a("; memory-side prefetch of W1")
        bload(7 if cfg.pf1_at <= 10 else 32, 1, 31, SW1, "s100", 0, "", "pf")

    acts = {}
    if cfg.pfc_at == 0:
        save = list(vm.items)
        pfc(SWQ)
        vm.items = save
    elif cfg.pfc_at <= 10:
        acts.setdefault(cfg.pfc_at, []).append(lambda: pfc(SWQ))
    if cfg.pfq_at == 0:
        save = list(vm.items)
        pfq()
        vm.items = save
    elif cfg.pfq_at <= 10:
        acts.setdefault(cfg.pfq_at, []).append(pfq)
    for c, p in enumerate((cfg.w0_at, cfg.w1_at, cfg.w2_at, 10)[:cfg.lead + 1]):
        acts.setdefault(p, []).append(lambda c=c: issue_chunk(c))
    if cfg.pf1_at <= 10:
        acts.setdefault(cfg.pf1_at, []).append(pf1)
    if cfg.pfc1:
        acts.setdefault(10, []).append(lambda: pfc(SW1))
    layernorm(acts)
    a("s_cmp_ge_u32 s60, 4")
    a("s_cbranch_scc1 L_loader")

    QR, SB, WF, FA, OA, KV, HB = 8, 24, 56, 64, 128, 192, 228
    NKV = 3

    def att_init_ops():
        ops = ["v_mov_b32 %s, 0" % vr(OA + 16 * t + i) for t in range(4) for i in range(9)]
        ops2 = ["v_and_b32 v7, 27, v0", "v_cmp_eq_u32 vcc, 16, v7", "v_mov_b32 v7, 0x3f803f80", "v_cndmask_b32 v7, 0, v7, vcc"]
        ops2 += ["v_mov_b32 %s, v7" % vr(KV + 12 * b + 4 + q) for b in range(NKV) for q in range(8)]
        return ops, ops2

    def kvload(j):
        b = j % NKV
        bload(KV + 12 * b, 4, 252, SWS, "s82", 0, "sc1", ("kv", j))
        a("s_mov_b64 exec, %s" % sr(sVM, 2))
        bload(KV + 12 * b + 4, 4, 253, SWS, "s82", 0, "sc1", ("kv", j))
        bload(KV + 12 * b + 8, 4, 254, SWS, "s82", 0, "sc1", ("kv", j))
        a("s_mov_b64 exec, -1")
        a("s_add_u32 s82, s82, 2048")

    def att_loads():
        a("s_and_b32 s72, s60, 1")
        a("s_lshl_b32 s73, s72, 10")
        a("v_add_u32 v252, s73, v1")
        a("s_lshr_b32 s73, 0x400, s72")
        a("v_add_u32 v253, s73, v2")
        a("s_mul_i32 s73, s72, 0x600")
        a("s_sub_u32 s73, 0x600, s73")
        a("v_add_u32 v254, s73, v2")
        bload(QR, 4, 1, SWS, "s92", 0, "sc1", "q")
        kvload(0)
        for t in range(1, 4):
            bload(QR + 4 * t, 4, 1, SWS, sr(92 + t), 0, "sc1", "q")
        kvload(1)
        if cfg.kv3:
            kvload(2)

    def dump_addr():
        a("v_lshlrev_b32 v8, 2, v0")
        a("v_add_u32 v9, s99, v1")
        a("v_add_u32 v10, s99, v8")
        a("v_bfe_u32 v11, v0, 4, 1")
        a("v_lshl_add_u32 v11, v11, 10, v2")

    def dump(t):
        a("v_add_u32 v12, %s, v1" % sr(96 + t))
        a("v_add_u32 v13, %s, v8" % sr(96 + t))
        dsw("ds_write_b128", 12, OA + 16 * t, 4, t * 2304)
        dsw("ds_write_b128", 12, OA + 16 * t + 4, 4, t * 2304 + 1024)
        dsw("ds_write_b32", 13, OA + 16 * t + 8, 1, t * 2304 + 2048)

    deferred = []
    cfg_gap = {0: range(16), 1: (1, 10), 2: (0, 9), 3: (4, 10), 4: (1,), 5: (4,), 6: (15, 9)}[cfg.gap]

    def att_run(n, hooks):
        hooks.setdefault((n - 1, 0, 11), []).append(dump_addr)
        for t in range(3):
            hooks.setdefault((n - 1, t + 1, 12), []).append(lambda t=t: dump(t))
        vm.wait("q", ("kv", 0))
        mfma32(SB, KV, QR, None)
        for j in range(n):
            b = j % NKV
            for t in range(4):
                cur, oth = SB + 16 * (t & 1), SB + 16 * ((t + 1) & 1)
                for i in range(16):
                    a("v_exp_f32 %s, %s" % (vr(cur + i), vr(cur + i)))
                    if i in cfg_gap:
                        while deferred:
                            deferred.pop(0)()
                    if t == cfg.kvt and i == cfg.kvi and j + NKV - 1 < n and not (cfg.abl & 32 and j > 0) and not (cfg.kv3 and j == 0):
                        kvload(j + NKV - 1)
                    if i == 1 and (j, t) != (0, 0):
                        smf(OA + 16 * ((t + 3) & 3), KV + 12 * (b if t else (j - 1) % NKV) + 8, oth + 8)
                    if i == 4:
                        if t < 3:
                            mfma32(oth, KV + 12 * b, QR + 4 * (t + 1), None)
                        elif j + 1 < n:
                            vm.wait(("kv", j + 1))
                            mfma32(oth, KV + 12 * ((j + 1) % NKV), QR, None)
                    if i == 10:
                        smf(OA + 16 * t, KV + 12 * b + 4, cur)
                    for h in hooks.get((j, t, i), ()):
                        h()
        smf(OA + 48, KV + 12 * ((n - 1) % NKV) + 8, SB + 16 + 8)

    ACC = (24, 40, 56)
    WB, NBUF, LA = 72, 6, cfg.look
    XF, PK, XA = 128, 96, 16
    init1, init2 = att_init_ops()

    def item(g):
        return divmod(g % 96, 3)

    def reads(g):
        ks, sel = item(g)
        c, m = divmod(g, 12)
        so = slot_of(c)
        base, so = (XA, 0) if so < 0 else (8 + so // 49152, so % 49152)
        if g < 96 and sel == 0:
            dsr("ds_read_b128", XF + 4 * ks, 4, XA + (ks & 3), (ks >> 2) * 8192, g)
        trread(WB + 4 * (g % NBUF), base, so + m * 2048, 512, g)

    def pack(acc, pk):
        return ["v_cvt_pk_bf16_f32 %s, %s, %s" % (vr(pk + q), vr(acc + 2 * q), vr(acc + 2 * q + 1)) for q in range(8)]

    def st2(pk, va, base, delta, tag, imm=(0, 0), vb=None):
        def first():
            bstore(pk, 4, va, SWS, base, imm[0], "" if cfg.abl & 64 else "sc1", tag)

        def second():
            if delta:
                a("s_add_u32 s72, %s, %d" % (base, delta))
            bstore(pk + 4, 4, vb or va, SWS, "s72" if delta else base, imm[1], "" if cfg.abl & 64 else "sc1", tag)
        return [first, second]

    def relu2(acc):
        return (["v_max_f32 %s, 0, %s" % (vr(acc + i), vr(acc + i)) for i in range(16)]
                + ["v_mul_f32 %s, %s, %s" % (vr(acc + i), vr(acc + i), vr(acc + i)) for i in range(16)])

    def bias(seg):
        return lambda: (vm.wait("b1"), mfma32(ACC[seg], 112 + 4 * seg, 124, None))

    tagq = ["v_or_b32 %s, 1, %s" % (vr(PK + 4 * q), vr(PK + 4 * q)) for q in range(2)]
    qkv_epi = (["v_mul_f32 %s, 0x%x, %s" % (vr(ACC[0] + i), QSCALE, vr(ACC[0] + i)) for i in range(16)]
               + pack(ACC[0], PK) + tagq + [bias(0)] + st2(PK, 1, "s76", 0, "st", (0, 1024))
               + pack(ACC[1], PK + 8) + [bias(1)] + st2(PK + 8, 11, "s77", 0x20400, "st")
               + pack(ACC[2], PK) + [bias(2)] + st2(PK, 12, "s77", 0, "st", (1024, 1536), 14))
    sched = {100: ["v_subrev_u32 %s, %d, v8" % (vr(XA), L_RING)], 144: init1, 180: init2}
    shadow = []

    def run_shadow(budget):
        while shadow and budget > 0:
            op = shadow.pop(0)
            if isinstance(op, str):
                a(op)
                budget -= 1
            else:
                op()
                budget -= 3

    a("""
    s_lshl_b32 s85, s60, 14
    s_lshl_b32 s72, s67, 7
    s_add_u32 s85, s85, s72
    s_lshl_b32 s86, s60, 6
    s_lshl1_add_u32 s86, s66, s86
    s_lshl_b32 s86, s86, 10
    s_add_u32 s86, s86, %d
    s_lshl_b32 s87, s66, 10
    s_add_u32 s87, s87, %d
    """ % (WS_HF, WS_FLAGH))
    vm.wait(("w", 0))
    a("s_waitcnt lgkmcnt(0)")
    a("s_add_u32 %s, %s, 0x%x" % (sr(sTAG), sr(sTAG), EPOCH_INC))
    if cfg.bst == 3:
        stamp(9, True)
    a("s_barrier")
    stamp(3)
    if cfg.bst == 3:
        stamp(10, True)
    for g in range(LA):
        reads(g)
    for g in range(192):
        ks, sel = item(g)
        if g == 96:
            stamp(4)
            shadow.extend(qkv_epi)
            run_shadow(1000)
            stamp(5)
        lg.wait(g)
        x, w = XF + 4 * ks, WB + 4 * (g % NBUF)
        c = None if (g < 96 and ks == 0) else ACC[sel]
        if g < 96 and sel == 2:
            mfma32(ACC[sel], x, w, c)
        else:
            mfma32(ACC[sel], w, x, c)
        n = g + LA
        if n < 192:
            if n % 12 == 0 and n // 12 not in skip_bar:
                vm.wait(("w", n // 12))
                if n // 12 == cfg.flag_chunk:
                    vm.wait("st")
                a("s_barrier")
                if n // 12 == cfg.flag_chunk:
                    a("s_cmp_lg_u32 s60, 0")
                    a("s_cselect_b32 s79, 0x40000000, s79")
                    set_flag(7, "s79")
                    stamp(6)
            reads(n)
        if g == 40:
            for seg in range(3):
                a("buffer_load_ushort %s, v10, %s, s81 offen offset:%d" % (vr(112 + 4 * seg), srd(SB1), seg * 128))
                vm.push("b1")
        shadow.extend(sched.get(g, ()))
        run_shadow(3)
    run_shadow(1000)
    stamp(7)
    hmath, hst = [], []
    for seg in range(3):
        pk = PK + 8 * seg
        hmath.append(relu2(ACC[seg]) + pack(ACC[seg], pk))
        hst.append((["s_add_u32 s78, s78, 0x40000"] if seg == 1 else []) + st2(pk, 1, "s78" if seg < 2 else "s88", 0x10000, "hst"))
    for seg in range(cfg.hbar):
        shadow.extend(hmath[seg])
    run_shadow(1000)
    a("s_barrier")
    stamp(8)
    if cfg.bst == 4:
        stamp(1, True)
    a("s_setprio 2")
    for seg in range(cfg.hbar, cfg.hpre):
        shadow.extend(hmath[seg])
    run_shadow(1000)
    att_loads()
    hlist = [[hst[0][0]], [hst[0][1]], hst[1][:2], [hst[1][2]], [hst[2][0]], [hst[2][1]]]
    for seg in range(3):
        shadow.extend(hmath[seg] if seg >= max(cfg.hpre, cfg.hbar) else [])
        for n in (2 * seg, 2 * seg + 1):
            if n < cfg.hnow:
                shadow.extend(hlist[n])
    run_shadow(1000)
    stamp(9)


    def w2dma(i):
        if cfg.abl & 1:
            return
        a("s_add_u32 m0, s84, %d" % ((i & 3) * 2048))
        a("s_add_u32 s72, s85, %d" % (i * 65536))
        dma(4, SW2, "s72", 0, ("w2", i))
        a("s_add_u32 s72, s72, 7168")
        dma(4, SW2, "s72", 1024, ("w2", i))

    hreg = lambda i, tt: HB + 8 * (i % 3) + 4 * tt

    def hload(i):
        if cfg.abl & 1:
            return
        if i > 0:
            a("s_add_u32 s86, s86, 0x40000")
        for tt in range(2):
            bload(hreg(i, tt), 4, 1, SWS, "s86", tt * 1024, "sc1", ("h", i))

    def w2read(i, nt):
        if cfg.abl & 2:
            return
        vm.wait(("w2", i))
        trread(WF + 4 * nt, 5 + nt, (i & 3) * 2048, 1024, ("wf", i, nt))

    def fslot(f):
        i, m = divmod(f, 4)
        nt, tt = ((0, 0), (0, 1), (1, 1), (1, 0))[m]
        vm.wait(("h", i))
        lg.wait(("wf", i, nt))
        d = FA + 16 * (2 * tt + nt)
        if not cfg.abl & 4:
            mfma32(d, WF + 4 * nt, hreg(i, tt), None if i == 0 else d)
        if m == 1 and i + 1 < NS:
            deferred.append(lambda: w2read(i + 1, 0))
        if m == cfg.dmam and i + 4 < NS:
            deferred.append(lambda: w2dma(i + 4))
        if m == 3:
            if i + 1 < NS:
                deferred.append(lambda: w2read(i + 1, 1))
            if i + 3 < NS:
                deferred.append(lambda: hload(i + 3))

    def park(tt, nt):
        d = FA + 16 * (2 * tt + nt)
        for q in range(8):
            a("v_cvt_pk_bf16_f32 %s, %s, %s" % (vr(d + q), vr(d + 2 * q), vr(d + 2 * q + 1)))
        for q in range(2):
            dsw("ds_write_b128", 4, d + 4 * q, 4, tt * 32 * PART_STRIDE + nt * 64 + q * 32)

    def park_addr():
        a("v_and_b32 v4, 31, v0")
        a("v_mul_u32_u24 v4, %d, v4" % PART_STRIDE)
        a("v_lshrrev_b32 v5, 5, v0")
        a("v_lshl_add_u32 v4, v5, 4, v4")
        a("v_add_u32 v4, s84, v4")

    hooks = {}

    def hook(j, t, i, f):
        hooks.setdefault((j, t, i), []).append(f)

    n1 = cfg.n1
    for n in range(cfg.hnow, 6):
        tl = (n - cfg.hnow) * cfg.hgap + cfg.hoff
        hook(tl >> 2, tl & 3, 9, lambda n=n: (shadow.extend(hlist[n]), run_shadow(1000)))
    assert (5 - cfg.hnow) * cfg.hgap + cfg.hoff <= cfg.hflag < 4 * (n1 - 2)
    hook(cfg.hflag >> 2, cfg.hflag & 3, 12, lambda: (vm.wait("hst"), set_flag(7, "s80"), stamp(1) if cfg.hst else None))
    hook(n1 - 2, 0, 8, lambda: flag_load(7, 2, "s87", "hf"))
    hook(n1 - 2, 3, 12, lambda: (vm.wait("hf"), stamp(2) if cfg.hst else None, check_flags("h", 7, 2, "s87"), stamp(3) if cfg.hst else None))
    for i in range(4):
        hook(n1 - 3 + (i >> 1), 1 + (i & 1), 7, lambda i=i: w2dma(i))
    for i in range(3):
        hook(n1 - 1, i, 7, lambda i=i: hload(i))
    hook(n1 - 1, 3, 7, lambda: (w2read(0, 0), w2read(0, 1)))
    pat = [int(ch) for ch in str(cfg.fpat)]
    slots = [(j, t, pos) for j in range(n1, nA) for t in range(4) for pos in ((13,), (7, 13))[pat[t] - 1]]
    for f in range(4 * NS):
        hook(*slots[f], lambda f=f: fslot(f))
    tl = slots[4 * NS - 1][0] * 4 + slots[4 * NS - 1][1] + 1
    assert tl + 3 < 4 * nA
    hook(tl >> 2, tl & 3, 6, park_addr)
    for n, (nt, tt) in enumerate(((0, 0), (0, 1), (1, 1), (1, 0))):
        hook((tl + n) >> 2, (tl + n) & 3, 7, lambda tt=tt, nt=nt: park(tt, nt))
    if cfg.hst:
        for n in range(4):
            hook(n1 + 4 * n, 0, 1, lambda n=n: stamp(4 + n))
    if cfg.alow:
        tl = 4 * nA - cfg.alow
        hook(tl >> 2, tl & 3, 0, lambda: a("s_setprio 0"))
    if cfg.bst == 4:
        for n, j in enumerate(range(0, nA, 2)):
            hook(j, 0, 0, lambda n=n: stamp(2 + n, True))
    att_run(nA, hooks)
    vm.drain()
    a("s_branch L_att_done")

    a.label("L_loader")
    vm.items = []
    lg.items = []

    def b_setup():
        a("; waves 4-7: W1 DMA offsets v56/v57 (sixth tile out of range where the next group owns it), wo DMA offset v4, flagQ row s79")
        a("""
        v_mul_u32_u24 v56, 2752, v4
        v_add_u32 v56, v56, v6
        s_lshr_b32 s72, 0x5b, s61
        s_and_b32 s72, s72, 1
        s_lshl_b32 s72, s72, 23
        v_and_b32 v57, 64, v6
        v_mad_u32_u24 v57, v57, s72, v56
        v_bfe_u32 v6, v4, 1, 2
        v_lshlrev_b32 v6, 1, v6
        v_xor_b32 v6, v6, v5
        v_lshlrev_b32 v6, 4, v6
        v_lshl_add_u32 v4, v4, 10, v6
        v_min_u32 v5, %d, v0
        v_lshlrev_b32 v5, 7, v5
        s_lshr_b32 s79, s64, 1
        s_lshl_b32 s79, s79, 10
        s_add_u32 s79, s79, %d
        s_and_b32 s73, s60, 3
        s_lshl_b32 s72, s69, 6
        s_mul_i32 s80, s73, %d
        s_add_u32 s80, s80, s72
        """ % (cfg.pfn - 1, WS_FLAGQ, 16 * 2752))

        a("v_mov_b32 v3, 0xdddddddd")

    issued = cfg.lead
    setup1()
    state = {"issued": issued}

    def b_step(c):
        if c in skip_bar:
            return
        vm.wait(("w", c + 1 if c + 1 in skip_bar else c))
        if cfg.bst == 2:
            stamp(c, True)
        if cfg.bst == 3 and c == 0:
            stamp(9, True)
        a("s_barrier")
        if cfg.bst == 1:
            stamp(c, True)
        if c in (0, 8, 12, 15):
            stamp({0: 3, 8: 4, 12: 5, 15: 6}[c])
        if c == cfg.bload - 1:
            flag_load(7, 4, "s79", "qf")
        if c == cfg.bload:
            vm.wait("qf")
            check_flags("q", 7, 4, "s79")
            stamp(7)
            att_loads()
        lim = c + 2
        if cfg.xslot == 12 and c == 9:
            lim = 12
        if cfg.xslot == 11 and c in (8, 9):
            lim = c + 3
        if cfg.xslot and c >= 11:
            lim = c + cfg.xrun
        while state["issued"] < min(15, max(3, lim)):
            state["issued"] += 1
            issue_chunk(state["issued"])
        if c == 1:
            setup2()
        if cfg.pf1_at == 12 + c:
            assert c >= 1
            pf1()
        if c == 2:
            setup3()
        if c == 3:
            b_setup()
        if c == 4:
            for op in init1:
                a(op)
        if c == 5:
            for op in init2:
                a(op)
        if c == 7:
            a("s_waitcnt lgkmcnt(0)")
            a("s_add_u32 %s, %s, 0x%x" % (sr(sTAG), sr(sTAG), EPOCH_INC))

    def b_att():
        a("s_barrier")
        stamp(8)
        a("s_setprio 1")

    bhooks = {}
    for c in range(17):
        f = (lambda c=c: b_step(c)) if c < 16 else b_att
        if c <= cfg.bjoin:
            f()
        else:
            tl = (c - cfg.bjoin) * cfg.btile - 1
            bhooks[(tl >> 2, tl & 3, 13)] = [f]

    def wo_dma(lo, hi):
        if cfg.abl & 8:
            return
        if lo == 0:
            a("; wo tile -> LDS [0, 64K), a few rows per score tile")
            a("s_and_b32 s78, s60, 3")
            a("s_lshl_b32 s76, s78, 17")
            a("s_lshl_b32 s73, s67, 7")
            a("s_add_u32 s76, s76, s73")
            a("s_lshl_b32 s78, s78, 14")
        for i in range(lo, hi):
            a("s_add_u32 m0, s78, %d" % (i * 1024))
            a("s_add_u32 s73, s76, %d" % (i * 8192))
            dma(4, SWO, "s73", 0, "wo")

    nl = cfg.pfn
    batches = [(SW2, i) for i in range(-(-11 // nl))] + [(SWO, i) for i in range(-(-4 // nl))]

    def pf_late(n):
        if cfg.abl & 16:
            return
        if n == 0:
            a("; memory-side prefetch of w2 (in k order) and wo, a few lines per wave at a time")
            a("s_and_b32 s90, s60, 3")
            a("s_lshl2_add_u32 s90, s2, s90")
            a("s_mul_i32 s90, s90, %d" % (nl * 128))
        a("s_add_u32 s72, s90, %d" % (batches[n][1] * nl * 131072))
        bload(7, 1, 5, batches[n][0], "s72", 0, "", "pf")

    for n in range(len(batches)):
        tl = cfg.pfl + n * cfg.pfg
        bhooks[(tl >> 2, tl & 3, 7)] = [lambda n=n: pf_late(n)]
    for n, lo in enumerate(range(0, 16, cfg.won)):
        bhooks[((cfg.wol + n) >> 2, (cfg.wol + n) & 3, 8)] = [lambda lo=lo: wo_dma(lo, lo + cfg.won)]
    if cfg.bst == 4:
        for j in range(nB):
            bhooks.setdefault((j, 0, 0), []).append(lambda j=j: stamp(2 + j, True))
    att_run(nB, bhooks)
    vm.drain()

    OW = OA + 48
    WOF, OFR, AC, G, Z, X, SR = 128, 24, 8, 64, 96, 104, 112
    a.label("L_att_done")
    stamp(10)
    if cfg.bst == 4:
        stamp(14, True)
    a("s_setprio 0")
    a("s_and_b32 s73, s60, 1")
    a("s_lshl_b32 s73, s73, 9")
    a("s_sub_u32 s76, s95, s73")
    a("""
    s_and_b32 s74, s60, 3
    s_lshr_b32 s75, s60, 2
    v_lshrrev_b32 v14, 3, v0
    v_and_b32 v7, 7, v0
    v_lshlrev_b32 v7, 4, v7
    v_lshl_add_u32 v14, v14, 10, v7
    s_lshl3_add_u32 s78, s66, s60
    s_lshl_b32 s78, s78, 13
    s_lshl_b32 s79, s67, 7
    s_add_u32 s78, s78, s79
    """)
    bload(60, 4, 7, SB2, "s79", 0, "", "xb")
    bload(56, 4, 14, SX, "s78", 0, "", "xb")
    lg.drain()
    a("s_barrier")
    for src in range(3):
        d = SB + 10 * src
        dsr("ds_read_b128", d, 4, 9, src * 2304, src)
        dsr("ds_read_b128", d + 4, 4, 9, src * 2304 + 1024, src)
        dsr("ds_read_b32", d + 8, 1, 10, src * 2304 + 2048, src)
    for src in range(3):
        lg.wait(src)
        for i in range(0, 8, 2):
            a("v_pk_add_f32 %s, %s, %s" % (vr(OW + i, 2), vr(OW + i, 2), vr(SB + 10 * src + i, 2)))
        a("v_add_f32 %s, %s, %s" % (vr(OW + 8), vr(OW + 8), vr(SB + 10 * src + 8)))
    a("v_pk_mul_f32 v[12:13], %s, 0 op_sel_hi:[1,0]" % vr(OW, 2))
    for i in range(2, 8, 2):
        a("v_pk_fma_f32 v[12:13], %s, 0, v[12:13] op_sel_hi:[1,0,1]" % vr(OW + i, 2))
    a("""
    v_add_f32 v12, v12, %s
    v_add_f32 v12, v12, v13
    v_cmp_nle_f32 vcc, 0x30800000, v12
    s_mov_b64 s[72:73], vcc
    v_cmp_nge_f32 vcc, 0x5d800000, v12
    s_or_b64 s[72:73], s[72:73], vcc
    """ % vr(OW + 8))
    a("s_branch L_slow" if cfg.force_slow else "s_cbranch_scc1 L_slow")
    a.label("L_norm")
    a("v_rcp_f32 v12, %s" % vr(OW + 8))
    for i in range(0, 8, 2):
        a("v_pk_mul_f32 %s, %s, v[12:13] op_sel_hi:[1,0]" % (vr(OW + i, 2), vr(OW + i, 2)))
    for q in range(4):
        a("v_cvt_pk_bf16_f32 %s, %s, %s" % (vr(16 + q), vr(OW + 2 * q), vr(OW + 2 * q + 1)))
    a("v_and_b32 v16, -2, v16")
    bstore(16, 4, 11, SWS, "s76", 0, "sc1", "ost")
    stamp(11)
    a("v_mov_b32 v2, v14")
    a("v_lshrrev_b32 v3, 3, v0")
    a("""
    v_mul_u32_u24 v4, %d, v3
    s_mul_i32 s72, s60, %d
    s_add_u32 s72, s72, %d
    v_add3_u32 v4, v4, v7, s72
    """ % (PART_STRIDE, 8 * PART_STRIDE, L_W2))
    for j in range(4):
        dsr("ds_read_b128", G + 4 * j, 4, 4, j * W2_REGION, "g")
    a("""
    v_bfe_u32 v4, v0, 2, 2
    v_bfe_u32 v5, v0, 4, 1
    v_lshl_add_u32 v4, v5, 2, v4
    v_lshrrev_b32 v5, 1, v4
    v_lshlrev_b32 v92, 7, v4
    v_lshl_add_u32 v92, v5, 5, v92
    v_lshrrev_b32 v6, 5, v0
    v_lshl_add_u32 v92, v6, 11, v92
    v_and_b32 v4, 3, v0
    v_lshl_add_u32 v92, v4, 3, v92
    s_lshl_b32 s72, s75, 15
    v_add_u32 v92, s72, v92
    v_xor_b32 v93, 32, v92
    v_xor_b32 v94, 64, v92
    v_xor_b32 v95, 0x60, v92
    s_barrier
    """)

    def oloads(first=0):
        for ks in range(first, 8):
            bload(OFR + 4 * ks, 4, 1, SWS, ("s76", "s77", "s80", "s81")[ks >> 1], (ks & 1) * 2048, "sc1", ("o", ks))

    fill = ("""
    s_lshl2_add_u32 s72, s66, s74
    s_lshr_b32 s76, s72, 1
    s_lshl1_add_u32 s76, s76, s75
    s_lshl_b32 s76, s76, 14
    s_and_b32 s72, s72, 1
    s_lshl_b32 s72, s72, 10
    s_add_u32 s76, s76, s72
    s_add_u32 s76, s76, %d
    s_add_u32 s77, s76, 0x1000
    s_add_u32 s80, s76, 0x2000
    s_add_u32 s81, s76, 0x3000
    v_mul_u32_u24 v3, %d, v3
    v_lshl_add_u32 v3, v7, 1, v3
    s_mul_i32 s72, s60, %d
    s_add_u32 s72, s72, %d
    v_add_u32 v3, s72, v3
    v_and_b32 v5, 15, v0
    v_mul_u32_u24 v5, %d, v5
    v_and_b32 v4, 48, v0
    s_mul_i32 s72, s60, %d
    s_add_u32 s72, s72, %d
    v_add3_u32 v5, v5, v4, s72
    s_mov_b32 s82, 0x3f80
    s_mov_b32 s83, 0x3f800000
    """ % (WS_QO, SUM_STRIDE, 8 * SUM_STRIDE, L_SUM, SUM_STRIDE, 16 * SUM_STRIDE, L_SUM)).strip().split("\n")
    gate = ["v_mov_b32 %s, 0" % vr(Z + i) for i in range(8)]
    gate.append(lambda: lg.wait("g"))
    for j in range(5):
        if j == 4:
            gate.append(lambda: vm.wait("xb"))
        for q in range(4):
            src = G + 4 * j + q if j < 4 else 60 + q
            gate.append("v_dot2c_f32_bf16 %s, s82, %s" % (vr(Z + 2 * q), vr(src)))
            gate.append("v_dot2c_f32_bf16 %s, s83, %s" % (vr(Z + 2 * q + 1), vr(src)))
    for q in range(4):
        gate.append("v_lshlrev_b32 %s, 16, %s" % (vr(X + 2 * q), vr(56 + q)))
        gate.append("v_and_b32 %s, s89, %s" % (vr(X + 1 + 2 * q), vr(56 + q)))
    gate += ["v_mul_f32 %s, 0x%x, %s" % (vr(G + i), NLOG2E, vr(Z + i)) for i in range(8)]
    gate += ["v_exp_f32 %s, %s" % (vr(G + i), vr(G + i)) for i in range(8)]
    gate += ["v_add_f32 %s, 1.0, %s" % (vr(G + i), vr(G + i)) for i in range(8)]
    gate += ["v_rcp_f32 %s, %s" % (vr(G + i), vr(G + i)) for i in range(8)]
    gate += ["v_mul_f32 %s, %s, %s" % (vr(Z + i), vr(Z + i), vr(G + i)) for i in range(8)]

    def wo_reads(oat, per):
        for ks in range(8):
            for ct in range(4):
                trread(WOF + (ks * 4 + ct) * 4, 92 + ct, ks * 4096, 1024, ("wo", ks))
                run_shadow(per)
            if ks == oat:
                run_shadow(1000)
                vm.wait("ost")
                oloads()

    vm_t, lg_t = list(vm.items), list(lg.items)
    a("s_cmp_ge_u32 s60, 4")
    a("s_cbranch_scc1 L_tail_b")
    shadow.extend(fill)
    wo_reads(7, 1)
    shadow.extend(gate)
    run_shadow(1000)
    a("s_branch L_tail_j")
    a.label("L_tail_b")
    vm.items, lg.items = vm_t, lg_t
    shadow.extend(fill + gate)
    run_shadow(1000)
    wo_reads(cfg.oat, 0)
    a.label("L_tail_j")
    stamp(12)
    a("s_mov_b32 s73, 0")
    lg.drain()
    for ks in range(8):
        a.label("L_wo_%d" % ks)
        vm.wait(("o", ks))
        a("v_and_b32 v6, 1, %s" % vr(OFR + 4 * ks))
        a("v_cmp_ne_u32 vcc, 0, v6")
        a("s_cbranch_vccnz L_oretry_%d" % ks)
        a.label("L_ogo_%d" % ks)
        for ct in range(4):
            d = AC + 4 * ct
            mfma16(d, WOF + (ks * 4 + ct) * 4, OFR + 4 * ks, None if ks == 0 else d)
    stamp(13)
    for ct in range(4):
        dsw("ds_write_b128", 5, AC + 4 * ct, 4, ct * 64)
    lg.drain()
    a("s_barrier")
    stamp(14)
    dsr("ds_read_b128", SR, 4, 3, 0, 0)
    dsr("ds_read_b128", SR + 8, 4, 3, SUM_SIZE, 0)
    dsr("ds_read_b128", SR + 4, 4, 3, 16, 1)
    dsr("ds_read_b128", SR + 12, 4, 3, SUM_SIZE + 16, 1)
    for h in range(2):
        lg.wait(h)
        for i in range(4 * h, 4 * h + 4, 2):
            a("v_pk_add_f32 %s, %s, %s" % (vr(SR + i, 2), vr(SR + i, 2), vr(SR + 8 + i, 2)))
        for i in range(4 * h, 4 * h + 4, 2):
            a("v_pk_fma_f32 %s, %s, %s, %s" % (vr(SR + i, 2), vr(SR + i, 2), vr(Z + i, 2), vr(X + i, 2)))
        for q in range(2 * h, 2 * h + 2):
            a("v_cvt_pk_bf16_f32 %s, %s, %s" % (vr(G + q), vr(SR + 2 * q), vr(SR + 2 * q + 1)))
    bstore(G, 4, 2, SOUT, "s78", 0, ("", "sc1", "nt", "sc0 sc1", "sc0 sc1 nt")[cfg.omod])
    a("s_or_b32 s72, s2, s60")
    a("s_cmp_lg_u32 s72, 0")
    a("s_cbranch_scc1 L_noepoch")
    set_flag(7, "0")
    a.label("L_noepoch")
    if cfg.stamps:
        a("s_waitcnt vmcnt(0)")
        stamp(15)
        if cfg.probe is not None:
            a("s_sub_u32 s72, %s, s4" % sr(sSTAMP + cfg.probe))
            if cfg.stamps == 2:
                a("s_lshr_b32 s72, s72, 3")
            else:
                a("s_lshl_b32 s72, s72, %d" % cfg.probesh)
            a("s_cmp_lg_u32 s2, %d" % cfg.probewg)
            a("s_cselect_b32 s72, 0, s72")
            a("s_cmp_lg_u32 s60, %d" % cfg.probew)
            a("s_cselect_b32 s72, 0, s72")
            a("s_memrealtime s[22:23]")
            a("s_waitcnt lgkmcnt(0)")
            a("s_mov_b32 s73, s22")
            a.label("L_probe")
            a("s_memrealtime s[22:23]")
            a("s_waitcnt lgkmcnt(0)")
            a("s_sub_u32 s22, s22, s73")
            a("s_cmp_lt_u32 s22, s72")
            a("s_cbranch_scc1 L_probe")
        a("s_lshl3_add_u32 s72, s2, s60")
        a("s_lshl_b32 s72, s72, 6")
        a("s_add_u32 s72, s72, %d" % WS_STAMP)
        for i in range(16):
            a("v_mov_b32 %s, %s" % (vr(80 + i), sr(sSTAMP + i)))
        a("s_mov_b64 exec, 1")
        for i in range(4):
            bstore(80 + 4 * i, 4, 1, SWS, "s72", 16 * i)
    a.label("L_end")
    a("s_endpgm")

    for ks in range(8):
        a.label("L_oretry_%d" % ks)
        a("s_add_u32 s73, s73, 1")
        a("s_cmp_ge_u32 s73, %d" % SPIN_MAX)
        a("s_cbranch_scc1 L_ogo_%d" % ks)
        a("s_waitcnt vmcnt(0)")
        oloads(ks)
        a("s_branch L_wo_%d" % ks)

    for tag, vt, lanes, soff in stubs:
        a.label("L_poll_" + tag)
        a("s_mov_b32 s73, 0")
        a.label("L_poll2_" + tag)
        a("s_sleep %d" % cfg.sleep)
        flag_load(vt, lanes, soff, None)
        a("s_add_u32 s73, s73, 1")
        a("s_waitcnt vmcnt(0)")
        a("s_cmp_ge_u32 s73, %d" % SPIN_MAX)
        a("s_cbranch_scc1 L_polled_" + tag)
        a("v_cmp_ne_u32 vcc, %s, %s" % (sr(sTAG), vr(vt)))
        a("s_cbranch_vccnz L_poll2_" + tag)
        a("s_branch L_polled_" + tag)

    a.label("L_slow")
    CN = SB + 16
    a("s_waitcnt vmcnt(0)")
    a("v_mov_b32 v13, 0xff800000")
    a("s_mov_b32 s82, s83")
    a("s_mov_b32 s81, 64")
    a.label("L_slow1")
    bload(KV, 4, 252, SWS, "s82", 0, "sc1")
    a("s_add_u32 s82, s82, 2048")
    a("s_waitcnt vmcnt(0)")
    mfma32(SB, KV, QR + 12, None)
    for i in range(0, 16, 2):
        a("v_max3_f32 v13, v13, %s, %s" % (vr(SB + i), vr(SB + i + 1)))
    a("s_sub_u32 s81, s81, 1")
    a("s_cmp_lg_u32 s81, 0")
    a("s_cbranch_scc1 L_slow1")
    a("v_mov_b32 v15, v13")
    a("v_permlane32_swap_b32 v15, v13")
    a("v_max_f32 v13, v15, v13")
    for i in range(16):
        a("v_sub_f32 %s, 0, v13" % vr(CN + i))
        a("v_mov_b32 %s, 0" % vr(OW + i))
    a("s_mov_b32 s82, s83")
    a("s_mov_b32 s81, 64")
    a.label("L_slow2")
    kvload(0)
    a("s_waitcnt vmcnt(0)")
    mfma32(SB, KV, QR + 12, CN)
    for i in range(16):
        a("v_exp_f32 %s, %s" % (vr(SB + i), vr(SB + i)))
    smf(OW, KV + 4, SB)
    smf(OW, KV + 8, SB + 8)
    a("s_sub_u32 s81, s81, 1")
    a("s_cmp_lg_u32 s81, 0")
    a("s_cbranch_scc1 L_slow2")
    a("s_branch L_norm")
    a.label("L_code_end")
    a("s_endpgm")

    added = a.fix()
    return a.text(), added


HEADER = """; Kernarg layout for this problem (88 bytes, ptrs only, base s[0:1]):
; @launch grid=(256,1,1) block=(512,1,1) lds=163840
.amdgcn_target "amdgcn-amd-amdhsa--gfx950"
.text
.globl {k}
.p2align 8
.type {k},@function
{k}:
"""

FOOTER = """.section .rodata,"a"
.p2align 6
.amdhsa_kernel {k}
  .amdhsa_next_free_vgpr 256
  .amdhsa_next_free_sgpr 102
  .amdhsa_accum_offset 256
  .amdhsa_group_segment_fixed_size 0
  .amdhsa_kernarg_size 88
  .amdhsa_user_sgpr_count 2
  .amdhsa_user_sgpr_kernarg_segment_ptr 1
  .amdhsa_system_sgpr_workgroup_id_x 1
.end_amdhsa_kernel
"""


def build(**kw):
    cfg = Cfg()
    for k, v in kw.items():
        setattr(cfg, k, v)
    body, added = gen(cfg)
    return HEADER.format(k=KERNEL) + body + FOOTER.format(k=KERNEL), added


if __name__ == "__main__":
    out = sys.argv[1] if len(sys.argv) > 1 else "cdna_kernels/%s.s" % NAME
    kw = {}
    for arg in sys.argv[2:]:
        k, v = arg.split("=")
        kw[k] = int(v)
    text, added = build(**kw)
    open(out, "w").write(text)
    print("wrote", out, "lines", text.count("\n"), "nops added", added)
```

```python
import sys
import os
sys.path.insert(0, os.path.dirname(os.path.abspath(__file__)))
from asmlib import Asm, vr, sr

NAME = "recurrent_scan__softmax_full_mha__dense_activation_squared_relu__prompt"
KERNEL = NAME + "_kernel"

WS_FLAGQ = 0x1200
WS_FLAGH = 0x8000
WS_STAMP = 0x10000
WS_QO = 0x100000
WS_KV = 0x300000
WS_HF = 0x700000
WS_END = WS_HF + 86 * 65536
EPOCH_INC = 0x9E3779B9
SPIN_MAX = 1 << 18

L_RING = 65536
L_OPART = 65536
L_W2 = L_OPART + 55296
W2_REGION = 10240
PART_STRIDE = 144
SUM_STRIDE = 272
SUM_SIZE = 64 * SUM_STRIDE
L_SUM = L_OPART

SX, SWQ, SWO, SW1, SB1, SW2, SB2, SOUT, SWS = 24, 28, 32, 36, 40, 44, 48, 52, 56
sW, sCG, sTB, sRW, sP, sQB, sTBF, sCB, sTAG, sCT0 = 60, 61, 62, 63, 64, 65, 66, 67, 68, 69
sVM = 70
sSTAMP = 4

QSCALE = 0x3EB8AA3B
NLOG2E = 0xBFB8AA3B
NS = 22


class Cfg:
    abl = 0
    bst = 0
    xslot = 0
    xrun = 2
    n1 = 8
    nA = 22
    gap = 1
    kvt = 0
    kvi = 4
    dmam = 2
    fpat = 2221
    pf1_at = 10
    pfc_at = 0
    pfc1 = 0
    w2_at = 10
    pfl = 7
    wol = 14
    won = 1
    stamps = 0
    force_slow = 0
    flag_chunk = 10
    lead = 2
    defer = 0
    look = 5
    pfq_at = 8
    bload = 15
    bjoin = 16
    btile = 2
    sleep = 6
    w0_at = 7
    w1_at = 10
    hpre = 2
    hbar = 0
    hnow = 2
    hgap = 2
    hoff = 0
    kv3 = 1
    pfn = 11
    alow = 0
    pfg = 1
    hflag = 11
    probe = None
    omod = 1
    oat = 4
    probewg = 100
    probew = 0
    probesh = 4
    hst = 0


def srd(s):
    return sr(s, 4)


class Queue:
    def __init__(self, a, name, maxn):
        self.a, self.name, self.maxn, self.items = a, name, maxn, []

    def push(self, tag):
        self.items.append(tag)

    def wait(self, *tags):
        last = max((i for i, t in enumerate(self.items) if t in tags), default=-1)
        if last < 0:
            return
        n = len(self.items) - 1 - last
        self.a("s_waitcnt %s(%d)" % (self.name, min(n, self.maxn)))
        self.items = self.items[last + 1:]

    def drain(self):
        self.a("s_waitcnt %s(0)" % self.name)
        self.items = []


def gen(cfg):
    a = Asm()
    nA = cfg.nA
    nB = 32 - nA
    vm = Queue(a, "vmcnt", 63)
    lg = Queue(a, "lgkmcnt", 15)

    def stamp(i, force=False):
        if cfg.bst and not force and i != 0:
            return
        if cfg.stamps and (cfg.probe is None or i in (0, cfg.probe)):
            a("%s s[22:23]" % ("s_memtime" if cfg.stamps == 2 else "s_memrealtime"))
            a("s_waitcnt lgkmcnt(0)")
            a("s_mov_b32 %s, s22" % sr(sSTAMP + i))

    def mfma32(d, x, y, c):
        a("v_mfma_f32_32x32x16_bf16 %s, %s, %s, %s" % (vr(d, 16), vr(x, 4), vr(y, 4), "0" if c is None else vr(c, 16)))

    def mfma16(d, x, y, c):
        a("v_mfma_f32_16x16x32_bf16 %s, %s, %s, %s" % (vr(d, 4), vr(x, 4), vr(y, 4), "0" if c is None else vr(c, 4)))

    def smf(d, x, y):
        a("v_smfmac_f32_32x32x32_bf16 %s, %s, %s, v3" % (vr(d, 16), vr(x, 4), vr(y, 8)))

    def bload(d, n, va, s, so, off=0, mod="", tag=None):
        op = {1: "dword", 2: "dwordx2", 4: "dwordx4"}[n]
        a("buffer_load_%s %s, %s, %s, %s offen offset:%d %s" % (op, vr(d, n), vr(va), srd(s), so, off, mod))
        vm.push(tag)

    def bstore(d, n, va, s, so, off=0, mod="", tag=None):
        op = {1: "dword", 2: "dwordx2", 4: "dwordx4"}[n]
        a("buffer_store_%s %s, %s, %s, %s offen offset:%d %s" % (op, vr(d, n), vr(va), srd(s), so, off, mod))
        vm.push(tag)

    def dma(va, s, so, off=0, tag=None):
        a("buffer_load_dwordx4 %s, %s, %s offen offset:%d lds" % (vr(va), srd(s), so, off))
        vm.push(tag)

    def dsr(op, d, n, va, off, tag=None):
        a("%s %s, %s offset:%d" % (op, vr(d, n), vr(va), off))
        lg.push(tag)

    def dsw(op, va, d, n, off, tag=None):
        a("%s %s, %s offset:%d" % (op, vr(va), vr(d, n), off))
        lg.push(tag)

    def trread(d, va, off, second, tag=None):
        dsr("ds_read_b64_tr_b16", d, 2, va, off, tag)
        dsr("ds_read_b64_tr_b16", d + 2, 2, va, off + second, tag)

    def set_flag(vt, soff):
        a("v_mov_b32 %s, %s" % (vr(vt), sr(sTAG)))
        a("s_mov_b64 exec, 1")
        bstore(vt, 1, 1, SWS, soff, 0, "sc0 sc1")
        a("s_mov_b64 exec, -1")

    stubs = []

    def check_flags(tag, vt, lanes, soff):
        a("v_cmp_ne_u32 vcc, %s, %s" % (sr(sTAG), vr(vt)))
        a("s_cbranch_vccnz L_poll_" + tag)
        a.label("L_polled_" + tag)
        stubs.append((tag, vt, lanes, soff))

    def flag_load(vt, shift, soff, tag):
        a("v_and_b32 %s, 31, v0" % vr(vt))
        a("v_lshlrev_b32 %s, %d, %s" % (vr(vt), shift, vr(vt)))
        bload(vt, 1, vt, SWS, soff, 0, "sc0 sc1", tag)

    sizes = {SX: 2048 * 1024, SWQ: 512 * 3072, SWS: WS_END, SW1: 512 * 2752, SB1: 2752,
             SWO: 512 * 1024, SW2: 1376 * 1024, SB2: 1024, SOUT: 2048 * 1024}
    RAW = 128

    def xloads():
        for j in range(8):
            bload(RAW + j * 4, 4, 14, SX, "s101", j * 128, "", ("x", j))

    stamp(0)
    a("""
    s_load_dwordx2 s[24:25], s[0:1], 0
    s_getpc_b64 s[72:73]
    L_pc:
    s_cmpk_ge_u32 s2, 256
    s_cbranch_scc1 L_end
    s_lshr_b32 s74, s2, 3
    s_lshl_b32 s74, s74, 11
    v_lshrrev_b32 v8, 5, v0
    v_lshl_add_u32 v8, v8, 7, s74
    v_min_u32 v8, L_code_end-L_pc, v8
    v_mov_b32 v9, 0
    v_lshl_add_u64 v[8:9], v[8:9], 0, s[72:73]
    global_load_dword v7, v[8:9], off
    s_lshl_b32 s72, s2, 4
    s_and_b32 s72, s72, 0x180
    v_add_u32 v4, s72, v0
    v_bfe_u32 v4, v4, 3, 6
    v_and_b32 v5, 7, v0
    v_lshlrev_b32 v14, 10, v4
    v_lshl_add_u32 v14, v5, 4, v14
    s_lshr_b32 s67, s2, 5
    s_and_b32 s73, s2, 6
    s_lshl2_add_u32 s62, s73, s67
    s_lshl_b32 s101, s62, 16
    s_mov_b32 s26, %d
    s_mov_b32 s27, 0x20000
    v_bfe_u32 v24, v4, 1, 3
    v_xor_b32 v24, v24, v5
    v_lshlrev_b32 v15, 7, v4
    v_lshl_add_u32 v15, v24, 4, v15
    v_readfirstlane_b32 s60, v0
    v_and_b32 v0, 63, v0
    v_mov_b32 v24, 0
    v_mov_b32 v25, 0
    s_lshr_b32 s60, s60, 6
    s_cmp_ge_u32 s60, 4
    s_waitcnt lgkmcnt(0)
    """ % sizes[SX])
    vm.push("pf")
    if cfg.bst == 3:
        stamp(1, True)
    xloads()
    if cfg.bst == 3:
        stamp(2, True)
    if cfg.stamps:
        for i in range(3 if cfg.bst == 3 else 1, 16):
            a("s_mov_b32 %s, s4" % sr(sSTAMP + i))
    a("s_mov_b32 s63, 1")
    a("s_cbranch_scc1 L_ln")
    a("s_mov_b32 s63, 0")

    def setup1():
        for s, off in ((SWQ, 8), (SWS, 80), (SW1, 32), (SB1, 40), (SWO, 16), (SW2, 48), (SB2, 56), (SOUT, 64)):
            a("s_load_dwordx2 %s, s[0:1], %d" % (sr(s, 2), off))
        a("""
        s_mov_b32 s30, %d
        s_mov_b32 s31, 0x20000
        s_bfe_u32 s72, s2, 0x20003
        s_and_b32 s73, s2, 1
        s_lshl2_add_u32 s61, s73, s72
        s_and_b32 s74, s60, 3
        s_lshl_b32 s72, s61, 7
        s_mul_i32 s85, s74, %d
        s_add_u32 s85, s85, s72
        s_mul_i32 s87, s74, 6144
        s_add_u32 s87, s87, %d
        v_lshrrev_b32 v4, 3, v0
        v_bfe_u32 v6, v4, 1, 1
        v_lshlrev_b32 v6, 2, v6
        v_xor_b32 v6, v6, v5
        v_lshlrev_b32 v6, 4, v6
        v_mul_u32_u24 v13, 3072, v4
        v_add_u32 v13, v13, v6
        s_waitcnt lgkmcnt(0)
        """ % (sizes[SWQ], 16 * 3072, L_RING))

    def setup2():
        a("s_load_dword %s, %s, 0" % (sr(sTAG), sr(SWS, 2)))
        for s in (SW1, SWS, SB1, SWO, SW2, SB2, SOUT):
            a("s_mov_b32 %s, %d" % (sr(s + 2), sizes[s]))
            a("s_mov_b32 %s, 0x20000" % sr(s + 3))
        a("""
        s_and_b32 s73, s60, 3
        s_lshl2_add_u32 s100, s2, s73
        s_mul_i32 s100, s100, 1536
        v_min_u32 v31, 11, v0
        v_lshlrev_b32 v31, 7, v31
        s_bfe_u32 s72, s2, 0x20003
        s_and_b32 s73, s2, 7
        s_lshl2_add_u32 s66, s73, s72
        s_and_b32 s72, s72, 1
        s_lshl1_add_u32 s64, s73, s72
        s_lshr_b32 s65, s2, 4
        s_mul_i32 s69, s61, 43
        s_lshr_b32 s69, s69, 3
        s_mov_b32 s70, 0xffff
        s_mov_b32 s71, 0xffff
        v_lshlrev_b32 v1, 4, v0
        v_and_b32 v2, 15, v0
        v_lshrrev_b32 v3, 5, v0
        v_lshl_add_u32 v2, v3, 4, v2
        v_lshlrev_b32 v2, 4, v2
        """)

    def setup3():
        a("; attention offsets: s82 = next K/V tile, s83 = head base, s92-s95 = Q tiles, s96-s99 = O partial slots")
        a("""
        s_and_b32 s74, s60, 1
        s_lshr_b32 s75, s60, 1
        s_lshl1_add_u32 s72, s64, s74
        s_lshl_b32 s83, s72, 17
        s_add_u32 s83, s83, %d
        s_and_b32 s73, s75, 1
        s_lshl_b32 s73, s73, 16
        s_add_u32 s82, s83, s73
        s_lshl_b32 s72, s65, 6
        s_add_u32 s72, s72, s64
        s_lshl1_add_u32 s72, s72, s74
        s_lshl_b32 s72, s72, 10
        s_add_u32 s72, s72, %d
        s_mul_i32 s84, s74, %d
        s_add_u32 s84, s84, %d
        """ % (WS_KV, WS_QO, 12 * 2304, L_OPART))
        for t in range(4):
            a("s_xor_b32 s73, s75, %d" % (t ^ 3))
            a("s_mul_i32 %s, s73, %d" % (sr(96 + t), 3 * 2304))
            a("s_lshl_b32 s73, s73, 15")
            a("s_add_u32 %s, s72, s73" % sr(92 + t))
            a("s_add_u32 %s, %s, s84" % (sr(96 + t), sr(96 + t)))

    setup1()
    setup2()
    setup3()
    a("""
    s_add_u32 s82, s82, %d
    v_and_b32 v8, 0x33, v0
    v_and_b32 v9, 4, v0
    v_lshl_or_b32 v8, v9, 1, v8
    v_and_b32 v9, 8, v0
    v_lshrrev_b32 v9, 1, v9
    v_or_b32 v8, v8, v9
    v_lshlrev_b32 v11, 4, v8
    v_bfe_u32 v9, v0, 4, 1
    v_mul_u32_u24 v12, 0x1fe00, v9
    v_add_u32 v12, v12, v2
    v_mul_u32_u24 v14, 0x1fa00, v9
    v_add_u32 v14, v14, v2
    v_lshl_add_u32 v4, v4, 10, v6
    v_bfe_u32 v10, v0, 2, 2
    v_lshlrev_b32 v5, 5, v9
    v_lshl_add_u32 v5, v10, 7, v5
    v_and_b32 v9, 3, v0
    v_lshl_add_u32 v5, v9, 3, v5
    v_lshrrev_b32 v10, 1, v10
    v_lshl_add_u32 v8, v3, 10, v5
    v_xor_b32 v9, s75, v10
    v_lshl_add_u32 v8, v9, 6, v8
    v_add_u32 v8, %d, v8
    v_add_u32 v9, %d, v8
    v_lshl_add_u32 v5, v3, 9, v5
    v_lshl_add_u32 v5, v10, 6, v5
    v_lshrrev_b32 v10, 1, v0
    v_xor_b32 v10, v10, v0
    v_and_b32 v10, 1, v10
    v_mul_u32_u24 v10, 24, v10
    v_xor_b32 v5, v5, v10
    s_mul_i32 s84, s60, %d
    s_add_u32 s84, s84, %d
    v_add_u32 v5, s84, v5
    v_xor_b32 v6, 64, v5
    v_and_b32 v10, 31, v0
    s_lshl_b32 s72, s74, 12
    v_bfe_u32 v16, v10, 1, 3
    v_xor_b32 v16, v16, v3
    v_lshlrev_b32 v16, 4, v16
    v_lshl_add_u32 v16, v10, 7, v16
    v_add_u32 v16, s72, v16
    v_xor_b32 v17, 32, v16
    v_xor_b32 v18, 64, v16
    v_xor_b32 v19, 0x60, v16
    v_lshlrev_b32 v10, 1, v10
    v_lshl_add_u32 v10, v3, 20, v10
    """ % (nB * 2048, L_RING, 2 * 24576, W2_REGION, L_W2))
    for seg in range(3):
        for q in range(1, 4):
            a("v_mov_b32 %s, 0" % vr(112 + 4 * seg + q))
    for q in range(4):
        a("v_mov_b32 %s, 0x3f803f80" % vr(124 + q))
    a("v_mov_b32 v3, 0xdddddddd")
    a("""
    s_lshl1_add_u32 s72, s62, s74
    s_lshl1_add_u32 s73, s61, s75
    s_lshl_b32 s76, s73, 7
    s_add_u32 s76, s76, s72
    s_lshl_b32 s77, s76, 11
    s_lshl4_add_u32 s76, s72, s73
    s_lshl_b32 s76, s76, 11
    s_add_u32 s76, s76, %d
    s_add_u32 s77, s77, %d
    s_add_u32 s81, s69, s75
    s_lshl_b32 s78, s81, 7
    s_add_u32 s78, s78, s72
    s_lshl_b32 s78, s78, 10
    s_add_u32 s78, s78, %d
    s_lshl_b32 s79, s61, 6
    s_add_u32 s79, s79, s62
    s_lshl_b32 s79, s79, 4
    s_add_u32 s79, s79, %d
    s_lshl_b32 s80, s62, 6
    s_add_u32 s80, s80, s61
    s_lshl2_add_u32 s80, s80, s60
    s_lshl_b32 s80, s80, 2
    s_add_u32 s80, s80, %d
    s_mul_i32 s72, s61, 43
    s_add_u32 s72, s72, 43
    s_lshr_b32 s72, s72, 3
    s_add_u32 s73, s81, 4
    s_add_u32 s88, s78, %d
    s_cmp_lt_u32 s73, s72
    s_cselect_b32 s88, s88, 0x40000000
    s_lshl_b32 s81, s81, 6
    """ % (WS_QO, WS_KV, WS_HF, WS_FLAGQ, WS_FLAGH, 8 * 65536))

    def slot_of(c):
        if not cfg.xslot or c < cfg.xslot:
            return (c & 3) * 24576
        return -L_RING if c == cfg.xslot else ((c - 1) & 3) * 24576

    skip_bar = (10,) if cfg.xslot else ()

    def issue_chunk(c):
        for m in range(6):
            blk, seg = divmod(m, 3)
            a("s_add_u32 m0, s87, %d" % (slot_of(c) + seg * 2048 + blk * 1024))
            if c < 8:
                a("s_add_u32 s72, s85, %d" % ((c * 64 + blk * 8) * 3072 + seg * 1024))
                dma(13, SWQ, "s72", 0, ("w", c))
            else:
                a("s_add_u32 s72, s80, %d" % (((c - 8) * 64 + blk * 8) * 2752 + seg * 128))
                dma(57 if seg == 2 else 56, SW1, "s72", 0, ("w", c))

    def layernorm(acts):
        def act(p):
            if acts.get(p):
                assert p >= 7
                a("s_cmp_eq_u32 s63, 1")
                a("s_cbranch_scc1 L_ln_%d" % p)
                for f in acts[p]:
                    f()
                a.label("L_ln_%d" % p)
        a.label("L_ln")
        a("v_mov_b32 v30, 0x3f803f80")
        a("s_mov_b32 s89, 0xffff0000")
        for j in range(8):
            if cfg.bst == 3 and j == 0:
                stamp(3, True)
            vm.wait(("x", j))
            if cfg.bst == 3 and j in (0, 3, 7):
                stamp({0: 4, 3: 5, 7: 6}[j], True)
            act(j)
            for q in range(4):
                x = RAW + j * 4 + q
                a("v_dot2c_f32_bf16 v24, v30, %s" % vr(x))
                a("v_dot2c_f32_bf16 v25, %s, %s" % (vr(x), vr(x)))
        act(8)
        stamp(1)
        for ctl in ("quad_perm:[1,0,3,2]", "quad_perm:[2,3,0,1]", "row_half_mirror"):
            for r in (24, 25):
                a("v_add_f32_dpp %s, %s, %s %s row_mask:0xf bank_mask:0xf" % (vr(r), vr(r), vr(r), ctl))
        a("""
        v_mul_f32 v24, 0x3b000000, v24
        v_mul_f32 v25, 0x3b000000, v25
        v_fma_f32 v25, -v24, v24, v25
        v_max_f32 v25, 0, v25
        v_cvt_pk_bf16_f32 v24, v24, v25
        v_and_b32 v25, s89, v24
        v_add_f32 v25, 0x3727c5ac, v25
        v_cvt_pk_bf16_f32 v25, v25, v25
        v_and_b32 v25, s89, v25
        v_sqrt_f32 v25, v25
        v_lshlrev_b32 v24, 16, v24
        v_cvt_pk_bf16_f32 v25, v25, v25
        v_and_b32 v25, s89, v25
        v_rcp_f32 v26, v25
        v_mul_f32_e64 v28, -v24, v26
        """)
        for j in range(8):
            x = RAW + j * 4
            t = 192 + (j & 1) * 8
            for q in range(4):
                a("v_lshlrev_b32 %s, 16, %s" % (vr(t + 2 * q), vr(x + q)))
                a("v_and_b32 %s, s89, %s" % (vr(t + 2 * q + 1), vr(x + q)))
            for q in range(4):
                a("v_pk_fma_f32 %s, %s, v[26:27], v[28:29] op_sel_hi:[1,0,0]" % (vr(t + 2 * q, 2), vr(t + 2 * q, 2)))
            for q in range(4):
                a("v_cvt_pk_bf16_f32 %s, %s, %s" % (vr(x + q), vr(t + 2 * q), vr(t + 2 * q + 1)))
            if not cfg.defer:
                a("ds_write_b128 v15, %s offset:%d" % (vr(x, 4), j * 8192))
        if cfg.bst == 3:
            stamp(7, True)
        act(9)
        if cfg.defer:
            for j in range(8):
                a("ds_write_b128 v15, %s offset:%d" % (vr(RAW + j * 4, 4), j * 8192))
        act(10)
        stamp(2)
        if cfg.bst == 3:
            stamp(8, True)

    def pfq():
        a("; memory-side prefetch of Wqkv")
        bload(7, 1, 31, SWQ, "s100", 0, "", "pf")

    def pfc(which):
        a("; lines at offset 384 of every KiB stream slowly on a miss: the die's workgroups pull them into L2 together")
        a("s_lshr_b32 s72, s2, 3")
        a("s_lshl2_add_u32 s72, s72, s60")
        a("s_mul_i32 s72, s72, 12288")
        a("v_lshlrev_b32 v20, 3, v31")
        if which == SWQ:
            a("s_bitcmp1_b32 s2, 0")
            a("s_cselect_b32 s72, 0x40000000, s72")
        bload(7, 1, 20, which, "s72", 384, "", "pf")

    def pf1():
        a("; memory-side prefetch of W1")
        bload(7 if cfg.pf1_at <= 10 else 32, 1, 31, SW1, "s100", 0, "", "pf")

    acts = {}
    if cfg.pfc_at == 0:
        save = list(vm.items)
        pfc(SWQ)
        vm.items = save
    elif cfg.pfc_at <= 10:
        acts.setdefault(cfg.pfc_at, []).append(lambda: pfc(SWQ))
    if cfg.pfq_at == 0:
        save = list(vm.items)
        pfq()
        vm.items = save
    elif cfg.pfq_at <= 10:
        acts.setdefault(cfg.pfq_at, []).append(pfq)
    for c, p in enumerate((cfg.w0_at, cfg.w1_at, cfg.w2_at, 10)[:cfg.lead + 1]):
        acts.setdefault(p, []).append(lambda c=c: issue_chunk(c))
    if cfg.pf1_at <= 10:
        acts.setdefault(cfg.pf1_at, []).append(pf1)
    if cfg.pfc1:
        acts.setdefault(10, []).append(lambda: pfc(SW1))
    layernorm(acts)
    a("s_cmp_eq_u32 s63, 1")
    a("s_cbranch_scc1 L_loader")

    QR, SB, WF, FA, OA, KV, HB = 8, 24, 56, 64, 128, 192, 228
    NKV = 3

    def att_init_ops():
        ops = ["v_mov_b32 %s, 0" % vr(OA + 16 * t + i) for t in range(4) for i in range(9)]
        ops2 = ["v_and_b32 v7, 27, v0", "v_cmp_eq_u32 vcc, 16, v7", "v_mov_b32 v7, 0x3f803f80", "v_cndmask_b32 v7, 0, v7, vcc"]
        ops2 += ["v_mov_b32 %s, v7" % vr(KV + 12 * b + 4 + q) for b in range(NKV) for q in range(8)]
        return ops, ops2

    def kvload(j):
        b = j % NKV
        bload(KV + 12 * b, 4, 252, SWS, "s82", 0, "sc1", ("kv", j))
        a("s_mov_b64 exec, %s" % sr(sVM, 2))
        bload(KV + 12 * b + 4, 4, 253, SWS, "s82", 0, "sc1", ("kv", j))
        bload(KV + 12 * b + 8, 4, 254, SWS, "s82", 0, "sc1", ("kv", j))
        a("s_mov_b64 exec, -1")
        a("s_add_u32 s82, s82, 2048")

    def att_loads():
        a("s_and_b32 s72, s60, 1")
        a("s_lshl_b32 s73, s72, 10")
        a("v_add_u32 v252, s73, v1")
        a("s_lshr_b32 s73, 0x400, s72")
        a("v_add_u32 v253, s73, v2")
        a("s_mul_i32 s73, s72, 0x600")
        a("s_sub_u32 s73, 0x600, s73")
        a("v_add_u32 v254, s73, v2")
        bload(QR, 4, 1, SWS, "s92", 0, "sc1", "q")
        kvload(0)
        for t in range(1, 4):
            bload(QR + 4 * t, 4, 1, SWS, sr(92 + t), 0, "sc1", "q")
        kvload(1)
        if cfg.kv3:
            kvload(2)

    def dump_addr():
        a("v_lshlrev_b32 v8, 2, v0")
        a("v_add_u32 v9, s99, v1")
        a("v_add_u32 v10, s99, v8")
        a("v_bfe_u32 v11, v0, 4, 1")
        a("v_lshl_add_u32 v11, v11, 10, v2")

    def dump(t):
        a("v_add_u32 v12, %s, v1" % sr(96 + t))
        a("v_add_u32 v13, %s, v8" % sr(96 + t))
        dsw("ds_write_b128", 12, OA + 16 * t, 4, t * 2304)
        dsw("ds_write_b128", 12, OA + 16 * t + 4, 4, t * 2304 + 1024)
        dsw("ds_write_b32", 13, OA + 16 * t + 8, 1, t * 2304 + 2048)

    deferred = []
    cfg_gap = {0: range(16), 1: (1, 10), 2: (0, 9), 3: (4, 10), 4: (1,), 5: (4,), 6: (15, 9)}[cfg.gap]

    def att_run(n, hooks):
        hooks.setdefault((n - 1, 0, 11), []).append(dump_addr)
        for t in range(3):
            hooks.setdefault((n - 1, t + 1, 12), []).append(lambda t=t: dump(t))
        vm.wait("q", ("kv", 0))
        mfma32(SB, KV, QR, None)
        for j in range(n):
            b = j % NKV
            for t in range(4):
                cur, oth = SB + 16 * (t & 1), SB + 16 * ((t + 1) & 1)
                for i in range(16):
                    a("v_exp_f32 %s, %s" % (vr(cur + i), vr(cur + i)))
                    if i in cfg_gap:
                        while deferred:
                            deferred.pop(0)()
                    if t == cfg.kvt and i == cfg.kvi and j + NKV - 1 < n and not (cfg.abl & 32 and j > 0) and not (cfg.kv3 and j == 0):
                        kvload(j + NKV - 1)
                    if i == 1 and (j, t) != (0, 0):
                        smf(OA + 16 * ((t + 3) & 3), KV + 12 * (b if t else (j - 1) % NKV) + 8, oth + 8)
                    if i == 4:
                        if t < 3:
                            mfma32(oth, KV + 12 * b, QR + 4 * (t + 1), None)
                        elif j + 1 < n:
                            vm.wait(("kv", j + 1))
                            mfma32(oth, KV + 12 * ((j + 1) % NKV), QR, None)
                    if i == 10:
                        smf(OA + 16 * t, KV + 12 * b + 4, cur)
                    for h in hooks.get((j, t, i), ()):
                        h()
        smf(OA + 48, KV + 12 * ((n - 1) % NKV) + 8, SB + 16 + 8)

    ACC = (24, 40, 56)
    WB, NBUF, LA = 72, 6, cfg.look
    XF, PK, XA = 128, 96, 16
    init1, init2 = att_init_ops()

    def item(g):
        return divmod(g % 96, 3)

    def reads(g):
        ks, sel = item(g)
        c, m = divmod(g, 12)
        so = slot_of(c)
        base, so = (XA, 0) if so < 0 else (8 + so // 49152, so % 49152)
        if g < 96 and sel == 0:
            dsr("ds_read_b128", XF + 4 * ks, 4, XA + (ks & 3), (ks >> 2) * 8192, g)
        trread(WB + 4 * (g % NBUF), base, so + m * 2048, 512, g)

    def pack(acc, pk):
        return ["v_cvt_pk_bf16_f32 %s, %s, %s" % (vr(pk + q), vr(acc + 2 * q), vr(acc + 2 * q + 1)) for q in range(8)]

    def st2(pk, va, base, delta, tag, imm=(0, 0), vb=None):
        def first():
            bstore(pk, 4, va, SWS, base, imm[0], "" if cfg.abl & 64 else "sc1", tag)

        def second():
            if delta:
                a("s_add_u32 s72, %s, %d" % (base, delta))
            bstore(pk + 4, 4, vb or va, SWS, "s72" if delta else base, imm[1], "" if cfg.abl & 64 else "sc1", tag)
        return [first, second]

    def relu2(acc):
        return (["v_max_f32 %s, 0, %s" % (vr(acc + i), vr(acc + i)) for i in range(16)]
                + ["v_mul_f32 %s, %s, %s" % (vr(acc + i), vr(acc + i), vr(acc + i)) for i in range(16)])

    def bias(seg):
        return lambda: (vm.wait("b1"), mfma32(ACC[seg], 112 + 4 * seg, 124, None))

    tagq = ["v_or_b32 %s, 1, %s" % (vr(PK + 4 * q), vr(PK + 4 * q)) for q in range(2)]
    qkv_epi = (["v_mul_f32 %s, 0x%x, %s" % (vr(ACC[0] + i), QSCALE, vr(ACC[0] + i)) for i in range(16)]
               + pack(ACC[0], PK) + tagq + [bias(0)] + st2(PK, 1, "s76", 0, "st", (0, 1024))
               + pack(ACC[1], PK + 8) + [bias(1)] + st2(PK + 8, 11, "s77", 0x20400, "st")
               + pack(ACC[2], PK) + [bias(2)] + st2(PK, 12, "s77", 0, "st", (1024, 1536), 14))
    sched = {100: ["v_subrev_u32 %s, %d, v8" % (vr(XA), L_RING)], 144: init1, 180: init2}
    shadow = []

    def run_shadow(budget):
        while shadow and budget > 0:
            op = shadow.pop(0)
            if isinstance(op, str):
                a(op)
                budget -= 1
            else:
                op()
                budget -= 3

    a("""
    s_lshl_b32 s85, s60, 14
    s_lshl_b32 s72, s67, 7
    s_add_u32 s85, s85, s72
    s_lshl_b32 s86, s60, 6
    s_lshl1_add_u32 s86, s66, s86
    s_lshl_b32 s86, s86, 10
    s_add_u32 s86, s86, %d
    s_lshl_b32 s87, s66, 10
    s_add_u32 s87, s87, %d
    """ % (WS_HF, WS_FLAGH))
    if cfg.abl & 128:
        a("s_bitcmp1_b32 s60, 0")
        a("s_cselect_b32 s77, 0x40000000, s77")
    if cfg.abl & 256:
        a("s_mov_b32 s77, 0x40000000")
    vm.wait(("w", 0))
    a("s_waitcnt lgkmcnt(0)")
    a("s_add_u32 %s, %s, 0x%x" % (sr(sTAG), sr(sTAG), EPOCH_INC))
    if cfg.bst == 3:
        stamp(9, True)
    a("s_barrier")
    stamp(3)
    if cfg.bst == 3:
        stamp(10, True)
    for g in range(LA):
        reads(g)
    for g in range(192):
        ks, sel = item(g)
        if g == 96:
            stamp(4)
            shadow.extend(qkv_epi)
            run_shadow(1000)
            stamp(5)
        lg.wait(g)
        x, w = XF + 4 * ks, WB + 4 * (g % NBUF)
        c = None if (g < 96 and ks == 0) else ACC[sel]
        if g < 96 and sel == 2:
            mfma32(ACC[sel], x, w, c)
        else:
            mfma32(ACC[sel], w, x, c)
        n = g + LA
        if n < 192:
            if n % 12 == 0 and n // 12 not in skip_bar:
                vm.wait(("w", n // 12))
                if n // 12 == cfg.flag_chunk:
                    vm.wait("st")
                a("s_barrier")
                if n // 12 == cfg.flag_chunk:
                    a("s_cmp_lg_u32 s60, 0")
                    a("s_cselect_b32 s79, 0x40000000, s79")
                    set_flag(7, "s79")
                    stamp(6)
            reads(n)
        if g == 40:
            for seg in range(3):
                a("buffer_load_ushort %s, v10, %s, s81 offen offset:%d" % (vr(112 + 4 * seg), srd(SB1), seg * 128))
                vm.push("b1")
        shadow.extend(sched.get(g, ()))
        run_shadow(3)
    run_shadow(1000)
    stamp(7)
    hmath, hst = [], []
    for seg in range(3):
        pk = PK + 8 * seg
        hmath.append(relu2(ACC[seg]) + pack(ACC[seg], pk))
        hst.append((["s_add_u32 s78, s78, 0x40000"] if seg == 1 else []) + st2(pk, 1, "s78" if seg < 2 else "s88", 0x10000, "hst"))
    for seg in range(cfg.hbar):
        shadow.extend(hmath[seg])
    run_shadow(1000)
    a("s_barrier")
    stamp(8)
    if cfg.bst == 4:
        stamp(1, True)
    a("s_setprio 2")
    for seg in range(cfg.hbar, cfg.hpre):
        shadow.extend(hmath[seg])
    run_shadow(1000)
    att_loads()
    hlist = [[hst[0][0]], [hst[0][1]], hst[1][:2], [hst[1][2]], [hst[2][0]], [hst[2][1]]]
    for seg in range(3):
        shadow.extend(hmath[seg] if seg >= max(cfg.hpre, cfg.hbar) else [])
        for n in (2 * seg, 2 * seg + 1):
            if n < cfg.hnow:
                shadow.extend(hlist[n])
    run_shadow(1000)
    stamp(9)


    def w2dma(i):
        if cfg.abl & 1:
            return
        a("s_add_u32 m0, s84, %d" % ((i & 3) * 2048))
        a("s_add_u32 s72, s85, %d" % (i * 65536))
        dma(4, SW2, "s72", 0, ("w2", i))
        a("s_add_u32 s72, s72, 7168")
        dma(4, SW2, "s72", 1024, ("w2", i))

    hreg = lambda i, tt: HB + 8 * (i % 3) + 4 * tt

    def hload(i):
        if cfg.abl & 1:
            return
        if i > 0:
            a("s_add_u32 s86, s86, 0x40000")
        for tt in range(2):
            bload(hreg(i, tt), 4, 1, SWS, "s86", tt * 1024, "sc1", ("h", i))

    def w2read(i, nt):
        if cfg.abl & 2:
            return
        vm.wait(("w2", i))
        trread(WF + 4 * nt, 5 + nt, (i & 3) * 2048, 1024, ("wf", i, nt))

    def fslot(f):
        i, m = divmod(f, 4)
        nt, tt = ((0, 0), (0, 1), (1, 1), (1, 0))[m]
        vm.wait(("h", i))
        lg.wait(("wf", i, nt))
        d = FA + 16 * (2 * tt + nt)
        if not cfg.abl & 4:
            mfma32(d, WF + 4 * nt, hreg(i, tt), None if i == 0 else d)
        if m == 1 and i + 1 < NS:
            deferred.append(lambda: w2read(i + 1, 0))
        if m == cfg.dmam and i + 4 < NS:
            deferred.append(lambda: w2dma(i + 4))
        if m == 3:
            if i + 1 < NS:
                deferred.append(lambda: w2read(i + 1, 1))
            if i + 3 < NS:
                deferred.append(lambda: hload(i + 3))

    def park(tt, nt):
        d = FA + 16 * (2 * tt + nt)
        for q in range(8):
            a("v_cvt_pk_bf16_f32 %s, %s, %s" % (vr(d + q), vr(d + 2 * q), vr(d + 2 * q + 1)))
        for q in range(2):
            dsw("ds_write_b128", 4, d + 4 * q, 4, tt * 32 * PART_STRIDE + nt * 64 + q * 32)

    def park_addr():
        a("v_and_b32 v4, 31, v0")
        a("v_mul_u32_u24 v4, %d, v4" % PART_STRIDE)
        a("v_lshrrev_b32 v5, 5, v0")
        a("v_lshl_add_u32 v4, v5, 4, v4")
        a("v_add_u32 v4, s84, v4")

    hooks = {}

    def hook(j, t, i, f):
        hooks.setdefault((j, t, i), []).append(f)

    n1 = cfg.n1
    for n in range(cfg.hnow, 6):
        tl = (n - cfg.hnow) * cfg.hgap + cfg.hoff
        hook(tl >> 2, tl & 3, 9, lambda n=n: (shadow.extend(hlist[n]), run_shadow(1000)))
    assert (5 - cfg.hnow) * cfg.hgap + cfg.hoff <= cfg.hflag < 4 * (n1 - 2)
    hook(cfg.hflag >> 2, cfg.hflag & 3, 12, lambda: (vm.wait("hst"), set_flag(7, "s80"), stamp(1) if cfg.hst else None))
    hook(n1 - 2, 0, 8, lambda: flag_load(7, 2, "s87", "hf"))
    hook(n1 - 2, 3, 12, lambda: (vm.wait("hf"), stamp(2) if cfg.hst else None, check_flags("h", 7, 2, "s87"), stamp(3) if cfg.hst else None))
    for i in range(4):
        hook(n1 - 3 + (i >> 1), 1 + (i & 1), 7, lambda i=i: w2dma(i))
    for i in range(3):
        hook(n1 - 1, i, 7, lambda i=i: hload(i))
    hook(n1 - 1, 3, 7, lambda: (w2read(0, 0), w2read(0, 1)))
    pat = [int(ch) for ch in str(cfg.fpat)]
    slots = [(j, t, pos) for j in range(n1, nA) for t in range(4) for pos in ((13,), (7, 13))[pat[t] - 1]]
    for f in range(4 * NS):
        hook(*slots[f], lambda f=f: fslot(f))
    tl = slots[4 * NS - 1][0] * 4 + slots[4 * NS - 1][1] + 1
    assert tl + 3 < 4 * nA
    hook(tl >> 2, tl & 3, 6, park_addr)
    for n, (nt, tt) in enumerate(((0, 0), (0, 1), (1, 1), (1, 0))):
        hook((tl + n) >> 2, (tl + n) & 3, 7, lambda tt=tt, nt=nt: park(tt, nt))
    if cfg.hst:
        for n in range(4):
            hook(n1 + 4 * n, 0, 1, lambda n=n: stamp(4 + n))
    if cfg.alow:
        tl = 4 * nA - cfg.alow
        hook(tl >> 2, tl & 3, 0, lambda: a("s_setprio 0"))
    if cfg.bst == 4:
        for n, j in enumerate(range(0, nA, 2)):
            hook(j, 0, 0, lambda n=n: stamp(2 + n, True))
    att_run(nA, hooks)
    vm.drain()
    a("s_branch L_att_done")

    a.label("L_loader")
    vm.items = []
    lg.items = []

    def b_setup():
        a("; waves 4-7: W1 DMA offsets v56/v57 (sixth tile out of range where the next group owns it), wo DMA offset v4, flagQ row s79")
        a("""
        v_mul_u32_u24 v56, 2752, v4
        v_add_u32 v56, v56, v6
        s_lshr_b32 s72, 0x5b, s61
        s_and_b32 s72, s72, 1
        s_lshl_b32 s72, s72, 23
        v_and_b32 v57, 64, v6
        v_mad_u32_u24 v57, v57, s72, v56
        v_bfe_u32 v6, v4, 1, 2
        v_lshlrev_b32 v6, 1, v6
        v_xor_b32 v6, v6, v5
        v_lshlrev_b32 v6, 4, v6
        v_lshl_add_u32 v4, v4, 10, v6
        v_min_u32 v5, %d, v0
        v_lshlrev_b32 v5, 7, v5
        s_lshr_b32 s79, s64, 1
        s_lshl_b32 s79, s79, 10
        s_add_u32 s79, s79, %d
        s_and_b32 s73, s60, 3
        s_lshl_b32 s72, s69, 6
        s_mul_i32 s80, s73, %d
        s_add_u32 s80, s80, s72
        """ % (cfg.pfn - 1, WS_FLAGQ, 16 * 2752))

        a("v_mov_b32 v3, 0xdddddddd")

    issued = cfg.lead
    setup1()
    state = {"issued": issued}

    def b_step(c):
        if c in skip_bar:
            return
        vm.wait(("w", c + 1 if c + 1 in skip_bar else c))
        if cfg.bst == 2:
            stamp(c, True)
        if cfg.bst == 3 and c == 0:
            stamp(9, True)
        a("s_barrier")
        if cfg.bst == 1:
            stamp(c, True)
        if c in (0, 8, 12, 15):
            stamp({0: 3, 8: 4, 12: 5, 15: 6}[c])
        if c == cfg.bload - 1:
            flag_load(7, 4, "s79", "qf")
        if c == cfg.bload:
            vm.wait("qf")
            check_flags("q", 7, 4, "s79")
            stamp(7)
            att_loads()
        lim = c + 2
        if cfg.xslot == 12 and c == 9:
            lim = 12
        if cfg.xslot == 11 and c in (8, 9):
            lim = c + 3
        if cfg.xslot and c >= 11:
            lim = c + cfg.xrun
        while state["issued"] < min(15, max(3, lim)):
            state["issued"] += 1
            issue_chunk(state["issued"])
        if c == 1:
            setup2()
        if cfg.pf1_at == 12 + c:
            assert c >= 1
            pf1()
        if c == 2:
            setup3()
        if c == 3:
            b_setup()
        if c == 4:
            for op in init1:
                a(op)
        if c == 5:
            for op in init2:
                a(op)
        if c == 7:
            a("s_waitcnt lgkmcnt(0)")
            a("s_add_u32 %s, %s, 0x%x" % (sr(sTAG), sr(sTAG), EPOCH_INC))

    def b_att():
        a("s_barrier")
        stamp(8)
        a("s_setprio 1")

    bhooks = {}
    for c in range(17):
        f = (lambda c=c: b_step(c)) if c < 16 else b_att
        if c <= cfg.bjoin:
            f()
        else:
            tl = (c - cfg.bjoin) * cfg.btile - 1
            bhooks[(tl >> 2, tl & 3, 13)] = [f]

    def wo_dma(lo, hi):
        if cfg.abl & 8:
            return
        if lo == 0:
            a("; wo tile -> LDS [0, 64K), a few rows per score tile")
            a("s_and_b32 s78, s60, 3")
            a("s_lshl_b32 s76, s78, 17")
            a("s_lshl_b32 s73, s67, 7")
            a("s_add_u32 s76, s76, s73")
            a("s_lshl_b32 s78, s78, 14")
        for i in range(lo, hi):
            a("s_add_u32 m0, s78, %d" % (i * 1024))
            a("s_add_u32 s73, s76, %d" % (i * 8192))
            dma(4, SWO, "s73", 0, "wo")

    nl = cfg.pfn
    batches = [(SW2, i) for i in range(-(-11 // nl))] + [(SWO, i) for i in range(-(-4 // nl))]

    def pf_late(n):
        if cfg.abl & 16:
            return
        if n == 0:
            a("; memory-side prefetch of w2 (in k order) and wo, a few lines per wave at a time")
            a("s_and_b32 s90, s60, 3")
            a("s_lshl2_add_u32 s90, s2, s90")
            a("s_mul_i32 s90, s90, %d" % (nl * 128))
        a("s_add_u32 s72, s90, %d" % (batches[n][1] * nl * 131072))
        bload(7, 1, 5, batches[n][0], "s72", 0, "", "pf")

    for n in range(len(batches)):
        tl = cfg.pfl + n * cfg.pfg
        bhooks[(tl >> 2, tl & 3, 7)] = [lambda n=n: pf_late(n)]
    for n, lo in enumerate(range(0, 16, cfg.won)):
        bhooks[((cfg.wol + n) >> 2, (cfg.wol + n) & 3, 8)] = [lambda lo=lo: wo_dma(lo, lo + cfg.won)]
    if cfg.bst == 4:
        for j in range(nB):
            bhooks.setdefault((j, 0, 0), []).append(lambda j=j: stamp(2 + j, True))
    att_run(nB, bhooks)
    vm.drain()

    OW = OA + 48
    WOF, OFR, AC, G, Z, X, SR = 128, 24, 8, 64, 96, 104, 112
    a.label("L_att_done")
    stamp(10)
    if cfg.bst == 4:
        stamp(14, True)
    a("s_setprio 0")
    a("s_and_b32 s73, s60, 1")
    a("s_lshl_b32 s73, s73, 9")
    a("s_sub_u32 s76, s95, s73")
    a("""
    s_and_b32 s74, s60, 3
    s_lshr_b32 s75, s60, 2
    v_lshrrev_b32 v14, 3, v0
    v_and_b32 v7, 7, v0
    v_lshlrev_b32 v7, 4, v7
    v_lshl_add_u32 v14, v14, 10, v7
    s_lshl3_add_u32 s78, s66, s60
    s_lshl_b32 s78, s78, 13
    s_lshl_b32 s79, s67, 7
    s_add_u32 s78, s78, s79
    """)
    bload(60, 4, 7, SB2, "s79", 0, "", "xb")
    bload(56, 4, 14, SX, "s78", 0, "", "xb")
    lg.drain()
    a("s_barrier")
    for src in range(3):
        d = SB + 10 * src
        dsr("ds_read_b128", d, 4, 9, src * 2304, src)
        dsr("ds_read_b128", d + 4, 4, 9, src * 2304 + 1024, src)
        dsr("ds_read_b32", d + 8, 1, 10, src * 2304 + 2048, src)
    for src in range(3):
        lg.wait(src)
        for i in range(0, 8, 2):
            a("v_pk_add_f32 %s, %s, %s" % (vr(OW + i, 2), vr(OW + i, 2), vr(SB + 10 * src + i, 2)))
        a("v_add_f32 %s, %s, %s" % (vr(OW + 8), vr(OW + 8), vr(SB + 10 * src + 8)))
    a("v_pk_mul_f32 v[12:13], %s, 0 op_sel_hi:[1,0]" % vr(OW, 2))
    for i in range(2, 8, 2):
        a("v_pk_fma_f32 v[12:13], %s, 0, v[12:13] op_sel_hi:[1,0,1]" % vr(OW + i, 2))
    a("""
    v_add_f32 v12, v12, %s
    v_add_f32 v12, v12, v13
    v_cmp_nle_f32 vcc, 0x30800000, v12
    s_mov_b64 s[72:73], vcc
    v_cmp_nge_f32 vcc, 0x5d800000, v12
    s_or_b64 s[72:73], s[72:73], vcc
    """ % vr(OW + 8))
    a("s_branch L_slow" if cfg.force_slow else "s_cbranch_scc1 L_slow")
    a.label("L_norm")
    a("v_rcp_f32 v12, %s" % vr(OW + 8))
    for i in range(0, 8, 2):
        a("v_pk_mul_f32 %s, %s, v[12:13] op_sel_hi:[1,0]" % (vr(OW + i, 2), vr(OW + i, 2)))
    for q in range(4):
        a("v_cvt_pk_bf16_f32 %s, %s, %s" % (vr(16 + q), vr(OW + 2 * q), vr(OW + 2 * q + 1)))
    a("v_and_b32 v16, -2, v16")
    bstore(16, 4, 11, SWS, "s76", 0, "sc1", "ost")
    stamp(11)
    a("v_mov_b32 v2, v14")
    a("v_lshrrev_b32 v3, 3, v0")
    a("""
    v_mul_u32_u24 v4, %d, v3
    s_mul_i32 s72, s60, %d
    s_add_u32 s72, s72, %d
    v_add3_u32 v4, v4, v7, s72
    """ % (PART_STRIDE, 8 * PART_STRIDE, L_W2))
    for j in range(4):
        dsr("ds_read_b128", G + 4 * j, 4, 4, j * W2_REGION, "g")
    a("""
    v_bfe_u32 v4, v0, 2, 2
    v_bfe_u32 v5, v0, 4, 1
    v_lshl_add_u32 v4, v5, 2, v4
    v_lshrrev_b32 v5, 1, v4
    v_lshlrev_b32 v92, 7, v4
    v_lshl_add_u32 v92, v5, 5, v92
    v_lshrrev_b32 v6, 5, v0
    v_lshl_add_u32 v92, v6, 11, v92
    v_and_b32 v4, 3, v0
    v_lshl_add_u32 v92, v4, 3, v92
    s_lshl_b32 s72, s75, 15
    v_add_u32 v92, s72, v92
    v_xor_b32 v93, 32, v92
    v_xor_b32 v94, 64, v92
    v_xor_b32 v95, 0x60, v92
    s_barrier
    """)

    def oloads(first=0):
        for ks in range(first, 8):
            bload(OFR + 4 * ks, 4, 1, SWS, ("s76", "s77", "s80", "s81")[ks >> 1], (ks & 1) * 2048, "sc1", ("o", ks))

    fill = ("""
    s_lshl2_add_u32 s72, s66, s74
    s_lshr_b32 s76, s72, 1
    s_lshl1_add_u32 s76, s76, s75
    s_lshl_b32 s76, s76, 14
    s_and_b32 s72, s72, 1
    s_lshl_b32 s72, s72, 10
    s_add_u32 s76, s76, s72
    s_add_u32 s76, s76, %d
    s_add_u32 s77, s76, 0x1000
    s_add_u32 s80, s76, 0x2000
    s_add_u32 s81, s76, 0x3000
    v_mul_u32_u24 v3, %d, v3
    v_lshl_add_u32 v3, v7, 1, v3
    s_mul_i32 s72, s60, %d
    s_add_u32 s72, s72, %d
    v_add_u32 v3, s72, v3
    v_and_b32 v5, 15, v0
    v_mul_u32_u24 v5, %d, v5
    v_and_b32 v4, 48, v0
    s_mul_i32 s72, s60, %d
    s_add_u32 s72, s72, %d
    v_add3_u32 v5, v5, v4, s72
    s_mov_b32 s82, 0x3f80
    s_mov_b32 s83, 0x3f800000
    """ % (WS_QO, SUM_STRIDE, 8 * SUM_STRIDE, L_SUM, SUM_STRIDE, 16 * SUM_STRIDE, L_SUM)).strip().split("\n")
    gate = ["v_mov_b32 %s, 0" % vr(Z + i) for i in range(8)]
    gate.append(lambda: lg.wait("g"))
    for j in range(5):
        if j == 4:
            gate.append(lambda: vm.wait("xb"))
        for q in range(4):
            src = G + 4 * j + q if j < 4 else 60 + q
            gate.append("v_dot2c_f32_bf16 %s, s82, %s" % (vr(Z + 2 * q), vr(src)))
            gate.append("v_dot2c_f32_bf16 %s, s83, %s" % (vr(Z + 2 * q + 1), vr(src)))
    for q in range(4):
        gate.append("v_lshlrev_b32 %s, 16, %s" % (vr(X + 2 * q), vr(56 + q)))
        gate.append("v_and_b32 %s, s89, %s" % (vr(X + 1 + 2 * q), vr(56 + q)))
    gate += ["v_mul_f32 %s, 0x%x, %s" % (vr(G + i), NLOG2E, vr(Z + i)) for i in range(8)]
    gate += ["v_exp_f32 %s, %s" % (vr(G + i), vr(G + i)) for i in range(8)]
    gate += ["v_add_f32 %s, 1.0, %s" % (vr(G + i), vr(G + i)) for i in range(8)]
    gate += ["v_rcp_f32 %s, %s" % (vr(G + i), vr(G + i)) for i in range(8)]
    gate += ["v_mul_f32 %s, %s, %s" % (vr(Z + i), vr(Z + i), vr(G + i)) for i in range(8)]

    def wo_reads(oat, per):
        for ks in range(8):
            for ct in range(4):
                trread(WOF + (ks * 4 + ct) * 4, 92 + ct, ks * 4096, 1024, ("wo", ks))
                run_shadow(per)
            if ks == oat:
                run_shadow(1000)
                vm.wait("ost")
                oloads()

    vm_t, lg_t = list(vm.items), list(lg.items)
    a("s_cmp_eq_u32 s63, 1")
    a("s_cbranch_scc1 L_tail_b")
    shadow.extend(fill)
    wo_reads(7, 1)
    shadow.extend(gate)
    run_shadow(1000)
    a("s_branch L_tail_j")
    a.label("L_tail_b")
    vm.items, lg.items = vm_t, lg_t
    shadow.extend(fill + gate)
    run_shadow(1000)
    wo_reads(cfg.oat, 0)
    a.label("L_tail_j")
    stamp(12)
    a("s_mov_b32 s73, 0")
    lg.drain()
    for ks in range(8):
        a.label("L_wo_%d" % ks)
        vm.wait(("o", ks))
        a("v_and_b32 v6, 1, %s" % vr(OFR + 4 * ks))
        a("v_cmp_ne_u32 vcc, 0, v6")
        a("s_cbranch_vccnz L_oretry_%d" % ks)
        a.label("L_ogo_%d" % ks)
        for ct in range(4):
            d = AC + 4 * ct
            mfma16(d, WOF + (ks * 4 + ct) * 4, OFR + 4 * ks, None if ks == 0 else d)
    stamp(13)
    for ct in range(4):
        dsw("ds_write_b128", 5, AC + 4 * ct, 4, ct * 64)
    lg.drain()
    a("s_barrier")
    stamp(14)
    dsr("ds_read_b128", SR, 4, 3, 0, 0)
    dsr("ds_read_b128", SR + 8, 4, 3, SUM_SIZE, 0)
    dsr("ds_read_b128", SR + 4, 4, 3, 16, 1)
    dsr("ds_read_b128", SR + 12, 4, 3, SUM_SIZE + 16, 1)
    for h in range(2):
        lg.wait(h)
        for i in range(4 * h, 4 * h + 4, 2):
            a("v_pk_add_f32 %s, %s, %s" % (vr(SR + i, 2), vr(SR + i, 2), vr(SR + 8 + i, 2)))
        for i in range(4 * h, 4 * h + 4, 2):
            a("v_pk_fma_f32 %s, %s, %s, %s" % (vr(SR + i, 2), vr(SR + i, 2), vr(Z + i, 2), vr(X + i, 2)))
        for q in range(2 * h, 2 * h + 2):
            a("v_cvt_pk_bf16_f32 %s, %s, %s" % (vr(G + q), vr(SR + 2 * q), vr(SR + 2 * q + 1)))
    bstore(G, 4, 2, SOUT, "s78", 0, ("", "sc1", "nt", "sc0 sc1", "sc0 sc1 nt")[cfg.omod])
    a("s_or_b32 s72, s2, s60")
    a("s_cmp_lg_u32 s72, 0")
    a("s_cbranch_scc1 L_noepoch")
    set_flag(7, "0")
    a.label("L_noepoch")
    if cfg.stamps:
        a("s_waitcnt vmcnt(0)")
        stamp(15)
        if cfg.probe is not None:
            a("s_sub_u32 s72, %s, s4" % sr(sSTAMP + cfg.probe))
            if cfg.stamps == 2:
                a("s_lshr_b32 s72, s72, 3")
            else:
                a("s_lshl_b32 s72, s72, %d" % cfg.probesh)
            a("s_cmp_lg_u32 s2, %d" % cfg.probewg)
            a("s_cselect_b32 s72, 0, s72")
            a("s_cmp_lg_u32 s60, %d" % cfg.probew)
            a("s_cselect_b32 s72, 0, s72")
            a("s_memrealtime s[22:23]")
            a("s_waitcnt lgkmcnt(0)")
            a("s_mov_b32 s73, s22")
            a.label("L_probe")
            a("s_memrealtime s[22:23]")
            a("s_waitcnt lgkmcnt(0)")
            a("s_sub_u32 s22, s22, s73")
            a("s_cmp_lt_u32 s22, s72")
            a("s_cbranch_scc1 L_probe")
        a("s_lshl3_add_u32 s72, s2, s60")
        a("s_lshl_b32 s72, s72, 6")
        a("s_add_u32 s72, s72, %d" % WS_STAMP)
        for i in range(16):
            a("v_mov_b32 %s, %s" % (vr(80 + i), sr(sSTAMP + i)))
        a("s_mov_b64 exec, 1")
        for i in range(4):
            bstore(80 + 4 * i, 4, 1, SWS, "s72", 16 * i)
    a.label("L_end")
    a("s_endpgm")

    for ks in range(8):
        a.label("L_oretry_%d" % ks)
        a("s_add_u32 s73, s73, 1")
        a("s_cmp_ge_u32 s73, %d" % SPIN_MAX)
        a("s_cbranch_scc1 L_ogo_%d" % ks)
        a("s_waitcnt vmcnt(0)")
        oloads(ks)
        a("s_branch L_wo_%d" % ks)

    for tag, vt, lanes, soff in stubs:
        a.label("L_poll_" + tag)
        a("s_mov_b32 s73, 0")
        a.label("L_poll2_" + tag)
        a("s_sleep %d" % cfg.sleep)
        flag_load(vt, lanes, soff, None)
        a("s_add_u32 s73, s73, 1")
        a("s_waitcnt vmcnt(0)")
        a("s_cmp_ge_u32 s73, %d" % SPIN_MAX)
        a("s_cbranch_scc1 L_polled_" + tag)
        a("v_cmp_ne_u32 vcc, %s, %s" % (sr(sTAG), vr(vt)))
        a("s_cbranch_vccnz L_poll2_" + tag)
        a("s_branch L_polled_" + tag)

    a.label("L_slow")
    CN = SB + 16
    a("s_waitcnt vmcnt(0)")
    a("v_mov_b32 v13, 0xff800000")
    a("s_mov_b32 s82, s83")
    a("s_mov_b32 s81, 64")
    a.label("L_slow1")
    bload(KV, 4, 252, SWS, "s82", 0, "sc1")
    a("s_add_u32 s82, s82, 2048")
    a("s_waitcnt vmcnt(0)")
    mfma32(SB, KV, QR + 12, None)
    for i in range(0, 16, 2):
        a("v_max3_f32 v13, v13, %s, %s" % (vr(SB + i), vr(SB + i + 1)))
    a("s_sub_u32 s81, s81, 1")
    a("s_cmp_lg_u32 s81, 0")
    a("s_cbranch_scc1 L_slow1")
    a("v_mov_b32 v15, v13")
    a("v_permlane32_swap_b32 v15, v13")
    a("v_max_f32 v13, v15, v13")
    for i in range(16):
        a("v_sub_f32 %s, 0, v13" % vr(CN + i))
        a("v_mov_b32 %s, 0" % vr(OW + i))
    a("s_mov_b32 s82, s83")
    a("s_mov_b32 s81, 64")
    a.label("L_slow2")
    kvload(0)
    a("s_waitcnt vmcnt(0)")
    mfma32(SB, KV, QR + 12, CN)
    for i in range(16):
        a("v_exp_f32 %s, %s" % (vr(SB + i), vr(SB + i)))
    smf(OW, KV + 4, SB)
    smf(OW, KV + 8, SB + 8)
    a("s_sub_u32 s81, s81, 1")
    a("s_cmp_lg_u32 s81, 0")
    a("s_cbranch_scc1 L_slow2")
    a("s_branch L_norm")
    a.label("L_code_end")
    a("s_endpgm")

    added = a.fix()
    return a.text(), added


HEADER = """; Kernarg layout for this problem (88 bytes, ptrs only, base s[0:1]):
; @launch grid=(256,1,1) block=(512,1,1) lds=163840
.amdgcn_target "amdgcn-amd-amdhsa--gfx950"
.text
.globl {k}
.p2align 8
.type {k},@function
{k}:
"""

FOOTER = """.section .rodata,"a"
.p2align 6
.amdhsa_kernel {k}
  .amdhsa_next_free_vgpr 256
  .amdhsa_next_free_sgpr 102
  .amdhsa_accum_offset 256
  .amdhsa_group_segment_fixed_size 0
  .amdhsa_kernarg_size 88
  .amdhsa_user_sgpr_count 2
  .amdhsa_user_sgpr_kernarg_segment_ptr 1
  .amdhsa_system_sgpr_workgroup_id_x 1
.end_amdhsa_kernel
"""


def build(**kw):
    cfg = Cfg()
    for k, v in kw.items():
        setattr(cfg, k, v)
    body, added = gen(cfg)
    return HEADER.format(k=KERNEL) + body + FOOTER.format(k=KERNEL), added


if __name__ == "__main__":
    out = sys.argv[1] if len(sys.argv) > 1 else "cdna_kernels/%s.s" % NAME
    kw = {}
    for arg in sys.argv[2:]:
        k, v = arg.split("=")
        kw[k] = int(v)
    text, added = build(**kw)
    open(out, "w").write(text)
    print("wrote", out, "lines", text.count("\n"), "nops added", added)
```

```python
import sys
import os
sys.path.insert(0, os.path.dirname(os.path.abspath(__file__)))
from asmlib import Asm, vr, sr

NAME = "recurrent_scan__softmax_full_mha__dense_activation_squared_relu__prompt"
KERNEL = NAME + "_kernel"

WS_FLAGQ = 0x1200
WS_FLAGH = 0x60000
WS_STAMP = 0x10000
WS_QO = 0x100000
WS_KV = 0x300000
WS_HF = 0x700000
WS_END = WS_HF + 86 * 65536
EPOCH_INC = 0x9E3779B9
SPIN_MAX = 1 << 18

L_RING = 65536
L_OPART = 65536
L_W2 = L_OPART + 55296
W2_REGION = 10240
PART_STRIDE = 144
SUM_STRIDE = 272
SUM_SIZE = 64 * SUM_STRIDE
L_SUM = L_OPART

SX, SWQ, SWO, SW1, SB1, SW2, SB2, SOUT, SWS = 24, 28, 32, 36, 40, 44, 48, 52, 56
sW, sCG, sTB, sRW, sP, sQB, sTBF, sCB, sTAG, sCT0 = 60, 61, 62, 63, 64, 65, 66, 67, 68, 69
sVM = 70
sSTAMP = 4

QSCALE = 0x3EB8AA3B
NLOG2E = 0xBFB8AA3B
NS = 22


class Cfg:
    abl = 0
    bst = 0
    xslot = 0
    xrun = 2
    n1 = 8
    nA = 22
    gap = 1
    kvt = 0
    kvi = 4
    dmam = 2
    fpat = 2221
    pf1_at = 10
    pfc_at = 0
    pfc1 = 0
    w2_at = 10
    pfl = 7
    wol = 14
    won = 1
    stamps = 0
    force_slow = 0
    flag_chunk = 10
    lead = 2
    defer = 0
    look = 5
    pfq_at = 8
    bload = 15
    bjoin = 16
    btile = 2
    sleep = 6
    w0_at = 7
    w1_at = 10
    hpre = 2
    hbar = 0
    hnow = 2
    hgap = 2
    hoff = 0
    kv3 = 1
    fsh = 4
    pfe = 99
    pfn = 11
    alow = 0
    pfg = 1
    hflag = 11
    probe = None
    omod = 1
    oat = 4
    probewg = 100
    probew = 0
    probesh = 4
    hst = 0


def srd(s):
    return sr(s, 4)


class Queue:
    def __init__(self, a, name, maxn):
        self.a, self.name, self.maxn, self.items = a, name, maxn, []

    def push(self, tag):
        self.items.append(tag)

    def wait(self, *tags):
        last = max((i for i, t in enumerate(self.items) if t in tags), default=-1)
        if last < 0:
            return
        n = len(self.items) - 1 - last
        self.a("s_waitcnt %s(%d)" % (self.name, min(n, self.maxn)))
        self.items = self.items[last + 1:]

    def drain(self):
        self.a("s_waitcnt %s(0)" % self.name)
        self.items = []


def gen(cfg):
    a = Asm()
    nA = cfg.nA
    nB = 32 - nA
    vm = Queue(a, "vmcnt", 63)
    lg = Queue(a, "lgkmcnt", 15)

    def stamp(i, force=False):
        if cfg.bst and not force and i != 0:
            return
        if cfg.stamps and (cfg.probe is None or i in (0, cfg.probe)):
            a("%s s[22:23]" % ("s_memtime" if cfg.stamps == 2 else "s_memrealtime"))
            a("s_waitcnt lgkmcnt(0)")
            a("s_mov_b32 %s, s22" % sr(sSTAMP + i))

    def mfma32(d, x, y, c):
        a("v_mfma_f32_32x32x16_bf16 %s, %s, %s, %s" % (vr(d, 16), vr(x, 4), vr(y, 4), "0" if c is None else vr(c, 16)))

    def mfma16(d, x, y, c):
        a("v_mfma_f32_16x16x32_bf16 %s, %s, %s, %s" % (vr(d, 4), vr(x, 4), vr(y, 4), "0" if c is None else vr(c, 4)))

    def smf(d, x, y):
        a("v_smfmac_f32_32x32x32_bf16 %s, %s, %s, v3" % (vr(d, 16), vr(x, 4), vr(y, 8)))

    def bload(d, n, va, s, so, off=0, mod="", tag=None):
        op = {1: "dword", 2: "dwordx2", 4: "dwordx4"}[n]
        a("buffer_load_%s %s, %s, %s, %s offen offset:%d %s" % (op, vr(d, n), vr(va), srd(s), so, off, mod))
        vm.push(tag)

    def bstore(d, n, va, s, so, off=0, mod="", tag=None):
        op = {1: "dword", 2: "dwordx2", 4: "dwordx4"}[n]
        a("buffer_store_%s %s, %s, %s, %s offen offset:%d %s" % (op, vr(d, n), vr(va), srd(s), so, off, mod))
        vm.push(tag)

    def dma(va, s, so, off=0, tag=None):
        a("buffer_load_dwordx4 %s, %s, %s offen offset:%d lds" % (vr(va), srd(s), so, off))
        vm.push(tag)

    def dsr(op, d, n, va, off, tag=None):
        a("%s %s, %s offset:%d" % (op, vr(d, n), vr(va), off))
        lg.push(tag)

    def dsw(op, va, d, n, off, tag=None):
        a("%s %s, %s offset:%d" % (op, vr(va), vr(d, n), off))
        lg.push(tag)

    def trread(d, va, off, second, tag=None):
        dsr("ds_read_b64_tr_b16", d, 2, va, off, tag)
        dsr("ds_read_b64_tr_b16", d + 2, 2, va, off + second, tag)

    def set_flag(vt, soff):
        a("v_mov_b32 %s, %s" % (vr(vt), sr(sTAG)))
        a("s_mov_b64 exec, 1")
        bstore(vt, 1, 1, SWS, soff, 0, "sc0 sc1")
        a("s_mov_b64 exec, -1")

    stubs = []

    def check_flags(tag, vt, lanes, soff):
        a("v_cmp_ne_u32 vcc, %s, %s" % (sr(sTAG), vr(vt)))
        a("s_cbranch_vccnz L_poll_" + tag)
        a.label("L_polled_" + tag)
        stubs.append((tag, vt, lanes, soff))

    def flag_load(vt, shift, soff, tag):
        a("v_and_b32 %s, 31, v0" % vr(vt))
        a("v_lshlrev_b32 %s, %d, %s" % (vr(vt), shift, vr(vt)))
        bload(vt, 1, vt, SWS, soff, 0, "sc0 sc1", tag)

    sizes = {SX: 2048 * 1024, SWQ: 512 * 3072, SWS: WS_END, SW1: 512 * 2752, SB1: 2752,
             SWO: 512 * 1024, SW2: 1376 * 1024, SB2: 1024, SOUT: 2048 * 1024}
    RAW = 128

    def xloads():
        for j in range(8):
            bload(RAW + j * 4, 4, 14, SX, "s101", j * 128, "", ("x", j))

    stamp(0)
    a("""
    s_load_dwordx2 s[24:25], s[0:1], 0
    s_getpc_b64 s[72:73]
    L_pc:
    s_cmpk_ge_u32 s2, 256
    s_cbranch_scc1 L_end
    s_lshr_b32 s74, s2, 3
    s_lshl_b32 s74, s74, 11
    v_lshrrev_b32 v8, 5, v0
    v_lshl_add_u32 v8, v8, 7, s74
    v_min_u32 v8, L_code_end-L_pc, v8
    v_mov_b32 v9, 0
    v_lshl_add_u64 v[8:9], v[8:9], 0, s[72:73]
    global_load_dword v7, v[8:9], off
    s_lshl_b32 s72, s2, 4
    s_and_b32 s72, s72, 0x180
    v_add_u32 v4, s72, v0
    v_bfe_u32 v4, v4, 3, 6
    v_and_b32 v5, 7, v0
    v_lshlrev_b32 v14, 10, v4
    v_lshl_add_u32 v14, v5, 4, v14
    s_lshr_b32 s67, s2, 5
    s_and_b32 s73, s2, 6
    s_lshl2_add_u32 s62, s73, s67
    s_lshl_b32 s101, s62, 16
    s_mov_b32 s26, %d
    s_mov_b32 s27, 0x20000
    v_bfe_u32 v24, v4, 1, 3
    v_xor_b32 v24, v24, v5
    v_lshlrev_b32 v15, 7, v4
    v_lshl_add_u32 v15, v24, 4, v15
    v_readfirstlane_b32 s60, v0
    v_and_b32 v0, 63, v0
    v_mov_b32 v24, 0
    v_mov_b32 v25, 0
    s_lshr_b32 s60, s60, 6
    s_cmp_ge_u32 s60, 4
    s_waitcnt lgkmcnt(0)
    """ % sizes[SX])
    vm.push("pf")
    if cfg.bst == 3:
        stamp(1, True)
    xloads()
    if cfg.bst == 3:
        stamp(2, True)
    if cfg.stamps:
        for i in range(3 if cfg.bst == 3 else 1, 16):
            a("s_mov_b32 %s, s4" % sr(sSTAMP + i))
    a("s_mov_b32 s63, 1")
    a("s_cbranch_scc1 L_ln")
    a("s_mov_b32 s63, 0")

    def setup1():
        for s, off in ((SWQ, 8), (SWS, 80), (SW1, 32), (SB1, 40), (SWO, 16), (SW2, 48), (SB2, 56), (SOUT, 64)):
            a("s_load_dwordx2 %s, s[0:1], %d" % (sr(s, 2), off))
        a("""
        s_mov_b32 s30, %d
        s_mov_b32 s31, 0x20000
        s_bfe_u32 s72, s2, 0x20003
        s_and_b32 s73, s2, 1
        s_lshl2_add_u32 s61, s73, s72
        s_and_b32 s74, s60, 3
        s_lshl_b32 s72, s61, 7
        s_mul_i32 s85, s74, %d
        s_add_u32 s85, s85, s72
        s_mul_i32 s87, s74, 6144
        s_add_u32 s87, s87, %d
        v_lshrrev_b32 v4, 3, v0
        v_bfe_u32 v6, v4, 1, 1
        v_lshlrev_b32 v6, 2, v6
        v_xor_b32 v6, v6, v5
        v_lshlrev_b32 v6, 4, v6
        v_mul_u32_u24 v13, 3072, v4
        v_add_u32 v13, v13, v6
        s_waitcnt lgkmcnt(0)
        """ % (sizes[SWQ], 16 * 3072, L_RING))

    def setup2():
        a("s_load_dword %s, %s, 0" % (sr(sTAG), sr(SWS, 2)))
        for s in (SW1, SWS, SB1, SWO, SW2, SB2, SOUT):
            a("s_mov_b32 %s, %d" % (sr(s + 2), sizes[s]))
            a("s_mov_b32 %s, 0x20000" % sr(s + 3))
        a("""
        s_and_b32 s73, s60, 3
        s_lshl2_add_u32 s100, s2, s73
        s_mul_i32 s100, s100, 1536
        v_min_u32 v31, 11, v0
        v_lshlrev_b32 v31, 7, v31
        s_bfe_u32 s72, s2, 0x20003
        s_and_b32 s73, s2, 7
        s_lshl2_add_u32 s66, s73, s72
        s_and_b32 s72, s72, 1
        s_lshl1_add_u32 s64, s73, s72
        s_lshr_b32 s65, s2, 4
        s_mul_i32 s69, s61, 43
        s_lshr_b32 s69, s69, 3
        s_mov_b32 s70, 0xffff
        s_mov_b32 s71, 0xffff
        v_lshlrev_b32 v1, 4, v0
        v_and_b32 v2, 15, v0
        v_lshrrev_b32 v3, 5, v0
        v_lshl_add_u32 v2, v3, 4, v2
        v_lshlrev_b32 v2, 4, v2
        """)

    def setup3():
        a("; attention offsets: s82 = next K/V tile, s83 = head base, s92-s95 = Q tiles, s96-s99 = O partial slots")
        a("""
        s_and_b32 s74, s60, 1
        s_lshr_b32 s75, s60, 1
        s_lshl1_add_u32 s72, s64, s74
        s_lshl_b32 s83, s72, 17
        s_add_u32 s83, s83, %d
        s_and_b32 s73, s75, 1
        s_lshl_b32 s73, s73, 16
        s_add_u32 s82, s83, s73
        s_lshl_b32 s72, s65, 6
        s_add_u32 s72, s72, s64
        s_lshl1_add_u32 s72, s72, s74
        s_lshl_b32 s72, s72, 10
        s_add_u32 s72, s72, %d
        s_mul_i32 s84, s74, %d
        s_add_u32 s84, s84, %d
        """ % (WS_KV, WS_QO, 12 * 2304, L_OPART))
        for t in range(4):
            a("s_xor_b32 s73, s75, %d" % (t ^ 3))
            a("s_mul_i32 %s, s73, %d" % (sr(96 + t), 3 * 2304))
            a("s_lshl_b32 s73, s73, 15")
            a("s_add_u32 %s, s72, s73" % sr(92 + t))
            a("s_add_u32 %s, %s, s84" % (sr(96 + t), sr(96 + t)))

    setup1()
    setup2()
    setup3()
    a("""
    s_add_u32 s82, s82, %d
    v_and_b32 v8, 0x33, v0
    v_and_b32 v9, 4, v0
    v_lshl_or_b32 v8, v9, 1, v8
    v_and_b32 v9, 8, v0
    v_lshrrev_b32 v9, 1, v9
    v_or_b32 v8, v8, v9
    v_lshlrev_b32 v11, 4, v8
    v_bfe_u32 v9, v0, 4, 1
    v_mul_u32_u24 v12, 0x1fe00, v9
    v_add_u32 v12, v12, v2
    v_mul_u32_u24 v14, 0x1fa00, v9
    v_add_u32 v14, v14, v2
    v_lshl_add_u32 v4, v4, 10, v6
    v_bfe_u32 v10, v0, 2, 2
    v_lshlrev_b32 v5, 5, v9
    v_lshl_add_u32 v5, v10, 7, v5
    v_and_b32 v9, 3, v0
    v_lshl_add_u32 v5, v9, 3, v5
    v_lshrrev_b32 v10, 1, v10
    v_lshl_add_u32 v8, v3, 10, v5
    v_xor_b32 v9, s75, v10
    v_lshl_add_u32 v8, v9, 6, v8
    v_add_u32 v8, %d, v8
    v_add_u32 v9, %d, v8
    v_lshl_add_u32 v5, v3, 9, v5
    v_lshl_add_u32 v5, v10, 6, v5
    v_lshrrev_b32 v10, 1, v0
    v_xor_b32 v10, v10, v0
    v_and_b32 v10, 1, v10
    v_mul_u32_u24 v10, 24, v10
    v_xor_b32 v5, v5, v10
    s_mul_i32 s84, s60, %d
    s_add_u32 s84, s84, %d
    v_add_u32 v5, s84, v5
    v_xor_b32 v6, 64, v5
    v_and_b32 v10, 31, v0
    s_lshl_b32 s72, s74, 12
    v_bfe_u32 v16, v10, 1, 3
    v_xor_b32 v16, v16, v3
    v_lshlrev_b32 v16, 4, v16
    v_lshl_add_u32 v16, v10, 7, v16
    v_add_u32 v16, s72, v16
    v_xor_b32 v17, 32, v16
    v_xor_b32 v18, 64, v16
    v_xor_b32 v19, 0x60, v16
    v_lshlrev_b32 v10, 1, v10
    v_lshl_add_u32 v10, v3, 20, v10
    """ % (nB * 2048, L_RING, 2 * 24576, W2_REGION, L_W2))
    for seg in range(3):
        for q in range(1, 4):
            a("v_mov_b32 %s, 0" % vr(112 + 4 * seg + q))
    for q in range(4):
        a("v_mov_b32 %s, 0x3f803f80" % vr(124 + q))
    a("v_mov_b32 v3, 0xdddddddd")
    a("""
    s_lshl1_add_u32 s72, s62, s74
    s_lshl1_add_u32 s73, s61, s75
    s_lshl_b32 s76, s73, 7
    s_add_u32 s76, s76, s72
    s_lshl_b32 s77, s76, 11
    s_lshl4_add_u32 s76, s72, s73
    s_lshl_b32 s76, s76, 11
    s_add_u32 s76, s76, %d
    s_add_u32 s77, s77, %d
    s_add_u32 s81, s69, s75
    s_lshl_b32 s78, s81, 7
    s_add_u32 s78, s78, s72
    s_lshl_b32 s78, s78, 10
    s_add_u32 s78, s78, %d
    s_lshl_b32 s79, s61, 6
    s_add_u32 s79, s79, s62
    s_lshl_b32 s79, s79, 4
    s_add_u32 s79, s79, %d
    s_lshl_b32 s80, s62, 3
    s_add_u32 s80, s80, s61
    s_lshl2_add_u32 s80, s80, s60
    s_lshl_b32 s80, s80, FSH
    s_add_u32 s80, s80, %d
    s_mul_i32 s72, s61, 43
    s_add_u32 s72, s72, 43
    s_lshr_b32 s72, s72, 3
    s_add_u32 s73, s81, 4
    s_add_u32 s88, s78, %d
    s_cmp_lt_u32 s73, s72
    s_cselect_b32 s88, s88, 0x40000000
    s_lshl_b32 s81, s81, 6
    """ % (WS_QO, WS_KV, WS_HF, WS_FLAGQ, WS_FLAGH, 8 * 65536))

    def slot_of(c):
        if not cfg.xslot or c < cfg.xslot:
            return (c & 3) * 24576
        return -L_RING if c == cfg.xslot else ((c - 1) & 3) * 24576

    skip_bar = (10,) if cfg.xslot else ()

    def issue_chunk(c):
        for m in range(6):
            blk, seg = divmod(m, 3)
            a("s_add_u32 m0, s87, %d" % (slot_of(c) + seg * 2048 + blk * 1024))
            if c < 8:
                a("s_add_u32 s72, s85, %d" % ((c * 64 + blk * 8) * 3072 + seg * 1024))
                dma(13, SWQ, "s72", 0, ("w", c))
            else:
                a("s_add_u32 s72, s80, %d" % (((c - 8) * 64 + blk * 8) * 2752 + seg * 128))
                dma(57 if seg == 2 else 56, SW1, "s72", 0, ("w", c))

    def layernorm(acts):
        def act(p):
            if acts.get(p):
                assert p >= 7
                a("s_cmp_eq_u32 s63, 1")
                a("s_cbranch_scc1 L_ln_%d" % p)
                for f in acts[p]:
                    f()
                a.label("L_ln_%d" % p)
        a.label("L_ln")
        a("v_mov_b32 v30, 0x3f803f80")
        a("s_mov_b32 s89, 0xffff0000")
        for j in range(8):
            if cfg.bst == 3 and j == 0:
                stamp(3, True)
            vm.wait(("x", j))
            if cfg.bst == 3 and j in (0, 3, 7):
                stamp({0: 4, 3: 5, 7: 6}[j], True)
            act(j)
            for q in range(4):
                x = RAW + j * 4 + q
                a("v_dot2c_f32_bf16 v24, v30, %s" % vr(x))
                a("v_dot2c_f32_bf16 v25, %s, %s" % (vr(x), vr(x)))
        act(8)
        stamp(1)
        for ctl in ("quad_perm:[1,0,3,2]", "quad_perm:[2,3,0,1]", "row_half_mirror"):
            for r in (24, 25):
                a("v_add_f32_dpp %s, %s, %s %s row_mask:0xf bank_mask:0xf" % (vr(r), vr(r), vr(r), ctl))
        a("""
        v_mul_f32 v24, 0x3b000000, v24
        v_mul_f32 v25, 0x3b000000, v25
        v_fma_f32 v25, -v24, v24, v25
        v_max_f32 v25, 0, v25
        v_cvt_pk_bf16_f32 v24, v24, v25
        v_and_b32 v25, s89, v24
        v_add_f32 v25, 0x3727c5ac, v25
        v_cvt_pk_bf16_f32 v25, v25, v25
        v_and_b32 v25, s89, v25
        v_sqrt_f32 v25, v25
        v_lshlrev_b32 v24, 16, v24
        v_cvt_pk_bf16_f32 v25, v25, v25
        v_and_b32 v25, s89, v25
        v_rcp_f32 v26, v25
        v_mul_f32_e64 v28, -v24, v26
        """)
        for j in range(8):
            x = RAW + j * 4
            t = 192 + (j & 1) * 8
            for q in range(4):
                a("v_lshlrev_b32 %s, 16, %s" % (vr(t + 2 * q), vr(x + q)))
                a("v_and_b32 %s, s89, %s" % (vr(t + 2 * q + 1), vr(x + q)))
            for q in range(4):
                a("v_pk_fma_f32 %s, %s, v[26:27], v[28:29] op_sel_hi:[1,0,0]" % (vr(t + 2 * q, 2), vr(t + 2 * q, 2)))
            for q in range(4):
                a("v_cvt_pk_bf16_f32 %s, %s, %s" % (vr(x + q), vr(t + 2 * q), vr(t + 2 * q + 1)))
            if not cfg.defer:
                a("ds_write_b128 v15, %s offset:%d" % (vr(x, 4), j * 8192))
        if cfg.bst == 3:
            stamp(7, True)
        act(9)
        if cfg.defer:
            for j in range(8):
                a("ds_write_b128 v15, %s offset:%d" % (vr(RAW + j * 4, 4), j * 8192))
        act(10)
        stamp(2)
        if cfg.bst == 3:
            stamp(8, True)

    def pfq():
        a("; memory-side prefetch of Wqkv")
        bload(7, 1, 31, SWQ, "s100", 0, "", "pf")

    def pfc(which):
        a("; lines at offset 384 of every KiB stream slowly on a miss: the die's workgroups pull them into L2 together")
        a("s_lshr_b32 s72, s2, 3")
        a("s_lshl2_add_u32 s72, s72, s60")
        a("s_mul_i32 s72, s72, 12288")
        a("v_lshlrev_b32 v20, 3, v31")
        if which == SWQ:
            a("s_bitcmp1_b32 s2, 0")
            a("s_cselect_b32 s72, 0x40000000, s72")
        bload(7, 1, 20, which, "s72", 384, "", "pf")

    def pf1():
        a("; memory-side prefetch of W1")
        bload(7 if cfg.pf1_at <= 10 else 32, 1, 31, SW1, "s100", 0, "", "pf")

    acts = {}
    if cfg.pfc_at == 0:
        save = list(vm.items)
        pfc(SWQ)
        vm.items = save
    elif cfg.pfc_at <= 10:
        acts.setdefault(cfg.pfc_at, []).append(lambda: pfc(SWQ))
    if cfg.pfq_at == 0:
        save = list(vm.items)
        pfq()
        vm.items = save
    elif cfg.pfq_at <= 10:
        acts.setdefault(cfg.pfq_at, []).append(pfq)
    for c, p in enumerate((cfg.w0_at, cfg.w1_at, cfg.w2_at, 10)[:cfg.lead + 1]):
        acts.setdefault(p, []).append(lambda c=c: issue_chunk(c))
    if cfg.pf1_at <= 10:
        acts.setdefault(cfg.pf1_at, []).append(pf1)
    if cfg.pfc1:
        acts.setdefault(10, []).append(lambda: pfc(SW1))
    layernorm(acts)
    a("s_cmp_eq_u32 s63, 1")
    a("s_cbranch_scc1 L_loader")

    QR, SB, WF, FA, OA, KV, HB = 8, 24, 56, 64, 128, 192, 228
    NKV = 3

    def att_init_ops():
        ops = ["v_mov_b32 %s, 0" % vr(OA + 16 * t + i) for t in range(4) for i in range(9)]
        ops2 = ["v_and_b32 v7, 27, v0", "v_cmp_eq_u32 vcc, 16, v7", "v_mov_b32 v7, 0x3f803f80", "v_cndmask_b32 v7, 0, v7, vcc"]
        ops2 += ["v_mov_b32 %s, v7" % vr(KV + 12 * b + 4 + q) for b in range(NKV) for q in range(8)]
        return ops, ops2

    def kvload(j):
        b = j % NKV
        bload(KV + 12 * b, 4, 252, SWS, "s82", 0, "sc1", ("kv", j))
        a("s_mov_b64 exec, %s" % sr(sVM, 2))
        bload(KV + 12 * b + 4, 4, 253, SWS, "s82", 0, "sc1", ("kv", j))
        bload(KV + 12 * b + 8, 4, 254, SWS, "s82", 0, "sc1", ("kv", j))
        a("s_mov_b64 exec, -1")
        a("s_add_u32 s82, s82, 2048")

    def att_loads(role):
        a("s_and_b32 s72, s60, 1")
        a("s_lshl_b32 s73, s72, 10")
        a("v_add_u32 v252, s73, v1")
        a("s_lshr_b32 s73, 0x400, s72")
        a("v_add_u32 v253, s73, v2")
        a("s_mul_i32 s73, s72, 0x600")
        a("s_sub_u32 s73, 0x600, s73")
        a("v_add_u32 v254, s73, v2")
        bload(QR, 4, 1, SWS, "s92", 0, "sc1", "q")
        kvload(0)
        for t in range(1, 4):
            bload(QR + 4 * t, 4, 1, SWS, sr(92 + t), 0, "sc1", "q")
        kvload(1)
        if cfg.kv3 and role == "a":
            kvload(2)

    def dump_addr():
        a("v_lshlrev_b32 v8, 2, v0")
        a("v_add_u32 v9, s99, v1")
        a("v_add_u32 v10, s99, v8")
        a("v_bfe_u32 v11, v0, 4, 1")
        a("v_lshl_add_u32 v11, v11, 10, v2")

    def dump(t):
        a("v_add_u32 v12, %s, v1" % sr(96 + t))
        a("v_add_u32 v13, %s, v8" % sr(96 + t))
        dsw("ds_write_b128", 12, OA + 16 * t, 4, t * 2304)
        dsw("ds_write_b128", 12, OA + 16 * t + 4, 4, t * 2304 + 1024)
        dsw("ds_write_b32", 13, OA + 16 * t + 8, 1, t * 2304 + 2048)

    deferred = []
    cfg_gap = {0: range(16), 1: (1, 10), 2: (0, 9), 3: (4, 10), 4: (1,), 5: (4,), 6: (15, 9)}[cfg.gap]

    def att_run(n, hooks):
        hooks.setdefault((n - 1, 0, 11), []).append(dump_addr)
        for t in range(3):
            hooks.setdefault((n - 1, t + 1, 12), []).append(lambda t=t: dump(t))
        vm.wait("q", ("kv", 0))
        mfma32(SB, KV, QR, None)
        for j in range(n):
            b = j % NKV
            for t in range(4):
                cur, oth = SB + 16 * (t & 1), SB + 16 * ((t + 1) & 1)
                for i in range(16):
                    a("v_exp_f32 %s, %s" % (vr(cur + i), vr(cur + i)))
                    if i in cfg_gap:
                        while deferred:
                            deferred.pop(0)()
                    if t == cfg.kvt and i == cfg.kvi and j + NKV - 1 < n and not (cfg.abl & 32 and j > 0) and not (cfg.kv3 and j == 0):
                        kvload(j + NKV - 1)
                    if i == 1 and (j, t) != (0, 0):
                        smf(OA + 16 * ((t + 3) & 3), KV + 12 * (b if t else (j - 1) % NKV) + 8, oth + 8)
                    if i == 4:
                        if t < 3:
                            mfma32(oth, KV + 12 * b, QR + 4 * (t + 1), None)
                        elif j + 1 < n:
                            vm.wait(("kv", j + 1))
                            mfma32(oth, KV + 12 * ((j + 1) % NKV), QR, None)
                    if i == 10:
                        smf(OA + 16 * t, KV + 12 * b + 4, cur)
                    for h in hooks.get((j, t, i), ()):
                        h()
        smf(OA + 48, KV + 12 * ((n - 1) % NKV) + 8, SB + 16 + 8)

    ACC = (24, 40, 56)
    WB, NBUF, LA = 72, 6, cfg.look
    XF, PK, XA = 128, 96, 16
    init1, init2 = att_init_ops()

    def item(g):
        return divmod(g % 96, 3)

    def reads(g):
        ks, sel = item(g)
        c, m = divmod(g, 12)
        so = slot_of(c)
        base, so = (XA, 0) if so < 0 else (8 + so // 49152, so % 49152)
        if g < 96 and sel == 0:
            dsr("ds_read_b128", XF + 4 * ks, 4, XA + (ks & 3), (ks >> 2) * 8192, g)
        trread(WB + 4 * (g % NBUF), base, so + m * 2048, 512, g)

    def pack(acc, pk):
        return ["v_cvt_pk_bf16_f32 %s, %s, %s" % (vr(pk + q), vr(acc + 2 * q), vr(acc + 2 * q + 1)) for q in range(8)]

    def st2(pk, va, base, delta, tag, imm=(0, 0), vb=None):
        def first():
            bstore(pk, 4, va, SWS, base, imm[0], "" if cfg.abl & 64 else "sc1", tag)

        def second():
            if delta:
                a("s_add_u32 s72, %s, %d" % (base, delta))
            bstore(pk + 4, 4, vb or va, SWS, "s72" if delta else base, imm[1], "" if cfg.abl & 64 else "sc1", tag)
        return [first, second]

    def relu2(acc):
        return (["v_max_f32 %s, 0, %s" % (vr(acc + i), vr(acc + i)) for i in range(16)]
                + ["v_mul_f32 %s, %s, %s" % (vr(acc + i), vr(acc + i), vr(acc + i)) for i in range(16)])

    def bias(seg):
        return lambda: (vm.wait("b1"), mfma32(ACC[seg], 112 + 4 * seg, 124, None))

    tagq = ["v_or_b32 %s, 1, %s" % (vr(PK + 4 * q), vr(PK + 4 * q)) for q in range(2)]
    qkv_epi = (["v_mul_f32 %s, 0x%x, %s" % (vr(ACC[0] + i), QSCALE, vr(ACC[0] + i)) for i in range(16)]
               + pack(ACC[0], PK) + tagq + [bias(0)] + st2(PK, 1, "s76", 0, "st", (0, 1024))
               + pack(ACC[1], PK + 8) + [bias(1)] + st2(PK + 8, 11, "s77", 0x20400, "st")
               + pack(ACC[2], PK) + [bias(2)] + st2(PK, 12, "s77", 0, "st", (1024, 1536), 14))
    sched = {100: ["v_subrev_u32 %s, %d, v8" % (vr(XA), L_RING)], 144: init1, 180: init2}
    shadow = []

    def run_shadow(budget):
        while shadow and budget > 0:
            op = shadow.pop(0)
            if isinstance(op, str):
                a(op)
                budget -= 1
            else:
                op()
                budget -= 3

    a("""
    s_lshl_b32 s85, s60, 14
    s_lshl_b32 s72, s67, 7
    s_add_u32 s85, s85, s72
    s_lshl_b32 s86, s60, 6
    s_lshl1_add_u32 s86, s66, s86
    s_lshl_b32 s86, s86, 10
    s_add_u32 s86, s86, %d
    s_lshl_b32 s87, s66, FROW
    s_add_u32 s87, s87, %d
    """ % (WS_HF, WS_FLAGH))
    vm.wait(("w", 0))
    a("s_waitcnt lgkmcnt(0)")
    a("s_add_u32 %s, %s, 0x%x" % (sr(sTAG), sr(sTAG), EPOCH_INC))
    if cfg.bst == 3:
        stamp(9, True)
    a("s_barrier")
    stamp(3)
    if cfg.bst == 3:
        stamp(10, True)
    for g in range(LA):
        reads(g)
    for g in range(192):
        ks, sel = item(g)
        if g == 96:
            stamp(4)
            shadow.extend(qkv_epi)
            run_shadow(1000)
            stamp(5)
        lg.wait(g)
        x, w = XF + 4 * ks, WB + 4 * (g % NBUF)
        c = None if (g < 96 and ks == 0) else ACC[sel]
        if g < 96 and sel == 2:
            mfma32(ACC[sel], x, w, c)
        else:
            mfma32(ACC[sel], w, x, c)
        n = g + LA
        if n < 192:
            if n % 12 == 0 and n // 12 not in skip_bar:
                vm.wait(("w", n // 12))
                if n // 12 == cfg.flag_chunk:
                    vm.wait("st")
                a("s_barrier")
                if n // 12 == cfg.flag_chunk:
                    a("s_cmp_lg_u32 s60, 0")
                    a("s_cselect_b32 s79, 0x40000000, s79")
                    set_flag(7, "s79")
                    stamp(6)
            reads(n)
        if g == 40:
            for seg in range(3):
                a("buffer_load_ushort %s, v10, %s, s81 offen offset:%d" % (vr(112 + 4 * seg), srd(SB1), seg * 128))
                vm.push("b1")
        shadow.extend(sched.get(g, ()))
        run_shadow(3)
    run_shadow(1000)
    stamp(7)
    hmath, hst = [], []
    for seg in range(3):
        pk = PK + 8 * seg
        hmath.append(relu2(ACC[seg]) + pack(ACC[seg], pk))
        hst.append((["s_add_u32 s78, s78, 0x40000"] if seg == 1 else []) + st2(pk, 1, "s78" if seg < 2 else "s88", 0x10000, "hst"))
    for seg in range(cfg.hbar):
        shadow.extend(hmath[seg])
    run_shadow(1000)
    a("s_barrier")
    stamp(8)
    if cfg.bst == 4:
        stamp(1, True)
    a("s_setprio 2")
    for seg in range(cfg.hbar, cfg.hpre):
        shadow.extend(hmath[seg])
    run_shadow(1000)
    att_loads("a")
    hlist = [[hst[0][0]], [hst[0][1]], hst[1][:2], [hst[1][2]], [hst[2][0]], [hst[2][1]]]
    for seg in range(3):
        shadow.extend(hmath[seg] if seg >= max(cfg.hpre, cfg.hbar) else [])
        for n in (2 * seg, 2 * seg + 1):
            if n < cfg.hnow:
                shadow.extend(hlist[n])
    run_shadow(1000)
    stamp(9)


    def w2dma(i):
        if cfg.abl & 1:
            return
        a("s_add_u32 m0, s84, %d" % ((i & 3) * 2048))
        a("s_add_u32 s72, s85, %d" % (i * 65536))
        dma(4, SW2, "s72", 0, ("w2", i))
        a("s_add_u32 s72, s72, 7168")
        dma(4, SW2, "s72", 1024, ("w2", i))

    hreg = lambda i, tt: HB + 8 * (i % 3) + 4 * tt

    def hload(i):
        if cfg.abl & 1:
            return
        if i > 0:
            a("s_add_u32 s86, s86, 0x40000")
        for tt in range(2):
            bload(hreg(i, tt), 4, 1, SWS, "s86", tt * 1024, "sc1", ("h", i))

    def w2read(i, nt):
        if cfg.abl & 2:
            return
        vm.wait(("w2", i))
        trread(WF + 4 * nt, 5 + nt, (i & 3) * 2048, 1024, ("wf", i, nt))

    def fslot(f):
        i, m = divmod(f, 4)
        nt, tt = ((0, 0), (0, 1), (1, 1), (1, 0))[m]
        vm.wait(("h", i))
        lg.wait(("wf", i, nt))
        d = FA + 16 * (2 * tt + nt)
        if not cfg.abl & 4:
            mfma32(d, WF + 4 * nt, hreg(i, tt), None if i == 0 else d)
        if m == 1 and i + 1 < NS:
            deferred.append(lambda: w2read(i + 1, 0))
        if m == cfg.dmam and i + 4 < NS:
            deferred.append(lambda: w2dma(i + 4))
        if m == 3:
            if i + 1 < NS:
                deferred.append(lambda: w2read(i + 1, 1))
            if i + 3 < NS:
                deferred.append(lambda: hload(i + 3))

    def park(tt, nt):
        d = FA + 16 * (2 * tt + nt)
        for q in range(8):
            a("v_cvt_pk_bf16_f32 %s, %s, %s" % (vr(d + q), vr(d + 2 * q), vr(d + 2 * q + 1)))
        for q in range(2):
            dsw("ds_write_b128", 4, d + 4 * q, 4, tt * 32 * PART_STRIDE + nt * 64 + q * 32)

    def park_addr():
        a("v_and_b32 v4, 31, v0")
        a("v_mul_u32_u24 v4, %d, v4" % PART_STRIDE)
        a("v_lshrrev_b32 v5, 5, v0")
        a("v_lshl_add_u32 v4, v5, 4, v4")
        a("v_add_u32 v4, s84, v4")

    hooks = {}

    def hook(j, t, i, f):
        hooks.setdefault((j, t, i), []).append(f)

    n1 = cfg.n1
    for n in range(cfg.hnow, 6):
        tl = (n - cfg.hnow) * cfg.hgap + cfg.hoff
        hook(tl >> 2, tl & 3, 9, lambda n=n: (shadow.extend(hlist[n]), run_shadow(1000)))
    assert (5 - cfg.hnow) * cfg.hgap + cfg.hoff <= cfg.hflag < 4 * (n1 - 2)
    hook(cfg.hflag >> 2, cfg.hflag & 3, 12, lambda: (vm.wait("hst"), set_flag(7, "s80"), stamp(1) if cfg.hst else None))
    hook(n1 - 2, 0, 8, lambda: flag_load(7, cfg.fsh, "s87", "hf"))
    hook(n1 - 2, 3, 12, lambda: (vm.wait("hf"), stamp(2) if cfg.hst else None, check_flags("h", 7, cfg.fsh, "s87"), stamp(3) if cfg.hst else None))
    for i in range(4):
        hook(n1 - 3 + (i >> 1), 1 + (i & 1), 7, lambda i=i: w2dma(i))
    for i in range(3):
        hook(n1 - 1, i, 7, lambda i=i: hload(i))
    hook(n1 - 1, 3, 7, lambda: (w2read(0, 0), w2read(0, 1)))
    pat = [int(ch) for ch in str(cfg.fpat)]
    slots = [(j, t, pos) for j in range(n1, nA) for t in range(4) for pos in ((13,), (7, 13))[pat[t] - 1]]
    for f in range(4 * NS):
        hook(*slots[f], lambda f=f: fslot(f))
    tl = slots[4 * NS - 1][0] * 4 + slots[4 * NS - 1][1] + 1
    assert tl + 3 < 4 * nA
    hook(tl >> 2, tl & 3, 6, park_addr)
    for n, (nt, tt) in enumerate(((0, 0), (0, 1), (1, 1), (1, 0))):
        hook((tl + n) >> 2, (tl + n) & 3, 7, lambda tt=tt, nt=nt: park(tt, nt))
    if cfg.hst:
        for n in range(4):
            hook(n1 + 4 * n, 0, 1, lambda n=n: stamp(4 + n))
    if cfg.alow:
        tl = 4 * nA - cfg.alow
        hook(tl >> 2, tl & 3, 0, lambda: a("s_setprio 0"))
    if cfg.bst == 4:
        for n, j in enumerate(range(0, nA, 2)):
            hook(j, 0, 0, lambda n=n: stamp(2 + n, True))
    att_run(nA, hooks)
    vm.drain()
    a("s_branch L_att_done")

    a.label("L_loader")
    vm.items = []
    lg.items = []

    def b_setup():
        a("; waves 4-7: W1 DMA offsets v56/v57 (sixth tile out of range where the next group owns it), wo DMA offset v4, flagQ row s79")
        a("""
        v_mul_u32_u24 v56, 2752, v4
        v_add_u32 v56, v56, v6
        s_lshr_b32 s72, 0x5b, s61
        s_and_b32 s72, s72, 1
        s_lshl_b32 s72, s72, 23
        v_and_b32 v57, 64, v6
        v_mad_u32_u24 v57, v57, s72, v56
        v_bfe_u32 v6, v4, 1, 2
        v_lshlrev_b32 v6, 1, v6
        v_xor_b32 v6, v6, v5
        v_lshlrev_b32 v6, 4, v6
        v_lshl_add_u32 v4, v4, 10, v6
        v_min_u32 v5, %d, v0
        v_lshlrev_b32 v5, 7, v5
        s_lshr_b32 s79, s64, 1
        s_lshl_b32 s79, s79, 10
        s_add_u32 s79, s79, %d
        s_and_b32 s73, s60, 3
        s_lshl_b32 s72, s69, 6
        s_mul_i32 s80, s73, %d
        s_add_u32 s80, s80, s72
        """ % (cfg.pfn - 1, WS_FLAGQ, 16 * 2752))

        a("v_mov_b32 v3, 0xdddddddd")

    issued = cfg.lead
    setup1()
    state = {"issued": issued}

    def b_step(c):
        if c in skip_bar:
            return
        vm.wait(("w", c + 1 if c + 1 in skip_bar else c))
        if cfg.bst == 2:
            stamp(c, True)
        if cfg.bst == 3 and c == 0:
            stamp(9, True)
        a("s_barrier")
        if cfg.bst == 1:
            stamp(c, True)
        if c in (0, 8, 12, 15):
            stamp({0: 3, 8: 4, 12: 5, 15: 6}[c])
        if c == cfg.bload - 1:
            flag_load(7, 4, "s79", "qf")
        if c == cfg.bload:
            vm.wait("qf")
            check_flags("q", 7, 4, "s79")
            stamp(7)
            att_loads("b")
        lim = c + 2
        if cfg.xslot == 12 and c == 9:
            lim = 12
        if cfg.xslot == 11 and c in (8, 9):
            lim = c + 3
        if cfg.xslot and c >= 11:
            lim = c + cfg.xrun
        while state["issued"] < min(15, max(3, lim)):
            state["issued"] += 1
            issue_chunk(state["issued"])
        if c == 1:
            setup2()
        if cfg.pf1_at == 12 + c:
            assert c >= 1
            pf1()
        if c == 2:
            setup3()
        if c == 3:
            b_setup()
        if c == cfg.pfe:
            a("; memory-side prefetch of w2 and wo")
            bload(32, 1, 31, SW2, "s100", 0, "", "pf")
            bload(32, 1, 31, SWO, "s100", 0, "", "pf")
        if c == 4:
            for op in init1:
                a(op)
        if c == 5:
            for op in init2:
                a(op)
        if c == 7:
            a("s_waitcnt lgkmcnt(0)")
            a("s_add_u32 %s, %s, 0x%x" % (sr(sTAG), sr(sTAG), EPOCH_INC))

    def b_att():
        a("s_barrier")
        stamp(8)
        a("s_setprio 1")
        if cfg.kv3:
            kvload(2)

    bhooks = {}
    for c in range(17):
        f = (lambda c=c: b_step(c)) if c < 16 else b_att
        if c <= cfg.bjoin:
            f()
        else:
            tl = (c - cfg.bjoin) * cfg.btile - 1
            bhooks[(tl >> 2, tl & 3, 13)] = [f]

    def wo_dma(lo, hi):
        if cfg.abl & 8:
            return
        if lo == 0:
            a("; wo tile -> LDS [0, 64K), a few rows per score tile")
            a("s_and_b32 s78, s60, 3")
            a("s_lshl_b32 s76, s78, 17")
            a("s_lshl_b32 s73, s67, 7")
            a("s_add_u32 s76, s76, s73")
            a("s_lshl_b32 s78, s78, 14")
        for i in range(lo, hi):
            a("s_add_u32 m0, s78, %d" % (i * 1024))
            a("s_add_u32 s73, s76, %d" % (i * 8192))
            dma(4, SWO, "s73", 0, "wo")

    nl = cfg.pfn
    batches = [(SW2, i) for i in range(-(-11 // nl))] + [(SWO, i) for i in range(-(-4 // nl))]

    def pf_late(n):
        if cfg.abl & 16:
            return
        if n == 0:
            a("; memory-side prefetch of w2 (in k order) and wo, a few lines per wave at a time")
            a("s_and_b32 s90, s60, 3")
            a("s_lshl2_add_u32 s90, s2, s90")
            a("s_mul_i32 s90, s90, %d" % (nl * 128))
        a("s_add_u32 s72, s90, %d" % (batches[n][1] * nl * 131072))
        bload(7, 1, 5, batches[n][0], "s72", 0, "", "pf")

    for n in range(len(batches) if cfg.pfe > 90 else 0):
        tl = cfg.pfl + n * cfg.pfg
        bhooks[(tl >> 2, tl & 3, 7)] = [lambda n=n: pf_late(n)]
    for n, lo in enumerate(range(0, 16, cfg.won)):
        bhooks[((cfg.wol + n) >> 2, (cfg.wol + n) & 3, 8)] = [lambda lo=lo: wo_dma(lo, lo + cfg.won)]
    if cfg.bst == 4:
        for j in range(nB):
            bhooks.setdefault((j, 0, 0), []).append(lambda j=j: stamp(2 + j, True))
    att_run(nB, bhooks)
    vm.drain()

    OW = OA + 48
    WOF, OFR, AC, G, Z, X, SR = 128, 24, 8, 64, 96, 104, 112
    a.label("L_att_done")
    stamp(10)
    if cfg.bst == 4:
        stamp(14, True)
    a("s_setprio 0")
    a("s_and_b32 s73, s60, 1")
    a("s_lshl_b32 s73, s73, 9")
    a("s_sub_u32 s76, s95, s73")
    a("""
    s_and_b32 s74, s60, 3
    s_lshr_b32 s75, s60, 2
    v_lshrrev_b32 v14, 3, v0
    v_and_b32 v7, 7, v0
    v_lshlrev_b32 v7, 4, v7
    v_lshl_add_u32 v14, v14, 10, v7
    s_lshl3_add_u32 s78, s66, s60
    s_lshl_b32 s78, s78, 13
    s_lshl_b32 s79, s67, 7
    s_add_u32 s78, s78, s79
    """)
    bload(60, 4, 7, SB2, "s79", 0, "", "xb")
    bload(56, 4, 14, SX, "s78", 0, "", "xb")
    lg.drain()
    a("s_barrier")
    for src in range(3):
        d = SB + 10 * src
        dsr("ds_read_b128", d, 4, 9, src * 2304, src)
        dsr("ds_read_b128", d + 4, 4, 9, src * 2304 + 1024, src)
        dsr("ds_read_b32", d + 8, 1, 10, src * 2304 + 2048, src)
    for src in range(3):
        lg.wait(src)
        for i in range(0, 8, 2):
            a("v_pk_add_f32 %s, %s, %s" % (vr(OW + i, 2), vr(OW + i, 2), vr(SB + 10 * src + i, 2)))
        a("v_add_f32 %s, %s, %s" % (vr(OW + 8), vr(OW + 8), vr(SB + 10 * src + 8)))
    a("v_pk_mul_f32 v[12:13], %s, 0 op_sel_hi:[1,0]" % vr(OW, 2))
    for i in range(2, 8, 2):
        a("v_pk_fma_f32 v[12:13], %s, 0, v[12:13] op_sel_hi:[1,0,1]" % vr(OW + i, 2))
    a("""
    v_add_f32 v12, v12, %s
    v_add_f32 v12, v12, v13
    v_cmp_nle_f32 vcc, 0x30800000, v12
    s_mov_b64 s[72:73], vcc
    v_cmp_nge_f32 vcc, 0x5d800000, v12
    s_or_b64 s[72:73], s[72:73], vcc
    """ % vr(OW + 8))
    a("s_branch L_slow" if cfg.force_slow else "s_cbranch_scc1 L_slow")
    a.label("L_norm")
    a("v_rcp_f32 v12, %s" % vr(OW + 8))
    for i in range(0, 8, 2):
        a("v_pk_mul_f32 %s, %s, v[12:13] op_sel_hi:[1,0]" % (vr(OW + i, 2), vr(OW + i, 2)))
    for q in range(4):
        a("v_cvt_pk_bf16_f32 %s, %s, %s" % (vr(16 + q), vr(OW + 2 * q), vr(OW + 2 * q + 1)))
    a("v_and_b32 v16, -2, v16")
    bstore(16, 4, 11, SWS, "s76", 0, "sc1", "ost")
    stamp(11)
    a("v_mov_b32 v2, v14")
    a("v_lshrrev_b32 v3, 3, v0")
    a("""
    v_mul_u32_u24 v4, %d, v3
    s_mul_i32 s72, s60, %d
    s_add_u32 s72, s72, %d
    v_add3_u32 v4, v4, v7, s72
    """ % (PART_STRIDE, 8 * PART_STRIDE, L_W2))
    for j in range(4):
        dsr("ds_read_b128", G + 4 * j, 4, 4, j * W2_REGION, "g")
    a("""
    v_bfe_u32 v4, v0, 2, 2
    v_bfe_u32 v5, v0, 4, 1
    v_lshl_add_u32 v4, v5, 2, v4
    v_lshrrev_b32 v5, 1, v4
    v_lshlrev_b32 v92, 7, v4
    v_lshl_add_u32 v92, v5, 5, v92
    v_lshrrev_b32 v6, 5, v0
    v_lshl_add_u32 v92, v6, 11, v92
    v_and_b32 v4, 3, v0
    v_lshl_add_u32 v92, v4, 3, v92
    s_lshl_b32 s72, s75, 15
    v_add_u32 v92, s72, v92
    v_xor_b32 v93, 32, v92
    v_xor_b32 v94, 64, v92
    v_xor_b32 v95, 0x60, v92
    s_barrier
    """)

    def oloads(first=0):
        for ks in range(first, 8):
            bload(OFR + 4 * ks, 4, 1, SWS, ("s76", "s77", "s80", "s81")[ks >> 1], (ks & 1) * 2048, "sc1", ("o", ks))

    fill = ("""
    s_lshl2_add_u32 s72, s66, s74
    s_lshr_b32 s76, s72, 1
    s_lshl1_add_u32 s76, s76, s75
    s_lshl_b32 s76, s76, 14
    s_and_b32 s72, s72, 1
    s_lshl_b32 s72, s72, 10
    s_add_u32 s76, s76, s72
    s_add_u32 s76, s76, %d
    s_add_u32 s77, s76, 0x1000
    s_add_u32 s80, s76, 0x2000
    s_add_u32 s81, s76, 0x3000
    v_mul_u32_u24 v3, %d, v3
    v_lshl_add_u32 v3, v7, 1, v3
    s_mul_i32 s72, s60, %d
    s_add_u32 s72, s72, %d
    v_add_u32 v3, s72, v3
    v_and_b32 v5, 15, v0
    v_mul_u32_u24 v5, %d, v5
    v_and_b32 v4, 48, v0
    s_mul_i32 s72, s60, %d
    s_add_u32 s72, s72, %d
    v_add3_u32 v5, v5, v4, s72
    s_mov_b32 s82, 0x3f80
    s_mov_b32 s83, 0x3f800000
    """ % (WS_QO, SUM_STRIDE, 8 * SUM_STRIDE, L_SUM, SUM_STRIDE, 16 * SUM_STRIDE, L_SUM)).strip().split("\n")
    gate = ["v_mov_b32 %s, 0" % vr(Z + i) for i in range(8)]
    gate.append(lambda: lg.wait("g"))
    for j in range(5):
        if j == 4:
            gate.append(lambda: vm.wait("xb"))
        for q in range(4):
            src = G + 4 * j + q if j < 4 else 60 + q
            gate.append("v_dot2c_f32_bf16 %s, s82, %s" % (vr(Z + 2 * q), vr(src)))
            gate.append("v_dot2c_f32_bf16 %s, s83, %s" % (vr(Z + 2 * q + 1), vr(src)))
    for q in range(4):
        gate.append("v_lshlrev_b32 %s, 16, %s" % (vr(X + 2 * q), vr(56 + q)))
        gate.append("v_and_b32 %s, s89, %s" % (vr(X + 1 + 2 * q), vr(56 + q)))
    gate += ["v_mul_f32 %s, 0x%x, %s" % (vr(G + i), NLOG2E, vr(Z + i)) for i in range(8)]
    gate += ["v_exp_f32 %s, %s" % (vr(G + i), vr(G + i)) for i in range(8)]
    gate += ["v_add_f32 %s, 1.0, %s" % (vr(G + i), vr(G + i)) for i in range(8)]
    gate += ["v_rcp_f32 %s, %s" % (vr(G + i), vr(G + i)) for i in range(8)]
    gate += ["v_mul_f32 %s, %s, %s" % (vr(Z + i), vr(Z + i), vr(G + i)) for i in range(8)]

    def wo_reads(oat, per):
        for ks in range(8):
            for ct in range(4):
                trread(WOF + (ks * 4 + ct) * 4, 92 + ct, ks * 4096, 1024, ("wo", ks))
                run_shadow(per)
            if ks == oat:
                run_shadow(1000)
                vm.wait("ost")
                oloads()

    vm_t, lg_t = list(vm.items), list(lg.items)
    a("s_cmp_eq_u32 s63, 1")
    a("s_cbranch_scc1 L_tail_b")
    shadow.extend(fill)
    wo_reads(7, 1)
    shadow.extend(gate)
    run_shadow(1000)
    a("s_branch L_tail_j")
    a.label("L_tail_b")
    vm.items, lg.items = vm_t, lg_t
    shadow.extend(fill + gate)
    run_shadow(1000)
    wo_reads(cfg.oat, 0)
    a.label("L_tail_j")
    stamp(12)
    a("s_mov_b32 s73, 0")
    lg.drain()
    for ks in range(8):
        a.label("L_wo_%d" % ks)
        vm.wait(("o", ks))
        a("v_and_b32 v6, 1, %s" % vr(OFR + 4 * ks))
        a("v_cmp_ne_u32 vcc, 0, v6")
        a("s_cbranch_vccnz L_oretry_%d" % ks)
        a.label("L_ogo_%d" % ks)
        for ct in range(4):
            d = AC + 4 * ct
            mfma16(d, WOF + (ks * 4 + ct) * 4, OFR + 4 * ks, None if ks == 0 else d)
    stamp(13)
    for ct in range(4):
        dsw("ds_write_b128", 5, AC + 4 * ct, 4, ct * 64)
    lg.drain()
    a("s_barrier")
    stamp(14)
    dsr("ds_read_b128", SR, 4, 3, 0, 0)
    dsr("ds_read_b128", SR + 8, 4, 3, SUM_SIZE, 0)
    dsr("ds_read_b128", SR + 4, 4, 3, 16, 1)
    dsr("ds_read_b128", SR + 12, 4, 3, SUM_SIZE + 16, 1)
    for h in range(2):
        lg.wait(h)
        for i in range(4 * h, 4 * h + 4, 2):
            a("v_pk_add_f32 %s, %s, %s" % (vr(SR + i, 2), vr(SR + i, 2), vr(SR + 8 + i, 2)))
        for i in range(4 * h, 4 * h + 4, 2):
            a("v_pk_fma_f32 %s, %s, %s, %s" % (vr(SR + i, 2), vr(SR + i, 2), vr(Z + i, 2), vr(X + i, 2)))
        for q in range(2 * h, 2 * h + 2):
            a("v_cvt_pk_bf16_f32 %s, %s, %s" % (vr(G + q), vr(SR + 2 * q), vr(SR + 2 * q + 1)))
    bstore(G, 4, 2, SOUT, "s78", 0, ("", "sc1", "nt", "sc0 sc1", "sc0 sc1 nt")[cfg.omod])
    a("s_or_b32 s72, s2, s60")
    a("s_cmp_lg_u32 s72, 0")
    a("s_cbranch_scc1 L_noepoch")
    set_flag(7, "0")
    a.label("L_noepoch")
    if cfg.stamps:
        a("s_waitcnt vmcnt(0)")
        stamp(15)
        if cfg.probe is not None:
            a("s_sub_u32 s72, %s, s4" % sr(sSTAMP + cfg.probe))
            if cfg.stamps == 2:
                a("s_lshr_b32 s72, s72, 3")
            else:
                a("s_lshl_b32 s72, s72, %d" % cfg.probesh)
            a("s_cmp_lg_u32 s2, %d" % cfg.probewg)
            a("s_cselect_b32 s72, 0, s72")
            a("s_cmp_lg_u32 s60, %d" % cfg.probew)
            a("s_cselect_b32 s72, 0, s72")
            a("s_memrealtime s[22:23]")
            a("s_waitcnt lgkmcnt(0)")
            a("s_mov_b32 s73, s22")
            a.label("L_probe")
            a("s_memrealtime s[22:23]")
            a("s_waitcnt lgkmcnt(0)")
            a("s_sub_u32 s22, s22, s73")
            a("s_cmp_lt_u32 s22, s72")
            a("s_cbranch_scc1 L_probe")
        a("s_lshl3_add_u32 s72, s2, s60")
        a("s_lshl_b32 s72, s72, 6")
        a("s_add_u32 s72, s72, %d" % WS_STAMP)
        for i in range(16):
            a("v_mov_b32 %s, %s" % (vr(80 + i), sr(sSTAMP + i)))
        a("s_mov_b64 exec, 1")
        for i in range(4):
            bstore(80 + 4 * i, 4, 1, SWS, "s72", 16 * i)
    a.label("L_end")
    a("s_endpgm")

    for ks in range(8):
        a.label("L_oretry_%d" % ks)
        a("s_add_u32 s73, s73, 1")
        a("s_cmp_ge_u32 s73, %d" % SPIN_MAX)
        a("s_cbranch_scc1 L_ogo_%d" % ks)
        a("s_waitcnt vmcnt(0)")
        oloads(ks)
        a("s_branch L_wo_%d" % ks)

    for tag, vt, lanes, soff in stubs:
        a.label("L_poll_" + tag)
        a("s_mov_b32 s73, 0")
        a.label("L_poll2_" + tag)
        a("s_sleep %d" % cfg.sleep)
        flag_load(vt, lanes, soff, None)
        a("s_add_u32 s73, s73, 1")
        a("s_waitcnt vmcnt(0)")
        a("s_cmp_ge_u32 s73, %d" % SPIN_MAX)
        a("s_cbranch_scc1 L_polled_" + tag)
        a("v_cmp_ne_u32 vcc, %s, %s" % (sr(sTAG), vr(vt)))
        a("s_cbranch_vccnz L_poll2_" + tag)
        a("s_branch L_polled_" + tag)

    a.label("L_slow")
    CN = SB + 16
    a("s_waitcnt vmcnt(0)")
    a("v_mov_b32 v13, 0xff800000")
    a("s_mov_b32 s82, s83")
    a("s_mov_b32 s81, 64")
    a.label("L_slow1")
    bload(KV, 4, 252, SWS, "s82", 0, "sc1")
    a("s_add_u32 s82, s82, 2048")
    a("s_waitcnt vmcnt(0)")
    mfma32(SB, KV, QR + 12, None)
    for i in range(0, 16, 2):
        a("v_max3_f32 v13, v13, %s, %s" % (vr(SB + i), vr(SB + i + 1)))
    a("s_sub_u32 s81, s81, 1")
    a("s_cmp_lg_u32 s81, 0")
    a("s_cbranch_scc1 L_slow1")
    a("v_mov_b32 v15, v13")
    a("v_permlane32_swap_b32 v15, v13")
    a("v_max_f32 v13, v15, v13")
    for i in range(16):
        a("v_sub_f32 %s, 0, v13" % vr(CN + i))
        a("v_mov_b32 %s, 0" % vr(OW + i))
    a("s_mov_b32 s82, s83")
    a("s_mov_b32 s81, 64")
    a.label("L_slow2")
    kvload(0)
    a("s_waitcnt vmcnt(0)")
    mfma32(SB, KV, QR + 12, CN)
    for i in range(16):
        a("v_exp_f32 %s, %s" % (vr(SB + i), vr(SB + i)))
    smf(OW, KV + 4, SB)
    smf(OW, KV + 8, SB + 8)
    a("s_sub_u32 s81, s81, 1")
    a("s_cmp_lg_u32 s81, 0")
    a("s_cbranch_scc1 L_slow2")
    a("s_branch L_norm")
    a.label("L_code_end")
    a("s_endpgm")

    added = a.fix()
    return a.text().replace('FSH', str(cfg.fsh)).replace('FROW', str(cfg.fsh + 5)), added


HEADER = """; Kernarg layout for this problem (88 bytes, ptrs only, base s[0:1]):
; @launch grid=(256,1,1) block=(512,1,1) lds=163840
.amdgcn_target "amdgcn-amd-amdhsa--gfx950"
.text
.globl {k}
.p2align 8
.type {k},@function
{k}:
"""

FOOTER = """.section .rodata,"a"
.p2align 6
.amdhsa_kernel {k}
  .amdhsa_next_free_vgpr 256
  .amdhsa_next_free_sgpr 102
  .amdhsa_accum_offset 256
  .amdhsa_group_segment_fixed_size 0
  .amdhsa_kernarg_size 88
  .amdhsa_user_sgpr_count 2
  .amdhsa_user_sgpr_kernarg_segment_ptr 1
  .amdhsa_system_sgpr_workgroup_id_x 1
.end_amdhsa_kernel
"""


def build(**kw):
    cfg = Cfg()
    for k, v in kw.items():
        setattr(cfg, k, v)
    body, added = gen(cfg)
    return HEADER.format(k=KERNEL) + body + FOOTER.format(k=KERNEL), added


if __name__ == "__main__":
    out = sys.argv[1] if len(sys.argv) > 1 else "cdna_kernels/%s.s" % NAME
    kw = {}
    for arg in sys.argv[2:]:
        k, v = arg.split("=")
        kw[k] = int(v)
    text, added = build(**kw)
    open(out, "w").write(text)
    print("wrote", out, "lines", text.count("\n"), "nops added", added)
```

```python
import sys
import os
sys.path.insert(0, os.path.dirname(os.path.abspath(__file__)))
from asmlib import Asm, vr, sr

NAME = "recurrent_scan__softmax_full_mha__dense_activation_squared_relu__prompt"
KERNEL = NAME + "_kernel"

WS_FLAGQ = 0x1200
WS_FLAGK = 0x40000
WS_FLAGH = 0x60000
WS_STAMP = 0x10000
WS_QO = 0x100000
WS_KV = 0x300000
WS_HF = 0x700000
WS_END = WS_HF + 86 * 65536
EPOCH_INC = 0x9E3779B9
SPIN_MAX = 1 << 18

L_RING = 65536
L_OPART = 65536
L_W2 = L_OPART + 55296
W2_REGION = 10240
PART_STRIDE = 144
SUM_STRIDE = 272
SUM_SIZE = 64 * SUM_STRIDE
L_SUM = L_OPART

SX, SWQ, SWO, SW1, SB1, SW2, SB2, SOUT, SWS = 24, 28, 32, 36, 40, 44, 48, 52, 56
sW, sCG, sTB, sRW, sP, sQB, sTBF, sCB, sTAG, sCT0 = 60, 61, 62, 63, 64, 65, 66, 67, 68, 69
sVM = 70
sSTAMP = 4

QSCALE = 0x3EB8AA3B
NLOG2E = 0xBFB8AA3B
NS = 22


class Cfg:
    abl = 0
    bst = 0
    xslot = 0
    xrun = 2
    n1 = 8
    nA = 22
    gap = 1
    kvt = 0
    kvi = 4
    dmam = 2
    fpat = 2221
    pf1_at = 10
    pfc_at = 0
    pfc1 = 0
    w2_at = 10
    pfl = 7
    wol = 14
    won = 1
    stamps = 0
    force_slow = 0
    flag_chunk = 10
    lead = 2
    defer = 0
    look = 5
    pfq_at = 8
    bload = 15
    bjoin = 16
    btile = 2
    sleep = 6
    w0_at = 7
    w1_at = 10
    hpre = 2
    hbar = 0
    hnow = 2
    hgap = 1
    hoff = 0
    kv3 = 1
    pfe = 99
    evA = 9
    fsh = 6
    kvpf = 2
    kflag = 3
    hpoll = 0
    pfn = 11
    alow = 0
    pfg = 1
    hflag = 10
    probe = None
    omod = 1
    oat = 4
    probewg = 100
    probew = 0
    probesh = 4
    hst = 0


def srd(s):
    return sr(s, 4)


class Queue:
    def __init__(self, a, name, maxn):
        self.a, self.name, self.maxn, self.items = a, name, maxn, []

    def push(self, tag):
        self.items.append(tag)

    def wait(self, *tags):
        last = max((i for i, t in enumerate(self.items) if t in tags), default=-1)
        if last < 0:
            return
        n = len(self.items) - 1 - last
        self.a("s_waitcnt %s(%d)" % (self.name, min(n, self.maxn)))
        self.items = self.items[last + 1:]

    def drain(self):
        self.a("s_waitcnt %s(0)" % self.name)
        self.items = []


def gen(cfg):
    a = Asm()
    nA = cfg.nA
    nB = 32 - nA
    vm = Queue(a, "vmcnt", 63)
    lg = Queue(a, "lgkmcnt", 15)

    def stamp(i, force=False):
        if cfg.bst and not force and i != 0:
            return
        if cfg.stamps and (cfg.probe is None or i in (0, cfg.probe)):
            a("%s s[22:23]" % ("s_memtime" if cfg.stamps == 2 else "s_memrealtime"))
            a("s_waitcnt lgkmcnt(0)")
            a("s_mov_b32 %s, s22" % sr(sSTAMP + i))

    def mfma32(d, x, y, c):
        a("v_mfma_f32_32x32x16_bf16 %s, %s, %s, %s" % (vr(d, 16), vr(x, 4), vr(y, 4), "0" if c is None else vr(c, 16)))

    def mfma16(d, x, y, c):
        a("v_mfma_f32_16x16x32_bf16 %s, %s, %s, %s" % (vr(d, 4), vr(x, 4), vr(y, 4), "0" if c is None else vr(c, 4)))

    def smf(d, x, y):
        a("v_smfmac_f32_32x32x32_bf16 %s, %s, %s, v3" % (vr(d, 16), vr(x, 4), vr(y, 8)))

    def bload(d, n, va, s, so, off=0, mod="", tag=None):
        op = {1: "dword", 2: "dwordx2", 4: "dwordx4"}[n]
        a("buffer_load_%s %s, %s, %s, %s offen offset:%d %s" % (op, vr(d, n), vr(va), srd(s), so, off, mod))
        vm.push(tag)

    def bstore(d, n, va, s, so, off=0, mod="", tag=None):
        op = {1: "dword", 2: "dwordx2", 4: "dwordx4"}[n]
        a("buffer_store_%s %s, %s, %s, %s offen offset:%d %s" % (op, vr(d, n), vr(va), srd(s), so, off, mod))
        vm.push(tag)

    def dma(va, s, so, off=0, tag=None):
        a("buffer_load_dwordx4 %s, %s, %s offen offset:%d lds" % (vr(va), srd(s), so, off))
        vm.push(tag)

    def dsr(op, d, n, va, off, tag=None):
        a("%s %s, %s offset:%d" % (op, vr(d, n), vr(va), off))
        lg.push(tag)

    def dsw(op, va, d, n, off, tag=None):
        a("%s %s, %s offset:%d" % (op, vr(va), vr(d, n), off))
        lg.push(tag)

    def trread(d, va, off, second, tag=None):
        dsr("ds_read_b64_tr_b16", d, 2, va, off, tag)
        dsr("ds_read_b64_tr_b16", d + 2, 2, va, off + second, tag)

    def set_flag(vt, *soffs):
        a("v_mov_b32 %s, %s" % (vr(vt), sr(sTAG)))
        a("s_mov_b64 exec, 1")
        for soff in soffs:
            bstore(vt, 1, 1, SWS, soff, 0, "sc0 sc1")
        a("s_mov_b64 exec, -1")

    stubs = []

    def check_flags(tag, vt, lanes, soff):
        a("v_cmp_ne_u32 vcc, %s, %s" % (sr(sTAG), vr(vt)))
        a("s_cbranch_vccnz L_poll_" + tag)
        a.label("L_polled_" + tag)
        stubs.append((tag, vt, lanes, soff))

    def flag_load(vt, shift, soff, tag):
        if shift is None:
            bload(vt, 1, 255, SWS, soff, 0, "sc0 sc1", tag)
            return
        a("v_and_b32 %s, 31, v0" % vr(vt))
        a("v_lshlrev_b32 %s, %d, %s" % (vr(vt), shift, vr(vt)))
        bload(vt, 1, vt, SWS, soff, 0, "sc0 sc1", tag)

    sizes = {SX: 2048 * 1024, SWQ: 512 * 3072, SWS: WS_END, SW1: 512 * 2752, SB1: 2752,
             SWO: 512 * 1024, SW2: 1376 * 1024, SB2: 1024, SOUT: 2048 * 1024}
    RAW = 128

    def xloads():
        for j in range(8):
            bload(RAW + j * 4, 4, 14, SX, "s101", j * 128, "", ("x", j))

    stamp(0)
    a("""
    s_load_dwordx2 s[24:25], s[0:1], 0
    s_getpc_b64 s[72:73]
    L_pc:
    s_cmpk_ge_u32 s2, 256
    s_cbranch_scc1 L_end
    s_lshr_b32 s74, s2, 3
    s_lshl_b32 s74, s74, 11
    v_lshrrev_b32 v8, 5, v0
    v_lshl_add_u32 v8, v8, 7, s74
    v_min_u32 v8, L_code_end-L_pc, v8
    v_mov_b32 v9, 0
    v_lshl_add_u64 v[8:9], v[8:9], 0, s[72:73]
    global_load_dword v7, v[8:9], off
    s_lshl_b32 s72, s2, 4
    s_and_b32 s72, s72, 0x180
    v_add_u32 v4, s72, v0
    v_bfe_u32 v4, v4, 3, 6
    v_and_b32 v5, 7, v0
    v_lshlrev_b32 v14, 10, v4
    v_lshl_add_u32 v14, v5, 4, v14
    s_lshr_b32 s67, s2, 5
    s_and_b32 s73, s2, 6
    s_lshl2_add_u32 s62, s73, s67
    s_lshl_b32 s101, s62, 16
    s_mov_b32 s26, %d
    s_mov_b32 s27, 0x20000
    v_bfe_u32 v24, v4, 1, 3
    v_xor_b32 v24, v24, v5
    v_lshlrev_b32 v15, 7, v4
    v_lshl_add_u32 v15, v24, 4, v15
    v_readfirstlane_b32 s60, v0
    v_and_b32 v0, 63, v0
    v_mov_b32 v24, 0
    v_mov_b32 v25, 0
    s_lshr_b32 s60, s60, 6
    s_cmp_ge_u32 s60, 4
    s_waitcnt lgkmcnt(0)
    """ % sizes[SX])
    vm.push("pf")
    if cfg.bst == 3:
        stamp(1, True)
    xloads()
    if cfg.bst == 3:
        stamp(2, True)
    if cfg.stamps:
        for i in range(3 if cfg.bst == 3 else 1, 16):
            a("s_mov_b32 %s, s4" % sr(sSTAMP + i))
    a("s_mov_b32 s63, 1")
    a("s_cbranch_scc1 L_ln")
    a("s_mov_b32 s63, 0")

    def setup1():
        for s, off in ((SWQ, 8), (SWS, 80), (SW1, 32), (SB1, 40), (SWO, 16), (SW2, 48), (SB2, 56), (SOUT, 64)):
            a("s_load_dwordx2 %s, s[0:1], %d" % (sr(s, 2), off))
        a("""
        s_mov_b32 s30, %d
        s_mov_b32 s31, 0x20000
        s_bfe_u32 s72, s2, 0x20003
        s_and_b32 s73, s2, 1
        s_lshl2_add_u32 s61, s73, s72
        s_and_b32 s74, s60, 3
        s_lshl_b32 s72, s61, 7
        s_mul_i32 s85, s74, %d
        s_add_u32 s85, s85, s72
        s_mul_i32 s87, s74, 6144
        s_add_u32 s87, s87, %d
        v_lshrrev_b32 v4, 3, v0
        v_bfe_u32 v6, v4, 1, 1
        v_lshlrev_b32 v6, 2, v6
        v_xor_b32 v6, v6, v5
        v_lshlrev_b32 v6, 4, v6
        v_mul_u32_u24 v13, 3072, v4
        v_add_u32 v13, v13, v6
        s_waitcnt lgkmcnt(0)
        """ % (sizes[SWQ], 16 * 3072, L_RING))

    def setup2():
        a("s_load_dword %s, %s, 0" % (sr(sTAG), sr(SWS, 2)))
        for s in (SW1, SWS, SB1, SWO, SW2, SB2, SOUT):
            a("s_mov_b32 %s, %d" % (sr(s + 2), sizes[s]))
            a("s_mov_b32 %s, 0x20000" % sr(s + 3))
        a("""
        s_and_b32 s73, s60, 3
        s_lshl2_add_u32 s100, s2, s73
        s_mul_i32 s100, s100, 1536
        v_min_u32 v31, 11, v0
        v_lshlrev_b32 v31, 7, v31
        s_bfe_u32 s72, s2, 0x20003
        s_and_b32 s73, s2, 7
        s_lshl2_add_u32 s66, s73, s72
        s_and_b32 s72, s72, 1
        s_lshl1_add_u32 s64, s73, s72
        s_lshr_b32 s65, s2, 4
        s_mul_i32 s69, s61, 43
        s_lshr_b32 s69, s69, 3
        s_mov_b32 s70, 0xffff
        s_mov_b32 s71, 0xffff
        v_lshlrev_b32 v1, 4, v0
        v_and_b32 v2, 15, v0
        v_lshrrev_b32 v3, 5, v0
        v_lshl_add_u32 v2, v3, 4, v2
        v_lshlrev_b32 v2, 4, v2
        """)

    def setup3():
        a("; attention offsets: s82 = next K/V tile, s83 = head base, s92-s95 = Q tiles, s96-s99 = O partial slots")
        a("""
        s_and_b32 s74, s60, 1
        s_lshr_b32 s75, s60, 1
        s_lshl1_add_u32 s72, s64, s74
        s_lshl_b32 s83, s72, 17
        s_add_u32 s83, s83, %d
        s_and_b32 s73, s75, 1
        s_lshl_b32 s73, s73, 15
        s_add_u32 s82, s83, s73
        s_lshl_b32 s72, s65, 6
        s_add_u32 s72, s72, s64
        s_lshl1_add_u32 s72, s72, s74
        s_lshl_b32 s72, s72, 10
        s_add_u32 s72, s72, %d
        s_mul_i32 s84, s74, %d
        s_add_u32 s84, s84, %d
        """ % (WS_KV, WS_QO, 12 * 2304, L_OPART))
        for t in range(4):
            a("s_xor_b32 s73, s75, %d" % (t ^ 3))
            a("s_mul_i32 %s, s73, %d" % (sr(96 + t), 3 * 2304))
            a("s_lshl_b32 s73, s73, 15")
            a("s_add_u32 %s, s72, s73" % sr(92 + t))
            a("s_add_u32 %s, %s, s84" % (sr(96 + t), sr(96 + t)))

    setup1()
    setup2()
    setup3()
    a("""
    s_add_u32 s82, s82, %d
    v_and_b32 v8, 0x33, v0
    v_and_b32 v9, 4, v0
    v_lshl_or_b32 v8, v9, 1, v8
    v_and_b32 v9, 8, v0
    v_lshrrev_b32 v9, 1, v9
    v_or_b32 v8, v8, v9
    v_lshlrev_b32 v11, 4, v8
    v_bfe_u32 v9, v0, 4, 1
    v_mul_u32_u24 v12, 0x1fe00, v9
    v_add_u32 v12, v12, v2
    v_mul_u32_u24 v14, 0x1fa00, v9
    v_add_u32 v14, v14, v2
    v_lshl_add_u32 v4, v4, 10, v6
    v_bfe_u32 v10, v0, 2, 2
    v_lshlrev_b32 v5, 5, v9
    v_lshl_add_u32 v5, v10, 7, v5
    v_and_b32 v9, 3, v0
    v_lshl_add_u32 v5, v9, 3, v5
    v_lshrrev_b32 v10, 1, v10
    v_lshl_add_u32 v8, v3, 10, v5
    v_xor_b32 v9, s75, v10
    v_lshl_add_u32 v8, v9, 6, v8
    v_add_u32 v8, %d, v8
    v_add_u32 v9, %d, v8
    v_lshl_add_u32 v5, v3, 9, v5
    v_lshl_add_u32 v5, v10, 6, v5
    v_lshrrev_b32 v10, 1, v0
    v_xor_b32 v10, v10, v0
    v_and_b32 v10, 1, v10
    v_mul_u32_u24 v10, 24, v10
    v_xor_b32 v5, v5, v10
    s_mul_i32 s84, s60, %d
    s_add_u32 s84, s84, %d
    v_add_u32 v5, s84, v5
    v_xor_b32 v6, 64, v5
    v_and_b32 v10, 31, v0
    s_lshl_b32 s72, s74, 12
    v_bfe_u32 v16, v10, 1, 3
    v_xor_b32 v16, v16, v3
    v_lshlrev_b32 v16, 4, v16
    v_lshl_add_u32 v16, v10, 7, v16
    v_add_u32 v16, s72, v16
    v_xor_b32 v17, 32, v16
    v_xor_b32 v18, 64, v16
    v_xor_b32 v19, 0x60, v16
    v_lshlrev_b32 v10, 1, v10
    v_lshl_add_u32 v10, v3, 20, v10
    """ % ((16 - cfg.evA) * 2048, L_RING, 2 * 24576, W2_REGION, L_W2))
    for seg in range(3):
        for q in range(1, 4):
            a("v_mov_b32 %s, 0" % vr(112 + 4 * seg + q))
    for q in range(4):
        a("v_mov_b32 %s, 0x3f803f80" % vr(124 + q))
    a("v_mov_b32 v3, 0xdddddddd")
    a("""
    s_lshl1_add_u32 s72, s62, s74
    s_lshl1_add_u32 s73, s61, s75
    s_lshl2_add_u32 s76, s73, s74
    s_lshl_b32 s76, s76, 5
    s_add_u32 s76, s76, s62
    s_lshl_b32 s77, s76, 11
    s_lshl4_add_u32 s76, s72, s73
    s_lshl_b32 s76, s76, 11
    s_add_u32 s76, s76, %d
    s_add_u32 s77, s77, %d
    s_add_u32 s81, s69, s75
    s_lshl_b32 s78, s81, 7
    s_add_u32 s78, s78, s72
    s_lshl_b32 s78, s78, 10
    s_add_u32 s78, s78, %d
    s_lshl_b32 s79, s61, 6
    s_add_u32 s79, s79, s62
    s_lshl_b32 s79, s79, 4
    s_add_u32 s79, s79, %d
    s_lshl_b32 s80, s62, 3
    s_add_u32 s80, s80, s61
    s_lshl2_add_u32 s80, s80, s60
    s_lshl_b32 s80, s80, FSH
    s_add_u32 s80, s80, %d
    s_mul_i32 s72, s61, 43
    s_add_u32 s72, s72, 43
    s_lshr_b32 s72, s72, 3
    s_add_u32 s73, s81, 4
    s_add_u32 s88, s78, %d
    s_cmp_lt_u32 s73, s72
    s_cselect_b32 s88, s88, 0x40000000
    s_lshl_b32 s81, s81, 6
    """ % (WS_QO, WS_KV, WS_HF, WS_FLAGQ, WS_FLAGH, 8 * 65536))

    def slot_of(c):
        if not cfg.xslot or c < cfg.xslot:
            return (c & 3) * 24576
        return -L_RING if c == cfg.xslot else ((c - 1) & 3) * 24576

    skip_bar = (10,) if cfg.xslot else ()

    def issue_chunk(c):
        for m in range(6):
            blk, seg = divmod(m, 3)
            a("s_add_u32 m0, s87, %d" % (slot_of(c) + seg * 2048 + blk * 1024))
            if c < 8:
                a("s_add_u32 s72, s85, %d" % ((c * 64 + blk * 8) * 3072 + seg * 1024))
                dma(13, SWQ, "s72", 0, ("w", c))
            else:
                a("s_add_u32 s72, s80, %d" % (((c - 8) * 64 + blk * 8) * 2752 + seg * 128))
                dma(57 if seg == 2 else 56, SW1, "s72", 0, ("w", c))

    def layernorm(acts):
        def act(p):
            if acts.get(p):
                assert p >= 7
                a("s_cmp_eq_u32 s63, 1")
                a("s_cbranch_scc1 L_ln_%d" % p)
                for f in acts[p]:
                    f()
                a.label("L_ln_%d" % p)
        a.label("L_ln")
        a("v_mov_b32 v30, 0x3f803f80")
        a("s_mov_b32 s89, 0xffff0000")
        for j in range(8):
            if cfg.bst == 3 and j == 0:
                stamp(3, True)
            vm.wait(("x", j))
            if cfg.bst == 3 and j in (0, 3, 7):
                stamp({0: 4, 3: 5, 7: 6}[j], True)
            act(j)
            for q in range(4):
                x = RAW + j * 4 + q
                a("v_dot2c_f32_bf16 v24, v30, %s" % vr(x))
                a("v_dot2c_f32_bf16 v25, %s, %s" % (vr(x), vr(x)))
        act(8)
        stamp(1)
        for ctl in ("quad_perm:[1,0,3,2]", "quad_perm:[2,3,0,1]", "row_half_mirror"):
            for r in (24, 25):
                a("v_add_f32_dpp %s, %s, %s %s row_mask:0xf bank_mask:0xf" % (vr(r), vr(r), vr(r), ctl))
        a("""
        v_mul_f32 v24, 0x3b000000, v24
        v_mul_f32 v25, 0x3b000000, v25
        v_fma_f32 v25, -v24, v24, v25
        v_max_f32 v25, 0, v25
        v_cvt_pk_bf16_f32 v24, v24, v25
        v_and_b32 v25, s89, v24
        v_add_f32 v25, 0x3727c5ac, v25
        v_cvt_pk_bf16_f32 v25, v25, v25
        v_and_b32 v25, s89, v25
        v_sqrt_f32 v25, v25
        v_lshlrev_b32 v24, 16, v24
        v_cvt_pk_bf16_f32 v25, v25, v25
        v_and_b32 v25, s89, v25
        v_rcp_f32 v26, v25
        v_mul_f32_e64 v28, -v24, v26
        """)
        for j in range(8):
            x = RAW + j * 4
            t = 192 + (j & 1) * 8
            for q in range(4):
                a("v_lshlrev_b32 %s, 16, %s" % (vr(t + 2 * q), vr(x + q)))
                a("v_and_b32 %s, s89, %s" % (vr(t + 2 * q + 1), vr(x + q)))
            for q in range(4):
                a("v_pk_fma_f32 %s, %s, v[26:27], v[28:29] op_sel_hi:[1,0,0]" % (vr(t + 2 * q, 2), vr(t + 2 * q, 2)))
            for q in range(4):
                a("v_cvt_pk_bf16_f32 %s, %s, %s" % (vr(x + q), vr(t + 2 * q), vr(t + 2 * q + 1)))
            if not cfg.defer:
                a("ds_write_b128 v15, %s offset:%d" % (vr(x, 4), j * 8192))
        if cfg.bst == 3:
            stamp(7, True)
        act(9)
        if cfg.defer:
            for j in range(8):
                a("ds_write_b128 v15, %s offset:%d" % (vr(RAW + j * 4, 4), j * 8192))
        act(10)
        stamp(2)
        if cfg.bst == 3:
            stamp(8, True)

    def pfq():
        a("; memory-side prefetch of Wqkv")
        bload(7, 1, 31, SWQ, "s100", 0, "", "pf")

    def pfc(which):
        a("; lines at offset 384 of every KiB stream slowly on a miss: the die's workgroups pull them into L2 together")
        a("s_lshr_b32 s72, s2, 3")
        a("s_lshl2_add_u32 s72, s72, s60")
        a("s_mul_i32 s72, s72, 12288")
        a("v_lshlrev_b32 v20, 3, v31")
        if which == SWQ:
            a("s_bitcmp1_b32 s2, 0")
            a("s_cselect_b32 s72, 0x40000000, s72")
        bload(7, 1, 20, which, "s72", 384, "", "pf")

    def pf1():
        a("; memory-side prefetch of W1")
        bload(7 if cfg.pf1_at <= 10 else 32, 1, 31, SW1, "s100", 0, "", "pf")

    acts = {}
    if cfg.pfc_at == 0:
        save = list(vm.items)
        pfc(SWQ)
        vm.items = save
    elif cfg.pfc_at <= 10:
        acts.setdefault(cfg.pfc_at, []).append(lambda: pfc(SWQ))
    if cfg.pfq_at == 0:
        save = list(vm.items)
        pfq()
        vm.items = save
    elif cfg.pfq_at <= 10:
        acts.setdefault(cfg.pfq_at, []).append(pfq)
    for c, p in enumerate((cfg.w0_at, cfg.w1_at, cfg.w2_at, 10)[:cfg.lead + 1]):
        acts.setdefault(p, []).append(lambda c=c: issue_chunk(c))
    if cfg.pf1_at <= 10:
        acts.setdefault(cfg.pf1_at, []).append(pf1)
    if cfg.pfc1:
        acts.setdefault(10, []).append(lambda: pfc(SW1))
    layernorm(acts)
    a("s_cmp_eq_u32 s63, 1")
    a("s_cbranch_scc1 L_loader")

    QR, SB, WF, FA, OA, KV, HB = 8, 24, 56, 64, 128, 192, 228
    NKV = 3

    def att_init_ops():
        ops = ["v_mov_b32 %s, 0" % vr(OA + 16 * t + i) for t in range(4) for i in range(9)]
        ops2 = ["v_and_b32 v7, 27, v0", "v_cmp_eq_u32 vcc, 16, v7", "v_mov_b32 v7, 0x3f803f80", "v_cndmask_b32 v7, 0, v7, vcc"]
        ops2 += ["v_mov_b32 %s, v7" % vr(KV + 12 * b + 4 + q) for b in range(NKV) for q in range(8)]
        return ops, ops2

    evB = 16 - cfg.evA
    orders = {"b": list(range(evB)) + [32 + i for i in range(nB - evB)],
              "a": list(range(evB, 16)) + [32 + i for i in range(nB - evB, 16)]}
    order = []

    def kvload(j):
        b = j % NKV
        bload(KV + 12 * b, 4, 252, SWS, "s82", 0, "sc1", ("kv", j))
        a("s_mov_b64 exec, %s" % sr(sVM, 2))
        bload(KV + 12 * b + 4, 4, 253, SWS, "s82", 0, "sc1", ("kv", j))
        bload(KV + 12 * b + 8, 4, 254, SWS, "s82", 0, "sc1", ("kv", j))
        a("s_mov_b64 exec, -1")
        a("s_add_u32 s82, s82, %d" % (2048 * (order[j + 1] - order[j]) if j + 1 < len(order) else 2048))

    def att_loads(role):
        order[:] = orders[role]
        a("s_and_b32 s72, s60, 1")
        a("s_lshl_b32 s73, s72, 10")
        a("v_add_u32 v252, s73, v1")
        a("s_lshr_b32 s73, 0x400, s72")
        a("v_add_u32 v253, s73, v2")
        a("s_mul_i32 s73, s72, 0x600")
        a("s_sub_u32 s73, 0x600, s73")
        a("v_add_u32 v254, s73, v2")
        bload(QR, 4, 1, SWS, "s92", 0, "sc1", "q")
        kvload(0)
        for t in range(1, 4):
            bload(QR + 4 * t, 4, 1, SWS, sr(92 + t), 0, "sc1", "q")
        kvload(1)
        if cfg.kv3 and role == "a":
            kvload(2)

    def dump_addr():
        a("v_lshlrev_b32 v8, 2, v0")
        a("v_add_u32 v9, s99, v1")
        a("v_add_u32 v10, s99, v8")
        a("v_bfe_u32 v11, v0, 4, 1")
        a("v_lshl_add_u32 v11, v11, 10, v2")

    def dump(t):
        a("v_add_u32 v12, %s, v1" % sr(96 + t))
        a("v_add_u32 v13, %s, v8" % sr(96 + t))
        dsw("ds_write_b128", 12, OA + 16 * t, 4, t * 2304)
        dsw("ds_write_b128", 12, OA + 16 * t + 4, 4, t * 2304 + 1024)
        dsw("ds_write_b32", 13, OA + 16 * t + 8, 1, t * 2304 + 2048)

    deferred = []
    cfg_gap = {0: range(16), 1: (1, 10), 2: (0, 9), 3: (4, 10), 4: (1,), 5: (4,), 6: (15, 9)}[cfg.gap]

    def att_run(n, hooks):
        hooks.setdefault((n - 1, 0, 11), []).append(dump_addr)
        for t in range(3):
            hooks.setdefault((n - 1, t + 1, 12), []).append(lambda t=t: dump(t))
        vm.wait("q", ("kv", 0))
        mfma32(SB, KV, QR, None)
        for j in range(n):
            b = j % NKV
            for t in range(4):
                cur, oth = SB + 16 * (t & 1), SB + 16 * ((t + 1) & 1)
                for i in range(16):
                    a("v_exp_f32 %s, %s" % (vr(cur + i), vr(cur + i)))
                    if i in cfg_gap:
                        while deferred:
                            deferred.pop(0)()
                    if t == cfg.kvt and i == cfg.kvi and j + NKV - 1 < n and not (cfg.abl & 32 and j > 0) and not (cfg.kv3 and j == 0):
                        kvload(j + NKV - 1)
                    if i == 1 and (j, t) != (0, 0):
                        smf(OA + 16 * ((t + 3) & 3), KV + 12 * (b if t else (j - 1) % NKV) + 8, oth + 8)
                    if i == 4:
                        if t < 3:
                            mfma32(oth, KV + 12 * b, QR + 4 * (t + 1), None)
                        elif j + 1 < n:
                            vm.wait(("kv", j + 1))
                            mfma32(oth, KV + 12 * ((j + 1) % NKV), QR, None)
                    if i == 10:
                        smf(OA + 16 * t, KV + 12 * b + 4, cur)
                    for h in hooks.get((j, t, i), ()):
                        h()
        smf(OA + 48, KV + 12 * ((n - 1) % NKV) + 8, SB + 16 + 8)

    ACC = (24, 40, 56)
    WB, NBUF, LA = 72, 6, cfg.look
    XF, PK, XA = 128, 96, 16
    init1, init2 = att_init_ops()

    def item(g):
        return divmod(g % 96, 3)

    def reads(g):
        ks, sel = item(g)
        c, m = divmod(g, 12)
        so = slot_of(c)
        base, so = (XA, 0) if so < 0 else (8 + so // 49152, so % 49152)
        if g < 96 and sel == 0:
            dsr("ds_read_b128", XF + 4 * ks, 4, XA + (ks & 3), (ks >> 2) * 8192, g)
        trread(WB + 4 * (g % NBUF), base, so + m * 2048, 512, g)

    def pack(acc, pk):
        return ["v_cvt_pk_bf16_f32 %s, %s, %s" % (vr(pk + q), vr(acc + 2 * q), vr(acc + 2 * q + 1)) for q in range(8)]

    def st2(pk, va, base, delta, tag, imm=(0, 0), vb=None):
        def first():
            bstore(pk, 4, va, SWS, base, imm[0], "" if cfg.abl & 64 else "sc1", tag)

        def second():
            if delta:
                a("s_add_u32 s72, %s, %d" % (base, delta))
            bstore(pk + 4, 4, vb or va, SWS, "s72" if delta else base, imm[1], "" if cfg.abl & 64 else "sc1", tag)
        return [first, second]

    def relu2(acc):
        return (["v_max_f32 %s, 0, %s" % (vr(acc + i), vr(acc + i)) for i in range(16)]
                + ["v_mul_f32 %s, %s, %s" % (vr(acc + i), vr(acc + i), vr(acc + i)) for i in range(16)])

    def bias(seg):
        return lambda: (vm.wait("b1"), mfma32(ACC[seg], 112 + 4 * seg, 124, None))

    tagq = ["v_or_b32 %s, 1, %s" % (vr(PK + 4 * q), vr(PK + 4 * q)) for q in range(2)]
    qkv_epi = (["v_mul_f32 %s, 0x%x, %s" % (vr(ACC[0] + i), QSCALE, vr(ACC[0] + i)) for i in range(16)]
               + pack(ACC[0], PK) + tagq + [bias(0)] + st2(PK, 1, "s76", 0, "st", (0, 1024))
               + pack(ACC[1], PK + 8) + [bias(1)] + st2(PK + 8, 11, "s77", 0x20400, "st")
               + pack(ACC[2], PK) + [bias(2)] + st2(PK, 12, "s77", 0, "st", (1024, 1536), 14))
    sched = {100: ["v_subrev_u32 %s, %d, v8" % (vr(XA), L_RING), "v_mov_b32 v112, v11", "v_mov_b32 v113, v12", "v_mov_b32 v114, v14"],
             144: init1, 180: init2}
    shadow = []

    def run_shadow(budget):
        while shadow and budget > 0:
            op = shadow.pop(0)
            if isinstance(op, str):
                a(op)
                budget -= 1
            else:
                op()
                budget -= 3

    a("""
    s_lshl_b32 s85, s60, 14
    s_lshl_b32 s72, s67, 7
    s_add_u32 s85, s85, s72
    s_lshl_b32 s86, s60, 6
    s_lshl1_add_u32 s86, s66, s86
    s_lshl_b32 s86, s86, 10
    s_add_u32 s86, s86, %d
    s_lshl_b32 s87, s66, FROW
    s_add_u32 s87, s87, %d
    """ % (WS_HF, WS_FLAGH))
    a("""
    s_lshr_b32 s72, s60, 1
    s_lshl1_add_u32 s72, s61, s72
    s_lshl_b32 s72, s72, 5
    s_add_u32 s72, s72, s62
    s_lshl_b32 s72, s72, FSH
    s_add_u32 s72, s72, %d
    s_bitcmp1_b32 s60, 0
    s_cselect_b32 s90, s77, 0x40000000
    s_cselect_b32 s91, s72, 0x40000000
    s_cselect_b32 s77, 0x40000000, s77
    """ % WS_FLAGK)
    vm.wait(("w", 0))
    a("s_waitcnt lgkmcnt(0)")
    a("s_add_u32 %s, %s, 0x%x" % (sr(sTAG), sr(sTAG), EPOCH_INC))
    if cfg.bst == 3:
        stamp(9, True)
    a("s_barrier")
    stamp(3)
    if cfg.bst == 3:
        stamp(10, True)
    for g in range(LA):
        reads(g)
    for g in range(192):
        ks, sel = item(g)
        if g == 96:
            stamp(4)
            shadow.extend(qkv_epi)
            run_shadow(1000)
            stamp(5)
        lg.wait(g)
        x, w = XF + 4 * ks, WB + 4 * (g % NBUF)
        c = None if (g < 96 and ks == 0) else ACC[sel]
        if g < 96 and sel == 2:
            mfma32(ACC[sel], x, w, c)
        else:
            mfma32(ACC[sel], w, x, c)
        n = g + LA
        if n < 192:
            if n % 12 == 0 and n // 12 not in skip_bar:
                vm.wait(("w", n // 12))
                if n // 12 == cfg.flag_chunk:
                    vm.wait("st")
                a("s_barrier")
                if n // 12 == cfg.flag_chunk:
                    a("s_cmp_lg_u32 s60, 0")
                    a("s_cselect_b32 s79, 0x40000000, s79")
                    set_flag(7, "s79")
                    stamp(6)
            reads(n)
        if g == 40:
            for seg in range(3):
                a("buffer_load_ushort %s, v10, %s, s81 offen offset:%d" % (vr(112 + 4 * seg), srd(SB1), seg * 128))
                vm.push("b1")
        shadow.extend(sched.get(g, ()))
        run_shadow(3)
    run_shadow(1000)
    stamp(7)
    hmath, hst = [], []
    for seg in range(3):
        pk = WB + 8 * seg
        hmath.append(relu2(ACC[seg]) + pack(ACC[seg], pk))
        hst.append((["s_add_u32 s78, s78, 0x40000"] if seg == 1 else []) + st2(pk, 1, "s78" if seg < 2 else "s88", 0x10000, "hst"))
    for seg in range(cfg.hbar):
        shadow.extend(hmath[seg])
    run_shadow(1000)
    a("s_barrier")
    stamp(8)
    if cfg.bst == 4:
        stamp(1, True)
    a("s_setprio 2")
    for seg in range(cfg.hbar, cfg.hpre):
        shadow.extend(hmath[seg])
    run_shadow(1000)
    att_loads("a")
    a("""
    s_lshl_b32 s72, s64, FROW
    s_add_u32 s72, s72, %d
    v_mov_b32 v255, s87
    s_mov_b64 exec, 0xffffffff00000000
    v_mov_b32 v255, s72
    s_mov_b64 exec, -1
    v_and_b32 v7, 31, v0
    v_lshl_add_u32 v255, v7, FSH, v255
    """.replace("s_mov_b64 exec, 0xffffffff00000000", "s_mov_b32 exec_lo, 0") % WS_FLAGK)
    late = st2(PK + 8, 112, "s90", 0x20400, "kst") + st2(PK, 113, "s90", 0, "kst", (1024, 1536), 114)
    hs = [[hst[0][0]], [hst[0][1]], hst[1][:2], [hst[1][2]], [hst[2][0]], [hst[2][1]]]
    hlist = [late[:2], late[2:]] + hs
    for seg in range(max(cfg.hpre, cfg.hbar), 3):
        shadow.extend(hmath[seg])
    for n in range(cfg.hnow):
        shadow.extend(hlist[n])
    run_shadow(1000)
    stamp(9)


    def w2dma(i):
        if cfg.abl & 1:
            return
        a("s_add_u32 m0, s84, %d" % ((i & 3) * 2048))
        a("s_add_u32 s72, s85, %d" % (i * 65536))
        dma(4, SW2, "s72", 0, ("w2", i))
        a("s_add_u32 s72, s72, 7168")
        dma(4, SW2, "s72", 1024, ("w2", i))

    hreg = lambda i, tt: HB + 8 * (i % 3) + 4 * tt

    def hload(i):
        if cfg.abl & 1:
            return
        if i > 0:
            a("s_add_u32 s86, s86, 0x40000")
        for tt in range(2):
            bload(hreg(i, tt), 4, 1, SWS, "s86", tt * 1024, "sc1", ("h", i))

    def w2read(i, nt):
        if cfg.abl & 2:
            return
        vm.wait(("w2", i))
        trread(WF + 4 * nt, 5 + nt, (i & 3) * 2048, 1024, ("wf", i, nt))

    def fslot(f):
        i, m = divmod(f, 4)
        nt, tt = ((0, 0), (0, 1), (1, 1), (1, 0))[m]
        vm.wait(("h", i))
        lg.wait(("wf", i, nt))
        d = FA + 16 * (2 * tt + nt)
        if not cfg.abl & 4:
            mfma32(d, WF + 4 * nt, hreg(i, tt), None if i == 0 else d)
        if m == 1 and i + 1 < NS:
            deferred.append(lambda: w2read(i + 1, 0))
        if m == cfg.dmam and i + 4 < NS:
            deferred.append(lambda: w2dma(i + 4))
        if m == 3:
            if i + 1 < NS:
                deferred.append(lambda: w2read(i + 1, 1))
            if i + 3 < NS:
                deferred.append(lambda: hload(i + 3))

    def park(tt, nt):
        d = FA + 16 * (2 * tt + nt)
        for q in range(8):
            a("v_cvt_pk_bf16_f32 %s, %s, %s" % (vr(d + q), vr(d + 2 * q), vr(d + 2 * q + 1)))
        for q in range(2):
            dsw("ds_write_b128", 4, d + 4 * q, 4, tt * 32 * PART_STRIDE + nt * 64 + q * 32)

    def park_addr():
        a("v_and_b32 v4, 31, v0")
        a("v_mul_u32_u24 v4, %d, v4" % PART_STRIDE)
        a("v_lshrrev_b32 v5, 5, v0")
        a("v_lshl_add_u32 v4, v5, 4, v4")
        a("v_add_u32 v4, s84, v4")

    hooks = {}

    def hook(j, t, i, f):
        hooks.setdefault((j, t, i), []).append(f)

    n1 = cfg.n1
    for n in range(cfg.hnow, 8):
        tl = (n - cfg.hnow) * cfg.hgap + cfg.hoff
        hook(tl >> 2, tl & 3, 9, lambda n=n: (shadow.extend(hlist[n]), run_shadow(1000)))
    assert (7 - cfg.hnow) * cfg.hgap + cfg.hoff <= cfg.hflag < 4 * (n1 - 2) and n1 + 1 <= cfg.evA
    hook(cfg.hflag >> 2, cfg.hflag & 3, 12, lambda: (vm.wait("hst"), set_flag(7, "s80"), stamp(1) if cfg.hst else None))
    hook(cfg.kflag >> 2, cfg.kflag & 3, 12, lambda: (vm.wait("kst"), set_flag(7, "s91")))
    assert cfg.hnow >= 2
    hook(n1 - 2, cfg.hpoll, 8, lambda: flag_load(7, None, "0", "hf"))
    hook(n1 - 2, 3, 12, lambda: (vm.wait("hf"), stamp(2) if cfg.hst else None, check_flags("h", 7, None, "0"), stamp(3) if cfg.hst else None))
    for i in range(4):
        hook(n1 - 3 + (i >> 1), 1 + (i & 1), 7, lambda i=i: w2dma(i))
    for i in range(3):
        hook(n1 - 1, i, 7, lambda i=i: hload(i))
    hook(n1 - 1, 3, 7, lambda: (w2read(0, 0), w2read(0, 1)))
    pat = [int(ch) for ch in str(cfg.fpat)]
    slots = [(j, t, pos) for j in range(n1, nA) for t in range(4) for pos in ((13,), (7, 13))[pat[t] - 1]]
    for f in range(4 * NS):
        hook(*slots[f], lambda f=f: fslot(f))
    tl = slots[4 * NS - 1][0] * 4 + slots[4 * NS - 1][1] + 1
    assert tl + 3 < 4 * nA
    hook(tl >> 2, tl & 3, 6, park_addr)
    for n, (nt, tt) in enumerate(((0, 0), (0, 1), (1, 1), (1, 0))):
        hook((tl + n) >> 2, (tl + n) & 3, 7, lambda tt=tt, nt=nt: park(tt, nt))
    if cfg.hst:
        for n in range(4):
            hook(n1 + 4 * n, 0, 1, lambda n=n: stamp(4 + n))
    if cfg.alow:
        tl = 4 * nA - cfg.alow
        hook(tl >> 2, tl & 3, 0, lambda: a("s_setprio 0"))
    if cfg.bst == 4:
        for n, j in enumerate(range(0, nA, 2)):
            hook(j, 0, 0, lambda n=n: stamp(2 + n, True))
    att_run(nA, hooks)
    vm.drain()
    a("s_branch L_att_done")

    a.label("L_loader")
    vm.items = []
    lg.items = []

    def b_setup():
        a("; waves 4-7: W1 DMA offsets v56/v57 (sixth tile out of range where the next group owns it), wo DMA offset v4, flagQ row s79")
        a("""
        v_mul_u32_u24 v56, 2752, v4
        v_add_u32 v56, v56, v6
        s_lshr_b32 s72, 0x5b, s61
        s_and_b32 s72, s72, 1
        s_lshl_b32 s72, s72, 23
        v_and_b32 v57, 64, v6
        v_mad_u32_u24 v57, v57, s72, v56
        v_bfe_u32 v6, v4, 1, 2
        v_lshlrev_b32 v6, 1, v6
        v_xor_b32 v6, v6, v5
        v_lshlrev_b32 v6, 4, v6
        v_lshl_add_u32 v4, v4, 10, v6
        v_min_u32 v5, %d, v0
        v_lshlrev_b32 v5, 7, v5
        s_lshr_b32 s79, s64, 1
        s_lshl_b32 s79, s79, 10
        s_add_u32 s79, s79, %d
        s_and_b32 s73, s60, 3
        s_lshl_b32 s72, s69, 6
        s_mul_i32 s80, s73, %d
        s_add_u32 s80, s80, s72
        """ % (cfg.pfn - 1, WS_FLAGQ, 16 * 2752))

        a("v_mov_b32 v3, 0xdddddddd")

    issued = cfg.lead
    setup1()
    state = {"issued": issued}

    def kv_pf():
        a("; the die's workgroups pull the early K/V tiles of their four heads into L2, one tile per wave")
        a("""
        s_lshr_b32 s72, s2, 3
        s_lshl2_add_u32 s72, s72, s60
        s_sub_u32 s72, s72, 4
        s_and_b32 s73, s72, 31
        s_lshr_b32 s72, s72, 5
        s_lshr_b32 s74, s64, 1
        s_lshl2_add_u32 s72, s74, s72
        s_lshl_b32 s72, s72, 6
        s_add_u32 s72, s72, s73
        s_lshl_b32 s72, s72, 11
        s_add_u32 s72, s72, %d
        v_and_b32 v58, 15, v0
        v_lshlrev_b32 v58, 7, v58
        """ % WS_KV)
        bload(59, 1, 58, SWS, "s72", 0, "sc1", "pf")

    def b_step(c):
        if c in skip_bar:
            return
        vm.wait(("w", c + 1 if c + 1 in skip_bar else c))
        if cfg.bst == 2:
            stamp(c, True)
        if cfg.bst == 3 and c == 0:
            stamp(9, True)
        a("s_barrier")
        if cfg.bst == 1:
            stamp(c, True)
        if c in (0, 8, 12, 15):
            stamp({0: 3, 8: 4, 12: 5, 15: 6}[c])
        if c == cfg.bload - 1:
            flag_load(7, 4, "s79", "qf")
        if c == cfg.bload:
            vm.wait("qf")
            check_flags("q", 7, 4, "s79")
            stamp(7)
            att_loads("b")
            if cfg.kvpf == 1:
                kv_pf()
        lim = c + 2
        if cfg.xslot == 12 and c == 9:
            lim = 12
        if cfg.xslot == 11 and c in (8, 9):
            lim = c + 3
        if cfg.xslot and c >= 11:
            lim = c + cfg.xrun
        while state["issued"] < min(15, max(3, lim)):
            state["issued"] += 1
            issue_chunk(state["issued"])
        if c == 1:
            setup2()
        if cfg.pf1_at == 12 + c:
            assert c >= 1
            pf1()
        if c == 2:
            setup3()
        if c == 3:
            b_setup()
        if c == cfg.pfe:
            a("; memory-side prefetch of w2 and wo")
            bload(32, 1, 31, SW2, "s100", 0, "", "pf")
            bload(32, 1, 31, SWO, "s100", 0, "", "pf")
        if c == 4:
            for op in init1:
                a(op)
        if c == 5:
            for op in init2:
                a(op)
        if c == 7:
            a("s_waitcnt lgkmcnt(0)")
            a("s_add_u32 %s, %s, 0x%x" % (sr(sTAG), sr(sTAG), EPOCH_INC))

    def b_att():
        a("s_barrier")
        stamp(8)
        a("s_setprio 1")
        if cfg.kvpf == 2:
            kv_pf()
        if cfg.kv3:
            kvload(2)
        a("s_lshl_b32 s79, s64, FROW")
        a("s_add_u32 s79, s79, %d" % WS_FLAGK)

    bhooks = {}
    for c in range(17):
        f = (lambda c=c: b_step(c)) if c < 16 else b_att
        if c <= cfg.bjoin:
            f()
        else:
            tl = (c - cfg.bjoin) * cfg.btile - 1
            bhooks[(tl >> 2, tl & 3, 13)] = [f]

    def wo_dma(lo, hi):
        if cfg.abl & 8:
            return
        if lo == 0:
            a("; wo tile -> LDS [0, 64K), a few rows per score tile")
            a("s_and_b32 s78, s60, 3")
            a("s_lshl_b32 s76, s78, 17")
            a("s_lshl_b32 s73, s67, 7")
            a("s_add_u32 s76, s76, s73")
            a("s_lshl_b32 s78, s78, 14")
        for i in range(lo, hi):
            a("s_add_u32 m0, s78, %d" % (i * 1024))
            a("s_add_u32 s73, s76, %d" % (i * 8192))
            dma(4, SWO, "s73", 0, "wo")

    bhooks[(evB - 3, 2, 12)] = [lambda: flag_load(6, cfg.fsh, "s79", "kf")]
    bhooks[(evB - 3, 3, 12)] = [lambda: (vm.wait("kf"), check_flags("k", 6, cfg.fsh, "s79"))]
    nl = cfg.pfn
    batches = [(SW2, i) for i in range(-(-11 // nl))] + [(SWO, i) for i in range(-(-4 // nl))]

    def pf_late(n):
        if cfg.abl & 16:
            return
        if n == 0:
            a("; memory-side prefetch of w2 (in k order) and wo, a few lines per wave at a time")
            a("s_and_b32 s90, s60, 3")
            a("s_lshl2_add_u32 s90, s2, s90")
            a("s_mul_i32 s90, s90, %d" % (nl * 128))
        a("s_add_u32 s72, s90, %d" % (batches[n][1] * nl * 131072))
        bload(7, 1, 5, batches[n][0], "s72", 0, "", "pf")

    for n in range(len(batches) if cfg.pfe > 90 else 0):
        tl = cfg.pfl + n * cfg.pfg
        bhooks[(tl >> 2, tl & 3, 7)] = [lambda n=n: pf_late(n)]
    for n, lo in enumerate(range(0, 16, cfg.won)):
        bhooks[((cfg.wol + n) >> 2, (cfg.wol + n) & 3, 8)] = [lambda lo=lo: wo_dma(lo, lo + cfg.won)]
    if cfg.bst == 4:
        for j in range(nB):
            bhooks.setdefault((j, 0, 0), []).append(lambda j=j: stamp(2 + j, True))
    att_run(nB, bhooks)
    vm.drain()

    OW = OA + 48
    WOF, OFR, AC, G, Z, X, SR = 128, 24, 8, 64, 96, 104, 112
    a.label("L_att_done")
    stamp(10)
    if cfg.bst == 4:
        stamp(14, True)
    a("s_setprio 0")
    a("s_and_b32 s73, s60, 1")
    a("s_lshl_b32 s73, s73, 9")
    a("s_sub_u32 s76, s95, s73")
    a("""
    s_and_b32 s74, s60, 3
    s_lshr_b32 s75, s60, 2
    v_lshrrev_b32 v14, 3, v0
    v_and_b32 v7, 7, v0
    v_lshlrev_b32 v7, 4, v7
    v_lshl_add_u32 v14, v14, 10, v7
    s_lshl3_add_u32 s78, s66, s60
    s_lshl_b32 s78, s78, 13
    s_lshl_b32 s79, s67, 7
    s_add_u32 s78, s78, s79
    """)
    bload(60, 4, 7, SB2, "s79", 0, "", "xb")
    bload(56, 4, 14, SX, "s78", 0, "", "xb")
    lg.drain()
    a("s_barrier")
    for src in range(3):
        d = SB + 10 * src
        dsr("ds_read_b128", d, 4, 9, src * 2304, src)
        dsr("ds_read_b128", d + 4, 4, 9, src * 2304 + 1024, src)
        dsr("ds_read_b32", d + 8, 1, 10, src * 2304 + 2048, src)
    for src in range(3):
        lg.wait(src)
        for i in range(0, 8, 2):
            a("v_pk_add_f32 %s, %s, %s" % (vr(OW + i, 2), vr(OW + i, 2), vr(SB + 10 * src + i, 2)))
        a("v_add_f32 %s, %s, %s" % (vr(OW + 8), vr(OW + 8), vr(SB + 10 * src + 8)))
    a("v_pk_mul_f32 v[12:13], %s, 0 op_sel_hi:[1,0]" % vr(OW, 2))
    for i in range(2, 8, 2):
        a("v_pk_fma_f32 v[12:13], %s, 0, v[12:13] op_sel_hi:[1,0,1]" % vr(OW + i, 2))
    a("""
    v_add_f32 v12, v12, %s
    v_add_f32 v12, v12, v13
    v_cmp_nle_f32 vcc, 0x30800000, v12
    s_mov_b64 s[72:73], vcc
    v_cmp_nge_f32 vcc, 0x5d800000, v12
    s_or_b64 s[72:73], s[72:73], vcc
    """ % vr(OW + 8))
    a("s_branch L_slow" if cfg.force_slow else "s_cbranch_scc1 L_slow")
    a.label("L_norm")
    a("v_rcp_f32 v12, %s" % vr(OW + 8))
    for i in range(0, 8, 2):
        a("v_pk_mul_f32 %s, %s, v[12:13] op_sel_hi:[1,0]" % (vr(OW + i, 2), vr(OW + i, 2)))
    for q in range(4):
        a("v_cvt_pk_bf16_f32 %s, %s, %s" % (vr(16 + q), vr(OW + 2 * q), vr(OW + 2 * q + 1)))
    a("v_and_b32 v16, -2, v16")
    bstore(16, 4, 11, SWS, "s76", 0, "sc1", "ost")
    stamp(11)
    a("v_mov_b32 v2, v14")
    a("v_lshrrev_b32 v3, 3, v0")
    a("""
    v_mul_u32_u24 v4, %d, v3
    s_mul_i32 s72, s60, %d
    s_add_u32 s72, s72, %d
    v_add3_u32 v4, v4, v7, s72
    """ % (PART_STRIDE, 8 * PART_STRIDE, L_W2))
    for j in range(4):
        dsr("ds_read_b128", G + 4 * j, 4, 4, j * W2_REGION, "g")
    a("""
    v_bfe_u32 v4, v0, 2, 2
    v_bfe_u32 v5, v0, 4, 1
    v_lshl_add_u32 v4, v5, 2, v4
    v_lshrrev_b32 v5, 1, v4
    v_lshlrev_b32 v92, 7, v4
    v_lshl_add_u32 v92, v5, 5, v92
    v_lshrrev_b32 v6, 5, v0
    v_lshl_add_u32 v92, v6, 11, v92
    v_and_b32 v4, 3, v0
    v_lshl_add_u32 v92, v4, 3, v92
    s_lshl_b32 s72, s75, 15
    v_add_u32 v92, s72, v92
    v_xor_b32 v93, 32, v92
    v_xor_b32 v94, 64, v92
    v_xor_b32 v95, 0x60, v92
    s_barrier
    """)

    def oloads(first=0):
        for ks in range(first, 8):
            bload(OFR + 4 * ks, 4, 1, SWS, ("s76", "s77", "s80", "s81")[ks >> 1], (ks & 1) * 2048, "sc1", ("o", ks))

    fill = ("""
    s_lshl2_add_u32 s72, s66, s74
    s_lshr_b32 s76, s72, 1
    s_lshl1_add_u32 s76, s76, s75
    s_lshl_b32 s76, s76, 14
    s_and_b32 s72, s72, 1
    s_lshl_b32 s72, s72, 10
    s_add_u32 s76, s76, s72
    s_add_u32 s76, s76, %d
    s_add_u32 s77, s76, 0x1000
    s_add_u32 s80, s76, 0x2000
    s_add_u32 s81, s76, 0x3000
    v_mul_u32_u24 v3, %d, v3
    v_lshl_add_u32 v3, v7, 1, v3
    s_mul_i32 s72, s60, %d
    s_add_u32 s72, s72, %d
    v_add_u32 v3, s72, v3
    v_and_b32 v5, 15, v0
    v_mul_u32_u24 v5, %d, v5
    v_and_b32 v4, 48, v0
    s_mul_i32 s72, s60, %d
    s_add_u32 s72, s72, %d
    v_add3_u32 v5, v5, v4, s72
    s_mov_b32 s82, 0x3f80
    s_mov_b32 s83, 0x3f800000
    """ % (WS_QO, SUM_STRIDE, 8 * SUM_STRIDE, L_SUM, SUM_STRIDE, 16 * SUM_STRIDE, L_SUM)).strip().split("\n")
    gate = ["v_mov_b32 %s, 0" % vr(Z + i) for i in range(8)]
    gate.append(lambda: lg.wait("g"))
    for j in range(5):
        if j == 4:
            gate.append(lambda: vm.wait("xb"))
        for q in range(4):
            src = G + 4 * j + q if j < 4 else 60 + q
            gate.append("v_dot2c_f32_bf16 %s, s82, %s" % (vr(Z + 2 * q), vr(src)))
            gate.append("v_dot2c_f32_bf16 %s, s83, %s" % (vr(Z + 2 * q + 1), vr(src)))
    for q in range(4):
        gate.append("v_lshlrev_b32 %s, 16, %s" % (vr(X + 2 * q), vr(56 + q)))
        gate.append("v_and_b32 %s, s89, %s" % (vr(X + 1 + 2 * q), vr(56 + q)))
    gate += ["v_mul_f32 %s, 0x%x, %s" % (vr(G + i), NLOG2E, vr(Z + i)) for i in range(8)]
    gate += ["v_exp_f32 %s, %s" % (vr(G + i), vr(G + i)) for i in range(8)]
    gate += ["v_add_f32 %s, 1.0, %s" % (vr(G + i), vr(G + i)) for i in range(8)]
    gate += ["v_rcp_f32 %s, %s" % (vr(G + i), vr(G + i)) for i in range(8)]
    gate += ["v_mul_f32 %s, %s, %s" % (vr(Z + i), vr(Z + i), vr(G + i)) for i in range(8)]

    def wo_reads(oat, per):
        for ks in range(8):
            for ct in range(4):
                trread(WOF + (ks * 4 + ct) * 4, 92 + ct, ks * 4096, 1024, ("wo", ks))
                run_shadow(per)
            if ks == oat:
                run_shadow(1000)
                vm.wait("ost")
                oloads()

    vm_t, lg_t = list(vm.items), list(lg.items)
    a("s_cmp_eq_u32 s63, 1")
    a("s_cbranch_scc1 L_tail_b")
    shadow.extend(fill)
    wo_reads(7, 1)
    shadow.extend(gate)
    run_shadow(1000)
    a("s_branch L_tail_j")
    a.label("L_tail_b")
    vm.items, lg.items = vm_t, lg_t
    shadow.extend(fill + gate)
    run_shadow(1000)
    wo_reads(cfg.oat, 0)
    a.label("L_tail_j")
    stamp(12)
    a("s_mov_b32 s73, 0")
    lg.drain()
    for ks in range(8):
        a.label("L_wo_%d" % ks)
        vm.wait(("o", ks))
        a("v_and_b32 v6, 1, %s" % vr(OFR + 4 * ks))
        a("v_cmp_ne_u32 vcc, 0, v6")
        a("s_cbranch_vccnz L_oretry_%d" % ks)
        a.label("L_ogo_%d" % ks)
        for ct in range(4):
            d = AC + 4 * ct
            mfma16(d, WOF + (ks * 4 + ct) * 4, OFR + 4 * ks, None if ks == 0 else d)
    stamp(13)
    for ct in range(4):
        dsw("ds_write_b128", 5, AC + 4 * ct, 4, ct * 64)
    lg.drain()
    a("s_barrier")
    stamp(14)
    dsr("ds_read_b128", SR, 4, 3, 0, 0)
    dsr("ds_read_b128", SR + 8, 4, 3, SUM_SIZE, 0)
    dsr("ds_read_b128", SR + 4, 4, 3, 16, 1)
    dsr("ds_read_b128", SR + 12, 4, 3, SUM_SIZE + 16, 1)
    for h in range(2):
        lg.wait(h)
        for i in range(4 * h, 4 * h + 4, 2):
            a("v_pk_add_f32 %s, %s, %s" % (vr(SR + i, 2), vr(SR + i, 2), vr(SR + 8 + i, 2)))
        for i in range(4 * h, 4 * h + 4, 2):
            a("v_pk_fma_f32 %s, %s, %s, %s" % (vr(SR + i, 2), vr(SR + i, 2), vr(Z + i, 2), vr(X + i, 2)))
        for q in range(2 * h, 2 * h + 2):
            a("v_cvt_pk_bf16_f32 %s, %s, %s" % (vr(G + q), vr(SR + 2 * q), vr(SR + 2 * q + 1)))
    bstore(G, 4, 2, SOUT, "s78", 0, ("", "sc1", "nt", "sc0 sc1", "sc0 sc1 nt")[cfg.omod])
    a("s_or_b32 s72, s2, s60")
    a("s_cmp_lg_u32 s72, 0")
    a("s_cbranch_scc1 L_noepoch")
    set_flag(7, "0")
    a.label("L_noepoch")
    if cfg.stamps:
        a("s_waitcnt vmcnt(0)")
        stamp(15)
        if cfg.probe is not None:
            a("s_sub_u32 s72, %s, s4" % sr(sSTAMP + cfg.probe))
            if cfg.stamps == 2:
                a("s_lshr_b32 s72, s72, 3")
            else:
                a("s_lshl_b32 s72, s72, %d" % cfg.probesh)
            a("s_cmp_lg_u32 s2, %d" % cfg.probewg)
            a("s_cselect_b32 s72, 0, s72")
            a("s_cmp_lg_u32 s60, %d" % cfg.probew)
            a("s_cselect_b32 s72, 0, s72")
            a("s_memrealtime s[22:23]")
            a("s_waitcnt lgkmcnt(0)")
            a("s_mov_b32 s73, s22")
            a.label("L_probe")
            a("s_memrealtime s[22:23]")
            a("s_waitcnt lgkmcnt(0)")
            a("s_sub_u32 s22, s22, s73")
            a("s_cmp_lt_u32 s22, s72")
            a("s_cbranch_scc1 L_probe")
        a("s_lshl3_add_u32 s72, s2, s60")
        a("s_lshl_b32 s72, s72, 6")
        a("s_add_u32 s72, s72, %d" % WS_STAMP)
        for i in range(16):
            a("v_mov_b32 %s, %s" % (vr(80 + i), sr(sSTAMP + i)))
        a("s_mov_b64 exec, 1")
        for i in range(4):
            bstore(80 + 4 * i, 4, 1, SWS, "s72", 16 * i)
    a.label("L_end")
    a("s_endpgm")

    for ks in range(8):
        a.label("L_oretry_%d" % ks)
        a("s_add_u32 s73, s73, 1")
        a("s_cmp_ge_u32 s73, %d" % SPIN_MAX)
        a("s_cbranch_scc1 L_ogo_%d" % ks)
        a("s_waitcnt vmcnt(0)")
        oloads(ks)
        a("s_branch L_wo_%d" % ks)

    for tag, vt, lanes, soff in stubs:
        a.label("L_poll_" + tag)
        a("s_mov_b32 s73, 0")
        a.label("L_poll2_" + tag)
        a("s_sleep %d" % cfg.sleep)
        flag_load(vt, lanes, soff, None)
        a("s_add_u32 s73, s73, 1")
        a("s_waitcnt vmcnt(0)")
        a("s_cmp_ge_u32 s73, %d" % SPIN_MAX)
        a("s_cbranch_scc1 L_polled_" + tag)
        a("v_cmp_ne_u32 vcc, %s, %s" % (sr(sTAG), vr(vt)))
        a("s_cbranch_vccnz L_poll2_" + tag)
        a("s_branch L_polled_" + tag)

    a.label("L_slow")
    CN = SB + 16
    a("s_waitcnt vmcnt(0)")
    a("v_mov_b32 v13, 0xff800000")
    a("s_mov_b32 s82, s83")
    a("s_mov_b32 s81, 64")
    a.label("L_slow1")
    bload(KV, 4, 252, SWS, "s82", 0, "sc1")
    a("s_add_u32 s82, s82, 2048")
    a("s_waitcnt vmcnt(0)")
    mfma32(SB, KV, QR + 12, None)
    for i in range(0, 16, 2):
        a("v_max3_f32 v13, v13, %s, %s" % (vr(SB + i), vr(SB + i + 1)))
    a("s_sub_u32 s81, s81, 1")
    a("s_cmp_lg_u32 s81, 0")
    a("s_cbranch_scc1 L_slow1")
    a("v_mov_b32 v15, v13")
    a("v_permlane32_swap_b32 v15, v13")
    a("v_max_f32 v13, v15, v13")
    for i in range(16):
        a("v_sub_f32 %s, 0, v13" % vr(CN + i))
        a("v_mov_b32 %s, 0" % vr(OW + i))
    a("s_mov_b32 s82, s83")
    a("s_mov_b32 s81, 64")
    a.label("L_slow2")
    order[:] = []
    kvload(0)
    a("s_waitcnt vmcnt(0)")
    mfma32(SB, KV, QR + 12, CN)
    for i in range(16):
        a("v_exp_f32 %s, %s" % (vr(SB + i), vr(SB + i)))
    smf(OW, KV + 4, SB)
    smf(OW, KV + 8, SB + 8)
    a("s_sub_u32 s81, s81, 1")
    a("s_cmp_lg_u32 s81, 0")
    a("s_cbranch_scc1 L_slow2")
    a("s_branch L_norm")
    a.label("L_code_end")
    a("s_endpgm")

    added = a.fix()
    return a.text().replace('FSH', str(cfg.fsh)).replace('FROW', str(cfg.fsh + 5)), added


HEADER = """; Kernarg layout for this problem (88 bytes, ptrs only, base s[0:1]):
; @launch grid=(256,1,1) block=(512,1,1) lds=163840
.amdgcn_target "amdgcn-amd-amdhsa--gfx950"
.text
.globl {k}
.p2align 8
.type {k},@function
{k}:
"""

FOOTER = """.section .rodata,"a"
.p2align 6
.amdhsa_kernel {k}
  .amdhsa_next_free_vgpr 256
  .amdhsa_next_free_sgpr 102
  .amdhsa_accum_offset 256
  .amdhsa_group_segment_fixed_size 0
  .amdhsa_kernarg_size 88
  .amdhsa_user_sgpr_count 2
  .amdhsa_user_sgpr_kernarg_segment_ptr 1
  .amdhsa_system_sgpr_workgroup_id_x 1
.end_amdhsa_kernel
"""


def build(**kw):
    cfg = Cfg()
    for k, v in kw.items():
        setattr(cfg, k, v)
    body, added = gen(cfg)
    return HEADER.format(k=KERNEL) + body + FOOTER.format(k=KERNEL), added


if __name__ == "__main__":
    out = sys.argv[1] if len(sys.argv) > 1 else "cdna_kernels/%s.s" % NAME
    kw = {}
    for arg in sys.argv[2:]:
        k, v = arg.split("=")
        kw[k] = int(v)
    text, added = build(**kw)
    open(out, "w").write(text)
    print("wrote", out, "lines", text.count("\n"), "nops added", added)
```

```python
import sys
import os
sys.path.insert(0, os.path.dirname(os.path.abspath(__file__)))
from asmlib import Asm, vr, sr

NAME = "recurrent_scan__softmax_full_mha__dense_activation_squared_relu__prompt"
KERNEL = NAME + "_kernel"

WS_FLAGQ = 0x1200
WS_FLAGH = 0x60000
WS_STAMP = 0x10000
WS_QO = 0x100000
WS_KV = 0x300000
WS_HF = 0x700000
WS_END = WS_HF + 86 * 65536
EPOCH_INC = 0x9E3779B9
SPIN_MAX = 1 << 18

L_RING = 65536
L_OPART = 65536
L_W2 = L_OPART + 55296
W2_REGION = 10240
PART_STRIDE = 144
SUM_STRIDE = 272
SUM_SIZE = 64 * SUM_STRIDE
L_SUM = L_OPART

SX, SWQ, SWO, SW1, SB1, SW2, SB2, SOUT, SWS = 24, 28, 32, 36, 40, 44, 48, 52, 56
sW, sCG, sTB, sRW, sP, sQB, sTBF, sCB, sTAG, sCT0 = 60, 61, 62, 63, 64, 65, 66, 67, 68, 69
sVM = 70
sSTAMP = 4

QSCALE = 0x3EB8AA3B
NLOG2E = 0xBFB8AA3B
NS = 22


class Cfg:
    abl = 0
    bst = 0
    xslot = 0
    xrun = 2
    n1 = 8
    nA = 22
    gap = 1
    kvt = 0
    kvi = 4
    dmam = 2
    fpat = 2221
    pf1_at = 10
    pfc_at = 0
    pfc1 = 0
    w2_at = 10
    pfl = 9
    wol = 15
    won = 1
    stamps = 0
    force_slow = 0
    flag_chunk = 10
    lead = 2
    defer = 0
    look = 5
    pfq_at = 8
    bload = 15
    bjoin = 16
    btile = 2
    sleep = 6
    w0_at = 7
    w1_at = 10
    hpre = 2
    hbar = 0
    hnow = 2
    hgap = 2
    hoff = 0
    kv3 = 1
    fsh = 4
    pfe = 99
    l2q = 99
    l2w = 99
    pfn = 11
    alow = 0
    pfg = 1
    hflag = 11
    probe = None
    omod = 1
    oat = 4
    probewg = 100
    probew = 0
    probesh = 4
    hst = 0


def srd(s):
    return sr(s, 4)


class Queue:
    def __init__(self, a, name, maxn):
        self.a, self.name, self.maxn, self.items = a, name, maxn, []

    def push(self, tag):
        self.items.append(tag)

    def wait(self, *tags):
        last = max((i for i, t in enumerate(self.items) if t in tags), default=-1)
        if last < 0:
            return
        n = len(self.items) - 1 - last
        self.a("s_waitcnt %s(%d)" % (self.name, min(n, self.maxn)))
        self.items = self.items[last + 1:]

    def drain(self):
        self.a("s_waitcnt %s(0)" % self.name)
        self.items = []


def gen(cfg):
    a = Asm()
    nA = cfg.nA
    nB = 32 - nA
    vm = Queue(a, "vmcnt", 63)
    lg = Queue(a, "lgkmcnt", 15)

    def stamp(i, force=False):
        if cfg.bst and not force and i != 0:
            return
        if cfg.stamps and (cfg.probe is None or i in (0, cfg.probe)):
            a("%s s[22:23]" % ("s_memtime" if cfg.stamps == 2 else "s_memrealtime"))
            a("s_waitcnt lgkmcnt(0)")
            a("s_mov_b32 %s, s22" % sr(sSTAMP + i))

    def mfma32(d, x, y, c):
        a("v_mfma_f32_32x32x16_bf16 %s, %s, %s, %s" % (vr(d, 16), vr(x, 4), vr(y, 4), "0" if c is None else vr(c, 16)))

    def mfma16(d, x, y, c):
        a("v_mfma_f32_16x16x32_bf16 %s, %s, %s, %s" % (vr(d, 4), vr(x, 4), vr(y, 4), "0" if c is None else vr(c, 4)))

    def smf(d, x, y):
        a("v_smfmac_f32_32x32x32_bf16 %s, %s, %s, v3" % (vr(d, 16), vr(x, 4), vr(y, 8)))

    def bload(d, n, va, s, so, off=0, mod="", tag=None):
        op = {1: "dword", 2: "dwordx2", 4: "dwordx4"}[n]
        a("buffer_load_%s %s, %s, %s, %s offen offset:%d %s" % (op, vr(d, n), vr(va), srd(s), so, off, mod))
        vm.push(tag)

    def bstore(d, n, va, s, so, off=0, mod="", tag=None):
        op = {1: "dword", 2: "dwordx2", 4: "dwordx4"}[n]
        a("buffer_store_%s %s, %s, %s, %s offen offset:%d %s" % (op, vr(d, n), vr(va), srd(s), so, off, mod))
        vm.push(tag)

    def dma(va, s, so, off=0, tag=None):
        a("buffer_load_dwordx4 %s, %s, %s offen offset:%d lds" % (vr(va), srd(s), so, off))
        vm.push(tag)

    def dsr(op, d, n, va, off, tag=None):
        a("%s %s, %s offset:%d" % (op, vr(d, n), vr(va), off))
        lg.push(tag)

    def dsw(op, va, d, n, off, tag=None):
        a("%s %s, %s offset:%d" % (op, vr(va), vr(d, n), off))
        lg.push(tag)

    def trread(d, va, off, second, tag=None):
        dsr("ds_read_b64_tr_b16", d, 2, va, off, tag)
        dsr("ds_read_b64_tr_b16", d + 2, 2, va, off + second, tag)

    def set_flag(vt, soff):
        a("v_mov_b32 %s, %s" % (vr(vt), sr(sTAG)))
        a("s_mov_b64 exec, 1")
        bstore(vt, 1, 1, SWS, soff, 0, "sc0 sc1")
        a("s_mov_b64 exec, -1")

    stubs = []

    def check_flags(tag, vt, lanes, soff):
        a("v_cmp_ne_u32 vcc, %s, %s" % (sr(sTAG), vr(vt)))
        a("s_cbranch_vccnz L_poll_" + tag)
        a.label("L_polled_" + tag)
        stubs.append((tag, vt, lanes, soff))

    def flag_load(vt, shift, soff, tag):
        a("v_and_b32 %s, 31, v0" % vr(vt))
        a("v_lshlrev_b32 %s, %d, %s" % (vr(vt), shift, vr(vt)))
        bload(vt, 1, vt, SWS, soff, 0, "sc0 sc1", tag)

    sizes = {SX: 2048 * 1024, SWQ: 512 * 3072, SWS: WS_END, SW1: 512 * 2752, SB1: 2752,
             SWO: 512 * 1024, SW2: 1376 * 1024, SB2: 1024, SOUT: 2048 * 1024}
    RAW = 128

    def xloads():
        for j in range(8):
            bload(RAW + j * 4, 4, 14, SX, "s101", j * 128, "", ("x", j))

    stamp(0)
    a("""
    s_load_dwordx2 s[24:25], s[0:1], 0
    s_getpc_b64 s[72:73]
    L_pc:
    s_cmpk_ge_u32 s2, 256
    s_cbranch_scc1 L_end
    s_lshr_b32 s74, s2, 3
    s_lshl_b32 s74, s74, 11
    v_lshrrev_b32 v8, 5, v0
    v_lshl_add_u32 v8, v8, 7, s74
    v_min_u32 v8, L_code_end-L_pc, v8
    v_mov_b32 v9, 0
    v_lshl_add_u64 v[8:9], v[8:9], 0, s[72:73]
    global_load_dword v7, v[8:9], off
    s_lshl_b32 s72, s2, 4
    s_and_b32 s72, s72, 0x180
    v_add_u32 v4, s72, v0
    v_bfe_u32 v4, v4, 3, 6
    v_and_b32 v5, 7, v0
    v_lshlrev_b32 v14, 10, v4
    v_lshl_add_u32 v14, v5, 4, v14
    s_lshr_b32 s67, s2, 5
    s_and_b32 s73, s2, 6
    s_lshl2_add_u32 s62, s73, s67
    s_lshl_b32 s101, s62, 16
    s_mov_b32 s26, %d
    s_mov_b32 s27, 0x20000
    v_bfe_u32 v24, v4, 1, 3
    v_xor_b32 v24, v24, v5
    v_lshlrev_b32 v15, 7, v4
    v_lshl_add_u32 v15, v24, 4, v15
    v_readfirstlane_b32 s60, v0
    v_and_b32 v0, 63, v0
    v_mov_b32 v24, 0
    v_mov_b32 v25, 0
    s_lshr_b32 s60, s60, 6
    s_cmp_ge_u32 s60, 4
    s_waitcnt lgkmcnt(0)
    """ % sizes[SX])
    vm.push("pf")
    if cfg.bst == 3:
        stamp(1, True)
    xloads()
    if cfg.bst == 3:
        stamp(2, True)
    if cfg.stamps:
        for i in range(3 if cfg.bst == 3 else 1, 16):
            a("s_mov_b32 %s, s4" % sr(sSTAMP + i))
    a("s_mov_b32 s63, 1")
    a("s_cbranch_scc1 L_ln")
    a("s_mov_b32 s63, 0")

    def setup1():
        for s, off in ((SWQ, 8), (SWS, 80), (SW1, 32), (SB1, 40), (SWO, 16), (SW2, 48), (SB2, 56), (SOUT, 64)):
            a("s_load_dwordx2 %s, s[0:1], %d" % (sr(s, 2), off))
        a("""
        s_mov_b32 s30, %d
        s_mov_b32 s31, 0x20000
        s_bfe_u32 s72, s2, 0x20003
        s_and_b32 s73, s2, 1
        s_lshl2_add_u32 s61, s73, s72
        s_and_b32 s74, s60, 3
        s_lshl_b32 s72, s61, 7
        s_mul_i32 s85, s74, %d
        s_add_u32 s85, s85, s72
        s_mul_i32 s87, s74, 6144
        s_add_u32 s87, s87, %d
        v_lshrrev_b32 v4, 3, v0
        v_bfe_u32 v6, v4, 1, 1
        v_lshlrev_b32 v6, 2, v6
        v_xor_b32 v6, v6, v5
        v_lshlrev_b32 v6, 4, v6
        v_mul_u32_u24 v13, 3072, v4
        v_add_u32 v13, v13, v6
        s_waitcnt lgkmcnt(0)
        """ % (sizes[SWQ], 16 * 3072, L_RING))

    def setup2():
        a("s_load_dword %s, %s, 0" % (sr(sTAG), sr(SWS, 2)))
        for s in (SW1, SWS, SB1, SWO, SW2, SB2, SOUT):
            a("s_mov_b32 %s, %d" % (sr(s + 2), sizes[s]))
            a("s_mov_b32 %s, 0x20000" % sr(s + 3))
        a("""
        s_and_b32 s73, s60, 3
        s_lshl2_add_u32 s100, s2, s73
        s_mul_i32 s100, s100, 1536
        v_min_u32 v31, 11, v0
        v_lshlrev_b32 v31, 7, v31
        s_bfe_u32 s72, s2, 0x20003
        s_and_b32 s73, s2, 7
        s_lshl2_add_u32 s66, s73, s72
        s_and_b32 s72, s72, 1
        s_lshl1_add_u32 s64, s73, s72
        s_lshr_b32 s65, s2, 4
        s_mul_i32 s69, s61, 43
        s_lshr_b32 s69, s69, 3
        s_mov_b32 s70, 0xffff
        s_mov_b32 s71, 0xffff
        v_lshlrev_b32 v1, 4, v0
        v_and_b32 v2, 15, v0
        v_lshrrev_b32 v3, 5, v0
        v_lshl_add_u32 v2, v3, 4, v2
        v_lshlrev_b32 v2, 4, v2
        """)

    def setup3():
        a("; attention offsets: s82 = next K/V tile, s83 = head base, s92-s95 = Q tiles, s96-s99 = O partial slots")
        a("""
        s_and_b32 s74, s60, 1
        s_lshr_b32 s75, s60, 1
        s_lshl1_add_u32 s72, s64, s74
        s_lshl_b32 s83, s72, 17
        s_add_u32 s83, s83, %d
        s_and_b32 s73, s75, 1
        s_lshl_b32 s73, s73, 16
        s_add_u32 s82, s83, s73
        s_lshl_b32 s72, s65, 6
        s_add_u32 s72, s72, s64
        s_lshl1_add_u32 s72, s72, s74
        s_lshl_b32 s72, s72, 10
        s_add_u32 s72, s72, %d
        s_mul_i32 s84, s74, %d
        s_add_u32 s84, s84, %d
        """ % (WS_KV, WS_QO, 12 * 2304, L_OPART))
        for t in range(4):
            a("s_xor_b32 s73, s75, %d" % (t ^ 3))
            a("s_mul_i32 %s, s73, %d" % (sr(96 + t), 3 * 2304))
            a("s_lshl_b32 s73, s73, 15")
            a("s_add_u32 %s, s72, s73" % sr(92 + t))
            a("s_add_u32 %s, %s, s84" % (sr(96 + t), sr(96 + t)))

    setup1()
    setup2()
    setup3()
    a("""
    s_add_u32 s82, s82, %d
    v_and_b32 v8, 0x33, v0
    v_and_b32 v9, 4, v0
    v_lshl_or_b32 v8, v9, 1, v8
    v_and_b32 v9, 8, v0
    v_lshrrev_b32 v9, 1, v9
    v_or_b32 v8, v8, v9
    v_lshlrev_b32 v11, 4, v8
    v_bfe_u32 v9, v0, 4, 1
    v_mul_u32_u24 v12, 0x1fe00, v9
    v_add_u32 v12, v12, v2
    v_mul_u32_u24 v14, 0x1fa00, v9
    v_add_u32 v14, v14, v2
    v_lshl_add_u32 v4, v4, 10, v6
    v_bfe_u32 v10, v0, 2, 2
    v_lshlrev_b32 v5, 5, v9
    v_lshl_add_u32 v5, v10, 7, v5
    v_and_b32 v9, 3, v0
    v_lshl_add_u32 v5, v9, 3, v5
    v_lshrrev_b32 v10, 1, v10
    v_lshl_add_u32 v8, v3, 10, v5
    v_xor_b32 v9, s75, v10
    v_lshl_add_u32 v8, v9, 6, v8
    v_add_u32 v8, %d, v8
    v_add_u32 v9, %d, v8
    v_lshl_add_u32 v5, v3, 9, v5
    v_lshl_add_u32 v5, v10, 6, v5
    v_lshrrev_b32 v10, 1, v0
    v_xor_b32 v10, v10, v0
    v_and_b32 v10, 1, v10
    v_mul_u32_u24 v10, 24, v10
    v_xor_b32 v5, v5, v10
    s_mul_i32 s84, s60, %d
    s_add_u32 s84, s84, %d
    v_add_u32 v5, s84, v5
    v_xor_b32 v6, 64, v5
    v_and_b32 v10, 31, v0
    s_lshl_b32 s72, s74, 12
    v_bfe_u32 v16, v10, 1, 3
    v_xor_b32 v16, v16, v3
    v_lshlrev_b32 v16, 4, v16
    v_lshl_add_u32 v16, v10, 7, v16
    v_add_u32 v16, s72, v16
    v_xor_b32 v17, 32, v16
    v_xor_b32 v18, 64, v16
    v_xor_b32 v19, 0x60, v16
    v_lshlrev_b32 v10, 1, v10
    v_lshl_add_u32 v10, v3, 20, v10
    """ % (nB * 2048, L_RING, 2 * 24576, W2_REGION, L_W2))
    for seg in range(3):
        for q in range(1, 4):
            a("v_mov_b32 %s, 0" % vr(112 + 4 * seg + q))
    for q in range(4):
        a("v_mov_b32 %s, 0x3f803f80" % vr(124 + q))
    a("v_mov_b32 v3, 0xdddddddd")
    a("""
    s_lshl1_add_u32 s72, s62, s74
    s_lshl1_add_u32 s73, s61, s75
    s_lshl_b32 s76, s73, 7
    s_add_u32 s76, s76, s72
    s_lshl_b32 s77, s76, 11
    s_lshl4_add_u32 s76, s72, s73
    s_lshl_b32 s76, s76, 11
    s_add_u32 s76, s76, %d
    s_add_u32 s77, s77, %d
    s_add_u32 s81, s69, s75
    s_lshl_b32 s78, s81, 7
    s_add_u32 s78, s78, s72
    s_lshl_b32 s78, s78, 10
    s_add_u32 s78, s78, %d
    s_lshl_b32 s79, s61, 6
    s_add_u32 s79, s79, s62
    s_lshl_b32 s79, s79, 4
    s_add_u32 s79, s79, %d
    s_lshl_b32 s80, s62, 3
    s_add_u32 s80, s80, s61
    s_lshl2_add_u32 s80, s80, s60
    s_lshl_b32 s80, s80, FSH
    s_add_u32 s80, s80, %d
    s_mul_i32 s72, s61, 43
    s_add_u32 s72, s72, 43
    s_lshr_b32 s72, s72, 3
    s_add_u32 s73, s81, 4
    s_add_u32 s88, s78, %d
    s_cmp_lt_u32 s73, s72
    s_cselect_b32 s88, s88, 0x40000000
    s_lshl_b32 s81, s81, 6
    """ % (WS_QO, WS_KV, WS_HF, WS_FLAGQ, WS_FLAGH, 8 * 65536))

    def slot_of(c):
        if not cfg.xslot or c < cfg.xslot:
            return (c & 3) * 24576
        return -L_RING if c == cfg.xslot else ((c - 1) & 3) * 24576

    skip_bar = (10,) if cfg.xslot else ()

    def issue_chunk(c):
        for m in range(6):
            blk, seg = divmod(m, 3)
            a("s_add_u32 m0, s87, %d" % (slot_of(c) + seg * 2048 + blk * 1024))
            if c < 8:
                a("s_add_u32 s72, s85, %d" % ((c * 64 + blk * 8) * 3072 + seg * 1024))
                dma(13, SWQ, "s72", 0, ("w", c))
            else:
                a("s_add_u32 s72, s80, %d" % (((c - 8) * 64 + blk * 8) * 2752 + seg * 128))
                dma(57 if seg == 2 else 56, SW1, "s72", 0, ("w", c))

    def layernorm(acts):
        def act(p):
            if acts.get(p):
                assert p >= 7
                a("s_cmp_eq_u32 s63, 1")
                a("s_cbranch_scc1 L_ln_%d" % p)
                for f in acts[p]:
                    f()
                a.label("L_ln_%d" % p)
        a.label("L_ln")
        a("v_mov_b32 v30, 0x3f803f80")
        a("s_mov_b32 s89, 0xffff0000")
        for j in range(8):
            if cfg.bst == 3 and j == 0:
                stamp(3, True)
            vm.wait(("x", j))
            if cfg.bst == 3 and j in (0, 3, 7):
                stamp({0: 4, 3: 5, 7: 6}[j], True)
            act(j)
            for q in range(4):
                x = RAW + j * 4 + q
                a("v_dot2c_f32_bf16 v24, v30, %s" % vr(x))
                a("v_dot2c_f32_bf16 v25, %s, %s" % (vr(x), vr(x)))
        act(8)
        stamp(1)
        for ctl in ("quad_perm:[1,0,3,2]", "quad_perm:[2,3,0,1]", "row_half_mirror"):
            for r in (24, 25):
                a("v_add_f32_dpp %s, %s, %s %s row_mask:0xf bank_mask:0xf" % (vr(r), vr(r), vr(r), ctl))
        a("""
        v_mul_f32 v24, 0x3b000000, v24
        v_mul_f32 v25, 0x3b000000, v25
        v_fma_f32 v25, -v24, v24, v25
        v_max_f32 v25, 0, v25
        v_cvt_pk_bf16_f32 v24, v24, v25
        v_and_b32 v25, s89, v24
        v_add_f32 v25, 0x3727c5ac, v25
        v_cvt_pk_bf16_f32 v25, v25, v25
        v_and_b32 v25, s89, v25
        v_sqrt_f32 v25, v25
        v_lshlrev_b32 v24, 16, v24
        v_cvt_pk_bf16_f32 v25, v25, v25
        v_and_b32 v25, s89, v25
        v_rcp_f32 v26, v25
        v_mul_f32_e64 v28, -v24, v26
        """)
        for j in range(8):
            x = RAW + j * 4
            t = 192 + (j & 1) * 8
            for q in range(4):
                a("v_lshlrev_b32 %s, 16, %s" % (vr(t + 2 * q), vr(x + q)))
                a("v_and_b32 %s, s89, %s" % (vr(t + 2 * q + 1), vr(x + q)))
            for q in range(4):
                a("v_pk_fma_f32 %s, %s, v[26:27], v[28:29] op_sel_hi:[1,0,0]" % (vr(t + 2 * q, 2), vr(t + 2 * q, 2)))
            for q in range(4):
                a("v_cvt_pk_bf16_f32 %s, %s, %s" % (vr(x + q), vr(t + 2 * q), vr(t + 2 * q + 1)))
            if not cfg.defer:
                a("ds_write_b128 v15, %s offset:%d" % (vr(x, 4), j * 8192))
        if cfg.bst == 3:
            stamp(7, True)
        act(9)
        if cfg.defer:
            for j in range(8):
                a("ds_write_b128 v15, %s offset:%d" % (vr(RAW + j * 4, 4), j * 8192))
        act(10)
        stamp(2)
        if cfg.bst == 3:
            stamp(8, True)

    def pfq():
        a("; memory-side prefetch of Wqkv")
        bload(7, 1, 31, SWQ, "s100", 0, "", "pf")

    def pfl2(which):
        a("; the die's workgroups pull their half of the weight columns into L2 together, four rows per wave")
        stride = 3072 if which == SWQ else 2752
        a("s_lshr_b32 s72, s2, 3")
        a("s_and_b32 s73, s60, 3")
        a("s_lshl2_add_u32 s72, s72, s73")
        a("s_mul_i32 s72, s72, %d" % (4 * stride))
        a("s_and_b32 s73, s2, 1")
        a("s_mul_i32 s73, s73, %d" % (512 if which == SWQ else 1344))
        a("s_add_u32 s72, s72, s73")
        a("v_lshrrev_b32 v20, 4, v0")
        a("v_mul_u32_u24 v20, %d, v20" % stride)
        if which == SWQ:
            a("v_bfe_u32 v21, v0, 2, 2")
            a("v_min_u32 v21, 2, v21")
            a("v_lshl_add_u32 v20, v21, 10, v20")
            a("v_and_b32 v21, 3, v0")
            a("v_lshl_add_u32 v20, v21, 7, v20")
        else:
            a("v_and_b32 v21, 15, v0")
            a("v_lshlrev_b32 v21, 7, v21")
            a("v_min_u32 v21, 1404, v21")
            a("v_add_u32 v20, v20, v21")
        bload(22, 1, 20, which, "s72", 0, "", "pf")

    def pfc(which):
        a("; lines at offset 384 of every KiB stream slowly on a miss: the die's workgroups pull them into L2 together")
        a("s_lshr_b32 s72, s2, 3")
        a("s_lshl2_add_u32 s72, s72, s60")
        a("s_mul_i32 s72, s72, 12288")
        a("v_lshlrev_b32 v20, 3, v31")
        if which == SWQ:
            a("s_bitcmp1_b32 s2, 0")
            a("s_cselect_b32 s72, 0x40000000, s72")
        bload(7, 1, 20, which, "s72", 384, "", "pf")

    def pf1():
        a("; memory-side prefetch of W1")
        bload(7 if cfg.pf1_at <= 10 else 32, 1, 31, SW1, "s100", 0, "", "pf")

    acts = {}
    if cfg.pfc_at == 0:
        save = list(vm.items)
        pfc(SWQ)
        vm.items = save
    elif cfg.pfc_at <= 10:
        acts.setdefault(cfg.pfc_at, []).append(lambda: pfc(SWQ))
    if cfg.pfq_at == 0:
        save = list(vm.items)
        pfq()
        vm.items = save
    elif cfg.pfq_at <= 10:
        acts.setdefault(cfg.pfq_at, []).append(pfq)
    if cfg.l2q == 7:
        acts.setdefault(7, []).append(lambda: pfl2(SWQ))
    for c, p in enumerate((cfg.w0_at, cfg.w1_at, cfg.w2_at, 10)[:cfg.lead + 1]):
        acts.setdefault(p, []).append(lambda c=c: issue_chunk(c))
    if 8 <= cfg.l2q <= 10:
        acts.setdefault(cfg.l2q, []).insert(0, lambda: pfl2(SWQ))
    if cfg.pf1_at <= 10:
        acts.setdefault(cfg.pf1_at, []).append(pf1)
    if cfg.pfc1:
        acts.setdefault(10, []).append(lambda: pfc(SW1))
    layernorm(acts)
    a("s_cmp_eq_u32 s63, 1")
    a("s_cbranch_scc1 L_loader")

    QR, SB, WF, FA, OA, KV, HB = 8, 24, 56, 64, 128, 192, 228
    NKV = 3

    def att_init_ops():
        ops = ["v_mov_b32 %s, 0" % vr(OA + 16 * t + i) for t in range(4) for i in range(9)]
        ops2 = ["v_and_b32 v7, 27, v0", "v_cmp_eq_u32 vcc, 16, v7", "v_mov_b32 v7, 0x3f803f80", "v_cndmask_b32 v7, 0, v7, vcc"]
        ops2 += ["v_mov_b32 %s, v7" % vr(KV + 12 * b + 4 + q) for b in range(NKV) for q in range(8)]
        return ops, ops2

    def kvload(j):
        b = j % NKV
        bload(KV + 12 * b, 4, 252, SWS, "s82", 0, "sc1", ("kv", j))
        a("s_mov_b64 exec, %s" % sr(sVM, 2))
        bload(KV + 12 * b + 4, 4, 253, SWS, "s82", 0, "sc1", ("kv", j))
        bload(KV + 12 * b + 8, 4, 254, SWS, "s82", 0, "sc1", ("kv", j))
        a("s_mov_b64 exec, -1")
        a("s_add_u32 s82, s82, 2048")

    def att_loads(role):
        a("s_and_b32 s72, s60, 1")
        a("s_lshl_b32 s73, s72, 10")
        a("v_add_u32 v252, s73, v1")
        a("s_lshr_b32 s73, 0x400, s72")
        a("v_add_u32 v253, s73, v2")
        a("s_mul_i32 s73, s72, 0x600")
        a("s_sub_u32 s73, 0x600, s73")
        a("v_add_u32 v254, s73, v2")
        bload(QR, 4, 1, SWS, "s92", 0, "sc1", "q")
        kvload(0)
        for t in range(1, 4):
            bload(QR + 4 * t, 4, 1, SWS, sr(92 + t), 0, "sc1", "q")
        kvload(1)
        if cfg.kv3 and role == "a":
            kvload(2)

    def dump_addr():
        a("v_lshlrev_b32 v8, 2, v0")
        a("v_add_u32 v9, s99, v1")
        a("v_add_u32 v10, s99, v8")
        a("v_bfe_u32 v11, v0, 4, 1")
        a("v_lshl_add_u32 v11, v11, 10, v2")

    def dump(t):
        a("v_add_u32 v12, %s, v1" % sr(96 + t))
        a("v_add_u32 v13, %s, v8" % sr(96 + t))
        dsw("ds_write_b128", 12, OA + 16 * t, 4, t * 2304)
        dsw("ds_write_b128", 12, OA + 16 * t + 4, 4, t * 2304 + 1024)
        dsw("ds_write_b32", 13, OA + 16 * t + 8, 1, t * 2304 + 2048)

    deferred = []
    cfg_gap = {0: range(16), 1: (1, 10), 2: (0, 9), 3: (4, 10), 4: (1,), 5: (4,), 6: (15, 9)}[cfg.gap]

    def att_run(n, hooks):
        hooks.setdefault((n - 1, 0, 11), []).append(dump_addr)
        for t in range(3):
            hooks.setdefault((n - 1, t + 1, 12), []).append(lambda t=t: dump(t))
        vm.wait("q", ("kv", 0))
        mfma32(SB, KV, QR, None)
        for j in range(n):
            b = j % NKV
            for t in range(4):
                cur, oth = SB + 16 * (t & 1), SB + 16 * ((t + 1) & 1)
                for i in range(16):
                    a("v_exp_f32 %s, %s" % (vr(cur + i), vr(cur + i)))
                    if i in cfg_gap:
                        while deferred:
                            deferred.pop(0)()
                    if t == cfg.kvt and i == cfg.kvi and j + NKV - 1 < n and not (cfg.abl & 32 and j > 0) and not (cfg.kv3 and j == 0):
                        kvload(j + NKV - 1)
                    if i == 1 and (j, t) != (0, 0):
                        smf(OA + 16 * ((t + 3) & 3), KV + 12 * (b if t else (j - 1) % NKV) + 8, oth + 8)
                    if i == 4:
                        if t < 3:
                            mfma32(oth, KV + 12 * b, QR + 4 * (t + 1), None)
                        elif j + 1 < n:
                            vm.wait(("kv", j + 1))
                            mfma32(oth, KV + 12 * ((j + 1) % NKV), QR, None)
                    if i == 10:
                        smf(OA + 16 * t, KV + 12 * b + 4, cur)
                    for h in hooks.get((j, t, i), ()):
                        h()
        smf(OA + 48, KV + 12 * ((n - 1) % NKV) + 8, SB + 16 + 8)

    ACC = (24, 40, 56)
    WB, NBUF, LA = 72, 6, cfg.look
    XF, PK, XA = 128, 96, 16
    init1, init2 = att_init_ops()

    def item(g):
        return divmod(g % 96, 3)

    def reads(g):
        ks, sel = item(g)
        c, m = divmod(g, 12)
        so = slot_of(c)
        base, so = (XA, 0) if so < 0 else (8 + so // 49152, so % 49152)
        if g < 96 and sel == 0:
            dsr("ds_read_b128", XF + 4 * ks, 4, XA + (ks & 3), (ks >> 2) * 8192, g)
        trread(WB + 4 * (g % NBUF), base, so + m * 2048, 512, g)

    def pack(acc, pk):
        return ["v_cvt_pk_bf16_f32 %s, %s, %s" % (vr(pk + q), vr(acc + 2 * q), vr(acc + 2 * q + 1)) for q in range(8)]

    def st2(pk, va, base, delta, tag, imm=(0, 0), vb=None):
        def first():
            bstore(pk, 4, va, SWS, base, imm[0], "" if cfg.abl & 64 else "sc1", tag)

        def second():
            if delta:
                a("s_add_u32 s72, %s, %d" % (base, delta))
            bstore(pk + 4, 4, vb or va, SWS, "s72" if delta else base, imm[1], "" if cfg.abl & 64 else "sc1", tag)
        return [first, second]

    def relu2(acc):
        return (["v_max_f32 %s, 0, %s" % (vr(acc + i), vr(acc + i)) for i in range(16)]
                + ["v_mul_f32 %s, %s, %s" % (vr(acc + i), vr(acc + i), vr(acc + i)) for i in range(16)])

    def bias(seg):
        return lambda: (vm.wait("b1"), mfma32(ACC[seg], 112 + 4 * seg, 124, None))

    tagq = ["v_or_b32 %s, 1, %s" % (vr(PK + 4 * q), vr(PK + 4 * q)) for q in range(2)]
    qkv_epi = (["v_mul_f32 %s, 0x%x, %s" % (vr(ACC[0] + i), QSCALE, vr(ACC[0] + i)) for i in range(16)]
               + pack(ACC[0], PK) + tagq + [bias(0)] + st2(PK, 1, "s76", 0, "st", (0, 1024))
               + pack(ACC[1], PK + 8) + [bias(1)] + st2(PK + 8, 11, "s77", 0x20400, "st")
               + pack(ACC[2], PK) + [bias(2)] + st2(PK, 12, "s77", 0, "st", (1024, 1536), 14))
    sched = {100: ["v_subrev_u32 %s, %d, v8" % (vr(XA), L_RING)], 144: init1, 180: init2}
    shadow = []

    def run_shadow(budget):
        while shadow and budget > 0:
            op = shadow.pop(0)
            if isinstance(op, str):
                a(op)
                budget -= 1
            else:
                op()
                budget -= 3

    a("""
    s_lshl_b32 s85, s60, 14
    s_lshl_b32 s72, s67, 7
    s_add_u32 s85, s85, s72
    s_lshl_b32 s86, s60, 6
    s_lshl1_add_u32 s86, s66, s86
    s_lshl_b32 s86, s86, 10
    s_add_u32 s86, s86, %d
    s_lshl_b32 s87, s66, FROW
    s_add_u32 s87, s87, %d
    """ % (WS_HF, WS_FLAGH))
    vm.wait(("w", 0))
    a("s_waitcnt lgkmcnt(0)")
    a("s_add_u32 %s, %s, 0x%x" % (sr(sTAG), sr(sTAG), EPOCH_INC))
    if cfg.bst == 3:
        stamp(9, True)
    a("s_barrier")
    stamp(3)
    if cfg.bst == 3:
        stamp(10, True)
    for g in range(LA):
        reads(g)
    for g in range(192):
        ks, sel = item(g)
        if g == 96:
            stamp(4)
            shadow.extend(qkv_epi)
            run_shadow(1000)
            stamp(5)
        lg.wait(g)
        x, w = XF + 4 * ks, WB + 4 * (g % NBUF)
        c = None if (g < 96 and ks == 0) else ACC[sel]
        if g < 96 and sel == 2:
            mfma32(ACC[sel], x, w, c)
        else:
            mfma32(ACC[sel], w, x, c)
        n = g + LA
        if n < 192:
            if n % 12 == 0 and n // 12 not in skip_bar:
                vm.wait(("w", n // 12))
                if n // 12 == cfg.flag_chunk:
                    vm.wait("st")
                a("s_barrier")
                if n // 12 == cfg.flag_chunk:
                    a("s_cmp_lg_u32 s60, 0")
                    a("s_cselect_b32 s79, 0x40000000, s79")
                    set_flag(7, "s79")
                    stamp(6)
            reads(n)
        if g == 40:
            for seg in range(3):
                a("buffer_load_ushort %s, v10, %s, s81 offen offset:%d" % (vr(112 + 4 * seg), srd(SB1), seg * 128))
                vm.push("b1")
        shadow.extend(sched.get(g, ()))
        run_shadow(3)
    run_shadow(1000)
    stamp(7)
    hmath, hst = [], []
    for seg in range(3):
        pk = PK + 8 * seg
        hmath.append(relu2(ACC[seg]) + pack(ACC[seg], pk))
        hst.append((["s_add_u32 s78, s78, 0x40000"] if seg == 1 else []) + st2(pk, 1, "s78" if seg < 2 else "s88", 0x10000, "hst"))
    for seg in range(cfg.hbar):
        shadow.extend(hmath[seg])
    run_shadow(1000)
    a("s_barrier")
    stamp(8)
    if cfg.bst == 4:
        stamp(1, True)
    a("s_setprio 2")
    for seg in range(cfg.hbar, cfg.hpre):
        shadow.extend(hmath[seg])
    run_shadow(1000)
    att_loads("a")
    hlist = [[hst[0][0]], [hst[0][1]], hst[1][:2], [hst[1][2]], [hst[2][0]], [hst[2][1]]]
    for seg in range(3):
        shadow.extend(hmath[seg] if seg >= max(cfg.hpre, cfg.hbar) else [])
        for n in (2 * seg, 2 * seg + 1):
            if n < cfg.hnow:
                shadow.extend(hlist[n])
    run_shadow(1000)
    stamp(9)


    def w2dma(i):
        if cfg.abl & 1:
            return
        a("s_add_u32 m0, s84, %d" % ((i & 3) * 2048))
        a("s_add_u32 s72, s85, %d" % (i * 65536))
        dma(4, SW2, "s72", 0, ("w2", i))
        a("s_add_u32 s72, s72, 7168")
        dma(4, SW2, "s72", 1024, ("w2", i))

    hreg = lambda i, tt: HB + 8 * (i % 3) + 4 * tt

    def hload(i):
        if cfg.abl & 1:
            return
        if i > 0:
            a("s_add_u32 s86, s86, 0x40000")
        for tt in range(2):
            bload(hreg(i, tt), 4, 1, SWS, "s86", tt * 1024, "sc1", ("h", i))

    def w2read(i, nt):
        if cfg.abl & 2:
            return
        vm.wait(("w2", i))
        trread(WF + 4 * nt, 5 + nt, (i & 3) * 2048, 1024, ("wf", i, nt))

    def fslot(f):
        i, m = divmod(f, 4)
        nt, tt = ((0, 0), (0, 1), (1, 1), (1, 0))[m]
        vm.wait(("h", i))
        lg.wait(("wf", i, nt))
        d = FA + 16 * (2 * tt + nt)
        if not cfg.abl & 4:
            mfma32(d, WF + 4 * nt, hreg(i, tt), None if i == 0 else d)
        if m == 1 and i + 1 < NS:
            deferred.append(lambda: w2read(i + 1, 0))
        if m == cfg.dmam and i + 4 < NS:
            deferred.append(lambda: w2dma(i + 4))
        if m == 3:
            if i + 1 < NS:
                deferred.append(lambda: w2read(i + 1, 1))
            if i + 3 < NS:
                deferred.append(lambda: hload(i + 3))

    def park(tt, nt):
        d = FA + 16 * (2 * tt + nt)
        for q in range(8):
            a("v_cvt_pk_bf16_f32 %s, %s, %s" % (vr(d + q), vr(d + 2 * q), vr(d + 2 * q + 1)))
        for q in range(2):
            dsw("ds_write_b128", 4, d + 4 * q, 4, tt * 32 * PART_STRIDE + nt * 64 + q * 32)

    def park_addr():
        a("v_and_b32 v4, 31, v0")
        a("v_mul_u32_u24 v4, %d, v4" % PART_STRIDE)
        a("v_lshrrev_b32 v5, 5, v0")
        a("v_lshl_add_u32 v4, v5, 4, v4")
        a("v_add_u32 v4, s84, v4")

    hooks = {}

    def hook(j, t, i, f):
        hooks.setdefault((j, t, i), []).append(f)

    n1 = cfg.n1
    for n in range(cfg.hnow, 6):
        tl = (n - cfg.hnow) * cfg.hgap + cfg.hoff
        hook(tl >> 2, tl & 3, 9, lambda n=n: (shadow.extend(hlist[n]), run_shadow(1000)))
    assert (5 - cfg.hnow) * cfg.hgap + cfg.hoff <= cfg.hflag < 4 * (n1 - 2)
    hook(cfg.hflag >> 2, cfg.hflag & 3, 12, lambda: (vm.wait("hst"), set_flag(7, "s80"), stamp(1) if cfg.hst else None))
    hook(n1 - 2, 0, 8, lambda: flag_load(7, cfg.fsh, "s87", "hf"))
    hook(n1 - 2, 3, 12, lambda: (vm.wait("hf"), stamp(2) if cfg.hst else None, check_flags("h", 7, cfg.fsh, "s87"), stamp(3) if cfg.hst else None))
    for i in range(4):
        hook(n1 - 3 + (i >> 1), 1 + (i & 1), 7, lambda i=i: w2dma(i))
    for i in range(3):
        hook(n1 - 1, i, 7, lambda i=i: hload(i))
    hook(n1 - 1, 3, 7, lambda: (w2read(0, 0), w2read(0, 1)))
    pat = [int(ch) for ch in str(cfg.fpat)]
    slots = [(j, t, pos) for j in range(n1, nA) for t in range(4) for pos in ((13,), (7, 13))[pat[t] - 1]]
    for f in range(4 * NS):
        hook(*slots[f], lambda f=f: fslot(f))
    tl = slots[4 * NS - 1][0] * 4 + slots[4 * NS - 1][1] + 1
    assert tl + 3 < 4 * nA
    hook(tl >> 2, tl & 3, 6, park_addr)
    for n, (nt, tt) in enumerate(((0, 0), (0, 1), (1, 1), (1, 0))):
        hook((tl + n) >> 2, (tl + n) & 3, 7, lambda tt=tt, nt=nt: park(tt, nt))
    if cfg.hst:
        for n in range(4):
            hook(n1 + 4 * n, 0, 1, lambda n=n: stamp(4 + n))
    if cfg.alow:
        tl = 4 * nA - cfg.alow
        hook(tl >> 2, tl & 3, 0, lambda: a("s_setprio 0"))
    if cfg.bst == 4:
        for n, j in enumerate(range(0, nA, 2)):
            hook(j, 0, 0, lambda n=n: stamp(2 + n, True))
    att_run(nA, hooks)
    vm.drain()
    a("s_branch L_att_done")

    a.label("L_loader")
    vm.items = []
    lg.items = []

    def b_setup():
        a("; waves 4-7: W1 DMA offsets v56/v57 (sixth tile out of range where the next group owns it), wo DMA offset v4, flagQ row s79")
        a("""
        v_mul_u32_u24 v56, 2752, v4
        v_add_u32 v56, v56, v6
        s_lshr_b32 s72, 0x5b, s61
        s_and_b32 s72, s72, 1
        s_lshl_b32 s72, s72, 23
        v_and_b32 v57, 64, v6
        v_mad_u32_u24 v57, v57, s72, v56
        v_bfe_u32 v6, v4, 1, 2
        v_lshlrev_b32 v6, 1, v6
        v_xor_b32 v6, v6, v5
        v_lshlrev_b32 v6, 4, v6
        v_lshl_add_u32 v4, v4, 10, v6
        v_min_u32 v5, %d, v0
        v_lshlrev_b32 v5, 7, v5
        s_lshr_b32 s79, s64, 1
        s_lshl_b32 s79, s79, 10
        s_add_u32 s79, s79, %d
        s_and_b32 s73, s60, 3
        s_lshl_b32 s72, s69, 6
        s_mul_i32 s80, s73, %d
        s_add_u32 s80, s80, s72
        """ % (cfg.pfn - 1, WS_FLAGQ, 16 * 2752))

        a("v_mov_b32 v3, 0xdddddddd")

    issued = cfg.lead
    setup1()
    state = {"issued": issued}

    def b_step(c):
        if c in skip_bar:
            return
        vm.wait(("w", c + 1 if c + 1 in skip_bar else c))
        if cfg.bst == 2:
            stamp(c, True)
        if cfg.bst == 3 and c == 0:
            stamp(9, True)
        a("s_barrier")
        if cfg.bst == 1:
            stamp(c, True)
        if c in (0, 8, 12, 15):
            stamp({0: 3, 8: 4, 12: 5, 15: 6}[c])
        if c == cfg.bload - 1:
            flag_load(7, 4, "s79", "qf")
        if c == cfg.bload:
            vm.wait("qf")
            check_flags("q", 7, 4, "s79")
            stamp(7)
            att_loads("b")
        lim = c + 2
        if cfg.xslot == 12 and c == 9:
            lim = 12
        if cfg.xslot == 11 and c in (8, 9):
            lim = c + 3
        if cfg.xslot and c >= 11:
            lim = c + cfg.xrun
        while state["issued"] < min(15, max(3, lim)):
            state["issued"] += 1
            issue_chunk(state["issued"])
        if c == 1:
            setup2()
        if cfg.pf1_at == 12 + c:
            assert c >= 1
            pf1()
        if c == 2:
            setup3()
        if c == 3:
            b_setup()
        if c == cfg.l2w:
            pfl2(SW1)
        if c == cfg.pfe:
            a("; memory-side prefetch of w2 and wo")
            bload(32, 1, 31, SW2, "s100", 0, "", "pf")
            bload(32, 1, 31, SWO, "s100", 0, "", "pf")
        if c == 4:
            for op in init1:
                a(op)
        if c == 5:
            for op in init2:
                a(op)
        if c == 7:
            a("s_waitcnt lgkmcnt(0)")
            a("s_add_u32 %s, %s, 0x%x" % (sr(sTAG), sr(sTAG), EPOCH_INC))

    def b_att():
        a("s_barrier")
        stamp(8)
        a("s_setprio 1")
        if cfg.kv3:
            kvload(2)

    bhooks = {}
    for c in range(17):
        f = (lambda c=c: b_step(c)) if c < 16 else b_att
        if c <= cfg.bjoin:
            f()
        else:
            tl = (c - cfg.bjoin) * cfg.btile - 1
            bhooks[(tl >> 2, tl & 3, 13)] = [f]

    def wo_dma(lo, hi):
        if cfg.abl & 8:
            return
        if lo == 0:
            a("; wo tile -> LDS [0, 64K), a few rows per score tile")
            a("s_and_b32 s78, s60, 3")
            a("s_lshl_b32 s76, s78, 17")
            a("s_lshl_b32 s73, s67, 7")
            a("s_add_u32 s76, s76, s73")
            a("s_lshl_b32 s78, s78, 14")
        for i in range(lo, hi):
            a("s_add_u32 m0, s78, %d" % (i * 1024))
            a("s_add_u32 s73, s76, %d" % (i * 8192))
            dma(4, SWO, "s73", 0, "wo")

    nl = cfg.pfn
    batches = [(SW2, i) for i in range(-(-11 // nl))] + [(SWO, i) for i in range(-(-4 // nl))]

    def pf_late(n):
        if cfg.abl & 16:
            return
        if n == 0:
            a("; memory-side prefetch of w2 (in k order) and wo, a few lines per wave at a time")
            a("s_and_b32 s90, s60, 3")
            a("s_lshl2_add_u32 s90, s2, s90")
            a("s_mul_i32 s90, s90, %d" % (nl * 128))
        a("s_add_u32 s72, s90, %d" % (batches[n][1] * nl * 131072))
        bload(7, 1, 5, batches[n][0], "s72", 0, "", "pf")

    for n in range(len(batches) if cfg.pfe > 90 else 0):
        tl = cfg.pfl + n * cfg.pfg
        bhooks[(tl >> 2, tl & 3, 7)] = [lambda n=n: pf_late(n)]
    for n, lo in enumerate(range(0, 16, cfg.won)):
        bhooks[((cfg.wol + n) >> 2, (cfg.wol + n) & 3, 8)] = [lambda lo=lo: wo_dma(lo, lo + cfg.won)]
    if cfg.bst == 4:
        for j in range(nB):
            bhooks.setdefault((j, 0, 0), []).append(lambda j=j: stamp(2 + j, True))
    att_run(nB, bhooks)
    vm.drain()

    OW = OA + 48
    WOF, OFR, AC, G, Z, X, SR = 128, 24, 8, 64, 96, 104, 112
    a.label("L_att_done")
    stamp(10)
    if cfg.bst == 4:
        stamp(14, True)
    a("s_setprio 0")
    a("s_and_b32 s73, s60, 1")
    a("s_lshl_b32 s73, s73, 9")
    a("s_sub_u32 s76, s95, s73")
    a("""
    s_and_b32 s74, s60, 3
    s_lshr_b32 s75, s60, 2
    v_lshrrev_b32 v14, 3, v0
    v_and_b32 v7, 7, v0
    v_lshlrev_b32 v7, 4, v7
    v_lshl_add_u32 v14, v14, 10, v7
    s_lshl3_add_u32 s78, s66, s60
    s_lshl_b32 s78, s78, 13
    s_lshl_b32 s79, s67, 7
    s_add_u32 s78, s78, s79
    """)
    bload(60, 4, 7, SB2, "s79", 0, "", "xb")
    bload(56, 4, 14, SX, "s78", 0, "", "xb")
    lg.drain()
    a("s_barrier")
    for src in range(3):
        d = SB + 10 * src
        dsr("ds_read_b128", d, 4, 9, src * 2304, src)
        dsr("ds_read_b128", d + 4, 4, 9, src * 2304 + 1024, src)
        dsr("ds_read_b32", d + 8, 1, 10, src * 2304 + 2048, src)
    for src in range(3):
        lg.wait(src)
        for i in range(0, 8, 2):
            a("v_pk_add_f32 %s, %s, %s" % (vr(OW + i, 2), vr(OW + i, 2), vr(SB + 10 * src + i, 2)))
        a("v_add_f32 %s, %s, %s" % (vr(OW + 8), vr(OW + 8), vr(SB + 10 * src + 8)))
    a("v_pk_mul_f32 v[12:13], %s, 0 op_sel_hi:[1,0]" % vr(OW, 2))
    for i in range(2, 8, 2):
        a("v_pk_fma_f32 v[12:13], %s, 0, v[12:13] op_sel_hi:[1,0,1]" % vr(OW + i, 2))
    a("""
    v_add_f32 v12, v12, %s
    v_add_f32 v12, v12, v13
    v_cmp_nle_f32 vcc, 0x30800000, v12
    s_mov_b64 s[72:73], vcc
    v_cmp_nge_f32 vcc, 0x5d800000, v12
    s_or_b64 s[72:73], s[72:73], vcc
    """ % vr(OW + 8))
    a("s_branch L_slow" if cfg.force_slow else "s_cbranch_scc1 L_slow")
    a.label("L_norm")
    a("v_rcp_f32 v12, %s" % vr(OW + 8))
    for i in range(0, 8, 2):
        a("v_pk_mul_f32 %s, %s, v[12:13] op_sel_hi:[1,0]" % (vr(OW + i, 2), vr(OW + i, 2)))
    for q in range(4):
        a("v_cvt_pk_bf16_f32 %s, %s, %s" % (vr(16 + q), vr(OW + 2 * q), vr(OW + 2 * q + 1)))
    a("v_and_b32 v16, -2, v16")
    bstore(16, 4, 11, SWS, "s76", 0, "sc1", "ost")
    stamp(11)
    a("v_mov_b32 v2, v14")
    a("v_lshrrev_b32 v3, 3, v0")
    a("""
    v_mul_u32_u24 v4, %d, v3
    s_mul_i32 s72, s60, %d
    s_add_u32 s72, s72, %d
    v_add3_u32 v4, v4, v7, s72
    """ % (PART_STRIDE, 8 * PART_STRIDE, L_W2))
    for j in range(4):
        dsr("ds_read_b128", G + 4 * j, 4, 4, j * W2_REGION, "g")
    a("""
    v_bfe_u32 v4, v0, 2, 2
    v_bfe_u32 v5, v0, 4, 1
    v_lshl_add_u32 v4, v5, 2, v4
    v_lshrrev_b32 v5, 1, v4
    v_lshlrev_b32 v92, 7, v4
    v_lshl_add_u32 v92, v5, 5, v92
    v_lshrrev_b32 v6, 5, v0
    v_lshl_add_u32 v92, v6, 11, v92
    v_and_b32 v4, 3, v0
    v_lshl_add_u32 v92, v4, 3, v92
    s_lshl_b32 s72, s75, 15
    v_add_u32 v92, s72, v92
    v_xor_b32 v93, 32, v92
    v_xor_b32 v94, 64, v92
    v_xor_b32 v95, 0x60, v92
    s_barrier
    """)

    def oloads(first=0):
        for ks in range(first, 8):
            bload(OFR + 4 * ks, 4, 1, SWS, ("s76", "s77", "s80", "s81")[ks >> 1], (ks & 1) * 2048, "sc1", ("o", ks))

    fill = ("""
    s_lshl2_add_u32 s72, s66, s74
    s_lshr_b32 s76, s72, 1
    s_lshl1_add_u32 s76, s76, s75
    s_lshl_b32 s76, s76, 14
    s_and_b32 s72, s72, 1
    s_lshl_b32 s72, s72, 10
    s_add_u32 s76, s76, s72
    s_add_u32 s76, s76, %d
    s_add_u32 s77, s76, 0x1000
    s_add_u32 s80, s76, 0x2000
    s_add_u32 s81, s76, 0x3000
    v_mul_u32_u24 v3, %d, v3
    v_lshl_add_u32 v3, v7, 1, v3
    s_mul_i32 s72, s60, %d
    s_add_u32 s72, s72, %d
    v_add_u32 v3, s72, v3
    v_and_b32 v5, 15, v0
    v_mul_u32_u24 v5, %d, v5
    v_and_b32 v4, 48, v0
    s_mul_i32 s72, s60, %d
    s_add_u32 s72, s72, %d
    v_add3_u32 v5, v5, v4, s72
    s_mov_b32 s82, 0x3f80
    s_mov_b32 s83, 0x3f800000
    """ % (WS_QO, SUM_STRIDE, 8 * SUM_STRIDE, L_SUM, SUM_STRIDE, 16 * SUM_STRIDE, L_SUM)).strip().split("\n")
    gate = ["v_mov_b32 %s, 0" % vr(Z + i) for i in range(8)]
    gate.append(lambda: lg.wait("g"))
    for j in range(5):
        if j == 4:
            gate.append(lambda: vm.wait("xb"))
        for q in range(4):
            src = G + 4 * j + q if j < 4 else 60 + q
            gate.append("v_dot2c_f32_bf16 %s, s82, %s" % (vr(Z + 2 * q), vr(src)))
            gate.append("v_dot2c_f32_bf16 %s, s83, %s" % (vr(Z + 2 * q + 1), vr(src)))
    for q in range(4):
        gate.append("v_lshlrev_b32 %s, 16, %s" % (vr(X + 2 * q), vr(56 + q)))
        gate.append("v_and_b32 %s, s89, %s" % (vr(X + 1 + 2 * q), vr(56 + q)))
    gate += ["v_mul_f32 %s, 0x%x, %s" % (vr(G + i), NLOG2E, vr(Z + i)) for i in range(8)]
    gate += ["v_exp_f32 %s, %s" % (vr(G + i), vr(G + i)) for i in range(8)]
    gate += ["v_add_f32 %s, 1.0, %s" % (vr(G + i), vr(G + i)) for i in range(8)]
    gate += ["v_rcp_f32 %s, %s" % (vr(G + i), vr(G + i)) for i in range(8)]
    gate += ["v_mul_f32 %s, %s, %s" % (vr(Z + i), vr(Z + i), vr(G + i)) for i in range(8)]

    def wo_reads(oat, per):
        for ks in range(8):
            for ct in range(4):
                trread(WOF + (ks * 4 + ct) * 4, 92 + ct, ks * 4096, 1024, ("wo", ks))
                run_shadow(per)
            if ks == oat:
                run_shadow(1000)
                vm.wait("ost")
                oloads()

    vm_t, lg_t = list(vm.items), list(lg.items)
    a("s_cmp_eq_u32 s63, 1")
    a("s_cbranch_scc1 L_tail_b")
    shadow.extend(fill)
    wo_reads(7, 1)
    shadow.extend(gate)
    run_shadow(1000)
    a("s_branch L_tail_j")
    a.label("L_tail_b")
    vm.items, lg.items = vm_t, lg_t
    shadow.extend(fill + gate)
    run_shadow(1000)
    wo_reads(cfg.oat, 0)
    a.label("L_tail_j")
    stamp(12)
    a("s_mov_b32 s73, 0")
    lg.drain()
    for ks in range(8):
        a.label("L_wo_%d" % ks)
        vm.wait(("o", ks))
        a("v_and_b32 v6, 1, %s" % vr(OFR + 4 * ks))
        a("v_cmp_ne_u32 vcc, 0, v6")
        a("s_cbranch_vccnz L_oretry_%d" % ks)
        a.label("L_ogo_%d" % ks)
        for ct in range(4):
            d = AC + 4 * ct
            mfma16(d, WOF + (ks * 4 + ct) * 4, OFR + 4 * ks, None if ks == 0 else d)
    stamp(13)
    for ct in range(4):
        dsw("ds_write_b128", 5, AC + 4 * ct, 4, ct * 64)
    lg.drain()
    a("s_barrier")
    stamp(14)
    dsr("ds_read_b128", SR, 4, 3, 0, 0)
    dsr("ds_read_b128", SR + 8, 4, 3, SUM_SIZE, 0)
    dsr("ds_read_b128", SR + 4, 4, 3, 16, 1)
    dsr("ds_read_b128", SR + 12, 4, 3, SUM_SIZE + 16, 1)
    for h in range(2):
        lg.wait(h)
        for i in range(4 * h, 4 * h + 4, 2):
            a("v_pk_add_f32 %s, %s, %s" % (vr(SR + i, 2), vr(SR + i, 2), vr(SR + 8 + i, 2)))
        for i in range(4 * h, 4 * h + 4, 2):
            a("v_pk_fma_f32 %s, %s, %s, %s" % (vr(SR + i, 2), vr(SR + i, 2), vr(Z + i, 2), vr(X + i, 2)))
        for q in range(2 * h, 2 * h + 2):
            a("v_cvt_pk_bf16_f32 %s, %s, %s" % (vr(G + q), vr(SR + 2 * q), vr(SR + 2 * q + 1)))
    bstore(G, 4, 2, SOUT, "s78", 0, ("", "sc1", "nt", "sc0 sc1", "sc0 sc1 nt")[cfg.omod])
    a("s_or_b32 s72, s2, s60")
    a("s_cmp_lg_u32 s72, 0")
    a("s_cbranch_scc1 L_noepoch")
    set_flag(7, "0")
    a.label("L_noepoch")
    if cfg.stamps:
        a("s_waitcnt vmcnt(0)")
        stamp(15)
        if cfg.probe is not None:
            a("s_sub_u32 s72, %s, s4" % sr(sSTAMP + cfg.probe))
            if cfg.stamps == 2:
                a("s_lshr_b32 s72, s72, 3")
            else:
                a("s_lshl_b32 s72, s72, %d" % cfg.probesh)
            a("s_cmp_lg_u32 s2, %d" % cfg.probewg)
            a("s_cselect_b32 s72, 0, s72")
            a("s_cmp_lg_u32 s60, %d" % cfg.probew)
            a("s_cselect_b32 s72, 0, s72")
            a("s_memrealtime s[22:23]")
            a("s_waitcnt lgkmcnt(0)")
            a("s_mov_b32 s73, s22")
            a.label("L_probe")
            a("s_memrealtime s[22:23]")
            a("s_waitcnt lgkmcnt(0)")
            a("s_sub_u32 s22, s22, s73")
            a("s_cmp_lt_u32 s22, s72")
            a("s_cbranch_scc1 L_probe")
        a("s_lshl3_add_u32 s72, s2, s60")
        a("s_lshl_b32 s72, s72, 6")
        a("s_add_u32 s72, s72, %d" % WS_STAMP)
        for i in range(16):
            a("v_mov_b32 %s, %s" % (vr(80 + i), sr(sSTAMP + i)))
        a("s_mov_b64 exec, 1")
        for i in range(4):
            bstore(80 + 4 * i, 4, 1, SWS, "s72", 16 * i)
    a.label("L_end")
    a("s_endpgm")

    for ks in range(8):
        a.label("L_oretry_%d" % ks)
        a("s_add_u32 s73, s73, 1")
        a("s_cmp_ge_u32 s73, %d" % SPIN_MAX)
        a("s_cbranch_scc1 L_ogo_%d" % ks)
        a("s_waitcnt vmcnt(0)")
        oloads(ks)
        a("s_branch L_wo_%d" % ks)

    for tag, vt, lanes, soff in stubs:
        a.label("L_poll_" + tag)
        a("s_mov_b32 s73, 0")
        a.label("L_poll2_" + tag)
        a("s_sleep %d" % cfg.sleep)
        flag_load(vt, lanes, soff, None)
        a("s_add_u32 s73, s73, 1")
        a("s_waitcnt vmcnt(0)")
        a("s_cmp_ge_u32 s73, %d" % SPIN_MAX)
        a("s_cbranch_scc1 L_polled_" + tag)
        a("v_cmp_ne_u32 vcc, %s, %s" % (sr(sTAG), vr(vt)))
        a("s_cbranch_vccnz L_poll2_" + tag)
        a("s_branch L_polled_" + tag)

    a.label("L_slow")
    CN = SB + 16
    a("s_waitcnt vmcnt(0)")
    a("v_mov_b32 v13, 0xff800000")
    a("s_mov_b32 s82, s83")
    a("s_mov_b32 s81, 64")
    a.label("L_slow1")
    bload(KV, 4, 252, SWS, "s82", 0, "sc1")
    a("s_add_u32 s82, s82, 2048")
    a("s_waitcnt vmcnt(0)")
    mfma32(SB, KV, QR + 12, None)
    for i in range(0, 16, 2):
        a("v_max3_f32 v13, v13, %s, %s" % (vr(SB + i), vr(SB + i + 1)))
    a("s_sub_u32 s81, s81, 1")
    a("s_cmp_lg_u32 s81, 0")
    a("s_cbranch_scc1 L_slow1")
    a("v_mov_b32 v15, v13")
    a("v_permlane32_swap_b32 v15, v13")
    a("v_max_f32 v13, v15, v13")
    for i in range(16):
        a("v_sub_f32 %s, 0, v13" % vr(CN + i))
        a("v_mov_b32 %s, 0" % vr(OW + i))
    a("s_mov_b32 s82, s83")
    a("s_mov_b32 s81, 64")
    a.label("L_slow2")
    kvload(0)
    a("s_waitcnt vmcnt(0)")
    mfma32(SB, KV, QR + 12, CN)
    for i in range(16):
        a("v_exp_f32 %s, %s" % (vr(SB + i), vr(SB + i)))
    smf(OW, KV + 4, SB)
    smf(OW, KV + 8, SB + 8)
    a("s_sub_u32 s81, s81, 1")
    a("s_cmp_lg_u32 s81, 0")
    a("s_cbranch_scc1 L_slow2")
    a("s_branch L_norm")
    a.label("L_code_end")
    a("s_endpgm")

    added = a.fix()
    return a.text().replace('FSH', str(cfg.fsh)).replace('FROW', str(cfg.fsh + 5)), added


HEADER = """; Kernarg layout for this problem (88 bytes, ptrs only, base s[0:1]):
; @launch grid=(256,1,1) block=(512,1,1) lds=163840
.amdgcn_target "amdgcn-amd-amdhsa--gfx950"
.text
.globl {k}
.p2align 8
.type {k},@function
{k}:
"""

FOOTER = """.section .rodata,"a"
.p2align 6
.amdhsa_kernel {k}
  .amdhsa_next_free_vgpr 256
  .amdhsa_next_free_sgpr 102
  .amdhsa_accum_offset 256
  .amdhsa_group_segment_fixed_size 0
  .amdhsa_kernarg_size 88
  .amdhsa_user_sgpr_count 2
  .amdhsa_user_sgpr_kernarg_segment_ptr 1
  .amdhsa_system_sgpr_workgroup_id_x 1
.end_amdhsa_kernel
"""


def build(**kw):
    cfg = Cfg()
    for k, v in kw.items():
        setattr(cfg, k, v)
    body, added = gen(cfg)
    return HEADER.format(k=KERNEL) + body + FOOTER.format(k=KERNEL), added


if __name__ == "__main__":
    out = sys.argv[1] if len(sys.argv) > 1 else "cdna_kernels/%s.s" % NAME
    kw = {}
    for arg in sys.argv[2:]:
        k, v = arg.split("=")
        kw[k] = int(v)
    text, added = build(**kw)
    open(out, "w").write(text)
    print("wrote", out, "lines", text.count("\n"), "nops added", added)
```

```python
import sys
import os
sys.path.insert(0, os.path.dirname(os.path.abspath(__file__)))
from asmlib import Asm, vr, sr

NAME = "recurrent_scan__softmax_full_mha__dense_activation_squared_relu__prompt"
KERNEL = NAME + "_kernel"

WS_FLAGQ = 0x1200
WS_FLAGH = 0x60000
WS_STAMP = 0x10000
WS_QO = 0x100000
WS_KV = 0x300000
WS_HF = 0x700000
WS_END = WS_HF + 86 * 65536
EPOCH_INC = 0x9E3779B9
SPIN_MAX = 1 << 18

L_RING = 65536
L_OPART = 65536
L_W2 = L_OPART + 55296
W2_REGION = 10240
PART_STRIDE = 144
SUM_STRIDE = 272
SUM_SIZE = 64 * SUM_STRIDE
L_SUM = L_OPART

SX, SWQ, SWO, SW1, SB1, SW2, SB2, SOUT, SWS = 24, 28, 32, 36, 40, 44, 48, 52, 56
sW, sCG, sTB, sRW, sP, sQB, sTBF, sCB, sTAG, sCT0 = 60, 61, 62, 63, 64, 65, 66, 67, 68, 69
sVM = 70
sSTAMP = 4

QSCALE = 0x3EB8AA3B
NLOG2E = 0xBFB8AA3B
NS = 22


class Cfg:
    abl = 0
    bst = 0
    xslot = 0
    xrun = 2
    n1 = 8
    nA = 22
    gap = 1
    kvt = 0
    kvi = 4
    dmam = 2
    fpat = 2221
    pf1_at = 14
    pfc_at = 99
    pfc1 = 0
    w2_at = 10
    pfl = 9
    wol = 15
    won = 1
    stamps = 0
    force_slow = 0
    flag_chunk = 10
    lead = 2
    defer = 0
    look = 5
    pfq_at = 99
    bload = 15
    bjoin = 16
    btile = 2
    sleep = 6
    w0_at = 7
    w1_at = 10
    hpre = 2
    hbar = 0
    hnow = 2
    hgap = 2
    hoff = 0
    kv3 = 1
    fsh = 4
    pfe = 99
    l2q = 7
    l2w = 99
    pfn = 11
    alow = 0
    pfg = 1
    hflag = 11
    probe = None
    omod = 1
    oat = 4
    probewg = 100
    probew = 0
    probesh = 4
    hst = 0


def srd(s):
    return sr(s, 4)


class Queue:
    def __init__(self, a, name, maxn):
        self.a, self.name, self.maxn, self.items = a, name, maxn, []

    def push(self, tag):
        self.items.append(tag)

    def wait(self, *tags):
        last = max((i for i, t in enumerate(self.items) if t in tags), default=-1)
        if last < 0:
            return
        n = len(self.items) - 1 - last
        self.a("s_waitcnt %s(%d)" % (self.name, min(n, self.maxn)))
        self.items = self.items[last + 1:]

    def drain(self):
        self.a("s_waitcnt %s(0)" % self.name)
        self.items = []


def gen(cfg):
    a = Asm()
    nA = cfg.nA
    nB = 32 - nA
    vm = Queue(a, "vmcnt", 63)
    lg = Queue(a, "lgkmcnt", 15)

    def stamp(i, force=False):
        if cfg.bst and not force and i != 0:
            return
        if cfg.stamps and (cfg.probe is None or i in (0, cfg.probe)):
            a("%s s[22:23]" % ("s_memtime" if cfg.stamps == 2 else "s_memrealtime"))
            a("s_waitcnt lgkmcnt(0)")
            a("s_mov_b32 %s, s22" % sr(sSTAMP + i))

    def mfma32(d, x, y, c):
        a("v_mfma_f32_32x32x16_bf16 %s, %s, %s, %s" % (vr(d, 16), vr(x, 4), vr(y, 4), "0" if c is None else vr(c, 16)))

    def mfma16(d, x, y, c):
        a("v_mfma_f32_16x16x32_bf16 %s, %s, %s, %s" % (vr(d, 4), vr(x, 4), vr(y, 4), "0" if c is None else vr(c, 4)))

    def smf(d, x, y):
        a("v_smfmac_f32_32x32x32_bf16 %s, %s, %s, v3" % (vr(d, 16), vr(x, 4), vr(y, 8)))

    def bload(d, n, va, s, so, off=0, mod="", tag=None):
        op = {1: "dword", 2: "dwordx2", 4: "dwordx4"}[n]
        a("buffer_load_%s %s, %s, %s, %s offen offset:%d %s" % (op, vr(d, n), vr(va), srd(s), so, off, mod))
        vm.push(tag)

    def bstore(d, n, va, s, so, off=0, mod="", tag=None):
        op = {1: "dword", 2: "dwordx2", 4: "dwordx4"}[n]
        a("buffer_store_%s %s, %s, %s, %s offen offset:%d %s" % (op, vr(d, n), vr(va), srd(s), so, off, mod))
        vm.push(tag)

    def dma(va, s, so, off=0, tag=None):
        a("buffer_load_dwordx4 %s, %s, %s offen offset:%d lds" % (vr(va), srd(s), so, off))
        vm.push(tag)

    def dsr(op, d, n, va, off, tag=None):
        a("%s %s, %s offset:%d" % (op, vr(d, n), vr(va), off))
        lg.push(tag)

    def dsw(op, va, d, n, off, tag=None):
        a("%s %s, %s offset:%d" % (op, vr(va), vr(d, n), off))
        lg.push(tag)

    def trread(d, va, off, second, tag=None):
        dsr("ds_read_b64_tr_b16", d, 2, va, off, tag)
        dsr("ds_read_b64_tr_b16", d + 2, 2, va, off + second, tag)

    def set_flag(vt, soff):
        a("v_mov_b32 %s, %s" % (vr(vt), sr(sTAG)))
        a("s_mov_b64 exec, 1")
        bstore(vt, 1, 1, SWS, soff, 0, "sc0 sc1")
        a("s_mov_b64 exec, -1")

    stubs = []

    def check_flags(tag, vt, lanes, soff):
        a("v_cmp_ne_u32 vcc, %s, %s" % (sr(sTAG), vr(vt)))
        a("s_cbranch_vccnz L_poll_" + tag)
        a.label("L_polled_" + tag)
        stubs.append((tag, vt, lanes, soff))

    def flag_load(vt, shift, soff, tag):
        a("v_and_b32 %s, 31, v0" % vr(vt))
        a("v_lshlrev_b32 %s, %d, %s" % (vr(vt), shift, vr(vt)))
        bload(vt, 1, vt, SWS, soff, 0, "sc0 sc1", tag)

    sizes = {SX: 2048 * 1024, SWQ: 512 * 3072, SWS: WS_END, SW1: 512 * 2752, SB1: 2752,
             SWO: 512 * 1024, SW2: 1376 * 1024, SB2: 1024, SOUT: 2048 * 1024}
    RAW = 128

    def xloads():
        for j in range(8):
            bload(RAW + j * 4, 4, 14, SX, "s101", j * 128, "", ("x", j))

    stamp(0)
    a("""
    s_load_dwordx2 s[24:25], s[0:1], 0
    s_getpc_b64 s[72:73]
    L_pc:
    s_cmpk_ge_u32 s2, 256
    s_cbranch_scc1 L_end
    s_lshr_b32 s74, s2, 3
    s_lshl_b32 s74, s74, 11
    v_lshrrev_b32 v8, 5, v0
    v_lshl_add_u32 v8, v8, 7, s74
    v_min_u32 v8, L_code_end-L_pc, v8
    v_mov_b32 v9, 0
    v_lshl_add_u64 v[8:9], v[8:9], 0, s[72:73]
    global_load_dword v7, v[8:9], off
    s_lshl_b32 s72, s2, 4
    s_and_b32 s72, s72, 0x180
    v_add_u32 v4, s72, v0
    v_bfe_u32 v4, v4, 3, 6
    v_and_b32 v5, 7, v0
    v_lshlrev_b32 v14, 10, v4
    v_lshl_add_u32 v14, v5, 4, v14
    s_lshr_b32 s67, s2, 5
    s_and_b32 s73, s2, 6
    s_lshl2_add_u32 s62, s73, s67
    s_lshl_b32 s101, s62, 16
    s_mov_b32 s26, %d
    s_mov_b32 s27, 0x20000
    v_bfe_u32 v24, v4, 1, 3
    v_xor_b32 v24, v24, v5
    v_lshlrev_b32 v15, 7, v4
    v_lshl_add_u32 v15, v24, 4, v15
    v_readfirstlane_b32 s60, v0
    v_and_b32 v0, 63, v0
    v_mov_b32 v24, 0
    v_mov_b32 v25, 0
    s_lshr_b32 s60, s60, 6
    s_cmp_ge_u32 s60, 4
    s_waitcnt lgkmcnt(0)
    """ % sizes[SX])
    vm.push("pf")
    if cfg.bst == 3:
        stamp(1, True)
    xloads()
    if cfg.bst == 3:
        stamp(2, True)
    if cfg.stamps:
        for i in range(3 if cfg.bst == 3 else 1, 16):
            a("s_mov_b32 %s, s4" % sr(sSTAMP + i))
    a("s_mov_b32 s63, 1")
    a("s_cbranch_scc1 L_ln")
    a("s_mov_b32 s63, 0")

    def setup1():
        for s, off in ((SWQ, 8), (SWS, 80), (SW1, 32), (SB1, 40), (SWO, 16), (SW2, 48), (SB2, 56), (SOUT, 64)):
            a("s_load_dwordx2 %s, s[0:1], %d" % (sr(s, 2), off))
        a("""
        s_mov_b32 s30, %d
        s_mov_b32 s31, 0x20000
        s_bfe_u32 s72, s2, 0x20003
        s_and_b32 s73, s2, 1
        s_lshl2_add_u32 s61, s73, s72
        s_and_b32 s74, s60, 3
        s_lshl_b32 s72, s61, 7
        s_mul_i32 s85, s74, %d
        s_add_u32 s85, s85, s72
        s_mul_i32 s87, s74, 6144
        s_add_u32 s87, s87, %d
        v_lshrrev_b32 v4, 3, v0
        v_bfe_u32 v6, v4, 1, 1
        v_lshlrev_b32 v6, 2, v6
        v_xor_b32 v6, v6, v5
        v_lshlrev_b32 v6, 4, v6
        v_mul_u32_u24 v13, 3072, v4
        v_add_u32 v13, v13, v6
        s_waitcnt lgkmcnt(0)
        """ % (sizes[SWQ], 16 * 3072, L_RING))

    def setup2():
        a("s_load_dword %s, %s, 0" % (sr(sTAG), sr(SWS, 2)))
        for s in (SW1, SWS, SB1, SWO, SW2, SB2, SOUT):
            a("s_mov_b32 %s, %d" % (sr(s + 2), sizes[s]))
            a("s_mov_b32 %s, 0x20000" % sr(s + 3))
        a("""
        s_and_b32 s73, s60, 3
        s_lshl2_add_u32 s100, s2, s73
        s_mul_i32 s100, s100, 1536
        v_min_u32 v31, 11, v0
        v_lshlrev_b32 v31, 7, v31
        s_bfe_u32 s72, s2, 0x20003
        s_and_b32 s73, s2, 7
        s_lshl2_add_u32 s66, s73, s72
        s_and_b32 s72, s72, 1
        s_lshl1_add_u32 s64, s73, s72
        s_lshr_b32 s65, s2, 4
        s_mul_i32 s69, s61, 43
        s_lshr_b32 s69, s69, 3
        s_mov_b32 s70, 0xffff
        s_mov_b32 s71, 0xffff
        v_lshlrev_b32 v1, 4, v0
        v_and_b32 v2, 15, v0
        v_lshrrev_b32 v3, 5, v0
        v_lshl_add_u32 v2, v3, 4, v2
        v_lshlrev_b32 v2, 4, v2
        """)

    def setup3():
        a("; attention offsets: s82 = next K/V tile, s83 = head base, s92-s95 = Q tiles, s96-s99 = O partial slots")
        a("""
        s_and_b32 s74, s60, 1
        s_lshr_b32 s75, s60, 1
        s_lshl1_add_u32 s72, s64, s74
        s_lshl_b32 s83, s72, 17
        s_add_u32 s83, s83, %d
        s_and_b32 s73, s75, 1
        s_lshl_b32 s73, s73, 16
        s_add_u32 s82, s83, s73
        s_lshl_b32 s72, s65, 6
        s_add_u32 s72, s72, s64
        s_lshl1_add_u32 s72, s72, s74
        s_lshl_b32 s72, s72, 10
        s_add_u32 s72, s72, %d
        s_mul_i32 s84, s74, %d
        s_add_u32 s84, s84, %d
        """ % (WS_KV, WS_QO, 12 * 2304, L_OPART))
        for t in range(4):
            a("s_xor_b32 s73, s75, %d" % (t ^ 3))
            a("s_mul_i32 %s, s73, %d" % (sr(96 + t), 3 * 2304))
            a("s_lshl_b32 s73, s73, 15")
            a("s_add_u32 %s, s72, s73" % sr(92 + t))
            a("s_add_u32 %s, %s, s84" % (sr(96 + t), sr(96 + t)))

    setup1()
    setup2()
    setup3()
    a("""
    s_add_u32 s82, s82, %d
    v_and_b32 v8, 0x33, v0
    v_and_b32 v9, 4, v0
    v_lshl_or_b32 v8, v9, 1, v8
    v_and_b32 v9, 8, v0
    v_lshrrev_b32 v9, 1, v9
    v_or_b32 v8, v8, v9
    v_lshlrev_b32 v11, 4, v8
    v_bfe_u32 v9, v0, 4, 1
    v_mul_u32_u24 v12, 0x1fe00, v9
    v_add_u32 v12, v12, v2
    v_mul_u32_u24 v14, 0x1fa00, v9
    v_add_u32 v14, v14, v2
    v_lshl_add_u32 v4, v4, 10, v6
    v_bfe_u32 v10, v0, 2, 2
    v_lshlrev_b32 v5, 5, v9
    v_lshl_add_u32 v5, v10, 7, v5
    v_and_b32 v9, 3, v0
    v_lshl_add_u32 v5, v9, 3, v5
    v_lshrrev_b32 v10, 1, v10
    v_lshl_add_u32 v8, v3, 10, v5
    v_xor_b32 v9, s75, v10
    v_lshl_add_u32 v8, v9, 6, v8
    v_add_u32 v8, %d, v8
    v_add_u32 v9, %d, v8
    v_lshl_add_u32 v5, v3, 9, v5
    v_lshl_add_u32 v5, v10, 6, v5
    v_lshrrev_b32 v10, 1, v0
    v_xor_b32 v10, v10, v0
    v_and_b32 v10, 1, v10
    v_mul_u32_u24 v10, 24, v10
    v_xor_b32 v5, v5, v10
    s_mul_i32 s84, s60, %d
    s_add_u32 s84, s84, %d
    v_add_u32 v5, s84, v5
    v_xor_b32 v6, 64, v5
    v_and_b32 v10, 31, v0
    s_lshl_b32 s72, s74, 12
    v_bfe_u32 v16, v10, 1, 3
    v_xor_b32 v16, v16, v3
    v_lshlrev_b32 v16, 4, v16
    v_lshl_add_u32 v16, v10, 7, v16
    v_add_u32 v16, s72, v16
    v_xor_b32 v17, 32, v16
    v_xor_b32 v18, 64, v16
    v_xor_b32 v19, 0x60, v16
    v_lshlrev_b32 v10, 1, v10
    v_lshl_add_u32 v10, v3, 20, v10
    """ % (nB * 2048, L_RING, 2 * 24576, W2_REGION, L_W2))
    for seg in range(3):
        for q in range(1, 4):
            a("v_mov_b32 %s, 0" % vr(112 + 4 * seg + q))
    for q in range(4):
        a("v_mov_b32 %s, 0x3f803f80" % vr(124 + q))
    a("v_mov_b32 v3, 0xdddddddd")
    a("""
    s_lshl1_add_u32 s72, s62, s74
    s_lshl1_add_u32 s73, s61, s75
    s_lshl_b32 s76, s73, 7
    s_add_u32 s76, s76, s72
    s_lshl_b32 s77, s76, 11
    s_lshl4_add_u32 s76, s72, s73
    s_lshl_b32 s76, s76, 11
    s_add_u32 s76, s76, %d
    s_add_u32 s77, s77, %d
    s_add_u32 s81, s69, s75
    s_lshl_b32 s78, s81, 7
    s_add_u32 s78, s78, s72
    s_lshl_b32 s78, s78, 10
    s_add_u32 s78, s78, %d
    s_lshl_b32 s79, s61, 6
    s_add_u32 s79, s79, s62
    s_lshl_b32 s79, s79, 4
    s_add_u32 s79, s79, %d
    s_lshl_b32 s80, s62, 3
    s_add_u32 s80, s80, s61
    s_lshl2_add_u32 s80, s80, s60
    s_lshl_b32 s80, s80, FSH
    s_add_u32 s80, s80, %d
    s_mul_i32 s72, s61, 43
    s_add_u32 s72, s72, 43
    s_lshr_b32 s72, s72, 3
    s_add_u32 s73, s81, 4
    s_add_u32 s88, s78, %d
    s_cmp_lt_u32 s73, s72
    s_cselect_b32 s88, s88, 0x40000000
    s_lshl_b32 s81, s81, 6
    """ % (WS_QO, WS_KV, WS_HF, WS_FLAGQ, WS_FLAGH, 8 * 65536))

    def slot_of(c):
        if not cfg.xslot or c < cfg.xslot:
            return (c & 3) * 24576
        return -L_RING if c == cfg.xslot else ((c - 1) & 3) * 24576

    skip_bar = (10,) if cfg.xslot else ()

    def issue_chunk(c):
        for m in range(6):
            blk, seg = divmod(m, 3)
            a("s_add_u32 m0, s87, %d" % (slot_of(c) + seg * 2048 + blk * 1024))
            if c < 8:
                a("s_add_u32 s72, s85, %d" % ((c * 64 + blk * 8) * 3072 + seg * 1024))
                dma(13, SWQ, "s72", 0, ("w", c))
            else:
                a("s_add_u32 s72, s80, %d" % (((c - 8) * 64 + blk * 8) * 2752 + seg * 128))
                dma(57 if seg == 2 else 56, SW1, "s72", 0, ("w", c))

    def layernorm(acts):
        def act(p):
            if acts.get(p):
                assert p >= 7
                a("s_cmp_eq_u32 s63, 1")
                a("s_cbranch_scc1 L_ln_%d" % p)
                for f in acts[p]:
                    f()
                a.label("L_ln_%d" % p)
        a.label("L_ln")
        a("v_mov_b32 v30, 0x3f803f80")
        a("s_mov_b32 s89, 0xffff0000")
        for j in range(8):
            if cfg.bst == 3 and j == 0:
                stamp(3, True)
            vm.wait(("x", j))
            if cfg.bst == 3 and j in (0, 3, 7):
                stamp({0: 4, 3: 5, 7: 6}[j], True)
            act(j)
            for q in range(4):
                x = RAW + j * 4 + q
                a("v_dot2c_f32_bf16 v24, v30, %s" % vr(x))
                a("v_dot2c_f32_bf16 v25, %s, %s" % (vr(x), vr(x)))
        act(8)
        stamp(1)
        for ctl in ("quad_perm:[1,0,3,2]", "quad_perm:[2,3,0,1]", "row_half_mirror"):
            for r in (24, 25):
                a("v_add_f32_dpp %s, %s, %s %s row_mask:0xf bank_mask:0xf" % (vr(r), vr(r), vr(r), ctl))
        a("""
        v_mul_f32 v24, 0x3b000000, v24
        v_mul_f32 v25, 0x3b000000, v25
        v_fma_f32 v25, -v24, v24, v25
        v_max_f32 v25, 0, v25
        v_cvt_pk_bf16_f32 v24, v24, v25
        v_and_b32 v25, s89, v24
        v_add_f32 v25, 0x3727c5ac, v25
        v_cvt_pk_bf16_f32 v25, v25, v25
        v_and_b32 v25, s89, v25
        v_sqrt_f32 v25, v25
        v_lshlrev_b32 v24, 16, v24
        v_cvt_pk_bf16_f32 v25, v25, v25
        v_and_b32 v25, s89, v25
        v_rcp_f32 v26, v25
        v_mul_f32_e64 v28, -v24, v26
        """)
        for j in range(8):
            x = RAW + j * 4
            t = 192 + (j & 1) * 8
            for q in range(4):
                a("v_lshlrev_b32 %s, 16, %s" % (vr(t + 2 * q), vr(x + q)))
                a("v_and_b32 %s, s89, %s" % (vr(t + 2 * q + 1), vr(x + q)))
            for q in range(4):
                a("v_pk_fma_f32 %s, %s, v[26:27], v[28:29] op_sel_hi:[1,0,0]" % (vr(t + 2 * q, 2), vr(t + 2 * q, 2)))
            for q in range(4):
                a("v_cvt_pk_bf16_f32 %s, %s, %s" % (vr(x + q), vr(t + 2 * q), vr(t + 2 * q + 1)))
            if not cfg.defer:
                a("ds_write_b128 v15, %s offset:%d" % (vr(x, 4), j * 8192))
        if cfg.bst == 3:
            stamp(7, True)
        act(9)
        if cfg.defer:
            for j in range(8):
                a("ds_write_b128 v15, %s offset:%d" % (vr(RAW + j * 4, 4), j * 8192))
        act(10)
        stamp(2)
        if cfg.bst == 3:
            stamp(8, True)

    def pfq():
        a("; memory-side prefetch of Wqkv")
        bload(7, 1, 31, SWQ, "s100", 0, "", "pf")

    def pfl2(which):
        a("; the die's workgroups pull their half of the weight columns into L2 together, four rows per wave")
        stride = 3072 if which == SWQ else 2752
        a("s_lshr_b32 s72, s2, 3")
        a("s_and_b32 s73, s60, 3")
        a("s_lshl2_add_u32 s72, s72, s73")
        a("s_mul_i32 s72, s72, %d" % (4 * stride))
        a("s_and_b32 s73, s2, 1")
        a("s_mul_i32 s73, s73, %d" % (512 if which == SWQ else 1344))
        a("s_add_u32 s72, s72, s73")
        a("v_lshrrev_b32 v20, 4, v0")
        a("v_mul_u32_u24 v20, %d, v20" % stride)
        if which == SWQ:
            a("v_bfe_u32 v21, v0, 2, 2")
            a("v_min_u32 v21, 2, v21")
            a("v_lshl_add_u32 v20, v21, 10, v20")
            a("v_and_b32 v21, 3, v0")
            a("v_lshl_add_u32 v20, v21, 7, v20")
        else:
            a("v_and_b32 v21, 15, v0")
            a("v_lshlrev_b32 v21, 7, v21")
            a("v_min_u32 v21, 1404, v21")
            a("v_add_u32 v20, v20, v21")
        bload(22, 1, 20, which, "s72", 0, "", "pf")

    def pfc(which):
        a("; lines at offset 384 of every KiB stream slowly on a miss: the die's workgroups pull them into L2 together")
        a("s_lshr_b32 s72, s2, 3")
        a("s_lshl2_add_u32 s72, s72, s60")
        a("s_mul_i32 s72, s72, 12288")
        a("v_lshlrev_b32 v20, 3, v31")
        if which == SWQ:
            a("s_bitcmp1_b32 s2, 0")
            a("s_cselect_b32 s72, 0x40000000, s72")
        bload(7, 1, 20, which, "s72", 384, "", "pf")

    def pf1():
        a("; memory-side prefetch of W1")
        bload(7 if cfg.pf1_at <= 10 else 32, 1, 31, SW1, "s100", 0, "", "pf")

    acts = {}
    if cfg.pfc_at == 0:
        save = list(vm.items)
        pfc(SWQ)
        vm.items = save
    elif cfg.pfc_at <= 10:
        acts.setdefault(cfg.pfc_at, []).append(lambda: pfc(SWQ))
    if cfg.pfq_at == 0:
        save = list(vm.items)
        pfq()
        vm.items = save
    elif cfg.pfq_at <= 10:
        acts.setdefault(cfg.pfq_at, []).append(pfq)
    if cfg.l2q == 0:
        save = list(vm.items)
        pfl2(SWQ)
        vm.items = save
    if cfg.l2q == 7:
        acts.setdefault(7, []).append(lambda: pfl2(SWQ))
    for c, p in enumerate((cfg.w0_at, cfg.w1_at, cfg.w2_at, 10)[:cfg.lead + 1]):
        acts.setdefault(p, []).append(lambda c=c: issue_chunk(c))
    if 8 <= cfg.l2q <= 10:
        acts.setdefault(cfg.l2q, []).insert(0, lambda: pfl2(SWQ))
    if cfg.pf1_at <= 10:
        acts.setdefault(cfg.pf1_at, []).append(pf1)
    if cfg.pfc1:
        acts.setdefault(10, []).append(lambda: pfc(SW1))
    layernorm(acts)
    a("s_cmp_eq_u32 s63, 1")
    a("s_cbranch_scc1 L_loader")

    QR, SB, WF, FA, OA, KV, HB = 8, 24, 56, 64, 128, 192, 228
    NKV = 3

    def att_init_ops():
        ops = ["v_mov_b32 %s, 0" % vr(OA + 16 * t + i) for t in range(4) for i in range(9)]
        ops2 = ["v_and_b32 v7, 27, v0", "v_cmp_eq_u32 vcc, 16, v7", "v_mov_b32 v7, 0x3f803f80", "v_cndmask_b32 v7, 0, v7, vcc"]
        ops2 += ["v_mov_b32 %s, v7" % vr(KV + 12 * b + 4 + q) for b in range(NKV) for q in range(8)]
        return ops, ops2

    def kvload(j):
        b = j % NKV
        bload(KV + 12 * b, 4, 252, SWS, "s82", 0, "sc1", ("kv", j))
        a("s_mov_b64 exec, %s" % sr(sVM, 2))
        bload(KV + 12 * b + 4, 4, 253, SWS, "s82", 0, "sc1", ("kv", j))
        bload(KV + 12 * b + 8, 4, 254, SWS, "s82", 0, "sc1", ("kv", j))
        a("s_mov_b64 exec, -1")
        a("s_add_u32 s82, s82, 2048")

    def att_loads(role):
        a("s_and_b32 s72, s60, 1")
        a("s_lshl_b32 s73, s72, 10")
        a("v_add_u32 v252, s73, v1")
        a("s_lshr_b32 s73, 0x400, s72")
        a("v_add_u32 v253, s73, v2")
        a("s_mul_i32 s73, s72, 0x600")
        a("s_sub_u32 s73, 0x600, s73")
        a("v_add_u32 v254, s73, v2")
        bload(QR, 4, 1, SWS, "s92", 0, "sc1", "q")
        kvload(0)
        for t in range(1, 4):
            bload(QR + 4 * t, 4, 1, SWS, sr(92 + t), 0, "sc1", "q")
        kvload(1)
        if cfg.kv3 and role == "a":
            kvload(2)

    def dump_addr():
        a("v_lshlrev_b32 v8, 2, v0")
        a("v_add_u32 v9, s99, v1")
        a("v_add_u32 v10, s99, v8")
        a("v_bfe_u32 v11, v0, 4, 1")
        a("v_lshl_add_u32 v11, v11, 10, v2")

    def dump(t):
        a("v_add_u32 v12, %s, v1" % sr(96 + t))
        a("v_add_u32 v13, %s, v8" % sr(96 + t))
        dsw("ds_write_b128", 12, OA + 16 * t, 4, t * 2304)
        dsw("ds_write_b128", 12, OA + 16 * t + 4, 4, t * 2304 + 1024)
        dsw("ds_write_b32", 13, OA + 16 * t + 8, 1, t * 2304 + 2048)

    deferred = []
    cfg_gap = {0: range(16), 1: (1, 10), 2: (0, 9), 3: (4, 10), 4: (1,), 5: (4,), 6: (15, 9)}[cfg.gap]

    def att_run(n, hooks):
        hooks.setdefault((n - 1, 0, 11), []).append(dump_addr)
        for t in range(3):
            hooks.setdefault((n - 1, t + 1, 12), []).append(lambda t=t: dump(t))
        vm.wait("q", ("kv", 0))
        mfma32(SB, KV, QR, None)
        for j in range(n):
            b = j % NKV
            for t in range(4):
                cur, oth = SB + 16 * (t & 1), SB + 16 * ((t + 1) & 1)
                for i in range(16):
                    a("v_exp_f32 %s, %s" % (vr(cur + i), vr(cur + i)))
                    if i in cfg_gap:
                        while deferred:
                            deferred.pop(0)()
                    if t == cfg.kvt and i == cfg.kvi and j + NKV - 1 < n and not (cfg.abl & 32 and j > 0) and not (cfg.kv3 and j == 0):
                        kvload(j + NKV - 1)
                    if i == 1 and (j, t) != (0, 0):
                        smf(OA + 16 * ((t + 3) & 3), KV + 12 * (b if t else (j - 1) % NKV) + 8, oth + 8)
                    if i == 4:
                        if t < 3:
                            mfma32(oth, KV + 12 * b, QR + 4 * (t + 1), None)
                        elif j + 1 < n:
                            vm.wait(("kv", j + 1))
                            mfma32(oth, KV + 12 * ((j + 1) % NKV), QR, None)
                    if i == 10:
                        smf(OA + 16 * t, KV + 12 * b + 4, cur)
                    for h in hooks.get((j, t, i), ()):
                        h()
        smf(OA + 48, KV + 12 * ((n - 1) % NKV) + 8, SB + 16 + 8)

    ACC = (24, 40, 56)
    WB, NBUF, LA = 72, 6, cfg.look
    XF, PK, XA = 128, 96, 16
    init1, init2 = att_init_ops()

    def item(g):
        return divmod(g % 96, 3)

    def reads(g):
        ks, sel = item(g)
        c, m = divmod(g, 12)
        so = slot_of(c)
        base, so = (XA, 0) if so < 0 else (8 + so // 49152, so % 49152)
        if g < 96 and sel == 0:
            dsr("ds_read_b128", XF + 4 * ks, 4, XA + (ks & 3), (ks >> 2) * 8192, g)
        trread(WB + 4 * (g % NBUF), base, so + m * 2048, 512, g)

    def pack(acc, pk):
        return ["v_cvt_pk_bf16_f32 %s, %s, %s" % (vr(pk + q), vr(acc + 2 * q), vr(acc + 2 * q + 1)) for q in range(8)]

    def st2(pk, va, base, delta, tag, imm=(0, 0), vb=None):
        def first():
            bstore(pk, 4, va, SWS, base, imm[0], "" if cfg.abl & 64 else "sc1", tag)

        def second():
            if delta:
                a("s_add_u32 s72, %s, %d" % (base, delta))
            bstore(pk + 4, 4, vb or va, SWS, "s72" if delta else base, imm[1], "" if cfg.abl & 64 else "sc1", tag)
        return [first, second]

    def relu2(acc):
        return (["v_max_f32 %s, 0, %s" % (vr(acc + i), vr(acc + i)) for i in range(16)]
                + ["v_mul_f32 %s, %s, %s" % (vr(acc + i), vr(acc + i), vr(acc + i)) for i in range(16)])

    def bias(seg):
        return lambda: (vm.wait("b1"), mfma32(ACC[seg], 112 + 4 * seg, 124, None))

    tagq = ["v_or_b32 %s, 1, %s" % (vr(PK + 4 * q), vr(PK + 4 * q)) for q in range(2)]
    qkv_epi = (["v_mul_f32 %s, 0x%x, %s" % (vr(ACC[0] + i), QSCALE, vr(ACC[0] + i)) for i in range(16)]
               + pack(ACC[0], PK) + tagq + [bias(0)] + st2(PK, 1, "s76", 0, "st", (0, 1024))
               + pack(ACC[1], PK + 8) + [bias(1)] + st2(PK + 8, 11, "s77", 0x20400, "st")
               + pack(ACC[2], PK) + [bias(2)] + st2(PK, 12, "s77", 0, "st", (1024, 1536), 14))
    sched = {100: ["v_subrev_u32 %s, %d, v8" % (vr(XA), L_RING)], 144: init1, 180: init2}
    shadow = []

    def run_shadow(budget):
        while shadow and budget > 0:
            op = shadow.pop(0)
            if isinstance(op, str):
                a(op)
                budget -= 1
            else:
                op()
                budget -= 3

    a("""
    s_lshl_b32 s85, s60, 14
    s_lshl_b32 s72, s67, 7
    s_add_u32 s85, s85, s72
    s_lshl_b32 s86, s60, 6
    s_lshl1_add_u32 s86, s66, s86
    s_lshl_b32 s86, s86, 10
    s_add_u32 s86, s86, %d
    s_lshl_b32 s87, s66, FROW
    s_add_u32 s87, s87, %d
    """ % (WS_HF, WS_FLAGH))
    vm.wait(("w", 0))
    a("s_waitcnt lgkmcnt(0)")
    a("s_add_u32 %s, %s, 0x%x" % (sr(sTAG), sr(sTAG), EPOCH_INC))
    if cfg.bst == 3:
        stamp(9, True)
    a("s_barrier")
    stamp(3)
    if cfg.bst == 3:
        stamp(10, True)
    for g in range(LA):
        reads(g)
    for g in range(192):
        ks, sel = item(g)
        if g == 96:
            stamp(4)
            shadow.extend(qkv_epi)
            run_shadow(1000)
            stamp(5)
        lg.wait(g)
        x, w = XF + 4 * ks, WB + 4 * (g % NBUF)
        c = None if (g < 96 and ks == 0) else ACC[sel]
        if g < 96 and sel == 2:
            mfma32(ACC[sel], x, w, c)
        else:
            mfma32(ACC[sel], w, x, c)
        n = g + LA
        if n < 192:
            if n % 12 == 0 and n // 12 not in skip_bar:
                vm.wait(("w", n // 12))
                if n // 12 == cfg.flag_chunk:
                    vm.wait("st")
                a("s_barrier")
                if n // 12 == cfg.flag_chunk:
                    a("s_cmp_lg_u32 s60, 0")
                    a("s_cselect_b32 s79, 0x40000000, s79")
                    set_flag(7, "s79")
                    stamp(6)
            reads(n)
        if g == 40:
            for seg in range(3):
                a("buffer_load_ushort %s, v10, %s, s81 offen offset:%d" % (vr(112 + 4 * seg), srd(SB1), seg * 128))
                vm.push("b1")
        shadow.extend(sched.get(g, ()))
        run_shadow(3)
    run_shadow(1000)
    stamp(7)
    hmath, hst = [], []
    for seg in range(3):
        pk = PK + 8 * seg
        hmath.append(relu2(ACC[seg]) + pack(ACC[seg], pk))
        hst.append((["s_add_u32 s78, s78, 0x40000"] if seg == 1 else []) + st2(pk, 1, "s78" if seg < 2 else "s88", 0x10000, "hst"))
    for seg in range(cfg.hbar):
        shadow.extend(hmath[seg])
    run_shadow(1000)
    a("s_barrier")
    stamp(8)
    if cfg.bst == 4:
        stamp(1, True)
    a("s_setprio 2")
    for seg in range(cfg.hbar, cfg.hpre):
        shadow.extend(hmath[seg])
    run_shadow(1000)
    att_loads("a")
    hlist = [[hst[0][0]], [hst[0][1]], hst[1][:2], [hst[1][2]], [hst[2][0]], [hst[2][1]]]
    for seg in range(3):
        shadow.extend(hmath[seg] if seg >= max(cfg.hpre, cfg.hbar) else [])
        for n in (2 * seg, 2 * seg + 1):
            if n < cfg.hnow:
                shadow.extend(hlist[n])
    run_shadow(1000)
    stamp(9)


    def w2dma(i):
        if cfg.abl & 1:
            return
        a("s_add_u32 m0, s84, %d" % ((i & 3) * 2048))
        a("s_add_u32 s72, s85, %d" % (i * 65536))
        dma(4, SW2, "s72", 0, ("w2", i))
        a("s_add_u32 s72, s72, 7168")
        dma(4, SW2, "s72", 1024, ("w2", i))

    hreg = lambda i, tt: HB + 8 * (i % 3) + 4 * tt

    def hload(i):
        if cfg.abl & 1:
            return
        if i > 0:
            a("s_add_u32 s86, s86, 0x40000")
        for tt in range(2):
            bload(hreg(i, tt), 4, 1, SWS, "s86", tt * 1024, "sc1", ("h", i))

    def w2read(i, nt):
        if cfg.abl & 2:
            return
        vm.wait(("w2", i))
        trread(WF + 4 * nt, 5 + nt, (i & 3) * 2048, 1024, ("wf", i, nt))

    def fslot(f):
        i, m = divmod(f, 4)
        nt, tt = ((0, 0), (0, 1), (1, 1), (1, 0))[m]
        vm.wait(("h", i))
        lg.wait(("wf", i, nt))
        d = FA + 16 * (2 * tt + nt)
        if not cfg.abl & 4:
            mfma32(d, WF + 4 * nt, hreg(i, tt), None if i == 0 else d)
        if m == 1 and i + 1 < NS:
            deferred.append(lambda: w2read(i + 1, 0))
        if m == cfg.dmam and i + 4 < NS:
            deferred.append(lambda: w2dma(i + 4))
        if m == 3:
            if i + 1 < NS:
                deferred.append(lambda: w2read(i + 1, 1))
            if i + 3 < NS:
                deferred.append(lambda: hload(i + 3))

    def park(tt, nt):
        d = FA + 16 * (2 * tt + nt)
        for q in range(8):
            a("v_cvt_pk_bf16_f32 %s, %s, %s" % (vr(d + q), vr(d + 2 * q), vr(d + 2 * q + 1)))
        for q in range(2):
            dsw("ds_write_b128", 4, d + 4 * q, 4, tt * 32 * PART_STRIDE + nt * 64 + q * 32)

    def park_addr():
        a("v_and_b32 v4, 31, v0")
        a("v_mul_u32_u24 v4, %d, v4" % PART_STRIDE)
        a("v_lshrrev_b32 v5, 5, v0")
        a("v_lshl_add_u32 v4, v5, 4, v4")
        a("v_add_u32 v4, s84, v4")

    hooks = {}

    def hook(j, t, i, f):
        hooks.setdefault((j, t, i), []).append(f)

    n1 = cfg.n1
    for n in range(cfg.hnow, 6):
        tl = (n - cfg.hnow) * cfg.hgap + cfg.hoff
        hook(tl >> 2, tl & 3, 9, lambda n=n: (shadow.extend(hlist[n]), run_shadow(1000)))
    assert (5 - cfg.hnow) * cfg.hgap + cfg.hoff <= cfg.hflag < 4 * (n1 - 2)
    hook(cfg.hflag >> 2, cfg.hflag & 3, 12, lambda: (vm.wait("hst"), set_flag(7, "s80"), stamp(1) if cfg.hst else None))
    hook(n1 - 2, 0, 8, lambda: flag_load(7, cfg.fsh, "s87", "hf"))
    hook(n1 - 2, 3, 12, lambda: (vm.wait("hf"), stamp(2) if cfg.hst else None, check_flags("h", 7, cfg.fsh, "s87"), stamp(3) if cfg.hst else None))
    for i in range(4):
        hook(n1 - 3 + (i >> 1), 1 + (i & 1), 7, lambda i=i: w2dma(i))
    for i in range(3):
        hook(n1 - 1, i, 7, lambda i=i: hload(i))
    hook(n1 - 1, 3, 7, lambda: (w2read(0, 0), w2read(0, 1)))
    pat = [int(ch) for ch in str(cfg.fpat)]
    slots = [(j, t, pos) for j in range(n1, nA) for t in range(4) for pos in ((13,), (7, 13))[pat[t] - 1]]
    for f in range(4 * NS):
        hook(*slots[f], lambda f=f: fslot(f))
    tl = slots[4 * NS - 1][0] * 4 + slots[4 * NS - 1][1] + 1
    assert tl + 3 < 4 * nA
    hook(tl >> 2, tl & 3, 6, park_addr)
    for n, (nt, tt) in enumerate(((0, 0), (0, 1), (1, 1), (1, 0))):
        hook((tl + n) >> 2, (tl + n) & 3, 7, lambda tt=tt, nt=nt: park(tt, nt))
    if cfg.hst:
        for n in range(4):
            hook(n1 + 4 * n, 0, 1, lambda n=n: stamp(4 + n))
    if cfg.alow:
        tl = 4 * nA - cfg.alow
        hook(tl >> 2, tl & 3, 0, lambda: a("s_setprio 0"))
    if cfg.bst == 4:
        for n, j in enumerate(range(0, nA, 2)):
            hook(j, 0, 0, lambda n=n: stamp(2 + n, True))
    att_run(nA, hooks)
    vm.drain()
    a("s_branch L_att_done")

    a.label("L_loader")
    vm.items = []
    lg.items = []

    def b_setup():
        a("; waves 4-7: W1 DMA offsets v56/v57 (sixth tile out of range where the next group owns it), wo DMA offset v4, flagQ row s79")
        a("""
        v_mul_u32_u24 v56, 2752, v4
        v_add_u32 v56, v56, v6
        s_lshr_b32 s72, 0x5b, s61
        s_and_b32 s72, s72, 1
        s_lshl_b32 s72, s72, 23
        v_and_b32 v57, 64, v6
        v_mad_u32_u24 v57, v57, s72, v56
        v_bfe_u32 v6, v4, 1, 2
        v_lshlrev_b32 v6, 1, v6
        v_xor_b32 v6, v6, v5
        v_lshlrev_b32 v6, 4, v6
        v_lshl_add_u32 v4, v4, 10, v6
        v_min_u32 v5, %d, v0
        v_lshlrev_b32 v5, 7, v5
        s_lshr_b32 s79, s64, 1
        s_lshl_b32 s79, s79, 10
        s_add_u32 s79, s79, %d
        s_and_b32 s73, s60, 3
        s_lshl_b32 s72, s69, 6
        s_mul_i32 s80, s73, %d
        s_add_u32 s80, s80, s72
        """ % (cfg.pfn - 1, WS_FLAGQ, 16 * 2752))

        a("v_mov_b32 v3, 0xdddddddd")

    issued = cfg.lead
    setup1()
    state = {"issued": issued}

    def b_step(c):
        if c in skip_bar:
            return
        vm.wait(("w", c + 1 if c + 1 in skip_bar else c))
        if cfg.bst == 2:
            stamp(c, True)
        if cfg.bst == 3 and c == 0:
            stamp(9, True)
        a("s_barrier")
        if cfg.bst == 1:
            stamp(c, True)
        if c in (0, 8, 12, 15):
            stamp({0: 3, 8: 4, 12: 5, 15: 6}[c])
        if c == cfg.bload - 1:
            flag_load(7, 4, "s79", "qf")
        if c == cfg.bload:
            vm.wait("qf")
            check_flags("q", 7, 4, "s79")
            stamp(7)
            att_loads("b")
        lim = c + 2
        if cfg.xslot == 12 and c == 9:
            lim = 12
        if cfg.xslot == 11 and c in (8, 9):
            lim = c + 3
        if cfg.xslot and c >= 11:
            lim = c + cfg.xrun
        while state["issued"] < min(15, max(3, lim)):
            state["issued"] += 1
            issue_chunk(state["issued"])
        if c == 1:
            setup2()
        if cfg.pf1_at == 12 + c:
            assert c >= 1
            pf1()
        if c == 2:
            setup3()
        if c == 3:
            b_setup()
        if c == cfg.l2w:
            pfl2(SW1)
        if c == cfg.pfe:
            a("; memory-side prefetch of w2 and wo")
            bload(32, 1, 31, SW2, "s100", 0, "", "pf")
            bload(32, 1, 31, SWO, "s100", 0, "", "pf")
        if c == 4:
            for op in init1:
                a(op)
        if c == 5:
            for op in init2:
                a(op)
        if c == 7:
            a("s_waitcnt lgkmcnt(0)")
            a("s_add_u32 %s, %s, 0x%x" % (sr(sTAG), sr(sTAG), EPOCH_INC))

    def b_att():
        a("s_barrier")
        stamp(8)
        a("s_setprio 1")
        if cfg.kv3:
            kvload(2)

    bhooks = {}
    for c in range(17):
        f = (lambda c=c: b_step(c)) if c < 16 else b_att
        if c <= cfg.bjoin:
            f()
        else:
            tl = (c - cfg.bjoin) * cfg.btile - 1
            bhooks[(tl >> 2, tl & 3, 13)] = [f]

    def wo_dma(lo, hi):
        if cfg.abl & 8:
            return
        if lo == 0:
            a("; wo tile -> LDS [0, 64K), a few rows per score tile")
            a("s_and_b32 s78, s60, 3")
            a("s_lshl_b32 s76, s78, 17")
            a("s_lshl_b32 s73, s67, 7")
            a("s_add_u32 s76, s76, s73")
            a("s_lshl_b32 s78, s78, 14")
        for i in range(lo, hi):
            a("s_add_u32 m0, s78, %d" % (i * 1024))
            a("s_add_u32 s73, s76, %d" % (i * 8192))
            dma(4, SWO, "s73", 0, "wo")

    nl = cfg.pfn
    batches = [(SW2, i) for i in range(-(-11 // nl))] + [(SWO, i) for i in range(-(-4 // nl))]

    def pf_late(n):
        if cfg.abl & 16:
            return
        if n == 0:
            a("; memory-side prefetch of w2 (in k order) and wo, a few lines per wave at a time")
            a("s_and_b32 s90, s60, 3")
            a("s_lshl2_add_u32 s90, s2, s90")
            a("s_mul_i32 s90, s90, %d" % (nl * 128))
        a("s_add_u32 s72, s90, %d" % (batches[n][1] * nl * 131072))
        bload(7, 1, 5, batches[n][0], "s72", 0, "", "pf")

    for n in range(len(batches) if cfg.pfe > 90 else 0):
        tl = cfg.pfl + n * cfg.pfg
        bhooks[(tl >> 2, tl & 3, 7)] = [lambda n=n: pf_late(n)]
    for n, lo in enumerate(range(0, 16, cfg.won)):
        bhooks[((cfg.wol + n) >> 2, (cfg.wol + n) & 3, 8)] = [lambda lo=lo: wo_dma(lo, lo + cfg.won)]
    if cfg.bst == 4:
        for j in range(nB):
            bhooks.setdefault((j, 0, 0), []).append(lambda j=j: stamp(2 + j, True))
    att_run(nB, bhooks)
    vm.drain()

    OW = OA + 48
    WOF, OFR, AC, G, Z, X, SR = 128, 24, 8, 64, 96, 104, 112
    a.label("L_att_done")
    stamp(10)
    if cfg.bst == 4:
        stamp(14, True)
    a("s_setprio 0")
    a("s_and_b32 s73, s60, 1")
    a("s_lshl_b32 s73, s73, 9")
    a("s_sub_u32 s76, s95, s73")
    a("""
    s_and_b32 s74, s60, 3
    s_lshr_b32 s75, s60, 2
    v_lshrrev_b32 v14, 3, v0
    v_and_b32 v7, 7, v0
    v_lshlrev_b32 v7, 4, v7
    v_lshl_add_u32 v14, v14, 10, v7
    s_lshl3_add_u32 s78, s66, s60
    s_lshl_b32 s78, s78, 13
    s_lshl_b32 s79, s67, 7
    s_add_u32 s78, s78, s79
    """)
    bload(60, 4, 7, SB2, "s79", 0, "", "xb")
    bload(56, 4, 14, SX, "s78", 0, "", "xb")
    lg.drain()
    a("s_barrier")
    for src in range(3):
        d = SB + 10 * src
        dsr("ds_read_b128", d, 4, 9, src * 2304, src)
        dsr("ds_read_b128", d + 4, 4, 9, src * 2304 + 1024, src)
        dsr("ds_read_b32", d + 8, 1, 10, src * 2304 + 2048, src)
    for src in range(3):
        lg.wait(src)
        for i in range(0, 8, 2):
            a("v_pk_add_f32 %s, %s, %s" % (vr(OW + i, 2), vr(OW + i, 2), vr(SB + 10 * src + i, 2)))
        a("v_add_f32 %s, %s, %s" % (vr(OW + 8), vr(OW + 8), vr(SB + 10 * src + 8)))
    a("v_pk_mul_f32 v[12:13], %s, 0 op_sel_hi:[1,0]" % vr(OW, 2))
    for i in range(2, 8, 2):
        a("v_pk_fma_f32 v[12:13], %s, 0, v[12:13] op_sel_hi:[1,0,1]" % vr(OW + i, 2))
    a("""
    v_add_f32 v12, v12, %s
    v_add_f32 v12, v12, v13
    v_cmp_nle_f32 vcc, 0x30800000, v12
    s_mov_b64 s[72:73], vcc
    v_cmp_nge_f32 vcc, 0x5d800000, v12
    s_or_b64 s[72:73], s[72:73], vcc
    """ % vr(OW + 8))
    a("s_branch L_slow" if cfg.force_slow else "s_cbranch_scc1 L_slow")
    a.label("L_norm")
    a("v_rcp_f32 v12, %s" % vr(OW + 8))
    for i in range(0, 8, 2):
        a("v_pk_mul_f32 %s, %s, v[12:13] op_sel_hi:[1,0]" % (vr(OW + i, 2), vr(OW + i, 2)))
    for q in range(4):
        a("v_cvt_pk_bf16_f32 %s, %s, %s" % (vr(16 + q), vr(OW + 2 * q), vr(OW + 2 * q + 1)))
    a("v_and_b32 v16, -2, v16")
    bstore(16, 4, 11, SWS, "s76", 0, "sc1", "ost")
    stamp(11)
    a("v_mov_b32 v2, v14")
    a("v_lshrrev_b32 v3, 3, v0")
    a("""
    v_mul_u32_u24 v4, %d, v3
    s_mul_i32 s72, s60, %d
    s_add_u32 s72, s72, %d
    v_add3_u32 v4, v4, v7, s72
    """ % (PART_STRIDE, 8 * PART_STRIDE, L_W2))
    for j in range(4):
        dsr("ds_read_b128", G + 4 * j, 4, 4, j * W2_REGION, "g")
    a("""
    v_bfe_u32 v4, v0, 2, 2
    v_bfe_u32 v5, v0, 4, 1
    v_lshl_add_u32 v4, v5, 2, v4
    v_lshrrev_b32 v5, 1, v4
    v_lshlrev_b32 v92, 7, v4
    v_lshl_add_u32 v92, v5, 5, v92
    v_lshrrev_b32 v6, 5, v0
    v_lshl_add_u32 v92, v6, 11, v92
    v_and_b32 v4, 3, v0
    v_lshl_add_u32 v92, v4, 3, v92
    s_lshl_b32 s72, s75, 15
    v_add_u32 v92, s72, v92
    v_xor_b32 v93, 32, v92
    v_xor_b32 v94, 64, v92
    v_xor_b32 v95, 0x60, v92
    s_barrier
    """)

    def oloads(first=0):
        for ks in range(first, 8):
            bload(OFR + 4 * ks, 4, 1, SWS, ("s76", "s77", "s80", "s81")[ks >> 1], (ks & 1) * 2048, "sc1", ("o", ks))

    fill = ("""
    s_lshl2_add_u32 s72, s66, s74
    s_lshr_b32 s76, s72, 1
    s_lshl1_add_u32 s76, s76, s75
    s_lshl_b32 s76, s76, 14
    s_and_b32 s72, s72, 1
    s_lshl_b32 s72, s72, 10
    s_add_u32 s76, s76, s72
    s_add_u32 s76, s76, %d
    s_add_u32 s77, s76, 0x1000
    s_add_u32 s80, s76, 0x2000
    s_add_u32 s81, s76, 0x3000
    v_mul_u32_u24 v3, %d, v3
    v_lshl_add_u32 v3, v7, 1, v3
    s_mul_i32 s72, s60, %d
    s_add_u32 s72, s72, %d
    v_add_u32 v3, s72, v3
    v_and_b32 v5, 15, v0
    v_mul_u32_u24 v5, %d, v5
    v_and_b32 v4, 48, v0
    s_mul_i32 s72, s60, %d
    s_add_u32 s72, s72, %d
    v_add3_u32 v5, v5, v4, s72
    s_mov_b32 s82, 0x3f80
    s_mov_b32 s83, 0x3f800000
    """ % (WS_QO, SUM_STRIDE, 8 * SUM_STRIDE, L_SUM, SUM_STRIDE, 16 * SUM_STRIDE, L_SUM)).strip().split("\n")
    gate = ["v_mov_b32 %s, 0" % vr(Z + i) for i in range(8)]
    gate.append(lambda: lg.wait("g"))
    for j in range(5):
        if j == 4:
            gate.append(lambda: vm.wait("xb"))
        for q in range(4):
            src = G + 4 * j + q if j < 4 else 60 + q
            gate.append("v_dot2c_f32_bf16 %s, s82, %s" % (vr(Z + 2 * q), vr(src)))
            gate.append("v_dot2c_f32_bf16 %s, s83, %s" % (vr(Z + 2 * q + 1), vr(src)))
    for q in range(4):
        gate.append("v_lshlrev_b32 %s, 16, %s" % (vr(X + 2 * q), vr(56 + q)))
        gate.append("v_and_b32 %s, s89, %s" % (vr(X + 1 + 2 * q), vr(56 + q)))
    gate += ["v_mul_f32 %s, 0x%x, %s" % (vr(G + i), NLOG2E, vr(Z + i)) for i in range(8)]
    gate += ["v_exp_f32 %s, %s" % (vr(G + i), vr(G + i)) for i in range(8)]
    gate += ["v_add_f32 %s, 1.0, %s" % (vr(G + i), vr(G + i)) for i in range(8)]
    gate += ["v_rcp_f32 %s, %s" % (vr(G + i), vr(G + i)) for i in range(8)]
    gate += ["v_mul_f32 %s, %s, %s" % (vr(Z + i), vr(Z + i), vr(G + i)) for i in range(8)]

    def wo_reads(oat, per):
        for ks in range(8):
            for ct in range(4):
                trread(WOF + (ks * 4 + ct) * 4, 92 + ct, ks * 4096, 1024, ("wo", ks))
                run_shadow(per)
            if ks == oat:
                run_shadow(1000)
                vm.wait("ost")
                oloads()

    vm_t, lg_t = list(vm.items), list(lg.items)
    a("s_cmp_eq_u32 s63, 1")
    a("s_cbranch_scc1 L_tail_b")
    shadow.extend(fill)
    wo_reads(7, 1)
    shadow.extend(gate)
    run_shadow(1000)
    a("s_branch L_tail_j")
    a.label("L_tail_b")
    vm.items, lg.items = vm_t, lg_t
    shadow.extend(fill + gate)
    run_shadow(1000)
    wo_reads(cfg.oat, 0)
    a.label("L_tail_j")
    stamp(12)
    a("s_mov_b32 s73, 0")
    lg.drain()
    for ks in range(8):
        a.label("L_wo_%d" % ks)
        vm.wait(("o", ks))
        a("v_and_b32 v6, 1, %s" % vr(OFR + 4 * ks))
        a("v_cmp_ne_u32 vcc, 0, v6")
        a("s_cbranch_vccnz L_oretry_%d" % ks)
        a.label("L_ogo_%d" % ks)
        for ct in range(4):
            d = AC + 4 * ct
            mfma16(d, WOF + (ks * 4 + ct) * 4, OFR + 4 * ks, None if ks == 0 else d)
    stamp(13)
    for ct in range(4):
        dsw("ds_write_b128", 5, AC + 4 * ct, 4, ct * 64)
    lg.drain()
    a("s_barrier")
    stamp(14)
    dsr("ds_read_b128", SR, 4, 3, 0, 0)
    dsr("ds_read_b128", SR + 8, 4, 3, SUM_SIZE, 0)
    dsr("ds_read_b128", SR + 4, 4, 3, 16, 1)
    dsr("ds_read_b128", SR + 12, 4, 3, SUM_SIZE + 16, 1)
    for h in range(2):
        lg.wait(h)
        for i in range(4 * h, 4 * h + 4, 2):
            a("v_pk_add_f32 %s, %s, %s" % (vr(SR + i, 2), vr(SR + i, 2), vr(SR + 8 + i, 2)))
        for i in range(4 * h, 4 * h + 4, 2):
            a("v_pk_fma_f32 %s, %s, %s, %s" % (vr(SR + i, 2), vr(SR + i, 2), vr(Z + i, 2), vr(X + i, 2)))
        for q in range(2 * h, 2 * h + 2):
            a("v_cvt_pk_bf16_f32 %s, %s, %s" % (vr(G + q), vr(SR + 2 * q), vr(SR + 2 * q + 1)))
    bstore(G, 4, 2, SOUT, "s78", 0, ("", "sc1", "nt", "sc0 sc1", "sc0 sc1 nt")[cfg.omod])
    a("s_or_b32 s72, s2, s60")
    a("s_cmp_lg_u32 s72, 0")
    a("s_cbranch_scc1 L_noepoch")
    set_flag(7, "0")
    a.label("L_noepoch")
    if cfg.stamps:
        a("s_waitcnt vmcnt(0)")
        stamp(15)
        if cfg.probe is not None:
            a("s_sub_u32 s72, %s, s4" % sr(sSTAMP + cfg.probe))
            if cfg.stamps == 2:
                a("s_lshr_b32 s72, s72, 3")
            else:
                a("s_lshl_b32 s72, s72, %d" % cfg.probesh)
            a("s_cmp_lg_u32 s2, %d" % cfg.probewg)
            a("s_cselect_b32 s72, 0, s72")
            a("s_cmp_lg_u32 s60, %d" % cfg.probew)
            a("s_cselect_b32 s72, 0, s72")
            a("s_memrealtime s[22:23]")
            a("s_waitcnt lgkmcnt(0)")
            a("s_mov_b32 s73, s22")
            a.label("L_probe")
            a("s_memrealtime s[22:23]")
            a("s_waitcnt lgkmcnt(0)")
            a("s_sub_u32 s22, s22, s73")
            a("s_cmp_lt_u32 s22, s72")
            a("s_cbranch_scc1 L_probe")
        a("s_lshl3_add_u32 s72, s2, s60")
        a("s_lshl_b32 s72, s72, 6")
        a("s_add_u32 s72, s72, %d" % WS_STAMP)
        for i in range(16):
            a("v_mov_b32 %s, %s" % (vr(80 + i), sr(sSTAMP + i)))
        a("s_mov_b64 exec, 1")
        for i in range(4):
            bstore(80 + 4 * i, 4, 1, SWS, "s72", 16 * i)
    a.label("L_end")
    a("s_endpgm")

    for ks in range(8):
        a.label("L_oretry_%d" % ks)
        a("s_add_u32 s73, s73, 1")
        a("s_cmp_ge_u32 s73, %d" % SPIN_MAX)
        a("s_cbranch_scc1 L_ogo_%d" % ks)
        a("s_waitcnt vmcnt(0)")
        oloads(ks)
        a("s_branch L_wo_%d" % ks)

    for tag, vt, lanes, soff in stubs:
        a.label("L_poll_" + tag)
        a("s_mov_b32 s73, 0")
        a.label("L_poll2_" + tag)
        a("s_sleep %d" % cfg.sleep)
        flag_load(vt, lanes, soff, None)
        a("s_add_u32 s73, s73, 1")
        a("s_waitcnt vmcnt(0)")
        a("s_cmp_ge_u32 s73, %d" % SPIN_MAX)
        a("s_cbranch_scc1 L_polled_" + tag)
        a("v_cmp_ne_u32 vcc, %s, %s" % (sr(sTAG), vr(vt)))
        a("s_cbranch_vccnz L_poll2_" + tag)
        a("s_branch L_polled_" + tag)

    a.label("L_slow")
    CN = SB + 16
    a("s_waitcnt vmcnt(0)")
    a("v_mov_b32 v13, 0xff800000")
    a("s_mov_b32 s82, s83")
    a("s_mov_b32 s81, 64")
    a.label("L_slow1")
    bload(KV, 4, 252, SWS, "s82", 0, "sc1")
    a("s_add_u32 s82, s82, 2048")
    a("s_waitcnt vmcnt(0)")
    mfma32(SB, KV, QR + 12, None)
    for i in range(0, 16, 2):
        a("v_max3_f32 v13, v13, %s, %s" % (vr(SB + i), vr(SB + i + 1)))
    a("s_sub_u32 s81, s81, 1")
    a("s_cmp_lg_u32 s81, 0")
    a("s_cbranch_scc1 L_slow1")
    a("v_mov_b32 v15, v13")
    a("v_permlane32_swap_b32 v15, v13")
    a("v_max_f32 v13, v15, v13")
    for i in range(16):
        a("v_sub_f32 %s, 0, v13" % vr(CN + i))
        a("v_mov_b32 %s, 0" % vr(OW + i))
    a("s_mov_b32 s82, s83")
    a("s_mov_b32 s81, 64")
    a.label("L_slow2")
    kvload(0)
    a("s_waitcnt vmcnt(0)")
    mfma32(SB, KV, QR + 12, CN)
    for i in range(16):
        a("v_exp_f32 %s, %s" % (vr(SB + i), vr(SB + i)))
    smf(OW, KV + 4, SB)
    smf(OW, KV + 8, SB + 8)
    a("s_sub_u32 s81, s81, 1")
    a("s_cmp_lg_u32 s81, 0")
    a("s_cbranch_scc1 L_slow2")
    a("s_branch L_norm")
    a.label("L_code_end")
    a("s_endpgm")

    added = a.fix()
    return a.text().replace('FSH', str(cfg.fsh)).replace('FROW', str(cfg.fsh + 5)), added


HEADER = """; Kernarg layout for this problem (88 bytes, ptrs only, base s[0:1]):
; @launch grid=(256,1,1) block=(512,1,1) lds=163840
.amdgcn_target "amdgcn-amd-amdhsa--gfx950"
.text
.globl {k}
.p2align 8
.type {k},@function
{k}:
"""

FOOTER = """.section .rodata,"a"
.p2align 6
.amdhsa_kernel {k}
  .amdhsa_next_free_vgpr 256
  .amdhsa_next_free_sgpr 102
  .amdhsa_accum_offset 256
  .amdhsa_group_segment_fixed_size 0
  .amdhsa_kernarg_size 88
  .amdhsa_user_sgpr_count 2
  .amdhsa_user_sgpr_kernarg_segment_ptr 1
  .amdhsa_system_sgpr_workgroup_id_x 1
.end_amdhsa_kernel
"""


def build(**kw):
    cfg = Cfg()
    for k, v in kw.items():
        setattr(cfg, k, v)
    body, added = gen(cfg)
    return HEADER.format(k=KERNEL) + body + FOOTER.format(k=KERNEL), added


if __name__ == "__main__":
    out = sys.argv[1] if len(sys.argv) > 1 else "cdna_kernels/%s.s" % NAME
    kw = {}
    for arg in sys.argv[2:]:
        k, v = arg.split("=")
        kw[k] = int(v)
    text, added = build(**kw)
    open(out, "w").write(text)
    print("wrote", out, "lines", text.count("\n"), "nops added", added)
```

```python
import sys
import os
sys.path.insert(0, os.path.dirname(os.path.abspath(__file__)))
from asmlib import Asm, vr, sr

NAME = "recurrent_scan__softmax_full_mha__dense_activation_squared_relu__prompt"
KERNEL = NAME + "_kernel"

WS_FLAGQ = 0x1200
WS_FLAGH = 0x60000
WS_STAMP = 0x10000
WS_QO = 0x100000
WS_KV = 0x300000
WS_HF = 0x700000
WS_END = WS_HF + 86 * 65536
EPOCH_INC = 0x9E3779B9
SPIN_MAX = 1 << 18

L_RING = 65536
L_OPART = 65536
L_W2 = L_OPART + 55296
W2_REGION = 10240
PART_STRIDE = 144
SUM_STRIDE = 272
SUM_SIZE = 64 * SUM_STRIDE
L_SUM = L_OPART

SX, SWQ, SWO, SW1, SB1, SW2, SB2, SOUT, SWS = 24, 28, 32, 36, 40, 44, 48, 52, 56
sW, sCG, sTB, sRW, sP, sQB, sTBF, sCB, sTAG, sCT0 = 60, 61, 62, 63, 64, 65, 66, 67, 68, 69
sVM = 70
sSTAMP = 4

QSCALE = 0x3EB8AA3B
NLOG2E = 0xBFB8AA3B
NS = 22


class Cfg:
    abl = 0
    bst = 0
    xslot = 0
    xrun = 2
    n1 = 8
    nA = 22
    gap = 1
    kvt = 0
    kvi = 4
    dmam = 2
    fpat = 2221
    pf1_at = 14
    pfc_at = 99
    pfc1 = 0
    w2_at = 10
    pfl = 9
    wol = 15
    won = 1
    stamps = 0
    force_slow = 0
    flag_chunk = 10
    lead = 2
    defer = 0
    look = 5
    pfq_at = 99
    bload = 15
    bjoin = 16
    btile = 2
    sleep = 6
    w0_at = 10
    w1_at = 10
    hpre = 2
    hbar = 0
    hnow = 2
    hgap = 2
    hoff = 0
    kv3 = 1
    fsh = 4
    pfe = 99
    l2q = 7
    rot = 0
    l2w = 99
    pfn = 11
    alow = 0
    pfg = 1
    hflag = 11
    probe = None
    omod = 1
    oat = 4
    probewg = 100
    probew = 0
    probesh = 4
    hst = 0


def srd(s):
    return sr(s, 4)


class Queue:
    def __init__(self, a, name, maxn):
        self.a, self.name, self.maxn, self.items = a, name, maxn, []

    def push(self, tag):
        self.items.append(tag)

    def wait(self, *tags):
        last = max((i for i, t in enumerate(self.items) if t in tags), default=-1)
        if last < 0:
            return
        n = len(self.items) - 1 - last
        self.a("s_waitcnt %s(%d)" % (self.name, min(n, self.maxn)))
        self.items = self.items[last + 1:]

    def drain(self):
        self.a("s_waitcnt %s(0)" % self.name)
        self.items = []


def gen(cfg):
    a = Asm()
    nA = cfg.nA
    nB = 32 - nA
    vm = Queue(a, "vmcnt", 63)
    lg = Queue(a, "lgkmcnt", 15)

    def stamp(i, force=False):
        if cfg.bst and not force and i != 0:
            return
        if cfg.stamps and (cfg.probe is None or i in (0, cfg.probe)):
            a("%s s[22:23]" % ("s_memtime" if cfg.stamps == 2 else "s_memrealtime"))
            a("s_waitcnt lgkmcnt(0)")
            a("s_mov_b32 %s, s22" % sr(sSTAMP + i))

    def mfma32(d, x, y, c):
        a("v_mfma_f32_32x32x16_bf16 %s, %s, %s, %s" % (vr(d, 16), vr(x, 4), vr(y, 4), "0" if c is None else vr(c, 16)))

    def mfma16(d, x, y, c):
        a("v_mfma_f32_16x16x32_bf16 %s, %s, %s, %s" % (vr(d, 4), vr(x, 4), vr(y, 4), "0" if c is None else vr(c, 4)))

    def smf(d, x, y):
        a("v_smfmac_f32_32x32x32_bf16 %s, %s, %s, v3" % (vr(d, 16), vr(x, 4), vr(y, 8)))

    def bload(d, n, va, s, so, off=0, mod="", tag=None):
        op = {1: "dword", 2: "dwordx2", 4: "dwordx4"}[n]
        a("buffer_load_%s %s, %s, %s, %s offen offset:%d %s" % (op, vr(d, n), vr(va), srd(s), so, off, mod))
        vm.push(tag)

    def bstore(d, n, va, s, so, off=0, mod="", tag=None):
        op = {1: "dword", 2: "dwordx2", 4: "dwordx4"}[n]
        a("buffer_store_%s %s, %s, %s, %s offen offset:%d %s" % (op, vr(d, n), vr(va), srd(s), so, off, mod))
        vm.push(tag)

    def dma(va, s, so, off=0, tag=None):
        a("buffer_load_dwordx4 %s, %s, %s offen offset:%d lds" % (vr(va), srd(s), so, off))
        vm.push(tag)

    def dsr(op, d, n, va, off, tag=None):
        a("%s %s, %s offset:%d" % (op, vr(d, n), vr(va), off))
        lg.push(tag)

    def dsw(op, va, d, n, off, tag=None):
        a("%s %s, %s offset:%d" % (op, vr(va), vr(d, n), off))
        lg.push(tag)

    def trread(d, va, off, second, tag=None):
        dsr("ds_read_b64_tr_b16", d, 2, va, off, tag)
        dsr("ds_read_b64_tr_b16", d + 2, 2, va, off + second, tag)

    def set_flag(vt, soff):
        a("v_mov_b32 %s, %s" % (vr(vt), sr(sTAG)))
        a("s_mov_b64 exec, 1")
        bstore(vt, 1, 1, SWS, soff, 0, "sc0 sc1")
        a("s_mov_b64 exec, -1")

    stubs = []

    def check_flags(tag, vt, lanes, soff):
        a("v_cmp_ne_u32 vcc, %s, %s" % (sr(sTAG), vr(vt)))
        a("s_cbranch_vccnz L_poll_" + tag)
        a.label("L_polled_" + tag)
        stubs.append((tag, vt, lanes, soff))

    def flag_load(vt, shift, soff, tag):
        a("v_and_b32 %s, 31, v0" % vr(vt))
        a("v_lshlrev_b32 %s, %d, %s" % (vr(vt), shift, vr(vt)))
        bload(vt, 1, vt, SWS, soff, 0, "sc0 sc1", tag)

    sizes = {SX: 2048 * 1024, SWQ: 512 * 3072, SWS: WS_END, SW1: 512 * 2752, SB1: 2752,
             SWO: 512 * 1024, SW2: 1376 * 1024, SB2: 1024, SOUT: 2048 * 1024}
    RAW = 128

    def xloads():
        for j in range(8):
            bload(RAW + j * 4, 4, 14, SX, "s101", j * 128, "", ("x", j))

    stamp(0)
    a("""
    s_load_dwordx2 s[24:25], s[0:1], 0
    s_getpc_b64 s[72:73]
    L_pc:
    s_cmpk_ge_u32 s2, 256
    s_cbranch_scc1 L_end
    s_lshr_b32 s74, s2, 3
    s_lshl_b32 s74, s74, 11
    v_lshrrev_b32 v8, 5, v0
    v_lshl_add_u32 v8, v8, 7, s74
    v_min_u32 v8, L_code_end-L_pc, v8
    v_mov_b32 v9, 0
    v_lshl_add_u64 v[8:9], v[8:9], 0, s[72:73]
    global_load_dword v7, v[8:9], off
    s_lshl_b32 s72, s2, 4
    s_and_b32 s72, s72, 0x180
    v_add_u32 v4, s72, v0
    v_bfe_u32 v4, v4, 3, 6
    v_and_b32 v5, 7, v0
    v_lshlrev_b32 v14, 10, v4
    v_lshl_add_u32 v14, v5, 4, v14
    s_lshr_b32 s67, s2, 5
    s_and_b32 s73, s2, 6
    s_lshl2_add_u32 s62, s73, s67
    s_lshl_b32 s101, s62, 16
    s_mov_b32 s26, %d
    s_mov_b32 s27, 0x20000
    v_bfe_u32 v24, v4, 1, 3
    v_xor_b32 v24, v24, v5
    v_lshlrev_b32 v15, 7, v4
    v_lshl_add_u32 v15, v24, 4, v15
    v_readfirstlane_b32 s60, v0
    v_and_b32 v0, 63, v0
    v_mov_b32 v24, 0
    v_mov_b32 v25, 0
    s_lshr_b32 s60, s60, 6
    s_cmp_ge_u32 s60, 4
    s_waitcnt lgkmcnt(0)
    """ % sizes[SX])
    vm.push("pf")
    if cfg.bst == 3:
        stamp(1, True)
    xloads()
    if cfg.bst == 3:
        stamp(2, True)
    if cfg.stamps:
        for i in range(3 if cfg.bst == 3 else 1, 16):
            a("s_mov_b32 %s, s4" % sr(sSTAMP + i))
    a("s_mov_b32 s63, 1")
    a("s_cbranch_scc1 L_ln")
    a("s_mov_b32 s63, 0")

    def setup1():
        for s, off in ((SWQ, 8), (SWS, 80), (SW1, 32), (SB1, 40), (SWO, 16), (SW2, 48), (SB2, 56), (SOUT, 64)):
            a("s_load_dwordx2 %s, s[0:1], %d" % (sr(s, 2), off))
        a("""
        s_mov_b32 s30, %d
        s_mov_b32 s31, 0x20000
        s_bfe_u32 s72, s2, 0x20003
        s_and_b32 s73, s2, 1
        s_lshl2_add_u32 s61, s73, s72
        s_and_b32 s74, s60, 3
        s_lshl_b32 s72, s61, 7
        s_mul_i32 s85, s74, %d
        s_add_u32 s85, s85, s72
        s_mul_i32 s87, s74, 6144
        s_add_u32 s87, s87, %d
        v_lshrrev_b32 v4, 3, v0
        v_bfe_u32 v6, v4, 1, 1
        v_lshlrev_b32 v6, 2, v6
        v_xor_b32 v6, v6, v5
        v_lshlrev_b32 v6, 4, v6
        v_mul_u32_u24 v13, 3072, v4
        v_add_u32 v13, v13, v6
        s_waitcnt lgkmcnt(0)
        """ % (sizes[SWQ], 16 * 3072, L_RING))

    def setup2():
        a("s_load_dword %s, %s, 0" % (sr(sTAG), sr(SWS, 2)))
        for s in (SW1, SWS, SB1, SWO, SW2, SB2, SOUT):
            a("s_mov_b32 %s, %d" % (sr(s + 2), sizes[s]))
            a("s_mov_b32 %s, 0x20000" % sr(s + 3))
        a("""
        s_and_b32 s73, s60, 3
        s_lshl2_add_u32 s100, s2, s73
        s_mul_i32 s100, s100, 1536
        v_min_u32 v31, 11, v0
        v_lshlrev_b32 v31, 7, v31
        s_bfe_u32 s72, s2, 0x20003
        s_and_b32 s73, s2, 7
        s_lshl2_add_u32 s66, s73, s72
        s_and_b32 s72, s72, 1
        s_lshl1_add_u32 s64, s73, s72
        s_lshr_b32 s65, s2, 4
        s_mul_i32 s69, s61, 43
        s_lshr_b32 s69, s69, 3
        s_mov_b32 s70, 0xffff
        s_mov_b32 s71, 0xffff
        v_lshlrev_b32 v1, 4, v0
        v_and_b32 v2, 15, v0
        v_lshrrev_b32 v3, 5, v0
        v_lshl_add_u32 v2, v3, 4, v2
        v_lshlrev_b32 v2, 4, v2
        """)

    def setup3():
        a("; attention offsets: s82 = next K/V tile, s83 = head base, s92-s95 = Q tiles, s96-s99 = O partial slots")
        a("""
        s_and_b32 s74, s60, 1
        s_lshr_b32 s75, s60, 1
        s_lshl1_add_u32 s72, s64, s74
        s_lshl_b32 s83, s72, 17
        s_add_u32 s83, s83, %d
        s_and_b32 s73, s75, 1
        s_lshl_b32 s73, s73, 16
        s_add_u32 s82, s83, s73
        s_lshl_b32 s72, s65, 6
        s_add_u32 s72, s72, s64
        s_lshl1_add_u32 s72, s72, s74
        s_lshl_b32 s72, s72, 10
        s_add_u32 s72, s72, %d
        s_mul_i32 s84, s74, %d
        s_add_u32 s84, s84, %d
        """ % (WS_KV, WS_QO, 12 * 2304, L_OPART))
        for t in range(4):
            a("s_xor_b32 s73, s75, %d" % (t ^ 3))
            a("s_mul_i32 %s, s73, %d" % (sr(96 + t), 3 * 2304))
            a("s_lshl_b32 s73, s73, 15")
            a("s_add_u32 %s, s72, s73" % sr(92 + t))
            a("s_add_u32 %s, %s, s84" % (sr(96 + t), sr(96 + t)))

    setup1()
    setup2()
    setup3()
    a("""
    s_add_u32 s82, s82, %d
    v_and_b32 v8, 0x33, v0
    v_and_b32 v9, 4, v0
    v_lshl_or_b32 v8, v9, 1, v8
    v_and_b32 v9, 8, v0
    v_lshrrev_b32 v9, 1, v9
    v_or_b32 v8, v8, v9
    v_lshlrev_b32 v11, 4, v8
    v_bfe_u32 v9, v0, 4, 1
    v_mul_u32_u24 v12, 0x1fe00, v9
    v_add_u32 v12, v12, v2
    v_mul_u32_u24 v14, 0x1fa00, v9
    v_add_u32 v14, v14, v2
    v_lshl_add_u32 v4, v4, 10, v6
    v_bfe_u32 v10, v0, 2, 2
    v_lshlrev_b32 v5, 5, v9
    v_lshl_add_u32 v5, v10, 7, v5
    v_and_b32 v9, 3, v0
    v_lshl_add_u32 v5, v9, 3, v5
    v_lshrrev_b32 v10, 1, v10
    v_lshl_add_u32 v8, v3, 10, v5
    v_xor_b32 v9, s75, v10
    v_lshl_add_u32 v8, v9, 6, v8
    v_add_u32 v8, %d, v8
    v_add_u32 v9, %d, v8
    v_lshl_add_u32 v5, v3, 9, v5
    v_lshl_add_u32 v5, v10, 6, v5
    v_lshrrev_b32 v10, 1, v0
    v_xor_b32 v10, v10, v0
    v_and_b32 v10, 1, v10
    v_mul_u32_u24 v10, 24, v10
    v_xor_b32 v5, v5, v10
    s_mul_i32 s84, s60, %d
    s_add_u32 s84, s84, %d
    v_add_u32 v5, s84, v5
    v_xor_b32 v6, 64, v5
    v_and_b32 v10, 31, v0
    s_lshl_b32 s72, s74, 12
    v_bfe_u32 v16, v10, 1, 3
    v_xor_b32 v16, v16, v3
    v_lshlrev_b32 v16, 4, v16
    v_lshl_add_u32 v16, v10, 7, v16
    v_add_u32 v16, s72, v16
    v_xor_b32 v17, 32, v16
    v_xor_b32 v18, 64, v16
    v_xor_b32 v19, 0x60, v16
    v_lshlrev_b32 v10, 1, v10
    v_lshl_add_u32 v10, v3, 20, v10
    """ % (nB * 2048, L_RING, 2 * 24576, W2_REGION, L_W2))
    for seg in range(3):
        for q in range(1, 4):
            a("v_mov_b32 %s, 0" % vr(112 + 4 * seg + q))
    for q in range(4):
        a("v_mov_b32 %s, 0x3f803f80" % vr(124 + q))
    a("v_mov_b32 v3, 0xdddddddd")
    a("""
    s_lshl1_add_u32 s72, s62, s74
    s_lshl1_add_u32 s73, s61, s75
    s_lshl_b32 s76, s73, 7
    s_add_u32 s76, s76, s72
    s_lshl_b32 s77, s76, 11
    s_lshl4_add_u32 s76, s72, s73
    s_lshl_b32 s76, s76, 11
    s_add_u32 s76, s76, %d
    s_add_u32 s77, s77, %d
    s_add_u32 s81, s69, s75
    s_lshl_b32 s78, s81, 7
    s_add_u32 s78, s78, s72
    s_lshl_b32 s78, s78, 10
    s_add_u32 s78, s78, %d
    s_lshl_b32 s79, s61, 6
    s_add_u32 s79, s79, s62
    s_lshl_b32 s79, s79, 4
    s_add_u32 s79, s79, %d
    s_lshl_b32 s80, s62, 3
    s_add_u32 s80, s80, s61
    s_lshl2_add_u32 s80, s80, s60
    s_lshl_b32 s80, s80, FSH
    s_add_u32 s80, s80, %d
    s_mul_i32 s72, s61, 43
    s_add_u32 s72, s72, 43
    s_lshr_b32 s72, s72, 3
    s_add_u32 s73, s81, 4
    s_add_u32 s88, s78, %d
    s_cmp_lt_u32 s73, s72
    s_cselect_b32 s88, s88, 0x40000000
    s_lshl_b32 s81, s81, 6
    """ % (WS_QO, WS_KV, WS_HF, WS_FLAGQ, WS_FLAGH, 8 * 65536))

    def slot_of(c):
        if not cfg.xslot or c < cfg.xslot:
            return (c & 3) * 24576
        return -L_RING if c == cfg.xslot else ((c - 1) & 3) * 24576

    skip_bar = (10,) if cfg.xslot else ()

    def issue_chunk(c):
        if cfg.rot:
            a("s_xor_b32 s73, s67, %d" % (c & 7))
            a("s_mul_i32 s73, s73, %d" % (64 * (3072 if c < 8 else 2752)))
            a("s_add_u32 s73, s73, %s" % ("s85" if c < 8 else "s80"))
        for m in range(6):
            blk, seg = divmod(m, 3)
            a("s_add_u32 m0, s87, %d" % (slot_of(c) + seg * 2048 + blk * 1024))
            if c < 8:
                a("s_add_u32 s72, %s, %d" % (("s73", blk * 8 * 3072 + seg * 1024) if cfg.rot else ("s85", (c * 64 + blk * 8) * 3072 + seg * 1024)))
                dma(13, SWQ, "s72", 0, ("w", c))
            else:
                a("s_add_u32 s72, %s, %d" % (("s73", blk * 8 * 2752 + seg * 128) if cfg.rot else ("s80", ((c - 8) * 64 + blk * 8) * 2752 + seg * 128)))
                dma(57 if seg == 2 else 56, SW1, "s72", 0, ("w", c))

    def layernorm(acts):
        def act(p):
            if acts.get(p):
                assert p >= 7
                a("s_cmp_eq_u32 s63, 1")
                a("s_cbranch_scc1 L_ln_%d" % p)
                for f in acts[p]:
                    f()
                a.label("L_ln_%d" % p)
        a.label("L_ln")
        a("v_mov_b32 v30, 0x3f803f80")
        a("s_mov_b32 s89, 0xffff0000")
        if cfg.rot:
            a("; K chunks are visited in the order c ^ (row block & 7): workgroups sharing weights fetch different chunks first")
            a("s_lshl_b32 s72, s67, 13")
            a("v_or_b32 v15, s72, v15")

        def xwrite(j):
            if cfg.rot:
                a("v_xor_b32 v23, 0x%x, v15" % (j << 13))
                a("ds_write_b128 v23, %s" % vr(RAW + j * 4, 4))
            else:
                a("ds_write_b128 v15, %s offset:%d" % (vr(RAW + j * 4, 4), j * 8192))

        for j in range(8):
            if cfg.bst == 3 and j == 0:
                stamp(3, True)
            vm.wait(("x", j))
            if cfg.bst == 3 and j in (0, 3, 7):
                stamp({0: 4, 3: 5, 7: 6}[j], True)
            act(j)
            for q in range(4):
                x = RAW + j * 4 + q
                a("v_dot2c_f32_bf16 v24, v30, %s" % vr(x))
                a("v_dot2c_f32_bf16 v25, %s, %s" % (vr(x), vr(x)))
        act(8)
        stamp(1)
        for ctl in ("quad_perm:[1,0,3,2]", "quad_perm:[2,3,0,1]", "row_half_mirror"):
            for r in (24, 25):
                a("v_add_f32_dpp %s, %s, %s %s row_mask:0xf bank_mask:0xf" % (vr(r), vr(r), vr(r), ctl))
        a("""
        v_mul_f32 v24, 0x3b000000, v24
        v_mul_f32 v25, 0x3b000000, v25
        v_fma_f32 v25, -v24, v24, v25
        v_max_f32 v25, 0, v25
        v_cvt_pk_bf16_f32 v24, v24, v25
        v_and_b32 v25, s89, v24
        v_add_f32 v25, 0x3727c5ac, v25
        v_cvt_pk_bf16_f32 v25, v25, v25
        v_and_b32 v25, s89, v25
        v_sqrt_f32 v25, v25
        v_lshlrev_b32 v24, 16, v24
        v_cvt_pk_bf16_f32 v25, v25, v25
        v_and_b32 v25, s89, v25
        v_rcp_f32 v26, v25
        v_mul_f32_e64 v28, -v24, v26
        """)
        for j in range(8):
            x = RAW + j * 4
            t = 192 + (j & 1) * 8
            for q in range(4):
                a("v_lshlrev_b32 %s, 16, %s" % (vr(t + 2 * q), vr(x + q)))
                a("v_and_b32 %s, s89, %s" % (vr(t + 2 * q + 1), vr(x + q)))
            for q in range(4):
                a("v_pk_fma_f32 %s, %s, v[26:27], v[28:29] op_sel_hi:[1,0,0]" % (vr(t + 2 * q, 2), vr(t + 2 * q, 2)))
            for q in range(4):
                a("v_cvt_pk_bf16_f32 %s, %s, %s" % (vr(x + q), vr(t + 2 * q), vr(t + 2 * q + 1)))
            if not cfg.defer:
                xwrite(j)
        if cfg.bst == 3:
            stamp(7, True)
        act(9)
        if cfg.defer:
            for j in range(8):
                xwrite(j)
        act(10)
        stamp(2)
        if cfg.bst == 3:
            stamp(8, True)

    def pfq():
        a("; memory-side prefetch of Wqkv")
        bload(7, 1, 31, SWQ, "s100", 0, "", "pf")

    def pfl2(which):
        a("; the die's workgroups pull their half of the weight columns into L2 together, four rows per wave")
        stride = 3072 if which == SWQ else 2752
        a("s_lshr_b32 s72, s2, 3")
        a("s_and_b32 s73, s60, 3")
        a("s_lshl2_add_u32 s72, s72, s73")
        a("s_mul_i32 s72, s72, %d" % (4 * stride))
        a("s_and_b32 s73, s2, 1")
        a("s_mul_i32 s73, s73, %d" % (512 if which == SWQ else 1344))
        a("s_add_u32 s72, s72, s73")
        a("v_lshrrev_b32 v20, 4, v0")
        a("v_mul_u32_u24 v20, %d, v20" % stride)
        if which == SWQ:
            a("v_bfe_u32 v21, v0, 2, 2")
            a("v_min_u32 v21, 2, v21")
            a("v_lshl_add_u32 v20, v21, 10, v20")
            a("v_and_b32 v21, 3, v0")
            a("v_lshl_add_u32 v20, v21, 7, v20")
        else:
            a("v_and_b32 v21, 15, v0")
            a("v_lshlrev_b32 v21, 7, v21")
            a("v_min_u32 v21, 1404, v21")
            a("v_add_u32 v20, v20, v21")
        bload(22, 1, 20, which, "s72", 0, "", "pf")

    def pfc(which):
        a("; lines at offset 384 of every KiB stream slowly on a miss: the die's workgroups pull them into L2 together")
        a("s_lshr_b32 s72, s2, 3")
        a("s_lshl2_add_u32 s72, s72, s60")
        a("s_mul_i32 s72, s72, 12288")
        a("v_lshlrev_b32 v20, 3, v31")
        if which == SWQ:
            a("s_bitcmp1_b32 s2, 0")
            a("s_cselect_b32 s72, 0x40000000, s72")
        bload(7, 1, 20, which, "s72", 384, "", "pf")

    def pf1():
        a("; memory-side prefetch of W1")
        bload(7 if cfg.pf1_at <= 10 else 32, 1, 31, SW1, "s100", 0, "", "pf")

    acts = {}
    if cfg.pfc_at == 0:
        save = list(vm.items)
        pfc(SWQ)
        vm.items = save
    elif cfg.pfc_at <= 10:
        acts.setdefault(cfg.pfc_at, []).append(lambda: pfc(SWQ))
    if cfg.pfq_at == 0:
        save = list(vm.items)
        pfq()
        vm.items = save
    elif cfg.pfq_at <= 10:
        acts.setdefault(cfg.pfq_at, []).append(pfq)
    if cfg.l2q == 0:
        save = list(vm.items)
        pfl2(SWQ)
        vm.items = save
    if cfg.l2q == 7:
        acts.setdefault(7, []).append(lambda: pfl2(SWQ))
    for c, p in enumerate((cfg.w0_at, cfg.w1_at, cfg.w2_at, 10)[:cfg.lead + 1]):
        acts.setdefault(p, []).append(lambda c=c: issue_chunk(c))
    if 8 <= cfg.l2q <= 10:
        acts.setdefault(cfg.l2q, []).insert(0, lambda: pfl2(SWQ))
    if cfg.pf1_at <= 10:
        acts.setdefault(cfg.pf1_at, []).append(pf1)
    if cfg.pfc1:
        acts.setdefault(10, []).append(lambda: pfc(SW1))
    layernorm(acts)
    a("s_cmp_eq_u32 s63, 1")
    a("s_cbranch_scc1 L_loader")

    QR, SB, WF, FA, OA, KV, HB = 8, 24, 56, 64, 128, 192, 228
    NKV = 3

    def att_init_ops():
        ops = ["v_mov_b32 %s, 0" % vr(OA + 16 * t + i) for t in range(4) for i in range(9)]
        ops2 = ["v_and_b32 v7, 27, v0", "v_cmp_eq_u32 vcc, 16, v7", "v_mov_b32 v7, 0x3f803f80", "v_cndmask_b32 v7, 0, v7, vcc"]
        ops2 += ["v_mov_b32 %s, v7" % vr(KV + 12 * b + 4 + q) for b in range(NKV) for q in range(8)]
        return ops, ops2

    def kvload(j):
        b = j % NKV
        bload(KV + 12 * b, 4, 252, SWS, "s82", 0, "sc1", ("kv", j))
        a("s_mov_b64 exec, %s" % sr(sVM, 2))
        bload(KV + 12 * b + 4, 4, 253, SWS, "s82", 0, "sc1", ("kv", j))
        bload(KV + 12 * b + 8, 4, 254, SWS, "s82", 0, "sc1", ("kv", j))
        a("s_mov_b64 exec, -1")
        a("s_add_u32 s82, s82, 2048")

    def att_loads(role):
        a("s_and_b32 s72, s60, 1")
        a("s_lshl_b32 s73, s72, 10")
        a("v_add_u32 v252, s73, v1")
        a("s_lshr_b32 s73, 0x400, s72")
        a("v_add_u32 v253, s73, v2")
        a("s_mul_i32 s73, s72, 0x600")
        a("s_sub_u32 s73, 0x600, s73")
        a("v_add_u32 v254, s73, v2")
        bload(QR, 4, 1, SWS, "s92", 0, "sc1", "q")
        kvload(0)
        for t in range(1, 4):
            bload(QR + 4 * t, 4, 1, SWS, sr(92 + t), 0, "sc1", "q")
        kvload(1)
        if cfg.kv3 and role == "a":
            kvload(2)

    def dump_addr():
        a("v_lshlrev_b32 v8, 2, v0")
        a("v_add_u32 v9, s99, v1")
        a("v_add_u32 v10, s99, v8")
        a("v_bfe_u32 v11, v0, 4, 1")
        a("v_lshl_add_u32 v11, v11, 10, v2")

    def dump(t):
        a("v_add_u32 v12, %s, v1" % sr(96 + t))
        a("v_add_u32 v13, %s, v8" % sr(96 + t))
        dsw("ds_write_b128", 12, OA + 16 * t, 4, t * 2304)
        dsw("ds_write_b128", 12, OA + 16 * t + 4, 4, t * 2304 + 1024)
        dsw("ds_write_b32", 13, OA + 16 * t + 8, 1, t * 2304 + 2048)

    deferred = []
    cfg_gap = {0: range(16), 1: (1, 10), 2: (0, 9), 3: (4, 10), 4: (1,), 5: (4,), 6: (15, 9)}[cfg.gap]

    def att_run(n, hooks):
        hooks.setdefault((n - 1, 0, 11), []).append(dump_addr)
        for t in range(3):
            hooks.setdefault((n - 1, t + 1, 12), []).append(lambda t=t: dump(t))
        vm.wait("q", ("kv", 0))
        mfma32(SB, KV, QR, None)
        for j in range(n):
            b = j % NKV
            for t in range(4):
                cur, oth = SB + 16 * (t & 1), SB + 16 * ((t + 1) & 1)
                for i in range(16):
                    a("v_exp_f32 %s, %s" % (vr(cur + i), vr(cur + i)))
                    if i in cfg_gap:
                        while deferred:
                            deferred.pop(0)()
                    if t == cfg.kvt and i == cfg.kvi and j + NKV - 1 < n and not (cfg.abl & 32 and j > 0) and not (cfg.kv3 and j == 0):
                        kvload(j + NKV - 1)
                    if i == 1 and (j, t) != (0, 0):
                        smf(OA + 16 * ((t + 3) & 3), KV + 12 * (b if t else (j - 1) % NKV) + 8, oth + 8)
                    if i == 4:
                        if t < 3:
                            mfma32(oth, KV + 12 * b, QR + 4 * (t + 1), None)
                        elif j + 1 < n:
                            vm.wait(("kv", j + 1))
                            mfma32(oth, KV + 12 * ((j + 1) % NKV), QR, None)
                    if i == 10:
                        smf(OA + 16 * t, KV + 12 * b + 4, cur)
                    for h in hooks.get((j, t, i), ()):
                        h()
        smf(OA + 48, KV + 12 * ((n - 1) % NKV) + 8, SB + 16 + 8)

    ACC = (24, 40, 56)
    WB, NBUF, LA = 72, 6, cfg.look
    XF, PK, XA = 128, 96, 16
    init1, init2 = att_init_ops()

    def item(g):
        return divmod(g % 96, 3)

    def reads(g):
        ks, sel = item(g)
        c, m = divmod(g, 12)
        so = slot_of(c)
        base, so = (XA, 0) if so < 0 else (8 + so // 49152, so % 49152)
        if g < 96 and sel == 0:
            dsr("ds_read_b128", XF + 4 * ks, 4, XA + (ks & 3), (ks >> 2) * 8192, g)
        trread(WB + 4 * (g % NBUF), base, so + m * 2048, 512, g)

    def pack(acc, pk):
        return ["v_cvt_pk_bf16_f32 %s, %s, %s" % (vr(pk + q), vr(acc + 2 * q), vr(acc + 2 * q + 1)) for q in range(8)]

    def st2(pk, va, base, delta, tag, imm=(0, 0), vb=None):
        def first():
            bstore(pk, 4, va, SWS, base, imm[0], "" if cfg.abl & 64 else "sc1", tag)

        def second():
            if delta:
                a("s_add_u32 s72, %s, %d" % (base, delta))
            bstore(pk + 4, 4, vb or va, SWS, "s72" if delta else base, imm[1], "" if cfg.abl & 64 else "sc1", tag)
        return [first, second]

    def relu2(acc):
        return (["v_max_f32 %s, 0, %s" % (vr(acc + i), vr(acc + i)) for i in range(16)]
                + ["v_mul_f32 %s, %s, %s" % (vr(acc + i), vr(acc + i), vr(acc + i)) for i in range(16)])

    def bias(seg):
        return lambda: (vm.wait("b1"), mfma32(ACC[seg], 112 + 4 * seg, 124, None))

    tagq = ["v_or_b32 %s, 1, %s" % (vr(PK + 4 * q), vr(PK + 4 * q)) for q in range(2)]
    qkv_epi = (["v_mul_f32 %s, 0x%x, %s" % (vr(ACC[0] + i), QSCALE, vr(ACC[0] + i)) for i in range(16)]
               + pack(ACC[0], PK) + tagq + [bias(0)] + st2(PK, 1, "s76", 0, "st", (0, 1024))
               + pack(ACC[1], PK + 8) + [bias(1)] + st2(PK + 8, 11, "s77", 0x20400, "st")
               + pack(ACC[2], PK) + [bias(2)] + st2(PK, 12, "s77", 0, "st", (1024, 1536), 14))
    sched = {100: ["v_subrev_u32 %s, %d, v8" % (vr(XA), L_RING)], 144: init1, 180: init2}
    shadow = []

    def run_shadow(budget):
        while shadow and budget > 0:
            op = shadow.pop(0)
            if isinstance(op, str):
                a(op)
                budget -= 1
            else:
                op()
                budget -= 3

    a("""
    s_lshl_b32 s85, s60, 14
    s_lshl_b32 s72, s67, 7
    s_add_u32 s85, s85, s72
    s_lshl_b32 s86, s60, 6
    s_lshl1_add_u32 s86, s66, s86
    s_lshl_b32 s86, s86, 10
    s_add_u32 s86, s86, %d
    s_lshl_b32 s87, s66, FROW
    s_add_u32 s87, s87, %d
    """ % (WS_HF, WS_FLAGH))
    vm.wait(("w", 0))
    a("s_waitcnt lgkmcnt(0)")
    a("s_add_u32 %s, %s, 0x%x" % (sr(sTAG), sr(sTAG), EPOCH_INC))
    if cfg.bst == 3:
        stamp(9, True)
    a("s_barrier")
    stamp(3)
    if cfg.bst == 3:
        stamp(10, True)
    for g in range(LA):
        reads(g)
    for g in range(192):
        ks, sel = item(g)
        if g == 96:
            stamp(4)
            shadow.extend(qkv_epi)
            run_shadow(1000)
            stamp(5)
        lg.wait(g)
        x, w = XF + 4 * ks, WB + 4 * (g % NBUF)
        c = None if (g < 96 and ks == 0) else ACC[sel]
        if g < 96 and sel == 2:
            mfma32(ACC[sel], x, w, c)
        else:
            mfma32(ACC[sel], w, x, c)
        n = g + LA
        if n < 192:
            if n % 12 == 0 and n // 12 not in skip_bar:
                vm.wait(("w", n // 12))
                if n // 12 == cfg.flag_chunk:
                    vm.wait("st")
                a("s_barrier")
                if n // 12 == cfg.flag_chunk:
                    a("s_cmp_lg_u32 s60, 0")
                    a("s_cselect_b32 s79, 0x40000000, s79")
                    set_flag(7, "s79")
                    stamp(6)
            reads(n)
        if g == 40:
            for seg in range(3):
                a("buffer_load_ushort %s, v10, %s, s81 offen offset:%d" % (vr(112 + 4 * seg), srd(SB1), seg * 128))
                vm.push("b1")
        shadow.extend(sched.get(g, ()))
        run_shadow(3)
    run_shadow(1000)
    stamp(7)
    hmath, hst = [], []
    for seg in range(3):
        pk = PK + 8 * seg
        hmath.append(relu2(ACC[seg]) + pack(ACC[seg], pk))
        hst.append((["s_add_u32 s78, s78, 0x40000"] if seg == 1 else []) + st2(pk, 1, "s78" if seg < 2 else "s88", 0x10000, "hst"))
    for seg in range(cfg.hbar):
        shadow.extend(hmath[seg])
    run_shadow(1000)
    a("s_barrier")
    stamp(8)
    if cfg.bst == 4:
        stamp(1, True)
    a("s_setprio 2")
    for seg in range(cfg.hbar, cfg.hpre):
        shadow.extend(hmath[seg])
    run_shadow(1000)
    att_loads("a")
    hlist = [[hst[0][0]], [hst[0][1]], hst[1][:2], [hst[1][2]], [hst[2][0]], [hst[2][1]]]
    for seg in range(3):
        shadow.extend(hmath[seg] if seg >= max(cfg.hpre, cfg.hbar) else [])
        for n in (2 * seg, 2 * seg + 1):
            if n < cfg.hnow:
                shadow.extend(hlist[n])
    run_shadow(1000)
    stamp(9)


    def w2dma(i):
        if cfg.abl & 1:
            return
        a("s_add_u32 m0, s84, %d" % ((i & 3) * 2048))
        a("s_add_u32 s72, s85, %d" % (i * 65536))
        dma(4, SW2, "s72", 0, ("w2", i))
        a("s_add_u32 s72, s72, 7168")
        dma(4, SW2, "s72", 1024, ("w2", i))

    hreg = lambda i, tt: HB + 8 * (i % 3) + 4 * tt

    def hload(i):
        if cfg.abl & 1:
            return
        if i > 0:
            a("s_add_u32 s86, s86, 0x40000")
        for tt in range(2):
            bload(hreg(i, tt), 4, 1, SWS, "s86", tt * 1024, "sc1", ("h", i))

    def w2read(i, nt):
        if cfg.abl & 2:
            return
        vm.wait(("w2", i))
        trread(WF + 4 * nt, 5 + nt, (i & 3) * 2048, 1024, ("wf", i, nt))

    def fslot(f):
        i, m = divmod(f, 4)
        nt, tt = ((0, 0), (0, 1), (1, 1), (1, 0))[m]
        vm.wait(("h", i))
        lg.wait(("wf", i, nt))
        d = FA + 16 * (2 * tt + nt)
        if not cfg.abl & 4:
            mfma32(d, WF + 4 * nt, hreg(i, tt), None if i == 0 else d)
        if m == 1 and i + 1 < NS:
            deferred.append(lambda: w2read(i + 1, 0))
        if m == cfg.dmam and i + 4 < NS:
            deferred.append(lambda: w2dma(i + 4))
        if m == 3:
            if i + 1 < NS:
                deferred.append(lambda: w2read(i + 1, 1))
            if i + 3 < NS:
                deferred.append(lambda: hload(i + 3))

    def park(tt, nt):
        d = FA + 16 * (2 * tt + nt)
        for q in range(8):
            a("v_cvt_pk_bf16_f32 %s, %s, %s" % (vr(d + q), vr(d + 2 * q), vr(d + 2 * q + 1)))
        for q in range(2):
            dsw("ds_write_b128", 4, d + 4 * q, 4, tt * 32 * PART_STRIDE + nt * 64 + q * 32)

    def park_addr():
        a("v_and_b32 v4, 31, v0")
        a("v_mul_u32_u24 v4, %d, v4" % PART_STRIDE)
        a("v_lshrrev_b32 v5, 5, v0")
        a("v_lshl_add_u32 v4, v5, 4, v4")
        a("v_add_u32 v4, s84, v4")

    hooks = {}

    def hook(j, t, i, f):
        hooks.setdefault((j, t, i), []).append(f)

    n1 = cfg.n1
    for n in range(cfg.hnow, 6):
        tl = (n - cfg.hnow) * cfg.hgap + cfg.hoff
        hook(tl >> 2, tl & 3, 9, lambda n=n: (shadow.extend(hlist[n]), run_shadow(1000)))
    assert (5 - cfg.hnow) * cfg.hgap + cfg.hoff <= cfg.hflag < 4 * (n1 - 2)
    hook(cfg.hflag >> 2, cfg.hflag & 3, 12, lambda: (vm.wait("hst"), set_flag(7, "s80"), stamp(1) if cfg.hst else None))
    hook(n1 - 2, 0, 8, lambda: flag_load(7, cfg.fsh, "s87", "hf"))
    hook(n1 - 2, 3, 12, lambda: (vm.wait("hf"), stamp(2) if cfg.hst else None, check_flags("h", 7, cfg.fsh, "s87"), stamp(3) if cfg.hst else None))
    for i in range(4):
        hook(n1 - 3 + (i >> 1), 1 + (i & 1), 7, lambda i=i: w2dma(i))
    for i in range(3):
        hook(n1 - 1, i, 7, lambda i=i: hload(i))
    hook(n1 - 1, 3, 7, lambda: (w2read(0, 0), w2read(0, 1)))
    pat = [int(ch) for ch in str(cfg.fpat)]
    slots = [(j, t, pos) for j in range(n1, nA) for t in range(4) for pos in ((13,), (7, 13))[pat[t] - 1]]
    for f in range(4 * NS):
        hook(*slots[f], lambda f=f: fslot(f))
    tl = slots[4 * NS - 1][0] * 4 + slots[4 * NS - 1][1] + 1
    assert tl + 3 < 4 * nA
    hook(tl >> 2, tl & 3, 6, park_addr)
    for n, (nt, tt) in enumerate(((0, 0), (0, 1), (1, 1), (1, 0))):
        hook((tl + n) >> 2, (tl + n) & 3, 7, lambda tt=tt, nt=nt: park(tt, nt))
    if cfg.hst:
        for n in range(4):
            hook(n1 + 4 * n, 0, 1, lambda n=n: stamp(4 + n))
    if cfg.alow:
        tl = 4 * nA - cfg.alow
        hook(tl >> 2, tl & 3, 0, lambda: a("s_setprio 0"))
    if cfg.bst == 4:
        for n, j in enumerate(range(0, nA, 2)):
            hook(j, 0, 0, lambda n=n: stamp(2 + n, True))
    att_run(nA, hooks)
    vm.drain()
    a("s_branch L_att_done")

    a.label("L_loader")
    vm.items = []
    lg.items = []

    def b_setup():
        a("; waves 4-7: W1 DMA offsets v56/v57 (sixth tile out of range where the next group owns it), wo DMA offset v4, flagQ row s79")
        a("""
        v_mul_u32_u24 v56, 2752, v4
        v_add_u32 v56, v56, v6
        s_lshr_b32 s72, 0x5b, s61
        s_and_b32 s72, s72, 1
        s_lshl_b32 s72, s72, 23
        v_and_b32 v57, 64, v6
        v_mad_u32_u24 v57, v57, s72, v56
        v_bfe_u32 v6, v4, 1, 2
        v_lshlrev_b32 v6, 1, v6
        v_xor_b32 v6, v6, v5
        v_lshlrev_b32 v6, 4, v6
        v_lshl_add_u32 v4, v4, 10, v6
        v_min_u32 v5, %d, v0
        v_lshlrev_b32 v5, 7, v5
        s_lshr_b32 s79, s64, 1
        s_lshl_b32 s79, s79, 10
        s_add_u32 s79, s79, %d
        s_and_b32 s73, s60, 3
        s_lshl_b32 s72, s69, 6
        s_mul_i32 s80, s73, %d
        s_add_u32 s80, s80, s72
        """ % (cfg.pfn - 1, WS_FLAGQ, 16 * 2752))

        a("v_mov_b32 v3, 0xdddddddd")

    issued = cfg.lead
    setup1()
    state = {"issued": issued}

    def b_step(c):
        if c in skip_bar:
            return
        vm.wait(("w", c + 1 if c + 1 in skip_bar else c))
        if cfg.bst == 2:
            stamp(c, True)
        if cfg.bst == 3 and c == 0:
            stamp(9, True)
        a("s_barrier")
        if cfg.bst == 1:
            stamp(c, True)
        if c in (0, 8, 12, 15):
            stamp({0: 3, 8: 4, 12: 5, 15: 6}[c])
        if c == cfg.bload - 1:
            flag_load(7, 4, "s79", "qf")
        if c == cfg.bload:
            vm.wait("qf")
            check_flags("q", 7, 4, "s79")
            stamp(7)
            att_loads("b")
        lim = c + 2
        if cfg.xslot == 12 and c == 9:
            lim = 12
        if cfg.xslot == 11 and c in (8, 9):
            lim = c + 3
        if cfg.xslot and c >= 11:
            lim = c + cfg.xrun
        while state["issued"] < min(15, max(3, lim)):
            state["issued"] += 1
            issue_chunk(state["issued"])
        if c == 1:
            setup2()
        if cfg.pf1_at == 12 + c:
            assert c >= 1
            pf1()
        if c == 2:
            setup3()
        if c == 3:
            b_setup()
        if c == cfg.l2w:
            pfl2(SW1)
        if c == cfg.pfe:
            a("; memory-side prefetch of w2 and wo")
            bload(32, 1, 31, SW2, "s100", 0, "", "pf")
            bload(32, 1, 31, SWO, "s100", 0, "", "pf")
        if c == 4:
            for op in init1:
                a(op)
        if c == 5:
            for op in init2:
                a(op)
        if c == 7:
            a("s_waitcnt lgkmcnt(0)")
            a("s_add_u32 %s, %s, 0x%x" % (sr(sTAG), sr(sTAG), EPOCH_INC))

    def b_att():
        a("s_barrier")
        stamp(8)
        a("s_setprio 1")
        if cfg.kv3:
            kvload(2)

    bhooks = {}
    for c in range(17):
        f = (lambda c=c: b_step(c)) if c < 16 else b_att
        if c <= cfg.bjoin:
            f()
        else:
            tl = (c - cfg.bjoin) * cfg.btile - 1
            bhooks[(tl >> 2, tl & 3, 13)] = [f]

    def wo_dma(lo, hi):
        if cfg.abl & 8:
            return
        if lo == 0:
            a("; wo tile -> LDS [0, 64K), a few rows per score tile")
            a("s_and_b32 s78, s60, 3")
            a("s_lshl_b32 s76, s78, 17")
            a("s_lshl_b32 s73, s67, 7")
            a("s_add_u32 s76, s76, s73")
            a("s_lshl_b32 s78, s78, 14")
        for i in range(lo, hi):
            a("s_add_u32 m0, s78, %d" % (i * 1024))
            a("s_add_u32 s73, s76, %d" % (i * 8192))
            dma(4, SWO, "s73", 0, "wo")

    nl = cfg.pfn
    batches = [(SW2, i) for i in range(-(-11 // nl))] + [(SWO, i) for i in range(-(-4 // nl))]

    def pf_late(n):
        if cfg.abl & 16:
            return
        if n == 0:
            a("; memory-side prefetch of w2 (in k order) and wo, a few lines per wave at a time")
            a("s_and_b32 s90, s60, 3")
            a("s_lshl2_add_u32 s90, s2, s90")
            a("s_mul_i32 s90, s90, %d" % (nl * 128))
        a("s_add_u32 s72, s90, %d" % (batches[n][1] * nl * 131072))
        bload(7, 1, 5, batches[n][0], "s72", 0, "", "pf")

    for n in range(len(batches) if cfg.pfe > 90 else 0):
        tl = cfg.pfl + n * cfg.pfg
        bhooks[(tl >> 2, tl & 3, 7)] = [lambda n=n: pf_late(n)]
    for n, lo in enumerate(range(0, 16, cfg.won)):
        bhooks[((cfg.wol + n) >> 2, (cfg.wol + n) & 3, 8)] = [lambda lo=lo: wo_dma(lo, lo + cfg.won)]
    if cfg.bst == 4:
        for j in range(nB):
            bhooks.setdefault((j, 0, 0), []).append(lambda j=j: stamp(2 + j, True))
    att_run(nB, bhooks)
    vm.drain()

    OW = OA + 48
    WOF, OFR, AC, G, Z, X, SR = 128, 24, 8, 64, 96, 104, 112
    a.label("L_att_done")
    stamp(10)
    if cfg.bst == 4:
        stamp(14, True)
    a("s_setprio 0")
    a("s_and_b32 s73, s60, 1")
    a("s_lshl_b32 s73, s73, 9")
    a("s_sub_u32 s76, s95, s73")
    a("""
    s_and_b32 s74, s60, 3
    s_lshr_b32 s75, s60, 2
    v_lshrrev_b32 v14, 3, v0
    v_and_b32 v7, 7, v0
    v_lshlrev_b32 v7, 4, v7
    v_lshl_add_u32 v14, v14, 10, v7
    s_lshl3_add_u32 s78, s66, s60
    s_lshl_b32 s78, s78, 13
    s_lshl_b32 s79, s67, 7
    s_add_u32 s78, s78, s79
    """)
    bload(60, 4, 7, SB2, "s79", 0, "", "xb")
    bload(56, 4, 14, SX, "s78", 0, "", "xb")
    lg.drain()
    a("s_barrier")
    for src in range(3):
        d = SB + 10 * src
        dsr("ds_read_b128", d, 4, 9, src * 2304, src)
        dsr("ds_read_b128", d + 4, 4, 9, src * 2304 + 1024, src)
        dsr("ds_read_b32", d + 8, 1, 10, src * 2304 + 2048, src)
    for src in range(3):
        lg.wait(src)
        for i in range(0, 8, 2):
            a("v_pk_add_f32 %s, %s, %s" % (vr(OW + i, 2), vr(OW + i, 2), vr(SB + 10 * src + i, 2)))
        a("v_add_f32 %s, %s, %s" % (vr(OW + 8), vr(OW + 8), vr(SB + 10 * src + 8)))
    a("v_pk_mul_f32 v[12:13], %s, 0 op_sel_hi:[1,0]" % vr(OW, 2))
    for i in range(2, 8, 2):
        a("v_pk_fma_f32 v[12:13], %s, 0, v[12:13] op_sel_hi:[1,0,1]" % vr(OW + i, 2))
    a("""
    v_add_f32 v12, v12, %s
    v_add_f32 v12, v12, v13
    v_cmp_nle_f32 vcc, 0x30800000, v12
    s_mov_b64 s[72:73], vcc
    v_cmp_nge_f32 vcc, 0x5d800000, v12
    s_or_b64 s[72:73], s[72:73], vcc
    """ % vr(OW + 8))
    a("s_branch L_slow" if cfg.force_slow else "s_cbranch_scc1 L_slow")
    a.label("L_norm")
    a("v_rcp_f32 v12, %s" % vr(OW + 8))
    for i in range(0, 8, 2):
        a("v_pk_mul_f32 %s, %s, v[12:13] op_sel_hi:[1,0]" % (vr(OW + i, 2), vr(OW + i, 2)))
    for q in range(4):
        a("v_cvt_pk_bf16_f32 %s, %s, %s" % (vr(16 + q), vr(OW + 2 * q), vr(OW + 2 * q + 1)))
    a("v_and_b32 v16, -2, v16")
    bstore(16, 4, 11, SWS, "s76", 0, "sc1", "ost")
    stamp(11)
    a("v_mov_b32 v2, v14")
    a("v_lshrrev_b32 v3, 3, v0")
    a("""
    v_mul_u32_u24 v4, %d, v3
    s_mul_i32 s72, s60, %d
    s_add_u32 s72, s72, %d
    v_add3_u32 v4, v4, v7, s72
    """ % (PART_STRIDE, 8 * PART_STRIDE, L_W2))
    for j in range(4):
        dsr("ds_read_b128", G + 4 * j, 4, 4, j * W2_REGION, "g")
    a("""
    v_bfe_u32 v4, v0, 2, 2
    v_bfe_u32 v5, v0, 4, 1
    v_lshl_add_u32 v4, v5, 2, v4
    v_lshrrev_b32 v5, 1, v4
    v_lshlrev_b32 v92, 7, v4
    v_lshl_add_u32 v92, v5, 5, v92
    v_lshrrev_b32 v6, 5, v0
    v_lshl_add_u32 v92, v6, 11, v92
    v_and_b32 v4, 3, v0
    v_lshl_add_u32 v92, v4, 3, v92
    s_lshl_b32 s72, s75, 15
    v_add_u32 v92, s72, v92
    v_xor_b32 v93, 32, v92
    v_xor_b32 v94, 64, v92
    v_xor_b32 v95, 0x60, v92
    s_barrier
    """)

    def oloads(first=0):
        for ks in range(first, 8):
            bload(OFR + 4 * ks, 4, 1, SWS, ("s76", "s77", "s80", "s81")[ks >> 1], (ks & 1) * 2048, "sc1", ("o", ks))

    fill = ("""
    s_lshl2_add_u32 s72, s66, s74
    s_lshr_b32 s76, s72, 1
    s_lshl1_add_u32 s76, s76, s75
    s_lshl_b32 s76, s76, 14
    s_and_b32 s72, s72, 1
    s_lshl_b32 s72, s72, 10
    s_add_u32 s76, s76, s72
    s_add_u32 s76, s76, %d
    s_add_u32 s77, s76, 0x1000
    s_add_u32 s80, s76, 0x2000
    s_add_u32 s81, s76, 0x3000
    v_mul_u32_u24 v3, %d, v3
    v_lshl_add_u32 v3, v7, 1, v3
    s_mul_i32 s72, s60, %d
    s_add_u32 s72, s72, %d
    v_add_u32 v3, s72, v3
    v_and_b32 v5, 15, v0
    v_mul_u32_u24 v5, %d, v5
    v_and_b32 v4, 48, v0
    s_mul_i32 s72, s60, %d
    s_add_u32 s72, s72, %d
    v_add3_u32 v5, v5, v4, s72
    s_mov_b32 s82, 0x3f80
    s_mov_b32 s83, 0x3f800000
    """ % (WS_QO, SUM_STRIDE, 8 * SUM_STRIDE, L_SUM, SUM_STRIDE, 16 * SUM_STRIDE, L_SUM)).strip().split("\n")
    gate = ["v_mov_b32 %s, 0" % vr(Z + i) for i in range(8)]
    gate.append(lambda: lg.wait("g"))
    for j in range(5):
        if j == 4:
            gate.append(lambda: vm.wait("xb"))
        for q in range(4):
            src = G + 4 * j + q if j < 4 else 60 + q
            gate.append("v_dot2c_f32_bf16 %s, s82, %s" % (vr(Z + 2 * q), vr(src)))
            gate.append("v_dot2c_f32_bf16 %s, s83, %s" % (vr(Z + 2 * q + 1), vr(src)))
    for q in range(4):
        gate.append("v_lshlrev_b32 %s, 16, %s" % (vr(X + 2 * q), vr(56 + q)))
        gate.append("v_and_b32 %s, s89, %s" % (vr(X + 1 + 2 * q), vr(56 + q)))
    gate += ["v_mul_f32 %s, 0x%x, %s" % (vr(G + i), NLOG2E, vr(Z + i)) for i in range(8)]
    gate += ["v_exp_f32 %s, %s" % (vr(G + i), vr(G + i)) for i in range(8)]
    gate += ["v_add_f32 %s, 1.0, %s" % (vr(G + i), vr(G + i)) for i in range(8)]
    gate += ["v_rcp_f32 %s, %s" % (vr(G + i), vr(G + i)) for i in range(8)]
    gate += ["v_mul_f32 %s, %s, %s" % (vr(Z + i), vr(Z + i), vr(G + i)) for i in range(8)]

    def wo_reads(oat, per):
        for ks in range(8):
            for ct in range(4):
                trread(WOF + (ks * 4 + ct) * 4, 92 + ct, ks * 4096, 1024, ("wo", ks))
                run_shadow(per)
            if ks == oat:
                run_shadow(1000)
                vm.wait("ost")
                oloads()

    vm_t, lg_t = list(vm.items), list(lg.items)
    a("s_cmp_eq_u32 s63, 1")
    a("s_cbranch_scc1 L_tail_b")
    shadow.extend(fill)
    wo_reads(7, 1)
    shadow.extend(gate)
    run_shadow(1000)
    a("s_branch L_tail_j")
    a.label("L_tail_b")
    vm.items, lg.items = vm_t, lg_t
    shadow.extend(fill + gate)
    run_shadow(1000)
    wo_reads(cfg.oat, 0)
    a.label("L_tail_j")
    stamp(12)
    a("s_mov_b32 s73, 0")
    lg.drain()
    for ks in range(8):
        a.label("L_wo_%d" % ks)
        vm.wait(("o", ks))
        a("v_and_b32 v6, 1, %s" % vr(OFR + 4 * ks))
        a("v_cmp_ne_u32 vcc, 0, v6")
        a("s_cbranch_vccnz L_oretry_%d" % ks)
        a.label("L_ogo_%d" % ks)
        for ct in range(4):
            d = AC + 4 * ct
            mfma16(d, WOF + (ks * 4 + ct) * 4, OFR + 4 * ks, None if ks == 0 else d)
    stamp(13)
    for ct in range(4):
        dsw("ds_write_b128", 5, AC + 4 * ct, 4, ct * 64)
    lg.drain()
    a("s_barrier")
    stamp(14)
    dsr("ds_read_b128", SR, 4, 3, 0, 0)
    dsr("ds_read_b128", SR + 8, 4, 3, SUM_SIZE, 0)
    dsr("ds_read_b128", SR + 4, 4, 3, 16, 1)
    dsr("ds_read_b128", SR + 12, 4, 3, SUM_SIZE + 16, 1)
    for h in range(2):
        lg.wait(h)
        for i in range(4 * h, 4 * h + 4, 2):
            a("v_pk_add_f32 %s, %s, %s" % (vr(SR + i, 2), vr(SR + i, 2), vr(SR + 8 + i, 2)))
        for i in range(4 * h, 4 * h + 4, 2):
            a("v_pk_fma_f32 %s, %s, %s, %s" % (vr(SR + i, 2), vr(SR + i, 2), vr(Z + i, 2), vr(X + i, 2)))
        for q in range(2 * h, 2 * h + 2):
            a("v_cvt_pk_bf16_f32 %s, %s, %s" % (vr(G + q), vr(SR + 2 * q), vr(SR + 2 * q + 1)))
    bstore(G, 4, 2, SOUT, "s78", 0, ("", "sc1", "nt", "sc0 sc1", "sc0 sc1 nt")[cfg.omod])
    a("s_or_b32 s72, s2, s60")
    a("s_cmp_lg_u32 s72, 0")
    a("s_cbranch_scc1 L_noepoch")
    set_flag(7, "0")
    a.label("L_noepoch")
    if cfg.stamps:
        a("s_waitcnt vmcnt(0)")
        stamp(15)
        if cfg.probe is not None:
            a("s_sub_u32 s72, %s, s4" % sr(sSTAMP + cfg.probe))
            if cfg.stamps == 2:
                a("s_lshr_b32 s72, s72, 3")
            else:
                a("s_lshl_b32 s72, s72, %d" % cfg.probesh)
            a("s_cmp_lg_u32 s2, %d" % cfg.probewg)
            a("s_cselect_b32 s72, 0, s72")
            a("s_cmp_lg_u32 s60, %d" % cfg.probew)
            a("s_cselect_b32 s72, 0, s72")
            a("s_memrealtime s[22:23]")
            a("s_waitcnt lgkmcnt(0)")
            a("s_mov_b32 s73, s22")
            a.label("L_probe")
            a("s_memrealtime s[22:23]")
            a("s_waitcnt lgkmcnt(0)")
            a("s_sub_u32 s22, s22, s73")
            a("s_cmp_lt_u32 s22, s72")
            a("s_cbranch_scc1 L_probe")
        a("s_lshl3_add_u32 s72, s2, s60")
        a("s_lshl_b32 s72, s72, 6")
        a("s_add_u32 s72, s72, %d" % WS_STAMP)
        for i in range(16):
            a("v_mov_b32 %s, %s" % (vr(80 + i), sr(sSTAMP + i)))
        a("s_mov_b64 exec, 1")
        for i in range(4):
            bstore(80 + 4 * i, 4, 1, SWS, "s72", 16 * i)
    a.label("L_end")
    a("s_endpgm")

    for ks in range(8):
        a.label("L_oretry_%d" % ks)
        a("s_add_u32 s73, s73, 1")
        a("s_cmp_ge_u32 s73, %d" % SPIN_MAX)
        a("s_cbranch_scc1 L_ogo_%d" % ks)
        a("s_waitcnt vmcnt(0)")
        oloads(ks)
        a("s_branch L_wo_%d" % ks)

    for tag, vt, lanes, soff in stubs:
        a.label("L_poll_" + tag)
        a("s_mov_b32 s73, 0")
        a.label("L_poll2_" + tag)
        a("s_sleep %d" % cfg.sleep)
        flag_load(vt, lanes, soff, None)
        a("s_add_u32 s73, s73, 1")
        a("s_waitcnt vmcnt(0)")
        a("s_cmp_ge_u32 s73, %d" % SPIN_MAX)
        a("s_cbranch_scc1 L_polled_" + tag)
        a("v_cmp_ne_u32 vcc, %s, %s" % (sr(sTAG), vr(vt)))
        a("s_cbranch_vccnz L_poll2_" + tag)
        a("s_branch L_polled_" + tag)

    a.label("L_slow")
    CN = SB + 16
    a("s_waitcnt vmcnt(0)")
    a("v_mov_b32 v13, 0xff800000")
    a("s_mov_b32 s82, s83")
    a("s_mov_b32 s81, 64")
    a.label("L_slow1")
    bload(KV, 4, 252, SWS, "s82", 0, "sc1")
    a("s_add_u32 s82, s82, 2048")
    a("s_waitcnt vmcnt(0)")
    mfma32(SB, KV, QR + 12, None)
    for i in range(0, 16, 2):
        a("v_max3_f32 v13, v13, %s, %s" % (vr(SB + i), vr(SB + i + 1)))
    a("s_sub_u32 s81, s81, 1")
    a("s_cmp_lg_u32 s81, 0")
    a("s_cbranch_scc1 L_slow1")
    a("v_mov_b32 v15, v13")
    a("v_permlane32_swap_b32 v15, v13")
    a("v_max_f32 v13, v15, v13")
    for i in range(16):
        a("v_sub_f32 %s, 0, v13" % vr(CN + i))
        a("v_mov_b32 %s, 0" % vr(OW + i))
    a("s_mov_b32 s82, s83")
    a("s_mov_b32 s81, 64")
    a.label("L_slow2")
    kvload(0)
    a("s_waitcnt vmcnt(0)")
    mfma32(SB, KV, QR + 12, CN)
    for i in range(16):
        a("v_exp_f32 %s, %s" % (vr(SB + i), vr(SB + i)))
    smf(OW, KV + 4, SB)
    smf(OW, KV + 8, SB + 8)
    a("s_sub_u32 s81, s81, 1")
    a("s_cmp_lg_u32 s81, 0")
    a("s_cbranch_scc1 L_slow2")
    a("s_branch L_norm")
    a.label("L_code_end")
    a("s_endpgm")

    added = a.fix()
    return a.text().replace('FSH', str(cfg.fsh)).replace('FROW', str(cfg.fsh + 5)), added


HEADER = """; Kernarg layout for this problem (88 bytes, ptrs only, base s[0:1]):
; @launch grid=(256,1,1) block=(512,1,1) lds=163840
.amdgcn_target "amdgcn-amd-amdhsa--gfx950"
.text
.globl {k}
.p2align 8
.type {k},@function
{k}:
"""

FOOTER = """.section .rodata,"a"
.p2align 6
.amdhsa_kernel {k}
  .amdhsa_next_free_vgpr 256
  .amdhsa_next_free_sgpr 102
  .amdhsa_accum_offset 256
  .amdhsa_group_segment_fixed_size 0
  .amdhsa_kernarg_size 88
  .amdhsa_user_sgpr_count 2
  .amdhsa_user_sgpr_kernarg_segment_ptr 1
  .amdhsa_system_sgpr_workgroup_id_x 1
.end_amdhsa_kernel
"""


def build(**kw):
    cfg = Cfg()
    for k, v in kw.items():
        setattr(cfg, k, v)
    body, added = gen(cfg)
    return HEADER.format(k=KERNEL) + body + FOOTER.format(k=KERNEL), added


if __name__ == "__main__":
    out = sys.argv[1] if len(sys.argv) > 1 else "cdna_kernels/%s.s" % NAME
    kw = {}
    for arg in sys.argv[2:]:
        k, v = arg.split("=")
        kw[k] = int(v)
    text, added = build(**kw)
    open(out, "w").write(text)
    print("wrote", out, "lines", text.count("\n"), "nops added", added)
```

```python
import sys
import os
sys.path.insert(0, os.path.dirname(os.path.abspath(__file__)))
from asmlib import Asm, vr, sr

NAME = "recurrent_scan__softmax_full_mha__dense_activation_squared_relu__prompt"
KERNEL = NAME + "_kernel"

WS_FLAGQ = 0x1200
WS_FLAGH = 0x60000
WS_STAMP = 0x10000
WS_QO = 0x100000
WS_KV = 0x300000
WS_HF = 0x700000
WS_END = WS_HF + 86 * 65536
EPOCH_INC = 0x9E3779B9
SPIN_MAX = 1 << 18

L_RING = 65536
L_OPART = 65536
L_W2 = L_OPART + 55296
W2_REGION = 10240
PART_STRIDE = 144
SUM_STRIDE = 272
SUM_SIZE = 64 * SUM_STRIDE
L_SUM = L_OPART

SX, SWQ, SWO, SW1, SB1, SW2, SB2, SOUT, SWS = 24, 28, 32, 36, 40, 44, 48, 52, 56
sW, sCG, sTB, sRW, sP, sQB, sTBF, sCB, sTAG, sCT0 = 60, 61, 62, 63, 64, 65, 66, 67, 68, 69
sVM = 70
sSTAMP = 4

QSCALE = 0x3EB8AA3B
NLOG2E = 0xBFB8AA3B
NS = 22


class Cfg:
    abl = 0
    bst = 0
    xslot = 0
    xrun = 2
    n1 = 8
    nA = 22
    gap = 1
    kvt = 0
    kvi = 4
    dmam = 2
    fpat = 2221
    pf1_at = 14
    pfc_at = 99
    pfc1 = 0
    w2_at = 10
    pfl = 9
    wol = 15
    won = 1
    stamps = 0
    force_slow = 0
    flag_chunk = 10
    lead = 2
    defer = 0
    look = 5
    pfq_at = 99
    bload = 15
    bjoin = 16
    btile = 2
    sleep = 6
    w0_at = 7
    w1_at = 10
    hpre = 2
    hbar = 0
    hnow = 2
    hgap = 2
    hoff = 0
    kv3 = 1
    fsh = 4
    pfe = 99
    l2q = 99
    rot = 1
    split = 0
    hold = 99
    l2w = 99
    pfn = 11
    alow = 0
    pfg = 1
    hflag = 11
    probe = None
    omod = 1
    oat = 4
    probewg = 100
    probew = 0
    probesh = 4
    hst = 0


def srd(s):
    return sr(s, 4)


class Queue:
    def __init__(self, a, name, maxn):
        self.a, self.name, self.maxn, self.items = a, name, maxn, []

    def push(self, tag):
        self.items.append(tag)

    def wait(self, *tags):
        last = max((i for i, t in enumerate(self.items) if t in tags), default=-1)
        if last < 0:
            return
        n = len(self.items) - 1 - last
        self.a("s_waitcnt %s(%d)" % (self.name, min(n, self.maxn)))
        self.items = self.items[last + 1:]

    def drain(self):
        self.a("s_waitcnt %s(0)" % self.name)
        self.items = []


def gen(cfg):
    a = Asm()
    nA = cfg.nA
    nB = 32 - nA
    vm = Queue(a, "vmcnt", 63)
    lg = Queue(a, "lgkmcnt", 15)

    def stamp(i, force=False):
        if cfg.bst and not force and i != 0:
            return
        if cfg.stamps and (cfg.probe is None or i in (0, cfg.probe)):
            a("%s s[22:23]" % ("s_memtime" if cfg.stamps == 2 else "s_memrealtime"))
            a("s_waitcnt lgkmcnt(0)")
            a("s_mov_b32 %s, s22" % sr(sSTAMP + i))

    def mfma32(d, x, y, c):
        a("v_mfma_f32_32x32x16_bf16 %s, %s, %s, %s" % (vr(d, 16), vr(x, 4), vr(y, 4), "0" if c is None else vr(c, 16)))

    def mfma16(d, x, y, c):
        a("v_mfma_f32_16x16x32_bf16 %s, %s, %s, %s" % (vr(d, 4), vr(x, 4), vr(y, 4), "0" if c is None else vr(c, 4)))

    def smf(d, x, y):
        a("v_smfmac_f32_32x32x32_bf16 %s, %s, %s, v3" % (vr(d, 16), vr(x, 4), vr(y, 8)))

    def bload(d, n, va, s, so, off=0, mod="", tag=None):
        op = {1: "dword", 2: "dwordx2", 4: "dwordx4"}[n]
        a("buffer_load_%s %s, %s, %s, %s offen offset:%d %s" % (op, vr(d, n), vr(va), srd(s), so, off, mod))
        vm.push(tag)

    def bstore(d, n, va, s, so, off=0, mod="", tag=None):
        op = {1: "dword", 2: "dwordx2", 4: "dwordx4"}[n]
        a("buffer_store_%s %s, %s, %s, %s offen offset:%d %s" % (op, vr(d, n), vr(va), srd(s), so, off, mod))
        vm.push(tag)

    def dma(va, s, so, off=0, tag=None):
        a("buffer_load_dwordx4 %s, %s, %s offen offset:%d lds" % (vr(va), srd(s), so, off))
        vm.push(tag)

    def dsr(op, d, n, va, off, tag=None):
        a("%s %s, %s offset:%d" % (op, vr(d, n), vr(va), off))
        lg.push(tag)

    def dsw(op, va, d, n, off, tag=None):
        a("%s %s, %s offset:%d" % (op, vr(va), vr(d, n), off))
        lg.push(tag)

    def trread(d, va, off, second, tag=None):
        dsr("ds_read_b64_tr_b16", d, 2, va, off, tag)
        dsr("ds_read_b64_tr_b16", d + 2, 2, va, off + second, tag)

    def set_flag(vt, soff):
        a("v_mov_b32 %s, %s" % (vr(vt), sr(sTAG)))
        a("s_mov_b64 exec, 1")
        bstore(vt, 1, 1, SWS, soff, 0, "sc0 sc1")
        a("s_mov_b64 exec, -1")

    stubs = []

    def check_flags(tag, vt, lanes, soff):
        a("v_cmp_ne_u32 vcc, %s, %s" % (sr(sTAG), vr(vt)))
        a("s_cbranch_vccnz L_poll_" + tag)
        a.label("L_polled_" + tag)
        stubs.append((tag, vt, lanes, soff))

    def flag_load(vt, shift, soff, tag):
        a("v_and_b32 %s, 31, v0" % vr(vt))
        a("v_lshlrev_b32 %s, %d, %s" % (vr(vt), shift, vr(vt)))
        bload(vt, 1, vt, SWS, soff, 0, "sc0 sc1", tag)

    sizes = {SX: 2048 * 1024, SWQ: 512 * 3072, SWS: WS_END, SW1: 512 * 2752, SB1: 2752,
             SWO: 512 * 1024, SW2: 1376 * 1024, SB2: 1024, SOUT: 2048 * 1024}
    RAW = 128

    def xloads():
        for j in range(8):
            bload(RAW + j * 4, 4, 14, SX, "s101", j * 128, "", ("x", j))

    stamp(0)
    a("""
    s_load_dwordx2 s[24:25], s[0:1], 0
    s_getpc_b64 s[72:73]
    L_pc:
    s_cmpk_ge_u32 s2, 256
    s_cbranch_scc1 L_end
    s_lshr_b32 s74, s2, 3
    s_lshl_b32 s74, s74, 11
    v_lshrrev_b32 v8, 5, v0
    v_lshl_add_u32 v8, v8, 7, s74
    v_min_u32 v8, L_code_end-L_pc, v8
    v_mov_b32 v9, 0
    v_lshl_add_u64 v[8:9], v[8:9], 0, s[72:73]
    global_load_dword v7, v[8:9], off
    s_lshl_b32 s72, s2, 4
    s_and_b32 s72, s72, 0x180
    v_add_u32 v4, s72, v0
    v_bfe_u32 v4, v4, 3, 6
    v_and_b32 v5, 7, v0
    v_lshlrev_b32 v14, 10, v4
    v_lshl_add_u32 v14, v5, 4, v14
    s_lshr_b32 s67, s2, 5
    s_and_b32 s73, s2, 6
    s_lshl2_add_u32 s62, s73, s67
    s_lshl_b32 s101, s62, 16
    s_mov_b32 s26, %d
    s_mov_b32 s27, 0x20000
    v_bfe_u32 v24, v4, 1, 3
    v_xor_b32 v24, v24, v5
    v_lshlrev_b32 v15, 7, v4
    v_lshl_add_u32 v15, v24, 4, v15
    v_readfirstlane_b32 s60, v0
    v_and_b32 v0, 63, v0
    v_mov_b32 v24, 0
    v_mov_b32 v25, 0
    s_lshr_b32 s60, s60, 6
    s_cmp_ge_u32 s60, 4
    s_waitcnt lgkmcnt(0)
    """ % sizes[SX])
    vm.push("pf")
    if cfg.bst == 3:
        stamp(1, True)
    xloads()
    if cfg.bst == 3:
        stamp(2, True)
    if cfg.stamps:
        for i in range(3 if cfg.bst == 3 else 1, 16):
            a("s_mov_b32 %s, s4" % sr(sSTAMP + i))
    a("s_mov_b32 s63, 1")
    a("s_cbranch_scc1 L_ln")
    a("s_mov_b32 s63, 0")

    def setup1():
        for s, off in ((SWQ, 8), (SWS, 80), (SW1, 32), (SB1, 40), (SWO, 16), (SW2, 48), (SB2, 56), (SOUT, 64)):
            a("s_load_dwordx2 %s, s[0:1], %d" % (sr(s, 2), off))
        a("""
        s_mov_b32 s30, %d
        s_mov_b32 s31, 0x20000
        s_bfe_u32 s72, s2, 0x20003
        s_and_b32 s73, s2, 1
        s_lshl2_add_u32 s61, s73, s72
        s_and_b32 s74, s60, 3
        s_lshl_b32 s72, s61, 7
        s_mul_i32 s85, s74, %d
        s_add_u32 s85, s85, s72
        s_mul_i32 s87, s74, 6144
        s_add_u32 s87, s87, %d
        v_lshrrev_b32 v4, 3, v0
        v_bfe_u32 v6, v4, 1, 1
        v_lshlrev_b32 v6, 2, v6
        v_xor_b32 v6, v6, v5
        v_lshlrev_b32 v6, 4, v6
        v_mul_u32_u24 v13, 3072, v4
        v_add_u32 v13, v13, v6
        s_waitcnt lgkmcnt(0)
        """ % (sizes[SWQ], 16 * 3072, L_RING))

    def setup2():
        a("s_load_dword %s, %s, 0" % (sr(sTAG), sr(SWS, 2)))
        for s in (SW1, SWS, SB1, SWO, SW2, SB2, SOUT):
            a("s_mov_b32 %s, %d" % (sr(s + 2), sizes[s]))
            a("s_mov_b32 %s, 0x20000" % sr(s + 3))
        a("""
        s_and_b32 s73, s60, 3
        s_lshl2_add_u32 s100, s2, s73
        s_mul_i32 s100, s100, 1536
        v_min_u32 v31, 11, v0
        v_lshlrev_b32 v31, 7, v31
        s_bfe_u32 s72, s2, 0x20003
        s_and_b32 s73, s2, 7
        s_lshl2_add_u32 s66, s73, s72
        s_and_b32 s72, s72, 1
        s_lshl1_add_u32 s64, s73, s72
        s_lshr_b32 s65, s2, 4
        s_mul_i32 s69, s61, 43
        s_lshr_b32 s69, s69, 3
        s_mov_b32 s70, 0xffff
        s_mov_b32 s71, 0xffff
        v_lshlrev_b32 v1, 4, v0
        v_and_b32 v2, 15, v0
        v_lshrrev_b32 v3, 5, v0
        v_lshl_add_u32 v2, v3, 4, v2
        v_lshlrev_b32 v2, 4, v2
        """)

    def setup3():
        a("; attention offsets: s82 = next K/V tile, s83 = head base, s92-s95 = Q tiles, s96-s99 = O partial slots")
        a("""
        s_and_b32 s74, s60, 1
        s_lshr_b32 s75, s60, 1
        s_lshl1_add_u32 s72, s64, s74
        s_lshl_b32 s83, s72, 17
        s_add_u32 s83, s83, %d
        s_and_b32 s73, s75, 1
        s_lshl_b32 s73, s73, 16
        s_add_u32 s82, s83, s73
        s_lshl_b32 s72, s65, 6
        s_add_u32 s72, s72, s64
        s_lshl1_add_u32 s72, s72, s74
        s_lshl_b32 s72, s72, 10
        s_add_u32 s72, s72, %d
        s_mul_i32 s84, s74, %d
        s_add_u32 s84, s84, %d
        """ % (WS_KV, WS_QO, 12 * 2304, L_OPART))
        for t in range(4):
            a("s_xor_b32 s73, s75, %d" % (t ^ 3))
            a("s_mul_i32 %s, s73, %d" % (sr(96 + t), 3 * 2304))
            a("s_lshl_b32 s73, s73, 15")
            a("s_add_u32 %s, s72, s73" % sr(92 + t))
            a("s_add_u32 %s, %s, s84" % (sr(96 + t), sr(96 + t)))

    setup1()
    setup2()
    setup3()
    a("""
    s_add_u32 s82, s82, %d
    v_and_b32 v8, 0x33, v0
    v_and_b32 v9, 4, v0
    v_lshl_or_b32 v8, v9, 1, v8
    v_and_b32 v9, 8, v0
    v_lshrrev_b32 v9, 1, v9
    v_or_b32 v8, v8, v9
    v_lshlrev_b32 v11, 4, v8
    v_bfe_u32 v9, v0, 4, 1
    v_mul_u32_u24 v12, 0x1fe00, v9
    v_add_u32 v12, v12, v2
    v_mul_u32_u24 v14, 0x1fa00, v9
    v_add_u32 v14, v14, v2
    v_lshl_add_u32 v4, v4, 10, v6
    v_bfe_u32 v10, v0, 2, 2
    v_lshlrev_b32 v5, 5, v9
    v_lshl_add_u32 v5, v10, 7, v5
    v_and_b32 v9, 3, v0
    v_lshl_add_u32 v5, v9, 3, v5
    v_lshrrev_b32 v10, 1, v10
    v_lshl_add_u32 v8, v3, 10, v5
    v_xor_b32 v9, s75, v10
    v_lshl_add_u32 v8, v9, 6, v8
    v_add_u32 v8, %d, v8
    v_add_u32 v9, %d, v8
    v_lshl_add_u32 v5, v3, 9, v5
    v_lshl_add_u32 v5, v10, 6, v5
    v_lshrrev_b32 v10, 1, v0
    v_xor_b32 v10, v10, v0
    v_and_b32 v10, 1, v10
    v_mul_u32_u24 v10, 24, v10
    v_xor_b32 v5, v5, v10
    s_mul_i32 s84, s60, %d
    s_add_u32 s84, s84, %d
    v_add_u32 v5, s84, v5
    v_xor_b32 v6, 64, v5
    v_and_b32 v10, 31, v0
    s_lshl_b32 s72, s74, 12
    v_bfe_u32 v16, v10, 1, 3
    v_xor_b32 v16, v16, v3
    v_lshlrev_b32 v16, 4, v16
    v_lshl_add_u32 v16, v10, 7, v16
    v_add_u32 v16, s72, v16
    v_xor_b32 v17, 32, v16
    v_xor_b32 v18, 64, v16
    v_xor_b32 v19, 0x60, v16
    v_lshlrev_b32 v10, 1, v10
    v_lshl_add_u32 v10, v3, 20, v10
    """ % (nB * 2048, L_RING, 2 * 24576, W2_REGION, L_W2))
    for seg in range(3):
        for q in range(1, 4):
            a("v_mov_b32 %s, 0" % vr(112 + 4 * seg + q))
    for q in range(4):
        a("v_mov_b32 %s, 0x3f803f80" % vr(124 + q))
    a("v_mov_b32 v3, 0xdddddddd")
    a("""
    s_lshl1_add_u32 s72, s62, s74
    s_lshl1_add_u32 s73, s61, s75
    s_lshl_b32 s76, s73, 7
    s_add_u32 s76, s76, s72
    s_lshl_b32 s77, s76, 11
    s_lshl4_add_u32 s76, s72, s73
    s_lshl_b32 s76, s76, 11
    s_add_u32 s76, s76, %d
    s_add_u32 s77, s77, %d
    s_add_u32 s81, s69, s75
    s_lshl_b32 s78, s81, 7
    s_add_u32 s78, s78, s72
    s_lshl_b32 s78, s78, 10
    s_add_u32 s78, s78, %d
    s_lshl_b32 s79, s61, 6
    s_add_u32 s79, s79, s62
    s_lshl_b32 s79, s79, 4
    s_add_u32 s79, s79, %d
    s_lshl_b32 s80, s62, 3
    s_add_u32 s80, s80, s61
    s_lshl2_add_u32 s80, s80, s60
    s_lshl_b32 s80, s80, FSH
    s_add_u32 s80, s80, %d
    s_mul_i32 s72, s61, 43
    s_add_u32 s72, s72, 43
    s_lshr_b32 s72, s72, 3
    s_add_u32 s73, s81, 4
    s_add_u32 s88, s78, %d
    s_cmp_lt_u32 s73, s72
    s_cselect_b32 s88, s88, 0x40000000
    s_lshl_b32 s81, s81, 6
    """ % (WS_QO, WS_KV, WS_HF, WS_FLAGQ, WS_FLAGH, 8 * 65536))

    def slot_of(c):
        if not cfg.xslot or c < cfg.xslot:
            return (c & 3) * 24576
        return -L_RING if c == cfg.xslot else ((c - 1) & 3) * 24576

    skip_bar = (10,) if cfg.xslot else ()

    def issue_chunk(c):
        if cfg.rot:
            a("s_xor_b32 s73, s67, %d" % (c & 7))
            a("s_mul_i32 s73, s73, %d" % (64 * (3072 if c < 8 else 2752)))
            a("s_add_u32 s73, s73, %s" % ("s85" if c < 8 else "s80"))
        for m in range(6):
            blk, seg = divmod(m, 3)
            a("s_add_u32 m0, s87, %d" % (slot_of(c) + seg * 2048 + blk * 1024))
            if c < 8:
                a("s_add_u32 s72, %s, %d" % (("s73", blk * 8 * 3072 + seg * 1024) if cfg.rot else ("s85", (c * 64 + blk * 8) * 3072 + seg * 1024)))
                dma(13, SWQ, "s72", 0, ("w", c))
            else:
                a("s_add_u32 s72, %s, %d" % (("s73", blk * 8 * 2752 + seg * 128) if cfg.rot else ("s80", ((c - 8) * 64 + blk * 8) * 2752 + seg * 128)))
                dma(57 if seg == 2 else 56, SW1, "s72", 0, ("w", c))

    def layernorm(acts):
        def act(p):
            if acts.get(p):
                assert p >= 7
                a("s_cmp_eq_u32 s63, 1")
                a("s_cbranch_scc1 L_ln_%d" % p)
                for f in acts[p]:
                    f()
                a.label("L_ln_%d" % p)
        a.label("L_ln")
        a("v_mov_b32 v30, 0x3f803f80")
        a("s_mov_b32 s89, 0xffff0000")
        if cfg.rot:
            a("; K chunks are visited in the order c ^ (row block & 7): workgroups sharing weights fetch different chunks first")
            a("s_lshl_b32 s72, s67, 13")
            a("v_or_b32 v15, s72, v15")

        def xwrite(j):
            if cfg.rot:
                a("v_xor_b32 v23, 0x%x, v15" % (j << 13))
                a("ds_write_b128 v23, %s" % vr(RAW + j * 4, 4))
            else:
                a("ds_write_b128 v15, %s offset:%d" % (vr(RAW + j * 4, 4), j * 8192))

        for j in range(8):
            if cfg.bst == 3 and j == 0:
                stamp(3, True)
            vm.wait(("x", j))
            if cfg.bst == 3 and j in (0, 3, 7):
                stamp({0: 4, 3: 5, 7: 6}[j], True)
            act(j)
            for q in range(4):
                x = RAW + j * 4 + q
                a("v_dot2c_f32_bf16 v24, v30, %s" % vr(x))
                a("v_dot2c_f32_bf16 v25, %s, %s" % (vr(x), vr(x)))
        act(8)
        stamp(1)
        for ctl in ("quad_perm:[1,0,3,2]", "quad_perm:[2,3,0,1]", "row_half_mirror"):
            for r in (24, 25):
                a("v_add_f32_dpp %s, %s, %s %s row_mask:0xf bank_mask:0xf" % (vr(r), vr(r), vr(r), ctl))
        a("""
        v_mul_f32 v24, 0x3b000000, v24
        v_mul_f32 v25, 0x3b000000, v25
        v_fma_f32 v25, -v24, v24, v25
        v_max_f32 v25, 0, v25
        v_cvt_pk_bf16_f32 v24, v24, v25
        v_and_b32 v25, s89, v24
        v_add_f32 v25, 0x3727c5ac, v25
        v_cvt_pk_bf16_f32 v25, v25, v25
        v_and_b32 v25, s89, v25
        v_sqrt_f32 v25, v25
        v_lshlrev_b32 v24, 16, v24
        v_cvt_pk_bf16_f32 v25, v25, v25
        v_and_b32 v25, s89, v25
        v_rcp_f32 v26, v25
        v_mul_f32_e64 v28, -v24, v26
        """)
        for j in range(8):
            x = RAW + j * 4
            t = 192 + (j & 1) * 8
            for q in range(4):
                a("v_lshlrev_b32 %s, 16, %s" % (vr(t + 2 * q), vr(x + q)))
                a("v_and_b32 %s, s89, %s" % (vr(t + 2 * q + 1), vr(x + q)))
            for q in range(4):
                a("v_pk_fma_f32 %s, %s, v[26:27], v[28:29] op_sel_hi:[1,0,0]" % (vr(t + 2 * q, 2), vr(t + 2 * q, 2)))
            for q in range(4):
                a("v_cvt_pk_bf16_f32 %s, %s, %s" % (vr(x + q), vr(t + 2 * q), vr(t + 2 * q + 1)))
            if not cfg.defer:
                xwrite(j)
        if cfg.bst == 3:
            stamp(7, True)
        act(9)
        if cfg.defer:
            for j in range(8):
                xwrite(j)
        act(10)
        stamp(2)
        if cfg.bst == 3:
            stamp(8, True)

    def pfq():
        a("; memory-side prefetch of Wqkv")
        bload(7, 1, 31, SWQ, "s100", 0, "", "pf")

    def pfl2(which):
        a("; the die's workgroups pull their half of the weight columns into L2 together, four rows per wave")
        stride = 3072 if which == SWQ else 2752
        a("s_lshr_b32 s72, s2, 3")
        a("s_and_b32 s73, s60, 3")
        a("s_lshl2_add_u32 s72, s72, s73")
        a("s_mul_i32 s72, s72, %d" % (4 * stride))
        a("s_and_b32 s73, s2, 1")
        a("s_mul_i32 s73, s73, %d" % (512 if which == SWQ else 1344))
        a("s_add_u32 s72, s72, s73")
        a("v_lshrrev_b32 v20, 4, v0")
        a("v_mul_u32_u24 v20, %d, v20" % stride)
        if which == SWQ:
            a("v_bfe_u32 v21, v0, 2, 2")
            a("v_min_u32 v21, 2, v21")
            a("v_lshl_add_u32 v20, v21, 10, v20")
            a("v_and_b32 v21, 3, v0")
            a("v_lshl_add_u32 v20, v21, 7, v20")
        else:
            a("v_and_b32 v21, 15, v0")
            a("v_lshlrev_b32 v21, 7, v21")
            a("v_min_u32 v21, 1404, v21")
            a("v_add_u32 v20, v20, v21")
        bload(22, 1, 20, which, "s72", 0, "", "pf")

    def pfc(which):
        a("; lines at offset 384 of every KiB stream slowly on a miss: the die's workgroups pull them into L2 together")
        a("s_lshr_b32 s72, s2, 3")
        a("s_lshl2_add_u32 s72, s72, s60")
        a("s_mul_i32 s72, s72, 12288")
        a("v_lshlrev_b32 v20, 3, v31")
        if which == SWQ:
            a("s_bitcmp1_b32 s2, 0")
            a("s_cselect_b32 s72, 0x40000000, s72")
        bload(7, 1, 20, which, "s72", 384, "", "pf")

    def pf1():
        a("; memory-side prefetch of W1")
        bload(7 if cfg.pf1_at <= 10 else 32, 1, 31, SW1, "s100", 0, "", "pf")

    acts = {}
    if cfg.pfc_at == 0:
        save = list(vm.items)
        pfc(SWQ)
        vm.items = save
    elif cfg.pfc_at <= 10:
        acts.setdefault(cfg.pfc_at, []).append(lambda: pfc(SWQ))
    if cfg.pfq_at == 0:
        save = list(vm.items)
        pfq()
        vm.items = save
    elif cfg.pfq_at <= 10:
        acts.setdefault(cfg.pfq_at, []).append(pfq)
    if cfg.l2q == 0:
        save = list(vm.items)
        pfl2(SWQ)
        vm.items = save
    if cfg.l2q == 7:
        acts.setdefault(7, []).append(lambda: pfl2(SWQ))
    for c, p in enumerate((cfg.w0_at, cfg.w1_at, cfg.w2_at, 10)[:cfg.lead + 1]):
        acts.setdefault(p, []).append(lambda c=c: issue_chunk(c))
    if 8 <= cfg.l2q <= 10:
        acts.setdefault(cfg.l2q, []).insert(0, lambda: pfl2(SWQ))
    if cfg.pf1_at <= 10:
        acts.setdefault(cfg.pf1_at, []).append(pf1)
    if cfg.pfc1:
        acts.setdefault(10, []).append(lambda: pfc(SW1))
    layernorm(acts)
    a("s_cmp_eq_u32 s63, 1")
    a("s_cbranch_scc1 L_loader")

    QR, SB, WF, FA, OA, KV, HB = 8, 24, 56, 64, 128, 192, 228
    NKV = 3

    def att_init_ops():
        ops = ["v_mov_b32 %s, 0" % vr(OA + 16 * t + i) for t in range(4) for i in range(9)]
        ops2 = ["v_and_b32 v7, 27, v0", "v_cmp_eq_u32 vcc, 16, v7", "v_mov_b32 v7, 0x3f803f80", "v_cndmask_b32 v7, 0, v7, vcc"]
        ops2 += ["v_mov_b32 %s, v7" % vr(KV + 12 * b + 4 + q) for b in range(NKV) for q in range(8)]
        return ops, ops2

    def kvload(j):
        b = j % NKV
        bload(KV + 12 * b, 4, 252, SWS, "s82", 0, "sc1", ("kv", j))
        a("s_mov_b64 exec, %s" % sr(sVM, 2))
        bload(KV + 12 * b + 4, 4, 253, SWS, "s82", 0, "sc1", ("kv", j))
        bload(KV + 12 * b + 8, 4, 254, SWS, "s82", 0, "sc1", ("kv", j))
        a("s_mov_b64 exec, -1")
        a("s_add_u32 s82, s82, 2048")

    def att_loads(role):
        a("s_and_b32 s72, s60, 1")
        a("s_lshl_b32 s73, s72, 10")
        a("v_add_u32 v252, s73, v1")
        a("s_lshr_b32 s73, 0x400, s72")
        a("v_add_u32 v253, s73, v2")
        a("s_mul_i32 s73, s72, 0x600")
        a("s_sub_u32 s73, 0x600, s73")
        a("v_add_u32 v254, s73, v2")
        bload(QR, 4, 1, SWS, "s92", 0, "sc1", "q")
        kvload(0)
        for t in range(1, 4):
            bload(QR + 4 * t, 4, 1, SWS, sr(92 + t), 0, "sc1", "q")
        kvload(1)
        if cfg.kv3 and role == "a":
            kvload(2)

    def dump_addr():
        a("v_lshlrev_b32 v8, 2, v0")
        a("v_add_u32 v9, s99, v1")
        a("v_add_u32 v10, s99, v8")
        a("v_bfe_u32 v11, v0, 4, 1")
        a("v_lshl_add_u32 v11, v11, 10, v2")

    def dump(t):
        a("v_add_u32 v12, %s, v1" % sr(96 + t))
        a("v_add_u32 v13, %s, v8" % sr(96 + t))
        dsw("ds_write_b128", 12, OA + 16 * t, 4, t * 2304)
        dsw("ds_write_b128", 12, OA + 16 * t + 4, 4, t * 2304 + 1024)
        dsw("ds_write_b32", 13, OA + 16 * t + 8, 1, t * 2304 + 2048)

    deferred = []
    cfg_gap = {0: range(16), 1: (1, 10), 2: (0, 9), 3: (4, 10), 4: (1,), 5: (4,), 6: (15, 9)}[cfg.gap]

    def att_run(n, hooks):
        hooks.setdefault((n - 1, 0, 11), []).append(dump_addr)
        for t in range(3):
            hooks.setdefault((n - 1, t + 1, 12), []).append(lambda t=t: dump(t))
        vm.wait("q", ("kv", 0))
        mfma32(SB, KV, QR, None)
        for j in range(n):
            b = j % NKV
            for t in range(4):
                cur, oth = SB + 16 * (t & 1), SB + 16 * ((t + 1) & 1)
                for i in range(16):
                    a("v_exp_f32 %s, %s" % (vr(cur + i), vr(cur + i)))
                    if i in cfg_gap:
                        while deferred:
                            deferred.pop(0)()
                    if t == cfg.kvt and i == cfg.kvi and j + NKV - 1 < n and not (cfg.abl & 32 and j > 0) and not (cfg.kv3 and j == 0):
                        kvload(j + NKV - 1)
                    if i == 1 and (j, t) != (0, 0):
                        smf(OA + 16 * ((t + 3) & 3), KV + 12 * (b if t else (j - 1) % NKV) + 8, oth + 8)
                    if i == 4:
                        if t < 3:
                            mfma32(oth, KV + 12 * b, QR + 4 * (t + 1), None)
                        elif j + 1 < n:
                            vm.wait(("kv", j + 1))
                            mfma32(oth, KV + 12 * ((j + 1) % NKV), QR, None)
                    if i == 10:
                        smf(OA + 16 * t, KV + 12 * b + 4, cur)
                    for h in hooks.get((j, t, i), ()):
                        h()
        smf(OA + 48, KV + 12 * ((n - 1) % NKV) + 8, SB + 16 + 8)

    ACC = (24, 40, 56)
    WB, NBUF, LA = 72, 6, cfg.look
    XF, PK, XA = 128, 96, 16
    init1, init2 = att_init_ops()

    def item(g):
        return divmod(g % 96, 3)

    def reads(g):
        ks, sel = item(g)
        c, m = divmod(g, 12)
        so = slot_of(c)
        base, so = (XA, 0) if so < 0 else (8 + so // 49152, so % 49152)
        if g < 96 and sel == 0:
            dsr("ds_read_b128", XF + 4 * ks, 4, XA + (ks & 3), (ks >> 2) * 8192, g)
        trread(WB + 4 * (g % NBUF), base, so + m * 2048, 512, g)

    def pack(acc, pk):
        return ["v_cvt_pk_bf16_f32 %s, %s, %s" % (vr(pk + q), vr(acc + 2 * q), vr(acc + 2 * q + 1)) for q in range(8)]

    def st2(pk, va, base, delta, tag, imm=(0, 0), vb=None):
        def first():
            bstore(pk, 4, va, SWS, base, imm[0], "" if cfg.abl & 64 else "sc1", tag)

        def second():
            if delta:
                a("s_add_u32 s72, %s, %d" % (base, delta))
            bstore(pk + 4, 4, vb or va, SWS, "s72" if delta else base, imm[1], "" if cfg.abl & 64 else "sc1", tag)
        return [first, second]

    def relu2(acc):
        return (["v_max_f32 %s, 0, %s" % (vr(acc + i), vr(acc + i)) for i in range(16)]
                + ["v_mul_f32 %s, %s, %s" % (vr(acc + i), vr(acc + i), vr(acc + i)) for i in range(16)])

    def bias(seg):
        return lambda: (vm.wait("b1"), mfma32(ACC[seg], 112 + 4 * seg, 124, None))

    tagq = ["v_or_b32 %s, 1, %s" % (vr(PK + 4 * q), vr(PK + 4 * q)) for q in range(2)]
    qkv_epi = (["v_mul_f32 %s, 0x%x, %s" % (vr(ACC[0] + i), QSCALE, vr(ACC[0] + i)) for i in range(16)]
               + pack(ACC[0], PK) + tagq + [bias(0)] + st2(PK, 1, "s76", 0, "st", (0, 1024))
               + pack(ACC[1], PK + 8) + [bias(1)] + st2(PK + 8, 11, "s77", 0x20400, "st")
               + pack(ACC[2], PK) + [bias(2)] + st2(PK, 12, "s77", 0, "st", (1024, 1536), 14))
    sched = {100: ["v_subrev_u32 %s, %d, v8" % (vr(XA), L_RING)], 144: init1, 180: init2}
    shadow = []

    def run_shadow(budget):
        while shadow and budget > 0:
            op = shadow.pop(0)
            if isinstance(op, str):
                a(op)
                budget -= 1
            else:
                op()
                budget -= 3

    a("""
    s_lshl_b32 s85, s60, 14
    s_lshl_b32 s72, s67, 7
    s_add_u32 s85, s85, s72
    s_lshl_b32 s86, s60, 6
    s_lshl1_add_u32 s86, s66, s86
    s_lshl_b32 s86, s86, 10
    s_add_u32 s86, s86, %d
    s_lshl_b32 s87, s66, FROW
    s_add_u32 s87, s87, %d
    """ % (WS_HF, WS_FLAGH))
    vm.wait(("w", 0))
    a("s_waitcnt lgkmcnt(0)")
    a("s_add_u32 %s, %s, 0x%x" % (sr(sTAG), sr(sTAG), EPOCH_INC))
    if cfg.bst == 3:
        stamp(9, True)
    a("s_barrier")
    stamp(3)
    if cfg.bst == 3:
        stamp(10, True)
    for g in range(LA):
        reads(g)
    for g in range(192):
        ks, sel = item(g)
        if g == 96:
            stamp(4)
            shadow.extend(qkv_epi)
            run_shadow(1000)
            stamp(5)
            if cfg.split:
                a("s_barrier")
                for n in range(96, 96 + LA):
                    reads(n)
        lg.wait(g)
        x, w = XF + 4 * ks, WB + 4 * (g % NBUF)
        c = None if (g < 96 and ks == 0) else ACC[sel]
        if g < 96 and sel == 2:
            mfma32(ACC[sel], x, w, c)
        else:
            mfma32(ACC[sel], w, x, c)
        n = g + LA
        if n < 192 and not (cfg.split and g < 96 <= n):
            if n % 12 == 0 and n // 12 not in skip_bar:
                vm.wait(("w", n // 12))
                if n // 12 == cfg.flag_chunk:
                    vm.wait("st")
                a("s_barrier")
                if n // 12 == cfg.flag_chunk:
                    a("s_cmp_lg_u32 s60, 0")
                    a("s_cselect_b32 s79, 0x40000000, s79")
                    set_flag(7, "s79")
                    stamp(6)
            reads(n)
        if g == 40:
            for seg in range(3):
                a("buffer_load_ushort %s, v10, %s, s81 offen offset:%d" % (vr(112 + 4 * seg), srd(SB1), seg * 128))
                vm.push("b1")
        shadow.extend(sched.get(g, ()))
        run_shadow(3)
    run_shadow(1000)
    stamp(7)
    hmath, hst = [], []
    for seg in range(3):
        pk = PK + 8 * seg
        hmath.append(relu2(ACC[seg]) + pack(ACC[seg], pk))
        hst.append((["s_add_u32 s78, s78, 0x40000"] if seg == 1 else []) + st2(pk, 1, "s78" if seg < 2 else "s88", 0x10000, "hst"))
    for seg in range(cfg.hbar):
        shadow.extend(hmath[seg])
    run_shadow(1000)
    a("s_barrier")
    stamp(8)
    if cfg.bst == 4:
        stamp(1, True)
    a("s_setprio 2")
    for seg in range(cfg.hbar, cfg.hpre):
        shadow.extend(hmath[seg])
    run_shadow(1000)
    att_loads("a")
    hlist = [[hst[0][0]], [hst[0][1]], hst[1][:2], [hst[1][2]], [hst[2][0]], [hst[2][1]]]
    for seg in range(3):
        shadow.extend(hmath[seg] if seg >= max(cfg.hpre, cfg.hbar) else [])
        for n in (2 * seg, 2 * seg + 1):
            if n < cfg.hnow:
                shadow.extend(hlist[n])
    run_shadow(1000)
    stamp(9)


    def w2dma(i):
        if cfg.abl & 1:
            return
        a("s_add_u32 m0, s84, %d" % ((i & 3) * 2048))
        a("s_add_u32 s72, s85, %d" % (i * 65536))
        dma(4, SW2, "s72", 0, ("w2", i))
        a("s_add_u32 s72, s72, 7168")
        dma(4, SW2, "s72", 1024, ("w2", i))

    hreg = lambda i, tt: HB + 8 * (i % 3) + 4 * tt

    def hload(i):
        if cfg.abl & 1:
            return
        if i > 0:
            a("s_add_u32 s86, s86, 0x40000")
        for tt in range(2):
            bload(hreg(i, tt), 4, 1, SWS, "s86", tt * 1024, "sc1", ("h", i))

    def w2read(i, nt):
        if cfg.abl & 2:
            return
        vm.wait(("w2", i))
        trread(WF + 4 * nt, 5 + nt, (i & 3) * 2048, 1024, ("wf", i, nt))

    def fslot(f):
        i, m = divmod(f, 4)
        nt, tt = ((0, 0), (0, 1), (1, 1), (1, 0))[m]
        vm.wait(("h", i))
        lg.wait(("wf", i, nt))
        d = FA + 16 * (2 * tt + nt)
        if not cfg.abl & 4:
            mfma32(d, WF + 4 * nt, hreg(i, tt), None if i == 0 else d)
        if m == 1 and i + 1 < NS:
            deferred.append(lambda: w2read(i + 1, 0))
        if m == cfg.dmam and i + 4 < NS:
            deferred.append(lambda: w2dma(i + 4))
        if m == 3:
            if i + 1 < NS:
                deferred.append(lambda: w2read(i + 1, 1))
            if i + 3 < NS:
                deferred.append(lambda: hload(i + 3))

    def park(tt, nt):
        d = FA + 16 * (2 * tt + nt)
        for q in range(8):
            a("v_cvt_pk_bf16_f32 %s, %s, %s" % (vr(d + q), vr(d + 2 * q), vr(d + 2 * q + 1)))
        for q in range(2):
            dsw("ds_write_b128", 4, d + 4 * q, 4, tt * 32 * PART_STRIDE + nt * 64 + q * 32)

    def park_addr():
        a("v_and_b32 v4, 31, v0")
        a("v_mul_u32_u24 v4, %d, v4" % PART_STRIDE)
        a("v_lshrrev_b32 v5, 5, v0")
        a("v_lshl_add_u32 v4, v5, 4, v4")
        a("v_add_u32 v4, s84, v4")

    hooks = {}

    def hook(j, t, i, f):
        hooks.setdefault((j, t, i), []).append(f)

    n1 = cfg.n1
    for n in range(cfg.hnow, 6):
        tl = (n - cfg.hnow) * cfg.hgap + cfg.hoff
        hook(tl >> 2, tl & 3, 9, lambda n=n: (shadow.extend(hlist[n]), run_shadow(1000)))
    assert (5 - cfg.hnow) * cfg.hgap + cfg.hoff <= cfg.hflag < 4 * (n1 - 2)
    hook(cfg.hflag >> 2, cfg.hflag & 3, 12, lambda: (vm.wait("hst"), set_flag(7, "s80"), stamp(1) if cfg.hst else None))
    hook(n1 - 2, 0, 8, lambda: flag_load(7, cfg.fsh, "s87", "hf"))
    hook(n1 - 2, 3, 12, lambda: (vm.wait("hf"), stamp(2) if cfg.hst else None, check_flags("h", 7, cfg.fsh, "s87"), stamp(3) if cfg.hst else None))
    for i in range(4):
        hook(n1 - 3 + (i >> 1), 1 + (i & 1), 7, lambda i=i: w2dma(i))
    for i in range(3):
        hook(n1 - 1, i, 7, lambda i=i: hload(i))
    hook(n1 - 1, 3, 7, lambda: (w2read(0, 0), w2read(0, 1)))
    pat = [int(ch) for ch in str(cfg.fpat)]
    slots = [(j, t, pos) for j in range(n1, nA) for t in range(4) for pos in ((13,), (7, 13))[pat[t] - 1]]
    for f in range(4 * NS):
        hook(*slots[f], lambda f=f: fslot(f))
    tl = slots[4 * NS - 1][0] * 4 + slots[4 * NS - 1][1] + 1
    assert tl + 3 < 4 * nA
    hook(tl >> 2, tl & 3, 6, park_addr)
    for n, (nt, tt) in enumerate(((0, 0), (0, 1), (1, 1), (1, 0))):
        hook((tl + n) >> 2, (tl + n) & 3, 7, lambda tt=tt, nt=nt: park(tt, nt))
    if cfg.hst:
        for n in range(4):
            hook(n1 + 4 * n, 0, 1, lambda n=n: stamp(4 + n))
    if cfg.alow:
        tl = 4 * nA - cfg.alow
        hook(tl >> 2, tl & 3, 0, lambda: a("s_setprio 0"))
    if cfg.bst == 4:
        for n, j in enumerate(range(0, nA, 2)):
            hook(j, 0, 0, lambda n=n: stamp(2 + n, True))
    att_run(nA, hooks)
    vm.drain()
    a("s_branch L_att_done")

    a.label("L_loader")
    vm.items = []
    lg.items = []

    def b_setup():
        a("; waves 4-7: W1 DMA offsets v56/v57 (sixth tile out of range where the next group owns it), wo DMA offset v4, flagQ row s79")
        a("""
        v_mul_u32_u24 v56, 2752, v4
        v_add_u32 v56, v56, v6
        s_lshr_b32 s72, 0x5b, s61
        s_and_b32 s72, s72, 1
        s_lshl_b32 s72, s72, 23
        v_and_b32 v57, 64, v6
        v_mad_u32_u24 v57, v57, s72, v56
        v_bfe_u32 v6, v4, 1, 2
        v_lshlrev_b32 v6, 1, v6
        v_xor_b32 v6, v6, v5
        v_lshlrev_b32 v6, 4, v6
        v_lshl_add_u32 v4, v4, 10, v6
        v_min_u32 v5, %d, v0
        v_lshlrev_b32 v5, 7, v5
        s_lshr_b32 s79, s64, 1
        s_lshl_b32 s79, s79, 10
        s_add_u32 s79, s79, %d
        s_and_b32 s73, s60, 3
        s_lshl_b32 s72, s69, 6
        s_mul_i32 s80, s73, %d
        s_add_u32 s80, s80, s72
        """ % (cfg.pfn - 1, WS_FLAGQ, 16 * 2752))

        a("v_mov_b32 v3, 0xdddddddd")

    issued = cfg.lead
    setup1()
    state = {"issued": issued}

    def b_step(c):
        if c in skip_bar:
            return
        vm.wait(("w", c + 1 if c + 1 in skip_bar else c))
        if cfg.bst == 2:
            stamp(c, True)
        if cfg.bst == 3 and c == 0:
            stamp(9, True)
        a("s_barrier")
        if cfg.bst == 1:
            stamp(c, True)
        if c in (0, 8, 12, 15):
            stamp({0: 3, 8: 4, 12: 5, 15: 6}[c])
        if c == cfg.bload - 1:
            flag_load(7, 4, "s79", "qf")
        if c == cfg.bload:
            vm.wait("qf")
            check_flags("q", 7, 4, "s79")
            stamp(7)
            att_loads("b")
        lim = c + 2
        if c < 8:
            lim = min(lim, cfg.hold)
        if cfg.split and c == 8:
            lim = 10 + cfg.split - 1
        if cfg.xslot == 12 and c == 9:
            lim = 12
        if cfg.xslot == 11 and c in (8, 9):
            lim = c + 3
        if cfg.xslot and c >= 11:
            lim = c + cfg.xrun
        while state["issued"] < min(15, max(3, lim)):
            state["issued"] += 1
            issue_chunk(state["issued"])
        if c == 1:
            setup2()
        if cfg.pf1_at == 12 + c:
            assert c >= 1
            pf1()
        if c == 2:
            setup3()
        if c == 3:
            b_setup()
        if c == cfg.l2w:
            pfl2(SW1)
        if c == cfg.pfe:
            a("; memory-side prefetch of w2 and wo")
            bload(32, 1, 31, SW2, "s100", 0, "", "pf")
            bload(32, 1, 31, SWO, "s100", 0, "", "pf")
        if c == 4:
            for op in init1:
                a(op)
        if c == 5:
            for op in init2:
                a(op)
        if c == 7:
            a("s_waitcnt lgkmcnt(0)")
            a("s_add_u32 %s, %s, 0x%x" % (sr(sTAG), sr(sTAG), EPOCH_INC))

    def b_att():
        a("s_barrier")
        stamp(8)
        a("s_setprio 1")
        if cfg.kv3:
            kvload(2)

    bhooks = {}
    for c in range(17):
        f = (lambda c=c: b_step(c)) if c < 16 else b_att
        if c <= cfg.bjoin:
            f()
        else:
            tl = (c - cfg.bjoin) * cfg.btile - 1
            bhooks[(tl >> 2, tl & 3, 13)] = [f]

    def wo_dma(lo, hi):
        if cfg.abl & 8:
            return
        if lo == 0:
            a("; wo tile -> LDS [0, 64K), a few rows per score tile")
            a("s_and_b32 s78, s60, 3")
            a("s_lshl_b32 s76, s78, 17")
            a("s_lshl_b32 s73, s67, 7")
            a("s_add_u32 s76, s76, s73")
            a("s_lshl_b32 s78, s78, 14")
        for i in range(lo, hi):
            a("s_add_u32 m0, s78, %d" % (i * 1024))
            a("s_add_u32 s73, s76, %d" % (i * 8192))
            dma(4, SWO, "s73", 0, "wo")

    nl = cfg.pfn
    batches = [(SW2, i) for i in range(-(-11 // nl))] + [(SWO, i) for i in range(-(-4 // nl))]

    def pf_late(n):
        if cfg.abl & 16:
            return
        if n == 0:
            a("; memory-side prefetch of w2 (in k order) and wo, a few lines per wave at a time")
            a("s_and_b32 s90, s60, 3")
            a("s_lshl2_add_u32 s90, s2, s90")
            a("s_mul_i32 s90, s90, %d" % (nl * 128))
        a("s_add_u32 s72, s90, %d" % (batches[n][1] * nl * 131072))
        bload(7, 1, 5, batches[n][0], "s72", 0, "", "pf")

    for n in range(len(batches) if cfg.pfe > 90 else 0):
        tl = cfg.pfl + n * cfg.pfg
        bhooks[(tl >> 2, tl & 3, 7)] = [lambda n=n: pf_late(n)]
    for n, lo in enumerate(range(0, 16, cfg.won)):
        bhooks[((cfg.wol + n) >> 2, (cfg.wol + n) & 3, 8)] = [lambda lo=lo: wo_dma(lo, lo + cfg.won)]
    if cfg.bst == 4:
        for j in range(nB):
            bhooks.setdefault((j, 0, 0), []).append(lambda j=j: stamp(2 + j, True))
    att_run(nB, bhooks)
    vm.drain()

    OW = OA + 48
    WOF, OFR, AC, G, Z, X, SR = 128, 24, 8, 64, 96, 104, 112
    a.label("L_att_done")
    stamp(10)
    if cfg.bst == 4:
        stamp(14, True)
    a("s_setprio 0")
    a("s_and_b32 s73, s60, 1")
    a("s_lshl_b32 s73, s73, 9")
    a("s_sub_u32 s76, s95, s73")
    a("""
    s_and_b32 s74, s60, 3
    s_lshr_b32 s75, s60, 2
    v_lshrrev_b32 v14, 3, v0
    v_and_b32 v7, 7, v0
    v_lshlrev_b32 v7, 4, v7
    v_lshl_add_u32 v14, v14, 10, v7
    s_lshl3_add_u32 s78, s66, s60
    s_lshl_b32 s78, s78, 13
    s_lshl_b32 s79, s67, 7
    s_add_u32 s78, s78, s79
    """)
    bload(60, 4, 7, SB2, "s79", 0, "", "xb")
    bload(56, 4, 14, SX, "s78", 0, "", "xb")
    lg.drain()
    a("s_barrier")
    for src in range(3):
        d = SB + 10 * src
        dsr("ds_read_b128", d, 4, 9, src * 2304, src)
        dsr("ds_read_b128", d + 4, 4, 9, src * 2304 + 1024, src)
        dsr("ds_read_b32", d + 8, 1, 10, src * 2304 + 2048, src)
    for src in range(3):
        lg.wait(src)
        for i in range(0, 8, 2):
            a("v_pk_add_f32 %s, %s, %s" % (vr(OW + i, 2), vr(OW + i, 2), vr(SB + 10 * src + i, 2)))
        a("v_add_f32 %s, %s, %s" % (vr(OW + 8), vr(OW + 8), vr(SB + 10 * src + 8)))
    a("v_pk_mul_f32 v[12:13], %s, 0 op_sel_hi:[1,0]" % vr(OW, 2))
    for i in range(2, 8, 2):
        a("v_pk_fma_f32 v[12:13], %s, 0, v[12:13] op_sel_hi:[1,0,1]" % vr(OW + i, 2))
    a("""
    v_add_f32 v12, v12, %s
    v_add_f32 v12, v12, v13
    v_cmp_nle_f32 vcc, 0x30800000, v12
    s_mov_b64 s[72:73], vcc
    v_cmp_nge_f32 vcc, 0x5d800000, v12
    s_or_b64 s[72:73], s[72:73], vcc
    """ % vr(OW + 8))
    a("s_branch L_slow" if cfg.force_slow else "s_cbranch_scc1 L_slow")
    a.label("L_norm")
    a("v_rcp_f32 v12, %s" % vr(OW + 8))
    for i in range(0, 8, 2):
        a("v_pk_mul_f32 %s, %s, v[12:13] op_sel_hi:[1,0]" % (vr(OW + i, 2), vr(OW + i, 2)))
    for q in range(4):
        a("v_cvt_pk_bf16_f32 %s, %s, %s" % (vr(16 + q), vr(OW + 2 * q), vr(OW + 2 * q + 1)))
    a("v_and_b32 v16, -2, v16")
    bstore(16, 4, 11, SWS, "s76", 0, "sc1", "ost")
    stamp(11)
    a("v_mov_b32 v2, v14")
    a("v_lshrrev_b32 v3, 3, v0")
    a("""
    v_mul_u32_u24 v4, %d, v3
    s_mul_i32 s72, s60, %d
    s_add_u32 s72, s72, %d
    v_add3_u32 v4, v4, v7, s72
    """ % (PART_STRIDE, 8 * PART_STRIDE, L_W2))
    for j in range(4):
        dsr("ds_read_b128", G + 4 * j, 4, 4, j * W2_REGION, "g")
    a("""
    v_bfe_u32 v4, v0, 2, 2
    v_bfe_u32 v5, v0, 4, 1
    v_lshl_add_u32 v4, v5, 2, v4
    v_lshrrev_b32 v5, 1, v4
    v_lshlrev_b32 v92, 7, v4
    v_lshl_add_u32 v92, v5, 5, v92
    v_lshrrev_b32 v6, 5, v0
    v_lshl_add_u32 v92, v6, 11, v92
    v_and_b32 v4, 3, v0
    v_lshl_add_u32 v92, v4, 3, v92
    s_lshl_b32 s72, s75, 15
    v_add_u32 v92, s72, v92
    v_xor_b32 v93, 32, v92
    v_xor_b32 v94, 64, v92
    v_xor_b32 v95, 0x60, v92
    s_barrier
    """)

    def oloads(first=0):
        for ks in range(first, 8):
            bload(OFR + 4 * ks, 4, 1, SWS, ("s76", "s77", "s80", "s81")[ks >> 1], (ks & 1) * 2048, "sc1", ("o", ks))

    fill = ("""
    s_lshl2_add_u32 s72, s66, s74
    s_lshr_b32 s76, s72, 1
    s_lshl1_add_u32 s76, s76, s75
    s_lshl_b32 s76, s76, 14
    s_and_b32 s72, s72, 1
    s_lshl_b32 s72, s72, 10
    s_add_u32 s76, s76, s72
    s_add_u32 s76, s76, %d
    s_add_u32 s77, s76, 0x1000
    s_add_u32 s80, s76, 0x2000
    s_add_u32 s81, s76, 0x3000
    v_mul_u32_u24 v3, %d, v3
    v_lshl_add_u32 v3, v7, 1, v3
    s_mul_i32 s72, s60, %d
    s_add_u32 s72, s72, %d
    v_add_u32 v3, s72, v3
    v_and_b32 v5, 15, v0
    v_mul_u32_u24 v5, %d, v5
    v_and_b32 v4, 48, v0
    s_mul_i32 s72, s60, %d
    s_add_u32 s72, s72, %d
    v_add3_u32 v5, v5, v4, s72
    s_mov_b32 s82, 0x3f80
    s_mov_b32 s83, 0x3f800000
    """ % (WS_QO, SUM_STRIDE, 8 * SUM_STRIDE, L_SUM, SUM_STRIDE, 16 * SUM_STRIDE, L_SUM)).strip().split("\n")
    gate = ["v_mov_b32 %s, 0" % vr(Z + i) for i in range(8)]
    gate.append(lambda: lg.wait("g"))
    for j in range(5):
        if j == 4:
            gate.append(lambda: vm.wait("xb"))
        for q in range(4):
            src = G + 4 * j + q if j < 4 else 60 + q
            gate.append("v_dot2c_f32_bf16 %s, s82, %s" % (vr(Z + 2 * q), vr(src)))
            gate.append("v_dot2c_f32_bf16 %s, s83, %s" % (vr(Z + 2 * q + 1), vr(src)))
    for q in range(4):
        gate.append("v_lshlrev_b32 %s, 16, %s" % (vr(X + 2 * q), vr(56 + q)))
        gate.append("v_and_b32 %s, s89, %s" % (vr(X + 1 + 2 * q), vr(56 + q)))
    gate += ["v_mul_f32 %s, 0x%x, %s" % (vr(G + i), NLOG2E, vr(Z + i)) for i in range(8)]
    gate += ["v_exp_f32 %s, %s" % (vr(G + i), vr(G + i)) for i in range(8)]
    gate += ["v_add_f32 %s, 1.0, %s" % (vr(G + i), vr(G + i)) for i in range(8)]
    gate += ["v_rcp_f32 %s, %s" % (vr(G + i), vr(G + i)) for i in range(8)]
    gate += ["v_mul_f32 %s, %s, %s" % (vr(Z + i), vr(Z + i), vr(G + i)) for i in range(8)]

    def wo_reads(oat, per):
        for ks in range(8):
            for ct in range(4):
                trread(WOF + (ks * 4 + ct) * 4, 92 + ct, ks * 4096, 1024, ("wo", ks))
                run_shadow(per)
            if ks == oat:
                run_shadow(1000)
                vm.wait("ost")
                oloads()

    vm_t, lg_t = list(vm.items), list(lg.items)
    a("s_cmp_eq_u32 s63, 1")
    a("s_cbranch_scc1 L_tail_b")
    shadow.extend(fill)
    wo_reads(7, 1)
    shadow.extend(gate)
    run_shadow(1000)
    a("s_branch L_tail_j")
    a.label("L_tail_b")
    vm.items, lg.items = vm_t, lg_t
    shadow.extend(fill + gate)
    run_shadow(1000)
    wo_reads(cfg.oat, 0)
    a.label("L_tail_j")
    stamp(12)
    a("s_mov_b32 s73, 0")
    lg.drain()
    for ks in range(8):
        a.label("L_wo_%d" % ks)
        vm.wait(("o", ks))
        a("v_and_b32 v6, 1, %s" % vr(OFR + 4 * ks))
        a("v_cmp_ne_u32 vcc, 0, v6")
        a("s_cbranch_vccnz L_oretry_%d" % ks)
        a.label("L_ogo_%d" % ks)
        for ct in range(4):
            d = AC + 4 * ct
            mfma16(d, WOF + (ks * 4 + ct) * 4, OFR + 4 * ks, None if ks == 0 else d)
    stamp(13)
    for ct in range(4):
        dsw("ds_write_b128", 5, AC + 4 * ct, 4, ct * 64)
    lg.drain()
    a("s_barrier")
    stamp(14)
    dsr("ds_read_b128", SR, 4, 3, 0, 0)
    dsr("ds_read_b128", SR + 8, 4, 3, SUM_SIZE, 0)
    dsr("ds_read_b128", SR + 4, 4, 3, 16, 1)
    dsr("ds_read_b128", SR + 12, 4, 3, SUM_SIZE + 16, 1)
    for h in range(2):
        lg.wait(h)
        for i in range(4 * h, 4 * h + 4, 2):
            a("v_pk_add_f32 %s, %s, %s" % (vr(SR + i, 2), vr(SR + i, 2), vr(SR + 8 + i, 2)))
        for i in range(4 * h, 4 * h + 4, 2):
            a("v_pk_fma_f32 %s, %s, %s, %s" % (vr(SR + i, 2), vr(SR + i, 2), vr(Z + i, 2), vr(X + i, 2)))
        for q in range(2 * h, 2 * h + 2):
            a("v_cvt_pk_bf16_f32 %s, %s, %s" % (vr(G + q), vr(SR + 2 * q), vr(SR + 2 * q + 1)))
    bstore(G, 4, 2, SOUT, "s78", 0, ("", "sc1", "nt", "sc0 sc1", "sc0 sc1 nt")[cfg.omod])
    a("s_or_b32 s72, s2, s60")
    a("s_cmp_lg_u32 s72, 0")
    a("s_cbranch_scc1 L_noepoch")
    set_flag(7, "0")
    a.label("L_noepoch")
    if cfg.stamps:
        a("s_waitcnt vmcnt(0)")
        stamp(15)
        if cfg.probe is not None:
            a("s_sub_u32 s72, %s, s4" % sr(sSTAMP + cfg.probe))
            if cfg.stamps == 2:
                a("s_lshr_b32 s72, s72, 3")
            else:
                a("s_lshl_b32 s72, s72, %d" % cfg.probesh)
            a("s_cmp_lg_u32 s2, %d" % cfg.probewg)
            a("s_cselect_b32 s72, 0, s72")
            a("s_cmp_lg_u32 s60, %d" % cfg.probew)
            a("s_cselect_b32 s72, 0, s72")
            a("s_memrealtime s[22:23]")
            a("s_waitcnt lgkmcnt(0)")
            a("s_mov_b32 s73, s22")
            a.label("L_probe")
            a("s_memrealtime s[22:23]")
            a("s_waitcnt lgkmcnt(0)")
            a("s_sub_u32 s22, s22, s73")
            a("s_cmp_lt_u32 s22, s72")
            a("s_cbranch_scc1 L_probe")
        a("s_lshl3_add_u32 s72, s2, s60")
        a("s_lshl_b32 s72, s72, 6")
        a("s_add_u32 s72, s72, %d" % WS_STAMP)
        for i in range(16):
            a("v_mov_b32 %s, %s" % (vr(80 + i), sr(sSTAMP + i)))
        a("s_mov_b64 exec, 1")
        for i in range(4):
            bstore(80 + 4 * i, 4, 1, SWS, "s72", 16 * i)
    a.label("L_end")
    a("s_endpgm")

    for ks in range(8):
        a.label("L_oretry_%d" % ks)
        a("s_add_u32 s73, s73, 1")
        a("s_cmp_ge_u32 s73, %d" % SPIN_MAX)
        a("s_cbranch_scc1 L_ogo_%d" % ks)
        a("s_waitcnt vmcnt(0)")
        oloads(ks)
        a("s_branch L_wo_%d" % ks)

    for tag, vt, lanes, soff in stubs:
        a.label("L_poll_" + tag)
        a("s_mov_b32 s73, 0")
        a.label("L_poll2_" + tag)
        a("s_sleep %d" % cfg.sleep)
        flag_load(vt, lanes, soff, None)
        a("s_add_u32 s73, s73, 1")
        a("s_waitcnt vmcnt(0)")
        a("s_cmp_ge_u32 s73, %d" % SPIN_MAX)
        a("s_cbranch_scc1 L_polled_" + tag)
        a("v_cmp_ne_u32 vcc, %s, %s" % (sr(sTAG), vr(vt)))
        a("s_cbranch_vccnz L_poll2_" + tag)
        a("s_branch L_polled_" + tag)

    a.label("L_slow")
    CN = SB + 16
    a("s_waitcnt vmcnt(0)")
    a("v_mov_b32 v13, 0xff800000")
    a("s_mov_b32 s82, s83")
    a("s_mov_b32 s81, 64")
    a.label("L_slow1")
    bload(KV, 4, 252, SWS, "s82", 0, "sc1")
    a("s_add_u32 s82, s82, 2048")
    a("s_waitcnt vmcnt(0)")
    mfma32(SB, KV, QR + 12, None)
    for i in range(0, 16, 2):
        a("v_max3_f32 v13, v13, %s, %s" % (vr(SB + i), vr(SB + i + 1)))
    a("s_sub_u32 s81, s81, 1")
    a("s_cmp_lg_u32 s81, 0")
    a("s_cbranch_scc1 L_slow1")
    a("v_mov_b32 v15, v13")
    a("v_permlane32_swap_b32 v15, v13")
    a("v_max_f32 v13, v15, v13")
    for i in range(16):
        a("v_sub_f32 %s, 0, v13" % vr(CN + i))
        a("v_mov_b32 %s, 0" % vr(OW + i))
    a("s_mov_b32 s82, s83")
    a("s_mov_b32 s81, 64")
    a.label("L_slow2")
    kvload(0)
    a("s_waitcnt vmcnt(0)")
    mfma32(SB, KV, QR + 12, CN)
    for i in range(16):
        a("v_exp_f32 %s, %s" % (vr(SB + i), vr(SB + i)))
    smf(OW, KV + 4, SB)
    smf(OW, KV + 8, SB + 8)
    a("s_sub_u32 s81, s81, 1")
    a("s_cmp_lg_u32 s81, 0")
    a("s_cbranch_scc1 L_slow2")
    a("s_branch L_norm")
    a.label("L_code_end")
    a("s_endpgm")

    added = a.fix()
    return a.text().replace('FSH', str(cfg.fsh)).replace('FROW', str(cfg.fsh + 5)), added


HEADER = """; Kernarg layout for this problem (88 bytes, ptrs only, base s[0:1]):
; @launch grid=(256,1,1) block=(512,1,1) lds=163840
.amdgcn_target "amdgcn-amd-amdhsa--gfx950"
.text
.globl {k}
.p2align 8
.type {k},@function
{k}:
"""

FOOTER = """.section .rodata,"a"
.p2align 6
.amdhsa_kernel {k}
  .amdhsa_next_free_vgpr 256
  .amdhsa_next_free_sgpr 102
  .amdhsa_accum_offset 256
  .amdhsa_group_segment_fixed_size 0
  .amdhsa_kernarg_size 88
  .amdhsa_user_sgpr_count 2
  .amdhsa_user_sgpr_kernarg_segment_ptr 1
  .amdhsa_system_sgpr_workgroup_id_x 1
.end_amdhsa_kernel
"""


def build(**kw):
    cfg = Cfg()
    for k, v in kw.items():
        setattr(cfg, k, v)
    body, added = gen(cfg)
    return HEADER.format(k=KERNEL) + body + FOOTER.format(k=KERNEL), added


if __name__ == "__main__":
    out = sys.argv[1] if len(sys.argv) > 1 else "cdna_kernels/%s.s" % NAME
    kw = {}
    for arg in sys.argv[2:]:
        k, v = arg.split("=")
        kw[k] = int(v)
    text, added = build(**kw)
    open(out, "w").write(text)
    print("wrote", out, "lines", text.count("\n"), "nops added", added)
```

```python
import sys
import os
sys.path.insert(0, os.path.dirname(os.path.abspath(__file__)))
from asmlib import Asm, vr, sr

NAME = "recurrent_scan__softmax_full_mha__dense_activation_squared_relu__prompt"
KERNEL = NAME + "_kernel"

WS_FLAGQ = 0x1200
WS_FLAGH = 0x60000
WS_STAMP = 0x10000
WS_QO = 0x100000
WS_KV = 0x300000
WS_HF = 0x700000
WS_END = WS_HF + 86 * 65536
EPOCH_INC = 0x9E3779B9
SPIN_MAX = 1 << 18

L_RING = 65536
L_OPART = 65536
L_W2 = L_OPART + 55296
W2_REGION = 10240
PART_STRIDE = 144
SUM_STRIDE = 272
SUM_SIZE = 64 * SUM_STRIDE
L_SUM = L_OPART

SX, SWQ, SWO, SW1, SB1, SW2, SB2, SOUT, SWS = 24, 28, 32, 36, 40, 44, 48, 52, 56
sW, sCG, sTB, sRW, sP, sQB, sTBF, sCB, sTAG, sCT0 = 60, 61, 62, 63, 64, 65, 66, 67, 68, 69
sVM = 70
sSTAMP = 4

QSCALE = 0x3EB8AA3B
NLOG2E = 0xBFB8AA3B
NS = 22


class Cfg:
    abl = 0
    bst = 0
    xslot = 0
    xrun = 2
    n1 = 8
    nA = 22
    gap = 1
    kvt = 0
    kvi = 4
    dmam = 2
    fpat = 2221
    pf1_at = 99
    pfc_at = 99
    pfc1 = 0
    w2_at = 10
    pfl = 9
    wol = 15
    won = 1
    stamps = 0
    force_slow = 0
    flag_chunk = 10
    lead = 2
    defer = 0
    look = 5
    pfq_at = 99
    bload = 15
    bjoin = 16
    btile = 2
    sleep = 6
    w0_at = 7
    w1_at = 10
    hpre = 2
    hbar = 0
    hnow = 2
    hgap = 2
    hoff = 0
    kv3 = 1
    fsh = 4
    pfe = 99
    l2q = 99
    rot = 1
    split = 1
    hold = 99
    l2w = 99
    pfn = 11
    alow = 0
    pfg = 1
    hflag = 11
    probe = None
    omod = 1
    oat = 4
    probewg = 100
    probew = 0
    probesh = 4
    hst = 0


def srd(s):
    return sr(s, 4)


class Queue:
    def __init__(self, a, name, maxn):
        self.a, self.name, self.maxn, self.items = a, name, maxn, []

    def push(self, tag):
        self.items.append(tag)

    def wait(self, *tags):
        last = max((i for i, t in enumerate(self.items) if t in tags), default=-1)
        if last < 0:
            return
        n = len(self.items) - 1 - last
        self.a("s_waitcnt %s(%d)" % (self.name, min(n, self.maxn)))
        self.items = self.items[last + 1:]

    def drain(self):
        self.a("s_waitcnt %s(0)" % self.name)
        self.items = []


def gen(cfg):
    a = Asm()
    nA = cfg.nA
    nB = 32 - nA
    vm = Queue(a, "vmcnt", 63)
    lg = Queue(a, "lgkmcnt", 15)

    def stamp(i, force=False):
        if cfg.bst and not force and i != 0:
            return
        if cfg.stamps and (cfg.probe is None or i in (0, cfg.probe)):
            a("%s s[22:23]" % ("s_memtime" if cfg.stamps == 2 else "s_memrealtime"))
            a("s_waitcnt lgkmcnt(0)")
            a("s_mov_b32 %s, s22" % sr(sSTAMP + i))

    def mfma32(d, x, y, c):
        a("v_mfma_f32_32x32x16_bf16 %s, %s, %s, %s" % (vr(d, 16), vr(x, 4), vr(y, 4), "0" if c is None else vr(c, 16)))

    def mfma16(d, x, y, c):
        a("v_mfma_f32_16x16x32_bf16 %s, %s, %s, %s" % (vr(d, 4), vr(x, 4), vr(y, 4), "0" if c is None else vr(c, 4)))

    def smf(d, x, y):
        a("v_smfmac_f32_32x32x32_bf16 %s, %s, %s, v3" % (vr(d, 16), vr(x, 4), vr(y, 8)))

    def bload(d, n, va, s, so, off=0, mod="", tag=None):
        op = {1: "dword", 2: "dwordx2", 4: "dwordx4"}[n]
        a("buffer_load_%s %s, %s, %s, %s offen offset:%d %s" % (op, vr(d, n), vr(va), srd(s), so, off, mod))
        vm.push(tag)

    def bstore(d, n, va, s, so, off=0, mod="", tag=None):
        op = {1: "dword", 2: "dwordx2", 4: "dwordx4"}[n]
        a("buffer_store_%s %s, %s, %s, %s offen offset:%d %s" % (op, vr(d, n), vr(va), srd(s), so, off, mod))
        vm.push(tag)

    def dma(va, s, so, off=0, tag=None):
        a("buffer_load_dwordx4 %s, %s, %s offen offset:%d lds" % (vr(va), srd(s), so, off))
        vm.push(tag)

    def dsr(op, d, n, va, off, tag=None):
        a("%s %s, %s offset:%d" % (op, vr(d, n), vr(va), off))
        lg.push(tag)

    def dsw(op, va, d, n, off, tag=None):
        a("%s %s, %s offset:%d" % (op, vr(va), vr(d, n), off))
        lg.push(tag)

    def trread(d, va, off, second, tag=None):
        dsr("ds_read_b64_tr_b16", d, 2, va, off, tag)
        dsr("ds_read_b64_tr_b16", d + 2, 2, va, off + second, tag)

    def set_flag(vt, soff):
        a("v_mov_b32 %s, %s" % (vr(vt), sr(sTAG)))
        a("s_mov_b64 exec, 1")
        bstore(vt, 1, 1, SWS, soff, 0, "sc0 sc1")
        a("s_mov_b64 exec, -1")

    stubs = []

    def check_flags(tag, vt, lanes, soff):
        a("v_cmp_ne_u32 vcc, %s, %s" % (sr(sTAG), vr(vt)))
        a("s_cbranch_vccnz L_poll_" + tag)
        a.label("L_polled_" + tag)
        stubs.append((tag, vt, lanes, soff))

    def flag_load(vt, shift, soff, tag):
        a("v_and_b32 %s, 31, v0" % vr(vt))
        a("v_lshlrev_b32 %s, %d, %s" % (vr(vt), shift, vr(vt)))
        bload(vt, 1, vt, SWS, soff, 0, "sc0 sc1", tag)

    sizes = {SX: 2048 * 1024, SWQ: 512 * 3072, SWS: WS_END, SW1: 512 * 2752, SB1: 2752,
             SWO: 512 * 1024, SW2: 1376 * 1024, SB2: 1024, SOUT: 2048 * 1024}
    RAW = 128

    def xloads():
        for j in range(8):
            bload(RAW + j * 4, 4, 14, SX, "s101", j * 128, "", ("x", j))

    stamp(0)
    a("""
    s_load_dwordx2 s[24:25], s[0:1], 0
    s_getpc_b64 s[72:73]
    L_pc:
    s_cmpk_ge_u32 s2, 256
    s_cbranch_scc1 L_end
    s_lshr_b32 s74, s2, 3
    s_lshl_b32 s74, s74, 11
    v_lshrrev_b32 v8, 5, v0
    v_lshl_add_u32 v8, v8, 7, s74
    v_min_u32 v8, L_code_end-L_pc, v8
    v_mov_b32 v9, 0
    v_lshl_add_u64 v[8:9], v[8:9], 0, s[72:73]
    global_load_dword v7, v[8:9], off
    s_lshl_b32 s72, s2, 4
    s_and_b32 s72, s72, 0x180
    v_add_u32 v4, s72, v0
    v_bfe_u32 v4, v4, 3, 6
    v_and_b32 v5, 7, v0
    v_lshlrev_b32 v14, 10, v4
    v_lshl_add_u32 v14, v5, 4, v14
    s_lshr_b32 s67, s2, 5
    s_and_b32 s73, s2, 6
    s_lshl2_add_u32 s62, s73, s67
    s_lshl_b32 s101, s62, 16
    s_mov_b32 s26, %d
    s_mov_b32 s27, 0x20000
    v_bfe_u32 v24, v4, 1, 3
    v_xor_b32 v24, v24, v5
    v_lshlrev_b32 v15, 7, v4
    v_lshl_add_u32 v15, v24, 4, v15
    v_readfirstlane_b32 s60, v0
    v_and_b32 v0, 63, v0
    v_mov_b32 v24, 0
    v_mov_b32 v25, 0
    s_lshr_b32 s60, s60, 6
    s_cmp_ge_u32 s60, 4
    s_waitcnt lgkmcnt(0)
    """ % sizes[SX])
    vm.push("pf")
    if cfg.bst == 3:
        stamp(1, True)
    xloads()
    if cfg.bst == 3:
        stamp(2, True)
    if cfg.stamps:
        for i in range(3 if cfg.bst == 3 else 1, 16):
            a("s_mov_b32 %s, s4" % sr(sSTAMP + i))
    a("s_mov_b32 s63, 1")
    a("s_cbranch_scc1 L_ln")
    a("s_mov_b32 s63, 0")

    def setup1():
        for s, off in ((SWQ, 8), (SWS, 80), (SW1, 32), (SB1, 40), (SWO, 16), (SW2, 48), (SB2, 56), (SOUT, 64)):
            a("s_load_dwordx2 %s, s[0:1], %d" % (sr(s, 2), off))
        a("""
        s_mov_b32 s30, %d
        s_mov_b32 s31, 0x20000
        s_bfe_u32 s72, s2, 0x20003
        s_and_b32 s73, s2, 1
        s_lshl2_add_u32 s61, s73, s72
        s_and_b32 s74, s60, 3
        s_lshl_b32 s72, s61, 7
        s_mul_i32 s85, s74, %d
        s_add_u32 s85, s85, s72
        s_mul_i32 s87, s74, 6144
        s_add_u32 s87, s87, %d
        v_lshrrev_b32 v4, 3, v0
        v_bfe_u32 v6, v4, 1, 1
        v_lshlrev_b32 v6, 2, v6
        v_xor_b32 v6, v6, v5
        v_lshlrev_b32 v6, 4, v6
        v_mul_u32_u24 v13, 3072, v4
        v_add_u32 v13, v13, v6
        s_waitcnt lgkmcnt(0)
        """ % (sizes[SWQ], 16 * 3072, L_RING))

    def setup2():
        a("s_load_dword %s, %s, 0" % (sr(sTAG), sr(SWS, 2)))
        for s in (SW1, SWS, SB1, SWO, SW2, SB2, SOUT):
            a("s_mov_b32 %s, %d" % (sr(s + 2), sizes[s]))
            a("s_mov_b32 %s, 0x20000" % sr(s + 3))
        a("""
        s_and_b32 s73, s60, 3
        s_lshl2_add_u32 s100, s2, s73
        s_mul_i32 s100, s100, 1536
        v_min_u32 v31, 11, v0
        v_lshlrev_b32 v31, 7, v31
        s_bfe_u32 s72, s2, 0x20003
        s_and_b32 s73, s2, 7
        s_lshl2_add_u32 s66, s73, s72
        s_and_b32 s72, s72, 1
        s_lshl1_add_u32 s64, s73, s72
        s_lshr_b32 s65, s2, 4
        s_mul_i32 s69, s61, 6
        s_mul_i32 s73, s61, 5
        s_add_u32 s73, s73, 3
        s_min_u32 s69, s69, s73
        s_mov_b32 s70, 0xffff
        s_mov_b32 s71, 0xffff
        v_lshlrev_b32 v1, 4, v0
        v_and_b32 v2, 15, v0
        v_lshrrev_b32 v3, 5, v0
        v_lshl_add_u32 v2, v3, 4, v2
        v_lshlrev_b32 v2, 4, v2
        """)

    def setup3():
        a("; attention offsets: s82 = next K/V tile, s83 = head base, s92-s95 = Q tiles, s96-s99 = O partial slots")
        a("""
        s_and_b32 s74, s60, 1
        s_lshr_b32 s75, s60, 1
        s_lshl1_add_u32 s72, s64, s74
        s_lshl_b32 s83, s72, 17
        s_add_u32 s83, s83, %d
        s_and_b32 s73, s75, 1
        s_lshl_b32 s73, s73, 16
        s_add_u32 s82, s83, s73
        s_lshl_b32 s72, s65, 6
        s_add_u32 s72, s72, s64
        s_lshl1_add_u32 s72, s72, s74
        s_lshl_b32 s72, s72, 10
        s_add_u32 s72, s72, %d
        s_mul_i32 s84, s74, %d
        s_add_u32 s84, s84, %d
        """ % (WS_KV, WS_QO, 12 * 2304, L_OPART))
        for t in range(4):
            a("s_xor_b32 s73, s75, %d" % (t ^ 3))
            a("s_mul_i32 %s, s73, %d" % (sr(96 + t), 3 * 2304))
            a("s_lshl_b32 s73, s73, 15")
            a("s_add_u32 %s, s72, s73" % sr(92 + t))
            a("s_add_u32 %s, %s, s84" % (sr(96 + t), sr(96 + t)))

    setup1()
    setup2()
    setup3()
    a("""
    s_add_u32 s82, s82, %d
    v_and_b32 v8, 0x33, v0
    v_and_b32 v9, 4, v0
    v_lshl_or_b32 v8, v9, 1, v8
    v_and_b32 v9, 8, v0
    v_lshrrev_b32 v9, 1, v9
    v_or_b32 v8, v8, v9
    v_lshlrev_b32 v11, 4, v8
    v_bfe_u32 v9, v0, 4, 1
    v_mul_u32_u24 v12, 0x1fe00, v9
    v_add_u32 v12, v12, v2
    v_mul_u32_u24 v14, 0x1fa00, v9
    v_add_u32 v14, v14, v2
    v_lshl_add_u32 v4, v4, 10, v6
    v_bfe_u32 v10, v0, 2, 2
    v_lshlrev_b32 v5, 5, v9
    v_lshl_add_u32 v5, v10, 7, v5
    v_and_b32 v9, 3, v0
    v_lshl_add_u32 v5, v9, 3, v5
    v_lshrrev_b32 v10, 1, v10
    v_lshl_add_u32 v8, v3, 10, v5
    v_xor_b32 v9, s75, v10
    v_lshl_add_u32 v8, v9, 6, v8
    v_add_u32 v8, %d, v8
    v_add_u32 v9, %d, v8
    v_lshl_add_u32 v5, v3, 9, v5
    v_lshl_add_u32 v5, v10, 6, v5
    v_lshrrev_b32 v10, 1, v0
    v_xor_b32 v10, v10, v0
    v_and_b32 v10, 1, v10
    v_mul_u32_u24 v10, 24, v10
    v_xor_b32 v5, v5, v10
    s_mul_i32 s84, s60, %d
    s_add_u32 s84, s84, %d
    v_add_u32 v5, s84, v5
    v_xor_b32 v6, 64, v5
    v_and_b32 v10, 31, v0
    s_lshl_b32 s72, s74, 12
    v_bfe_u32 v16, v10, 1, 3
    v_xor_b32 v16, v16, v3
    v_lshlrev_b32 v16, 4, v16
    v_lshl_add_u32 v16, v10, 7, v16
    v_add_u32 v16, s72, v16
    v_xor_b32 v17, 32, v16
    v_xor_b32 v18, 64, v16
    v_xor_b32 v19, 0x60, v16
    v_lshlrev_b32 v10, 1, v10
    v_lshl_add_u32 v10, v3, 20, v10
    """ % (nB * 2048, L_RING, 2 * 24576, W2_REGION, L_W2))
    for seg in range(3):
        for q in range(1, 4):
            a("v_mov_b32 %s, 0" % vr(112 + 4 * seg + q))
    for q in range(4):
        a("v_mov_b32 %s, 0x3f803f80" % vr(124 + q))
    a("v_mov_b32 v3, 0xdddddddd")
    a("""
    s_lshl1_add_u32 s72, s62, s74
    s_lshl1_add_u32 s73, s61, s75
    s_lshl_b32 s76, s73, 7
    s_add_u32 s76, s76, s72
    s_lshl_b32 s77, s76, 11
    s_lshl4_add_u32 s76, s72, s73
    s_lshl_b32 s76, s76, 11
    s_add_u32 s76, s76, %d
    s_add_u32 s77, s77, %d
    s_add_u32 s81, s69, s75
    s_lshl_b32 s78, s81, 7
    s_add_u32 s78, s78, s72
    s_lshl_b32 s78, s78, 10
    s_add_u32 s78, s78, %d
    s_lshl_b32 s79, s61, 6
    s_add_u32 s79, s79, s62
    s_lshl_b32 s79, s79, 4
    s_add_u32 s79, s79, %d
    s_lshl_b32 s80, s62, 3
    s_add_u32 s80, s80, s61
    s_lshl2_add_u32 s80, s80, s60
    s_lshl_b32 s80, s80, FSH
    s_add_u32 s80, s80, %d
    s_mul_i32 s73, s61, s75
    s_add_u32 s88, s78, %d
    s_cmp_lt_u32 s73, 3
    s_cselect_b32 s88, s88, 0x40000000
    s_lshl_b32 s81, s81, 6
    """ % (WS_QO, WS_KV, WS_HF, WS_FLAGQ, WS_FLAGH, 8 * 65536))

    def slot_of(c):
        if not cfg.xslot or c < cfg.xslot:
            return (c & 3) * 24576
        return -L_RING if c == cfg.xslot else ((c - 1) & 3) * 24576

    skip_bar = (10,) if cfg.xslot else ()

    def issue_chunk(c):
        if cfg.rot:
            a("s_xor_b32 s73, s67, %d" % (c & 7))
            a("s_mul_i32 s73, s73, %d" % (64 * (3072 if c < 8 else 2752)))
            a("s_add_u32 s73, s73, %s" % ("s85" if c < 8 else "s80"))
        for m in range(6):
            blk, seg = divmod(m, 3)
            a("s_add_u32 m0, s87, %d" % (slot_of(c) + seg * 2048 + blk * 1024))
            if c < 8:
                a("s_add_u32 s72, %s, %d" % (("s73", blk * 8 * 3072 + seg * 1024) if cfg.rot else ("s85", (c * 64 + blk * 8) * 3072 + seg * 1024)))
                dma(13, SWQ, "s72", 0, ("w", c))
            else:
                a("s_add_u32 s72, %s, %d" % (("s73", blk * 8 * 2752 + seg * 128) if cfg.rot else ("s80", ((c - 8) * 64 + blk * 8) * 2752 + seg * 128)))
                dma(57 if seg == 2 else 56, SW1, "s72", 0, ("w", c))

    def layernorm(acts):
        def act(p):
            if acts.get(p):
                assert p >= 7
                a("s_cmp_eq_u32 s63, 1")
                a("s_cbranch_scc1 L_ln_%d" % p)
                for f in acts[p]:
                    f()
                a.label("L_ln_%d" % p)
        a.label("L_ln")
        a("v_mov_b32 v30, 0x3f803f80")
        a("s_mov_b32 s89, 0xffff0000")
        if cfg.rot:
            a("; K chunks are visited in the order c ^ (row block & 7): workgroups sharing weights fetch different chunks first")
            a("s_lshl_b32 s72, s67, 13")
            a("v_or_b32 v15, s72, v15")

        def xwrite(j):
            if cfg.rot:
                a("v_xor_b32 v23, 0x%x, v15" % (j << 13))
                a("ds_write_b128 v23, %s" % vr(RAW + j * 4, 4))
            else:
                a("ds_write_b128 v15, %s offset:%d" % (vr(RAW + j * 4, 4), j * 8192))

        for j in range(8):
            if cfg.bst == 3 and j == 0:
                stamp(3, True)
            vm.wait(("x", j))
            if cfg.bst == 3 and j in (0, 3, 7):
                stamp({0: 4, 3: 5, 7: 6}[j], True)
            act(j)
            for q in range(4):
                x = RAW + j * 4 + q
                a("v_dot2c_f32_bf16 v24, v30, %s" % vr(x))
                a("v_dot2c_f32_bf16 v25, %s, %s" % (vr(x), vr(x)))
        act(8)
        stamp(1)
        for ctl in ("quad_perm:[1,0,3,2]", "quad_perm:[2,3,0,1]", "row_half_mirror"):
            for r in (24, 25):
                a("v_add_f32_dpp %s, %s, %s %s row_mask:0xf bank_mask:0xf" % (vr(r), vr(r), vr(r), ctl))
        a("""
        v_mul_f32 v24, 0x3b000000, v24
        v_mul_f32 v25, 0x3b000000, v25
        v_fma_f32 v25, -v24, v24, v25
        v_max_f32 v25, 0, v25
        v_cvt_pk_bf16_f32 v24, v24, v25
        v_and_b32 v25, s89, v24
        v_add_f32 v25, 0x3727c5ac, v25
        v_cvt_pk_bf16_f32 v25, v25, v25
        v_and_b32 v25, s89, v25
        v_sqrt_f32 v25, v25
        v_lshlrev_b32 v24, 16, v24
        v_cvt_pk_bf16_f32 v25, v25, v25
        v_and_b32 v25, s89, v25
        v_rcp_f32 v26, v25
        v_mul_f32_e64 v28, -v24, v26
        """)
        for j in range(8):
            x = RAW + j * 4
            t = 192 + (j & 1) * 8
            for q in range(4):
                a("v_lshlrev_b32 %s, 16, %s" % (vr(t + 2 * q), vr(x + q)))
                a("v_and_b32 %s, s89, %s" % (vr(t + 2 * q + 1), vr(x + q)))
            for q in range(4):
                a("v_pk_fma_f32 %s, %s, v[26:27], v[28:29] op_sel_hi:[1,0,0]" % (vr(t + 2 * q, 2), vr(t + 2 * q, 2)))
            for q in range(4):
                a("v_cvt_pk_bf16_f32 %s, %s, %s" % (vr(x + q), vr(t + 2 * q), vr(t + 2 * q + 1)))
            if not cfg.defer:
                xwrite(j)
        if cfg.bst == 3:
            stamp(7, True)
        act(9)
        if cfg.defer:
            for j in range(8):
                xwrite(j)
        act(10)
        stamp(2)
        if cfg.bst == 3:
            stamp(8, True)

    def pfq():
        a("; memory-side prefetch of Wqkv")
        bload(7, 1, 31, SWQ, "s100", 0, "", "pf")

    def pfl2(which):
        a("; the die's workgroups pull their half of the weight columns into L2 together, four rows per wave")
        stride = 3072 if which == SWQ else 2752
        a("s_lshr_b32 s72, s2, 3")
        a("s_and_b32 s73, s60, 3")
        a("s_lshl2_add_u32 s72, s72, s73")
        a("s_mul_i32 s72, s72, %d" % (4 * stride))
        a("s_and_b32 s73, s2, 1")
        a("s_mul_i32 s73, s73, %d" % (512 if which == SWQ else 1344))
        a("s_add_u32 s72, s72, s73")
        a("v_lshrrev_b32 v20, 4, v0")
        a("v_mul_u32_u24 v20, %d, v20" % stride)
        if which == SWQ:
            a("v_bfe_u32 v21, v0, 2, 2")
            a("v_min_u32 v21, 2, v21")
            a("v_lshl_add_u32 v20, v21, 10, v20")
            a("v_and_b32 v21, 3, v0")
            a("v_lshl_add_u32 v20, v21, 7, v20")
        else:
            a("v_and_b32 v21, 15, v0")
            a("v_lshlrev_b32 v21, 7, v21")
            a("v_min_u32 v21, 1404, v21")
            a("v_add_u32 v20, v20, v21")
        bload(22, 1, 20, which, "s72", 0, "", "pf")

    def pfc(which):
        a("; lines at offset 384 of every KiB stream slowly on a miss: the die's workgroups pull them into L2 together")
        a("s_lshr_b32 s72, s2, 3")
        a("s_lshl2_add_u32 s72, s72, s60")
        a("s_mul_i32 s72, s72, 12288")
        a("v_lshlrev_b32 v20, 3, v31")
        if which == SWQ:
            a("s_bitcmp1_b32 s2, 0")
            a("s_cselect_b32 s72, 0x40000000, s72")
        bload(7, 1, 20, which, "s72", 384, "", "pf")

    def pf1():
        a("; memory-side prefetch of W1")
        bload(7 if cfg.pf1_at <= 10 else 32, 1, 31, SW1, "s100", 0, "", "pf")

    acts = {}
    if cfg.pfc_at == 0:
        save = list(vm.items)
        pfc(SWQ)
        vm.items = save
    elif cfg.pfc_at <= 10:
        acts.setdefault(cfg.pfc_at, []).append(lambda: pfc(SWQ))
    if cfg.pfq_at == 0:
        save = list(vm.items)
        pfq()
        vm.items = save
    elif cfg.pfq_at <= 10:
        acts.setdefault(cfg.pfq_at, []).append(pfq)
    if cfg.l2q == 0:
        save = list(vm.items)
        pfl2(SWQ)
        vm.items = save
    if cfg.l2q == 7:
        acts.setdefault(7, []).append(lambda: pfl2(SWQ))
    for c, p in enumerate((cfg.w0_at, cfg.w1_at, cfg.w2_at, 10)[:cfg.lead + 1]):
        acts.setdefault(p, []).append(lambda c=c: issue_chunk(c))
    if 8 <= cfg.l2q <= 10:
        acts.setdefault(cfg.l2q, []).insert(0, lambda: pfl2(SWQ))
    if cfg.pf1_at <= 10:
        acts.setdefault(cfg.pf1_at, []).append(pf1)
    if cfg.pfc1:
        acts.setdefault(10, []).append(lambda: pfc(SW1))
    layernorm(acts)
    a("s_cmp_eq_u32 s63, 1")
    a("s_cbranch_scc1 L_loader")

    QR, SB, WF, FA, OA, KV, HB = 8, 24, 56, 64, 128, 192, 228
    NKV = 3

    def att_init_ops():
        ops = ["v_mov_b32 %s, 0" % vr(OA + 16 * t + i) for t in range(4) for i in range(9)]
        ops2 = ["v_and_b32 v7, 27, v0", "v_cmp_eq_u32 vcc, 16, v7", "v_mov_b32 v7, 0x3f803f80", "v_cndmask_b32 v7, 0, v7, vcc"]
        ops2 += ["v_mov_b32 %s, v7" % vr(KV + 12 * b + 4 + q) for b in range(NKV) for q in range(8)]
        return ops, ops2

    def kvload(j):
        b = j % NKV
        bload(KV + 12 * b, 4, 252, SWS, "s82", 0, "sc1", ("kv", j))
        a("s_mov_b64 exec, %s" % sr(sVM, 2))
        bload(KV + 12 * b + 4, 4, 253, SWS, "s82", 0, "sc1", ("kv", j))
        bload(KV + 12 * b + 8, 4, 254, SWS, "s82", 0, "sc1", ("kv", j))
        a("s_mov_b64 exec, -1")
        a("s_add_u32 s82, s82, 2048")

    def att_loads(role):
        a("s_and_b32 s72, s60, 1")
        a("s_lshl_b32 s73, s72, 10")
        a("v_add_u32 v252, s73, v1")
        a("s_lshr_b32 s73, 0x400, s72")
        a("v_add_u32 v253, s73, v2")
        a("s_mul_i32 s73, s72, 0x600")
        a("s_sub_u32 s73, 0x600, s73")
        a("v_add_u32 v254, s73, v2")
        bload(QR, 4, 1, SWS, "s92", 0, "sc1", "q")
        kvload(0)
        for t in range(1, 4):
            bload(QR + 4 * t, 4, 1, SWS, sr(92 + t), 0, "sc1", "q")
        kvload(1)
        if cfg.kv3 and role == "a":
            kvload(2)

    def dump_addr():
        a("v_lshlrev_b32 v8, 2, v0")
        a("v_add_u32 v9, s99, v1")
        a("v_add_u32 v10, s99, v8")
        a("v_bfe_u32 v11, v0, 4, 1")
        a("v_lshl_add_u32 v11, v11, 10, v2")

    def dump(t):
        a("v_add_u32 v12, %s, v1" % sr(96 + t))
        a("v_add_u32 v13, %s, v8" % sr(96 + t))
        dsw("ds_write_b128", 12, OA + 16 * t, 4, t * 2304)
        dsw("ds_write_b128", 12, OA + 16 * t + 4, 4, t * 2304 + 1024)
        dsw("ds_write_b32", 13, OA + 16 * t + 8, 1, t * 2304 + 2048)

    deferred = []
    cfg_gap = {0: range(16), 1: (1, 10), 2: (0, 9), 3: (4, 10), 4: (1,), 5: (4,), 6: (15, 9)}[cfg.gap]

    def att_run(n, hooks):
        hooks.setdefault((n - 1, 0, 11), []).append(dump_addr)
        for t in range(3):
            hooks.setdefault((n - 1, t + 1, 12), []).append(lambda t=t: dump(t))
        vm.wait("q", ("kv", 0))
        mfma32(SB, KV, QR, None)
        for j in range(n):
            b = j % NKV
            for t in range(4):
                cur, oth = SB + 16 * (t & 1), SB + 16 * ((t + 1) & 1)
                for i in range(16):
                    a("v_exp_f32 %s, %s" % (vr(cur + i), vr(cur + i)))
                    if i in cfg_gap:
                        while deferred:
                            deferred.pop(0)()
                    if t == cfg.kvt and i == cfg.kvi and j + NKV - 1 < n and not (cfg.abl & 32 and j > 0) and not (cfg.kv3 and j == 0):
                        kvload(j + NKV - 1)
                    if i == 1 and (j, t) != (0, 0):
                        smf(OA + 16 * ((t + 3) & 3), KV + 12 * (b if t else (j - 1) % NKV) + 8, oth + 8)
                    if i == 4:
                        if t < 3:
                            mfma32(oth, KV + 12 * b, QR + 4 * (t + 1), None)
                        elif j + 1 < n:
                            vm.wait(("kv", j + 1))
                            mfma32(oth, KV + 12 * ((j + 1) % NKV), QR, None)
                    if i == 10:
                        smf(OA + 16 * t, KV + 12 * b + 4, cur)
                    for h in hooks.get((j, t, i), ()):
                        h()
        smf(OA + 48, KV + 12 * ((n - 1) % NKV) + 8, SB + 16 + 8)

    ACC = (24, 40, 56)
    WB, NBUF, LA = 72, 6, cfg.look
    XF, PK, XA = 128, 96, 16
    init1, init2 = att_init_ops()

    def item(g):
        return divmod(g % 96, 3)

    def reads(g):
        ks, sel = item(g)
        c, m = divmod(g, 12)
        so = slot_of(c)
        base, so = (XA, 0) if so < 0 else (8 + so // 49152, so % 49152)
        if g < 96 and sel == 0:
            dsr("ds_read_b128", XF + 4 * ks, 4, XA + (ks & 3), (ks >> 2) * 8192, g)
        trread(WB + 4 * (g % NBUF), base, so + m * 2048, 512, g)

    def pack(acc, pk):
        return ["v_cvt_pk_bf16_f32 %s, %s, %s" % (vr(pk + q), vr(acc + 2 * q), vr(acc + 2 * q + 1)) for q in range(8)]

    def st2(pk, va, base, delta, tag, imm=(0, 0), vb=None):
        def first():
            bstore(pk, 4, va, SWS, base, imm[0], "" if cfg.abl & 64 else "sc1", tag)

        def second():
            if delta:
                a("s_add_u32 s72, %s, %d" % (base, delta))
            bstore(pk + 4, 4, vb or va, SWS, "s72" if delta else base, imm[1], "" if cfg.abl & 64 else "sc1", tag)
        return [first, second]

    def relu2(acc):
        return (["v_max_f32 %s, 0, %s" % (vr(acc + i), vr(acc + i)) for i in range(16)]
                + ["v_mul_f32 %s, %s, %s" % (vr(acc + i), vr(acc + i), vr(acc + i)) for i in range(16)])

    def bias(seg):
        return lambda: (vm.wait("b1"), mfma32(ACC[seg], 112 + 4 * seg, 124, None))

    tagq = ["v_or_b32 %s, 1, %s" % (vr(PK + 4 * q), vr(PK + 4 * q)) for q in range(2)]
    qkv_epi = (["v_mul_f32 %s, 0x%x, %s" % (vr(ACC[0] + i), QSCALE, vr(ACC[0] + i)) for i in range(16)]
               + pack(ACC[0], PK) + tagq + [bias(0)] + st2(PK, 1, "s76", 0, "st", (0, 1024))
               + pack(ACC[1], PK + 8) + [bias(1)] + st2(PK + 8, 11, "s77", 0x20400, "st")
               + pack(ACC[2], PK) + [bias(2)] + st2(PK, 12, "s77", 0, "st", (1024, 1536), 14))
    sched = {100: ["v_subrev_u32 %s, %d, v8" % (vr(XA), L_RING)], 144: init1, 180: init2}
    shadow = []

    def run_shadow(budget):
        while shadow and budget > 0:
            op = shadow.pop(0)
            if isinstance(op, str):
                a(op)
                budget -= 1
            else:
                op()
                budget -= 3

    a("""
    s_lshl_b32 s85, s60, 14
    s_lshl_b32 s72, s67, 7
    s_add_u32 s85, s85, s72
    s_lshl_b32 s86, s60, 6
    s_lshl1_add_u32 s86, s66, s86
    s_lshl_b32 s86, s86, 10
    s_add_u32 s86, s86, %d
    s_lshl_b32 s87, s66, FROW
    s_add_u32 s87, s87, %d
    """ % (WS_HF, WS_FLAGH))
    vm.wait(("w", 0))
    a("s_waitcnt lgkmcnt(0)")
    a("s_add_u32 %s, %s, 0x%x" % (sr(sTAG), sr(sTAG), EPOCH_INC))
    if cfg.bst == 3:
        stamp(9, True)
    a("s_barrier")
    stamp(3)
    if cfg.bst == 3:
        stamp(10, True)
    for g in range(LA):
        reads(g)
    for g in range(192):
        ks, sel = item(g)
        if g == 96:
            stamp(4)
            shadow.extend(qkv_epi)
            run_shadow(1000)
            stamp(5)
            if cfg.split:
                a("s_barrier")
                for n in range(96, 96 + LA):
                    reads(n)
        lg.wait(g)
        x, w = XF + 4 * ks, WB + 4 * (g % NBUF)
        c = None if (g < 96 and ks == 0) else ACC[sel]
        if g < 96 and sel == 2:
            mfma32(ACC[sel], x, w, c)
        else:
            mfma32(ACC[sel], w, x, c)
        n = g + LA
        if n < 192 and not (cfg.split and g < 96 <= n):
            if n % 12 == 0 and n // 12 not in skip_bar:
                vm.wait(("w", n // 12))
                if n // 12 == cfg.flag_chunk:
                    vm.wait("st")
                a("s_barrier")
                if n // 12 == cfg.flag_chunk:
                    a("s_cmp_lg_u32 s60, 0")
                    a("s_cselect_b32 s79, 0x40000000, s79")
                    set_flag(7, "s79")
                    stamp(6)
            reads(n)
        if g == 40:
            for seg in range(3):
                a("buffer_load_ushort %s, v10, %s, s81 offen offset:%d" % (vr(112 + 4 * seg), srd(SB1), seg * 128))
                vm.push("b1")
        shadow.extend(sched.get(g, ()))
        run_shadow(3)
    run_shadow(1000)
    stamp(7)
    hmath, hst = [], []
    for seg in range(3):
        pk = PK + 8 * seg
        hmath.append(relu2(ACC[seg]) + pack(ACC[seg], pk))
        hst.append((["s_add_u32 s78, s78, 0x40000"] if seg == 1 else []) + st2(pk, 1, "s78" if seg < 2 else "s88", 0x10000, "hst"))
    for seg in range(cfg.hbar):
        shadow.extend(hmath[seg])
    run_shadow(1000)
    a("s_barrier")
    stamp(8)
    if cfg.bst == 4:
        stamp(1, True)
    a("s_setprio 2")
    for seg in range(cfg.hbar, cfg.hpre):
        shadow.extend(hmath[seg])
    run_shadow(1000)
    att_loads("a")
    hlist = [[hst[0][0]], [hst[0][1]], hst[1][:2], [hst[1][2]], [hst[2][0]], [hst[2][1]]]
    for seg in range(3):
        shadow.extend(hmath[seg] if seg >= max(cfg.hpre, cfg.hbar) else [])
        for n in (2 * seg, 2 * seg + 1):
            if n < cfg.hnow:
                shadow.extend(hlist[n])
    run_shadow(1000)
    stamp(9)


    def w2dma(i):
        if cfg.abl & 1:
            return
        a("s_add_u32 m0, s84, %d" % ((i & 3) * 2048))
        a("s_add_u32 s72, s85, %d" % (i * 65536))
        dma(4, SW2, "s72", 0, ("w2", i))
        a("s_add_u32 s72, s72, 7168")
        dma(4, SW2, "s72", 1024, ("w2", i))

    hreg = lambda i, tt: HB + 8 * (i % 3) + 4 * tt

    def hload(i):
        if cfg.abl & 1:
            return
        if i > 0:
            a("s_add_u32 s86, s86, 0x40000")
        for tt in range(2):
            bload(hreg(i, tt), 4, 1, SWS, "s86", tt * 1024, "sc1", ("h", i))

    def w2read(i, nt):
        if cfg.abl & 2:
            return
        vm.wait(("w2", i))
        trread(WF + 4 * nt, 5 + nt, (i & 3) * 2048, 1024, ("wf", i, nt))

    def fslot(f):
        i, m = divmod(f, 4)
        nt, tt = ((0, 0), (0, 1), (1, 1), (1, 0))[m]
        vm.wait(("h", i))
        lg.wait(("wf", i, nt))
        d = FA + 16 * (2 * tt + nt)
        if not cfg.abl & 4:
            mfma32(d, WF + 4 * nt, hreg(i, tt), None if i == 0 else d)
        if m == 1 and i + 1 < NS:
            deferred.append(lambda: w2read(i + 1, 0))
        if m == cfg.dmam and i + 4 < NS:
            deferred.append(lambda: w2dma(i + 4))
        if m == 3:
            if i + 1 < NS:
                deferred.append(lambda: w2read(i + 1, 1))
            if i + 3 < NS:
                deferred.append(lambda: hload(i + 3))

    def park(tt, nt):
        d = FA + 16 * (2 * tt + nt)
        for q in range(8):
            a("v_cvt_pk_bf16_f32 %s, %s, %s" % (vr(d + q), vr(d + 2 * q), vr(d + 2 * q + 1)))
        for q in range(2):
            dsw("ds_write_b128", 4, d + 4 * q, 4, tt * 32 * PART_STRIDE + nt * 64 + q * 32)

    def park_addr():
        a("v_and_b32 v4, 31, v0")
        a("v_mul_u32_u24 v4, %d, v4" % PART_STRIDE)
        a("v_lshrrev_b32 v5, 5, v0")
        a("v_lshl_add_u32 v4, v5, 4, v4")
        a("v_add_u32 v4, s84, v4")

    hooks = {}

    def hook(j, t, i, f):
        hooks.setdefault((j, t, i), []).append(f)

    n1 = cfg.n1
    for n in range(cfg.hnow, 6):
        tl = (n - cfg.hnow) * cfg.hgap + cfg.hoff
        hook(tl >> 2, tl & 3, 9, lambda n=n: (shadow.extend(hlist[n]), run_shadow(1000)))
    assert (5 - cfg.hnow) * cfg.hgap + cfg.hoff <= cfg.hflag < 4 * (n1 - 2)
    hook(cfg.hflag >> 2, cfg.hflag & 3, 12, lambda: (vm.wait("hst"), set_flag(7, "s80"), stamp(1) if cfg.hst else None))
    hook(n1 - 2, 0, 8, lambda: flag_load(7, cfg.fsh, "s87", "hf"))
    hook(n1 - 2, 3, 12, lambda: (vm.wait("hf"), stamp(2) if cfg.hst else None, check_flags("h", 7, cfg.fsh, "s87"), stamp(3) if cfg.hst else None))
    for i in range(4):
        hook(n1 - 3 + (i >> 1), 1 + (i & 1), 7, lambda i=i: w2dma(i))
    for i in range(3):
        hook(n1 - 1, i, 7, lambda i=i: hload(i))
    hook(n1 - 1, 3, 7, lambda: (w2read(0, 0), w2read(0, 1)))
    pat = [int(ch) for ch in str(cfg.fpat)]
    slots = [(j, t, pos) for j in range(n1, nA) for t in range(4) for pos in ((13,), (7, 13))[pat[t] - 1]]
    for f in range(4 * NS):
        hook(*slots[f], lambda f=f: fslot(f))
    tl = slots[4 * NS - 1][0] * 4 + slots[4 * NS - 1][1] + 1
    assert tl + 3 < 4 * nA
    hook(tl >> 2, tl & 3, 6, park_addr)
    for n, (nt, tt) in enumerate(((0, 0), (0, 1), (1, 1), (1, 0))):
        hook((tl + n) >> 2, (tl + n) & 3, 7, lambda tt=tt, nt=nt: park(tt, nt))
    if cfg.hst:
        for n in range(4):
            hook(n1 + 4 * n, 0, 1, lambda n=n: stamp(4 + n))
    if cfg.alow:
        tl = 4 * nA - cfg.alow
        hook(tl >> 2, tl & 3, 0, lambda: a("s_setprio 0"))
    if cfg.bst == 4:
        for n, j in enumerate(range(0, nA, 2)):
            hook(j, 0, 0, lambda n=n: stamp(2 + n, True))
    att_run(nA, hooks)
    vm.drain()
    a("s_branch L_att_done")

    a.label("L_loader")
    vm.items = []
    lg.items = []

    def b_setup():
        a("; waves 4-7: W1 DMA offsets v56/v57 (sixth tile out of range where the next group owns it), wo DMA offset v4, flagQ row s79")
        a("""
        v_mul_u32_u24 v56, 2752, v4
        v_add_u32 v56, v56, v6
        s_lshr_b32 s72, 0xf8, s61
        s_and_b32 s72, s72, 1
        s_lshl_b32 s72, s72, 23
        v_and_b32 v57, 64, v6
        v_mad_u32_u24 v57, v57, s72, v56
        v_bfe_u32 v6, v4, 1, 2
        v_lshlrev_b32 v6, 1, v6
        v_xor_b32 v6, v6, v5
        v_lshlrev_b32 v6, 4, v6
        v_lshl_add_u32 v4, v4, 10, v6
        v_min_u32 v5, %d, v0
        v_lshlrev_b32 v5, 7, v5
        s_lshr_b32 s79, s64, 1
        s_lshl_b32 s79, s79, 10
        s_add_u32 s79, s79, %d
        s_and_b32 s73, s60, 3
        s_lshl_b32 s72, s69, 6
        s_mul_i32 s80, s73, %d
        s_add_u32 s80, s80, s72
        """ % (cfg.pfn - 1, WS_FLAGQ, 16 * 2752))

        a("v_mov_b32 v3, 0xdddddddd")

    issued = cfg.lead
    setup1()
    state = {"issued": issued}

    def b_step(c):
        if c in skip_bar:
            return
        vm.wait(("w", c + 1 if c + 1 in skip_bar else c))
        if cfg.bst == 2:
            stamp(c, True)
        if cfg.bst == 3 and c == 0:
            stamp(9, True)
        a("s_barrier")
        if cfg.bst == 1:
            stamp(c, True)
        if c in (0, 8, 12, 15):
            stamp({0: 3, 8: 4, 12: 5, 15: 6}[c])
        if c == cfg.bload - 1:
            flag_load(7, 4, "s79", "qf")
        if c == cfg.bload:
            vm.wait("qf")
            check_flags("q", 7, 4, "s79")
            stamp(7)
            att_loads("b")
        lim = c + 2
        if c < 8:
            lim = min(lim, cfg.hold)
        if cfg.split and c == 8:
            lim = 10 + cfg.split - 1
        if cfg.xslot == 12 and c == 9:
            lim = 12
        if cfg.xslot == 11 and c in (8, 9):
            lim = c + 3
        if cfg.xslot and c >= 11:
            lim = c + cfg.xrun
        while state["issued"] < min(15, max(3, lim)):
            state["issued"] += 1
            issue_chunk(state["issued"])
        if c == 1:
            setup2()
        if cfg.pf1_at == 12 + c:
            assert c >= 1
            pf1()
        if c == 2:
            setup3()
        if c == 3:
            b_setup()
        if c == cfg.l2w:
            pfl2(SW1)
        if c == cfg.pfe:
            a("; memory-side prefetch of w2 and wo")
            bload(32, 1, 31, SW2, "s100", 0, "", "pf")
            bload(32, 1, 31, SWO, "s100", 0, "", "pf")
        if c == 4:
            for op in init1:
                a(op)
        if c == 5:
            for op in init2:
                a(op)
        if c == 7:
            a("s_waitcnt lgkmcnt(0)")
            a("s_add_u32 %s, %s, 0x%x" % (sr(sTAG), sr(sTAG), EPOCH_INC))

    def b_att():
        a("s_barrier")
        stamp(8)
        a("s_setprio 1")
        if cfg.kv3:
            kvload(2)

    bhooks = {}
    for c in range(17):
        f = (lambda c=c: b_step(c)) if c < 16 else b_att
        if c <= cfg.bjoin:
            f()
        else:
            tl = (c - cfg.bjoin) * cfg.btile - 1
            bhooks[(tl >> 2, tl & 3, 13)] = [f]

    def wo_dma(lo, hi):
        if cfg.abl & 8:
            return
        if lo == 0:
            a("; wo tile -> LDS [0, 64K), a few rows per score tile")
            a("s_and_b32 s78, s60, 3")
            a("s_lshl_b32 s76, s78, 17")
            a("s_lshl_b32 s73, s67, 7")
            a("s_add_u32 s76, s76, s73")
            a("s_lshl_b32 s78, s78, 14")
        for i in range(lo, hi):
            a("s_add_u32 m0, s78, %d" % (i * 1024))
            a("s_add_u32 s73, s76, %d" % (i * 8192))
            dma(4, SWO, "s73", 0, "wo")

    nl = cfg.pfn
    batches = [(SW2, i) for i in range(-(-11 // nl))] + [(SWO, i) for i in range(-(-4 // nl))]

    def pf_late(n):
        if cfg.abl & 16:
            return
        if n == 0:
            a("; memory-side prefetch of w2 (in k order) and wo, a few lines per wave at a time")
            a("s_and_b32 s90, s60, 3")
            a("s_lshl2_add_u32 s90, s2, s90")
            a("s_mul_i32 s90, s90, %d" % (nl * 128))
        a("s_add_u32 s72, s90, %d" % (batches[n][1] * nl * 131072))
        bload(7, 1, 5, batches[n][0], "s72", 0, "", "pf")

    for n in range(len(batches) if cfg.pfe > 90 else 0):
        tl = cfg.pfl + n * cfg.pfg
        bhooks[(tl >> 2, tl & 3, 7)] = [lambda n=n: pf_late(n)]
    for n, lo in enumerate(range(0, 16, cfg.won)):
        bhooks[((cfg.wol + n) >> 2, (cfg.wol + n) & 3, 8)] = [lambda lo=lo: wo_dma(lo, lo + cfg.won)]
    if cfg.bst == 4:
        for j in range(nB):
            bhooks.setdefault((j, 0, 0), []).append(lambda j=j: stamp(2 + j, True))
    att_run(nB, bhooks)
    vm.drain()

    OW = OA + 48
    WOF, OFR, AC, G, Z, X, SR = 128, 24, 8, 64, 96, 104, 112
    a.label("L_att_done")
    stamp(10)
    if cfg.bst == 4:
        stamp(14, True)
    a("s_setprio 0")
    a("s_and_b32 s73, s60, 1")
    a("s_lshl_b32 s73, s73, 9")
    a("s_sub_u32 s76, s95, s73")
    a("""
    s_and_b32 s74, s60, 3
    s_lshr_b32 s75, s60, 2
    v_lshrrev_b32 v14, 3, v0
    v_and_b32 v7, 7, v0
    v_lshlrev_b32 v7, 4, v7
    v_lshl_add_u32 v14, v14, 10, v7
    s_lshl3_add_u32 s78, s66, s60
    s_lshl_b32 s78, s78, 13
    s_lshl_b32 s79, s67, 7
    s_add_u32 s78, s78, s79
    """)
    bload(60, 4, 7, SB2, "s79", 0, "", "xb")
    bload(56, 4, 14, SX, "s78", 0, "", "xb")
    lg.drain()
    a("s_barrier")
    for src in range(3):
        d = SB + 10 * src
        dsr("ds_read_b128", d, 4, 9, src * 2304, src)
        dsr("ds_read_b128", d + 4, 4, 9, src * 2304 + 1024, src)
        dsr("ds_read_b32", d + 8, 1, 10, src * 2304 + 2048, src)
    for src in range(3):
        lg.wait(src)
        for i in range(0, 8, 2):
            a("v_pk_add_f32 %s, %s, %s" % (vr(OW + i, 2), vr(OW + i, 2), vr(SB + 10 * src + i, 2)))
        a("v_add_f32 %s, %s, %s" % (vr(OW + 8), vr(OW + 8), vr(SB + 10 * src + 8)))
    a("v_pk_mul_f32 v[12:13], %s, 0 op_sel_hi:[1,0]" % vr(OW, 2))
    for i in range(2, 8, 2):
        a("v_pk_fma_f32 v[12:13], %s, 0, v[12:13] op_sel_hi:[1,0,1]" % vr(OW + i, 2))
    a("""
    v_add_f32 v12, v12, %s
    v_add_f32 v12, v12, v13
    v_cmp_nle_f32 vcc, 0x30800000, v12
    s_mov_b64 s[72:73], vcc
    v_cmp_nge_f32 vcc, 0x5d800000, v12
    s_or_b64 s[72:73], s[72:73], vcc
    """ % vr(OW + 8))
    a("s_branch L_slow" if cfg.force_slow else "s_cbranch_scc1 L_slow")
    a.label("L_norm")
    a("v_rcp_f32 v12, %s" % vr(OW + 8))
    for i in range(0, 8, 2):
        a("v_pk_mul_f32 %s, %s, v[12:13] op_sel_hi:[1,0]" % (vr(OW + i, 2), vr(OW + i, 2)))
    for q in range(4):
        a("v_cvt_pk_bf16_f32 %s, %s, %s" % (vr(16 + q), vr(OW + 2 * q), vr(OW + 2 * q + 1)))
    a("v_and_b32 v16, -2, v16")
    bstore(16, 4, 11, SWS, "s76", 0, "sc1", "ost")
    stamp(11)
    a("v_mov_b32 v2, v14")
    a("v_lshrrev_b32 v3, 3, v0")
    a("""
    v_mul_u32_u24 v4, %d, v3
    s_mul_i32 s72, s60, %d
    s_add_u32 s72, s72, %d
    v_add3_u32 v4, v4, v7, s72
    """ % (PART_STRIDE, 8 * PART_STRIDE, L_W2))
    for j in range(4):
        dsr("ds_read_b128", G + 4 * j, 4, 4, j * W2_REGION, "g")
    a("""
    v_bfe_u32 v4, v0, 2, 2
    v_bfe_u32 v5, v0, 4, 1
    v_lshl_add_u32 v4, v5, 2, v4
    v_lshrrev_b32 v5, 1, v4
    v_lshlrev_b32 v92, 7, v4
    v_lshl_add_u32 v92, v5, 5, v92
    v_lshrrev_b32 v6, 5, v0
    v_lshl_add_u32 v92, v6, 11, v92
    v_and_b32 v4, 3, v0
    v_lshl_add_u32 v92, v4, 3, v92
    s_lshl_b32 s72, s75, 15
    v_add_u32 v92, s72, v92
    v_xor_b32 v93, 32, v92
    v_xor_b32 v94, 64, v92
    v_xor_b32 v95, 0x60, v92
    s_barrier
    """)

    def oloads(first=0):
        for ks in range(first, 8):
            bload(OFR + 4 * ks, 4, 1, SWS, ("s76", "s77", "s80", "s81")[ks >> 1], (ks & 1) * 2048, "sc1", ("o", ks))

    fill = ("""
    s_lshl2_add_u32 s72, s66, s74
    s_lshr_b32 s76, s72, 1
    s_lshl1_add_u32 s76, s76, s75
    s_lshl_b32 s76, s76, 14
    s_and_b32 s72, s72, 1
    s_lshl_b32 s72, s72, 10
    s_add_u32 s76, s76, s72
    s_add_u32 s76, s76, %d
    s_add_u32 s77, s76, 0x1000
    s_add_u32 s80, s76, 0x2000
    s_add_u32 s81, s76, 0x3000
    v_mul_u32_u24 v3, %d, v3
    v_lshl_add_u32 v3, v7, 1, v3
    s_mul_i32 s72, s60, %d
    s_add_u32 s72, s72, %d
    v_add_u32 v3, s72, v3
    v_and_b32 v5, 15, v0
    v_mul_u32_u24 v5, %d, v5
    v_and_b32 v4, 48, v0
    s_mul_i32 s72, s60, %d
    s_add_u32 s72, s72, %d
    v_add3_u32 v5, v5, v4, s72
    s_mov_b32 s82, 0x3f80
    s_mov_b32 s83, 0x3f800000
    """ % (WS_QO, SUM_STRIDE, 8 * SUM_STRIDE, L_SUM, SUM_STRIDE, 16 * SUM_STRIDE, L_SUM)).strip().split("\n")
    gate = ["v_mov_b32 %s, 0" % vr(Z + i) for i in range(8)]
    gate.append(lambda: lg.wait("g"))
    for j in range(5):
        if j == 4:
            gate.append(lambda: vm.wait("xb"))
        for q in range(4):
            src = G + 4 * j + q if j < 4 else 60 + q
            gate.append("v_dot2c_f32_bf16 %s, s82, %s" % (vr(Z + 2 * q), vr(src)))
            gate.append("v_dot2c_f32_bf16 %s, s83, %s" % (vr(Z + 2 * q + 1), vr(src)))
    for q in range(4):
        gate.append("v_lshlrev_b32 %s, 16, %s" % (vr(X + 2 * q), vr(56 + q)))
        gate.append("v_and_b32 %s, s89, %s" % (vr(X + 1 + 2 * q), vr(56 + q)))
    gate += ["v_mul_f32 %s, 0x%x, %s" % (vr(G + i), NLOG2E, vr(Z + i)) for i in range(8)]
    gate += ["v_exp_f32 %s, %s" % (vr(G + i), vr(G + i)) for i in range(8)]
    gate += ["v_add_f32 %s, 1.0, %s" % (vr(G + i), vr(G + i)) for i in range(8)]
    gate += ["v_rcp_f32 %s, %s" % (vr(G + i), vr(G + i)) for i in range(8)]
    gate += ["v_mul_f32 %s, %s, %s" % (vr(Z + i), vr(Z + i), vr(G + i)) for i in range(8)]

    def wo_reads(oat, per):
        for ks in range(8):
            for ct in range(4):
                trread(WOF + (ks * 4 + ct) * 4, 92 + ct, ks * 4096, 1024, ("wo", ks))
                run_shadow(per)
            if ks == oat:
                run_shadow(1000)
                vm.wait("ost")
                oloads()

    vm_t, lg_t = list(vm.items), list(lg.items)
    a("s_cmp_eq_u32 s63, 1")
    a("s_cbranch_scc1 L_tail_b")
    shadow.extend(fill)
    wo_reads(7, 1)
    shadow.extend(gate)
    run_shadow(1000)
    a("s_branch L_tail_j")
    a.label("L_tail_b")
    vm.items, lg.items = vm_t, lg_t
    shadow.extend(fill + gate)
    run_shadow(1000)
    wo_reads(cfg.oat, 0)
    a.label("L_tail_j")
    stamp(12)
    a("s_mov_b32 s73, 0")
    lg.drain()
    for ks in range(8):
        a.label("L_wo_%d" % ks)
        vm.wait(("o", ks))
        a("v_and_b32 v6, 1, %s" % vr(OFR + 4 * ks))
        a("v_cmp_ne_u32 vcc, 0, v6")
        a("s_cbranch_vccnz L_oretry_%d" % ks)
        a.label("L_ogo_%d" % ks)
        for ct in range(4):
            d = AC + 4 * ct
            mfma16(d, WOF + (ks * 4 + ct) * 4, OFR + 4 * ks, None if ks == 0 else d)
    stamp(13)
    for ct in range(4):
        dsw("ds_write_b128", 5, AC + 4 * ct, 4, ct * 64)
    lg.drain()
    a("s_barrier")
    stamp(14)
    dsr("ds_read_b128", SR, 4, 3, 0, 0)
    dsr("ds_read_b128", SR + 8, 4, 3, SUM_SIZE, 0)
    dsr("ds_read_b128", SR + 4, 4, 3, 16, 1)
    dsr("ds_read_b128", SR + 12, 4, 3, SUM_SIZE + 16, 1)
    for h in range(2):
        lg.wait(h)
        for i in range(4 * h, 4 * h + 4, 2):
            a("v_pk_add_f32 %s, %s, %s" % (vr(SR + i, 2), vr(SR + i, 2), vr(SR + 8 + i, 2)))
        for i in range(4 * h, 4 * h + 4, 2):
            a("v_pk_fma_f32 %s, %s, %s, %s" % (vr(SR + i, 2), vr(SR + i, 2), vr(Z + i, 2), vr(X + i, 2)))
        for q in range(2 * h, 2 * h + 2):
            a("v_cvt_pk_bf16_f32 %s, %s, %s" % (vr(G + q), vr(SR + 2 * q), vr(SR + 2 * q + 1)))
    bstore(G, 4, 2, SOUT, "s78", 0, ("", "sc1", "nt", "sc0 sc1", "sc0 sc1 nt")[cfg.omod])
    a("s_or_b32 s72, s2, s60")
    a("s_cmp_lg_u32 s72, 0")
    a("s_cbranch_scc1 L_noepoch")
    set_flag(7, "0")
    a.label("L_noepoch")
    if cfg.stamps:
        a("s_waitcnt vmcnt(0)")
        stamp(15)
        if cfg.probe is not None:
            a("s_sub_u32 s72, %s, s4" % sr(sSTAMP + cfg.probe))
            if cfg.stamps == 2:
                a("s_lshr_b32 s72, s72, 3")
            else:
                a("s_lshl_b32 s72, s72, %d" % cfg.probesh)
            a("s_cmp_lg_u32 s2, %d" % cfg.probewg)
            a("s_cselect_b32 s72, 0, s72")
            a("s_cmp_lg_u32 s60, %d" % cfg.probew)
            a("s_cselect_b32 s72, 0, s72")
            a("s_memrealtime s[22:23]")
            a("s_waitcnt lgkmcnt(0)")
            a("s_mov_b32 s73, s22")
            a.label("L_probe")
            a("s_memrealtime s[22:23]")
            a("s_waitcnt lgkmcnt(0)")
            a("s_sub_u32 s22, s22, s73")
            a("s_cmp_lt_u32 s22, s72")
            a("s_cbranch_scc1 L_probe")
        a("s_lshl3_add_u32 s72, s2, s60")
        a("s_lshl_b32 s72, s72, 6")
        a("s_add_u32 s72, s72, %d" % WS_STAMP)
        for i in range(16):
            a("v_mov_b32 %s, %s" % (vr(80 + i), sr(sSTAMP + i)))
        a("s_mov_b64 exec, 1")
        for i in range(4):
            bstore(80 + 4 * i, 4, 1, SWS, "s72", 16 * i)
    a.label("L_end")
    a("s_endpgm")

    for ks in range(8):
        a.label("L_oretry_%d" % ks)
        a("s_add_u32 s73, s73, 1")
        a("s_cmp_ge_u32 s73, %d" % SPIN_MAX)
        a("s_cbranch_scc1 L_ogo_%d" % ks)
        a("s_waitcnt vmcnt(0)")
        oloads(ks)
        a("s_branch L_wo_%d" % ks)

    for tag, vt, lanes, soff in stubs:
        a.label("L_poll_" + tag)
        a("s_mov_b32 s73, 0")
        a.label("L_poll2_" + tag)
        a("s_sleep %d" % cfg.sleep)
        flag_load(vt, lanes, soff, None)
        a("s_add_u32 s73, s73, 1")
        a("s_waitcnt vmcnt(0)")
        a("s_cmp_ge_u32 s73, %d" % SPIN_MAX)
        a("s_cbranch_scc1 L_polled_" + tag)
        a("v_cmp_ne_u32 vcc, %s, %s" % (sr(sTAG), vr(vt)))
        a("s_cbranch_vccnz L_poll2_" + tag)
        a("s_branch L_polled_" + tag)

    a.label("L_slow")
    CN = SB + 16
    a("s_waitcnt vmcnt(0)")
    a("v_mov_b32 v13, 0xff800000")
    a("s_mov_b32 s82, s83")
    a("s_mov_b32 s81, 64")
    a.label("L_slow1")
    bload(KV, 4, 252, SWS, "s82", 0, "sc1")
    a("s_add_u32 s82, s82, 2048")
    a("s_waitcnt vmcnt(0)")
    mfma32(SB, KV, QR + 12, None)
    for i in range(0, 16, 2):
        a("v_max3_f32 v13, v13, %s, %s" % (vr(SB + i), vr(SB + i + 1)))
    a("s_sub_u32 s81, s81, 1")
    a("s_cmp_lg_u32 s81, 0")
    a("s_cbranch_scc1 L_slow1")
    a("v_mov_b32 v15, v13")
    a("v_permlane32_swap_b32 v15, v13")
    a("v_max_f32 v13, v15, v13")
    for i in range(16):
        a("v_sub_f32 %s, 0, v13" % vr(CN + i))
        a("v_mov_b32 %s, 0" % vr(OW + i))
    a("s_mov_b32 s82, s83")
    a("s_mov_b32 s81, 64")
    a.label("L_slow2")
    kvload(0)
    a("s_waitcnt vmcnt(0)")
    mfma32(SB, KV, QR + 12, CN)
    for i in range(16):
        a("v_exp_f32 %s, %s" % (vr(SB + i), vr(SB + i)))
    smf(OW, KV + 4, SB)
    smf(OW, KV + 8, SB + 8)
    a("s_sub_u32 s81, s81, 1")
    a("s_cmp_lg_u32 s81, 0")
    a("s_cbranch_scc1 L_slow2")
    a("s_branch L_norm")
    a.label("L_code_end")
    a("s_endpgm")

    added = a.fix()
    return a.text().replace('FSH', str(cfg.fsh)).replace('FROW', str(cfg.fsh + 5)), added


HEADER = """; Kernarg layout for this problem (88 bytes, ptrs only, base s[0:1]):
; @launch grid=(256,1,1) block=(512,1,1) lds=163840
.amdgcn_target "amdgcn-amd-amdhsa--gfx950"
.text
.globl {k}
.p2align 8
.type {k},@function
{k}:
"""

FOOTER = """.section .rodata,"a"
.p2align 6
.amdhsa_kernel {k}
  .amdhsa_next_free_vgpr 256
  .amdhsa_next_free_sgpr 102
  .amdhsa_accum_offset 256
  .amdhsa_group_segment_fixed_size 0
  .amdhsa_kernarg_size 88
  .amdhsa_user_sgpr_count 2
  .amdhsa_user_sgpr_kernarg_segment_ptr 1
  .amdhsa_system_sgpr_workgroup_id_x 1
.end_amdhsa_kernel
"""


def build(**kw):
    cfg = Cfg()
    for k, v in kw.items():
        setattr(cfg, k, v)
    body, added = gen(cfg)
    return HEADER.format(k=KERNEL) + body + FOOTER.format(k=KERNEL), added


if __name__ == "__main__":
    out = sys.argv[1] if len(sys.argv) > 1 else "cdna_kernels/%s.s" % NAME
    kw = {}
    for arg in sys.argv[2:]:
        k, v = arg.split("=")
        kw[k] = int(v)
    text, added = build(**kw)
    open(out, "w").write(text)
    print("wrote", out, "lines", text.count("\n"), "nops added", added)
```

```python
import sys
import os
sys.path.insert(0, os.path.dirname(os.path.abspath(__file__)))
from asmlib import Asm, vr, sr

NAME = "recurrent_scan__softmax_full_mha__dense_activation_squared_relu__prompt"
KERNEL = NAME + "_kernel"

WS_FLAGQ = 0x1200
WS_FLAGH = 0x60000
WS_STAMP = 0x10000
WS_QO = 0x100000
WS_KV = 0x300000
WS_HF = 0x700000
WS_END = WS_HF + 86 * 65536
EPOCH_INC = 0x9E3779B9
SPIN_MAX = 1 << 18

L_RING = 65536
L_OPART = 65536
L_W2 = L_OPART + 55296
W2_REGION = 10240
PART_STRIDE = 144
SUM_STRIDE = 272
SUM_SIZE = 64 * SUM_STRIDE
L_SUM = L_OPART

SX, SWQ, SWO, SW1, SB1, SW2, SB2, SOUT, SWS = 24, 28, 32, 36, 40, 44, 48, 52, 56
sW, sCG, sTB, sRW, sP, sQB, sTBF, sCB, sTAG, sCT0 = 60, 61, 62, 63, 64, 65, 66, 67, 68, 69
sVM = 70
sSTAMP = 4

QSCALE = 0x3EB8AA3B
NLOG2E = 0xBFB8AA3B
NS = 22


class Cfg:
    abl = 0
    bst = 0
    xslot = 0
    xrun = 2
    n1 = 8
    nA = 22
    gap = 1
    kvt = 0
    kvi = 4
    dmam = 2
    fpat = 2221
    pf1_at = 13
    pfc_at = 99
    pfc1 = 0
    w2_at = 10
    pfl = 9
    wol = 15
    won = 1
    stamps = 0
    force_slow = 0
    flag_chunk = 10
    lead = 2
    defer = 0
    look = 5
    pfq_at = 99
    bload = 15
    bjoin = 16
    btile = 2
    sleep = 6
    w0_at = 7
    w1_at = 10
    hpre = 2
    hbar = 0
    hnow = 2
    hgap = 2
    hoff = 0
    kv3 = 1
    fsh = 4
    pfe = 99
    l2q = 99
    rot = 1
    split = 1
    s2at = 1
    hold = 99
    l2w = 99
    pfn = 11
    alow = 0
    pfg = 1
    hflag = 11
    probe = None
    omod = 1
    oat = 4
    probewg = 100
    probew = 0
    probesh = 4
    hst = 0


def srd(s):
    return sr(s, 4)


class Queue:
    def __init__(self, a, name, maxn):
        self.a, self.name, self.maxn, self.items = a, name, maxn, []

    def push(self, tag):
        self.items.append(tag)

    def wait(self, *tags):
        last = max((i for i, t in enumerate(self.items) if t in tags), default=-1)
        if last < 0:
            return
        n = len(self.items) - 1 - last
        self.a("s_waitcnt %s(%d)" % (self.name, min(n, self.maxn)))
        self.items = self.items[last + 1:]

    def drain(self):
        self.a("s_waitcnt %s(0)" % self.name)
        self.items = []


def gen(cfg):
    a = Asm()
    nA = cfg.nA
    nB = 32 - nA
    vm = Queue(a, "vmcnt", 63)
    lg = Queue(a, "lgkmcnt", 15)

    def stamp(i, force=False):
        if cfg.bst and not force and i != 0:
            return
        if cfg.stamps and (cfg.probe is None or i in (0, cfg.probe)):
            a("%s s[22:23]" % ("s_memtime" if cfg.stamps == 2 else "s_memrealtime"))
            a("s_waitcnt lgkmcnt(0)")
            a("s_mov_b32 %s, s22" % sr(sSTAMP + i))

    def mfma32(d, x, y, c):
        a("v_mfma_f32_32x32x16_bf16 %s, %s, %s, %s" % (vr(d, 16), vr(x, 4), vr(y, 4), "0" if c is None else vr(c, 16)))

    def mfma16(d, x, y, c):
        a("v_mfma_f32_16x16x32_bf16 %s, %s, %s, %s" % (vr(d, 4), vr(x, 4), vr(y, 4), "0" if c is None else vr(c, 4)))

    def smf(d, x, y):
        a("v_smfmac_f32_32x32x32_bf16 %s, %s, %s, v3" % (vr(d, 16), vr(x, 4), vr(y, 8)))

    def bload(d, n, va, s, so, off=0, mod="", tag=None):
        op = {1: "dword", 2: "dwordx2", 4: "dwordx4"}[n]
        a("buffer_load_%s %s, %s, %s, %s offen offset:%d %s" % (op, vr(d, n), vr(va), srd(s), so, off, mod))
        vm.push(tag)

    def bstore(d, n, va, s, so, off=0, mod="", tag=None):
        op = {1: "dword", 2: "dwordx2", 4: "dwordx4"}[n]
        a("buffer_store_%s %s, %s, %s, %s offen offset:%d %s" % (op, vr(d, n), vr(va), srd(s), so, off, mod))
        vm.push(tag)

    def dma(va, s, so, off=0, tag=None):
        a("buffer_load_dwordx4 %s, %s, %s offen offset:%d lds" % (vr(va), srd(s), so, off))
        vm.push(tag)

    def dsr(op, d, n, va, off, tag=None):
        a("%s %s, %s offset:%d" % (op, vr(d, n), vr(va), off))
        lg.push(tag)

    def dsw(op, va, d, n, off, tag=None):
        a("%s %s, %s offset:%d" % (op, vr(va), vr(d, n), off))
        lg.push(tag)

    def trread(d, va, off, second, tag=None):
        dsr("ds_read_b64_tr_b16", d, 2, va, off, tag)
        dsr("ds_read_b64_tr_b16", d + 2, 2, va, off + second, tag)

    def set_flag(vt, soff):
        a("v_mov_b32 %s, %s" % (vr(vt), sr(sTAG)))
        a("s_mov_b64 exec, 1")
        bstore(vt, 1, 1, SWS, soff, 0, "sc0 sc1")
        a("s_mov_b64 exec, -1")

    stubs = []

    def check_flags(tag, vt, lanes, soff):
        a("v_cmp_ne_u32 vcc, %s, %s" % (sr(sTAG), vr(vt)))
        a("s_cbranch_vccnz L_poll_" + tag)
        a.label("L_polled_" + tag)
        stubs.append((tag, vt, lanes, soff))

    def flag_load(vt, shift, soff, tag):
        a("v_and_b32 %s, 31, v0" % vr(vt))
        a("v_lshlrev_b32 %s, %d, %s" % (vr(vt), shift, vr(vt)))
        bload(vt, 1, vt, SWS, soff, 0, "sc0 sc1", tag)

    sizes = {SX: 2048 * 1024, SWQ: 512 * 3072, SWS: WS_END, SW1: 512 * 2752, SB1: 2752,
             SWO: 512 * 1024, SW2: 1376 * 1024, SB2: 1024, SOUT: 2048 * 1024}
    RAW = 128

    def xloads():
        for j in range(8):
            bload(RAW + j * 4, 4, 14, SX, "s101", j * 128, "", ("x", j))

    stamp(0)
    a("""
    s_load_dwordx2 s[24:25], s[0:1], 0
    s_getpc_b64 s[72:73]
    L_pc:
    s_cmpk_ge_u32 s2, 256
    s_cbranch_scc1 L_end
    s_lshr_b32 s74, s2, 3
    s_lshl_b32 s74, s74, 11
    v_lshrrev_b32 v8, 5, v0
    v_lshl_add_u32 v8, v8, 7, s74
    v_min_u32 v8, L_code_end-L_pc, v8
    v_mov_b32 v9, 0
    v_lshl_add_u64 v[8:9], v[8:9], 0, s[72:73]
    global_load_dword v7, v[8:9], off
    s_lshl_b32 s72, s2, 4
    s_and_b32 s72, s72, 0x180
    v_add_u32 v4, s72, v0
    v_bfe_u32 v4, v4, 3, 6
    v_and_b32 v5, 7, v0
    v_lshlrev_b32 v14, 10, v4
    v_lshl_add_u32 v14, v5, 4, v14
    s_lshr_b32 s67, s2, 5
    s_and_b32 s73, s2, 6
    s_lshl2_add_u32 s62, s73, s67
    s_lshl_b32 s101, s62, 16
    s_mov_b32 s26, %d
    s_mov_b32 s27, 0x20000
    v_bfe_u32 v24, v4, 1, 3
    v_xor_b32 v24, v24, v5
    v_lshlrev_b32 v15, 7, v4
    v_lshl_add_u32 v15, v24, 4, v15
    v_readfirstlane_b32 s60, v0
    v_and_b32 v0, 63, v0
    v_mov_b32 v24, 0
    v_mov_b32 v25, 0
    s_lshr_b32 s60, s60, 6
    s_cmp_ge_u32 s60, 4
    s_waitcnt lgkmcnt(0)
    """ % sizes[SX])
    vm.push("pf")
    if cfg.bst == 3:
        stamp(1, True)
    xloads()
    if cfg.bst == 3:
        stamp(2, True)
    if cfg.stamps:
        for i in range(3 if cfg.bst == 3 else 1, 16):
            a("s_mov_b32 %s, s4" % sr(sSTAMP + i))
    a("s_mov_b32 s63, 1")
    a("s_cbranch_scc1 L_ln")
    a("s_mov_b32 s63, 0")

    def setup1():
        for s, off in ((SWQ, 8), (SWS, 80), (SW1, 32), (SB1, 40), (SWO, 16), (SW2, 48), (SB2, 56), (SOUT, 64)):
            a("s_load_dwordx2 %s, s[0:1], %d" % (sr(s, 2), off))
        a("""
        s_mov_b32 s30, %d
        s_mov_b32 s31, 0x20000
        s_bfe_u32 s72, s2, 0x20003
        s_and_b32 s73, s2, 1
        s_lshl2_add_u32 s61, s73, s72
        s_and_b32 s74, s60, 3
        s_lshl_b32 s72, s61, 7
        s_mul_i32 s85, s74, %d
        s_add_u32 s85, s85, s72
        s_mul_i32 s87, s74, 6144
        s_add_u32 s87, s87, %d
        v_lshrrev_b32 v4, 3, v0
        v_bfe_u32 v6, v4, 1, 1
        v_lshlrev_b32 v6, 2, v6
        v_xor_b32 v6, v6, v5
        v_lshlrev_b32 v6, 4, v6
        v_mul_u32_u24 v13, 3072, v4
        v_add_u32 v13, v13, v6
        s_waitcnt lgkmcnt(0)
        """ % (sizes[SWQ], 16 * 3072, L_RING))

    def setup2():
        a("s_load_dword %s, %s, 0" % (sr(sTAG), sr(SWS, 2)))
        for s in (SW1, SWS, SB1, SWO, SW2, SB2, SOUT):
            a("s_mov_b32 %s, %d" % (sr(s + 2), sizes[s]))
            a("s_mov_b32 %s, 0x20000" % sr(s + 3))
        a("""
        s_and_b32 s73, s60, 3
        s_lshl2_add_u32 s100, s2, s73
        s_mul_i32 s100, s100, 1536
        v_min_u32 v31, 11, v0
        v_lshlrev_b32 v31, 7, v31
        s_bfe_u32 s72, s2, 0x20003
        s_and_b32 s73, s2, 7
        s_lshl2_add_u32 s66, s73, s72
        s_and_b32 s72, s72, 1
        s_lshl1_add_u32 s64, s73, s72
        s_lshr_b32 s65, s2, 4
        s_mul_i32 s69, s61, 6
        s_mul_i32 s73, s61, 5
        s_add_u32 s73, s73, 3
        s_min_u32 s69, s69, s73
        s_mov_b32 s70, 0xffff
        s_mov_b32 s71, 0xffff
        v_lshlrev_b32 v1, 4, v0
        v_and_b32 v2, 15, v0
        v_lshrrev_b32 v3, 5, v0
        v_lshl_add_u32 v2, v3, 4, v2
        v_lshlrev_b32 v2, 4, v2
        """)

    def setup3():
        a("; attention offsets: s82 = next K/V tile, s83 = head base, s92-s95 = Q tiles, s96-s99 = O partial slots")
        a("""
        s_and_b32 s74, s60, 1
        s_lshr_b32 s75, s60, 1
        s_lshl1_add_u32 s72, s64, s74
        s_lshl_b32 s83, s72, 17
        s_add_u32 s83, s83, %d
        s_and_b32 s73, s75, 1
        s_lshl_b32 s73, s73, 16
        s_add_u32 s82, s83, s73
        s_lshl_b32 s72, s65, 6
        s_add_u32 s72, s72, s64
        s_lshl1_add_u32 s72, s72, s74
        s_lshl_b32 s72, s72, 10
        s_add_u32 s72, s72, %d
        s_mul_i32 s84, s74, %d
        s_add_u32 s84, s84, %d
        """ % (WS_KV, WS_QO, 12 * 2304, L_OPART))
        for t in range(4):
            a("s_xor_b32 s73, s75, %d" % (t ^ 3))
            a("s_mul_i32 %s, s73, %d" % (sr(96 + t), 3 * 2304))
            a("s_lshl_b32 s73, s73, 15")
            a("s_add_u32 %s, s72, s73" % sr(92 + t))
            a("s_add_u32 %s, %s, s84" % (sr(96 + t), sr(96 + t)))

    setup1()
    setup2()
    setup3()
    a("""
    s_add_u32 s82, s82, %d
    v_and_b32 v8, 0x33, v0
    v_and_b32 v9, 4, v0
    v_lshl_or_b32 v8, v9, 1, v8
    v_and_b32 v9, 8, v0
    v_lshrrev_b32 v9, 1, v9
    v_or_b32 v8, v8, v9
    v_lshlrev_b32 v11, 4, v8
    v_bfe_u32 v9, v0, 4, 1
    v_mul_u32_u24 v12, 0x1fe00, v9
    v_add_u32 v12, v12, v2
    v_mul_u32_u24 v14, 0x1fa00, v9
    v_add_u32 v14, v14, v2
    v_lshl_add_u32 v4, v4, 10, v6
    v_bfe_u32 v10, v0, 2, 2
    v_lshlrev_b32 v5, 5, v9
    v_lshl_add_u32 v5, v10, 7, v5
    v_and_b32 v9, 3, v0
    v_lshl_add_u32 v5, v9, 3, v5
    v_lshrrev_b32 v10, 1, v10
    v_lshl_add_u32 v8, v3, 10, v5
    v_xor_b32 v9, s75, v10
    v_lshl_add_u32 v8, v9, 6, v8
    v_add_u32 v8, %d, v8
    v_add_u32 v9, %d, v8
    v_lshl_add_u32 v5, v3, 9, v5
    v_lshl_add_u32 v5, v10, 6, v5
    v_lshrrev_b32 v10, 1, v0
    v_xor_b32 v10, v10, v0
    v_and_b32 v10, 1, v10
    v_mul_u32_u24 v10, 24, v10
    v_xor_b32 v5, v5, v10
    s_mul_i32 s84, s60, %d
    s_add_u32 s84, s84, %d
    v_add_u32 v5, s84, v5
    v_xor_b32 v6, 64, v5
    v_and_b32 v10, 31, v0
    s_lshl_b32 s72, s74, 12
    v_bfe_u32 v16, v10, 1, 3
    v_xor_b32 v16, v16, v3
    v_lshlrev_b32 v16, 4, v16
    v_lshl_add_u32 v16, v10, 7, v16
    v_add_u32 v16, s72, v16
    v_xor_b32 v17, 32, v16
    v_xor_b32 v18, 64, v16
    v_xor_b32 v19, 0x60, v16
    v_lshlrev_b32 v10, 1, v10
    v_lshl_add_u32 v10, v3, 20, v10
    """ % (nB * 2048, L_RING, 2 * 24576, W2_REGION, L_W2))
    for seg in range(3):
        for q in range(1, 4):
            a("v_mov_b32 %s, 0" % vr(112 + 4 * seg + q))
    for q in range(4):
        a("v_mov_b32 %s, 0x3f803f80" % vr(124 + q))
    a("v_mov_b32 v3, 0xdddddddd")
    a("""
    s_lshl1_add_u32 s72, s62, s74
    s_lshl1_add_u32 s73, s61, s75
    s_lshl_b32 s76, s73, 7
    s_add_u32 s76, s76, s72
    s_lshl_b32 s77, s76, 11
    s_lshl4_add_u32 s76, s72, s73
    s_lshl_b32 s76, s76, 11
    s_add_u32 s76, s76, %d
    s_add_u32 s77, s77, %d
    s_add_u32 s81, s69, s75
    s_lshl_b32 s78, s81, 7
    s_add_u32 s78, s78, s72
    s_lshl_b32 s78, s78, 10
    s_add_u32 s78, s78, %d
    s_lshl_b32 s79, s61, 6
    s_add_u32 s79, s79, s62
    s_lshl_b32 s79, s79, 4
    s_add_u32 s79, s79, %d
    s_lshl_b32 s80, s62, 3
    s_add_u32 s80, s80, s61
    s_lshl2_add_u32 s80, s80, s60
    s_lshl_b32 s80, s80, FSH
    s_add_u32 s80, s80, %d
    s_mul_i32 s73, s61, s75
    s_add_u32 s88, s78, %d
    s_cmp_lt_u32 s73, 3
    s_cselect_b32 s88, s88, 0x40000000
    s_lshl_b32 s81, s81, 6
    """ % (WS_QO, WS_KV, WS_HF, WS_FLAGQ, WS_FLAGH, 8 * 65536))

    def slot_of(c):
        if not cfg.xslot or c < cfg.xslot:
            return (c & 3) * 24576
        return -L_RING if c == cfg.xslot else ((c - 1) & 3) * 24576

    skip_bar = (10,) if cfg.xslot else ()

    def issue_chunk(c):
        if cfg.rot:
            a("s_xor_b32 s73, s67, %d" % (c & 7))
            a("s_mul_i32 s73, s73, %d" % (64 * (3072 if c < 8 else 2752)))
            a("s_add_u32 s73, s73, %s" % ("s85" if c < 8 else "s80"))
        for m in range(6):
            blk, seg = divmod(m, 3)
            a("s_add_u32 m0, s87, %d" % (slot_of(c) + seg * 2048 + blk * 1024))
            if c < 8:
                a("s_add_u32 s72, %s, %d" % (("s73", blk * 8 * 3072 + seg * 1024) if cfg.rot else ("s85", (c * 64 + blk * 8) * 3072 + seg * 1024)))
                dma(13, SWQ, "s72", 0, ("w", c))
            else:
                a("s_add_u32 s72, %s, %d" % (("s73", blk * 8 * 2752 + seg * 128) if cfg.rot else ("s80", ((c - 8) * 64 + blk * 8) * 2752 + seg * 128)))
                dma(57 if seg == 2 else 56, SW1, "s72", 0, ("w", c))

    def layernorm(acts):
        def act(p):
            if acts.get(p):
                assert p >= 7
                a("s_cmp_eq_u32 s63, 1")
                a("s_cbranch_scc1 L_ln_%d" % p)
                for f in acts[p]:
                    f()
                a.label("L_ln_%d" % p)
        a.label("L_ln")
        a("v_mov_b32 v30, 0x3f803f80")
        a("s_mov_b32 s89, 0xffff0000")
        if cfg.rot:
            a("; K chunks are visited in the order c ^ (row block & 7): workgroups sharing weights fetch different chunks first")
            a("s_lshl_b32 s72, s67, 13")
            a("v_or_b32 v15, s72, v15")

        def xwrite(j):
            if cfg.rot:
                a("v_xor_b32 v23, 0x%x, v15" % (j << 13))
                a("ds_write_b128 v23, %s" % vr(RAW + j * 4, 4))
            else:
                a("ds_write_b128 v15, %s offset:%d" % (vr(RAW + j * 4, 4), j * 8192))

        for j in range(8):
            if cfg.bst == 3 and j == 0:
                stamp(3, True)
            vm.wait(("x", j))
            if cfg.bst == 3 and j in (0, 3, 7):
                stamp({0: 4, 3: 5, 7: 6}[j], True)
            act(j)
            for q in range(4):
                x = RAW + j * 4 + q
                a("v_dot2c_f32_bf16 v24, v30, %s" % vr(x))
                a("v_dot2c_f32_bf16 v25, %s, %s" % (vr(x), vr(x)))
        act(8)
        stamp(1)
        for ctl in ("quad_perm:[1,0,3,2]", "quad_perm:[2,3,0,1]", "row_half_mirror"):
            for r in (24, 25):
                a("v_add_f32_dpp %s, %s, %s %s row_mask:0xf bank_mask:0xf" % (vr(r), vr(r), vr(r), ctl))
        a("""
        v_mul_f32 v24, 0x3b000000, v24
        v_mul_f32 v25, 0x3b000000, v25
        v_fma_f32 v25, -v24, v24, v25
        v_max_f32 v25, 0, v25
        v_cvt_pk_bf16_f32 v24, v24, v25
        v_and_b32 v25, s89, v24
        v_add_f32 v25, 0x3727c5ac, v25
        v_cvt_pk_bf16_f32 v25, v25, v25
        v_and_b32 v25, s89, v25
        v_sqrt_f32 v25, v25
        v_lshlrev_b32 v24, 16, v24
        v_cvt_pk_bf16_f32 v25, v25, v25
        v_and_b32 v25, s89, v25
        v_rcp_f32 v26, v25
        v_mul_f32_e64 v28, -v24, v26
        """)
        for j in range(8):
            x = RAW + j * 4
            t = 192 + (j & 1) * 8
            for q in range(4):
                a("v_lshlrev_b32 %s, 16, %s" % (vr(t + 2 * q), vr(x + q)))
                a("v_and_b32 %s, s89, %s" % (vr(t + 2 * q + 1), vr(x + q)))
            for q in range(4):
                a("v_pk_fma_f32 %s, %s, v[26:27], v[28:29] op_sel_hi:[1,0,0]" % (vr(t + 2 * q, 2), vr(t + 2 * q, 2)))
            for q in range(4):
                a("v_cvt_pk_bf16_f32 %s, %s, %s" % (vr(x + q), vr(t + 2 * q), vr(t + 2 * q + 1)))
            if not cfg.defer:
                xwrite(j)
        if cfg.bst == 3:
            stamp(7, True)
        act(9)
        if cfg.defer:
            for j in range(8):
                xwrite(j)
        act(10)
        stamp(2)
        if cfg.bst == 3:
            stamp(8, True)

    def pfq():
        a("; memory-side prefetch of Wqkv")
        bload(7, 1, 31, SWQ, "s100", 0, "", "pf")

    def pfl2(which):
        a("; the die's workgroups pull their half of the weight columns into L2 together, four rows per wave")
        stride = 3072 if which == SWQ else 2752
        a("s_lshr_b32 s72, s2, 3")
        a("s_and_b32 s73, s60, 3")
        a("s_lshl2_add_u32 s72, s72, s73")
        a("s_mul_i32 s72, s72, %d" % (4 * stride))
        a("s_and_b32 s73, s2, 1")
        a("s_mul_i32 s73, s73, %d" % (512 if which == SWQ else 1472))
        a("s_add_u32 s72, s72, s73")
        a("v_lshrrev_b32 v20, 4, v0")
        a("v_mul_u32_u24 v20, %d, v20" % stride)
        if which == SWQ:
            a("v_bfe_u32 v21, v0, 2, 2")
            a("v_min_u32 v21, 2, v21")
            a("v_lshl_add_u32 v20, v21, 10, v20")
            a("v_and_b32 v21, 3, v0")
            a("v_lshl_add_u32 v20, v21, 7, v20")
        else:
            a("v_and_b32 v21, 15, v0")
            a("v_lshlrev_b32 v21, 7, v21")
            a("v_min_u32 v21, 1468, v21")
            a("v_add_u32 v20, v20, v21")
        bload(22, 1, 20, which, "s72", 0, "", "pf")

    def pfc(which):
        a("; lines at offset 384 of every KiB stream slowly on a miss: the die's workgroups pull them into L2 together")
        a("s_lshr_b32 s72, s2, 3")
        a("s_lshl2_add_u32 s72, s72, s60")
        a("s_mul_i32 s72, s72, 12288")
        a("v_lshlrev_b32 v20, 3, v31")
        if which == SWQ:
            a("s_bitcmp1_b32 s2, 0")
            a("s_cselect_b32 s72, 0x40000000, s72")
        bload(7, 1, 20, which, "s72", 384, "", "pf")

    def pf1():
        a("; memory-side prefetch of W1")
        bload(7 if cfg.pf1_at <= 10 else 32, 1, 31, SW1, "s100", 0, "", "pf")

    acts = {}
    if cfg.pfc_at == 0:
        save = list(vm.items)
        pfc(SWQ)
        vm.items = save
    elif cfg.pfc_at <= 10:
        acts.setdefault(cfg.pfc_at, []).append(lambda: pfc(SWQ))
    if cfg.pfq_at == 0:
        save = list(vm.items)
        pfq()
        vm.items = save
    elif cfg.pfq_at <= 10:
        acts.setdefault(cfg.pfq_at, []).append(pfq)
    if cfg.l2q == 0:
        save = list(vm.items)
        pfl2(SWQ)
        vm.items = save
    if cfg.l2q == 7:
        acts.setdefault(7, []).append(lambda: pfl2(SWQ))
    for c, p in enumerate((cfg.w0_at, cfg.w1_at, cfg.w2_at, 10)[:cfg.lead + 1]):
        acts.setdefault(p, []).append(lambda c=c: issue_chunk(c))
    if 8 <= cfg.l2q <= 10:
        acts.setdefault(cfg.l2q, []).insert(0, lambda: pfl2(SWQ))
    if cfg.pf1_at <= 10:
        acts.setdefault(cfg.pf1_at, []).append(pf1)
    if cfg.pfc1:
        acts.setdefault(10, []).append(lambda: pfc(SW1))
    layernorm(acts)
    a("s_cmp_eq_u32 s63, 1")
    a("s_cbranch_scc1 L_loader")

    QR, SB, WF, FA, OA, KV, HB = 8, 24, 56, 64, 128, 192, 228
    NKV = 3

    def att_init_ops():
        ops = ["v_mov_b32 %s, 0" % vr(OA + 16 * t + i) for t in range(4) for i in range(9)]
        ops2 = ["v_and_b32 v7, 27, v0", "v_cmp_eq_u32 vcc, 16, v7", "v_mov_b32 v7, 0x3f803f80", "v_cndmask_b32 v7, 0, v7, vcc"]
        ops2 += ["v_mov_b32 %s, v7" % vr(KV + 12 * b + 4 + q) for b in range(NKV) for q in range(8)]
        return ops, ops2

    def kvload(j):
        b = j % NKV
        bload(KV + 12 * b, 4, 252, SWS, "s82", 0, "sc1", ("kv", j))
        a("s_mov_b64 exec, %s" % sr(sVM, 2))
        bload(KV + 12 * b + 4, 4, 253, SWS, "s82", 0, "sc1", ("kv", j))
        bload(KV + 12 * b + 8, 4, 254, SWS, "s82", 0, "sc1", ("kv", j))
        a("s_mov_b64 exec, -1")
        a("s_add_u32 s82, s82, 2048")

    def att_loads(role):
        a("s_and_b32 s72, s60, 1")
        a("s_lshl_b32 s73, s72, 10")
        a("v_add_u32 v252, s73, v1")
        a("s_lshr_b32 s73, 0x400, s72")
        a("v_add_u32 v253, s73, v2")
        a("s_mul_i32 s73, s72, 0x600")
        a("s_sub_u32 s73, 0x600, s73")
        a("v_add_u32 v254, s73, v2")
        bload(QR, 4, 1, SWS, "s92", 0, "sc1", "q")
        kvload(0)
        for t in range(1, 4):
            bload(QR + 4 * t, 4, 1, SWS, sr(92 + t), 0, "sc1", "q")
        kvload(1)
        if cfg.kv3 and role == "a":
            kvload(2)

    def dump_addr():
        a("v_lshlrev_b32 v8, 2, v0")
        a("v_add_u32 v9, s99, v1")
        a("v_add_u32 v10, s99, v8")
        a("v_bfe_u32 v11, v0, 4, 1")
        a("v_lshl_add_u32 v11, v11, 10, v2")

    def dump(t):
        a("v_add_u32 v12, %s, v1" % sr(96 + t))
        a("v_add_u32 v13, %s, v8" % sr(96 + t))
        dsw("ds_write_b128", 12, OA + 16 * t, 4, t * 2304)
        dsw("ds_write_b128", 12, OA + 16 * t + 4, 4, t * 2304 + 1024)
        dsw("ds_write_b32", 13, OA + 16 * t + 8, 1, t * 2304 + 2048)

    deferred = []
    cfg_gap = {0: range(16), 1: (1, 10), 2: (0, 9), 3: (4, 10), 4: (1,), 5: (4,), 6: (15, 9)}[cfg.gap]

    def att_run(n, hooks):
        hooks.setdefault((n - 1, 0, 11), []).append(dump_addr)
        for t in range(3):
            hooks.setdefault((n - 1, t + 1, 12), []).append(lambda t=t: dump(t))
        vm.wait("q", ("kv", 0))
        mfma32(SB, KV, QR, None)
        for j in range(n):
            b = j % NKV
            for t in range(4):
                cur, oth = SB + 16 * (t & 1), SB + 16 * ((t + 1) & 1)
                for i in range(16):
                    a("v_exp_f32 %s, %s" % (vr(cur + i), vr(cur + i)))
                    if i in cfg_gap:
                        while deferred:
                            deferred.pop(0)()
                    if t == cfg.kvt and i == cfg.kvi and j + NKV - 1 < n and not (cfg.abl & 32 and j > 0) and not (cfg.kv3 and j == 0):
                        kvload(j + NKV - 1)
                    if i == 1 and (j, t) != (0, 0):
                        smf(OA + 16 * ((t + 3) & 3), KV + 12 * (b if t else (j - 1) % NKV) + 8, oth + 8)
                    if i == 4:
                        if t < 3:
                            mfma32(oth, KV + 12 * b, QR + 4 * (t + 1), None)
                        elif j + 1 < n:
                            vm.wait(("kv", j + 1))
                            mfma32(oth, KV + 12 * ((j + 1) % NKV), QR, None)
                    if i == 10:
                        smf(OA + 16 * t, KV + 12 * b + 4, cur)
                    for h in hooks.get((j, t, i), ()):
                        h()
        smf(OA + 48, KV + 12 * ((n - 1) % NKV) + 8, SB + 16 + 8)

    ACC = (24, 40, 56)
    WB, NBUF, LA = 72, 6, cfg.look
    XF, PK, XA = 128, 96, 16
    init1, init2 = att_init_ops()

    def item(g):
        return divmod(g % 96, 3)

    def reads(g):
        ks, sel = item(g)
        c, m = divmod(g, 12)
        so = slot_of(c)
        base, so = (XA, 0) if so < 0 else (8 + so // 49152, so % 49152)
        if g < 96 and sel == 0:
            dsr("ds_read_b128", XF + 4 * ks, 4, XA + (ks & 3), (ks >> 2) * 8192, g)
        trread(WB + 4 * (g % NBUF), base, so + m * 2048, 512, g)

    def pack(acc, pk):
        return ["v_cvt_pk_bf16_f32 %s, %s, %s" % (vr(pk + q), vr(acc + 2 * q), vr(acc + 2 * q + 1)) for q in range(8)]

    def st2(pk, va, base, delta, tag, imm=(0, 0), vb=None):
        def first():
            bstore(pk, 4, va, SWS, base, imm[0], "" if cfg.abl & 64 else "sc1", tag)

        def second():
            if delta:
                a("s_add_u32 s72, %s, %d" % (base, delta))
            bstore(pk + 4, 4, vb or va, SWS, "s72" if delta else base, imm[1], "" if cfg.abl & 64 else "sc1", tag)
        return [first, second]

    def relu2(acc):
        return (["v_max_f32 %s, 0, %s" % (vr(acc + i), vr(acc + i)) for i in range(16)]
                + ["v_mul_f32 %s, %s, %s" % (vr(acc + i), vr(acc + i), vr(acc + i)) for i in range(16)])

    def bias(seg):
        return lambda: (vm.wait("b1"), mfma32(ACC[seg], 112 + 4 * seg, 124, None))

    tagq = ["v_or_b32 %s, 1, %s" % (vr(PK + 4 * q), vr(PK + 4 * q)) for q in range(2)]
    qkv_epi = (["v_mul_f32 %s, 0x%x, %s" % (vr(ACC[0] + i), QSCALE, vr(ACC[0] + i)) for i in range(16)]
               + pack(ACC[0], PK) + tagq + [bias(0)] + st2(PK, 1, "s76", 0, "st", (0, 1024))
               + pack(ACC[1], PK + 8) + [bias(1)] + st2(PK + 8, 11, "s77", 0x20400, "st")
               + pack(ACC[2], PK) + [bias(2)] + st2(PK, 12, "s77", 0, "st", (1024, 1536), 14))
    sched = {100: ["v_subrev_u32 %s, %d, v8" % (vr(XA), L_RING)], 144: init1, 180: init2}
    shadow = []

    def run_shadow(budget):
        while shadow and budget > 0:
            op = shadow.pop(0)
            if isinstance(op, str):
                a(op)
                budget -= 1
            else:
                op()
                budget -= 3

    a("""
    s_lshl_b32 s85, s60, 14
    s_lshl_b32 s72, s67, 7
    s_add_u32 s85, s85, s72
    s_lshl_b32 s86, s60, 6
    s_lshl1_add_u32 s86, s66, s86
    s_lshl_b32 s86, s86, 10
    s_add_u32 s86, s86, %d
    s_lshl_b32 s87, s66, FROW
    s_add_u32 s87, s87, %d
    """ % (WS_HF, WS_FLAGH))
    vm.wait(("w", 0))
    a("s_waitcnt lgkmcnt(0)")
    a("s_add_u32 %s, %s, 0x%x" % (sr(sTAG), sr(sTAG), EPOCH_INC))
    if cfg.bst == 3:
        stamp(9, True)
    a("s_barrier")
    stamp(3)
    if cfg.bst == 3:
        stamp(10, True)
    for g in range(LA):
        reads(g)
    for g in range(192):
        ks, sel = item(g)
        if g == 96:
            stamp(4)
            shadow.extend(qkv_epi)
            run_shadow(1000)
            stamp(5)
            if cfg.split:
                a("s_barrier")
                for n in range(96, 96 + LA):
                    reads(n)
        lg.wait(g)
        x, w = XF + 4 * ks, WB + 4 * (g % NBUF)
        c = None if (g < 96 and ks == 0) else ACC[sel]
        if g < 96 and sel == 2:
            mfma32(ACC[sel], x, w, c)
        else:
            mfma32(ACC[sel], w, x, c)
        n = g + LA
        if n < 192 and not (cfg.split and g < 96 <= n):
            if n % 12 == 0 and n // 12 not in skip_bar:
                vm.wait(("w", n // 12))
                if n // 12 == cfg.flag_chunk:
                    vm.wait("st")
                a("s_barrier")
                if n // 12 == cfg.flag_chunk:
                    a("s_cmp_lg_u32 s60, 0")
                    a("s_cselect_b32 s79, 0x40000000, s79")
                    set_flag(7, "s79")
                    stamp(6)
            reads(n)
        if g == 40:
            for seg in range(3):
                a("buffer_load_ushort %s, v10, %s, s81 offen offset:%d" % (vr(112 + 4 * seg), srd(SB1), seg * 128))
                vm.push("b1")
        shadow.extend(sched.get(g, ()))
        run_shadow(3)
    run_shadow(1000)
    stamp(7)
    hmath, hst = [], []
    for seg in range(3):
        pk = PK + 8 * seg
        hmath.append(relu2(ACC[seg]) + pack(ACC[seg], pk))
        hst.append((["s_add_u32 s78, s78, 0x40000"] if seg == 1 else []) + st2(pk, 1, "s78" if seg < 2 else "s88", 0x10000, "hst"))
    for seg in range(cfg.hbar):
        shadow.extend(hmath[seg])
    run_shadow(1000)
    a("s_barrier")
    stamp(8)
    if cfg.bst == 4:
        stamp(1, True)
    a("s_setprio 2")
    for seg in range(cfg.hbar, cfg.hpre):
        shadow.extend(hmath[seg])
    run_shadow(1000)
    att_loads("a")
    hlist = [[hst[0][0]], [hst[0][1]], hst[1][:2], [hst[1][2]], [hst[2][0]], [hst[2][1]]]
    for seg in range(3):
        shadow.extend(hmath[seg] if seg >= max(cfg.hpre, cfg.hbar) else [])
        for n in (2 * seg, 2 * seg + 1):
            if n < cfg.hnow:
                shadow.extend(hlist[n])
    run_shadow(1000)
    stamp(9)


    def w2dma(i):
        if cfg.abl & 1:
            return
        a("s_add_u32 m0, s84, %d" % ((i & 3) * 2048))
        a("s_add_u32 s72, s85, %d" % (i * 65536))
        dma(4, SW2, "s72", 0, ("w2", i))
        a("s_add_u32 s72, s72, 7168")
        dma(4, SW2, "s72", 1024, ("w2", i))

    hreg = lambda i, tt: HB + 8 * (i % 3) + 4 * tt

    def hload(i):
        if cfg.abl & 1:
            return
        if i > 0:
            a("s_add_u32 s86, s86, 0x40000")
        for tt in range(2):
            bload(hreg(i, tt), 4, 1, SWS, "s86", tt * 1024, "sc1", ("h", i))

    def w2read(i, nt):
        if cfg.abl & 2:
            return
        vm.wait(("w2", i))
        trread(WF + 4 * nt, 5 + nt, (i & 3) * 2048, 1024, ("wf", i, nt))

    def fslot(f):
        i, m = divmod(f, 4)
        nt, tt = ((0, 0), (0, 1), (1, 1), (1, 0))[m]
        vm.wait(("h", i))
        lg.wait(("wf", i, nt))
        d = FA + 16 * (2 * tt + nt)
        if not cfg.abl & 4:
            mfma32(d, WF + 4 * nt, hreg(i, tt), None if i == 0 else d)
        if m == 1 and i + 1 < NS:
            deferred.append(lambda: w2read(i + 1, 0))
        if m == cfg.dmam and i + 4 < NS:
            deferred.append(lambda: w2dma(i + 4))
        if m == 3:
            if i + 1 < NS:
                deferred.append(lambda: w2read(i + 1, 1))
            if i + 3 < NS:
                deferred.append(lambda: hload(i + 3))

    def park(tt, nt):
        d = FA + 16 * (2 * tt + nt)
        for q in range(8):
            a("v_cvt_pk_bf16_f32 %s, %s, %s" % (vr(d + q), vr(d + 2 * q), vr(d + 2 * q + 1)))
        for q in range(2):
            dsw("ds_write_b128", 4, d + 4 * q, 4, tt * 32 * PART_STRIDE + nt * 64 + q * 32)

    def park_addr():
        a("v_and_b32 v4, 31, v0")
        a("v_mul_u32_u24 v4, %d, v4" % PART_STRIDE)
        a("v_lshrrev_b32 v5, 5, v0")
        a("v_lshl_add_u32 v4, v5, 4, v4")
        a("v_add_u32 v4, s84, v4")

    hooks = {}

    def hook(j, t, i, f):
        hooks.setdefault((j, t, i), []).append(f)

    n1 = cfg.n1
    for n in range(cfg.hnow, 6):
        tl = (n - cfg.hnow) * cfg.hgap + cfg.hoff
        hook(tl >> 2, tl & 3, 9, lambda n=n: (shadow.extend(hlist[n]), run_shadow(1000)))
    assert (5 - cfg.hnow) * cfg.hgap + cfg.hoff <= cfg.hflag < 4 * (n1 - 2)
    hook(cfg.hflag >> 2, cfg.hflag & 3, 12, lambda: (vm.wait("hst"), set_flag(7, "s80"), stamp(1) if cfg.hst else None))
    hook(n1 - 2, 0, 8, lambda: flag_load(7, cfg.fsh, "s87", "hf"))
    hook(n1 - 2, 3, 12, lambda: (vm.wait("hf"), stamp(2) if cfg.hst else None, check_flags("h", 7, cfg.fsh, "s87"), stamp(3) if cfg.hst else None))
    for i in range(4):
        hook(n1 - 3 + (i >> 1), 1 + (i & 1), 7, lambda i=i: w2dma(i))
    for i in range(3):
        hook(n1 - 1, i, 7, lambda i=i: hload(i))
    hook(n1 - 1, 3, 7, lambda: (w2read(0, 0), w2read(0, 1)))
    pat = [int(ch) for ch in str(cfg.fpat)]
    slots = [(j, t, pos) for j in range(n1, nA) for t in range(4) for pos in ((13,), (7, 13))[pat[t] - 1]]
    for f in range(4 * NS):
        hook(*slots[f], lambda f=f: fslot(f))
    tl = slots[4 * NS - 1][0] * 4 + slots[4 * NS - 1][1] + 1
    assert tl + 3 < 4 * nA
    hook(tl >> 2, tl & 3, 6, park_addr)
    for n, (nt, tt) in enumerate(((0, 0), (0, 1), (1, 1), (1, 0))):
        hook((tl + n) >> 2, (tl + n) & 3, 7, lambda tt=tt, nt=nt: park(tt, nt))
    if cfg.hst:
        for n in range(4):
            hook(n1 + 4 * n, 0, 1, lambda n=n: stamp(4 + n))
    if cfg.alow:
        tl = 4 * nA - cfg.alow
        hook(tl >> 2, tl & 3, 0, lambda: a("s_setprio 0"))
    if cfg.bst == 4:
        for n, j in enumerate(range(0, nA, 2)):
            hook(j, 0, 0, lambda n=n: stamp(2 + n, True))
    att_run(nA, hooks)
    vm.drain()
    a("s_branch L_att_done")

    a.label("L_loader")
    vm.items = []
    lg.items = []

    def b_setup():
        a("; waves 4-7: W1 DMA offsets v56/v57 (sixth tile out of range where the next group owns it), wo DMA offset v4, flagQ row s79")
        a("""
        v_mul_u32_u24 v56, 2752, v4
        v_add_u32 v56, v56, v6
        s_lshr_b32 s72, 0xf8, s61
        s_and_b32 s72, s72, 1
        s_lshl_b32 s72, s72, 23
        v_and_b32 v57, 64, v6
        v_mad_u32_u24 v57, v57, s72, v56
        v_bfe_u32 v6, v4, 1, 2
        v_lshlrev_b32 v6, 1, v6
        v_xor_b32 v6, v6, v5
        v_lshlrev_b32 v6, 4, v6
        v_lshl_add_u32 v4, v4, 10, v6
        v_min_u32 v5, %d, v0
        v_lshlrev_b32 v5, 7, v5
        s_lshr_b32 s79, s64, 1
        s_lshl_b32 s79, s79, 10
        s_add_u32 s79, s79, %d
        s_and_b32 s73, s60, 3
        s_lshl_b32 s72, s69, 6
        s_mul_i32 s80, s73, %d
        s_add_u32 s80, s80, s72
        """ % (cfg.pfn - 1, WS_FLAGQ, 16 * 2752))

        a("v_mov_b32 v3, 0xdddddddd")

    issued = cfg.lead
    setup1()
    state = {"issued": issued}

    def b_step(c):
        if c in skip_bar:
            return
        vm.wait(("w", c + 1 if c + 1 in skip_bar else c))
        if cfg.bst == 2:
            stamp(c, True)
        if cfg.bst == 3 and c == 0:
            stamp(9, True)
        a("s_barrier")
        if cfg.bst == 1:
            stamp(c, True)
        if c in (0, 8, 12, 15):
            stamp({0: 3, 8: 4, 12: 5, 15: 6}[c])
        if c == cfg.bload - 1:
            flag_load(7, 4, "s79", "qf")
        if c == cfg.bload:
            vm.wait("qf")
            check_flags("q", 7, 4, "s79")
            stamp(7)
            att_loads("b")
        lim = c + 2
        if c < 8:
            lim = min(lim, cfg.hold)
        if cfg.split and c == 8:
            lim = 10 + cfg.split - 1
        if cfg.xslot == 12 and c == 9:
            lim = 12
        if cfg.xslot == 11 and c in (8, 9):
            lim = c + 3
        if cfg.xslot and c >= 11:
            lim = c + cfg.xrun
        while state["issued"] < min(15, max(3, lim)):
            state["issued"] += 1
            issue_chunk(state["issued"])
        if c == cfg.s2at:
            setup2()
        if cfg.pf1_at == 12 + c:
            assert c >= cfg.s2at
            pf1()
        if c == 2:
            setup3()
        if c == 3:
            b_setup()
        if c == cfg.l2w:
            pfl2(SW1)
        if c == cfg.pfe:
            a("; memory-side prefetch of w2 and wo")
            bload(32, 1, 31, SW2, "s100", 0, "", "pf")
            bload(32, 1, 31, SWO, "s100", 0, "", "pf")
        if c == 4:
            for op in init1:
                a(op)
        if c == 5:
            for op in init2:
                a(op)
        if c == 7:
            a("s_waitcnt lgkmcnt(0)")
            a("s_add_u32 %s, %s, 0x%x" % (sr(sTAG), sr(sTAG), EPOCH_INC))

    def b_att():
        a("s_barrier")
        stamp(8)
        a("s_setprio 1")
        if cfg.kv3:
            kvload(2)

    bhooks = {}
    for c in range(17):
        f = (lambda c=c: b_step(c)) if c < 16 else b_att
        if c <= cfg.bjoin:
            f()
        else:
            tl = (c - cfg.bjoin) * cfg.btile - 1
            bhooks[(tl >> 2, tl & 3, 13)] = [f]

    def wo_dma(lo, hi):
        if cfg.abl & 8:
            return
        if lo == 0:
            a("; wo tile -> LDS [0, 64K), a few rows per score tile")
            a("s_and_b32 s78, s60, 3")
            a("s_lshl_b32 s76, s78, 17")
            a("s_lshl_b32 s73, s67, 7")
            a("s_add_u32 s76, s76, s73")
            a("s_lshl_b32 s78, s78, 14")
        for i in range(lo, hi):
            a("s_add_u32 m0, s78, %d" % (i * 1024))
            a("s_add_u32 s73, s76, %d" % (i * 8192))
            dma(4, SWO, "s73", 0, "wo")

    nl = cfg.pfn
    batches = [(SW2, i) for i in range(-(-11 // nl))] + [(SWO, i) for i in range(-(-4 // nl))]

    def pf_late(n):
        if cfg.abl & 16:
            return
        if n == 0:
            a("; memory-side prefetch of w2 (in k order) and wo, a few lines per wave at a time")
            a("s_and_b32 s90, s60, 3")
            a("s_lshl2_add_u32 s90, s2, s90")
            a("s_mul_i32 s90, s90, %d" % (nl * 128))
        a("s_add_u32 s72, s90, %d" % (batches[n][1] * nl * 131072))
        bload(7, 1, 5, batches[n][0], "s72", 0, "", "pf")

    for n in range(len(batches) if cfg.pfe > 90 else 0):
        tl = cfg.pfl + n * cfg.pfg
        bhooks[(tl >> 2, tl & 3, 7)] = [lambda n=n: pf_late(n)]
    for n, lo in enumerate(range(0, 16, cfg.won)):
        bhooks[((cfg.wol + n) >> 2, (cfg.wol + n) & 3, 8)] = [lambda lo=lo: wo_dma(lo, lo + cfg.won)]
    if cfg.bst == 4:
        for j in range(nB):
            bhooks.setdefault((j, 0, 0), []).append(lambda j=j: stamp(2 + j, True))
    att_run(nB, bhooks)
    vm.drain()

    OW = OA + 48
    WOF, OFR, AC, G, Z, X, SR = 128, 24, 8, 64, 96, 104, 112
    a.label("L_att_done")
    stamp(10)
    if cfg.bst == 4:
        stamp(14, True)
    a("s_setprio 0")
    a("s_and_b32 s73, s60, 1")
    a("s_lshl_b32 s73, s73, 9")
    a("s_sub_u32 s76, s95, s73")
    a("""
    s_and_b32 s74, s60, 3
    s_lshr_b32 s75, s60, 2
    v_lshrrev_b32 v14, 3, v0
    v_and_b32 v7, 7, v0
    v_lshlrev_b32 v7, 4, v7
    v_lshl_add_u32 v14, v14, 10, v7
    s_lshl3_add_u32 s78, s66, s60
    s_lshl_b32 s78, s78, 13
    s_lshl_b32 s79, s67, 7
    s_add_u32 s78, s78, s79
    """)
    bload(60, 4, 7, SB2, "s79", 0, "", "xb")
    bload(56, 4, 14, SX, "s78", 0, "", "xb")
    lg.drain()
    a("s_barrier")
    for src in range(3):
        d = SB + 10 * src
        dsr("ds_read_b128", d, 4, 9, src * 2304, src)
        dsr("ds_read_b128", d + 4, 4, 9, src * 2304 + 1024, src)
        dsr("ds_read_b32", d + 8, 1, 10, src * 2304 + 2048, src)
    for src in range(3):
        lg.wait(src)
        for i in range(0, 8, 2):
            a("v_pk_add_f32 %s, %s, %s" % (vr(OW + i, 2), vr(OW + i, 2), vr(SB + 10 * src + i, 2)))
        a("v_add_f32 %s, %s, %s" % (vr(OW + 8), vr(OW + 8), vr(SB + 10 * src + 8)))
    a("v_pk_mul_f32 v[12:13], %s, 0 op_sel_hi:[1,0]" % vr(OW, 2))
    for i in range(2, 8, 2):
        a("v_pk_fma_f32 v[12:13], %s, 0, v[12:13] op_sel_hi:[1,0,1]" % vr(OW + i, 2))
    a("""
    v_add_f32 v12, v12, %s
    v_add_f32 v12, v12, v13
    v_cmp_nle_f32 vcc, 0x30800000, v12
    s_mov_b64 s[72:73], vcc
    v_cmp_nge_f32 vcc, 0x5d800000, v12
    s_or_b64 s[72:73], s[72:73], vcc
    """ % vr(OW + 8))
    a("s_branch L_slow" if cfg.force_slow else "s_cbranch_scc1 L_slow")
    a.label("L_norm")
    a("v_rcp_f32 v12, %s" % vr(OW + 8))
    for i in range(0, 8, 2):
        a("v_pk_mul_f32 %s, %s, v[12:13] op_sel_hi:[1,0]" % (vr(OW + i, 2), vr(OW + i, 2)))
    for q in range(4):
        a("v_cvt_pk_bf16_f32 %s, %s, %s" % (vr(16 + q), vr(OW + 2 * q), vr(OW + 2 * q + 1)))
    a("v_and_b32 v16, -2, v16")
    bstore(16, 4, 11, SWS, "s76", 0, "sc1", "ost")
    stamp(11)
    a("v_mov_b32 v2, v14")
    a("v_lshrrev_b32 v3, 3, v0")
    a("""
    v_mul_u32_u24 v4, %d, v3
    s_mul_i32 s72, s60, %d
    s_add_u32 s72, s72, %d
    v_add3_u32 v4, v4, v7, s72
    """ % (PART_STRIDE, 8 * PART_STRIDE, L_W2))
    for j in range(4):
        dsr("ds_read_b128", G + 4 * j, 4, 4, j * W2_REGION, "g")
    a("""
    v_bfe_u32 v4, v0, 2, 2
    v_bfe_u32 v5, v0, 4, 1
    v_lshl_add_u32 v4, v5, 2, v4
    v_lshrrev_b32 v5, 1, v4
    v_lshlrev_b32 v92, 7, v4
    v_lshl_add_u32 v92, v5, 5, v92
    v_lshrrev_b32 v6, 5, v0
    v_lshl_add_u32 v92, v6, 11, v92
    v_and_b32 v4, 3, v0
    v_lshl_add_u32 v92, v4, 3, v92
    s_lshl_b32 s72, s75, 15
    v_add_u32 v92, s72, v92
    v_xor_b32 v93, 32, v92
    v_xor_b32 v94, 64, v92
    v_xor_b32 v95, 0x60, v92
    s_barrier
    """)

    def oloads(first=0):
        for ks in range(first, 8):
            bload(OFR + 4 * ks, 4, 1, SWS, ("s76", "s77", "s80", "s81")[ks >> 1], (ks & 1) * 2048, "sc1", ("o", ks))

    fill = ("""
    s_lshl2_add_u32 s72, s66, s74
    s_lshr_b32 s76, s72, 1
    s_lshl1_add_u32 s76, s76, s75
    s_lshl_b32 s76, s76, 14
    s_and_b32 s72, s72, 1
    s_lshl_b32 s72, s72, 10
    s_add_u32 s76, s76, s72
    s_add_u32 s76, s76, %d
    s_add_u32 s77, s76, 0x1000
    s_add_u32 s80, s76, 0x2000
    s_add_u32 s81, s76, 0x3000
    v_mul_u32_u24 v3, %d, v3
    v_lshl_add_u32 v3, v7, 1, v3
    s_mul_i32 s72, s60, %d
    s_add_u32 s72, s72, %d
    v_add_u32 v3, s72, v3
    v_and_b32 v5, 15, v0
    v_mul_u32_u24 v5, %d, v5
    v_and_b32 v4, 48, v0
    s_mul_i32 s72, s60, %d
    s_add_u32 s72, s72, %d
    v_add3_u32 v5, v5, v4, s72
    s_mov_b32 s82, 0x3f80
    s_mov_b32 s83, 0x3f800000
    """ % (WS_QO, SUM_STRIDE, 8 * SUM_STRIDE, L_SUM, SUM_STRIDE, 16 * SUM_STRIDE, L_SUM)).strip().split("\n")
    gate = ["v_mov_b32 %s, 0" % vr(Z + i) for i in range(8)]
    gate.append(lambda: lg.wait("g"))
    for j in range(5):
        if j == 4:
            gate.append(lambda: vm.wait("xb"))
        for q in range(4):
            src = G + 4 * j + q if j < 4 else 60 + q
            gate.append("v_dot2c_f32_bf16 %s, s82, %s" % (vr(Z + 2 * q), vr(src)))
            gate.append("v_dot2c_f32_bf16 %s, s83, %s" % (vr(Z + 2 * q + 1), vr(src)))
    for q in range(4):
        gate.append("v_lshlrev_b32 %s, 16, %s" % (vr(X + 2 * q), vr(56 + q)))
        gate.append("v_and_b32 %s, s89, %s" % (vr(X + 1 + 2 * q), vr(56 + q)))
    gate += ["v_mul_f32 %s, 0x%x, %s" % (vr(G + i), NLOG2E, vr(Z + i)) for i in range(8)]
    gate += ["v_exp_f32 %s, %s" % (vr(G + i), vr(G + i)) for i in range(8)]
    gate += ["v_add_f32 %s, 1.0, %s" % (vr(G + i), vr(G + i)) for i in range(8)]
    gate += ["v_rcp_f32 %s, %s" % (vr(G + i), vr(G + i)) for i in range(8)]
    gate += ["v_mul_f32 %s, %s, %s" % (vr(Z + i), vr(Z + i), vr(G + i)) for i in range(8)]

    def wo_reads(oat, per):
        for ks in range(8):
            for ct in range(4):
                trread(WOF + (ks * 4 + ct) * 4, 92 + ct, ks * 4096, 1024, ("wo", ks))
                run_shadow(per)
            if ks == oat:
                run_shadow(1000)
                vm.wait("ost")
                oloads()

    vm_t, lg_t = list(vm.items), list(lg.items)
    a("s_cmp_eq_u32 s63, 1")
    a("s_cbranch_scc1 L_tail_b")
    shadow.extend(fill)
    wo_reads(7, 1)
    shadow.extend(gate)
    run_shadow(1000)
    a("s_branch L_tail_j")
    a.label("L_tail_b")
    vm.items, lg.items = vm_t, lg_t
    shadow.extend(fill + gate)
    run_shadow(1000)
    wo_reads(cfg.oat, 0)
    a.label("L_tail_j")
    stamp(12)
    a("s_mov_b32 s73, 0")
    lg.drain()
    for ks in range(8):
        a.label("L_wo_%d" % ks)
        vm.wait(("o", ks))
        a("v_and_b32 v6, 1, %s" % vr(OFR + 4 * ks))
        a("v_cmp_ne_u32 vcc, 0, v6")
        a("s_cbranch_vccnz L_oretry_%d" % ks)
        a.label("L_ogo_%d" % ks)
        for ct in range(4):
            d = AC + 4 * ct
            mfma16(d, WOF + (ks * 4 + ct) * 4, OFR + 4 * ks, None if ks == 0 else d)
    stamp(13)
    for ct in range(4):
        dsw("ds_write_b128", 5, AC + 4 * ct, 4, ct * 64)
    lg.drain()
    a("s_barrier")
    stamp(14)
    dsr("ds_read_b128", SR, 4, 3, 0, 0)
    dsr("ds_read_b128", SR + 8, 4, 3, SUM_SIZE, 0)
    dsr("ds_read_b128", SR + 4, 4, 3, 16, 1)
    dsr("ds_read_b128", SR + 12, 4, 3, SUM_SIZE + 16, 1)
    for h in range(2):
        lg.wait(h)
        for i in range(4 * h, 4 * h + 4, 2):
            a("v_pk_add_f32 %s, %s, %s" % (vr(SR + i, 2), vr(SR + i, 2), vr(SR + 8 + i, 2)))
        for i in range(4 * h, 4 * h + 4, 2):
            a("v_pk_fma_f32 %s, %s, %s, %s" % (vr(SR + i, 2), vr(SR + i, 2), vr(Z + i, 2), vr(X + i, 2)))
        for q in range(2 * h, 2 * h + 2):
            a("v_cvt_pk_bf16_f32 %s, %s, %s" % (vr(G + q), vr(SR + 2 * q), vr(SR + 2 * q + 1)))
    bstore(G, 4, 2, SOUT, "s78", 0, ("", "sc1", "nt", "sc0 sc1", "sc0 sc1 nt")[cfg.omod])
    a("s_or_b32 s72, s2, s60")
    a("s_cmp_lg_u32 s72, 0")
    a("s_cbranch_scc1 L_noepoch")
    set_flag(7, "0")
    a.label("L_noepoch")
    if cfg.stamps:
        a("s_waitcnt vmcnt(0)")
        stamp(15)
        if cfg.probe is not None:
            a("s_sub_u32 s72, %s, s4" % sr(sSTAMP + cfg.probe))
            if cfg.stamps == 2:
                a("s_lshr_b32 s72, s72, 3")
            else:
                a("s_lshl_b32 s72, s72, %d" % cfg.probesh)
            a("s_cmp_lg_u32 s2, %d" % cfg.probewg)
            a("s_cselect_b32 s72, 0, s72")
            a("s_cmp_lg_u32 s60, %d" % cfg.probew)
            a("s_cselect_b32 s72, 0, s72")
            a("s_memrealtime s[22:23]")
            a("s_waitcnt lgkmcnt(0)")
            a("s_mov_b32 s73, s22")
            a.label("L_probe")
            a("s_memrealtime s[22:23]")
            a("s_waitcnt lgkmcnt(0)")
            a("s_sub_u32 s22, s22, s73")
            a("s_cmp_lt_u32 s22, s72")
            a("s_cbranch_scc1 L_probe")
        a("s_lshl3_add_u32 s72, s2, s60")
        a("s_lshl_b32 s72, s72, 6")
        a("s_add_u32 s72, s72, %d" % WS_STAMP)
        for i in range(16):
            a("v_mov_b32 %s, %s" % (vr(80 + i), sr(sSTAMP + i)))
        a("s_mov_b64 exec, 1")
        for i in range(4):
            bstore(80 + 4 * i, 4, 1, SWS, "s72", 16 * i)
    a.label("L_end")
    a("s_endpgm")

    for ks in range(8):
        a.label("L_oretry_%d" % ks)
        a("s_add_u32 s73, s73, 1")
        a("s_cmp_ge_u32 s73, %d" % SPIN_MAX)
        a("s_cbranch_scc1 L_ogo_%d" % ks)
        a("s_waitcnt vmcnt(0)")
        oloads(ks)
        a("s_branch L_wo_%d" % ks)

    for tag, vt, lanes, soff in stubs:
        a.label("L_poll_" + tag)
        a("s_mov_b32 s73, 0")
        a.label("L_poll2_" + tag)
        a("s_sleep %d" % cfg.sleep)
        flag_load(vt, lanes, soff, None)
        a("s_add_u32 s73, s73, 1")
        a("s_waitcnt vmcnt(0)")
        a("s_cmp_ge_u32 s73, %d" % SPIN_MAX)
        a("s_cbranch_scc1 L_polled_" + tag)
        a("v_cmp_ne_u32 vcc, %s, %s" % (sr(sTAG), vr(vt)))
        a("s_cbranch_vccnz L_poll2_" + tag)
        a("s_branch L_polled_" + tag)

    a.label("L_slow")
    CN = SB + 16
    a("s_waitcnt vmcnt(0)")
    a("v_mov_b32 v13, 0xff800000")
    a("s_mov_b32 s82, s83")
    a("s_mov_b32 s81, 64")
    a.label("L_slow1")
    bload(KV, 4, 252, SWS, "s82", 0, "sc1")
    a("s_add_u32 s82, s82, 2048")
    a("s_waitcnt vmcnt(0)")
    mfma32(SB, KV, QR + 12, None)
    for i in range(0, 16, 2):
        a("v_max3_f32 v13, v13, %s, %s" % (vr(SB + i), vr(SB + i + 1)))
    a("s_sub_u32 s81, s81, 1")
    a("s_cmp_lg_u32 s81, 0")
    a("s_cbranch_scc1 L_slow1")
    a("v_mov_b32 v15, v13")
    a("v_permlane32_swap_b32 v15, v13")
    a("v_max_f32 v13, v15, v13")
    for i in range(16):
        a("v_sub_f32 %s, 0, v13" % vr(CN + i))
        a("v_mov_b32 %s, 0" % vr(OW + i))
    a("s_mov_b32 s82, s83")
    a("s_mov_b32 s81, 64")
    a.label("L_slow2")
    kvload(0)
    a("s_waitcnt vmcnt(0)")
    mfma32(SB, KV, QR + 12, CN)
    for i in range(16):
        a("v_exp_f32 %s, %s" % (vr(SB + i), vr(SB + i)))
    smf(OW, KV + 4, SB)
    smf(OW, KV + 8, SB + 8)
    a("s_sub_u32 s81, s81, 1")
    a("s_cmp_lg_u32 s81, 0")
    a("s_cbranch_scc1 L_slow2")
    a("s_branch L_norm")
    a.label("L_code_end")
    a("s_endpgm")

    added = a.fix()
    return a.text().replace('FSH', str(cfg.fsh)).replace('FROW', str(cfg.fsh + 5)), added


HEADER = """; Kernarg layout for this problem (88 bytes, ptrs only, base s[0:1]):
; @launch grid=(256,1,1) block=(512,1,1) lds=163840
.amdgcn_target "amdgcn-amd-amdhsa--gfx950"
.text
.globl {k}
.p2align 8
.type {k},@function
{k}:
"""

FOOTER = """.section .rodata,"a"
.p2align 6
.amdhsa_kernel {k}
  .amdhsa_next_free_vgpr 256
  .amdhsa_next_free_sgpr 102
  .amdhsa_accum_offset 256
  .amdhsa_group_segment_fixed_size 0
  .amdhsa_kernarg_size 88
  .amdhsa_user_sgpr_count 2
  .amdhsa_user_sgpr_kernarg_segment_ptr 1
  .amdhsa_system_sgpr_workgroup_id_x 1
.end_amdhsa_kernel
"""


def build(**kw):
    cfg = Cfg()
    for k, v in kw.items():
        setattr(cfg, k, v)
    body, added = gen(cfg)
    return HEADER.format(k=KERNEL) + body + FOOTER.format(k=KERNEL), added


if __name__ == "__main__":
    out = sys.argv[1] if len(sys.argv) > 1 else "cdna_kernels/%s.s" % NAME
    kw = {}
    for arg in sys.argv[2:]:
        k, v = arg.split("=")
        kw[k] = int(v)
    text, added = build(**kw)
    open(out, "w").write(text)
    print("wrote", out, "lines", text.count("\n"), "nops added", added)
```

```python
import sys
import os
sys.path.insert(0, os.path.dirname(os.path.abspath(__file__)))
from asmlib import Asm, vr, sr

NAME = "recurrent_scan__softmax_full_mha__dense_activation_squared_relu__prompt"
KERNEL = NAME + "_kernel"

WS_FLAGQ = 0x1200
WS_FLAGH = 0x60000
WS_STAMP = 0x10000
WS_QO = 0x100000
WS_KV = 0x300000
WS_HF = 0x700000
WS_END = WS_HF + 86 * 65536
EPOCH_INC = 0x9E3779B9
SPIN_MAX = 1 << 18

L_RING = 65536
L_OPART = 65536
L_W2 = L_OPART + 55296
W2_REGION = 10240
PART_STRIDE = 144
SUM_STRIDE = 272
SUM_SIZE = 64 * SUM_STRIDE
L_SUM = L_OPART

SX, SWQ, SWO, SW1, SB1, SW2, SB2, SOUT, SWS = 24, 28, 32, 36, 40, 44, 48, 52, 56
sW, sCG, sTB, sRW, sP, sQB, sTBF, sCB, sTAG, sCT0 = 60, 61, 62, 63, 64, 65, 66, 67, 68, 69
sVM = 70
sSTAMP = 4

QSCALE = 0x3EB8AA3B
NLOG2E = 0xBFB8AA3B
NS = 22


class Cfg:
    abl = 0
    bst = 0
    xslot = 0
    xrun = 2
    n1 = 8
    nA = 22
    gap = 1
    kvt = 0
    kvi = 4
    dmam = 2
    fpat = 2221
    pf1_at = 12
    pfc_at = 99
    pfc1 = 0
    w2_at = 10
    pfl = 9
    wol = 15
    won = 1
    stamps = 0
    force_slow = 0
    flag_chunk = 10
    lead = 2
    defer = 0
    look = 5
    pfq_at = 99
    bload = 15
    bjoin = 16
    btile = 2
    sleep = 6
    w0_at = 7
    w1_at = 10
    hpre = 2
    hbar = 0
    hnow = 2
    hgap = 2
    hoff = 0
    kv3 = 1
    fsh = 4
    pfe = 99
    l2q = 99
    rot = 1
    split = 1
    hold = 99
    l2w = 99
    pfn = 11
    alow = 0
    pfg = 1
    hflag = 11
    probe = None
    omod = 1
    oat = 4
    probewg = 100
    probew = 0
    probesh = 4
    hst = 0


def srd(s):
    return sr(s, 4)


class Queue:
    def __init__(self, a, name, maxn):
        self.a, self.name, self.maxn, self.items = a, name, maxn, []

    def push(self, tag):
        self.items.append(tag)

    def wait(self, *tags):
        last = max((i for i, t in enumerate(self.items) if t in tags), default=-1)
        if last < 0:
            return
        n = len(self.items) - 1 - last
        self.a("s_waitcnt %s(%d)" % (self.name, min(n, self.maxn)))
        self.items = self.items[last + 1:]

    def drain(self):
        self.a("s_waitcnt %s(0)" % self.name)
        self.items = []


def gen(cfg):
    a = Asm()
    nA = cfg.nA
    nB = 32 - nA
    vm = Queue(a, "vmcnt", 63)
    lg = Queue(a, "lgkmcnt", 15)

    def stamp(i, force=False):
        if cfg.bst and not force and i != 0:
            return
        if cfg.stamps and (cfg.probe is None or i in (0, cfg.probe)):
            a("%s s[22:23]" % ("s_memtime" if cfg.stamps == 2 else "s_memrealtime"))
            a("s_waitcnt lgkmcnt(0)")
            a("s_mov_b32 %s, s22" % sr(sSTAMP + i))

    def mfma32(d, x, y, c):
        a("v_mfma_f32_32x32x16_bf16 %s, %s, %s, %s" % (vr(d, 16), vr(x, 4), vr(y, 4), "0" if c is None else vr(c, 16)))

    def mfma16(d, x, y, c):
        a("v_mfma_f32_16x16x32_bf16 %s, %s, %s, %s" % (vr(d, 4), vr(x, 4), vr(y, 4), "0" if c is None else vr(c, 4)))

    def smf(d, x, y):
        a("v_smfmac_f32_32x32x32_bf16 %s, %s, %s, v3" % (vr(d, 16), vr(x, 4), vr(y, 8)))

    def bload(d, n, va, s, so, off=0, mod="", tag=None):
        op = {1: "dword", 2: "dwordx2", 4: "dwordx4"}[n]
        a("buffer_load_%s %s, %s, %s, %s offen offset:%d %s" % (op, vr(d, n), vr(va), srd(s), so, off, mod))
        vm.push(tag)

    def bstore(d, n, va, s, so, off=0, mod="", tag=None):
        op = {1: "dword", 2: "dwordx2", 4: "dwordx4"}[n]
        a("buffer_store_%s %s, %s, %s, %s offen offset:%d %s" % (op, vr(d, n), vr(va), srd(s), so, off, mod))
        vm.push(tag)

    def dma(va, s, so, off=0, tag=None):
        a("buffer_load_dwordx4 %s, %s, %s offen offset:%d lds" % (vr(va), srd(s), so, off))
        vm.push(tag)

    def dsr(op, d, n, va, off, tag=None):
        a("%s %s, %s offset:%d" % (op, vr(d, n), vr(va), off))
        lg.push(tag)

    def dsw(op, va, d, n, off, tag=None):
        a("%s %s, %s offset:%d" % (op, vr(va), vr(d, n), off))
        lg.push(tag)

    def trread(d, va, off, second, tag=None):
        dsr("ds_read_b64_tr_b16", d, 2, va, off, tag)
        dsr("ds_read_b64_tr_b16", d + 2, 2, va, off + second, tag)

    def set_flag(vt, soff):
        a("v_mov_b32 %s, %s" % (vr(vt), sr(sTAG)))
        a("s_mov_b64 exec, 1")
        bstore(vt, 1, 1, SWS, soff, 0, "sc0 sc1")
        a("s_mov_b64 exec, -1")

    stubs = []

    def check_flags(tag, vt, lanes, soff):
        a("v_cmp_ne_u32 vcc, %s, %s" % (sr(sTAG), vr(vt)))
        a("s_cbranch_vccnz L_poll_" + tag)
        a.label("L_polled_" + tag)
        stubs.append((tag, vt, lanes, soff))

    def flag_load(vt, shift, soff, tag):
        a("v_and_b32 %s, 31, v0" % vr(vt))
        a("v_lshlrev_b32 %s, %d, %s" % (vr(vt), shift, vr(vt)))
        bload(vt, 1, vt, SWS, soff, 0, "sc0 sc1", tag)

    sizes = {SX: 2048 * 1024, SWQ: 512 * 3072, SWS: WS_END, SW1: 512 * 2752, SB1: 2752,
             SWO: 512 * 1024, SW2: 1376 * 1024, SB2: 1024, SOUT: 2048 * 1024}
    RAW = 128

    def xloads():
        for j in range(8):
            bload(RAW + j * 4, 4, 14, SX, "s101", j * 128, "", ("x", j))

    stamp(0)
    a("""
    s_load_dwordx2 s[24:25], s[0:1], 0
    s_getpc_b64 s[72:73]
    L_pc:
    s_cmpk_ge_u32 s2, 256
    s_cbranch_scc1 L_end
    s_lshr_b32 s74, s2, 3
    s_lshl_b32 s74, s74, 11
    v_lshrrev_b32 v8, 5, v0
    v_lshl_add_u32 v8, v8, 7, s74
    v_min_u32 v8, L_code_end-L_pc, v8
    v_mov_b32 v9, 0
    v_lshl_add_u64 v[8:9], v[8:9], 0, s[72:73]
    global_load_dword v7, v[8:9], off
    s_lshl_b32 s72, s2, 4
    s_and_b32 s72, s72, 0x180
    v_add_u32 v4, s72, v0
    v_bfe_u32 v4, v4, 3, 6
    v_and_b32 v5, 7, v0
    v_lshlrev_b32 v14, 10, v4
    v_lshl_add_u32 v14, v5, 4, v14
    s_lshr_b32 s67, s2, 5
    s_and_b32 s73, s2, 6
    s_lshl2_add_u32 s62, s73, s67
    s_lshl_b32 s101, s62, 16
    s_mov_b32 s26, %d
    s_mov_b32 s27, 0x20000
    v_bfe_u32 v24, v4, 1, 3
    v_xor_b32 v24, v24, v5
    v_lshlrev_b32 v15, 7, v4
    v_lshl_add_u32 v15, v24, 4, v15
    v_readfirstlane_b32 s60, v0
    v_and_b32 v0, 63, v0
    v_mov_b32 v24, 0
    v_mov_b32 v25, 0
    s_lshr_b32 s60, s60, 6
    s_cmp_ge_u32 s60, 4
    s_waitcnt lgkmcnt(0)
    """ % sizes[SX])
    vm.push("pf")
    if cfg.bst == 3:
        stamp(1, True)
    xloads()
    if cfg.bst == 3:
        stamp(2, True)
    if cfg.stamps:
        for i in range(3 if cfg.bst == 3 else 1, 16):
            a("s_mov_b32 %s, s4" % sr(sSTAMP + i))
    a("s_mov_b32 s63, 1")
    a("s_cbranch_scc1 L_ln")
    a("s_mov_b32 s63, 0")

    def setup1():
        for s, off in ((SWQ, 8), (SWS, 80), (SW1, 32), (SB1, 40), (SWO, 16), (SW2, 48), (SB2, 56), (SOUT, 64)):
            a("s_load_dwordx2 %s, s[0:1], %d" % (sr(s, 2), off))
        a("""
        s_mov_b32 s30, %d
        s_mov_b32 s31, 0x20000
        s_bfe_u32 s72, s2, 0x20003
        s_and_b32 s73, s2, 1
        s_lshl2_add_u32 s61, s73, s72
        s_and_b32 s74, s60, 3
        s_lshl_b32 s72, s61, 7
        s_mul_i32 s85, s74, %d
        s_add_u32 s85, s85, s72
        s_mul_i32 s87, s74, 6144
        s_add_u32 s87, s87, %d
        v_lshrrev_b32 v4, 3, v0
        v_bfe_u32 v6, v4, 1, 1
        v_lshlrev_b32 v6, 2, v6
        v_xor_b32 v6, v6, v5
        v_lshlrev_b32 v6, 4, v6
        v_mul_u32_u24 v13, 3072, v4
        v_add_u32 v13, v13, v6
        s_waitcnt lgkmcnt(0)
        """ % (sizes[SWQ], 16 * 3072, L_RING))

    def setup_pf():
        for s in (SW1, SWO, SW2):
            a("s_mov_b32 %s, %d" % (sr(s + 2), sizes[s]))
            a("s_mov_b32 %s, 0x20000" % sr(s + 3))
        a("""
        s_and_b32 s73, s60, 3
        s_lshl2_add_u32 s100, s2, s73
        s_mul_i32 s100, s100, 1536
        v_min_u32 v31, 11, v0
        v_lshlrev_b32 v31, 7, v31
        """)

    def setup2():
        a("s_load_dword %s, %s, 0" % (sr(sTAG), sr(SWS, 2)))
        for s in (SWS, SB1, SB2, SOUT):
            a("s_mov_b32 %s, %d" % (sr(s + 2), sizes[s]))
            a("s_mov_b32 %s, 0x20000" % sr(s + 3))
        a("""
        s_bfe_u32 s72, s2, 0x20003
        s_and_b32 s73, s2, 7
        s_lshl2_add_u32 s66, s73, s72
        s_and_b32 s72, s72, 1
        s_lshl1_add_u32 s64, s73, s72
        s_lshr_b32 s65, s2, 4
        s_mul_i32 s69, s61, 6
        s_mul_i32 s73, s61, 5
        s_add_u32 s73, s73, 3
        s_min_u32 s69, s69, s73
        s_mov_b32 s70, 0xffff
        s_mov_b32 s71, 0xffff
        v_lshlrev_b32 v1, 4, v0
        v_and_b32 v2, 15, v0
        v_lshrrev_b32 v3, 5, v0
        v_lshl_add_u32 v2, v3, 4, v2
        v_lshlrev_b32 v2, 4, v2
        """)

    def setup3():
        a("; attention offsets: s82 = next K/V tile, s83 = head base, s92-s95 = Q tiles, s96-s99 = O partial slots")
        a("""
        s_and_b32 s74, s60, 1
        s_lshr_b32 s75, s60, 1
        s_lshl1_add_u32 s72, s64, s74
        s_lshl_b32 s83, s72, 17
        s_add_u32 s83, s83, %d
        s_and_b32 s73, s75, 1
        s_lshl_b32 s73, s73, 16
        s_add_u32 s82, s83, s73
        s_lshl_b32 s72, s65, 6
        s_add_u32 s72, s72, s64
        s_lshl1_add_u32 s72, s72, s74
        s_lshl_b32 s72, s72, 10
        s_add_u32 s72, s72, %d
        s_mul_i32 s84, s74, %d
        s_add_u32 s84, s84, %d
        """ % (WS_KV, WS_QO, 12 * 2304, L_OPART))
        for t in range(4):
            a("s_xor_b32 s73, s75, %d" % (t ^ 3))
            a("s_mul_i32 %s, s73, %d" % (sr(96 + t), 3 * 2304))
            a("s_lshl_b32 s73, s73, 15")
            a("s_add_u32 %s, s72, s73" % sr(92 + t))
            a("s_add_u32 %s, %s, s84" % (sr(96 + t), sr(96 + t)))

    setup1()
    setup_pf()
    setup2()
    setup3()
    a("""
    s_add_u32 s82, s82, %d
    v_and_b32 v8, 0x33, v0
    v_and_b32 v9, 4, v0
    v_lshl_or_b32 v8, v9, 1, v8
    v_and_b32 v9, 8, v0
    v_lshrrev_b32 v9, 1, v9
    v_or_b32 v8, v8, v9
    v_lshlrev_b32 v11, 4, v8
    v_bfe_u32 v9, v0, 4, 1
    v_mul_u32_u24 v12, 0x1fe00, v9
    v_add_u32 v12, v12, v2
    v_mul_u32_u24 v14, 0x1fa00, v9
    v_add_u32 v14, v14, v2
    v_lshl_add_u32 v4, v4, 10, v6
    v_bfe_u32 v10, v0, 2, 2
    v_lshlrev_b32 v5, 5, v9
    v_lshl_add_u32 v5, v10, 7, v5
    v_and_b32 v9, 3, v0
    v_lshl_add_u32 v5, v9, 3, v5
    v_lshrrev_b32 v10, 1, v10
    v_lshl_add_u32 v8, v3, 10, v5
    v_xor_b32 v9, s75, v10
    v_lshl_add_u32 v8, v9, 6, v8
    v_add_u32 v8, %d, v8
    v_add_u32 v9, %d, v8
    v_lshl_add_u32 v5, v3, 9, v5
    v_lshl_add_u32 v5, v10, 6, v5
    v_lshrrev_b32 v10, 1, v0
    v_xor_b32 v10, v10, v0
    v_and_b32 v10, 1, v10
    v_mul_u32_u24 v10, 24, v10
    v_xor_b32 v5, v5, v10
    s_mul_i32 s84, s60, %d
    s_add_u32 s84, s84, %d
    v_add_u32 v5, s84, v5
    v_xor_b32 v6, 64, v5
    v_and_b32 v10, 31, v0
    s_lshl_b32 s72, s74, 12
    v_bfe_u32 v16, v10, 1, 3
    v_xor_b32 v16, v16, v3
    v_lshlrev_b32 v16, 4, v16
    v_lshl_add_u32 v16, v10, 7, v16
    v_add_u32 v16, s72, v16
    v_xor_b32 v17, 32, v16
    v_xor_b32 v18, 64, v16
    v_xor_b32 v19, 0x60, v16
    v_lshlrev_b32 v10, 1, v10
    v_lshl_add_u32 v10, v3, 20, v10
    """ % (nB * 2048, L_RING, 2 * 24576, W2_REGION, L_W2))
    for seg in range(3):
        for q in range(1, 4):
            a("v_mov_b32 %s, 0" % vr(112 + 4 * seg + q))
    for q in range(4):
        a("v_mov_b32 %s, 0x3f803f80" % vr(124 + q))
    a("v_mov_b32 v3, 0xdddddddd")
    a("""
    s_lshl1_add_u32 s72, s62, s74
    s_lshl1_add_u32 s73, s61, s75
    s_lshl_b32 s76, s73, 7
    s_add_u32 s76, s76, s72
    s_lshl_b32 s77, s76, 11
    s_lshl4_add_u32 s76, s72, s73
    s_lshl_b32 s76, s76, 11
    s_add_u32 s76, s76, %d
    s_add_u32 s77, s77, %d
    s_add_u32 s81, s69, s75
    s_lshl_b32 s78, s81, 7
    s_add_u32 s78, s78, s72
    s_lshl_b32 s78, s78, 10
    s_add_u32 s78, s78, %d
    s_lshl_b32 s79, s61, 6
    s_add_u32 s79, s79, s62
    s_lshl_b32 s79, s79, 4
    s_add_u32 s79, s79, %d
    s_lshl_b32 s80, s62, 3
    s_add_u32 s80, s80, s61
    s_lshl2_add_u32 s80, s80, s60
    s_lshl_b32 s80, s80, FSH
    s_add_u32 s80, s80, %d
    s_mul_i32 s73, s61, s75
    s_add_u32 s88, s78, %d
    s_cmp_lt_u32 s73, 3
    s_cselect_b32 s88, s88, 0x40000000
    s_lshl_b32 s81, s81, 6
    """ % (WS_QO, WS_KV, WS_HF, WS_FLAGQ, WS_FLAGH, 8 * 65536))

    def slot_of(c):
        if not cfg.xslot or c < cfg.xslot:
            return (c & 3) * 24576
        return -L_RING if c == cfg.xslot else ((c - 1) & 3) * 24576

    skip_bar = (10,) if cfg.xslot else ()

    def issue_chunk(c):
        if cfg.rot:
            a("s_xor_b32 s73, s67, %d" % (c & 7))
            a("s_mul_i32 s73, s73, %d" % (64 * (3072 if c < 8 else 2752)))
            a("s_add_u32 s73, s73, %s" % ("s85" if c < 8 else "s80"))
        for m in range(6):
            blk, seg = divmod(m, 3)
            a("s_add_u32 m0, s87, %d" % (slot_of(c) + seg * 2048 + blk * 1024))
            if c < 8:
                a("s_add_u32 s72, %s, %d" % (("s73", blk * 8 * 3072 + seg * 1024) if cfg.rot else ("s85", (c * 64 + blk * 8) * 3072 + seg * 1024)))
                dma(13, SWQ, "s72", 0, ("w", c))
            else:
                a("s_add_u32 s72, %s, %d" % (("s73", blk * 8 * 2752 + seg * 128) if cfg.rot else ("s80", ((c - 8) * 64 + blk * 8) * 2752 + seg * 128)))
                dma(57 if seg == 2 else 56, SW1, "s72", 0, ("w", c))

    def layernorm(acts):
        def act(p):
            if acts.get(p):
                assert p >= 7
                a("s_cmp_eq_u32 s63, 1")
                a("s_cbranch_scc1 L_ln_%d" % p)
                for f in acts[p]:
                    f()
                a.label("L_ln_%d" % p)
        a.label("L_ln")
        a("v_mov_b32 v30, 0x3f803f80")
        a("s_mov_b32 s89, 0xffff0000")
        if cfg.rot:
            a("; K chunks are visited in the order c ^ (row block & 7): workgroups sharing weights fetch different chunks first")
            a("s_lshl_b32 s72, s67, 13")
            a("v_or_b32 v15, s72, v15")

        def xwrite(j):
            if cfg.rot:
                a("v_xor_b32 v23, 0x%x, v15" % (j << 13))
                a("ds_write_b128 v23, %s" % vr(RAW + j * 4, 4))
            else:
                a("ds_write_b128 v15, %s offset:%d" % (vr(RAW + j * 4, 4), j * 8192))

        for j in range(8):
            if cfg.bst == 3 and j == 0:
                stamp(3, True)
            vm.wait(("x", j))
            if cfg.bst == 3 and j in (0, 3, 7):
                stamp({0: 4, 3: 5, 7: 6}[j], True)
            act(j)
            for q in range(4):
                x = RAW + j * 4 + q
                a("v_dot2c_f32_bf16 v24, v30, %s" % vr(x))
                a("v_dot2c_f32_bf16 v25, %s, %s" % (vr(x), vr(x)))
        act(8)
        stamp(1)
        for ctl in ("quad_perm:[1,0,3,2]", "quad_perm:[2,3,0,1]", "row_half_mirror"):
            for r in (24, 25):
                a("v_add_f32_dpp %s, %s, %s %s row_mask:0xf bank_mask:0xf" % (vr(r), vr(r), vr(r), ctl))
        a("""
        v_mul_f32 v24, 0x3b000000, v24
        v_mul_f32 v25, 0x3b000000, v25
        v_fma_f32 v25, -v24, v24, v25
        v_max_f32 v25, 0, v25
        v_cvt_pk_bf16_f32 v24, v24, v25
        v_and_b32 v25, s89, v24
        v_add_f32 v25, 0x3727c5ac, v25
        v_cvt_pk_bf16_f32 v25, v25, v25
        v_and_b32 v25, s89, v25
        v_sqrt_f32 v25, v25
        v_lshlrev_b32 v24, 16, v24
        v_cvt_pk_bf16_f32 v25, v25, v25
        v_and_b32 v25, s89, v25
        v_rcp_f32 v26, v25
        v_mul_f32_e64 v28, -v24, v26
        """)
        for j in range(8):
            x = RAW + j * 4
            t = 192 + (j & 1) * 8
            for q in range(4):
                a("v_lshlrev_b32 %s, 16, %s" % (vr(t + 2 * q), vr(x + q)))
                a("v_and_b32 %s, s89, %s" % (vr(t + 2 * q + 1), vr(x + q)))
            for q in range(4):
                a("v_pk_fma_f32 %s, %s, v[26:27], v[28:29] op_sel_hi:[1,0,0]" % (vr(t + 2 * q, 2), vr(t + 2 * q, 2)))
            for q in range(4):
                a("v_cvt_pk_bf16_f32 %s, %s, %s" % (vr(x + q), vr(t + 2 * q), vr(t + 2 * q + 1)))
            if not cfg.defer:
                xwrite(j)
        if cfg.bst == 3:
            stamp(7, True)
        act(9)
        if cfg.defer:
            for j in range(8):
                xwrite(j)
        act(10)
        stamp(2)
        if cfg.bst == 3:
            stamp(8, True)

    def pfq():
        a("; memory-side prefetch of Wqkv")
        bload(7, 1, 31, SWQ, "s100", 0, "", "pf")

    def pfl2(which):
        a("; the die's workgroups pull their half of the weight columns into L2 together, four rows per wave")
        stride = 3072 if which == SWQ else 2752
        a("s_lshr_b32 s72, s2, 3")
        a("s_and_b32 s73, s60, 3")
        a("s_lshl2_add_u32 s72, s72, s73")
        a("s_mul_i32 s72, s72, %d" % (4 * stride))
        a("s_and_b32 s73, s2, 1")
        a("s_mul_i32 s73, s73, %d" % (512 if which == SWQ else 1472))
        a("s_add_u32 s72, s72, s73")
        a("v_lshrrev_b32 v20, 4, v0")
        a("v_mul_u32_u24 v20, %d, v20" % stride)
        if which == SWQ:
            a("v_bfe_u32 v21, v0, 2, 2")
            a("v_min_u32 v21, 2, v21")
            a("v_lshl_add_u32 v20, v21, 10, v20")
            a("v_and_b32 v21, 3, v0")
            a("v_lshl_add_u32 v20, v21, 7, v20")
        else:
            a("v_and_b32 v21, 15, v0")
            a("v_lshlrev_b32 v21, 7, v21")
            a("v_min_u32 v21, 1468, v21")
            a("v_add_u32 v20, v20, v21")
        bload(22, 1, 20, which, "s72", 0, "", "pf")

    def pfc(which):
        a("; lines at offset 384 of every KiB stream slowly on a miss: the die's workgroups pull them into L2 together")
        a("s_lshr_b32 s72, s2, 3")
        a("s_lshl2_add_u32 s72, s72, s60")
        a("s_mul_i32 s72, s72, 12288")
        a("v_lshlrev_b32 v20, 3, v31")
        if which == SWQ:
            a("s_bitcmp1_b32 s2, 0")
            a("s_cselect_b32 s72, 0x40000000, s72")
        bload(7, 1, 20, which, "s72", 384, "", "pf")

    def pf1():
        a("; memory-side prefetch of W1")
        bload(7 if cfg.pf1_at <= 10 else 32, 1, 31, SW1, "s100", 0, "", "pf")

    acts = {}
    if cfg.pfc_at == 0:
        save = list(vm.items)
        pfc(SWQ)
        vm.items = save
    elif cfg.pfc_at <= 10:
        acts.setdefault(cfg.pfc_at, []).append(lambda: pfc(SWQ))
    if cfg.pfq_at == 0:
        save = list(vm.items)
        pfq()
        vm.items = save
    elif cfg.pfq_at <= 10:
        acts.setdefault(cfg.pfq_at, []).append(pfq)
    if cfg.l2q == 0:
        save = list(vm.items)
        pfl2(SWQ)
        vm.items = save
    if cfg.l2q == 7:
        acts.setdefault(7, []).append(lambda: pfl2(SWQ))
    for c, p in enumerate((cfg.w0_at, cfg.w1_at, cfg.w2_at, 10)[:cfg.lead + 1]):
        acts.setdefault(p, []).append(lambda c=c: issue_chunk(c))
    if 8 <= cfg.l2q <= 10:
        acts.setdefault(cfg.l2q, []).insert(0, lambda: pfl2(SWQ))
    if cfg.pf1_at <= 10:
        acts.setdefault(cfg.pf1_at, []).append(pf1)
    if cfg.pfc1:
        acts.setdefault(10, []).append(lambda: pfc(SW1))
    layernorm(acts)
    a("s_cmp_eq_u32 s63, 1")
    a("s_cbranch_scc1 L_loader")

    QR, SB, WF, FA, OA, KV, HB = 8, 24, 56, 64, 128, 192, 228
    NKV = 3

    def att_init_ops():
        ops = ["v_mov_b32 %s, 0" % vr(OA + 16 * t + i) for t in range(4) for i in range(9)]
        ops2 = ["v_and_b32 v7, 27, v0", "v_cmp_eq_u32 vcc, 16, v7", "v_mov_b32 v7, 0x3f803f80", "v_cndmask_b32 v7, 0, v7, vcc"]
        ops2 += ["v_mov_b32 %s, v7" % vr(KV + 12 * b + 4 + q) for b in range(NKV) for q in range(8)]
        return ops, ops2

    def kvload(j):
        b = j % NKV
        bload(KV + 12 * b, 4, 252, SWS, "s82", 0, "sc1", ("kv", j))
        a("s_mov_b64 exec, %s" % sr(sVM, 2))
        bload(KV + 12 * b + 4, 4, 253, SWS, "s82", 0, "sc1", ("kv", j))
        bload(KV + 12 * b + 8, 4, 254, SWS, "s82", 0, "sc1", ("kv", j))
        a("s_mov_b64 exec, -1")
        a("s_add_u32 s82, s82, 2048")

    def att_loads(role):
        a("s_and_b32 s72, s60, 1")
        a("s_lshl_b32 s73, s72, 10")
        a("v_add_u32 v252, s73, v1")
        a("s_lshr_b32 s73, 0x400, s72")
        a("v_add_u32 v253, s73, v2")
        a("s_mul_i32 s73, s72, 0x600")
        a("s_sub_u32 s73, 0x600, s73")
        a("v_add_u32 v254, s73, v2")
        bload(QR, 4, 1, SWS, "s92", 0, "sc1", "q")
        kvload(0)
        for t in range(1, 4):
            bload(QR + 4 * t, 4, 1, SWS, sr(92 + t), 0, "sc1", "q")
        kvload(1)
        if cfg.kv3 and role == "a":
            kvload(2)

    def dump_addr():
        a("v_lshlrev_b32 v8, 2, v0")
        a("v_add_u32 v9, s99, v1")
        a("v_add_u32 v10, s99, v8")
        a("v_bfe_u32 v11, v0, 4, 1")
        a("v_lshl_add_u32 v11, v11, 10, v2")

    def dump(t):
        a("v_add_u32 v12, %s, v1" % sr(96 + t))
        a("v_add_u32 v13, %s, v8" % sr(96 + t))
        dsw("ds_write_b128", 12, OA + 16 * t, 4, t * 2304)
        dsw("ds_write_b128", 12, OA + 16 * t + 4, 4, t * 2304 + 1024)
        dsw("ds_write_b32", 13, OA + 16 * t + 8, 1, t * 2304 + 2048)

    deferred = []
    cfg_gap = {0: range(16), 1: (1, 10), 2: (0, 9), 3: (4, 10), 4: (1,), 5: (4,), 6: (15, 9)}[cfg.gap]

    def att_run(n, hooks):
        hooks.setdefault((n - 1, 0, 11), []).append(dump_addr)
        for t in range(3):
            hooks.setdefault((n - 1, t + 1, 12), []).append(lambda t=t: dump(t))
        vm.wait("q", ("kv", 0))
        mfma32(SB, KV, QR, None)
        for j in range(n):
            b = j % NKV
            for t in range(4):
                cur, oth = SB + 16 * (t & 1), SB + 16 * ((t + 1) & 1)
                for i in range(16):
                    a("v_exp_f32 %s, %s" % (vr(cur + i), vr(cur + i)))
                    if i in cfg_gap:
                        while deferred:
                            deferred.pop(0)()
                    if t == cfg.kvt and i == cfg.kvi and j + NKV - 1 < n and not (cfg.abl & 32 and j > 0) and not (cfg.kv3 and j == 0):
                        kvload(j + NKV - 1)
                    if i == 1 and (j, t) != (0, 0):
                        smf(OA + 16 * ((t + 3) & 3), KV + 12 * (b if t else (j - 1) % NKV) + 8, oth + 8)
                    if i == 4:
                        if t < 3:
                            mfma32(oth, KV + 12 * b, QR + 4 * (t + 1), None)
                        elif j + 1 < n:
                            vm.wait(("kv", j + 1))
                            mfma32(oth, KV + 12 * ((j + 1) % NKV), QR, None)
                    if i == 10:
                        smf(OA + 16 * t, KV + 12 * b + 4, cur)
                    for h in hooks.get((j, t, i), ()):
                        h()
        smf(OA + 48, KV + 12 * ((n - 1) % NKV) + 8, SB + 16 + 8)

    ACC = (24, 40, 56)
    WB, NBUF, LA = 72, 6, cfg.look
    XF, PK, XA = 128, 96, 16
    init1, init2 = att_init_ops()

    def item(g):
        return divmod(g % 96, 3)

    def reads(g):
        ks, sel = item(g)
        c, m = divmod(g, 12)
        so = slot_of(c)
        base, so = (XA, 0) if so < 0 else (8 + so // 49152, so % 49152)
        if g < 96 and sel == 0:
            dsr("ds_read_b128", XF + 4 * ks, 4, XA + (ks & 3), (ks >> 2) * 8192, g)
        trread(WB + 4 * (g % NBUF), base, so + m * 2048, 512, g)

    def pack(acc, pk):
        return ["v_cvt_pk_bf16_f32 %s, %s, %s" % (vr(pk + q), vr(acc + 2 * q), vr(acc + 2 * q + 1)) for q in range(8)]

    def st2(pk, va, base, delta, tag, imm=(0, 0), vb=None):
        def first():
            bstore(pk, 4, va, SWS, base, imm[0], "" if cfg.abl & 64 else "sc1", tag)

        def second():
            if delta:
                a("s_add_u32 s72, %s, %d" % (base, delta))
            bstore(pk + 4, 4, vb or va, SWS, "s72" if delta else base, imm[1], "" if cfg.abl & 64 else "sc1", tag)
        return [first, second]

    def relu2(acc):
        return (["v_max_f32 %s, 0, %s" % (vr(acc + i), vr(acc + i)) for i in range(16)]
                + ["v_mul_f32 %s, %s, %s" % (vr(acc + i), vr(acc + i), vr(acc + i)) for i in range(16)])

    def bias(seg):
        return lambda: (vm.wait("b1"), mfma32(ACC[seg], 112 + 4 * seg, 124, None))

    tagq = ["v_or_b32 %s, 1, %s" % (vr(PK + 4 * q), vr(PK + 4 * q)) for q in range(2)]
    qkv_epi = (["v_mul_f32 %s, 0x%x, %s" % (vr(ACC[0] + i), QSCALE, vr(ACC[0] + i)) for i in range(16)]
               + pack(ACC[0], PK) + tagq + [bias(0)] + st2(PK, 1, "s76", 0, "st", (0, 1024))
               + pack(ACC[1], PK + 8) + [bias(1)] + st2(PK + 8, 11, "s77", 0x20400, "st")
               + pack(ACC[2], PK) + [bias(2)] + st2(PK, 12, "s77", 0, "st", (1024, 1536), 14))
    sched = {100: ["v_subrev_u32 %s, %d, v8" % (vr(XA), L_RING)], 144: init1, 180: init2}
    shadow = []

    def run_shadow(budget):
        while shadow and budget > 0:
            op = shadow.pop(0)
            if isinstance(op, str):
                a(op)
                budget -= 1
            else:
                op()
                budget -= 3

    a("""
    s_lshl_b32 s85, s60, 14
    s_lshl_b32 s72, s67, 7
    s_add_u32 s85, s85, s72
    s_lshl_b32 s86, s60, 6
    s_lshl1_add_u32 s86, s66, s86
    s_lshl_b32 s86, s86, 10
    s_add_u32 s86, s86, %d
    s_lshl_b32 s87, s66, FROW
    s_add_u32 s87, s87, %d
    """ % (WS_HF, WS_FLAGH))
    vm.wait(("w", 0))
    a("s_waitcnt lgkmcnt(0)")
    a("s_add_u32 %s, %s, 0x%x" % (sr(sTAG), sr(sTAG), EPOCH_INC))
    if cfg.bst == 3:
        stamp(9, True)
    a("s_barrier")
    stamp(3)
    if cfg.bst == 3:
        stamp(10, True)
    for g in range(LA):
        reads(g)
    for g in range(192):
        ks, sel = item(g)
        if g == 96:
            stamp(4)
            shadow.extend(qkv_epi)
            run_shadow(1000)
            stamp(5)
            if cfg.split:
                a("s_barrier")
                for n in range(96, 96 + LA):
                    reads(n)
        lg.wait(g)
        x, w = XF + 4 * ks, WB + 4 * (g % NBUF)
        c = None if (g < 96 and ks == 0) else ACC[sel]
        if g < 96 and sel == 2:
            mfma32(ACC[sel], x, w, c)
        else:
            mfma32(ACC[sel], w, x, c)
        n = g + LA
        if n < 192 and not (cfg.split and g < 96 <= n):
            if n % 12 == 0 and n // 12 not in skip_bar:
                vm.wait(("w", n // 12))
                if n // 12 == cfg.flag_chunk:
                    vm.wait("st")
                a("s_barrier")
                if n // 12 == cfg.flag_chunk:
                    a("s_cmp_lg_u32 s60, 0")
                    a("s_cselect_b32 s79, 0x40000000, s79")
                    set_flag(7, "s79")
                    stamp(6)
            reads(n)
        if g == 40:
            for seg in range(3):
                a("buffer_load_ushort %s, v10, %s, s81 offen offset:%d" % (vr(112 + 4 * seg), srd(SB1), seg * 128))
                vm.push("b1")
        shadow.extend(sched.get(g, ()))
        run_shadow(3)
    run_shadow(1000)
    stamp(7)
    hmath, hst = [], []
    for seg in range(3):
        pk = PK + 8 * seg
        hmath.append(relu2(ACC[seg]) + pack(ACC[seg], pk))
        hst.append((["s_add_u32 s78, s78, 0x40000"] if seg == 1 else []) + st2(pk, 1, "s78" if seg < 2 else "s88", 0x10000, "hst"))
    for seg in range(cfg.hbar):
        shadow.extend(hmath[seg])
    run_shadow(1000)
    a("s_barrier")
    stamp(8)
    if cfg.bst == 4:
        stamp(1, True)
    a("s_setprio 2")
    for seg in range(cfg.hbar, cfg.hpre):
        shadow.extend(hmath[seg])
    run_shadow(1000)
    att_loads("a")
    hlist = [[hst[0][0]], [hst[0][1]], hst[1][:2], [hst[1][2]], [hst[2][0]], [hst[2][1]]]
    for seg in range(3):
        shadow.extend(hmath[seg] if seg >= max(cfg.hpre, cfg.hbar) else [])
        for n in (2 * seg, 2 * seg + 1):
            if n < cfg.hnow:
                shadow.extend(hlist[n])
    run_shadow(1000)
    stamp(9)


    def w2dma(i):
        if cfg.abl & 1:
            return
        a("s_add_u32 m0, s84, %d" % ((i & 3) * 2048))
        a("s_add_u32 s72, s85, %d" % (i * 65536))
        dma(4, SW2, "s72", 0, ("w2", i))
        a("s_add_u32 s72, s72, 7168")
        dma(4, SW2, "s72", 1024, ("w2", i))

    hreg = lambda i, tt: HB + 8 * (i % 3) + 4 * tt

    def hload(i):
        if cfg.abl & 1:
            return
        if i > 0:
            a("s_add_u32 s86, s86, 0x40000")
        for tt in range(2):
            bload(hreg(i, tt), 4, 1, SWS, "s86", tt * 1024, "sc1", ("h", i))

    def w2read(i, nt):
        if cfg.abl & 2:
            return
        vm.wait(("w2", i))
        trread(WF + 4 * nt, 5 + nt, (i & 3) * 2048, 1024, ("wf", i, nt))

    def fslot(f):
        i, m = divmod(f, 4)
        nt, tt = ((0, 0), (0, 1), (1, 1), (1, 0))[m]
        vm.wait(("h", i))
        lg.wait(("wf", i, nt))
        d = FA + 16 * (2 * tt + nt)
        if not cfg.abl & 4:
            mfma32(d, WF + 4 * nt, hreg(i, tt), None if i == 0 else d)
        if m == 1 and i + 1 < NS:
            deferred.append(lambda: w2read(i + 1, 0))
        if m == cfg.dmam and i + 4 < NS:
            deferred.append(lambda: w2dma(i + 4))
        if m == 3:
            if i + 1 < NS:
                deferred.append(lambda: w2read(i + 1, 1))
            if i + 3 < NS:
                deferred.append(lambda: hload(i + 3))

    def park(tt, nt):
        d = FA + 16 * (2 * tt + nt)
        for q in range(8):
            a("v_cvt_pk_bf16_f32 %s, %s, %s" % (vr(d + q), vr(d + 2 * q), vr(d + 2 * q + 1)))
        for q in range(2):
            dsw("ds_write_b128", 4, d + 4 * q, 4, tt * 32 * PART_STRIDE + nt * 64 + q * 32)

    def park_addr():
        a("v_and_b32 v4, 31, v0")
        a("v_mul_u32_u24 v4, %d, v4" % PART_STRIDE)
        a("v_lshrrev_b32 v5, 5, v0")
        a("v_lshl_add_u32 v4, v5, 4, v4")
        a("v_add_u32 v4, s84, v4")

    hooks = {}

    def hook(j, t, i, f):
        hooks.setdefault((j, t, i), []).append(f)

    n1 = cfg.n1
    for n in range(cfg.hnow, 6):
        tl = (n - cfg.hnow) * cfg.hgap + cfg.hoff
        hook(tl >> 2, tl & 3, 9, lambda n=n: (shadow.extend(hlist[n]), run_shadow(1000)))
    assert (5 - cfg.hnow) * cfg.hgap + cfg.hoff <= cfg.hflag < 4 * (n1 - 2)
    hook(cfg.hflag >> 2, cfg.hflag & 3, 12, lambda: (vm.wait("hst"), set_flag(7, "s80"), stamp(1) if cfg.hst else None))
    hook(n1 - 2, 0, 8, lambda: flag_load(7, cfg.fsh, "s87", "hf"))
    hook(n1 - 2, 3, 12, lambda: (vm.wait("hf"), stamp(2) if cfg.hst else None, check_flags("h", 7, cfg.fsh, "s87"), stamp(3) if cfg.hst else None))
    for i in range(4):
        hook(n1 - 3 + (i >> 1), 1 + (i & 1), 7, lambda i=i: w2dma(i))
    for i in range(3):
        hook(n1 - 1, i, 7, lambda i=i: hload(i))
    hook(n1 - 1, 3, 7, lambda: (w2read(0, 0), w2read(0, 1)))
    pat = [int(ch) for ch in str(cfg.fpat)]
    slots = [(j, t, pos) for j in range(n1, nA) for t in range(4) for pos in ((13,), (7, 13))[pat[t] - 1]]
    for f in range(4 * NS):
        hook(*slots[f], lambda f=f: fslot(f))
    tl = slots[4 * NS - 1][0] * 4 + slots[4 * NS - 1][1] + 1
    assert tl + 3 < 4 * nA
    hook(tl >> 2, tl & 3, 6, park_addr)
    for n, (nt, tt) in enumerate(((0, 0), (0, 1), (1, 1), (1, 0))):
        hook((tl + n) >> 2, (tl + n) & 3, 7, lambda tt=tt, nt=nt: park(tt, nt))
    if cfg.hst:
        for n in range(4):
            hook(n1 + 4 * n, 0, 1, lambda n=n: stamp(4 + n))
    if cfg.alow:
        tl = 4 * nA - cfg.alow
        hook(tl >> 2, tl & 3, 0, lambda: a("s_setprio 0"))
    if cfg.bst == 4:
        for n, j in enumerate(range(0, nA, 2)):
            hook(j, 0, 0, lambda n=n: stamp(2 + n, True))
    att_run(nA, hooks)
    vm.drain()
    a("s_branch L_att_done")

    a.label("L_loader")
    vm.items = []
    lg.items = []

    def b_setup():
        a("; waves 4-7: W1 DMA offsets v56/v57 (sixth tile out of range where the next group owns it), wo DMA offset v4, flagQ row s79")
        a("""
        v_mul_u32_u24 v56, 2752, v4
        v_add_u32 v56, v56, v6
        s_lshr_b32 s72, 0xf8, s61
        s_and_b32 s72, s72, 1
        s_lshl_b32 s72, s72, 23
        v_and_b32 v57, 64, v6
        v_mad_u32_u24 v57, v57, s72, v56
        v_bfe_u32 v6, v4, 1, 2
        v_lshlrev_b32 v6, 1, v6
        v_xor_b32 v6, v6, v5
        v_lshlrev_b32 v6, 4, v6
        v_lshl_add_u32 v4, v4, 10, v6
        v_min_u32 v5, %d, v0
        v_lshlrev_b32 v5, 7, v5
        s_lshr_b32 s79, s64, 1
        s_lshl_b32 s79, s79, 10
        s_add_u32 s79, s79, %d
        s_and_b32 s73, s60, 3
        s_lshl_b32 s72, s69, 6
        s_mul_i32 s80, s73, %d
        s_add_u32 s80, s80, s72
        """ % (cfg.pfn - 1, WS_FLAGQ, 16 * 2752))

        a("v_mov_b32 v3, 0xdddddddd")

    issued = cfg.lead
    setup1()
    state = {"issued": issued}

    def b_step(c):
        if c in skip_bar:
            return
        vm.wait(("w", c + 1 if c + 1 in skip_bar else c))
        if cfg.bst == 2:
            stamp(c, True)
        if cfg.bst == 3 and c == 0:
            stamp(9, True)
        a("s_barrier")
        if cfg.bst == 1:
            stamp(c, True)
        if c in (0, 8, 12, 15):
            stamp({0: 3, 8: 4, 12: 5, 15: 6}[c])
        if c == cfg.bload - 1:
            flag_load(7, 4, "s79", "qf")
        if c == cfg.bload:
            vm.wait("qf")
            check_flags("q", 7, 4, "s79")
            stamp(7)
            att_loads("b")
        lim = c + 2
        if c < 8:
            lim = min(lim, cfg.hold)
        if cfg.split and c == 8:
            lim = 10 + cfg.split - 1
        if cfg.xslot == 12 and c == 9:
            lim = 12
        if cfg.xslot == 11 and c in (8, 9):
            lim = c + 3
        if cfg.xslot and c >= 11:
            lim = c + cfg.xrun
        while state["issued"] < min(15, max(3, lim)):
            state["issued"] += 1
            issue_chunk(state["issued"])
        if c == 0:
            setup_pf()
        if c == 1:
            setup2()
        if cfg.pf1_at == 12 + c:
            pf1()
        if c == 2:
            setup3()
        if c == 3:
            b_setup()
        if c == cfg.l2w:
            pfl2(SW1)
        if c == cfg.pfe:
            a("; memory-side prefetch of w2 and wo")
            bload(32, 1, 31, SW2, "s100", 0, "", "pf")
            bload(32, 1, 31, SWO, "s100", 0, "", "pf")
        if c == 4:
            for op in init1:
                a(op)
        if c == 5:
            for op in init2:
                a(op)
        if c == 7:
            a("s_waitcnt lgkmcnt(0)")
            a("s_add_u32 %s, %s, 0x%x" % (sr(sTAG), sr(sTAG), EPOCH_INC))

    def b_att():
        a("s_barrier")
        stamp(8)
        a("s_setprio 1")
        if cfg.kv3:
            kvload(2)

    bhooks = {}
    for c in range(17):
        f = (lambda c=c: b_step(c)) if c < 16 else b_att
        if c <= cfg.bjoin:
            f()
        else:
            tl = (c - cfg.bjoin) * cfg.btile - 1
            bhooks[(tl >> 2, tl & 3, 13)] = [f]

    def wo_dma(lo, hi):
        if cfg.abl & 8:
            return
        if lo == 0:
            a("; wo tile -> LDS [0, 64K), a few rows per score tile")
            a("s_and_b32 s78, s60, 3")
            a("s_lshl_b32 s76, s78, 17")
            a("s_lshl_b32 s73, s67, 7")
            a("s_add_u32 s76, s76, s73")
            a("s_lshl_b32 s78, s78, 14")
        for i in range(lo, hi):
            a("s_add_u32 m0, s78, %d" % (i * 1024))
            a("s_add_u32 s73, s76, %d" % (i * 8192))
            dma(4, SWO, "s73", 0, "wo")

    nl = cfg.pfn
    batches = [(SW2, i) for i in range(-(-11 // nl))] + [(SWO, i) for i in range(-(-4 // nl))]

    def pf_late(n):
        if cfg.abl & 16:
            return
        if n == 0:
            a("; memory-side prefetch of w2 (in k order) and wo, a few lines per wave at a time")
            a("s_and_b32 s90, s60, 3")
            a("s_lshl2_add_u32 s90, s2, s90")
            a("s_mul_i32 s90, s90, %d" % (nl * 128))
        a("s_add_u32 s72, s90, %d" % (batches[n][1] * nl * 131072))
        bload(7, 1, 5, batches[n][0], "s72", 0, "", "pf")

    for n in range(len(batches) if cfg.pfe > 90 else 0):
        tl = cfg.pfl + n * cfg.pfg
        bhooks[(tl >> 2, tl & 3, 7)] = [lambda n=n: pf_late(n)]
    for n, lo in enumerate(range(0, 16, cfg.won)):
        bhooks[((cfg.wol + n) >> 2, (cfg.wol + n) & 3, 8)] = [lambda lo=lo: wo_dma(lo, lo + cfg.won)]
    if cfg.bst == 4:
        for j in range(nB):
            bhooks.setdefault((j, 0, 0), []).append(lambda j=j: stamp(2 + j, True))
    att_run(nB, bhooks)
    vm.drain()

    OW = OA + 48
    WOF, OFR, AC, G, Z, X, SR = 128, 24, 8, 64, 96, 104, 112
    a.label("L_att_done")
    stamp(10)
    if cfg.bst == 4:
        stamp(14, True)
    a("s_setprio 0")
    a("s_and_b32 s73, s60, 1")
    a("s_lshl_b32 s73, s73, 9")
    a("s_sub_u32 s76, s95, s73")
    a("""
    s_and_b32 s74, s60, 3
    s_lshr_b32 s75, s60, 2
    v_lshrrev_b32 v14, 3, v0
    v_and_b32 v7, 7, v0
    v_lshlrev_b32 v7, 4, v7
    v_lshl_add_u32 v14, v14, 10, v7
    s_lshl3_add_u32 s78, s66, s60
    s_lshl_b32 s78, s78, 13
    s_lshl_b32 s79, s67, 7
    s_add_u32 s78, s78, s79
    """)
    bload(60, 4, 7, SB2, "s79", 0, "", "xb")
    bload(56, 4, 14, SX, "s78", 0, "", "xb")
    lg.drain()
    a("s_barrier")
    for src in range(3):
        d = SB + 10 * src
        dsr("ds_read_b128", d, 4, 9, src * 2304, src)
        dsr("ds_read_b128", d + 4, 4, 9, src * 2304 + 1024, src)
        dsr("ds_read_b32", d + 8, 1, 10, src * 2304 + 2048, src)
    for src in range(3):
        lg.wait(src)
        for i in range(0, 8, 2):
            a("v_pk_add_f32 %s, %s, %s" % (vr(OW + i, 2), vr(OW + i, 2), vr(SB + 10 * src + i, 2)))
        a("v_add_f32 %s, %s, %s" % (vr(OW + 8), vr(OW + 8), vr(SB + 10 * src + 8)))
    a("v_pk_mul_f32 v[12:13], %s, 0 op_sel_hi:[1,0]" % vr(OW, 2))
    for i in range(2, 8, 2):
        a("v_pk_fma_f32 v[12:13], %s, 0, v[12:13] op_sel_hi:[1,0,1]" % vr(OW + i, 2))
    a("""
    v_add_f32 v12, v12, %s
    v_add_f32 v12, v12, v13
    v_cmp_nle_f32 vcc, 0x30800000, v12
    s_mov_b64 s[72:73], vcc
    v_cmp_nge_f32 vcc, 0x5d800000, v12
    s_or_b64 s[72:73], s[72:73], vcc
    """ % vr(OW + 8))
    a("s_branch L_slow" if cfg.force_slow else "s_cbranch_scc1 L_slow")
    a.label("L_norm")
    a("v_rcp_f32 v12, %s" % vr(OW + 8))
    for i in range(0, 8, 2):
        a("v_pk_mul_f32 %s, %s, v[12:13] op_sel_hi:[1,0]" % (vr(OW + i, 2), vr(OW + i, 2)))
    for q in range(4):
        a("v_cvt_pk_bf16_f32 %s, %s, %s" % (vr(16 + q), vr(OW + 2 * q), vr(OW + 2 * q + 1)))
    a("v_and_b32 v16, -2, v16")
    bstore(16, 4, 11, SWS, "s76", 0, "sc1", "ost")
    stamp(11)
    a("v_mov_b32 v2, v14")
    a("v_lshrrev_b32 v3, 3, v0")
    a("""
    v_mul_u32_u24 v4, %d, v3
    s_mul_i32 s72, s60, %d
    s_add_u32 s72, s72, %d
    v_add3_u32 v4, v4, v7, s72
    """ % (PART_STRIDE, 8 * PART_STRIDE, L_W2))
    for j in range(4):
        dsr("ds_read_b128", G + 4 * j, 4, 4, j * W2_REGION, "g")
    a("""
    v_bfe_u32 v4, v0, 2, 2
    v_bfe_u32 v5, v0, 4, 1
    v_lshl_add_u32 v4, v5, 2, v4
    v_lshrrev_b32 v5, 1, v4
    v_lshlrev_b32 v92, 7, v4
    v_lshl_add_u32 v92, v5, 5, v92
    v_lshrrev_b32 v6, 5, v0
    v_lshl_add_u32 v92, v6, 11, v92
    v_and_b32 v4, 3, v0
    v_lshl_add_u32 v92, v4, 3, v92
    s_lshl_b32 s72, s75, 15
    v_add_u32 v92, s72, v92
    v_xor_b32 v93, 32, v92
    v_xor_b32 v94, 64, v92
    v_xor_b32 v95, 0x60, v92
    s_barrier
    """)

    def oloads(first=0):
        for ks in range(first, 8):
            bload(OFR + 4 * ks, 4, 1, SWS, ("s76", "s77", "s80", "s81")[ks >> 1], (ks & 1) * 2048, "sc1", ("o", ks))

    fill = ("""
    s_lshl2_add_u32 s72, s66, s74
    s_lshr_b32 s76, s72, 1
    s_lshl1_add_u32 s76, s76, s75
    s_lshl_b32 s76, s76, 14
    s_and_b32 s72, s72, 1
    s_lshl_b32 s72, s72, 10
    s_add_u32 s76, s76, s72
    s_add_u32 s76, s76, %d
    s_add_u32 s77, s76, 0x1000
    s_add_u32 s80, s76, 0x2000
    s_add_u32 s81, s76, 0x3000
    v_mul_u32_u24 v3, %d, v3
    v_lshl_add_u32 v3, v7, 1, v3
    s_mul_i32 s72, s60, %d
    s_add_u32 s72, s72, %d
    v_add_u32 v3, s72, v3
    v_and_b32 v5, 15, v0
    v_mul_u32_u24 v5, %d, v5
    v_and_b32 v4, 48, v0
    s_mul_i32 s72, s60, %d
    s_add_u32 s72, s72, %d
    v_add3_u32 v5, v5, v4, s72
    s_mov_b32 s82, 0x3f80
    s_mov_b32 s83, 0x3f800000
    """ % (WS_QO, SUM_STRIDE, 8 * SUM_STRIDE, L_SUM, SUM_STRIDE, 16 * SUM_STRIDE, L_SUM)).strip().split("\n")
    gate = ["v_mov_b32 %s, 0" % vr(Z + i) for i in range(8)]
    gate.append(lambda: lg.wait("g"))
    for j in range(5):
        if j == 4:
            gate.append(lambda: vm.wait("xb"))
        for q in range(4):
            src = G + 4 * j + q if j < 4 else 60 + q
            gate.append("v_dot2c_f32_bf16 %s, s82, %s" % (vr(Z + 2 * q), vr(src)))
            gate.append("v_dot2c_f32_bf16 %s, s83, %s" % (vr(Z + 2 * q + 1), vr(src)))
    for q in range(4):
        gate.append("v_lshlrev_b32 %s, 16, %s" % (vr(X + 2 * q), vr(56 + q)))
        gate.append("v_and_b32 %s, s89, %s" % (vr(X + 1 + 2 * q), vr(56 + q)))
    gate += ["v_mul_f32 %s, 0x%x, %s" % (vr(G + i), NLOG2E, vr(Z + i)) for i in range(8)]
    gate += ["v_exp_f32 %s, %s" % (vr(G + i), vr(G + i)) for i in range(8)]
    gate += ["v_add_f32 %s, 1.0, %s" % (vr(G + i), vr(G + i)) for i in range(8)]
    gate += ["v_rcp_f32 %s, %s" % (vr(G + i), vr(G + i)) for i in range(8)]
    gate += ["v_mul_f32 %s, %s, %s" % (vr(Z + i), vr(Z + i), vr(G + i)) for i in range(8)]

    def wo_reads(oat, per):
        for ks in range(8):
            for ct in range(4):
                trread(WOF + (ks * 4 + ct) * 4, 92 + ct, ks * 4096, 1024, ("wo", ks))
                run_shadow(per)
            if ks == oat:
                run_shadow(1000)
                vm.wait("ost")
                oloads()

    vm_t, lg_t = list(vm.items), list(lg.items)
    a("s_cmp_eq_u32 s63, 1")
    a("s_cbranch_scc1 L_tail_b")
    shadow.extend(fill)
    wo_reads(7, 1)
    shadow.extend(gate)
    run_shadow(1000)
    a("s_branch L_tail_j")
    a.label("L_tail_b")
    vm.items, lg.items = vm_t, lg_t
    shadow.extend(fill + gate)
    run_shadow(1000)
    wo_reads(cfg.oat, 0)
    a.label("L_tail_j")
    stamp(12)
    a("s_mov_b32 s73, 0")
    lg.drain()
    for ks in range(8):
        a.label("L_wo_%d" % ks)
        vm.wait(("o", ks))
        a("v_and_b32 v6, 1, %s" % vr(OFR + 4 * ks))
        a("v_cmp_ne_u32 vcc, 0, v6")
        a("s_cbranch_vccnz L_oretry_%d" % ks)
        a.label("L_ogo_%d" % ks)
        for ct in range(4):
            d = AC + 4 * ct
            mfma16(d, WOF + (ks * 4 + ct) * 4, OFR + 4 * ks, None if ks == 0 else d)
    stamp(13)
    for ct in range(4):
        dsw("ds_write_b128", 5, AC + 4 * ct, 4, ct * 64)
    lg.drain()
    a("s_barrier")
    stamp(14)
    dsr("ds_read_b128", SR, 4, 3, 0, 0)
    dsr("ds_read_b128", SR + 8, 4, 3, SUM_SIZE, 0)
    dsr("ds_read_b128", SR + 4, 4, 3, 16, 1)
    dsr("ds_read_b128", SR + 12, 4, 3, SUM_SIZE + 16, 1)
    for h in range(2):
        lg.wait(h)
        for i in range(4 * h, 4 * h + 4, 2):
            a("v_pk_add_f32 %s, %s, %s" % (vr(SR + i, 2), vr(SR + i, 2), vr(SR + 8 + i, 2)))
        for i in range(4 * h, 4 * h + 4, 2):
            a("v_pk_fma_f32 %s, %s, %s, %s" % (vr(SR + i, 2), vr(SR + i, 2), vr(Z + i, 2), vr(X + i, 2)))
        for q in range(2 * h, 2 * h + 2):
            a("v_cvt_pk_bf16_f32 %s, %s, %s" % (vr(G + q), vr(SR + 2 * q), vr(SR + 2 * q + 1)))
    bstore(G, 4, 2, SOUT, "s78", 0, ("", "sc1", "nt", "sc0 sc1", "sc0 sc1 nt")[cfg.omod])
    a("s_or_b32 s72, s2, s60")
    a("s_cmp_lg_u32 s72, 0")
    a("s_cbranch_scc1 L_noepoch")
    set_flag(7, "0")
    a.label("L_noepoch")
    if cfg.stamps:
        a("s_waitcnt vmcnt(0)")
        stamp(15)
        if cfg.probe is not None:
            a("s_sub_u32 s72, %s, s4" % sr(sSTAMP + cfg.probe))
            if cfg.stamps == 2:
                a("s_lshr_b32 s72, s72, 3")
            else:
                a("s_lshl_b32 s72, s72, %d" % cfg.probesh)
            a("s_cmp_lg_u32 s2, %d" % cfg.probewg)
            a("s_cselect_b32 s72, 0, s72")
            a("s_cmp_lg_u32 s60, %d" % cfg.probew)
            a("s_cselect_b32 s72, 0, s72")
            a("s_memrealtime s[22:23]")
            a("s_waitcnt lgkmcnt(0)")
            a("s_mov_b32 s73, s22")
            a.label("L_probe")
            a("s_memrealtime s[22:23]")
            a("s_waitcnt lgkmcnt(0)")
            a("s_sub_u32 s22, s22, s73")
            a("s_cmp_lt_u32 s22, s72")
            a("s_cbranch_scc1 L_probe")
        a("s_lshl3_add_u32 s72, s2, s60")
        a("s_lshl_b32 s72, s72, 6")
        a("s_add_u32 s72, s72, %d" % WS_STAMP)
        for i in range(16):
            a("v_mov_b32 %s, %s" % (vr(80 + i), sr(sSTAMP + i)))
        a("s_mov_b64 exec, 1")
        for i in range(4):
            bstore(80 + 4 * i, 4, 1, SWS, "s72", 16 * i)
    a.label("L_end")
    a("s_endpgm")

    for ks in range(8):
        a.label("L_oretry_%d" % ks)
        a("s_add_u32 s73, s73, 1")
        a("s_cmp_ge_u32 s73, %d" % SPIN_MAX)
        a("s_cbranch_scc1 L_ogo_%d" % ks)
        a("s_waitcnt vmcnt(0)")
        oloads(ks)
        a("s_branch L_wo_%d" % ks)

    for tag, vt, lanes, soff in stubs:
        a.label("L_poll_" + tag)
        a("s_mov_b32 s73, 0")
        a.label("L_poll2_" + tag)
        a("s_sleep %d" % cfg.sleep)
        flag_load(vt, lanes, soff, None)
        a("s_add_u32 s73, s73, 1")
        a("s_waitcnt vmcnt(0)")
        a("s_cmp_ge_u32 s73, %d" % SPIN_MAX)
        a("s_cbranch_scc1 L_polled_" + tag)
        a("v_cmp_ne_u32 vcc, %s, %s" % (sr(sTAG), vr(vt)))
        a("s_cbranch_vccnz L_poll2_" + tag)
        a("s_branch L_polled_" + tag)

    a.label("L_slow")
    CN = SB + 16
    a("s_waitcnt vmcnt(0)")
    a("v_mov_b32 v13, 0xff800000")
    a("s_mov_b32 s82, s83")
    a("s_mov_b32 s81, 64")
    a.label("L_slow1")
    bload(KV, 4, 252, SWS, "s82", 0, "sc1")
    a("s_add_u32 s82, s82, 2048")
    a("s_waitcnt vmcnt(0)")
    mfma32(SB, KV, QR + 12, None)
    for i in range(0, 16, 2):
        a("v_max3_f32 v13, v13, %s, %s" % (vr(SB + i), vr(SB + i + 1)))
    a("s_sub_u32 s81, s81, 1")
    a("s_cmp_lg_u32 s81, 0")
    a("s_cbranch_scc1 L_slow1")
    a("v_mov_b32 v15, v13")
    a("v_permlane32_swap_b32 v15, v13")
    a("v_max_f32 v13, v15, v13")
    for i in range(16):
        a("v_sub_f32 %s, 0, v13" % vr(CN + i))
        a("v_mov_b32 %s, 0" % vr(OW + i))
    a("s_mov_b32 s82, s83")
    a("s_mov_b32 s81, 64")
    a.label("L_slow2")
    kvload(0)
    a("s_waitcnt vmcnt(0)")
    mfma32(SB, KV, QR + 12, CN)
    for i in range(16):
        a("v_exp_f32 %s, %s" % (vr(SB + i), vr(SB + i)))
    smf(OW, KV + 4, SB)
    smf(OW, KV + 8, SB + 8)
    a("s_sub_u32 s81, s81, 1")
    a("s_cmp_lg_u32 s81, 0")
    a("s_cbranch_scc1 L_slow2")
    a("s_branch L_norm")
    a.label("L_code_end")
    a("s_endpgm")

    added = a.fix()
    return a.text().replace('FSH', str(cfg.fsh)).replace('FROW', str(cfg.fsh + 5)), added


HEADER = """; Kernarg layout for this problem (88 bytes, ptrs only, base s[0:1]):
; @launch grid=(256,1,1) block=(512,1,1) lds=163840
.amdgcn_target "amdgcn-amd-amdhsa--gfx950"
.text
.globl {k}
.p2align 8
.type {k},@function
{k}:
"""

FOOTER = """.section .rodata,"a"
.p2align 6
.amdhsa_kernel {k}
  .amdhsa_next_free_vgpr 256
  .amdhsa_next_free_sgpr 102
  .amdhsa_accum_offset 256
  .amdhsa_group_segment_fixed_size 0
  .amdhsa_kernarg_size 88
  .amdhsa_user_sgpr_count 2
  .amdhsa_user_sgpr_kernarg_segment_ptr 1
  .amdhsa_system_sgpr_workgroup_id_x 1
.end_amdhsa_kernel
"""


def build(**kw):
    cfg = Cfg()
    for k, v in kw.items():
        setattr(cfg, k, v)
    body, added = gen(cfg)
    return HEADER.format(k=KERNEL) + body + FOOTER.format(k=KERNEL), added


if __name__ == "__main__":
    out = sys.argv[1] if len(sys.argv) > 1 else "cdna_kernels/%s.s" % NAME
    kw = {}
    for arg in sys.argv[2:]:
        k, v = arg.split("=")
        kw[k] = int(v)
    text, added = build(**kw)
    open(out, "w").write(text)
    print("wrote", out, "lines", text.count("\n"), "nops added", added)
```

```python
import sys
import os
sys.path.insert(0, os.path.dirname(os.path.abspath(__file__)))
from asmlib import Asm, vr, sr

NAME = "recurrent_scan__softmax_full_mha__dense_activation_squared_relu__prompt"
KERNEL = NAME + "_kernel"

WS_FLAGQ = 0x1200
WS_FLAGH = 0x60000
WS_STAMP = 0x10000
WS_QO = 0x100000
WS_KV = 0x300000
WS_HF = 0x700000
WS_END = WS_HF + 86 * 65536
EPOCH_INC = 0x9E3779B9
SPIN_MAX = 1 << 18

L_RING = 65536
L_OPART = 65536
L_W2 = L_OPART + 55296
W2_REGION = 10240
PART_STRIDE = 144
SUM_STRIDE = 272
SUM_SIZE = 64 * SUM_STRIDE
L_SUM = L_OPART

SX, SWQ, SWO, SW1, SB1, SW2, SB2, SOUT, SWS = 24, 28, 32, 36, 40, 44, 48, 52, 56
sW, sCG, sTB, sRW, sP, sQB, sTBF, sCB, sTAG, sCT0 = 60, 61, 62, 63, 64, 65, 66, 67, 68, 69
sVM = 70
sSTAMP = 4

QSCALE = 0x3EB8AA3B
NLOG2E = 0xBFB8AA3B
NS = 22


class Cfg:
    abl = 0
    bst = 0
    xslot = 0
    xrun = 2
    n1 = 8
    nA = 22
    gap = 1
    kvt = 0
    kvi = 4
    dmam = 2
    fpat = 2221
    pf1_at = 12
    pfc_at = 99
    pfc1 = 0
    w2_at = 10
    pfl = 9
    wol = 15
    won = 1
    stamps = 0
    force_slow = 0
    flag_chunk = 10
    lead = 2
    defer = 0
    look = 5
    pfq_at = 99
    bload = 15
    bjoin = 16
    btile = 2
    sleep = 6
    w0_at = 7
    w1_at = 10
    hpre = 2
    hbar = 0
    hnow = 2
    hgap = 2
    hoff = 0
    kv3 = 1
    fsh = 4
    pfe = 99
    l2q = 99
    rot = 1
    split = 1
    pcs = 0
    hold = 99
    l2w = 99
    pfn = 11
    alow = 0
    pfg = 1
    hflag = 11
    probe = None
    omod = 1
    oat = 4
    probewg = 100
    probew = 0
    probesh = 4
    hst = 0


def srd(s):
    return sr(s, 4)


class Queue:
    def __init__(self, a, name, maxn):
        self.a, self.name, self.maxn, self.items = a, name, maxn, []

    def push(self, tag):
        self.items.append(tag)

    def wait(self, *tags):
        last = max((i for i, t in enumerate(self.items) if t in tags), default=-1)
        if last < 0:
            return
        n = len(self.items) - 1 - last
        self.a("s_waitcnt %s(%d)" % (self.name, min(n, self.maxn)))
        self.items = self.items[last + 1:]

    def drain(self):
        self.a("s_waitcnt %s(0)" % self.name)
        self.items = []


def gen(cfg):
    a = Asm()
    nA = cfg.nA
    nB = 32 - nA
    vm = Queue(a, "vmcnt", 63)
    lg = Queue(a, "lgkmcnt", 15)

    def stamp(i, force=False):
        if cfg.bst and not force and i != 0:
            return
        if cfg.stamps and (cfg.probe is None or i in (0, cfg.probe)):
            a("%s s[22:23]" % ("s_memtime" if cfg.stamps == 2 else "s_memrealtime"))
            a("s_waitcnt lgkmcnt(0)")
            a("s_mov_b32 %s, s22" % sr(sSTAMP + i))

    def mfma32(d, x, y, c):
        a("v_mfma_f32_32x32x16_bf16 %s, %s, %s, %s" % (vr(d, 16), vr(x, 4), vr(y, 4), "0" if c is None else vr(c, 16)))

    def mfma16(d, x, y, c):
        a("v_mfma_f32_16x16x32_bf16 %s, %s, %s, %s" % (vr(d, 4), vr(x, 4), vr(y, 4), "0" if c is None else vr(c, 4)))

    def smf(d, x, y):
        a("v_smfmac_f32_32x32x32_bf16 %s, %s, %s, v3" % (vr(d, 16), vr(x, 4), vr(y, 8)))

    def bload(d, n, va, s, so, off=0, mod="", tag=None):
        op = {1: "dword", 2: "dwordx2", 4: "dwordx4"}[n]
        a("buffer_load_%s %s, %s, %s, %s offen offset:%d %s" % (op, vr(d, n), vr(va), srd(s), so, off, mod))
        vm.push(tag)

    def bstore(d, n, va, s, so, off=0, mod="", tag=None):
        op = {1: "dword", 2: "dwordx2", 4: "dwordx4"}[n]
        a("buffer_store_%s %s, %s, %s, %s offen offset:%d %s" % (op, vr(d, n), vr(va), srd(s), so, off, mod))
        vm.push(tag)

    def dma(va, s, so, off=0, tag=None):
        a("buffer_load_dwordx4 %s, %s, %s offen offset:%d lds" % (vr(va), srd(s), so, off))
        vm.push(tag)

    def dsr(op, d, n, va, off, tag=None):
        a("%s %s, %s offset:%d" % (op, vr(d, n), vr(va), off))
        lg.push(tag)

    def dsw(op, va, d, n, off, tag=None):
        a("%s %s, %s offset:%d" % (op, vr(va), vr(d, n), off))
        lg.push(tag)

    def trread(d, va, off, second, tag=None):
        dsr("ds_read_b64_tr_b16", d, 2, va, off, tag)
        dsr("ds_read_b64_tr_b16", d + 2, 2, va, off + second, tag)

    def set_flag(vt, soff):
        a("v_mov_b32 %s, %s" % (vr(vt), sr(sTAG)))
        a("s_mov_b64 exec, 1")
        bstore(vt, 1, 1, SWS, soff, 0, "sc0 sc1")
        a("s_mov_b64 exec, -1")

    stubs = []

    def check_flags(tag, vt, lanes, soff):
        a("v_cmp_ne_u32 vcc, %s, %s" % (sr(sTAG), vr(vt)))
        a("s_cbranch_vccnz L_poll_" + tag)
        a.label("L_polled_" + tag)
        stubs.append((tag, vt, lanes, soff))

    def flag_load(vt, shift, soff, tag):
        a("v_and_b32 %s, 31, v0" % vr(vt))
        a("v_lshlrev_b32 %s, %d, %s" % (vr(vt), shift, vr(vt)))
        bload(vt, 1, vt, SWS, soff, 0, "sc0 sc1", tag)

    sizes = {SX: 2048 * 1024, SWQ: 512 * 3072, SWS: WS_END, SW1: 512 * 2752, SB1: 2752,
             SWO: 512 * 1024, SW2: 1376 * 1024, SB2: 1024, SOUT: 2048 * 1024}
    RAW = 128

    def xloads():
        for j in range(8):
            bload(RAW + j * 4, 4, 14, SX, "s101", j * 128, "", ("x", j))

    stamp(0)
    a("""
    s_load_dwordx2 s[24:25], s[0:1], 0
    s_getpc_b64 s[72:73]
    L_pc:
    s_cmpk_ge_u32 s2, 256
    s_cbranch_scc1 L_end
    s_lshr_b32 s74, s2, 3
    s_lshl_b32 s74, s74, 11
    v_lshrrev_b32 v8, 5, v0
    v_lshl_add_u32 v8, v8, 7, s74
    v_min_u32 v8, L_code_end-L_pc, v8
    v_mov_b32 v9, 0
    v_lshl_add_u64 v[8:9], v[8:9], 0, s[72:73]
    global_load_dword v7, v[8:9], off
    s_lshl_b32 s72, s2, 4
    s_and_b32 s72, s72, 0x180
    v_add_u32 v4, s72, v0
    v_bfe_u32 v4, v4, 3, 6
    v_and_b32 v5, 7, v0
    v_lshlrev_b32 v14, 10, v4
    v_lshl_add_u32 v14, v5, 4, v14
    s_lshr_b32 s67, s2, 5
    s_and_b32 s73, s2, 6
    s_lshl2_add_u32 s62, s73, s67
    s_lshl_b32 s101, s62, 16
    s_mov_b32 s26, %d
    s_mov_b32 s27, 0x20000
    v_bfe_u32 v24, v4, 1, 3
    v_xor_b32 v24, v24, v5
    v_lshlrev_b32 v15, 7, v4
    v_lshl_add_u32 v15, v24, 4, v15
    v_readfirstlane_b32 s60, v0
    v_and_b32 v0, 63, v0
    v_mov_b32 v24, 0
    v_mov_b32 v25, 0
    s_lshr_b32 s60, s60, 6
    s_cmp_ge_u32 s60, 4
    s_waitcnt lgkmcnt(0)
    """ % sizes[SX])
    vm.push("pf")
    if cfg.bst == 3:
        stamp(1, True)
    xloads()
    if cfg.bst == 3:
        stamp(2, True)
    if cfg.stamps:
        for i in range(3 if cfg.bst == 3 else 1, 16):
            a("s_mov_b32 %s, s4" % sr(sSTAMP + i))
    a("s_mov_b32 s63, 1")
    a("s_cbranch_scc1 L_ln")
    a("s_mov_b32 s63, 0")

    def setup1():
        for s, off in ((SWQ, 8), (SWS, 80), (SW1, 32), (SB1, 40), (SWO, 16), (SW2, 48), (SB2, 56), (SOUT, 64)):
            a("s_load_dwordx2 %s, s[0:1], %d" % (sr(s, 2), off))
        a("""
        s_mov_b32 s30, %d
        s_mov_b32 s31, 0x20000
        s_bfe_u32 s72, s2, 0x20003
        s_and_b32 s73, s2, 1
        s_lshl2_add_u32 s61, s73, s72
        s_and_b32 s74, s60, 3
        s_lshl_b32 s72, s61, 7
        s_mul_i32 s85, s74, %d
        s_add_u32 s85, s85, s72
        s_mul_i32 s87, s74, 6144
        s_add_u32 s87, s87, %d
        v_lshrrev_b32 v4, 3, v0
        v_bfe_u32 v6, v4, 1, 1
        v_lshlrev_b32 v6, 2, v6
        v_xor_b32 v6, v6, v5
        v_lshlrev_b32 v6, 4, v6
        v_mul_u32_u24 v13, 3072, v4
        v_add_u32 v13, v13, v6
        s_waitcnt lgkmcnt(0)
        """ % (sizes[SWQ], 16 * 3072, L_RING))

    def setup_pf():
        for s in (SW1, SWO, SW2):
            a("s_mov_b32 %s, %d" % (sr(s + 2), sizes[s]))
            a("s_mov_b32 %s, 0x20000" % sr(s + 3))
        a("""
        s_and_b32 s73, s60, 3
        s_lshl2_add_u32 s100, s2, s73
        s_mul_i32 s100, s100, 1536
        v_min_u32 v31, 11, v0
        v_lshlrev_b32 v31, 7, v31
        """)

    def setup2():
        a("s_load_dword %s, %s, 0" % (sr(sTAG), sr(SWS, 2)))
        for s in (SWS, SB1, SB2, SOUT):
            a("s_mov_b32 %s, %d" % (sr(s + 2), sizes[s]))
            a("s_mov_b32 %s, 0x20000" % sr(s + 3))
        a("""
        s_bfe_u32 s72, s2, 0x20003
        s_and_b32 s73, s2, 7
        s_lshl2_add_u32 s66, s73, s72
        s_and_b32 s72, s72, 1
        s_lshl1_add_u32 s64, s73, s72
        s_lshr_b32 s65, s2, 4
        s_mul_i32 s69, s61, 6
        s_mul_i32 s73, s61, 5
        s_add_u32 s73, s73, 3
        s_min_u32 s69, s69, s73
        s_mov_b32 s70, 0xffff
        s_mov_b32 s71, 0xffff
        v_lshlrev_b32 v1, 4, v0
        v_and_b32 v2, 15, v0
        v_lshrrev_b32 v3, 5, v0
        v_lshl_add_u32 v2, v3, 4, v2
        v_lshlrev_b32 v2, 4, v2
        """)

    def setup3():
        a("; attention offsets: s82 = next K/V tile, s83 = head base, s92-s95 = Q tiles, s96-s99 = O partial slots")
        a("""
        s_and_b32 s74, s60, 1
        s_lshr_b32 s75, s60, 1
        s_lshl1_add_u32 s72, s64, s74
        s_lshl_b32 s83, s72, 17
        s_add_u32 s83, s83, %d
        s_and_b32 s73, s75, 1
        s_lshl_b32 s73, s73, 16
        s_add_u32 s82, s83, s73
        s_lshl_b32 s72, s65, 6
        s_add_u32 s72, s72, s64
        s_lshl1_add_u32 s72, s72, s74
        s_lshl_b32 s72, s72, 10
        s_add_u32 s72, s72, %d
        s_mul_i32 s84, s74, %d
        s_add_u32 s84, s84, %d
        """ % (WS_KV, WS_QO, 12 * 2304, L_OPART))
        for t in range(4):
            a("s_xor_b32 s73, s75, %d" % (t ^ 3))
            a("s_mul_i32 %s, s73, %d" % (sr(96 + t), 3 * 2304))
            a("s_lshl_b32 s73, s73, 15")
            a("s_add_u32 %s, s72, s73" % sr(92 + t))
            a("s_add_u32 %s, %s, s84" % (sr(96 + t), sr(96 + t)))

    setup1()
    setup_pf()
    setup2()
    setup3()
    a("""
    s_add_u32 s82, s82, %d
    v_and_b32 v8, 0x33, v0
    v_and_b32 v9, 4, v0
    v_lshl_or_b32 v8, v9, 1, v8
    v_and_b32 v9, 8, v0
    v_lshrrev_b32 v9, 1, v9
    v_or_b32 v8, v8, v9
    v_lshlrev_b32 v11, 4, v8
    v_bfe_u32 v9, v0, 4, 1
    v_mul_u32_u24 v12, 0x1fe00, v9
    v_add_u32 v12, v12, v2
    v_mul_u32_u24 v14, 0x1fa00, v9
    v_add_u32 v14, v14, v2
    v_lshl_add_u32 v4, v4, 10, v6
    v_bfe_u32 v10, v0, 2, 2
    v_lshlrev_b32 v5, 5, v9
    v_lshl_add_u32 v5, v10, 7, v5
    v_and_b32 v9, 3, v0
    v_lshl_add_u32 v5, v9, 3, v5
    v_lshrrev_b32 v10, 1, v10
    v_lshl_add_u32 v8, v3, 10, v5
    v_xor_b32 v9, s75, v10
    v_lshl_add_u32 v8, v9, 6, v8
    v_add_u32 v8, %d, v8
    v_add_u32 v9, %d, v8
    v_lshl_add_u32 v5, v3, 9, v5
    v_lshl_add_u32 v5, v10, 6, v5
    v_lshrrev_b32 v10, 1, v0
    v_xor_b32 v10, v10, v0
    v_and_b32 v10, 1, v10
    v_mul_u32_u24 v10, 24, v10
    v_xor_b32 v5, v5, v10
    s_mul_i32 s84, s60, %d
    s_add_u32 s84, s84, %d
    v_add_u32 v5, s84, v5
    v_xor_b32 v6, 64, v5
    v_and_b32 v10, 31, v0
    s_lshl_b32 s72, s74, 12
    v_bfe_u32 v16, v10, 1, 3
    v_xor_b32 v16, v16, v3
    v_lshlrev_b32 v16, 4, v16
    v_lshl_add_u32 v16, v10, 7, v16
    v_add_u32 v16, s72, v16
    v_xor_b32 v17, 32, v16
    v_xor_b32 v18, 64, v16
    v_xor_b32 v19, 0x60, v16
    v_lshlrev_b32 v10, 1, v10
    v_lshl_add_u32 v10, v3, 20, v10
    """ % (nB * 2048, L_RING, 2 * 24576, W2_REGION, L_W2))
    for seg in range(3):
        for q in range(1, 4):
            a("v_mov_b32 %s, 0" % vr(112 + 4 * seg + q))
    for q in range(4):
        a("v_mov_b32 %s, 0x3f803f80" % vr(124 + q))
    a("v_mov_b32 v3, 0xdddddddd")
    a("""
    s_lshl1_add_u32 s72, s62, s74
    s_lshl1_add_u32 s73, s61, s75
    s_lshl_b32 s76, s73, 7
    s_add_u32 s76, s76, s72
    s_lshl_b32 s77, s76, 11
    s_lshl4_add_u32 s76, s72, s73
    s_lshl_b32 s76, s76, 11
    s_add_u32 s76, s76, %d
    s_add_u32 s77, s77, %d
    s_add_u32 s81, s69, s75
    s_lshl_b32 s78, s81, 7
    s_add_u32 s78, s78, s72
    s_lshl_b32 s78, s78, 10
    s_add_u32 s78, s78, %d
    s_lshl_b32 s79, s61, 6
    s_add_u32 s79, s79, s62
    s_lshl_b32 s79, s79, 4
    s_add_u32 s79, s79, %d
    s_lshl_b32 s80, s62, 3
    s_add_u32 s80, s80, s61
    s_lshl2_add_u32 s80, s80, s60
    s_lshl_b32 s80, s80, FSH
    s_add_u32 s80, s80, %d
    s_mul_i32 s73, s61, s75
    s_add_u32 s88, s78, %d
    s_cmp_lt_u32 s73, 3
    s_cselect_b32 s88, s88, 0x40000000
    s_lshl_b32 s81, s81, 6
    """ % (WS_QO, WS_KV, WS_HF, WS_FLAGQ, WS_FLAGH, 8 * 65536))

    def slot_of(c):
        if not cfg.xslot or c < cfg.xslot:
            return (c & 3) * 24576
        return -L_RING if c == cfg.xslot else ((c - 1) & 3) * 24576

    skip_bar = (10,) if cfg.xslot > 8 else ()

    def issue_chunk(c, ms=range(6)):
        if cfg.rot:
            a("s_xor_b32 s73, s67, %d" % (c & 7))
            a("s_mul_i32 s73, s73, %d" % (64 * (3072 if c < 8 else 2752)))
            a("s_add_u32 s73, s73, %s" % ("s85" if c < 8 else "s80"))
        for m in ms:
            blk, seg = divmod(m, 3)
            a("s_add_u32 m0, s87, %d" % (slot_of(c) + seg * 2048 + blk * 1024))
            if c < 8:
                a("s_add_u32 s72, %s, %d" % (("s73", blk * 8 * 3072 + seg * 1024) if cfg.rot else ("s85", (c * 64 + blk * 8) * 3072 + seg * 1024)))
                dma(13, SWQ, "s72", 0, ("w", c))
            else:
                a("s_add_u32 s72, %s, %d" % (("s73", blk * 8 * 2752 + seg * 128) if cfg.rot else ("s80", ((c - 8) * 64 + blk * 8) * 2752 + seg * 128)))
                dma(57 if seg == 2 else 56, SW1, "s72", 0, ("w", c))

    def layernorm(acts):
        def act(p):
            if acts.get(p):
                assert p >= 7
                a("s_cmp_eq_u32 s63, 1")
                a("s_cbranch_scc1 L_ln_%d" % p)
                for f in acts[p]:
                    f()
                a.label("L_ln_%d" % p)
        a.label("L_ln")
        a("v_mov_b32 v30, 0x3f803f80")
        a("s_mov_b32 s89, 0xffff0000")
        if cfg.rot:
            a("; K chunks are visited in the order c ^ (row block & 7): workgroups sharing weights fetch different chunks first")
            a("s_lshl_b32 s72, s67, 13")
            a("v_or_b32 v15, s72, v15")

        def xwrite(j):
            if cfg.rot:
                a("v_xor_b32 v23, 0x%x, v15" % (j << 13))
                a("ds_write_b128 v23, %s" % vr(RAW + j * 4, 4))
            else:
                a("ds_write_b128 v15, %s offset:%d" % (vr(RAW + j * 4, 4), j * 8192))

        for j in range(8):
            if cfg.bst == 3 and j == 0:
                stamp(3, True)
            vm.wait(("x", j))
            if cfg.bst == 3 and j in (0, 3, 7):
                stamp({0: 4, 3: 5, 7: 6}[j], True)
            act(j)
            for q in range(4):
                x = RAW + j * 4 + q
                a("v_dot2c_f32_bf16 v24, v30, %s" % vr(x))
                a("v_dot2c_f32_bf16 v25, %s, %s" % (vr(x), vr(x)))
        act(8)
        stamp(1)
        for ctl in ("quad_perm:[1,0,3,2]", "quad_perm:[2,3,0,1]", "row_half_mirror"):
            for r in (24, 25):
                a("v_add_f32_dpp %s, %s, %s %s row_mask:0xf bank_mask:0xf" % (vr(r), vr(r), vr(r), ctl))
        a("""
        v_mul_f32 v24, 0x3b000000, v24
        v_mul_f32 v25, 0x3b000000, v25
        v_fma_f32 v25, -v24, v24, v25
        v_max_f32 v25, 0, v25
        v_cvt_pk_bf16_f32 v24, v24, v25
        v_and_b32 v25, s89, v24
        v_add_f32 v25, 0x3727c5ac, v25
        v_cvt_pk_bf16_f32 v25, v25, v25
        v_and_b32 v25, s89, v25
        v_sqrt_f32 v25, v25
        v_lshlrev_b32 v24, 16, v24
        v_cvt_pk_bf16_f32 v25, v25, v25
        v_and_b32 v25, s89, v25
        v_rcp_f32 v26, v25
        v_mul_f32_e64 v28, -v24, v26
        """)
        for j in range(8):
            x = RAW + j * 4
            t = 192 + (j & 1) * 8
            for q in range(4):
                a("v_lshlrev_b32 %s, 16, %s" % (vr(t + 2 * q), vr(x + q)))
                a("v_and_b32 %s, s89, %s" % (vr(t + 2 * q + 1), vr(x + q)))
            for q in range(4):
                a("v_pk_fma_f32 %s, %s, v[26:27], v[28:29] op_sel_hi:[1,0,0]" % (vr(t + 2 * q, 2), vr(t + 2 * q, 2)))
            for q in range(4):
                a("v_cvt_pk_bf16_f32 %s, %s, %s" % (vr(x + q), vr(t + 2 * q), vr(t + 2 * q + 1)))
            if not cfg.defer:
                xwrite(j)
        if cfg.bst == 3:
            stamp(7, True)
        act(9)
        if cfg.defer:
            for j in range(8):
                xwrite(j)
        act(10)
        stamp(2)
        if cfg.bst == 3:
            stamp(8, True)

    def pfq():
        a("; memory-side prefetch of Wqkv")
        bload(7, 1, 31, SWQ, "s100", 0, "", "pf")

    def pfl2(which):
        a("; the die's workgroups pull their half of the weight columns into L2 together, four rows per wave")
        stride = 3072 if which == SWQ else 2752
        a("s_lshr_b32 s72, s2, 3")
        a("s_and_b32 s73, s60, 3")
        a("s_lshl2_add_u32 s72, s72, s73")
        a("s_mul_i32 s72, s72, %d" % (4 * stride))
        a("s_and_b32 s73, s2, 1")
        a("s_mul_i32 s73, s73, %d" % (512 if which == SWQ else 1472))
        a("s_add_u32 s72, s72, s73")
        a("v_lshrrev_b32 v20, 4, v0")
        a("v_mul_u32_u24 v20, %d, v20" % stride)
        if which == SWQ:
            a("v_bfe_u32 v21, v0, 2, 2")
            a("v_min_u32 v21, 2, v21")
            a("v_lshl_add_u32 v20, v21, 10, v20")
            a("v_and_b32 v21, 3, v0")
            a("v_lshl_add_u32 v20, v21, 7, v20")
        else:
            a("v_and_b32 v21, 15, v0")
            a("v_lshlrev_b32 v21, 7, v21")
            a("v_min_u32 v21, 1468, v21")
            a("v_add_u32 v20, v20, v21")
        bload(22, 1, 20, which, "s72", 0, "", "pf")

    def pfc(which):
        a("; lines at offset 384 of every KiB stream slowly on a miss: the die's workgroups pull them into L2 together")
        a("s_lshr_b32 s72, s2, 3")
        a("s_lshl2_add_u32 s72, s72, s60")
        a("s_mul_i32 s72, s72, 12288")
        a("v_lshlrev_b32 v20, 3, v31")
        if which == SWQ:
            a("s_bitcmp1_b32 s2, 0")
            a("s_cselect_b32 s72, 0x40000000, s72")
        bload(7, 1, 20, which, "s72", 384, "", "pf")

    def pf1():
        a("; memory-side prefetch of W1")
        bload(7 if cfg.pf1_at <= 10 else 32, 1, 31, SW1, "s100", 0, "", "pf")

    acts = {}
    if cfg.pfc_at == 0:
        save = list(vm.items)
        pfc(SWQ)
        vm.items = save
    elif cfg.pfc_at <= 10:
        acts.setdefault(cfg.pfc_at, []).append(lambda: pfc(SWQ))
    if cfg.pfq_at == 0:
        save = list(vm.items)
        pfq()
        vm.items = save
    elif cfg.pfq_at <= 10:
        acts.setdefault(cfg.pfq_at, []).append(pfq)
    if cfg.l2q == 0:
        save = list(vm.items)
        pfl2(SWQ)
        vm.items = save
    if cfg.l2q == 7:
        acts.setdefault(7, []).append(lambda: pfl2(SWQ))
    for c, p in enumerate((cfg.w0_at, cfg.w1_at, cfg.w2_at, 10)[:cfg.lead + 1]):
        acts.setdefault(p, []).append(lambda c=c: issue_chunk(c))
    if 8 <= cfg.l2q <= 10:
        acts.setdefault(cfg.l2q, []).insert(0, lambda: pfl2(SWQ))
    if cfg.pf1_at <= 10:
        acts.setdefault(cfg.pf1_at, []).append(pf1)
    if cfg.pfc1:
        acts.setdefault(10, []).append(lambda: pfc(SW1))
    layernorm(acts)
    a("s_cmp_eq_u32 s63, 1")
    a("s_cbranch_scc1 L_loader")

    QR, SB, WF, FA, OA, KV, HB = 8, 24, 56, 64, 128, 192, 228
    NKV = 3

    def att_init_ops():
        ops = ["v_mov_b32 %s, 0" % vr(OA + 16 * t + i) for t in range(4) for i in range(9)]
        ops2 = ["v_and_b32 v7, 27, v0", "v_cmp_eq_u32 vcc, 16, v7", "v_mov_b32 v7, 0x3f803f80", "v_cndmask_b32 v7, 0, v7, vcc"]
        ops2 += ["v_mov_b32 %s, v7" % vr(KV + 12 * b + 4 + q) for b in range(NKV) for q in range(8)]
        return ops, ops2

    def kvload(j):
        b = j % NKV
        bload(KV + 12 * b, 4, 252, SWS, "s82", 0, "sc1", ("kv", j))
        a("s_mov_b64 exec, %s" % sr(sVM, 2))
        bload(KV + 12 * b + 4, 4, 253, SWS, "s82", 0, "sc1", ("kv", j))
        bload(KV + 12 * b + 8, 4, 254, SWS, "s82", 0, "sc1", ("kv", j))
        a("s_mov_b64 exec, -1")
        a("s_add_u32 s82, s82, 2048")

    def att_loads(role):
        a("s_and_b32 s72, s60, 1")
        a("s_lshl_b32 s73, s72, 10")
        a("v_add_u32 v252, s73, v1")
        a("s_lshr_b32 s73, 0x400, s72")
        a("v_add_u32 v253, s73, v2")
        a("s_mul_i32 s73, s72, 0x600")
        a("s_sub_u32 s73, 0x600, s73")
        a("v_add_u32 v254, s73, v2")
        bload(QR, 4, 1, SWS, "s92", 0, "sc1", "q")
        kvload(0)
        for t in range(1, 4):
            bload(QR + 4 * t, 4, 1, SWS, sr(92 + t), 0, "sc1", "q")
        kvload(1)
        if cfg.kv3 and role == "a":
            kvload(2)

    def dump_addr():
        a("v_lshlrev_b32 v8, 2, v0")
        a("v_add_u32 v9, s99, v1")
        a("v_add_u32 v10, s99, v8")
        a("v_bfe_u32 v11, v0, 4, 1")
        a("v_lshl_add_u32 v11, v11, 10, v2")

    def dump(t):
        a("v_add_u32 v12, %s, v1" % sr(96 + t))
        a("v_add_u32 v13, %s, v8" % sr(96 + t))
        dsw("ds_write_b128", 12, OA + 16 * t, 4, t * 2304)
        dsw("ds_write_b128", 12, OA + 16 * t + 4, 4, t * 2304 + 1024)
        dsw("ds_write_b32", 13, OA + 16 * t + 8, 1, t * 2304 + 2048)

    deferred = []
    cfg_gap = {0: range(16), 1: (1, 10), 2: (0, 9), 3: (4, 10), 4: (1,), 5: (4,), 6: (15, 9)}[cfg.gap]

    def att_run(n, hooks):
        hooks.setdefault((n - 1, 0, 11), []).append(dump_addr)
        for t in range(3):
            hooks.setdefault((n - 1, t + 1, 12), []).append(lambda t=t: dump(t))
        vm.wait("q", ("kv", 0))
        mfma32(SB, KV, QR, None)
        for j in range(n):
            b = j % NKV
            for t in range(4):
                cur, oth = SB + 16 * (t & 1), SB + 16 * ((t + 1) & 1)
                for i in range(16):
                    a("v_exp_f32 %s, %s" % (vr(cur + i), vr(cur + i)))
                    if i in cfg_gap:
                        while deferred:
                            deferred.pop(0)()
                    if t == cfg.kvt and i == cfg.kvi and j + NKV - 1 < n and not (cfg.abl & 32 and j > 0) and not (cfg.kv3 and j == 0):
                        kvload(j + NKV - 1)
                    if i == 1 and (j, t) != (0, 0):
                        smf(OA + 16 * ((t + 3) & 3), KV + 12 * (b if t else (j - 1) % NKV) + 8, oth + 8)
                    if i == 4:
                        if t < 3:
                            mfma32(oth, KV + 12 * b, QR + 4 * (t + 1), None)
                        elif j + 1 < n:
                            vm.wait(("kv", j + 1))
                            mfma32(oth, KV + 12 * ((j + 1) % NKV), QR, None)
                    if i == 10:
                        smf(OA + 16 * t, KV + 12 * b + 4, cur)
                    for h in hooks.get((j, t, i), ()):
                        h()
        smf(OA + 48, KV + 12 * ((n - 1) % NKV) + 8, SB + 16 + 8)

    ACC = (24, 40, 56)
    WB, NBUF, LA = 72, 6, cfg.look
    XF, PK, XA = 128, 96, 16
    init1, init2 = att_init_ops()

    def item(g):
        return divmod(g % 96, 3)

    def reads(g):
        ks, sel = item(g)
        c, m = divmod(g, 12)
        so = slot_of(c)
        base, so = (XA, 0) if so < 0 else (8 + so // 49152, so % 49152)
        if g < 96 and sel == 0:
            dsr("ds_read_b128", XF + 4 * ks, 4, XA + (ks & 3), (ks >> 2) * 8192, g)
        trread(WB + 4 * (g % NBUF), base, so + m * 2048, 512, g)

    def pack(acc, pk):
        return ["v_cvt_pk_bf16_f32 %s, %s, %s" % (vr(pk + q), vr(acc + 2 * q), vr(acc + 2 * q + 1)) for q in range(8)]

    def st2(pk, va, base, delta, tag, imm=(0, 0), vb=None):
        def first():
            bstore(pk, 4, va, SWS, base, imm[0], "" if cfg.abl & 64 else "sc1", tag)

        def second():
            if delta:
                a("s_add_u32 s72, %s, %d" % (base, delta))
            bstore(pk + 4, 4, vb or va, SWS, "s72" if delta else base, imm[1], "" if cfg.abl & 64 else "sc1", tag)
        return [first, second]

    def relu2(acc):
        return (["v_max_f32 %s, 0, %s" % (vr(acc + i), vr(acc + i)) for i in range(16)]
                + ["v_mul_f32 %s, %s, %s" % (vr(acc + i), vr(acc + i), vr(acc + i)) for i in range(16)])

    def bias(seg):
        return lambda: (vm.wait("b1"), mfma32(ACC[seg], 112 + 4 * seg, 124, None))

    tagq = ["v_or_b32 %s, 1, %s" % (vr(PK + 4 * q), vr(PK + 4 * q)) for q in range(2)]
    qkv_epi = (["v_mul_f32 %s, 0x%x, %s" % (vr(ACC[0] + i), QSCALE, vr(ACC[0] + i)) for i in range(16)]
               + pack(ACC[0], PK) + tagq + [bias(0)] + st2(PK, 1, "s76", 0, "st", (0, 1024))
               + pack(ACC[1], PK + 8) + [bias(1)] + st2(PK + 8, 11, "s77", 0x20400, "st")
               + pack(ACC[2], PK) + [bias(2)] + st2(PK, 12, "s77", 0, "st", (1024, 1536), 14))
    sched = {92: ["v_subrev_u32 %s, %d, v8" % (vr(XA), L_RING)], 144: init1, 180: init2}
    shadow = []

    def run_shadow(budget):
        while shadow and budget > 0:
            op = shadow.pop(0)
            if isinstance(op, str):
                a(op)
                budget -= 1
            else:
                op()
                budget -= 3

    a("""
    s_lshl_b32 s85, s60, 14
    s_lshl_b32 s72, s67, 7
    s_add_u32 s85, s85, s72
    s_lshl_b32 s86, s60, 6
    s_lshl1_add_u32 s86, s66, s86
    s_lshl_b32 s86, s86, 10
    s_add_u32 s86, s86, %d
    s_lshl_b32 s87, s66, FROW
    s_add_u32 s87, s87, %d
    """ % (WS_HF, WS_FLAGH))
    vm.wait(("w", 0))
    a("s_waitcnt lgkmcnt(0)")
    a("s_add_u32 %s, %s, 0x%x" % (sr(sTAG), sr(sTAG), EPOCH_INC))
    if cfg.bst == 3:
        stamp(9, True)
    a("s_barrier")
    stamp(3)
    if cfg.bst == 3:
        stamp(10, True)
    for g in range(LA):
        reads(g)
    for g in range(192):
        ks, sel = item(g)
        if g == 96:
            stamp(4)
            shadow.extend(qkv_epi)
            run_shadow(1000)
            stamp(5)
            if cfg.split:
                a("s_barrier")
                for n in range(96, 96 + LA):
                    reads(n)
        lg.wait(g)
        x, w = XF + 4 * ks, WB + 4 * (g % NBUF)
        c = None if (g < 96 and ks == 0) else ACC[sel]
        if g < 96 and sel == 2:
            mfma32(ACC[sel], x, w, c)
        else:
            mfma32(ACC[sel], w, x, c)
        n = g + LA
        if n < 192 and not (cfg.split and g < 96 <= n):
            if n % 12 == 0 and n // 12 not in skip_bar:
                vm.wait(("w", n // 12))
                if n // 12 == cfg.flag_chunk:
                    vm.wait("st")
                a("s_barrier")
                if n // 12 == cfg.flag_chunk:
                    a("s_cmp_lg_u32 s60, 0")
                    a("s_cselect_b32 s79, 0x40000000, s79")
                    set_flag(7, "s79")
                    stamp(6)
            reads(n)
        if g == 40:
            for seg in range(3):
                a("buffer_load_ushort %s, v10, %s, s81 offen offset:%d" % (vr(112 + 4 * seg), srd(SB1), seg * 128))
                vm.push("b1")
        shadow.extend(sched.get(g, ()))
        run_shadow(3)
    run_shadow(1000)
    stamp(7)
    hmath, hst = [], []
    for seg in range(3):
        pk = PK + 8 * seg
        hmath.append(relu2(ACC[seg]) + pack(ACC[seg], pk))
        hst.append((["s_add_u32 s78, s78, 0x40000"] if seg == 1 else []) + st2(pk, 1, "s78" if seg < 2 else "s88", 0x10000, "hst"))
    for seg in range(cfg.hbar):
        shadow.extend(hmath[seg])
    run_shadow(1000)
    a("s_barrier")
    stamp(8)
    if cfg.bst == 4:
        stamp(1, True)
    a("s_setprio 2")
    for seg in range(cfg.hbar, cfg.hpre):
        shadow.extend(hmath[seg])
    run_shadow(1000)
    att_loads("a")
    hlist = [[hst[0][0]], [hst[0][1]], hst[1][:2], [hst[1][2]], [hst[2][0]], [hst[2][1]]]
    for seg in range(3):
        shadow.extend(hmath[seg] if seg >= max(cfg.hpre, cfg.hbar) else [])
        for n in (2 * seg, 2 * seg + 1):
            if n < cfg.hnow:
                shadow.extend(hlist[n])
    run_shadow(1000)
    stamp(9)


    def w2dma(i):
        if cfg.abl & 1:
            return
        a("s_add_u32 m0, s84, %d" % ((i & 3) * 2048))
        a("s_add_u32 s72, s85, %d" % (i * 65536))
        dma(4, SW2, "s72", 0, ("w2", i))
        a("s_add_u32 s72, s72, 7168")
        dma(4, SW2, "s72", 1024, ("w2", i))

    hreg = lambda i, tt: HB + 8 * (i % 3) + 4 * tt

    def hload(i):
        if cfg.abl & 1:
            return
        if i > 0:
            a("s_add_u32 s86, s86, 0x40000")
        for tt in range(2):
            bload(hreg(i, tt), 4, 1, SWS, "s86", tt * 1024, "sc1", ("h", i))

    def w2read(i, nt):
        if cfg.abl & 2:
            return
        vm.wait(("w2", i))
        trread(WF + 4 * nt, 5 + nt, (i & 3) * 2048, 1024, ("wf", i, nt))

    def fslot(f):
        i, m = divmod(f, 4)
        nt, tt = ((0, 0), (0, 1), (1, 1), (1, 0))[m]
        vm.wait(("h", i))
        lg.wait(("wf", i, nt))
        d = FA + 16 * (2 * tt + nt)
        if not cfg.abl & 4:
            mfma32(d, WF + 4 * nt, hreg(i, tt), None if i == 0 else d)
        if m == 1 and i + 1 < NS:
            deferred.append(lambda: w2read(i + 1, 0))
        if m == cfg.dmam and i + 4 < NS:
            deferred.append(lambda: w2dma(i + 4))
        if m == 3:
            if i + 1 < NS:
                deferred.append(lambda: w2read(i + 1, 1))
            if i + 3 < NS:
                deferred.append(lambda: hload(i + 3))

    def park(tt, nt):
        d = FA + 16 * (2 * tt + nt)
        for q in range(8):
            a("v_cvt_pk_bf16_f32 %s, %s, %s" % (vr(d + q), vr(d + 2 * q), vr(d + 2 * q + 1)))
        for q in range(2):
            dsw("ds_write_b128", 4, d + 4 * q, 4, tt * 32 * PART_STRIDE + nt * 64 + q * 32)

    def park_addr():
        a("v_and_b32 v4, 31, v0")
        a("v_mul_u32_u24 v4, %d, v4" % PART_STRIDE)
        a("v_lshrrev_b32 v5, 5, v0")
        a("v_lshl_add_u32 v4, v5, 4, v4")
        a("v_add_u32 v4, s84, v4")

    hooks = {}

    def hook(j, t, i, f):
        hooks.setdefault((j, t, i), []).append(f)

    n1 = cfg.n1
    for n in range(cfg.hnow, 6):
        tl = (n - cfg.hnow) * cfg.hgap + cfg.hoff
        hook(tl >> 2, tl & 3, 9, lambda n=n: (shadow.extend(hlist[n]), run_shadow(1000)))
    assert (5 - cfg.hnow) * cfg.hgap + cfg.hoff <= cfg.hflag < 4 * (n1 - 2)
    hook(cfg.hflag >> 2, cfg.hflag & 3, 12, lambda: (vm.wait("hst"), set_flag(7, "s80"), stamp(1) if cfg.hst else None))
    hook(n1 - 2, 0, 8, lambda: flag_load(7, cfg.fsh, "s87", "hf"))
    hook(n1 - 2, 3, 12, lambda: (vm.wait("hf"), stamp(2) if cfg.hst else None, check_flags("h", 7, cfg.fsh, "s87"), stamp(3) if cfg.hst else None))
    for i in range(4):
        hook(n1 - 3 + (i >> 1), 1 + (i & 1), 7, lambda i=i: w2dma(i))
    for i in range(3):
        hook(n1 - 1, i, 7, lambda i=i: hload(i))
    hook(n1 - 1, 3, 7, lambda: (w2read(0, 0), w2read(0, 1)))
    pat = [int(ch) for ch in str(cfg.fpat)]
    slots = [(j, t, pos) for j in range(n1, nA) for t in range(4) for pos in ((13,), (7, 13))[pat[t] - 1]]
    for f in range(4 * NS):
        hook(*slots[f], lambda f=f: fslot(f))
    tl = slots[4 * NS - 1][0] * 4 + slots[4 * NS - 1][1] + 1
    assert tl + 3 < 4 * nA
    hook(tl >> 2, tl & 3, 6, park_addr)
    for n, (nt, tt) in enumerate(((0, 0), (0, 1), (1, 1), (1, 0))):
        hook((tl + n) >> 2, (tl + n) & 3, 7, lambda tt=tt, nt=nt: park(tt, nt))
    if cfg.hst:
        for n in range(4):
            hook(n1 + 4 * n, 0, 1, lambda n=n: stamp(4 + n))
    if cfg.alow:
        tl = 4 * nA - cfg.alow
        hook(tl >> 2, tl & 3, 0, lambda: a("s_setprio 0"))
    if cfg.bst == 4:
        for n, j in enumerate(range(0, nA, 2)):
            hook(j, 0, 0, lambda n=n: stamp(2 + n, True))
    att_run(nA, hooks)
    vm.drain()
    a("s_branch L_att_done")

    a.label("L_loader")
    vm.items = []
    lg.items = []

    def b_setup():
        a("; waves 4-7: W1 DMA offsets v56/v57 (sixth tile out of range where the next group owns it), wo DMA offset v4, flagQ row s79")
        a("""
        v_mul_u32_u24 v56, 2752, v4
        v_add_u32 v56, v56, v6
        s_lshr_b32 s72, 0xf8, s61
        s_and_b32 s72, s72, 1
        s_lshl_b32 s72, s72, 23
        v_and_b32 v57, 64, v6
        v_mad_u32_u24 v57, v57, s72, v56
        v_bfe_u32 v6, v4, 1, 2
        v_lshlrev_b32 v6, 1, v6
        v_xor_b32 v6, v6, v5
        v_lshlrev_b32 v6, 4, v6
        v_lshl_add_u32 v4, v4, 10, v6
        v_min_u32 v5, %d, v0
        v_lshlrev_b32 v5, 7, v5
        s_lshr_b32 s79, s64, 1
        s_lshl_b32 s79, s79, 10
        s_add_u32 s79, s79, %d
        s_and_b32 s73, s60, 3
        s_lshl_b32 s72, s69, 6
        s_mul_i32 s80, s73, %d
        s_add_u32 s80, s80, s72
        """ % (cfg.pfn - 1, WS_FLAGQ, 16 * 2752))

        a("v_mov_b32 v3, 0xdddddddd")

    issued = cfg.lead
    setup1()
    state = {"issued": issued}
    pieces = {0: {4: (0, 1), 5: (2, 3), 6: (4, 5)}, 1: {4: (0, 1, 2), 5: (3, 4, 5)}, 2: {4: range(6)}, 3: {5: (0, 1, 2), 6: (3, 4, 5)}}[cfg.pcs]

    def b_step(c):
        if c in skip_bar:
            return
        vm.wait(("w", c + 1 if c + 1 in skip_bar else c))
        if cfg.bst == 2:
            stamp(c, True)
        if cfg.bst == 3 and c == 0:
            stamp(9, True)
        a("s_barrier")
        if cfg.bst == 1:
            stamp(c, True)
        if c in (0, 8, 12, 15):
            stamp({0: 3, 8: 4, 12: 5, 15: 6}[c])
        if c == cfg.bload - 1:
            flag_load(7, 4, "s79", "qf")
        if c == cfg.bload:
            vm.wait("qf")
            check_flags("q", 7, 4, "s79")
            stamp(7)
            att_loads("b")
        lim = c + 2
        if c < 8:
            lim = min(lim, cfg.hold)
        if cfg.split and c == 8:
            lim = 10 + cfg.split - 1
        if cfg.xslot == 12 and c == 9:
            lim = 12
        if cfg.xslot == 11 and c in (8, 9):
            lim = c + 3
        if cfg.xslot > 8 and c >= 11:
            lim = c + cfg.xrun
        if cfg.xslot == 8 and c >= 7:
            lim = c + cfg.xrun
        while state["issued"] < min(15, max(3, lim)):
            state["issued"] += 1
            if state["issued"] != 8 or cfg.xslot != 8:
                issue_chunk(state["issued"])
        if cfg.xslot == 8 and c in pieces:
            issue_chunk(8, pieces[c])
        if c == 0:
            setup_pf()
        if c == 1:
            setup2()
        if cfg.pf1_at == 12 + c:
            pf1()
        if c == 2:
            setup3()
        if c == 3:
            b_setup()
        if c == cfg.l2w:
            pfl2(SW1)
        if c == cfg.pfe:
            a("; memory-side prefetch of w2 and wo")
            bload(32, 1, 31, SW2, "s100", 0, "", "pf")
            bload(32, 1, 31, SWO, "s100", 0, "", "pf")
        if c == 4:
            for op in init1:
                a(op)
        if c == 5:
            for op in init2:
                a(op)
        if c == 7:
            a("s_waitcnt lgkmcnt(0)")
            a("s_add_u32 %s, %s, 0x%x" % (sr(sTAG), sr(sTAG), EPOCH_INC))

    def b_att():
        a("s_barrier")
        stamp(8)
        a("s_setprio 1")
        if cfg.kv3:
            kvload(2)

    bhooks = {}
    for c in range(17):
        f = (lambda c=c: b_step(c)) if c < 16 else b_att
        if c <= cfg.bjoin:
            f()
        else:
            tl = (c - cfg.bjoin) * cfg.btile - 1
            bhooks[(tl >> 2, tl & 3, 13)] = [f]

    def wo_dma(lo, hi):
        if cfg.abl & 8:
            return
        if lo == 0:
            a("; wo tile -> LDS [0, 64K), a few rows per score tile")
            a("s_and_b32 s78, s60, 3")
            a("s_lshl_b32 s76, s78, 17")
            a("s_lshl_b32 s73, s67, 7")
            a("s_add_u32 s76, s76, s73")
            a("s_lshl_b32 s78, s78, 14")
        for i in range(lo, hi):
            a("s_add_u32 m0, s78, %d" % (i * 1024))
            a("s_add_u32 s73, s76, %d" % (i * 8192))
            dma(4, SWO, "s73", 0, "wo")

    nl = cfg.pfn
    batches = [(SW2, i) for i in range(-(-11 // nl))] + [(SWO, i) for i in range(-(-4 // nl))]

    def pf_late(n):
        if cfg.abl & 16:
            return
        if n == 0:
            a("; memory-side prefetch of w2 (in k order) and wo, a few lines per wave at a time")
            a("s_and_b32 s90, s60, 3")
            a("s_lshl2_add_u32 s90, s2, s90")
            a("s_mul_i32 s90, s90, %d" % (nl * 128))
        a("s_add_u32 s72, s90, %d" % (batches[n][1] * nl * 131072))
        bload(7, 1, 5, batches[n][0], "s72", 0, "", "pf")

    for n in range(len(batches) if cfg.pfe > 90 else 0):
        tl = cfg.pfl + n * cfg.pfg
        bhooks[(tl >> 2, tl & 3, 7)] = [lambda n=n: pf_late(n)]
    for n, lo in enumerate(range(0, 16, cfg.won)):
        bhooks[((cfg.wol + n) >> 2, (cfg.wol + n) & 3, 8)] = [lambda lo=lo: wo_dma(lo, lo + cfg.won)]
    if cfg.bst == 4:
        for j in range(nB):
            bhooks.setdefault((j, 0, 0), []).append(lambda j=j: stamp(2 + j, True))
    att_run(nB, bhooks)
    vm.drain()

    OW = OA + 48
    WOF, OFR, AC, G, Z, X, SR = 128, 24, 8, 64, 96, 104, 112
    a.label("L_att_done")
    stamp(10)
    if cfg.bst == 4:
        stamp(14, True)
    a("s_setprio 0")
    a("s_and_b32 s73, s60, 1")
    a("s_lshl_b32 s73, s73, 9")
    a("s_sub_u32 s76, s95, s73")
    a("""
    s_and_b32 s74, s60, 3
    s_lshr_b32 s75, s60, 2
    v_lshrrev_b32 v14, 3, v0
    v_and_b32 v7, 7, v0
    v_lshlrev_b32 v7, 4, v7
    v_lshl_add_u32 v14, v14, 10, v7
    s_lshl3_add_u32 s78, s66, s60
    s_lshl_b32 s78, s78, 13
    s_lshl_b32 s79, s67, 7
    s_add_u32 s78, s78, s79
    """)
    bload(60, 4, 7, SB2, "s79", 0, "", "xb")
    bload(56, 4, 14, SX, "s78", 0, "", "xb")
    lg.drain()
    a("s_barrier")
    for src in range(3):
        d = SB + 10 * src
        dsr("ds_read_b128", d, 4, 9, src * 2304, src)
        dsr("ds_read_b128", d + 4, 4, 9, src * 2304 + 1024, src)
        dsr("ds_read_b32", d + 8, 1, 10, src * 2304 + 2048, src)
    for src in range(3):
        lg.wait(src)
        for i in range(0, 8, 2):
            a("v_pk_add_f32 %s, %s, %s" % (vr(OW + i, 2), vr(OW + i, 2), vr(SB + 10 * src + i, 2)))
        a("v_add_f32 %s, %s, %s" % (vr(OW + 8), vr(OW + 8), vr(SB + 10 * src + 8)))
    a("v_pk_mul_f32 v[12:13], %s, 0 op_sel_hi:[1,0]" % vr(OW, 2))
    for i in range(2, 8, 2):
        a("v_pk_fma_f32 v[12:13], %s, 0, v[12:13] op_sel_hi:[1,0,1]" % vr(OW + i, 2))
    a("""
    v_add_f32 v12, v12, %s
    v_add_f32 v12, v12, v13
    v_cmp_nle_f32 vcc, 0x30800000, v12
    s_mov_b64 s[72:73], vcc
    v_cmp_nge_f32 vcc, 0x5d800000, v12
    s_or_b64 s[72:73], s[72:73], vcc
    """ % vr(OW + 8))
    a("s_branch L_slow" if cfg.force_slow else "s_cbranch_scc1 L_slow")
    a.label("L_norm")
    a("v_rcp_f32 v12, %s" % vr(OW + 8))
    for i in range(0, 8, 2):
        a("v_pk_mul_f32 %s, %s, v[12:13] op_sel_hi:[1,0]" % (vr(OW + i, 2), vr(OW + i, 2)))
    for q in range(4):
        a("v_cvt_pk_bf16_f32 %s, %s, %s" % (vr(16 + q), vr(OW + 2 * q), vr(OW + 2 * q + 1)))
    a("v_and_b32 v16, -2, v16")
    bstore(16, 4, 11, SWS, "s76", 0, "sc1", "ost")
    stamp(11)
    a("v_mov_b32 v2, v14")
    a("v_lshrrev_b32 v3, 3, v0")
    a("""
    v_mul_u32_u24 v4, %d, v3
    s_mul_i32 s72, s60, %d
    s_add_u32 s72, s72, %d
    v_add3_u32 v4, v4, v7, s72
    """ % (PART_STRIDE, 8 * PART_STRIDE, L_W2))
    for j in range(4):
        dsr("ds_read_b128", G + 4 * j, 4, 4, j * W2_REGION, "g")
    a("""
    v_bfe_u32 v4, v0, 2, 2
    v_bfe_u32 v5, v0, 4, 1
    v_lshl_add_u32 v4, v5, 2, v4
    v_lshrrev_b32 v5, 1, v4
    v_lshlrev_b32 v92, 7, v4
    v_lshl_add_u32 v92, v5, 5, v92
    v_lshrrev_b32 v6, 5, v0
    v_lshl_add_u32 v92, v6, 11, v92
    v_and_b32 v4, 3, v0
    v_lshl_add_u32 v92, v4, 3, v92
    s_lshl_b32 s72, s75, 15
    v_add_u32 v92, s72, v92
    v_xor_b32 v93, 32, v92
    v_xor_b32 v94, 64, v92
    v_xor_b32 v95, 0x60, v92
    s_barrier
    """)

    def oloads(first=0):
        for ks in range(first, 8):
            bload(OFR + 4 * ks, 4, 1, SWS, ("s76", "s77", "s80", "s81")[ks >> 1], (ks & 1) * 2048, "sc1", ("o", ks))

    fill = ("""
    s_lshl2_add_u32 s72, s66, s74
    s_lshr_b32 s76, s72, 1
    s_lshl1_add_u32 s76, s76, s75
    s_lshl_b32 s76, s76, 14
    s_and_b32 s72, s72, 1
    s_lshl_b32 s72, s72, 10
    s_add_u32 s76, s76, s72
    s_add_u32 s76, s76, %d
    s_add_u32 s77, s76, 0x1000
    s_add_u32 s80, s76, 0x2000
    s_add_u32 s81, s76, 0x3000
    v_mul_u32_u24 v3, %d, v3
    v_lshl_add_u32 v3, v7, 1, v3
    s_mul_i32 s72, s60, %d
    s_add_u32 s72, s72, %d
    v_add_u32 v3, s72, v3
    v_and_b32 v5, 15, v0
    v_mul_u32_u24 v5, %d, v5
    v_and_b32 v4, 48, v0
    s_mul_i32 s72, s60, %d
    s_add_u32 s72, s72, %d
    v_add3_u32 v5, v5, v4, s72
    s_mov_b32 s82, 0x3f80
    s_mov_b32 s83, 0x3f800000
    """ % (WS_QO, SUM_STRIDE, 8 * SUM_STRIDE, L_SUM, SUM_STRIDE, 16 * SUM_STRIDE, L_SUM)).strip().split("\n")
    gate = ["v_mov_b32 %s, 0" % vr(Z + i) for i in range(8)]
    gate.append(lambda: lg.wait("g"))
    for j in range(5):
        if j == 4:
            gate.append(lambda: vm.wait("xb"))
        for q in range(4):
            src = G + 4 * j + q if j < 4 else 60 + q
            gate.append("v_dot2c_f32_bf16 %s, s82, %s" % (vr(Z + 2 * q), vr(src)))
            gate.append("v_dot2c_f32_bf16 %s, s83, %s" % (vr(Z + 2 * q + 1), vr(src)))
    for q in range(4):
        gate.append("v_lshlrev_b32 %s, 16, %s" % (vr(X + 2 * q), vr(56 + q)))
        gate.append("v_and_b32 %s, s89, %s" % (vr(X + 1 + 2 * q), vr(56 + q)))
    gate += ["v_mul_f32 %s, 0x%x, %s" % (vr(G + i), NLOG2E, vr(Z + i)) for i in range(8)]
    gate += ["v_exp_f32 %s, %s" % (vr(G + i), vr(G + i)) for i in range(8)]
    gate += ["v_add_f32 %s, 1.0, %s" % (vr(G + i), vr(G + i)) for i in range(8)]
    gate += ["v_rcp_f32 %s, %s" % (vr(G + i), vr(G + i)) for i in range(8)]
    gate += ["v_mul_f32 %s, %s, %s" % (vr(Z + i), vr(Z + i), vr(G + i)) for i in range(8)]

    def wo_reads(oat, per):
        for ks in range(8):
            for ct in range(4):
                trread(WOF + (ks * 4 + ct) * 4, 92 + ct, ks * 4096, 1024, ("wo", ks))
                run_shadow(per)
            if ks == oat:
                run_shadow(1000)
                vm.wait("ost")
                oloads()

    vm_t, lg_t = list(vm.items), list(lg.items)
    a("s_cmp_eq_u32 s63, 1")
    a("s_cbranch_scc1 L_tail_b")
    shadow.extend(fill)
    wo_reads(7, 1)
    shadow.extend(gate)
    run_shadow(1000)
    a("s_branch L_tail_j")
    a.label("L_tail_b")
    vm.items, lg.items = vm_t, lg_t
    shadow.extend(fill + gate)
    run_shadow(1000)
    wo_reads(cfg.oat, 0)
    a.label("L_tail_j")
    stamp(12)
    a("s_mov_b32 s73, 0")
    lg.drain()
    for ks in range(8):
        a.label("L_wo_%d" % ks)
        vm.wait(("o", ks))
        a("v_and_b32 v6, 1, %s" % vr(OFR + 4 * ks))
        a("v_cmp_ne_u32 vcc, 0, v6")
        a("s_cbranch_vccnz L_oretry_%d" % ks)
        a.label("L_ogo_%d" % ks)
        for ct in range(4):
            d = AC + 4 * ct
            mfma16(d, WOF + (ks * 4 + ct) * 4, OFR + 4 * ks, None if ks == 0 else d)
    stamp(13)
    for ct in range(4):
        dsw("ds_write_b128", 5, AC + 4 * ct, 4, ct * 64)
    lg.drain()
    a("s_barrier")
    stamp(14)
    dsr("ds_read_b128", SR, 4, 3, 0, 0)
    dsr("ds_read_b128", SR + 8, 4, 3, SUM_SIZE, 0)
    dsr("ds_read_b128", SR + 4, 4, 3, 16, 1)
    dsr("ds_read_b128", SR + 12, 4, 3, SUM_SIZE + 16, 1)
    for h in range(2):
        lg.wait(h)
        for i in range(4 * h, 4 * h + 4, 2):
            a("v_pk_add_f32 %s, %s, %s" % (vr(SR + i, 2), vr(SR + i, 2), vr(SR + 8 + i, 2)))
        for i in range(4 * h, 4 * h + 4, 2):
            a("v_pk_fma_f32 %s, %s, %s, %s" % (vr(SR + i, 2), vr(SR + i, 2), vr(Z + i, 2), vr(X + i, 2)))
        for q in range(2 * h, 2 * h + 2):
            a("v_cvt_pk_bf16_f32 %s, %s, %s" % (vr(G + q), vr(SR + 2 * q), vr(SR + 2 * q + 1)))
    bstore(G, 4, 2, SOUT, "s78", 0, ("", "sc1", "nt", "sc0 sc1", "sc0 sc1 nt")[cfg.omod])
    a("s_or_b32 s72, s2, s60")
    a("s_cmp_lg_u32 s72, 0")
    a("s_cbranch_scc1 L_noepoch")
    set_flag(7, "0")
    a.label("L_noepoch")
    if cfg.stamps:
        a("s_waitcnt vmcnt(0)")
        stamp(15)
        if cfg.probe is not None:
            a("s_sub_u32 s72, %s, s4" % sr(sSTAMP + cfg.probe))
            if cfg.stamps == 2:
                a("s_lshr_b32 s72, s72, 3")
            else:
                a("s_lshl_b32 s72, s72, %d" % cfg.probesh)
            a("s_cmp_lg_u32 s2, %d" % cfg.probewg)
            a("s_cselect_b32 s72, 0, s72")
            a("s_cmp_lg_u32 s60, %d" % cfg.probew)
            a("s_cselect_b32 s72, 0, s72")
            a("s_memrealtime s[22:23]")
            a("s_waitcnt lgkmcnt(0)")
            a("s_mov_b32 s73, s22")
            a.label("L_probe")
            a("s_memrealtime s[22:23]")
            a("s_waitcnt lgkmcnt(0)")
            a("s_sub_u32 s22, s22, s73")
            a("s_cmp_lt_u32 s22, s72")
            a("s_cbranch_scc1 L_probe")
        a("s_lshl3_add_u32 s72, s2, s60")
        a("s_lshl_b32 s72, s72, 6")
        a("s_add_u32 s72, s72, %d" % WS_STAMP)
        for i in range(16):
            a("v_mov_b32 %s, %s" % (vr(80 + i), sr(sSTAMP + i)))
        a("s_mov_b64 exec, 1")
        for i in range(4):
            bstore(80 + 4 * i, 4, 1, SWS, "s72", 16 * i)
    a.label("L_end")
    a("s_endpgm")

    for ks in range(8):
        a.label("L_oretry_%d" % ks)
        a("s_add_u32 s73, s73, 1")
        a("s_cmp_ge_u32 s73, %d" % SPIN_MAX)
        a("s_cbranch_scc1 L_ogo_%d" % ks)
        a("s_waitcnt vmcnt(0)")
        oloads(ks)
        a("s_branch L_wo_%d" % ks)

    for tag, vt, lanes, soff in stubs:
        a.label("L_poll_" + tag)
        a("s_mov_b32 s73, 0")
        a.label("L_poll2_" + tag)
        a("s_sleep %d" % cfg.sleep)
        flag_load(vt, lanes, soff, None)
        a("s_add_u32 s73, s73, 1")
        a("s_waitcnt vmcnt(0)")
        a("s_cmp_ge_u32 s73, %d" % SPIN_MAX)
        a("s_cbranch_scc1 L_polled_" + tag)
        a("v_cmp_ne_u32 vcc, %s, %s" % (sr(sTAG), vr(vt)))
        a("s_cbranch_vccnz L_poll2_" + tag)
        a("s_branch L_polled_" + tag)

    a.label("L_slow")
    CN = SB + 16
    a("s_waitcnt vmcnt(0)")
    a("v_mov_b32 v13, 0xff800000")
    a("s_mov_b32 s82, s83")
    a("s_mov_b32 s81, 64")
    a.label("L_slow1")
    bload(KV, 4, 252, SWS, "s82", 0, "sc1")
    a("s_add_u32 s82, s82, 2048")
    a("s_waitcnt vmcnt(0)")
    mfma32(SB, KV, QR + 12, None)
    for i in range(0, 16, 2):
        a("v_max3_f32 v13, v13, %s, %s" % (vr(SB + i), vr(SB + i + 1)))
    a("s_sub_u32 s81, s81, 1")
    a("s_cmp_lg_u32 s81, 0")
    a("s_cbranch_scc1 L_slow1")
    a("v_mov_b32 v15, v13")
    a("v_permlane32_swap_b32 v15, v13")
    a("v_max_f32 v13, v15, v13")
    for i in range(16):
        a("v_sub_f32 %s, 0, v13" % vr(CN + i))
        a("v_mov_b32 %s, 0" % vr(OW + i))
    a("s_mov_b32 s82, s83")
    a("s_mov_b32 s81, 64")
    a.label("L_slow2")
    kvload(0)
    a("s_waitcnt vmcnt(0)")
    mfma32(SB, KV, QR + 12, CN)
    for i in range(16):
        a("v_exp_f32 %s, %s" % (vr(SB + i), vr(SB + i)))
    smf(OW, KV + 4, SB)
    smf(OW, KV + 8, SB + 8)
    a("s_sub_u32 s81, s81, 1")
    a("s_cmp_lg_u32 s81, 0")
    a("s_cbranch_scc1 L_slow2")
    a("s_branch L_norm")
    a.label("L_code_end")
    a("s_endpgm")

    added = a.fix()
    return a.text().replace('FSH', str(cfg.fsh)).replace('FROW', str(cfg.fsh + 5)), added


HEADER = """; Kernarg layout for this problem (88 bytes, ptrs only, base s[0:1]):
; @launch grid=(256,1,1) block=(512,1,1) lds=163840
.amdgcn_target "amdgcn-amd-amdhsa--gfx950"
.text
.globl {k}
.p2align 8
.type {k},@function
{k}:
"""

FOOTER = """.section .rodata,"a"
.p2align 6
.amdhsa_kernel {k}
  .amdhsa_next_free_vgpr 256
  .amdhsa_next_free_sgpr 102
  .amdhsa_accum_offset 256
  .amdhsa_group_segment_fixed_size 0
  .amdhsa_kernarg_size 88
  .amdhsa_user_sgpr_count 2
  .amdhsa_user_sgpr_kernarg_segment_ptr 1
  .amdhsa_system_sgpr_workgroup_id_x 1
.end_amdhsa_kernel
"""


def build(**kw):
    cfg = Cfg()
    for k, v in kw.items():
        setattr(cfg, k, v)
    body, added = gen(cfg)
    return HEADER.format(k=KERNEL) + body + FOOTER.format(k=KERNEL), added


if __name__ == "__main__":
    out = sys.argv[1] if len(sys.argv) > 1 else "cdna_kernels/%s.s" % NAME
    kw = {}
    for arg in sys.argv[2:]:
        k, v = arg.split("=")
        kw[k] = int(v)
    text, added = build(**kw)
    open(out, "w").write(text)
    print("wrote", out, "lines", text.count("\n"), "nops added", added)
```

```python
import sys
import os
sys.path.insert(0, os.path.dirname(os.path.abspath(__file__)))
from asmlib import Asm, vr, sr

NAME = "recurrent_scan__softmax_full_mha__dense_activation_squared_relu__prompt"
KERNEL = NAME + "_kernel"

WS_FLAGQ = 0x1200
WS_FLAGH = 0x60000
WS_STAMP = 0x10000
WS_QO = 0x100000
WS_KV = 0x300000
WS_HF = 0x700000
WS_END = WS_HF + 86 * 65536
EPOCH_INC = 0x9E3779B9
SPIN_MAX = 1 << 18

L_RING = 65536
L_OPART = 65536
L_W2 = L_OPART + 55296
W2_REGION = 10240
PART_STRIDE = 144
SUM_STRIDE = 272
SUM_SIZE = 64 * SUM_STRIDE
L_SUM = L_OPART

SX, SWQ, SWO, SW1, SB1, SW2, SB2, SOUT, SWS = 24, 28, 32, 36, 40, 44, 48, 52, 56
sW, sCG, sTB, sRW, sP, sQB, sTBF, sCB, sTAG, sCT0 = 60, 61, 62, 63, 64, 65, 66, 67, 68, 69
sVM = 70
sSTAMP = 4

QSCALE = 0x3EB8AA3B
NLOG2E = 0xBFB8AA3B
NS = 22


class Cfg:
    abl = 0
    bst = 0
    xslot = 0
    xrun = 2
    n1 = 8
    nA = 22
    gap = 1
    kvt = 0
    kvi = 4
    dmam = 2
    fpat = 2221
    pf1_at = 12
    pfc_at = 99
    pfc1 = 0
    w2_at = 10
    pfl = 9
    wol = 15
    won = 1
    stamps = 0
    force_slow = 0
    flag_chunk = 10
    lead = 2
    defer = 0
    look = 5
    pfq_at = 99
    bload = 15
    bjoin = 16
    btile = 2
    sleep = 6
    w0_at = 7
    w1_at = 10
    hpre = 2
    hbar = 0
    hnow = 2
    hgap = 2
    hoff = 0
    kv3 = 1
    fsh = 4
    pfe = 99
    l2q = 99
    rot = 1
    split = 1
    pcs = 0
    hold = 99
    l2w = 99
    pfn = 11
    alow = 0
    pfg = 1
    hflag = 11
    probe = None
    omod = 1
    oat = 4
    oearly = 0
    osleep = 0
    odelay = 0
    oprobe = 0
    probewg = 100
    probew = 0
    probesh = 4
    hst = 0


def srd(s):
    return sr(s, 4)


class Queue:
    def __init__(self, a, name, maxn):
        self.a, self.name, self.maxn, self.items = a, name, maxn, []

    def push(self, tag):
        self.items.append(tag)

    def wait(self, *tags):
        last = max((i for i, t in enumerate(self.items) if t in tags), default=-1)
        if last < 0:
            return
        n = len(self.items) - 1 - last
        self.a("s_waitcnt %s(%d)" % (self.name, min(n, self.maxn)))
        self.items = self.items[last + 1:]

    def drain(self):
        self.a("s_waitcnt %s(0)" % self.name)
        self.items = []


def gen(cfg):
    a = Asm()
    nA = cfg.nA
    nB = 32 - nA
    vm = Queue(a, "vmcnt", 63)
    lg = Queue(a, "lgkmcnt", 15)

    def stamp(i, force=False):
        if cfg.bst and not force and i != 0:
            return
        if cfg.stamps and (cfg.probe is None or i in (0, cfg.probe)):
            a("%s s[22:23]" % ("s_memtime" if cfg.stamps == 2 else "s_memrealtime"))
            a("s_waitcnt lgkmcnt(0)")
            a("s_mov_b32 %s, s22" % sr(sSTAMP + i))

    def mfma32(d, x, y, c):
        a("v_mfma_f32_32x32x16_bf16 %s, %s, %s, %s" % (vr(d, 16), vr(x, 4), vr(y, 4), "0" if c is None else vr(c, 16)))

    def mfma16(d, x, y, c):
        a("v_mfma_f32_16x16x32_bf16 %s, %s, %s, %s" % (vr(d, 4), vr(x, 4), vr(y, 4), "0" if c is None else vr(c, 4)))

    def smf(d, x, y):
        a("v_smfmac_f32_32x32x32_bf16 %s, %s, %s, v3" % (vr(d, 16), vr(x, 4), vr(y, 8)))

    def bload(d, n, va, s, so, off=0, mod="", tag=None):
        op = {1: "dword", 2: "dwordx2", 4: "dwordx4"}[n]
        a("buffer_load_%s %s, %s, %s, %s offen offset:%d %s" % (op, vr(d, n), vr(va), srd(s), so, off, mod))
        vm.push(tag)

    def bstore(d, n, va, s, so, off=0, mod="", tag=None):
        op = {1: "dword", 2: "dwordx2", 4: "dwordx4"}[n]
        a("buffer_store_%s %s, %s, %s, %s offen offset:%d %s" % (op, vr(d, n), vr(va), srd(s), so, off, mod))
        vm.push(tag)

    def dma(va, s, so, off=0, tag=None):
        a("buffer_load_dwordx4 %s, %s, %s offen offset:%d lds" % (vr(va), srd(s), so, off))
        vm.push(tag)

    def dsr(op, d, n, va, off, tag=None):
        a("%s %s, %s offset:%d" % (op, vr(d, n), vr(va), off))
        lg.push(tag)

    def dsw(op, va, d, n, off, tag=None):
        a("%s %s, %s offset:%d" % (op, vr(va), vr(d, n), off))
        lg.push(tag)

    def trread(d, va, off, second, tag=None):
        dsr("ds_read_b64_tr_b16", d, 2, va, off, tag)
        dsr("ds_read_b64_tr_b16", d + 2, 2, va, off + second, tag)

    def set_flag(vt, soff):
        a("v_mov_b32 %s, %s" % (vr(vt), sr(sTAG)))
        a("s_mov_b64 exec, 1")
        bstore(vt, 1, 1, SWS, soff, 0, "sc0 sc1")
        a("s_mov_b64 exec, -1")

    stubs = []

    def check_flags(tag, vt, lanes, soff):
        a("v_cmp_ne_u32 vcc, %s, %s" % (sr(sTAG), vr(vt)))
        a("s_cbranch_vccnz L_poll_" + tag)
        a.label("L_polled_" + tag)
        stubs.append((tag, vt, lanes, soff))

    def flag_load(vt, shift, soff, tag):
        a("v_and_b32 %s, 31, v0" % vr(vt))
        a("v_lshlrev_b32 %s, %d, %s" % (vr(vt), shift, vr(vt)))
        bload(vt, 1, vt, SWS, soff, 0, "sc0 sc1", tag)

    sizes = {SX: 2048 * 1024, SWQ: 512 * 3072, SWS: WS_END, SW1: 512 * 2752, SB1: 2752,
             SWO: 512 * 1024, SW2: 1376 * 1024, SB2: 1024, SOUT: 2048 * 1024}
    RAW = 128

    def xloads():
        for j in range(8):
            bload(RAW + j * 4, 4, 14, SX, "s101", j * 128, "", ("x", j))

    stamp(0)
    a("""
    s_load_dwordx2 s[24:25], s[0:1], 0
    s_getpc_b64 s[72:73]
    L_pc:
    s_cmpk_ge_u32 s2, 256
    s_cbranch_scc1 L_end
    s_lshr_b32 s74, s2, 3
    s_lshl_b32 s74, s74, 11
    v_lshrrev_b32 v8, 5, v0
    v_lshl_add_u32 v8, v8, 7, s74
    v_min_u32 v8, L_code_end-L_pc, v8
    v_mov_b32 v9, 0
    v_lshl_add_u64 v[8:9], v[8:9], 0, s[72:73]
    global_load_dword v7, v[8:9], off
    s_lshl_b32 s72, s2, 4
    s_and_b32 s72, s72, 0x180
    v_add_u32 v4, s72, v0
    v_bfe_u32 v4, v4, 3, 6
    v_and_b32 v5, 7, v0
    v_lshlrev_b32 v14, 10, v4
    v_lshl_add_u32 v14, v5, 4, v14
    s_lshr_b32 s67, s2, 5
    s_and_b32 s73, s2, 6
    s_lshl2_add_u32 s62, s73, s67
    s_lshl_b32 s101, s62, 16
    s_mov_b32 s26, %d
    s_mov_b32 s27, 0x20000
    v_bfe_u32 v24, v4, 1, 3
    v_xor_b32 v24, v24, v5
    v_lshlrev_b32 v15, 7, v4
    v_lshl_add_u32 v15, v24, 4, v15
    v_readfirstlane_b32 s60, v0
    v_and_b32 v0, 63, v0
    v_mov_b32 v24, 0
    v_mov_b32 v25, 0
    s_lshr_b32 s60, s60, 6
    s_cmp_ge_u32 s60, 4
    s_waitcnt lgkmcnt(0)
    """ % sizes[SX])
    vm.push("pf")
    if cfg.bst == 3:
        stamp(1, True)
    xloads()
    if cfg.bst == 3:
        stamp(2, True)
    if cfg.stamps:
        for i in range(3 if cfg.bst == 3 else 1, 16):
            a("s_mov_b32 %s, s4" % sr(sSTAMP + i))
    a("s_mov_b32 s63, 1")
    a("s_cbranch_scc1 L_ln")
    a("s_mov_b32 s63, 0")

    def setup1():
        for s, off in ((SWQ, 8), (SWS, 80), (SW1, 32), (SB1, 40), (SWO, 16), (SW2, 48), (SB2, 56), (SOUT, 64)):
            a("s_load_dwordx2 %s, s[0:1], %d" % (sr(s, 2), off))
        a("""
        s_mov_b32 s30, %d
        s_mov_b32 s31, 0x20000
        s_bfe_u32 s72, s2, 0x20003
        s_and_b32 s73, s2, 1
        s_lshl2_add_u32 s61, s73, s72
        s_and_b32 s74, s60, 3
        s_lshl_b32 s72, s61, 7
        s_mul_i32 s85, s74, %d
        s_add_u32 s85, s85, s72
        s_mul_i32 s87, s74, 6144
        s_add_u32 s87, s87, %d
        v_lshrrev_b32 v4, 3, v0
        v_bfe_u32 v6, v4, 1, 1
        v_lshlrev_b32 v6, 2, v6
        v_xor_b32 v6, v6, v5
        v_lshlrev_b32 v6, 4, v6
        v_mul_u32_u24 v13, 3072, v4
        v_add_u32 v13, v13, v6
        s_waitcnt lgkmcnt(0)
        """ % (sizes[SWQ], 16 * 3072, L_RING))

    def setup_pf():
        for s in (SW1, SWO, SW2):
            a("s_mov_b32 %s, %d" % (sr(s + 2), sizes[s]))
            a("s_mov_b32 %s, 0x20000" % sr(s + 3))
        a("""
        s_and_b32 s73, s60, 3
        s_lshl2_add_u32 s100, s2, s73
        s_mul_i32 s100, s100, 1536
        v_min_u32 v31, 11, v0
        v_lshlrev_b32 v31, 7, v31
        """)

    def setup2():
        a("s_load_dword %s, %s, 0" % (sr(sTAG), sr(SWS, 2)))
        for s in (SWS, SB1, SB2, SOUT):
            a("s_mov_b32 %s, %d" % (sr(s + 2), sizes[s]))
            a("s_mov_b32 %s, 0x20000" % sr(s + 3))
        a("""
        s_bfe_u32 s72, s2, 0x20003
        s_and_b32 s73, s2, 7
        s_lshl2_add_u32 s66, s73, s72
        s_and_b32 s72, s72, 1
        s_lshl1_add_u32 s64, s73, s72
        s_lshr_b32 s65, s2, 4
        s_mul_i32 s69, s61, 6
        s_mul_i32 s73, s61, 5
        s_add_u32 s73, s73, 3
        s_min_u32 s69, s69, s73
        s_mov_b32 s70, 0xffff
        s_mov_b32 s71, 0xffff
        v_lshlrev_b32 v1, 4, v0
        v_and_b32 v2, 15, v0
        v_lshrrev_b32 v3, 5, v0
        v_lshl_add_u32 v2, v3, 4, v2
        v_lshlrev_b32 v2, 4, v2
        """)

    def setup3():
        a("; attention offsets: s82 = next K/V tile, s83 = head base, s92-s95 = Q tiles, s96-s99 = O partial slots")
        a("""
        s_and_b32 s74, s60, 1
        s_lshr_b32 s75, s60, 1
        s_lshl1_add_u32 s72, s64, s74
        s_lshl_b32 s83, s72, 17
        s_add_u32 s83, s83, %d
        s_and_b32 s73, s75, 1
        s_lshl_b32 s73, s73, 16
        s_add_u32 s82, s83, s73
        s_lshl_b32 s72, s65, 6
        s_add_u32 s72, s72, s64
        s_lshl1_add_u32 s72, s72, s74
        s_lshl_b32 s72, s72, 10
        s_add_u32 s72, s72, %d
        s_mul_i32 s84, s74, %d
        s_add_u32 s84, s84, %d
        """ % (WS_KV, WS_QO, 12 * 2304, L_OPART))
        for t in range(4):
            a("s_xor_b32 s73, s75, %d" % (t ^ 3))
            a("s_mul_i32 %s, s73, %d" % (sr(96 + t), 3 * 2304))
            a("s_lshl_b32 s73, s73, 15")
            a("s_add_u32 %s, s72, s73" % sr(92 + t))
            a("s_add_u32 %s, %s, s84" % (sr(96 + t), sr(96 + t)))

    setup1()
    setup_pf()
    setup2()
    setup3()
    a("""
    s_add_u32 s82, s82, %d
    v_and_b32 v8, 0x33, v0
    v_and_b32 v9, 4, v0
    v_lshl_or_b32 v8, v9, 1, v8
    v_and_b32 v9, 8, v0
    v_lshrrev_b32 v9, 1, v9
    v_or_b32 v8, v8, v9
    v_lshlrev_b32 v11, 4, v8
    v_bfe_u32 v9, v0, 4, 1
    v_mul_u32_u24 v12, 0x1fe00, v9
    v_add_u32 v12, v12, v2
    v_mul_u32_u24 v14, 0x1fa00, v9
    v_add_u32 v14, v14, v2
    v_lshl_add_u32 v4, v4, 10, v6
    v_bfe_u32 v10, v0, 2, 2
    v_lshlrev_b32 v5, 5, v9
    v_lshl_add_u32 v5, v10, 7, v5
    v_and_b32 v9, 3, v0
    v_lshl_add_u32 v5, v9, 3, v5
    v_lshrrev_b32 v10, 1, v10
    v_lshl_add_u32 v8, v3, 10, v5
    v_xor_b32 v9, s75, v10
    v_lshl_add_u32 v8, v9, 6, v8
    v_add_u32 v8, %d, v8
    v_add_u32 v9, %d, v8
    v_lshl_add_u32 v5, v3, 9, v5
    v_lshl_add_u32 v5, v10, 6, v5
    v_lshrrev_b32 v10, 1, v0
    v_xor_b32 v10, v10, v0
    v_and_b32 v10, 1, v10
    v_mul_u32_u24 v10, 24, v10
    v_xor_b32 v5, v5, v10
    s_mul_i32 s84, s60, %d
    s_add_u32 s84, s84, %d
    v_add_u32 v5, s84, v5
    v_xor_b32 v6, 64, v5
    v_and_b32 v10, 31, v0
    s_lshl_b32 s72, s74, 12
    v_bfe_u32 v16, v10, 1, 3
    v_xor_b32 v16, v16, v3
    v_lshlrev_b32 v16, 4, v16
    v_lshl_add_u32 v16, v10, 7, v16
    v_add_u32 v16, s72, v16
    v_xor_b32 v17, 32, v16
    v_xor_b32 v18, 64, v16
    v_xor_b32 v19, 0x60, v16
    v_lshlrev_b32 v10, 1, v10
    v_lshl_add_u32 v10, v3, 20, v10
    """ % (nB * 2048, L_RING, 2 * 24576, W2_REGION, L_W2))
    for seg in range(3):
        for q in range(1, 4):
            a("v_mov_b32 %s, 0" % vr(112 + 4 * seg + q))
    for q in range(4):
        a("v_mov_b32 %s, 0x3f803f80" % vr(124 + q))
    a("v_mov_b32 v3, 0xdddddddd")
    a("""
    s_lshl1_add_u32 s72, s62, s74
    s_lshl1_add_u32 s73, s61, s75
    s_lshl_b32 s76, s73, 7
    s_add_u32 s76, s76, s72
    s_lshl_b32 s77, s76, 11
    s_lshl4_add_u32 s76, s72, s73
    s_lshl_b32 s76, s76, 11
    s_add_u32 s76, s76, %d
    s_add_u32 s77, s77, %d
    s_add_u32 s81, s69, s75
    s_lshl_b32 s78, s81, 7
    s_add_u32 s78, s78, s72
    s_lshl_b32 s78, s78, 10
    s_add_u32 s78, s78, %d
    s_lshl_b32 s79, s61, 6
    s_add_u32 s79, s79, s62
    s_lshl_b32 s79, s79, 4
    s_add_u32 s79, s79, %d
    s_lshl_b32 s80, s62, 3
    s_add_u32 s80, s80, s61
    s_lshl2_add_u32 s80, s80, s60
    s_lshl_b32 s80, s80, FSH
    s_add_u32 s80, s80, %d
    s_mul_i32 s73, s61, s75
    s_add_u32 s88, s78, %d
    s_cmp_lt_u32 s73, 3
    s_cselect_b32 s88, s88, 0x40000000
    s_lshl_b32 s81, s81, 6
    """ % (WS_QO, WS_KV, WS_HF, WS_FLAGQ, WS_FLAGH, 8 * 65536))

    def slot_of(c):
        if not cfg.xslot or c < cfg.xslot:
            return (c & 3) * 24576
        return -L_RING if c == cfg.xslot else ((c - 1) & 3) * 24576

    skip_bar = (10,) if cfg.xslot > 8 else ()

    def issue_chunk(c, ms=range(6)):
        if cfg.rot:
            a("s_xor_b32 s73, s67, %d" % (c & 7))
            a("s_mul_i32 s73, s73, %d" % (64 * (3072 if c < 8 else 2752)))
            a("s_add_u32 s73, s73, %s" % ("s85" if c < 8 else "s80"))
        for m in ms:
            blk, seg = divmod(m, 3)
            a("s_add_u32 m0, s87, %d" % (slot_of(c) + seg * 2048 + blk * 1024))
            if c < 8:
                a("s_add_u32 s72, %s, %d" % (("s73", blk * 8 * 3072 + seg * 1024) if cfg.rot else ("s85", (c * 64 + blk * 8) * 3072 + seg * 1024)))
                dma(13, SWQ, "s72", 0, ("w", c))
            else:
                a("s_add_u32 s72, %s, %d" % (("s73", blk * 8 * 2752 + seg * 128) if cfg.rot else ("s80", ((c - 8) * 64 + blk * 8) * 2752 + seg * 128)))
                dma(57 if seg == 2 else 56, SW1, "s72", 0, ("w", c))

    def layernorm(acts):
        def act(p):
            if acts.get(p):
                assert p >= 7
                a("s_cmp_eq_u32 s63, 1")
                a("s_cbranch_scc1 L_ln_%d" % p)
                for f in acts[p]:
                    f()
                a.label("L_ln_%d" % p)
        a.label("L_ln")
        a("v_mov_b32 v30, 0x3f803f80")
        a("s_mov_b32 s89, 0xffff0000")
        if cfg.rot:
            a("; K chunks are visited in the order c ^ (row block & 7): workgroups sharing weights fetch different chunks first")
            a("s_lshl_b32 s72, s67, 13")
            a("v_or_b32 v15, s72, v15")

        def xwrite(j):
            if cfg.rot:
                a("v_xor_b32 v23, 0x%x, v15" % (j << 13))
                a("ds_write_b128 v23, %s" % vr(RAW + j * 4, 4))
            else:
                a("ds_write_b128 v15, %s offset:%d" % (vr(RAW + j * 4, 4), j * 8192))

        for j in range(8):
            if cfg.bst == 3 and j == 0:
                stamp(3, True)
            vm.wait(("x", j))
            if cfg.bst == 3 and j in (0, 3, 7):
                stamp({0: 4, 3: 5, 7: 6}[j], True)
            act(j)
            for q in range(4):
                x = RAW + j * 4 + q
                a("v_dot2c_f32_bf16 v24, v30, %s" % vr(x))
                a("v_dot2c_f32_bf16 v25, %s, %s" % (vr(x), vr(x)))
        act(8)
        stamp(1)
        for ctl in ("quad_perm:[1,0,3,2]", "quad_perm:[2,3,0,1]", "row_half_mirror"):
            for r in (24, 25):
                a("v_add_f32_dpp %s, %s, %s %s row_mask:0xf bank_mask:0xf" % (vr(r), vr(r), vr(r), ctl))
        a("""
        v_mul_f32 v24, 0x3b000000, v24
        v_mul_f32 v25, 0x3b000000, v25
        v_fma_f32 v25, -v24, v24, v25
        v_max_f32 v25, 0, v25
        v_cvt_pk_bf16_f32 v24, v24, v25
        v_and_b32 v25, s89, v24
        v_add_f32 v25, 0x3727c5ac, v25
        v_cvt_pk_bf16_f32 v25, v25, v25
        v_and_b32 v25, s89, v25
        v_sqrt_f32 v25, v25
        v_lshlrev_b32 v24, 16, v24
        v_cvt_pk_bf16_f32 v25, v25, v25
        v_and_b32 v25, s89, v25
        v_rcp_f32 v26, v25
        v_mul_f32_e64 v28, -v24, v26
        """)
        for j in range(8):
            x = RAW + j * 4
            t = 192 + (j & 1) * 8
            for q in range(4):
                a("v_lshlrev_b32 %s, 16, %s" % (vr(t + 2 * q), vr(x + q)))
                a("v_and_b32 %s, s89, %s" % (vr(t + 2 * q + 1), vr(x + q)))
            for q in range(4):
                a("v_pk_fma_f32 %s, %s, v[26:27], v[28:29] op_sel_hi:[1,0,0]" % (vr(t + 2 * q, 2), vr(t + 2 * q, 2)))
            for q in range(4):
                a("v_cvt_pk_bf16_f32 %s, %s, %s" % (vr(x + q), vr(t + 2 * q), vr(t + 2 * q + 1)))
            if not cfg.defer:
                xwrite(j)
        if cfg.bst == 3:
            stamp(7, True)
        act(9)
        if cfg.defer:
            for j in range(8):
                xwrite(j)
        act(10)
        stamp(2)
        if cfg.bst == 3:
            stamp(8, True)

    def pfq():
        a("; memory-side prefetch of Wqkv")
        bload(7, 1, 31, SWQ, "s100", 0, "", "pf")

    def pfl2(which):
        a("; the die's workgroups pull their half of the weight columns into L2 together, four rows per wave")
        stride = 3072 if which == SWQ else 2752
        a("s_lshr_b32 s72, s2, 3")
        a("s_and_b32 s73, s60, 3")
        a("s_lshl2_add_u32 s72, s72, s73")
        a("s_mul_i32 s72, s72, %d" % (4 * stride))
        a("s_and_b32 s73, s2, 1")
        a("s_mul_i32 s73, s73, %d" % (512 if which == SWQ else 1472))
        a("s_add_u32 s72, s72, s73")
        a("v_lshrrev_b32 v20, 4, v0")
        a("v_mul_u32_u24 v20, %d, v20" % stride)
        if which == SWQ:
            a("v_bfe_u32 v21, v0, 2, 2")
            a("v_min_u32 v21, 2, v21")
            a("v_lshl_add_u32 v20, v21, 10, v20")
            a("v_and_b32 v21, 3, v0")
            a("v_lshl_add_u32 v20, v21, 7, v20")
        else:
            a("v_and_b32 v21, 15, v0")
            a("v_lshlrev_b32 v21, 7, v21")
            a("v_min_u32 v21, 1468, v21")
            a("v_add_u32 v20, v20, v21")
        bload(22, 1, 20, which, "s72", 0, "", "pf")

    def pfc(which):
        a("; lines at offset 384 of every KiB stream slowly on a miss: the die's workgroups pull them into L2 together")
        a("s_lshr_b32 s72, s2, 3")
        a("s_lshl2_add_u32 s72, s72, s60")
        a("s_mul_i32 s72, s72, 12288")
        a("v_lshlrev_b32 v20, 3, v31")
        if which == SWQ:
            a("s_bitcmp1_b32 s2, 0")
            a("s_cselect_b32 s72, 0x40000000, s72")
        bload(7, 1, 20, which, "s72", 384, "", "pf")

    def pf1():
        a("; memory-side prefetch of W1")
        bload(7 if cfg.pf1_at <= 10 else 32, 1, 31, SW1, "s100", 0, "", "pf")

    acts = {}
    if cfg.pfc_at == 0:
        save = list(vm.items)
        pfc(SWQ)
        vm.items = save
    elif cfg.pfc_at <= 10:
        acts.setdefault(cfg.pfc_at, []).append(lambda: pfc(SWQ))
    if cfg.pfq_at == 0:
        save = list(vm.items)
        pfq()
        vm.items = save
    elif cfg.pfq_at <= 10:
        acts.setdefault(cfg.pfq_at, []).append(pfq)
    if cfg.l2q == 0:
        save = list(vm.items)
        pfl2(SWQ)
        vm.items = save
    if cfg.l2q == 7:
        acts.setdefault(7, []).append(lambda: pfl2(SWQ))
    for c, p in enumerate((cfg.w0_at, cfg.w1_at, cfg.w2_at, 10)[:cfg.lead + 1]):
        acts.setdefault(p, []).append(lambda c=c: issue_chunk(c))
    if 8 <= cfg.l2q <= 10:
        acts.setdefault(cfg.l2q, []).insert(0, lambda: pfl2(SWQ))
    if cfg.pf1_at <= 10:
        acts.setdefault(cfg.pf1_at, []).append(pf1)
    if cfg.pfc1:
        acts.setdefault(10, []).append(lambda: pfc(SW1))
    layernorm(acts)
    a("s_cmp_eq_u32 s63, 1")
    a("s_cbranch_scc1 L_loader")

    QR, SB, WF, FA, OA, KV, HB = 8, 24, 56, 64, 128, 192, 228
    NKV = 3

    def att_init_ops():
        ops = ["v_mov_b32 %s, 0" % vr(OA + 16 * t + i) for t in range(4) for i in range(9)]
        ops2 = ["v_and_b32 v7, 27, v0", "v_cmp_eq_u32 vcc, 16, v7", "v_mov_b32 v7, 0x3f803f80", "v_cndmask_b32 v7, 0, v7, vcc"]
        ops2 += ["v_mov_b32 %s, v7" % vr(KV + 12 * b + 4 + q) for b in range(NKV) for q in range(8)]
        return ops, ops2

    def kvload(j):
        b = j % NKV
        bload(KV + 12 * b, 4, 252, SWS, "s82", 0, "sc1", ("kv", j))
        a("s_mov_b64 exec, %s" % sr(sVM, 2))
        bload(KV + 12 * b + 4, 4, 253, SWS, "s82", 0, "sc1", ("kv", j))
        bload(KV + 12 * b + 8, 4, 254, SWS, "s82", 0, "sc1", ("kv", j))
        a("s_mov_b64 exec, -1")
        a("s_add_u32 s82, s82, 2048")

    def att_loads(role):
        a("s_and_b32 s72, s60, 1")
        a("s_lshl_b32 s73, s72, 10")
        a("v_add_u32 v252, s73, v1")
        a("s_lshr_b32 s73, 0x400, s72")
        a("v_add_u32 v253, s73, v2")
        a("s_mul_i32 s73, s72, 0x600")
        a("s_sub_u32 s73, 0x600, s73")
        a("v_add_u32 v254, s73, v2")
        bload(QR, 4, 1, SWS, "s92", 0, "sc1", "q")
        kvload(0)
        for t in range(1, 4):
            bload(QR + 4 * t, 4, 1, SWS, sr(92 + t), 0, "sc1", "q")
        kvload(1)
        if cfg.kv3 and role == "a":
            kvload(2)

    def dump_addr():
        a("""
        s_and_b32 s74, s60, 3
        s_lshr_b32 s75, s60, 2
        s_lshl2_add_u32 s72, s66, s74
        s_lshr_b32 s85, s72, 1
        s_lshl1_add_u32 s85, s85, s75
        s_andn2_b32 s73, 3, s2
        s_lshl2_add_u32 s85, s85, s73
        s_lshl_b32 s85, s85, 12
        s_and_b32 s72, s72, 1
        s_lshl_b32 s72, s72, 10
        s_add_u32 s85, s85, s72
        s_add_u32 s85, s85, %d
        s_xor_b32 s86, s85, 0x1000
        s_xor_b32 s87, s85, 0x2000
        s_xor_b32 s88, s85, 0x3000
        s_and_b32 s73, s60, 1
        s_lshl_b32 s73, s73, 9
        s_sub_u32 s90, s95, s73
        s_lshl3_add_u32 s91, s66, s60
        s_lshl_b32 s91, s91, 13
        s_lshl_b32 s79, s67, 7
        s_add_u32 s91, s91, s79
        """ % WS_QO)
        a("v_lshlrev_b32 v8, 2, v0")
        a("v_add_u32 v9, s99, v1")
        a("v_add_u32 v10, s99, v8")
        a("v_bfe_u32 v11, v0, 4, 1")
        a("v_lshl_add_u32 v11, v11, 10, v2")

    def dump(t):
        a("v_add_u32 v12, %s, v1" % sr(96 + t))
        a("v_add_u32 v13, %s, v8" % sr(96 + t))
        dsw("ds_write_b128", 12, OA + 16 * t, 4, t * 2304)
        dsw("ds_write_b128", 12, OA + 16 * t + 4, 4, t * 2304 + 1024)
        dsw("ds_write_b32", 13, OA + 16 * t + 8, 1, t * 2304 + 2048)

    deferred = []
    cfg_gap = {0: range(16), 1: (1, 10), 2: (0, 9), 3: (4, 10), 4: (1,), 5: (4,), 6: (15, 9)}[cfg.gap]

    def att_run(n, hooks):
        hooks.setdefault((n - 1, 0, 11), []).append(dump_addr)
        for t in range(3):
            hooks.setdefault((n - 1, t + 1, 12), []).append(lambda t=t: dump(t))
        vm.wait("q", ("kv", 0))
        mfma32(SB, KV, QR, None)
        for j in range(n):
            b = j % NKV
            for t in range(4):
                cur, oth = SB + 16 * (t & 1), SB + 16 * ((t + 1) & 1)
                for i in range(16):
                    a("v_exp_f32 %s, %s" % (vr(cur + i), vr(cur + i)))
                    if i in cfg_gap:
                        while deferred:
                            deferred.pop(0)()
                    if t == cfg.kvt and i == cfg.kvi and j + NKV - 1 < n and not (cfg.abl & 32 and j > 0) and not (cfg.kv3 and j == 0):
                        kvload(j + NKV - 1)
                    if i == 1 and (j, t) != (0, 0):
                        smf(OA + 16 * ((t + 3) & 3), KV + 12 * (b if t else (j - 1) % NKV) + 8, oth + 8)
                    if i == 4:
                        if t < 3:
                            mfma32(oth, KV + 12 * b, QR + 4 * (t + 1), None)
                        elif j + 1 < n:
                            vm.wait(("kv", j + 1))
                            mfma32(oth, KV + 12 * ((j + 1) % NKV), QR, None)
                    if i == 10:
                        smf(OA + 16 * t, KV + 12 * b + 4, cur)
                    for h in hooks.get((j, t, i), ()):
                        h()
        smf(OA + 48, KV + 12 * ((n - 1) % NKV) + 8, SB + 16 + 8)

    ACC = (24, 40, 56)
    WB, NBUF, LA = 72, 6, cfg.look
    XF, PK, XA = 128, 96, 16
    init1, init2 = att_init_ops()

    def item(g):
        return divmod(g % 96, 3)

    def reads(g):
        ks, sel = item(g)
        c, m = divmod(g, 12)
        so = slot_of(c)
        base, so = (XA, 0) if so < 0 else (8 + so // 49152, so % 49152)
        if g < 96 and sel == 0:
            dsr("ds_read_b128", XF + 4 * ks, 4, XA + (ks & 3), (ks >> 2) * 8192, g)
        trread(WB + 4 * (g % NBUF), base, so + m * 2048, 512, g)

    def pack(acc, pk):
        return ["v_cvt_pk_bf16_f32 %s, %s, %s" % (vr(pk + q), vr(acc + 2 * q), vr(acc + 2 * q + 1)) for q in range(8)]

    def st2(pk, va, base, delta, tag, imm=(0, 0), vb=None):
        def first():
            bstore(pk, 4, va, SWS, base, imm[0], "" if cfg.abl & 64 else "sc1", tag)

        def second():
            if delta:
                a("s_add_u32 s72, %s, %d" % (base, delta))
            bstore(pk + 4, 4, vb or va, SWS, "s72" if delta else base, imm[1], "" if cfg.abl & 64 else "sc1", tag)
        return [first, second]

    def relu2(acc):
        return (["v_max_f32 %s, 0, %s" % (vr(acc + i), vr(acc + i)) for i in range(16)]
                + ["v_mul_f32 %s, %s, %s" % (vr(acc + i), vr(acc + i), vr(acc + i)) for i in range(16)])

    def bias(seg):
        return lambda: (vm.wait("b1"), mfma32(ACC[seg], 112 + 4 * seg, 124, None))

    tagq = ["v_or_b32 %s, 1, %s" % (vr(PK + 4 * q), vr(PK + 4 * q)) for q in range(2)]
    qkv_epi = (["v_mul_f32 %s, 0x%x, %s" % (vr(ACC[0] + i), QSCALE, vr(ACC[0] + i)) for i in range(16)]
               + pack(ACC[0], PK) + tagq + [bias(0)] + st2(PK, 1, "s76", 0, "st", (0, 1024))
               + pack(ACC[1], PK + 8) + [bias(1)] + st2(PK + 8, 11, "s77", 0x20400, "st")
               + pack(ACC[2], PK) + [bias(2)] + st2(PK, 12, "s77", 0, "st", (1024, 1536), 14))
    sched = {92: ["v_subrev_u32 %s, %d, v8" % (vr(XA), L_RING)], 144: init1, 180: init2}
    shadow = []

    def run_shadow(budget):
        while shadow and budget > 0:
            op = shadow.pop(0)
            if isinstance(op, str):
                a(op)
                budget -= 1
            else:
                op()
                budget -= 3

    a("""
    s_lshl_b32 s85, s60, 14
    s_lshl_b32 s72, s67, 7
    s_add_u32 s85, s85, s72
    s_lshl_b32 s86, s60, 6
    s_lshl1_add_u32 s86, s66, s86
    s_lshl_b32 s86, s86, 10
    s_add_u32 s86, s86, %d
    s_lshl_b32 s87, s66, FROW
    s_add_u32 s87, s87, %d
    """ % (WS_HF, WS_FLAGH))
    vm.wait(("w", 0))
    a("s_waitcnt lgkmcnt(0)")
    a("s_add_u32 %s, %s, 0x%x" % (sr(sTAG), sr(sTAG), EPOCH_INC))
    if cfg.bst == 3:
        stamp(9, True)
    a("s_barrier")
    stamp(3)
    if cfg.bst == 3:
        stamp(10, True)
    for g in range(LA):
        reads(g)
    for g in range(192):
        ks, sel = item(g)
        if g == 96:
            stamp(4)
            shadow.extend(qkv_epi)
            run_shadow(1000)
            stamp(5)
            if cfg.split:
                a("s_barrier")
                for n in range(96, 96 + LA):
                    reads(n)
        lg.wait(g)
        x, w = XF + 4 * ks, WB + 4 * (g % NBUF)
        c = None if (g < 96 and ks == 0) else ACC[sel]
        if g < 96 and sel == 2:
            mfma32(ACC[sel], x, w, c)
        else:
            mfma32(ACC[sel], w, x, c)
        n = g + LA
        if n < 192 and not (cfg.split and g < 96 <= n):
            if n % 12 == 0 and n // 12 not in skip_bar:
                vm.wait(("w", n // 12))
                if n // 12 == cfg.flag_chunk:
                    vm.wait("st")
                a("s_barrier")
                if n // 12 == cfg.flag_chunk:
                    a("s_cmp_lg_u32 s60, 0")
                    a("s_cselect_b32 s79, 0x40000000, s79")
                    set_flag(7, "s79")
                    stamp(6)
            reads(n)
        if g == 40:
            for seg in range(3):
                a("buffer_load_ushort %s, v10, %s, s81 offen offset:%d" % (vr(112 + 4 * seg), srd(SB1), seg * 128))
                vm.push("b1")
        shadow.extend(sched.get(g, ()))
        run_shadow(3)
    run_shadow(1000)
    stamp(7)
    hmath, hst = [], []
    for seg in range(3):
        pk = PK + 8 * seg
        hmath.append(relu2(ACC[seg]) + pack(ACC[seg], pk))
        hst.append((["s_add_u32 s78, s78, 0x40000"] if seg == 1 else []) + st2(pk, 1, "s78" if seg < 2 else "s88", 0x10000, "hst"))
    for seg in range(cfg.hbar):
        shadow.extend(hmath[seg])
    run_shadow(1000)
    a("s_barrier")
    stamp(8)
    if cfg.bst == 4:
        stamp(1, True)
    a("s_setprio 2")
    for seg in range(cfg.hbar, cfg.hpre):
        shadow.extend(hmath[seg])
    run_shadow(1000)
    att_loads("a")
    hlist = [[hst[0][0]], [hst[0][1]], hst[1][:2], [hst[1][2]], [hst[2][0]], [hst[2][1]]]
    for seg in range(3):
        shadow.extend(hmath[seg] if seg >= max(cfg.hpre, cfg.hbar) else [])
        for n in (2 * seg, 2 * seg + 1):
            if n < cfg.hnow:
                shadow.extend(hlist[n])
    run_shadow(1000)
    stamp(9)


    def w2dma(i):
        if cfg.abl & 1:
            return
        a("s_add_u32 m0, s84, %d" % ((i & 3) * 2048))
        a("s_add_u32 s72, s85, %d" % (i * 65536))
        dma(4, SW2, "s72", 0, ("w2", i))
        a("s_add_u32 s72, s72, 7168")
        dma(4, SW2, "s72", 1024, ("w2", i))

    hreg = lambda i, tt: HB + 8 * (i % 3) + 4 * tt

    def hload(i):
        if cfg.abl & 1:
            return
        if i > 0:
            a("s_add_u32 s86, s86, 0x40000")
        for tt in range(2):
            bload(hreg(i, tt), 4, 1, SWS, "s86", tt * 1024, "sc1", ("h", i))

    def w2read(i, nt):
        if cfg.abl & 2:
            return
        vm.wait(("w2", i))
        trread(WF + 4 * nt, 5 + nt, (i & 3) * 2048, 1024, ("wf", i, nt))

    def fslot(f):
        i, m = divmod(f, 4)
        nt, tt = ((0, 0), (0, 1), (1, 1), (1, 0))[m]
        vm.wait(("h", i))
        lg.wait(("wf", i, nt))
        d = FA + 16 * (2 * tt + nt)
        if not cfg.abl & 4:
            mfma32(d, WF + 4 * nt, hreg(i, tt), None if i == 0 else d)
        if m == 1 and i + 1 < NS:
            deferred.append(lambda: w2read(i + 1, 0))
        if m == cfg.dmam and i + 4 < NS:
            deferred.append(lambda: w2dma(i + 4))
        if m == 3:
            if i + 1 < NS:
                deferred.append(lambda: w2read(i + 1, 1))
            if i + 3 < NS:
                deferred.append(lambda: hload(i + 3))

    def park(tt, nt):
        d = FA + 16 * (2 * tt + nt)
        for q in range(8):
            a("v_cvt_pk_bf16_f32 %s, %s, %s" % (vr(d + q), vr(d + 2 * q), vr(d + 2 * q + 1)))
        for q in range(2):
            dsw("ds_write_b128", 4, d + 4 * q, 4, tt * 32 * PART_STRIDE + nt * 64 + q * 32)

    def park_addr():
        a("v_and_b32 v4, 31, v0")
        a("v_mul_u32_u24 v4, %d, v4" % PART_STRIDE)
        a("v_lshrrev_b32 v5, 5, v0")
        a("v_lshl_add_u32 v4, v5, 4, v4")
        a("v_add_u32 v4, s84, v4")

    hooks = {}

    def hook(j, t, i, f):
        hooks.setdefault((j, t, i), []).append(f)

    n1 = cfg.n1
    for n in range(cfg.hnow, 6):
        tl = (n - cfg.hnow) * cfg.hgap + cfg.hoff
        hook(tl >> 2, tl & 3, 9, lambda n=n: (shadow.extend(hlist[n]), run_shadow(1000)))
    assert (5 - cfg.hnow) * cfg.hgap + cfg.hoff <= cfg.hflag < 4 * (n1 - 2)
    hook(cfg.hflag >> 2, cfg.hflag & 3, 12, lambda: (vm.wait("hst"), set_flag(7, "s80"), stamp(1) if cfg.hst else None))
    hook(n1 - 2, 0, 8, lambda: flag_load(7, cfg.fsh, "s87", "hf"))
    hook(n1 - 2, 3, 12, lambda: (vm.wait("hf"), stamp(2) if cfg.hst else None, check_flags("h", 7, cfg.fsh, "s87"), stamp(3) if cfg.hst else None))
    for i in range(4):
        hook(n1 - 3 + (i >> 1), 1 + (i & 1), 7, lambda i=i: w2dma(i))
    for i in range(3):
        hook(n1 - 1, i, 7, lambda i=i: hload(i))
    hook(n1 - 1, 3, 7, lambda: (w2read(0, 0), w2read(0, 1)))
    pat = [int(ch) for ch in str(cfg.fpat)]
    slots = [(j, t, pos) for j in range(n1, nA) for t in range(4) for pos in ((13,), (7, 13))[pat[t] - 1]]
    for f in range(4 * NS):
        hook(*slots[f], lambda f=f: fslot(f))
    tl = slots[4 * NS - 1][0] * 4 + slots[4 * NS - 1][1] + 1
    assert tl + 3 < 4 * nA
    hook(tl >> 2, tl & 3, 6, park_addr)
    for n, (nt, tt) in enumerate(((0, 0), (0, 1), (1, 1), (1, 0))):
        hook((tl + n) >> 2, (tl + n) & 3, 7, lambda tt=tt, nt=nt: park(tt, nt))
    if cfg.hst:
        for n in range(4):
            hook(n1 + 4 * n, 0, 1, lambda n=n: stamp(4 + n))
    if cfg.alow:
        tl = 4 * nA - cfg.alow
        hook(tl >> 2, tl & 3, 0, lambda: a("s_setprio 0"))
    if cfg.bst == 4:
        for n, j in enumerate(range(0, nA, 2)):
            hook(j, 0, 0, lambda n=n: stamp(2 + n, True))
    att_run(nA, hooks)
    vm.drain()
    a("s_branch L_att_done")

    a.label("L_loader")
    vm.items = []
    lg.items = []

    def b_setup():
        a("; waves 4-7: W1 DMA offsets v56/v57 (sixth tile out of range where the next group owns it), wo DMA offset v4, flagQ row s79")
        a("""
        v_mul_u32_u24 v56, 2752, v4
        v_add_u32 v56, v56, v6
        s_lshr_b32 s72, 0xf8, s61
        s_and_b32 s72, s72, 1
        s_lshl_b32 s72, s72, 23
        v_and_b32 v57, 64, v6
        v_mad_u32_u24 v57, v57, s72, v56
        v_bfe_u32 v6, v4, 1, 2
        v_lshlrev_b32 v6, 1, v6
        v_xor_b32 v6, v6, v5
        v_lshlrev_b32 v6, 4, v6
        v_lshl_add_u32 v4, v4, 10, v6
        v_min_u32 v5, %d, v0
        v_lshlrev_b32 v5, 7, v5
        s_lshr_b32 s79, s64, 1
        s_lshl_b32 s79, s79, 10
        s_add_u32 s79, s79, %d
        s_and_b32 s73, s60, 3
        s_lshl_b32 s72, s69, 6
        s_mul_i32 s80, s73, %d
        s_add_u32 s80, s80, s72
        """ % (cfg.pfn - 1, WS_FLAGQ, 16 * 2752))

        a("v_mov_b32 v3, 0xdddddddd")

    issued = cfg.lead
    setup1()
    state = {"issued": issued}
    pieces = {0: {4: (0, 1), 5: (2, 3), 6: (4, 5)}, 1: {4: (0, 1, 2), 5: (3, 4, 5)}, 2: {4: range(6)}, 3: {5: (0, 1, 2), 6: (3, 4, 5)}}[cfg.pcs]

    def b_step(c):
        if c in skip_bar:
            return
        vm.wait(("w", c + 1 if c + 1 in skip_bar else c))
        if cfg.bst == 2:
            stamp(c, True)
        if cfg.bst == 3 and c == 0:
            stamp(9, True)
        a("s_barrier")
        if cfg.bst == 1:
            stamp(c, True)
        if c in (0, 8, 12, 15):
            stamp({0: 3, 8: 4, 12: 5, 15: 6}[c])
        if c == cfg.bload - 1:
            flag_load(7, 4, "s79", "qf")
        if c == cfg.bload:
            vm.wait("qf")
            check_flags("q", 7, 4, "s79")
            stamp(7)
            att_loads("b")
        lim = c + 2
        if c < 8:
            lim = min(lim, cfg.hold)
        if cfg.split and c == 8:
            lim = 10 + cfg.split - 1
        if cfg.xslot == 12 and c == 9:
            lim = 12
        if cfg.xslot == 11 and c in (8, 9):
            lim = c + 3
        if cfg.xslot > 8 and c >= 11:
            lim = c + cfg.xrun
        if cfg.xslot == 8 and c >= 7:
            lim = c + cfg.xrun
        while state["issued"] < min(15, max(3, lim)):
            state["issued"] += 1
            if state["issued"] != 8 or cfg.xslot != 8:
                issue_chunk(state["issued"])
        if cfg.xslot == 8 and c in pieces:
            issue_chunk(8, pieces[c])
        if c == 0:
            setup_pf()
        if c == 1:
            setup2()
        if cfg.pf1_at == 12 + c:
            pf1()
        if c == 2:
            setup3()
        if c == 3:
            b_setup()
        if c == cfg.l2w:
            pfl2(SW1)
        if c == cfg.pfe:
            a("; memory-side prefetch of w2 and wo")
            bload(32, 1, 31, SW2, "s100", 0, "", "pf")
            bload(32, 1, 31, SWO, "s100", 0, "", "pf")
        if c == 4:
            for op in init1:
                a(op)
        if c == 5:
            for op in init2:
                a(op)
        if c == 7:
            a("s_waitcnt lgkmcnt(0)")
            a("s_add_u32 %s, %s, 0x%x" % (sr(sTAG), sr(sTAG), EPOCH_INC))

    def b_att():
        a("s_barrier")
        stamp(8)
        a("s_setprio 1")
        if cfg.kv3:
            kvload(2)

    bhooks = {}
    for c in range(17):
        f = (lambda c=c: b_step(c)) if c < 16 else b_att
        if c <= cfg.bjoin:
            f()
        else:
            tl = (c - cfg.bjoin) * cfg.btile - 1
            bhooks[(tl >> 2, tl & 3, 13)] = [f]

    def wo_dma(lo, hi):
        if cfg.abl & 8:
            return
        if lo == 0:
            a("; wo tile -> LDS [0, 64K), a few rows per score tile")
            a("s_andn2_b32 s72, 3, s2")
            a("s_and_b32 s78, s60, 3")
            a("s_lshl_b32 s76, s78, 1")
            a("s_xor_b32 s76, s76, s72")
            a("s_xor_b32 s77, s76, 1")
            a("s_lshl_b32 s73, s67, 7")
            a("s_lshl_b32 s76, s76, 16")
            a("s_lshl_b32 s77, s77, 16")
            a("s_add_u32 s76, s76, s73")
            a("s_add_u32 s77, s77, s73")
            a("s_lshl_b32 s78, s78, 14")
        for i in range(lo, hi):
            a("s_add_u32 m0, s78, %d" % (i * 1024))
            a("s_add_u32 s73, %s, %d" % ("s76" if i < 8 else "s77", (i & 7) * 8192))
            dma(4, SWO, "s73", 0, "wo")

    nl = cfg.pfn
    batches = [(SW2, i) for i in range(-(-11 // nl))] + [(SWO, i) for i in range(-(-4 // nl))]

    def pf_late(n):
        if cfg.abl & 16:
            return
        if n == 0:
            a("; memory-side prefetch of w2 (in k order) and wo, a few lines per wave at a time")
            a("s_and_b32 s90, s60, 3")
            a("s_lshl2_add_u32 s90, s2, s90")
            a("s_mul_i32 s90, s90, %d" % (nl * 128))
        a("s_add_u32 s72, s90, %d" % (batches[n][1] * nl * 131072))
        bload(7, 1, 5, batches[n][0], "s72", 0, "", "pf")

    for n in range(len(batches) if cfg.pfe > 90 else 0):
        tl = cfg.pfl + n * cfg.pfg
        bhooks[(tl >> 2, tl & 3, 7)] = [lambda n=n: pf_late(n)]
    for n, lo in enumerate(range(0, 16, cfg.won)):
        bhooks[((cfg.wol + n) >> 2, (cfg.wol + n) & 3, 8)] = [lambda lo=lo: wo_dma(lo, lo + cfg.won)]
    if cfg.bst == 4:
        for j in range(nB):
            bhooks.setdefault((j, 0, 0), []).append(lambda j=j: stamp(2 + j, True))
    att_run(nB, bhooks)
    vm.drain()

    OW = OA + 48
    WOF, OFR, AC, G, Z, X, SR = 128, 24, 8, 64, 96, 104, 112
    a.label("L_att_done")
    stamp(10)
    if cfg.bst == 4:
        stamp(14, True)
    a("s_setprio 0")
    a("""
    v_lshrrev_b32 v14, 3, v0
    v_and_b32 v7, 7, v0
    v_lshlrev_b32 v7, 4, v7
    v_lshl_add_u32 v14, v14, 10, v7
    """)
    bload(60, 4, 7, SB2, "s79", 0, "", "xb")
    bload(56, 4, 14, SX, "s91", 0, "", "xb")
    lg.drain()
    a("s_barrier")
    for src in range(3):
        d = SB + 10 * src
        dsr("ds_read_b128", d, 4, 9, src * 2304, src)
        dsr("ds_read_b128", d + 4, 4, 9, src * 2304 + 1024, src)
        dsr("ds_read_b32", d + 8, 1, 10, src * 2304 + 2048, src)
    for src in range(3):
        lg.wait(src)
        for i in range(0, 8, 2):
            a("v_pk_add_f32 %s, %s, %s" % (vr(OW + i, 2), vr(OW + i, 2), vr(SB + 10 * src + i, 2)))
        a("v_add_f32 %s, %s, %s" % (vr(OW + 8), vr(OW + 8), vr(SB + 10 * src + 8)))
    a("v_pk_mul_f32 v[12:13], %s, 0 op_sel_hi:[1,0]" % vr(OW, 2))
    for i in range(2, 8, 2):
        a("v_pk_fma_f32 v[12:13], %s, 0, v[12:13] op_sel_hi:[1,0,1]" % vr(OW + i, 2))
    a("""
    v_add_f32 v12, v12, %s
    v_add_f32 v12, v12, v13
    v_cmp_nle_f32 vcc, 0x30800000, v12
    s_mov_b64 s[72:73], vcc
    v_cmp_nge_f32 vcc, 0x5d800000, v12
    s_or_b64 s[72:73], s[72:73], vcc
    """ % vr(OW + 8))
    a("s_branch L_slow" if cfg.force_slow else "s_cbranch_scc1 L_slow")
    a.label("L_norm")
    a("v_rcp_f32 v12, %s" % vr(OW + 8))
    for i in range(0, 8, 2):
        a("v_pk_mul_f32 %s, %s, v[12:13] op_sel_hi:[1,0]" % (vr(OW + i, 2), vr(OW + i, 2)))
    for q in range(4):
        a("v_cvt_pk_bf16_f32 %s, %s, %s" % (vr(16 + q), vr(OW + 2 * q), vr(OW + 2 * q + 1)))
    a("v_and_b32 v16, -2, v16")
    bstore(16, 4, 11, SWS, "s90", 0, "sc1", "ost")
    stamp(11)

    def oload(ks):
        bload(OFR + 4 * ks, 4, 1, SWS, sr(85 + (ks >> 1)), (ks & 1) * 2048, "sc1", ("o", ks))

    for ks in range(cfg.oearly):
        oload(ks)
    a("v_mov_b32 v2, v14")
    a("v_lshrrev_b32 v3, 3, v0")
    a("""
    v_mul_u32_u24 v4, %d, v3
    s_mul_i32 s72, s60, %d
    s_add_u32 s72, s72, %d
    v_add3_u32 v4, v4, v7, s72
    """ % (PART_STRIDE, 8 * PART_STRIDE, L_W2))
    for j in range(4):
        dsr("ds_read_b128", G + 4 * j, 4, 4, j * W2_REGION, "g")
    a("""
    v_bfe_u32 v4, v0, 2, 2
    v_bfe_u32 v5, v0, 4, 1
    v_lshl_add_u32 v4, v5, 2, v4
    v_lshrrev_b32 v5, 1, v4
    v_lshlrev_b32 v92, 7, v4
    v_lshl_add_u32 v92, v5, 5, v92
    v_lshrrev_b32 v6, 5, v0
    v_lshl_add_u32 v92, v6, 11, v92
    v_and_b32 v4, 3, v0
    v_lshl_add_u32 v92, v4, 3, v92
    s_lshl_b32 s72, s75, 15
    v_add_u32 v92, s72, v92
    v_xor_b32 v93, 32, v92
    v_xor_b32 v94, 64, v92
    v_xor_b32 v95, 0x60, v92
    s_barrier
    """)

    fill = ("""
    v_mul_u32_u24 v3, %d, v3
    v_lshl_add_u32 v3, v7, 1, v3
    s_mul_i32 s72, s60, %d
    s_add_u32 s72, s72, %d
    v_add_u32 v3, s72, v3
    v_and_b32 v5, 15, v0
    v_mul_u32_u24 v5, %d, v5
    v_and_b32 v4, 48, v0
    s_mul_i32 s72, s60, %d
    s_add_u32 s72, s72, %d
    v_add3_u32 v5, v5, v4, s72
    s_mov_b32 s82, 0x3f80
    s_mov_b32 s83, 0x3f800000
    """ % (SUM_STRIDE, 8 * SUM_STRIDE, L_SUM, SUM_STRIDE, 16 * SUM_STRIDE, L_SUM)).strip().split("\n")
    gate = ["v_mov_b32 %s, 0" % vr(Z + i) for i in range(8)]
    gate.append(lambda: lg.wait("g"))
    for j in range(5):
        if j == 4:
            gate.append(lambda: vm.wait("xb"))
        for q in range(4):
            src = G + 4 * j + q if j < 4 else 60 + q
            gate.append("v_dot2c_f32_bf16 %s, s82, %s" % (vr(Z + 2 * q), vr(src)))
            gate.append("v_dot2c_f32_bf16 %s, s83, %s" % (vr(Z + 2 * q + 1), vr(src)))
    for q in range(4):
        gate.append("v_lshlrev_b32 %s, 16, %s" % (vr(X + 2 * q), vr(56 + q)))
        gate.append("v_and_b32 %s, s89, %s" % (vr(X + 1 + 2 * q), vr(56 + q)))
    gate += ["v_mul_f32 %s, 0x%x, %s" % (vr(G + i), NLOG2E, vr(Z + i)) for i in range(8)]
    gate += ["v_exp_f32 %s, %s" % (vr(G + i), vr(G + i)) for i in range(8)]
    gate += ["v_add_f32 %s, 1.0, %s" % (vr(G + i), vr(G + i)) for i in range(8)]
    gate += ["v_rcp_f32 %s, %s" % (vr(G + i), vr(G + i)) for i in range(8)]
    gate += ["v_mul_f32 %s, %s, %s" % (vr(Z + i), vr(Z + i), vr(G + i)) for i in range(8)]

    def wo_reads(oat, per):
        for ks in range(8):
            for ct in range(4):
                trread(WOF + (ks * 4 + ct) * 4, 92 + ct, ks * 4096, 1024, ("wo", ks))
                run_shadow(per)
            if ks == oat and cfg.oearly < 8:
                run_shadow(1000)
                vm.wait("ost")
                if cfg.odelay:
                    a("s_sleep %d" % cfg.odelay)
                for q in range(cfg.oearly, 8):
                    oload(q)

    vm_t, lg_t = list(vm.items), list(lg.items)
    a("s_cmp_eq_u32 s63, 1")
    a("s_cbranch_scc1 L_tail_b")
    shadow.extend(fill)
    wo_reads(7, 1)
    shadow.extend(gate)
    run_shadow(1000)
    a("s_branch L_tail_j")
    a.label("L_tail_b")
    vm.items, lg.items = vm_t, lg_t
    shadow.extend(fill + gate)
    run_shadow(1000)
    wo_reads(cfg.oat, 0)
    a.label("L_tail_j")
    stamp(12)
    a("s_mov_b32 s73, 0")
    lg.drain()
    for ks in range(8):
        vm.wait(("o", ks))
        a("v_and_b32 v6, 1, %s" % vr(OFR + 4 * ks))
        a("v_cmp_ne_u32 vcc, 0, v6")
        a("s_cbranch_vccnz L_oretry_%d" % ks)
        a.label("L_ogo_%d" % ks)
        for ct in range(4):
            d = AC + 4 * ct
            mfma16(d, WOF + (ks * 4 + ct) * 4, OFR + 4 * ks, None if ks == 0 else d)
    stamp(13)
    for ct in range(4):
        dsw("ds_write_b128", 5, AC + 4 * ct, 4, ct * 64)
    lg.drain()
    a("s_barrier")
    stamp(14)
    dsr("ds_read_b128", SR, 4, 3, 0, 0)
    dsr("ds_read_b128", SR + 8, 4, 3, SUM_SIZE, 0)
    dsr("ds_read_b128", SR + 4, 4, 3, 16, 1)
    dsr("ds_read_b128", SR + 12, 4, 3, SUM_SIZE + 16, 1)
    for h in range(2):
        lg.wait(h)
        for i in range(4 * h, 4 * h + 4, 2):
            a("v_pk_add_f32 %s, %s, %s" % (vr(SR + i, 2), vr(SR + i, 2), vr(SR + 8 + i, 2)))
        for i in range(4 * h, 4 * h + 4, 2):
            a("v_pk_fma_f32 %s, %s, %s, %s" % (vr(SR + i, 2), vr(SR + i, 2), vr(Z + i, 2), vr(X + i, 2)))
        for q in range(2 * h, 2 * h + 2):
            a("v_cvt_pk_bf16_f32 %s, %s, %s" % (vr(G + q), vr(SR + 2 * q), vr(SR + 2 * q + 1)))
    bstore(G, 4, 2, SOUT, "s91", 0, ("", "sc1", "nt", "sc0 sc1", "sc0 sc1 nt")[cfg.omod])
    a("s_or_b32 s72, s2, s60")
    a("s_cmp_lg_u32 s72, 0")
    a("s_cbranch_scc1 L_noepoch")
    set_flag(7, "0")
    a.label("L_noepoch")
    if cfg.stamps:
        a("s_waitcnt vmcnt(0)")
        stamp(15)
        if cfg.probe is not None:
            a("s_sub_u32 s72, %s, s4" % sr(sSTAMP + cfg.probe))
            if cfg.stamps == 2:
                a("s_lshr_b32 s72, s72, 3")
            else:
                a("s_lshl_b32 s72, s72, %d" % cfg.probesh)
            a("s_cmp_lg_u32 s2, %d" % cfg.probewg)
            a("s_cselect_b32 s72, 0, s72")
            a("s_cmp_lg_u32 s60, %d" % cfg.probew)
            a("s_cselect_b32 s72, 0, s72")
            a("s_memrealtime s[22:23]")
            a("s_waitcnt lgkmcnt(0)")
            a("s_mov_b32 s73, s22")
            a.label("L_probe")
            a("s_memrealtime s[22:23]")
            a("s_waitcnt lgkmcnt(0)")
            a("s_sub_u32 s22, s22, s73")
            a("s_cmp_lt_u32 s22, s72")
            a("s_cbranch_scc1 L_probe")
        a("s_lshl3_add_u32 s72, s2, s60")
        a("s_lshl_b32 s72, s72, 6")
        a("s_add_u32 s72, s72, %d" % WS_STAMP)
        for i in range(16):
            a("v_mov_b32 %s, %s" % (vr(80 + i), sr(sSTAMP + i)))
        a("s_mov_b64 exec, 1")
        for i in range(4):
            bstore(80 + 4 * i, 4, 1, SWS, "s72", 16 * i)
    a.label("L_end")
    a("s_endpgm")

    for ks in range(8):
        a.label("L_oretry_%d" % ks)
        a("s_mov_b32 s84, %d" % ks)
        if ks < 7:
            a("s_branch L_oround")
    a.label("L_oround")
    a("s_waitcnt vmcnt(0)")
    a("s_mov_b32 s72, 0")
    if cfg.oprobe:
        a("; poll a single granule of the first missing fragment before touching the other lines again")
    for ks in range(8):
        a("v_and_b32 v6, 1, %s" % vr(OFR + 4 * ks))
        a("v_cmp_ne_u32 vcc, 0, v6")
        a("s_cbranch_vccz L_ohave_%d" % ks)
        if cfg.osleep:
            a("s_cmp_lg_u32 s72, 0")
            a("s_cbranch_scc1 L_onosleep_%d" % ks)
            a("s_sleep %d" % cfg.osleep)
            a.label("L_onosleep_%d" % ks)
        oload(ks)
        a("s_mov_b32 s72, 1")
        a.label("L_ohave_%d" % ks)
    a("s_add_u32 s73, s73, 1")
    a("s_cmp_lt_u32 s73, %d" % SPIN_MAX)
    a("s_cselect_b32 s72, s72, 0")
    a("s_cmp_lg_u32 s72, 0")
    a("s_cbranch_scc1 L_oround")
    a("s_waitcnt vmcnt(0)")
    for ks in range(7):
        a("s_cmp_eq_u32 s84, %d" % ks)
        a("s_cbranch_scc1 L_ogo_%d" % ks)
    a("s_branch L_ogo_7")

    for tag, vt, lanes, soff in stubs:
        a.label("L_poll_" + tag)
        a("s_mov_b32 s73, 0")
        a.label("L_poll2_" + tag)
        a("s_sleep %d" % cfg.sleep)
        flag_load(vt, lanes, soff, None)
        a("s_add_u32 s73, s73, 1")
        a("s_waitcnt vmcnt(0)")
        a("s_cmp_ge_u32 s73, %d" % SPIN_MAX)
        a("s_cbranch_scc1 L_polled_" + tag)
        a("v_cmp_ne_u32 vcc, %s, %s" % (sr(sTAG), vr(vt)))
        a("s_cbranch_vccnz L_poll2_" + tag)
        a("s_branch L_polled_" + tag)

    a.label("L_slow")
    CN = SB + 16
    a("s_waitcnt vmcnt(0)")
    a("v_mov_b32 v13, 0xff800000")
    a("s_mov_b32 s82, s83")
    a("s_mov_b32 s81, 64")
    a.label("L_slow1")
    bload(KV, 4, 252, SWS, "s82", 0, "sc1")
    a("s_add_u32 s82, s82, 2048")
    a("s_waitcnt vmcnt(0)")
    mfma32(SB, KV, QR + 12, None)
    for i in range(0, 16, 2):
        a("v_max3_f32 v13, v13, %s, %s" % (vr(SB + i), vr(SB + i + 1)))
    a("s_sub_u32 s81, s81, 1")
    a("s_cmp_lg_u32 s81, 0")
    a("s_cbranch_scc1 L_slow1")
    a("v_mov_b32 v15, v13")
    a("v_permlane32_swap_b32 v15, v13")
    a("v_max_f32 v13, v15, v13")
    for i in range(16):
        a("v_sub_f32 %s, 0, v13" % vr(CN + i))
        a("v_mov_b32 %s, 0" % vr(OW + i))
    a("s_mov_b32 s82, s83")
    a("s_mov_b32 s81, 64")
    a.label("L_slow2")
    kvload(0)
    a("s_waitcnt vmcnt(0)")
    mfma32(SB, KV, QR + 12, CN)
    for i in range(16):
        a("v_exp_f32 %s, %s" % (vr(SB + i), vr(SB + i)))
    smf(OW, KV + 4, SB)
    smf(OW, KV + 8, SB + 8)
    a("s_sub_u32 s81, s81, 1")
    a("s_cmp_lg_u32 s81, 0")
    a("s_cbranch_scc1 L_slow2")
    a("s_branch L_norm")
    a.label("L_code_end")
    a("s_endpgm")

    added = a.fix()
    return a.text().replace('FSH', str(cfg.fsh)).replace('FROW', str(cfg.fsh + 5)), added


HEADER = """; Kernarg layout for this problem (88 bytes, ptrs only, base s[0:1]):
; @launch grid=(256,1,1) block=(512,1,1) lds=163840
.amdgcn_target "amdgcn-amd-amdhsa--gfx950"
.text
.globl {k}
.p2align 8
.type {k},@function
{k}:
"""

FOOTER = """.section .rodata,"a"
.p2align 6
.amdhsa_kernel {k}
  .amdhsa_next_free_vgpr 256
  .amdhsa_next_free_sgpr 102
  .amdhsa_accum_offset 256
  .amdhsa_group_segment_fixed_size 0
  .amdhsa_kernarg_size 88
  .amdhsa_user_sgpr_count 2
  .amdhsa_user_sgpr_kernarg_segment_ptr 1
  .amdhsa_system_sgpr_workgroup_id_x 1
.end_amdhsa_kernel
"""


def build(**kw):
    cfg = Cfg()
    for k, v in kw.items():
        setattr(cfg, k, v)
    body, added = gen(cfg)
    return HEADER.format(k=KERNEL) + body + FOOTER.format(k=KERNEL), added


if __name__ == "__main__":
    out = sys.argv[1] if len(sys.argv) > 1 else "cdna_kernels/%s.s" % NAME
    kw = {}
    for arg in sys.argv[2:]:
        k, v = arg.split("=")
        kw[k] = int(v)
    text, added = build(**kw)
    open(out, "w").write(text)
    print("wrote", out, "lines", text.count("\n"), "nops added", added)
```

```python
import sys
import os
sys.path.insert(0, os.path.dirname(os.path.abspath(__file__)))
from asmlib import Asm, vr, sr

NAME = "recurrent_scan__softmax_full_mha__dense_activation_squared_relu__prompt"
KERNEL = NAME + "_kernel"

WS_FLAGQ = 0x1200
WS_FLAGH = 0x60000
WS_STAMP = 0x10000
WS_QO = 0x100000
WS_KV = 0x300000
WS_HF = 0x700000
WS_END = WS_HF + 86 * 65536
EPOCH_INC = 0x9E3779B9
SPIN_MAX = 1 << 18

L_RING = 65536
L_OPART = 65536
L_W2 = L_OPART + 55296
W2_REGION = 10240
PART_STRIDE = 144
SUM_STRIDE = 272
SUM_SIZE = 64 * SUM_STRIDE
L_SUM = L_OPART

SX, SWQ, SWO, SW1, SB1, SW2, SB2, SOUT, SWS = 24, 28, 32, 36, 40, 44, 48, 52, 56
sW, sCG, sTB, sRW, sP, sQB, sTBF, sCB, sTAG, sCT0 = 60, 61, 62, 63, 64, 65, 66, 67, 68, 69
sVM = 70
sSTAMP = 4

QSCALE = 0x3EB8AA3B
NLOG2E = 0xBFB8AA3B
NS = 22


class Cfg:
    abl = 0
    bst = 0
    xslot = 0
    xrun = 2
    n1 = 8
    nA = 22
    gap = 1
    kvt = 0
    kvi = 4
    dmam = 2
    fpat = 2221
    pf1_at = 12
    pfc_at = 99
    pfc1 = 0
    w2_at = 10
    pfl = 9
    wol = 15
    won = 1
    stamps = 0
    force_slow = 0
    flag_chunk = 10
    lead = 2
    defer = 0
    look = 5
    pfq_at = 99
    bload = 15
    bjoin = 16
    btile = 2
    sleep = 6
    w0_at = 7
    w1_at = 10
    hpre = 2
    hbar = 0
    hnow = 2
    hgap = 2
    hoff = 0
    kv3 = 1
    fsh = 4
    pfe = 99
    l2q = 99
    rot = 1
    split = 1
    wgrp = 2
    hold = 99
    l2w = 99
    pfn = 11
    alow = 0
    pfg = 1
    hflag = 11
    probe = None
    omod = 1
    oat = 4
    probewg = 100
    probew = 0
    probesh = 4
    hst = 0


def srd(s):
    return sr(s, 4)


class Queue:
    def __init__(self, a, name, maxn):
        self.a, self.name, self.maxn, self.items = a, name, maxn, []

    def push(self, tag):
        self.items.append(tag)

    def wait(self, *tags):
        last = max((i for i, t in enumerate(self.items) if t in tags), default=-1)
        if last < 0:
            return
        n = len(self.items) - 1 - last
        self.a("s_waitcnt %s(%d)" % (self.name, min(n, self.maxn)))
        self.items = self.items[last + 1:]

    def drain(self):
        self.a("s_waitcnt %s(0)" % self.name)
        self.items = []


def gen(cfg):
    a = Asm()
    nA = cfg.nA
    nB = 32 - nA
    vm = Queue(a, "vmcnt", 63)
    lg = Queue(a, "lgkmcnt", 15)

    def stamp(i, force=False):
        if cfg.bst and not force and i != 0:
            return
        if cfg.stamps and (cfg.probe is None or i in (0, cfg.probe)):
            a("%s s[22:23]" % ("s_memtime" if cfg.stamps == 2 else "s_memrealtime"))
            a("s_waitcnt lgkmcnt(0)")
            a("s_mov_b32 %s, s22" % sr(sSTAMP + i))

    def mfma32(d, x, y, c):
        a("v_mfma_f32_32x32x16_bf16 %s, %s, %s, %s" % (vr(d, 16), vr(x, 4), vr(y, 4), "0" if c is None else vr(c, 16)))

    def mfma16(d, x, y, c):
        a("v_mfma_f32_16x16x32_bf16 %s, %s, %s, %s" % (vr(d, 4), vr(x, 4), vr(y, 4), "0" if c is None else vr(c, 4)))

    def smf(d, x, y):
        a("v_smfmac_f32_32x32x32_bf16 %s, %s, %s, v3" % (vr(d, 16), vr(x, 4), vr(y, 8)))

    def bload(d, n, va, s, so, off=0, mod="", tag=None):
        op = {1: "dword", 2: "dwordx2", 4: "dwordx4"}[n]
        a("buffer_load_%s %s, %s, %s, %s offen offset:%d %s" % (op, vr(d, n), vr(va), srd(s), so, off, mod))
        vm.push(tag)

    def bstore(d, n, va, s, so, off=0, mod="", tag=None):
        op = {1: "dword", 2: "dwordx2", 4: "dwordx4"}[n]
        a("buffer_store_%s %s, %s, %s, %s offen offset:%d %s" % (op, vr(d, n), vr(va), srd(s), so, off, mod))
        vm.push(tag)

    def dma(va, s, so, off=0, tag=None):
        a("buffer_load_dwordx4 %s, %s, %s offen offset:%d lds" % (vr(va), srd(s), so, off))
        vm.push(tag)

    def dsr(op, d, n, va, off, tag=None):
        a("%s %s, %s offset:%d" % (op, vr(d, n), vr(va), off))
        lg.push(tag)

    def dsw(op, va, d, n, off, tag=None):
        a("%s %s, %s offset:%d" % (op, vr(va), vr(d, n), off))
        lg.push(tag)

    def trread(d, va, off, second, tag=None):
        dsr("ds_read_b64_tr_b16", d, 2, va, off, tag)
        dsr("ds_read_b64_tr_b16", d + 2, 2, va, off + second, tag)

    def set_flag(vt, soff):
        a("v_mov_b32 %s, %s" % (vr(vt), sr(sTAG)))
        a("s_mov_b64 exec, 1")
        bstore(vt, 1, 1, SWS, soff, 0, "sc0 sc1")
        a("s_mov_b64 exec, -1")

    stubs = []

    def check_flags(tag, vt, lanes, soff):
        a("v_cmp_ne_u32 vcc, %s, %s" % (sr(sTAG), vr(vt)))
        a("s_cbranch_vccnz L_poll_" + tag)
        a.label("L_polled_" + tag)
        stubs.append((tag, vt, lanes, soff))

    def flag_load(vt, shift, soff, tag):
        a("v_and_b32 %s, 31, v0" % vr(vt))
        a("v_lshlrev_b32 %s, %d, %s" % (vr(vt), shift, vr(vt)))
        bload(vt, 1, vt, SWS, soff, 0, "sc0 sc1", tag)

    sizes = {SX: 2048 * 1024, SWQ: 512 * 3072, SWS: WS_END, SW1: 512 * 2752, SB1: 2752,
             SWO: 512 * 1024, SW2: 1376 * 1024, SB2: 1024, SOUT: 2048 * 1024}
    RAW = 128

    def xloads():
        for j in range(8):
            bload(RAW + j * 4, 4, 14, SX, "s101", j * 128, "", ("x", j))

    stamp(0)
    a("""
    s_load_dwordx2 s[24:25], s[0:1], 0
    s_getpc_b64 s[72:73]
    L_pc:
    s_cmpk_ge_u32 s2, 256
    s_cbranch_scc1 L_end
    s_lshr_b32 s74, s2, 3
    s_lshl_b32 s74, s74, 11
    v_lshrrev_b32 v8, 5, v0
    v_lshl_add_u32 v8, v8, 7, s74
    v_min_u32 v8, L_code_end-L_pc, v8
    v_mov_b32 v9, 0
    v_lshl_add_u64 v[8:9], v[8:9], 0, s[72:73]
    global_load_dword v7, v[8:9], off
    s_lshl_b32 s72, s2, 4
    s_and_b32 s72, s72, 0x180
    v_add_u32 v4, s72, v0
    v_bfe_u32 v4, v4, 3, 6
    v_and_b32 v5, 7, v0
    v_lshlrev_b32 v14, 10, v4
    v_lshl_add_u32 v14, v5, 4, v14
    s_lshr_b32 s67, s2, 5
    s_and_b32 s73, s2, 6
    s_lshl2_add_u32 s62, s73, s67
    s_lshl_b32 s101, s62, 16
    s_mov_b32 s26, %d
    s_mov_b32 s27, 0x20000
    v_bfe_u32 v24, v4, 1, 3
    v_xor_b32 v24, v24, v5
    v_lshlrev_b32 v15, 7, v4
    v_lshl_add_u32 v15, v24, 4, v15
    v_readfirstlane_b32 s60, v0
    v_and_b32 v0, 63, v0
    v_mov_b32 v24, 0
    v_mov_b32 v25, 0
    s_lshr_b32 s60, s60, 6
    s_cmp_ge_u32 s60, 4
    s_waitcnt lgkmcnt(0)
    """ % sizes[SX])
    vm.push("pf")
    if cfg.bst == 3:
        stamp(1, True)
    xloads()
    if cfg.bst == 3:
        stamp(2, True)
    if cfg.stamps:
        for i in range(3 if cfg.bst == 3 else 1, 16):
            a("s_mov_b32 %s, s4" % sr(sSTAMP + i))
    a("s_mov_b32 s63, 1")
    a("s_cbranch_scc1 L_ln")
    a("s_mov_b32 s63, 0")

    def setup1():
        for s, off in ((SWQ, 8), (SWS, 80), (SW1, 32), (SB1, 40), (SWO, 16), (SW2, 48), (SB2, 56), (SOUT, 64)):
            a("s_load_dwordx2 %s, s[0:1], %d" % (sr(s, 2), off))
        a("""
        s_mov_b32 s30, %d
        s_mov_b32 s31, 0x20000
        s_bfe_u32 s72, s2, 0x20003
        s_and_b32 s73, s2, 1
        s_lshl2_add_u32 s61, s73, s72
        s_and_b32 s74, s60, 3
        s_lshl_b32 s72, s61, 7
        s_mul_i32 s85, s74, %d
        s_add_u32 s85, s85, s72
        s_mul_i32 s87, s74, 6144
        s_add_u32 s87, s87, %d
        v_lshrrev_b32 v4, 3, v0
        v_bfe_u32 v6, v4, 1, 1
        v_lshlrev_b32 v6, 2, v6
        v_xor_b32 v6, v6, v5
        v_lshlrev_b32 v6, 4, v6
        v_mul_u32_u24 v13, 3072, v4
        v_add_u32 v13, v13, v6
        v_xor_b32 v33, 16, v13
        s_waitcnt lgkmcnt(0)
        """ % (sizes[SWQ], 16 * 3072, L_RING))

    def setup_pf():
        for s in (SW1, SWO, SW2):
            a("s_mov_b32 %s, %d" % (sr(s + 2), sizes[s]))
            a("s_mov_b32 %s, 0x20000" % sr(s + 3))
        a("""
        s_and_b32 s73, s60, 3
        s_lshl2_add_u32 s100, s2, s73
        s_mul_i32 s100, s100, 1536
        v_min_u32 v31, 11, v0
        v_lshlrev_b32 v31, 7, v31
        """)

    def setup2():
        a("s_load_dword %s, %s, 0" % (sr(sTAG), sr(SWS, 2)))
        for s in (SWS, SB1, SB2, SOUT):
            a("s_mov_b32 %s, %d" % (sr(s + 2), sizes[s]))
            a("s_mov_b32 %s, 0x20000" % sr(s + 3))
        a("""
        s_bfe_u32 s72, s2, 0x20003
        s_and_b32 s73, s2, 7
        s_lshl2_add_u32 s66, s73, s72
        s_and_b32 s72, s72, 1
        s_lshl1_add_u32 s64, s73, s72
        s_lshr_b32 s65, s2, 4
        s_mul_i32 s69, s61, 6
        s_mul_i32 s73, s61, 5
        s_add_u32 s73, s73, 3
        s_min_u32 s69, s69, s73
        s_mov_b32 s70, 0xffff
        s_mov_b32 s71, 0xffff
        v_lshlrev_b32 v1, 4, v0
        v_and_b32 v2, 15, v0
        v_lshrrev_b32 v3, 5, v0
        v_lshl_add_u32 v2, v3, 4, v2
        v_lshlrev_b32 v2, 4, v2
        """)

    def setup3():
        a("; attention offsets: s82 = next K/V tile, s83 = head base, s92-s95 = Q tiles, s96-s99 = O partial slots")
        a("""
        s_and_b32 s74, s60, 1
        s_lshr_b32 s75, s60, 1
        s_lshl1_add_u32 s72, s64, s74
        s_lshl_b32 s83, s72, 17
        s_add_u32 s83, s83, %d
        s_and_b32 s73, s75, 1
        s_lshl_b32 s73, s73, 16
        s_add_u32 s82, s83, s73
        s_lshl_b32 s72, s65, 6
        s_add_u32 s72, s72, s64
        s_lshl1_add_u32 s72, s72, s74
        s_lshl_b32 s72, s72, 10
        s_add_u32 s72, s72, %d
        s_mul_i32 s84, s74, %d
        s_add_u32 s84, s84, %d
        """ % (WS_KV, WS_QO, 12 * 2304, L_OPART))
        for t in range(4):
            a("s_xor_b32 s73, s75, %d" % (t ^ 3))
            a("s_mul_i32 %s, s73, %d" % (sr(96 + t), 3 * 2304))
            a("s_lshl_b32 s73, s73, 15")
            a("s_add_u32 %s, s72, s73" % sr(92 + t))
            a("s_add_u32 %s, %s, s84" % (sr(96 + t), sr(96 + t)))

    setup1()
    setup_pf()
    setup2()
    setup3()
    a("""
    s_add_u32 s82, s82, %d
    v_bfe_u32 v9, v0, 4, 1
    v_and_b32 v16, 15, v0
    v_lshlrev_b32 v8, 4, v16
    v_lshl_add_u32 v8, v9, 9, v8
    v_lshl_add_u32 v11, v3, 17, v8
    v_lshl_add_u32 v14, v3, 10, v8
    v_lshl_add_u32 v127, v3, 16, v8
    v_lshrrev_b32 v17, 4, v0
    v_bfe_u32 v8, v0, 3, 1
    v_lshlrev_b32 v12, 4, v5
    v_lshl_add_u32 v12, v17, 8, v12
    v_lshl_add_u32 v12, v8, 17, v12
    v_lshrrev_b32 v8, 1, v16
    v_xor_b32 v8, v8, v17
    v_lshlrev_b32 v16, 7, v16
    v_lshl_add_u32 v16, v8, 4, v16
    s_lshl_b32 s72, s74, 12
    v_add_u32 v16, s72, v16
    v_xor_b32 v17, 64, v16
    v_lshl_add_u32 v4, v4, 10, v6
    v_bfe_u32 v10, v0, 2, 2
    v_lshrrev_b32 v6, 1, v10
    v_xor_b32 v8, s75, v6
    v_and_b32 v18, 2, v0
    v_lshl_add_u32 v8, v8, 2, v18
    v_add_u32 v8, v8, v9
    v_lshlrev_b32 v8, 1, v8
    v_and_or_b32 v8, v0, 1, v8
    v_lshlrev_b32 v8, 3, v8
    v_lshl_add_u32 v8, v10, 7, v8
    v_lshl_add_u32 v8, v9, 10, v8
    v_mul_u32_u24 v18, 6144, v3
    v_add_u32 v8, v8, v18
    v_add_u32 v8, %d, v8
    v_xor_b32 v18, 16, v8
    v_add_u32 v19, %d, v18
    v_lshlrev_b32 v5, 5, v9
    v_lshl_add_u32 v5, v10, 7, v5
    v_and_b32 v10, 3, v0
    v_lshl_add_u32 v5, v10, 3, v5
    v_lshl_add_u32 v5, v3, 9, v5
    v_lshl_add_u32 v5, v6, 6, v5
    v_lshrrev_b32 v10, 1, v0
    v_xor_b32 v10, v10, v0
    v_and_b32 v10, 1, v10
    v_mul_u32_u24 v10, 24, v10
    v_xor_b32 v5, v5, v10
    s_mul_i32 s84, s60, %d
    s_add_u32 s84, s84, %d
    v_add_u32 v5, s84, v5
    v_xor_b32 v6, 64, v5
    v_lshlrev_b32 v10, 3, v9
    v_lshl_add_u32 v10, v3, 5, v10
    v_xor_b32 v9, 16, v19
    v_mov_b32 v3, 0xdddddddd
    """ % (nB * 2048, L_RING, 2 * 24576, W2_REGION, L_W2))
    a("""
    s_lshl1_add_u32 s72, s62, s74
    s_lshl1_add_u32 s73, s61, s75
    s_lshl_b32 s76, s73, 7
    s_add_u32 s76, s76, s72
    s_lshl_b32 s77, s76, 11
    s_lshl4_add_u32 s76, s72, s73
    s_lshl_b32 s76, s76, 11
    s_add_u32 s76, s76, %d
    s_add_u32 s77, s77, %d
    s_add_u32 s81, s69, s75
    s_lshl_b32 s78, s81, 7
    s_add_u32 s78, s78, s72
    s_lshl_b32 s78, s78, 10
    s_add_u32 s78, s78, %d
    s_lshl_b32 s79, s61, 6
    s_add_u32 s79, s79, s62
    s_lshl_b32 s79, s79, 4
    s_add_u32 s79, s79, %d
    s_lshl_b32 s80, s62, 3
    s_add_u32 s80, s80, s61
    s_lshl2_add_u32 s80, s80, s60
    s_lshl_b32 s80, s80, FSH
    s_add_u32 s80, s80, %d
    s_mul_i32 s73, s61, s75
    s_add_u32 s88, s78, %d
    s_cmp_lt_u32 s73, 3
    s_cselect_b32 s88, s88, 0x40000000
    s_lshl_b32 s81, s81, 6
    """ % (WS_QO, WS_KV, WS_HF, WS_FLAGQ, WS_FLAGH, 8 * 65536))

    def slot_of(c):
        if not cfg.xslot or c < cfg.xslot:
            return (c & 3) * 24576
        return -L_RING if c == cfg.xslot else ((c - 1) & 3) * 24576

    skip_bar = (10,) if cfg.xslot else ()

    def issue_chunk(c):
        if cfg.rot:
            a("s_xor_b32 s73, s67, %d" % (c & 7))
            a("s_mul_i32 s73, s73, %d" % (64 * (3072 if c < 8 else 2752)))
            a("s_add_u32 s73, s73, %s" % ("s85" if c < 8 else "s80"))
        for m in range(6):
            blk, seg = divmod(m, 3)
            a("s_add_u32 m0, s87, %d" % (slot_of(c) + seg * 2048 + blk * 1024))
            if c < 8:
                a("s_add_u32 s72, %s, %d" % (("s73", blk * 8 * 3072 + seg * 1024) if cfg.rot else ("s85", (c * 64 + blk * 8) * 3072 + seg * 1024)))
                dma(33 if blk else 13, SWQ, "s72", 0, ("w", c))
            else:
                a("s_add_u32 s72, %s, %d" % (("s73", blk * 8 * 2752 + seg * 128) if cfg.rot else ("s80", ((c - 8) * 64 + blk * 8) * 2752 + seg * 128)))
                dma(56 + (seg == 2) + 2 * blk, SW1, "s72", 0, ("w", c))

    def layernorm(acts):
        def act(p):
            if acts.get(p):
                assert p >= 7
                a("s_cmp_eq_u32 s63, 1")
                a("s_cbranch_scc1 L_ln_%d" % p)
                for f in acts[p]:
                    f()
                a.label("L_ln_%d" % p)
        a.label("L_ln")
        a("v_mov_b32 v30, 0x3f803f80")
        a("s_mov_b32 s89, 0xffff0000")
        if cfg.rot:
            a("; K chunks are visited in the order c ^ (row block & 7): workgroups sharing weights fetch different chunks first")
            a("s_lshl_b32 s72, s67, 13")
            a("v_or_b32 v15, s72, v15")

        def xwrite(j):
            if cfg.rot:
                a("v_xor_b32 v23, 0x%x, v15" % (j << 13))
                a("ds_write_b128 v23, %s" % vr(RAW + j * 4, 4))
            else:
                a("ds_write_b128 v15, %s offset:%d" % (vr(RAW + j * 4, 4), j * 8192))

        for j in range(8):
            if cfg.bst == 3 and j == 0:
                stamp(3, True)
            vm.wait(("x", j))
            if cfg.bst == 3 and j in (0, 3, 7):
                stamp({0: 4, 3: 5, 7: 6}[j], True)
            act(j)
            for q in range(4):
                x = RAW + j * 4 + q
                a("v_dot2c_f32_bf16 v24, v30, %s" % vr(x))
                a("v_dot2c_f32_bf16 v25, %s, %s" % (vr(x), vr(x)))
        act(8)
        stamp(1)
        for ctl in ("quad_perm:[1,0,3,2]", "quad_perm:[2,3,0,1]", "row_half_mirror"):
            for r in (24, 25):
                a("v_add_f32_dpp %s, %s, %s %s row_mask:0xf bank_mask:0xf" % (vr(r), vr(r), vr(r), ctl))
        a("""
        v_mul_f32 v24, 0x3b000000, v24
        v_mul_f32 v25, 0x3b000000, v25
        v_fma_f32 v25, -v24, v24, v25
        v_max_f32 v25, 0, v25
        v_cvt_pk_bf16_f32 v24, v24, v25
        v_and_b32 v25, s89, v24
        v_add_f32 v25, 0x3727c5ac, v25
        v_cvt_pk_bf16_f32 v25, v25, v25
        v_and_b32 v25, s89, v25
        v_sqrt_f32 v25, v25
        v_lshlrev_b32 v24, 16, v24
        v_cvt_pk_bf16_f32 v25, v25, v25
        v_and_b32 v25, s89, v25
        v_rcp_f32 v26, v25
        v_mul_f32_e64 v28, -v24, v26
        """)
        for j in range(8):
            x = RAW + j * 4
            t = 192 + (j & 1) * 8
            for q in range(4):
                a("v_lshlrev_b32 %s, 16, %s" % (vr(t + 2 * q), vr(x + q)))
                a("v_and_b32 %s, s89, %s" % (vr(t + 2 * q + 1), vr(x + q)))
            for q in range(4):
                a("v_pk_fma_f32 %s, %s, v[26:27], v[28:29] op_sel_hi:[1,0,0]" % (vr(t + 2 * q, 2), vr(t + 2 * q, 2)))
            for q in range(4):
                a("v_cvt_pk_bf16_f32 %s, %s, %s" % (vr(x + q), vr(t + 2 * q), vr(t + 2 * q + 1)))
            if not cfg.defer:
                xwrite(j)
        if cfg.bst == 3:
            stamp(7, True)
        act(9)
        if cfg.defer:
            for j in range(8):
                xwrite(j)
        act(10)
        stamp(2)
        if cfg.bst == 3:
            stamp(8, True)

    def pfq():
        a("; memory-side prefetch of Wqkv")
        bload(7, 1, 31, SWQ, "s100", 0, "", "pf")

    def pfl2(which):
        a("; the die's workgroups pull their half of the weight columns into L2 together, four rows per wave")
        stride = 3072 if which == SWQ else 2752
        a("s_lshr_b32 s72, s2, 3")
        a("s_and_b32 s73, s60, 3")
        a("s_lshl2_add_u32 s72, s72, s73")
        a("s_mul_i32 s72, s72, %d" % (4 * stride))
        a("s_and_b32 s73, s2, 1")
        a("s_mul_i32 s73, s73, %d" % (512 if which == SWQ else 1472))
        a("s_add_u32 s72, s72, s73")
        a("v_lshrrev_b32 v20, 4, v0")
        a("v_mul_u32_u24 v20, %d, v20" % stride)
        if which == SWQ:
            a("v_bfe_u32 v21, v0, 2, 2")
            a("v_min_u32 v21, 2, v21")
            a("v_lshl_add_u32 v20, v21, 10, v20")
            a("v_and_b32 v21, 3, v0")
            a("v_lshl_add_u32 v20, v21, 7, v20")
        else:
            a("v_and_b32 v21, 15, v0")
            a("v_lshlrev_b32 v21, 7, v21")
            a("v_min_u32 v21, 1468, v21")
            a("v_add_u32 v20, v20, v21")
        bload(22, 1, 20, which, "s72", 0, "", "pf")

    def pfc(which):
        a("; lines at offset 384 of every KiB stream slowly on a miss: the die's workgroups pull them into L2 together")
        a("s_lshr_b32 s72, s2, 3")
        a("s_lshl2_add_u32 s72, s72, s60")
        a("s_mul_i32 s72, s72, 12288")
        a("v_lshlrev_b32 v20, 3, v31")
        if which == SWQ:
            a("s_bitcmp1_b32 s2, 0")
            a("s_cselect_b32 s72, 0x40000000, s72")
        bload(7, 1, 20, which, "s72", 384, "", "pf")

    def pf1():
        a("; memory-side prefetch of W1")
        bload(7 if cfg.pf1_at <= 10 else 32, 1, 31, SW1, "s100", 0, "", "pf")

    acts = {}
    if cfg.pfc_at == 0:
        save = list(vm.items)
        pfc(SWQ)
        vm.items = save
    elif cfg.pfc_at <= 10:
        acts.setdefault(cfg.pfc_at, []).append(lambda: pfc(SWQ))
    if cfg.pfq_at == 0:
        save = list(vm.items)
        pfq()
        vm.items = save
    elif cfg.pfq_at <= 10:
        acts.setdefault(cfg.pfq_at, []).append(pfq)
    if cfg.l2q == 0:
        save = list(vm.items)
        pfl2(SWQ)
        vm.items = save
    if cfg.l2q == 7:
        acts.setdefault(7, []).append(lambda: pfl2(SWQ))
    for c, p in enumerate((cfg.w0_at, cfg.w1_at, cfg.w2_at, 10)[:cfg.lead + 1]):
        acts.setdefault(p, []).append(lambda c=c: issue_chunk(c))
    if 8 <= cfg.l2q <= 10:
        acts.setdefault(cfg.l2q, []).insert(0, lambda: pfl2(SWQ))
    if cfg.pf1_at <= 10:
        acts.setdefault(cfg.pf1_at, []).append(pf1)
    if cfg.pfc1:
        acts.setdefault(10, []).append(lambda: pfc(SW1))
    layernorm(acts)
    a("s_cmp_eq_u32 s63, 1")
    a("s_cbranch_scc1 L_loader")

    QR, SB, WF, FA, OA, KV, HB = 8, 24, 56, 64, 128, 192, 228
    NKV = 3

    def att_init_ops():
        ops = ["v_mov_b32 %s, 0" % vr(OA + 16 * t + i) for t in range(4) for i in range(9)]
        ops2 = ["v_and_b32 v7, 27, v0", "v_cmp_eq_u32 vcc, 16, v7", "v_mov_b32 v7, 0x3f803f80", "v_cndmask_b32 v7, 0, v7, vcc"]
        ops2 += ["v_mov_b32 %s, v7" % vr(KV + 12 * b + 4 + q) for b in range(NKV) for q in range(8)]
        return ops, ops2

    def kvload(j):
        b = j % NKV
        bload(KV + 12 * b, 4, 252, SWS, "s82", 0, "sc1", ("kv", j))
        a("s_mov_b64 exec, %s" % sr(sVM, 2))
        bload(KV + 12 * b + 4, 4, 2, SWS, "s82", 1024, "sc1", ("kv", j))
        bload(KV + 12 * b + 8, 4, 2, SWS, "s82", 1536, "sc1", ("kv", j))
        a("s_mov_b64 exec, -1")
        a("s_add_u32 s82, s82, 2048")

    def att_loads(role):
        a("; key slot 8a+4b+c holds token 16b+4a+c, matching the order of the V fragments")
        a("v_and_b32 v252, 0x230, v1")
        a("v_and_b32 v253, 0x180, v1")
        a("v_lshrrev_b32 v253, 1, v253")
        a("v_and_b32 v254, 64, v1")
        a("v_lshlrev_b32 v254, 2, v254")
        a("v_or3_b32 v252, v252, v253, v254")
        bload(QR, 4, 1, SWS, "s92", 0, "sc1", "q")
        kvload(0)
        for t in range(1, 4):
            bload(QR + 4 * t, 4, 1, SWS, sr(92 + t), 0, "sc1", "q")
        kvload(1)
        if cfg.kv3 and role == "a":
            kvload(2)

    def dump_addr():
        a("v_lshlrev_b32 v8, 2, v0")
        a("v_add_u32 v9, s99, v1")
        a("v_add_u32 v10, s99, v8")
        a("v_bfe_u32 v11, v0, 4, 1")
        a("v_lshl_add_u32 v11, v11, 10, v2")

    def dump(t):
        a("v_add_u32 v12, %s, v1" % sr(96 + t))
        a("v_add_u32 v13, %s, v8" % sr(96 + t))
        dsw("ds_write_b128", 12, OA + 16 * t, 4, t * 2304)
        dsw("ds_write_b128", 12, OA + 16 * t + 4, 4, t * 2304 + 1024)
        dsw("ds_write_b32", 13, OA + 16 * t + 8, 1, t * 2304 + 2048)

    deferred = []
    cfg_gap = {0: range(16), 1: (1, 10), 2: (0, 9), 3: (4, 10), 4: (1,), 5: (4,), 6: (15, 9)}[cfg.gap]

    def att_run(n, hooks):
        hooks.setdefault((n - 1, 0, 11), []).append(dump_addr)
        for t in range(3):
            hooks.setdefault((n - 1, t + 1, 12), []).append(lambda t=t: dump(t))
        vm.wait("q", ("kv", 0))
        mfma32(SB, KV, QR, None)
        for j in range(n):
            b = j % NKV
            for t in range(4):
                cur, oth = SB + 16 * (t & 1), SB + 16 * ((t + 1) & 1)
                for i in range(16):
                    a("v_exp_f32 %s, %s" % (vr(cur + i), vr(cur + i)))
                    if i in cfg_gap:
                        while deferred:
                            deferred.pop(0)()
                    if t == cfg.kvt and i == cfg.kvi and j + NKV - 1 < n and not (cfg.abl & 32 and j > 0) and not (cfg.kv3 and j == 0):
                        kvload(j + NKV - 1)
                    if i == 1 and (j, t) != (0, 0):
                        smf(OA + 16 * ((t + 3) & 3), KV + 12 * (b if t else (j - 1) % NKV) + 8, oth + 8)
                    if i == 4:
                        if t < 3:
                            mfma32(oth, KV + 12 * b, QR + 4 * (t + 1), None)
                        elif j + 1 < n:
                            vm.wait(("kv", j + 1))
                            mfma32(oth, KV + 12 * ((j + 1) % NKV), QR, None)
                    if i == 10:
                        smf(OA + 16 * t, KV + 12 * b + 4, cur)
                    for h in hooks.get((j, t, i), ()):
                        h()
        smf(OA + 48, KV + 12 * ((n - 1) % NKV) + 8, SB + 16 + 8)

    ACC = (24, 40, 56)
    WB, NBUF, LA = 72, 6, cfg.look
    XF, PK, XA = 128, 96, 16
    init1, init2 = att_init_ops()

    def item(g):
        kk, m = divmod(g % 96, 6)
        return kk, m >> 1, m & 1

    def reads(g, part=None):
        kk, seg, ab = item(g)
        so = slot_of(g // 12)
        base = (8, 18)[ab] + so // 49152
        off = so % 49152 + (kk & 1) * 12288 + seg * 2048
        for h in range(2):
            if part in (None, h):
                if g < 96 and seg == 0 and ab == 0:
                    dsr("ds_read_b128", XF + 8 * kk + 4 * h, 4, XA + (kk & 1), (kk >> 1) * 8192 + h * 2048, g)
                dsr("ds_read_b64_tr_b16", WB + 4 * (g % NBUF) + 2 * h, 2, base, off + 512 * h, g)

    def pack(acc, pk):
        return ["v_cvt_pk_bf16_f32 %s, %s, %s" % (vr(pk + q), vr(acc + 2 * q), vr(acc + 2 * q + 1)) for q in range(8)]

    def st2(pk, va, base, delta, tag, imm=(0, 0), vb=None):
        def first():
            bstore(pk, 4, va, SWS, base, imm[0], "" if cfg.abl & 64 else "sc1", tag)

        def second():
            if delta:
                a("s_add_u32 s72, %s, %d" % (base, delta))
            bstore(pk + 4, 4, vb or va, SWS, "s72" if delta else base, imm[1], "" if cfg.abl & 64 else "sc1", tag)
        return [first, second]

    def relu2(acc):
        return (["v_max_f32 %s, 0, %s" % (vr(acc + i), vr(acc + i)) for i in range(16)]
                + ["v_mul_f32 %s, %s, %s" % (vr(acc + i), vr(acc + i), vr(acc + i)) for i in range(16)])

    def bias(seg):
        ops = [lambda: vm.wait("b1")]
        for q in range(4):
            ops.append("v_lshlrev_b32 %s, 16, %s" % (vr(ACC[seg] + 2 * q), vr(112 + 4 * seg + q)))
            ops.append("v_and_b32 %s, s89, %s" % (vr(ACC[seg] + 2 * q + 1), vr(112 + 4 * seg + q)))
        return ops

    tagq = ["v_or_b32 %s, 1, %s" % (vr(PK + 4 * q), vr(PK + 4 * q)) for q in range(2)]
    qkv_epi = (["v_mul_f32 %s, 0x%x, %s" % (vr(ACC[0] + i), QSCALE, vr(ACC[0] + i)) for i in range(16)]
               + pack(ACC[0], PK) + tagq + st2(PK, 14, "s76", 0, "st", (0, 256))
               + pack(ACC[1], PK + 8) + st2(PK + 8, 11, "s77", 0, "st", (0, 256))
               + pack(ACC[2], PK) + st2(PK, 12, "s77", 0, "st", (1024, 1152))
               + bias(0) + bias(1) + bias(2))
    sched = {144: init1, 174: init2}
    shadow = []

    def run_shadow(budget):
        while shadow and budget > 0:
            op = shadow.pop(0)
            if isinstance(op, str):
                a(op)
                budget -= 1
            else:
                op()
                budget -= 3

    a("""
    s_lshl_b32 s85, s60, 14
    s_lshl_b32 s72, s67, 7
    s_add_u32 s85, s85, s72
    s_lshl_b32 s86, s60, 6
    s_lshl1_add_u32 s86, s66, s86
    s_lshl_b32 s86, s86, 10
    s_add_u32 s86, s86, %d
    s_lshl_b32 s87, s66, FROW
    s_add_u32 s87, s87, %d
    """ % (WS_HF, WS_FLAGH))
    vm.wait(("w", 0))
    a("s_waitcnt lgkmcnt(0)")
    a("s_add_u32 %s, %s, 0x%x" % (sr(sTAG), sr(sTAG), EPOCH_INC))
    if cfg.bst == 3:
        stamp(9, True)
    a("s_barrier")
    stamp(3)
    if cfg.bst == 3:
        stamp(10, True)
    for g in range(LA):
        reads(g)
    for g in range(192):
        kk, seg, ab = item(g)
        if g == 96:
            stamp(4)
            shadow.extend(qkv_epi)
            run_shadow(1000)
            stamp(5)
            a("s_barrier")
            for n in range(96, 96 + LA):
                reads(n)
        lg.wait(*range(g, g - g % cfg.wgrp + cfg.wgrp))
        w = WB + 4 * (g % NBUF)
        n = g + LA
        more = n < 192 and not g < 96 <= n
        shadow.extend(sched.get(g, ()))
        for h, t in enumerate((1, 0)):
            x = XF + 8 * kk + 4 * t
            if g < 96 and seg == 2:
                d = ACC[seg] + 8 * ab + 4 * t
                mfma16(d, x, w, None if kk == 0 else d)
            else:
                d = ACC[seg] + 8 * t + 4 * ab
                mfma16(d, w, x, d if kk else (None if g < 96 else ACC[seg] + 4 * ab))
            if more and h == 0 and n % 12 == 0:
                vm.wait(("w", n // 12))
                if n // 12 == cfg.flag_chunk:
                    vm.wait("st")
                a("s_barrier")
                if n // 12 == cfg.flag_chunk:
                    a("s_cmp_lg_u32 s60, 0")
                    a("s_cselect_b32 s79, 0x40000000, s79")
                    set_flag(7, "s79")
                    stamp(6)
            if more:
                reads(n, h)
            run_shadow(1 if more else 2)
        if g == 40:
            for q in range(6):
                bload(112 + 2 * q, 2, 10, SB1, "s81", (q >> 1) * 128 + (q & 1) * 16, "", "b1")
    run_shadow(1000)
    stamp(7)
    hmath, hst = [], []
    for seg in range(3):
        pk = PK + 8 * seg
        hmath.append(relu2(ACC[seg]) + pack(ACC[seg], pk))
        hst.append((["s_add_u32 s78, s78, 0x40000"] if seg == 1 else []) + st2(pk, 127, "s78" if seg < 2 else "s88", 0, "hst", (0, 256)))
    for seg in range(cfg.hbar):
        shadow.extend(hmath[seg])
    run_shadow(1000)
    a("s_barrier")
    stamp(8)
    if cfg.bst == 4:
        stamp(1, True)
    a("s_setprio 2")
    for seg in range(cfg.hbar, cfg.hpre):
        shadow.extend(hmath[seg])
    run_shadow(1000)
    att_loads("a")
    hlist = [[hst[0][0]], [hst[0][1]], hst[1][:2], [hst[1][2]], [hst[2][0]], [hst[2][1]]]
    for seg in range(3):
        shadow.extend(hmath[seg] if seg >= max(cfg.hpre, cfg.hbar) else [])
        for n in (2 * seg, 2 * seg + 1):
            if n < cfg.hnow:
                shadow.extend(hlist[n])
    run_shadow(1000)
    stamp(9)


    def w2dma(i):
        if cfg.abl & 1:
            return
        a("s_add_u32 m0, s84, %d" % ((i & 3) * 2048))
        a("s_add_u32 s72, s85, %d" % (i * 65536))
        dma(4, SW2, "s72", 0, ("w2", i))
        a("s_add_u32 s72, s72, 7168")
        dma(4, SW2, "s72", 1024, ("w2", i))

    hreg = lambda i, tt: HB + 8 * (i % 3) + 4 * tt

    def hload(i):
        if cfg.abl & 1:
            return
        if i > 0:
            a("s_add_u32 s86, s86, 0x40000")
        for tt in range(2):
            bload(hreg(i, tt), 4, 1, SWS, "s86", tt * 1024, "sc1", ("h", i))

    def w2read(i, nt):
        if cfg.abl & 2:
            return
        vm.wait(("w2", i))
        trread(WF + 4 * nt, 5 + nt, (i & 3) * 2048, 1024, ("wf", i, nt))

    def fslot(f):
        i, m = divmod(f, 4)
        nt, tt = ((0, 0), (0, 1), (1, 1), (1, 0))[m]
        vm.wait(("h", i))
        lg.wait(("wf", i, nt))
        d = FA + 16 * (2 * tt + nt)
        if not cfg.abl & 4:
            mfma32(d, WF + 4 * nt, hreg(i, tt), None if i == 0 else d)
        if m == 1 and i + 1 < NS:
            deferred.append(lambda: w2read(i + 1, 0))
        if m == cfg.dmam and i + 4 < NS:
            deferred.append(lambda: w2dma(i + 4))
        if m == 3:
            if i + 1 < NS:
                deferred.append(lambda: w2read(i + 1, 1))
            if i + 3 < NS:
                deferred.append(lambda: hload(i + 3))

    def park(tt, nt):
        d = FA + 16 * (2 * tt + nt)
        for q in range(8):
            a("v_cvt_pk_bf16_f32 %s, %s, %s" % (vr(d + q), vr(d + 2 * q), vr(d + 2 * q + 1)))
        for q in range(2):
            dsw("ds_write_b128", 4, d + 4 * q, 4, tt * 32 * PART_STRIDE + nt * 64 + q * 32)

    def park_addr():
        a("v_and_b32 v4, 31, v0")
        a("v_mul_u32_u24 v4, %d, v4" % PART_STRIDE)
        a("v_lshrrev_b32 v5, 5, v0")
        a("v_lshl_add_u32 v4, v5, 4, v4")
        a("v_add_u32 v4, s84, v4")

    hooks = {}

    def hook(j, t, i, f):
        hooks.setdefault((j, t, i), []).append(f)

    n1 = cfg.n1
    for n in range(cfg.hnow, 6):
        tl = (n - cfg.hnow) * cfg.hgap + cfg.hoff
        hook(tl >> 2, tl & 3, 9, lambda n=n: (shadow.extend(hlist[n]), run_shadow(1000)))
    assert (5 - cfg.hnow) * cfg.hgap + cfg.hoff <= cfg.hflag < 4 * (n1 - 2)
    hook(cfg.hflag >> 2, cfg.hflag & 3, 12, lambda: (vm.wait("hst"), set_flag(7, "s80"), stamp(1) if cfg.hst else None))
    hook(n1 - 2, 0, 8, lambda: flag_load(7, cfg.fsh, "s87", "hf"))
    hook(n1 - 2, 3, 12, lambda: (vm.wait("hf"), stamp(2) if cfg.hst else None, check_flags("h", 7, cfg.fsh, "s87"), stamp(3) if cfg.hst else None))
    for i in range(4):
        hook(n1 - 3 + (i >> 1), 1 + (i & 1), 7, lambda i=i: w2dma(i))
    for i in range(3):
        hook(n1 - 1, i, 7, lambda i=i: hload(i))
    hook(n1 - 1, 3, 7, lambda: (w2read(0, 0), w2read(0, 1)))
    pat = [int(ch) for ch in str(cfg.fpat)]
    slots = [(j, t, pos) for j in range(n1, nA) for t in range(4) for pos in ((13,), (7, 13))[pat[t] - 1]]
    for f in range(4 * NS):
        hook(*slots[f], lambda f=f: fslot(f))
    tl = slots[4 * NS - 1][0] * 4 + slots[4 * NS - 1][1] + 1
    assert tl + 3 < 4 * nA
    hook(tl >> 2, tl & 3, 6, park_addr)
    for n, (nt, tt) in enumerate(((0, 0), (0, 1), (1, 1), (1, 0))):
        hook((tl + n) >> 2, (tl + n) & 3, 7, lambda tt=tt, nt=nt: park(tt, nt))
    if cfg.hst:
        for n in range(4):
            hook(n1 + 4 * n, 0, 1, lambda n=n: stamp(4 + n))
    if cfg.alow:
        tl = 4 * nA - cfg.alow
        hook(tl >> 2, tl & 3, 0, lambda: a("s_setprio 0"))
    if cfg.bst == 4:
        for n, j in enumerate(range(0, nA, 2)):
            hook(j, 0, 0, lambda n=n: stamp(2 + n, True))
    att_run(nA, hooks)
    vm.drain()
    a("s_branch L_att_done")

    a.label("L_loader")
    vm.items = []
    lg.items = []

    def b_setup():
        a("; waves 4-7: W1 DMA offsets v56/v57 (sixth tile out of range where the next group owns it), wo DMA offset v4, flagQ row s79")
        a("""
        v_mul_u32_u24 v56, 2752, v4
        v_add_u32 v56, v56, v6
        s_lshr_b32 s72, 0xf8, s61
        s_and_b32 s72, s72, 1
        s_lshl_b32 s72, s72, 23
        v_and_b32 v57, 64, v6
        v_mad_u32_u24 v57, v57, s72, v56
        v_xor_b32 v58, 16, v56
        v_xor_b32 v59, 16, v57
        v_bfe_u32 v6, v4, 1, 2
        v_lshlrev_b32 v6, 1, v6
        v_xor_b32 v6, v6, v5
        v_lshlrev_b32 v6, 4, v6
        v_lshl_add_u32 v4, v4, 10, v6
        v_min_u32 v5, %d, v0
        v_lshlrev_b32 v5, 7, v5
        s_lshr_b32 s79, s64, 1
        s_lshl_b32 s79, s79, 10
        s_add_u32 s79, s79, %d
        s_and_b32 s73, s60, 3
        s_lshl_b32 s72, s69, 6
        s_mul_i32 s80, s73, %d
        s_add_u32 s80, s80, s72
        """ % (cfg.pfn - 1, WS_FLAGQ, 16 * 2752))

        a("v_mov_b32 v3, 0xdddddddd")

    issued = cfg.lead
    setup1()
    state = {"issued": issued}

    def b_step(c):
        if c in skip_bar:
            return
        vm.wait(("w", c + 1 if c + 1 in skip_bar else c))
        if cfg.bst == 2:
            stamp(c, True)
        if cfg.bst == 3 and c == 0:
            stamp(9, True)
        a("s_barrier")
        if cfg.bst == 1:
            stamp(c, True)
        if c in (0, 8, 12, 15):
            stamp({0: 3, 8: 4, 12: 5, 15: 6}[c])
        if c == cfg.bload - 1:
            flag_load(7, 4, "s79", "qf")
        if c == cfg.bload:
            vm.wait("qf")
            check_flags("q", 7, 4, "s79")
            stamp(7)
            att_loads("b")
        lim = c + 2
        if c < 8:
            lim = min(lim, cfg.hold)
        if cfg.split and c == 8:
            lim = 10 + cfg.split - 1
        if cfg.xslot == 12 and c == 9:
            lim = 12
        if cfg.xslot == 11 and c in (8, 9):
            lim = c + 3
        if cfg.xslot and c >= 11:
            lim = c + cfg.xrun
        while state["issued"] < min(15, max(3, lim)):
            state["issued"] += 1
            issue_chunk(state["issued"])
        if c == 0:
            setup_pf()
        if c == 1:
            setup2()
        if cfg.pf1_at == 12 + c:
            pf1()
        if c == 2:
            setup3()
        if c == 3:
            b_setup()
        if c == cfg.l2w:
            pfl2(SW1)
        if c == cfg.pfe:
            a("; memory-side prefetch of w2 and wo")
            bload(32, 1, 31, SW2, "s100", 0, "", "pf")
            bload(32, 1, 31, SWO, "s100", 0, "", "pf")
        if c == 4:
            for op in init1:
                a(op)
        if c == 5:
            for op in init2:
                a(op)
        if c == 7:
            a("s_waitcnt lgkmcnt(0)")
            a("s_add_u32 %s, %s, 0x%x" % (sr(sTAG), sr(sTAG), EPOCH_INC))

    def b_att():
        a("s_barrier")
        stamp(8)
        a("s_setprio 1")
        if cfg.kv3:
            kvload(2)

    bhooks = {}
    for c in range(17):
        f = (lambda c=c: b_step(c)) if c < 16 else b_att
        if c <= cfg.bjoin:
            f()
        else:
            tl = (c - cfg.bjoin) * cfg.btile - 1
            bhooks[(tl >> 2, tl & 3, 13)] = [f]

    def wo_dma(lo, hi):
        if cfg.abl & 8:
            return
        if lo == 0:
            a("; wo tile -> LDS [0, 64K), a few rows per score tile")
            a("s_and_b32 s78, s60, 3")
            a("s_lshl_b32 s76, s78, 17")
            a("s_lshl_b32 s73, s67, 7")
            a("s_add_u32 s76, s76, s73")
            a("s_lshl_b32 s78, s78, 14")
        for i in range(lo, hi):
            a("s_add_u32 m0, s78, %d" % (i * 1024))
            a("s_add_u32 s73, s76, %d" % (i * 8192))
            dma(4, SWO, "s73", 0, "wo")

    nl = cfg.pfn
    batches = [(SW2, i) for i in range(-(-11 // nl))] + [(SWO, i) for i in range(-(-4 // nl))]

    def pf_late(n):
        if cfg.abl & 16:
            return
        if n == 0:
            a("; memory-side prefetch of w2 (in k order) and wo, a few lines per wave at a time")
            a("s_and_b32 s90, s60, 3")
            a("s_lshl2_add_u32 s90, s2, s90")
            a("s_mul_i32 s90, s90, %d" % (nl * 128))
        a("s_add_u32 s72, s90, %d" % (batches[n][1] * nl * 131072))
        bload(7, 1, 5, batches[n][0], "s72", 0, "", "pf")

    for n in range(len(batches) if cfg.pfe > 90 else 0):
        tl = cfg.pfl + n * cfg.pfg
        bhooks[(tl >> 2, tl & 3, 7)] = [lambda n=n: pf_late(n)]
    for n, lo in enumerate(range(0, 16, cfg.won)):
        bhooks[((cfg.wol + n) >> 2, (cfg.wol + n) & 3, 8)] = [lambda lo=lo: wo_dma(lo, lo + cfg.won)]
    if cfg.bst == 4:
        for j in range(nB):
            bhooks.setdefault((j, 0, 0), []).append(lambda j=j: stamp(2 + j, True))
    att_run(nB, bhooks)
    vm.drain()

    OW = OA + 48
    WOF, OFR, AC, G, Z, X, SR = 128, 24, 8, 64, 96, 104, 112
    a.label("L_att_done")
    stamp(10)
    if cfg.bst == 4:
        stamp(14, True)
    a("s_setprio 0")
    a("s_and_b32 s73, s60, 1")
    a("s_lshl_b32 s73, s73, 9")
    a("s_sub_u32 s76, s95, s73")
    a("""
    s_and_b32 s74, s60, 3
    s_lshr_b32 s75, s60, 2
    v_lshrrev_b32 v14, 3, v0
    v_and_b32 v7, 7, v0
    v_lshlrev_b32 v7, 4, v7
    v_lshl_add_u32 v14, v14, 10, v7
    s_lshl3_add_u32 s78, s66, s60
    s_lshl_b32 s78, s78, 13
    s_lshl_b32 s79, s67, 7
    s_add_u32 s78, s78, s79
    """)
    bload(60, 4, 7, SB2, "s79", 0, "", "xb")
    bload(56, 4, 14, SX, "s78", 0, "", "xb")
    lg.drain()
    a("s_barrier")
    for src in range(3):
        d = SB + 10 * src
        dsr("ds_read_b128", d, 4, 9, src * 2304, src)
        dsr("ds_read_b128", d + 4, 4, 9, src * 2304 + 1024, src)
        dsr("ds_read_b32", d + 8, 1, 10, src * 2304 + 2048, src)
    for src in range(3):
        lg.wait(src)
        for i in range(0, 8, 2):
            a("v_pk_add_f32 %s, %s, %s" % (vr(OW + i, 2), vr(OW + i, 2), vr(SB + 10 * src + i, 2)))
        a("v_add_f32 %s, %s, %s" % (vr(OW + 8), vr(OW + 8), vr(SB + 10 * src + 8)))
    a("v_pk_mul_f32 v[12:13], %s, 0 op_sel_hi:[1,0]" % vr(OW, 2))
    for i in range(2, 8, 2):
        a("v_pk_fma_f32 v[12:13], %s, 0, v[12:13] op_sel_hi:[1,0,1]" % vr(OW + i, 2))
    a("""
    v_add_f32 v12, v12, %s
    v_add_f32 v12, v12, v13
    v_cmp_nle_f32 vcc, 0x30800000, v12
    s_mov_b64 s[72:73], vcc
    v_cmp_nge_f32 vcc, 0x5d800000, v12
    s_or_b64 s[72:73], s[72:73], vcc
    """ % vr(OW + 8))
    a("s_branch L_slow" if cfg.force_slow else "s_cbranch_scc1 L_slow")
    a.label("L_norm")
    a("v_rcp_f32 v12, %s" % vr(OW + 8))
    for i in range(0, 8, 2):
        a("v_pk_mul_f32 %s, %s, v[12:13] op_sel_hi:[1,0]" % (vr(OW + i, 2), vr(OW + i, 2)))
    for q in range(4):
        a("v_cvt_pk_bf16_f32 %s, %s, %s" % (vr(16 + q), vr(OW + 2 * q), vr(OW + 2 * q + 1)))
    a("v_and_b32 v16, -2, v16")
    bstore(16, 4, 11, SWS, "s76", 0, "sc1", "ost")
    stamp(11)
    a("v_mov_b32 v2, v14")
    a("v_lshrrev_b32 v3, 3, v0")
    a("""
    v_mul_u32_u24 v4, %d, v3
    s_mul_i32 s72, s60, %d
    s_add_u32 s72, s72, %d
    v_add3_u32 v4, v4, v7, s72
    """ % (PART_STRIDE, 8 * PART_STRIDE, L_W2))
    for j in range(4):
        dsr("ds_read_b128", G + 4 * j, 4, 4, j * W2_REGION, "g")
    a("""
    v_bfe_u32 v4, v0, 2, 2
    v_bfe_u32 v5, v0, 4, 1
    v_lshl_add_u32 v4, v5, 2, v4
    v_lshrrev_b32 v5, 1, v4
    v_lshlrev_b32 v92, 7, v4
    v_lshl_add_u32 v92, v5, 5, v92
    v_lshrrev_b32 v6, 5, v0
    v_lshl_add_u32 v92, v6, 11, v92
    v_and_b32 v4, 3, v0
    v_lshl_add_u32 v92, v4, 3, v92
    s_lshl_b32 s72, s75, 15
    v_add_u32 v92, s72, v92
    v_xor_b32 v93, 32, v92
    v_xor_b32 v94, 64, v92
    v_xor_b32 v95, 0x60, v92
    s_barrier
    """)

    def oloads(first=0):
        for ks in range(first, 8):
            bload(OFR + 4 * ks, 4, 1, SWS, ("s76", "s77", "s80", "s81")[ks >> 1], (ks & 1) * 2048, "sc1", ("o", ks))

    fill = ("""
    s_lshl2_add_u32 s72, s66, s74
    s_lshr_b32 s76, s72, 1
    s_lshl1_add_u32 s76, s76, s75
    s_lshl_b32 s76, s76, 14
    s_and_b32 s72, s72, 1
    s_lshl_b32 s72, s72, 10
    s_add_u32 s76, s76, s72
    s_add_u32 s76, s76, %d
    s_add_u32 s77, s76, 0x1000
    s_add_u32 s80, s76, 0x2000
    s_add_u32 s81, s76, 0x3000
    v_mul_u32_u24 v3, %d, v3
    v_lshl_add_u32 v3, v7, 1, v3
    s_mul_i32 s72, s60, %d
    s_add_u32 s72, s72, %d
    v_add_u32 v3, s72, v3
    v_and_b32 v5, 15, v0
    v_mul_u32_u24 v5, %d, v5
    v_and_b32 v4, 48, v0
    s_mul_i32 s72, s60, %d
    s_add_u32 s72, s72, %d
    v_add3_u32 v5, v5, v4, s72
    s_mov_b32 s82, 0x3f80
    s_mov_b32 s83, 0x3f800000
    """ % (WS_QO, SUM_STRIDE, 8 * SUM_STRIDE, L_SUM, SUM_STRIDE, 16 * SUM_STRIDE, L_SUM)).strip().split("\n")
    gate = ["v_mov_b32 %s, 0" % vr(Z + i) for i in range(8)]
    gate.append(lambda: lg.wait("g"))
    for j in range(5):
        if j == 4:
            gate.append(lambda: vm.wait("xb"))
        for q in range(4):
            src = G + 4 * j + q if j < 4 else 60 + q
            gate.append("v_dot2c_f32_bf16 %s, s82, %s" % (vr(Z + 2 * q), vr(src)))
            gate.append("v_dot2c_f32_bf16 %s, s83, %s" % (vr(Z + 2 * q + 1), vr(src)))
    for q in range(4):
        gate.append("v_lshlrev_b32 %s, 16, %s" % (vr(X + 2 * q), vr(56 + q)))
        gate.append("v_and_b32 %s, s89, %s" % (vr(X + 1 + 2 * q), vr(56 + q)))
    gate += ["v_mul_f32 %s, 0x%x, %s" % (vr(G + i), NLOG2E, vr(Z + i)) for i in range(8)]
    gate += ["v_exp_f32 %s, %s" % (vr(G + i), vr(G + i)) for i in range(8)]
    gate += ["v_add_f32 %s, 1.0, %s" % (vr(G + i), vr(G + i)) for i in range(8)]
    gate += ["v_rcp_f32 %s, %s" % (vr(G + i), vr(G + i)) for i in range(8)]
    gate += ["v_mul_f32 %s, %s, %s" % (vr(Z + i), vr(Z + i), vr(G + i)) for i in range(8)]

    def wo_reads(oat, per):
        for ks in range(8):
            for ct in range(4):
                trread(WOF + (ks * 4 + ct) * 4, 92 + ct, ks * 4096, 1024, ("wo", ks))
                run_shadow(per)
            if ks == oat:
                run_shadow(1000)
                vm.wait("ost")
                oloads()

    vm_t, lg_t = list(vm.items), list(lg.items)
    a("s_cmp_eq_u32 s63, 1")
    a("s_cbranch_scc1 L_tail_b")
    shadow.extend(fill)
    wo_reads(7, 1)
    shadow.extend(gate)
    run_shadow(1000)
    a("s_branch L_tail_j")
    a.label("L_tail_b")
    vm.items, lg.items = vm_t, lg_t
    shadow.extend(fill + gate)
    run_shadow(1000)
    wo_reads(cfg.oat, 0)
    a.label("L_tail_j")
    stamp(12)
    a("s_mov_b32 s73, 0")
    lg.drain()
    for ks in range(8):
        a.label("L_wo_%d" % ks)
        vm.wait(("o", ks))
        a("v_and_b32 v6, 1, %s" % vr(OFR + 4 * ks))
        a("v_cmp_ne_u32 vcc, 0, v6")
        a("s_cbranch_vccnz L_oretry_%d" % ks)
        a.label("L_ogo_%d" % ks)
        for ct in range(4):
            d = AC + 4 * ct
            mfma16(d, WOF + (ks * 4 + ct) * 4, OFR + 4 * ks, None if ks == 0 else d)
    stamp(13)
    for ct in range(4):
        dsw("ds_write_b128", 5, AC + 4 * ct, 4, ct * 64)
    lg.drain()
    a("s_barrier")
    stamp(14)
    dsr("ds_read_b128", SR, 4, 3, 0, 0)
    dsr("ds_read_b128", SR + 8, 4, 3, SUM_SIZE, 0)
    dsr("ds_read_b128", SR + 4, 4, 3, 16, 1)
    dsr("ds_read_b128", SR + 12, 4, 3, SUM_SIZE + 16, 1)
    for h in range(2):
        lg.wait(h)
        for i in range(4 * h, 4 * h + 4, 2):
            a("v_pk_add_f32 %s, %s, %s" % (vr(SR + i, 2), vr(SR + i, 2), vr(SR + 8 + i, 2)))
        for i in range(4 * h, 4 * h + 4, 2):
            a("v_pk_fma_f32 %s, %s, %s, %s" % (vr(SR + i, 2), vr(SR + i, 2), vr(Z + i, 2), vr(X + i, 2)))
        for q in range(2 * h, 2 * h + 2):
            a("v_cvt_pk_bf16_f32 %s, %s, %s" % (vr(G + q), vr(SR + 2 * q), vr(SR + 2 * q + 1)))
    bstore(G, 4, 2, SOUT, "s78", 0, ("", "sc1", "nt", "sc0 sc1", "sc0 sc1 nt")[cfg.omod])
    a("s_or_b32 s72, s2, s60")
    a("s_cmp_lg_u32 s72, 0")
    a("s_cbranch_scc1 L_noepoch")
    set_flag(7, "0")
    a.label("L_noepoch")
    if cfg.stamps:
        a("s_waitcnt vmcnt(0)")
        stamp(15)
        if cfg.probe is not None:
            a("s_sub_u32 s72, %s, s4" % sr(sSTAMP + cfg.probe))
            if cfg.stamps == 2:
                a("s_lshr_b32 s72, s72, 3")
            else:
                a("s_lshl_b32 s72, s72, %d" % cfg.probesh)
            a("s_cmp_lg_u32 s2, %d" % cfg.probewg)
            a("s_cselect_b32 s72, 0, s72")
            a("s_cmp_lg_u32 s60, %d" % cfg.probew)
            a("s_cselect_b32 s72, 0, s72")
            a("s_memrealtime s[22:23]")
            a("s_waitcnt lgkmcnt(0)")
            a("s_mov_b32 s73, s22")
            a.label("L_probe")
            a("s_memrealtime s[22:23]")
            a("s_waitcnt lgkmcnt(0)")
            a("s_sub_u32 s22, s22, s73")
            a("s_cmp_lt_u32 s22, s72")
            a("s_cbranch_scc1 L_probe")
        a("s_lshl3_add_u32 s72, s2, s60")
        a("s_lshl_b32 s72, s72, 6")
        a("s_add_u32 s72, s72, %d" % WS_STAMP)
        for i in range(16):
            a("v_mov_b32 %s, %s" % (vr(80 + i), sr(sSTAMP + i)))
        a("s_mov_b64 exec, 1")
        for i in range(4):
            bstore(80 + 4 * i, 4, 1, SWS, "s72", 16 * i)
    a.label("L_end")
    a("s_endpgm")

    for ks in range(8):
        a.label("L_oretry_%d" % ks)
        a("s_add_u32 s73, s73, 1")
        a("s_cmp_ge_u32 s73, %d" % SPIN_MAX)
        a("s_cbranch_scc1 L_ogo_%d" % ks)
        a("s_waitcnt vmcnt(0)")
        oloads(ks)
        a("s_branch L_wo_%d" % ks)

    for tag, vt, lanes, soff in stubs:
        a.label("L_poll_" + tag)
        a("s_mov_b32 s73, 0")
        a.label("L_poll2_" + tag)
        a("s_sleep %d" % cfg.sleep)
        flag_load(vt, lanes, soff, None)
        a("s_add_u32 s73, s73, 1")
        a("s_waitcnt vmcnt(0)")
        a("s_cmp_ge_u32 s73, %d" % SPIN_MAX)
        a("s_cbranch_scc1 L_polled_" + tag)
        a("v_cmp_ne_u32 vcc, %s, %s" % (sr(sTAG), vr(vt)))
        a("s_cbranch_vccnz L_poll2_" + tag)
        a("s_branch L_polled_" + tag)

    a.label("L_slow")
    CN = SB + 16
    a("s_waitcnt vmcnt(0)")
    a("v_mov_b32 v13, 0xff800000")
    a("s_mov_b32 s82, s83")
    a("s_mov_b32 s81, 64")
    a.label("L_slow1")
    bload(KV, 4, 252, SWS, "s82", 0, "sc1")
    a("s_add_u32 s82, s82, 2048")
    a("s_waitcnt vmcnt(0)")
    mfma32(SB, KV, QR + 12, None)
    for i in range(0, 16, 2):
        a("v_max3_f32 v13, v13, %s, %s" % (vr(SB + i), vr(SB + i + 1)))
    a("s_sub_u32 s81, s81, 1")
    a("s_cmp_lg_u32 s81, 0")
    a("s_cbranch_scc1 L_slow1")
    a("v_mov_b32 v15, v13")
    a("v_permlane32_swap_b32 v15, v13")
    a("v_max_f32 v13, v15, v13")
    for i in range(16):
        a("v_sub_f32 %s, 0, v13" % vr(CN + i))
        a("v_mov_b32 %s, 0" % vr(OW + i))
    a("s_mov_b32 s82, s83")
    a("s_mov_b32 s81, 64")
    a.label("L_slow2")
    kvload(0)
    a("s_waitcnt vmcnt(0)")
    mfma32(SB, KV, QR + 12, CN)
    for i in range(16):
        a("v_exp_f32 %s, %s" % (vr(SB + i), vr(SB + i)))
    smf(OW, KV + 4, SB)
    smf(OW, KV + 8, SB + 8)
    a("s_sub_u32 s81, s81, 1")
    a("s_cmp_lg_u32 s81, 0")
    a("s_cbranch_scc1 L_slow2")
    a("s_branch L_norm")
    a.label("L_code_end")
    a("s_endpgm")

    added = a.fix()
    return a.text().replace('FSH', str(cfg.fsh)).replace('FROW', str(cfg.fsh + 5)), added


HEADER = """; Kernarg layout for this problem (88 bytes, ptrs only, base s[0:1]):
; @launch grid=(256,1,1) block=(512,1,1) lds=163840
.amdgcn_target "amdgcn-amd-amdhsa--gfx950"
.text
.globl {k}
.p2align 8
.type {k},@function
{k}:
"""

FOOTER = """.section .rodata,"a"
.p2align 6
.amdhsa_kernel {k}
  .amdhsa_next_free_vgpr 256
  .amdhsa_next_free_sgpr 102
  .amdhsa_accum_offset 256
  .amdhsa_group_segment_fixed_size 0
  .amdhsa_kernarg_size 88
  .amdhsa_user_sgpr_count 2
  .amdhsa_user_sgpr_kernarg_segment_ptr 1
  .amdhsa_system_sgpr_workgroup_id_x 1
.end_amdhsa_kernel
"""


def build(**kw):
    cfg = Cfg()
    for k, v in kw.items():
        setattr(cfg, k, v)
    body, added = gen(cfg)
    return HEADER.format(k=KERNEL) + body + FOOTER.format(k=KERNEL), added


if __name__ == "__main__":
    out = sys.argv[1] if len(sys.argv) > 1 else "cdna_kernels/%s.s" % NAME
    kw = {}
    for arg in sys.argv[2:]:
        k, v = arg.split("=")
        kw[k] = int(v)
    text, added = build(**kw)
    open(out, "w").write(text)
    print("wrote", out, "lines", text.count("\n"), "nops added", added)
```

```python
import sys
import os
sys.path.insert(0, os.path.dirname(os.path.abspath(__file__)))
from asmlib import Asm, vr, sr

NAME = "recurrent_scan__softmax_full_mha__dense_activation_squared_relu__prompt"
KERNEL = NAME + "_kernel"

WS_FLAGQ = 0x1200
WS_FLAGH = 0x60000
WS_STAMP = 0x10000
WS_QO = 0x100000
WS_KV = 0x300000
WS_HF = 0x700000
WS_END = WS_HF + 86 * 65536
EPOCH_INC = 0x9E3779B9
SPIN_MAX = 1 << 18

L_RING = 65536
L_OPART = 65536
L_W2 = L_OPART + 55296
W2_REGION = 10240
PART_STRIDE = 144
SUM_STRIDE = 272
SUM_SIZE = 64 * SUM_STRIDE
L_SUM = L_OPART

SX, SWQ, SWO, SW1, SB1, SW2, SB2, SOUT, SWS = 24, 28, 32, 36, 40, 44, 48, 52, 56
sW, sCG, sTB, sRW, sP, sQB, sTBF, sCB, sTAG, sCT0 = 60, 61, 62, 63, 64, 65, 66, 67, 68, 69
sVM = 70
sSTAMP = 4

QSCALE = 0x3EB8AA3B
NLOG2E = 0xBFB8AA3B
NS = 22


class Cfg:
    abl = 0
    bst = 0
    xslot = 0
    xrun = 2
    n1 = 8
    nA = 22
    gap = 1
    kvt = 0
    kvi = 4
    dmam = 2
    fpat = 2221
    pf1_at = 12
    pfc_at = 99
    pfc1 = 0
    w2_at = 10
    pfl = 9
    wol = 15
    won = 1
    stamps = 0
    force_slow = 0
    flag_chunk = 10
    lead = 2
    defer = 0
    look = 5
    pfq_at = 99
    bload = 15
    bjoin = 16
    btile = 2
    sleep = 6
    w0_at = 7
    w1_at = 10
    hpre = 2
    hbar = 0
    hnow = 2
    hgap = 2
    hoff = 0
    kv3 = 1
    fsh = 4
    pfe = 99
    l2q = 99
    rot = 1
    split = 1
    wgrp = 1
    sA = 3
    sB = 3
    sC = 7
    hold = 99
    l2w = 99
    pfn = 11
    alow = 0
    pfg = 1
    hflag = 11
    probe = None
    omod = 1
    oat = 4
    probewg = 100
    probew = 0
    probesh = 4
    hst = 0


def srd(s):
    return sr(s, 4)


class Queue:
    def __init__(self, a, name, maxn):
        self.a, self.name, self.maxn, self.items = a, name, maxn, []

    def push(self, tag):
        self.items.append(tag)

    def wait(self, *tags):
        last = max((i for i, t in enumerate(self.items) if t in tags), default=-1)
        if last < 0:
            return
        n = len(self.items) - 1 - last
        self.a("s_waitcnt %s(%d)" % (self.name, min(n, self.maxn)))
        self.items = self.items[last + 1:]

    def drain(self):
        self.a("s_waitcnt %s(0)" % self.name)
        self.items = []


def gen(cfg):
    a = Asm()
    nA = cfg.nA
    nB = 32 - nA
    vm = Queue(a, "vmcnt", 63)
    lg = Queue(a, "lgkmcnt", 15)

    def stamp(i, force=False):
        if cfg.bst and not force and i != 0:
            return
        if cfg.stamps and (cfg.probe is None or i in (0, cfg.probe)):
            a("%s s[22:23]" % ("s_memtime" if cfg.stamps == 2 else "s_memrealtime"))
            a("s_waitcnt lgkmcnt(0)")
            a("s_mov_b32 %s, s22" % sr(sSTAMP + i))

    def mfma32(d, x, y, c):
        a("v_mfma_f32_32x32x16_bf16 %s, %s, %s, %s" % (vr(d, 16), vr(x, 4), vr(y, 4), "0" if c is None else vr(c, 16)))

    def mfma16(d, x, y, c):
        a("v_mfma_f32_16x16x32_bf16 %s, %s, %s, %s" % (vr(d, 4), vr(x, 4), vr(y, 4), "0" if c is None else vr(c, 4)))

    def smf(d, x, y):
        a("v_smfmac_f32_32x32x32_bf16 %s, %s, %s, v3" % (vr(d, 16), vr(x, 4), vr(y, 8)))

    def bload(d, n, va, s, so, off=0, mod="", tag=None):
        op = {1: "dword", 2: "dwordx2", 4: "dwordx4"}[n]
        a("buffer_load_%s %s, %s, %s, %s offen offset:%d %s" % (op, vr(d, n), vr(va), srd(s), so, off, mod))
        vm.push(tag)

    def bstore(d, n, va, s, so, off=0, mod="", tag=None):
        op = {1: "dword", 2: "dwordx2", 4: "dwordx4"}[n]
        a("buffer_store_%s %s, %s, %s, %s offen offset:%d %s" % (op, vr(d, n), vr(va), srd(s), so, off, mod))
        vm.push(tag)

    def dma(va, s, so, off=0, tag=None):
        a("buffer_load_dwordx4 %s, %s, %s offen offset:%d lds" % (vr(va), srd(s), so, off))
        vm.push(tag)

    def dsr(op, d, n, va, off, tag=None):
        a("%s %s, %s offset:%d" % (op, vr(d, n), vr(va), off))
        lg.push(tag)

    def dsw(op, va, d, n, off, tag=None):
        a("%s %s, %s offset:%d" % (op, vr(va), vr(d, n), off))
        lg.push(tag)

    def trread(d, va, off, second, tag=None):
        dsr("ds_read_b64_tr_b16", d, 2, va, off, tag)
        dsr("ds_read_b64_tr_b16", d + 2, 2, va, off + second, tag)

    def set_flag(vt, soff):
        a("v_mov_b32 %s, %s" % (vr(vt), sr(sTAG)))
        a("s_mov_b64 exec, 1")
        bstore(vt, 1, 1, SWS, soff, 0, "sc0 sc1")
        a("s_mov_b64 exec, -1")

    stubs = []

    def check_flags(tag, vt, lanes, soff):
        a("v_cmp_ne_u32 vcc, %s, %s" % (sr(sTAG), vr(vt)))
        a("s_cbranch_vccnz L_poll_" + tag)
        a.label("L_polled_" + tag)
        stubs.append((tag, vt, lanes, soff))

    def flag_load(vt, shift, soff, tag):
        a("v_and_b32 %s, 31, v0" % vr(vt))
        a("v_lshlrev_b32 %s, %d, %s" % (vr(vt), shift, vr(vt)))
        bload(vt, 1, vt, SWS, soff, 0, "sc0 sc1", tag)

    sizes = {SX: 2048 * 1024, SWQ: 512 * 3072, SWS: WS_END, SW1: 512 * 2752, SB1: 2752,
             SWO: 512 * 1024, SW2: 1376 * 1024, SB2: 1024, SOUT: 2048 * 1024}
    RAW = 128

    def xloads():
        for j in range(8):
            bload(RAW + j * 4, 4, 14, SX, "s101", j * 128, "", ("x", j))

    stamp(0)
    a("""
    s_load_dwordx2 s[24:25], s[0:1], 0
    s_getpc_b64 s[72:73]
    L_pc:
    s_cmpk_ge_u32 s2, 256
    s_cbranch_scc1 L_end
    s_lshr_b32 s74, s2, 3
    s_lshl_b32 s74, s74, 11
    v_lshrrev_b32 v8, 5, v0
    v_lshl_add_u32 v8, v8, 7, s74
    v_min_u32 v8, L_code_end-L_pc, v8
    v_mov_b32 v9, 0
    v_lshl_add_u64 v[8:9], v[8:9], 0, s[72:73]
    global_load_dword v7, v[8:9], off
    s_lshl_b32 s72, s2, 4
    s_and_b32 s72, s72, 0x180
    v_add_u32 v4, s72, v0
    v_bfe_u32 v4, v4, 3, 6
    v_and_b32 v5, 7, v0
    v_lshlrev_b32 v14, 10, v4
    v_lshl_add_u32 v14, v5, 4, v14
    s_lshr_b32 s67, s2, 5
    s_and_b32 s73, s2, 6
    s_lshl2_add_u32 s62, s73, s67
    s_lshl_b32 s101, s62, 16
    s_mov_b32 s26, %d
    s_mov_b32 s27, 0x20000
    v_bfe_u32 v24, v4, 1, 3
    v_xor_b32 v24, v24, v5
    v_lshlrev_b32 v15, 7, v4
    v_lshl_add_u32 v15, v24, 4, v15
    v_readfirstlane_b32 s60, v0
    v_and_b32 v0, 63, v0
    v_mov_b32 v24, 0
    v_mov_b32 v25, 0
    s_lshr_b32 s60, s60, 6
    s_cmp_ge_u32 s60, 4
    s_waitcnt lgkmcnt(0)
    """ % sizes[SX])
    vm.push("pf")
    if cfg.bst == 3:
        stamp(1, True)
    xloads()
    if cfg.bst == 3:
        stamp(2, True)
    if cfg.stamps:
        for i in range(3 if cfg.bst == 3 else 1, 16):
            a("s_mov_b32 %s, s4" % sr(sSTAMP + i))
    a("s_mov_b32 s63, 1")
    a("s_cbranch_scc1 L_ln")
    a("s_mov_b32 s63, 0")

    def setup1():
        for s, off in ((SWQ, 8), (SWS, 80), (SW1, 32), (SB1, 40), (SWO, 16), (SW2, 48), (SB2, 56), (SOUT, 64)):
            a("s_load_dwordx2 %s, s[0:1], %d" % (sr(s, 2), off))
        a("""
        s_mov_b32 s30, %d
        s_mov_b32 s31, 0x20000
        s_bfe_u32 s72, s2, 0x20003
        s_and_b32 s73, s2, 1
        s_lshl2_add_u32 s61, s73, s72
        s_and_b32 s74, s60, 3
        s_lshl_b32 s72, s61, 7
        s_mul_i32 s85, s74, %d
        s_add_u32 s85, s85, s72
        s_mul_i32 s87, s74, 6144
        s_add_u32 s87, s87, %d
        v_lshrrev_b32 v4, 3, v0
        v_bfe_u32 v6, v4, 1, 1
        v_lshlrev_b32 v6, 2, v6
        v_xor_b32 v6, v6, v5
        v_lshlrev_b32 v6, 4, v6
        v_mul_u32_u24 v13, 3072, v4
        v_add_u32 v13, v13, v6
        v_xor_b32 v33, 16, v13
        s_waitcnt lgkmcnt(0)
        """ % (sizes[SWQ], 16 * 3072, L_RING))

    def setup_pf():
        for s in (SW1, SWO, SW2):
            a("s_mov_b32 %s, %d" % (sr(s + 2), sizes[s]))
            a("s_mov_b32 %s, 0x20000" % sr(s + 3))
        a("""
        s_and_b32 s73, s60, 3
        s_lshl2_add_u32 s100, s2, s73
        s_mul_i32 s100, s100, 1536
        v_min_u32 v31, 11, v0
        v_lshlrev_b32 v31, 7, v31
        """)

    def setup2():
        a("s_load_dword %s, %s, 0" % (sr(sTAG), sr(SWS, 2)))
        for s in (SWS, SB1, SB2, SOUT):
            a("s_mov_b32 %s, %d" % (sr(s + 2), sizes[s]))
            a("s_mov_b32 %s, 0x20000" % sr(s + 3))
        a("""
        s_bfe_u32 s72, s2, 0x20003
        s_and_b32 s73, s2, 7
        s_lshl2_add_u32 s66, s73, s72
        s_and_b32 s72, s72, 1
        s_lshl1_add_u32 s64, s73, s72
        s_lshr_b32 s65, s2, 4
        s_mul_i32 s69, s61, 6
        s_mul_i32 s73, s61, 5
        s_add_u32 s73, s73, 3
        s_min_u32 s69, s69, s73
        s_mov_b32 s70, 0xffff
        s_mov_b32 s71, 0xffff
        v_lshlrev_b32 v1, 4, v0
        v_and_b32 v2, 15, v0
        v_lshrrev_b32 v3, 5, v0
        v_lshl_add_u32 v2, v3, 4, v2
        v_lshlrev_b32 v2, 4, v2
        """)

    def setup3():
        a("; attention offsets: s82 = next K/V tile, s83 = head base, s92-s95 = Q tiles, s96-s99 = O partial slots")
        a("""
        s_and_b32 s74, s60, 1
        s_lshr_b32 s75, s60, 1
        s_lshl1_add_u32 s72, s64, s74
        s_lshl_b32 s83, s72, 17
        s_add_u32 s83, s83, %d
        s_and_b32 s73, s75, 1
        s_lshl_b32 s73, s73, 16
        s_add_u32 s82, s83, s73
        s_lshl_b32 s72, s65, 6
        s_add_u32 s72, s72, s64
        s_lshl1_add_u32 s72, s72, s74
        s_lshl_b32 s72, s72, 10
        s_add_u32 s72, s72, %d
        s_mul_i32 s84, s74, %d
        s_add_u32 s84, s84, %d
        """ % (WS_KV, WS_QO, 12 * 2304, L_OPART))
        for t in range(4):
            a("s_xor_b32 s73, s75, %d" % (t ^ 3))
            a("s_mul_i32 %s, s73, %d" % (sr(96 + t), 3 * 2304))
            a("s_lshl_b32 s73, s73, 15")
            a("s_add_u32 %s, s72, s73" % sr(92 + t))
            a("s_add_u32 %s, %s, s84" % (sr(96 + t), sr(96 + t)))

    setup1()
    setup_pf()
    setup2()
    setup3()
    a("""
    s_add_u32 s82, s82, %d
    v_bfe_u32 v9, v0, 4, 1
    v_and_b32 v16, 15, v0
    v_lshlrev_b32 v8, 4, v16
    v_lshl_add_u32 v8, v9, 9, v8
    v_lshl_add_u32 v11, v3, 17, v8
    v_lshl_add_u32 v14, v3, 10, v8
    v_lshl_add_u32 v127, v3, 16, v8
    v_lshrrev_b32 v17, 4, v0
    v_bfe_u32 v8, v0, 3, 1
    v_lshlrev_b32 v12, 4, v5
    v_lshl_add_u32 v12, v17, 8, v12
    v_lshl_add_u32 v12, v8, 17, v12
    v_lshrrev_b32 v8, 1, v16
    v_xor_b32 v8, v8, v17
    v_lshlrev_b32 v16, 7, v16
    v_lshl_add_u32 v16, v8, 4, v16
    s_lshl_b32 s72, s74, 12
    v_add_u32 v16, s72, v16
    v_xor_b32 v17, 64, v16
    v_lshl_add_u32 v4, v4, 10, v6
    v_bfe_u32 v10, v0, 2, 2
    v_lshrrev_b32 v6, 1, v10
    v_xor_b32 v8, s75, v6
    v_and_b32 v18, 2, v0
    v_lshl_add_u32 v8, v8, 2, v18
    v_add_u32 v8, v8, v9
    v_lshlrev_b32 v8, 1, v8
    v_and_or_b32 v8, v0, 1, v8
    v_lshlrev_b32 v8, 3, v8
    v_lshl_add_u32 v8, v10, 7, v8
    v_lshl_add_u32 v8, v9, 10, v8
    v_mul_u32_u24 v18, 6144, v3
    v_add_u32 v8, v8, v18
    v_add_u32 v8, %d, v8
    v_xor_b32 v18, 16, v8
    v_add_u32 v19, %d, v18
    v_lshlrev_b32 v5, 5, v9
    v_lshl_add_u32 v5, v10, 7, v5
    v_and_b32 v10, 3, v0
    v_lshl_add_u32 v5, v10, 3, v5
    v_lshl_add_u32 v5, v3, 9, v5
    v_lshl_add_u32 v5, v6, 6, v5
    v_lshrrev_b32 v10, 1, v0
    v_xor_b32 v10, v10, v0
    v_and_b32 v10, 1, v10
    v_mul_u32_u24 v10, 24, v10
    v_xor_b32 v5, v5, v10
    s_mul_i32 s84, s60, %d
    s_add_u32 s84, s84, %d
    v_add_u32 v5, s84, v5
    v_xor_b32 v6, 64, v5
    v_lshlrev_b32 v10, 3, v9
    v_lshl_add_u32 v10, v3, 5, v10
    v_xor_b32 v9, 16, v19
    v_mov_b32 v3, 0xdddddddd
    """ % (nB * 2048, L_RING, 2 * 24576, W2_REGION, L_W2))
    a("""
    s_lshl1_add_u32 s72, s62, s74
    s_lshl1_add_u32 s73, s61, s75
    s_lshl_b32 s76, s73, 7
    s_add_u32 s76, s76, s72
    s_lshl_b32 s77, s76, 11
    s_lshl4_add_u32 s76, s72, s73
    s_lshl_b32 s76, s76, 11
    s_add_u32 s76, s76, %d
    s_add_u32 s77, s77, %d
    s_add_u32 s81, s69, s75
    s_lshl_b32 s78, s81, 7
    s_add_u32 s78, s78, s72
    s_lshl_b32 s78, s78, 10
    s_add_u32 s78, s78, %d
    s_lshl_b32 s79, s61, 6
    s_add_u32 s79, s79, s62
    s_lshl_b32 s79, s79, 4
    s_add_u32 s79, s79, %d
    s_lshl_b32 s80, s62, 3
    s_add_u32 s80, s80, s61
    s_lshl2_add_u32 s80, s80, s60
    s_lshl_b32 s80, s80, FSH
    s_add_u32 s80, s80, %d
    s_mul_i32 s73, s61, s75
    s_add_u32 s88, s78, %d
    s_cmp_lt_u32 s73, 3
    s_cselect_b32 s88, s88, 0x40000000
    s_lshl_b32 s81, s81, 6
    """ % (WS_QO, WS_KV, WS_HF, WS_FLAGQ, WS_FLAGH, 8 * 65536))

    def slot_of(c):
        if not cfg.xslot or c < cfg.xslot:
            return (c & 3) * 24576
        return -L_RING if c == cfg.xslot else ((c - 1) & 3) * 24576

    skip_bar = (10,) if cfg.xslot else ()

    def issue_chunk(c):
        if cfg.rot:
            a("s_xor_b32 s73, s67, %d" % (c & 7))
            a("s_mul_i32 s73, s73, %d" % (64 * (3072 if c < 8 else 2752)))
            a("s_add_u32 s73, s73, %s" % ("s85" if c < 8 else "s80"))
        for m in range(6):
            blk, seg = divmod(m, 3)
            a("s_add_u32 m0, s87, %d" % (slot_of(c) + seg * 2048 + blk * 1024))
            if c < 8:
                a("s_add_u32 s72, %s, %d" % (("s73", blk * 8 * 3072 + seg * 1024) if cfg.rot else ("s85", (c * 64 + blk * 8) * 3072 + seg * 1024)))
                dma(33 if blk else 13, SWQ, "s72", 0, ("w", c))
            else:
                a("s_add_u32 s72, %s, %d" % (("s73", blk * 8 * 2752 + seg * 128) if cfg.rot else ("s80", ((c - 8) * 64 + blk * 8) * 2752 + seg * 128)))
                dma(56 + (seg == 2) + 2 * blk, SW1, "s72", 0, ("w", c))

    def layernorm(acts):
        def act(p):
            if acts.get(p):
                assert p >= 7
                a("s_cmp_eq_u32 s63, 1")
                a("s_cbranch_scc1 L_ln_%d" % p)
                for f in acts[p]:
                    f()
                a.label("L_ln_%d" % p)
        a.label("L_ln")
        a("v_mov_b32 v30, 0x3f803f80")
        a("s_mov_b32 s89, 0xffff0000")
        if cfg.rot:
            a("; K chunks are visited in the order c ^ (row block & 7): workgroups sharing weights fetch different chunks first")
            a("s_lshl_b32 s72, s67, 13")
            a("v_or_b32 v15, s72, v15")

        def xwrite(j):
            if cfg.rot:
                a("v_xor_b32 v23, 0x%x, v15" % (j << 13))
                a("ds_write_b128 v23, %s" % vr(RAW + j * 4, 4))
            else:
                a("ds_write_b128 v15, %s offset:%d" % (vr(RAW + j * 4, 4), j * 8192))

        for j in range(8):
            if cfg.bst == 3 and j == 0:
                stamp(3, True)
            vm.wait(("x", j))
            if cfg.bst == 3 and j in (0, 3, 7):
                stamp({0: 4, 3: 5, 7: 6}[j], True)
            act(j)
            for q in range(4):
                x = RAW + j * 4 + q
                a("v_dot2c_f32_bf16 v24, v30, %s" % vr(x))
                a("v_dot2c_f32_bf16 v25, %s, %s" % (vr(x), vr(x)))
        act(8)
        stamp(1)
        for ctl in ("quad_perm:[1,0,3,2]", "quad_perm:[2,3,0,1]", "row_half_mirror"):
            for r in (24, 25):
                a("v_add_f32_dpp %s, %s, %s %s row_mask:0xf bank_mask:0xf" % (vr(r), vr(r), vr(r), ctl))
        a("""
        v_mul_f32 v24, 0x3b000000, v24
        v_mul_f32 v25, 0x3b000000, v25
        v_fma_f32 v25, -v24, v24, v25
        v_max_f32 v25, 0, v25
        v_cvt_pk_bf16_f32 v24, v24, v25
        v_and_b32 v25, s89, v24
        v_add_f32 v25, 0x3727c5ac, v25
        v_cvt_pk_bf16_f32 v25, v25, v25
        v_and_b32 v25, s89, v25
        v_sqrt_f32 v25, v25
        v_lshlrev_b32 v24, 16, v24
        v_cvt_pk_bf16_f32 v25, v25, v25
        v_and_b32 v25, s89, v25
        v_rcp_f32 v26, v25
        v_mul_f32_e64 v28, -v24, v26
        """)
        for j in range(8):
            x = RAW + j * 4
            t = 192 + (j & 1) * 8
            for q in range(4):
                a("v_lshlrev_b32 %s, 16, %s" % (vr(t + 2 * q), vr(x + q)))
                a("v_and_b32 %s, s89, %s" % (vr(t + 2 * q + 1), vr(x + q)))
            for q in range(4):
                a("v_pk_fma_f32 %s, %s, v[26:27], v[28:29] op_sel_hi:[1,0,0]" % (vr(t + 2 * q, 2), vr(t + 2 * q, 2)))
            for q in range(4):
                a("v_cvt_pk_bf16_f32 %s, %s, %s" % (vr(x + q), vr(t + 2 * q), vr(t + 2 * q + 1)))
            if not cfg.defer:
                xwrite(j)
        if cfg.bst == 3:
            stamp(7, True)
        act(9)
        if cfg.defer:
            for j in range(8):
                xwrite(j)
        act(10)
        stamp(2)
        if cfg.bst == 3:
            stamp(8, True)

    def pfq():
        a("; memory-side prefetch of Wqkv")
        bload(7, 1, 31, SWQ, "s100", 0, "", "pf")

    def pfl2(which):
        a("; the die's workgroups pull their half of the weight columns into L2 together, four rows per wave")
        stride = 3072 if which == SWQ else 2752
        a("s_lshr_b32 s72, s2, 3")
        a("s_and_b32 s73, s60, 3")
        a("s_lshl2_add_u32 s72, s72, s73")
        a("s_mul_i32 s72, s72, %d" % (4 * stride))
        a("s_and_b32 s73, s2, 1")
        a("s_mul_i32 s73, s73, %d" % (512 if which == SWQ else 1472))
        a("s_add_u32 s72, s72, s73")
        a("v_lshrrev_b32 v20, 4, v0")
        a("v_mul_u32_u24 v20, %d, v20" % stride)
        if which == SWQ:
            a("v_bfe_u32 v21, v0, 2, 2")
            a("v_min_u32 v21, 2, v21")
            a("v_lshl_add_u32 v20, v21, 10, v20")
            a("v_and_b32 v21, 3, v0")
            a("v_lshl_add_u32 v20, v21, 7, v20")
        else:
            a("v_and_b32 v21, 15, v0")
            a("v_lshlrev_b32 v21, 7, v21")
            a("v_min_u32 v21, 1468, v21")
            a("v_add_u32 v20, v20, v21")
        bload(22, 1, 20, which, "s72", 0, "", "pf")

    def pfc(which):
        a("; lines at offset 384 of every KiB stream slowly on a miss: the die's workgroups pull them into L2 together")
        a("s_lshr_b32 s72, s2, 3")
        a("s_lshl2_add_u32 s72, s72, s60")
        a("s_mul_i32 s72, s72, 12288")
        a("v_lshlrev_b32 v20, 3, v31")
        if which == SWQ:
            a("s_bitcmp1_b32 s2, 0")
            a("s_cselect_b32 s72, 0x40000000, s72")
        bload(7, 1, 20, which, "s72", 384, "", "pf")

    def pf1():
        a("; memory-side prefetch of W1")
        bload(7 if cfg.pf1_at <= 10 else 32, 1, 31, SW1, "s100", 0, "", "pf")

    acts = {}
    if cfg.pfc_at == 0:
        save = list(vm.items)
        pfc(SWQ)
        vm.items = save
    elif cfg.pfc_at <= 10:
        acts.setdefault(cfg.pfc_at, []).append(lambda: pfc(SWQ))
    if cfg.pfq_at == 0:
        save = list(vm.items)
        pfq()
        vm.items = save
    elif cfg.pfq_at <= 10:
        acts.setdefault(cfg.pfq_at, []).append(pfq)
    if cfg.l2q == 0:
        save = list(vm.items)
        pfl2(SWQ)
        vm.items = save
    if cfg.l2q == 7:
        acts.setdefault(7, []).append(lambda: pfl2(SWQ))
    for c, p in enumerate((cfg.w0_at, cfg.w1_at, cfg.w2_at, 10)[:cfg.lead + 1]):
        acts.setdefault(p, []).append(lambda c=c: issue_chunk(c))
    if 8 <= cfg.l2q <= 10:
        acts.setdefault(cfg.l2q, []).insert(0, lambda: pfl2(SWQ))
    if cfg.pf1_at <= 10:
        acts.setdefault(cfg.pf1_at, []).append(pf1)
    if cfg.pfc1:
        acts.setdefault(10, []).append(lambda: pfc(SW1))
    layernorm(acts)
    a("s_cmp_eq_u32 s63, 1")
    a("s_cbranch_scc1 L_loader")

    QR, SB, WF, FA, OA, KV, HB = 8, 24, 56, 64, 128, 192, 228
    NKV = 3

    def att_init_ops():
        ops = ["v_mov_b32 %s, 0" % vr(OA + 16 * t + i) for t in range(4) for i in range(9)]
        ops2 = ["v_and_b32 v7, 27, v0", "v_cmp_eq_u32 vcc, 16, v7", "v_mov_b32 v7, 0x3f803f80", "v_cndmask_b32 v7, 0, v7, vcc"]
        ops2 += ["v_mov_b32 %s, v7" % vr(KV + 12 * b + 4 + q) for b in range(NKV) for q in range(8)]
        return ops, ops2

    def kvload(j):
        b = j % NKV
        bload(KV + 12 * b, 4, 252, SWS, "s82", 0, "sc1", ("kv", j))
        a("s_mov_b64 exec, %s" % sr(sVM, 2))
        bload(KV + 12 * b + 4, 4, 2, SWS, "s82", 1024, "sc1", ("kv", j))
        bload(KV + 12 * b + 8, 4, 2, SWS, "s82", 1536, "sc1", ("kv", j))
        a("s_mov_b64 exec, -1")
        a("s_add_u32 s82, s82, 2048")

    def att_loads(role):
        a("; key slot 8a+4b+c holds token 16b+4a+c, matching the order of the V fragments")
        a("v_and_b32 v252, 0x230, v1")
        a("v_and_b32 v253, 0x180, v1")
        a("v_lshrrev_b32 v253, 1, v253")
        a("v_and_b32 v254, 64, v1")
        a("v_lshlrev_b32 v254, 2, v254")
        a("v_or3_b32 v252, v252, v253, v254")
        bload(QR, 4, 1, SWS, "s92", 0, "sc1", "q")
        kvload(0)
        for t in range(1, 4):
            bload(QR + 4 * t, 4, 1, SWS, sr(92 + t), 0, "sc1", "q")
        kvload(1)
        if cfg.kv3 and role == "a":
            kvload(2)

    def dump_addr():
        a("v_lshlrev_b32 v8, 2, v0")
        a("v_add_u32 v9, s99, v1")
        a("v_add_u32 v10, s99, v8")
        a("v_bfe_u32 v11, v0, 4, 1")
        a("v_lshl_add_u32 v11, v11, 10, v2")

    def dump(t):
        a("v_add_u32 v12, %s, v1" % sr(96 + t))
        a("v_add_u32 v13, %s, v8" % sr(96 + t))
        dsw("ds_write_b128", 12, OA + 16 * t, 4, t * 2304)
        dsw("ds_write_b128", 12, OA + 16 * t + 4, 4, t * 2304 + 1024)
        dsw("ds_write_b32", 13, OA + 16 * t + 8, 1, t * 2304 + 2048)

    deferred = []
    cfg_gap = {0: range(16), 1: (1, 10), 2: (0, 9), 3: (4, 10), 4: (1,), 5: (4,), 6: (15, 9)}[cfg.gap]

    def att_run(n, hooks):
        hooks.setdefault((n - 1, 0, 11), []).append(dump_addr)
        for t in range(3):
            hooks.setdefault((n - 1, t + 1, 12), []).append(lambda t=t: dump(t))
        vm.wait("q", ("kv", 0))
        mfma32(SB, KV, QR, None)
        for j in range(n):
            b = j % NKV
            for t in range(4):
                cur, oth = SB + 16 * (t & 1), SB + 16 * ((t + 1) & 1)
                for i in range(16):
                    a("v_exp_f32 %s, %s" % (vr(cur + i), vr(cur + i)))
                    if i in cfg_gap:
                        while deferred:
                            deferred.pop(0)()
                    if t == cfg.kvt and i == cfg.kvi and j + NKV - 1 < n and not (cfg.abl & 32 and j > 0) and not (cfg.kv3 and j == 0):
                        kvload(j + NKV - 1)
                    if i == 1 and (j, t) != (0, 0):
                        smf(OA + 16 * ((t + 3) & 3), KV + 12 * (b if t else (j - 1) % NKV) + 8, oth + 8)
                    if i == 4:
                        if t < 3:
                            mfma32(oth, KV + 12 * b, QR + 4 * (t + 1), None)
                        elif j + 1 < n:
                            vm.wait(("kv", j + 1))
                            mfma32(oth, KV + 12 * ((j + 1) % NKV), QR, None)
                    if i == 10:
                        smf(OA + 16 * t, KV + 12 * b + 4, cur)
                    for h in hooks.get((j, t, i), ()):
                        h()
        smf(OA + 48, KV + 12 * ((n - 1) % NKV) + 8, SB + 16 + 8)

    ACC = (24, 40, 56)
    WB, NBUF, LA = 72, 6, cfg.look
    XF, PK, XA = 128, 96, 16
    init1, init2 = att_init_ops()

    def item(g):
        kk, m = divmod(g % 96, 6)
        return kk, m >> 1, m & 1

    def reads(g, part=None):
        kk, seg, ab = item(g)
        so = slot_of(g // 12)
        base = (8, 18)[ab] + so // 49152
        off = so % 49152 + (kk & 1) * 12288 + seg * 2048
        for h in range(2):
            if part in (None, h):
                if g < 96 and seg == 0 and ab == 0:
                    dsr("ds_read_b128", XF + 8 * kk + 4 * h, 4, XA + (kk & 1), (kk >> 1) * 8192 + h * 2048, g)
                dsr("ds_read_b64_tr_b16", WB + 4 * (g % NBUF) + 2 * h, 2, base, off + 512 * h, g)

    def pack(acc, pk):
        return ["v_cvt_pk_bf16_f32 %s, %s, %s" % (vr(pk + q), vr(acc + 2 * q), vr(acc + 2 * q + 1)) for q in range(8)]

    def st2(pk, va, base, delta, tag, imm=(0, 0), vb=None):
        def first():
            bstore(pk, 4, va, SWS, base, imm[0], "" if cfg.abl & 64 else "sc1", tag)

        def second():
            if delta:
                a("s_add_u32 s72, %s, %d" % (base, delta))
            bstore(pk + 4, 4, vb or va, SWS, "s72" if delta else base, imm[1], "" if cfg.abl & 64 else "sc1", tag)
        return [first, second]

    def relu2(acc):
        return (["v_max_f32 %s, 0, %s" % (vr(acc + i), vr(acc + i)) for i in range(16)]
                + ["v_mul_f32 %s, %s, %s" % (vr(acc + i), vr(acc + i), vr(acc + i)) for i in range(16)])

    def bias(seg):
        ops = [lambda: vm.wait("b1")]
        for q in range(4):
            ops.append("v_lshlrev_b32 %s, 16, %s" % (vr(ACC[seg] + 2 * q), vr(112 + 4 * seg + q)))
            ops.append("v_and_b32 %s, s89, %s" % (vr(ACC[seg] + 2 * q + 1), vr(112 + 4 * seg + q)))
        return ops

    tagq = ["v_or_b32 %s, 1, %s" % (vr(PK + 4 * q), vr(PK + 4 * q)) for q in range(2)]
    qkv_epi = (["v_mul_f32 %s, 0x%x, %s" % (vr(ACC[0] + i), QSCALE, vr(ACC[0] + i)) for i in range(16)]
               + pack(ACC[0], PK) + tagq + st2(PK, 14, "s76", 0, "st", (0, 256))
               + pack(ACC[1], PK + 8) + st2(PK + 8, 11, "s77", 0, "st", (0, 256))
               + pack(ACC[2], PK) + st2(PK, 12, "s77", 0, "st", (1024, 1152))
               + bias(0) + bias(1) + bias(2))
    sched = {144: init1, 174: init2}
    shadow = []

    def run_shadow(budget):
        while shadow and budget > 0:
            op = shadow.pop(0)
            if isinstance(op, str):
                a(op)
                budget -= 1
            else:
                op()
                budget -= 3

    a("""
    s_lshl_b32 s85, s60, 14
    s_lshl_b32 s72, s67, 7
    s_add_u32 s85, s85, s72
    s_lshl_b32 s86, s60, 6
    s_lshl1_add_u32 s86, s66, s86
    s_lshl_b32 s86, s86, 10
    s_add_u32 s86, s86, %d
    s_lshl_b32 s87, s66, FROW
    s_add_u32 s87, s87, %d
    """ % (WS_HF, WS_FLAGH))
    vm.wait(("w", 0))
    a("s_waitcnt lgkmcnt(0)")
    a("s_add_u32 %s, %s, 0x%x" % (sr(sTAG), sr(sTAG), EPOCH_INC))
    if cfg.bst == 3:
        stamp(9, True)
    a("s_barrier")
    stamp(3)
    if cfg.bst == 3:
        stamp(10, True)
    for g in range(LA):
        reads(g)
    for g in range(192):
        kk, seg, ab = item(g)
        if g == 96:
            stamp(4)
            shadow.extend(qkv_epi)
            run_shadow(1000)
            stamp(5)
            a("s_barrier")
            for n in range(96, 96 + LA):
                reads(n)
        lg.wait(*range(g, g - g % cfg.wgrp + cfg.wgrp))
        w = WB + 4 * (g % NBUF)
        n = g + LA
        more = n < 192 and not g < 96 <= n
        shadow.extend(sched.get(g, ()))
        for h, t in enumerate((1, 0)):
            x = XF + 8 * kk + 4 * t
            if g < 96 and seg == 2:
                d = ACC[seg] + 8 * ab + 4 * t
                mfma16(d, x, w, None if kk == 0 else d)
            else:
                d = ACC[seg] + 8 * t + 4 * ab
                mfma16(d, w, x, d if kk else (None if g < 96 else ACC[seg] + 4 * ab))
            if more and h == 0 and n % 12 == 0:
                vm.wait(("w", n // 12))
                if n // 12 == cfg.flag_chunk:
                    vm.wait("st")
                a("s_barrier")
                if n // 12 == cfg.flag_chunk:
                    a("s_cmp_lg_u32 s60, 0")
                    a("s_cselect_b32 s79, 0x40000000, s79")
                    set_flag(7, "s79")
                    stamp(6)
            if more:
                reads(n, h)
            run_shadow(1 if more else 2)
        if g == 40:
            for q in range(6):
                bload(112 + 2 * q, 2, 10, SB1, "s81", (q >> 1) * 128 + (q & 1) * 16, "", "b1")
    run_shadow(1000)
    stamp(7)
    hmath, hst = [], []
    for seg in range(3):
        pk = PK + 8 * seg
        hmath.append(relu2(ACC[seg]) + pack(ACC[seg], pk))
        hst.append((["s_add_u32 s78, s78, 0x40000"] if seg == 1 else []) + st2(pk, 127, "s78" if seg < 2 else "s88", 0, "hst", (0, 256)))
    for seg in range(cfg.hbar):
        shadow.extend(hmath[seg])
    run_shadow(1000)
    a("s_barrier")
    stamp(8)
    if cfg.bst == 4:
        stamp(1, True)
    a("s_setprio 2")
    for seg in range(cfg.hbar, cfg.hpre):
        shadow.extend(hmath[seg])
    run_shadow(1000)
    att_loads("a")
    hlist = [[hst[0][0]], [hst[0][1]], hst[1][:2], [hst[1][2]], [hst[2][0]], [hst[2][1]]]
    for seg in range(3):
        shadow.extend(hmath[seg] if seg >= max(cfg.hpre, cfg.hbar) else [])
        for n in (2 * seg, 2 * seg + 1):
            if n < cfg.hnow:
                shadow.extend(hlist[n])
    run_shadow(1000)
    stamp(9)


    def w2dma(i):
        if cfg.abl & 1:
            return
        a("s_add_u32 m0, s84, %d" % ((i & 3) * 2048))
        a("s_add_u32 s72, s85, %d" % (i * 65536))
        dma(4, SW2, "s72", 0, ("w2", i))
        a("s_add_u32 s72, s72, 7168")
        dma(4, SW2, "s72", 1024, ("w2", i))

    hreg = lambda i, tt: HB + 8 * (i % 3) + 4 * tt

    def hload(i):
        if cfg.abl & 1:
            return
        if i > 0:
            a("s_add_u32 s86, s86, 0x40000")
        for tt in range(2):
            bload(hreg(i, tt), 4, 1, SWS, "s86", tt * 1024, "sc1", ("h", i))

    def w2read(i, nt):
        if cfg.abl & 2:
            return
        vm.wait(("w2", i))
        trread(WF + 4 * nt, 5 + nt, (i & 3) * 2048, 1024, ("wf", i, nt))

    def fslot(f):
        i, m = divmod(f, 4)
        nt, tt = ((0, 0), (0, 1), (1, 1), (1, 0))[m]
        vm.wait(("h", i))
        lg.wait(("wf", i, nt))
        d = FA + 16 * (2 * tt + nt)
        if not cfg.abl & 4:
            mfma32(d, WF + 4 * nt, hreg(i, tt), None if i == 0 else d)
        if m == 1 and i + 1 < NS:
            deferred.append(lambda: w2read(i + 1, 0))
        if m == cfg.dmam and i + 4 < NS:
            deferred.append(lambda: w2dma(i + 4))
        if m == 3:
            if i + 1 < NS:
                deferred.append(lambda: w2read(i + 1, 1))
            if i + 3 < NS:
                deferred.append(lambda: hload(i + 3))

    def park(tt, nt):
        d = FA + 16 * (2 * tt + nt)
        for q in range(8):
            a("v_cvt_pk_bf16_f32 %s, %s, %s" % (vr(d + q), vr(d + 2 * q), vr(d + 2 * q + 1)))
        for q in range(2):
            dsw("ds_write_b128", 4, d + 4 * q, 4, tt * 32 * PART_STRIDE + nt * 64 + q * 32)

    def park_addr():
        a("v_and_b32 v4, 31, v0")
        a("v_mul_u32_u24 v4, %d, v4" % PART_STRIDE)
        a("v_lshrrev_b32 v5, 5, v0")
        a("v_lshl_add_u32 v4, v5, 4, v4")
        a("v_add_u32 v4, s84, v4")

    hooks = {}

    def hook(j, t, i, f):
        hooks.setdefault((j, t, i), []).append(f)

    n1 = cfg.n1
    for n in range(cfg.hnow, 6):
        tl = (n - cfg.hnow) * cfg.hgap + cfg.hoff
        hook(tl >> 2, tl & 3, 9, lambda n=n: (shadow.extend(hlist[n]), run_shadow(1000)))
    assert (5 - cfg.hnow) * cfg.hgap + cfg.hoff <= cfg.hflag < 4 * (n1 - 2)
    hook(cfg.hflag >> 2, cfg.hflag & 3, 12, lambda: (vm.wait("hst"), set_flag(7, "s80"), stamp(1) if cfg.hst else None))
    hook(n1 - 2, 0, 8, lambda: flag_load(7, cfg.fsh, "s87", "hf"))
    hook(n1 - 2, 3, 12, lambda: (vm.wait("hf"), stamp(2) if cfg.hst else None, check_flags("h", 7, cfg.fsh, "s87"), stamp(3) if cfg.hst else None))
    for i in range(4):
        hook(n1 - 3 + (i >> 1), 1 + (i & 1), 7, lambda i=i: w2dma(i))
    for i in range(3):
        hook(n1 - 1, i, 7, lambda i=i: hload(i))
    hook(n1 - 1, 3, 7, lambda: (w2read(0, 0), w2read(0, 1)))
    pat = [int(ch) for ch in str(cfg.fpat)]
    slots = [(j, t, pos) for j in range(n1, nA) for t in range(4) for pos in ((13,), (7, 13))[pat[t] - 1]]
    for f in range(4 * NS):
        hook(*slots[f], lambda f=f: fslot(f))
    tl = slots[4 * NS - 1][0] * 4 + slots[4 * NS - 1][1] + 1
    assert tl + 3 < 4 * nA
    hook(tl >> 2, tl & 3, 6, park_addr)
    for n, (nt, tt) in enumerate(((0, 0), (0, 1), (1, 1), (1, 0))):
        hook((tl + n) >> 2, (tl + n) & 3, 7, lambda tt=tt, nt=nt: park(tt, nt))
    if cfg.hst:
        for n in range(4):
            hook(n1 + 4 * n, 0, 1, lambda n=n: stamp(4 + n))
    if cfg.alow:
        tl = 4 * nA - cfg.alow
        hook(tl >> 2, tl & 3, 0, lambda: a("s_setprio 0"))
    if cfg.bst == 4:
        for n, j in enumerate(range(0, nA, 2)):
            hook(j, 0, 0, lambda n=n: stamp(2 + n, True))
    att_run(nA, hooks)
    vm.drain()
    a("s_branch L_att_done")

    a.label("L_loader")
    vm.items = []
    lg.items = []

    def b_setup():
        a("; waves 4-7: W1 DMA offsets v56/v57 (sixth tile out of range where the next group owns it), wo DMA offset v4, flagQ row s79")
        a("""
        v_mul_u32_u24 v56, 2752, v4
        v_add_u32 v56, v56, v6
        s_lshr_b32 s72, 0xf8, s61
        s_and_b32 s72, s72, 1
        s_lshl_b32 s72, s72, 23
        v_and_b32 v57, 64, v6
        v_mad_u32_u24 v57, v57, s72, v56
        v_xor_b32 v58, 16, v56
        v_xor_b32 v59, 16, v57
        v_bfe_u32 v6, v4, 1, 2
        v_lshlrev_b32 v6, 1, v6
        v_xor_b32 v6, v6, v5
        v_lshlrev_b32 v6, 4, v6
        v_lshl_add_u32 v4, v4, 10, v6
        v_min_u32 v5, %d, v0
        v_lshlrev_b32 v5, 7, v5
        s_lshr_b32 s79, s64, 1
        s_lshl_b32 s79, s79, 10
        s_add_u32 s79, s79, %d
        s_and_b32 s73, s60, 3
        s_lshl_b32 s72, s69, 6
        s_mul_i32 s80, s73, %d
        s_add_u32 s80, s80, s72
        """ % (cfg.pfn - 1, WS_FLAGQ, 16 * 2752))

        a("v_mov_b32 v3, 0xdddddddd")

    issued = cfg.lead
    setup1()
    state = {"issued": issued}

    def b_step(c):
        if c in skip_bar:
            return
        vm.wait(("w", c + 1 if c + 1 in skip_bar else c))
        if cfg.bst == 2:
            stamp(c, True)
        if cfg.bst == 3 and c == 0:
            stamp(9, True)
        a("s_barrier")
        if cfg.bst == 1:
            stamp(c, True)
        if c in (0, 8, 12, 15):
            stamp({0: 3, 8: 4, 12: 5, 15: 6}[c])
        if c == cfg.bload - 1:
            flag_load(7, 4, "s79", "qf")
        if c == cfg.bload:
            vm.wait("qf")
            check_flags("q", 7, 4, "s79")
            stamp(7)
            att_loads("b")
        lim = c + 2
        if c < 8:
            lim = min(lim, cfg.hold)
        if cfg.split and c == 8:
            lim = 10 + cfg.split - 1
        if cfg.xslot == 12 and c == 9:
            lim = 12
        if cfg.xslot == 11 and c in (8, 9):
            lim = c + 3
        if cfg.xslot and c >= 11:
            lim = c + cfg.xrun
        while state["issued"] < min(15, max(3, lim)):
            state["issued"] += 1
            issue_chunk(state["issued"])
        if c == 0:
            setup_pf()
        if c == cfg.sA:
            setup2()
        if cfg.pf1_at == 12 + c:
            pf1()
        if c == cfg.sB:
            b_setup()
        if c == cfg.sC:
            setup3()
        if c == cfg.l2w:
            pfl2(SW1)
        if c == cfg.pfe:
            a("; memory-side prefetch of w2 and wo")
            bload(32, 1, 31, SW2, "s100", 0, "", "pf")
            bload(32, 1, 31, SWO, "s100", 0, "", "pf")
        if c == cfg.sC:
            for op in init1 + init2:
                a(op)
        if c == 7:
            a("s_waitcnt lgkmcnt(0)")
            a("s_add_u32 %s, %s, 0x%x" % (sr(sTAG), sr(sTAG), EPOCH_INC))

    def b_att():
        a("s_barrier")
        stamp(8)
        a("s_setprio 1")
        if cfg.kv3:
            kvload(2)

    bhooks = {}
    for c in range(17):
        f = (lambda c=c: b_step(c)) if c < 16 else b_att
        if c <= cfg.bjoin:
            f()
        else:
            tl = (c - cfg.bjoin) * cfg.btile - 1
            bhooks[(tl >> 2, tl & 3, 13)] = [f]

    def wo_dma(lo, hi):
        if cfg.abl & 8:
            return
        if lo == 0:
            a("; wo tile -> LDS [0, 64K), a few rows per score tile")
            a("s_and_b32 s78, s60, 3")
            a("s_lshl_b32 s76, s78, 17")
            a("s_lshl_b32 s73, s67, 7")
            a("s_add_u32 s76, s76, s73")
            a("s_lshl_b32 s78, s78, 14")
        for i in range(lo, hi):
            a("s_add_u32 m0, s78, %d" % (i * 1024))
            a("s_add_u32 s73, s76, %d" % (i * 8192))
            dma(4, SWO, "s73", 0, "wo")

    nl = cfg.pfn
    batches = [(SW2, i) for i in range(-(-11 // nl))] + [(SWO, i) for i in range(-(-4 // nl))]

    def pf_late(n):
        if cfg.abl & 16:
            return
        if n == 0:
            a("; memory-side prefetch of w2 (in k order) and wo, a few lines per wave at a time")
            a("s_and_b32 s90, s60, 3")
            a("s_lshl2_add_u32 s90, s2, s90")
            a("s_mul_i32 s90, s90, %d" % (nl * 128))
        a("s_add_u32 s72, s90, %d" % (batches[n][1] * nl * 131072))
        bload(7, 1, 5, batches[n][0], "s72", 0, "", "pf")

    for n in range(len(batches) if cfg.pfe > 90 else 0):
        tl = cfg.pfl + n * cfg.pfg
        bhooks[(tl >> 2, tl & 3, 7)] = [lambda n=n: pf_late(n)]
    for n, lo in enumerate(range(0, 16, cfg.won)):
        bhooks[((cfg.wol + n) >> 2, (cfg.wol + n) & 3, 8)] = [lambda lo=lo: wo_dma(lo, lo + cfg.won)]
    if cfg.bst == 4:
        for j in range(nB):
            bhooks.setdefault((j, 0, 0), []).append(lambda j=j: stamp(2 + j, True))
    att_run(nB, bhooks)
    vm.drain()

    OW = OA + 48
    WOF, OFR, AC, G, Z, X, SR = 128, 24, 8, 64, 96, 104, 112
    a.label("L_att_done")
    stamp(10)
    if cfg.bst == 4:
        stamp(14, True)
    a("s_setprio 0")
    a("s_and_b32 s73, s60, 1")
    a("s_lshl_b32 s73, s73, 9")
    a("s_sub_u32 s76, s95, s73")
    a("""
    s_and_b32 s74, s60, 3
    s_lshr_b32 s75, s60, 2
    v_lshrrev_b32 v14, 3, v0
    v_and_b32 v7, 7, v0
    v_lshlrev_b32 v7, 4, v7
    v_lshl_add_u32 v14, v14, 10, v7
    s_lshl3_add_u32 s78, s66, s60
    s_lshl_b32 s78, s78, 13
    s_lshl_b32 s79, s67, 7
    s_add_u32 s78, s78, s79
    """)
    bload(60, 4, 7, SB2, "s79", 0, "", "xb")
    bload(56, 4, 14, SX, "s78", 0, "", "xb")
    lg.drain()
    a("s_barrier")
    for src in range(3):
        d = SB + 10 * src
        dsr("ds_read_b128", d, 4, 9, src * 2304, src)
        dsr("ds_read_b128", d + 4, 4, 9, src * 2304 + 1024, src)
        dsr("ds_read_b32", d + 8, 1, 10, src * 2304 + 2048, src)
    for src in range(3):
        lg.wait(src)
        for i in range(0, 8, 2):
            a("v_pk_add_f32 %s, %s, %s" % (vr(OW + i, 2), vr(OW + i, 2), vr(SB + 10 * src + i, 2)))
        a("v_add_f32 %s, %s, %s" % (vr(OW + 8), vr(OW + 8), vr(SB + 10 * src + 8)))
    a("v_pk_mul_f32 v[12:13], %s, 0 op_sel_hi:[1,0]" % vr(OW, 2))
    for i in range(2, 8, 2):
        a("v_pk_fma_f32 v[12:13], %s, 0, v[12:13] op_sel_hi:[1,0,1]" % vr(OW + i, 2))
    a("""
    v_add_f32 v12, v12, %s
    v_add_f32 v12, v12, v13
    v_cmp_nle_f32 vcc, 0x30800000, v12
    s_mov_b64 s[72:73], vcc
    v_cmp_nge_f32 vcc, 0x5d800000, v12
    s_or_b64 s[72:73], s[72:73], vcc
    """ % vr(OW + 8))
    a("s_branch L_slow" if cfg.force_slow else "s_cbranch_scc1 L_slow")
    a.label("L_norm")
    a("v_rcp_f32 v12, %s" % vr(OW + 8))
    for i in range(0, 8, 2):
        a("v_pk_mul_f32 %s, %s, v[12:13] op_sel_hi:[1,0]" % (vr(OW + i, 2), vr(OW + i, 2)))
    for q in range(4):
        a("v_cvt_pk_bf16_f32 %s, %s, %s" % (vr(16 + q), vr(OW + 2 * q), vr(OW + 2 * q + 1)))
    a("v_and_b32 v16, -2, v16")
    bstore(16, 4, 11, SWS, "s76", 0, "sc1", "ost")
    stamp(11)
    a("v_mov_b32 v2, v14")
    a("v_lshrrev_b32 v3, 3, v0")
    a("""
    v_mul_u32_u24 v4, %d, v3
    s_mul_i32 s72, s60, %d
    s_add_u32 s72, s72, %d
    v_add3_u32 v4, v4, v7, s72
    """ % (PART_STRIDE, 8 * PART_STRIDE, L_W2))
    for j in range(4):
        dsr("ds_read_b128", G + 4 * j, 4, 4, j * W2_REGION, "g")
    a("""
    v_bfe_u32 v4, v0, 2, 2
    v_bfe_u32 v5, v0, 4, 1
    v_lshl_add_u32 v4, v5, 2, v4
    v_lshrrev_b32 v5, 1, v4
    v_lshlrev_b32 v92, 7, v4
    v_lshl_add_u32 v92, v5, 5, v92
    v_lshrrev_b32 v6, 5, v0
    v_lshl_add_u32 v92, v6, 11, v92
    v_and_b32 v4, 3, v0
    v_lshl_add_u32 v92, v4, 3, v92
    s_lshl_b32 s72, s75, 15
    v_add_u32 v92, s72, v92
    v_xor_b32 v93, 32, v92
    v_xor_b32 v94, 64, v92
    v_xor_b32 v95, 0x60, v92
    s_barrier
    """)

    def oloads(first=0):
        for ks in range(first, 8):
            bload(OFR + 4 * ks, 4, 1, SWS, ("s76", "s77", "s80", "s81")[ks >> 1], (ks & 1) * 2048, "sc1", ("o", ks))

    fill = ("""
    s_lshl2_add_u32 s72, s66, s74
    s_lshr_b32 s76, s72, 1
    s_lshl1_add_u32 s76, s76, s75
    s_lshl_b32 s76, s76, 14
    s_and_b32 s72, s72, 1
    s_lshl_b32 s72, s72, 10
    s_add_u32 s76, s76, s72
    s_add_u32 s76, s76, %d
    s_add_u32 s77, s76, 0x1000
    s_add_u32 s80, s76, 0x2000
    s_add_u32 s81, s76, 0x3000
    v_mul_u32_u24 v3, %d, v3
    v_lshl_add_u32 v3, v7, 1, v3
    s_mul_i32 s72, s60, %d
    s_add_u32 s72, s72, %d
    v_add_u32 v3, s72, v3
    v_and_b32 v5, 15, v0
    v_mul_u32_u24 v5, %d, v5
    v_and_b32 v4, 48, v0
    s_mul_i32 s72, s60, %d
    s_add_u32 s72, s72, %d
    v_add3_u32 v5, v5, v4, s72
    s_mov_b32 s82, 0x3f80
    s_mov_b32 s83, 0x3f800000
    """ % (WS_QO, SUM_STRIDE, 8 * SUM_STRIDE, L_SUM, SUM_STRIDE, 16 * SUM_STRIDE, L_SUM)).strip().split("\n")
    gate = ["v_mov_b32 %s, 0" % vr(Z + i) for i in range(8)]
    gate.append(lambda: lg.wait("g"))
    for j in range(5):
        if j == 4:
            gate.append(lambda: vm.wait("xb"))
        for q in range(4):
            src = G + 4 * j + q if j < 4 else 60 + q
            gate.append("v_dot2c_f32_bf16 %s, s82, %s" % (vr(Z + 2 * q), vr(src)))
            gate.append("v_dot2c_f32_bf16 %s, s83, %s" % (vr(Z + 2 * q + 1), vr(src)))
    for q in range(4):
        gate.append("v_lshlrev_b32 %s, 16, %s" % (vr(X + 2 * q), vr(56 + q)))
        gate.append("v_and_b32 %s, s89, %s" % (vr(X + 1 + 2 * q), vr(56 + q)))
    gate += ["v_mul_f32 %s, 0x%x, %s" % (vr(G + i), NLOG2E, vr(Z + i)) for i in range(8)]
    gate += ["v_exp_f32 %s, %s" % (vr(G + i), vr(G + i)) for i in range(8)]
    gate += ["v_add_f32 %s, 1.0, %s" % (vr(G + i), vr(G + i)) for i in range(8)]
    gate += ["v_rcp_f32 %s, %s" % (vr(G + i), vr(G + i)) for i in range(8)]
    gate += ["v_mul_f32 %s, %s, %s" % (vr(Z + i), vr(Z + i), vr(G + i)) for i in range(8)]

    def wo_reads(oat, per):
        for ks in range(8):
            for ct in range(4):
                trread(WOF + (ks * 4 + ct) * 4, 92 + ct, ks * 4096, 1024, ("wo", ks))
                run_shadow(per)
            if ks == oat:
                run_shadow(1000)
                vm.wait("ost")
                oloads()

    vm_t, lg_t = list(vm.items), list(lg.items)
    a("s_cmp_eq_u32 s63, 1")
    a("s_cbranch_scc1 L_tail_b")
    shadow.extend(fill)
    wo_reads(7, 1)
    shadow.extend(gate)
    run_shadow(1000)
    a("s_branch L_tail_j")
    a.label("L_tail_b")
    vm.items, lg.items = vm_t, lg_t
    shadow.extend(fill + gate)
    run_shadow(1000)
    wo_reads(cfg.oat, 0)
    a.label("L_tail_j")
    stamp(12)
    a("s_mov_b32 s73, 0")
    lg.drain()
    for ks in range(8):
        a.label("L_wo_%d" % ks)
        vm.wait(("o", ks))
        a("v_and_b32 v6, 1, %s" % vr(OFR + 4 * ks))
        a("v_cmp_ne_u32 vcc, 0, v6")
        a("s_cbranch_vccnz L_oretry_%d" % ks)
        a.label("L_ogo_%d" % ks)
        for ct in range(4):
            d = AC + 4 * ct
            mfma16(d, WOF + (ks * 4 + ct) * 4, OFR + 4 * ks, None if ks == 0 else d)
    stamp(13)
    for ct in range(4):
        dsw("ds_write_b128", 5, AC + 4 * ct, 4, ct * 64)
    lg.drain()
    a("s_barrier")
    stamp(14)
    dsr("ds_read_b128", SR, 4, 3, 0, 0)
    dsr("ds_read_b128", SR + 8, 4, 3, SUM_SIZE, 0)
    dsr("ds_read_b128", SR + 4, 4, 3, 16, 1)
    dsr("ds_read_b128", SR + 12, 4, 3, SUM_SIZE + 16, 1)
    for h in range(2):
        lg.wait(h)
        for i in range(4 * h, 4 * h + 4, 2):
            a("v_pk_add_f32 %s, %s, %s" % (vr(SR + i, 2), vr(SR + i, 2), vr(SR + 8 + i, 2)))
        for i in range(4 * h, 4 * h + 4, 2):
            a("v_pk_fma_f32 %s, %s, %s, %s" % (vr(SR + i, 2), vr(SR + i, 2), vr(Z + i, 2), vr(X + i, 2)))
        for q in range(2 * h, 2 * h + 2):
            a("v_cvt_pk_bf16_f32 %s, %s, %s" % (vr(G + q), vr(SR + 2 * q), vr(SR + 2 * q + 1)))
    bstore(G, 4, 2, SOUT, "s78", 0, ("", "sc1", "nt", "sc0 sc1", "sc0 sc1 nt")[cfg.omod])
    a("s_or_b32 s72, s2, s60")
    a("s_cmp_lg_u32 s72, 0")
    a("s_cbranch_scc1 L_noepoch")
    set_flag(7, "0")
    a.label("L_noepoch")
    if cfg.stamps:
        a("s_waitcnt vmcnt(0)")
        stamp(15)
        if cfg.probe is not None:
            a("s_sub_u32 s72, %s, s4" % sr(sSTAMP + cfg.probe))
            if cfg.stamps == 2:
                a("s_lshr_b32 s72, s72, 3")
            else:
                a("s_lshl_b32 s72, s72, %d" % cfg.probesh)
            a("s_cmp_lg_u32 s2, %d" % cfg.probewg)
            a("s_cselect_b32 s72, 0, s72")
            a("s_cmp_lg_u32 s60, %d" % cfg.probew)
            a("s_cselect_b32 s72, 0, s72")
            a("s_memrealtime s[22:23]")
            a("s_waitcnt lgkmcnt(0)")
            a("s_mov_b32 s73, s22")
            a.label("L_probe")
            a("s_memrealtime s[22:23]")
            a("s_waitcnt lgkmcnt(0)")
            a("s_sub_u32 s22, s22, s73")
            a("s_cmp_lt_u32 s22, s72")
            a("s_cbranch_scc1 L_probe")
        a("s_lshl3_add_u32 s72, s2, s60")
        a("s_lshl_b32 s72, s72, 6")
        a("s_add_u32 s72, s72, %d" % WS_STAMP)
        for i in range(16):
            a("v_mov_b32 %s, %s" % (vr(80 + i), sr(sSTAMP + i)))
        a("s_mov_b64 exec, 1")
        for i in range(4):
            bstore(80 + 4 * i, 4, 1, SWS, "s72", 16 * i)
    a.label("L_end")
    a("s_endpgm")

    for ks in range(8):
        a.label("L_oretry_%d" % ks)
        a("s_add_u32 s73, s73, 1")
        a("s_cmp_ge_u32 s73, %d" % SPIN_MAX)
        a("s_cbranch_scc1 L_ogo_%d" % ks)
        a("s_waitcnt vmcnt(0)")
        oloads(ks)
        a("s_branch L_wo_%d" % ks)

    for tag, vt, lanes, soff in stubs:
        a.label("L_poll_" + tag)
        a("s_mov_b32 s73, 0")
        a.label("L_poll2_" + tag)
        a("s_sleep %d" % cfg.sleep)
        flag_load(vt, lanes, soff, None)
        a("s_add_u32 s73, s73, 1")
        a("s_waitcnt vmcnt(0)")
        a("s_cmp_ge_u32 s73, %d" % SPIN_MAX)
        a("s_cbranch_scc1 L_polled_" + tag)
        a("v_cmp_ne_u32 vcc, %s, %s" % (sr(sTAG), vr(vt)))
        a("s_cbranch_vccnz L_poll2_" + tag)
        a("s_branch L_polled_" + tag)

    a.label("L_slow")
    CN = SB + 16
    a("s_waitcnt vmcnt(0)")
    a("v_mov_b32 v13, 0xff800000")
    a("s_mov_b32 s82, s83")
    a("s_mov_b32 s81, 64")
    a.label("L_slow1")
    bload(KV, 4, 252, SWS, "s82", 0, "sc1")
    a("s_add_u32 s82, s82, 2048")
    a("s_waitcnt vmcnt(0)")
    mfma32(SB, KV, QR + 12, None)
    for i in range(0, 16, 2):
        a("v_max3_f32 v13, v13, %s, %s" % (vr(SB + i), vr(SB + i + 1)))
    a("s_sub_u32 s81, s81, 1")
    a("s_cmp_lg_u32 s81, 0")
    a("s_cbranch_scc1 L_slow1")
    a("v_mov_b32 v15, v13")
    a("v_permlane32_swap_b32 v15, v13")
    a("v_max_f32 v13, v15, v13")
    for i in range(16):
        a("v_sub_f32 %s, 0, v13" % vr(CN + i))
        a("v_mov_b32 %s, 0" % vr(OW + i))
    a("s_mov_b32 s82, s83")
    a("s_mov_b32 s81, 64")
    a.label("L_slow2")
    kvload(0)
    a("s_waitcnt vmcnt(0)")
    mfma32(SB, KV, QR + 12, CN)
    for i in range(16):
        a("v_exp_f32 %s, %s" % (vr(SB + i), vr(SB + i)))
    smf(OW, KV + 4, SB)
    smf(OW, KV + 8, SB + 8)
    a("s_sub_u32 s81, s81, 1")
    a("s_cmp_lg_u32 s81, 0")
    a("s_cbranch_scc1 L_slow2")
    a("s_branch L_norm")
    a.label("L_code_end")
    a("s_endpgm")

    added = a.fix()
    return a.text().replace('FSH', str(cfg.fsh)).replace('FROW', str(cfg.fsh + 5)), added


HEADER = """; Kernarg layout for this problem (88 bytes, ptrs only, base s[0:1]):
; @launch grid=(256,1,1) block=(512,1,1) lds=163840
.amdgcn_target "amdgcn-amd-amdhsa--gfx950"
.text
.globl {k}
.p2align 8
.type {k},@function
{k}:
"""

FOOTER = """.section .rodata,"a"
.p2align 6
.amdhsa_kernel {k}
  .amdhsa_next_free_vgpr 256
  .amdhsa_next_free_sgpr 102
  .amdhsa_accum_offset 256
  .amdhsa_group_segment_fixed_size 0
  .amdhsa_kernarg_size 88
  .amdhsa_user_sgpr_count 2
  .amdhsa_user_sgpr_kernarg_segment_ptr 1
  .amdhsa_system_sgpr_workgroup_id_x 1
.end_amdhsa_kernel
"""


def build(**kw):
    cfg = Cfg()
    for k, v in kw.items():
        setattr(cfg, k, v)
    body, added = gen(cfg)
    return HEADER.format(k=KERNEL) + body + FOOTER.format(k=KERNEL), added


if __name__ == "__main__":
    out = sys.argv[1] if len(sys.argv) > 1 else "cdna_kernels/%s.s" % NAME
    kw = {}
    for arg in sys.argv[2:]:
        k, v = arg.split("=")
        kw[k] = int(v)
    text, added = build(**kw)
    open(out, "w").write(text)
    print("wrote", out, "lines", text.count("\n"), "nops added", added)
```

```python
import sys
import os
sys.path.insert(0, os.path.dirname(os.path.abspath(__file__)))
from asmlib import Asm, vr, sr

NAME = "recurrent_scan__softmax_full_mha__dense_activation_squared_relu__prompt"
KERNEL = NAME + "_kernel"

WS_FLAGQ = 0x1200
WS_FLAGH = 0x60000
WS_STAMP = 0x10000
WS_QO = 0x100000
WS_KV = 0x300000
WS_HF = 0x700000
WS_END = WS_HF + 86 * 65536
EPOCH_INC = 0x9E3779B9
SPIN_MAX = 1 << 18

L_RING = 65536
L_OPART = 65536
L_W2 = L_OPART + 55296
W2_REGION = 10240
PART_STRIDE = 144
SUM_STRIDE = 272
SUM_SIZE = 64 * SUM_STRIDE
L_SUM = L_OPART

SX, SWQ, SWO, SW1, SB1, SW2, SB2, SOUT, SWS = 24, 28, 32, 36, 40, 44, 48, 52, 56
sW, sCG, sTB, sRW, sP, sQB, sTBF, sCB, sTAG, sCT0 = 60, 61, 62, 63, 64, 65, 66, 67, 68, 69
sVM = 70
sSTAMP = 4

QSCALE = 0x3EB8AA3B
NLOG2E = 0xBFB8AA3B
NS = 22


class Cfg:
    abl = 0
    bst = 0
    xslot = 0
    xrun = 2
    n1 = 8
    nA = 22
    gap = 1
    kvt = 0
    kvi = 4
    dmam = 2
    fpat = 2221
    pf1_at = 12
    pfc_at = 99
    pfc1 = 0
    w2_at = 10
    pfl = 9
    wol = 15
    won = 1
    stamps = 0
    force_slow = 0
    flag_chunk = 10
    lead = 2
    defer = 0
    look = 5
    pfq_at = 99
    bload = 15
    bjoin = 16
    btile = 2
    sleep = 6
    w0_at = 7
    w1_at = 10
    hpre = 2
    hbar = 0
    hnow = 2
    hgap = 2
    hoff = 0
    kv3 = 1
    fsh = 4
    pfe = 99
    l2q = 99
    rot = 1
    split = 1
    wgrp = 1
    zall = 1
    sA = 3
    sB = 3
    sC = 7
    hold = 99
    l2w = 99
    pfn = 11
    alow = 0
    pfg = 1
    hflag = 11
    probe = None
    omod = 1
    oat = 4
    probewg = 100
    probew = 0
    probesh = 4
    hst = 0


def srd(s):
    return sr(s, 4)


class Queue:
    def __init__(self, a, name, maxn):
        self.a, self.name, self.maxn, self.items = a, name, maxn, []

    def push(self, tag):
        self.items.append(tag)

    def wait(self, *tags):
        last = max((i for i, t in enumerate(self.items) if t in tags), default=-1)
        if last < 0:
            return
        n = len(self.items) - 1 - last
        self.a("s_waitcnt %s(%d)" % (self.name, min(n, self.maxn)))
        self.items = self.items[last + 1:]

    def drain(self):
        self.a("s_waitcnt %s(0)" % self.name)
        self.items = []


def gen(cfg):
    a = Asm()
    nA = cfg.nA
    nB = 32 - nA
    vm = Queue(a, "vmcnt", 63)
    lg = Queue(a, "lgkmcnt", 15)

    def stamp(i, force=False):
        if cfg.bst and not force and i != 0:
            return
        if cfg.stamps and (cfg.probe is None or i in (0, cfg.probe)):
            a("%s s[22:23]" % ("s_memtime" if cfg.stamps == 2 else "s_memrealtime"))
            a("s_waitcnt lgkmcnt(0)")
            a("s_mov_b32 %s, s22" % sr(sSTAMP + i))

    def mfma32(d, x, y, c):
        a("v_mfma_f32_32x32x16_bf16 %s, %s, %s, %s" % (vr(d, 16), vr(x, 4), vr(y, 4), "0" if c is None else vr(c, 16)))

    def mfma16(d, x, y, c):
        a("v_mfma_f32_16x16x32_bf16 %s, %s, %s, %s" % (vr(d, 4), vr(x, 4), vr(y, 4), "0" if c is None else vr(c, 4)))

    def smf(d, x, y):
        a("v_smfmac_f32_32x32x32_bf16 %s, %s, %s, v3" % (vr(d, 16), vr(x, 4), vr(y, 8)))

    def bload(d, n, va, s, so, off=0, mod="", tag=None):
        op = {1: "dword", 2: "dwordx2", 4: "dwordx4"}[n]
        a("buffer_load_%s %s, %s, %s, %s offen offset:%d %s" % (op, vr(d, n), vr(va), srd(s), so, off, mod))
        vm.push(tag)

    def bstore(d, n, va, s, so, off=0, mod="", tag=None):
        op = {1: "dword", 2: "dwordx2", 4: "dwordx4"}[n]
        a("buffer_store_%s %s, %s, %s, %s offen offset:%d %s" % (op, vr(d, n), vr(va), srd(s), so, off, mod))
        vm.push(tag)

    def dma(va, s, so, off=0, tag=None):
        a("buffer_load_dwordx4 %s, %s, %s offen offset:%d lds" % (vr(va), srd(s), so, off))
        vm.push(tag)

    def dsr(op, d, n, va, off, tag=None):
        a("%s %s, %s offset:%d" % (op, vr(d, n), vr(va), off))
        lg.push(tag)

    def dsw(op, va, d, n, off, tag=None):
        a("%s %s, %s offset:%d" % (op, vr(va), vr(d, n), off))
        lg.push(tag)

    def trread(d, va, off, second, tag=None):
        dsr("ds_read_b64_tr_b16", d, 2, va, off, tag)
        dsr("ds_read_b64_tr_b16", d + 2, 2, va, off + second, tag)

    def set_flag(vt, soff):
        a("v_mov_b32 %s, %s" % (vr(vt), sr(sTAG)))
        a("s_mov_b64 exec, 1")
        bstore(vt, 1, 1, SWS, soff, 0, "sc0 sc1")
        a("s_mov_b64 exec, -1")

    stubs = []

    def check_flags(tag, vt, lanes, soff):
        a("v_cmp_ne_u32 vcc, %s, %s" % (sr(sTAG), vr(vt)))
        a("s_cbranch_vccnz L_poll_" + tag)
        a.label("L_polled_" + tag)
        stubs.append((tag, vt, lanes, soff))

    def flag_load(vt, shift, soff, tag):
        a("v_and_b32 %s, 31, v0" % vr(vt))
        a("v_lshlrev_b32 %s, %d, %s" % (vr(vt), shift, vr(vt)))
        bload(vt, 1, vt, SWS, soff, 0, "sc0 sc1", tag)

    sizes = {SX: 2048 * 1024, SWQ: 512 * 3072, SWS: WS_END, SW1: 512 * 2752, SB1: 2752,
             SWO: 512 * 1024, SW2: 1376 * 1024, SB2: 1024, SOUT: 2048 * 1024}
    RAW = 128

    def xloads():
        for j in range(8):
            bload(RAW + j * 4, 4, 14, SX, "s101", j * 128, "", ("x", j))

    stamp(0)
    a("""
    s_load_dwordx2 s[24:25], s[0:1], 0
    s_getpc_b64 s[72:73]
    L_pc:
    s_cmpk_ge_u32 s2, 256
    s_cbranch_scc1 L_end
    s_lshr_b32 s74, s2, 3
    s_lshl_b32 s74, s74, 11
    v_lshrrev_b32 v8, 5, v0
    v_lshl_add_u32 v8, v8, 7, s74
    v_min_u32 v8, L_code_end-L_pc, v8
    v_mov_b32 v9, 0
    v_lshl_add_u64 v[8:9], v[8:9], 0, s[72:73]
    global_load_dword v7, v[8:9], off
    s_lshl_b32 s72, s2, 4
    s_and_b32 s72, s72, 0x180
    v_add_u32 v4, s72, v0
    v_bfe_u32 v4, v4, 3, 6
    v_and_b32 v5, 7, v0
    v_lshlrev_b32 v14, 10, v4
    v_lshl_add_u32 v14, v5, 4, v14
    s_lshr_b32 s67, s2, 5
    s_and_b32 s73, s2, 6
    s_lshl2_add_u32 s62, s73, s67
    s_lshl_b32 s101, s62, 16
    s_mov_b32 s26, %d
    s_mov_b32 s27, 0x20000
    v_bfe_u32 v24, v4, 1, 3
    v_xor_b32 v24, v24, v5
    v_lshlrev_b32 v15, 7, v4
    v_lshl_add_u32 v15, v24, 4, v15
    v_readfirstlane_b32 s60, v0
    v_and_b32 v0, 63, v0
    v_mov_b32 v24, 0
    v_mov_b32 v25, 0
    s_lshr_b32 s60, s60, 6
    s_cmp_ge_u32 s60, 4
    s_waitcnt lgkmcnt(0)
    """ % sizes[SX])
    vm.push("pf")
    if cfg.bst == 3:
        stamp(1, True)
    xloads()
    if cfg.bst == 3:
        stamp(2, True)
    if cfg.stamps:
        for i in range(3 if cfg.bst == 3 else 1, 16):
            a("s_mov_b32 %s, s4" % sr(sSTAMP + i))
    a("s_mov_b32 s63, 1")
    a("s_cbranch_scc1 L_ln")
    a("s_mov_b32 s63, 0")

    def setup1():
        for s, off in ((SWQ, 8), (SWS, 80), (SW1, 32), (SB1, 40), (SWO, 16), (SW2, 48), (SB2, 56), (SOUT, 64)):
            a("s_load_dwordx2 %s, s[0:1], %d" % (sr(s, 2), off))
        a("""
        s_mov_b32 s30, %d
        s_mov_b32 s31, 0x20000
        s_bfe_u32 s72, s2, 0x20003
        s_and_b32 s73, s2, 1
        s_lshl2_add_u32 s61, s73, s72
        s_and_b32 s74, s60, 3
        s_lshl_b32 s72, s61, 7
        s_mul_i32 s85, s74, %d
        s_add_u32 s85, s85, s72
        s_mul_i32 s87, s74, 6144
        s_add_u32 s87, s87, %d
        v_lshrrev_b32 v4, 3, v0
        v_bfe_u32 v6, v4, 1, 1
        v_lshlrev_b32 v6, 2, v6
        v_xor_b32 v6, v6, v5
        v_lshlrev_b32 v6, 4, v6
        v_mul_u32_u24 v13, 3072, v4
        v_add_u32 v13, v13, v6
        v_xor_b32 v33, 16, v13
        s_waitcnt lgkmcnt(0)
        """ % (sizes[SWQ], 16 * 3072, L_RING))

    def setup_pf():
        for s in (SW1, SWO, SW2):
            a("s_mov_b32 %s, %d" % (sr(s + 2), sizes[s]))
            a("s_mov_b32 %s, 0x20000" % sr(s + 3))
        a("""
        s_and_b32 s73, s60, 3
        s_lshl2_add_u32 s100, s2, s73
        s_mul_i32 s100, s100, 1536
        v_min_u32 v31, 11, v0
        v_lshlrev_b32 v31, 7, v31
        """)

    def setup2():
        a("s_load_dword %s, %s, 0" % (sr(sTAG), sr(SWS, 2)))
        for s in (SWS, SB1, SB2, SOUT):
            a("s_mov_b32 %s, %d" % (sr(s + 2), sizes[s]))
            a("s_mov_b32 %s, 0x20000" % sr(s + 3))
        a("""
        s_bfe_u32 s72, s2, 0x20003
        s_and_b32 s73, s2, 7
        s_lshl2_add_u32 s66, s73, s72
        s_and_b32 s72, s72, 1
        s_lshl1_add_u32 s64, s73, s72
        s_lshr_b32 s65, s2, 4
        s_mul_i32 s69, s61, 6
        s_mul_i32 s73, s61, 5
        s_add_u32 s73, s73, 3
        s_min_u32 s69, s69, s73
        s_mov_b32 s70, 0xffff
        s_mov_b32 s71, 0xffff
        v_lshlrev_b32 v1, 4, v0
        v_and_b32 v2, 15, v0
        v_lshrrev_b32 v3, 5, v0
        v_lshl_add_u32 v2, v3, 4, v2
        v_lshlrev_b32 v2, 4, v2
        """)

    def setup3():
        a("; attention offsets: s82 = next K/V tile, s83 = head base, s92-s95 = Q tiles, s96-s99 = O partial slots")
        a("""
        s_and_b32 s74, s60, 1
        s_lshr_b32 s75, s60, 1
        s_lshl1_add_u32 s72, s64, s74
        s_lshl_b32 s83, s72, 17
        s_add_u32 s83, s83, %d
        s_and_b32 s73, s75, 1
        s_lshl_b32 s73, s73, 16
        s_add_u32 s82, s83, s73
        s_lshl_b32 s72, s65, 6
        s_add_u32 s72, s72, s64
        s_lshl1_add_u32 s72, s72, s74
        s_lshl_b32 s72, s72, 10
        s_add_u32 s72, s72, %d
        s_mul_i32 s84, s74, %d
        s_add_u32 s84, s84, %d
        """ % (WS_KV, WS_QO, 12 * 2304, L_OPART))
        for t in range(4):
            a("s_xor_b32 s73, s75, %d" % (t ^ 3))
            a("s_mul_i32 %s, s73, %d" % (sr(96 + t), 3 * 2304))
            a("s_lshl_b32 s73, s73, 15")
            a("s_add_u32 %s, s72, s73" % sr(92 + t))
            a("s_add_u32 %s, %s, s84" % (sr(96 + t), sr(96 + t)))

    setup1()
    setup_pf()
    setup2()
    setup3()
    a("""
    s_add_u32 s82, s82, %d
    v_bfe_u32 v9, v0, 4, 1
    v_and_b32 v16, 15, v0
    v_lshlrev_b32 v8, 4, v16
    v_lshl_add_u32 v8, v9, 9, v8
    v_lshl_add_u32 v11, v3, 17, v8
    v_lshl_add_u32 v14, v3, 10, v8
    v_lshl_add_u32 v127, v3, 16, v8
    v_lshrrev_b32 v17, 4, v0
    v_bfe_u32 v8, v0, 3, 1
    v_lshlrev_b32 v12, 4, v5
    v_lshl_add_u32 v12, v17, 8, v12
    v_lshl_add_u32 v12, v8, 17, v12
    v_lshrrev_b32 v8, 1, v16
    v_xor_b32 v8, v8, v17
    v_lshlrev_b32 v16, 7, v16
    v_lshl_add_u32 v16, v8, 4, v16
    s_lshl_b32 s72, s74, 12
    v_add_u32 v16, s72, v16
    v_xor_b32 v17, 64, v16
    v_lshl_add_u32 v4, v4, 10, v6
    v_bfe_u32 v10, v0, 2, 2
    v_lshrrev_b32 v6, 1, v10
    v_xor_b32 v8, s75, v6
    v_and_b32 v18, 2, v0
    v_lshl_add_u32 v8, v8, 2, v18
    v_add_u32 v8, v8, v9
    v_lshlrev_b32 v8, 1, v8
    v_and_or_b32 v8, v0, 1, v8
    v_lshlrev_b32 v8, 3, v8
    v_lshl_add_u32 v8, v10, 7, v8
    v_lshl_add_u32 v8, v9, 10, v8
    v_mul_u32_u24 v18, 6144, v3
    v_add_u32 v8, v8, v18
    v_add_u32 v8, %d, v8
    v_xor_b32 v18, 16, v8
    v_add_u32 v19, %d, v18
    v_lshlrev_b32 v5, 5, v9
    v_lshl_add_u32 v5, v10, 7, v5
    v_and_b32 v10, 3, v0
    v_lshl_add_u32 v5, v10, 3, v5
    v_lshl_add_u32 v5, v3, 9, v5
    v_lshl_add_u32 v5, v6, 6, v5
    v_lshrrev_b32 v10, 1, v0
    v_xor_b32 v10, v10, v0
    v_and_b32 v10, 1, v10
    v_mul_u32_u24 v10, 24, v10
    v_xor_b32 v5, v5, v10
    s_mul_i32 s84, s60, %d
    s_add_u32 s84, s84, %d
    v_add_u32 v5, s84, v5
    v_xor_b32 v6, 64, v5
    v_lshlrev_b32 v10, 3, v9
    v_lshl_add_u32 v10, v3, 5, v10
    v_xor_b32 v9, 16, v19
    v_mov_b32 v3, 0xdddddddd
    """ % (nB * 2048, L_RING, 2 * 24576, W2_REGION, L_W2))
    a("""
    s_lshl1_add_u32 s72, s62, s74
    s_lshl1_add_u32 s73, s61, s75
    s_lshl_b32 s76, s73, 7
    s_add_u32 s76, s76, s72
    s_lshl_b32 s77, s76, 11
    s_lshl4_add_u32 s76, s72, s73
    s_lshl_b32 s76, s76, 11
    s_add_u32 s76, s76, %d
    s_add_u32 s77, s77, %d
    s_add_u32 s81, s69, s75
    s_lshl_b32 s78, s81, 7
    s_add_u32 s78, s78, s72
    s_lshl_b32 s78, s78, 10
    s_add_u32 s78, s78, %d
    s_lshl_b32 s79, s61, 6
    s_add_u32 s79, s79, s62
    s_lshl_b32 s79, s79, 4
    s_add_u32 s79, s79, %d
    s_lshl_b32 s80, s62, 3
    s_add_u32 s80, s80, s61
    s_lshl2_add_u32 s80, s80, s60
    s_lshl_b32 s80, s80, FSH
    s_add_u32 s80, s80, %d
    s_mul_i32 s73, s61, s75
    s_add_u32 s88, s78, %d
    s_cmp_lt_u32 s73, 3
    s_cselect_b32 s88, s88, 0x40000000
    s_lshl_b32 s81, s81, 6
    """ % (WS_QO, WS_KV, WS_HF, WS_FLAGQ, WS_FLAGH, 8 * 65536))

    def slot_of(c):
        if not cfg.xslot or c < cfg.xslot:
            return (c & 3) * 24576
        return -L_RING if c == cfg.xslot else ((c - 1) & 3) * 24576

    skip_bar = (10,) if cfg.xslot else ()

    def issue_chunk(c):
        if cfg.rot:
            a("s_xor_b32 s73, s67, %d" % (c & 7))
            a("s_mul_i32 s73, s73, %d" % (64 * (3072 if c < 8 else 2752)))
            a("s_add_u32 s73, s73, %s" % ("s85" if c < 8 else "s80"))
        for m in range(6):
            blk, seg = divmod(m, 3)
            a("s_add_u32 m0, s87, %d" % (slot_of(c) + seg * 2048 + blk * 1024))
            if c < 8:
                a("s_add_u32 s72, %s, %d" % (("s73", blk * 8 * 3072 + seg * 1024) if cfg.rot else ("s85", (c * 64 + blk * 8) * 3072 + seg * 1024)))
                dma(33 if blk else 13, SWQ, "s72", 0, ("w", c))
            else:
                a("s_add_u32 s72, %s, %d" % (("s73", blk * 8 * 2752 + seg * 128) if cfg.rot else ("s80", ((c - 8) * 64 + blk * 8) * 2752 + seg * 128)))
                dma(56 + (seg == 2) + 2 * blk, SW1, "s72", 0, ("w", c))

    def layernorm(acts):
        def act(p):
            if acts.get(p):
                assert p >= 7
                a("s_cmp_eq_u32 s63, 1")
                a("s_cbranch_scc1 L_ln_%d" % p)
                for f in acts[p]:
                    f()
                a.label("L_ln_%d" % p)
        a.label("L_ln")
        a("v_mov_b32 v30, 0x3f803f80")
        a("s_mov_b32 s89, 0xffff0000")
        if cfg.rot:
            a("; K chunks are visited in the order c ^ (row block & 7): workgroups sharing weights fetch different chunks first")
            a("s_lshl_b32 s72, s67, 13")
            a("v_or_b32 v15, s72, v15")

        def xwrite(j):
            if cfg.rot:
                a("v_xor_b32 v23, 0x%x, v15" % (j << 13))
                a("ds_write_b128 v23, %s" % vr(RAW + j * 4, 4))
            else:
                a("ds_write_b128 v15, %s offset:%d" % (vr(RAW + j * 4, 4), j * 8192))

        for j in range(8):
            if cfg.bst == 3 and j == 0:
                stamp(3, True)
            vm.wait(("x", j))
            if cfg.bst == 3 and j in (0, 3, 7):
                stamp({0: 4, 3: 5, 7: 6}[j], True)
            act(j)
            for q in range(4):
                x = RAW + j * 4 + q
                a("v_dot2c_f32_bf16 v24, v30, %s" % vr(x))
                a("v_dot2c_f32_bf16 v25, %s, %s" % (vr(x), vr(x)))
        act(8)
        stamp(1)
        for ctl in ("quad_perm:[1,0,3,2]", "quad_perm:[2,3,0,1]", "row_half_mirror"):
            for r in (24, 25):
                a("v_add_f32_dpp %s, %s, %s %s row_mask:0xf bank_mask:0xf" % (vr(r), vr(r), vr(r), ctl))
        a("""
        v_mul_f32 v24, 0x3b000000, v24
        v_mul_f32 v25, 0x3b000000, v25
        v_fma_f32 v25, -v24, v24, v25
        v_max_f32 v25, 0, v25
        v_cvt_pk_bf16_f32 v24, v24, v25
        v_and_b32 v25, s89, v24
        v_add_f32 v25, 0x3727c5ac, v25
        v_cvt_pk_bf16_f32 v25, v25, v25
        v_and_b32 v25, s89, v25
        v_sqrt_f32 v25, v25
        v_lshlrev_b32 v24, 16, v24
        v_cvt_pk_bf16_f32 v25, v25, v25
        v_and_b32 v25, s89, v25
        v_rcp_f32 v26, v25
        v_mul_f32_e64 v28, -v24, v26
        """)
        for j in range(8):
            x = RAW + j * 4
            t = 192 + (j & 1) * 8
            for q in range(4):
                a("v_lshlrev_b32 %s, 16, %s" % (vr(t + 2 * q), vr(x + q)))
                a("v_and_b32 %s, s89, %s" % (vr(t + 2 * q + 1), vr(x + q)))
            for q in range(4):
                a("v_pk_fma_f32 %s, %s, v[26:27], v[28:29] op_sel_hi:[1,0,0]" % (vr(t + 2 * q, 2), vr(t + 2 * q, 2)))
            for q in range(4):
                a("v_cvt_pk_bf16_f32 %s, %s, %s" % (vr(x + q), vr(t + 2 * q), vr(t + 2 * q + 1)))
            if not cfg.defer:
                xwrite(j)
        if cfg.bst == 3:
            stamp(7, True)
        act(9)
        if cfg.defer:
            for j in range(8):
                xwrite(j)
        act(10)
        stamp(2)
        if cfg.bst == 3:
            stamp(8, True)

    def pfq():
        a("; memory-side prefetch of Wqkv")
        bload(7, 1, 31, SWQ, "s100", 0, "", "pf")

    def pfl2(which):
        a("; the die's workgroups pull their half of the weight columns into L2 together, four rows per wave")
        stride = 3072 if which == SWQ else 2752
        a("s_lshr_b32 s72, s2, 3")
        a("s_and_b32 s73, s60, 3")
        a("s_lshl2_add_u32 s72, s72, s73")
        a("s_mul_i32 s72, s72, %d" % (4 * stride))
        a("s_and_b32 s73, s2, 1")
        a("s_mul_i32 s73, s73, %d" % (512 if which == SWQ else 1472))
        a("s_add_u32 s72, s72, s73")
        a("v_lshrrev_b32 v20, 4, v0")
        a("v_mul_u32_u24 v20, %d, v20" % stride)
        if which == SWQ:
            a("v_bfe_u32 v21, v0, 2, 2")
            a("v_min_u32 v21, 2, v21")
            a("v_lshl_add_u32 v20, v21, 10, v20")
            a("v_and_b32 v21, 3, v0")
            a("v_lshl_add_u32 v20, v21, 7, v20")
        else:
            a("v_and_b32 v21, 15, v0")
            a("v_lshlrev_b32 v21, 7, v21")
            a("v_min_u32 v21, 1468, v21")
            a("v_add_u32 v20, v20, v21")
        bload(22, 1, 20, which, "s72", 0, "", "pf")

    def pfc(which):
        a("; lines at offset 384 of every KiB stream slowly on a miss: the die's workgroups pull them into L2 together")
        a("s_lshr_b32 s72, s2, 3")
        a("s_lshl2_add_u32 s72, s72, s60")
        a("s_mul_i32 s72, s72, 12288")
        a("v_lshlrev_b32 v20, 3, v31")
        if which == SWQ:
            a("s_bitcmp1_b32 s2, 0")
            a("s_cselect_b32 s72, 0x40000000, s72")
        bload(7, 1, 20, which, "s72", 384, "", "pf")

    def pf1():
        a("; memory-side prefetch of W1")
        bload(7 if cfg.pf1_at <= 10 else 32, 1, 31, SW1, "s100", 0, "", "pf")

    acts = {}
    if cfg.pfc_at == 0:
        save = list(vm.items)
        pfc(SWQ)
        vm.items = save
    elif cfg.pfc_at <= 10:
        acts.setdefault(cfg.pfc_at, []).append(lambda: pfc(SWQ))
    if cfg.pfq_at == 0:
        save = list(vm.items)
        pfq()
        vm.items = save
    elif cfg.pfq_at <= 10:
        acts.setdefault(cfg.pfq_at, []).append(pfq)
    if cfg.l2q == 0:
        save = list(vm.items)
        pfl2(SWQ)
        vm.items = save
    if cfg.l2q == 7:
        acts.setdefault(7, []).append(lambda: pfl2(SWQ))
    for c, p in enumerate((cfg.w0_at, cfg.w1_at, cfg.w2_at, 10)[:cfg.lead + 1]):
        acts.setdefault(p, []).append(lambda c=c: issue_chunk(c))
    if 8 <= cfg.l2q <= 10:
        acts.setdefault(cfg.l2q, []).insert(0, lambda: pfl2(SWQ))
    if cfg.pf1_at <= 10:
        acts.setdefault(cfg.pf1_at, []).append(pf1)
    if cfg.pfc1:
        acts.setdefault(10, []).append(lambda: pfc(SW1))
    layernorm(acts)
    a("s_cmp_eq_u32 s63, 1")
    a("s_cbranch_scc1 L_loader")

    QR, SB, WF, FA, OA, KV, HB = 8, 24, 56, 64, 128, 192, 228
    NKV = 3

    def att_init_ops():
        ops = ["v_mov_b32 %s, 0" % vr(OA + 16 * t + i) for t in range(4) for i in range(16 if cfg.zall else 9)]
        ops2 = ["v_and_b32 v7, 27, v0", "v_cmp_eq_u32 vcc, 16, v7", "v_mov_b32 v7, 0x3f803f80", "v_cndmask_b32 v7, 0, v7, vcc"]
        ops2 += ["v_mov_b32 %s, v7" % vr(KV + 12 * b + 4 + q) for b in range(NKV) for q in range(8)]
        return ops, ops2

    def kvload(j):
        b = j % NKV
        bload(KV + 12 * b, 4, 252, SWS, "s82", 0, "sc1", ("kv", j))
        a("s_mov_b64 exec, %s" % sr(sVM, 2))
        bload(KV + 12 * b + 4, 4, 2, SWS, "s82", 1024, "sc1", ("kv", j))
        bload(KV + 12 * b + 8, 4, 2, SWS, "s82", 1536, "sc1", ("kv", j))
        a("s_mov_b64 exec, -1")
        a("s_add_u32 s82, s82, 2048")

    def att_loads(role):
        a("; key slot 8a+4b+c holds token 16b+4a+c, matching the order of the V fragments")
        a("v_and_b32 v252, 0x230, v1")
        a("v_and_b32 v253, 0x180, v1")
        a("v_lshrrev_b32 v253, 1, v253")
        a("v_and_b32 v254, 64, v1")
        a("v_lshlrev_b32 v254, 2, v254")
        a("v_or3_b32 v252, v252, v253, v254")
        bload(QR, 4, 1, SWS, "s92", 0, "sc1", "q")
        kvload(0)
        for t in range(1, 4):
            bload(QR + 4 * t, 4, 1, SWS, sr(92 + t), 0, "sc1", "q")
        kvload(1)
        if cfg.kv3 and role == "a":
            kvload(2)

    def dump_addr():
        a("v_lshlrev_b32 v8, 2, v0")
        a("v_add_u32 v9, s99, v1")
        a("v_add_u32 v10, s99, v8")
        a("v_bfe_u32 v11, v0, 4, 1")
        a("v_lshl_add_u32 v11, v11, 10, v2")

    def dump(t):
        a("v_add_u32 v12, %s, v1" % sr(96 + t))
        a("v_add_u32 v13, %s, v8" % sr(96 + t))
        dsw("ds_write_b128", 12, OA + 16 * t, 4, t * 2304)
        dsw("ds_write_b128", 12, OA + 16 * t + 4, 4, t * 2304 + 1024)
        dsw("ds_write_b32", 13, OA + 16 * t + 8, 1, t * 2304 + 2048)

    deferred = []
    cfg_gap = {0: range(16), 1: (1, 10), 2: (0, 9), 3: (4, 10), 4: (1,), 5: (4,), 6: (15, 9)}[cfg.gap]

    def att_run(n, hooks):
        hooks.setdefault((n - 1, 0, 11), []).append(dump_addr)
        for t in range(3):
            hooks.setdefault((n - 1, t + 1, 12), []).append(lambda t=t: dump(t))
        vm.wait("q", ("kv", 0))
        mfma32(SB, KV, QR, None)
        for j in range(n):
            b = j % NKV
            for t in range(4):
                cur, oth = SB + 16 * (t & 1), SB + 16 * ((t + 1) & 1)
                for i in range(16):
                    a("v_exp_f32 %s, %s" % (vr(cur + i), vr(cur + i)))
                    if i in cfg_gap:
                        while deferred:
                            deferred.pop(0)()
                    if t == cfg.kvt and i == cfg.kvi and j + NKV - 1 < n and not (cfg.abl & 32 and j > 0) and not (cfg.kv3 and j == 0):
                        kvload(j + NKV - 1)
                    if i == 1 and (j, t) != (0, 0):
                        smf(OA + 16 * ((t + 3) & 3), KV + 12 * (b if t else (j - 1) % NKV) + 8, oth + 8)
                    if i == 4:
                        if t < 3:
                            mfma32(oth, KV + 12 * b, QR + 4 * (t + 1), None)
                        elif j + 1 < n:
                            vm.wait(("kv", j + 1))
                            mfma32(oth, KV + 12 * ((j + 1) % NKV), QR, None)
                    if i == 10:
                        smf(OA + 16 * t, KV + 12 * b + 4, cur)
                    for h in hooks.get((j, t, i), ()):
                        h()
        smf(OA + 48, KV + 12 * ((n - 1) % NKV) + 8, SB + 16 + 8)

    ACC = (24, 40, 56)
    WB, NBUF, LA = 72, 6, cfg.look
    XF, PK, XA = 128, 96, 16
    init1, init2 = att_init_ops()

    def item(g):
        kk, m = divmod(g % 96, 6)
        return kk, m >> 1, m & 1

    def reads(g, part=None):
        kk, seg, ab = item(g)
        so = slot_of(g // 12)
        base = (8, 18)[ab] + so // 49152
        off = so % 49152 + (kk & 1) * 12288 + seg * 2048
        for h in range(2):
            if part in (None, h):
                if g < 96 and seg == 0 and ab == 0:
                    dsr("ds_read_b128", XF + 8 * kk + 4 * h, 4, XA + (kk & 1), (kk >> 1) * 8192 + h * 2048, g)
                dsr("ds_read_b64_tr_b16", WB + 4 * (g % NBUF) + 2 * h, 2, base, off + 512 * h, g)

    def pack(acc, pk):
        return ["v_cvt_pk_bf16_f32 %s, %s, %s" % (vr(pk + q), vr(acc + 2 * q), vr(acc + 2 * q + 1)) for q in range(8)]

    def st2(pk, va, base, delta, tag, imm=(0, 0), vb=None):
        def first():
            bstore(pk, 4, va, SWS, base, imm[0], "" if cfg.abl & 64 else "sc1", tag)

        def second():
            if delta:
                a("s_add_u32 s72, %s, %d" % (base, delta))
            bstore(pk + 4, 4, vb or va, SWS, "s72" if delta else base, imm[1], "" if cfg.abl & 64 else "sc1", tag)
        return [first, second]

    def relu2(acc):
        return (["v_max_f32 %s, 0, %s" % (vr(acc + i), vr(acc + i)) for i in range(16)]
                + ["v_mul_f32 %s, %s, %s" % (vr(acc + i), vr(acc + i), vr(acc + i)) for i in range(16)])

    def bias(seg):
        ops = [lambda: vm.wait("b1")]
        for q in range(4):
            ops.append("v_lshlrev_b32 %s, 16, %s" % (vr(ACC[seg] + 2 * q), vr(112 + 4 * seg + q)))
            ops.append("v_and_b32 %s, s89, %s" % (vr(ACC[seg] + 2 * q + 1), vr(112 + 4 * seg + q)))
        return ops

    tagq = ["v_or_b32 %s, 1, %s" % (vr(PK + 4 * q), vr(PK + 4 * q)) for q in range(2)]
    qkv_epi = (["v_mul_f32 %s, 0x%x, %s" % (vr(ACC[0] + i), QSCALE, vr(ACC[0] + i)) for i in range(16)]
               + pack(ACC[0], PK) + tagq + st2(PK, 14, "s76", 0, "st", (0, 256))
               + pack(ACC[1], PK + 8) + st2(PK + 8, 11, "s77", 0, "st", (0, 256))
               + pack(ACC[2], PK) + st2(PK, 12, "s77", 0, "st", (1024, 1152))
               + bias(0) + bias(1) + bias(2))
    sched = {144: init1, 174: init2}
    if cfg.zall:
        sched = {108 + 12 * t: init1[16 * t:16 * t + 16] for t in range(4)}
        sched[174] = init2
    shadow = []

    def run_shadow(budget):
        while shadow and budget > 0:
            op = shadow.pop(0)
            if isinstance(op, str):
                a(op)
                budget -= 1
            else:
                op()
                budget -= 3

    a("""
    s_lshl_b32 s85, s60, 14
    s_lshl_b32 s72, s67, 7
    s_add_u32 s85, s85, s72
    s_lshl_b32 s86, s60, 6
    s_lshl1_add_u32 s86, s66, s86
    s_lshl_b32 s86, s86, 10
    s_add_u32 s86, s86, %d
    s_lshl_b32 s87, s66, FROW
    s_add_u32 s87, s87, %d
    """ % (WS_HF, WS_FLAGH))
    vm.wait(("w", 0))
    a("s_waitcnt lgkmcnt(0)")
    a("s_add_u32 %s, %s, 0x%x" % (sr(sTAG), sr(sTAG), EPOCH_INC))
    if cfg.bst == 3:
        stamp(9, True)
    a("s_barrier")
    stamp(3)
    if cfg.bst == 3:
        stamp(10, True)
    for g in range(LA):
        reads(g)
    for g in range(192):
        kk, seg, ab = item(g)
        if g == 96:
            stamp(4)
            shadow.extend(qkv_epi)
            run_shadow(1000)
            stamp(5)
            a("s_barrier")
            for n in range(96, 96 + LA):
                reads(n)
        lg.wait(*range(g, g - g % cfg.wgrp + cfg.wgrp))
        w = WB + 4 * (g % NBUF)
        n = g + LA
        more = n < 192 and not g < 96 <= n
        shadow.extend(sched.get(g, ()))
        for h, t in enumerate((1, 0)):
            x = XF + 8 * kk + 4 * t
            if g < 96 and seg == 2:
                d = ACC[seg] + 8 * ab + 4 * t
                mfma16(d, x, w, None if kk == 0 else d)
            else:
                d = ACC[seg] + 8 * t + 4 * ab
                mfma16(d, w, x, d if kk else (None if g < 96 else ACC[seg] + 4 * ab))
            if more and h == 0 and n % 12 == 0:
                vm.wait(("w", n // 12))
                if n // 12 == cfg.flag_chunk:
                    vm.wait("st")
                a("s_barrier")
                if n // 12 == cfg.flag_chunk:
                    a("s_cmp_lg_u32 s60, 0")
                    a("s_cselect_b32 s79, 0x40000000, s79")
                    set_flag(7, "s79")
                    stamp(6)
            if more:
                reads(n, h)
            run_shadow(1 if more else 2)
        if g == 40:
            for q in range(6):
                bload(112 + 2 * q, 2, 10, SB1, "s81", (q >> 1) * 128 + (q & 1) * 16, "", "b1")
    run_shadow(1000)
    stamp(7)
    hmath, hst = [], []
    for seg in range(3):
        pk = PK + 8 * seg
        hmath.append(relu2(ACC[seg]) + pack(ACC[seg], pk))
        hst.append((["s_add_u32 s78, s78, 0x40000"] if seg == 1 else []) + st2(pk, 127, "s78" if seg < 2 else "s88", 0, "hst", (0, 256)))
    for seg in range(cfg.hbar):
        shadow.extend(hmath[seg])
    run_shadow(1000)
    a("s_barrier")
    stamp(8)
    if cfg.bst == 4:
        stamp(1, True)
    a("s_setprio 2")
    for seg in range(cfg.hbar, cfg.hpre):
        shadow.extend(hmath[seg])
    run_shadow(1000)
    att_loads("a")
    hlist = [[hst[0][0]], [hst[0][1]], hst[1][:2], [hst[1][2]], [hst[2][0]], [hst[2][1]]]
    for seg in range(3):
        shadow.extend(hmath[seg] if seg >= max(cfg.hpre, cfg.hbar) else [])
        for n in (2 * seg, 2 * seg + 1):
            if n < cfg.hnow:
                shadow.extend(hlist[n])
    run_shadow(1000)
    stamp(9)


    def w2dma(i):
        if cfg.abl & 1:
            return
        a("s_add_u32 m0, s84, %d" % ((i & 3) * 2048))
        a("s_add_u32 s72, s85, %d" % (i * 65536))
        dma(4, SW2, "s72", 0, ("w2", i))
        a("s_add_u32 s72, s72, 7168")
        dma(4, SW2, "s72", 1024, ("w2", i))

    hreg = lambda i, tt: HB + 8 * (i % 3) + 4 * tt

    def hload(i):
        if cfg.abl & 1:
            return
        if i > 0:
            a("s_add_u32 s86, s86, 0x40000")
        for tt in range(2):
            bload(hreg(i, tt), 4, 1, SWS, "s86", tt * 1024, "sc1", ("h", i))

    def w2read(i, nt):
        if cfg.abl & 2:
            return
        vm.wait(("w2", i))
        trread(WF + 4 * nt, 5 + nt, (i & 3) * 2048, 1024, ("wf", i, nt))

    def fslot(f):
        i, m = divmod(f, 4)
        nt, tt = ((0, 0), (0, 1), (1, 1), (1, 0))[m]
        vm.wait(("h", i))
        lg.wait(("wf", i, nt))
        d = FA + 16 * (2 * tt + nt)
        if not cfg.abl & 4:
            mfma32(d, WF + 4 * nt, hreg(i, tt), None if i == 0 else d)
        if m == 1 and i + 1 < NS:
            deferred.append(lambda: w2read(i + 1, 0))
        if m == cfg.dmam and i + 4 < NS:
            deferred.append(lambda: w2dma(i + 4))
        if m == 3:
            if i + 1 < NS:
                deferred.append(lambda: w2read(i + 1, 1))
            if i + 3 < NS:
                deferred.append(lambda: hload(i + 3))

    def park(tt, nt):
        d = FA + 16 * (2 * tt + nt)
        for q in range(8):
            a("v_cvt_pk_bf16_f32 %s, %s, %s" % (vr(d + q), vr(d + 2 * q), vr(d + 2 * q + 1)))
        for q in range(2):
            dsw("ds_write_b128", 4, d + 4 * q, 4, tt * 32 * PART_STRIDE + nt * 64 + q * 32)

    def park_addr():
        a("v_and_b32 v4, 31, v0")
        a("v_mul_u32_u24 v4, %d, v4" % PART_STRIDE)
        a("v_lshrrev_b32 v5, 5, v0")
        a("v_lshl_add_u32 v4, v5, 4, v4")
        a("v_add_u32 v4, s84, v4")

    hooks = {}

    def hook(j, t, i, f):
        hooks.setdefault((j, t, i), []).append(f)

    n1 = cfg.n1
    for n in range(cfg.hnow, 6):
        tl = (n - cfg.hnow) * cfg.hgap + cfg.hoff
        hook(tl >> 2, tl & 3, 9, lambda n=n: (shadow.extend(hlist[n]), run_shadow(1000)))
    assert (5 - cfg.hnow) * cfg.hgap + cfg.hoff <= cfg.hflag < 4 * (n1 - 2)
    hook(cfg.hflag >> 2, cfg.hflag & 3, 12, lambda: (vm.wait("hst"), set_flag(7, "s80"), stamp(1) if cfg.hst else None))
    hook(n1 - 2, 0, 8, lambda: flag_load(7, cfg.fsh, "s87", "hf"))
    hook(n1 - 2, 3, 12, lambda: (vm.wait("hf"), stamp(2) if cfg.hst else None, check_flags("h", 7, cfg.fsh, "s87"), stamp(3) if cfg.hst else None))
    for i in range(4):
        hook(n1 - 3 + (i >> 1), 1 + (i & 1), 7, lambda i=i: w2dma(i))
    for i in range(3):
        hook(n1 - 1, i, 7, lambda i=i: hload(i))
    hook(n1 - 1, 3, 7, lambda: (w2read(0, 0), w2read(0, 1)))
    pat = [int(ch) for ch in str(cfg.fpat)]
    slots = [(j, t, pos) for j in range(n1, nA) for t in range(4) for pos in ((13,), (7, 13))[pat[t] - 1]]
    for f in range(4 * NS):
        hook(*slots[f], lambda f=f: fslot(f))
    tl = slots[4 * NS - 1][0] * 4 + slots[4 * NS - 1][1] + 1
    assert tl + 3 < 4 * nA
    hook(tl >> 2, tl & 3, 6, park_addr)
    for n, (nt, tt) in enumerate(((0, 0), (0, 1), (1, 1), (1, 0))):
        hook((tl + n) >> 2, (tl + n) & 3, 7, lambda tt=tt, nt=nt: park(tt, nt))
    if cfg.hst:
        for n in range(4):
            hook(n1 + 4 * n, 0, 1, lambda n=n: stamp(4 + n))
    if cfg.alow:
        tl = 4 * nA - cfg.alow
        hook(tl >> 2, tl & 3, 0, lambda: a("s_setprio 0"))
    if cfg.bst == 4:
        for n, j in enumerate(range(0, nA, 2)):
            hook(j, 0, 0, lambda n=n: stamp(2 + n, True))
    att_run(nA, hooks)
    vm.drain()
    a("s_branch L_att_done")

    a.label("L_loader")
    vm.items = []
    lg.items = []

    def b_setup():
        a("; waves 4-7: W1 DMA offsets v56/v57 (sixth tile out of range where the next group owns it), wo DMA offset v4, flagQ row s79")
        a("""
        v_mul_u32_u24 v56, 2752, v4
        v_add_u32 v56, v56, v6
        s_lshr_b32 s72, 0xf8, s61
        s_and_b32 s72, s72, 1
        s_lshl_b32 s72, s72, 23
        v_and_b32 v57, 64, v6
        v_mad_u32_u24 v57, v57, s72, v56
        v_xor_b32 v58, 16, v56
        v_xor_b32 v59, 16, v57
        v_bfe_u32 v6, v4, 1, 2
        v_lshlrev_b32 v6, 1, v6
        v_xor_b32 v6, v6, v5
        v_lshlrev_b32 v6, 4, v6
        v_lshl_add_u32 v4, v4, 10, v6
        v_min_u32 v5, %d, v0
        v_lshlrev_b32 v5, 7, v5
        s_lshr_b32 s79, s64, 1
        s_lshl_b32 s79, s79, 10
        s_add_u32 s79, s79, %d
        s_and_b32 s73, s60, 3
        s_lshl_b32 s72, s69, 6
        s_mul_i32 s80, s73, %d
        s_add_u32 s80, s80, s72
        """ % (cfg.pfn - 1, WS_FLAGQ, 16 * 2752))

        a("v_mov_b32 v3, 0xdddddddd")

    issued = cfg.lead
    setup1()
    state = {"issued": issued}

    def b_step(c):
        if c in skip_bar:
            return
        vm.wait(("w", c + 1 if c + 1 in skip_bar else c))
        if cfg.bst == 2:
            stamp(c, True)
        if cfg.bst == 3 and c == 0:
            stamp(9, True)
        a("s_barrier")
        if cfg.bst == 1:
            stamp(c, True)
        if c in (0, 8, 12, 15):
            stamp({0: 3, 8: 4, 12: 5, 15: 6}[c])
        if c == cfg.bload - 1:
            flag_load(7, 4, "s79", "qf")
        if c == cfg.bload:
            vm.wait("qf")
            check_flags("q", 7, 4, "s79")
            stamp(7)
            att_loads("b")
        lim = c + 2
        if c < 8:
            lim = min(lim, cfg.hold)
        if cfg.split and c == 8:
            lim = 10 + cfg.split - 1
        if cfg.xslot == 12 and c == 9:
            lim = 12
        if cfg.xslot == 11 and c in (8, 9):
            lim = c + 3
        if cfg.xslot and c >= 11:
            lim = c + cfg.xrun
        while state["issued"] < min(15, max(3, lim)):
            state["issued"] += 1
            issue_chunk(state["issued"])
        if c == 0:
            setup_pf()
        if c == cfg.sA:
            setup2()
        if cfg.pf1_at == 12 + c:
            pf1()
        if c == cfg.sB:
            b_setup()
        if c == cfg.sC:
            setup3()
        if c == cfg.l2w:
            pfl2(SW1)
        if c == cfg.pfe:
            a("; memory-side prefetch of w2 and wo")
            bload(32, 1, 31, SW2, "s100", 0, "", "pf")
            bload(32, 1, 31, SWO, "s100", 0, "", "pf")
        if c == cfg.sC:
            for op in init1 + init2:
                a(op)
        if c == 7:
            a("s_waitcnt lgkmcnt(0)")
            a("s_add_u32 %s, %s, 0x%x" % (sr(sTAG), sr(sTAG), EPOCH_INC))

    def b_att():
        a("s_barrier")
        stamp(8)
        a("s_setprio 1")
        if cfg.kv3:
            kvload(2)

    bhooks = {}
    for c in range(17):
        f = (lambda c=c: b_step(c)) if c < 16 else b_att
        if c <= cfg.bjoin:
            f()
        else:
            tl = (c - cfg.bjoin) * cfg.btile - 1
            bhooks[(tl >> 2, tl & 3, 13)] = [f]

    def wo_dma(lo, hi):
        if cfg.abl & 8:
            return
        if lo == 0:
            a("; wo tile -> LDS [0, 64K), a few rows per score tile")
            a("s_and_b32 s78, s60, 3")
            a("s_lshl_b32 s76, s78, 17")
            a("s_lshl_b32 s73, s67, 7")
            a("s_add_u32 s76, s76, s73")
            a("s_lshl_b32 s78, s78, 14")
        for i in range(lo, hi):
            a("s_add_u32 m0, s78, %d" % (i * 1024))
            a("s_add_u32 s73, s76, %d" % (i * 8192))
            dma(4, SWO, "s73", 0, "wo")

    nl = cfg.pfn
    batches = [(SW2, i) for i in range(-(-11 // nl))] + [(SWO, i) for i in range(-(-4 // nl))]

    def pf_late(n):
        if cfg.abl & 16:
            return
        if n == 0:
            a("; memory-side prefetch of w2 (in k order) and wo, a few lines per wave at a time")
            a("s_and_b32 s90, s60, 3")
            a("s_lshl2_add_u32 s90, s2, s90")
            a("s_mul_i32 s90, s90, %d" % (nl * 128))
        a("s_add_u32 s72, s90, %d" % (batches[n][1] * nl * 131072))
        bload(7, 1, 5, batches[n][0], "s72", 0, "", "pf")

    for n in range(len(batches) if cfg.pfe > 90 else 0):
        tl = cfg.pfl + n * cfg.pfg
        bhooks[(tl >> 2, tl & 3, 7)] = [lambda n=n: pf_late(n)]
    for n, lo in enumerate(range(0, 16, cfg.won)):
        bhooks[((cfg.wol + n) >> 2, (cfg.wol + n) & 3, 8)] = [lambda lo=lo: wo_dma(lo, lo + cfg.won)]
    if cfg.bst == 4:
        for j in range(nB):
            bhooks.setdefault((j, 0, 0), []).append(lambda j=j: stamp(2 + j, True))
    att_run(nB, bhooks)
    vm.drain()

    OW = OA + 48
    WOF, OFR, AC, G, Z, X, SR = 128, 24, 8, 64, 96, 104, 112
    a.label("L_att_done")
    stamp(10)
    if cfg.bst == 4:
        stamp(14, True)
    a("s_setprio 0")
    a("s_and_b32 s73, s60, 1")
    a("s_lshl_b32 s73, s73, 9")
    a("s_sub_u32 s76, s95, s73")
    a("""
    s_and_b32 s74, s60, 3
    s_lshr_b32 s75, s60, 2
    v_lshrrev_b32 v14, 3, v0
    v_and_b32 v7, 7, v0
    v_lshlrev_b32 v7, 4, v7
    v_lshl_add_u32 v14, v14, 10, v7
    s_lshl3_add_u32 s78, s66, s60
    s_lshl_b32 s78, s78, 13
    s_lshl_b32 s79, s67, 7
    s_add_u32 s78, s78, s79
    """)
    bload(60, 4, 7, SB2, "s79", 0, "", "xb")
    bload(56, 4, 14, SX, "s78", 0, "", "xb")
    lg.drain()
    a("s_barrier")
    for src in range(3):
        d = SB + 10 * src
        dsr("ds_read_b128", d, 4, 9, src * 2304, src)
        dsr("ds_read_b128", d + 4, 4, 9, src * 2304 + 1024, src)
        dsr("ds_read_b32", d + 8, 1, 10, src * 2304 + 2048, src)
    for src in range(3):
        lg.wait(src)
        for i in range(0, 8, 2):
            a("v_pk_add_f32 %s, %s, %s" % (vr(OW + i, 2), vr(OW + i, 2), vr(SB + 10 * src + i, 2)))
        a("v_add_f32 %s, %s, %s" % (vr(OW + 8), vr(OW + 8), vr(SB + 10 * src + 8)))
    a("v_pk_mul_f32 v[12:13], %s, 0 op_sel_hi:[1,0]" % vr(OW, 2))
    for i in range(2, 8, 2):
        a("v_pk_fma_f32 v[12:13], %s, 0, v[12:13] op_sel_hi:[1,0,1]" % vr(OW + i, 2))
    a("""
    v_add_f32 v12, v12, %s
    v_add_f32 v12, v12, v13
    v_cmp_nle_f32 vcc, 0x30800000, v12
    s_mov_b64 s[72:73], vcc
    v_cmp_nge_f32 vcc, 0x5d800000, v12
    s_or_b64 s[72:73], s[72:73], vcc
    """ % vr(OW + 8))
    a("s_branch L_slow" if cfg.force_slow else "s_cbranch_scc1 L_slow")
    a.label("L_norm")
    a("v_rcp_f32 v12, %s" % vr(OW + 8))
    for i in range(0, 8, 2):
        a("v_pk_mul_f32 %s, %s, v[12:13] op_sel_hi:[1,0]" % (vr(OW + i, 2), vr(OW + i, 2)))
    for q in range(4):
        a("v_cvt_pk_bf16_f32 %s, %s, %s" % (vr(16 + q), vr(OW + 2 * q), vr(OW + 2 * q + 1)))
    a("v_and_b32 v16, -2, v16")
    bstore(16, 4, 11, SWS, "s76", 0, "sc1", "ost")
    stamp(11)
    a("v_mov_b32 v2, v14")
    a("v_lshrrev_b32 v3, 3, v0")
    a("""
    v_mul_u32_u24 v4, %d, v3
    s_mul_i32 s72, s60, %d
    s_add_u32 s72, s72, %d
    v_add3_u32 v4, v4, v7, s72
    """ % (PART_STRIDE, 8 * PART_STRIDE, L_W2))
    for j in range(4):
        dsr("ds_read_b128", G + 4 * j, 4, 4, j * W2_REGION, "g")
    a("""
    v_bfe_u32 v4, v0, 2, 2
    v_bfe_u32 v5, v0, 4, 1
    v_lshl_add_u32 v4, v5, 2, v4
    v_lshrrev_b32 v5, 1, v4
    v_lshlrev_b32 v92, 7, v4
    v_lshl_add_u32 v92, v5, 5, v92
    v_lshrrev_b32 v6, 5, v0
    v_lshl_add_u32 v92, v6, 11, v92
    v_and_b32 v4, 3, v0
    v_lshl_add_u32 v92, v4, 3, v92
    s_lshl_b32 s72, s75, 15
    v_add_u32 v92, s72, v92
    v_xor_b32 v93, 32, v92
    v_xor_b32 v94, 64, v92
    v_xor_b32 v95, 0x60, v92
    s_barrier
    """)

    def oloads(first=0):
        for ks in range(first, 8):
            bload(OFR + 4 * ks, 4, 1, SWS, ("s76", "s77", "s80", "s81")[ks >> 1], (ks & 1) * 2048, "sc1", ("o", ks))

    fill = ("""
    s_lshl2_add_u32 s72, s66, s74
    s_lshr_b32 s76, s72, 1
    s_lshl1_add_u32 s76, s76, s75
    s_lshl_b32 s76, s76, 14
    s_and_b32 s72, s72, 1
    s_lshl_b32 s72, s72, 10
    s_add_u32 s76, s76, s72
    s_add_u32 s76, s76, %d
    s_add_u32 s77, s76, 0x1000
    s_add_u32 s80, s76, 0x2000
    s_add_u32 s81, s76, 0x3000
    v_mul_u32_u24 v3, %d, v3
    v_lshl_add_u32 v3, v7, 1, v3
    s_mul_i32 s72, s60, %d
    s_add_u32 s72, s72, %d
    v_add_u32 v3, s72, v3
    v_and_b32 v5, 15, v0
    v_mul_u32_u24 v5, %d, v5
    v_and_b32 v4, 48, v0
    s_mul_i32 s72, s60, %d
    s_add_u32 s72, s72, %d
    v_add3_u32 v5, v5, v4, s72
    s_mov_b32 s82, 0x3f80
    s_mov_b32 s83, 0x3f800000
    """ % (WS_QO, SUM_STRIDE, 8 * SUM_STRIDE, L_SUM, SUM_STRIDE, 16 * SUM_STRIDE, L_SUM)).strip().split("\n")
    gate = ["v_mov_b32 %s, 0" % vr(Z + i) for i in range(8)]
    gate.append(lambda: lg.wait("g"))
    for j in range(5):
        if j == 4:
            gate.append(lambda: vm.wait("xb"))
        for q in range(4):
            src = G + 4 * j + q if j < 4 else 60 + q
            gate.append("v_dot2c_f32_bf16 %s, s82, %s" % (vr(Z + 2 * q), vr(src)))
            gate.append("v_dot2c_f32_bf16 %s, s83, %s" % (vr(Z + 2 * q + 1), vr(src)))
    for q in range(4):
        gate.append("v_lshlrev_b32 %s, 16, %s" % (vr(X + 2 * q), vr(56 + q)))
        gate.append("v_and_b32 %s, s89, %s" % (vr(X + 1 + 2 * q), vr(56 + q)))
    gate += ["v_mul_f32 %s, 0x%x, %s" % (vr(G + i), NLOG2E, vr(Z + i)) for i in range(8)]
    gate += ["v_exp_f32 %s, %s" % (vr(G + i), vr(G + i)) for i in range(8)]
    gate += ["v_add_f32 %s, 1.0, %s" % (vr(G + i), vr(G + i)) for i in range(8)]
    gate += ["v_rcp_f32 %s, %s" % (vr(G + i), vr(G + i)) for i in range(8)]
    gate += ["v_mul_f32 %s, %s, %s" % (vr(Z + i), vr(Z + i), vr(G + i)) for i in range(8)]

    def wo_reads(oat, per):
        for ks in range(8):
            for ct in range(4):
                trread(WOF + (ks * 4 + ct) * 4, 92 + ct, ks * 4096, 1024, ("wo", ks))
                run_shadow(per)
            if ks == oat:
                run_shadow(1000)
                vm.wait("ost")
                oloads()

    vm_t, lg_t = list(vm.items), list(lg.items)
    a("s_cmp_eq_u32 s63, 1")
    a("s_cbranch_scc1 L_tail_b")
    shadow.extend(fill)
    wo_reads(7, 1)
    shadow.extend(gate)
    run_shadow(1000)
    a("s_branch L_tail_j")
    a.label("L_tail_b")
    vm.items, lg.items = vm_t, lg_t
    shadow.extend(fill + gate)
    run_shadow(1000)
    wo_reads(cfg.oat, 0)
    a.label("L_tail_j")
    stamp(12)
    a("s_mov_b32 s73, 0")
    lg.drain()
    for ks in range(8):
        a.label("L_wo_%d" % ks)
        vm.wait(("o", ks))
        a("v_and_b32 v6, 1, %s" % vr(OFR + 4 * ks))
        a("v_cmp_ne_u32 vcc, 0, v6")
        a("s_cbranch_vccnz L_oretry_%d" % ks)
        a.label("L_ogo_%d" % ks)
        for ct in range(4):
            d = AC + 4 * ct
            mfma16(d, WOF + (ks * 4 + ct) * 4, OFR + 4 * ks, None if ks == 0 else d)
    stamp(13)
    for ct in range(4):
        dsw("ds_write_b128", 5, AC + 4 * ct, 4, ct * 64)
    lg.drain()
    a("s_barrier")
    stamp(14)
    dsr("ds_read_b128", SR, 4, 3, 0, 0)
    dsr("ds_read_b128", SR + 8, 4, 3, SUM_SIZE, 0)
    dsr("ds_read_b128", SR + 4, 4, 3, 16, 1)
    dsr("ds_read_b128", SR + 12, 4, 3, SUM_SIZE + 16, 1)
    for h in range(2):
        lg.wait(h)
        for i in range(4 * h, 4 * h + 4, 2):
            a("v_pk_add_f32 %s, %s, %s" % (vr(SR + i, 2), vr(SR + i, 2), vr(SR + 8 + i, 2)))
        for i in range(4 * h, 4 * h + 4, 2):
            a("v_pk_fma_f32 %s, %s, %s, %s" % (vr(SR + i, 2), vr(SR + i, 2), vr(Z + i, 2), vr(X + i, 2)))
        for q in range(2 * h, 2 * h + 2):
            a("v_cvt_pk_bf16_f32 %s, %s, %s" % (vr(G + q), vr(SR + 2 * q), vr(SR + 2 * q + 1)))
    bstore(G, 4, 2, SOUT, "s78", 0, ("", "sc1", "nt", "sc0 sc1", "sc0 sc1 nt")[cfg.omod])
    a("s_or_b32 s72, s2, s60")
    a("s_cmp_lg_u32 s72, 0")
    a("s_cbranch_scc1 L_noepoch")
    set_flag(7, "0")
    a.label("L_noepoch")
    if cfg.stamps:
        a("s_waitcnt vmcnt(0)")
        stamp(15)
        if cfg.probe is not None:
            a("s_sub_u32 s72, %s, s4" % sr(sSTAMP + cfg.probe))
            if cfg.stamps == 2:
                a("s_lshr_b32 s72, s72, 3")
            else:
                a("s_lshl_b32 s72, s72, %d" % cfg.probesh)
            a("s_cmp_lg_u32 s2, %d" % cfg.probewg)
            a("s_cselect_b32 s72, 0, s72")
            a("s_cmp_lg_u32 s60, %d" % cfg.probew)
            a("s_cselect_b32 s72, 0, s72")
            a("s_memrealtime s[22:23]")
            a("s_waitcnt lgkmcnt(0)")
            a("s_mov_b32 s73, s22")
            a.label("L_probe")
            a("s_memrealtime s[22:23]")
            a("s_waitcnt lgkmcnt(0)")
            a("s_sub_u32 s22, s22, s73")
            a("s_cmp_lt_u32 s22, s72")
            a("s_cbranch_scc1 L_probe")
        a("s_lshl3_add_u32 s72, s2, s60")
        a("s_lshl_b32 s72, s72, 6")
        a("s_add_u32 s72, s72, %d" % WS_STAMP)
        for i in range(16):
            a("v_mov_b32 %s, %s" % (vr(80 + i), sr(sSTAMP + i)))
        a("s_mov_b64 exec, 1")
        for i in range(4):
            bstore(80 + 4 * i, 4, 1, SWS, "s72", 16 * i)
    a.label("L_end")
    a("s_endpgm")

    for ks in range(8):
        a.label("L_oretry_%d" % ks)
        a("s_add_u32 s73, s73, 1")
        a("s_cmp_ge_u32 s73, %d" % SPIN_MAX)
        a("s_cbranch_scc1 L_ogo_%d" % ks)
        a("s_waitcnt vmcnt(0)")
        oloads(ks)
        a("s_branch L_wo_%d" % ks)

    for tag, vt, lanes, soff in stubs:
        a.label("L_poll_" + tag)
        a("s_mov_b32 s73, 0")
        a.label("L_poll2_" + tag)
        a("s_sleep %d" % cfg.sleep)
        flag_load(vt, lanes, soff, None)
        a("s_add_u32 s73, s73, 1")
        a("s_waitcnt vmcnt(0)")
        a("s_cmp_ge_u32 s73, %d" % SPIN_MAX)
        a("s_cbranch_scc1 L_polled_" + tag)
        a("v_cmp_ne_u32 vcc, %s, %s" % (sr(sTAG), vr(vt)))
        a("s_cbranch_vccnz L_poll2_" + tag)
        a("s_branch L_polled_" + tag)

    a.label("L_slow")
    CN = SB + 16
    a("s_waitcnt vmcnt(0)")
    a("v_mov_b32 v13, 0xff800000")
    a("s_mov_b32 s82, s83")
    a("s_mov_b32 s81, 64")
    a.label("L_slow1")
    bload(KV, 4, 252, SWS, "s82", 0, "sc1")
    a("s_add_u32 s82, s82, 2048")
    a("s_waitcnt vmcnt(0)")
    mfma32(SB, KV, QR + 12, None)
    for i in range(0, 16, 2):
        a("v_max3_f32 v13, v13, %s, %s" % (vr(SB + i), vr(SB + i + 1)))
    a("s_sub_u32 s81, s81, 1")
    a("s_cmp_lg_u32 s81, 0")
    a("s_cbranch_scc1 L_slow1")
    a("v_mov_b32 v15, v13")
    a("v_permlane32_swap_b32 v15, v13")
    a("v_max_f32 v13, v15, v13")
    for i in range(16):
        a("v_sub_f32 %s, 0, v13" % vr(CN + i))
        a("v_mov_b32 %s, 0" % vr(OW + i))
    a("s_mov_b32 s82, s83")
    a("s_mov_b32 s81, 64")
    a.label("L_slow2")
    kvload(0)
    a("s_waitcnt vmcnt(0)")
    mfma32(SB, KV, QR + 12, CN)
    for i in range(16):
        a("v_exp_f32 %s, %s" % (vr(SB + i), vr(SB + i)))
    smf(OW, KV + 4, SB)
    smf(OW, KV + 8, SB + 8)
    a("s_sub_u32 s81, s81, 1")
    a("s_cmp_lg_u32 s81, 0")
    a("s_cbranch_scc1 L_slow2")
    a("s_branch L_norm")
    a.label("L_code_end")
    a("s_endpgm")

    added = a.fix()
    return a.text().replace('FSH', str(cfg.fsh)).replace('FROW', str(cfg.fsh + 5)), added


HEADER = """; Kernarg layout for this problem (88 bytes, ptrs only, base s[0:1]):
; @launch grid=(256,1,1) block=(512,1,1) lds=163840
.amdgcn_target "amdgcn-amd-amdhsa--gfx950"
.text
.globl {k}
.p2align 8
.type {k},@function
{k}:
"""

FOOTER = """.section .rodata,"a"
.p2align 6
.amdhsa_kernel {k}
  .amdhsa_next_free_vgpr 256
  .amdhsa_next_free_sgpr 102
  .amdhsa_accum_offset 256
  .amdhsa_group_segment_fixed_size 0
  .amdhsa_kernarg_size 88
  .amdhsa_user_sgpr_count 2
  .amdhsa_user_sgpr_kernarg_segment_ptr 1
  .amdhsa_system_sgpr_workgroup_id_x 1
.end_amdhsa_kernel
"""


def build(**kw):
    cfg = Cfg()
    for k, v in kw.items():
        setattr(cfg, k, v)
    body, added = gen(cfg)
    return HEADER.format(k=KERNEL) + body + FOOTER.format(k=KERNEL), added


if __name__ == "__main__":
    out = sys.argv[1] if len(sys.argv) > 1 else "cdna_kernels/%s.s" % NAME
    kw = {}
    for arg in sys.argv[2:]:
        k, v = arg.split("=")
        kw[k] = int(v)
    text, added = build(**kw)
    open(out, "w").write(text)
    print("wrote", out, "lines", text.count("\n"), "nops added", added)
```

```python
import re

TRANS = ("v_exp_", "v_log_", "v_rcp_", "v_rsq_", "v_sqrt_", "v_sin_", "v_cos_")
REG_RE = re.compile(r"^(-?\|?|abs\(|-abs\()?([vsa])(\d+)\)?\|?$")
RNG_RE = re.compile(r"^(-?\|?)?([vsa])\[(\d+):(\d+)\]\|?$")


def regs_of(tok):
    tok = tok.strip()
    if tok == "vcc":
        return {("s", 106), ("s", 107)}
    if tok == "vcc_lo":
        return {("s", 106)}
    if tok == "vcc_hi":
        return {("s", 107)}
    if tok == "exec":
        return {("s", 126), ("s", 127)}
    if tok == "exec_lo":
        return {("s", 126)}
    if tok == "m0":
        return {("s", 124)}
    m = RNG_RE.match(tok)
    if m:
        return {(m.group(2), i) for i in range(int(m.group(3)), int(m.group(4)) + 1)}
    m = REG_RE.match(tok)
    if m:
        return {(m.group(2), int(m.group(3)))}
    return set()


def split_ops(rest):
    ops, depth, cur = [], 0, ""
    for ch in rest:
        if ch == "[":
            depth += 1
        elif ch == "]":
            depth -= 1
        if ch == "," and depth == 0:
            ops.append(cur.strip())
            cur = ""
        else:
            cur += ch
    if cur.strip():
        ops.append(cur.strip())
    mods = ""
    if ops:
        parts = ops[-1].split(None, 1)
        ops[-1] = parts[0]
        mods = parts[1] if len(parts) > 1 else ""
    return ops, mods


class Ins:
    def __init__(self, text):
        self.text = text
        body = text.split(";")[0].strip()
        parts = body.split(None, 1)
        self.op = parts[0]
        ops, mods = split_ops(parts[1]) if len(parts) > 1 else ([], "")
        self.ops, self.mods = ops, mods
        op = self.op
        self.kind = "other"
        self.dst, self.src = set(), set()
        self.srcc, self.srcab = set(), set()
        self.passes = 0
        self.states = 1
        self.trans = self.dot = self.dpp = self.perm = self.rdlane = False
        self.wide_store = set()
        R = [regs_of(o) for o in ops]
        if op == "s_nop":
            self.states = int(ops[0], 0) + 1
            self.kind = "salu"
        elif op.startswith("v_mfma") or op.startswith("v_smfmac"):
            self.kind = "mfma"
            self.passes = 8 if "32x32" in op else 2 if "4x4x4" in op else 4
            self.dst = R[0]
            if op.startswith("v_smfmac"):
                self.srcab = R[1] | R[2] | R[3]
                self.srcc = R[0]
            else:
                self.srcab = R[1] | R[2]
                self.srcc = R[3]
            self.src = self.srcab | self.srcc
        elif op.startswith("v_"):
            self.kind = "valu"
            self.dst = set(R[0])
            srcs = R[1:]
            if "_co_" in op or op.startswith("v_div_scale") or op.startswith("v_mad_u64"):
                self.dst |= R[1]
                srcs = R[2:]
            for r in srcs:
                self.src |= r
            if op.startswith(("v_fmac", "v_dot2c", "v_writelane")) or "_dpp" in op:
                self.src |= R[0]
            if op.startswith("v_permlane"):
                self.perm = True
                self.dst = R[0] | R[1]
                self.src = R[0] | R[1]
            if op.startswith("v_cmpx"):
                self.dst |= regs_of("exec")
            self.trans = op.startswith(TRANS)
            self.dot = op.startswith("v_dot")
            self.dpp = "_dpp" in op
            self.rdlane = op.startswith(("v_readlane", "v_readfirstlane"))
        elif op.startswith("ds_"):
            self.kind = "ds"
            if op.startswith(("ds_read", "ds_bpermute", "ds_permute", "ds_swizzle")) or "_rtn" in op:
                self.dst = R[0]
                for r in R[1:]:
                    self.src |= r
            else:
                for r in R:
                    self.src |= r
        elif op.startswith(("buffer_", "global_")):
            self.kind = "vmem"
            lds = " lds" in (" " + mods) or "_lds_" in op
            if "load" in op and not lds:
                self.dst = R[0]
                for r in R[1:]:
                    self.src |= r
            else:
                for r in R:
                    self.src |= r
                if lds:
                    self.src |= regs_of("m0")
                if "store" in op and ("x3" in op or "x4" in op):
                    self.wide_store = R[0] if op.startswith("buffer_") else R[1]
            self.ldsdma = lds
        elif op.startswith("s_"):
            self.kind = "salu"
            if op.startswith(("s_cmp", "s_cbranch", "s_branch", "s_waitcnt", "s_barrier", "s_endpgm",
                              "s_setprio", "s_sleep", "s_bitcmp")):
                for r in R:
                    self.src |= r
            elif R:
                self.dst = set(R[0])
                for r in R[1:]:
                    self.src |= r
                if "saveexec" in op:
                    self.dst |= regs_of("exec")


def vonly(s):
    return {r for r in s if r[0] in "va"}


def sonly(s):
    return {r for r in s if r[0] == "s"}


MF_RAW = {2: 5, 4: 8, 8: 12}
MF_PART = {2: 4, 4: 6, 8: 10}
MF_WAR = {2: 1, 4: 3, 8: 7}
EXEC = regs_of("exec")
M0 = regs_of("m0")


def need(p, c):
    n = 0
    if p.kind == "valu":
        pv, ps = vonly(p.dst), sonly(p.dst)
        if c.kind == "mfma" and pv & c.src:
            n = max(n, 3 if p.dot else 2)
        if c.kind == "mfma" and ps & EXEC:
            n = max(n, 4)
        if c.kind == "valu":
            if p.trans and not c.trans and pv & c.src:
                n = max(n, 1)
            if (c.dpp or c.perm) and pv & c.src:
                n = max(n, 2)
            if c.rdlane and pv & c.src:
                n = max(n, 1)
            if ps & c.src:
                n = max(n, 4 if c.op.startswith(("v_readlane", "v_writelane")) else 2)
            if ps & EXEC and c.dpp:
                n = max(n, 5)
            if ps & EXEC and (c.rdlane or c.perm):
                n = max(n, 4)
            if p.dot and pv & (c.src | c.dst):
                same_acc = c.op == p.op and not (pv & (c.src - c.dst))
                if not same_acc:
                    n = max(n, 3)
        if p.dot and c.kind in ("vmem", "ds") and pv & c.src:
            n = max(n, 3)
        if c.kind == "vmem" and ps & c.src:
            n = max(n, 5)
        if c.kind == "salu" and (ps - EXEC) & c.src and not c.op.startswith("s_cbranch"):
            n = max(n, 1)
    elif p.kind == "mfma":
        if c.kind == "mfma":
            if p.dst & c.srcab:
                n = max(n, MF_RAW[p.passes])
            if p.dst & c.srcc and not (p.dst == c.srcc and p.passes == c.passes):
                n = max(n, MF_PART[p.passes])
            if p.passes == 2 and p.dst & c.srcc:
                n = max(n, 2)
            if p.dst & c.dst and p.dst != c.dst:
                n = max(n, MF_PART[p.passes])
        elif c.kind in ("valu", "vmem", "ds"):
            if p.dst & (c.src | c.dst):
                n = max(n, MF_RAW[p.passes])
            if c.kind == "valu" and p.srcc & c.dst:
                n = max(n, MF_WAR[p.passes])
    elif p.kind == "salu":
        if p.dst & M0 and c.kind == "vmem" and M0 & c.src:
            n = max(n, 1)
    elif p.kind == "vmem":
        if p.wide_store & c.dst:
            n = max(n, 2)
    return n


class Asm:
    def __init__(self):
        self.items = []

    def __call__(self, text):
        for line in text.split("\n"):
            s = line.strip()
            if not s:
                continue
            if s.startswith(";") or s.startswith("."):
                self.items.append(("raw", s))
            elif s.endswith(":"):
                self.items.append(("label", s[:-1]))
            else:
                self.items.append(("ins", Ins(s)))

    def label(self, name):
        self.items.append(("label", name))

    @staticmethod
    def _shortfall(hist, c):
        dist, worst = 0, 0
        for p in reversed(hist):
            worst = max(worst, need(p, c) - dist)
            dist += p.states
            if dist > 24:
                break
        return worst

    def fix(self):
        out, hist, added = [], [], 0
        for kind, v in self.items:
            if kind == "ins":
                k = self._shortfall(hist, v)
                if k > 0:
                    nop = Ins("s_nop %d" % (k - 1))
                    out.append(("ins", nop))
                    hist.append(nop)
                    added += 1
                out.append((kind, v))
                hist.append(v)
                if v.op in ("s_branch", "s_endpgm"):
                    hist = []
            else:
                out.append((kind, v))
        self.items = out
        changed = True
        while changed:
            changed = False
            pos = {v: i for i, (k, v) in enumerate(self.items) if k == "label"}
            for i, (kind, v) in enumerate(self.items):
                if kind != "ins" or not v.op.startswith(("s_cbranch", "s_branch")):
                    continue
                hist = []
                for k2, v2 in reversed(self.items[:i]):
                    if k2 == "ins":
                        if v2.op in ("s_branch", "s_endpgm"):
                            break
                        hist.insert(0, v2)
                        if len(hist) > 24:
                            break
                hist.append(v)
                base = len(hist)
                worst = 0
                j = pos[v.ops[0]]
                steps = 0
                while j < len(self.items) and steps < 24:
                    k2, v2 = self.items[j]
                    j += 1
                    if k2 != "ins":
                        continue
                    dist = sum(h.states for h in hist[base:])
                    for p in reversed(hist[:base]):
                        worst = max(worst, need(p, v2) - dist)
                        dist += p.states
                        if dist > 24:
                            break
                    hist.append(v2)
                    steps += v2.states
                    if v2.op == "s_endpgm":
                        break
                    if v2.op == "s_branch":
                        j = pos[v2.ops[0]]
                if worst > 0:
                    self.items.insert(i, ("ins", Ins("s_nop %d" % (worst - 1))))
                    added += 1
                    changed = True
                    break
        return added

    def text(self):
        lines = []
        for kind, v in self.items:
            if kind == "ins":
                lines.append("    " + v.text)
            elif kind == "label":
                lines.append(v + ":")
            else:
                lines.append(("    " if v.startswith(";") else "") + v)
        return "\n".join(lines) + "\n"


def vr(a, n=1):
    return "v%d" % a if n == 1 else "v[%d:%d]" % (a, a + n - 1)


def sr(a, n=1):
    return "s%d" % a if n == 1 else "s[%d:%d]" % (a, a + n - 1)
```

```python
import sys
import os
sys.path.insert(0, os.path.dirname(os.path.abspath(__file__)))
from asmlib import Asm, vr, sr

NAME = "recurrent_scan__softmax_full_mha__dense_activation_squared_relu__prompt"
KERNEL = NAME + "_kernel"

WS_FLAGQ = 0x1200
WS_FLAGH = 0x60000
WS_STAMP = 0x10000
WS_QO = 0x100000
WS_KV = 0x300000
WS_HF = 0x700000
WS_END = WS_HF + 86 * 65536
EPOCH_INC = 0x9E3779B9
SPIN_MAX = 1 << 18

L_RING = 65536
L_OPART = 65536
L_W2 = L_OPART + 55296
W2_REGION = 10240
PART_STRIDE = 144
SUM_STRIDE = 272
SUM_SIZE = 64 * SUM_STRIDE
L_SUM = L_OPART

SX, SWQ, SWO, SW1, SB1, SW2, SB2, SOUT, SWS = 24, 28, 32, 36, 40, 44, 48, 52, 56
sW, sCG, sTB, sRW, sP, sQB, sTBF, sCB, sTAG, sCT0 = 60, 61, 62, 63, 64, 65, 66, 67, 68, 69
sVM = 70
sSTAMP = 4

QSCALE = 0x3EB8AA3B
NLOG2E = 0xBFB8AA3B
NS = 22


class Cfg:
    abl = 0
    bst = 0
    xslot = 0
    xrun = 2
    n1 = 8
    nA = 22
    gap = 1
    kvt = 0
    kvi = 4
    dmam = 2
    fpat = 2221
    pf1_at = 12
    pfc_at = 99
    pfc1 = 0
    w2_at = 10
    pfl = 9
    wol = 15
    won = 1
    stamps = 0
    force_slow = 0
    flag_chunk = 10
    lead = 2
    look = 5
    pfq_at = 99
    bload = 15
    bjoin = 16
    btile = 2
    sleep = 6
    w0_at = 7
    w1_at = 10
    hpre = 2
    hbar = 0
    hnow = 2
    hgap = 2
    hoff = 0
    kv3 = 1
    fsh = 4
    pfe = 99
    l2q = 99
    rot = 1
    split = 1
    wgrp = 1
    zall = 1
    salate = 1
    sA = 3
    sB = 3
    sC = 7
    hold = 99
    l2w = 99
    pfn = 11
    alow = 0
    pfg = 1
    hflag = 11
    probe = None
    omod = 1
    oat = 4
    probewg = 100
    probew = 0
    probesh = 4
    hst = 0


def srd(s):
    return sr(s, 4)


class Queue:
    def __init__(self, a, name, maxn):
        self.a, self.name, self.maxn, self.items = a, name, maxn, []

    def push(self, tag):
        self.items.append(tag)

    def wait(self, *tags):
        last = max((i for i, t in enumerate(self.items) if t in tags), default=-1)
        if last < 0:
            return
        n = len(self.items) - 1 - last
        self.a("s_waitcnt %s(%d)" % (self.name, min(n, self.maxn)))
        self.items = self.items[last + 1:]

    def drain(self):
        self.a("s_waitcnt %s(0)" % self.name)
        self.items = []


def gen(cfg):
    a = Asm()
    nA = cfg.nA
    nB = 32 - nA
    vm = Queue(a, "vmcnt", 63)
    lg = Queue(a, "lgkmcnt", 15)

    def stamp(i, force=False):
        if cfg.bst and not force and i != 0:
            return
        if cfg.stamps and (cfg.probe is None or i in (0, cfg.probe)):
            a("%s s[22:23]" % ("s_memtime" if cfg.stamps == 2 else "s_memrealtime"))
            a("s_waitcnt lgkmcnt(0)")
            a("s_mov_b32 %s, s22" % sr(sSTAMP + i))

    def mfma32(d, x, y, c):
        a("v_mfma_f32_32x32x16_bf16 %s, %s, %s, %s" % (vr(d, 16), vr(x, 4), vr(y, 4), "0" if c is None else vr(c, 16)))

    def mfma16(d, x, y, c):
        a("v_mfma_f32_16x16x32_bf16 %s, %s, %s, %s" % (vr(d, 4), vr(x, 4), vr(y, 4), "0" if c is None else vr(c, 4)))

    def smf(d, x, y):
        a("v_smfmac_f32_32x32x32_bf16 %s, %s, %s, v3" % (vr(d, 16), vr(x, 4), vr(y, 8)))

    def bload(d, n, va, s, so, off=0, mod="", tag=None):
        op = {1: "dword", 2: "dwordx2", 4: "dwordx4"}[n]
        a("buffer_load_%s %s, %s, %s, %s offen offset:%d %s" % (op, vr(d, n), vr(va), srd(s), so, off, mod))
        vm.push(tag)

    def bstore(d, n, va, s, so, off=0, mod="", tag=None):
        op = {1: "dword", 2: "dwordx2", 4: "dwordx4"}[n]
        a("buffer_store_%s %s, %s, %s, %s offen offset:%d %s" % (op, vr(d, n), vr(va), srd(s), so, off, mod))
        vm.push(tag)

    def dma(va, s, so, off=0, tag=None):
        a("buffer_load_dwordx4 %s, %s, %s offen offset:%d lds" % (vr(va), srd(s), so, off))
        vm.push(tag)

    def dsr(op, d, n, va, off, tag=None):
        a("%s %s, %s offset:%d" % (op, vr(d, n), vr(va), off))
        lg.push(tag)

    def dsw(op, va, d, n, off, tag=None):
        a("%s %s, %s offset:%d" % (op, vr(va), vr(d, n), off))
        lg.push(tag)

    def trread(d, va, off, second, tag=None):
        dsr("ds_read_b64_tr_b16", d, 2, va, off, tag)
        dsr("ds_read_b64_tr_b16", d + 2, 2, va, off + second, tag)

    def set_flag(vt, soff):
        a("v_mov_b32 %s, %s" % (vr(vt), sr(sTAG)))
        a("s_mov_b64 exec, 1")
        bstore(vt, 1, 1, SWS, soff, 0, "sc0 sc1")
        a("s_mov_b64 exec, -1")

    stubs = []

    def check_flags(tag, vt, lanes, soff):
        a("v_cmp_ne_u32 vcc, %s, %s" % (sr(sTAG), vr(vt)))
        a("s_cbranch_vccnz L_poll_" + tag)
        a.label("L_polled_" + tag)
        stubs.append((tag, vt, lanes, soff))

    def flag_load(vt, shift, soff, tag):
        a("v_and_b32 %s, 31, v0" % vr(vt))
        a("v_lshlrev_b32 %s, %d, %s" % (vr(vt), shift, vr(vt)))
        bload(vt, 1, vt, SWS, soff, 0, "sc0 sc1", tag)

    sizes = {SX: 2048 * 1024, SWQ: 512 * 3072, SWS: WS_END, SW1: 512 * 2752, SB1: 2752,
             SWO: 512 * 1024, SW2: 1376 * 1024, SB2: 1024, SOUT: 2048 * 1024}
    RAW = 128

    def xloads():
        for j in range(8):
            bload(RAW + j * 4, 4, 14, SX, "s101", j * 128, "", ("x", j))

    stamp(0)
    a("""
    s_load_dwordx2 s[24:25], s[0:1], 0
    s_getpc_b64 s[72:73]
    L_pc:
    s_cmpk_ge_u32 s2, 256
    s_cbranch_scc1 L_end
    s_lshr_b32 s74, s2, 3
    s_lshl_b32 s74, s74, 11
    v_lshrrev_b32 v8, 5, v0
    v_lshl_add_u32 v8, v8, 7, s74
    v_min_u32 v8, L_code_end-L_pc, v8
    v_mov_b32 v9, 0
    v_lshl_add_u64 v[8:9], v[8:9], 0, s[72:73]
    global_load_dword v7, v[8:9], off
    s_lshl_b32 s72, s2, 4
    s_and_b32 s72, s72, 0x180
    v_add_u32 v4, s72, v0
    v_bfe_u32 v4, v4, 3, 6
    v_and_b32 v5, 7, v0
    v_lshlrev_b32 v14, 10, v4
    v_lshl_add_u32 v14, v5, 4, v14
    s_lshr_b32 s67, s2, 5
    s_and_b32 s73, s2, 6
    s_lshl2_add_u32 s62, s73, s67
    s_lshl_b32 s101, s62, 16
    s_mov_b32 s26, %d
    s_mov_b32 s27, 0x20000
    v_bfe_u32 v24, v4, 1, 3
    v_xor_b32 v24, v24, v5
    v_lshlrev_b32 v15, 7, v4
    v_lshl_add_u32 v15, v24, 4, v15
    v_readfirstlane_b32 s60, v0
    v_and_b32 v0, 63, v0
    v_and_b32 v26, 3, v0
    v_mov_b32 v29, 0
    s_lshr_b32 s60, s60, 6
    s_cmp_ge_u32 s60, 4
    s_waitcnt lgkmcnt(0)
    """ % sizes[SX])
    vm.push("pf")
    if cfg.bst == 3:
        stamp(1, True)
    xloads()
    if cfg.bst == 3:
        stamp(2, True)
    if cfg.stamps:
        for i in range(3 if cfg.bst == 3 else 1, 16):
            a("s_mov_b32 %s, s4" % sr(sSTAMP + i))
    a("s_mov_b32 s63, 1")
    a("s_cbranch_scc1 L_ln")
    a("s_mov_b32 s63, 0")

    def setup1():
        for s, off in ((SWQ, 8), (SWS, 80), (SW1, 32), (SB1, 40), (SWO, 16), (SW2, 48), (SB2, 56), (SOUT, 64)):
            a("s_load_dwordx2 %s, s[0:1], %d" % (sr(s, 2), off))
        a("""
        s_mov_b32 s30, %d
        s_mov_b32 s31, 0x20000
        s_bfe_u32 s72, s2, 0x20003
        s_and_b32 s73, s2, 1
        s_lshl2_add_u32 s61, s73, s72
        s_and_b32 s74, s60, 3
        s_lshl_b32 s72, s61, 7
        s_mul_i32 s85, s74, %d
        s_add_u32 s85, s85, s72
        s_mul_i32 s87, s74, 6144
        s_add_u32 s87, s87, %d
        v_lshrrev_b32 v4, 3, v0
        v_bfe_u32 v6, v4, 1, 1
        v_lshlrev_b32 v6, 2, v6
        v_xor_b32 v6, v6, v5
        v_lshlrev_b32 v6, 4, v6
        v_mul_u32_u24 v13, 3072, v4
        v_add_u32 v13, v13, v6
        v_xor_b32 v33, 16, v13
        s_waitcnt lgkmcnt(0)
        """ % (sizes[SWQ], 16 * 3072, L_RING))

    def setup_pf():
        for s in (SW1, SWO, SW2):
            a("s_mov_b32 %s, %d" % (sr(s + 2), sizes[s]))
            a("s_mov_b32 %s, 0x20000" % sr(s + 3))
        a("""
        s_and_b32 s73, s60, 3
        s_lshl2_add_u32 s100, s2, s73
        s_mul_i32 s100, s100, 1536
        v_min_u32 v31, 11, v0
        v_lshlrev_b32 v31, 7, v31
        """)

    def setup2():
        a("s_load_dword %s, %s, 0" % (sr(sTAG), sr(SWS, 2)))
        for s in (SWS, SB1, SB2, SOUT):
            a("s_mov_b32 %s, %d" % (sr(s + 2), sizes[s]))
            a("s_mov_b32 %s, 0x20000" % sr(s + 3))
        a("""
        s_bfe_u32 s72, s2, 0x20003
        s_and_b32 s73, s2, 7
        s_lshl2_add_u32 s66, s73, s72
        s_and_b32 s72, s72, 1
        s_lshl1_add_u32 s64, s73, s72
        s_lshr_b32 s65, s2, 4
        s_mul_i32 s69, s61, 6
        s_mul_i32 s73, s61, 5
        s_add_u32 s73, s73, 3
        s_min_u32 s69, s69, s73
        s_mov_b32 s70, 0xffff
        s_mov_b32 s71, 0xffff
        v_lshlrev_b32 v1, 4, v0
        v_and_b32 v2, 15, v0
        v_lshrrev_b32 v3, 5, v0
        v_lshl_add_u32 v2, v3, 4, v2
        v_lshlrev_b32 v2, 4, v2
        """)

    def setup3():
        a("; attention offsets: s82 = next K/V tile, s83 = head base, s92-s95 = Q tiles, s96-s99 = O partial slots")
        a("""
        s_and_b32 s74, s60, 1
        s_lshr_b32 s75, s60, 1
        s_lshl1_add_u32 s72, s64, s74
        s_lshl_b32 s83, s72, 17
        s_add_u32 s83, s83, %d
        s_and_b32 s73, s75, 1
        s_lshl_b32 s73, s73, 16
        s_add_u32 s82, s83, s73
        s_lshl_b32 s72, s65, 6
        s_add_u32 s72, s72, s64
        s_lshl1_add_u32 s72, s72, s74
        s_lshl_b32 s72, s72, 10
        s_add_u32 s72, s72, %d
        s_mul_i32 s84, s74, %d
        s_add_u32 s84, s84, %d
        """ % (WS_KV, WS_QO, 12 * 2304, L_OPART))
        for t in range(4):
            a("s_xor_b32 s73, s75, %d" % (t ^ 3))
            a("s_mul_i32 %s, s73, %d" % (sr(96 + t), 3 * 2304))
            a("s_lshl_b32 s73, s73, 15")
            a("s_add_u32 %s, s72, s73" % sr(92 + t))
            a("s_add_u32 %s, %s, s84" % (sr(96 + t), sr(96 + t)))

    setup1()
    setup_pf()
    setup2()
    a("s_and_b32 s74, s60, 1")
    a("s_lshr_b32 s75, s60, 1")
    a("""
    v_bfe_u32 v9, v0, 4, 1
    v_and_b32 v16, 15, v0
    v_lshlrev_b32 v8, 4, v16
    v_lshl_add_u32 v8, v9, 9, v8
    v_lshl_add_u32 v11, v3, 17, v8
    v_lshl_add_u32 v14, v3, 10, v8
    v_lshl_add_u32 v127, v3, 16, v8
    v_lshrrev_b32 v17, 4, v0
    v_bfe_u32 v8, v0, 3, 1
    v_lshlrev_b32 v12, 4, v5
    v_lshl_add_u32 v12, v17, 8, v12
    v_lshl_add_u32 v12, v8, 17, v12
    v_lshrrev_b32 v8, 1, v16
    v_xor_b32 v8, v8, v17
    v_lshlrev_b32 v16, 7, v16
    v_lshl_add_u32 v16, v8, 4, v16
    s_lshl_b32 s72, s74, 12
    v_add_u32 v16, s72, v16
    v_xor_b32 v17, 64, v16
    v_lshl_add_u32 v4, v4, 10, v6
    v_bfe_u32 v10, v0, 2, 2
    v_lshrrev_b32 v6, 1, v10
    v_xor_b32 v8, s75, v6
    v_and_b32 v18, 2, v0
    v_lshl_add_u32 v8, v8, 2, v18
    v_add_u32 v8, v8, v9
    v_lshlrev_b32 v8, 1, v8
    v_and_or_b32 v8, v0, 1, v8
    v_lshlrev_b32 v8, 3, v8
    v_lshl_add_u32 v8, v10, 7, v8
    v_lshl_add_u32 v8, v9, 10, v8
    v_mul_u32_u24 v18, 6144, v3
    v_add_u32 v8, v8, v18
    v_add_u32 v8, %d, v8
    v_xor_b32 v18, 16, v8
    v_add_u32 v19, %d, v18
    v_lshlrev_b32 v5, 5, v9
    v_lshl_add_u32 v5, v10, 7, v5
    v_and_b32 v10, 3, v0
    v_lshl_add_u32 v5, v10, 3, v5
    v_lshl_add_u32 v5, v3, 9, v5
    v_lshl_add_u32 v5, v6, 6, v5
    v_lshrrev_b32 v10, 1, v0
    v_xor_b32 v10, v10, v0
    v_and_b32 v10, 1, v10
    v_mul_u32_u24 v10, 24, v10
    v_xor_b32 v5, v5, v10
    s_mul_i32 s84, s60, %d
    s_add_u32 s84, s84, %d
    v_add_u32 v5, s84, v5
    v_xor_b32 v6, 64, v5
    v_lshlrev_b32 v10, 3, v9
    v_lshl_add_u32 v10, v3, 5, v10
    v_xor_b32 v9, 16, v19
    v_mov_b32 v3, 0xdddddddd
    """ % (L_RING, 2 * 24576, W2_REGION, L_W2))

    def setup_a():
        setup3()
        a("s_add_u32 s82, s82, %d" % (nB * 2048))
        a("s_mul_i32 s84, s60, %d" % W2_REGION)
        a("s_add_u32 s84, s84, %d" % L_W2)
        a("""
        s_lshl1_add_u32 s72, s62, s74
        s_lshl1_add_u32 s73, s61, s75
        s_lshl_b32 s76, s73, 7
        s_add_u32 s76, s76, s72
        s_lshl_b32 s77, s76, 11
        s_lshl4_add_u32 s76, s72, s73
        s_lshl_b32 s76, s76, 11
        s_add_u32 s76, s76, %d
        s_add_u32 s77, s77, %d
        s_add_u32 s81, s69, s75
        s_lshl_b32 s78, s81, 7
        s_add_u32 s78, s78, s72
        s_lshl_b32 s78, s78, 10
        s_add_u32 s78, s78, %d
        s_lshl_b32 s79, s61, 6
        s_add_u32 s79, s79, s62
        s_lshl_b32 s79, s79, 4
        s_add_u32 s79, s79, %d
        s_lshl_b32 s80, s62, 3
        s_add_u32 s80, s80, s61
        s_lshl2_add_u32 s80, s80, s60
        s_lshl_b32 s80, s80, FSH
        s_add_u32 s80, s80, %d
        s_mul_i32 s73, s61, s75
        s_add_u32 s88, s78, %d
        s_cmp_lt_u32 s73, 3
        s_cselect_b32 s88, s88, 0x40000000
        s_lshl_b32 s81, s81, 6
        """ % (WS_QO, WS_KV, WS_HF, WS_FLAGQ, WS_FLAGH, 8 * 65536))

    if not cfg.salate:
        setup_a()

    def slot_of(c):
        if not cfg.xslot or c < cfg.xslot:
            return (c & 3) * 24576
        return -L_RING if c == cfg.xslot else ((c - 1) & 3) * 24576

    skip_bar = (10,) if cfg.xslot else ()

    def issue_chunk(c):
        if cfg.rot:
            a("s_xor_b32 s73, s67, %d" % (c & 7))
            a("s_mul_i32 s73, s73, %d" % (64 * (3072 if c < 8 else 2752)))
            a("s_add_u32 s73, s73, %s" % ("s85" if c < 8 else "s80"))
        for m in range(6):
            blk, seg = divmod(m, 3)
            a("s_add_u32 m0, s87, %d" % (slot_of(c) + seg * 2048 + blk * 1024))
            if c < 8:
                a("s_add_u32 s72, %s, %d" % (("s73", blk * 8 * 3072 + seg * 1024) if cfg.rot else ("s85", (c * 64 + blk * 8) * 3072 + seg * 1024)))
                dma(33 if blk else 13, SWQ, "s72", 0, ("w", c))
            else:
                a("s_add_u32 s72, %s, %d" % (("s73", blk * 8 * 2752 + seg * 128) if cfg.rot else ("s80", ((c - 8) * 64 + blk * 8) * 2752 + seg * 128)))
                dma(56 + (seg == 2) + 2 * blk, SW1, "s72", 0, ("w", c))

    def layernorm(acts):
        def act(p):
            if acts.get(p):
                assert p >= 7
                a("s_cmp_eq_u32 s63, 1")
                a("s_cbranch_scc1 L_ln_%d" % p)
                for f in acts[p]:
                    f()
                a.label("L_ln_%d" % p)
        a.label("L_ln")
        a("""
        v_mov_b32 v232, 0x3f803f80
        v_mov_b32 v233, 0x3f803f80
        v_lshlrev_b32 v26, 4, v26
        v_mov_b32 v28, 0xffff
        v_lshlrev_b64 v[28:29], v26, v[28:29]
        """)
        a("s_mov_b32 s89, 0xffff0000")
        if cfg.rot:
            a("; K chunks are visited in the order c ^ (row block & 7): workgroups sharing weights fetch different chunks first")
            a("s_lshl_b32 s72, s67, 13")
            a("v_or_b32 v15, s72, v15")

        def xwrite(j):
            if cfg.rot:
                a("v_xor_b32 v23, 0x%x, v15" % (j << 13))
                a("ds_write_b128 v23, %s" % vr(RAW + j * 4, 4))
            else:
                a("ds_write_b128 v15, %s offset:%d" % (vr(RAW + j * 4, 4), j * 8192))

        def m4(d, x, y, c):
            a("v_mfma_f32_4x4x4_16b_bf16 %s, %s, %s, %s" % (vr(d, 4), vr(x, 2), vr(y, 2), "0" if c is None else vr(c, 4)))

        S, GM, T, CN, AH = 208, 216, 192, 224, 228
        for j in range(8):
            vm.wait(("x", j))
            if cfg.bst == 3 and j in (0, 3, 7):
                stamp({0: 4, 3: 5, 7: 6}[j], True)
            if j == 7:
                act(7)
            for h in range(2):
                x = RAW + j * 4 + 2 * h
                m4(S + 4 * h, 232, x, S + 4 * h if j else None)
                m4(GM + 4 * h, x, x, GM + 4 * h if j else None)
        act(8)
        stamp(1)
        a("v_add_f32 v24, %s, %s" % (vr(S), vr(S + 4)))
        for r in range(4):
            a("v_add_f32 %s, %s, %s" % (vr(GM + r), vr(GM + r), vr(GM + 4 + r)))
        dpp = "row_mask:0xf bank_mask:0xf"
        a("v_add_f32_dpp v24, v24, v24 quad_perm:[1,0,3,2] " + dpp)
        a("v_mov_b32_dpp v25, %s quad_perm:[0,0,0,0] %s" % (vr(GM), dpp))
        a("v_add_f32_dpp v25, %s, v25 quad_perm:[1,1,1,1] %s" % (vr(GM + 1), dpp))
        a("v_add_f32_dpp v24, v24, v24 quad_perm:[2,3,0,1] " + dpp)
        a("v_add_f32_dpp v25, %s, v25 quad_perm:[2,2,2,2] %s" % (vr(GM + 2), dpp))
        a("v_add_f32_dpp v25, %s, v25 quad_perm:[3,3,3,3] %s" % (vr(GM + 3), dpp))
        a("v_add_f32_dpp v24, v24, v24 row_half_mirror " + dpp)
        a("v_add_f32_dpp v25, v25, v25 row_half_mirror " + dpp)
        a("""
        v_mul_f32 v24, 0x3b000000, v24
        v_mul_f32 v25, 0x3b000000, v25
        v_fma_f32 v25, -v24, v24, v25
        v_max_f32 v25, 0, v25
        v_cvt_pk_bf16_f32 v24, v24, v25
        v_and_b32 v25, s89, v24
        v_add_f32 v25, 0x3727c5ac, v25
        v_cvt_pk_bf16_f32 v25, v25, v25
        v_and_b32 v25, s89, v25
        v_sqrt_f32 v25, v25
        v_lshlrev_b32 v24, 16, v24
        v_cvt_pk_bf16_f32 v25, v25, v25
        v_and_b32 v25, s89, v25
        v_rcp_f32 v26, v25
        v_cvt_pk_bf16_f32 v27, v26, v26
        v_and_b32 v25, s89, v27
        v_sub_f32 v25, v26, v25
        v_cvt_pk_bf16_f32 v25, v25, v25
        v_and_b32 v228, v27, v28
        v_and_b32 v229, v27, v29
        v_and_b32 v230, v25, v28
        v_and_b32 v231, v25, v29
        """)
        for r in range(4):
            a("v_mul_f32_e64 %s, -v24, v26" % vr(CN + r))

        def finish(j, q):
            t = T + 8 * (j & 1)
            a("v_cvt_pk_bf16_f32 %s, %s, %s" % (vr(RAW + 4 * j + q), vr(t + 2 * q), vr(t + 2 * q + 1)))
            if q == 3:
                xwrite(j)

        for j in range(9):
            for q in range(4):
                if j < 8:
                    t = T + 8 * (j & 1) + 4 * (q & 1)
                    m4(t, AH + 2 * (q >> 1), RAW + 4 * j + 2 * (q & 1), CN if q < 2 else t)
                if j:
                    finish(j - 1, q)
        if cfg.bst == 3:
            stamp(7, True)
        act(9)
        act(10)
        stamp(2)
        if cfg.bst == 3:
            stamp(8, True)

    def pfq():
        a("; memory-side prefetch of Wqkv")
        bload(7, 1, 31, SWQ, "s100", 0, "", "pf")

    def pfl2(which):
        a("; the die's workgroups pull their half of the weight columns into L2 together, four rows per wave")
        stride = 3072 if which == SWQ else 2752
        a("s_lshr_b32 s72, s2, 3")
        a("s_and_b32 s73, s60, 3")
        a("s_lshl2_add_u32 s72, s72, s73")
        a("s_mul_i32 s72, s72, %d" % (4 * stride))
        a("s_and_b32 s73, s2, 1")
        a("s_mul_i32 s73, s73, %d" % (512 if which == SWQ else 1472))
        a("s_add_u32 s72, s72, s73")
        a("v_lshrrev_b32 v20, 4, v0")
        a("v_mul_u32_u24 v20, %d, v20" % stride)
        if which == SWQ:
            a("v_bfe_u32 v21, v0, 2, 2")
            a("v_min_u32 v21, 2, v21")
            a("v_lshl_add_u32 v20, v21, 10, v20")
            a("v_and_b32 v21, 3, v0")
            a("v_lshl_add_u32 v20, v21, 7, v20")
        else:
            a("v_and_b32 v21, 15, v0")
            a("v_lshlrev_b32 v21, 7, v21")
            a("v_min_u32 v21, 1468, v21")
            a("v_add_u32 v20, v20, v21")
        bload(22, 1, 20, which, "s72", 0, "", "pf")

    def pfc(which):
        a("; lines at offset 384 of every KiB stream slowly on a miss: the die's workgroups pull them into L2 together")
        a("s_lshr_b32 s72, s2, 3")
        a("s_lshl2_add_u32 s72, s72, s60")
        a("s_mul_i32 s72, s72, 12288")
        a("v_lshlrev_b32 v20, 3, v31")
        if which == SWQ:
            a("s_bitcmp1_b32 s2, 0")
            a("s_cselect_b32 s72, 0x40000000, s72")
        bload(7, 1, 20, which, "s72", 384, "", "pf")

    def pf1():
        a("; memory-side prefetch of W1")
        bload(7 if cfg.pf1_at <= 10 else 32, 1, 31, SW1, "s100", 0, "", "pf")

    acts = {}
    if cfg.pfc_at == 0:
        save = list(vm.items)
        pfc(SWQ)
        vm.items = save
    elif cfg.pfc_at <= 10:
        acts.setdefault(cfg.pfc_at, []).append(lambda: pfc(SWQ))
    if cfg.pfq_at == 0:
        save = list(vm.items)
        pfq()
        vm.items = save
    elif cfg.pfq_at <= 10:
        acts.setdefault(cfg.pfq_at, []).append(pfq)
    if cfg.l2q == 0:
        save = list(vm.items)
        pfl2(SWQ)
        vm.items = save
    if cfg.l2q == 7:
        acts.setdefault(7, []).append(lambda: pfl2(SWQ))
    for c, p in enumerate((cfg.w0_at, cfg.w1_at, cfg.w2_at, 10)[:cfg.lead + 1]):
        acts.setdefault(p, []).append(lambda c=c: issue_chunk(c))
    if 8 <= cfg.l2q <= 10:
        acts.setdefault(cfg.l2q, []).insert(0, lambda: pfl2(SWQ))
    if cfg.pf1_at <= 10:
        acts.setdefault(cfg.pf1_at, []).append(pf1)
    if cfg.pfc1:
        acts.setdefault(10, []).append(lambda: pfc(SW1))
    if cfg.salate:
        acts.setdefault(10, []).insert(0, setup_a)
    layernorm(acts)
    a("s_cmp_eq_u32 s63, 1")
    a("s_cbranch_scc1 L_loader")

    QR, SB, WF, FA, OA, KV, HB = 8, 24, 56, 64, 128, 192, 228
    NKV = 3

    def att_init_ops():
        ops = ["v_mov_b32 %s, 0" % vr(OA + 16 * t + i) for t in range(4) for i in range(16 if cfg.zall else 9)]
        ops2 = ["v_and_b32 v7, 27, v0", "v_cmp_eq_u32 vcc, 16, v7", "v_mov_b32 v7, 0x3f803f80", "v_cndmask_b32 v7, 0, v7, vcc"]
        ops2 += ["v_mov_b32 %s, v7" % vr(KV + 12 * b + 4 + q) for b in range(NKV) for q in range(8)]
        return ops, ops2

    def kvload(j):
        b = j % NKV
        bload(KV + 12 * b, 4, 252, SWS, "s82", 0, "sc1", ("kv", j))
        a("s_mov_b64 exec, %s" % sr(sVM, 2))
        bload(KV + 12 * b + 4, 4, 2, SWS, "s82", 1024, "sc1", ("kv", j))
        bload(KV + 12 * b + 8, 4, 2, SWS, "s82", 1536, "sc1", ("kv", j))
        a("s_mov_b64 exec, -1")
        a("s_add_u32 s82, s82, 2048")

    def att_loads(role):
        a("; key slot 8a+4b+c holds token 16b+4a+c, matching the order of the V fragments")
        a("v_and_b32 v252, 0x230, v1")
        a("v_and_b32 v253, 0x180, v1")
        a("v_lshrrev_b32 v253, 1, v253")
        a("v_and_b32 v254, 64, v1")
        a("v_lshlrev_b32 v254, 2, v254")
        a("v_or3_b32 v252, v252, v253, v254")
        bload(QR, 4, 1, SWS, "s92", 0, "sc1", "q")
        kvload(0)
        for t in range(1, 4):
            bload(QR + 4 * t, 4, 1, SWS, sr(92 + t), 0, "sc1", "q")
        kvload(1)
        if cfg.kv3 and role == "a":
            kvload(2)

    def dump_addr():
        a("v_lshlrev_b32 v8, 2, v0")
        a("v_add_u32 v9, s99, v1")
        a("v_add_u32 v10, s99, v8")
        a("v_bfe_u32 v11, v0, 4, 1")
        a("v_lshl_add_u32 v11, v11, 10, v2")

    def dump(t):
        a("v_add_u32 v12, %s, v1" % sr(96 + t))
        a("v_add_u32 v13, %s, v8" % sr(96 + t))
        dsw("ds_write_b128", 12, OA + 16 * t, 4, t * 2304)
        dsw("ds_write_b128", 12, OA + 16 * t + 4, 4, t * 2304 + 1024)
        dsw("ds_write_b32", 13, OA + 16 * t + 8, 1, t * 2304 + 2048)

    deferred = []
    cfg_gap = {0: range(16), 1: (1, 10), 2: (0, 9), 3: (4, 10), 4: (1,), 5: (4,), 6: (15, 9)}[cfg.gap]

    def att_run(n, hooks):
        hooks.setdefault((n - 1, 0, 11), []).append(dump_addr)
        for t in range(3):
            hooks.setdefault((n - 1, t + 1, 12), []).append(lambda t=t: dump(t))
        vm.wait("q", ("kv", 0))
        mfma32(SB, KV, QR, None)
        for j in range(n):
            b = j % NKV
            for t in range(4):
                cur, oth = SB + 16 * (t & 1), SB + 16 * ((t + 1) & 1)
                for i in range(16):
                    a("v_exp_f32 %s, %s" % (vr(cur + i), vr(cur + i)))
                    if i in cfg_gap:
                        while deferred:
                            deferred.pop(0)()
                    if t == cfg.kvt and i == cfg.kvi and j + NKV - 1 < n and not (cfg.abl & 32 and j > 0) and not (cfg.kv3 and j == 0):
                        kvload(j + NKV - 1)
                    if i == 1 and (j, t) != (0, 0):
                        smf(OA + 16 * ((t + 3) & 3), KV + 12 * (b if t else (j - 1) % NKV) + 8, oth + 8)
                    if i == 4:
                        if t < 3:
                            mfma32(oth, KV + 12 * b, QR + 4 * (t + 1), None)
                        elif j + 1 < n:
                            vm.wait(("kv", j + 1))
                            mfma32(oth, KV + 12 * ((j + 1) % NKV), QR, None)
                    if i == 10:
                        smf(OA + 16 * t, KV + 12 * b + 4, cur)
                    for h in hooks.get((j, t, i), ()):
                        h()
        smf(OA + 48, KV + 12 * ((n - 1) % NKV) + 8, SB + 16 + 8)

    ACC = (24, 40, 56)
    WB, NBUF, LA = 72, 6, cfg.look
    XF, PK, XA = 128, 96, 16
    init1, init2 = att_init_ops()

    def item(g):
        kk, m = divmod(g % 96, 6)
        return kk, m >> 1, m & 1

    def reads(g, part=None):
        kk, seg, ab = item(g)
        so = slot_of(g // 12)
        base = (8, 18)[ab] + so // 49152
        off = so % 49152 + (kk & 1) * 12288 + seg * 2048
        for h in range(2):
            if part in (None, h):
                if g < 96 and seg == 0 and ab == 0:
                    dsr("ds_read_b128", XF + 8 * kk + 4 * h, 4, XA + (kk & 1), (kk >> 1) * 8192 + h * 2048, g)
                dsr("ds_read_b64_tr_b16", WB + 4 * (g % NBUF) + 2 * h, 2, base, off + 512 * h, g)

    def pack(acc, pk):
        return ["v_cvt_pk_bf16_f32 %s, %s, %s" % (vr(pk + q), vr(acc + 2 * q), vr(acc + 2 * q + 1)) for q in range(8)]

    def st2(pk, va, base, delta, tag, imm=(0, 0), vb=None):
        def first():
            bstore(pk, 4, va, SWS, base, imm[0], "" if cfg.abl & 64 else "sc1", tag)

        def second():
            if delta:
                a("s_add_u32 s72, %s, %d" % (base, delta))
            bstore(pk + 4, 4, vb or va, SWS, "s72" if delta else base, imm[1], "" if cfg.abl & 64 else "sc1", tag)
        return [first, second]

    def relu2(acc):
        return (["v_max_f32 %s, 0, %s" % (vr(acc + i), vr(acc + i)) for i in range(16)]
                + ["v_mul_f32 %s, %s, %s" % (vr(acc + i), vr(acc + i), vr(acc + i)) for i in range(16)])

    def bias(seg):
        ops = [lambda: vm.wait("b1")]
        for q in range(4):
            ops.append("v_lshlrev_b32 %s, 16, %s" % (vr(ACC[seg] + 2 * q), vr(112 + 4 * seg + q)))
            ops.append("v_and_b32 %s, s89, %s" % (vr(ACC[seg] + 2 * q + 1), vr(112 + 4 * seg + q)))
        return ops

    tagq = ["v_or_b32 %s, 1, %s" % (vr(PK + 4 * q), vr(PK + 4 * q)) for q in range(2)]
    qkv_epi = (["v_mul_f32 %s, 0x%x, %s" % (vr(ACC[0] + i), QSCALE, vr(ACC[0] + i)) for i in range(16)]
               + pack(ACC[0], PK) + tagq + st2(PK, 14, "s76", 0, "st", (0, 256))
               + pack(ACC[1], PK + 8) + st2(PK + 8, 11, "s77", 0, "st", (0, 256))
               + pack(ACC[2], PK) + st2(PK, 12, "s77", 0, "st", (1024, 1152))
               + bias(0) + bias(1) + bias(2))
    sched = {144: init1, 174: init2}
    if cfg.zall:
        sched = {108 + 12 * t: init1[16 * t:16 * t + 16] for t in range(4)}
        sched[174] = init2
    shadow = []

    def run_shadow(budget):
        while shadow and budget > 0:
            op = shadow.pop(0)
            if isinstance(op, str):
                a(op)
                budget -= 1
            else:
                op()
                budget -= 3

    a("""
    s_lshl_b32 s85, s60, 14
    s_lshl_b32 s72, s67, 7
    s_add_u32 s85, s85, s72
    s_lshl_b32 s86, s60, 6
    s_lshl1_add_u32 s86, s66, s86
    s_lshl_b32 s86, s86, 10
    s_add_u32 s86, s86, %d
    s_lshl_b32 s87, s66, FROW
    s_add_u32 s87, s87, %d
    """ % (WS_HF, WS_FLAGH))
    vm.wait(("w", 0))
    a("s_waitcnt lgkmcnt(0)")
    a("s_add_u32 %s, %s, 0x%x" % (sr(sTAG), sr(sTAG), EPOCH_INC))
    if cfg.bst == 3:
        stamp(9, True)
    a("s_barrier")
    stamp(3)
    if cfg.bst == 3:
        stamp(10, True)
    for g in range(LA):
        reads(g)
    for g in range(192):
        kk, seg, ab = item(g)
        if g == 96:
            stamp(4)
            shadow.extend(qkv_epi)
            run_shadow(1000)
            stamp(5)
            a("s_barrier")
            for n in range(96, 96 + LA):
                reads(n)
        lg.wait(*range(g, g - g % cfg.wgrp + cfg.wgrp))
        w = WB + 4 * (g % NBUF)
        n = g + LA
        more = n < 192 and not g < 96 <= n
        shadow.extend(sched.get(g, ()))
        for h, t in enumerate((1, 0)):
            x = XF + 8 * kk + 4 * t
            if g < 96 and seg == 2:
                d = ACC[seg] + 8 * ab + 4 * t
                mfma16(d, x, w, None if kk == 0 else d)
            else:
                d = ACC[seg] + 8 * t + 4 * ab
                mfma16(d, w, x, d if kk else (None if g < 96 else ACC[seg] + 4 * ab))
            if more and h == 0 and n % 12 == 0:
                vm.wait(("w", n // 12))
                if n // 12 == cfg.flag_chunk:
                    vm.wait("st")
                a("s_barrier")
                if n // 12 == cfg.flag_chunk:
                    a("s_cmp_lg_u32 s60, 0")
                    a("s_cselect_b32 s79, 0x40000000, s79")
                    set_flag(7, "s79")
                    stamp(6)
            if more:
                reads(n, h)
            run_shadow(1 if more else 2)
        if g == 40:
            for q in range(6):
                bload(112 + 2 * q, 2, 10, SB1, "s81", (q >> 1) * 128 + (q & 1) * 16, "", "b1")
    run_shadow(1000)
    stamp(7)
    hmath, hst = [], []
    for seg in range(3):
        pk = PK + 8 * seg
        hmath.append(relu2(ACC[seg]) + pack(ACC[seg], pk))
        hst.append((["s_add_u32 s78, s78, 0x40000"] if seg == 1 else []) + st2(pk, 127, "s78" if seg < 2 else "s88", 0, "hst", (0, 256)))
    for seg in range(cfg.hbar):
        shadow.extend(hmath[seg])
    run_shadow(1000)
    a("s_barrier")
    stamp(8)
    if cfg.bst == 4:
        stamp(1, True)
    a("s_setprio 2")
    for seg in range(cfg.hbar, cfg.hpre):
        shadow.extend(hmath[seg])
    run_shadow(1000)
    att_loads("a")
    hlist = [[hst[0][0]], [hst[0][1]], hst[1][:2], [hst[1][2]], [hst[2][0]], [hst[2][1]]]
    for seg in range(3):
        shadow.extend(hmath[seg] if seg >= max(cfg.hpre, cfg.hbar) else [])
        for n in (2 * seg, 2 * seg + 1):
            if n < cfg.hnow:
                shadow.extend(hlist[n])
    run_shadow(1000)
    stamp(9)


    def w2dma(i):
        if cfg.abl & 1:
            return
        a("s_add_u32 m0, s84, %d" % ((i & 3) * 2048))
        a("s_add_u32 s72, s85, %d" % (i * 65536))
        dma(4, SW2, "s72", 0, ("w2", i))
        a("s_add_u32 s72, s72, 7168")
        dma(4, SW2, "s72", 1024, ("w2", i))

    hreg = lambda i, tt: HB + 8 * (i % 3) + 4 * tt

    def hload(i):
        if cfg.abl & 1:
            return
        if i > 0:
            a("s_add_u32 s86, s86, 0x40000")
        for tt in range(2):
            bload(hreg(i, tt), 4, 1, SWS, "s86", tt * 1024, "sc1", ("h", i))

    def w2read(i, nt):
        if cfg.abl & 2:
            return
        vm.wait(("w2", i))
        trread(WF + 4 * nt, 5 + nt, (i & 3) * 2048, 1024, ("wf", i, nt))

    def fslot(f):
        i, m = divmod(f, 4)
        nt, tt = ((0, 0), (0, 1), (1, 1), (1, 0))[m]
        vm.wait(("h", i))
        lg.wait(("wf", i, nt))
        d = FA + 16 * (2 * tt + nt)
        if not cfg.abl & 4:
            mfma32(d, WF + 4 * nt, hreg(i, tt), None if i == 0 else d)
        if m == 1 and i + 1 < NS:
            deferred.append(lambda: w2read(i + 1, 0))
        if m == cfg.dmam and i + 4 < NS:
            deferred.append(lambda: w2dma(i + 4))
        if m == 3:
            if i + 1 < NS:
                deferred.append(lambda: w2read(i + 1, 1))
            if i + 3 < NS:
                deferred.append(lambda: hload(i + 3))

    def park(tt, nt):
        d = FA + 16 * (2 * tt + nt)
        for q in range(8):
            a("v_cvt_pk_bf16_f32 %s, %s, %s" % (vr(d + q), vr(d + 2 * q), vr(d + 2 * q + 1)))
        for q in range(2):
            dsw("ds_write_b128", 4, d + 4 * q, 4, tt * 32 * PART_STRIDE + nt * 64 + q * 32)

    def park_addr():
        a("v_and_b32 v4, 31, v0")
        a("v_mul_u32_u24 v4, %d, v4" % PART_STRIDE)
        a("v_lshrrev_b32 v5, 5, v0")
        a("v_lshl_add_u32 v4, v5, 4, v4")
        a("v_add_u32 v4, s84, v4")

    hooks = {}

    def hook(j, t, i, f):
        hooks.setdefault((j, t, i), []).append(f)

    n1 = cfg.n1
    for n in range(cfg.hnow, 6):
        tl = (n - cfg.hnow) * cfg.hgap + cfg.hoff
        hook(tl >> 2, tl & 3, 9, lambda n=n: (shadow.extend(hlist[n]), run_shadow(1000)))
    assert (5 - cfg.hnow) * cfg.hgap + cfg.hoff <= cfg.hflag < 4 * (n1 - 2)
    hook(cfg.hflag >> 2, cfg.hflag & 3, 12, lambda: (vm.wait("hst"), set_flag(7, "s80"), stamp(1) if cfg.hst else None))
    hook(n1 - 2, 0, 8, lambda: flag_load(7, cfg.fsh, "s87", "hf"))
    hook(n1 - 2, 3, 12, lambda: (vm.wait("hf"), stamp(2) if cfg.hst else None, check_flags("h", 7, cfg.fsh, "s87"), stamp(3) if cfg.hst else None))
    for i in range(4):
        hook(n1 - 3 + (i >> 1), 1 + (i & 1), 7, lambda i=i: w2dma(i))
    for i in range(3):
        hook(n1 - 1, i, 7, lambda i=i: hload(i))
    hook(n1 - 1, 3, 7, lambda: (w2read(0, 0), w2read(0, 1)))
    pat = [int(ch) for ch in str(cfg.fpat)]
    slots = [(j, t, pos) for j in range(n1, nA) for t in range(4) for pos in ((13,), (7, 13))[pat[t] - 1]]
    for f in range(4 * NS):
        hook(*slots[f], lambda f=f: fslot(f))
    tl = slots[4 * NS - 1][0] * 4 + slots[4 * NS - 1][1] + 1
    assert tl + 3 < 4 * nA
    hook(tl >> 2, tl & 3, 6, park_addr)
    for n, (nt, tt) in enumerate(((0, 0), (0, 1), (1, 1), (1, 0))):
        hook((tl + n) >> 2, (tl + n) & 3, 7, lambda tt=tt, nt=nt: park(tt, nt))
    if cfg.hst:
        for n in range(4):
            hook(n1 + 4 * n, 0, 1, lambda n=n: stamp(4 + n))
    if cfg.alow:
        tl = 4 * nA - cfg.alow
        hook(tl >> 2, tl & 3, 0, lambda: a("s_setprio 0"))
    if cfg.bst == 4:
        for n, j in enumerate(range(0, nA, 2)):
            hook(j, 0, 0, lambda n=n: stamp(2 + n, True))
    att_run(nA, hooks)
    vm.drain()
    a("s_branch L_att_done")

    a.label("L_loader")
    vm.items = []
    lg.items = []

    def b_setup():
        a("; waves 4-7: W1 DMA offsets v56/v57 (sixth tile out of range where the next group owns it), wo DMA offset v4, flagQ row s79")
        a("""
        v_mul_u32_u24 v56, 2752, v4
        v_add_u32 v56, v56, v6
        s_lshr_b32 s72, 0xf8, s61
        s_and_b32 s72, s72, 1
        s_lshl_b32 s72, s72, 23
        v_and_b32 v57, 64, v6
        v_mad_u32_u24 v57, v57, s72, v56
        v_xor_b32 v58, 16, v56
        v_xor_b32 v59, 16, v57
        v_bfe_u32 v6, v4, 1, 2
        v_lshlrev_b32 v6, 1, v6
        v_xor_b32 v6, v6, v5
        v_lshlrev_b32 v6, 4, v6
        v_lshl_add_u32 v4, v4, 10, v6
        v_min_u32 v5, %d, v0
        v_lshlrev_b32 v5, 7, v5
        s_lshr_b32 s79, s64, 1
        s_lshl_b32 s79, s79, 10
        s_add_u32 s79, s79, %d
        s_and_b32 s73, s60, 3
        s_lshl_b32 s72, s69, 6
        s_mul_i32 s80, s73, %d
        s_add_u32 s80, s80, s72
        """ % (cfg.pfn - 1, WS_FLAGQ, 16 * 2752))

        a("v_mov_b32 v3, 0xdddddddd")

    issued = cfg.lead
    setup1()
    state = {"issued": issued}

    def b_step(c):
        if c in skip_bar:
            return
        vm.wait(("w", c + 1 if c + 1 in skip_bar else c))
        if cfg.bst == 2:
            stamp(c, True)
        if cfg.bst == 3 and c == 0:
            stamp(9, True)
        a("s_barrier")
        if cfg.bst == 1:
            stamp(c, True)
        if c in (0, 8, 12, 15):
            stamp({0: 3, 8: 4, 12: 5, 15: 6}[c])
        if c == cfg.bload - 1:
            flag_load(7, 4, "s79", "qf")
        if c == cfg.bload:
            vm.wait("qf")
            check_flags("q", 7, 4, "s79")
            stamp(7)
            att_loads("b")
        lim = c + 2
        if c < 8:
            lim = min(lim, cfg.hold)
        if cfg.split and c == 8:
            lim = 10 + cfg.split - 1
        if cfg.xslot == 12 and c == 9:
            lim = 12
        if cfg.xslot == 11 and c in (8, 9):
            lim = c + 3
        if cfg.xslot and c >= 11:
            lim = c + cfg.xrun
        while state["issued"] < min(15, max(3, lim)):
            state["issued"] += 1
            issue_chunk(state["issued"])
        if c == 0:
            setup_pf()
        if c == cfg.sA:
            setup2()
        if cfg.pf1_at == 12 + c:
            pf1()
        if c == cfg.sB:
            b_setup()
        if c == cfg.sC:
            setup3()
        if c == cfg.l2w:
            pfl2(SW1)
        if c == cfg.pfe:
            a("; memory-side prefetch of w2 and wo")
            bload(32, 1, 31, SW2, "s100", 0, "", "pf")
            bload(32, 1, 31, SWO, "s100", 0, "", "pf")
        if c == cfg.sC:
            for op in init1 + init2:
                a(op)
        if c == 7:
            a("s_waitcnt lgkmcnt(0)")
            a("s_add_u32 %s, %s, 0x%x" % (sr(sTAG), sr(sTAG), EPOCH_INC))

    def b_att():
        a("s_barrier")
        stamp(8)
        a("s_setprio 1")
        if cfg.kv3:
            kvload(2)

    bhooks = {}
    for c in range(17):
        f = (lambda c=c: b_step(c)) if c < 16 else b_att
        if c <= cfg.bjoin:
            f()
        else:
            tl = (c - cfg.bjoin) * cfg.btile - 1
            bhooks[(tl >> 2, tl & 3, 13)] = [f]

    def wo_dma(lo, hi):
        if cfg.abl & 8:
            return
        if lo == 0:
            a("; wo tile -> LDS [0, 64K), a few rows per score tile")
            a("s_and_b32 s78, s60, 3")
            a("s_lshl_b32 s76, s78, 17")
            a("s_lshl_b32 s73, s67, 7")
            a("s_add_u32 s76, s76, s73")
            a("s_lshl_b32 s78, s78, 14")
        for i in range(lo, hi):
            a("s_add_u32 m0, s78, %d" % (i * 1024))
            a("s_add_u32 s73, s76, %d" % (i * 8192))
            dma(4, SWO, "s73", 0, "wo")

    nl = cfg.pfn
    batches = [(SW2, i) for i in range(-(-11 // nl))] + [(SWO, i) for i in range(-(-4 // nl))]

    def pf_late(n):
        if cfg.abl & 16:
            return
        if n == 0:
            a("; memory-side prefetch of w2 (in k order) and wo, a few lines per wave at a time")
            a("s_and_b32 s90, s60, 3")
            a("s_lshl2_add_u32 s90, s2, s90")
            a("s_mul_i32 s90, s90, %d" % (nl * 128))
        a("s_add_u32 s72, s90, %d" % (batches[n][1] * nl * 131072))
        bload(7, 1, 5, batches[n][0], "s72", 0, "", "pf")

    for n in range(len(batches) if cfg.pfe > 90 else 0):
        tl = cfg.pfl + n * cfg.pfg
        bhooks[(tl >> 2, tl & 3, 7)] = [lambda n=n: pf_late(n)]
    for n, lo in enumerate(range(0, 16, cfg.won)):
        bhooks[((cfg.wol + n) >> 2, (cfg.wol + n) & 3, 8)] = [lambda lo=lo: wo_dma(lo, lo + cfg.won)]
    if cfg.bst == 4:
        for j in range(nB):
            bhooks.setdefault((j, 0, 0), []).append(lambda j=j: stamp(2 + j, True))
    att_run(nB, bhooks)
    vm.drain()

    OW = OA + 48
    WOF, OFR, AC, G, Z, X, SR = 128, 24, 8, 64, 96, 104, 112
    a.label("L_att_done")
    stamp(10)
    if cfg.bst == 4:
        stamp(14, True)
    a("s_setprio 0")
    a("s_and_b32 s73, s60, 1")
    a("s_lshl_b32 s73, s73, 9")
    a("s_sub_u32 s76, s95, s73")
    a("""
    s_and_b32 s74, s60, 3
    s_lshr_b32 s75, s60, 2
    v_lshrrev_b32 v14, 3, v0
    v_and_b32 v7, 7, v0
    v_lshlrev_b32 v7, 4, v7
    v_lshl_add_u32 v14, v14, 10, v7
    s_lshl3_add_u32 s78, s66, s60
    s_lshl_b32 s78, s78, 13
    s_lshl_b32 s79, s67, 7
    s_add_u32 s78, s78, s79
    """)
    bload(60, 4, 7, SB2, "s79", 0, "", "xb")
    bload(56, 4, 14, SX, "s78", 0, "", "xb")
    lg.drain()
    a("s_barrier")
    for src in range(3):
        d = SB + 10 * src
        dsr("ds_read_b128", d, 4, 9, src * 2304, src)
        dsr("ds_read_b128", d + 4, 4, 9, src * 2304 + 1024, src)
        dsr("ds_read_b32", d + 8, 1, 10, src * 2304 + 2048, src)
    for src in range(3):
        lg.wait(src)
        for i in range(0, 8, 2):
            a("v_pk_add_f32 %s, %s, %s" % (vr(OW + i, 2), vr(OW + i, 2), vr(SB + 10 * src + i, 2)))
        a("v_add_f32 %s, %s, %s" % (vr(OW + 8), vr(OW + 8), vr(SB + 10 * src + 8)))
    a("v_pk_mul_f32 v[12:13], %s, 0 op_sel_hi:[1,0]" % vr(OW, 2))
    for i in range(2, 8, 2):
        a("v_pk_fma_f32 v[12:13], %s, 0, v[12:13] op_sel_hi:[1,0,1]" % vr(OW + i, 2))
    a("""
    v_add_f32 v12, v12, %s
    v_add_f32 v12, v12, v13
    v_cmp_nle_f32 vcc, 0x30800000, v12
    s_mov_b64 s[72:73], vcc
    v_cmp_nge_f32 vcc, 0x5d800000, v12
    s_or_b64 s[72:73], s[72:73], vcc
    """ % vr(OW + 8))
    a("s_branch L_slow" if cfg.force_slow else "s_cbranch_scc1 L_slow")
    a.label("L_norm")
    a("v_rcp_f32 v12, %s" % vr(OW + 8))
    for i in range(0, 8, 2):
        a("v_pk_mul_f32 %s, %s, v[12:13] op_sel_hi:[1,0]" % (vr(OW + i, 2), vr(OW + i, 2)))
    for q in range(4):
        a("v_cvt_pk_bf16_f32 %s, %s, %s" % (vr(16 + q), vr(OW + 2 * q), vr(OW + 2 * q + 1)))
    a("v_and_b32 v16, -2, v16")
    bstore(16, 4, 11, SWS, "s76", 0, "sc1", "ost")
    stamp(11)
    a("v_mov_b32 v2, v14")
    a("v_lshrrev_b32 v3, 3, v0")
    a("""
    v_mul_u32_u24 v4, %d, v3
    s_mul_i32 s72, s60, %d
    s_add_u32 s72, s72, %d
    v_add3_u32 v4, v4, v7, s72
    """ % (PART_STRIDE, 8 * PART_STRIDE, L_W2))
    for j in range(4):
        dsr("ds_read_b128", G + 4 * j, 4, 4, j * W2_REGION, "g")
    a("""
    v_bfe_u32 v4, v0, 2, 2
    v_bfe_u32 v5, v0, 4, 1
    v_lshl_add_u32 v4, v5, 2, v4
    v_lshrrev_b32 v5, 1, v4
    v_lshlrev_b32 v92, 7, v4
    v_lshl_add_u32 v92, v5, 5, v92
    v_lshrrev_b32 v6, 5, v0
    v_lshl_add_u32 v92, v6, 11, v92
    v_and_b32 v4, 3, v0
    v_lshl_add_u32 v92, v4, 3, v92
    s_lshl_b32 s72, s75, 15
    v_add_u32 v92, s72, v92
    v_xor_b32 v93, 32, v92
    v_xor_b32 v94, 64, v92
    v_xor_b32 v95, 0x60, v92
    s_barrier
    """)

    def oloads(first=0):
        for ks in range(first, 8):
            bload(OFR + 4 * ks, 4, 1, SWS, ("s76", "s77", "s80", "s81")[ks >> 1], (ks & 1) * 2048, "sc1", ("o", ks))

    fill = ("""
    s_lshl2_add_u32 s72, s66, s74
    s_lshr_b32 s76, s72, 1
    s_lshl1_add_u32 s76, s76, s75
    s_lshl_b32 s76, s76, 14
    s_and_b32 s72, s72, 1
    s_lshl_b32 s72, s72, 10
    s_add_u32 s76, s76, s72
    s_add_u32 s76, s76, %d
    s_add_u32 s77, s76, 0x1000
    s_add_u32 s80, s76, 0x2000
    s_add_u32 s81, s76, 0x3000
    v_mul_u32_u24 v3, %d, v3
    v_lshl_add_u32 v3, v7, 1, v3
    s_mul_i32 s72, s60, %d
    s_add_u32 s72, s72, %d
    v_add_u32 v3, s72, v3
    v_and_b32 v5, 15, v0
    v_mul_u32_u24 v5, %d, v5
    v_and_b32 v4, 48, v0
    s_mul_i32 s72, s60, %d
    s_add_u32 s72, s72, %d
    v_add3_u32 v5, v5, v4, s72
    s_mov_b32 s82, 0x3f80
    s_mov_b32 s83, 0x3f800000
    """ % (WS_QO, SUM_STRIDE, 8 * SUM_STRIDE, L_SUM, SUM_STRIDE, 16 * SUM_STRIDE, L_SUM)).strip().split("\n")
    gate = ["v_mov_b32 %s, 0" % vr(Z + i) for i in range(8)]
    gate.append(lambda: lg.wait("g"))
    for j in range(5):
        if j == 4:
            gate.append(lambda: vm.wait("xb"))
        for q in range(4):
            src = G + 4 * j + q if j < 4 else 60 + q
            gate.append("v_dot2c_f32_bf16 %s, s82, %s" % (vr(Z + 2 * q), vr(src)))
            gate.append("v_dot2c_f32_bf16 %s, s83, %s" % (vr(Z + 2 * q + 1), vr(src)))
    for q in range(4):
        gate.append("v_lshlrev_b32 %s, 16, %s" % (vr(X + 2 * q), vr(56 + q)))
        gate.append("v_and_b32 %s, s89, %s" % (vr(X + 1 + 2 * q), vr(56 + q)))
    gate += ["v_mul_f32 %s, 0x%x, %s" % (vr(G + i), NLOG2E, vr(Z + i)) for i in range(8)]
    gate += ["v_exp_f32 %s, %s" % (vr(G + i), vr(G + i)) for i in range(8)]
    gate += ["v_add_f32 %s, 1.0, %s" % (vr(G + i), vr(G + i)) for i in range(8)]
    gate += ["v_rcp_f32 %s, %s" % (vr(G + i), vr(G + i)) for i in range(8)]
    gate += ["v_mul_f32 %s, %s, %s" % (vr(Z + i), vr(Z + i), vr(G + i)) for i in range(8)]

    def wo_reads(oat, per):
        for ks in range(8):
            for ct in range(4):
                trread(WOF + (ks * 4 + ct) * 4, 92 + ct, ks * 4096, 1024, ("wo", ks))
                run_shadow(per)
            if ks == oat:
                run_shadow(1000)
                vm.wait("ost")
                oloads()

    vm_t, lg_t = list(vm.items), list(lg.items)
    a("s_cmp_eq_u32 s63, 1")
    a("s_cbranch_scc1 L_tail_b")
    shadow.extend(fill)
    wo_reads(7, 1)
    shadow.extend(gate)
    run_shadow(1000)
    a("s_branch L_tail_j")
    a.label("L_tail_b")
    vm.items, lg.items = vm_t, lg_t
    shadow.extend(fill + gate)
    run_shadow(1000)
    wo_reads(cfg.oat, 0)
    a.label("L_tail_j")
    stamp(12)
    a("s_mov_b32 s73, 0")
    lg.drain()
    for ks in range(8):
        a.label("L_wo_%d" % ks)
        vm.wait(("o", ks))
        a("v_and_b32 v6, 1, %s" % vr(OFR + 4 * ks))
        a("v_cmp_ne_u32 vcc, 0, v6")
        a("s_cbranch_vccnz L_oretry_%d" % ks)
        a.label("L_ogo_%d" % ks)
        for ct in range(4):
            d = AC + 4 * ct
            mfma16(d, WOF + (ks * 4 + ct) * 4, OFR + 4 * ks, None if ks == 0 else d)
    stamp(13)
    for ct in range(4):
        dsw("ds_write_b128", 5, AC + 4 * ct, 4, ct * 64)
    lg.drain()
    a("s_barrier")
    stamp(14)
    dsr("ds_read_b128", SR, 4, 3, 0, 0)
    dsr("ds_read_b128", SR + 8, 4, 3, SUM_SIZE, 0)
    dsr("ds_read_b128", SR + 4, 4, 3, 16, 1)
    dsr("ds_read_b128", SR + 12, 4, 3, SUM_SIZE + 16, 1)
    for h in range(2):
        lg.wait(h)
        for i in range(4 * h, 4 * h + 4, 2):
            a("v_pk_add_f32 %s, %s, %s" % (vr(SR + i, 2), vr(SR + i, 2), vr(SR + 8 + i, 2)))
        for i in range(4 * h, 4 * h + 4, 2):
            a("v_pk_fma_f32 %s, %s, %s, %s" % (vr(SR + i, 2), vr(SR + i, 2), vr(Z + i, 2), vr(X + i, 2)))
        for q in range(2 * h, 2 * h + 2):
            a("v_cvt_pk_bf16_f32 %s, %s, %s" % (vr(G + q), vr(SR + 2 * q), vr(SR + 2 * q + 1)))
    bstore(G, 4, 2, SOUT, "s78", 0, ("", "sc1", "nt", "sc0 sc1", "sc0 sc1 nt")[cfg.omod])
    a("s_or_b32 s72, s2, s60")
    a("s_cmp_lg_u32 s72, 0")
    a("s_cbranch_scc1 L_noepoch")
    set_flag(7, "0")
    a.label("L_noepoch")
    if cfg.stamps:
        a("s_waitcnt vmcnt(0)")
        stamp(15)
        if cfg.probe is not None:
            a("s_sub_u32 s72, %s, s4" % sr(sSTAMP + cfg.probe))
            if cfg.stamps == 2:
                a("s_lshr_b32 s72, s72, 3")
            else:
                a("s_lshl_b32 s72, s72, %d" % cfg.probesh)
            a("s_cmp_lg_u32 s2, %d" % cfg.probewg)
            a("s_cselect_b32 s72, 0, s72")
            a("s_cmp_lg_u32 s60, %d" % cfg.probew)
            a("s_cselect_b32 s72, 0, s72")
            a("s_memrealtime s[22:23]")
            a("s_waitcnt lgkmcnt(0)")
            a("s_mov_b32 s73, s22")
            a.label("L_probe")
            a("s_memrealtime s[22:23]")
            a("s_waitcnt lgkmcnt(0)")
            a("s_sub_u32 s22, s22, s73")
            a("s_cmp_lt_u32 s22, s72")
            a("s_cbranch_scc1 L_probe")
        a("s_lshl3_add_u32 s72, s2, s60")
        a("s_lshl_b32 s72, s72, 6")
        a("s_add_u32 s72, s72, %d" % WS_STAMP)
        for i in range(16):
            a("v_mov_b32 %s, %s" % (vr(80 + i), sr(sSTAMP + i)))
        a("s_mov_b64 exec, 1")
        for i in range(4):
            bstore(80 + 4 * i, 4, 1, SWS, "s72", 16 * i)
    a.label("L_end")
    a("s_endpgm")

    for ks in range(8):
        a.label("L_oretry_%d" % ks)
        a("s_add_u32 s73, s73, 1")
        a("s_cmp_ge_u32 s73, %d" % SPIN_MAX)
        a("s_cbranch_scc1 L_ogo_%d" % ks)
        a("s_waitcnt vmcnt(0)")
        oloads(ks)
        a("s_branch L_wo_%d" % ks)

    for tag, vt, lanes, soff in stubs:
        a.label("L_poll_" + tag)
        a("s_mov_b32 s73, 0")
        a.label("L_poll2_" + tag)
        a("s_sleep %d" % cfg.sleep)
        flag_load(vt, lanes, soff, None)
        a("s_add_u32 s73, s73, 1")
        a("s_waitcnt vmcnt(0)")
        a("s_cmp_ge_u32 s73, %d" % SPIN_MAX)
        a("s_cbranch_scc1 L_polled_" + tag)
        a("v_cmp_ne_u32 vcc, %s, %s" % (sr(sTAG), vr(vt)))
        a("s_cbranch_vccnz L_poll2_" + tag)
        a("s_branch L_polled_" + tag)

    a.label("L_slow")
    CN = SB + 16
    a("s_waitcnt vmcnt(0)")
    a("v_mov_b32 v13, 0xff800000")
    a("s_mov_b32 s82, s83")
    a("s_mov_b32 s81, 64")
    a.label("L_slow1")
    bload(KV, 4, 252, SWS, "s82", 0, "sc1")
    a("s_add_u32 s82, s82, 2048")
    a("s_waitcnt vmcnt(0)")
    mfma32(SB, KV, QR + 12, None)
    for i in range(0, 16, 2):
        a("v_max3_f32 v13, v13, %s, %s" % (vr(SB + i), vr(SB + i + 1)))
    a("s_sub_u32 s81, s81, 1")
    a("s_cmp_lg_u32 s81, 0")
    a("s_cbranch_scc1 L_slow1")
    a("v_mov_b32 v15, v13")
    a("v_permlane32_swap_b32 v15, v13")
    a("v_max_f32 v13, v15, v13")
    for i in range(16):
        a("v_sub_f32 %s, 0, v13" % vr(CN + i))
        a("v_mov_b32 %s, 0" % vr(OW + i))
    a("s_mov_b32 s82, s83")
    a("s_mov_b32 s81, 64")
    a.label("L_slow2")
    kvload(0)
    a("s_waitcnt vmcnt(0)")
    mfma32(SB, KV, QR + 12, CN)
    for i in range(16):
        a("v_exp_f32 %s, %s" % (vr(SB + i), vr(SB + i)))
    smf(OW, KV + 4, SB)
    smf(OW, KV + 8, SB + 8)
    a("s_sub_u32 s81, s81, 1")
    a("s_cmp_lg_u32 s81, 0")
    a("s_cbranch_scc1 L_slow2")
    a("s_branch L_norm")
    a.label("L_code_end")
    a("s_endpgm")

    added = a.fix()
    return a.text().replace('FSH', str(cfg.fsh)).replace('FROW', str(cfg.fsh + 5)), added


HEADER = """; Kernarg layout for this problem (88 bytes, ptrs only, base s[0:1]):
; @launch grid=(256,1,1) block=(512,1,1) lds=163840
.amdgcn_target "amdgcn-amd-amdhsa--gfx950"
.text
.globl {k}
.p2align 8
.type {k},@function
{k}:
"""

FOOTER = """.section .rodata,"a"
.p2align 6
.amdhsa_kernel {k}
  .amdhsa_next_free_vgpr 256
  .amdhsa_next_free_sgpr 102
  .amdhsa_accum_offset 256
  .amdhsa_group_segment_fixed_size 0
  .amdhsa_kernarg_size 88
  .amdhsa_user_sgpr_count 2
  .amdhsa_user_sgpr_kernarg_segment_ptr 1
  .amdhsa_system_sgpr_workgroup_id_x 1
.end_amdhsa_kernel
"""


def build(**kw):
    cfg = Cfg()
    for k, v in kw.items():
        setattr(cfg, k, v)
    body, added = gen(cfg)
    return HEADER.format(k=KERNEL) + body + FOOTER.format(k=KERNEL), added


if __name__ == "__main__":
    out = sys.argv[1] if len(sys.argv) > 1 else "cdna_kernels/%s.s" % NAME
    kw = {}
    for arg in sys.argv[2:]:
        k, v = arg.split("=")
        kw[k] = int(v)
    text, added = build(**kw)
    open(out, "w").write(text)
    print("wrote", out, "lines", text.count("\n"), "nops added", added)
```

```python
import sys
import os
sys.path.insert(0, os.path.dirname(os.path.abspath(__file__)))
from asmlib import Asm, vr, sr

NAME = "recurrent_scan__softmax_full_mha__dense_activation_squared_relu__prompt"
KERNEL = NAME + "_kernel"

WS_FLAGQ = 0x1200
WS_FLAGH = 0x60000
WS_STAMP = 0x10000
WS_QO = 0x100000
WS_KV = 0x300000
WS_HF = 0x700000
WS_END = WS_HF + 86 * 65536
EPOCH_INC = 0x9E3779B9
SPIN_MAX = 1 << 18

L_RING = 65536
L_OPART = 65536
L_W2 = L_OPART + 55296
W2_REGION = 10240
PART_STRIDE = 144
SUM_STRIDE = 272
SUM_SIZE = 64 * SUM_STRIDE
L_SUM = L_OPART

SX, SWQ, SWO, SW1, SB1, SW2, SB2, SOUT, SWS = 24, 28, 32, 36, 40, 44, 48, 52, 56
sW, sCG, sTB, sRW, sP, sQB, sTBF, sCB, sTAG, sCT0 = 60, 61, 62, 63, 64, 65, 66, 67, 68, 69
sVM = 70
sSTAMP = 4

QSCALE = 0x3EB8AA3B
NLOG2E = 0xBFB8AA3B
NS = 22


class Cfg:
    abl = 0
    bst = 0
    xslot = 0
    xrun = 2
    n1 = 8
    nA = 22
    gap = 1
    kvt = 0
    kvi = 4
    dmam = 2
    fpat = 2221
    pf1_at = 12
    pfc_at = 99
    pfc1 = 0
    w2_at = 10
    pfl = 9
    wol = 15
    won = 1
    stamps = 0
    force_slow = 0
    flag_chunk = 10
    lead = 2
    look = 5
    pfq_at = 99
    bload = 15
    bjoin = 16
    btile = 2
    sleep = 6
    w0_at = 7
    w1_at = 10
    hpre = 2
    hbar = 0
    hnow = 2
    hgap = 2
    hoff = 0
    kv3 = 1
    fsh = 4
    pfe = 99
    l2q = 99
    rot = 1
    split = 1
    wgrp = 1
    zall = 1
    salate = 2
    bpre = 0
    sA = 3
    sB = 3
    sC = 7
    hold = 99
    l2w = 99
    pfn = 11
    alow = 0
    pfg = 1
    hflag = 11
    probe = None
    omod = 1
    oat = 4
    probewg = 100
    probew = 0
    probesh = 4
    hst = 0


def srd(s):
    return sr(s, 4)


class Queue:
    def __init__(self, a, name, maxn):
        self.a, self.name, self.maxn, self.items = a, name, maxn, []

    def push(self, tag):
        self.items.append(tag)

    def wait(self, *tags):
        last = max((i for i, t in enumerate(self.items) if t in tags), default=-1)
        if last < 0:
            return
        n = len(self.items) - 1 - last
        self.a("s_waitcnt %s(%d)" % (self.name, min(n, self.maxn)))
        self.items = self.items[last + 1:]

    def drain(self):
        self.a("s_waitcnt %s(0)" % self.name)
        self.items = []


def gen(cfg):
    a = Asm()
    nA = cfg.nA
    nB = 32 - nA
    vm = Queue(a, "vmcnt", 63)
    lg = Queue(a, "lgkmcnt", 15)

    def stamp(i, force=False):
        if cfg.bst and not force and i != 0:
            return
        if cfg.stamps and (cfg.probe is None or i in (0, cfg.probe)):
            a("%s s[22:23]" % ("s_memtime" if cfg.stamps == 2 else "s_memrealtime"))
            a("s_waitcnt lgkmcnt(0)")
            a("s_mov_b32 %s, s22" % sr(sSTAMP + i))

    def mfma32(d, x, y, c):
        a("v_mfma_f32_32x32x16_bf16 %s, %s, %s, %s" % (vr(d, 16), vr(x, 4), vr(y, 4), "0" if c is None else vr(c, 16)))

    def mfma16(d, x, y, c):
        a("v_mfma_f32_16x16x32_bf16 %s, %s, %s, %s" % (vr(d, 4), vr(x, 4), vr(y, 4), "0" if c is None else vr(c, 4)))

    def smf(d, x, y):
        a("v_smfmac_f32_32x32x32_bf16 %s, %s, %s, v3" % (vr(d, 16), vr(x, 4), vr(y, 8)))

    def bload(d, n, va, s, so, off=0, mod="", tag=None):
        op = {1: "dword", 2: "dwordx2", 4: "dwordx4"}[n]
        a("buffer_load_%s %s, %s, %s, %s offen offset:%d %s" % (op, vr(d, n), vr(va), srd(s), so, off, mod))
        vm.push(tag)

    def bstore(d, n, va, s, so, off=0, mod="", tag=None):
        op = {1: "dword", 2: "dwordx2", 4: "dwordx4"}[n]
        a("buffer_store_%s %s, %s, %s, %s offen offset:%d %s" % (op, vr(d, n), vr(va), srd(s), so, off, mod))
        vm.push(tag)

    def dma(va, s, so, off=0, tag=None):
        a("buffer_load_dwordx4 %s, %s, %s offen offset:%d lds" % (vr(va), srd(s), so, off))
        vm.push(tag)

    def dsr(op, d, n, va, off, tag=None):
        a("%s %s, %s offset:%d" % (op, vr(d, n), vr(va), off))
        lg.push(tag)

    def dsw(op, va, d, n, off, tag=None):
        a("%s %s, %s offset:%d" % (op, vr(va), vr(d, n), off))
        lg.push(tag)

    def trread(d, va, off, second, tag=None):
        dsr("ds_read_b64_tr_b16", d, 2, va, off, tag)
        dsr("ds_read_b64_tr_b16", d + 2, 2, va, off + second, tag)

    def set_flag(vt, soff):
        a("v_mov_b32 %s, %s" % (vr(vt), sr(sTAG)))
        a("s_mov_b64 exec, 1")
        bstore(vt, 1, 1, SWS, soff, 0, "sc0 sc1")
        a("s_mov_b64 exec, -1")

    stubs = []

    def check_flags(tag, vt, lanes, soff):
        a("v_cmp_ne_u32 vcc, %s, %s" % (sr(sTAG), vr(vt)))
        a("s_cbranch_vccnz L_poll_" + tag)
        a.label("L_polled_" + tag)
        stubs.append((tag, vt, lanes, soff))

    def flag_load(vt, shift, soff, tag):
        a("v_and_b32 %s, 31, v0" % vr(vt))
        a("v_lshlrev_b32 %s, %d, %s" % (vr(vt), shift, vr(vt)))
        bload(vt, 1, vt, SWS, soff, 0, "sc0 sc1", tag)

    sizes = {SX: 2048 * 1024, SWQ: 512 * 3072, SWS: WS_END, SW1: 512 * 2752, SB1: 2752,
             SWO: 512 * 1024, SW2: 1376 * 1024, SB2: 1024, SOUT: 2048 * 1024}
    RAW = 128

    def xloads():
        for j in range(8):
            bload(RAW + j * 4, 4, 14, SX, "s101", j * 128, "", ("x", j))

    stamp(0)
    a("""
    s_load_dwordx2 s[24:25], s[0:1], 0
    s_getpc_b64 s[72:73]
    L_pc:
    s_cmpk_ge_u32 s2, 256
    s_cbranch_scc1 L_end
    s_lshr_b32 s74, s2, 3
    s_lshl_b32 s74, s74, 11
    v_lshrrev_b32 v8, 5, v0
    v_lshl_add_u32 v8, v8, 7, s74
    v_min_u32 v8, L_code_end-L_pc, v8
    v_mov_b32 v9, 0
    v_lshl_add_u64 v[8:9], v[8:9], 0, s[72:73]
    global_load_dword v7, v[8:9], off
    s_lshl_b32 s72, s2, 4
    s_and_b32 s72, s72, 0x180
    v_add_u32 v4, s72, v0
    v_bfe_u32 v4, v4, 3, 6
    v_and_b32 v5, 7, v0
    v_lshlrev_b32 v14, 10, v4
    v_lshl_add_u32 v14, v5, 4, v14
    s_lshr_b32 s67, s2, 5
    s_and_b32 s73, s2, 6
    s_lshl2_add_u32 s62, s73, s67
    s_lshl_b32 s101, s62, 16
    s_mov_b32 s26, %d
    s_mov_b32 s27, 0x20000
    v_bfe_u32 v24, v4, 1, 3
    v_xor_b32 v24, v24, v5
    v_lshlrev_b32 v15, 7, v4
    v_lshl_add_u32 v15, v24, 4, v15
    v_readfirstlane_b32 s60, v0
    v_and_b32 v0, 63, v0
    v_and_b32 v26, 3, v0
    v_mov_b32 v29, 0
    s_lshr_b32 s60, s60, 6
    s_cmp_ge_u32 s60, 4
    s_waitcnt lgkmcnt(0)
    """ % sizes[SX])
    vm.push("pf")
    if cfg.bst == 3:
        stamp(1, True)
    xloads()
    if cfg.bst == 3:
        stamp(2, True)
    if cfg.stamps:
        for i in range(3 if cfg.bst == 3 else 1, 16):
            a("s_mov_b32 %s, s4" % sr(sSTAMP + i))
    a("s_mov_b32 s63, 1")
    a("s_cbranch_scc1 L_ln")
    a("s_mov_b32 s63, 0")

    def setup1():
        for s, off in ((SWQ, 8), (SWS, 80), (SW1, 32), (SB1, 40), (SWO, 16), (SW2, 48), (SB2, 56), (SOUT, 64)):
            a("s_load_dwordx2 %s, s[0:1], %d" % (sr(s, 2), off))
        a("""
        s_mov_b32 s30, %d
        s_mov_b32 s31, 0x20000
        s_bfe_u32 s72, s2, 0x20003
        s_and_b32 s73, s2, 1
        s_lshl2_add_u32 s61, s73, s72
        s_and_b32 s74, s60, 3
        s_lshl_b32 s72, s61, 7
        s_mul_i32 s85, s74, %d
        s_add_u32 s85, s85, s72
        s_mul_i32 s87, s74, 6144
        s_add_u32 s87, s87, %d
        v_lshrrev_b32 v4, 3, v0
        v_bfe_u32 v6, v4, 1, 1
        v_lshlrev_b32 v6, 2, v6
        v_xor_b32 v6, v6, v5
        v_lshlrev_b32 v6, 4, v6
        v_mul_u32_u24 v13, 3072, v4
        v_add_u32 v13, v13, v6
        v_xor_b32 v33, 16, v13
        s_waitcnt lgkmcnt(0)
        """ % (sizes[SWQ], 16 * 3072, L_RING))

    def setup_pf():
        for s in (SW1, SWO, SW2):
            a("s_mov_b32 %s, %d" % (sr(s + 2), sizes[s]))
            a("s_mov_b32 %s, 0x20000" % sr(s + 3))
        a("""
        s_and_b32 s73, s60, 3
        s_lshl2_add_u32 s100, s2, s73
        s_mul_i32 s100, s100, 1536
        v_min_u32 v31, 11, v0
        v_lshlrev_b32 v31, 7, v31
        """)

    def setup2():
        a("s_load_dword %s, %s, 0" % (sr(sTAG), sr(SWS, 2)))
        for s in (SWS, SB1, SB2, SOUT):
            a("s_mov_b32 %s, %d" % (sr(s + 2), sizes[s]))
            a("s_mov_b32 %s, 0x20000" % sr(s + 3))
        a("""
        s_bfe_u32 s72, s2, 0x20003
        s_and_b32 s73, s2, 7
        s_lshl2_add_u32 s66, s73, s72
        s_and_b32 s72, s72, 1
        s_lshl1_add_u32 s64, s73, s72
        s_lshr_b32 s65, s2, 4
        s_mul_i32 s69, s61, 6
        s_mul_i32 s73, s61, 5
        s_add_u32 s73, s73, 3
        s_min_u32 s69, s69, s73
        s_mov_b32 s70, 0xffff
        s_mov_b32 s71, 0xffff
        v_lshlrev_b32 v1, 4, v0
        v_and_b32 v2, 15, v0
        v_lshrrev_b32 v3, 5, v0
        v_lshl_add_u32 v2, v3, 4, v2
        v_lshlrev_b32 v2, 4, v2
        """)

    def setup3():
        a("; attention offsets: s82 = next K/V tile, s83 = head base, s92-s95 = Q tiles, s96-s99 = O partial slots")
        a("""
        s_and_b32 s74, s60, 1
        s_lshr_b32 s75, s60, 1
        s_lshl1_add_u32 s72, s64, s74
        s_lshl_b32 s83, s72, 17
        s_add_u32 s83, s83, %d
        s_and_b32 s73, s75, 1
        s_lshl_b32 s73, s73, 16
        s_add_u32 s82, s83, s73
        s_lshl_b32 s72, s65, 6
        s_add_u32 s72, s72, s64
        s_lshl1_add_u32 s72, s72, s74
        s_lshl_b32 s72, s72, 10
        s_add_u32 s72, s72, %d
        s_mul_i32 s84, s74, %d
        s_add_u32 s84, s84, %d
        """ % (WS_KV, WS_QO, 12 * 2304, L_OPART))
        for t in range(4):
            a("s_xor_b32 s73, s75, %d" % (t ^ 3))
            a("s_mul_i32 %s, s73, %d" % (sr(96 + t), 3 * 2304))
            a("s_lshl_b32 s73, s73, 15")
            a("s_add_u32 %s, s72, s73" % sr(92 + t))
            a("s_add_u32 %s, %s, s84" % (sr(96 + t), sr(96 + t)))

    setup1()
    setup_pf()
    setup2()
    a("s_and_b32 s74, s60, 1")
    a("s_lshr_b32 s75, s60, 1")
    a("""
    v_bfe_u32 v9, v0, 4, 1
    v_and_b32 v16, 15, v0
    v_lshlrev_b32 v8, 4, v16
    v_lshl_add_u32 v8, v9, 9, v8
    v_lshl_add_u32 v11, v3, 17, v8
    v_lshl_add_u32 v14, v3, 10, v8
    v_lshl_add_u32 v127, v3, 16, v8
    v_lshrrev_b32 v17, 4, v0
    v_bfe_u32 v8, v0, 3, 1
    v_lshlrev_b32 v12, 4, v5
    v_lshl_add_u32 v12, v17, 8, v12
    v_lshl_add_u32 v12, v8, 17, v12
    v_lshrrev_b32 v8, 1, v16
    v_xor_b32 v8, v8, v17
    v_lshlrev_b32 v16, 7, v16
    v_lshl_add_u32 v16, v8, 4, v16
    s_lshl_b32 s72, s74, 12
    v_add_u32 v16, s72, v16
    v_xor_b32 v17, 64, v16
    v_lshl_add_u32 v4, v4, 10, v6
    v_bfe_u32 v10, v0, 2, 2
    v_lshrrev_b32 v6, 1, v10
    v_xor_b32 v8, s75, v6
    v_and_b32 v18, 2, v0
    v_lshl_add_u32 v8, v8, 2, v18
    v_add_u32 v8, v8, v9
    v_lshlrev_b32 v8, 1, v8
    v_and_or_b32 v8, v0, 1, v8
    v_lshlrev_b32 v8, 3, v8
    v_lshl_add_u32 v8, v10, 7, v8
    v_lshl_add_u32 v8, v9, 10, v8
    v_mul_u32_u24 v18, 6144, v3
    v_add_u32 v8, v8, v18
    v_add_u32 v8, %d, v8
    v_xor_b32 v18, 16, v8
    v_add_u32 v19, %d, v18
    v_lshlrev_b32 v5, 5, v9
    v_lshl_add_u32 v5, v10, 7, v5
    v_and_b32 v10, 3, v0
    v_lshl_add_u32 v5, v10, 3, v5
    v_lshl_add_u32 v5, v3, 9, v5
    v_lshl_add_u32 v5, v6, 6, v5
    v_lshrrev_b32 v10, 1, v0
    v_xor_b32 v10, v10, v0
    v_and_b32 v10, 1, v10
    v_mul_u32_u24 v10, 24, v10
    v_xor_b32 v5, v5, v10
    s_mul_i32 s84, s60, %d
    s_add_u32 s84, s84, %d
    v_add_u32 v5, s84, v5
    v_xor_b32 v6, 64, v5
    v_lshlrev_b32 v10, 3, v9
    v_lshl_add_u32 v10, v3, 5, v10
    v_xor_b32 v9, 16, v19
    v_mov_b32 v3, 0xdddddddd
    """ % (L_RING, 2 * 24576, W2_REGION, L_W2))

    def setup_a():
        setup3()
        a("s_add_u32 s82, s82, %d" % (nB * 2048))
        a("s_mul_i32 s84, s60, %d" % W2_REGION)
        a("s_add_u32 s84, s84, %d" % L_W2)
        a("""
        s_lshl1_add_u32 s72, s62, s74
        s_lshl1_add_u32 s73, s61, s75
        s_lshl_b32 s76, s73, 7
        s_add_u32 s76, s76, s72
        s_lshl_b32 s77, s76, 11
        s_lshl4_add_u32 s76, s72, s73
        s_lshl_b32 s76, s76, 11
        s_add_u32 s76, s76, %d
        s_add_u32 s77, s77, %d
        s_add_u32 s81, s69, s75
        s_lshl_b32 s78, s81, 7
        s_add_u32 s78, s78, s72
        s_lshl_b32 s78, s78, 10
        s_add_u32 s78, s78, %d
        s_lshl_b32 s79, s61, 6
        s_add_u32 s79, s79, s62
        s_lshl_b32 s79, s79, 4
        s_add_u32 s79, s79, %d
        s_lshl_b32 s80, s62, 3
        s_add_u32 s80, s80, s61
        s_lshl2_add_u32 s80, s80, s60
        s_lshl_b32 s80, s80, FSH
        s_add_u32 s80, s80, %d
        s_mul_i32 s73, s61, s75
        s_add_u32 s88, s78, %d
        s_cmp_lt_u32 s73, 3
        s_cselect_b32 s88, s88, 0x40000000
        s_lshl_b32 s81, s81, 6
        """ % (WS_QO, WS_KV, WS_HF, WS_FLAGQ, WS_FLAGH, 8 * 65536))

    if not cfg.salate:
        setup_a()

    def slot_of(c):
        if not cfg.xslot or c < cfg.xslot:
            return (c & 3) * 24576
        return -L_RING if c == cfg.xslot else ((c - 1) & 3) * 24576

    skip_bar = (10,) if cfg.xslot else ()

    def issue_chunk(c):
        if cfg.rot:
            a("s_xor_b32 s73, s67, %d" % (c & 7))
            a("s_mul_i32 s73, s73, %d" % (64 * (3072 if c < 8 else 2752)))
            a("s_add_u32 s73, s73, %s" % ("s85" if c < 8 else "s80"))
        for m in range(6):
            blk, seg = divmod(m, 3)
            a("s_add_u32 m0, s87, %d" % (slot_of(c) + seg * 2048 + blk * 1024))
            if c < 8:
                a("s_add_u32 s72, %s, %d" % (("s73", blk * 8 * 3072 + seg * 1024) if cfg.rot else ("s85", (c * 64 + blk * 8) * 3072 + seg * 1024)))
                dma(33 if blk else 13, SWQ, "s72", 0, ("w", c))
            else:
                a("s_add_u32 s72, %s, %d" % (("s73", blk * 8 * 2752 + seg * 128) if cfg.rot else ("s80", ((c - 8) * 64 + blk * 8) * 2752 + seg * 128)))
                dma(56 + (seg == 2) + 2 * blk, SW1, "s72", 0, ("w", c))

    def layernorm(acts):
        def act(p):
            if acts.get(p):
                assert p >= 7
                a("s_cmp_eq_u32 s63, 1")
                a("s_cbranch_scc1 L_ln_%d" % p)
                for f in acts[p]:
                    f()
                a.label("L_ln_%d" % p)
        a.label("L_ln")
        a("""
        v_mov_b32 v232, 0x3f803f80
        v_mov_b32 v233, 0x3f803f80
        v_lshlrev_b32 v26, 4, v26
        v_mov_b32 v28, 0xffff
        v_lshlrev_b64 v[28:29], v26, v[28:29]
        """)
        a("s_mov_b32 s89, 0xffff0000")
        if cfg.rot:
            a("; K chunks are visited in the order c ^ (row block & 7): workgroups sharing weights fetch different chunks first")
            a("s_lshl_b32 s72, s67, 13")
            a("v_or_b32 v15, s72, v15")

        def xwrite(j):
            if cfg.rot:
                a("v_xor_b32 v23, 0x%x, v15" % (j << 13))
                a("ds_write_b128 v23, %s" % vr(RAW + j * 4, 4))
            else:
                a("ds_write_b128 v15, %s offset:%d" % (vr(RAW + j * 4, 4), j * 8192))

        def m4(d, x, y, c):
            a("v_mfma_f32_4x4x4_16b_bf16 %s, %s, %s, %s" % (vr(d, 4), vr(x, 2), vr(y, 2), "0" if c is None else vr(c, 4)))

        S, GM, T, CN, AH = 208, 216, 192, 224, 228
        for j in range(8):
            vm.wait(("x", j))
            if cfg.bst == 3 and j in (0, 3, 7):
                stamp({0: 4, 3: 5, 7: 6}[j], True)
            if j == 7:
                act(7)
            for h in range(2):
                x = RAW + j * 4 + 2 * h
                m4(S + 4 * h, 232, x, S + 4 * h if j else None)
                m4(GM + 4 * h, x, x, GM + 4 * h if j else None)
        act(8)
        stamp(1)
        a("v_add_f32 v24, %s, %s" % (vr(S), vr(S + 4)))
        for r in range(4):
            a("v_add_f32 %s, %s, %s" % (vr(GM + r), vr(GM + r), vr(GM + 4 + r)))
        dpp = "row_mask:0xf bank_mask:0xf"
        a("v_add_f32_dpp v24, v24, v24 quad_perm:[1,0,3,2] " + dpp)
        a("v_mov_b32_dpp v25, %s quad_perm:[0,0,0,0] %s" % (vr(GM), dpp))
        a("v_add_f32_dpp v25, %s, v25 quad_perm:[1,1,1,1] %s" % (vr(GM + 1), dpp))
        a("v_add_f32_dpp v24, v24, v24 quad_perm:[2,3,0,1] " + dpp)
        a("v_add_f32_dpp v25, %s, v25 quad_perm:[2,2,2,2] %s" % (vr(GM + 2), dpp))
        a("v_add_f32_dpp v25, %s, v25 quad_perm:[3,3,3,3] %s" % (vr(GM + 3), dpp))
        a("v_add_f32_dpp v24, v24, v24 row_half_mirror " + dpp)
        a("v_add_f32_dpp v25, v25, v25 row_half_mirror " + dpp)
        a("""
        v_mul_f32 v24, 0x3b000000, v24
        v_mul_f32 v25, 0x3b000000, v25
        v_fma_f32 v25, -v24, v24, v25
        v_max_f32 v25, 0, v25
        v_cvt_pk_bf16_f32 v24, v24, v25
        v_and_b32 v25, s89, v24
        v_add_f32 v25, 0x3727c5ac, v25
        v_cvt_pk_bf16_f32 v25, v25, v25
        v_and_b32 v25, s89, v25
        v_sqrt_f32 v25, v25
        v_lshlrev_b32 v24, 16, v24
        v_cvt_pk_bf16_f32 v25, v25, v25
        v_and_b32 v25, s89, v25
        v_rcp_f32 v26, v25
        v_cvt_pk_bf16_f32 v27, v26, v26
        v_and_b32 v25, s89, v27
        v_sub_f32 v25, v26, v25
        v_cvt_pk_bf16_f32 v25, v25, v25
        v_and_b32 v228, v27, v28
        v_and_b32 v229, v27, v29
        v_and_b32 v230, v25, v28
        v_and_b32 v231, v25, v29
        """)
        for r in range(4):
            a("v_mul_f32_e64 %s, -v24, v26" % vr(CN + r))

        def finish(j, q):
            t = T + 8 * (j & 1)
            a("v_cvt_pk_bf16_f32 %s, %s, %s" % (vr(RAW + 4 * j + q), vr(t + 2 * q), vr(t + 2 * q + 1)))
            if q == 3:
                xwrite(j)

        for j in range(9):
            for q in range(4):
                if j < 8:
                    t = T + 8 * (j & 1) + 4 * (q & 1)
                    m4(t, AH + 2 * (q >> 1), RAW + 4 * j + 2 * (q & 1), CN if q < 2 else t)
                if j:
                    finish(j - 1, q)
        if cfg.bst == 3:
            stamp(7, True)
        act(9)
        act(10)
        stamp(2)
        if cfg.bst == 3:
            stamp(8, True)

    def pfq():
        a("; memory-side prefetch of Wqkv")
        bload(7, 1, 31, SWQ, "s100", 0, "", "pf")

    def pfl2(which):
        a("; the die's workgroups pull their half of the weight columns into L2 together, four rows per wave")
        stride = 3072 if which == SWQ else 2752
        a("s_lshr_b32 s72, s2, 3")
        a("s_and_b32 s73, s60, 3")
        a("s_lshl2_add_u32 s72, s72, s73")
        a("s_mul_i32 s72, s72, %d" % (4 * stride))
        a("s_and_b32 s73, s2, 1")
        a("s_mul_i32 s73, s73, %d" % (512 if which == SWQ else 1472))
        a("s_add_u32 s72, s72, s73")
        a("v_lshrrev_b32 v20, 4, v0")
        a("v_mul_u32_u24 v20, %d, v20" % stride)
        if which == SWQ:
            a("v_bfe_u32 v21, v0, 2, 2")
            a("v_min_u32 v21, 2, v21")
            a("v_lshl_add_u32 v20, v21, 10, v20")
            a("v_and_b32 v21, 3, v0")
            a("v_lshl_add_u32 v20, v21, 7, v20")
        else:
            a("v_and_b32 v21, 15, v0")
            a("v_lshlrev_b32 v21, 7, v21")
            a("v_min_u32 v21, 1468, v21")
            a("v_add_u32 v20, v20, v21")
        bload(22, 1, 20, which, "s72", 0, "", "pf")

    def pfc(which):
        a("; lines at offset 384 of every KiB stream slowly on a miss: the die's workgroups pull them into L2 together")
        a("s_lshr_b32 s72, s2, 3")
        a("s_lshl2_add_u32 s72, s72, s60")
        a("s_mul_i32 s72, s72, 12288")
        a("v_lshlrev_b32 v20, 3, v31")
        if which == SWQ:
            a("s_bitcmp1_b32 s2, 0")
            a("s_cselect_b32 s72, 0x40000000, s72")
        bload(7, 1, 20, which, "s72", 384, "", "pf")

    def pf1():
        a("; memory-side prefetch of W1")
        bload(7 if cfg.pf1_at <= 10 else 32, 1, 31, SW1, "s100", 0, "", "pf")

    acts = {}
    if cfg.pfc_at == 0:
        save = list(vm.items)
        pfc(SWQ)
        vm.items = save
    elif cfg.pfc_at <= 10:
        acts.setdefault(cfg.pfc_at, []).append(lambda: pfc(SWQ))
    if cfg.pfq_at == 0:
        save = list(vm.items)
        pfq()
        vm.items = save
    elif cfg.pfq_at <= 10:
        acts.setdefault(cfg.pfq_at, []).append(pfq)
    if cfg.l2q == 0:
        save = list(vm.items)
        pfl2(SWQ)
        vm.items = save
    if cfg.l2q == 7:
        acts.setdefault(7, []).append(lambda: pfl2(SWQ))
    for c, p in enumerate((cfg.w0_at, cfg.w1_at, cfg.w2_at, 10)[:cfg.lead + 1]):
        acts.setdefault(p, []).append(lambda c=c: issue_chunk(c))
    if 8 <= cfg.l2q <= 10:
        acts.setdefault(cfg.l2q, []).insert(0, lambda: pfl2(SWQ))
    if cfg.pf1_at <= 10:
        acts.setdefault(cfg.pf1_at, []).append(pf1)
    if cfg.pfc1:
        acts.setdefault(10, []).append(lambda: pfc(SW1))
    if cfg.salate == 1:
        acts.setdefault(10, []).insert(0, setup_a)
    if cfg.salate == 3:
        acts.setdefault(10, []).append(setup_a)
    layernorm(acts)
    a("s_cmp_eq_u32 s63, 1")
    a("s_cbranch_scc1 L_loader")

    QR, SB, WF, FA, OA, KV, HB = 8, 24, 56, 64, 128, 192, 228
    NKV = 3

    def att_init_ops():
        ops = ["v_mov_b32 %s, 0" % vr(OA + 16 * t + i) for t in range(4) for i in range(16 if cfg.zall else 9)]
        ops2 = ["v_and_b32 v7, 27, v0", "v_cmp_eq_u32 vcc, 16, v7", "v_mov_b32 v7, 0x3f803f80", "v_cndmask_b32 v7, 0, v7, vcc"]
        ops2 += ["v_mov_b32 %s, v7" % vr(KV + 12 * b + 4 + q) for b in range(NKV) for q in range(8)]
        return ops, ops2

    def kvload(j):
        b = j % NKV
        bload(KV + 12 * b, 4, 252, SWS, "s82", 0, "sc1", ("kv", j))
        a("s_mov_b64 exec, %s" % sr(sVM, 2))
        bload(KV + 12 * b + 4, 4, 2, SWS, "s82", 1024, "sc1", ("kv", j))
        bload(KV + 12 * b + 8, 4, 2, SWS, "s82", 1536, "sc1", ("kv", j))
        a("s_mov_b64 exec, -1")
        a("s_add_u32 s82, s82, 2048")

    def att_loads(role):
        a("; key slot 8a+4b+c holds token 16b+4a+c, matching the order of the V fragments")
        a("v_and_b32 v252, 0x230, v1")
        a("v_and_b32 v253, 0x180, v1")
        a("v_lshrrev_b32 v253, 1, v253")
        a("v_and_b32 v254, 64, v1")
        a("v_lshlrev_b32 v254, 2, v254")
        a("v_or3_b32 v252, v252, v253, v254")
        bload(QR, 4, 1, SWS, "s92", 0, "sc1", "q")
        kvload(0)
        for t in range(1, 4):
            bload(QR + 4 * t, 4, 1, SWS, sr(92 + t), 0, "sc1", "q")
        kvload(1)
        if cfg.kv3 and role == "a":
            kvload(2)

    def dump_addr():
        a("v_lshlrev_b32 v8, 2, v0")
        a("v_add_u32 v9, s99, v1")
        a("v_add_u32 v10, s99, v8")
        a("v_bfe_u32 v11, v0, 4, 1")
        a("v_lshl_add_u32 v11, v11, 10, v2")

    def dump(t):
        a("v_add_u32 v12, %s, v1" % sr(96 + t))
        a("v_add_u32 v13, %s, v8" % sr(96 + t))
        dsw("ds_write_b128", 12, OA + 16 * t, 4, t * 2304)
        dsw("ds_write_b128", 12, OA + 16 * t + 4, 4, t * 2304 + 1024)
        dsw("ds_write_b32", 13, OA + 16 * t + 8, 1, t * 2304 + 2048)

    deferred = []
    cfg_gap = {0: range(16), 1: (1, 10), 2: (0, 9), 3: (4, 10), 4: (1,), 5: (4,), 6: (15, 9)}[cfg.gap]

    def att_run(n, hooks):
        hooks.setdefault((n - 1, 0, 11), []).append(dump_addr)
        for t in range(3):
            hooks.setdefault((n - 1, t + 1, 12), []).append(lambda t=t: dump(t))
        vm.wait("q", ("kv", 0))
        mfma32(SB, KV, QR, None)
        for j in range(n):
            b = j % NKV
            for t in range(4):
                cur, oth = SB + 16 * (t & 1), SB + 16 * ((t + 1) & 1)
                for i in range(16):
                    a("v_exp_f32 %s, %s" % (vr(cur + i), vr(cur + i)))
                    if i in cfg_gap:
                        while deferred:
                            deferred.pop(0)()
                    if t == cfg.kvt and i == cfg.kvi and j + NKV - 1 < n and not (cfg.abl & 32 and j > 0) and not (cfg.kv3 and j == 0):
                        kvload(j + NKV - 1)
                    if i == 1 and (j, t) != (0, 0):
                        smf(OA + 16 * ((t + 3) & 3), KV + 12 * (b if t else (j - 1) % NKV) + 8, oth + 8)
                    if i == 4:
                        if t < 3:
                            mfma32(oth, KV + 12 * b, QR + 4 * (t + 1), None)
                        elif j + 1 < n:
                            vm.wait(("kv", j + 1))
                            mfma32(oth, KV + 12 * ((j + 1) % NKV), QR, None)
                    if i == 10:
                        smf(OA + 16 * t, KV + 12 * b + 4, cur)
                    for h in hooks.get((j, t, i), ()):
                        h()
        smf(OA + 48, KV + 12 * ((n - 1) % NKV) + 8, SB + 16 + 8)

    ACC = (24, 40, 56)
    WB, NBUF, LA = 72, 6, cfg.look
    XF, PK, XA = 128, 96, 16
    init1, init2 = att_init_ops()

    def item(g):
        kk, m = divmod(g % 96, 6)
        return kk, m >> 1, m & 1

    def reads(g, part=None):
        kk, seg, ab = item(g)
        so = slot_of(g // 12)
        base = (8, 18)[ab] + so // 49152
        off = so % 49152 + (kk & 1) * 12288 + seg * 2048
        for h in range(2):
            if part in (None, h):
                if g < 96 and seg == 0 and ab == 0:
                    dsr("ds_read_b128", XF + 8 * kk + 4 * h, 4, XA + (kk & 1), (kk >> 1) * 8192 + h * 2048, g)
                dsr("ds_read_b64_tr_b16", WB + 4 * (g % NBUF) + 2 * h, 2, base, off + 512 * h, g)

    def pack(acc, pk):
        return ["v_cvt_pk_bf16_f32 %s, %s, %s" % (vr(pk + q), vr(acc + 2 * q), vr(acc + 2 * q + 1)) for q in range(8)]

    def st2(pk, va, base, delta, tag, imm=(0, 0), vb=None):
        def first():
            bstore(pk, 4, va, SWS, base, imm[0], "" if cfg.abl & 64 else "sc1", tag)

        def second():
            if delta:
                a("s_add_u32 s72, %s, %d" % (base, delta))
            bstore(pk + 4, 4, vb or va, SWS, "s72" if delta else base, imm[1], "" if cfg.abl & 64 else "sc1", tag)
        return [first, second]

    def relu2(acc):
        return (["v_max_f32 %s, 0, %s" % (vr(acc + i), vr(acc + i)) for i in range(16)]
                + ["v_mul_f32 %s, %s, %s" % (vr(acc + i), vr(acc + i), vr(acc + i)) for i in range(16)])

    def bias(seg):
        ops = [lambda: vm.wait("b1")]
        for q in range(4):
            ops.append("v_lshlrev_b32 %s, 16, %s" % (vr(ACC[seg] + 2 * q), vr(112 + 4 * seg + q)))
            ops.append("v_and_b32 %s, s89, %s" % (vr(ACC[seg] + 2 * q + 1), vr(112 + 4 * seg + q)))
        return ops

    tagq = ["v_or_b32 %s, 1, %s" % (vr(PK + 4 * q), vr(PK + 4 * q)) for q in range(2)]
    qkv_epi = (["v_mul_f32 %s, 0x%x, %s" % (vr(ACC[0] + i), QSCALE, vr(ACC[0] + i)) for i in range(16)]
               + pack(ACC[0], PK) + tagq + st2(PK, 14, "s76", 0, "st", (0, 256))
               + pack(ACC[1], PK + 8) + st2(PK + 8, 11, "s77", 0, "st", (0, 256))
               + pack(ACC[2], PK) + st2(PK, 12, "s77", 0, "st", (1024, 1152))
               + bias(0) + bias(1) + bias(2))
    sched = {144: init1, 174: init2}
    if cfg.zall:
        sched = {108 + 12 * t: init1[16 * t:16 * t + 16] for t in range(4)}
        sched[174] = init2
    shadow = []

    def run_shadow(budget):
        while shadow and budget > 0:
            op = shadow.pop(0)
            if isinstance(op, str):
                a(op)
                budget -= 1
            else:
                op()
                budget -= 3

    mark = len(a.items)
    if cfg.salate == 2:
        setup_a()
    a("""
    s_lshl_b32 s85, s60, 14
    s_lshl_b32 s72, s67, 7
    s_add_u32 s85, s85, s72
    s_lshl_b32 s86, s60, 6
    s_lshl1_add_u32 s86, s66, s86
    s_lshl_b32 s86, s86, 10
    s_add_u32 s86, s86, %d
    s_lshl_b32 s87, s66, FROW
    s_add_u32 s87, s87, %d
    """ % (WS_HF, WS_FLAGH))
    if cfg.salate == 2:
        late_ops = [v.text for k, v in a.items[mark:] if k == "ins"]
        del a.items[mark:]
        sched[0] = late_ops
    vm.wait(("w", 0))
    a("s_waitcnt lgkmcnt(0)")
    a("s_add_u32 %s, %s, 0x%x" % (sr(sTAG), sr(sTAG), EPOCH_INC))
    if cfg.bst == 3:
        stamp(9, True)
    a("s_barrier")
    stamp(3)
    if cfg.bst == 3:
        stamp(10, True)
    for g in range(LA):
        reads(g)
    for g in range(192):
        kk, seg, ab = item(g)
        if g == 96:
            stamp(4)
            shadow.extend(qkv_epi)
            run_shadow(1000)
            stamp(5)
            a("s_barrier")
            for n in range(96, 96 + LA):
                reads(n)
        lg.wait(*range(g, g - g % cfg.wgrp + cfg.wgrp))
        w = WB + 4 * (g % NBUF)
        n = g + LA
        more = n < 192 and not g < 96 <= n
        shadow.extend(sched.get(g, ()))
        for h, t in enumerate((1, 0)):
            x = XF + 8 * kk + 4 * t
            if g < 96 and seg == 2:
                d = ACC[seg] + 8 * ab + 4 * t
                mfma16(d, x, w, None if kk == 0 else d)
            else:
                d = ACC[seg] + 8 * t + 4 * ab
                mfma16(d, w, x, d if kk else (None if g < 96 else ACC[seg] + 4 * ab))
            if more and h == 0 and n % 12 == 0:
                vm.wait(("w", n // 12))
                if n // 12 == cfg.flag_chunk:
                    vm.wait("st")
                a("s_barrier")
                if n // 12 == cfg.flag_chunk:
                    a("s_cmp_lg_u32 s60, 0")
                    a("s_cselect_b32 s79, 0x40000000, s79")
                    set_flag(7, "s79")
                    stamp(6)
            if more:
                reads(n, h)
            run_shadow((1 - h if g < 96 else 1) if more else 2)
        if g == (88 if cfg.salate == 2 else 40):
            run_shadow(1000)
            for q in range(6):
                bload(112 + 2 * q, 2, 10, SB1, "s81", (q >> 1) * 128 + (q & 1) * 16, "", "b1")
    run_shadow(1000)
    stamp(7)
    hmath, hst = [], []
    for seg in range(3):
        pk = PK + 8 * seg
        hmath.append(relu2(ACC[seg]) + pack(ACC[seg], pk))
        hst.append((["s_add_u32 s78, s78, 0x40000"] if seg == 1 else []) + st2(pk, 127, "s78" if seg < 2 else "s88", 0, "hst", (0, 256)))
    for seg in range(cfg.hbar):
        shadow.extend(hmath[seg])
    run_shadow(1000)
    a("s_barrier")
    stamp(8)
    if cfg.bst == 4:
        stamp(1, True)
    a("s_setprio 2")
    for seg in range(cfg.hbar, cfg.hpre):
        shadow.extend(hmath[seg])
    run_shadow(1000)
    att_loads("a")
    hlist = [[hst[0][0]], [hst[0][1]], hst[1][:2], [hst[1][2]], [hst[2][0]], [hst[2][1]]]
    for seg in range(3):
        shadow.extend(hmath[seg] if seg >= max(cfg.hpre, cfg.hbar) else [])
        for n in (2 * seg, 2 * seg + 1):
            if n < cfg.hnow:
                shadow.extend(hlist[n])
    run_shadow(1000)
    stamp(9)


    def w2dma(i):
        if cfg.abl & 1:
            return
        a("s_add_u32 m0, s84, %d" % ((i & 3) * 2048))
        a("s_add_u32 s72, s85, %d" % (i * 65536))
        dma(4, SW2, "s72", 0, ("w2", i))
        a("s_add_u32 s72, s72, 7168")
        dma(4, SW2, "s72", 1024, ("w2", i))

    hreg = lambda i, tt: HB + 8 * (i % 3) + 4 * tt

    def hload(i):
        if cfg.abl & 1:
            return
        if i > 0:
            a("s_add_u32 s86, s86, 0x40000")
        for tt in range(2):
            bload(hreg(i, tt), 4, 1, SWS, "s86", tt * 1024, "sc1", ("h", i))

    def w2read(i, nt):
        if cfg.abl & 2:
            return
        vm.wait(("w2", i))
        trread(WF + 4 * nt, 5 + nt, (i & 3) * 2048, 1024, ("wf", i, nt))

    def fslot(f):
        i, m = divmod(f, 4)
        nt, tt = ((0, 0), (0, 1), (1, 1), (1, 0))[m]
        vm.wait(("h", i))
        lg.wait(("wf", i, nt))
        d = FA + 16 * (2 * tt + nt)
        if not cfg.abl & 4:
            mfma32(d, WF + 4 * nt, hreg(i, tt), None if i == 0 else d)
        if m == 1 and i + 1 < NS:
            deferred.append(lambda: w2read(i + 1, 0))
        if m == cfg.dmam and i + 4 < NS:
            deferred.append(lambda: w2dma(i + 4))
        if m == 3:
            if i + 1 < NS:
                deferred.append(lambda: w2read(i + 1, 1))
            if i + 3 < NS:
                deferred.append(lambda: hload(i + 3))

    def park(tt, nt):
        d = FA + 16 * (2 * tt + nt)
        for q in range(8):
            a("v_cvt_pk_bf16_f32 %s, %s, %s" % (vr(d + q), vr(d + 2 * q), vr(d + 2 * q + 1)))
        for q in range(2):
            dsw("ds_write_b128", 4, d + 4 * q, 4, tt * 32 * PART_STRIDE + nt * 64 + q * 32)

    def park_addr():
        a("v_and_b32 v4, 31, v0")
        a("v_mul_u32_u24 v4, %d, v4" % PART_STRIDE)
        a("v_lshrrev_b32 v5, 5, v0")
        a("v_lshl_add_u32 v4, v5, 4, v4")
        a("v_add_u32 v4, s84, v4")

    hooks = {}

    def hook(j, t, i, f):
        hooks.setdefault((j, t, i), []).append(f)

    n1 = cfg.n1
    for n in range(cfg.hnow, 6):
        tl = (n - cfg.hnow) * cfg.hgap + cfg.hoff
        hook(tl >> 2, tl & 3, 9, lambda n=n: (shadow.extend(hlist[n]), run_shadow(1000)))
    assert (5 - cfg.hnow) * cfg.hgap + cfg.hoff <= cfg.hflag < 4 * (n1 - 2)
    hook(cfg.hflag >> 2, cfg.hflag & 3, 12, lambda: (vm.wait("hst"), set_flag(7, "s80"), stamp(1) if cfg.hst else None))
    hook(n1 - 2, 0, 8, lambda: flag_load(7, cfg.fsh, "s87", "hf"))
    hook(n1 - 2, 3, 12, lambda: (vm.wait("hf"), stamp(2) if cfg.hst else None, check_flags("h", 7, cfg.fsh, "s87"), stamp(3) if cfg.hst else None))
    for i in range(4):
        hook(n1 - 3 + (i >> 1), 1 + (i & 1), 7, lambda i=i: w2dma(i))
    for i in range(3):
        hook(n1 - 1, i, 7, lambda i=i: hload(i))
    hook(n1 - 1, 3, 7, lambda: (w2read(0, 0), w2read(0, 1)))
    pat = [int(ch) for ch in str(cfg.fpat)]
    slots = [(j, t, pos) for j in range(n1, nA) for t in range(4) for pos in ((13,), (7, 13))[pat[t] - 1]]
    for f in range(4 * NS):
        hook(*slots[f], lambda f=f: fslot(f))
    tl = slots[4 * NS - 1][0] * 4 + slots[4 * NS - 1][1] + 1
    assert tl + 3 < 4 * nA
    hook(tl >> 2, tl & 3, 6, park_addr)
    for n, (nt, tt) in enumerate(((0, 0), (0, 1), (1, 1), (1, 0))):
        hook((tl + n) >> 2, (tl + n) & 3, 7, lambda tt=tt, nt=nt: park(tt, nt))
    if cfg.hst:
        for n in range(4):
            hook(n1 + 4 * n, 0, 1, lambda n=n: stamp(4 + n))
    if cfg.alow:
        tl = 4 * nA - cfg.alow
        hook(tl >> 2, tl & 3, 0, lambda: a("s_setprio 0"))
    if cfg.bst == 4:
        for n, j in enumerate(range(0, nA, 2)):
            hook(j, 0, 0, lambda n=n: stamp(2 + n, True))
    att_run(nA, hooks)
    vm.drain()
    a("s_branch L_att_done")

    a.label("L_loader")
    vm.items = []
    lg.items = []

    def b_setup():
        a("; waves 4-7: W1 DMA offsets v56/v57 (sixth tile out of range where the next group owns it), wo DMA offset v4, flagQ row s79")
        a("""
        v_mul_u32_u24 v56, 2752, v4
        v_add_u32 v56, v56, v6
        s_lshr_b32 s72, 0xf8, s61
        s_and_b32 s72, s72, 1
        s_lshl_b32 s72, s72, 23
        v_and_b32 v57, 64, v6
        v_mad_u32_u24 v57, v57, s72, v56
        v_xor_b32 v58, 16, v56
        v_xor_b32 v59, 16, v57
        v_bfe_u32 v6, v4, 1, 2
        v_lshlrev_b32 v6, 1, v6
        v_xor_b32 v6, v6, v5
        v_lshlrev_b32 v6, 4, v6
        v_lshl_add_u32 v4, v4, 10, v6
        v_min_u32 v5, %d, v0
        v_lshlrev_b32 v5, 7, v5
        s_lshr_b32 s79, s64, 1
        s_lshl_b32 s79, s79, 10
        s_add_u32 s79, s79, %d
        s_and_b32 s73, s60, 3
        s_lshl_b32 s72, s69, 6
        s_mul_i32 s80, s73, %d
        s_add_u32 s80, s80, s72
        """ % (cfg.pfn - 1, WS_FLAGQ, 16 * 2752))

        a("v_mov_b32 v3, 0xdddddddd")

    issued = cfg.lead
    setup1()
    if cfg.bpre:
        issued += 1
        issue_chunk(issued)
    state = {"issued": issued}

    def b_step(c):
        if c in skip_bar:
            return
        vm.wait(("w", c + 1 if c + 1 in skip_bar else c))
        if cfg.bst == 2:
            stamp(c, True)
        if cfg.bst == 3 and c == 0:
            stamp(9, True)
        a("s_barrier")
        if cfg.bst == 1:
            stamp(c, True)
        if c in (0, 8, 12, 15):
            stamp({0: 3, 8: 4, 12: 5, 15: 6}[c])
        if c == cfg.bload - 1:
            flag_load(7, 4, "s79", "qf")
        if c == cfg.bload:
            vm.wait("qf")
            check_flags("q", 7, 4, "s79")
            stamp(7)
            att_loads("b")
        lim = c + 2
        if c < 8:
            lim = min(lim, cfg.hold)
        if cfg.split and c == 8:
            lim = 10 + cfg.split - 1
        if cfg.xslot == 12 and c == 9:
            lim = 12
        if cfg.xslot == 11 and c in (8, 9):
            lim = c + 3
        if cfg.xslot and c >= 11:
            lim = c + cfg.xrun
        while state["issued"] < min(15, max(3, lim)):
            state["issued"] += 1
            issue_chunk(state["issued"])
        if c == 0:
            setup_pf()
        if c == cfg.sA:
            setup2()
        if cfg.pf1_at == 12 + c:
            pf1()
        if c == cfg.sB:
            b_setup()
        if c == cfg.sC:
            setup3()
        if c == cfg.l2w:
            pfl2(SW1)
        if c == cfg.pfe:
            a("; memory-side prefetch of w2 and wo")
            bload(32, 1, 31, SW2, "s100", 0, "", "pf")
            bload(32, 1, 31, SWO, "s100", 0, "", "pf")
        if c == cfg.sC:
            for op in init1 + init2:
                a(op)
        if c == 7:
            a("s_waitcnt lgkmcnt(0)")
            a("s_add_u32 %s, %s, 0x%x" % (sr(sTAG), sr(sTAG), EPOCH_INC))

    def b_att():
        a("s_barrier")
        stamp(8)
        a("s_setprio 1")
        if cfg.kv3:
            kvload(2)

    bhooks = {}
    for c in range(17):
        f = (lambda c=c: b_step(c)) if c < 16 else b_att
        if c <= cfg.bjoin:
            f()
        else:
            tl = (c - cfg.bjoin) * cfg.btile - 1
            bhooks[(tl >> 2, tl & 3, 13)] = [f]

    def wo_dma(lo, hi):
        if cfg.abl & 8:
            return
        if lo == 0:
            a("; wo tile -> LDS [0, 64K), a few rows per score tile")
            a("s_and_b32 s78, s60, 3")
            a("s_lshl_b32 s76, s78, 17")
            a("s_lshl_b32 s73, s67, 7")
            a("s_add_u32 s76, s76, s73")
            a("s_lshl_b32 s78, s78, 14")
        for i in range(lo, hi):
            a("s_add_u32 m0, s78, %d" % (i * 1024))
            a("s_add_u32 s73, s76, %d" % (i * 8192))
            dma(4, SWO, "s73", 0, "wo")

    nl = cfg.pfn
    batches = [(SW2, i) for i in range(-(-11 // nl))] + [(SWO, i) for i in range(-(-4 // nl))]

    def pf_late(n):
        if cfg.abl & 16:
            return
        if n == 0:
            a("; memory-side prefetch of w2 (in k order) and wo, a few lines per wave at a time")
            a("s_and_b32 s90, s60, 3")
            a("s_lshl2_add_u32 s90, s2, s90")
            a("s_mul_i32 s90, s90, %d" % (nl * 128))
        a("s_add_u32 s72, s90, %d" % (batches[n][1] * nl * 131072))
        bload(7, 1, 5, batches[n][0], "s72", 0, "", "pf")

    for n in range(len(batches) if cfg.pfe > 90 else 0):
        tl = cfg.pfl + n * cfg.pfg
        bhooks[(tl >> 2, tl & 3, 7)] = [lambda n=n: pf_late(n)]
    for n, lo in enumerate(range(0, 16, cfg.won)):
        bhooks[((cfg.wol + n) >> 2, (cfg.wol + n) & 3, 8)] = [lambda lo=lo: wo_dma(lo, lo + cfg.won)]
    if cfg.bst == 4:
        for j in range(nB):
            bhooks.setdefault((j, 0, 0), []).append(lambda j=j: stamp(2 + j, True))
    att_run(nB, bhooks)
    vm.drain()

    OW = OA + 48
    WOF, OFR, AC, G, Z, X, SR = 128, 24, 8, 64, 96, 104, 112
    a.label("L_att_done")
    stamp(10)
    if cfg.bst == 4:
        stamp(14, True)
    a("s_setprio 0")
    a("s_and_b32 s73, s60, 1")
    a("s_lshl_b32 s73, s73, 9")
    a("s_sub_u32 s76, s95, s73")
    a("""
    s_and_b32 s74, s60, 3
    s_lshr_b32 s75, s60, 2
    v_lshrrev_b32 v14, 3, v0
    v_and_b32 v7, 7, v0
    v_lshlrev_b32 v7, 4, v7
    v_lshl_add_u32 v14, v14, 10, v7
    s_lshl3_add_u32 s78, s66, s60
    s_lshl_b32 s78, s78, 13
    s_lshl_b32 s79, s67, 7
    s_add_u32 s78, s78, s79
    """)
    bload(60, 4, 7, SB2, "s79", 0, "", "xb")
    bload(56, 4, 14, SX, "s78", 0, "", "xb")
    lg.drain()
    a("s_barrier")
    for src in range(3):
        d = SB + 10 * src
        dsr("ds_read_b128", d, 4, 9, src * 2304, src)
        dsr("ds_read_b128", d + 4, 4, 9, src * 2304 + 1024, src)
        dsr("ds_read_b32", d + 8, 1, 10, src * 2304 + 2048, src)
    for src in range(3):
        lg.wait(src)
        for i in range(0, 8, 2):
            a("v_pk_add_f32 %s, %s, %s" % (vr(OW + i, 2), vr(OW + i, 2), vr(SB + 10 * src + i, 2)))
        a("v_add_f32 %s, %s, %s" % (vr(OW + 8), vr(OW + 8), vr(SB + 10 * src + 8)))
    a("v_pk_mul_f32 v[12:13], %s, 0 op_sel_hi:[1,0]" % vr(OW, 2))
    for i in range(2, 8, 2):
        a("v_pk_fma_f32 v[12:13], %s, 0, v[12:13] op_sel_hi:[1,0,1]" % vr(OW + i, 2))
    a("""
    v_add_f32 v12, v12, %s
    v_add_f32 v12, v12, v13
    v_cmp_nle_f32 vcc, 0x30800000, v12
    s_mov_b64 s[72:73], vcc
    v_cmp_nge_f32 vcc, 0x5d800000, v12
    s_or_b64 s[72:73], s[72:73], vcc
    """ % vr(OW + 8))
    a("s_branch L_slow" if cfg.force_slow else "s_cbranch_scc1 L_slow")
    a.label("L_norm")
    a("v_rcp_f32 v12, %s" % vr(OW + 8))
    for i in range(0, 8, 2):
        a("v_pk_mul_f32 %s, %s, v[12:13] op_sel_hi:[1,0]" % (vr(OW + i, 2), vr(OW + i, 2)))
    for q in range(4):
        a("v_cvt_pk_bf16_f32 %s, %s, %s" % (vr(16 + q), vr(OW + 2 * q), vr(OW + 2 * q + 1)))
    a("v_and_b32 v16, -2, v16")
    bstore(16, 4, 11, SWS, "s76", 0, "sc1", "ost")
    stamp(11)
    a("v_mov_b32 v2, v14")
    a("v_lshrrev_b32 v3, 3, v0")
    a("""
    v_mul_u32_u24 v4, %d, v3
    s_mul_i32 s72, s60, %d
    s_add_u32 s72, s72, %d
    v_add3_u32 v4, v4, v7, s72
    """ % (PART_STRIDE, 8 * PART_STRIDE, L_W2))
    for j in range(4):
        dsr("ds_read_b128", G + 4 * j, 4, 4, j * W2_REGION, "g")
    a("""
    v_bfe_u32 v4, v0, 2, 2
    v_bfe_u32 v5, v0, 4, 1
    v_lshl_add_u32 v4, v5, 2, v4
    v_lshrrev_b32 v5, 1, v4
    v_lshlrev_b32 v92, 7, v4
    v_lshl_add_u32 v92, v5, 5, v92
    v_lshrrev_b32 v6, 5, v0
    v_lshl_add_u32 v92, v6, 11, v92
    v_and_b32 v4, 3, v0
    v_lshl_add_u32 v92, v4, 3, v92
    s_lshl_b32 s72, s75, 15
    v_add_u32 v92, s72, v92
    v_xor_b32 v93, 32, v92
    v_xor_b32 v94, 64, v92
    v_xor_b32 v95, 0x60, v92
    s_barrier
    """)

    def oloads(first=0):
        for ks in range(first, 8):
            bload(OFR + 4 * ks, 4, 1, SWS, ("s76", "s77", "s80", "s81")[ks >> 1], (ks & 1) * 2048, "sc1", ("o", ks))

    fill = ("""
    s_lshl2_add_u32 s72, s66, s74
    s_lshr_b32 s76, s72, 1
    s_lshl1_add_u32 s76, s76, s75
    s_lshl_b32 s76, s76, 14
    s_and_b32 s72, s72, 1
    s_lshl_b32 s72, s72, 10
    s_add_u32 s76, s76, s72
    s_add_u32 s76, s76, %d
    s_add_u32 s77, s76, 0x1000
    s_add_u32 s80, s76, 0x2000
    s_add_u32 s81, s76, 0x3000
    v_mul_u32_u24 v3, %d, v3
    v_lshl_add_u32 v3, v7, 1, v3
    s_mul_i32 s72, s60, %d
    s_add_u32 s72, s72, %d
    v_add_u32 v3, s72, v3
    v_and_b32 v5, 15, v0
    v_mul_u32_u24 v5, %d, v5
    v_and_b32 v4, 48, v0
    s_mul_i32 s72, s60, %d
    s_add_u32 s72, s72, %d
    v_add3_u32 v5, v5, v4, s72
    s_mov_b32 s82, 0x3f80
    s_mov_b32 s83, 0x3f800000
    """ % (WS_QO, SUM_STRIDE, 8 * SUM_STRIDE, L_SUM, SUM_STRIDE, 16 * SUM_STRIDE, L_SUM)).strip().split("\n")
    gate = ["v_mov_b32 %s, 0" % vr(Z + i) for i in range(8)]
    gate.append(lambda: lg.wait("g"))
    for j in range(5):
        if j == 4:
            gate.append(lambda: vm.wait("xb"))
        for q in range(4):
            src = G + 4 * j + q if j < 4 else 60 + q
            gate.append("v_dot2c_f32_bf16 %s, s82, %s" % (vr(Z + 2 * q), vr(src)))
            gate.append("v_dot2c_f32_bf16 %s, s83, %s" % (vr(Z + 2 * q + 1), vr(src)))
    for q in range(4):
        gate.append("v_lshlrev_b32 %s, 16, %s" % (vr(X + 2 * q), vr(56 + q)))
        gate.append("v_and_b32 %s, s89, %s" % (vr(X + 1 + 2 * q), vr(56 + q)))
    gate += ["v_mul_f32 %s, 0x%x, %s" % (vr(G + i), NLOG2E, vr(Z + i)) for i in range(8)]
    gate += ["v_exp_f32 %s, %s" % (vr(G + i), vr(G + i)) for i in range(8)]
    gate += ["v_add_f32 %s, 1.0, %s" % (vr(G + i), vr(G + i)) for i in range(8)]
    gate += ["v_rcp_f32 %s, %s" % (vr(G + i), vr(G + i)) for i in range(8)]
    gate += ["v_mul_f32 %s, %s, %s" % (vr(Z + i), vr(Z + i), vr(G + i)) for i in range(8)]

    def wo_reads(oat, per):
        for ks in range(8):
            for ct in range(4):
                trread(WOF + (ks * 4 + ct) * 4, 92 + ct, ks * 4096, 1024, ("wo", ks))
                run_shadow(per)
            if ks == oat:
                run_shadow(1000)
                vm.wait("ost")
                oloads()

    vm_t, lg_t = list(vm.items), list(lg.items)
    a("s_cmp_eq_u32 s63, 1")
    a("s_cbranch_scc1 L_tail_b")
    shadow.extend(fill)
    wo_reads(7, 1)
    shadow.extend(gate)
    run_shadow(1000)
    a("s_branch L_tail_j")
    a.label("L_tail_b")
    vm.items, lg.items = vm_t, lg_t
    shadow.extend(fill + gate)
    run_shadow(1000)
    wo_reads(cfg.oat, 0)
    a.label("L_tail_j")
    stamp(12)
    a("s_mov_b32 s73, 0")
    lg.drain()
    for ks in range(8):
        a.label("L_wo_%d" % ks)
        vm.wait(("o", ks))
        a("v_and_b32 v6, 1, %s" % vr(OFR + 4 * ks))
        a("v_cmp_ne_u32 vcc, 0, v6")
        a("s_cbranch_vccnz L_oretry_%d" % ks)
        a.label("L_ogo_%d" % ks)
        for ct in range(4):
            d = AC + 4 * ct
            mfma16(d, WOF + (ks * 4 + ct) * 4, OFR + 4 * ks, None if ks == 0 else d)
    stamp(13)
    for ct in range(4):
        dsw("ds_write_b128", 5, AC + 4 * ct, 4, ct * 64)
    lg.drain()
    a("s_barrier")
    stamp(14)
    dsr("ds_read_b128", SR, 4, 3, 0, 0)
    dsr("ds_read_b128", SR + 8, 4, 3, SUM_SIZE, 0)
    dsr("ds_read_b128", SR + 4, 4, 3, 16, 1)
    dsr("ds_read_b128", SR + 12, 4, 3, SUM_SIZE + 16, 1)
    for h in range(2):
        lg.wait(h)
        for i in range(4 * h, 4 * h + 4, 2):
            a("v_pk_add_f32 %s, %s, %s" % (vr(SR + i, 2), vr(SR + i, 2), vr(SR + 8 + i, 2)))
        for i in range(4 * h, 4 * h + 4, 2):
            a("v_pk_fma_f32 %s, %s, %s, %s" % (vr(SR + i, 2), vr(SR + i, 2), vr(Z + i, 2), vr(X + i, 2)))
        for q in range(2 * h, 2 * h + 2):
            a("v_cvt_pk_bf16_f32 %s, %s, %s" % (vr(G + q), vr(SR + 2 * q), vr(SR + 2 * q + 1)))
    bstore(G, 4, 2, SOUT, "s78", 0, ("", "sc1", "nt", "sc0 sc1", "sc0 sc1 nt")[cfg.omod])
    a("s_or_b32 s72, s2, s60")
    a("s_cmp_lg_u32 s72, 0")
    a("s_cbranch_scc1 L_noepoch")
    set_flag(7, "0")
    a.label("L_noepoch")
    if cfg.stamps:
        a("s_waitcnt vmcnt(0)")
        stamp(15)
        if cfg.probe is not None:
            a("s_sub_u32 s72, %s, s4" % sr(sSTAMP + cfg.probe))
            if cfg.stamps == 2:
                a("s_lshr_b32 s72, s72, 3")
            else:
                a("s_lshl_b32 s72, s72, %d" % cfg.probesh)
            a("s_cmp_lg_u32 s2, %d" % cfg.probewg)
            a("s_cselect_b32 s72, 0, s72")
            a("s_cmp_lg_u32 s60, %d" % cfg.probew)
            a("s_cselect_b32 s72, 0, s72")
            a("s_memrealtime s[22:23]")
            a("s_waitcnt lgkmcnt(0)")
            a("s_mov_b32 s73, s22")
            a.label("L_probe")
            a("s_memrealtime s[22:23]")
            a("s_waitcnt lgkmcnt(0)")
            a("s_sub_u32 s22, s22, s73")
            a("s_cmp_lt_u32 s22, s72")
            a("s_cbranch_scc1 L_probe")
        a("s_lshl3_add_u32 s72, s2, s60")
        a("s_lshl_b32 s72, s72, 6")
        a("s_add_u32 s72, s72, %d" % WS_STAMP)
        for i in range(16):
            a("v_mov_b32 %s, %s" % (vr(80 + i), sr(sSTAMP + i)))
        a("s_mov_b64 exec, 1")
        for i in range(4):
            bstore(80 + 4 * i, 4, 1, SWS, "s72", 16 * i)
    a.label("L_end")
    a("s_endpgm")

    for ks in range(8):
        a.label("L_oretry_%d" % ks)
        a("s_add_u32 s73, s73, 1")
        a("s_cmp_ge_u32 s73, %d" % SPIN_MAX)
        a("s_cbranch_scc1 L_ogo_%d" % ks)
        a("s_waitcnt vmcnt(0)")
        oloads(ks)
        a("s_branch L_wo_%d" % ks)

    for tag, vt, lanes, soff in stubs:
        a.label("L_poll_" + tag)
        a("s_mov_b32 s73, 0")
        a.label("L_poll2_" + tag)
        a("s_sleep %d" % cfg.sleep)
        flag_load(vt, lanes, soff, None)
        a("s_add_u32 s73, s73, 1")
        a("s_waitcnt vmcnt(0)")
        a("s_cmp_ge_u32 s73, %d" % SPIN_MAX)
        a("s_cbranch_scc1 L_polled_" + tag)
        a("v_cmp_ne_u32 vcc, %s, %s" % (sr(sTAG), vr(vt)))
        a("s_cbranch_vccnz L_poll2_" + tag)
        a("s_branch L_polled_" + tag)

    a.label("L_slow")
    CN = SB + 16
    a("s_waitcnt vmcnt(0)")
    a("v_mov_b32 v13, 0xff800000")
    a("s_mov_b32 s82, s83")
    a("s_mov_b32 s81, 64")
    a.label("L_slow1")
    bload(KV, 4, 252, SWS, "s82", 0, "sc1")
    a("s_add_u32 s82, s82, 2048")
    a("s_waitcnt vmcnt(0)")
    mfma32(SB, KV, QR + 12, None)
    for i in range(0, 16, 2):
        a("v_max3_f32 v13, v13, %s, %s" % (vr(SB + i), vr(SB + i + 1)))
    a("s_sub_u32 s81, s81, 1")
    a("s_cmp_lg_u32 s81, 0")
    a("s_cbranch_scc1 L_slow1")
    a("v_mov_b32 v15, v13")
    a("v_permlane32_swap_b32 v15, v13")
    a("v_max_f32 v13, v15, v13")
    for i in range(16):
        a("v_sub_f32 %s, 0, v13" % vr(CN + i))
        a("v_mov_b32 %s, 0" % vr(OW + i))
    a("s_mov_b32 s82, s83")
    a("s_mov_b32 s81, 64")
    a.label("L_slow2")
    kvload(0)
    a("s_waitcnt vmcnt(0)")
    mfma32(SB, KV, QR + 12, CN)
    for i in range(16):
        a("v_exp_f32 %s, %s" % (vr(SB + i), vr(SB + i)))
    smf(OW, KV + 4, SB)
    smf(OW, KV + 8, SB + 8)
    a("s_sub_u32 s81, s81, 1")
    a("s_cmp_lg_u32 s81, 0")
    a("s_cbranch_scc1 L_slow2")
    a("s_branch L_norm")
    a.label("L_code_end")
    a("s_endpgm")

    added = a.fix()
    return a.text().replace('FSH', str(cfg.fsh)).replace('FROW', str(cfg.fsh + 5)), added


HEADER = """; Kernarg layout for this problem (88 bytes, ptrs only, base s[0:1]):
; @launch grid=(256,1,1) block=(512,1,1) lds=163840
.amdgcn_target "amdgcn-amd-amdhsa--gfx950"
.text
.globl {k}
.p2align 8
.type {k},@function
{k}:
"""

FOOTER = """.section .rodata,"a"
.p2align 6
.amdhsa_kernel {k}
  .amdhsa_next_free_vgpr 256
  .amdhsa_next_free_sgpr 102
  .amdhsa_accum_offset 256
  .amdhsa_group_segment_fixed_size 0
  .amdhsa_kernarg_size 88
  .amdhsa_user_sgpr_count 2
  .amdhsa_user_sgpr_kernarg_segment_ptr 1
  .amdhsa_system_sgpr_workgroup_id_x 1
.end_amdhsa_kernel
"""


def build(**kw):
    cfg = Cfg()
    for k, v in kw.items():
        setattr(cfg, k, v)
    body, added = gen(cfg)
    return HEADER.format(k=KERNEL) + body + FOOTER.format(k=KERNEL), added


if __name__ == "__main__":
    out = sys.argv[1] if len(sys.argv) > 1 else "cdna_kernels/%s.s" % NAME
    kw = {}
    for arg in sys.argv[2:]:
        k, v = arg.split("=")
        kw[k] = int(v)
    text, added = build(**kw)
    open(out, "w").write(text)
    print("wrote", out, "lines", text.count("\n"), "nops added", added)
```

```python
import sys
import os
sys.path.insert(0, os.path.dirname(os.path.abspath(__file__)))
from asmlib import Asm, vr, sr

NAME = "recurrent_scan__softmax_full_mha__dense_activation_squared_relu__prompt"
KERNEL = NAME + "_kernel"

WS_FLAGQ = 0x1200
WS_FLAGH = 0x60000
WS_STAMP = 0x10000
WS_QO = 0x100000
WS_KV = 0x300000
WS_HF = 0x700000
WS_END = WS_HF + 86 * 65536
EPOCH_INC = 0x9E3779B9
SPIN_MAX = 1 << 18

L_RING = 65536
L_OPART = 65536
L_W2 = L_OPART + 55296
W2_REGION = 10240
PART_STRIDE = 144
SUM_STRIDE = 272
SUM_SIZE = 64 * SUM_STRIDE
L_SUM = L_OPART

SX, SWQ, SWO, SW1, SB1, SW2, SB2, SOUT, SWS = 24, 28, 32, 36, 40, 44, 48, 52, 56
sW, sCG, sTB, sRW, sP, sQB, sTBF, sCB, sTAG, sCT0 = 60, 61, 62, 63, 64, 65, 66, 67, 68, 69
sVM = 70
sSTAMP = 4

QSCALE = 0x3EB8AA3B
NLOG2E = 0xBFB8AA3B
NS = 22


class Cfg:
    abl = 0
    bst = 0
    xslot = 0
    xrun = 2
    n1 = 8
    nA = 22
    gap = 1
    kvt = 0
    kvi = 4
    dmam = 2
    fpat = 2221
    pf1_at = 12
    pfc_at = 99
    pfc1 = 0
    w2_at = 10
    pfl = 9
    wol = 15
    won = 1
    stamps = 0
    force_slow = 0
    flag_chunk = 10
    lead = 1
    look = 5
    pfq_at = 99
    bload = 15
    bjoin = 16
    btile = 2
    sleep = 6
    w0_at = 7
    w1_at = 10
    hpre = 2
    hbar = 0
    hnow = 2
    hgap = 2
    hoff = 0
    kv3 = 1
    fsh = 4
    pfe = 99
    l2q = 99
    rot = 1
    split = 1
    wgrp = 1
    zall = 1
    salate = 2
    bpre = 0
    b1at = -10
    sA = 3
    sB = 3
    sC = 7
    hold = 99
    l2w = 99
    pfn = 11
    alow = 0
    pfg = 1
    hflag = 11
    probe = None
    omod = 1
    oat = 4
    probewg = 100
    probew = 0
    probesh = 4
    hst = 0


def srd(s):
    return sr(s, 4)


class Queue:
    def __init__(self, a, name, maxn):
        self.a, self.name, self.maxn, self.items = a, name, maxn, []

    def push(self, tag):
        self.items.append(tag)

    def wait(self, *tags):
        last = max((i for i, t in enumerate(self.items) if t in tags), default=-1)
        if last < 0:
            return
        n = len(self.items) - 1 - last
        self.a("s_waitcnt %s(%d)" % (self.name, min(n, self.maxn)))
        self.items = self.items[last + 1:]

    def drain(self):
        self.a("s_waitcnt %s(0)" % self.name)
        self.items = []


def gen(cfg):
    a = Asm()
    nA = cfg.nA
    nB = 32 - nA
    vm = Queue(a, "vmcnt", 63)
    lg = Queue(a, "lgkmcnt", 15)

    def stamp(i, force=False):
        if cfg.bst and not force and i != 0:
            return
        if cfg.stamps and (cfg.probe is None or i in (0, cfg.probe)):
            a("%s s[22:23]" % ("s_memtime" if cfg.stamps == 2 else "s_memrealtime"))
            a("s_waitcnt lgkmcnt(0)")
            a("s_mov_b32 %s, s22" % sr(sSTAMP + i))

    def mfma32(d, x, y, c):
        a("v_mfma_f32_32x32x16_bf16 %s, %s, %s, %s" % (vr(d, 16), vr(x, 4), vr(y, 4), "0" if c is None else vr(c, 16)))

    def mfma16(d, x, y, c):
        a("v_mfma_f32_16x16x32_bf16 %s, %s, %s, %s" % (vr(d, 4), vr(x, 4), vr(y, 4), "0" if c is None else vr(c, 4)))

    def smf(d, x, y):
        a("v_smfmac_f32_32x32x32_bf16 %s, %s, %s, v3" % (vr(d, 16), vr(x, 4), vr(y, 8)))

    def bload(d, n, va, s, so, off=0, mod="", tag=None):
        op = {1: "dword", 2: "dwordx2", 4: "dwordx4"}[n]
        a("buffer_load_%s %s, %s, %s, %s offen offset:%d %s" % (op, vr(d, n), vr(va), srd(s), so, off, mod))
        vm.push(tag)

    def bstore(d, n, va, s, so, off=0, mod="", tag=None):
        op = {1: "dword", 2: "dwordx2", 4: "dwordx4"}[n]
        a("buffer_store_%s %s, %s, %s, %s offen offset:%d %s" % (op, vr(d, n), vr(va), srd(s), so, off, mod))
        vm.push(tag)

    def dma(va, s, so, off=0, tag=None):
        a("buffer_load_dwordx4 %s, %s, %s offen offset:%d lds" % (vr(va), srd(s), so, off))
        vm.push(tag)

    def dsr(op, d, n, va, off, tag=None):
        a("%s %s, %s offset:%d" % (op, vr(d, n), vr(va), off))
        lg.push(tag)

    def dsw(op, va, d, n, off, tag=None):
        a("%s %s, %s offset:%d" % (op, vr(va), vr(d, n), off))
        lg.push(tag)

    def trread(d, va, off, second, tag=None):
        dsr("ds_read_b64_tr_b16", d, 2, va, off, tag)
        dsr("ds_read_b64_tr_b16", d + 2, 2, va, off + second, tag)

    def set_flag(vt, soff):
        a("v_mov_b32 %s, %s" % (vr(vt), sr(sTAG)))
        a("s_mov_b64 exec, 1")
        bstore(vt, 1, 1, SWS, soff, 0, "sc0 sc1")
        a("s_mov_b64 exec, -1")

    stubs = []

    def check_flags(tag, vt, lanes, soff):
        a("v_cmp_ne_u32 vcc, %s, %s" % (sr(sTAG), vr(vt)))
        a("s_cbranch_vccnz L_poll_" + tag)
        a.label("L_polled_" + tag)
        stubs.append((tag, vt, lanes, soff))

    def flag_load(vt, shift, soff, tag):
        a("v_and_b32 %s, 31, v0" % vr(vt))
        a("v_lshlrev_b32 %s, %d, %s" % (vr(vt), shift, vr(vt)))
        bload(vt, 1, vt, SWS, soff, 0, "sc0 sc1", tag)

    sizes = {SX: 2048 * 1024, SWQ: 512 * 3072, SWS: WS_END, SW1: 512 * 2752, SB1: 2752,
             SWO: 512 * 1024, SW2: 1376 * 1024, SB2: 1024, SOUT: 2048 * 1024}
    RAW = 128

    def xloads():
        for j in range(8):
            bload(RAW + j * 4, 4, 14, SX, "s101", j * 128, "", ("x", j))

    stamp(0)
    a("""
    s_load_dwordx2 s[24:25], s[0:1], 0
    s_getpc_b64 s[72:73]
    L_pc:
    s_cmpk_ge_u32 s2, 256
    s_cbranch_scc1 L_end
    s_lshr_b32 s74, s2, 3
    s_lshl_b32 s74, s74, 11
    v_lshrrev_b32 v8, 5, v0
    v_lshl_add_u32 v8, v8, 7, s74
    v_min_u32 v8, L_code_end-L_pc, v8
    v_mov_b32 v9, 0
    v_lshl_add_u64 v[8:9], v[8:9], 0, s[72:73]
    global_load_dword v7, v[8:9], off
    s_lshl_b32 s72, s2, 4
    s_and_b32 s72, s72, 0x180
    v_add_u32 v4, s72, v0
    v_bfe_u32 v4, v4, 3, 6
    v_and_b32 v5, 7, v0
    v_lshlrev_b32 v14, 10, v4
    v_lshl_add_u32 v14, v5, 4, v14
    s_lshr_b32 s67, s2, 5
    s_and_b32 s73, s2, 6
    s_lshl2_add_u32 s62, s73, s67
    s_lshl_b32 s101, s62, 16
    s_mov_b32 s26, %d
    s_mov_b32 s27, 0x20000
    v_bfe_u32 v24, v4, 1, 3
    v_xor_b32 v24, v24, v5
    v_lshlrev_b32 v15, 7, v4
    v_lshl_add_u32 v15, v24, 4, v15
    v_readfirstlane_b32 s60, v0
    v_and_b32 v0, 63, v0
    v_and_b32 v26, 3, v0
    v_mov_b32 v29, 0
    s_lshr_b32 s60, s60, 6
    s_cmp_ge_u32 s60, 4
    s_waitcnt lgkmcnt(0)
    """ % sizes[SX])
    vm.push("pf")
    if cfg.bst == 3:
        stamp(1, True)
    xloads()
    if cfg.bst == 3:
        stamp(2, True)
    if cfg.stamps:
        for i in range(3 if cfg.bst == 3 else 1, 16):
            a("s_mov_b32 %s, s4" % sr(sSTAMP + i))
    a("s_mov_b32 s63, 1")
    a("s_cbranch_scc1 L_ln")
    a("s_mov_b32 s63, 0")

    def setup1():
        for s, off in ((SWQ, 8), (SWS, 80), (SW1, 32), (SB1, 40), (SWO, 16), (SW2, 48), (SB2, 56), (SOUT, 64)):
            a("s_load_dwordx2 %s, s[0:1], %d" % (sr(s, 2), off))
        a("""
        s_mov_b32 s30, %d
        s_mov_b32 s31, 0x20000
        s_bfe_u32 s72, s2, 0x20003
        s_and_b32 s73, s2, 1
        s_lshl2_add_u32 s61, s73, s72
        s_and_b32 s74, s60, 3
        s_lshl_b32 s72, s61, 7
        s_mul_i32 s85, s74, %d
        s_add_u32 s85, s85, s72
        s_mul_i32 s87, s74, 6144
        s_add_u32 s87, s87, %d
        v_lshrrev_b32 v4, 3, v0
        v_bfe_u32 v6, v4, 1, 1
        v_lshlrev_b32 v6, 2, v6
        v_xor_b32 v6, v6, v5
        v_lshlrev_b32 v6, 4, v6
        v_mul_u32_u24 v13, 3072, v4
        v_add_u32 v13, v13, v6
        v_xor_b32 v33, 16, v13
        s_waitcnt lgkmcnt(0)
        """ % (sizes[SWQ], 16 * 3072, L_RING))

    def setup_pf():
        for s in (SW1, SWO, SW2):
            a("s_mov_b32 %s, %d" % (sr(s + 2), sizes[s]))
            a("s_mov_b32 %s, 0x20000" % sr(s + 3))
        a("""
        s_and_b32 s73, s60, 3
        s_lshl2_add_u32 s100, s2, s73
        s_mul_i32 s100, s100, 1536
        v_min_u32 v31, 11, v0
        v_lshlrev_b32 v31, 7, v31
        """)

    def setup2():
        a("s_load_dword %s, %s, 0" % (sr(sTAG), sr(SWS, 2)))
        for s in (SWS, SB1, SB2, SOUT):
            a("s_mov_b32 %s, %d" % (sr(s + 2), sizes[s]))
            a("s_mov_b32 %s, 0x20000" % sr(s + 3))
        a("""
        s_bfe_u32 s72, s2, 0x20003
        s_and_b32 s73, s2, 7
        s_lshl2_add_u32 s66, s73, s72
        s_and_b32 s72, s72, 1
        s_lshl1_add_u32 s64, s73, s72
        s_lshr_b32 s65, s2, 4
        s_mul_i32 s69, s61, 6
        s_mul_i32 s73, s61, 5
        s_add_u32 s73, s73, 3
        s_min_u32 s69, s69, s73
        s_mov_b32 s70, 0xffff
        s_mov_b32 s71, 0xffff
        v_lshlrev_b32 v1, 4, v0
        v_and_b32 v2, 15, v0
        v_lshrrev_b32 v3, 5, v0
        v_lshl_add_u32 v2, v3, 4, v2
        v_lshlrev_b32 v2, 4, v2
        """)

    def setup3():
        a("; attention offsets: s82 = next K/V tile, s83 = head base, s92-s95 = Q tiles, s96-s99 = O partial slots")
        a("""
        s_and_b32 s74, s60, 1
        s_lshr_b32 s75, s60, 1
        s_lshl1_add_u32 s72, s64, s74
        s_lshl_b32 s83, s72, 17
        s_add_u32 s83, s83, %d
        s_and_b32 s73, s75, 1
        s_lshl_b32 s73, s73, 16
        s_add_u32 s82, s83, s73
        s_lshl_b32 s72, s65, 6
        s_add_u32 s72, s72, s64
        s_lshl1_add_u32 s72, s72, s74
        s_lshl_b32 s72, s72, 10
        s_add_u32 s72, s72, %d
        s_mul_i32 s84, s74, %d
        s_add_u32 s84, s84, %d
        """ % (WS_KV, WS_QO, 12 * 2304, L_OPART))
        for t in range(4):
            a("s_xor_b32 s73, s75, %d" % (t ^ 3))
            a("s_mul_i32 %s, s73, %d" % (sr(96 + t), 3 * 2304))
            a("s_lshl_b32 s73, s73, 15")
            a("s_add_u32 %s, s72, s73" % sr(92 + t))
            a("s_add_u32 %s, %s, s84" % (sr(96 + t), sr(96 + t)))

    setup1()
    setup_pf()
    setup2()
    a("s_and_b32 s74, s60, 1")
    a("s_lshr_b32 s75, s60, 1")
    a("""
    v_bfe_u32 v9, v0, 4, 1
    v_and_b32 v16, 15, v0
    v_lshlrev_b32 v8, 4, v16
    v_lshl_add_u32 v8, v9, 9, v8
    v_lshl_add_u32 v11, v3, 17, v8
    v_lshl_add_u32 v14, v3, 10, v8
    v_lshl_add_u32 v127, v3, 16, v8
    v_lshrrev_b32 v17, 4, v0
    v_bfe_u32 v8, v0, 3, 1
    v_lshlrev_b32 v12, 4, v5
    v_lshl_add_u32 v12, v17, 8, v12
    v_lshl_add_u32 v12, v8, 17, v12
    v_lshrrev_b32 v8, 1, v16
    v_xor_b32 v8, v8, v17
    v_lshlrev_b32 v16, 7, v16
    v_lshl_add_u32 v16, v8, 4, v16
    s_lshl_b32 s72, s74, 12
    v_add_u32 v16, s72, v16
    v_xor_b32 v17, 64, v16
    v_lshl_add_u32 v4, v4, 10, v6
    v_bfe_u32 v10, v0, 2, 2
    v_lshrrev_b32 v6, 1, v10
    v_xor_b32 v8, s75, v6
    v_and_b32 v18, 2, v0
    v_lshl_add_u32 v8, v8, 2, v18
    v_add_u32 v8, v8, v9
    v_lshlrev_b32 v8, 1, v8
    v_and_or_b32 v8, v0, 1, v8
    v_lshlrev_b32 v8, 3, v8
    v_lshl_add_u32 v8, v10, 7, v8
    v_lshl_add_u32 v8, v9, 10, v8
    v_mul_u32_u24 v18, 6144, v3
    v_add_u32 v8, v8, v18
    v_add_u32 v8, %d, v8
    v_xor_b32 v18, 16, v8
    v_add_u32 v19, %d, v18
    v_lshlrev_b32 v5, 5, v9
    v_lshl_add_u32 v5, v10, 7, v5
    v_and_b32 v10, 3, v0
    v_lshl_add_u32 v5, v10, 3, v5
    v_lshl_add_u32 v5, v3, 9, v5
    v_lshl_add_u32 v5, v6, 6, v5
    v_lshrrev_b32 v10, 1, v0
    v_xor_b32 v10, v10, v0
    v_and_b32 v10, 1, v10
    v_mul_u32_u24 v10, 24, v10
    v_xor_b32 v5, v5, v10
    s_mul_i32 s84, s60, %d
    s_add_u32 s84, s84, %d
    v_add_u32 v5, s84, v5
    v_xor_b32 v6, 64, v5
    v_lshlrev_b32 v10, 3, v9
    v_lshl_add_u32 v10, v3, 5, v10
    v_xor_b32 v9, 16, v19
    v_mov_b32 v3, 0xdddddddd
    """ % (L_RING, 2 * 24576, W2_REGION, L_W2))

    def setup_a():
        setup3()
        a("s_add_u32 s82, s82, %d" % (nB * 2048))
        a("s_mul_i32 s84, s60, %d" % W2_REGION)
        a("s_add_u32 s84, s84, %d" % L_W2)
        a("""
        s_lshl1_add_u32 s72, s62, s74
        s_lshl1_add_u32 s73, s61, s75
        s_lshl_b32 s76, s73, 7
        s_add_u32 s76, s76, s72
        s_lshl_b32 s77, s76, 11
        s_lshl4_add_u32 s76, s72, s73
        s_lshl_b32 s76, s76, 11
        s_add_u32 s76, s76, %d
        s_add_u32 s77, s77, %d
        s_add_u32 s81, s69, s75
        s_lshl_b32 s78, s81, 7
        s_add_u32 s78, s78, s72
        s_lshl_b32 s78, s78, 10
        s_add_u32 s78, s78, %d
        s_lshl_b32 s79, s61, 6
        s_add_u32 s79, s79, s62
        s_lshl_b32 s79, s79, 4
        s_add_u32 s79, s79, %d
        s_lshl_b32 s80, s62, 3
        s_add_u32 s80, s80, s61
        s_lshl2_add_u32 s80, s80, s60
        s_lshl_b32 s80, s80, FSH
        s_add_u32 s80, s80, %d
        s_mul_i32 s73, s61, s75
        s_add_u32 s88, s78, %d
        s_cmp_lt_u32 s73, 3
        s_cselect_b32 s88, s88, 0x40000000
        """ % (WS_QO, WS_KV, WS_HF, WS_FLAGQ, WS_FLAGH, 8 * 65536))

    if not cfg.salate:
        setup_a()

    def slot_of(c):
        if not cfg.xslot or c < cfg.xslot:
            return (c & 3) * 24576
        return -L_RING if c == cfg.xslot else ((c - 1) & 3) * 24576

    skip_bar = (10,) if cfg.xslot else ()

    def issue_chunk(c):
        if cfg.rot:
            a("s_xor_b32 s73, s67, %d" % (c & 7))
            a("s_mul_i32 s73, s73, %d" % (64 * (3072 if c < 8 else 2752)))
            a("s_add_u32 s73, s73, %s" % ("s85" if c < 8 else "s80"))
        for m in range(6):
            blk, seg = divmod(m, 3)
            a("s_add_u32 m0, s87, %d" % (slot_of(c) + seg * 2048 + blk * 1024))
            if c < 8:
                a("s_add_u32 s72, %s, %d" % (("s73", blk * 8 * 3072 + seg * 1024) if cfg.rot else ("s85", (c * 64 + blk * 8) * 3072 + seg * 1024)))
                dma(33 if blk else 13, SWQ, "s72", 0, ("w", c))
            else:
                a("s_add_u32 s72, %s, %d" % (("s73", blk * 8 * 2752 + seg * 128) if cfg.rot else ("s80", ((c - 8) * 64 + blk * 8) * 2752 + seg * 128)))
                dma(56 + (seg == 2) + 2 * blk, SW1, "s72", 0, ("w", c))

    def layernorm(acts):
        def act(p):
            if acts.get(p):
                assert p >= 7
                a("s_cmp_eq_u32 s63, 1")
                a("s_cbranch_scc1 L_ln_%d" % p)
                for f in acts[p]:
                    f()
                a.label("L_ln_%d" % p)
        a.label("L_ln")
        a("""
        v_mov_b32 v232, 0x3f803f80
        v_mov_b32 v233, 0x3f803f80
        v_lshlrev_b32 v26, 4, v26
        v_mov_b32 v28, 0xffff
        v_lshlrev_b64 v[28:29], v26, v[28:29]
        """)
        a("s_mov_b32 s89, 0xffff0000")
        if cfg.rot:
            a("; K chunks are visited in the order c ^ (row block & 7): workgroups sharing weights fetch different chunks first")
            a("s_lshl_b32 s72, s67, 13")
            a("v_or_b32 v15, s72, v15")

        def xwrite(j):
            if cfg.rot:
                a("v_xor_b32 v23, 0x%x, v15" % (j << 13))
                a("ds_write_b128 v23, %s" % vr(RAW + j * 4, 4))
            else:
                a("ds_write_b128 v15, %s offset:%d" % (vr(RAW + j * 4, 4), j * 8192))

        def m4(d, x, y, c):
            a("v_mfma_f32_4x4x4_16b_bf16 %s, %s, %s, %s" % (vr(d, 4), vr(x, 2), vr(y, 2), "0" if c is None else vr(c, 4)))

        S, GM, T, CN, AH = 208, 216, 192, 224, 228
        for j in range(8):
            vm.wait(("x", j))
            if cfg.bst == 3 and j in (0, 3, 7):
                stamp({0: 4, 3: 5, 7: 6}[j], True)
            if j == 7:
                act(7)
            for h in range(2):
                x = RAW + j * 4 + 2 * h
                m4(S + 4 * h, 232, x, S + 4 * h if j else None)
                m4(GM + 4 * h, x, x, GM + 4 * h if j else None)
        act(8)
        stamp(1)
        a("v_add_f32 v24, %s, %s" % (vr(S), vr(S + 4)))
        for r in range(4):
            a("v_add_f32 %s, %s, %s" % (vr(GM + r), vr(GM + r), vr(GM + 4 + r)))
        dpp = "row_mask:0xf bank_mask:0xf"
        a("v_add_f32_dpp v24, v24, v24 quad_perm:[1,0,3,2] " + dpp)
        a("v_mov_b32_dpp v25, %s quad_perm:[0,0,0,0] %s" % (vr(GM), dpp))
        a("v_add_f32_dpp v25, %s, v25 quad_perm:[1,1,1,1] %s" % (vr(GM + 1), dpp))
        a("v_add_f32_dpp v24, v24, v24 quad_perm:[2,3,0,1] " + dpp)
        a("v_add_f32_dpp v25, %s, v25 quad_perm:[2,2,2,2] %s" % (vr(GM + 2), dpp))
        a("v_add_f32_dpp v25, %s, v25 quad_perm:[3,3,3,3] %s" % (vr(GM + 3), dpp))
        a("v_add_f32_dpp v24, v24, v24 row_half_mirror " + dpp)
        a("v_add_f32_dpp v25, v25, v25 row_half_mirror " + dpp)
        a("""
        v_mul_f32 v24, 0x3b000000, v24
        v_mul_f32 v25, 0x3b000000, v25
        v_fma_f32 v25, -v24, v24, v25
        v_max_f32 v25, 0, v25
        v_cvt_pk_bf16_f32 v24, v24, v25
        v_and_b32 v25, s89, v24
        v_add_f32 v25, 0x3727c5ac, v25
        v_cvt_pk_bf16_f32 v25, v25, v25
        v_and_b32 v25, s89, v25
        v_sqrt_f32 v25, v25
        v_lshlrev_b32 v24, 16, v24
        v_cvt_pk_bf16_f32 v25, v25, v25
        v_and_b32 v25, s89, v25
        v_rcp_f32 v26, v25
        v_cvt_pk_bf16_f32 v27, v26, v26
        v_and_b32 v25, s89, v27
        v_sub_f32 v25, v26, v25
        v_cvt_pk_bf16_f32 v25, v25, v25
        v_and_b32 v228, v27, v28
        v_and_b32 v229, v27, v29
        v_and_b32 v230, v25, v28
        v_and_b32 v231, v25, v29
        """)
        for r in range(4):
            a("v_mul_f32_e64 %s, -v24, v26" % vr(CN + r))

        def finish(j, q):
            t = T + 8 * (j & 1)
            a("v_cvt_pk_bf16_f32 %s, %s, %s" % (vr(RAW + 4 * j + q), vr(t + 2 * q), vr(t + 2 * q + 1)))
            if q == 3:
                xwrite(j)

        for j in range(9):
            for q in range(4):
                if j < 8:
                    t = T + 8 * (j & 1) + 4 * (q & 1)
                    m4(t, AH + 2 * (q >> 1), RAW + 4 * j + 2 * (q & 1), CN if q < 2 else t)
                if j:
                    finish(j - 1, q)
        if cfg.bst == 3:
            stamp(7, True)
        act(9)
        act(10)
        stamp(2)
        if cfg.bst == 3:
            stamp(8, True)

    def pfq():
        a("; memory-side prefetch of Wqkv")
        bload(7, 1, 31, SWQ, "s100", 0, "", "pf")

    def pfl2(which):
        a("; the die's workgroups pull their half of the weight columns into L2 together, four rows per wave")
        stride = 3072 if which == SWQ else 2752
        a("s_lshr_b32 s72, s2, 3")
        a("s_and_b32 s73, s60, 3")
        a("s_lshl2_add_u32 s72, s72, s73")
        a("s_mul_i32 s72, s72, %d" % (4 * stride))
        a("s_and_b32 s73, s2, 1")
        a("s_mul_i32 s73, s73, %d" % (512 if which == SWQ else 1472))
        a("s_add_u32 s72, s72, s73")
        a("v_lshrrev_b32 v20, 4, v0")
        a("v_mul_u32_u24 v20, %d, v20" % stride)
        if which == SWQ:
            a("v_bfe_u32 v21, v0, 2, 2")
            a("v_min_u32 v21, 2, v21")
            a("v_lshl_add_u32 v20, v21, 10, v20")
            a("v_and_b32 v21, 3, v0")
            a("v_lshl_add_u32 v20, v21, 7, v20")
        else:
            a("v_and_b32 v21, 15, v0")
            a("v_lshlrev_b32 v21, 7, v21")
            a("v_min_u32 v21, 1468, v21")
            a("v_add_u32 v20, v20, v21")
        bload(22, 1, 20, which, "s72", 0, "", "pf")

    def pfc(which):
        a("; lines at offset 384 of every KiB stream slowly on a miss: the die's workgroups pull them into L2 together")
        a("s_lshr_b32 s72, s2, 3")
        a("s_lshl2_add_u32 s72, s72, s60")
        a("s_mul_i32 s72, s72, 12288")
        a("v_lshlrev_b32 v20, 3, v31")
        if which == SWQ:
            a("s_bitcmp1_b32 s2, 0")
            a("s_cselect_b32 s72, 0x40000000, s72")
        bload(7, 1, 20, which, "s72", 384, "", "pf")

    def pf1():
        a("; memory-side prefetch of W1")
        bload(7 if cfg.pf1_at <= 10 else 32, 1, 31, SW1, "s100", 0, "", "pf")

    def b1loads():
        a("s_lshr_b32 s3, s60, 1")
        a("s_add_u32 s3, s3, s69")
        a("s_lshl_b32 s3, s3, 6")
        for q in range(6):
            bload(112 + 2 * q, 2, 10, SB1, "s3", (q >> 1) * 128 + (q & 1) * 16, "", "b1")

    acts = {}
    if cfg.pfc_at == 0:
        save = list(vm.items)
        pfc(SWQ)
        vm.items = save
    elif cfg.pfc_at <= 10:
        acts.setdefault(cfg.pfc_at, []).append(lambda: pfc(SWQ))
    if cfg.pfq_at == 0:
        save = list(vm.items)
        pfq()
        vm.items = save
    elif cfg.pfq_at <= 10:
        acts.setdefault(cfg.pfq_at, []).append(pfq)
    if cfg.l2q == 0:
        save = list(vm.items)
        pfl2(SWQ)
        vm.items = save
    if cfg.l2q == 7:
        acts.setdefault(7, []).append(lambda: pfl2(SWQ))
    for c, p in enumerate((cfg.w0_at, cfg.w1_at, cfg.w2_at, 10)[:cfg.lead + 1]):
        acts.setdefault(p, []).append(lambda c=c: issue_chunk(c))
    if 8 <= cfg.l2q <= 10:
        acts.setdefault(cfg.l2q, []).insert(0, lambda: pfl2(SWQ))
    if cfg.pf1_at <= 10:
        acts.setdefault(cfg.pf1_at, []).append(pf1)
    if cfg.pfc1:
        acts.setdefault(10, []).append(lambda: pfc(SW1))
    if cfg.b1at < 0:
        acts.setdefault(-cfg.b1at, []).insert(0, b1loads)
    if cfg.salate == 1:
        acts.setdefault(10, []).insert(0, setup_a)
    if cfg.salate == 3:
        acts.setdefault(10, []).append(setup_a)
    layernorm(acts)
    a("s_cmp_eq_u32 s63, 1")
    a("s_cbranch_scc1 L_loader")

    QR, SB, WF, FA, OA, KV, HB = 8, 24, 56, 64, 128, 192, 228
    NKV = 3

    def att_init_ops():
        ops = ["v_mov_b32 %s, 0" % vr(OA + 16 * t + i) for t in range(4) for i in range(16 if cfg.zall else 9)]
        ops2 = ["v_and_b32 v7, 27, v0", "v_cmp_eq_u32 vcc, 16, v7", "v_mov_b32 v7, 0x3f803f80", "v_cndmask_b32 v7, 0, v7, vcc"]
        ops2 += ["v_mov_b32 %s, v7" % vr(KV + 12 * b + 4 + q) for b in range(NKV) for q in range(8)]
        return ops, ops2

    def kvload(j):
        b = j % NKV
        bload(KV + 12 * b, 4, 252, SWS, "s82", 0, "sc1", ("kv", j))
        a("s_mov_b64 exec, %s" % sr(sVM, 2))
        bload(KV + 12 * b + 4, 4, 2, SWS, "s82", 1024, "sc1", ("kv", j))
        bload(KV + 12 * b + 8, 4, 2, SWS, "s82", 1536, "sc1", ("kv", j))
        a("s_mov_b64 exec, -1")
        a("s_add_u32 s82, s82, 2048")

    def att_loads(role):
        a("; key slot 8a+4b+c holds token 16b+4a+c, matching the order of the V fragments")
        a("v_and_b32 v252, 0x230, v1")
        a("v_and_b32 v253, 0x180, v1")
        a("v_lshrrev_b32 v253, 1, v253")
        a("v_and_b32 v254, 64, v1")
        a("v_lshlrev_b32 v254, 2, v254")
        a("v_or3_b32 v252, v252, v253, v254")
        bload(QR, 4, 1, SWS, "s92", 0, "sc1", "q")
        kvload(0)
        for t in range(1, 4):
            bload(QR + 4 * t, 4, 1, SWS, sr(92 + t), 0, "sc1", "q")
        kvload(1)
        if cfg.kv3 and role == "a":
            kvload(2)

    def dump_addr():
        a("v_lshlrev_b32 v8, 2, v0")
        a("v_add_u32 v9, s99, v1")
        a("v_add_u32 v10, s99, v8")
        a("v_bfe_u32 v11, v0, 4, 1")
        a("v_lshl_add_u32 v11, v11, 10, v2")

    def dump(t):
        a("v_add_u32 v12, %s, v1" % sr(96 + t))
        a("v_add_u32 v13, %s, v8" % sr(96 + t))
        dsw("ds_write_b128", 12, OA + 16 * t, 4, t * 2304)
        dsw("ds_write_b128", 12, OA + 16 * t + 4, 4, t * 2304 + 1024)
        dsw("ds_write_b32", 13, OA + 16 * t + 8, 1, t * 2304 + 2048)

    deferred = []
    cfg_gap = {0: range(16), 1: (1, 10), 2: (0, 9), 3: (4, 10), 4: (1,), 5: (4,), 6: (15, 9)}[cfg.gap]

    def att_run(n, hooks):
        hooks.setdefault((n - 1, 0, 11), []).append(dump_addr)
        for t in range(3):
            hooks.setdefault((n - 1, t + 1, 12), []).append(lambda t=t: dump(t))
        vm.wait("q", ("kv", 0))
        mfma32(SB, KV, QR, None)
        for j in range(n):
            b = j % NKV
            for t in range(4):
                cur, oth = SB + 16 * (t & 1), SB + 16 * ((t + 1) & 1)
                for i in range(16):
                    a("v_exp_f32 %s, %s" % (vr(cur + i), vr(cur + i)))
                    if i in cfg_gap:
                        while deferred:
                            deferred.pop(0)()
                    if t == cfg.kvt and i == cfg.kvi and j + NKV - 1 < n and not (cfg.abl & 32 and j > 0) and not (cfg.kv3 and j == 0):
                        kvload(j + NKV - 1)
                    if i == 1 and (j, t) != (0, 0):
                        smf(OA + 16 * ((t + 3) & 3), KV + 12 * (b if t else (j - 1) % NKV) + 8, oth + 8)
                    if i == 4:
                        if t < 3:
                            mfma32(oth, KV + 12 * b, QR + 4 * (t + 1), None)
                        elif j + 1 < n:
                            vm.wait(("kv", j + 1))
                            mfma32(oth, KV + 12 * ((j + 1) % NKV), QR, None)
                    if i == 10:
                        smf(OA + 16 * t, KV + 12 * b + 4, cur)
                    for h in hooks.get((j, t, i), ()):
                        h()
        smf(OA + 48, KV + 12 * ((n - 1) % NKV) + 8, SB + 16 + 8)

    ACC = (24, 40, 56)
    WB, NBUF, LA = 72, 6, cfg.look
    XF, PK, XA = 128, 96, 16
    init1, init2 = att_init_ops()

    def item(g):
        kk, m = divmod(g % 96, 6)
        return kk, m >> 1, m & 1

    def reads(g, part=None):
        kk, seg, ab = item(g)
        so = slot_of(g // 12)
        base = (8, 18)[ab] + so // 49152
        off = so % 49152 + (kk & 1) * 12288 + seg * 2048
        for h in range(2):
            if part in (None, h):
                if g < 96 and seg == 0 and ab == 0:
                    dsr("ds_read_b128", XF + 8 * kk + 4 * h, 4, XA + (kk & 1), (kk >> 1) * 8192 + h * 2048, g)
                dsr("ds_read_b64_tr_b16", WB + 4 * (g % NBUF) + 2 * h, 2, base, off + 512 * h, g)

    def pack(acc, pk):
        return ["v_cvt_pk_bf16_f32 %s, %s, %s" % (vr(pk + q), vr(acc + 2 * q), vr(acc + 2 * q + 1)) for q in range(8)]

    def st2(pk, va, base, delta, tag, imm=(0, 0), vb=None):
        def first():
            bstore(pk, 4, va, SWS, base, imm[0], "" if cfg.abl & 64 else "sc1", tag)

        def second():
            if delta:
                a("s_add_u32 s72, %s, %d" % (base, delta))
            bstore(pk + 4, 4, vb or va, SWS, "s72" if delta else base, imm[1], "" if cfg.abl & 64 else "sc1", tag)
        return [first, second]

    def relu2(acc):
        return (["v_max_f32 %s, 0, %s" % (vr(acc + i), vr(acc + i)) for i in range(16)]
                + ["v_mul_f32 %s, %s, %s" % (vr(acc + i), vr(acc + i), vr(acc + i)) for i in range(16)])

    def bias(seg):
        ops = [lambda: vm.wait("b1")]
        for q in range(4):
            ops.append("v_lshlrev_b32 %s, 16, %s" % (vr(ACC[seg] + 2 * q), vr(112 + 4 * seg + q)))
            ops.append("v_and_b32 %s, s89, %s" % (vr(ACC[seg] + 2 * q + 1), vr(112 + 4 * seg + q)))
        return ops

    tagq = ["v_or_b32 %s, 1, %s" % (vr(PK + 4 * q), vr(PK + 4 * q)) for q in range(2)]
    qkv_epi = (["v_mul_f32 %s, 0x%x, %s" % (vr(ACC[0] + i), QSCALE, vr(ACC[0] + i)) for i in range(16)]
               + pack(ACC[0], PK) + tagq + st2(PK, 14, "s76", 0, "st", (0, 256))
               + pack(ACC[1], PK + 8) + st2(PK + 8, 11, "s77", 0, "st", (0, 256))
               + pack(ACC[2], PK) + st2(PK, 12, "s77", 0, "st", (1024, 1152))
               + bias(0) + bias(1) + bias(2))
    sched = {144: init1, 174: init2}
    if cfg.zall:
        sched = {108 + 12 * t: init1[16 * t:16 * t + 16] for t in range(4)}
        sched[174] = init2
    shadow = []

    def run_shadow(budget):
        while shadow and budget > 0:
            op = shadow.pop(0)
            if isinstance(op, str):
                a(op)
                budget -= 1
            else:
                op()
                budget -= 3

    mark = len(a.items)
    if cfg.salate == 2:
        setup_a()
    a("""
    s_lshl_b32 s85, s60, 14
    s_lshl_b32 s72, s67, 7
    s_add_u32 s85, s85, s72
    s_lshl_b32 s86, s60, 6
    s_lshl1_add_u32 s86, s66, s86
    s_lshl_b32 s86, s86, 10
    s_add_u32 s86, s86, %d
    s_lshl_b32 s87, s66, FROW
    s_add_u32 s87, s87, %d
    """ % (WS_HF, WS_FLAGH))
    if cfg.salate == 2:
        late_ops = [v.text for k, v in a.items[mark:] if k == "ins"]
        del a.items[mark:]
        sched[0] = late_ops
    vm.wait(("w", 0))
    a("s_waitcnt lgkmcnt(0)")
    a("s_add_u32 %s, %s, 0x%x" % (sr(sTAG), sr(sTAG), EPOCH_INC))
    if cfg.bst == 3:
        stamp(9, True)
    a("s_barrier")
    stamp(3)
    if cfg.bst == 3:
        stamp(10, True)
    for g in range(LA):
        reads(g)
    for g in range(192):
        kk, seg, ab = item(g)
        if g == 96:
            stamp(4)
            shadow.extend(qkv_epi)
            run_shadow(1000)
            stamp(5)
            a("s_barrier")
            for n in range(96, 96 + LA):
                reads(n)
        lg.wait(*range(g, g - g % cfg.wgrp + cfg.wgrp))
        w = WB + 4 * (g % NBUF)
        n = g + LA
        more = n < 192 and not g < 96 <= n
        shadow.extend(sched.get(g, ()))
        for h, t in enumerate((1, 0)):
            x = XF + 8 * kk + 4 * t
            if g < 96 and seg == 2:
                d = ACC[seg] + 8 * ab + 4 * t
                mfma16(d, x, w, None if kk == 0 else d)
            else:
                d = ACC[seg] + 8 * t + 4 * ab
                mfma16(d, w, x, d if kk else (None if g < 96 else ACC[seg] + 4 * ab))
            if more and h == 0 and n % 12 == 0:
                vm.wait(("w", n // 12))
                if n // 12 == cfg.flag_chunk:
                    vm.wait("st")
                a("s_barrier")
                if n // 12 == cfg.flag_chunk:
                    a("s_cmp_lg_u32 s60, 0")
                    a("s_cselect_b32 s79, 0x40000000, s79")
                    set_flag(7, "s79")
                    stamp(6)
            if more:
                reads(n, h)
            run_shadow((1 - h if g < 96 else 1) if more else 2)
        if g == cfg.b1at:
            b1loads()
    run_shadow(1000)
    stamp(7)
    hmath, hst = [], []
    for seg in range(3):
        pk = PK + 8 * seg
        hmath.append(relu2(ACC[seg]) + pack(ACC[seg], pk))
        hst.append((["s_add_u32 s78, s78, 0x40000"] if seg == 1 else []) + st2(pk, 127, "s78" if seg < 2 else "s88", 0, "hst", (0, 256)))
    for seg in range(cfg.hbar):
        shadow.extend(hmath[seg])
    run_shadow(1000)
    a("s_barrier")
    stamp(8)
    if cfg.bst == 4:
        stamp(1, True)
    a("s_setprio 2")
    for seg in range(cfg.hbar, cfg.hpre):
        shadow.extend(hmath[seg])
    run_shadow(1000)
    att_loads("a")
    hlist = [[hst[0][0]], [hst[0][1]], hst[1][:2], [hst[1][2]], [hst[2][0]], [hst[2][1]]]
    for seg in range(3):
        shadow.extend(hmath[seg] if seg >= max(cfg.hpre, cfg.hbar) else [])
        for n in (2 * seg, 2 * seg + 1):
            if n < cfg.hnow:
                shadow.extend(hlist[n])
    run_shadow(1000)
    stamp(9)


    def w2dma(i):
        if cfg.abl & 1:
            return
        a("s_add_u32 m0, s84, %d" % ((i & 3) * 2048))
        a("s_add_u32 s72, s85, %d" % (i * 65536))
        dma(4, SW2, "s72", 0, ("w2", i))
        a("s_add_u32 s72, s72, 7168")
        dma(4, SW2, "s72", 1024, ("w2", i))

    hreg = lambda i, tt: HB + 8 * (i % 3) + 4 * tt

    def hload(i):
        if cfg.abl & 1:
            return
        if i > 0:
            a("s_add_u32 s86, s86, 0x40000")
        for tt in range(2):
            bload(hreg(i, tt), 4, 1, SWS, "s86", tt * 1024, "sc1", ("h", i))

    def w2read(i, nt):
        if cfg.abl & 2:
            return
        vm.wait(("w2", i))
        trread(WF + 4 * nt, 5 + nt, (i & 3) * 2048, 1024, ("wf", i, nt))

    def fslot(f):
        i, m = divmod(f, 4)
        nt, tt = ((0, 0), (0, 1), (1, 1), (1, 0))[m]
        vm.wait(("h", i))
        lg.wait(("wf", i, nt))
        d = FA + 16 * (2 * tt + nt)
        if not cfg.abl & 4:
            mfma32(d, WF + 4 * nt, hreg(i, tt), None if i == 0 else d)
        if m == 1 and i + 1 < NS:
            deferred.append(lambda: w2read(i + 1, 0))
        if m == cfg.dmam and i + 4 < NS:
            deferred.append(lambda: w2dma(i + 4))
        if m == 3:
            if i + 1 < NS:
                deferred.append(lambda: w2read(i + 1, 1))
            if i + 3 < NS:
                deferred.append(lambda: hload(i + 3))

    def park(tt, nt):
        d = FA + 16 * (2 * tt + nt)
        for q in range(8):
            a("v_cvt_pk_bf16_f32 %s, %s, %s" % (vr(d + q), vr(d + 2 * q), vr(d + 2 * q + 1)))
        for q in range(2):
            dsw("ds_write_b128", 4, d + 4 * q, 4, tt * 32 * PART_STRIDE + nt * 64 + q * 32)

    def park_addr():
        a("v_and_b32 v4, 31, v0")
        a("v_mul_u32_u24 v4, %d, v4" % PART_STRIDE)
        a("v_lshrrev_b32 v5, 5, v0")
        a("v_lshl_add_u32 v4, v5, 4, v4")
        a("v_add_u32 v4, s84, v4")

    hooks = {}

    def hook(j, t, i, f):
        hooks.setdefault((j, t, i), []).append(f)

    n1 = cfg.n1
    for n in range(cfg.hnow, 6):
        tl = (n - cfg.hnow) * cfg.hgap + cfg.hoff
        hook(tl >> 2, tl & 3, 9, lambda n=n: (shadow.extend(hlist[n]), run_shadow(1000)))
    assert (5 - cfg.hnow) * cfg.hgap + cfg.hoff <= cfg.hflag < 4 * (n1 - 2)
    hook(cfg.hflag >> 2, cfg.hflag & 3, 12, lambda: (vm.wait("hst"), set_flag(7, "s80"), stamp(1) if cfg.hst else None))
    hook(n1 - 2, 0, 8, lambda: flag_load(7, cfg.fsh, "s87", "hf"))
    hook(n1 - 2, 3, 12, lambda: (vm.wait("hf"), stamp(2) if cfg.hst else None, check_flags("h", 7, cfg.fsh, "s87"), stamp(3) if cfg.hst else None))
    for i in range(4):
        hook(n1 - 3 + (i >> 1), 1 + (i & 1), 7, lambda i=i: w2dma(i))
    for i in range(3):
        hook(n1 - 1, i, 7, lambda i=i: hload(i))
    hook(n1 - 1, 3, 7, lambda: (w2read(0, 0), w2read(0, 1)))
    pat = [int(ch) for ch in str(cfg.fpat)]
    slots = [(j, t, pos) for j in range(n1, nA) for t in range(4) for pos in ((13,), (7, 13))[pat[t] - 1]]
    for f in range(4 * NS):
        hook(*slots[f], lambda f=f: fslot(f))
    tl = slots[4 * NS - 1][0] * 4 + slots[4 * NS - 1][1] + 1
    assert tl + 3 < 4 * nA
    hook(tl >> 2, tl & 3, 6, park_addr)
    for n, (nt, tt) in enumerate(((0, 0), (0, 1), (1, 1), (1, 0))):
        hook((tl + n) >> 2, (tl + n) & 3, 7, lambda tt=tt, nt=nt: park(tt, nt))
    if cfg.hst:
        for n in range(4):
            hook(n1 + 4 * n, 0, 1, lambda n=n: stamp(4 + n))
    if cfg.alow:
        tl = 4 * nA - cfg.alow
        hook(tl >> 2, tl & 3, 0, lambda: a("s_setprio 0"))
    if cfg.bst == 4:
        for n, j in enumerate(range(0, nA, 2)):
            hook(j, 0, 0, lambda n=n: stamp(2 + n, True))
    att_run(nA, hooks)
    vm.drain()
    a("s_branch L_att_done")

    a.label("L_loader")
    vm.items = []
    lg.items = []

    def b_setup():
        a("; waves 4-7: W1 DMA offsets v56/v57 (sixth tile out of range where the next group owns it), wo DMA offset v4, flagQ row s79")
        a("""
        v_mul_u32_u24 v56, 2752, v4
        v_add_u32 v56, v56, v6
        s_lshr_b32 s72, 0xf8, s61
        s_and_b32 s72, s72, 1
        s_lshl_b32 s72, s72, 23
        v_and_b32 v57, 64, v6
        v_mad_u32_u24 v57, v57, s72, v56
        v_xor_b32 v58, 16, v56
        v_xor_b32 v59, 16, v57
        v_bfe_u32 v6, v4, 1, 2
        v_lshlrev_b32 v6, 1, v6
        v_xor_b32 v6, v6, v5
        v_lshlrev_b32 v6, 4, v6
        v_lshl_add_u32 v4, v4, 10, v6
        v_min_u32 v5, %d, v0
        v_lshlrev_b32 v5, 7, v5
        s_lshr_b32 s79, s64, 1
        s_lshl_b32 s79, s79, 10
        s_add_u32 s79, s79, %d
        s_and_b32 s73, s60, 3
        s_lshl_b32 s72, s69, 6
        s_mul_i32 s80, s73, %d
        s_add_u32 s80, s80, s72
        """ % (cfg.pfn - 1, WS_FLAGQ, 16 * 2752))

        a("v_mov_b32 v3, 0xdddddddd")

    issued = cfg.lead
    setup1()
    if cfg.bpre:
        issued += 1
        issue_chunk(issued)
    state = {"issued": issued}

    def b_step(c):
        if c in skip_bar:
            return
        vm.wait(("w", c + 1 if c + 1 in skip_bar else c))
        if cfg.bst == 2:
            stamp(c, True)
        if cfg.bst == 3 and c == 0:
            stamp(9, True)
        a("s_barrier")
        if cfg.bst == 1:
            stamp(c, True)
        if c in (0, 8, 12, 15):
            stamp({0: 3, 8: 4, 12: 5, 15: 6}[c])
        if c == cfg.bload - 1:
            flag_load(7, 4, "s79", "qf")
        if c == cfg.bload:
            vm.wait("qf")
            check_flags("q", 7, 4, "s79")
            stamp(7)
            att_loads("b")
        lim = c + 2
        if c < 8:
            lim = min(lim, cfg.hold)
        if cfg.split and c == 8:
            lim = 10 + cfg.split - 1
        if cfg.xslot == 12 and c == 9:
            lim = 12
        if cfg.xslot == 11 and c in (8, 9):
            lim = c + 3
        if cfg.xslot and c >= 11:
            lim = c + cfg.xrun
        while state["issued"] < min(15, max(3, lim)):
            state["issued"] += 1
            issue_chunk(state["issued"])
        if c == 0:
            setup_pf()
        if c == cfg.sA:
            setup2()
        if cfg.pf1_at == 12 + c:
            pf1()
        if c == cfg.sB:
            b_setup()
        if c == cfg.sC:
            setup3()
        if c == cfg.l2w:
            pfl2(SW1)
        if c == cfg.pfe:
            a("; memory-side prefetch of w2 and wo")
            bload(32, 1, 31, SW2, "s100", 0, "", "pf")
            bload(32, 1, 31, SWO, "s100", 0, "", "pf")
        if c == cfg.sC:
            for op in init1 + init2:
                a(op)
        if c == 7:
            a("s_waitcnt lgkmcnt(0)")
            a("s_add_u32 %s, %s, 0x%x" % (sr(sTAG), sr(sTAG), EPOCH_INC))

    def b_att():
        a("s_barrier")
        stamp(8)
        a("s_setprio 1")
        if cfg.kv3:
            kvload(2)

    bhooks = {}
    for c in range(17):
        f = (lambda c=c: b_step(c)) if c < 16 else b_att
        if c <= cfg.bjoin:
            f()
        else:
            tl = (c - cfg.bjoin) * cfg.btile - 1
            bhooks[(tl >> 2, tl & 3, 13)] = [f]

    def wo_dma(lo, hi):
        if cfg.abl & 8:
            return
        if lo == 0:
            a("; wo tile -> LDS [0, 64K), a few rows per score tile")
            a("s_and_b32 s78, s60, 3")
            a("s_lshl_b32 s76, s78, 17")
            a("s_lshl_b32 s73, s67, 7")
            a("s_add_u32 s76, s76, s73")
            a("s_lshl_b32 s78, s78, 14")
        for i in range(lo, hi):
            a("s_add_u32 m0, s78, %d" % (i * 1024))
            a("s_add_u32 s73, s76, %d" % (i * 8192))
            dma(4, SWO, "s73", 0, "wo")

    nl = cfg.pfn
    batches = [(SW2, i) for i in range(-(-11 // nl))] + [(SWO, i) for i in range(-(-4 // nl))]

    def pf_late(n):
        if cfg.abl & 16:
            return
        if n == 0:
            a("; memory-side prefetch of w2 (in k order) and wo, a few lines per wave at a time")
            a("s_and_b32 s90, s60, 3")
            a("s_lshl2_add_u32 s90, s2, s90")
            a("s_mul_i32 s90, s90, %d" % (nl * 128))
        a("s_add_u32 s72, s90, %d" % (batches[n][1] * nl * 131072))
        bload(7, 1, 5, batches[n][0], "s72", 0, "", "pf")

    for n in range(len(batches) if cfg.pfe > 90 else 0):
        tl = cfg.pfl + n * cfg.pfg
        bhooks[(tl >> 2, tl & 3, 7)] = [lambda n=n: pf_late(n)]
    for n, lo in enumerate(range(0, 16, cfg.won)):
        bhooks[((cfg.wol + n) >> 2, (cfg.wol + n) & 3, 8)] = [lambda lo=lo: wo_dma(lo, lo + cfg.won)]
    if cfg.bst == 4:
        for j in range(nB):
            bhooks.setdefault((j, 0, 0), []).append(lambda j=j: stamp(2 + j, True))
    att_run(nB, bhooks)
    vm.drain()

    OW = OA + 48
    WOF, OFR, AC, G, Z, X, SR = 128, 24, 8, 64, 96, 104, 112
    a.label("L_att_done")
    stamp(10)
    if cfg.bst == 4:
        stamp(14, True)
    a("s_setprio 0")
    a("s_and_b32 s73, s60, 1")
    a("s_lshl_b32 s73, s73, 9")
    a("s_sub_u32 s76, s95, s73")
    a("""
    s_and_b32 s74, s60, 3
    s_lshr_b32 s75, s60, 2
    v_lshrrev_b32 v14, 3, v0
    v_and_b32 v7, 7, v0
    v_lshlrev_b32 v7, 4, v7
    v_lshl_add_u32 v14, v14, 10, v7
    s_lshl3_add_u32 s78, s66, s60
    s_lshl_b32 s78, s78, 13
    s_lshl_b32 s79, s67, 7
    s_add_u32 s78, s78, s79
    """)
    bload(60, 4, 7, SB2, "s79", 0, "", "xb")
    bload(56, 4, 14, SX, "s78", 0, "", "xb")
    lg.drain()
    a("s_barrier")
    for src in range(3):
        d = SB + 10 * src
        dsr("ds_read_b128", d, 4, 9, src * 2304, src)
        dsr("ds_read_b128", d + 4, 4, 9, src * 2304 + 1024, src)
        dsr("ds_read_b32", d + 8, 1, 10, src * 2304 + 2048, src)
    for src in range(3):
        lg.wait(src)
        for i in range(0, 8, 2):
            a("v_pk_add_f32 %s, %s, %s" % (vr(OW + i, 2), vr(OW + i, 2), vr(SB + 10 * src + i, 2)))
        a("v_add_f32 %s, %s, %s" % (vr(OW + 8), vr(OW + 8), vr(SB + 10 * src + 8)))
    a("v_pk_mul_f32 v[12:13], %s, 0 op_sel_hi:[1,0]" % vr(OW, 2))
    for i in range(2, 8, 2):
        a("v_pk_fma_f32 v[12:13], %s, 0, v[12:13] op_sel_hi:[1,0,1]" % vr(OW + i, 2))
    a("""
    v_add_f32 v12, v12, %s
    v_add_f32 v12, v12, v13
    v_cmp_nle_f32 vcc, 0x30800000, v12
    s_mov_b64 s[72:73], vcc
    v_cmp_nge_f32 vcc, 0x5d800000, v12
    s_or_b64 s[72:73], s[72:73], vcc
    """ % vr(OW + 8))
    a("s_branch L_slow" if cfg.force_slow else "s_cbranch_scc1 L_slow")
    a.label("L_norm")
    a("v_rcp_f32 v12, %s" % vr(OW + 8))
    for i in range(0, 8, 2):
        a("v_pk_mul_f32 %s, %s, v[12:13] op_sel_hi:[1,0]" % (vr(OW + i, 2), vr(OW + i, 2)))
    for q in range(4):
        a("v_cvt_pk_bf16_f32 %s, %s, %s" % (vr(16 + q), vr(OW + 2 * q), vr(OW + 2 * q + 1)))
    a("v_and_b32 v16, -2, v16")
    bstore(16, 4, 11, SWS, "s76", 0, "sc1", "ost")
    stamp(11)
    a("v_mov_b32 v2, v14")
    a("v_lshrrev_b32 v3, 3, v0")
    a("""
    v_mul_u32_u24 v4, %d, v3
    s_mul_i32 s72, s60, %d
    s_add_u32 s72, s72, %d
    v_add3_u32 v4, v4, v7, s72
    """ % (PART_STRIDE, 8 * PART_STRIDE, L_W2))
    for j in range(4):
        dsr("ds_read_b128", G + 4 * j, 4, 4, j * W2_REGION, "g")
    a("""
    v_bfe_u32 v4, v0, 2, 2
    v_bfe_u32 v5, v0, 4, 1
    v_lshl_add_u32 v4, v5, 2, v4
    v_lshrrev_b32 v5, 1, v4
    v_lshlrev_b32 v92, 7, v4
    v_lshl_add_u32 v92, v5, 5, v92
    v_lshrrev_b32 v6, 5, v0
    v_lshl_add_u32 v92, v6, 11, v92
    v_and_b32 v4, 3, v0
    v_lshl_add_u32 v92, v4, 3, v92
    s_lshl_b32 s72, s75, 15
    v_add_u32 v92, s72, v92
    v_xor_b32 v93, 32, v92
    v_xor_b32 v94, 64, v92
    v_xor_b32 v95, 0x60, v92
    s_barrier
    """)

    def oloads(first=0):
        for ks in range(first, 8):
            bload(OFR + 4 * ks, 4, 1, SWS, ("s76", "s77", "s80", "s81")[ks >> 1], (ks & 1) * 2048, "sc1", ("o", ks))

    fill = ("""
    s_lshl2_add_u32 s72, s66, s74
    s_lshr_b32 s76, s72, 1
    s_lshl1_add_u32 s76, s76, s75
    s_lshl_b32 s76, s76, 14
    s_and_b32 s72, s72, 1
    s_lshl_b32 s72, s72, 10
    s_add_u32 s76, s76, s72
    s_add_u32 s76, s76, %d
    s_add_u32 s77, s76, 0x1000
    s_add_u32 s80, s76, 0x2000
    s_add_u32 s81, s76, 0x3000
    v_mul_u32_u24 v3, %d, v3
    v_lshl_add_u32 v3, v7, 1, v3
    s_mul_i32 s72, s60, %d
    s_add_u32 s72, s72, %d
    v_add_u32 v3, s72, v3
    v_and_b32 v5, 15, v0
    v_mul_u32_u24 v5, %d, v5
    v_and_b32 v4, 48, v0
    s_mul_i32 s72, s60, %d
    s_add_u32 s72, s72, %d
    v_add3_u32 v5, v5, v4, s72
    s_mov_b32 s82, 0x3f80
    s_mov_b32 s83, 0x3f800000
    """ % (WS_QO, SUM_STRIDE, 8 * SUM_STRIDE, L_SUM, SUM_STRIDE, 16 * SUM_STRIDE, L_SUM)).strip().split("\n")
    gate = ["v_mov_b32 %s, 0" % vr(Z + i) for i in range(8)]
    gate.append(lambda: lg.wait("g"))
    for j in range(5):
        if j == 4:
            gate.append(lambda: vm.wait("xb"))
        for q in range(4):
            src = G + 4 * j + q if j < 4 else 60 + q
            gate.append("v_dot2c_f32_bf16 %s, s82, %s" % (vr(Z + 2 * q), vr(src)))
            gate.append("v_dot2c_f32_bf16 %s, s83, %s" % (vr(Z + 2 * q + 1), vr(src)))
    for q in range(4):
        gate.append("v_lshlrev_b32 %s, 16, %s" % (vr(X + 2 * q), vr(56 + q)))
        gate.append("v_and_b32 %s, s89, %s" % (vr(X + 1 + 2 * q), vr(56 + q)))
    gate += ["v_mul_f32 %s, 0x%x, %s" % (vr(G + i), NLOG2E, vr(Z + i)) for i in range(8)]
    gate += ["v_exp_f32 %s, %s" % (vr(G + i), vr(G + i)) for i in range(8)]
    gate += ["v_add_f32 %s, 1.0, %s" % (vr(G + i), vr(G + i)) for i in range(8)]
    gate += ["v_rcp_f32 %s, %s" % (vr(G + i), vr(G + i)) for i in range(8)]
    gate += ["v_mul_f32 %s, %s, %s" % (vr(Z + i), vr(Z + i), vr(G + i)) for i in range(8)]

    def wo_reads(oat, per):
        for ks in range(8):
            for ct in range(4):
                trread(WOF + (ks * 4 + ct) * 4, 92 + ct, ks * 4096, 1024, ("wo", ks))
                run_shadow(per)
            if ks == oat:
                run_shadow(1000)
                vm.wait("ost")
                oloads()

    vm_t, lg_t = list(vm.items), list(lg.items)
    a("s_cmp_eq_u32 s63, 1")
    a("s_cbranch_scc1 L_tail_b")
    shadow.extend(fill)
    wo_reads(7, 1)
    shadow.extend(gate)
    run_shadow(1000)
    a("s_branch L_tail_j")
    a.label("L_tail_b")
    vm.items, lg.items = vm_t, lg_t
    shadow.extend(fill + gate)
    run_shadow(1000)
    wo_reads(cfg.oat, 0)
    a.label("L_tail_j")
    stamp(12)
    a("s_mov_b32 s73, 0")
    lg.drain()
    for ks in range(8):
        a.label("L_wo_%d" % ks)
        vm.wait(("o", ks))
        a("v_and_b32 v6, 1, %s" % vr(OFR + 4 * ks))
        a("v_cmp_ne_u32 vcc, 0, v6")
        a("s_cbranch_vccnz L_oretry_%d" % ks)
        a.label("L_ogo_%d" % ks)
        for ct in range(4):
            d = AC + 4 * ct
            mfma16(d, WOF + (ks * 4 + ct) * 4, OFR + 4 * ks, None if ks == 0 else d)
    stamp(13)
    for ct in range(4):
        dsw("ds_write_b128", 5, AC + 4 * ct, 4, ct * 64)
    lg.drain()
    a("s_barrier")
    stamp(14)
    dsr("ds_read_b128", SR, 4, 3, 0, 0)
    dsr("ds_read_b128", SR + 8, 4, 3, SUM_SIZE, 0)
    dsr("ds_read_b128", SR + 4, 4, 3, 16, 1)
    dsr("ds_read_b128", SR + 12, 4, 3, SUM_SIZE + 16, 1)
    for h in range(2):
        lg.wait(h)
        for i in range(4 * h, 4 * h + 4, 2):
            a("v_pk_add_f32 %s, %s, %s" % (vr(SR + i, 2), vr(SR + i, 2), vr(SR + 8 + i, 2)))
        for i in range(4 * h, 4 * h + 4, 2):
            a("v_pk_fma_f32 %s, %s, %s, %s" % (vr(SR + i, 2), vr(SR + i, 2), vr(Z + i, 2), vr(X + i, 2)))
        for q in range(2 * h, 2 * h + 2):
            a("v_cvt_pk_bf16_f32 %s, %s, %s" % (vr(G + q), vr(SR + 2 * q), vr(SR + 2 * q + 1)))
    bstore(G, 4, 2, SOUT, "s78", 0, ("", "sc1", "nt", "sc0 sc1", "sc0 sc1 nt")[cfg.omod])
    a("s_or_b32 s72, s2, s60")
    a("s_cmp_lg_u32 s72, 0")
    a("s_cbranch_scc1 L_noepoch")
    set_flag(7, "0")
    a.label("L_noepoch")
    if cfg.stamps:
        a("s_waitcnt vmcnt(0)")
        stamp(15)
        if cfg.probe is not None:
            a("s_sub_u32 s72, %s, s4" % sr(sSTAMP + cfg.probe))
            if cfg.stamps == 2:
                a("s_lshr_b32 s72, s72, 3")
            else:
                a("s_lshl_b32 s72, s72, %d" % cfg.probesh)
            a("s_cmp_lg_u32 s2, %d" % cfg.probewg)
            a("s_cselect_b32 s72, 0, s72")
            a("s_cmp_lg_u32 s60, %d" % cfg.probew)
            a("s_cselect_b32 s72, 0, s72")
            a("s_memrealtime s[22:23]")
            a("s_waitcnt lgkmcnt(0)")
            a("s_mov_b32 s73, s22")
            a.label("L_probe")
            a("s_memrealtime s[22:23]")
            a("s_waitcnt lgkmcnt(0)")
            a("s_sub_u32 s22, s22, s73")
            a("s_cmp_lt_u32 s22, s72")
            a("s_cbranch_scc1 L_probe")
        a("s_lshl3_add_u32 s72, s2, s60")
        a("s_lshl_b32 s72, s72, 6")
        a("s_add_u32 s72, s72, %d" % WS_STAMP)
        for i in range(16):
            a("v_mov_b32 %s, %s" % (vr(80 + i), sr(sSTAMP + i)))
        a("s_mov_b64 exec, 1")
        for i in range(4):
            bstore(80 + 4 * i, 4, 1, SWS, "s72", 16 * i)
    a.label("L_end")
    a("s_endpgm")

    for ks in range(8):
        a.label("L_oretry_%d" % ks)
        a("s_add_u32 s73, s73, 1")
        a("s_cmp_ge_u32 s73, %d" % SPIN_MAX)
        a("s_cbranch_scc1 L_ogo_%d" % ks)
        a("s_waitcnt vmcnt(0)")
        oloads(ks)
        a("s_branch L_wo_%d" % ks)

    for tag, vt, lanes, soff in stubs:
        a.label("L_poll_" + tag)
        a("s_mov_b32 s73, 0")
        a.label("L_poll2_" + tag)
        a("s_sleep %d" % cfg.sleep)
        flag_load(vt, lanes, soff, None)
        a("s_add_u32 s73, s73, 1")
        a("s_waitcnt vmcnt(0)")
        a("s_cmp_ge_u32 s73, %d" % SPIN_MAX)
        a("s_cbranch_scc1 L_polled_" + tag)
        a("v_cmp_ne_u32 vcc, %s, %s" % (sr(sTAG), vr(vt)))
        a("s_cbranch_vccnz L_poll2_" + tag)
        a("s_branch L_polled_" + tag)

    a.label("L_slow")
    CN = SB + 16
    a("s_waitcnt vmcnt(0)")
    a("v_mov_b32 v13, 0xff800000")
    a("s_mov_b32 s82, s83")
    a("s_mov_b32 s81, 64")
    a.label("L_slow1")
    bload(KV, 4, 252, SWS, "s82", 0, "sc1")
    a("s_add_u32 s82, s82, 2048")
    a("s_waitcnt vmcnt(0)")
    mfma32(SB, KV, QR + 12, None)
    for i in range(0, 16, 2):
        a("v_max3_f32 v13, v13, %s, %s" % (vr(SB + i), vr(SB + i + 1)))
    a("s_sub_u32 s81, s81, 1")
    a("s_cmp_lg_u32 s81, 0")
    a("s_cbranch_scc1 L_slow1")
    a("v_mov_b32 v15, v13")
    a("v_permlane32_swap_b32 v15, v13")
    a("v_max_f32 v13, v15, v13")
    for i in range(16):
        a("v_sub_f32 %s, 0, v13" % vr(CN + i))
        a("v_mov_b32 %s, 0" % vr(OW + i))
    a("s_mov_b32 s82, s83")
    a("s_mov_b32 s81, 64")
    a.label("L_slow2")
    kvload(0)
    a("s_waitcnt vmcnt(0)")
    mfma32(SB, KV, QR + 12, CN)
    for i in range(16):
        a("v_exp_f32 %s, %s" % (vr(SB + i), vr(SB + i)))
    smf(OW, KV + 4, SB)
    smf(OW, KV + 8, SB + 8)
    a("s_sub_u32 s81, s81, 1")
    a("s_cmp_lg_u32 s81, 0")
    a("s_cbranch_scc1 L_slow2")
    a("s_branch L_norm")
    a.label("L_code_end")
    a("s_endpgm")

    added = a.fix()
    return a.text().replace('FSH', str(cfg.fsh)).replace('FROW', str(cfg.fsh + 5)), added


HEADER = """; Kernarg layout for this problem (88 bytes, ptrs only, base s[0:1]):
; @launch grid=(256,1,1) block=(512,1,1) lds=163840
.amdgcn_target "amdgcn-amd-amdhsa--gfx950"
.text
.globl {k}
.p2align 8
.type {k},@function
{k}:
"""

FOOTER = """.section .rodata,"a"
.p2align 6
.amdhsa_kernel {k}
  .amdhsa_next_free_vgpr 256
  .amdhsa_next_free_sgpr 102
  .amdhsa_accum_offset 256
  .amdhsa_group_segment_fixed_size 0
  .amdhsa_kernarg_size 88
  .amdhsa_user_sgpr_count 2
  .amdhsa_user_sgpr_kernarg_segment_ptr 1
  .amdhsa_system_sgpr_workgroup_id_x 1
.end_amdhsa_kernel
"""


def build(**kw):
    cfg = Cfg()
    for k, v in kw.items():
        setattr(cfg, k, v)
    body, added = gen(cfg)
    return HEADER.format(k=KERNEL) + body + FOOTER.format(k=KERNEL), added


if __name__ == "__main__":
    out = sys.argv[1] if len(sys.argv) > 1 else "cdna_kernels/%s.s" % NAME
    kw = {}
    for arg in sys.argv[2:]:
        k, v = arg.split("=")
        kw[k] = int(v)
    text, added = build(**kw)
    open(out, "w").write(text)
    print("wrote", out, "lines", text.count("\n"), "nops added", added)
```

```python
import sys
import os
sys.path.insert(0, os.path.dirname(os.path.abspath(__file__)))
from asmlib import Asm, vr, sr

NAME = "recurrent_scan__softmax_full_mha__dense_activation_squared_relu__prompt"
KERNEL = NAME + "_kernel"

WS_FLAGQ = 0x1200
WS_FLAGH = 0x60000
WS_STAMP = 0x10000
WS_QO = 0x100000
WS_KV = 0x300000
WS_HF = 0x700000
WS_END = WS_HF + 86 * 65536
EPOCH_INC = 0x9E3779B9
SPIN_MAX = 1 << 18

L_RING = 65536
L_OPART = 65536
L_W2 = L_OPART + 55296
W2_REGION = 10240
PART_STRIDE = 144
SUM_STRIDE = 272
SUM_SIZE = 64 * SUM_STRIDE
L_SUM = L_OPART

SX, SWQ, SWO, SW1, SB1, SW2, SB2, SOUT, SWS = 24, 28, 32, 36, 40, 44, 48, 52, 56
sW, sCG, sTB, sRW, sP, sQB, sTBF, sCB, sTAG, sCT0 = 60, 61, 62, 63, 64, 65, 66, 67, 68, 69
sVM = 70
sSTAMP = 4

QSCALE = 0x3EB8AA3B
NLOG2E = 0xBFB8AA3B
NS = 22


class Cfg:
    abl = 0
    bst = 0
    xslot = 0
    xrun = 2
    n1 = 8
    nA = 22
    gap = 1
    kvt = 0
    kvi = 4
    dmam = 2
    fpat = 2221
    pf1_at = 12
    pfc_at = 99
    pfc1 = 0
    w2_at = 10
    pfl = 9
    wol = 15
    won = 1
    stamps = 0
    force_slow = 0
    flag_chunk = 10
    lead = 1
    look = 5
    pfq_at = 99
    bload = 15
    bjoin = 16
    btile = 2
    sleep = 6
    w0_at = 7
    w1_at = 10
    hpre = 2
    hbar = 0
    hnow = 2
    hgap = 2
    hoff = 0
    kv3 = 1
    fsh = 4
    pfe = 99
    l2q = 99
    rot = 1
    split = 1
    wgrp = 1
    zall = 1
    salate = 2
    bpre = 0
    b1at = -10
    sA = 3
    sB = 3
    sC = 7
    hold = 99
    l2w = 99
    pfn = 11
    alow = 2
    nt = 0
    pfg = 1
    hflag = 11
    probe = None
    omod = 1
    oat = 4
    probewg = 100
    probew = 0
    probesh = 4
    hst = 0


def srd(s):
    return sr(s, 4)


class Queue:
    def __init__(self, a, name, maxn):
        self.a, self.name, self.maxn, self.items = a, name, maxn, []

    def push(self, tag):
        self.items.append(tag)

    def wait(self, *tags):
        last = max((i for i, t in enumerate(self.items) if t in tags), default=-1)
        if last < 0:
            return
        n = len(self.items) - 1 - last
        self.a("s_waitcnt %s(%d)" % (self.name, min(n, self.maxn)))
        self.items = self.items[last + 1:]

    def drain(self):
        self.a("s_waitcnt %s(0)" % self.name)
        self.items = []


def gen(cfg):
    a = Asm()
    nA = cfg.nA
    nB = 32 - nA
    vm = Queue(a, "vmcnt", 63)
    lg = Queue(a, "lgkmcnt", 15)

    def stamp(i, force=False):
        if cfg.bst and not force and i != 0:
            return
        if cfg.stamps and (cfg.probe is None or i in (0, cfg.probe)):
            a("%s s[22:23]" % ("s_memtime" if cfg.stamps == 2 else "s_memrealtime"))
            a("s_waitcnt lgkmcnt(0)")
            a("s_mov_b32 %s, s22" % sr(sSTAMP + i))

    def mfma32(d, x, y, c):
        a("v_mfma_f32_32x32x16_bf16 %s, %s, %s, %s" % (vr(d, 16), vr(x, 4), vr(y, 4), "0" if c is None else vr(c, 16)))

    def mfma16(d, x, y, c):
        a("v_mfma_f32_16x16x32_bf16 %s, %s, %s, %s" % (vr(d, 4), vr(x, 4), vr(y, 4), "0" if c is None else vr(c, 4)))

    def smf(d, x, y):
        a("v_smfmac_f32_32x32x32_bf16 %s, %s, %s, v3" % (vr(d, 16), vr(x, 4), vr(y, 8)))

    def bload(d, n, va, s, so, off=0, mod="", tag=None):
        op = {1: "dword", 2: "dwordx2", 4: "dwordx4"}[n]
        a("buffer_load_%s %s, %s, %s, %s offen offset:%d %s" % (op, vr(d, n), vr(va), srd(s), so, off, mod))
        vm.push(tag)

    def bstore(d, n, va, s, so, off=0, mod="", tag=None):
        op = {1: "dword", 2: "dwordx2", 4: "dwordx4"}[n]
        a("buffer_store_%s %s, %s, %s, %s offen offset:%d %s" % (op, vr(d, n), vr(va), srd(s), so, off, mod))
        vm.push(tag)

    def dma(va, s, so, off=0, tag=None):
        nt = "nt " if (cfg.nt & 2 and tag == ("w", 0)) or (cfg.nt & 4 and tag == ("w", 8)) else ""
        a("buffer_load_dwordx4 %s, %s, %s offen offset:%d %slds" % (vr(va), srd(s), so, off, nt))
        vm.push(tag)

    def dsr(op, d, n, va, off, tag=None):
        a("%s %s, %s offset:%d" % (op, vr(d, n), vr(va), off))
        lg.push(tag)

    def dsw(op, va, d, n, off, tag=None):
        a("%s %s, %s offset:%d" % (op, vr(va), vr(d, n), off))
        lg.push(tag)

    def trread(d, va, off, second, tag=None):
        dsr("ds_read_b64_tr_b16", d, 2, va, off, tag)
        dsr("ds_read_b64_tr_b16", d + 2, 2, va, off + second, tag)

    def set_flag(vt, soff):
        a("v_mov_b32 %s, %s" % (vr(vt), sr(sTAG)))
        a("s_mov_b64 exec, 1")
        bstore(vt, 1, 1, SWS, soff, 0, "sc0 sc1")
        a("s_mov_b64 exec, -1")

    stubs = []

    def check_flags(tag, vt, lanes, soff):
        a("v_cmp_ne_u32 vcc, %s, %s" % (sr(sTAG), vr(vt)))
        a("s_cbranch_vccnz L_poll_" + tag)
        a.label("L_polled_" + tag)
        stubs.append((tag, vt, lanes, soff))

    def flag_load(vt, shift, soff, tag):
        a("v_and_b32 %s, 31, v0" % vr(vt))
        a("v_lshlrev_b32 %s, %d, %s" % (vr(vt), shift, vr(vt)))
        bload(vt, 1, vt, SWS, soff, 0, "sc0 sc1", tag)

    sizes = {SX: 2048 * 1024, SWQ: 512 * 3072, SWS: WS_END, SW1: 512 * 2752, SB1: 2752,
             SWO: 512 * 1024, SW2: 1376 * 1024, SB2: 1024, SOUT: 2048 * 1024}
    RAW = 128

    def xloads():
        for j in range(8):
            bload(RAW + j * 4, 4, 14, SX, "s101", j * 128, "nt" if cfg.nt & 1 else "", ("x", j))

    stamp(0)
    a("""
    s_load_dwordx2 s[24:25], s[0:1], 0
    s_getpc_b64 s[72:73]
    L_pc:
    s_cmpk_ge_u32 s2, 256
    s_cbranch_scc1 L_end
    s_lshr_b32 s74, s2, 3
    s_lshl_b32 s74, s74, 11
    v_lshrrev_b32 v8, 5, v0
    v_lshl_add_u32 v8, v8, 7, s74
    v_min_u32 v8, L_code_end-L_pc, v8
    v_mov_b32 v9, 0
    v_lshl_add_u64 v[8:9], v[8:9], 0, s[72:73]
    global_load_dword v7, v[8:9], off
    s_lshl_b32 s72, s2, 4
    s_and_b32 s72, s72, 0x180
    v_add_u32 v4, s72, v0
    v_bfe_u32 v4, v4, 3, 6
    v_and_b32 v5, 7, v0
    v_lshlrev_b32 v14, 10, v4
    v_lshl_add_u32 v14, v5, 4, v14
    s_lshr_b32 s67, s2, 5
    s_and_b32 s73, s2, 6
    s_lshl2_add_u32 s62, s73, s67
    s_lshl_b32 s101, s62, 16
    s_mov_b32 s26, %d
    s_mov_b32 s27, 0x20000
    v_bfe_u32 v24, v4, 1, 3
    v_xor_b32 v24, v24, v5
    v_lshlrev_b32 v15, 7, v4
    v_lshl_add_u32 v15, v24, 4, v15
    v_readfirstlane_b32 s60, v0
    v_and_b32 v0, 63, v0
    v_and_b32 v26, 3, v0
    v_mov_b32 v29, 0
    s_lshr_b32 s60, s60, 6
    s_cmp_ge_u32 s60, 4
    s_waitcnt lgkmcnt(0)
    """ % sizes[SX])
    vm.push("pf")
    if cfg.bst == 3:
        stamp(1, True)
    xloads()
    if cfg.bst == 3:
        stamp(2, True)
    if cfg.stamps:
        for i in range(3 if cfg.bst == 3 else 1, 16):
            a("s_mov_b32 %s, s4" % sr(sSTAMP + i))
    a("s_mov_b32 s63, 1")
    a("s_cbranch_scc1 L_ln")
    a("s_mov_b32 s63, 0")

    def setup1():
        for s, off in ((SWQ, 8), (SWS, 80), (SW1, 32), (SB1, 40), (SWO, 16), (SW2, 48), (SB2, 56), (SOUT, 64)):
            a("s_load_dwordx2 %s, s[0:1], %d" % (sr(s, 2), off))
        a("""
        s_mov_b32 s30, %d
        s_mov_b32 s31, 0x20000
        s_bfe_u32 s72, s2, 0x20003
        s_and_b32 s73, s2, 1
        s_lshl2_add_u32 s61, s73, s72
        s_and_b32 s74, s60, 3
        s_lshl_b32 s72, s61, 7
        s_mul_i32 s85, s74, %d
        s_add_u32 s85, s85, s72
        s_mul_i32 s87, s74, 6144
        s_add_u32 s87, s87, %d
        v_lshrrev_b32 v4, 3, v0
        v_bfe_u32 v6, v4, 1, 1
        v_lshlrev_b32 v6, 2, v6
        v_xor_b32 v6, v6, v5
        v_lshlrev_b32 v6, 4, v6
        v_mul_u32_u24 v13, 3072, v4
        v_add_u32 v13, v13, v6
        v_xor_b32 v33, 16, v13
        s_waitcnt lgkmcnt(0)
        """ % (sizes[SWQ], 16 * 3072, L_RING))

    def setup_pf():
        for s in (SW1, SWO, SW2):
            a("s_mov_b32 %s, %d" % (sr(s + 2), sizes[s]))
            a("s_mov_b32 %s, 0x20000" % sr(s + 3))
        a("""
        s_and_b32 s73, s60, 3
        s_lshl2_add_u32 s100, s2, s73
        s_mul_i32 s100, s100, 1536
        v_min_u32 v31, 11, v0
        v_lshlrev_b32 v31, 7, v31
        """)

    def setup2():
        a("s_load_dword %s, %s, 0" % (sr(sTAG), sr(SWS, 2)))
        for s in (SWS, SB1, SB2, SOUT):
            a("s_mov_b32 %s, %d" % (sr(s + 2), sizes[s]))
            a("s_mov_b32 %s, 0x20000" % sr(s + 3))
        a("""
        s_bfe_u32 s72, s2, 0x20003
        s_and_b32 s73, s2, 7
        s_lshl2_add_u32 s66, s73, s72
        s_and_b32 s72, s72, 1
        s_lshl1_add_u32 s64, s73, s72
        s_lshr_b32 s65, s2, 4
        s_mul_i32 s69, s61, 6
        s_mul_i32 s73, s61, 5
        s_add_u32 s73, s73, 3
        s_min_u32 s69, s69, s73
        s_mov_b32 s70, 0xffff
        s_mov_b32 s71, 0xffff
        v_lshlrev_b32 v1, 4, v0
        v_and_b32 v2, 15, v0
        v_lshrrev_b32 v3, 5, v0
        v_lshl_add_u32 v2, v3, 4, v2
        v_lshlrev_b32 v2, 4, v2
        """)

    def setup3():
        a("; attention offsets: s82 = next K/V tile, s83 = head base, s92-s95 = Q tiles, s96-s99 = O partial slots")
        a("""
        s_and_b32 s74, s60, 1
        s_lshr_b32 s75, s60, 1
        s_lshl1_add_u32 s72, s64, s74
        s_lshl_b32 s83, s72, 17
        s_add_u32 s83, s83, %d
        s_and_b32 s73, s75, 1
        s_lshl_b32 s73, s73, 16
        s_add_u32 s82, s83, s73
        s_lshl_b32 s72, s65, 6
        s_add_u32 s72, s72, s64
        s_lshl1_add_u32 s72, s72, s74
        s_lshl_b32 s72, s72, 10
        s_add_u32 s72, s72, %d
        s_mul_i32 s84, s74, %d
        s_add_u32 s84, s84, %d
        """ % (WS_KV, WS_QO, 12 * 2304, L_OPART))
        for t in range(4):
            a("s_xor_b32 s73, s75, %d" % (t ^ 3))
            a("s_mul_i32 %s, s73, %d" % (sr(96 + t), 3 * 2304))
            a("s_lshl_b32 s73, s73, 15")
            a("s_add_u32 %s, s72, s73" % sr(92 + t))
            a("s_add_u32 %s, %s, s84" % (sr(96 + t), sr(96 + t)))

    setup1()
    setup_pf()
    setup2()
    a("s_and_b32 s74, s60, 1")
    a("s_lshr_b32 s75, s60, 1")
    a("""
    v_bfe_u32 v9, v0, 4, 1
    v_and_b32 v16, 15, v0
    v_lshlrev_b32 v8, 4, v16
    v_lshl_add_u32 v8, v9, 9, v8
    v_lshl_add_u32 v11, v3, 17, v8
    v_lshl_add_u32 v14, v3, 10, v8
    v_lshl_add_u32 v127, v3, 16, v8
    v_lshrrev_b32 v17, 4, v0
    v_bfe_u32 v8, v0, 3, 1
    v_lshlrev_b32 v12, 4, v5
    v_lshl_add_u32 v12, v17, 8, v12
    v_lshl_add_u32 v12, v8, 17, v12
    v_lshrrev_b32 v8, 1, v16
    v_xor_b32 v8, v8, v17
    v_lshlrev_b32 v16, 7, v16
    v_lshl_add_u32 v16, v8, 4, v16
    s_lshl_b32 s72, s74, 12
    v_add_u32 v16, s72, v16
    v_xor_b32 v17, 64, v16
    v_lshl_add_u32 v4, v4, 10, v6
    v_bfe_u32 v10, v0, 2, 2
    v_lshrrev_b32 v6, 1, v10
    v_xor_b32 v8, s75, v6
    v_and_b32 v18, 2, v0
    v_lshl_add_u32 v8, v8, 2, v18
    v_add_u32 v8, v8, v9
    v_lshlrev_b32 v8, 1, v8
    v_and_or_b32 v8, v0, 1, v8
    v_lshlrev_b32 v8, 3, v8
    v_lshl_add_u32 v8, v10, 7, v8
    v_lshl_add_u32 v8, v9, 10, v8
    v_mul_u32_u24 v18, 6144, v3
    v_add_u32 v8, v8, v18
    v_add_u32 v8, %d, v8
    v_xor_b32 v18, 16, v8
    v_add_u32 v19, %d, v18
    v_lshlrev_b32 v5, 5, v9
    v_lshl_add_u32 v5, v10, 7, v5
    v_and_b32 v10, 3, v0
    v_lshl_add_u32 v5, v10, 3, v5
    v_lshl_add_u32 v5, v3, 9, v5
    v_lshl_add_u32 v5, v6, 6, v5
    v_lshrrev_b32 v10, 1, v0
    v_xor_b32 v10, v10, v0
    v_and_b32 v10, 1, v10
    v_mul_u32_u24 v10, 24, v10
    v_xor_b32 v5, v5, v10
    s_mul_i32 s84, s60, %d
    s_add_u32 s84, s84, %d
    v_add_u32 v5, s84, v5
    v_xor_b32 v6, 64, v5
    v_lshlrev_b32 v10, 3, v9
    v_lshl_add_u32 v10, v3, 5, v10
    v_xor_b32 v9, 16, v19
    v_mov_b32 v3, 0xdddddddd
    """ % (L_RING, 2 * 24576, W2_REGION, L_W2))

    def setup_a():
        setup3()
        a("s_add_u32 s82, s82, %d" % (nB * 2048))
        a("s_mul_i32 s84, s60, %d" % W2_REGION)
        a("s_add_u32 s84, s84, %d" % L_W2)
        a("""
        s_lshl1_add_u32 s72, s62, s74
        s_lshl1_add_u32 s73, s61, s75
        s_lshl_b32 s76, s73, 7
        s_add_u32 s76, s76, s72
        s_lshl_b32 s77, s76, 11
        s_lshl4_add_u32 s76, s72, s73
        s_lshl_b32 s76, s76, 11
        s_add_u32 s76, s76, %d
        s_add_u32 s77, s77, %d
        s_add_u32 s81, s69, s75
        s_lshl_b32 s78, s81, 7
        s_add_u32 s78, s78, s72
        s_lshl_b32 s78, s78, 10
        s_add_u32 s78, s78, %d
        s_lshl_b32 s79, s61, 6
        s_add_u32 s79, s79, s62
        s_lshl_b32 s79, s79, 4
        s_add_u32 s79, s79, %d
        s_lshl_b32 s80, s62, 3
        s_add_u32 s80, s80, s61
        s_lshl2_add_u32 s80, s80, s60
        s_lshl_b32 s80, s80, FSH
        s_add_u32 s80, s80, %d
        s_mul_i32 s73, s61, s75
        s_add_u32 s88, s78, %d
        s_cmp_lt_u32 s73, 3
        s_cselect_b32 s88, s88, 0x40000000
        """ % (WS_QO, WS_KV, WS_HF, WS_FLAGQ, WS_FLAGH, 8 * 65536))

    if not cfg.salate:
        setup_a()

    def slot_of(c):
        if not cfg.xslot or c < cfg.xslot:
            return (c & 3) * 24576
        return -L_RING if c == cfg.xslot else ((c - 1) & 3) * 24576

    skip_bar = (10,) if cfg.xslot else ()

    def issue_chunk(c):
        if cfg.rot:
            a("s_xor_b32 s73, s67, %d" % (c & 7))
            a("s_mul_i32 s73, s73, %d" % (64 * (3072 if c < 8 else 2752)))
            a("s_add_u32 s73, s73, %s" % ("s85" if c < 8 else "s80"))
        for m in range(6):
            blk, seg = divmod(m, 3)
            a("s_add_u32 m0, s87, %d" % (slot_of(c) + seg * 2048 + blk * 1024))
            if c < 8:
                a("s_add_u32 s72, %s, %d" % (("s73", blk * 8 * 3072 + seg * 1024) if cfg.rot else ("s85", (c * 64 + blk * 8) * 3072 + seg * 1024)))
                dma(33 if blk else 13, SWQ, "s72", 0, ("w", c))
            else:
                a("s_add_u32 s72, %s, %d" % (("s73", blk * 8 * 2752 + seg * 128) if cfg.rot else ("s80", ((c - 8) * 64 + blk * 8) * 2752 + seg * 128)))
                dma(56 + (seg == 2) + 2 * blk, SW1, "s72", 0, ("w", c))

    def layernorm(acts):
        def act(p):
            if acts.get(p):
                assert p >= 7
                a("s_cmp_eq_u32 s63, 1")
                a("s_cbranch_scc1 L_ln_%d" % p)
                for f in acts[p]:
                    f()
                a.label("L_ln_%d" % p)
        a.label("L_ln")
        a("""
        v_mov_b32 v232, 0x3f803f80
        v_mov_b32 v233, 0x3f803f80
        v_lshlrev_b32 v26, 4, v26
        v_mov_b32 v28, 0xffff
        v_lshlrev_b64 v[28:29], v26, v[28:29]
        """)
        a("s_mov_b32 s89, 0xffff0000")
        if cfg.rot:
            a("; K chunks are visited in the order c ^ (row block & 7): workgroups sharing weights fetch different chunks first")
            a("s_lshl_b32 s72, s67, 13")
            a("v_or_b32 v15, s72, v15")

        def xwrite(j):
            if cfg.rot:
                a("v_xor_b32 v23, 0x%x, v15" % (j << 13))
                a("ds_write_b128 v23, %s" % vr(RAW + j * 4, 4))
            else:
                a("ds_write_b128 v15, %s offset:%d" % (vr(RAW + j * 4, 4), j * 8192))

        def m4(d, x, y, c):
            a("v_mfma_f32_4x4x4_16b_bf16 %s, %s, %s, %s" % (vr(d, 4), vr(x, 2), vr(y, 2), "0" if c is None else vr(c, 4)))

        S, GM, T, CN, AH = 208, 216, 192, 224, 228
        for j in range(8):
            vm.wait(("x", j))
            if cfg.bst == 3 and j in (0, 3, 7):
                stamp({0: 4, 3: 5, 7: 6}[j], True)
            if j == 7:
                act(7)
            for h in range(2):
                x = RAW + j * 4 + 2 * h
                m4(S + 4 * h, 232, x, S + 4 * h if j else None)
                m4(GM + 4 * h, x, x, GM + 4 * h if j else None)
        act(8)
        stamp(1)
        a("v_add_f32 v24, %s, %s" % (vr(S), vr(S + 4)))
        for r in range(4):
            a("v_add_f32 %s, %s, %s" % (vr(GM + r), vr(GM + r), vr(GM + 4 + r)))
        dpp = "row_mask:0xf bank_mask:0xf"
        a("v_add_f32_dpp v24, v24, v24 quad_perm:[1,0,3,2] " + dpp)
        a("v_mov_b32_dpp v25, %s quad_perm:[0,0,0,0] %s" % (vr(GM), dpp))
        a("v_add_f32_dpp v25, %s, v25 quad_perm:[1,1,1,1] %s" % (vr(GM + 1), dpp))
        a("v_add_f32_dpp v24, v24, v24 quad_perm:[2,3,0,1] " + dpp)
        a("v_add_f32_dpp v25, %s, v25 quad_perm:[2,2,2,2] %s" % (vr(GM + 2), dpp))
        a("v_add_f32_dpp v25, %s, v25 quad_perm:[3,3,3,3] %s" % (vr(GM + 3), dpp))
        a("v_add_f32_dpp v24, v24, v24 row_half_mirror " + dpp)
        a("v_add_f32_dpp v25, v25, v25 row_half_mirror " + dpp)
        a("""
        v_mul_f32 v24, 0x3b000000, v24
        v_mul_f32 v25, 0x3b000000, v25
        v_fma_f32 v25, -v24, v24, v25
        v_max_f32 v25, 0, v25
        v_cvt_pk_bf16_f32 v24, v24, v25
        v_and_b32 v25, s89, v24
        v_add_f32 v25, 0x3727c5ac, v25
        v_cvt_pk_bf16_f32 v25, v25, v25
        v_and_b32 v25, s89, v25
        v_sqrt_f32 v25, v25
        v_lshlrev_b32 v24, 16, v24
        v_cvt_pk_bf16_f32 v25, v25, v25
        v_and_b32 v25, s89, v25
        v_rcp_f32 v26, v25
        v_cvt_pk_bf16_f32 v27, v26, v26
        v_and_b32 v25, s89, v27
        v_sub_f32 v25, v26, v25
        v_cvt_pk_bf16_f32 v25, v25, v25
        v_and_b32 v228, v27, v28
        v_and_b32 v229, v27, v29
        v_and_b32 v230, v25, v28
        v_and_b32 v231, v25, v29
        """)
        for r in range(4):
            a("v_mul_f32_e64 %s, -v24, v26" % vr(CN + r))

        def finish(j, q):
            t = T + 8 * (j & 1)
            a("v_cvt_pk_bf16_f32 %s, %s, %s" % (vr(RAW + 4 * j + q), vr(t + 2 * q), vr(t + 2 * q + 1)))
            if q == 3:
                xwrite(j)

        for j in range(9):
            for q in range(4):
                if j < 8:
                    t = T + 8 * (j & 1) + 4 * (q & 1)
                    m4(t, AH + 2 * (q >> 1), RAW + 4 * j + 2 * (q & 1), CN if q < 2 else t)
                if j:
                    finish(j - 1, q)
        if cfg.bst == 3:
            stamp(7, True)
        act(9)
        act(10)
        stamp(2)
        if cfg.bst == 3:
            stamp(8, True)

    def pfq():
        a("; memory-side prefetch of Wqkv")
        bload(7, 1, 31, SWQ, "s100", 0, "", "pf")

    def pfl2(which):
        a("; the die's workgroups pull their half of the weight columns into L2 together, four rows per wave")
        stride = 3072 if which == SWQ else 2752
        a("s_lshr_b32 s72, s2, 3")
        a("s_and_b32 s73, s60, 3")
        a("s_lshl2_add_u32 s72, s72, s73")
        a("s_mul_i32 s72, s72, %d" % (4 * stride))
        a("s_and_b32 s73, s2, 1")
        a("s_mul_i32 s73, s73, %d" % (512 if which == SWQ else 1472))
        a("s_add_u32 s72, s72, s73")
        a("v_lshrrev_b32 v20, 4, v0")
        a("v_mul_u32_u24 v20, %d, v20" % stride)
        if which == SWQ:
            a("v_bfe_u32 v21, v0, 2, 2")
            a("v_min_u32 v21, 2, v21")
            a("v_lshl_add_u32 v20, v21, 10, v20")
            a("v_and_b32 v21, 3, v0")
            a("v_lshl_add_u32 v20, v21, 7, v20")
        else:
            a("v_and_b32 v21, 15, v0")
            a("v_lshlrev_b32 v21, 7, v21")
            a("v_min_u32 v21, 1468, v21")
            a("v_add_u32 v20, v20, v21")
        bload(22, 1, 20, which, "s72", 0, "", "pf")

    def pfc(which):
        a("; lines at offset 384 of every KiB stream slowly on a miss: the die's workgroups pull them into L2 together")
        a("s_lshr_b32 s72, s2, 3")
        a("s_lshl2_add_u32 s72, s72, s60")
        a("s_mul_i32 s72, s72, 12288")
        a("v_lshlrev_b32 v20, 3, v31")
        if which == SWQ:
            a("s_bitcmp1_b32 s2, 0")
            a("s_cselect_b32 s72, 0x40000000, s72")
        bload(7, 1, 20, which, "s72", 384, "", "pf")

    def pf1():
        a("; memory-side prefetch of W1")
        bload(7 if cfg.pf1_at <= 10 else 32, 1, 31, SW1, "s100", 0, "", "pf")

    def b1loads():
        a("s_lshr_b32 s3, s60, 1")
        a("s_add_u32 s3, s3, s69")
        a("s_lshl_b32 s3, s3, 6")
        for q in range(6):
            bload(112 + 2 * q, 2, 10, SB1, "s3", (q >> 1) * 128 + (q & 1) * 16, "", "b1")

    acts = {}
    if cfg.pfc_at == 0:
        save = list(vm.items)
        pfc(SWQ)
        vm.items = save
    elif cfg.pfc_at <= 10:
        acts.setdefault(cfg.pfc_at, []).append(lambda: pfc(SWQ))
    if cfg.pfq_at == 0:
        save = list(vm.items)
        pfq()
        vm.items = save
    elif cfg.pfq_at <= 10:
        acts.setdefault(cfg.pfq_at, []).append(pfq)
    if cfg.l2q == 0:
        save = list(vm.items)
        pfl2(SWQ)
        vm.items = save
    if cfg.l2q == 7:
        acts.setdefault(7, []).append(lambda: pfl2(SWQ))
    for c, p in enumerate((cfg.w0_at, cfg.w1_at, cfg.w2_at, 10)[:cfg.lead + 1]):
        acts.setdefault(p, []).append(lambda c=c: issue_chunk(c))
    if 8 <= cfg.l2q <= 10:
        acts.setdefault(cfg.l2q, []).insert(0, lambda: pfl2(SWQ))
    if cfg.pf1_at <= 10:
        acts.setdefault(cfg.pf1_at, []).append(pf1)
    if cfg.pfc1:
        acts.setdefault(10, []).append(lambda: pfc(SW1))
    if cfg.b1at < 0:
        acts.setdefault(-cfg.b1at, []).insert(0, b1loads)
    if cfg.salate == 1:
        acts.setdefault(10, []).insert(0, setup_a)
    if cfg.salate == 3:
        acts.setdefault(10, []).append(setup_a)
    layernorm(acts)
    a("s_cmp_eq_u32 s63, 1")
    a("s_cbranch_scc1 L_loader")

    QR, SB, WF, FA, OA, KV, HB = 8, 24, 56, 64, 128, 192, 228
    NKV = 3

    def att_init_ops():
        ops = ["v_mov_b32 %s, 0" % vr(OA + 16 * t + i) for t in range(4) for i in range(16 if cfg.zall else 9)]
        ops2 = ["v_and_b32 v7, 27, v0", "v_cmp_eq_u32 vcc, 16, v7", "v_mov_b32 v7, 0x3f803f80", "v_cndmask_b32 v7, 0, v7, vcc"]
        ops2 += ["v_mov_b32 %s, v7" % vr(KV + 12 * b + 4 + q) for b in range(NKV) for q in range(8)]
        return ops, ops2

    def kvload(j):
        b = j % NKV
        bload(KV + 12 * b, 4, 252, SWS, "s82", 0, "sc1", ("kv", j))
        a("s_mov_b64 exec, %s" % sr(sVM, 2))
        bload(KV + 12 * b + 4, 4, 2, SWS, "s82", 1024, "sc1", ("kv", j))
        bload(KV + 12 * b + 8, 4, 2, SWS, "s82", 1536, "sc1", ("kv", j))
        a("s_mov_b64 exec, -1")
        a("s_add_u32 s82, s82, 2048")

    def att_loads(role):
        a("; key slot 8a+4b+c holds token 16b+4a+c, matching the order of the V fragments")
        a("v_and_b32 v252, 0x230, v1")
        a("v_and_b32 v253, 0x180, v1")
        a("v_lshrrev_b32 v253, 1, v253")
        a("v_and_b32 v254, 64, v1")
        a("v_lshlrev_b32 v254, 2, v254")
        a("v_or3_b32 v252, v252, v253, v254")
        bload(QR, 4, 1, SWS, "s92", 0, "sc1", "q")
        kvload(0)
        for t in range(1, 4):
            bload(QR + 4 * t, 4, 1, SWS, sr(92 + t), 0, "sc1", "q")
        kvload(1)
        if cfg.kv3 and role == "a":
            kvload(2)

    def dump_addr():
        a("v_lshlrev_b32 v8, 2, v0")
        a("v_add_u32 v9, s99, v1")
        a("v_add_u32 v10, s99, v8")
        a("v_bfe_u32 v11, v0, 4, 1")
        a("v_lshl_add_u32 v11, v11, 10, v2")

    def dump(t):
        a("v_add_u32 v12, %s, v1" % sr(96 + t))
        a("v_add_u32 v13, %s, v8" % sr(96 + t))
        dsw("ds_write_b128", 12, OA + 16 * t, 4, t * 2304)
        dsw("ds_write_b128", 12, OA + 16 * t + 4, 4, t * 2304 + 1024)
        dsw("ds_write_b32", 13, OA + 16 * t + 8, 1, t * 2304 + 2048)

    deferred = []
    cfg_gap = {0: range(16), 1: (1, 10), 2: (0, 9), 3: (4, 10), 4: (1,), 5: (4,), 6: (15, 9)}[cfg.gap]

    def att_run(n, hooks):
        hooks.setdefault((n - 1, 0, 11), []).append(dump_addr)
        for t in range(3):
            hooks.setdefault((n - 1, t + 1, 12), []).append(lambda t=t: dump(t))
        vm.wait("q", ("kv", 0))
        mfma32(SB, KV, QR, None)
        for j in range(n):
            b = j % NKV
            for t in range(4):
                cur, oth = SB + 16 * (t & 1), SB + 16 * ((t + 1) & 1)
                for i in range(16):
                    a("v_exp_f32 %s, %s" % (vr(cur + i), vr(cur + i)))
                    if i in cfg_gap:
                        while deferred:
                            deferred.pop(0)()
                    if t == cfg.kvt and i == cfg.kvi and j + NKV - 1 < n and not (cfg.abl & 32 and j > 0) and not (cfg.kv3 and j == 0):
                        kvload(j + NKV - 1)
                    if i == 1 and (j, t) != (0, 0):
                        smf(OA + 16 * ((t + 3) & 3), KV + 12 * (b if t else (j - 1) % NKV) + 8, oth + 8)
                    if i == 4:
                        if t < 3:
                            mfma32(oth, KV + 12 * b, QR + 4 * (t + 1), None)
                        elif j + 1 < n:
                            vm.wait(("kv", j + 1))
                            mfma32(oth, KV + 12 * ((j + 1) % NKV), QR, None)
                    if i == 10:
                        smf(OA + 16 * t, KV + 12 * b + 4, cur)
                    for h in hooks.get((j, t, i), ()):
                        h()
        smf(OA + 48, KV + 12 * ((n - 1) % NKV) + 8, SB + 16 + 8)

    ACC = (24, 40, 56)
    WB, NBUF, LA = 72, 6, cfg.look
    XF, PK, XA = 128, 96, 16
    init1, init2 = att_init_ops()

    def item(g):
        kk, m = divmod(g % 96, 6)
        return kk, m >> 1, m & 1

    def reads(g, part=None):
        kk, seg, ab = item(g)
        so = slot_of(g // 12)
        base = (8, 18)[ab] + so // 49152
        off = so % 49152 + (kk & 1) * 12288 + seg * 2048
        for h in range(2):
            if part in (None, h):
                if g < 96 and seg == 0 and ab == 0:
                    dsr("ds_read_b128", XF + 8 * kk + 4 * h, 4, XA + (kk & 1), (kk >> 1) * 8192 + h * 2048, g)
                dsr("ds_read_b64_tr_b16", WB + 4 * (g % NBUF) + 2 * h, 2, base, off + 512 * h, g)

    def pack(acc, pk):
        return ["v_cvt_pk_bf16_f32 %s, %s, %s" % (vr(pk + q), vr(acc + 2 * q), vr(acc + 2 * q + 1)) for q in range(8)]

    def st2(pk, va, base, delta, tag, imm=(0, 0), vb=None):
        def first():
            bstore(pk, 4, va, SWS, base, imm[0], "" if cfg.abl & 64 else "sc1", tag)

        def second():
            if delta:
                a("s_add_u32 s72, %s, %d" % (base, delta))
            bstore(pk + 4, 4, vb or va, SWS, "s72" if delta else base, imm[1], "" if cfg.abl & 64 else "sc1", tag)
        return [first, second]

    def relu2(acc):
        return (["v_max_f32 %s, 0, %s" % (vr(acc + i), vr(acc + i)) for i in range(16)]
                + ["v_mul_f32 %s, %s, %s" % (vr(acc + i), vr(acc + i), vr(acc + i)) for i in range(16)])

    def bias(seg):
        ops = [lambda: vm.wait("b1")]
        for q in range(4):
            ops.append("v_lshlrev_b32 %s, 16, %s" % (vr(ACC[seg] + 2 * q), vr(112 + 4 * seg + q)))
            ops.append("v_and_b32 %s, s89, %s" % (vr(ACC[seg] + 2 * q + 1), vr(112 + 4 * seg + q)))
        return ops

    tagq = ["v_or_b32 %s, 1, %s" % (vr(PK + 4 * q), vr(PK + 4 * q)) for q in range(2)]
    qkv_epi = (["v_mul_f32 %s, 0x%x, %s" % (vr(ACC[0] + i), QSCALE, vr(ACC[0] + i)) for i in range(16)]
               + pack(ACC[0], PK) + tagq + st2(PK, 14, "s76", 0, "st", (0, 256))
               + pack(ACC[1], PK + 8) + st2(PK + 8, 11, "s77", 0, "st", (0, 256))
               + pack(ACC[2], PK) + st2(PK, 12, "s77", 0, "st", (1024, 1152))
               + bias(0) + bias(1) + bias(2))
    sched = {144: init1, 174: init2}
    if cfg.zall:
        sched = {108 + 12 * t: init1[16 * t:16 * t + 16] for t in range(4)}
        sched[174] = init2
    shadow = []

    def run_shadow(budget):
        while shadow and budget > 0:
            op = shadow.pop(0)
            if isinstance(op, str):
                a(op)
                budget -= 1
            else:
                op()
                budget -= 3

    mark = len(a.items)
    if cfg.salate == 2:
        setup_a()
    a("""
    s_lshl_b32 s85, s60, 14
    s_lshl_b32 s72, s67, 7
    s_add_u32 s85, s85, s72
    s_lshl_b32 s86, s60, 6
    s_lshl1_add_u32 s86, s66, s86
    s_lshl_b32 s86, s86, 10
    s_add_u32 s86, s86, %d
    s_lshl_b32 s87, s66, FROW
    s_add_u32 s87, s87, %d
    """ % (WS_HF, WS_FLAGH))
    if cfg.salate == 2:
        late_ops = [v.text for k, v in a.items[mark:] if k == "ins"]
        del a.items[mark:]
        sched[0] = late_ops
    vm.wait(("w", 0))
    a("s_waitcnt lgkmcnt(0)")
    a("s_add_u32 %s, %s, 0x%x" % (sr(sTAG), sr(sTAG), EPOCH_INC))
    if cfg.bst == 3:
        stamp(9, True)
    a("s_barrier")
    stamp(3)
    if cfg.bst == 3:
        stamp(10, True)
    for g in range(LA):
        reads(g)
    for g in range(192):
        kk, seg, ab = item(g)
        if g == 96:
            stamp(4)
            shadow.extend(qkv_epi)
            run_shadow(1000)
            stamp(5)
            a("s_barrier")
            for n in range(96, 96 + LA):
                reads(n)
        lg.wait(*range(g, g - g % cfg.wgrp + cfg.wgrp))
        w = WB + 4 * (g % NBUF)
        n = g + LA
        more = n < 192 and not g < 96 <= n
        shadow.extend(sched.get(g, ()))
        for h, t in enumerate((1, 0)):
            x = XF + 8 * kk + 4 * t
            if g < 96 and seg == 2:
                d = ACC[seg] + 8 * ab + 4 * t
                mfma16(d, x, w, None if kk == 0 else d)
            else:
                d = ACC[seg] + 8 * t + 4 * ab
                mfma16(d, w, x, d if kk else (None if g < 96 else ACC[seg] + 4 * ab))
            if more and h == 0 and n % 12 == 0:
                vm.wait(("w", n // 12))
                if n // 12 == cfg.flag_chunk:
                    vm.wait("st")
                a("s_barrier")
                if n // 12 == cfg.flag_chunk:
                    a("s_cmp_lg_u32 s60, 0")
                    a("s_cselect_b32 s79, 0x40000000, s79")
                    set_flag(7, "s79")
                    stamp(6)
            if more:
                reads(n, h)
            run_shadow((1 - h if g < 96 else 1) if more else 2)
        if g == cfg.b1at:
            b1loads()
    run_shadow(1000)
    stamp(7)
    hmath, hst = [], []
    for seg in range(3):
        pk = PK + 8 * seg
        hmath.append(relu2(ACC[seg]) + pack(ACC[seg], pk))
        hst.append((["s_add_u32 s78, s78, 0x40000"] if seg == 1 else []) + st2(pk, 127, "s78" if seg < 2 else "s88", 0, "hst", (0, 256)))
    for seg in range(cfg.hbar):
        shadow.extend(hmath[seg])
    run_shadow(1000)
    a("s_barrier")
    stamp(8)
    if cfg.bst == 4:
        stamp(1, True)
    a("s_setprio 2")
    for seg in range(cfg.hbar, cfg.hpre):
        shadow.extend(hmath[seg])
    run_shadow(1000)
    att_loads("a")
    hlist = [[hst[0][0]], [hst[0][1]], hst[1][:2], [hst[1][2]], [hst[2][0]], [hst[2][1]]]
    for seg in range(3):
        shadow.extend(hmath[seg] if seg >= max(cfg.hpre, cfg.hbar) else [])
        for n in (2 * seg, 2 * seg + 1):
            if n < cfg.hnow:
                shadow.extend(hlist[n])
    run_shadow(1000)
    stamp(9)


    def w2dma(i):
        if cfg.abl & 1:
            return
        a("s_add_u32 m0, s84, %d" % ((i & 3) * 2048))
        a("s_add_u32 s72, s85, %d" % (i * 65536))
        dma(4, SW2, "s72", 0, ("w2", i))
        a("s_add_u32 s72, s72, 7168")
        dma(4, SW2, "s72", 1024, ("w2", i))

    hreg = lambda i, tt: HB + 8 * (i % 3) + 4 * tt

    def hload(i):
        if cfg.abl & 1:
            return
        if i > 0:
            a("s_add_u32 s86, s86, 0x40000")
        for tt in range(2):
            bload(hreg(i, tt), 4, 1, SWS, "s86", tt * 1024, "sc1", ("h", i))

    def w2read(i, nt):
        if cfg.abl & 2:
            return
        vm.wait(("w2", i))
        trread(WF + 4 * nt, 5 + nt, (i & 3) * 2048, 1024, ("wf", i, nt))

    def fslot(f):
        i, m = divmod(f, 4)
        nt, tt = ((0, 0), (0, 1), (1, 1), (1, 0))[m]
        vm.wait(("h", i))
        lg.wait(("wf", i, nt))
        d = FA + 16 * (2 * tt + nt)
        if not cfg.abl & 4:
            mfma32(d, WF + 4 * nt, hreg(i, tt), None if i == 0 else d)
        if m == 1 and i + 1 < NS:
            deferred.append(lambda: w2read(i + 1, 0))
        if m == cfg.dmam and i + 4 < NS:
            deferred.append(lambda: w2dma(i + 4))
        if m == 3:
            if i + 1 < NS:
                deferred.append(lambda: w2read(i + 1, 1))
            if i + 3 < NS:
                deferred.append(lambda: hload(i + 3))

    def park(tt, nt):
        d = FA + 16 * (2 * tt + nt)
        for q in range(8):
            a("v_cvt_pk_bf16_f32 %s, %s, %s" % (vr(d + q), vr(d + 2 * q), vr(d + 2 * q + 1)))
        for q in range(2):
            dsw("ds_write_b128", 4, d + 4 * q, 4, tt * 32 * PART_STRIDE + nt * 64 + q * 32)

    def park_addr():
        a("v_and_b32 v4, 31, v0")
        a("v_mul_u32_u24 v4, %d, v4" % PART_STRIDE)
        a("v_lshrrev_b32 v5, 5, v0")
        a("v_lshl_add_u32 v4, v5, 4, v4")
        a("v_add_u32 v4, s84, v4")

    hooks = {}

    def hook(j, t, i, f):
        hooks.setdefault((j, t, i), []).append(f)

    n1 = cfg.n1
    for n in range(cfg.hnow, 6):
        tl = (n - cfg.hnow) * cfg.hgap + cfg.hoff
        hook(tl >> 2, tl & 3, 9, lambda n=n: (shadow.extend(hlist[n]), run_shadow(1000)))
    assert (5 - cfg.hnow) * cfg.hgap + cfg.hoff <= cfg.hflag < 4 * (n1 - 2)
    hook(cfg.hflag >> 2, cfg.hflag & 3, 12, lambda: (vm.wait("hst"), set_flag(7, "s80"), stamp(1) if cfg.hst else None))
    hook(n1 - 2, 0, 8, lambda: flag_load(7, cfg.fsh, "s87", "hf"))
    hook(n1 - 2, 3, 12, lambda: (vm.wait("hf"), stamp(2) if cfg.hst else None, check_flags("h", 7, cfg.fsh, "s87"), stamp(3) if cfg.hst else None))
    for i in range(4):
        hook(n1 - 3 + (i >> 1), 1 + (i & 1), 7, lambda i=i: w2dma(i))
    for i in range(3):
        hook(n1 - 1, i, 7, lambda i=i: hload(i))
    hook(n1 - 1, 3, 7, lambda: (w2read(0, 0), w2read(0, 1)))
    pat = [int(ch) for ch in str(cfg.fpat)]
    slots = [(j, t, pos) for j in range(n1, nA) for t in range(4) for pos in ((13,), (7, 13))[pat[t] - 1]]
    for f in range(4 * NS):
        hook(*slots[f], lambda f=f: fslot(f))
    tl = slots[4 * NS - 1][0] * 4 + slots[4 * NS - 1][1] + 1
    assert tl + 3 < 4 * nA
    hook(tl >> 2, tl & 3, 6, park_addr)
    for n, (nt, tt) in enumerate(((0, 0), (0, 1), (1, 1), (1, 0))):
        hook((tl + n) >> 2, (tl + n) & 3, 7, lambda tt=tt, nt=nt: park(tt, nt))
    if cfg.hst:
        for n in range(4):
            hook(n1 + 4 * n, 0, 1, lambda n=n: stamp(4 + n))
    if cfg.alow:
        tl = 4 * nA - cfg.alow
        hook(tl >> 2, tl & 3, 0, lambda: a("s_setprio 0"))
    if cfg.bst == 4:
        for n, j in enumerate(range(0, nA, 2)):
            hook(j, 0, 0, lambda n=n: stamp(2 + n, True))
    att_run(nA, hooks)
    vm.drain()
    a("s_branch L_att_done")

    a.label("L_loader")
    vm.items = []
    lg.items = []

    def b_setup():
        a("; waves 4-7: W1 DMA offsets v56/v57 (sixth tile out of range where the next group owns it), wo DMA offset v4, flagQ row s79")
        a("""
        v_mul_u32_u24 v56, 2752, v4
        v_add_u32 v56, v56, v6
        s_lshr_b32 s72, 0xf8, s61
        s_and_b32 s72, s72, 1
        s_lshl_b32 s72, s72, 23
        v_and_b32 v57, 64, v6
        v_mad_u32_u24 v57, v57, s72, v56
        v_xor_b32 v58, 16, v56
        v_xor_b32 v59, 16, v57
        v_bfe_u32 v6, v4, 1, 2
        v_lshlrev_b32 v6, 1, v6
        v_xor_b32 v6, v6, v5
        v_lshlrev_b32 v6, 4, v6
        v_lshl_add_u32 v4, v4, 10, v6
        v_min_u32 v5, %d, v0
        v_lshlrev_b32 v5, 7, v5
        s_lshr_b32 s79, s64, 1
        s_lshl_b32 s79, s79, 10
        s_add_u32 s79, s79, %d
        s_and_b32 s73, s60, 3
        s_lshl_b32 s72, s69, 6
        s_mul_i32 s80, s73, %d
        s_add_u32 s80, s80, s72
        """ % (cfg.pfn - 1, WS_FLAGQ, 16 * 2752))

        a("v_mov_b32 v3, 0xdddddddd")

    issued = cfg.lead
    setup1()
    if cfg.bpre:
        issued += 1
        issue_chunk(issued)
    state = {"issued": issued}

    def b_step(c):
        if c in skip_bar:
            return
        vm.wait(("w", c + 1 if c + 1 in skip_bar else c))
        if cfg.bst == 2:
            stamp(c, True)
        if cfg.bst == 3 and c == 0:
            stamp(9, True)
        a("s_barrier")
        if cfg.bst == 1:
            stamp(c, True)
        if c in (0, 8, 12, 15):
            stamp({0: 3, 8: 4, 12: 5, 15: 6}[c])
        if c == cfg.bload - 1:
            flag_load(7, 4, "s79", "qf")
        if c == cfg.bload:
            vm.wait("qf")
            check_flags("q", 7, 4, "s79")
            stamp(7)
            att_loads("b")
        lim = c + 2
        if c < 8:
            lim = min(lim, cfg.hold)
        if cfg.split and c == 8:
            lim = 10 + cfg.split - 1
        if cfg.xslot == 12 and c == 9:
            lim = 12
        if cfg.xslot == 11 and c in (8, 9):
            lim = c + 3
        if cfg.xslot and c >= 11:
            lim = c + cfg.xrun
        while state["issued"] < min(15, max(3, lim)):
            state["issued"] += 1
            issue_chunk(state["issued"])
        if c == 0:
            setup_pf()
        if c == cfg.sA:
            setup2()
        if cfg.pf1_at == 12 + c:
            pf1()
        if c == cfg.sB:
            b_setup()
        if c == cfg.sC:
            setup3()
        if c == cfg.l2w:
            pfl2(SW1)
        if c == cfg.pfe:
            a("; memory-side prefetch of w2 and wo")
            bload(32, 1, 31, SW2, "s100", 0, "", "pf")
            bload(32, 1, 31, SWO, "s100", 0, "", "pf")
        if c == cfg.sC:
            for op in init1 + init2:
                a(op)
        if c == 7:
            a("s_waitcnt lgkmcnt(0)")
            a("s_add_u32 %s, %s, 0x%x" % (sr(sTAG), sr(sTAG), EPOCH_INC))

    def b_att():
        a("s_barrier")
        stamp(8)
        a("s_setprio 1")
        if cfg.kv3:
            kvload(2)

    bhooks = {}
    for c in range(17):
        f = (lambda c=c: b_step(c)) if c < 16 else b_att
        if c <= cfg.bjoin:
            f()
        else:
            tl = (c - cfg.bjoin) * cfg.btile - 1
            bhooks[(tl >> 2, tl & 3, 13)] = [f]

    def wo_dma(lo, hi):
        if cfg.abl & 8:
            return
        if lo == 0:
            a("; wo tile -> LDS [0, 64K), a few rows per score tile")
            a("s_and_b32 s78, s60, 3")
            a("s_lshl_b32 s76, s78, 17")
            a("s_lshl_b32 s73, s67, 7")
            a("s_add_u32 s76, s76, s73")
            a("s_lshl_b32 s78, s78, 14")
        for i in range(lo, hi):
            a("s_add_u32 m0, s78, %d" % (i * 1024))
            a("s_add_u32 s73, s76, %d" % (i * 8192))
            dma(4, SWO, "s73", 0, "wo")

    nl = cfg.pfn
    batches = [(SW2, i) for i in range(-(-11 // nl))] + [(SWO, i) for i in range(-(-4 // nl))]

    def pf_late(n):
        if cfg.abl & 16:
            return
        if n == 0:
            a("; memory-side prefetch of w2 (in k order) and wo, a few lines per wave at a time")
            a("s_and_b32 s90, s60, 3")
            a("s_lshl2_add_u32 s90, s2, s90")
            a("s_mul_i32 s90, s90, %d" % (nl * 128))
        a("s_add_u32 s72, s90, %d" % (batches[n][1] * nl * 131072))
        bload(7, 1, 5, batches[n][0], "s72", 0, "", "pf")

    for n in range(len(batches) if cfg.pfe > 90 else 0):
        tl = cfg.pfl + n * cfg.pfg
        bhooks[(tl >> 2, tl & 3, 7)] = [lambda n=n: pf_late(n)]
    for n, lo in enumerate(range(0, 16, cfg.won)):
        bhooks[((cfg.wol + n) >> 2, (cfg.wol + n) & 3, 8)] = [lambda lo=lo: wo_dma(lo, lo + cfg.won)]
    if cfg.bst == 4:
        for j in range(nB):
            bhooks.setdefault((j, 0, 0), []).append(lambda j=j: stamp(2 + j, True))
    att_run(nB, bhooks)
    vm.drain()

    OW = OA + 48
    WOF, OFR, AC, G, Z, X, SR = 128, 24, 8, 64, 96, 104, 112
    a.label("L_att_done")
    stamp(10)
    if cfg.bst == 4:
        stamp(14, True)
    a("s_setprio 0")
    a("s_and_b32 s73, s60, 1")
    a("s_lshl_b32 s73, s73, 9")
    a("s_sub_u32 s76, s95, s73")
    a("""
    s_and_b32 s74, s60, 3
    s_lshr_b32 s75, s60, 2
    v_lshrrev_b32 v14, 3, v0
    v_and_b32 v7, 7, v0
    v_lshlrev_b32 v7, 4, v7
    v_lshl_add_u32 v14, v14, 10, v7
    s_lshl3_add_u32 s78, s66, s60
    s_lshl_b32 s78, s78, 13
    s_lshl_b32 s79, s67, 7
    s_add_u32 s78, s78, s79
    """)
    bload(60, 4, 7, SB2, "s79", 0, "", "xb")
    bload(56, 4, 14, SX, "s78", 0, "", "xb")
    lg.drain()
    a("s_barrier")
    for src in range(3):
        d = SB + 10 * src
        dsr("ds_read_b128", d, 4, 9, src * 2304, src)
        dsr("ds_read_b128", d + 4, 4, 9, src * 2304 + 1024, src)
        dsr("ds_read_b32", d + 8, 1, 10, src * 2304 + 2048, src)
    for src in range(3):
        lg.wait(src)
        for i in range(0, 8, 2):
            a("v_pk_add_f32 %s, %s, %s" % (vr(OW + i, 2), vr(OW + i, 2), vr(SB + 10 * src + i, 2)))
        a("v_add_f32 %s, %s, %s" % (vr(OW + 8), vr(OW + 8), vr(SB + 10 * src + 8)))
    a("v_pk_mul_f32 v[12:13], %s, 0 op_sel_hi:[1,0]" % vr(OW, 2))
    for i in range(2, 8, 2):
        a("v_pk_fma_f32 v[12:13], %s, 0, v[12:13] op_sel_hi:[1,0,1]" % vr(OW + i, 2))
    a("""
    v_add_f32 v12, v12, %s
    v_add_f32 v12, v12, v13
    v_cmp_nle_f32 vcc, 0x30800000, v12
    s_mov_b64 s[72:73], vcc
    v_cmp_nge_f32 vcc, 0x5d800000, v12
    s_or_b64 s[72:73], s[72:73], vcc
    """ % vr(OW + 8))
    a("s_branch L_slow" if cfg.force_slow else "s_cbranch_scc1 L_slow")
    a.label("L_norm")
    a("v_rcp_f32 v12, %s" % vr(OW + 8))
    for i in range(0, 8, 2):
        a("v_pk_mul_f32 %s, %s, v[12:13] op_sel_hi:[1,0]" % (vr(OW + i, 2), vr(OW + i, 2)))
    for q in range(4):
        a("v_cvt_pk_bf16_f32 %s, %s, %s" % (vr(16 + q), vr(OW + 2 * q), vr(OW + 2 * q + 1)))
    a("v_and_b32 v16, -2, v16")
    bstore(16, 4, 11, SWS, "s76", 0, "sc1", "ost")
    stamp(11)
    a("v_mov_b32 v2, v14")
    a("v_lshrrev_b32 v3, 3, v0")
    a("""
    v_mul_u32_u24 v4, %d, v3
    s_mul_i32 s72, s60, %d
    s_add_u32 s72, s72, %d
    v_add3_u32 v4, v4, v7, s72
    """ % (PART_STRIDE, 8 * PART_STRIDE, L_W2))
    for j in range(4):
        dsr("ds_read_b128", G + 4 * j, 4, 4, j * W2_REGION, "g")
    a("""
    v_bfe_u32 v4, v0, 2, 2
    v_bfe_u32 v5, v0, 4, 1
    v_lshl_add_u32 v4, v5, 2, v4
    v_lshrrev_b32 v5, 1, v4
    v_lshlrev_b32 v92, 7, v4
    v_lshl_add_u32 v92, v5, 5, v92
    v_lshrrev_b32 v6, 5, v0
    v_lshl_add_u32 v92, v6, 11, v92
    v_and_b32 v4, 3, v0
    v_lshl_add_u32 v92, v4, 3, v92
    s_lshl_b32 s72, s75, 15
    v_add_u32 v92, s72, v92
    v_xor_b32 v93, 32, v92
    v_xor_b32 v94, 64, v92
    v_xor_b32 v95, 0x60, v92
    s_barrier
    """)

    def oloads(first=0):
        for ks in range(first, 8):
            bload(OFR + 4 * ks, 4, 1, SWS, ("s76", "s77", "s80", "s81")[ks >> 1], (ks & 1) * 2048, "sc1", ("o", ks))

    fill = ("""
    s_lshl2_add_u32 s72, s66, s74
    s_lshr_b32 s76, s72, 1
    s_lshl1_add_u32 s76, s76, s75
    s_lshl_b32 s76, s76, 14
    s_and_b32 s72, s72, 1
    s_lshl_b32 s72, s72, 10
    s_add_u32 s76, s76, s72
    s_add_u32 s76, s76, %d
    s_add_u32 s77, s76, 0x1000
    s_add_u32 s80, s76, 0x2000
    s_add_u32 s81, s76, 0x3000
    v_mul_u32_u24 v3, %d, v3
    v_lshl_add_u32 v3, v7, 1, v3
    s_mul_i32 s72, s60, %d
    s_add_u32 s72, s72, %d
    v_add_u32 v3, s72, v3
    v_and_b32 v5, 15, v0
    v_mul_u32_u24 v5, %d, v5
    v_and_b32 v4, 48, v0
    s_mul_i32 s72, s60, %d
    s_add_u32 s72, s72, %d
    v_add3_u32 v5, v5, v4, s72
    s_mov_b32 s82, 0x3f80
    s_mov_b32 s83, 0x3f800000
    """ % (WS_QO, SUM_STRIDE, 8 * SUM_STRIDE, L_SUM, SUM_STRIDE, 16 * SUM_STRIDE, L_SUM)).strip().split("\n")
    gate = ["v_mov_b32 %s, 0" % vr(Z + i) for i in range(8)]
    gate.append(lambda: lg.wait("g"))
    for j in range(5):
        if j == 4:
            gate.append(lambda: vm.wait("xb"))
        for q in range(4):
            src = G + 4 * j + q if j < 4 else 60 + q
            gate.append("v_dot2c_f32_bf16 %s, s82, %s" % (vr(Z + 2 * q), vr(src)))
            gate.append("v_dot2c_f32_bf16 %s, s83, %s" % (vr(Z + 2 * q + 1), vr(src)))
    for q in range(4):
        gate.append("v_lshlrev_b32 %s, 16, %s" % (vr(X + 2 * q), vr(56 + q)))
        gate.append("v_and_b32 %s, s89, %s" % (vr(X + 1 + 2 * q), vr(56 + q)))
    gate += ["v_mul_f32 %s, 0x%x, %s" % (vr(G + i), NLOG2E, vr(Z + i)) for i in range(8)]
    gate += ["v_exp_f32 %s, %s" % (vr(G + i), vr(G + i)) for i in range(8)]
    gate += ["v_add_f32 %s, 1.0, %s" % (vr(G + i), vr(G + i)) for i in range(8)]
    gate += ["v_rcp_f32 %s, %s" % (vr(G + i), vr(G + i)) for i in range(8)]
    gate += ["v_mul_f32 %s, %s, %s" % (vr(Z + i), vr(Z + i), vr(G + i)) for i in range(8)]

    def wo_reads(oat, per):
        for ks in range(8):
            for ct in range(4):
                trread(WOF + (ks * 4 + ct) * 4, 92 + ct, ks * 4096, 1024, ("wo", ks))
                run_shadow(per)
            if ks == oat:
                run_shadow(1000)
                vm.wait("ost")
                oloads()

    vm_t, lg_t = list(vm.items), list(lg.items)
    a("s_cmp_eq_u32 s63, 1")
    a("s_cbranch_scc1 L_tail_b")
    shadow.extend(fill)
    wo_reads(7, 1)
    shadow.extend(gate)
    run_shadow(1000)
    a("s_branch L_tail_j")
    a.label("L_tail_b")
    vm.items, lg.items = vm_t, lg_t
    shadow.extend(fill + gate)
    run_shadow(1000)
    wo_reads(cfg.oat, 0)
    a.label("L_tail_j")
    stamp(12)
    a("s_mov_b32 s73, 0")
    lg.drain()
    for ks in range(8):
        a.label("L_wo_%d" % ks)
        vm.wait(("o", ks))
        a("v_and_b32 v6, 1, %s" % vr(OFR + 4 * ks))
        a("v_cmp_ne_u32 vcc, 0, v6")
        a("s_cbranch_vccnz L_oretry_%d" % ks)
        a.label("L_ogo_%d" % ks)
        for ct in range(4):
            d = AC + 4 * ct
            mfma16(d, WOF + (ks * 4 + ct) * 4, OFR + 4 * ks, None if ks == 0 else d)
    stamp(13)
    for ct in range(4):
        dsw("ds_write_b128", 5, AC + 4 * ct, 4, ct * 64)
    lg.drain()
    a("s_barrier")
    stamp(14)
    dsr("ds_read_b128", SR, 4, 3, 0, 0)
    dsr("ds_read_b128", SR + 8, 4, 3, SUM_SIZE, 0)
    dsr("ds_read_b128", SR + 4, 4, 3, 16, 1)
    dsr("ds_read_b128", SR + 12, 4, 3, SUM_SIZE + 16, 1)
    for h in range(2):
        lg.wait(h)
        for i in range(4 * h, 4 * h + 4, 2):
            a("v_pk_add_f32 %s, %s, %s" % (vr(SR + i, 2), vr(SR + i, 2), vr(SR + 8 + i, 2)))
        for i in range(4 * h, 4 * h + 4, 2):
            a("v_pk_fma_f32 %s, %s, %s, %s" % (vr(SR + i, 2), vr(SR + i, 2), vr(Z + i, 2), vr(X + i, 2)))
        for q in range(2 * h, 2 * h + 2):
            a("v_cvt_pk_bf16_f32 %s, %s, %s" % (vr(G + q), vr(SR + 2 * q), vr(SR + 2 * q + 1)))
    bstore(G, 4, 2, SOUT, "s78", 0, ("", "sc1", "nt", "sc0 sc1", "sc0 sc1 nt")[cfg.omod])
    a("s_or_b32 s72, s2, s60")
    a("s_cmp_lg_u32 s72, 0")
    a("s_cbranch_scc1 L_noepoch")
    set_flag(7, "0")
    a.label("L_noepoch")
    if cfg.stamps:
        a("s_waitcnt vmcnt(0)")
        stamp(15)
        if cfg.probe is not None:
            a("s_sub_u32 s72, %s, s4" % sr(sSTAMP + cfg.probe))
            if cfg.stamps == 2:
                a("s_lshr_b32 s72, s72, 3")
            else:
                a("s_lshl_b32 s72, s72, %d" % cfg.probesh)
            a("s_cmp_lg_u32 s2, %d" % cfg.probewg)
            a("s_cselect_b32 s72, 0, s72")
            a("s_cmp_lg_u32 s60, %d" % cfg.probew)
            a("s_cselect_b32 s72, 0, s72")
            a("s_memrealtime s[22:23]")
            a("s_waitcnt lgkmcnt(0)")
            a("s_mov_b32 s73, s22")
            a.label("L_probe")
            a("s_memrealtime s[22:23]")
            a("s_waitcnt lgkmcnt(0)")
            a("s_sub_u32 s22, s22, s73")
            a("s_cmp_lt_u32 s22, s72")
            a("s_cbranch_scc1 L_probe")
        a("s_lshl3_add_u32 s72, s2, s60")
        a("s_lshl_b32 s72, s72, 6")
        a("s_add_u32 s72, s72, %d" % WS_STAMP)
        for i in range(16):
            a("v_mov_b32 %s, %s" % (vr(80 + i), sr(sSTAMP + i)))
        a("s_mov_b64 exec, 1")
        for i in range(4):
            bstore(80 + 4 * i, 4, 1, SWS, "s72", 16 * i)
    a.label("L_end")
    a("s_endpgm")

    for ks in range(8):
        a.label("L_oretry_%d" % ks)
        a("s_add_u32 s73, s73, 1")
        a("s_cmp_ge_u32 s73, %d" % SPIN_MAX)
        a("s_cbranch_scc1 L_ogo_%d" % ks)
        a("s_waitcnt vmcnt(0)")
        oloads(ks)
        a("s_branch L_wo_%d" % ks)

    for tag, vt, lanes, soff in stubs:
        a.label("L_poll_" + tag)
        a("s_mov_b32 s73, 0")
        a.label("L_poll2_" + tag)
        a("s_sleep %d" % cfg.sleep)
        flag_load(vt, lanes, soff, None)
        a("s_add_u32 s73, s73, 1")
        a("s_waitcnt vmcnt(0)")
        a("s_cmp_ge_u32 s73, %d" % SPIN_MAX)
        a("s_cbranch_scc1 L_polled_" + tag)
        a("v_cmp_ne_u32 vcc, %s, %s" % (sr(sTAG), vr(vt)))
        a("s_cbranch_vccnz L_poll2_" + tag)
        a("s_branch L_polled_" + tag)

    a.label("L_slow")
    CN = SB + 16
    a("s_waitcnt vmcnt(0)")
    a("v_mov_b32 v13, 0xff800000")
    a("s_mov_b32 s82, s83")
    a("s_mov_b32 s81, 64")
    a.label("L_slow1")
    bload(KV, 4, 252, SWS, "s82", 0, "sc1")
    a("s_add_u32 s82, s82, 2048")
    a("s_waitcnt vmcnt(0)")
    mfma32(SB, KV, QR + 12, None)
    for i in range(0, 16, 2):
        a("v_max3_f32 v13, v13, %s, %s" % (vr(SB + i), vr(SB + i + 1)))
    a("s_sub_u32 s81, s81, 1")
    a("s_cmp_lg_u32 s81, 0")
    a("s_cbranch_scc1 L_slow1")
    a("v_mov_b32 v15, v13")
    a("v_permlane32_swap_b32 v15, v13")
    a("v_max_f32 v13, v15, v13")
    for i in range(16):
        a("v_sub_f32 %s, 0, v13" % vr(CN + i))
        a("v_mov_b32 %s, 0" % vr(OW + i))
    a("s_mov_b32 s82, s83")
    a("s_mov_b32 s81, 64")
    a.label("L_slow2")
    kvload(0)
    a("s_waitcnt vmcnt(0)")
    mfma32(SB, KV, QR + 12, CN)
    for i in range(16):
        a("v_exp_f32 %s, %s" % (vr(SB + i), vr(SB + i)))
    smf(OW, KV + 4, SB)
    smf(OW, KV + 8, SB + 8)
    a("s_sub_u32 s81, s81, 1")
    a("s_cmp_lg_u32 s81, 0")
    a("s_cbranch_scc1 L_slow2")
    a("s_branch L_norm")
    a.label("L_code_end")
    a("s_endpgm")

    added = a.fix()
    return a.text().replace('FSH', str(cfg.fsh)).replace('FROW', str(cfg.fsh + 5)), added


HEADER = """; Kernarg layout for this problem (88 bytes, ptrs only, base s[0:1]):
; @launch grid=(256,1,1) block=(512,1,1) lds=163840
.amdgcn_target "amdgcn-amd-amdhsa--gfx950"
.text
.globl {k}
.p2align 8
.type {k},@function
{k}:
"""

FOOTER = """.section .rodata,"a"
.p2align 6
.amdhsa_kernel {k}
  .amdhsa_next_free_vgpr 256
  .amdhsa_next_free_sgpr 102
  .amdhsa_accum_offset 256
  .amdhsa_group_segment_fixed_size 0
  .amdhsa_kernarg_size 88
  .amdhsa_user_sgpr_count 2
  .amdhsa_user_sgpr_kernarg_segment_ptr 1
  .amdhsa_system_sgpr_workgroup_id_x 1
.end_amdhsa_kernel
"""


def build(**kw):
    cfg = Cfg()
    for k, v in kw.items():
        setattr(cfg, k, v)
    body, added = gen(cfg)
    return HEADER.format(k=KERNEL) + body + FOOTER.format(k=KERNEL), added


if __name__ == "__main__":
    out = sys.argv[1] if len(sys.argv) > 1 else "cdna_kernels/%s.s" % NAME
    kw = {}
    for arg in sys.argv[2:]:
        k, v = arg.split("=")
        kw[k] = int(v)
    text, added = build(**kw)
    open(out, "w").write(text)
    print("wrote", out, "lines", text.count("\n"), "nops added", added)
```

```python
import sys
import os
sys.path.insert(0, os.path.dirname(os.path.abspath(__file__)))
from asmlib import Asm, vr, sr

NAME = "recurrent_scan__softmax_full_mha__dense_activation_squared_relu__prompt"
KERNEL = NAME + "_kernel"

WS_FLAGQ = 0x1200
WS_FLAGH = 0x60000
WS_STAMP = 0x10000
WS_QO = 0x100000
WS_KV = 0x300000
WS_HF = 0x700000
WS_END = WS_HF + 86 * 65536
EPOCH_INC = 0x9E3779B9
SPIN_MAX = 1 << 18

L_RING = 65536
L_OPART = 65536
L_W2 = L_OPART + 55296
W2_REGION = 10240
PART_STRIDE = 144
SUM_STRIDE = 272
SUM_SIZE = 64 * SUM_STRIDE
L_SUM = L_OPART

SX, SWQ, SWO, SW1, SB1, SW2, SB2, SOUT, SWS = 24, 28, 32, 36, 40, 44, 48, 52, 56
sW, sCG, sTB, sRW, sP, sQB, sTBF, sCB, sTAG, sCT0 = 60, 61, 62, 63, 64, 65, 66, 67, 68, 69
sVM = 70
sSTAMP = 4

QSCALE = 0x3EB8AA3B
NLOG2E = 0xBFB8AA3B
NS = 22


class Cfg:
    abl = 0
    bst = 0
    xslot = 0
    xrun = 2
    n1 = 8
    nA = 21
    gap = 1
    kvi = 4
    dmam = 2
    fpat = 2222
    pf1_at = 12
    pfc_at = 99
    pfc1 = 0
    w2_at = 10
    pfl = 9
    wol = 15
    won = 1
    stamps = 0
    force_slow = 0
    flag_chunk = 10
    lead = 1
    look = 5
    pfq_at = 99
    bload = 15
    bjoin = 16
    btile = 2
    sleep = 6
    w0_at = 7
    w1_at = 10
    hpre = 2
    hbar = 0
    hnow = 2
    hgap = 2
    hoff = 0
    kv3 = 1
    fsh = 4
    pfe = 99
    l2q = 99
    rot = 1
    split = 1
    wgrp = 1
    zall = 1
    salate = 2
    bpre = 0
    b1at = -10
    sA = 3
    sB = 3
    sC = 7
    hold = 99
    l2w = 99
    pfn = 11
    alow = 1
    nt = 0
    xt = 5
    half = 1
    dlag = 1
    apf = 13
    awo = 20
    awn = 2
    pfg = 1
    hflag = 11
    probe = None
    omod = 1
    oat = 4
    probewg = 100
    probew = 0
    probesh = 4
    hst = 0


def srd(s):
    return sr(s, 4)


class Queue:
    def __init__(self, a, name, maxn):
        self.a, self.name, self.maxn, self.items = a, name, maxn, []

    def push(self, tag):
        self.items.append(tag)

    def wait(self, *tags):
        last = max((i for i, t in enumerate(self.items) if t in tags), default=-1)
        if last < 0:
            return
        n = len(self.items) - 1 - last
        self.a("s_waitcnt %s(%d)" % (self.name, min(n, self.maxn)))
        self.items = self.items[last + 1:]

    def drain(self):
        self.a("s_waitcnt %s(0)" % self.name)
        self.items = []


def gen(cfg):
    a = Asm()
    nA = cfg.nA
    nB = 32 - nA + cfg.half
    vm = Queue(a, "vmcnt", 63)
    lg = Queue(a, "lgkmcnt", 15)

    def stamp(i, force=False):
        if cfg.bst and not force and i != 0:
            return
        if cfg.stamps and (cfg.probe is None or i in (0, cfg.probe)):
            a("%s s[22:23]" % ("s_memtime" if cfg.stamps == 2 else "s_memrealtime"))
            a("s_waitcnt lgkmcnt(0)")
            a("s_mov_b32 %s, s22" % sr(sSTAMP + i))

    def mfma32(d, x, y, c):
        a("v_mfma_f32_32x32x16_bf16 %s, %s, %s, %s" % (vr(d, 16), vr(x, 4), vr(y, 4), "0" if c is None else vr(c, 16)))

    def mfma16(d, x, y, c):
        a("v_mfma_f32_16x16x32_bf16 %s, %s, %s, %s" % (vr(d, 4), vr(x, 4), vr(y, 4), "0" if c is None else vr(c, 4)))

    def smf(d, x, y):
        a("v_smfmac_f32_32x32x32_bf16 %s, %s, %s, v3" % (vr(d, 16), vr(x, 4), vr(y, 8)))

    def bload(d, n, va, s, so, off=0, mod="", tag=None):
        op = {1: "dword", 2: "dwordx2", 4: "dwordx4"}[n]
        a("buffer_load_%s %s, %s, %s, %s offen offset:%d %s" % (op, vr(d, n), vr(va), srd(s), so, off, mod))
        vm.push(tag)

    def bstore(d, n, va, s, so, off=0, mod="", tag=None):
        op = {1: "dword", 2: "dwordx2", 4: "dwordx4"}[n]
        a("buffer_store_%s %s, %s, %s, %s offen offset:%d %s" % (op, vr(d, n), vr(va), srd(s), so, off, mod))
        vm.push(tag)

    def dma(va, s, so, off=0, tag=None):
        nt = "nt " if (cfg.nt & 2 and tag == ("w", 0)) or (cfg.nt & 4 and tag == ("w", 8)) else ""
        a("buffer_load_dwordx4 %s, %s, %s offen offset:%d %slds" % (vr(va), srd(s), so, off, nt))
        vm.push(tag)

    def dsr(op, d, n, va, off, tag=None):
        a("%s %s, %s offset:%d" % (op, vr(d, n), vr(va), off))
        lg.push(tag)

    def dsw(op, va, d, n, off, tag=None):
        a("%s %s, %s offset:%d" % (op, vr(va), vr(d, n), off))
        lg.push(tag)

    def trread(d, va, off, second, tag=None):
        dsr("ds_read_b64_tr_b16", d, 2, va, off, tag)
        dsr("ds_read_b64_tr_b16", d + 2, 2, va, off + second, tag)

    def set_flag(vt, soff):
        a("v_mov_b32 %s, %s" % (vr(vt), sr(sTAG)))
        a("s_mov_b64 exec, 1")
        bstore(vt, 1, 1, SWS, soff, 0, "sc0 sc1")
        a("s_mov_b64 exec, -1")

    stubs = []

    def check_flags(tag, vt, lanes, soff):
        a("v_cmp_ne_u32 vcc, %s, %s" % (sr(sTAG), vr(vt)))
        a("s_cbranch_vccnz L_poll_" + tag)
        a.label("L_polled_" + tag)
        stubs.append((tag, vt, lanes, soff))

    def flag_load(vt, shift, soff, tag):
        a("v_and_b32 %s, 31, v0" % vr(vt))
        a("v_lshlrev_b32 %s, %d, %s" % (vr(vt), shift, vr(vt)))
        bload(vt, 1, vt, SWS, soff, 0, "sc0 sc1", tag)

    sizes = {SX: 2048 * 1024, SWQ: 512 * 3072, SWS: WS_END, SW1: 512 * 2752, SB1: 2752,
             SWO: 512 * 1024, SW2: 1376 * 1024, SB2: 1024, SOUT: 2048 * 1024}
    RAW = 128

    def xloads():
        for j in range(8):
            bload(RAW + j * 4, 4, 14, SX, "s101", j * 128, "nt" if cfg.nt & 1 else "", ("x", j))

    stamp(0)
    a("""
    s_load_dwordx2 s[24:25], s[0:1], 0
    s_getpc_b64 s[72:73]
    L_pc:
    s_cmpk_ge_u32 s2, 256
    s_cbranch_scc1 L_end
    s_lshr_b32 s74, s2, 3
    s_lshl_b32 s74, s74, 11
    v_lshrrev_b32 v8, 5, v0
    v_lshl_add_u32 v8, v8, 7, s74
    v_min_u32 v8, L_code_end-L_pc, v8
    v_mov_b32 v9, 0
    v_lshl_add_u64 v[8:9], v[8:9], 0, s[72:73]
    global_load_dword v7, v[8:9], off
    s_lshl_b32 s72, s2, 4
    s_and_b32 s72, s72, 0x180
    v_add_u32 v4, s72, v0
    v_bfe_u32 v4, v4, 3, 6
    v_and_b32 v5, 7, v0
    v_lshlrev_b32 v14, 10, v4
    v_lshl_add_u32 v14, v5, 4, v14
    s_lshr_b32 s67, s2, 5
    s_and_b32 s73, s2, 6
    s_lshl2_add_u32 s62, s73, s67
    s_lshl_b32 s101, s62, 16
    s_mov_b32 s26, %d
    s_mov_b32 s27, 0x20000
    v_bfe_u32 v24, v4, 1, 3
    v_xor_b32 v24, v24, v5
    v_lshlrev_b32 v15, 7, v4
    v_lshl_add_u32 v15, v24, 4, v15
    v_readfirstlane_b32 s60, v0
    v_and_b32 v0, 63, v0
    v_and_b32 v26, 3, v0
    v_mov_b32 v29, 0
    s_lshr_b32 s60, s60, 6
    s_cmp_ge_u32 s60, 4
    s_waitcnt lgkmcnt(0)
    """ % sizes[SX])
    vm.push("pf")
    if cfg.bst == 3:
        stamp(1, True)
    xloads()
    if cfg.bst == 3:
        stamp(2, True)
    if cfg.stamps:
        for i in range(3 if cfg.bst == 3 else 1, 16):
            a("s_mov_b32 %s, s4" % sr(sSTAMP + i))
    a("s_mov_b32 s63, 1")
    a("s_cbranch_scc1 L_ln")
    a("s_mov_b32 s63, 0")

    def setup1():
        for s, off in ((SWQ, 8), (SWS, 80), (SW1, 32), (SB1, 40), (SWO, 16), (SW2, 48), (SB2, 56), (SOUT, 64)):
            a("s_load_dwordx2 %s, s[0:1], %d" % (sr(s, 2), off))
        a("""
        s_mov_b32 s30, %d
        s_mov_b32 s31, 0x20000
        s_bfe_u32 s72, s2, 0x20003
        s_and_b32 s73, s2, 1
        s_lshl2_add_u32 s61, s73, s72
        s_and_b32 s74, s60, 3
        s_lshl_b32 s72, s61, 7
        s_mul_i32 s85, s74, %d
        s_add_u32 s85, s85, s72
        s_mul_i32 s87, s74, 6144
        s_add_u32 s87, s87, %d
        v_lshrrev_b32 v4, 3, v0
        v_bfe_u32 v6, v4, 1, 1
        v_lshlrev_b32 v6, 2, v6
        v_xor_b32 v6, v6, v5
        v_lshlrev_b32 v6, 4, v6
        v_mul_u32_u24 v13, 3072, v4
        v_add_u32 v13, v13, v6
        v_xor_b32 v33, 16, v13
        s_waitcnt lgkmcnt(0)
        """ % (sizes[SWQ], 16 * 3072, L_RING))

    def setup_pf():
        for s in (SW1, SWO, SW2):
            a("s_mov_b32 %s, %d" % (sr(s + 2), sizes[s]))
            a("s_mov_b32 %s, 0x20000" % sr(s + 3))
        a("""
        s_and_b32 s73, s60, 3
        s_lshl2_add_u32 s100, s2, s73
        s_mul_i32 s100, s100, 1536
        v_min_u32 v31, 11, v0
        v_lshlrev_b32 v31, 7, v31
        """)

    def setup2():
        a("s_load_dword %s, %s, 0" % (sr(sTAG), sr(SWS, 2)))
        for s in (SWS, SB1, SB2, SOUT):
            a("s_mov_b32 %s, %d" % (sr(s + 2), sizes[s]))
            a("s_mov_b32 %s, 0x20000" % sr(s + 3))
        a("""
        s_bfe_u32 s72, s2, 0x20003
        s_and_b32 s73, s2, 7
        s_lshl2_add_u32 s66, s73, s72
        s_and_b32 s72, s72, 1
        s_lshl1_add_u32 s64, s73, s72
        s_lshr_b32 s65, s2, 4
        s_mul_i32 s69, s61, 6
        s_mul_i32 s73, s61, 5
        s_add_u32 s73, s73, 3
        s_min_u32 s69, s69, s73
        s_mov_b32 s70, 0xffff
        s_mov_b32 s71, 0xffff
        v_lshlrev_b32 v1, 4, v0
        v_and_b32 v2, 15, v0
        v_lshrrev_b32 v3, 5, v0
        v_lshl_add_u32 v2, v3, 4, v2
        v_lshlrev_b32 v2, 4, v2
        """)

    def setup3():
        a("; attention offsets: s82 = next K/V tile, s83 = head base, s92-s95 = Q tiles, s96-s99 = O partial slots")
        a("""
        s_and_b32 s74, s60, 1
        s_lshr_b32 s75, s60, 1
        s_lshl1_add_u32 s72, s64, s74
        s_lshl_b32 s83, s72, 17
        s_add_u32 s83, s83, %d
        s_and_b32 s73, s75, 1
        s_lshl_b32 s73, s73, 16
        s_add_u32 s82, s83, s73
        s_lshl_b32 s72, s65, 6
        s_add_u32 s72, s72, s64
        s_lshl1_add_u32 s72, s72, s74
        s_lshl_b32 s72, s72, 10
        s_add_u32 s72, s72, %d
        s_mul_i32 s84, s74, %d
        s_add_u32 s84, s84, %d
        """ % (WS_KV, WS_QO, 12 * 2304, L_OPART))
        for t in range(4):
            a("s_xor_b32 s73, s75, %d" % (t ^ 3))
            a("s_mul_i32 %s, s73, %d" % (sr(96 + t), 3 * 2304))
            a("s_lshl_b32 s73, s73, 15")
            a("s_add_u32 %s, s72, s73" % sr(92 + t))
            a("s_add_u32 %s, %s, s84" % (sr(96 + t), sr(96 + t)))

    setup1()
    setup_pf()
    setup2()
    a("s_and_b32 s74, s60, 1")
    a("s_lshr_b32 s75, s60, 1")
    a("""
    v_bfe_u32 v9, v0, 4, 1
    v_and_b32 v16, 15, v0
    v_lshlrev_b32 v8, 4, v16
    v_lshl_add_u32 v8, v9, 9, v8
    v_lshl_add_u32 v11, v3, 17, v8
    v_lshl_add_u32 v14, v3, 10, v8
    v_lshl_add_u32 v127, v3, 16, v8
    v_lshrrev_b32 v17, 4, v0
    v_bfe_u32 v8, v0, 3, 1
    v_lshlrev_b32 v12, 4, v5
    v_lshl_add_u32 v12, v17, 8, v12
    v_lshl_add_u32 v12, v8, 17, v12
    v_lshrrev_b32 v8, 1, v16
    v_xor_b32 v8, v8, v17
    v_lshlrev_b32 v16, 7, v16
    v_lshl_add_u32 v16, v8, 4, v16
    s_lshl_b32 s72, s74, 12
    v_add_u32 v16, s72, v16
    v_xor_b32 v17, 64, v16
    v_mov_b32 v125, v31
    v_and_b32 v126, 6, v4
    v_xor_b32 v126, v126, v5
    v_lshlrev_b32 v126, 4, v126
    v_lshl_add_u32 v126, v4, 10, v126
    v_lshl_add_u32 v4, v4, 10, v6
    v_bfe_u32 v10, v0, 2, 2
    v_lshrrev_b32 v6, 1, v10
    v_xor_b32 v8, s75, v6
    v_and_b32 v18, 2, v0
    v_lshl_add_u32 v8, v8, 2, v18
    v_add_u32 v8, v8, v9
    v_lshlrev_b32 v8, 1, v8
    v_and_or_b32 v8, v0, 1, v8
    v_lshlrev_b32 v8, 3, v8
    v_lshl_add_u32 v8, v10, 7, v8
    v_lshl_add_u32 v8, v9, 10, v8
    v_mul_u32_u24 v18, 6144, v3
    v_add_u32 v8, v8, v18
    v_add_u32 v8, %d, v8
    v_xor_b32 v18, 16, v8
    v_add_u32 v19, %d, v18
    v_lshlrev_b32 v5, 5, v9
    v_lshl_add_u32 v5, v10, 7, v5
    v_and_b32 v10, 3, v0
    v_lshl_add_u32 v5, v10, 3, v5
    v_lshl_add_u32 v5, v3, 9, v5
    v_lshl_add_u32 v5, v6, 6, v5
    v_lshrrev_b32 v10, 1, v0
    v_xor_b32 v10, v10, v0
    v_and_b32 v10, 1, v10
    v_mul_u32_u24 v10, 24, v10
    v_xor_b32 v5, v5, v10
    s_mul_i32 s84, s60, %d
    s_add_u32 s84, s84, %d
    v_add_u32 v5, s84, v5
    v_xor_b32 v6, 64, v5
    v_lshlrev_b32 v10, 3, v9
    v_lshl_add_u32 v10, v3, 5, v10
    v_xor_b32 v9, 16, v19
    v_mov_b32 v3, 0xdddddddd
    """ % (L_RING, 2 * 24576, W2_REGION, L_W2))

    def setup_a():
        setup3()
        a("s_add_u32 s82, s82, %d" % ((32 - nA) * 2048))
        a("s_mul_i32 s84, s60, %d" % W2_REGION)
        a("s_add_u32 s84, s84, %d" % L_W2)
        a("""
        s_lshl1_add_u32 s72, s62, s74
        s_lshl1_add_u32 s73, s61, s75
        s_lshl_b32 s76, s73, 7
        s_add_u32 s76, s76, s72
        s_lshl_b32 s77, s76, 11
        s_lshl4_add_u32 s76, s72, s73
        s_lshl_b32 s76, s76, 11
        s_add_u32 s76, s76, %d
        s_add_u32 s77, s77, %d
        s_add_u32 s81, s69, s75
        s_lshl_b32 s78, s81, 7
        s_add_u32 s78, s78, s72
        s_lshl_b32 s78, s78, 10
        s_add_u32 s78, s78, %d
        s_lshl_b32 s79, s61, 6
        s_add_u32 s79, s79, s62
        s_lshl_b32 s79, s79, 4
        s_add_u32 s79, s79, %d
        s_lshl_b32 s80, s62, 3
        s_add_u32 s80, s80, s61
        s_lshl2_add_u32 s80, s80, s60
        s_lshl_b32 s80, s80, FSH
        s_add_u32 s80, s80, %d
        s_mul_i32 s73, s61, s75
        s_add_u32 s88, s78, %d
        s_cmp_lt_u32 s73, 3
        s_cselect_b32 s88, s88, 0x40000000
        """ % (WS_QO, WS_KV, WS_HF, WS_FLAGQ, WS_FLAGH, 8 * 65536))

    if not cfg.salate:
        setup_a()

    def slot_of(c):
        if not cfg.xslot or c < cfg.xslot:
            return (c & 3) * 24576
        return -L_RING if c == cfg.xslot else ((c - 1) & 3) * 24576

    skip_bar = (10,) if cfg.xslot else ()

    def issue_chunk(c):
        if cfg.rot:
            a("s_xor_b32 s73, s67, %d" % (c & 7))
            a("s_mul_i32 s73, s73, %d" % (64 * (3072 if c < 8 else 2752)))
            a("s_add_u32 s73, s73, %s" % ("s85" if c < 8 else "s80"))
        for m in range(6):
            blk, seg = divmod(m, 3)
            a("s_add_u32 m0, s87, %d" % (slot_of(c) + seg * 2048 + blk * 1024))
            if c < 8:
                a("s_add_u32 s72, %s, %d" % (("s73", blk * 8 * 3072 + seg * 1024) if cfg.rot else ("s85", (c * 64 + blk * 8) * 3072 + seg * 1024)))
                dma(33 if blk else 13, SWQ, "s72", 0, ("w", c))
            else:
                a("s_add_u32 s72, %s, %d" % (("s73", blk * 8 * 2752 + seg * 128) if cfg.rot else ("s80", ((c - 8) * 64 + blk * 8) * 2752 + seg * 128)))
                dma(56 + (seg == 2) + 2 * blk, SW1, "s72", 0, ("w", c))

    def layernorm(acts):
        def act(p):
            if acts.get(p):
                assert p >= 7
                a("s_cmp_eq_u32 s63, 1")
                a("s_cbranch_scc1 L_ln_%d" % p)
                for f in acts[p]:
                    f()
                a.label("L_ln_%d" % p)
        a.label("L_ln")
        a("""
        v_mov_b32 v232, 0x3f803f80
        v_mov_b32 v233, 0x3f803f80
        v_lshlrev_b32 v26, 4, v26
        v_mov_b32 v28, 0xffff
        v_lshlrev_b64 v[28:29], v26, v[28:29]
        """)
        a("s_mov_b32 s89, 0xffff0000")
        if cfg.rot:
            a("; K chunks are visited in the order c ^ (row block & 7): workgroups sharing weights fetch different chunks first")
            a("s_lshl_b32 s72, s67, 13")
            a("v_or_b32 v15, s72, v15")

        def xwrite(j):
            if cfg.rot:
                a("v_xor_b32 v23, 0x%x, v15" % (j << 13))
                a("ds_write_b128 v23, %s" % vr(RAW + j * 4, 4))
            else:
                a("ds_write_b128 v15, %s offset:%d" % (vr(RAW + j * 4, 4), j * 8192))

        def m4(d, x, y, c):
            a("v_mfma_f32_4x4x4_16b_bf16 %s, %s, %s, %s" % (vr(d, 4), vr(x, 2), vr(y, 2), "0" if c is None else vr(c, 4)))

        S, GM, T, CN, AH = 208, 216, 192, 224, 228
        for j in range(8):
            vm.wait(("x", j))
            if cfg.bst == 3 and j in (0, 3, 7):
                stamp({0: 4, 3: 5, 7: 6}[j], True)
            if j == 7:
                act(7)
            for h in range(2):
                x = RAW + j * 4 + 2 * h
                m4(S + 4 * h, 232, x, S + 4 * h if j else None)
                m4(GM + 4 * h, x, x, GM + 4 * h if j else None)
        act(8)
        stamp(1)
        a("v_add_f32 v24, %s, %s" % (vr(S), vr(S + 4)))
        for r in range(4):
            a("v_add_f32 %s, %s, %s" % (vr(GM + r), vr(GM + r), vr(GM + 4 + r)))
        dpp = "row_mask:0xf bank_mask:0xf"
        a("v_add_f32_dpp v24, v24, v24 quad_perm:[1,0,3,2] " + dpp)
        a("v_mov_b32_dpp v25, %s quad_perm:[0,0,0,0] %s" % (vr(GM), dpp))
        a("v_add_f32_dpp v25, %s, v25 quad_perm:[1,1,1,1] %s" % (vr(GM + 1), dpp))
        a("v_add_f32_dpp v24, v24, v24 quad_perm:[2,3,0,1] " + dpp)
        a("v_add_f32_dpp v25, %s, v25 quad_perm:[2,2,2,2] %s" % (vr(GM + 2), dpp))
        a("v_add_f32_dpp v25, %s, v25 quad_perm:[3,3,3,3] %s" % (vr(GM + 3), dpp))
        a("v_add_f32_dpp v24, v24, v24 row_half_mirror " + dpp)
        a("v_add_f32_dpp v25, v25, v25 row_half_mirror " + dpp)
        a("""
        v_mul_f32 v24, 0x3b000000, v24
        v_mul_f32 v25, 0x3b000000, v25
        v_fma_f32 v25, -v24, v24, v25
        v_max_f32 v25, 0, v25
        v_cvt_pk_bf16_f32 v24, v24, v25
        v_and_b32 v25, s89, v24
        v_add_f32 v25, 0x3727c5ac, v25
        v_cvt_pk_bf16_f32 v25, v25, v25
        v_and_b32 v25, s89, v25
        v_sqrt_f32 v25, v25
        v_lshlrev_b32 v24, 16, v24
        v_cvt_pk_bf16_f32 v25, v25, v25
        v_and_b32 v25, s89, v25
        v_rcp_f32 v26, v25
        v_cvt_pk_bf16_f32 v27, v26, v26
        v_and_b32 v25, s89, v27
        v_sub_f32 v25, v26, v25
        v_cvt_pk_bf16_f32 v25, v25, v25
        v_and_b32 v228, v27, v28
        v_and_b32 v229, v27, v29
        v_and_b32 v230, v25, v28
        v_and_b32 v231, v25, v29
        """)
        for r in range(4):
            a("v_mul_f32_e64 %s, -v24, v26" % vr(CN + r))

        def finish(j, q):
            t = T + 8 * (j & 1)
            a("v_cvt_pk_bf16_f32 %s, %s, %s" % (vr(RAW + 4 * j + q), vr(t + 2 * q), vr(t + 2 * q + 1)))
            if q == 3:
                xwrite(j)

        for j in range(9):
            for q in range(4):
                if j < 8:
                    t = T + 8 * (j & 1) + 4 * (q & 1)
                    m4(t, AH + 2 * (q >> 1), RAW + 4 * j + 2 * (q & 1), CN if q < 2 else t)
                if j:
                    finish(j - 1, q)
        if cfg.bst == 3:
            stamp(7, True)
        act(9)
        act(10)
        stamp(2)
        if cfg.bst == 3:
            stamp(8, True)

    def pfq():
        a("; memory-side prefetch of Wqkv")
        bload(7, 1, 31, SWQ, "s100", 0, "", "pf")

    def pfl2(which):
        a("; the die's workgroups pull their half of the weight columns into L2 together, four rows per wave")
        stride = 3072 if which == SWQ else 2752
        a("s_lshr_b32 s72, s2, 3")
        a("s_and_b32 s73, s60, 3")
        a("s_lshl2_add_u32 s72, s72, s73")
        a("s_mul_i32 s72, s72, %d" % (4 * stride))
        a("s_and_b32 s73, s2, 1")
        a("s_mul_i32 s73, s73, %d" % (512 if which == SWQ else 1472))
        a("s_add_u32 s72, s72, s73")
        a("v_lshrrev_b32 v20, 4, v0")
        a("v_mul_u32_u24 v20, %d, v20" % stride)
        if which == SWQ:
            a("v_bfe_u32 v21, v0, 2, 2")
            a("v_min_u32 v21, 2, v21")
            a("v_lshl_add_u32 v20, v21, 10, v20")
            a("v_and_b32 v21, 3, v0")
            a("v_lshl_add_u32 v20, v21, 7, v20")
        else:
            a("v_and_b32 v21, 15, v0")
            a("v_lshlrev_b32 v21, 7, v21")
            a("v_min_u32 v21, 1468, v21")
            a("v_add_u32 v20, v20, v21")
        bload(22, 1, 20, which, "s72", 0, "", "pf")

    def pfc(which):
        a("; lines at offset 384 of every KiB stream slowly on a miss: the die's workgroups pull them into L2 together")
        a("s_lshr_b32 s72, s2, 3")
        a("s_lshl2_add_u32 s72, s72, s60")
        a("s_mul_i32 s72, s72, 12288")
        a("v_lshlrev_b32 v20, 3, v31")
        if which == SWQ:
            a("s_bitcmp1_b32 s2, 0")
            a("s_cselect_b32 s72, 0x40000000, s72")
        bload(7, 1, 20, which, "s72", 384, "", "pf")

    def pf1():
        a("; memory-side prefetch of W1")
        bload(7 if cfg.pf1_at <= 10 else 32, 1, 31, SW1, "s100", 0, "", "pf")

    def b1loads():
        a("s_lshr_b32 s3, s60, 1")
        a("s_add_u32 s3, s3, s69")
        a("s_lshl_b32 s3, s3, 6")
        for q in range(6):
            bload(112 + 2 * q, 2, 10, SB1, "s3", (q >> 1) * 128 + (q & 1) * 16, "", "b1")

    acts = {}
    if cfg.pfc_at == 0:
        save = list(vm.items)
        pfc(SWQ)
        vm.items = save
    elif cfg.pfc_at <= 10:
        acts.setdefault(cfg.pfc_at, []).append(lambda: pfc(SWQ))
    if cfg.pfq_at == 0:
        save = list(vm.items)
        pfq()
        vm.items = save
    elif cfg.pfq_at <= 10:
        acts.setdefault(cfg.pfq_at, []).append(pfq)
    if cfg.l2q == 0:
        save = list(vm.items)
        pfl2(SWQ)
        vm.items = save
    if cfg.l2q == 7:
        acts.setdefault(7, []).append(lambda: pfl2(SWQ))
    for c, p in enumerate((cfg.w0_at, cfg.w1_at, cfg.w2_at, 10)[:cfg.lead + 1]):
        acts.setdefault(p, []).append(lambda c=c: issue_chunk(c))
    if 8 <= cfg.l2q <= 10:
        acts.setdefault(cfg.l2q, []).insert(0, lambda: pfl2(SWQ))
    if cfg.pf1_at <= 10:
        acts.setdefault(cfg.pf1_at, []).append(pf1)
    if cfg.pfc1:
        acts.setdefault(10, []).append(lambda: pfc(SW1))
    if cfg.b1at < 0:
        acts.setdefault(-cfg.b1at, []).insert(0, b1loads)
    if cfg.salate == 1:
        acts.setdefault(10, []).insert(0, setup_a)
    if cfg.salate == 3:
        acts.setdefault(10, []).append(setup_a)
    layernorm(acts)
    a("s_cmp_eq_u32 s63, 1")
    a("s_cbranch_scc1 L_loader")

    QR, SB, WF, FA, OA, KV, HB = 8, 24, 56, 64, 128, 192, 228
    NKV = 3

    def att_init_ops():
        ops = ["v_mov_b32 %s, 0" % vr(OA + 16 * t + i) for t in range(4) for i in range(16 if cfg.zall else 9)]
        ops2 = ["v_and_b32 v7, 27, v0", "v_cmp_eq_u32 vcc, 16, v7", "v_mov_b32 v7, 0x3f803f80", "v_cndmask_b32 v7, 0, v7, vcc"]
        ops2 += ["v_mov_b32 %s, v7" % vr(KV + 12 * b + 4 + q) for b in range(NKV) for q in range(8)]
        return ops, ops2

    XKV = (72, 84)
    kvplan = {"xt": None}

    def kvreg(j):
        xt = kvplan["xt"]
        if xt is not None and j in (xt, xt + 1):
            return XKV[j - xt]
        return KV + 12 * ((j - 2 if xt is not None and j > xt else j) % NKV)

    def kvsched(n):
        at, pos = {}, 0
        for j in range(NKV, n):
            prev = [p for p in range(j) if kvreg(p) == kvreg(j)]
            pos = max(pos + 1, 4 * (prev[-1] + 1) if prev else 0)
            at[(pos >> 2, pos & 3)] = j
        return at

    def kvload(j):
        r = kvreg(j)
        bload(r, 4, 252, SWS, "s82", 0, "sc1", ("kv", j))
        a("s_mov_b64 exec, %s" % sr(sVM, 2))
        bload(r + 4, 4, 2, SWS, "s82", 1024, "sc1", ("kv", j))
        bload(r + 8, 4, 2, SWS, "s82", 1536, "sc1", ("kv", j))
        a("s_mov_b64 exec, -1")
        a("s_add_u32 s82, s82, %d" % (2048 * (nA if j == kvplan.get("jump") else 1)))

    def att_loads(role):
        a("; key slot 8a+4b+c holds token 16b+4a+c, matching the order of the V fragments")
        a("v_and_b32 v252, 0x230, v1")
        a("v_and_b32 v253, 0x180, v1")
        a("v_lshrrev_b32 v253, 1, v253")
        a("v_and_b32 v254, 64, v1")
        a("v_lshlrev_b32 v254, 2, v254")
        a("v_or3_b32 v252, v252, v253, v254")
        bload(QR, 4, 1, SWS, "s92", 0, "sc1", "q")
        kvload(0)
        for t in range(1, 4):
            bload(QR + 4 * t, 4, 1, SWS, sr(92 + t), 0, "sc1", "q")
        kvload(1)
        if cfg.kv3 and role == "a":
            kvload(2)

    def dump_addr():
        a("v_lshlrev_b32 v8, 2, v0")
        a("v_add_u32 v9, s99, v1")
        a("v_add_u32 v10, s99, v8")
        a("v_bfe_u32 v11, v0, 4, 1")
        a("v_lshl_add_u32 v11, v11, 10, v2")

    def dump(t):
        a("v_add_u32 v12, %s, v1" % sr(96 + t))
        a("v_add_u32 v13, %s, v8" % sr(96 + t))
        dsw("ds_write_b128", 12, OA + 16 * t, 4, t * 2304)
        dsw("ds_write_b128", 12, OA + 16 * t + 4, 4, t * 2304 + 1024)
        dsw("ds_write_b32", 13, OA + 16 * t + 8, 1, t * 2304 + 2048)

    deferred = []
    cfg_gap = {0: range(16), 1: (1, 10), 2: (0, 9), 3: (4, 10), 4: (1,), 5: (4,), 6: (15, 9)}[cfg.gap]

    def tiles_of(n):
        return [(j, t) for j in range(n) for t in range(4) if not (cfg.half and j == n - 1 and t < 2)]

    def att_run(n, hooks):
        tiles = tiles_of(n)
        last = {t: max(p for p, jt in enumerate(tiles) if jt[1] == t) for t in range(4)}
        hooks.setdefault(tiles[last[0]] + (11,), []).append(dump_addr)
        for t in range(3):
            hooks.setdefault(tiles[last[t] + (cfg.dlag if t < 2 and cfg.half else 1)] + (12,), []).append(lambda t=t: dump(t))
        assert all(k[:2] in tiles for k in hooks)
        vm.wait("q", ("kv", 0))
        mfma32(SB, KV, QR, None)
        loads = kvsched(n)
        for p, (j, t) in enumerate(tiles):
            cur, oth = SB + 16 * (p & 1), SB + 16 * ((p + 1) & 1)
            for i in range(16):
                a("v_exp_f32 %s, %s" % (vr(cur + i), vr(cur + i)))
                if i in cfg_gap:
                    while deferred:
                        deferred.pop(0)()
                if i == cfg.kvi and (j, t) in loads and not cfg.abl & 32:
                    kvload(loads[(j, t)])
                if i == 1 and p:
                    smf(OA + 16 * tiles[p - 1][1], kvreg(tiles[p - 1][0]) + 8, oth + 8)
                if i == 4 and p + 1 < len(tiles):
                    nj, nt = tiles[p + 1]
                    vm.wait(("kv", nj))
                    mfma32(oth, kvreg(nj), QR + 4 * nt, None)
                if i == 10:
                    smf(OA + 16 * t, kvreg(j) + 4, cur)
                for h in hooks.get((j, t, i), ()):
                    h()
        smf(OA + 48, kvreg(n - 1) + 8, SB + 16 + 8)

    ACC = (24, 40, 56)
    WB, NBUF, LA = 72, 6, cfg.look
    XF, PK, XA = 128, 96, 16
    init1, init2 = att_init_ops()

    def item(g):
        kk, m = divmod(g % 96, 6)
        return kk, m >> 1, m & 1

    def reads(g, part=None):
        kk, seg, ab = item(g)
        so = slot_of(g // 12)
        base = (8, 18)[ab] + so // 49152
        off = so % 49152 + (kk & 1) * 12288 + seg * 2048
        for h in range(2):
            if part in (None, h):
                if g < 96 and seg == 0 and ab == 0:
                    dsr("ds_read_b128", XF + 8 * kk + 4 * h, 4, XA + (kk & 1), (kk >> 1) * 8192 + h * 2048, g)
                dsr("ds_read_b64_tr_b16", WB + 4 * (g % NBUF) + 2 * h, 2, base, off + 512 * h, g)

    def pack(acc, pk):
        return ["v_cvt_pk_bf16_f32 %s, %s, %s" % (vr(pk + q), vr(acc + 2 * q), vr(acc + 2 * q + 1)) for q in range(8)]

    def st2(pk, va, base, delta, tag, imm=(0, 0), vb=None):
        def first():
            bstore(pk, 4, va, SWS, base, imm[0], "" if cfg.abl & 64 else "sc1", tag)

        def second():
            if delta:
                a("s_add_u32 s72, %s, %d" % (base, delta))
            bstore(pk + 4, 4, vb or va, SWS, "s72" if delta else base, imm[1], "" if cfg.abl & 64 else "sc1", tag)
        return [first, second]

    def relu2(acc):
        return (["v_max_f32 %s, 0, %s" % (vr(acc + i), vr(acc + i)) for i in range(16)]
                + ["v_mul_f32 %s, %s, %s" % (vr(acc + i), vr(acc + i), vr(acc + i)) for i in range(16)])

    def bias(seg):
        ops = [lambda: vm.wait("b1")]
        for q in range(4):
            ops.append("v_lshlrev_b32 %s, 16, %s" % (vr(ACC[seg] + 2 * q), vr(112 + 4 * seg + q)))
            ops.append("v_and_b32 %s, s89, %s" % (vr(ACC[seg] + 2 * q + 1), vr(112 + 4 * seg + q)))
        return ops

    tagq = ["v_or_b32 %s, 1, %s" % (vr(PK + 4 * q), vr(PK + 4 * q)) for q in range(2)]
    qkv_epi = (["v_mul_f32 %s, 0x%x, %s" % (vr(ACC[0] + i), QSCALE, vr(ACC[0] + i)) for i in range(16)]
               + pack(ACC[0], PK) + tagq + st2(PK, 14, "s76", 0, "st", (0, 256))
               + pack(ACC[1], PK + 8) + st2(PK + 8, 11, "s77", 0, "st", (0, 256))
               + pack(ACC[2], PK) + st2(PK, 12, "s77", 0, "st", (1024, 1152))
               + bias(0) + bias(1) + bias(2))
    sched = {144: init1, 174: init2}
    if cfg.zall:
        sched = {108 + 12 * t: init1[16 * t:16 * t + 16] for t in range(4)}
        sched[174] = init2
    shadow = []

    def run_shadow(budget):
        while shadow and budget > 0:
            op = shadow.pop(0)
            if isinstance(op, str):
                a(op)
                budget -= 1
            else:
                op()
                budget -= 3

    mark = len(a.items)
    if cfg.salate == 2:
        setup_a()
    a("""
    s_lshl_b32 s85, s60, 14
    s_lshl_b32 s72, s67, 7
    s_add_u32 s85, s85, s72
    s_lshl_b32 s86, s60, 6
    s_lshl1_add_u32 s86, s66, s86
    s_lshl_b32 s86, s86, 10
    s_add_u32 s86, s86, %d
    s_lshl_b32 s87, s66, FROW
    s_add_u32 s87, s87, %d
    """ % (WS_HF, WS_FLAGH))
    if cfg.salate == 2:
        late_ops = [v.text for k, v in a.items[mark:] if k == "ins"]
        del a.items[mark:]
        sched[0] = late_ops
    vm.wait(("w", 0))
    a("s_waitcnt lgkmcnt(0)")
    a("s_add_u32 %s, %s, 0x%x" % (sr(sTAG), sr(sTAG), EPOCH_INC))
    if cfg.bst == 3:
        stamp(9, True)
    a("s_barrier")
    stamp(3)
    if cfg.bst == 3:
        stamp(10, True)
    for g in range(LA):
        reads(g)
    for g in range(192):
        kk, seg, ab = item(g)
        if g == 96:
            stamp(4)
            shadow.extend(qkv_epi)
            run_shadow(1000)
            stamp(5)
            a("s_barrier")
            for n in range(96, 96 + LA):
                reads(n)
        lg.wait(*range(g, g - g % cfg.wgrp + cfg.wgrp))
        w = WB + 4 * (g % NBUF)
        n = g + LA
        more = n < 192 and not g < 96 <= n
        shadow.extend(sched.get(g, ()))
        for h, t in enumerate((1, 0)):
            x = XF + 8 * kk + 4 * t
            if g < 96 and seg == 2:
                d = ACC[seg] + 8 * ab + 4 * t
                mfma16(d, x, w, None if kk == 0 else d)
            else:
                d = ACC[seg] + 8 * t + 4 * ab
                mfma16(d, w, x, d if kk else (None if g < 96 else ACC[seg] + 4 * ab))
            if more and h == 0 and n % 12 == 0:
                vm.wait(("w", n // 12))
                if n // 12 == cfg.flag_chunk:
                    vm.wait("st")
                a("s_barrier")
                if n // 12 == cfg.flag_chunk:
                    a("s_cmp_lg_u32 s60, 0")
                    a("s_cselect_b32 s79, 0x40000000, s79")
                    set_flag(7, "s79")
                    stamp(6)
            if more:
                reads(n, h)
            run_shadow((1 - h if g < 96 else 1) if more else 2)
        if g == cfg.b1at:
            b1loads()
    run_shadow(1000)
    stamp(7)
    hmath, hst = [], []
    for seg in range(3):
        pk = PK + 8 * seg
        hmath.append(relu2(ACC[seg]) + pack(ACC[seg], pk))
        hst.append((["s_add_u32 s78, s78, 0x40000"] if seg == 1 else []) + st2(pk, 127, "s78" if seg < 2 else "s88", 0, "hst", (0, 256)))
    for seg in range(cfg.hbar):
        shadow.extend(hmath[seg])
    run_shadow(1000)
    a("s_barrier")
    stamp(8)
    if cfg.bst == 4:
        stamp(1, True)
    a("s_setprio 2")
    for seg in range(cfg.hbar, cfg.hpre):
        shadow.extend(hmath[seg])
    run_shadow(1000)
    att_loads("a")
    if cfg.xt:
        for r in XKV:
            for q in range(8):
                a("v_mov_b32 %s, v7" % vr(r + 4 + q))
    hlist = [[hst[0][0]], [hst[0][1]], hst[1][:2], [hst[1][2]], [hst[2][0]], [hst[2][1]]]
    for seg in range(3):
        shadow.extend(hmath[seg] if seg >= max(cfg.hpre, cfg.hbar) else [])
        for n in (2 * seg, 2 * seg + 1):
            if n < cfg.hnow:
                shadow.extend(hlist[n])
    run_shadow(1000)
    stamp(9)


    def w2dma(i):
        if cfg.abl & 129:
            return
        a("s_add_u32 m0, s84, %d" % ((i & 3) * 2048))
        a("s_add_u32 s72, s85, %d" % (i * 65536))
        dma(4, SW2, "s72", 0, ("w2", i))
        a("s_add_u32 s72, s72, 7168")
        dma(4, SW2, "s72", 1024, ("w2", i))

    hreg = lambda i, tt: HB + 8 * (i % 3) + 4 * tt

    def hload(i):
        if cfg.abl & 257:
            return
        if i > 0:
            a("s_add_u32 s86, s86, 0x40000")
        for tt in range(2):
            bload(hreg(i, tt), 4, 1, SWS, "s86", tt * 1024, "sc1", ("h", i))

    def w2read(i, nt):
        if cfg.abl & 2:
            return
        vm.wait(("w2", i))
        trread(WF + 4 * nt, 5 + nt, (i & 3) * 2048, 1024, ("wf", i, nt))

    def fslot(f):
        i, m = divmod(f, 4)
        nt, tt = ((0, 0), (0, 1), (1, 1), (1, 0))[m]
        vm.wait(("h", i))
        lg.wait(("wf", i, nt))
        d = FA + 16 * (2 * tt + nt)
        if not cfg.abl & 4:
            mfma32(d, WF + 4 * nt, hreg(i, tt), None if i == 0 else d)
        if m == 1 and i + 1 < NS:
            deferred.append(lambda: w2read(i + 1, 0))
        if m == cfg.dmam and i + 4 < NS:
            deferred.append(lambda: w2dma(i + 4))
        if m == 3:
            if i + 1 < NS:
                deferred.append(lambda: w2read(i + 1, 1))
            if i + 3 < NS:
                deferred.append(lambda: hload(i + 3))

    def park(tt, nt):
        d = FA + 16 * (2 * tt + nt)
        for q in range(8):
            a("v_cvt_pk_bf16_f32 %s, %s, %s" % (vr(d + q), vr(d + 2 * q), vr(d + 2 * q + 1)))
        for q in range(2):
            dsw("ds_write_b128", 4, d + 4 * q, 4, tt * 32 * PART_STRIDE + nt * 64 + q * 32)

    def park_addr():
        a("v_and_b32 v4, 31, v0")
        a("v_mul_u32_u24 v4, %d, v4" % PART_STRIDE)
        a("v_lshrrev_b32 v5, 5, v0")
        a("v_lshl_add_u32 v4, v5, 4, v4")
        a("v_add_u32 v4, s84, v4")

    hooks = {}

    def hook(j, t, i, f):
        hooks.setdefault((j, t, i), []).append(f)

    n1 = cfg.n1
    for n in range(cfg.hnow, 6):
        tl = (n - cfg.hnow) * cfg.hgap + cfg.hoff
        hook(tl >> 2, tl & 3, 9, lambda n=n: (shadow.extend(hlist[n]), run_shadow(1000)))
    assert (5 - cfg.hnow) * cfg.hgap + cfg.hoff <= cfg.hflag < 4 * (n1 - 2)
    hook(cfg.hflag >> 2, cfg.hflag & 3, 12, lambda: (vm.wait("hst"), set_flag(7, "s80"), stamp(1) if cfg.hst else None))
    hook(n1 - 2, 0, 8, lambda: flag_load(7, cfg.fsh, "s87", "hf"))
    hook(n1 - 2, 3, 12, lambda: (vm.wait("hf"), stamp(2) if cfg.hst else None, check_flags("h", 7, cfg.fsh, "s87"), stamp(3) if cfg.hst else None))
    for i in range(4):
        hook(n1 - 3 + (i >> 1), 1 + (i & 1), 7, lambda i=i: w2dma(i))
    for i in range(3):
        hook(n1 - 1, i, 7, lambda i=i: hload(i))
    hook(n1 - 1, 3, 7, lambda: (w2read(0, 0), w2read(0, 1)))
    pat = [int(ch) for ch in str(cfg.fpat)]
    slots = [(j, t, pos) for j in range(n1, nA) for t in range(4) for pos in ((13,), (7, 13))[pat[t] - 1]]
    for f in range(4 * NS):
        hook(*slots[f], lambda f=f: fslot(f))
    rest = [jt for jt in tiles_of(nA) if jt > slots[4 * NS - 1][:2]]
    hook(*rest[0], 6, park_addr)
    for n, (nt, tt) in enumerate(((0, 0), (0, 1), (1, 1), (1, 0))):
        hook(*rest[n], 7, lambda tt=tt, nt=nt: park(tt, nt))
    if cfg.hst:
        for n in range(4):
            hook(n1 + 4 * n, 0, 1, lambda n=n: stamp(4 + n))
    if cfg.alow:
        hook(*tiles_of(nA)[-cfg.alow], 0, lambda: a("s_setprio 0"))
    if cfg.bst == 4:
        for n, j in enumerate(range(0, nA, 2)):
            hook(j, 2 if cfg.half and j == nA - 1 else 0, 0, lambda n=n: stamp(2 + n, True))
    def a_pf():
        a("; memory-side prefetch of w2 and wo")
        bload(255, 1, 125, SW2, "s100", 0, "", "pf")
        bload(255, 1, 125, SWO, "s100", 0, "", "pf")

    def a_wo(lo):
        if lo == 0:
            a("; wo tile -> LDS [0, 64K), a few rows per score tile")
            a("s_lshl_b32 s76, s60, 17")
            a("s_lshl_b32 s73, s67, 7")
            a("s_add_u32 s76, s76, s73")
            a("s_lshl_b32 s77, s60, 14")
        a("s_add_u32 m0, s77, %d" % (lo * 1024))
        for i in range(cfg.awn):
            a("s_add_u32 s73, s76, %d" % ((lo + i) * 8192 - i * 1024))
            dma(126, SWO, "s73", i * 1024, "wo")

    if cfg.apf:
        hook(cfg.apf >> 2, cfg.apf & 3, 9, a_pf)
    if cfg.awo:
        for n, lo in enumerate(range(0, 16, cfg.awn)):
            assert cfg.awo + n < 4 * n1
            hook((cfg.awo + n) >> 2, (cfg.awo + n) & 3, 9, lambda lo=lo: a_wo(lo))
    kvplan["xt"] = cfg.xt or None
    assert cfg.xt + 2 <= n1
    att_run(nA, hooks)
    kvplan["xt"] = None
    vm.drain()
    a("s_branch L_att_done")

    a.label("L_loader")
    vm.items = []
    lg.items = []

    def b_setup():
        a("; waves 4-7: W1 DMA offsets v56/v57 (sixth tile out of range where the next group owns it), wo DMA offset v4, flagQ row s79")
        a("""
        v_mul_u32_u24 v56, 2752, v4
        v_add_u32 v56, v56, v6
        s_lshr_b32 s72, 0xf8, s61
        s_and_b32 s72, s72, 1
        s_lshl_b32 s72, s72, 23
        v_and_b32 v57, 64, v6
        v_mad_u32_u24 v57, v57, s72, v56
        v_xor_b32 v58, 16, v56
        v_xor_b32 v59, 16, v57
        v_bfe_u32 v6, v4, 1, 2
        v_lshlrev_b32 v6, 1, v6
        v_xor_b32 v6, v6, v5
        v_lshlrev_b32 v6, 4, v6
        v_lshl_add_u32 v4, v4, 10, v6
        v_min_u32 v5, %d, v0
        v_lshlrev_b32 v5, 7, v5
        s_lshr_b32 s79, s64, 1
        s_lshl_b32 s79, s79, 10
        s_add_u32 s79, s79, %d
        s_and_b32 s73, s60, 3
        s_lshl_b32 s72, s69, 6
        s_mul_i32 s80, s73, %d
        s_add_u32 s80, s80, s72
        """ % (cfg.pfn - 1, WS_FLAGQ, 16 * 2752))

        a("v_mov_b32 v3, 0xdddddddd")

    issued = cfg.lead
    setup1()
    if cfg.bpre:
        issued += 1
        issue_chunk(issued)
    state = {"issued": issued}

    def b_step(c):
        if c in skip_bar:
            return
        vm.wait(("w", c + 1 if c + 1 in skip_bar else c))
        if cfg.bst == 2:
            stamp(c, True)
        if cfg.bst == 3 and c == 0:
            stamp(9, True)
        a("s_barrier")
        if cfg.bst == 1:
            stamp(c, True)
        if c in (0, 8, 12, 15):
            stamp({0: 3, 8: 4, 12: 5, 15: 6}[c])
        if c == cfg.bload - 1:
            flag_load(7, 4, "s79", "qf")
        if c == cfg.bload:
            vm.wait("qf")
            check_flags("q", 7, 4, "s79")
            stamp(7)
            att_loads("b")
        lim = c + 2
        if c < 8:
            lim = min(lim, cfg.hold)
        if cfg.split and c == 8:
            lim = 10 + cfg.split - 1
        if cfg.xslot == 12 and c == 9:
            lim = 12
        if cfg.xslot == 11 and c in (8, 9):
            lim = c + 3
        if cfg.xslot and c >= 11:
            lim = c + cfg.xrun
        while state["issued"] < min(15, max(3, lim)):
            state["issued"] += 1
            issue_chunk(state["issued"])
        if c == 0:
            setup_pf()
        if c == cfg.sA:
            setup2()
        if cfg.pf1_at == 12 + c:
            pf1()
        if c == cfg.sB:
            b_setup()
        if c == cfg.sC:
            setup3()
        if c == cfg.l2w:
            pfl2(SW1)
        if c == cfg.pfe:
            a("; memory-side prefetch of w2 and wo")
            bload(32, 1, 31, SW2, "s100", 0, "", "pf")
            bload(32, 1, 31, SWO, "s100", 0, "", "pf")
        if c == cfg.sC:
            for op in init1 + init2:
                a(op)
        if c == 7:
            a("s_waitcnt lgkmcnt(0)")
            a("s_add_u32 %s, %s, 0x%x" % (sr(sTAG), sr(sTAG), EPOCH_INC))

    def b_att():
        a("s_barrier")
        stamp(8)
        a("s_setprio 1")
        if cfg.kv3:
            kvload(2)

    bhooks = {}
    for c in range(17):
        f = (lambda c=c: b_step(c)) if c < 16 else b_att
        if c <= cfg.bjoin:
            f()
        else:
            tl = (c - cfg.bjoin) * cfg.btile - 1
            bhooks[(tl >> 2, tl & 3, 13)] = [f]

    def wo_dma(lo, hi):
        if cfg.abl & 8:
            return
        if lo == 0:
            a("; wo tile -> LDS [0, 64K), a few rows per score tile")
            a("s_and_b32 s78, s60, 3")
            a("s_lshl_b32 s76, s78, 17")
            a("s_lshl_b32 s73, s67, 7")
            a("s_add_u32 s76, s76, s73")
            a("s_lshl_b32 s78, s78, 14")
        for i in range(lo, hi):
            a("s_add_u32 m0, s78, %d" % (i * 1024))
            a("s_add_u32 s73, s76, %d" % (i * 8192))
            dma(4, SWO, "s73", 0, "wo")

    nl = cfg.pfn
    batches = [(SW2, i) for i in range(-(-11 // nl))] + [(SWO, i) for i in range(-(-4 // nl))]

    def pf_late(n):
        if cfg.abl & 16:
            return
        if n == 0:
            a("; memory-side prefetch of w2 (in k order) and wo, a few lines per wave at a time")
            a("s_and_b32 s90, s60, 3")
            a("s_lshl2_add_u32 s90, s2, s90")
            a("s_mul_i32 s90, s90, %d" % (nl * 128))
        a("s_add_u32 s72, s90, %d" % (batches[n][1] * nl * 131072))
        bload(7, 1, 5, batches[n][0], "s72", 0, "", "pf")

    for n in range(len(batches) if cfg.pfe > 90 and not cfg.apf else 0):
        tl = cfg.pfl + n * cfg.pfg
        bhooks[(tl >> 2, tl & 3, 7)] = [lambda n=n: pf_late(n)]
    for n, lo in enumerate(range(0, 0 if cfg.awo else 16, cfg.won)):
        bhooks[((cfg.wol + n) >> 2, (cfg.wol + n) & 3, 8)] = [lambda lo=lo: wo_dma(lo, lo + cfg.won)]
    if cfg.bst == 4:
        for j in range(nB):
            bhooks.setdefault((j, 2 if cfg.half and j == nB - 1 else 0, 0), []).append(lambda j=j: stamp(2 + j, True))
    kvplan["jump"] = nB - 2 if cfg.half else None
    att_run(nB, bhooks)
    kvplan["jump"] = None
    vm.drain()

    OW = OA + 48
    WOF, OFR, AC, G, Z, X, SR = 128, 24, 8, 64, 96, 104, 112
    a.label("L_att_done")
    stamp(10)
    if cfg.bst == 4:
        stamp(14, True)
    a("s_setprio 0")
    a("s_and_b32 s73, s60, 1")
    a("s_lshl_b32 s73, s73, 9")
    a("s_sub_u32 s76, s95, s73")
    a("""
    s_and_b32 s74, s60, 3
    s_lshr_b32 s75, s60, 2
    v_lshrrev_b32 v14, 3, v0
    v_and_b32 v7, 7, v0
    v_lshlrev_b32 v7, 4, v7
    v_lshl_add_u32 v14, v14, 10, v7
    s_lshl3_add_u32 s78, s66, s60
    s_lshl_b32 s78, s78, 13
    s_lshl_b32 s79, s67, 7
    s_add_u32 s78, s78, s79
    """)
    bload(60, 4, 7, SB2, "s79", 0, "", "xb")
    bload(56, 4, 14, SX, "s78", 0, "", "xb")
    lg.drain()
    a("s_barrier")
    for src in range(3):
        d = SB + 10 * src
        dsr("ds_read_b128", d, 4, 9, src * 2304, src)
        dsr("ds_read_b128", d + 4, 4, 9, src * 2304 + 1024, src)
        dsr("ds_read_b32", d + 8, 1, 10, src * 2304 + 2048, src)
    for src in range(3):
        lg.wait(src)
        for i in range(0, 8, 2):
            a("v_pk_add_f32 %s, %s, %s" % (vr(OW + i, 2), vr(OW + i, 2), vr(SB + 10 * src + i, 2)))
        a("v_add_f32 %s, %s, %s" % (vr(OW + 8), vr(OW + 8), vr(SB + 10 * src + 8)))
    a("v_pk_mul_f32 v[12:13], %s, 0 op_sel_hi:[1,0]" % vr(OW, 2))
    for i in range(2, 8, 2):
        a("v_pk_fma_f32 v[12:13], %s, 0, v[12:13] op_sel_hi:[1,0,1]" % vr(OW + i, 2))
    a("""
    v_add_f32 v12, v12, %s
    v_add_f32 v12, v12, v13
    v_cmp_nle_f32 vcc, 0x30800000, v12
    s_mov_b64 s[72:73], vcc
    v_cmp_nge_f32 vcc, 0x5d800000, v12
    s_or_b64 s[72:73], s[72:73], vcc
    """ % vr(OW + 8))
    a("s_branch L_slow" if cfg.force_slow else "s_cbranch_scc1 L_slow")
    a.label("L_norm")
    a("v_rcp_f32 v12, %s" % vr(OW + 8))
    for i in range(0, 8, 2):
        a("v_pk_mul_f32 %s, %s, v[12:13] op_sel_hi:[1,0]" % (vr(OW + i, 2), vr(OW + i, 2)))
    for q in range(4):
        a("v_cvt_pk_bf16_f32 %s, %s, %s" % (vr(16 + q), vr(OW + 2 * q), vr(OW + 2 * q + 1)))
    a("v_and_b32 v16, -2, v16")
    bstore(16, 4, 11, SWS, "s76", 0, "sc1", "ost")
    stamp(11)
    a("v_mov_b32 v2, v14")
    a("v_lshrrev_b32 v3, 3, v0")
    a("""
    v_mul_u32_u24 v4, %d, v3
    s_mul_i32 s72, s60, %d
    s_add_u32 s72, s72, %d
    v_add3_u32 v4, v4, v7, s72
    """ % (PART_STRIDE, 8 * PART_STRIDE, L_W2))
    for j in range(4):
        dsr("ds_read_b128", G + 4 * j, 4, 4, j * W2_REGION, "g")
    a("""
    v_bfe_u32 v4, v0, 2, 2
    v_bfe_u32 v5, v0, 4, 1
    v_lshl_add_u32 v4, v5, 2, v4
    v_lshrrev_b32 v5, 1, v4
    v_lshlrev_b32 v92, 7, v4
    v_lshl_add_u32 v92, v5, 5, v92
    v_lshrrev_b32 v6, 5, v0
    v_lshl_add_u32 v92, v6, 11, v92
    v_and_b32 v4, 3, v0
    v_lshl_add_u32 v92, v4, 3, v92
    s_lshl_b32 s72, s75, 15
    v_add_u32 v92, s72, v92
    v_xor_b32 v93, 32, v92
    v_xor_b32 v94, 64, v92
    v_xor_b32 v95, 0x60, v92
    s_barrier
    """)

    def oloads(first=0):
        for ks in range(first, 8):
            bload(OFR + 4 * ks, 4, 1, SWS, ("s76", "s77", "s80", "s81")[ks >> 1], (ks & 1) * 2048, "sc1", ("o", ks))

    fill = ("""
    s_lshl2_add_u32 s72, s66, s74
    s_lshr_b32 s76, s72, 1
    s_lshl1_add_u32 s76, s76, s75
    s_lshl_b32 s76, s76, 14
    s_and_b32 s72, s72, 1
    s_lshl_b32 s72, s72, 10
    s_add_u32 s76, s76, s72
    s_add_u32 s76, s76, %d
    s_add_u32 s77, s76, 0x1000
    s_add_u32 s80, s76, 0x2000
    s_add_u32 s81, s76, 0x3000
    v_mul_u32_u24 v3, %d, v3
    v_lshl_add_u32 v3, v7, 1, v3
    s_mul_i32 s72, s60, %d
    s_add_u32 s72, s72, %d
    v_add_u32 v3, s72, v3
    v_and_b32 v5, 15, v0
    v_mul_u32_u24 v5, %d, v5
    v_and_b32 v4, 48, v0
    s_mul_i32 s72, s60, %d
    s_add_u32 s72, s72, %d
    v_add3_u32 v5, v5, v4, s72
    s_mov_b32 s82, 0x3f80
    s_mov_b32 s83, 0x3f800000
    """ % (WS_QO, SUM_STRIDE, 8 * SUM_STRIDE, L_SUM, SUM_STRIDE, 16 * SUM_STRIDE, L_SUM)).strip().split("\n")
    gate = ["v_mov_b32 %s, 0" % vr(Z + i) for i in range(8)]
    gate.append(lambda: lg.wait("g"))
    for j in range(5):
        if j == 4:
            gate.append(lambda: vm.wait("xb"))
        for q in range(4):
            src = G + 4 * j + q if j < 4 else 60 + q
            gate.append("v_dot2c_f32_bf16 %s, s82, %s" % (vr(Z + 2 * q), vr(src)))
            gate.append("v_dot2c_f32_bf16 %s, s83, %s" % (vr(Z + 2 * q + 1), vr(src)))
    for q in range(4):
        gate.append("v_lshlrev_b32 %s, 16, %s" % (vr(X + 2 * q), vr(56 + q)))
        gate.append("v_and_b32 %s, s89, %s" % (vr(X + 1 + 2 * q), vr(56 + q)))
    gate += ["v_mul_f32 %s, 0x%x, %s" % (vr(G + i), NLOG2E, vr(Z + i)) for i in range(8)]
    gate += ["v_exp_f32 %s, %s" % (vr(G + i), vr(G + i)) for i in range(8)]
    gate += ["v_add_f32 %s, 1.0, %s" % (vr(G + i), vr(G + i)) for i in range(8)]
    gate += ["v_rcp_f32 %s, %s" % (vr(G + i), vr(G + i)) for i in range(8)]
    gate += ["v_mul_f32 %s, %s, %s" % (vr(Z + i), vr(Z + i), vr(G + i)) for i in range(8)]

    def wo_reads(oat, per):
        for ks in range(8):
            for ct in range(4):
                trread(WOF + (ks * 4 + ct) * 4, 92 + ct, ks * 4096, 1024, ("wo", ks))
                run_shadow(per)
            if ks == oat:
                run_shadow(1000)
                vm.wait("ost")
                oloads()

    vm_t, lg_t = list(vm.items), list(lg.items)
    a("s_cmp_eq_u32 s63, 1")
    a("s_cbranch_scc1 L_tail_b")
    shadow.extend(fill)
    wo_reads(7, 1)
    shadow.extend(gate)
    run_shadow(1000)
    a("s_branch L_tail_j")
    a.label("L_tail_b")
    vm.items, lg.items = vm_t, lg_t
    shadow.extend(fill + gate)
    run_shadow(1000)
    wo_reads(cfg.oat, 0)
    a.label("L_tail_j")
    stamp(12)
    a("s_mov_b32 s73, 0")
    lg.drain()
    for ks in range(8):
        a.label("L_wo_%d" % ks)
        vm.wait(("o", ks))
        a("v_and_b32 v6, 1, %s" % vr(OFR + 4 * ks))
        a("v_cmp_ne_u32 vcc, 0, v6")
        a("s_cbranch_vccnz L_oretry_%d" % ks)
        a.label("L_ogo_%d" % ks)
        for ct in range(4):
            d = AC + 4 * ct
            mfma16(d, WOF + (ks * 4 + ct) * 4, OFR + 4 * ks, None if ks == 0 else d)
    stamp(13)
    for ct in range(4):
        dsw("ds_write_b128", 5, AC + 4 * ct, 4, ct * 64)
    lg.drain()
    a("s_barrier")
    stamp(14)
    dsr("ds_read_b128", SR, 4, 3, 0, 0)
    dsr("ds_read_b128", SR + 8, 4, 3, SUM_SIZE, 0)
    dsr("ds_read_b128", SR + 4, 4, 3, 16, 1)
    dsr("ds_read_b128", SR + 12, 4, 3, SUM_SIZE + 16, 1)
    for h in range(2):
        lg.wait(h)
        for i in range(4 * h, 4 * h + 4, 2):
            a("v_pk_add_f32 %s, %s, %s" % (vr(SR + i, 2), vr(SR + i, 2), vr(SR + 8 + i, 2)))
        for i in range(4 * h, 4 * h + 4, 2):
            a("v_pk_fma_f32 %s, %s, %s, %s" % (vr(SR + i, 2), vr(SR + i, 2), vr(Z + i, 2), vr(X + i, 2)))
        for q in range(2 * h, 2 * h + 2):
            a("v_cvt_pk_bf16_f32 %s, %s, %s" % (vr(G + q), vr(SR + 2 * q), vr(SR + 2 * q + 1)))
    bstore(G, 4, 2, SOUT, "s78", 0, ("", "sc1", "nt", "sc0 sc1", "sc0 sc1 nt")[cfg.omod])
    a("s_or_b32 s72, s2, s60")
    a("s_cmp_lg_u32 s72, 0")
    a("s_cbranch_scc1 L_noepoch")
    set_flag(7, "0")
    a.label("L_noepoch")
    if cfg.stamps:
        a("s_waitcnt vmcnt(0)")
        stamp(15)
        if cfg.probe is not None:
            a("s_sub_u32 s72, %s, s4" % sr(sSTAMP + cfg.probe))
            if cfg.stamps == 2:
                a("s_lshr_b32 s72, s72, 3")
            else:
                a("s_lshl_b32 s72, s72, %d" % cfg.probesh)
            a("s_cmp_lg_u32 s2, %d" % cfg.probewg)
            a("s_cselect_b32 s72, 0, s72")
            a("s_cmp_lg_u32 s60, %d" % cfg.probew)
            a("s_cselect_b32 s72, 0, s72")
            a("s_memrealtime s[22:23]")
            a("s_waitcnt lgkmcnt(0)")
            a("s_mov_b32 s73, s22")
            a.label("L_probe")
            a("s_memrealtime s[22:23]")
            a("s_waitcnt lgkmcnt(0)")
            a("s_sub_u32 s22, s22, s73")
            a("s_cmp_lt_u32 s22, s72")
            a("s_cbranch_scc1 L_probe")
        a("s_lshl3_add_u32 s72, s2, s60")
        a("s_lshl_b32 s72, s72, 6")
        a("s_add_u32 s72, s72, %d" % WS_STAMP)
        for i in range(16):
            a("v_mov_b32 %s, %s" % (vr(80 + i), sr(sSTAMP + i)))
        a("s_mov_b64 exec, 1")
        for i in range(4):
            bstore(80 + 4 * i, 4, 1, SWS, "s72", 16 * i)
    a.label("L_end")
    a("s_endpgm")

    for ks in range(8):
        a.label("L_oretry_%d" % ks)
        a("s_add_u32 s73, s73, 1")
        a("s_cmp_ge_u32 s73, %d" % SPIN_MAX)
        a("s_cbranch_scc1 L_ogo_%d" % ks)
        a("s_waitcnt vmcnt(0)")
        oloads(ks)
        a("s_branch L_wo_%d" % ks)

    for tag, vt, lanes, soff in stubs:
        a.label("L_poll_" + tag)
        a("s_mov_b32 s73, 0")
        a.label("L_poll2_" + tag)
        a("s_sleep %d" % cfg.sleep)
        flag_load(vt, lanes, soff, None)
        a("s_add_u32 s73, s73, 1")
        a("s_waitcnt vmcnt(0)")
        a("s_cmp_ge_u32 s73, %d" % SPIN_MAX)
        a("s_cbranch_scc1 L_polled_" + tag)
        a("v_cmp_ne_u32 vcc, %s, %s" % (sr(sTAG), vr(vt)))
        a("s_cbranch_vccnz L_poll2_" + tag)
        a("s_branch L_polled_" + tag)

    a.label("L_slow")
    CN = SB + 16
    a("s_waitcnt vmcnt(0)")
    a("v_mov_b32 v13, 0xff800000")
    a("s_mov_b32 s82, s83")
    a("s_mov_b32 s81, 64")
    a.label("L_slow1")
    bload(KV, 4, 252, SWS, "s82", 0, "sc1")
    a("s_add_u32 s82, s82, 2048")
    a("s_waitcnt vmcnt(0)")
    mfma32(SB, KV, QR + 12, None)
    for i in range(0, 16, 2):
        a("v_max3_f32 v13, v13, %s, %s" % (vr(SB + i), vr(SB + i + 1)))
    a("s_sub_u32 s81, s81, 1")
    a("s_cmp_lg_u32 s81, 0")
    a("s_cbranch_scc1 L_slow1")
    a("v_mov_b32 v15, v13")
    a("v_permlane32_swap_b32 v15, v13")
    a("v_max_f32 v13, v15, v13")
    for i in range(16):
        a("v_sub_f32 %s, 0, v13" % vr(CN + i))
        a("v_mov_b32 %s, 0" % vr(OW + i))
    a("s_mov_b32 s82, s83")
    a("s_mov_b32 s81, 64")
    a.label("L_slow2")
    kvload(0)
    a("s_waitcnt vmcnt(0)")
    mfma32(SB, KV, QR + 12, CN)
    for i in range(16):
        a("v_exp_f32 %s, %s" % (vr(SB + i), vr(SB + i)))
    smf(OW, KV + 4, SB)
    smf(OW, KV + 8, SB + 8)
    a("s_sub_u32 s81, s81, 1")
    a("s_cmp_lg_u32 s81, 0")
    a("s_cbranch_scc1 L_slow2")
    a("s_branch L_norm")
    a.label("L_code_end")
    a("s_endpgm")

    added = a.fix()
    return a.text().replace('FSH', str(cfg.fsh)).replace('FROW', str(cfg.fsh + 5)), added


HEADER = """; Kernarg layout for this problem (88 bytes, ptrs only, base s[0:1]):
; @launch grid=(256,1,1) block=(512,1,1) lds=163840
.amdgcn_target "amdgcn-amd-amdhsa--gfx950"
.text
.globl {k}
.p2align 8
.type {k},@function
{k}:
"""

FOOTER = """.section .rodata,"a"
.p2align 6
.amdhsa_kernel {k}
  .amdhsa_next_free_vgpr 256
  .amdhsa_next_free_sgpr 102
  .amdhsa_accum_offset 256
  .amdhsa_group_segment_fixed_size 0
  .amdhsa_kernarg_size 88
  .amdhsa_user_sgpr_count 2
  .amdhsa_user_sgpr_kernarg_segment_ptr 1
  .amdhsa_system_sgpr_workgroup_id_x 1
.end_amdhsa_kernel
"""


def build(**kw):
    cfg = Cfg()
    for k, v in kw.items():
        setattr(cfg, k, v)
    body, added = gen(cfg)
    return HEADER.format(k=KERNEL) + body + FOOTER.format(k=KERNEL), added


if __name__ == "__main__":
    out = sys.argv[1] if len(sys.argv) > 1 else "cdna_kernels/%s.s" % NAME
    kw = {}
    for arg in sys.argv[2:]:
        k, v = arg.split("=")
        kw[k] = int(v)
    text, added = build(**kw)
    open(out, "w").write(text)
    print("wrote", out, "lines", text.count("\n"), "nops added", added)
```

```python
import sys
import os
sys.path.insert(0, os.path.dirname(os.path.abspath(__file__)))
from asmlib import Asm, vr, sr

NAME = "recurrent_scan__softmax_full_mha__dense_activation_squared_relu__prompt"
KERNEL = NAME + "_kernel"

WS_FLAGQ = 0x1200
WS_FLAGH = 0x60000
WS_STAMP = 0x10000
WS_QO = 0x100000
WS_KV = 0x300000
WS_HF = 0x700000
WS_END = WS_HF + 86 * 65536
EPOCH_INC = 0x9E3779B9
SPIN_MAX = 1 << 18

L_RING = 65536
L_OPART = 65536
L_W2 = L_OPART + 55296
W2_REGION = 10240
PART_STRIDE = 144
SUM_STRIDE = 272
SUM_SIZE = 64 * SUM_STRIDE
L_SUM = L_OPART

SX, SWQ, SWO, SW1, SB1, SW2, SB2, SOUT, SWS = 24, 28, 32, 36, 40, 44, 48, 52, 56
sW, sCG, sTB, sRW, sP, sQB, sTBF, sCB, sTAG, sCT0 = 60, 61, 62, 63, 64, 65, 66, 67, 68, 69
sVM = 70
sSTAMP = 4

QSCALE = 0x3EB8AA3B
NLOG2E = 0xBFB8AA3B
NS = 22


class Cfg:
    abl = 0
    bst = 0
    n1 = 8
    nA = 21
    gap = 1
    kvi = 4
    dmam = 2
    fpat = 2222
    pf1_at = 12
    w2_at = 10
    stamps = 0
    force_slow = 0
    flag_chunk = 10
    lead = 1
    look = 5
    sleep = 6
    w0_at = 7
    w1_at = 10
    hpre = 2
    hbar = 0
    hnow = 2
    hgap = 2
    hoff = 0
    fsh = 4
    b1at = -10
    sA = 3
    sB = 3
    sC = 7
    alow = 1
    xt = 5
    half = 1
    dlag = 1
    apf = 13
    awo = 20
    awn = 2
    hflag = 11
    probe = None
    omod = 1
    oat = 4
    probewg = 100
    probew = 0
    probesh = 4
    hst = 0


def srd(s):
    return sr(s, 4)


class Queue:
    def __init__(self, a, name, maxn):
        self.a, self.name, self.maxn, self.items = a, name, maxn, []

    def push(self, tag):
        self.items.append(tag)

    def wait(self, *tags):
        last = max((i for i, t in enumerate(self.items) if t in tags), default=-1)
        if last < 0:
            return
        n = len(self.items) - 1 - last
        self.a("s_waitcnt %s(%d)" % (self.name, min(n, self.maxn)))
        self.items = self.items[last + 1:]

    def drain(self):
        self.a("s_waitcnt %s(0)" % self.name)
        self.items = []


def gen(cfg):
    a = Asm()
    nA = cfg.nA
    nB = 32 - nA + cfg.half
    vm = Queue(a, "vmcnt", 63)
    lg = Queue(a, "lgkmcnt", 15)

    def stamp(i, force=False):
        if cfg.bst and not force and i != 0:
            return
        if cfg.stamps and (cfg.probe is None or i in (0, cfg.probe)):
            a("%s s[22:23]" % ("s_memtime" if cfg.stamps == 2 else "s_memrealtime"))
            a("s_waitcnt lgkmcnt(0)")
            a("s_mov_b32 %s, s22" % sr(sSTAMP + i))

    def mfma32(d, x, y, c):
        a("v_mfma_f32_32x32x16_bf16 %s, %s, %s, %s" % (vr(d, 16), vr(x, 4), vr(y, 4), "0" if c is None else vr(c, 16)))

    def mfma16(d, x, y, c):
        a("v_mfma_f32_16x16x32_bf16 %s, %s, %s, %s" % (vr(d, 4), vr(x, 4), vr(y, 4), "0" if c is None else vr(c, 4)))

    def smf(d, x, y):
        a("v_smfmac_f32_32x32x32_bf16 %s, %s, %s, v3" % (vr(d, 16), vr(x, 4), vr(y, 8)))

    def bload(d, n, va, s, so, off=0, mod="", tag=None):
        op = {1: "dword", 2: "dwordx2", 4: "dwordx4"}[n]
        a("buffer_load_%s %s, %s, %s, %s offen offset:%d %s" % (op, vr(d, n), vr(va), srd(s), so, off, mod))
        vm.push(tag)

    def bstore(d, n, va, s, so, off=0, mod="", tag=None):
        op = {1: "dword", 2: "dwordx2", 4: "dwordx4"}[n]
        a("buffer_store_%s %s, %s, %s, %s offen offset:%d %s" % (op, vr(d, n), vr(va), srd(s), so, off, mod))
        vm.push(tag)

    def dma(va, s, so, off=0, tag=None):
        a("buffer_load_dwordx4 %s, %s, %s offen offset:%d lds" % (vr(va), srd(s), so, off))
        vm.push(tag)

    def dsr(op, d, n, va, off, tag=None):
        a("%s %s, %s offset:%d" % (op, vr(d, n), vr(va), off))
        lg.push(tag)

    def dsw(op, va, d, n, off, tag=None):
        a("%s %s, %s offset:%d" % (op, vr(va), vr(d, n), off))
        lg.push(tag)

    def trread(d, va, off, second, tag=None):
        dsr("ds_read_b64_tr_b16", d, 2, va, off, tag)
        dsr("ds_read_b64_tr_b16", d + 2, 2, va, off + second, tag)

    def set_flag(vt, soff):
        a("v_mov_b32 %s, %s" % (vr(vt), sr(sTAG)))
        a("s_mov_b64 exec, 1")
        bstore(vt, 1, 1, SWS, soff, 0, "sc0 sc1")
        a("s_mov_b64 exec, -1")

    stubs = []

    def check_flags(tag, vt, lanes, soff):
        a("v_cmp_ne_u32 vcc, %s, %s" % (sr(sTAG), vr(vt)))
        a("s_cbranch_vccnz L_poll_" + tag)
        a.label("L_polled_" + tag)
        stubs.append((tag, vt, lanes, soff))

    def flag_load(vt, shift, soff, tag):
        a("v_and_b32 %s, 31, v0" % vr(vt))
        a("v_lshlrev_b32 %s, %d, %s" % (vr(vt), shift, vr(vt)))
        bload(vt, 1, vt, SWS, soff, 0, "sc0 sc1", tag)

    sizes = {SX: 2048 * 1024, SWQ: 512 * 3072, SWS: WS_END, SW1: 512 * 2752, SB1: 2752,
             SWO: 512 * 1024, SW2: 1376 * 1024, SB2: 1024, SOUT: 2048 * 1024}
    RAW = 128

    def xloads():
        for j in range(8):
            bload(RAW + j * 4, 4, 14, SX, "s101", j * 128, "", ("x", j))

    stamp(0)
    a("""
    s_load_dwordx2 s[24:25], s[0:1], 0
    s_getpc_b64 s[72:73]
    L_pc:
    s_cmpk_ge_u32 s2, 256
    s_cbranch_scc1 L_end
    s_lshr_b32 s74, s2, 3
    s_lshl_b32 s74, s74, 11
    v_lshrrev_b32 v8, 5, v0
    v_lshl_add_u32 v8, v8, 7, s74
    v_min_u32 v8, L_code_end-L_pc, v8
    v_mov_b32 v9, 0
    v_lshl_add_u64 v[8:9], v[8:9], 0, s[72:73]
    global_load_dword v7, v[8:9], off
    s_lshl_b32 s72, s2, 4
    s_and_b32 s72, s72, 0x180
    v_add_u32 v4, s72, v0
    v_bfe_u32 v4, v4, 3, 6
    v_and_b32 v5, 7, v0
    v_lshlrev_b32 v14, 10, v4
    v_lshl_add_u32 v14, v5, 4, v14
    s_lshr_b32 s67, s2, 5
    s_and_b32 s73, s2, 6
    s_lshl2_add_u32 s62, s73, s67
    s_lshl_b32 s101, s62, 16
    s_mov_b32 s26, %d
    s_mov_b32 s27, 0x20000
    v_bfe_u32 v24, v4, 1, 3
    v_xor_b32 v24, v24, v5
    v_lshlrev_b32 v15, 7, v4
    v_lshl_add_u32 v15, v24, 4, v15
    v_readfirstlane_b32 s60, v0
    v_and_b32 v0, 63, v0
    v_and_b32 v26, 3, v0
    v_mov_b32 v29, 0
    s_lshr_b32 s60, s60, 6
    s_cmp_ge_u32 s60, 4
    s_waitcnt lgkmcnt(0)
    """ % sizes[SX])
    vm.push("pf")
    if cfg.bst == 3:
        stamp(1, True)
    xloads()
    if cfg.bst == 3:
        stamp(2, True)
    if cfg.stamps:
        for i in range(3 if cfg.bst == 3 else 1, 16):
            a("s_mov_b32 %s, s4" % sr(sSTAMP + i))
    a("s_mov_b32 s63, 1")
    a("s_cbranch_scc1 L_ln")
    a("s_mov_b32 s63, 0")

    def setup1():
        for s, off in ((SWQ, 8), (SWS, 80), (SW1, 32), (SB1, 40), (SWO, 16), (SW2, 48), (SB2, 56), (SOUT, 64)):
            a("s_load_dwordx2 %s, s[0:1], %d" % (sr(s, 2), off))
        a("""
        s_mov_b32 s30, %d
        s_mov_b32 s31, 0x20000
        s_bfe_u32 s72, s2, 0x20003
        s_and_b32 s73, s2, 1
        s_lshl2_add_u32 s61, s73, s72
        s_and_b32 s74, s60, 3
        s_lshl_b32 s72, s61, 7
        s_mul_i32 s85, s74, %d
        s_add_u32 s85, s85, s72
        s_mul_i32 s87, s74, 6144
        s_add_u32 s87, s87, %d
        v_lshrrev_b32 v4, 3, v0
        v_bfe_u32 v6, v4, 1, 1
        v_lshlrev_b32 v6, 2, v6
        v_xor_b32 v6, v6, v5
        v_lshlrev_b32 v6, 4, v6
        v_mul_u32_u24 v13, 3072, v4
        v_add_u32 v13, v13, v6
        v_xor_b32 v33, 16, v13
        s_waitcnt lgkmcnt(0)
        """ % (sizes[SWQ], 16 * 3072, L_RING))

    def setup_pf(srds):
        for s in srds:
            a("s_mov_b32 %s, %d" % (sr(s + 2), sizes[s]))
            a("s_mov_b32 %s, 0x20000" % sr(s + 3))
        a("""
        s_and_b32 s73, s60, 3
        s_lshl2_add_u32 s100, s2, s73
        s_mul_i32 s100, s100, 1536
        v_min_u32 v31, 11, v0
        v_lshlrev_b32 v31, 7, v31
        """)

    def setup2():
        a("s_load_dword %s, %s, 0" % (sr(sTAG), sr(SWS, 2)))
        for s in (SWS, SB1, SB2, SOUT):
            a("s_mov_b32 %s, %d" % (sr(s + 2), sizes[s]))
            a("s_mov_b32 %s, 0x20000" % sr(s + 3))
        a("""
        s_bfe_u32 s72, s2, 0x20003
        s_and_b32 s73, s2, 7
        s_lshl2_add_u32 s66, s73, s72
        s_and_b32 s72, s72, 1
        s_lshl1_add_u32 s64, s73, s72
        s_lshr_b32 s65, s2, 4
        s_mul_i32 s69, s61, 6
        s_mul_i32 s73, s61, 5
        s_add_u32 s73, s73, 3
        s_min_u32 s69, s69, s73
        s_mov_b32 s70, 0xffff
        s_mov_b32 s71, 0xffff
        v_lshlrev_b32 v1, 4, v0
        v_and_b32 v2, 15, v0
        v_lshrrev_b32 v3, 5, v0
        v_lshl_add_u32 v2, v3, 4, v2
        v_lshlrev_b32 v2, 4, v2
        """)

    def setup3():
        a("; attention offsets: s82 = next K/V tile, s83 = head base, s92-s95 = Q tiles, s96-s99 = O partial slots")
        a("""
        s_and_b32 s74, s60, 1
        s_lshr_b32 s75, s60, 1
        s_lshl1_add_u32 s72, s64, s74
        s_lshl_b32 s83, s72, 17
        s_add_u32 s83, s83, %d
        s_and_b32 s73, s75, 1
        s_lshl_b32 s73, s73, 16
        s_add_u32 s82, s83, s73
        s_lshl_b32 s72, s65, 6
        s_add_u32 s72, s72, s64
        s_lshl1_add_u32 s72, s72, s74
        s_lshl_b32 s72, s72, 10
        s_add_u32 s72, s72, %d
        s_mul_i32 s84, s74, %d
        s_add_u32 s84, s84, %d
        """ % (WS_KV, WS_QO, 12 * 2304, L_OPART))
        for t in range(4):
            a("s_xor_b32 s73, s75, %d" % (t ^ 3))
            a("s_mul_i32 %s, s73, %d" % (sr(96 + t), 3 * 2304))
            a("s_lshl_b32 s73, s73, 15")
            a("s_add_u32 %s, s72, s73" % sr(92 + t))
            a("s_add_u32 %s, %s, s84" % (sr(96 + t), sr(96 + t)))

    setup1()
    setup_pf((SWO, SW2))
    setup2()
    a("s_and_b32 s74, s60, 1")
    a("s_lshr_b32 s75, s60, 1")
    a("""
    v_bfe_u32 v9, v0, 4, 1
    v_and_b32 v16, 15, v0
    v_lshlrev_b32 v8, 4, v16
    v_lshl_add_u32 v8, v9, 9, v8
    v_lshl_add_u32 v11, v3, 17, v8
    v_lshl_add_u32 v14, v3, 10, v8
    v_lshl_add_u32 v127, v3, 16, v8
    v_lshrrev_b32 v17, 4, v0
    v_bfe_u32 v8, v0, 3, 1
    v_lshlrev_b32 v12, 4, v5
    v_lshl_add_u32 v12, v17, 8, v12
    v_lshl_add_u32 v12, v8, 17, v12
    v_lshrrev_b32 v8, 1, v16
    v_xor_b32 v8, v8, v17
    v_lshlrev_b32 v16, 7, v16
    v_lshl_add_u32 v16, v8, 4, v16
    s_lshl_b32 s72, s74, 12
    v_add_u32 v16, s72, v16
    v_xor_b32 v17, 64, v16
    v_mov_b32 v125, v31
    v_and_b32 v126, 6, v4
    v_xor_b32 v126, v126, v5
    v_lshlrev_b32 v126, 4, v126
    v_lshl_add_u32 v126, v4, 10, v126
    v_lshl_add_u32 v4, v4, 10, v6
    v_bfe_u32 v10, v0, 2, 2
    v_lshrrev_b32 v6, 1, v10
    v_xor_b32 v8, s75, v6
    v_and_b32 v18, 2, v0
    v_lshl_add_u32 v8, v8, 2, v18
    v_add_u32 v8, v8, v9
    v_lshlrev_b32 v8, 1, v8
    v_and_or_b32 v8, v0, 1, v8
    v_lshlrev_b32 v8, 3, v8
    v_lshl_add_u32 v8, v10, 7, v8
    v_lshl_add_u32 v8, v9, 10, v8
    v_mul_u32_u24 v18, 6144, v3
    v_add_u32 v8, v8, v18
    v_add_u32 v8, %d, v8
    v_xor_b32 v18, 16, v8
    v_add_u32 v19, %d, v18
    v_lshlrev_b32 v5, 5, v9
    v_lshl_add_u32 v5, v10, 7, v5
    v_and_b32 v10, 3, v0
    v_lshl_add_u32 v5, v10, 3, v5
    v_lshl_add_u32 v5, v3, 9, v5
    v_lshl_add_u32 v5, v6, 6, v5
    v_lshrrev_b32 v10, 1, v0
    v_xor_b32 v10, v10, v0
    v_and_b32 v10, 1, v10
    v_mul_u32_u24 v10, 24, v10
    v_xor_b32 v5, v5, v10
    s_mul_i32 s84, s60, %d
    s_add_u32 s84, s84, %d
    v_add_u32 v5, s84, v5
    v_xor_b32 v6, 64, v5
    v_lshlrev_b32 v10, 3, v9
    v_lshl_add_u32 v10, v3, 5, v10
    v_xor_b32 v9, 16, v19
    v_mov_b32 v3, 0xdddddddd
    """ % (L_RING, 2 * 24576, W2_REGION, L_W2))

    def setup_a():
        setup3()
        a("s_add_u32 s82, s82, %d" % ((32 - nA) * 2048))
        a("s_mul_i32 s84, s60, %d" % W2_REGION)
        a("s_add_u32 s84, s84, %d" % L_W2)
        a("""
        s_lshl1_add_u32 s72, s62, s74
        s_lshl1_add_u32 s73, s61, s75
        s_lshl_b32 s76, s73, 7
        s_add_u32 s76, s76, s72
        s_lshl_b32 s77, s76, 11
        s_lshl4_add_u32 s76, s72, s73
        s_lshl_b32 s76, s76, 11
        s_add_u32 s76, s76, %d
        s_add_u32 s77, s77, %d
        s_add_u32 s81, s69, s75
        s_lshl_b32 s78, s81, 7
        s_add_u32 s78, s78, s72
        s_lshl_b32 s78, s78, 10
        s_add_u32 s78, s78, %d
        s_lshl_b32 s79, s61, 6
        s_add_u32 s79, s79, s62
        s_lshl_b32 s79, s79, 4
        s_add_u32 s79, s79, %d
        s_lshl_b32 s80, s62, 3
        s_add_u32 s80, s80, s61
        s_lshl2_add_u32 s80, s80, s60
        s_lshl_b32 s80, s80, FSH
        s_add_u32 s80, s80, %d
        s_mul_i32 s73, s61, s75
        s_add_u32 s88, s78, %d
        s_cmp_lt_u32 s73, 3
        s_cselect_b32 s88, s88, 0x40000000
        """ % (WS_QO, WS_KV, WS_HF, WS_FLAGQ, WS_FLAGH, 8 * 65536))


    def slot_of(c):
        return (c & 3) * 24576

    def issue_chunk(c):
        stride = 3072 if c < 8 else 2752
        a("s_xor_b32 s73, s67, %d" % (c & 7))
        a("s_mul_i32 s73, s73, %d" % (64 * stride))
        a("s_add_u32 s73, s73, %s" % ("s85" if c < 8 else "s80"))
        for m in range(6):
            blk, seg = divmod(m, 3)
            a("s_add_u32 m0, s87, %d" % (slot_of(c) + seg * 2048 + blk * 1024))
            a("s_add_u32 s72, s73, %d" % (blk * 8 * stride + seg * (1024 if c < 8 else 128)))
            if c < 8:
                dma(33 if blk else 13, SWQ, "s72", 0, ("w", c))
            else:
                dma(56 + (seg == 2) + 2 * blk, SW1, "s72", 0, ("w", c))

    def layernorm(acts):
        def act(p):
            if acts.get(p):
                assert p >= 7
                a("s_cmp_eq_u32 s63, 1")
                a("s_cbranch_scc1 L_ln_%d" % p)
                for f in acts[p]:
                    f()
                a.label("L_ln_%d" % p)
        a.label("L_ln")
        a("""
        v_mov_b32 v232, 0x3f803f80
        v_mov_b32 v233, 0x3f803f80
        v_lshlrev_b32 v26, 4, v26
        v_mov_b32 v28, 0xffff
        v_lshlrev_b64 v[28:29], v26, v[28:29]
        """)
        a("s_mov_b32 s89, 0xffff0000")
        a("s_lshl_b32 s72, s67, 13")
        a("v_or_b32 v15, s72, v15")

        def xwrite(j):
            a("v_xor_b32 v23, 0x%x, v15" % (j << 13))
            a("ds_write_b128 v23, %s" % vr(RAW + j * 4, 4))

        def m4(d, x, y, c):
            a("v_mfma_f32_4x4x4_16b_bf16 %s, %s, %s, %s" % (vr(d, 4), vr(x, 2), vr(y, 2), "0" if c is None else vr(c, 4)))

        S, GM, T, CN, AH = 208, 216, 192, 224, 228
        for j in range(8):
            vm.wait(("x", j))
            if cfg.bst == 3 and j in (0, 3, 7):
                stamp({0: 4, 3: 5, 7: 6}[j], True)
            if j == 7:
                act(7)
            for h in range(2):
                x = RAW + j * 4 + 2 * h
                m4(S + 4 * h, 232, x, S + 4 * h if j else None)
                m4(GM + 4 * h, x, x, GM + 4 * h if j else None)
        act(8)
        stamp(1)
        a("v_add_f32 v24, %s, %s" % (vr(S), vr(S + 4)))
        for r in range(4):
            a("v_add_f32 %s, %s, %s" % (vr(GM + r), vr(GM + r), vr(GM + 4 + r)))
        dpp = "row_mask:0xf bank_mask:0xf"
        a("v_add_f32_dpp v24, v24, v24 quad_perm:[1,0,3,2] " + dpp)
        a("v_mov_b32_dpp v25, %s quad_perm:[0,0,0,0] %s" % (vr(GM), dpp))
        a("v_add_f32_dpp v25, %s, v25 quad_perm:[1,1,1,1] %s" % (vr(GM + 1), dpp))
        a("v_add_f32_dpp v24, v24, v24 quad_perm:[2,3,0,1] " + dpp)
        a("v_add_f32_dpp v25, %s, v25 quad_perm:[2,2,2,2] %s" % (vr(GM + 2), dpp))
        a("v_add_f32_dpp v25, %s, v25 quad_perm:[3,3,3,3] %s" % (vr(GM + 3), dpp))
        a("v_add_f32_dpp v24, v24, v24 row_half_mirror " + dpp)
        a("v_add_f32_dpp v25, v25, v25 row_half_mirror " + dpp)
        a("""
        v_mul_f32 v24, 0x3b000000, v24
        v_mul_f32 v25, 0x3b000000, v25
        v_fma_f32 v25, -v24, v24, v25
        v_max_f32 v25, 0, v25
        v_cvt_pk_bf16_f32 v24, v24, v25
        v_and_b32 v25, s89, v24
        v_add_f32 v25, 0x3727c5ac, v25
        v_cvt_pk_bf16_f32 v25, v25, v25
        v_and_b32 v25, s89, v25
        v_sqrt_f32 v25, v25
        v_lshlrev_b32 v24, 16, v24
        v_cvt_pk_bf16_f32 v25, v25, v25
        v_and_b32 v25, s89, v25
        v_rcp_f32 v26, v25
        v_cvt_pk_bf16_f32 v27, v26, v26
        v_and_b32 v25, s89, v27
        v_sub_f32 v25, v26, v25
        v_cvt_pk_bf16_f32 v25, v25, v25
        v_and_b32 v228, v27, v28
        v_and_b32 v229, v27, v29
        v_and_b32 v230, v25, v28
        v_and_b32 v231, v25, v29
        """)
        for r in range(4):
            a("v_mul_f32_e64 %s, -v24, v26" % vr(CN + r))

        def finish(j, q):
            t = T + 8 * (j & 1)
            a("v_cvt_pk_bf16_f32 %s, %s, %s" % (vr(RAW + 4 * j + q), vr(t + 2 * q), vr(t + 2 * q + 1)))
            if q == 3:
                xwrite(j)

        for j in range(9):
            for q in range(4):
                if j < 8:
                    t = T + 8 * (j & 1) + 4 * (q & 1)
                    m4(t, AH + 2 * (q >> 1), RAW + 4 * j + 2 * (q & 1), CN if q < 2 else t)
                if j:
                    finish(j - 1, q)
        if cfg.bst == 3:
            stamp(7, True)
        act(9)
        act(10)
        stamp(2)
        if cfg.bst == 3:
            stamp(8, True)

    def pf1():
        a("; memory-side prefetch of W1")
        bload(32, 1, 31, SW1, "s100", 0, "", "pf")

    def b1loads():
        a("s_lshr_b32 s3, s60, 1")
        a("s_add_u32 s3, s3, s69")
        a("s_lshl_b32 s3, s3, 6")
        for q in range(6):
            bload(112 + 2 * q, 2, 10, SB1, "s3", (q >> 1) * 128 + (q & 1) * 16, "", "b1")

    acts = {}
    for c, p in enumerate((cfg.w0_at, cfg.w1_at, cfg.w2_at, 10)[:cfg.lead + 1]):
        acts.setdefault(p, []).append(lambda c=c: issue_chunk(c))
    if cfg.b1at < 0:
        acts.setdefault(-cfg.b1at, []).insert(0, b1loads)
    layernorm(acts)
    a("s_cmp_eq_u32 s63, 1")
    a("s_cbranch_scc1 L_loader")

    QR, SB, WF, FA, OA, KV, HB = 8, 24, 56, 64, 128, 192, 228
    NKV = 3

    def att_init_ops():
        ops = ["v_mov_b32 %s, 0" % vr(OA + 16 * t + i) for t in range(4) for i in range(16)]
        ops2 = ["v_and_b32 v7, 27, v0", "v_cmp_eq_u32 vcc, 16, v7", "v_mov_b32 v7, 0x3f803f80", "v_cndmask_b32 v7, 0, v7, vcc"]
        ops2 += ["v_mov_b32 %s, v7" % vr(KV + 12 * b + 4 + q) for b in range(NKV) for q in range(8)]
        return ops, ops2

    XKV = (72, 84)
    kvplan = {"xt": None}

    def kvreg(j):
        xt = kvplan["xt"]
        if xt is not None and j in (xt, xt + 1):
            return XKV[j - xt]
        return KV + 12 * ((j - 2 if xt is not None and j > xt else j) % NKV)

    def kvsched(n):
        at, pos = {}, 0
        for j in range(NKV, n):
            prev = [p for p in range(j) if kvreg(p) == kvreg(j)]
            pos = max(pos + 1, 4 * (prev[-1] + 1) if prev else 0)
            at[(pos >> 2, pos & 3)] = j
        return at

    def kvload(j):
        r = kvreg(j)
        bload(r, 4, 252, SWS, "s82", 0, "sc1", ("kv", j))
        a("s_mov_b64 exec, %s" % sr(sVM, 2))
        bload(r + 4, 4, 2, SWS, "s82", 1024, "sc1", ("kv", j))
        bload(r + 8, 4, 2, SWS, "s82", 1536, "sc1", ("kv", j))
        a("s_mov_b64 exec, -1")
        a("s_add_u32 s82, s82, %d" % (2048 * (nA if j == kvplan.get("jump") else 1)))

    def att_loads(role):
        a("; key slot 8a+4b+c holds token 16b+4a+c, matching the order of the V fragments")
        a("v_and_b32 v252, 0x230, v1")
        a("v_and_b32 v253, 0x180, v1")
        a("v_lshrrev_b32 v253, 1, v253")
        a("v_and_b32 v254, 64, v1")
        a("v_lshlrev_b32 v254, 2, v254")
        a("v_or3_b32 v252, v252, v253, v254")
        bload(QR, 4, 1, SWS, "s92", 0, "sc1", "q")
        kvload(0)
        for t in range(1, 4):
            bload(QR + 4 * t, 4, 1, SWS, sr(92 + t), 0, "sc1", "q")
        kvload(1)
        if role == "a":
            kvload(2)

    def dump_addr():
        a("v_lshlrev_b32 v8, 2, v0")
        a("v_add_u32 v9, s99, v1")
        a("v_add_u32 v10, s99, v8")
        a("v_bfe_u32 v11, v0, 4, 1")
        a("v_lshl_add_u32 v11, v11, 10, v2")

    def dump(t):
        a("v_add_u32 v12, %s, v1" % sr(96 + t))
        a("v_add_u32 v13, %s, v8" % sr(96 + t))
        dsw("ds_write_b128", 12, OA + 16 * t, 4, t * 2304)
        dsw("ds_write_b128", 12, OA + 16 * t + 4, 4, t * 2304 + 1024)
        dsw("ds_write_b32", 13, OA + 16 * t + 8, 1, t * 2304 + 2048)

    deferred = []
    cfg_gap = {0: range(16), 1: (1, 10), 2: (0, 9), 3: (4, 10), 4: (1,), 5: (4,), 6: (15, 9)}[cfg.gap]

    def tiles_of(n):
        return [(j, t) for j in range(n) for t in range(4) if not (cfg.half and j == n - 1 and t < 2)]

    def att_run(n, hooks):
        tiles = tiles_of(n)
        last = {t: max(p for p, jt in enumerate(tiles) if jt[1] == t) for t in range(4)}
        hooks.setdefault(tiles[last[0]] + (11,), []).append(dump_addr)
        for t in range(3):
            hooks.setdefault(tiles[last[t] + (cfg.dlag if t < 2 and cfg.half else 1)] + (12,), []).append(lambda t=t: dump(t))
        assert all(k[:2] in tiles for k in hooks)
        vm.wait("q", ("kv", 0))
        mfma32(SB, KV, QR, None)
        loads = kvsched(n)
        for p, (j, t) in enumerate(tiles):
            cur, oth = SB + 16 * (p & 1), SB + 16 * ((p + 1) & 1)
            for i in range(16):
                a("v_exp_f32 %s, %s" % (vr(cur + i), vr(cur + i)))
                if i in cfg_gap:
                    while deferred:
                        deferred.pop(0)()
                if i == cfg.kvi and (j, t) in loads and not cfg.abl & 32:
                    kvload(loads[(j, t)])
                if i == 1 and p:
                    smf(OA + 16 * tiles[p - 1][1], kvreg(tiles[p - 1][0]) + 8, oth + 8)
                if i == 4 and p + 1 < len(tiles):
                    nj, nt = tiles[p + 1]
                    vm.wait(("kv", nj))
                    mfma32(oth, kvreg(nj), QR + 4 * nt, None)
                if i == 10:
                    smf(OA + 16 * t, kvreg(j) + 4, cur)
                for h in hooks.get((j, t, i), ()):
                    h()
        smf(OA + 48, kvreg(n - 1) + 8, SB + 16 + 8)

    ACC = (24, 40, 56)
    WB, NBUF, LA = 72, 6, cfg.look
    XF, PK, XA = 128, 96, 16
    init1, init2 = att_init_ops()

    def item(g):
        kk, m = divmod(g % 96, 6)
        return kk, m >> 1, m & 1

    def reads(g, part=None):
        kk, seg, ab = item(g)
        so = slot_of(g // 12)
        base = (8, 18)[ab] + so // 49152
        off = so % 49152 + (kk & 1) * 12288 + seg * 2048
        for h in range(2):
            if part in (None, h):
                if g < 96 and seg == 0 and ab == 0:
                    dsr("ds_read_b128", XF + 8 * kk + 4 * h, 4, XA + (kk & 1), (kk >> 1) * 8192 + h * 2048, g)
                dsr("ds_read_b64_tr_b16", WB + 4 * (g % NBUF) + 2 * h, 2, base, off + 512 * h, g)

    def pack(acc, pk):
        return ["v_cvt_pk_bf16_f32 %s, %s, %s" % (vr(pk + q), vr(acc + 2 * q), vr(acc + 2 * q + 1)) for q in range(8)]

    def st2(pk, va, base, delta, tag, imm=(0, 0), vb=None):
        def first():
            bstore(pk, 4, va, SWS, base, imm[0], "sc1", tag)

        def second():
            if delta:
                a("s_add_u32 s72, %s, %d" % (base, delta))
            bstore(pk + 4, 4, vb or va, SWS, "s72" if delta else base, imm[1], "sc1", tag)
        return [first, second]

    def relu2(acc):
        return (["v_max_f32 %s, 0, %s" % (vr(acc + i), vr(acc + i)) for i in range(16)]
                + ["v_mul_f32 %s, %s, %s" % (vr(acc + i), vr(acc + i), vr(acc + i)) for i in range(16)])

    def bias(seg):
        ops = [lambda: vm.wait("b1")]
        for q in range(4):
            ops.append("v_lshlrev_b32 %s, 16, %s" % (vr(ACC[seg] + 2 * q), vr(112 + 4 * seg + q)))
            ops.append("v_and_b32 %s, s89, %s" % (vr(ACC[seg] + 2 * q + 1), vr(112 + 4 * seg + q)))
        return ops

    tagq = ["v_or_b32 %s, 1, %s" % (vr(PK + 4 * q), vr(PK + 4 * q)) for q in range(2)]
    qkv_epi = (["v_mul_f32 %s, 0x%x, %s" % (vr(ACC[0] + i), QSCALE, vr(ACC[0] + i)) for i in range(16)]
               + pack(ACC[0], PK) + tagq + st2(PK, 14, "s76", 0, "st", (0, 256))
               + pack(ACC[1], PK + 8) + st2(PK + 8, 11, "s77", 0, "st", (0, 256))
               + pack(ACC[2], PK) + st2(PK, 12, "s77", 0, "st", (1024, 1152))
               + bias(0) + bias(1) + bias(2))
    sched = {108 + 12 * t: init1[16 * t:16 * t + 16] for t in range(4)}
    sched[174] = init2
    shadow = []

    def run_shadow(budget):
        while shadow and budget > 0:
            op = shadow.pop(0)
            if isinstance(op, str):
                a(op)
                budget -= 1
            else:
                op()
                budget -= 3

    mark = len(a.items)
    setup_a()
    a("""
    s_lshl_b32 s85, s60, 14
    s_lshl_b32 s72, s67, 7
    s_add_u32 s85, s85, s72
    s_lshl_b32 s86, s60, 6
    s_lshl1_add_u32 s86, s66, s86
    s_lshl_b32 s86, s86, 10
    s_add_u32 s86, s86, %d
    s_lshl_b32 s87, s66, FROW
    s_add_u32 s87, s87, %d
    """ % (WS_HF, WS_FLAGH))
    sched[0] = [v.text for k, v in a.items[mark:] if k == "ins"]
    del a.items[mark:]
    vm.wait(("w", 0))
    a("s_waitcnt lgkmcnt(0)")
    a("s_add_u32 %s, %s, 0x%x" % (sr(sTAG), sr(sTAG), EPOCH_INC))
    if cfg.bst == 3:
        stamp(9, True)
    a("s_barrier")
    stamp(3)
    if cfg.bst == 3:
        stamp(10, True)
    for g in range(LA):
        reads(g)
    for g in range(192):
        kk, seg, ab = item(g)
        if g == 96:
            stamp(4)
            shadow.extend(qkv_epi)
            run_shadow(1000)
            stamp(5)
            a("s_barrier")
            for n in range(96, 96 + LA):
                reads(n)
        lg.wait(g)
        w = WB + 4 * (g % NBUF)
        n = g + LA
        more = n < 192 and not g < 96 <= n
        shadow.extend(sched.get(g, ()))
        for h, t in enumerate((1, 0)):
            x = XF + 8 * kk + 4 * t
            if g < 96 and seg == 2:
                d = ACC[seg] + 8 * ab + 4 * t
                mfma16(d, x, w, None if kk == 0 else d)
            else:
                d = ACC[seg] + 8 * t + 4 * ab
                mfma16(d, w, x, d if kk else (None if g < 96 else ACC[seg] + 4 * ab))
            if more and h == 0 and n % 12 == 0:
                vm.wait(("w", n // 12))
                if n // 12 == cfg.flag_chunk:
                    vm.wait("st")
                a("s_barrier")
                if n // 12 == cfg.flag_chunk:
                    a("s_cmp_lg_u32 s60, 0")
                    a("s_cselect_b32 s79, 0x40000000, s79")
                    set_flag(7, "s79")
                    stamp(6)
            if more:
                reads(n, h)
            run_shadow((1 - h if g < 96 else 1) if more else 2)
        if g == cfg.b1at:
            b1loads()
    run_shadow(1000)
    stamp(7)
    hmath, hst = [], []
    for seg in range(3):
        pk = PK + 8 * seg
        hmath.append(relu2(ACC[seg]) + pack(ACC[seg], pk))
        hst.append((["s_add_u32 s78, s78, 0x40000"] if seg == 1 else []) + st2(pk, 127, "s78" if seg < 2 else "s88", 0, "hst", (0, 256)))
    for seg in range(cfg.hbar):
        shadow.extend(hmath[seg])
    run_shadow(1000)
    a("s_barrier")
    stamp(8)
    if cfg.bst == 4:
        stamp(1, True)
    a("s_setprio 2")
    for seg in range(cfg.hbar, cfg.hpre):
        shadow.extend(hmath[seg])
    run_shadow(1000)
    att_loads("a")
    if cfg.xt:
        for r in XKV:
            for q in range(8):
                a("v_mov_b32 %s, v7" % vr(r + 4 + q))
    hlist = [[hst[0][0]], [hst[0][1]], hst[1][:2], [hst[1][2]], [hst[2][0]], [hst[2][1]]]
    for seg in range(3):
        shadow.extend(hmath[seg] if seg >= max(cfg.hpre, cfg.hbar) else [])
        for n in (2 * seg, 2 * seg + 1):
            if n < cfg.hnow:
                shadow.extend(hlist[n])
    run_shadow(1000)
    stamp(9)


    def w2dma(i):
        if cfg.abl & 129:
            return
        a("s_add_u32 m0, s84, %d" % ((i & 3) * 2048))
        a("s_add_u32 s72, s85, %d" % (i * 65536))
        dma(4, SW2, "s72", 0, ("w2", i))
        a("s_add_u32 s72, s72, 7168")
        dma(4, SW2, "s72", 1024, ("w2", i))

    hreg = lambda i, tt: HB + 8 * (i % 3) + 4 * tt

    def hload(i):
        if cfg.abl & 257:
            return
        if i > 0:
            a("s_add_u32 s86, s86, 0x40000")
        for tt in range(2):
            bload(hreg(i, tt), 4, 1, SWS, "s86", tt * 1024, "sc1", ("h", i))

    def w2read(i, nt):
        if cfg.abl & 2:
            return
        vm.wait(("w2", i))
        trread(WF + 4 * nt, 5 + nt, (i & 3) * 2048, 1024, ("wf", i, nt))

    def fslot(f):
        i, m = divmod(f, 4)
        nt, tt = ((0, 0), (0, 1), (1, 1), (1, 0))[m]
        vm.wait(("h", i))
        lg.wait(("wf", i, nt))
        d = FA + 16 * (2 * tt + nt)
        if not cfg.abl & 4:
            mfma32(d, WF + 4 * nt, hreg(i, tt), None if i == 0 else d)
        if m == 1 and i + 1 < NS:
            deferred.append(lambda: w2read(i + 1, 0))
        if m == cfg.dmam and i + 4 < NS:
            deferred.append(lambda: w2dma(i + 4))
        if m == 3:
            if i + 1 < NS:
                deferred.append(lambda: w2read(i + 1, 1))
            if i + 3 < NS:
                deferred.append(lambda: hload(i + 3))

    def park(tt, nt):
        d = FA + 16 * (2 * tt + nt)
        for q in range(8):
            a("v_cvt_pk_bf16_f32 %s, %s, %s" % (vr(d + q), vr(d + 2 * q), vr(d + 2 * q + 1)))
        for q in range(2):
            dsw("ds_write_b128", 4, d + 4 * q, 4, tt * 32 * PART_STRIDE + nt * 64 + q * 32)

    def park_addr():
        a("v_and_b32 v4, 31, v0")
        a("v_mul_u32_u24 v4, %d, v4" % PART_STRIDE)
        a("v_lshrrev_b32 v5, 5, v0")
        a("v_lshl_add_u32 v4, v5, 4, v4")
        a("v_add_u32 v4, s84, v4")

    hooks = {}

    def hook(j, t, i, f):
        hooks.setdefault((j, t, i), []).append(f)

    n1 = cfg.n1
    for n in range(cfg.hnow, 6):
        tl = (n - cfg.hnow) * cfg.hgap + cfg.hoff
        hook(tl >> 2, tl & 3, 9, lambda n=n: (shadow.extend(hlist[n]), run_shadow(1000)))
    assert (5 - cfg.hnow) * cfg.hgap + cfg.hoff <= cfg.hflag < 4 * (n1 - 2)
    hook(cfg.hflag >> 2, cfg.hflag & 3, 12, lambda: (vm.wait("hst"), set_flag(7, "s80"), stamp(1) if cfg.hst else None))
    hook(n1 - 2, 0, 8, lambda: flag_load(7, cfg.fsh, "s87", "hf"))
    hook(n1 - 2, 3, 12, lambda: (vm.wait("hf"), stamp(2) if cfg.hst else None, check_flags("h", 7, cfg.fsh, "s87"), stamp(3) if cfg.hst else None))
    for i in range(4):
        hook(n1 - 3 + (i >> 1), 1 + (i & 1), 7, lambda i=i: w2dma(i))
    for i in range(3):
        hook(n1 - 1, i, 7, lambda i=i: hload(i))
    hook(n1 - 1, 3, 7, lambda: (w2read(0, 0), w2read(0, 1)))
    pat = [int(ch) for ch in str(cfg.fpat)]
    slots = [(j, t, pos) for j in range(n1, nA) for t in range(4) for pos in ((13,), (7, 13))[pat[t] - 1]]
    for f in range(4 * NS):
        hook(*slots[f], lambda f=f: fslot(f))
    rest = [jt for jt in tiles_of(nA) if jt > slots[4 * NS - 1][:2]]
    hook(*rest[0], 6, park_addr)
    for n, (nt, tt) in enumerate(((0, 0), (0, 1), (1, 1), (1, 0))):
        hook(*rest[n], 7, lambda tt=tt, nt=nt: park(tt, nt))
    if cfg.hst:
        for n in range(4):
            hook(n1 + 4 * n, 0, 1, lambda n=n: stamp(4 + n))
    if cfg.alow:
        hook(*tiles_of(nA)[-cfg.alow], 0, lambda: a("s_setprio 0"))
    if cfg.bst == 4:
        for n, j in enumerate(range(0, nA, 2)):
            hook(j, 2 if cfg.half and j == nA - 1 else 0, 0, lambda n=n: stamp(2 + n, True))
    def a_pf():
        a("; memory-side prefetch of w2 and wo")
        bload(255, 1, 125, SW2, "s100", 0, "", "pf")
        bload(255, 1, 125, SWO, "s100", 0, "", "pf")

    def a_wo(lo):
        if lo == 0:
            a("; wo tile -> LDS [0, 64K), a few rows per score tile")
            a("s_lshl_b32 s76, s60, 17")
            a("s_lshl_b32 s73, s67, 7")
            a("s_add_u32 s76, s76, s73")
            a("s_lshl_b32 s77, s60, 14")
        a("s_add_u32 m0, s77, %d" % (lo * 1024))
        for i in range(cfg.awn):
            a("s_add_u32 s73, s76, %d" % ((lo + i) * 8192 - i * 1024))
            dma(126, SWO, "s73", i * 1024, "wo")

    if cfg.apf:
        hook(cfg.apf >> 2, cfg.apf & 3, 9, a_pf)
    if cfg.awo:
        for n, lo in enumerate(range(0, 16, cfg.awn)):
            assert cfg.awo + n < 4 * n1
            hook((cfg.awo + n) >> 2, (cfg.awo + n) & 3, 9, lambda lo=lo: a_wo(lo))
    kvplan["xt"] = cfg.xt or None
    assert cfg.xt + 2 <= n1
    att_run(nA, hooks)
    kvplan["xt"] = None
    vm.drain()
    a("s_branch L_att_done")

    a.label("L_loader")
    vm.items = []
    lg.items = []

    def b_setup():
        a("; waves 4-7: W1 DMA offsets v56-v59 (sixth tile out of range where the next group owns it), flagQ row s79")
        a("""
        v_mul_u32_u24 v56, 2752, v4
        v_add_u32 v56, v56, v6
        s_lshr_b32 s72, 0xf8, s61
        s_and_b32 s72, s72, 1
        s_lshl_b32 s72, s72, 23
        v_and_b32 v57, 64, v6
        v_mad_u32_u24 v57, v57, s72, v56
        v_xor_b32 v58, 16, v56
        v_xor_b32 v59, 16, v57
        s_lshr_b32 s79, s64, 1
        s_lshl_b32 s79, s79, 10
        s_add_u32 s79, s79, %d
        s_and_b32 s73, s60, 3
        s_lshl_b32 s72, s69, 6
        s_mul_i32 s80, s73, %d
        s_add_u32 s80, s80, s72
        """ % (WS_FLAGQ, 16 * 2752))

        a("v_mov_b32 v3, 0xdddddddd")

    issued = cfg.lead
    setup1()
    state = {"issued": issued}

    def b_step(c):
        vm.wait(("w", c))
        if cfg.bst == 2:
            stamp(c, True)
        if cfg.bst == 3 and c == 0:
            stamp(9, True)
        a("s_barrier")
        if cfg.bst == 1:
            stamp(c, True)
        if c in (0, 8, 12, 15):
            stamp({0: 3, 8: 4, 12: 5, 15: 6}[c])
        if c == 14:
            flag_load(7, 4, "s79", "qf")
        if c == 15:
            vm.wait("qf")
            check_flags("q", 7, 4, "s79")
            stamp(7)
            att_loads("b")
        while state["issued"] < min(15, max(3, c + 2)):
            state["issued"] += 1
            issue_chunk(state["issued"])
        if c == 0:
            setup_pf((SW1,))
        if c == cfg.sA:
            setup2()
        if cfg.pf1_at == 12 + c:
            pf1()
        if c == cfg.sB:
            b_setup()
        if c == cfg.sC:
            setup3()
        if c == cfg.sC:
            for op in init1 + init2:
                a(op)
        if c == 7:
            a("s_waitcnt lgkmcnt(0)")
            a("s_add_u32 %s, %s, 0x%x" % (sr(sTAG), sr(sTAG), EPOCH_INC))

    def b_att():
        a("s_barrier")
        stamp(8)
        a("s_setprio 1")
        kvload(2)

    bhooks = {}
    for c in range(16):
        b_step(c)
    b_att()
    if cfg.bst == 4:
        for j in range(nB):
            bhooks.setdefault((j, 2 if cfg.half and j == nB - 1 else 0, 0), []).append(lambda j=j: stamp(2 + j, True))
    kvplan["jump"] = nB - 2 if cfg.half else None
    att_run(nB, bhooks)
    kvplan["jump"] = None
    vm.drain()

    OW = OA + 48
    WOF, OFR, AC, G, Z, X, SR = 128, 24, 8, 64, 96, 104, 112
    a.label("L_att_done")
    stamp(10)
    if cfg.bst == 4:
        stamp(14, True)
    a("s_setprio 0")
    a("s_and_b32 s73, s60, 1")
    a("s_lshl_b32 s73, s73, 9")
    a("s_sub_u32 s76, s95, s73")
    a("""
    s_and_b32 s74, s60, 3
    s_lshr_b32 s75, s60, 2
    v_lshrrev_b32 v14, 3, v0
    v_and_b32 v7, 7, v0
    v_lshlrev_b32 v7, 4, v7
    v_lshl_add_u32 v14, v14, 10, v7
    s_lshl3_add_u32 s78, s66, s60
    s_lshl_b32 s78, s78, 13
    s_lshl_b32 s79, s67, 7
    s_add_u32 s78, s78, s79
    """)
    bload(60, 4, 7, SB2, "s79", 0, "", "xb")
    bload(56, 4, 14, SX, "s78", 0, "", "xb")
    lg.drain()
    a("s_barrier")
    for src in range(3):
        d = SB + 10 * src
        dsr("ds_read_b128", d, 4, 9, src * 2304, src)
        dsr("ds_read_b128", d + 4, 4, 9, src * 2304 + 1024, src)
        dsr("ds_read_b32", d + 8, 1, 10, src * 2304 + 2048, src)
    for src in range(3):
        lg.wait(src)
        for i in range(0, 8, 2):
            a("v_pk_add_f32 %s, %s, %s" % (vr(OW + i, 2), vr(OW + i, 2), vr(SB + 10 * src + i, 2)))
        a("v_add_f32 %s, %s, %s" % (vr(OW + 8), vr(OW + 8), vr(SB + 10 * src + 8)))
    a("v_pk_mul_f32 v[12:13], %s, 0 op_sel_hi:[1,0]" % vr(OW, 2))
    for i in range(2, 8, 2):
        a("v_pk_fma_f32 v[12:13], %s, 0, v[12:13] op_sel_hi:[1,0,1]" % vr(OW + i, 2))
    a("""
    v_add_f32 v12, v12, %s
    v_add_f32 v12, v12, v13
    v_cmp_nle_f32 vcc, 0x30800000, v12
    s_mov_b64 s[72:73], vcc
    v_cmp_nge_f32 vcc, 0x5d800000, v12
    s_or_b64 s[72:73], s[72:73], vcc
    """ % vr(OW + 8))
    a("s_branch L_slow" if cfg.force_slow else "s_cbranch_scc1 L_slow")
    a.label("L_norm")
    a("v_rcp_f32 v12, %s" % vr(OW + 8))
    for i in range(0, 8, 2):
        a("v_pk_mul_f32 %s, %s, v[12:13] op_sel_hi:[1,0]" % (vr(OW + i, 2), vr(OW + i, 2)))
    for q in range(4):
        a("v_cvt_pk_bf16_f32 %s, %s, %s" % (vr(16 + q), vr(OW + 2 * q), vr(OW + 2 * q + 1)))
    a("v_and_b32 v16, -2, v16")
    bstore(16, 4, 11, SWS, "s76", 0, "sc1", "ost")
    stamp(11)
    a("v_mov_b32 v2, v14")
    a("v_lshrrev_b32 v3, 3, v0")
    a("""
    v_mul_u32_u24 v4, %d, v3
    s_mul_i32 s72, s60, %d
    s_add_u32 s72, s72, %d
    v_add3_u32 v4, v4, v7, s72
    """ % (PART_STRIDE, 8 * PART_STRIDE, L_W2))
    for j in range(4):
        dsr("ds_read_b128", G + 4 * j, 4, 4, j * W2_REGION, "g")
    a("""
    v_bfe_u32 v4, v0, 2, 2
    v_bfe_u32 v5, v0, 4, 1
    v_lshl_add_u32 v4, v5, 2, v4
    v_lshrrev_b32 v5, 1, v4
    v_lshlrev_b32 v92, 7, v4
    v_lshl_add_u32 v92, v5, 5, v92
    v_lshrrev_b32 v6, 5, v0
    v_lshl_add_u32 v92, v6, 11, v92
    v_and_b32 v4, 3, v0
    v_lshl_add_u32 v92, v4, 3, v92
    s_lshl_b32 s72, s75, 15
    v_add_u32 v92, s72, v92
    v_xor_b32 v93, 32, v92
    v_xor_b32 v94, 64, v92
    v_xor_b32 v95, 0x60, v92
    s_barrier
    """)

    def oloads(first=0):
        for ks in range(first, 8):
            bload(OFR + 4 * ks, 4, 1, SWS, ("s76", "s77", "s80", "s81")[ks >> 1], (ks & 1) * 2048, "sc1", ("o", ks))

    fill = ("""
    s_lshl2_add_u32 s72, s66, s74
    s_lshr_b32 s76, s72, 1
    s_lshl1_add_u32 s76, s76, s75
    s_lshl_b32 s76, s76, 14
    s_and_b32 s72, s72, 1
    s_lshl_b32 s72, s72, 10
    s_add_u32 s76, s76, s72
    s_add_u32 s76, s76, %d
    s_add_u32 s77, s76, 0x1000
    s_add_u32 s80, s76, 0x2000
    s_add_u32 s81, s76, 0x3000
    v_mul_u32_u24 v3, %d, v3
    v_lshl_add_u32 v3, v7, 1, v3
    s_mul_i32 s72, s60, %d
    s_add_u32 s72, s72, %d
    v_add_u32 v3, s72, v3
    v_and_b32 v5, 15, v0
    v_mul_u32_u24 v5, %d, v5
    v_and_b32 v4, 48, v0
    s_mul_i32 s72, s60, %d
    s_add_u32 s72, s72, %d
    v_add3_u32 v5, v5, v4, s72
    s_mov_b32 s82, 0x3f80
    s_mov_b32 s83, 0x3f800000
    """ % (WS_QO, SUM_STRIDE, 8 * SUM_STRIDE, L_SUM, SUM_STRIDE, 16 * SUM_STRIDE, L_SUM)).strip().split("\n")
    gate = ["v_mov_b32 %s, 0" % vr(Z + i) for i in range(8)]
    gate.append(lambda: lg.wait("g"))
    for j in range(5):
        if j == 4:
            gate.append(lambda: vm.wait("xb"))
        for q in range(4):
            src = G + 4 * j + q if j < 4 else 60 + q
            gate.append("v_dot2c_f32_bf16 %s, s82, %s" % (vr(Z + 2 * q), vr(src)))
            gate.append("v_dot2c_f32_bf16 %s, s83, %s" % (vr(Z + 2 * q + 1), vr(src)))
    for q in range(4):
        gate.append("v_lshlrev_b32 %s, 16, %s" % (vr(X + 2 * q), vr(56 + q)))
        gate.append("v_and_b32 %s, s89, %s" % (vr(X + 1 + 2 * q), vr(56 + q)))
    gate += ["v_mul_f32 %s, 0x%x, %s" % (vr(G + i), NLOG2E, vr(Z + i)) for i in range(8)]
    gate += ["v_exp_f32 %s, %s" % (vr(G + i), vr(G + i)) for i in range(8)]
    gate += ["v_add_f32 %s, 1.0, %s" % (vr(G + i), vr(G + i)) for i in range(8)]
    gate += ["v_rcp_f32 %s, %s" % (vr(G + i), vr(G + i)) for i in range(8)]
    gate += ["v_mul_f32 %s, %s, %s" % (vr(Z + i), vr(Z + i), vr(G + i)) for i in range(8)]

    def wo_reads(oat, per):
        for ks in range(8):
            for ct in range(4):
                trread(WOF + (ks * 4 + ct) * 4, 92 + ct, ks * 4096, 1024, ("wo", ks))
                run_shadow(per)
            if ks == oat:
                run_shadow(1000)
                vm.wait("ost")
                oloads()

    vm_t, lg_t = list(vm.items), list(lg.items)
    a("s_cmp_eq_u32 s63, 1")
    a("s_cbranch_scc1 L_tail_b")
    shadow.extend(fill)
    wo_reads(7, 1)
    shadow.extend(gate)
    run_shadow(1000)
    a("s_branch L_tail_j")
    a.label("L_tail_b")
    vm.items, lg.items = vm_t, lg_t
    shadow.extend(fill + gate)
    run_shadow(1000)
    wo_reads(cfg.oat, 0)
    a.label("L_tail_j")
    stamp(12)
    a("s_mov_b32 s73, 0")
    lg.drain()
    for ks in range(8):
        a.label("L_wo_%d" % ks)
        vm.wait(("o", ks))
        a("v_and_b32 v6, 1, %s" % vr(OFR + 4 * ks))
        a("v_cmp_ne_u32 vcc, 0, v6")
        a("s_cbranch_vccnz L_oretry_%d" % ks)
        a.label("L_ogo_%d" % ks)
        for ct in range(4):
            d = AC + 4 * ct
            mfma16(d, WOF + (ks * 4 + ct) * 4, OFR + 4 * ks, None if ks == 0 else d)
    stamp(13)
    for ct in range(4):
        dsw("ds_write_b128", 5, AC + 4 * ct, 4, ct * 64)
    lg.drain()
    a("s_barrier")
    stamp(14)
    dsr("ds_read_b128", SR, 4, 3, 0, 0)
    dsr("ds_read_b128", SR + 8, 4, 3, SUM_SIZE, 0)
    dsr("ds_read_b128", SR + 4, 4, 3, 16, 1)
    dsr("ds_read_b128", SR + 12, 4, 3, SUM_SIZE + 16, 1)
    for h in range(2):
        lg.wait(h)
        for i in range(4 * h, 4 * h + 4, 2):
            a("v_pk_add_f32 %s, %s, %s" % (vr(SR + i, 2), vr(SR + i, 2), vr(SR + 8 + i, 2)))
        for i in range(4 * h, 4 * h + 4, 2):
            a("v_pk_fma_f32 %s, %s, %s, %s" % (vr(SR + i, 2), vr(SR + i, 2), vr(Z + i, 2), vr(X + i, 2)))
        for q in range(2 * h, 2 * h + 2):
            a("v_cvt_pk_bf16_f32 %s, %s, %s" % (vr(G + q), vr(SR + 2 * q), vr(SR + 2 * q + 1)))
    bstore(G, 4, 2, SOUT, "s78", 0, ("", "sc1", "nt", "sc0 sc1", "sc0 sc1 nt")[cfg.omod])
    a("s_or_b32 s72, s2, s60")
    a("s_cmp_lg_u32 s72, 0")
    a("s_cbranch_scc1 L_noepoch")
    set_flag(7, "0")
    a.label("L_noepoch")
    if cfg.stamps:
        a("s_waitcnt vmcnt(0)")
        stamp(15)
        if cfg.probe is not None:
            a("s_sub_u32 s72, %s, s4" % sr(sSTAMP + cfg.probe))
            if cfg.stamps == 2:
                a("s_lshr_b32 s72, s72, 3")
            else:
                a("s_lshl_b32 s72, s72, %d" % cfg.probesh)
            a("s_cmp_lg_u32 s2, %d" % cfg.probewg)
            a("s_cselect_b32 s72, 0, s72")
            a("s_cmp_lg_u32 s60, %d" % cfg.probew)
            a("s_cselect_b32 s72, 0, s72")
            a("s_memrealtime s[22:23]")
            a("s_waitcnt lgkmcnt(0)")
            a("s_mov_b32 s73, s22")
            a.label("L_probe")
            a("s_memrealtime s[22:23]")
            a("s_waitcnt lgkmcnt(0)")
            a("s_sub_u32 s22, s22, s73")
            a("s_cmp_lt_u32 s22, s72")
            a("s_cbranch_scc1 L_probe")
        a("s_lshl3_add_u32 s72, s2, s60")
        a("s_lshl_b32 s72, s72, 6")
        a("s_add_u32 s72, s72, %d" % WS_STAMP)
        for i in range(16):
            a("v_mov_b32 %s, %s" % (vr(80 + i), sr(sSTAMP + i)))
        a("s_mov_b64 exec, 1")
        for i in range(4):
            bstore(80 + 4 * i, 4, 1, SWS, "s72", 16 * i)
    a.label("L_end")
    a("s_endpgm")

    for ks in range(8):
        a.label("L_oretry_%d" % ks)
        a("s_add_u32 s73, s73, 1")
        a("s_cmp_ge_u32 s73, %d" % SPIN_MAX)
        a("s_cbranch_scc1 L_ogo_%d" % ks)
        a("s_waitcnt vmcnt(0)")
        oloads(ks)
        a("s_branch L_wo_%d" % ks)

    for tag, vt, lanes, soff in stubs:
        a.label("L_poll_" + tag)
        a("s_mov_b32 s73, 0")
        a.label("L_poll2_" + tag)
        a("s_sleep %d" % cfg.sleep)
        flag_load(vt, lanes, soff, None)
        a("s_add_u32 s73, s73, 1")
        a("s_waitcnt vmcnt(0)")
        a("s_cmp_ge_u32 s73, %d" % SPIN_MAX)
        a("s_cbranch_scc1 L_polled_" + tag)
        a("v_cmp_ne_u32 vcc, %s, %s" % (sr(sTAG), vr(vt)))
        a("s_cbranch_vccnz L_poll2_" + tag)
        a("s_branch L_polled_" + tag)

    a.label("L_slow")
    CN = SB + 16
    a("s_waitcnt vmcnt(0)")
    a("v_mov_b32 v13, 0xff800000")
    a("s_mov_b32 s82, s83")
    a("s_mov_b32 s81, 64")
    a.label("L_slow1")
    bload(KV, 4, 252, SWS, "s82", 0, "sc1")
    a("s_add_u32 s82, s82, 2048")
    a("s_waitcnt vmcnt(0)")
    mfma32(SB, KV, QR + 12, None)
    for i in range(0, 16, 2):
        a("v_max3_f32 v13, v13, %s, %s" % (vr(SB + i), vr(SB + i + 1)))
    a("s_sub_u32 s81, s81, 1")
    a("s_cmp_lg_u32 s81, 0")
    a("s_cbranch_scc1 L_slow1")
    a("v_mov_b32 v15, v13")
    a("v_permlane32_swap_b32 v15, v13")
    a("v_max_f32 v13, v15, v13")
    for i in range(16):
        a("v_sub_f32 %s, 0, v13" % vr(CN + i))
        a("v_mov_b32 %s, 0" % vr(OW + i))
    a("s_mov_b32 s82, s83")
    a("s_mov_b32 s81, 64")
    a.label("L_slow2")
    kvload(0)
    a("s_waitcnt vmcnt(0)")
    mfma32(SB, KV, QR + 12, CN)
    for i in range(16):
        a("v_exp_f32 %s, %s" % (vr(SB + i), vr(SB + i)))
    smf(OW, KV + 4, SB)
    smf(OW, KV + 8, SB + 8)
    a("s_sub_u32 s81, s81, 1")
    a("s_cmp_lg_u32 s81, 0")
    a("s_cbranch_scc1 L_slow2")
    a("s_branch L_norm")
    a.label("L_code_end")
    a("s_endpgm")

    added = a.fix()
    return a.text().replace('FSH', str(cfg.fsh)).replace('FROW', str(cfg.fsh + 5)), added


HEADER = """; Kernarg layout for this problem (88 bytes, ptrs only, base s[0:1]):
; @launch grid=(256,1,1) block=(512,1,1) lds=163840
.amdgcn_target "amdgcn-amd-amdhsa--gfx950"
.text
.globl {k}
.p2align 8
.type {k},@function
{k}:
"""

FOOTER = """.section .rodata,"a"
.p2align 6
.amdhsa_kernel {k}
  .amdhsa_next_free_vgpr 256
  .amdhsa_next_free_sgpr 102
  .amdhsa_accum_offset 256
  .amdhsa_group_segment_fixed_size 0
  .amdhsa_kernarg_size 88
  .amdhsa_user_sgpr_count 2
  .amdhsa_user_sgpr_kernarg_segment_ptr 1
  .amdhsa_system_sgpr_workgroup_id_x 1
.end_amdhsa_kernel
"""


def build(**kw):
    cfg = Cfg()
    for k, v in kw.items():
        setattr(cfg, k, v)
    body, added = gen(cfg)
    return HEADER.format(k=KERNEL) + body + FOOTER.format(k=KERNEL), added


if __name__ == "__main__":
    out = sys.argv[1] if len(sys.argv) > 1 else "cdna_kernels/%s.s" % NAME
    kw = {}
    for arg in sys.argv[2:]:
        k, v = arg.split("=")
        kw[k] = int(v)
    text, added = build(**kw)
    open(out, "w").write(text)
    print("wrote", out, "lines", text.count("\n"), "nops added", added)
```

```python
import sys
import os
sys.path.insert(0, os.path.dirname(os.path.abspath(__file__)))
from asmlib import Asm, vr, sr

NAME = "recurrent_scan__softmax_full_mha__dense_activation_squared_relu__prompt"
KERNEL = NAME + "_kernel"

WS_FLAGQ = 0x1200
WS_FLAGH = 0x60000
WS_STAMP = 0x10000
WS_QO = 0x100000
WS_KV = 0x300000
WS_HF = 0x700000
WS_END = WS_HF + 86 * 65536
EPOCH_INC = 0x9E3779B9
SPIN_MAX = 1 << 18

L_RING = 65536
L_OPART = 65536
L_W2 = L_OPART + 55296
W2_REGION = 10240
PART_STRIDE = 144
SUM_STRIDE = 272
SUM_SIZE = 64 * SUM_STRIDE
L_SUM = L_OPART

SX, SWQ, SWO, SW1, SB1, SW2, SB2, SOUT, SWS = 24, 28, 32, 36, 40, 44, 48, 52, 56
sW, sCG, sTB, sRW, sP, sQB, sTBF, sCB, sTAG, sCT0 = 60, 61, 62, 63, 64, 65, 66, 67, 68, 69
sVM = 70
sSTAMP = 4

QSCALE = 0x3EB8AA3B
NLOG2E = 0xBFB8AA3B
NS = 22


class Cfg:
    abl = 0
    bst = 0
    n1 = 8
    nA = 21
    gap = 1
    kvi = 4
    dmam = 2
    fpat = 2222
    pf1_at = 12
    w2_at = 10
    stamps = 0
    force_slow = 0
    flag_chunk = 10
    lead = 1
    look = 5
    sleep = 6
    w0_at = 7
    w1_at = 10
    hpre = 2
    hbar = 0
    hnow = 2
    hgap = 2
    hoff = 0
    fsh = 4
    b1at = -10
    sA = 3
    sB = 3
    sC = 7
    alow = 1
    xt = 5
    pfeven = 1
    half = 1
    dlag = 1
    apf = 13
    awo = 20
    awn = 2
    hflag = 11
    probe = None
    omod = 1
    oat = 4
    probewg = 100
    probew = 0
    probesh = 4
    hst = 0


def srd(s):
    return sr(s, 4)


class Queue:
    def __init__(self, a, name, maxn):
        self.a, self.name, self.maxn, self.items = a, name, maxn, []

    def push(self, tag):
        self.items.append(tag)

    def wait(self, *tags):
        last = max((i for i, t in enumerate(self.items) if t in tags), default=-1)
        if last < 0:
            return
        n = len(self.items) - 1 - last
        self.a("s_waitcnt %s(%d)" % (self.name, min(n, self.maxn)))
        self.items = self.items[last + 1:]

    def drain(self):
        self.a("s_waitcnt %s(0)" % self.name)
        self.items = []


def gen(cfg):
    a = Asm()
    nA = cfg.nA
    nB = 32 - nA + cfg.half
    vm = Queue(a, "vmcnt", 63)
    lg = Queue(a, "lgkmcnt", 15)

    def stamp(i, force=False):
        if cfg.bst and not force and i != 0:
            return
        if cfg.stamps and (cfg.probe is None or i in (0, cfg.probe)):
            a("%s s[22:23]" % ("s_memtime" if cfg.stamps == 2 else "s_memrealtime"))
            a("s_waitcnt lgkmcnt(0)")
            a("s_mov_b32 %s, s22" % sr(sSTAMP + i))

    def mfma32(d, x, y, c):
        a("v_mfma_f32_32x32x16_bf16 %s, %s, %s, %s" % (vr(d, 16), vr(x, 4), vr(y, 4), "0" if c is None else vr(c, 16)))

    def mfma16(d, x, y, c):
        a("v_mfma_f32_16x16x32_bf16 %s, %s, %s, %s" % (vr(d, 4), vr(x, 4), vr(y, 4), "0" if c is None else vr(c, 4)))

    def smf(d, x, y):
        a("v_smfmac_f32_32x32x32_bf16 %s, %s, %s, v3" % (vr(d, 16), vr(x, 4), vr(y, 8)))

    def bload(d, n, va, s, so, off=0, mod="", tag=None):
        op = {1: "dword", 2: "dwordx2", 4: "dwordx4"}[n]
        a("buffer_load_%s %s, %s, %s, %s offen offset:%d %s" % (op, vr(d, n), vr(va), srd(s), so, off, mod))
        vm.push(tag)

    def bstore(d, n, va, s, so, off=0, mod="", tag=None):
        op = {1: "dword", 2: "dwordx2", 4: "dwordx4"}[n]
        a("buffer_store_%s %s, %s, %s, %s offen offset:%d %s" % (op, vr(d, n), vr(va), srd(s), so, off, mod))
        vm.push(tag)

    def dma(va, s, so, off=0, tag=None):
        a("buffer_load_dwordx4 %s, %s, %s offen offset:%d lds" % (vr(va), srd(s), so, off))
        vm.push(tag)

    def dsr(op, d, n, va, off, tag=None):
        a("%s %s, %s offset:%d" % (op, vr(d, n), vr(va), off))
        lg.push(tag)

    def dsw(op, va, d, n, off, tag=None):
        a("%s %s, %s offset:%d" % (op, vr(va), vr(d, n), off))
        lg.push(tag)

    def trread(d, va, off, second, tag=None):
        dsr("ds_read_b64_tr_b16", d, 2, va, off, tag)
        dsr("ds_read_b64_tr_b16", d + 2, 2, va, off + second, tag)

    def set_flag(vt, soff):
        a("v_mov_b32 %s, %s" % (vr(vt), sr(sTAG)))
        a("s_mov_b64 exec, 1")
        bstore(vt, 1, 1, SWS, soff, 0, "sc0 sc1")
        a("s_mov_b64 exec, -1")

    stubs = []

    def check_flags(tag, vt, lanes, soff):
        a("v_cmp_ne_u32 vcc, %s, %s" % (sr(sTAG), vr(vt)))
        a("s_cbranch_vccnz L_poll_" + tag)
        a.label("L_polled_" + tag)
        stubs.append((tag, vt, lanes, soff))

    def flag_load(vt, shift, soff, tag):
        a("v_and_b32 %s, 31, v0" % vr(vt))
        a("v_lshlrev_b32 %s, %d, %s" % (vr(vt), shift, vr(vt)))
        bload(vt, 1, vt, SWS, soff, 0, "sc0 sc1", tag)

    sizes = {SX: 2048 * 1024, SWQ: 512 * 3072, SWS: WS_END, SW1: 512 * 2752, SB1: 2752,
             SWO: 512 * 1024, SW2: 1376 * 1024, SB2: 1024, SOUT: 2048 * 1024}
    RAW = 128

    def xloads():
        for j in range(8):
            bload(RAW + j * 4, 4, 14, SX, "s101", j * 128, "", ("x", j))

    stamp(0)
    a("""
    s_load_dwordx2 s[24:25], s[0:1], 0
    s_getpc_b64 s[72:73]
    L_pc:
    s_cmpk_ge_u32 s2, 256
    s_cbranch_scc1 L_end
    s_lshr_b32 s74, s2, 3
    s_lshl_b32 s74, s74, 11
    v_lshrrev_b32 v8, 5, v0
    v_lshl_add_u32 v8, v8, 7, s74
    v_min_u32 v8, L_code_end-L_pc, v8
    v_mov_b32 v9, 0
    v_lshl_add_u64 v[8:9], v[8:9], 0, s[72:73]
    global_load_dword v7, v[8:9], off
    s_lshl_b32 s72, s2, 4
    s_and_b32 s72, s72, 0x180
    v_add_u32 v4, s72, v0
    v_bfe_u32 v4, v4, 3, 6
    v_and_b32 v5, 7, v0
    v_lshlrev_b32 v14, 10, v4
    v_lshl_add_u32 v14, v5, 4, v14
    s_lshr_b32 s67, s2, 5
    s_and_b32 s73, s2, 6
    s_lshl2_add_u32 s62, s73, s67
    s_lshl_b32 s101, s62, 16
    s_mov_b32 s26, %d
    s_mov_b32 s27, 0x20000
    v_bfe_u32 v24, v4, 1, 3
    v_xor_b32 v24, v24, v5
    v_lshlrev_b32 v15, 7, v4
    v_lshl_add_u32 v15, v24, 4, v15
    v_readfirstlane_b32 s60, v0
    v_and_b32 v0, 63, v0
    v_and_b32 v26, 3, v0
    v_mov_b32 v29, 0
    s_lshr_b32 s60, s60, 6
    s_cmp_ge_u32 s60, 4
    s_waitcnt lgkmcnt(0)
    """ % sizes[SX])
    vm.push("pf")
    if cfg.bst == 3:
        stamp(1, True)
    xloads()
    if cfg.bst == 3:
        stamp(2, True)
    if cfg.stamps:
        for i in range(3 if cfg.bst == 3 else 1, 16):
            a("s_mov_b32 %s, s4" % sr(sSTAMP + i))
    a("s_mov_b32 s63, 1")
    a("s_cbranch_scc1 L_ln")
    a("s_mov_b32 s63, 0")

    def setup1():
        for s, off in ((SWQ, 8), (SWS, 80), (SW1, 32), (SB1, 40), (SWO, 16), (SW2, 48), (SB2, 56), (SOUT, 64)):
            a("s_load_dwordx2 %s, s[0:1], %d" % (sr(s, 2), off))
        a("""
        s_mov_b32 s30, %d
        s_mov_b32 s31, 0x20000
        s_bfe_u32 s72, s2, 0x20003
        s_and_b32 s73, s2, 1
        s_lshl2_add_u32 s61, s73, s72
        s_and_b32 s74, s60, 3
        s_lshl_b32 s72, s61, 7
        s_mul_i32 s85, s74, %d
        s_add_u32 s85, s85, s72
        s_mul_i32 s87, s74, 6144
        s_add_u32 s87, s87, %d
        v_lshrrev_b32 v4, 3, v0
        v_bfe_u32 v6, v4, 1, 1
        v_lshlrev_b32 v6, 2, v6
        v_xor_b32 v6, v6, v5
        v_lshlrev_b32 v6, 4, v6
        v_mul_u32_u24 v13, 3072, v4
        v_add_u32 v13, v13, v6
        v_xor_b32 v33, 16, v13
        s_waitcnt lgkmcnt(0)
        """ % (sizes[SWQ], 16 * 3072, L_RING))

    def setup_pf(srds):
        for s in srds:
            a("s_mov_b32 %s, %d" % (sr(s + 2), sizes[s]))
            a("s_mov_b32 %s, 0x20000" % sr(s + 3))
        if cfg.pfeven:
            a("; memory-side prefetches are issued by even workgroups only, 22 lines per wave")
            a("""
            s_and_b32 s73, s60, 3
            s_lshl1_add_u32 s100, s2, s73
            s_mul_i32 s100, s100, 2816
            s_bitcmp1_b32 s2, 0
            s_cselect_b32 s100, 0x40000000, s100
            v_min_u32 v31, 21, v0
            v_lshlrev_b32 v31, 7, v31
            """)
        else:
            a("""
            s_and_b32 s73, s60, 3
            s_lshl2_add_u32 s100, s2, s73
            s_mul_i32 s100, s100, 1536
            v_min_u32 v31, 11, v0
            v_lshlrev_b32 v31, 7, v31
            """)

    def setup2():
        a("s_load_dword %s, %s, 0" % (sr(sTAG), sr(SWS, 2)))
        for s in (SWS, SB1, SB2, SOUT):
            a("s_mov_b32 %s, %d" % (sr(s + 2), sizes[s]))
            a("s_mov_b32 %s, 0x20000" % sr(s + 3))
        a("""
        s_bfe_u32 s72, s2, 0x20003
        s_and_b32 s73, s2, 7
        s_lshl2_add_u32 s66, s73, s72
        s_and_b32 s72, s72, 1
        s_lshl1_add_u32 s64, s73, s72
        s_lshr_b32 s65, s2, 4
        s_mul_i32 s69, s61, 6
        s_mul_i32 s73, s61, 5
        s_add_u32 s73, s73, 3
        s_min_u32 s69, s69, s73
        s_mov_b32 s70, 0xffff
        s_mov_b32 s71, 0xffff
        v_lshlrev_b32 v1, 4, v0
        v_and_b32 v2, 15, v0
        v_lshrrev_b32 v3, 5, v0
        v_lshl_add_u32 v2, v3, 4, v2
        v_lshlrev_b32 v2, 4, v2
        """)

    def setup3():
        a("; attention offsets: s82 = next K/V tile, s83 = head base, s92-s95 = Q tiles, s96-s99 = O partial slots")
        a("""
        s_and_b32 s74, s60, 1
        s_lshr_b32 s75, s60, 1
        s_lshl1_add_u32 s72, s64, s74
        s_lshl_b32 s83, s72, 17
        s_add_u32 s83, s83, %d
        s_and_b32 s73, s75, 1
        s_lshl_b32 s73, s73, 16
        s_add_u32 s82, s83, s73
        s_lshl_b32 s72, s65, 6
        s_add_u32 s72, s72, s64
        s_lshl1_add_u32 s72, s72, s74
        s_lshl_b32 s72, s72, 10
        s_add_u32 s72, s72, %d
        s_mul_i32 s84, s74, %d
        s_add_u32 s84, s84, %d
        """ % (WS_KV, WS_QO, 12 * 2304, L_OPART))
        for t in range(4):
            a("s_xor_b32 s73, s75, %d" % (t ^ 3))
            a("s_mul_i32 %s, s73, %d" % (sr(96 + t), 3 * 2304))
            a("s_lshl_b32 s73, s73, 15")
            a("s_add_u32 %s, s72, s73" % sr(92 + t))
            a("s_add_u32 %s, %s, s84" % (sr(96 + t), sr(96 + t)))

    setup1()
    setup_pf((SWO, SW2))
    setup2()
    a("s_and_b32 s74, s60, 1")
    a("s_lshr_b32 s75, s60, 1")
    a("""
    v_bfe_u32 v9, v0, 4, 1
    v_and_b32 v16, 15, v0
    v_lshlrev_b32 v8, 4, v16
    v_lshl_add_u32 v8, v9, 9, v8
    v_lshl_add_u32 v11, v3, 17, v8
    v_lshl_add_u32 v14, v3, 10, v8
    v_lshl_add_u32 v127, v3, 16, v8
    v_lshrrev_b32 v17, 4, v0
    v_bfe_u32 v8, v0, 3, 1
    v_lshlrev_b32 v12, 4, v5
    v_lshl_add_u32 v12, v17, 8, v12
    v_lshl_add_u32 v12, v8, 17, v12
    v_lshrrev_b32 v8, 1, v16
    v_xor_b32 v8, v8, v17
    v_lshlrev_b32 v16, 7, v16
    v_lshl_add_u32 v16, v8, 4, v16
    s_lshl_b32 s72, s74, 12
    v_add_u32 v16, s72, v16
    v_xor_b32 v17, 64, v16
    v_mov_b32 v125, v31
    v_and_b32 v126, 6, v4
    v_xor_b32 v126, v126, v5
    v_lshlrev_b32 v126, 4, v126
    v_lshl_add_u32 v126, v4, 10, v126
    v_lshl_add_u32 v4, v4, 10, v6
    v_bfe_u32 v10, v0, 2, 2
    v_lshrrev_b32 v6, 1, v10
    v_xor_b32 v8, s75, v6
    v_and_b32 v18, 2, v0
    v_lshl_add_u32 v8, v8, 2, v18
    v_add_u32 v8, v8, v9
    v_lshlrev_b32 v8, 1, v8
    v_and_or_b32 v8, v0, 1, v8
    v_lshlrev_b32 v8, 3, v8
    v_lshl_add_u32 v8, v10, 7, v8
    v_lshl_add_u32 v8, v9, 10, v8
    v_mul_u32_u24 v18, 6144, v3
    v_add_u32 v8, v8, v18
    v_add_u32 v8, %d, v8
    v_xor_b32 v18, 16, v8
    v_add_u32 v19, %d, v18
    v_lshlrev_b32 v5, 5, v9
    v_lshl_add_u32 v5, v10, 7, v5
    v_and_b32 v10, 3, v0
    v_lshl_add_u32 v5, v10, 3, v5
    v_lshl_add_u32 v5, v3, 9, v5
    v_lshl_add_u32 v5, v6, 6, v5
    v_lshrrev_b32 v10, 1, v0
    v_xor_b32 v10, v10, v0
    v_and_b32 v10, 1, v10
    v_mul_u32_u24 v10, 24, v10
    v_xor_b32 v5, v5, v10
    s_mul_i32 s84, s60, %d
    s_add_u32 s84, s84, %d
    v_add_u32 v5, s84, v5
    v_xor_b32 v6, 64, v5
    v_lshlrev_b32 v10, 3, v9
    v_lshl_add_u32 v10, v3, 5, v10
    v_xor_b32 v9, 16, v19
    v_mov_b32 v3, 0xdddddddd
    """ % (L_RING, 2 * 24576, W2_REGION, L_W2))

    def setup_a():
        setup3()
        a("s_add_u32 s82, s82, %d" % ((32 - nA) * 2048))
        a("s_mul_i32 s84, s60, %d" % W2_REGION)
        a("s_add_u32 s84, s84, %d" % L_W2)
        a("""
        s_lshl1_add_u32 s72, s62, s74
        s_lshl1_add_u32 s73, s61, s75
        s_lshl_b32 s76, s73, 7
        s_add_u32 s76, s76, s72
        s_lshl_b32 s77, s76, 11
        s_lshl4_add_u32 s76, s72, s73
        s_lshl_b32 s76, s76, 11
        s_add_u32 s76, s76, %d
        s_add_u32 s77, s77, %d
        s_add_u32 s81, s69, s75
        s_lshl_b32 s78, s81, 7
        s_add_u32 s78, s78, s72
        s_lshl_b32 s78, s78, 10
        s_add_u32 s78, s78, %d
        s_lshl_b32 s79, s61, 6
        s_add_u32 s79, s79, s62
        s_lshl_b32 s79, s79, 4
        s_add_u32 s79, s79, %d
        s_lshl_b32 s80, s62, 3
        s_add_u32 s80, s80, s61
        s_lshl2_add_u32 s80, s80, s60
        s_lshl_b32 s80, s80, FSH
        s_add_u32 s80, s80, %d
        s_mul_i32 s73, s61, s75
        s_add_u32 s88, s78, %d
        s_cmp_lt_u32 s73, 3
        s_cselect_b32 s88, s88, 0x40000000
        """ % (WS_QO, WS_KV, WS_HF, WS_FLAGQ, WS_FLAGH, 8 * 65536))


    def slot_of(c):
        return (c & 3) * 24576

    def issue_chunk(c):
        stride = 3072 if c < 8 else 2752
        a("s_xor_b32 s73, s67, %d" % (c & 7))
        a("s_mul_i32 s73, s73, %d" % (64 * stride))
        a("s_add_u32 s73, s73, %s" % ("s85" if c < 8 else "s80"))
        for m in range(6):
            blk, seg = divmod(m, 3)
            a("s_add_u32 m0, s87, %d" % (slot_of(c) + seg * 2048 + blk * 1024))
            a("s_add_u32 s72, s73, %d" % (blk * 8 * stride + seg * (1024 if c < 8 else 128)))
            if c < 8:
                dma(33 if blk else 13, SWQ, "s72", 0, ("w", c))
            else:
                dma(56 + (seg == 2) + 2 * blk, SW1, "s72", 0, ("w", c))

    def layernorm(acts):
        def act(p):
            if acts.get(p):
                assert p >= 7
                a("s_cmp_eq_u32 s63, 1")
                a("s_cbranch_scc1 L_ln_%d" % p)
                for f in acts[p]:
                    f()
                a.label("L_ln_%d" % p)
        a.label("L_ln")
        a("""
        v_mov_b32 v232, 0x3f803f80
        v_mov_b32 v233, 0x3f803f80
        v_lshlrev_b32 v26, 4, v26
        v_mov_b32 v28, 0xffff
        v_lshlrev_b64 v[28:29], v26, v[28:29]
        """)
        a("s_mov_b32 s89, 0xffff0000")
        a("s_lshl_b32 s72, s67, 13")
        a("v_or_b32 v15, s72, v15")

        def xwrite(j):
            a("v_xor_b32 v23, 0x%x, v15" % (j << 13))
            a("ds_write_b128 v23, %s" % vr(RAW + j * 4, 4))

        def m4(d, x, y, c):
            a("v_mfma_f32_4x4x4_16b_bf16 %s, %s, %s, %s" % (vr(d, 4), vr(x, 2), vr(y, 2), "0" if c is None else vr(c, 4)))

        S, GM, T, CN, AH = 208, 216, 192, 224, 228
        for j in range(8):
            vm.wait(("x", j))
            if cfg.bst == 3 and j in (0, 3, 7):
                stamp({0: 4, 3: 5, 7: 6}[j], True)
            if j == 7:
                act(7)
            for h in range(2):
                x = RAW + j * 4 + 2 * h
                m4(S + 4 * h, 232, x, S + 4 * h if j else None)
                m4(GM + 4 * h, x, x, GM + 4 * h if j else None)
        act(8)
        stamp(1)
        a("v_add_f32 v24, %s, %s" % (vr(S), vr(S + 4)))
        for r in range(4):
            a("v_add_f32 %s, %s, %s" % (vr(GM + r), vr(GM + r), vr(GM + 4 + r)))
        dpp = "row_mask:0xf bank_mask:0xf"
        a("v_add_f32_dpp v24, v24, v24 quad_perm:[1,0,3,2] " + dpp)
        a("v_mov_b32_dpp v25, %s quad_perm:[0,0,0,0] %s" % (vr(GM), dpp))
        a("v_add_f32_dpp v25, %s, v25 quad_perm:[1,1,1,1] %s" % (vr(GM + 1), dpp))
        a("v_add_f32_dpp v24, v24, v24 quad_perm:[2,3,0,1] " + dpp)
        a("v_add_f32_dpp v25, %s, v25 quad_perm:[2,2,2,2] %s" % (vr(GM + 2), dpp))
        a("v_add_f32_dpp v25, %s, v25 quad_perm:[3,3,3,3] %s" % (vr(GM + 3), dpp))
        a("v_add_f32_dpp v24, v24, v24 row_half_mirror " + dpp)
        a("v_add_f32_dpp v25, v25, v25 row_half_mirror " + dpp)
        a("""
        v_mul_f32 v24, 0x3b000000, v24
        v_mul_f32 v25, 0x3b000000, v25
        v_fma_f32 v25, -v24, v24, v25
        v_max_f32 v25, 0, v25
        v_cvt_pk_bf16_f32 v24, v24, v25
        v_and_b32 v25, s89, v24
        v_add_f32 v25, 0x3727c5ac, v25
        v_cvt_pk_bf16_f32 v25, v25, v25
        v_and_b32 v25, s89, v25
        v_sqrt_f32 v25, v25
        v_lshlrev_b32 v24, 16, v24
        v_cvt_pk_bf16_f32 v25, v25, v25
        v_and_b32 v25, s89, v25
        v_rcp_f32 v26, v25
        v_cvt_pk_bf16_f32 v27, v26, v26
        v_and_b32 v25, s89, v27
        v_sub_f32 v25, v26, v25
        v_cvt_pk_bf16_f32 v25, v25, v25
        v_and_b32 v228, v27, v28
        v_and_b32 v229, v27, v29
        v_and_b32 v230, v25, v28
        v_and_b32 v231, v25, v29
        """)
        for r in range(4):
            a("v_mul_f32_e64 %s, -v24, v26" % vr(CN + r))

        def finish(j, q):
            t = T + 8 * (j & 1)
            a("v_cvt_pk_bf16_f32 %s, %s, %s" % (vr(RAW + 4 * j + q), vr(t + 2 * q), vr(t + 2 * q + 1)))
            if q == 3:
                xwrite(j)

        for j in range(9):
            for q in range(4):
                if j < 8:
                    t = T + 8 * (j & 1) + 4 * (q & 1)
                    m4(t, AH + 2 * (q >> 1), RAW + 4 * j + 2 * (q & 1), CN if q < 2 else t)
                if j:
                    finish(j - 1, q)
        if cfg.bst == 3:
            stamp(7, True)
        act(9)
        act(10)
        stamp(2)
        if cfg.bst == 3:
            stamp(8, True)

    def pf1():
        a("; memory-side prefetch of W1")
        bload(32, 1, 31, SW1, "s100", 0, "", "pf")

    def b1loads():
        a("s_lshr_b32 s3, s60, 1")
        a("s_add_u32 s3, s3, s69")
        a("s_lshl_b32 s3, s3, 6")
        for q in range(6):
            bload(112 + 2 * q, 2, 10, SB1, "s3", (q >> 1) * 128 + (q & 1) * 16, "", "b1")

    acts = {}
    for c, p in enumerate((cfg.w0_at, cfg.w1_at, cfg.w2_at, 10)[:cfg.lead + 1]):
        acts.setdefault(p, []).append(lambda c=c: issue_chunk(c))
    if cfg.b1at < 0:
        acts.setdefault(-cfg.b1at, []).insert(0, b1loads)
    layernorm(acts)
    a("s_cmp_eq_u32 s63, 1")
    a("s_cbranch_scc1 L_loader")

    QR, SB, WF, FA, OA, KV, HB = 8, 24, 56, 64, 128, 192, 228
    NKV = 3

    def att_init_ops():
        ops = ["v_mov_b32 %s, 0" % vr(OA + 16 * t + i) for t in range(4) for i in range(16)]
        ops2 = ["v_and_b32 v7, 27, v0", "v_cmp_eq_u32 vcc, 16, v7", "v_mov_b32 v7, 0x3f803f80", "v_cndmask_b32 v7, 0, v7, vcc"]
        ops2 += ["v_mov_b32 %s, v7" % vr(KV + 12 * b + 4 + q) for b in range(NKV) for q in range(8)]
        return ops, ops2

    XKV = (72, 84)
    kvplan = {"xt": None}

    def kvreg(j):
        xt = kvplan["xt"]
        if xt is not None and j in (xt, xt + 1):
            return XKV[j - xt]
        return KV + 12 * ((j - 2 if xt is not None and j > xt else j) % NKV)

    def kvsched(n):
        at, pos = {}, 0
        for j in range(NKV, n):
            prev = [p for p in range(j) if kvreg(p) == kvreg(j)]
            pos = max(pos + 1, 4 * (prev[-1] + 1) if prev else 0)
            at[(pos >> 2, pos & 3)] = j
        return at

    def kvload(j):
        r = kvreg(j)
        bload(r, 4, 252, SWS, "s82", 0, "sc1", ("kv", j))
        a("s_mov_b64 exec, %s" % sr(sVM, 2))
        bload(r + 4, 4, 2, SWS, "s82", 1024, "sc1", ("kv", j))
        bload(r + 8, 4, 2, SWS, "s82", 1536, "sc1", ("kv", j))
        a("s_mov_b64 exec, -1")
        a("s_add_u32 s82, s82, %d" % (2048 * (nA if j == kvplan.get("jump") else 1)))

    def att_loads(role):
        a("; key slot 8a+4b+c holds token 16b+4a+c, matching the order of the V fragments")
        a("v_and_b32 v252, 0x230, v1")
        a("v_and_b32 v253, 0x180, v1")
        a("v_lshrrev_b32 v253, 1, v253")
        a("v_and_b32 v254, 64, v1")
        a("v_lshlrev_b32 v254, 2, v254")
        a("v_or3_b32 v252, v252, v253, v254")
        bload(QR, 4, 1, SWS, "s92", 0, "sc1", "q")
        kvload(0)
        for t in range(1, 4):
            bload(QR + 4 * t, 4, 1, SWS, sr(92 + t), 0, "sc1", "q")
        kvload(1)
        if role == "a":
            kvload(2)

    def dump_addr():
        a("v_lshlrev_b32 v8, 2, v0")
        a("v_add_u32 v9, s99, v1")
        a("v_add_u32 v10, s99, v8")
        a("v_bfe_u32 v11, v0, 4, 1")
        a("v_lshl_add_u32 v11, v11, 10, v2")

    def dump(t):
        a("v_add_u32 v12, %s, v1" % sr(96 + t))
        a("v_add_u32 v13, %s, v8" % sr(96 + t))
        dsw("ds_write_b128", 12, OA + 16 * t, 4, t * 2304)
        dsw("ds_write_b128", 12, OA + 16 * t + 4, 4, t * 2304 + 1024)
        dsw("ds_write_b32", 13, OA + 16 * t + 8, 1, t * 2304 + 2048)

    deferred = []
    cfg_gap = {0: range(16), 1: (1, 10), 2: (0, 9), 3: (4, 10), 4: (1,), 5: (4,), 6: (15, 9)}[cfg.gap]

    def tiles_of(n):
        return [(j, t) for j in range(n) for t in range(4) if not (cfg.half and j == n - 1 and t < 2)]

    def att_run(n, hooks):
        tiles = tiles_of(n)
        last = {t: max(p for p, jt in enumerate(tiles) if jt[1] == t) for t in range(4)}
        hooks.setdefault(tiles[last[0]] + (11,), []).append(dump_addr)
        for t in range(3):
            hooks.setdefault(tiles[last[t] + (cfg.dlag if t < 2 and cfg.half else 1)] + (12,), []).append(lambda t=t: dump(t))
        assert all(k[:2] in tiles for k in hooks)
        vm.wait("q", ("kv", 0))
        mfma32(SB, KV, QR, None)
        loads = kvsched(n)
        for p, (j, t) in enumerate(tiles):
            cur, oth = SB + 16 * (p & 1), SB + 16 * ((p + 1) & 1)
            for i in range(16):
                a("v_exp_f32 %s, %s" % (vr(cur + i), vr(cur + i)))
                if i in cfg_gap:
                    while deferred:
                        deferred.pop(0)()
                if i == cfg.kvi and (j, t) in loads and not cfg.abl & 32:
                    kvload(loads[(j, t)])
                if i == 1 and p:
                    smf(OA + 16 * tiles[p - 1][1], kvreg(tiles[p - 1][0]) + 8, oth + 8)
                if i == 4 and p + 1 < len(tiles):
                    nj, nt = tiles[p + 1]
                    vm.wait(("kv", nj))
                    mfma32(oth, kvreg(nj), QR + 4 * nt, None)
                if i == 10:
                    smf(OA + 16 * t, kvreg(j) + 4, cur)
                for h in hooks.get((j, t, i), ()):
                    h()
        smf(OA + 48, kvreg(n - 1) + 8, SB + 16 + 8)

    ACC = (24, 40, 56)
    WB, NBUF, LA = 72, 6, cfg.look
    XF, PK, XA = 128, 96, 16
    init1, init2 = att_init_ops()

    def item(g):
        kk, m = divmod(g % 96, 6)
        return kk, m >> 1, m & 1

    def reads(g, part=None):
        kk, seg, ab = item(g)
        so = slot_of(g // 12)
        base = (8, 18)[ab] + so // 49152
        off = so % 49152 + (kk & 1) * 12288 + seg * 2048
        for h in range(2):
            if part in (None, h):
                if g < 96 and seg == 0 and ab == 0:
                    dsr("ds_read_b128", XF + 8 * kk + 4 * h, 4, XA + (kk & 1), (kk >> 1) * 8192 + h * 2048, g)
                dsr("ds_read_b64_tr_b16", WB + 4 * (g % NBUF) + 2 * h, 2, base, off + 512 * h, g)

    def pack(acc, pk):
        return ["v_cvt_pk_bf16_f32 %s, %s, %s" % (vr(pk + q), vr(acc + 2 * q), vr(acc + 2 * q + 1)) for q in range(8)]

    def st2(pk, va, base, delta, tag, imm=(0, 0), vb=None):
        def first():
            bstore(pk, 4, va, SWS, base, imm[0], "sc1", tag)

        def second():
            if delta:
                a("s_add_u32 s72, %s, %d" % (base, delta))
            bstore(pk + 4, 4, vb or va, SWS, "s72" if delta else base, imm[1], "sc1", tag)
        return [first, second]

    def relu2(acc):
        return (["v_max_f32 %s, 0, %s" % (vr(acc + i), vr(acc + i)) for i in range(16)]
                + ["v_mul_f32 %s, %s, %s" % (vr(acc + i), vr(acc + i), vr(acc + i)) for i in range(16)])

    def bias(seg):
        ops = [lambda: vm.wait("b1")]
        for q in range(4):
            ops.append("v_lshlrev_b32 %s, 16, %s" % (vr(ACC[seg] + 2 * q), vr(112 + 4 * seg + q)))
            ops.append("v_and_b32 %s, s89, %s" % (vr(ACC[seg] + 2 * q + 1), vr(112 + 4 * seg + q)))
        return ops

    tagq = ["v_or_b32 %s, 1, %s" % (vr(PK + 4 * q), vr(PK + 4 * q)) for q in range(2)]
    qkv_epi = (["v_mul_f32 %s, 0x%x, %s" % (vr(ACC[0] + i), QSCALE, vr(ACC[0] + i)) for i in range(16)]
               + pack(ACC[0], PK) + tagq + st2(PK, 14, "s76", 0, "st", (0, 256))
               + pack(ACC[1], PK + 8) + st2(PK + 8, 11, "s77", 0, "st", (0, 256))
               + pack(ACC[2], PK) + st2(PK, 12, "s77", 0, "st", (1024, 1152))
               + bias(0) + bias(1) + bias(2))
    sched = {108 + 12 * t: init1[16 * t:16 * t + 16] for t in range(4)}
    sched[174] = init2
    shadow = []

    def run_shadow(budget):
        while shadow and budget > 0:
            op = shadow.pop(0)
            if isinstance(op, str):
                a(op)
                budget -= 1
            else:
                op()
                budget -= 3

    mark = len(a.items)
    setup_a()
    a("""
    s_lshl_b32 s85, s60, 14
    s_lshl_b32 s72, s67, 7
    s_add_u32 s85, s85, s72
    s_lshl_b32 s86, s60, 6
    s_lshl1_add_u32 s86, s66, s86
    s_lshl_b32 s86, s86, 10
    s_add_u32 s86, s86, %d
    s_lshl_b32 s87, s66, FROW
    s_add_u32 s87, s87, %d
    """ % (WS_HF, WS_FLAGH))
    sched[0] = [v.text for k, v in a.items[mark:] if k == "ins"]
    del a.items[mark:]
    vm.wait(("w", 0))
    a("s_waitcnt lgkmcnt(0)")
    a("s_add_u32 %s, %s, 0x%x" % (sr(sTAG), sr(sTAG), EPOCH_INC))
    if cfg.bst == 3:
        stamp(9, True)
    a("s_barrier")
    stamp(3)
    if cfg.bst == 3:
        stamp(10, True)
    for g in range(LA):
        reads(g)
    for g in range(192):
        kk, seg, ab = item(g)
        if g == 96:
            stamp(4)
            shadow.extend(qkv_epi)
            run_shadow(1000)
            stamp(5)
            a("s_barrier")
            for n in range(96, 96 + LA):
                reads(n)
        lg.wait(g)
        w = WB + 4 * (g % NBUF)
        n = g + LA
        more = n < 192 and not g < 96 <= n
        shadow.extend(sched.get(g, ()))
        for h, t in enumerate((1, 0)):
            x = XF + 8 * kk + 4 * t
            if g < 96 and seg == 2:
                d = ACC[seg] + 8 * ab + 4 * t
                mfma16(d, x, w, None if kk == 0 else d)
            else:
                d = ACC[seg] + 8 * t + 4 * ab
                mfma16(d, w, x, d if kk else (None if g < 96 else ACC[seg] + 4 * ab))
            if more and h == 0 and n % 12 == 0:
                vm.wait(("w", n // 12))
                if n // 12 == cfg.flag_chunk:
                    vm.wait("st")
                a("s_barrier")
                if n // 12 == cfg.flag_chunk:
                    a("s_cmp_lg_u32 s60, 0")
                    a("s_cselect_b32 s79, 0x40000000, s79")
                    set_flag(7, "s79")
                    stamp(6)
            if more:
                reads(n, h)
            run_shadow((1 - h if g < 96 else 1) if more else 2)
        if g == cfg.b1at:
            b1loads()
    run_shadow(1000)
    stamp(7)
    hmath, hst = [], []
    for seg in range(3):
        pk = PK + 8 * seg
        hmath.append(relu2(ACC[seg]) + pack(ACC[seg], pk))
        hst.append((["s_add_u32 s78, s78, 0x40000"] if seg == 1 else []) + st2(pk, 127, "s78" if seg < 2 else "s88", 0, "hst", (0, 256)))
    for seg in range(cfg.hbar):
        shadow.extend(hmath[seg])
    run_shadow(1000)
    a("s_barrier")
    stamp(8)
    if cfg.bst == 4:
        stamp(1, True)
    a("s_setprio 2")
    for seg in range(cfg.hbar, cfg.hpre):
        shadow.extend(hmath[seg])
    run_shadow(1000)
    att_loads("a")
    if cfg.xt:
        for r in XKV:
            for q in range(8):
                a("v_mov_b32 %s, v7" % vr(r + 4 + q))
    hlist = [[hst[0][0]], [hst[0][1]], hst[1][:2], [hst[1][2]], [hst[2][0]], [hst[2][1]]]
    for seg in range(3):
        shadow.extend(hmath[seg] if seg >= max(cfg.hpre, cfg.hbar) else [])
        for n in (2 * seg, 2 * seg + 1):
            if n < cfg.hnow:
                shadow.extend(hlist[n])
    run_shadow(1000)
    stamp(9)


    def w2dma(i):
        if cfg.abl & 129:
            return
        a("s_add_u32 m0, s84, %d" % ((i & 3) * 2048))
        a("s_add_u32 s72, s85, %d" % (i * 65536))
        dma(4, SW2, "s72", 0, ("w2", i))
        a("s_add_u32 s72, s72, 7168")
        dma(4, SW2, "s72", 1024, ("w2", i))

    hreg = lambda i, tt: HB + 8 * (i % 3) + 4 * tt

    def hload(i):
        if cfg.abl & 257:
            return
        if i > 0:
            a("s_add_u32 s86, s86, 0x40000")
        for tt in range(2):
            bload(hreg(i, tt), 4, 1, SWS, "s86", tt * 1024, "sc1", ("h", i))

    def w2read(i, nt):
        if cfg.abl & 2:
            return
        vm.wait(("w2", i))
        trread(WF + 4 * nt, 5 + nt, (i & 3) * 2048, 1024, ("wf", i, nt))

    def fslot(f):
        i, m = divmod(f, 4)
        nt, tt = ((0, 0), (0, 1), (1, 1), (1, 0))[m]
        vm.wait(("h", i))
        lg.wait(("wf", i, nt))
        d = FA + 16 * (2 * tt + nt)
        if not cfg.abl & 4:
            mfma32(d, WF + 4 * nt, hreg(i, tt), None if i == 0 else d)
        if m == 1 and i + 1 < NS:
            deferred.append(lambda: w2read(i + 1, 0))
        if m == cfg.dmam and i + 4 < NS:
            deferred.append(lambda: w2dma(i + 4))
        if m == 3:
            if i + 1 < NS:
                deferred.append(lambda: w2read(i + 1, 1))
            if i + 3 < NS:
                deferred.append(lambda: hload(i + 3))

    def park(tt, nt):
        d = FA + 16 * (2 * tt + nt)
        for q in range(8):
            a("v_cvt_pk_bf16_f32 %s, %s, %s" % (vr(d + q), vr(d + 2 * q), vr(d + 2 * q + 1)))
        for q in range(2):
            dsw("ds_write_b128", 4, d + 4 * q, 4, tt * 32 * PART_STRIDE + nt * 64 + q * 32)

    def park_addr():
        a("v_and_b32 v4, 31, v0")
        a("v_mul_u32_u24 v4, %d, v4" % PART_STRIDE)
        a("v_lshrrev_b32 v5, 5, v0")
        a("v_lshl_add_u32 v4, v5, 4, v4")
        a("v_add_u32 v4, s84, v4")

    hooks = {}

    def hook(j, t, i, f):
        hooks.setdefault((j, t, i), []).append(f)

    n1 = cfg.n1
    for n in range(cfg.hnow, 6):
        tl = (n - cfg.hnow) * cfg.hgap + cfg.hoff
        hook(tl >> 2, tl & 3, 9, lambda n=n: (shadow.extend(hlist[n]), run_shadow(1000)))
    assert (5 - cfg.hnow) * cfg.hgap + cfg.hoff <= cfg.hflag < 4 * (n1 - 2)
    hook(cfg.hflag >> 2, cfg.hflag & 3, 12, lambda: (vm.wait("hst"), set_flag(7, "s80"), stamp(1) if cfg.hst else None))
    hook(n1 - 2, 0, 8, lambda: flag_load(7, cfg.fsh, "s87", "hf"))
    hook(n1 - 2, 3, 12, lambda: (vm.wait("hf"), stamp(2) if cfg.hst else None, check_flags("h", 7, cfg.fsh, "s87"), stamp(3) if cfg.hst else None))
    for i in range(4):
        hook(n1 - 3 + (i >> 1), 1 + (i & 1), 7, lambda i=i: w2dma(i))
    for i in range(3):
        hook(n1 - 1, i, 7, lambda i=i: hload(i))
    hook(n1 - 1, 3, 7, lambda: (w2read(0, 0), w2read(0, 1)))
    pat = [int(ch) for ch in str(cfg.fpat)]
    slots = [(j, t, pos) for j in range(n1, nA) for t in range(4) for pos in ((13,), (7, 13))[pat[t] - 1]]
    for f in range(4 * NS):
        hook(*slots[f], lambda f=f: fslot(f))
    rest = [jt for jt in tiles_of(nA) if jt > slots[4 * NS - 1][:2]]
    hook(*rest[0], 6, park_addr)
    for n, (nt, tt) in enumerate(((0, 0), (0, 1), (1, 1), (1, 0))):
        hook(*rest[n], 7, lambda tt=tt, nt=nt: park(tt, nt))
    if cfg.hst:
        for n in range(4):
            hook(n1 + 4 * n, 0, 1, lambda n=n: stamp(4 + n))
    if cfg.alow:
        hook(*tiles_of(nA)[-cfg.alow], 0, lambda: a("s_setprio 0"))
    if cfg.bst == 4:
        for n, j in enumerate(range(0, nA, 2)):
            hook(j, 2 if cfg.half and j == nA - 1 else 0, 0, lambda n=n: stamp(2 + n, True))
    def a_pf():
        a("; memory-side prefetch of w2 and wo")
        bload(255, 1, 125, SW2, "s100", 0, "", "pf")
        bload(255, 1, 125, SWO, "s100", 0, "", "pf")

    def a_wo(lo):
        if lo == 0:
            a("; wo tile -> LDS [0, 64K), a few rows per score tile")
            a("s_lshl_b32 s76, s60, 17")
            a("s_lshl_b32 s73, s67, 7")
            a("s_add_u32 s76, s76, s73")
            a("s_lshl_b32 s77, s60, 14")
        a("s_add_u32 m0, s77, %d" % (lo * 1024))
        for i in range(cfg.awn):
            a("s_add_u32 s73, s76, %d" % ((lo + i) * 8192 - i * 1024))
            dma(126, SWO, "s73", i * 1024, "wo")

    if cfg.apf:
        hook(cfg.apf >> 2, cfg.apf & 3, 9, a_pf)
    if cfg.awo:
        for n, lo in enumerate(range(0, 16, cfg.awn)):
            assert cfg.awo + n < 4 * n1
            hook((cfg.awo + n) >> 2, (cfg.awo + n) & 3, 9, lambda lo=lo: a_wo(lo))
    kvplan["xt"] = cfg.xt or None
    assert cfg.xt + 2 <= n1
    att_run(nA, hooks)
    kvplan["xt"] = None
    vm.drain()
    a("s_branch L_att_done")

    a.label("L_loader")
    vm.items = []
    lg.items = []

    def b_setup():
        a("; waves 4-7: W1 DMA offsets v56-v59 (sixth tile out of range where the next group owns it), flagQ row s79")
        a("""
        v_mul_u32_u24 v56, 2752, v4
        v_add_u32 v56, v56, v6
        s_lshr_b32 s72, 0xf8, s61
        s_and_b32 s72, s72, 1
        s_lshl_b32 s72, s72, 23
        v_and_b32 v57, 64, v6
        v_mad_u32_u24 v57, v57, s72, v56
        v_xor_b32 v58, 16, v56
        v_xor_b32 v59, 16, v57
        s_lshr_b32 s79, s64, 1
        s_lshl_b32 s79, s79, 10
        s_add_u32 s79, s79, %d
        s_and_b32 s73, s60, 3
        s_lshl_b32 s72, s69, 6
        s_mul_i32 s80, s73, %d
        s_add_u32 s80, s80, s72
        """ % (WS_FLAGQ, 16 * 2752))

        a("v_mov_b32 v3, 0xdddddddd")

    issued = cfg.lead
    setup1()
    state = {"issued": issued}

    def b_step(c):
        vm.wait(("w", c))
        if cfg.bst == 2:
            stamp(c, True)
        if cfg.bst == 3 and c == 0:
            stamp(9, True)
        a("s_barrier")
        if cfg.bst == 1:
            stamp(c, True)
        if c in (0, 8, 12, 15):
            stamp({0: 3, 8: 4, 12: 5, 15: 6}[c])
        if c == 14:
            flag_load(7, 4, "s79", "qf")
        if c == 15:
            vm.wait("qf")
            check_flags("q", 7, 4, "s79")
            stamp(7)
            att_loads("b")
        while state["issued"] < min(15, max(3, c + 2)):
            state["issued"] += 1
            issue_chunk(state["issued"])
        if c == 0:
            setup_pf((SW1,))
        if c == cfg.sA:
            setup2()
        if cfg.pf1_at == 12 + c:
            pf1()
        if c == cfg.sB:
            b_setup()
        if c == cfg.sC:
            setup3()
        if c == cfg.sC:
            for op in init1 + init2:
                a(op)
        if c == 7:
            a("s_waitcnt lgkmcnt(0)")
            a("s_add_u32 %s, %s, 0x%x" % (sr(sTAG), sr(sTAG), EPOCH_INC))

    def b_att():
        a("s_barrier")
        stamp(8)
        a("s_setprio 1")
        kvload(2)

    bhooks = {}
    for c in range(16):
        b_step(c)
    b_att()
    if cfg.bst == 4:
        for j in range(nB):
            bhooks.setdefault((j, 2 if cfg.half and j == nB - 1 else 0, 0), []).append(lambda j=j: stamp(2 + j, True))
    kvplan["jump"] = nB - 2 if cfg.half else None
    att_run(nB, bhooks)
    kvplan["jump"] = None
    vm.drain()

    OW = OA + 48
    WOF, OFR, AC, G, Z, X, SR = 128, 24, 8, 64, 96, 104, 112
    a.label("L_att_done")
    stamp(10)
    if cfg.bst == 4:
        stamp(14, True)
    a("s_setprio 0")
    a("s_and_b32 s73, s60, 1")
    a("s_lshl_b32 s73, s73, 9")
    a("s_sub_u32 s76, s95, s73")
    a("""
    s_and_b32 s74, s60, 3
    s_lshr_b32 s75, s60, 2
    v_lshrrev_b32 v14, 3, v0
    v_and_b32 v7, 7, v0
    v_lshlrev_b32 v7, 4, v7
    v_lshl_add_u32 v14, v14, 10, v7
    s_lshl3_add_u32 s78, s66, s60
    s_lshl_b32 s78, s78, 13
    s_lshl_b32 s79, s67, 7
    s_add_u32 s78, s78, s79
    """)
    bload(60, 4, 7, SB2, "s79", 0, "", "xb")
    bload(56, 4, 14, SX, "s78", 0, "", "xb")
    lg.drain()
    a("s_barrier")
    for src in range(3):
        d = SB + 10 * src
        dsr("ds_read_b128", d, 4, 9, src * 2304, src)
        dsr("ds_read_b128", d + 4, 4, 9, src * 2304 + 1024, src)
        dsr("ds_read_b32", d + 8, 1, 10, src * 2304 + 2048, src)
    for src in range(3):
        lg.wait(src)
        for i in range(0, 8, 2):
            a("v_pk_add_f32 %s, %s, %s" % (vr(OW + i, 2), vr(OW + i, 2), vr(SB + 10 * src + i, 2)))
        a("v_add_f32 %s, %s, %s" % (vr(OW + 8), vr(OW + 8), vr(SB + 10 * src + 8)))
    a("v_pk_mul_f32 v[12:13], %s, 0 op_sel_hi:[1,0]" % vr(OW, 2))
    for i in range(2, 8, 2):
        a("v_pk_fma_f32 v[12:13], %s, 0, v[12:13] op_sel_hi:[1,0,1]" % vr(OW + i, 2))
    a("""
    v_add_f32 v12, v12, %s
    v_add_f32 v12, v12, v13
    v_cmp_nle_f32 vcc, 0x30800000, v12
    s_mov_b64 s[72:73], vcc
    v_cmp_nge_f32 vcc, 0x5d800000, v12
    s_or_b64 s[72:73], s[72:73], vcc
    """ % vr(OW + 8))
    a("s_branch L_slow" if cfg.force_slow else "s_cbranch_scc1 L_slow")
    a.label("L_norm")
    a("v_rcp_f32 v12, %s" % vr(OW + 8))
    for i in range(0, 8, 2):
        a("v_pk_mul_f32 %s, %s, v[12:13] op_sel_hi:[1,0]" % (vr(OW + i, 2), vr(OW + i, 2)))
    for q in range(4):
        a("v_cvt_pk_bf16_f32 %s, %s, %s" % (vr(16 + q), vr(OW + 2 * q), vr(OW + 2 * q + 1)))
    a("v_and_b32 v16, -2, v16")
    bstore(16, 4, 11, SWS, "s76", 0, "sc1", "ost")
    stamp(11)
    a("v_mov_b32 v2, v14")
    a("v_lshrrev_b32 v3, 3, v0")
    a("""
    v_mul_u32_u24 v4, %d, v3
    s_mul_i32 s72, s60, %d
    s_add_u32 s72, s72, %d
    v_add3_u32 v4, v4, v7, s72
    """ % (PART_STRIDE, 8 * PART_STRIDE, L_W2))
    for j in range(4):
        dsr("ds_read_b128", G + 4 * j, 4, 4, j * W2_REGION, "g")
    a("""
    v_bfe_u32 v4, v0, 2, 2
    v_bfe_u32 v5, v0, 4, 1
    v_lshl_add_u32 v4, v5, 2, v4
    v_lshrrev_b32 v5, 1, v4
    v_lshlrev_b32 v92, 7, v4
    v_lshl_add_u32 v92, v5, 5, v92
    v_lshrrev_b32 v6, 5, v0
    v_lshl_add_u32 v92, v6, 11, v92
    v_and_b32 v4, 3, v0
    v_lshl_add_u32 v92, v4, 3, v92
    s_lshl_b32 s72, s75, 15
    v_add_u32 v92, s72, v92
    v_xor_b32 v93, 32, v92
    v_xor_b32 v94, 64, v92
    v_xor_b32 v95, 0x60, v92
    s_barrier
    """)

    def oloads(first=0):
        for ks in range(first, 8):
            bload(OFR + 4 * ks, 4, 1, SWS, ("s76", "s77", "s80", "s81")[ks >> 1], (ks & 1) * 2048, "sc1", ("o", ks))

    fill = ("""
    s_lshl2_add_u32 s72, s66, s74
    s_lshr_b32 s76, s72, 1
    s_lshl1_add_u32 s76, s76, s75
    s_lshl_b32 s76, s76, 14
    s_and_b32 s72, s72, 1
    s_lshl_b32 s72, s72, 10
    s_add_u32 s76, s76, s72
    s_add_u32 s76, s76, %d
    s_add_u32 s77, s76, 0x1000
    s_add_u32 s80, s76, 0x2000
    s_add_u32 s81, s76, 0x3000
    v_mul_u32_u24 v3, %d, v3
    v_lshl_add_u32 v3, v7, 1, v3
    s_mul_i32 s72, s60, %d
    s_add_u32 s72, s72, %d
    v_add_u32 v3, s72, v3
    v_and_b32 v5, 15, v0
    v_mul_u32_u24 v5, %d, v5
    v_and_b32 v4, 48, v0
    s_mul_i32 s72, s60, %d
    s_add_u32 s72, s72, %d
    v_add3_u32 v5, v5, v4, s72
    s_mov_b32 s82, 0x3f80
    s_mov_b32 s83, 0x3f800000
    """ % (WS_QO, SUM_STRIDE, 8 * SUM_STRIDE, L_SUM, SUM_STRIDE, 16 * SUM_STRIDE, L_SUM)).strip().split("\n")
    gate = ["v_mov_b32 %s, 0" % vr(Z + i) for i in range(8)]
    gate.append(lambda: lg.wait("g"))
    for j in range(5):
        if j == 4:
            gate.append(lambda: vm.wait("xb"))
        for q in range(4):
            src = G + 4 * j + q if j < 4 else 60 + q
            gate.append("v_dot2c_f32_bf16 %s, s82, %s" % (vr(Z + 2 * q), vr(src)))
            gate.append("v_dot2c_f32_bf16 %s, s83, %s" % (vr(Z + 2 * q + 1), vr(src)))
    for q in range(4):
        gate.append("v_lshlrev_b32 %s, 16, %s" % (vr(X + 2 * q), vr(56 + q)))
        gate.append("v_and_b32 %s, s89, %s" % (vr(X + 1 + 2 * q), vr(56 + q)))
    gate += ["v_mul_f32 %s, 0x%x, %s" % (vr(G + i), NLOG2E, vr(Z + i)) for i in range(8)]
    gate += ["v_exp_f32 %s, %s" % (vr(G + i), vr(G + i)) for i in range(8)]
    gate += ["v_add_f32 %s, 1.0, %s" % (vr(G + i), vr(G + i)) for i in range(8)]
    gate += ["v_rcp_f32 %s, %s" % (vr(G + i), vr(G + i)) for i in range(8)]
    gate += ["v_mul_f32 %s, %s, %s" % (vr(Z + i), vr(Z + i), vr(G + i)) for i in range(8)]

    def wo_reads(oat, per):
        for ks in range(8):
            for ct in range(4):
                trread(WOF + (ks * 4 + ct) * 4, 92 + ct, ks * 4096, 1024, ("wo", ks))
                run_shadow(per)
            if ks == oat:
                run_shadow(1000)
                vm.wait("ost")
                oloads()

    vm_t, lg_t = list(vm.items), list(lg.items)
    a("s_cmp_eq_u32 s63, 1")
    a("s_cbranch_scc1 L_tail_b")
    shadow.extend(fill)
    wo_reads(7, 1)
    shadow.extend(gate)
    run_shadow(1000)
    a("s_branch L_tail_j")
    a.label("L_tail_b")
    vm.items, lg.items = vm_t, lg_t
    shadow.extend(fill + gate)
    run_shadow(1000)
    wo_reads(cfg.oat, 0)
    a.label("L_tail_j")
    stamp(12)
    a("s_mov_b32 s73, 0")
    lg.drain()
    for ks in range(8):
        a.label("L_wo_%d" % ks)
        vm.wait(("o", ks))
        a("v_and_b32 v6, 1, %s" % vr(OFR + 4 * ks))
        a("v_cmp_ne_u32 vcc, 0, v6")
        a("s_cbranch_vccnz L_oretry_%d" % ks)
        a.label("L_ogo_%d" % ks)
        for ct in range(4):
            d = AC + 4 * ct
            mfma16(d, WOF + (ks * 4 + ct) * 4, OFR + 4 * ks, None if ks == 0 else d)
    stamp(13)
    for ct in range(4):
        dsw("ds_write_b128", 5, AC + 4 * ct, 4, ct * 64)
    lg.drain()
    a("s_barrier")
    stamp(14)
    dsr("ds_read_b128", SR, 4, 3, 0, 0)
    dsr("ds_read_b128", SR + 8, 4, 3, SUM_SIZE, 0)
    dsr("ds_read_b128", SR + 4, 4, 3, 16, 1)
    dsr("ds_read_b128", SR + 12, 4, 3, SUM_SIZE + 16, 1)
    for h in range(2):
        lg.wait(h)
        for i in range(4 * h, 4 * h + 4, 2):
            a("v_pk_add_f32 %s, %s, %s" % (vr(SR + i, 2), vr(SR + i, 2), vr(SR + 8 + i, 2)))
        for i in range(4 * h, 4 * h + 4, 2):
            a("v_pk_fma_f32 %s, %s, %s, %s" % (vr(SR + i, 2), vr(SR + i, 2), vr(Z + i, 2), vr(X + i, 2)))
        for q in range(2 * h, 2 * h + 2):
            a("v_cvt_pk_bf16_f32 %s, %s, %s" % (vr(G + q), vr(SR + 2 * q), vr(SR + 2 * q + 1)))
    bstore(G, 4, 2, SOUT, "s78", 0, ("", "sc1", "nt", "sc0 sc1", "sc0 sc1 nt")[cfg.omod])
    a("s_or_b32 s72, s2, s60")
    a("s_cmp_lg_u32 s72, 0")
    a("s_cbranch_scc1 L_noepoch")
    set_flag(7, "0")
    a.label("L_noepoch")
    if cfg.stamps:
        a("s_waitcnt vmcnt(0)")
        stamp(15)
        if cfg.probe is not None:
            a("s_sub_u32 s72, %s, s4" % sr(sSTAMP + cfg.probe))
            if cfg.stamps == 2:
                a("s_lshr_b32 s72, s72, 3")
            else:
                a("s_lshl_b32 s72, s72, %d" % cfg.probesh)
            a("s_cmp_lg_u32 s2, %d" % cfg.probewg)
            a("s_cselect_b32 s72, 0, s72")
            a("s_cmp_lg_u32 s60, %d" % cfg.probew)
            a("s_cselect_b32 s72, 0, s72")
            a("s_memrealtime s[22:23]")
            a("s_waitcnt lgkmcnt(0)")
            a("s_mov_b32 s73, s22")
            a.label("L_probe")
            a("s_memrealtime s[22:23]")
            a("s_waitcnt lgkmcnt(0)")
            a("s_sub_u32 s22, s22, s73")
            a("s_cmp_lt_u32 s22, s72")
            a("s_cbranch_scc1 L_probe")
        a("s_lshl3_add_u32 s72, s2, s60")
        a("s_lshl_b32 s72, s72, 6")
        a("s_add_u32 s72, s72, %d" % WS_STAMP)
        for i in range(16):
            a("v_mov_b32 %s, %s" % (vr(80 + i), sr(sSTAMP + i)))
        a("s_mov_b64 exec, 1")
        for i in range(4):
            bstore(80 + 4 * i, 4, 1, SWS, "s72", 16 * i)
    a.label("L_end")
    a("s_endpgm")

    for ks in range(8):
        a.label("L_oretry_%d" % ks)
        a("s_add_u32 s73, s73, 1")
        a("s_cmp_ge_u32 s73, %d" % SPIN_MAX)
        a("s_cbranch_scc1 L_ogo_%d" % ks)
        a("s_waitcnt vmcnt(0)")
        oloads(ks)
        a("s_branch L_wo_%d" % ks)

    for tag, vt, lanes, soff in stubs:
        a.label("L_poll_" + tag)
        a("s_mov_b32 s73, 0")
        a.label("L_poll2_" + tag)
        a("s_sleep %d" % cfg.sleep)
        flag_load(vt, lanes, soff, None)
        a("s_add_u32 s73, s73, 1")
        a("s_waitcnt vmcnt(0)")
        a("s_cmp_ge_u32 s73, %d" % SPIN_MAX)
        a("s_cbranch_scc1 L_polled_" + tag)
        a("v_cmp_ne_u32 vcc, %s, %s" % (sr(sTAG), vr(vt)))
        a("s_cbranch_vccnz L_poll2_" + tag)
        a("s_branch L_polled_" + tag)

    a.label("L_slow")
    CN = SB + 16
    a("s_waitcnt vmcnt(0)")
    a("v_mov_b32 v13, 0xff800000")
    a("s_mov_b32 s82, s83")
    a("s_mov_b32 s81, 64")
    a.label("L_slow1")
    bload(KV, 4, 252, SWS, "s82", 0, "sc1")
    a("s_add_u32 s82, s82, 2048")
    a("s_waitcnt vmcnt(0)")
    mfma32(SB, KV, QR + 12, None)
    for i in range(0, 16, 2):
        a("v_max3_f32 v13, v13, %s, %s" % (vr(SB + i), vr(SB + i + 1)))
    a("s_sub_u32 s81, s81, 1")
    a("s_cmp_lg_u32 s81, 0")
    a("s_cbranch_scc1 L_slow1")
    a("v_mov_b32 v15, v13")
    a("v_permlane32_swap_b32 v15, v13")
    a("v_max_f32 v13, v15, v13")
    for i in range(16):
        a("v_sub_f32 %s, 0, v13" % vr(CN + i))
        a("v_mov_b32 %s, 0" % vr(OW + i))
    a("s_mov_b32 s82, s83")
    a("s_mov_b32 s81, 64")
    a.label("L_slow2")
    kvload(0)
    a("s_waitcnt vmcnt(0)")
    mfma32(SB, KV, QR + 12, CN)
    for i in range(16):
        a("v_exp_f32 %s, %s" % (vr(SB + i), vr(SB + i)))
    smf(OW, KV + 4, SB)
    smf(OW, KV + 8, SB + 8)
    a("s_sub_u32 s81, s81, 1")
    a("s_cmp_lg_u32 s81, 0")
    a("s_cbranch_scc1 L_slow2")
    a("s_branch L_norm")
    a.label("L_code_end")
    a("s_endpgm")

    added = a.fix()
    return a.text().replace('FSH', str(cfg.fsh)).replace('FROW', str(cfg.fsh + 5)), added


HEADER = """; Kernarg layout for this problem (88 bytes, ptrs only, base s[0:1]):
; @launch grid=(256,1,1) block=(512,1,1) lds=163840
.amdgcn_target "amdgcn-amd-amdhsa--gfx950"
.text
.globl {k}
.p2align 8
.type {k},@function
{k}:
"""

FOOTER = """.section .rodata,"a"
.p2align 6
.amdhsa_kernel {k}
  .amdhsa_next_free_vgpr 256
  .amdhsa_next_free_sgpr 102
  .amdhsa_accum_offset 256
  .amdhsa_group_segment_fixed_size 0
  .amdhsa_kernarg_size 88
  .amdhsa_user_sgpr_count 2
  .amdhsa_user_sgpr_kernarg_segment_ptr 1
  .amdhsa_system_sgpr_workgroup_id_x 1
.end_amdhsa_kernel
"""


def build(**kw):
    cfg = Cfg()
    for k, v in kw.items():
        setattr(cfg, k, v)
    body, added = gen(cfg)
    return HEADER.format(k=KERNEL) + body + FOOTER.format(k=KERNEL), added


if __name__ == "__main__":
    out = sys.argv[1] if len(sys.argv) > 1 else "cdna_kernels/%s.s" % NAME
    kw = {}
    for arg in sys.argv[2:]:
        k, v = arg.split("=")
        kw[k] = int(v)
    text, added = build(**kw)
    open(out, "w").write(text)
    print("wrote", out, "lines", text.count("\n"), "nops added", added)
```

```python
import sys
import os
sys.path.insert(0, os.path.dirname(os.path.abspath(__file__)))
from asmlib import Asm, vr, sr

NAME = "recurrent_scan__softmax_full_mha__dense_activation_squared_relu__prompt"
KERNEL = NAME + "_kernel"

WS_FLAGQ = 0x1200
WS_FLAGH = 0x60000
WS_STAMP = 0x10000
WS_QO = 0x100000
WS_KV = 0x300000
WS_HF = 0x700000
WS_END = WS_HF + 86 * 65536
EPOCH_INC = 0x9E3779B9
SPIN_MAX = 1 << 18

L_RING = 65536
L_OPART = 65536
L_W2 = L_OPART + 55296
W2_REGION = 10240
PART_STRIDE = 144
SUM_STRIDE = 272
SUM_SIZE = 64 * SUM_STRIDE
L_SUM = L_OPART

SX, SWQ, SWO, SW1, SB1, SW2, SB2, SOUT, SWS = 24, 28, 32, 36, 40, 44, 48, 52, 56
sW, sCG, sTB, sRW, sP, sQB, sTBF, sCB, sTAG, sCT0 = 60, 61, 62, 63, 64, 65, 66, 67, 68, 69
sVM = 70
sSTAMP = 4

QSCALE = 0x3EB8AA3B
NLOG2E = 0xBFB8AA3B
NS = 22


class Cfg:
    abl = 0
    bst = 0
    n1 = 8
    nA = 21
    gap = 1
    kvi = 4
    dmam = 2
    fpat = 2222
    pf1_at = 12
    w2_at = 10
    stamps = 0
    force_slow = 0
    flag_chunk = 10
    lead = 1
    look = 5
    sleep = 6
    w0_at = 7
    w1_at = 10
    hpre = 2
    hbar = 0
    hnow = 2
    hgap = 2
    hoff = 0
    fsh = 4
    b1at = -10
    sA = 3
    sB = 3
    sC = 7
    alow = 1
    xt = 5
    pfeven = 1
    pmap = 1
    hpoll = 0
    half = 1
    dlag = 1
    apf = 13
    awo = 20
    awn = 2
    hflag = 11
    probe = None
    omod = 1
    oat = 4
    probewg = 100
    probew = 0
    probesh = 4
    hst = 0


def srd(s):
    return sr(s, 4)


class Queue:
    def __init__(self, a, name, maxn):
        self.a, self.name, self.maxn, self.items = a, name, maxn, []

    def push(self, tag):
        self.items.append(tag)

    def wait(self, *tags):
        last = max((i for i, t in enumerate(self.items) if t in tags), default=-1)
        if last < 0:
            return
        n = len(self.items) - 1 - last
        self.a("s_waitcnt %s(%d)" % (self.name, min(n, self.maxn)))
        self.items = self.items[last + 1:]

    def drain(self):
        self.a("s_waitcnt %s(0)" % self.name)
        self.items = []


def gen(cfg):
    a = Asm()
    nA = cfg.nA
    nB = 32 - nA + cfg.half
    vm = Queue(a, "vmcnt", 63)
    lg = Queue(a, "lgkmcnt", 15)

    def stamp(i, force=False):
        if cfg.bst and not force and i != 0:
            return
        if cfg.stamps and (cfg.probe is None or i in (0, cfg.probe)):
            a("%s s[22:23]" % ("s_memtime" if cfg.stamps == 2 else "s_memrealtime"))
            a("s_waitcnt lgkmcnt(0)")
            a("s_mov_b32 %s, s22" % sr(sSTAMP + i))

    def mfma32(d, x, y, c):
        a("v_mfma_f32_32x32x16_bf16 %s, %s, %s, %s" % (vr(d, 16), vr(x, 4), vr(y, 4), "0" if c is None else vr(c, 16)))

    def mfma16(d, x, y, c):
        a("v_mfma_f32_16x16x32_bf16 %s, %s, %s, %s" % (vr(d, 4), vr(x, 4), vr(y, 4), "0" if c is None else vr(c, 4)))

    def smf(d, x, y):
        a("v_smfmac_f32_32x32x32_bf16 %s, %s, %s, v3" % (vr(d, 16), vr(x, 4), vr(y, 8)))

    def bload(d, n, va, s, so, off=0, mod="", tag=None):
        op = {1: "dword", 2: "dwordx2", 4: "dwordx4"}[n]
        a("buffer_load_%s %s, %s, %s, %s offen offset:%d %s" % (op, vr(d, n), vr(va), srd(s), so, off, mod))
        vm.push(tag)

    def bstore(d, n, va, s, so, off=0, mod="", tag=None):
        op = {1: "dword", 2: "dwordx2", 4: "dwordx4"}[n]
        a("buffer_store_%s %s, %s, %s, %s offen offset:%d %s" % (op, vr(d, n), vr(va), srd(s), so, off, mod))
        vm.push(tag)

    def dma(va, s, so, off=0, tag=None):
        a("buffer_load_dwordx4 %s, %s, %s offen offset:%d lds" % (vr(va), srd(s), so, off))
        vm.push(tag)

    def dsr(op, d, n, va, off, tag=None):
        a("%s %s, %s offset:%d" % (op, vr(d, n), vr(va), off))
        lg.push(tag)

    def dsw(op, va, d, n, off, tag=None):
        a("%s %s, %s offset:%d" % (op, vr(va), vr(d, n), off))
        lg.push(tag)

    def trread(d, va, off, second, tag=None):
        dsr("ds_read_b64_tr_b16", d, 2, va, off, tag)
        dsr("ds_read_b64_tr_b16", d + 2, 2, va, off + second, tag)

    def set_flag(vt, soff):
        a("v_mov_b32 %s, %s" % (vr(vt), sr(sTAG)))
        a("s_mov_b64 exec, 1")
        bstore(vt, 1, 1, SWS, soff, 0, "sc0 sc1")
        a("s_mov_b64 exec, -1")

    stubs = []

    def check_flags(tag, vt, lanes, soff):
        a("v_cmp_ne_u32 vcc, %s, %s" % (sr(sTAG), vr(vt)))
        a("s_cbranch_vccnz L_poll_" + tag)
        a.label("L_polled_" + tag)
        stubs.append((tag, vt, lanes, soff))

    def flag_load(vt, shift, soff, tag):
        a("v_and_b32 %s, 31, v0" % vr(vt))
        a("v_lshlrev_b32 %s, %d, %s" % (vr(vt), shift, vr(vt)))
        bload(vt, 1, vt, SWS, soff, 0, "sc0 sc1", tag)

    sizes = {SX: 2048 * 1024, SWQ: 512 * 3072, SWS: WS_END, SW1: 512 * 2752, SB1: 2752,
             SWO: 512 * 1024, SW2: 1376 * 1024, SB2: 1024, SOUT: 2048 * 1024}
    RAW = 128

    def xloads():
        for j in range(8):
            bload(RAW + j * 4, 4, 14, SX, "s101", j * 128, "", ("x", j))

    stamp(0)
    a("""
    s_load_dwordx2 s[24:25], s[0:1], 0
    s_getpc_b64 s[72:73]
    L_pc:
    s_cmpk_ge_u32 s2, 256
    s_cbranch_scc1 L_end
    s_lshr_b32 s74, s2, 3
    s_lshl_b32 s74, s74, 11
    v_lshrrev_b32 v8, 5, v0
    v_lshl_add_u32 v8, v8, 7, s74
    v_min_u32 v8, L_code_end-L_pc, v8
    v_mov_b32 v9, 0
    v_lshl_add_u64 v[8:9], v[8:9], 0, s[72:73]
    global_load_dword v7, v[8:9], off
    s_lshl_b32 s72, s2, 4
    s_and_b32 s72, s72, 0x180
    v_add_u32 v4, s72, v0
    v_bfe_u32 v4, v4, 3, 6
    v_and_b32 v5, 7, v0
    v_lshlrev_b32 v14, 10, v4
    v_lshl_add_u32 v14, v5, 4, v14
    s_lshr_b32 s67, s2, 5
    s_and_b32 s73, s2, 6
    s_lshl2_add_u32 s62, s73, s67
    s_lshl_b32 s101, s62, 16
    s_mov_b32 s26, %d
    s_mov_b32 s27, 0x20000
    v_bfe_u32 v24, v4, 1, 3
    v_xor_b32 v24, v24, v5
    v_lshlrev_b32 v15, 7, v4
    v_lshl_add_u32 v15, v24, 4, v15
    v_readfirstlane_b32 s60, v0
    v_and_b32 v0, 63, v0
    v_and_b32 v26, 3, v0
    v_mov_b32 v29, 0
    s_lshr_b32 s60, s60, 6
    s_cmp_ge_u32 s60, 4
    s_waitcnt lgkmcnt(0)
    """ % sizes[SX])
    vm.push("pf")
    if cfg.bst == 3:
        stamp(1, True)
    xloads()
    if cfg.bst == 3:
        stamp(2, True)
    if cfg.stamps:
        for i in range(3 if cfg.bst == 3 else 1, 16):
            a("s_mov_b32 %s, s4" % sr(sSTAMP + i))
    a("s_mov_b32 s63, 1")
    a("s_cbranch_scc1 L_ln")
    a("s_mov_b32 s63, 0")

    def setup1():
        for s, off in ((SWQ, 8), (SWS, 80), (SW1, 32), (SB1, 40), (SWO, 16), (SW2, 48), (SB2, 56), (SOUT, 64)):
            a("s_load_dwordx2 %s, s[0:1], %d" % (sr(s, 2), off))
        a("""
        s_mov_b32 s30, %d
        s_mov_b32 s31, 0x20000
        s_bfe_u32 s72, s2, 0x20003
        s_and_b32 s73, s2, 1
        s_lshl2_add_u32 s61, s73, s72
        s_and_b32 s74, s60, 3
        s_lshl_b32 s72, s61, 7
        s_mul_i32 s85, s74, %d
        s_add_u32 s85, s85, s72
        s_mul_i32 s87, s74, 6144
        s_add_u32 s87, s87, %d
        v_lshrrev_b32 v4, 3, v0
        v_bfe_u32 v6, v4, 1, 1
        v_lshlrev_b32 v6, 2, v6
        v_xor_b32 v6, v6, v5
        v_lshlrev_b32 v6, 4, v6
        v_mul_u32_u24 v13, 3072, v4
        v_add_u32 v13, v13, v6
        v_xor_b32 v33, 16, v13
        s_waitcnt lgkmcnt(0)
        """ % (sizes[SWQ], 16 * 3072, L_RING))

    def setup_pf(srds):
        for s in srds:
            a("s_mov_b32 %s, %d" % (sr(s + 2), sizes[s]))
            a("s_mov_b32 %s, 0x20000" % sr(s + 3))
        if cfg.pfeven:
            a("; memory-side prefetches are issued by even workgroups only, 22 lines per wave")
            a("""
            s_and_b32 s73, s60, 3
            s_lshl1_add_u32 s100, s2, s73
            s_mul_i32 s100, s100, 2816
            s_bitcmp1_b32 s2, 0
            s_cselect_b32 s100, 0x40000000, s100
            v_min_u32 v31, 21, v0
            v_lshlrev_b32 v31, 7, v31
            """)
        else:
            a("""
            s_and_b32 s73, s60, 3
            s_lshl2_add_u32 s100, s2, s73
            s_mul_i32 s100, s100, 1536
            v_min_u32 v31, 11, v0
            v_lshlrev_b32 v31, 7, v31
            """)

    def setup2():
        a("s_load_dword %s, %s, 0" % (sr(sTAG), sr(SWS, 2)))
        for s in (SWS, SB1, SB2, SOUT):
            a("s_mov_b32 %s, %d" % (sr(s + 2), sizes[s]))
            a("s_mov_b32 %s, 0x20000" % sr(s + 3))
        a("""
        s_bfe_u32 s72, s2, 0x20003
        s_and_b32 s73, s2, 7
        s_lshl2_add_u32 s66, s73, s72
        s_and_b32 s72, s72, 1
        PMAP
        s_lshr_b32 s65, s2, 4
        s_mul_i32 s69, s61, 6
        s_mul_i32 s73, s61, 5
        s_add_u32 s73, s73, 3
        s_min_u32 s69, s69, s73
        s_mov_b32 s70, 0xffff
        s_mov_b32 s71, 0xffff
        v_lshlrev_b32 v1, 4, v0
        v_and_b32 v2, 15, v0
        v_lshrrev_b32 v3, 5, v0
        v_lshl_add_u32 v2, v3, 4, v2
        v_lshlrev_b32 v2, 4, v2
        """.replace("PMAP", "s_and_b32 s64, s2, 6\ns_add_u32 s72, s72, s64\ns_and_b32 s64, s2, 1\ns_lshl3_add_u32 s64, s64, s72"
                    if cfg.pmap else "s_lshl1_add_u32 s64, s73, s72"))

    def setup3():
        a("; attention offsets: s82 = next K/V tile, s83 = head base, s92-s95 = Q tiles, s96-s99 = O partial slots")
        a("""
        s_and_b32 s74, s60, 1
        s_lshr_b32 s75, s60, 1
        s_lshl1_add_u32 s72, s64, s74
        s_lshl_b32 s83, s72, 17
        s_add_u32 s83, s83, %d
        s_and_b32 s73, s75, 1
        s_lshl_b32 s73, s73, 16
        s_add_u32 s82, s83, s73
        s_lshl_b32 s72, s65, 6
        s_add_u32 s72, s72, s64
        s_lshl1_add_u32 s72, s72, s74
        s_lshl_b32 s72, s72, 10
        s_add_u32 s72, s72, %d
        s_mul_i32 s84, s74, %d
        s_add_u32 s84, s84, %d
        """ % (WS_KV, WS_QO, 12 * 2304, L_OPART))
        for t in range(4):
            a("s_xor_b32 s73, s75, %d" % (t ^ 3))
            a("s_mul_i32 %s, s73, %d" % (sr(96 + t), 3 * 2304))
            a("s_lshl_b32 s73, s73, 15")
            a("s_add_u32 %s, s72, s73" % sr(92 + t))
            a("s_add_u32 %s, %s, s84" % (sr(96 + t), sr(96 + t)))

    setup1()
    setup_pf((SWO, SW2))
    setup2()
    a("s_and_b32 s74, s60, 1")
    a("s_lshr_b32 s75, s60, 1")
    a("""
    v_bfe_u32 v9, v0, 4, 1
    v_and_b32 v16, 15, v0
    v_lshlrev_b32 v8, 4, v16
    v_lshl_add_u32 v8, v9, 9, v8
    v_lshl_add_u32 v11, v3, 17, v8
    v_lshl_add_u32 v14, v3, 10, v8
    v_lshl_add_u32 v127, v3, 16, v8
    v_lshrrev_b32 v17, 4, v0
    v_bfe_u32 v8, v0, 3, 1
    v_lshlrev_b32 v12, 4, v5
    v_lshl_add_u32 v12, v17, 8, v12
    v_lshl_add_u32 v12, v8, 17, v12
    v_lshrrev_b32 v8, 1, v16
    v_xor_b32 v8, v8, v17
    v_lshlrev_b32 v16, 7, v16
    v_lshl_add_u32 v16, v8, 4, v16
    s_lshl_b32 s72, s74, 12
    v_add_u32 v16, s72, v16
    v_xor_b32 v17, 64, v16
    v_mov_b32 v125, v31
    v_and_b32 v126, 6, v4
    v_xor_b32 v126, v126, v5
    v_lshlrev_b32 v126, 4, v126
    v_lshl_add_u32 v126, v4, 10, v126
    v_lshl_add_u32 v4, v4, 10, v6
    v_bfe_u32 v10, v0, 2, 2
    v_lshrrev_b32 v6, 1, v10
    v_xor_b32 v8, s75, v6
    v_and_b32 v18, 2, v0
    v_lshl_add_u32 v8, v8, 2, v18
    v_add_u32 v8, v8, v9
    v_lshlrev_b32 v8, 1, v8
    v_and_or_b32 v8, v0, 1, v8
    v_lshlrev_b32 v8, 3, v8
    v_lshl_add_u32 v8, v10, 7, v8
    v_lshl_add_u32 v8, v9, 10, v8
    v_mul_u32_u24 v18, 6144, v3
    v_add_u32 v8, v8, v18
    v_add_u32 v8, %d, v8
    v_xor_b32 v18, 16, v8
    v_add_u32 v19, %d, v18
    v_lshlrev_b32 v5, 5, v9
    v_lshl_add_u32 v5, v10, 7, v5
    v_and_b32 v10, 3, v0
    v_lshl_add_u32 v5, v10, 3, v5
    v_lshl_add_u32 v5, v3, 9, v5
    v_lshl_add_u32 v5, v6, 6, v5
    v_lshrrev_b32 v10, 1, v0
    v_xor_b32 v10, v10, v0
    v_and_b32 v10, 1, v10
    v_mul_u32_u24 v10, 24, v10
    v_xor_b32 v5, v5, v10
    s_mul_i32 s84, s60, %d
    s_add_u32 s84, s84, %d
    v_add_u32 v5, s84, v5
    v_xor_b32 v6, 64, v5
    v_lshlrev_b32 v10, 3, v9
    v_lshl_add_u32 v10, v3, 5, v10
    v_xor_b32 v9, 16, v19
    v_mov_b32 v3, 0xdddddddd
    """ % (L_RING, 2 * 24576, W2_REGION, L_W2))

    def setup_a():
        setup3()
        a("s_add_u32 s82, s82, %d" % ((32 - nA) * 2048))
        a("s_mul_i32 s84, s60, %d" % W2_REGION)
        a("s_add_u32 s84, s84, %d" % L_W2)
        a("""
        s_lshl1_add_u32 s72, s62, s74
        s_lshl1_add_u32 s73, s61, s75
        s_lshl_b32 s76, s73, 7
        s_add_u32 s76, s76, s72
        s_lshl_b32 s77, s76, 11
        s_lshl4_add_u32 s76, s72, s73
        s_lshl_b32 s76, s76, 11
        s_add_u32 s76, s76, %d
        s_add_u32 s77, s77, %d
        s_add_u32 s81, s69, s75
        s_lshl_b32 s78, s81, 7
        s_add_u32 s78, s78, s72
        s_lshl_b32 s78, s78, 10
        s_add_u32 s78, s78, %d
        s_lshl_b32 s79, s61, 6
        s_add_u32 s79, s79, s62
        s_lshl_b32 s79, s79, 4
        s_add_u32 s79, s79, %d
        s_lshl_b32 s80, s62, 3
        s_add_u32 s80, s80, s61
        s_lshl2_add_u32 s80, s80, s60
        s_lshl_b32 s80, s80, FSH
        s_add_u32 s80, s80, %d
        s_mul_i32 s73, s61, s75
        s_add_u32 s88, s78, %d
        s_cmp_lt_u32 s73, 3
        s_cselect_b32 s88, s88, 0x40000000
        """ % (WS_QO, WS_KV, WS_HF, WS_FLAGQ, WS_FLAGH, 8 * 65536))


    def slot_of(c):
        return (c & 3) * 24576

    def issue_chunk(c):
        stride = 3072 if c < 8 else 2752
        a("s_xor_b32 s73, s67, %d" % (c & 7))
        a("s_mul_i32 s73, s73, %d" % (64 * stride))
        a("s_add_u32 s73, s73, %s" % ("s85" if c < 8 else "s80"))
        for m in range(6):
            blk, seg = divmod(m, 3)
            a("s_add_u32 m0, s87, %d" % (slot_of(c) + seg * 2048 + blk * 1024))
            a("s_add_u32 s72, s73, %d" % (blk * 8 * stride + seg * (1024 if c < 8 else 128)))
            if c < 8:
                dma(33 if blk else 13, SWQ, "s72", 0, ("w", c))
            else:
                dma(56 + (seg == 2) + 2 * blk, SW1, "s72", 0, ("w", c))

    def layernorm(acts):
        def act(p):
            if acts.get(p):
                assert p >= 7
                a("s_cmp_eq_u32 s63, 1")
                a("s_cbranch_scc1 L_ln_%d" % p)
                for f in acts[p]:
                    f()
                a.label("L_ln_%d" % p)
        a.label("L_ln")
        a("""
        v_mov_b32 v232, 0x3f803f80
        v_mov_b32 v233, 0x3f803f80
        v_lshlrev_b32 v26, 4, v26
        v_mov_b32 v28, 0xffff
        v_lshlrev_b64 v[28:29], v26, v[28:29]
        """)
        a("s_mov_b32 s89, 0xffff0000")
        a("s_lshl_b32 s72, s67, 13")
        a("v_or_b32 v15, s72, v15")

        def xwrite(j):
            a("v_xor_b32 v23, 0x%x, v15" % (j << 13))
            a("ds_write_b128 v23, %s" % vr(RAW + j * 4, 4))

        def m4(d, x, y, c):
            a("v_mfma_f32_4x4x4_16b_bf16 %s, %s, %s, %s" % (vr(d, 4), vr(x, 2), vr(y, 2), "0" if c is None else vr(c, 4)))

        S, GM, T, CN, AH = 208, 216, 192, 224, 228
        for j in range(8):
            vm.wait(("x", j))
            if cfg.bst == 3 and j in (0, 3, 7):
                stamp({0: 4, 3: 5, 7: 6}[j], True)
            if j == 7:
                act(7)
            for h in range(2):
                x = RAW + j * 4 + 2 * h
                m4(S + 4 * h, 232, x, S + 4 * h if j else None)
                m4(GM + 4 * h, x, x, GM + 4 * h if j else None)
        act(8)
        stamp(1)
        a("v_add_f32 v24, %s, %s" % (vr(S), vr(S + 4)))
        for r in range(4):
            a("v_add_f32 %s, %s, %s" % (vr(GM + r), vr(GM + r), vr(GM + 4 + r)))
        dpp = "row_mask:0xf bank_mask:0xf"
        a("v_add_f32_dpp v24, v24, v24 quad_perm:[1,0,3,2] " + dpp)
        a("v_mov_b32_dpp v25, %s quad_perm:[0,0,0,0] %s" % (vr(GM), dpp))
        a("v_add_f32_dpp v25, %s, v25 quad_perm:[1,1,1,1] %s" % (vr(GM + 1), dpp))
        a("v_add_f32_dpp v24, v24, v24 quad_perm:[2,3,0,1] " + dpp)
        a("v_add_f32_dpp v25, %s, v25 quad_perm:[2,2,2,2] %s" % (vr(GM + 2), dpp))
        a("v_add_f32_dpp v25, %s, v25 quad_perm:[3,3,3,3] %s" % (vr(GM + 3), dpp))
        a("v_add_f32_dpp v24, v24, v24 row_half_mirror " + dpp)
        a("v_add_f32_dpp v25, v25, v25 row_half_mirror " + dpp)
        a("""
        v_mul_f32 v24, 0x3b000000, v24
        v_mul_f32 v25, 0x3b000000, v25
        v_fma_f32 v25, -v24, v24, v25
        v_max_f32 v25, 0, v25
        v_cvt_pk_bf16_f32 v24, v24, v25
        v_and_b32 v25, s89, v24
        v_add_f32 v25, 0x3727c5ac, v25
        v_cvt_pk_bf16_f32 v25, v25, v25
        v_and_b32 v25, s89, v25
        v_sqrt_f32 v25, v25
        v_lshlrev_b32 v24, 16, v24
        v_cvt_pk_bf16_f32 v25, v25, v25
        v_and_b32 v25, s89, v25
        v_rcp_f32 v26, v25
        v_cvt_pk_bf16_f32 v27, v26, v26
        v_and_b32 v25, s89, v27
        v_sub_f32 v25, v26, v25
        v_cvt_pk_bf16_f32 v25, v25, v25
        v_and_b32 v228, v27, v28
        v_and_b32 v229, v27, v29
        v_and_b32 v230, v25, v28
        v_and_b32 v231, v25, v29
        """)
        for r in range(4):
            a("v_mul_f32_e64 %s, -v24, v26" % vr(CN + r))

        def finish(j, q):
            t = T + 8 * (j & 1)
            a("v_cvt_pk_bf16_f32 %s, %s, %s" % (vr(RAW + 4 * j + q), vr(t + 2 * q), vr(t + 2 * q + 1)))
            if q == 3:
                xwrite(j)

        for j in range(9):
            for q in range(4):
                if j < 8:
                    t = T + 8 * (j & 1) + 4 * (q & 1)
                    m4(t, AH + 2 * (q >> 1), RAW + 4 * j + 2 * (q & 1), CN if q < 2 else t)
                if j:
                    finish(j - 1, q)
        if cfg.bst == 3:
            stamp(7, True)
        act(9)
        act(10)
        stamp(2)
        if cfg.bst == 3:
            stamp(8, True)

    def pf1():
        a("; memory-side prefetch of W1")
        bload(32, 1, 31, SW1, "s100", 0, "", "pf")

    def b1loads():
        a("s_lshr_b32 s3, s60, 1")
        a("s_add_u32 s3, s3, s69")
        a("s_lshl_b32 s3, s3, 6")
        for q in range(6):
            bload(112 + 2 * q, 2, 10, SB1, "s3", (q >> 1) * 128 + (q & 1) * 16, "", "b1")

    acts = {}
    for c, p in enumerate((cfg.w0_at, cfg.w1_at, cfg.w2_at, 10)[:cfg.lead + 1]):
        acts.setdefault(p, []).append(lambda c=c: issue_chunk(c))
    if cfg.b1at < 0:
        acts.setdefault(-cfg.b1at, []).insert(0, b1loads)
    layernorm(acts)
    a("s_cmp_eq_u32 s63, 1")
    a("s_cbranch_scc1 L_loader")

    QR, SB, WF, FA, OA, KV, HB = 8, 24, 56, 64, 128, 192, 228
    NKV = 3

    def att_init_ops():
        ops = ["v_mov_b32 %s, 0" % vr(OA + 16 * t + i) for t in range(4) for i in range(16)]
        ops2 = ["v_and_b32 v7, 27, v0", "v_cmp_eq_u32 vcc, 16, v7", "v_mov_b32 v7, 0x3f803f80", "v_cndmask_b32 v7, 0, v7, vcc"]
        ops2 += ["v_mov_b32 %s, v7" % vr(KV + 12 * b + 4 + q) for b in range(NKV) for q in range(8)]
        return ops, ops2

    XKV = (72, 84)
    kvplan = {"xt": None}

    def kvreg(j):
        xt = kvplan["xt"]
        if xt is not None and j in (xt, xt + 1):
            return XKV[j - xt]
        return KV + 12 * ((j - 2 if xt is not None and j > xt else j) % NKV)

    def kvsched(n):
        at, pos = {}, 0
        for j in range(NKV, n):
            prev = [p for p in range(j) if kvreg(p) == kvreg(j)]
            pos = max(pos + 1, 4 * (prev[-1] + 1) if prev else 0)
            at[(pos >> 2, pos & 3)] = j
        return at

    def kvload(j):
        r = kvreg(j)
        bload(r, 4, 252, SWS, "s82", 0, "sc1", ("kv", j))
        a("s_mov_b64 exec, %s" % sr(sVM, 2))
        bload(r + 4, 4, 2, SWS, "s82", 1024, "sc1", ("kv", j))
        bload(r + 8, 4, 2, SWS, "s82", 1536, "sc1", ("kv", j))
        a("s_mov_b64 exec, -1")
        a("s_add_u32 s82, s82, %d" % (2048 * (nA if j == kvplan.get("jump") else 1)))

    def att_loads(role):
        a("; key slot 8a+4b+c holds token 16b+4a+c, matching the order of the V fragments")
        a("v_and_b32 v252, 0x230, v1")
        a("v_and_b32 v253, 0x180, v1")
        a("v_lshrrev_b32 v253, 1, v253")
        a("v_and_b32 v254, 64, v1")
        a("v_lshlrev_b32 v254, 2, v254")
        a("v_or3_b32 v252, v252, v253, v254")
        bload(QR, 4, 1, SWS, "s92", 0, "sc1", "q")
        kvload(0)
        for t in range(1, 4):
            bload(QR + 4 * t, 4, 1, SWS, sr(92 + t), 0, "sc1", "q")
        kvload(1)
        if role == "a":
            kvload(2)

    def dump_addr():
        a("v_lshlrev_b32 v8, 2, v0")
        a("v_add_u32 v9, s99, v1")
        a("v_add_u32 v10, s99, v8")
        a("v_bfe_u32 v11, v0, 4, 1")
        a("v_lshl_add_u32 v11, v11, 10, v2")

    def dump(t):
        a("v_add_u32 v12, %s, v1" % sr(96 + t))
        a("v_add_u32 v13, %s, v8" % sr(96 + t))
        dsw("ds_write_b128", 12, OA + 16 * t, 4, t * 2304)
        dsw("ds_write_b128", 12, OA + 16 * t + 4, 4, t * 2304 + 1024)
        dsw("ds_write_b32", 13, OA + 16 * t + 8, 1, t * 2304 + 2048)

    deferred = []
    cfg_gap = {0: range(16), 1: (1, 10), 2: (0, 9), 3: (4, 10), 4: (1,), 5: (4,), 6: (15, 9)}[cfg.gap]

    def tiles_of(n):
        return [(j, t) for j in range(n) for t in range(4) if not (cfg.half and j == n - 1 and t < 2)]

    def att_run(n, hooks):
        tiles = tiles_of(n)
        last = {t: max(p for p, jt in enumerate(tiles) if jt[1] == t) for t in range(4)}
        hooks.setdefault(tiles[last[0]] + (11,), []).append(dump_addr)
        for t in range(3):
            hooks.setdefault(tiles[last[t] + (cfg.dlag if t < 2 and cfg.half else 1)] + (12,), []).append(lambda t=t: dump(t))
        assert all(k[:2] in tiles for k in hooks)
        vm.wait("q", ("kv", 0))
        mfma32(SB, KV, QR, None)
        loads = kvsched(n)
        for p, (j, t) in enumerate(tiles):
            cur, oth = SB + 16 * (p & 1), SB + 16 * ((p + 1) & 1)
            for i in range(16):
                a("v_exp_f32 %s, %s" % (vr(cur + i), vr(cur + i)))
                if i in cfg_gap:
                    while deferred:
                        deferred.pop(0)()
                if i == cfg.kvi and (j, t) in loads and not cfg.abl & 32:
                    kvload(loads[(j, t)])
                if i == 1 and p:
                    smf(OA + 16 * tiles[p - 1][1], kvreg(tiles[p - 1][0]) + 8, oth + 8)
                if i == 4 and p + 1 < len(tiles):
                    nj, nt = tiles[p + 1]
                    vm.wait(("kv", nj))
                    mfma32(oth, kvreg(nj), QR + 4 * nt, None)
                if i == 10:
                    smf(OA + 16 * t, kvreg(j) + 4, cur)
                for h in hooks.get((j, t, i), ()):
                    h()
        smf(OA + 48, kvreg(n - 1) + 8, SB + 16 + 8)

    ACC = (24, 40, 56)
    WB, NBUF, LA = 72, 6, cfg.look
    XF, PK, XA = 128, 96, 16
    init1, init2 = att_init_ops()

    def item(g):
        kk, m = divmod(g % 96, 6)
        return kk, m >> 1, m & 1

    def reads(g, part=None):
        kk, seg, ab = item(g)
        so = slot_of(g // 12)
        base = (8, 18)[ab] + so // 49152
        off = so % 49152 + (kk & 1) * 12288 + seg * 2048
        for h in range(2):
            if part in (None, h):
                if g < 96 and seg == 0 and ab == 0:
                    dsr("ds_read_b128", XF + 8 * kk + 4 * h, 4, XA + (kk & 1), (kk >> 1) * 8192 + h * 2048, g)
                dsr("ds_read_b64_tr_b16", WB + 4 * (g % NBUF) + 2 * h, 2, base, off + 512 * h, g)

    def pack(acc, pk):
        return ["v_cvt_pk_bf16_f32 %s, %s, %s" % (vr(pk + q), vr(acc + 2 * q), vr(acc + 2 * q + 1)) for q in range(8)]

    def st2(pk, va, base, delta, tag, imm=(0, 0), vb=None):
        def first():
            bstore(pk, 4, va, SWS, base, imm[0], "sc1", tag)

        def second():
            if delta:
                a("s_add_u32 s72, %s, %d" % (base, delta))
            bstore(pk + 4, 4, vb or va, SWS, "s72" if delta else base, imm[1], "sc1", tag)
        return [first, second]

    def relu2(acc):
        return (["v_max_f32 %s, 0, %s" % (vr(acc + i), vr(acc + i)) for i in range(16)]
                + ["v_mul_f32 %s, %s, %s" % (vr(acc + i), vr(acc + i), vr(acc + i)) for i in range(16)])

    def bias(seg):
        ops = [lambda: vm.wait("b1")]
        for q in range(4):
            ops.append("v_lshlrev_b32 %s, 16, %s" % (vr(ACC[seg] + 2 * q), vr(112 + 4 * seg + q)))
            ops.append("v_and_b32 %s, s89, %s" % (vr(ACC[seg] + 2 * q + 1), vr(112 + 4 * seg + q)))
        return ops

    tagq = ["v_or_b32 %s, 1, %s" % (vr(PK + 4 * q), vr(PK + 4 * q)) for q in range(2)]
    qkv_epi = (["v_mul_f32 %s, 0x%x, %s" % (vr(ACC[0] + i), QSCALE, vr(ACC[0] + i)) for i in range(16)]
               + pack(ACC[0], PK) + tagq + st2(PK, 14, "s76", 0, "st", (0, 256))
               + pack(ACC[1], PK + 8) + st2(PK + 8, 11, "s77", 0, "st", (0, 256))
               + pack(ACC[2], PK) + st2(PK, 12, "s77", 0, "st", (1024, 1152))
               + bias(0) + bias(1) + bias(2))
    sched = {108 + 12 * t: init1[16 * t:16 * t + 16] for t in range(4)}
    sched[174] = init2
    shadow = []

    def run_shadow(budget):
        while shadow and budget > 0:
            op = shadow.pop(0)
            if isinstance(op, str):
                a(op)
                budget -= 1
            else:
                op()
                budget -= 3

    mark = len(a.items)
    setup_a()
    a("""
    s_lshl_b32 s85, s60, 14
    s_lshl_b32 s72, s67, 7
    s_add_u32 s85, s85, s72
    s_lshl_b32 s86, s60, 6
    s_lshl1_add_u32 s86, s66, s86
    s_lshl_b32 s86, s86, 10
    s_add_u32 s86, s86, %d
    s_lshl_b32 s87, s66, FROW
    s_add_u32 s87, s87, %d
    """ % (WS_HF, WS_FLAGH))
    sched[0] = [v.text for k, v in a.items[mark:] if k == "ins"]
    del a.items[mark:]
    vm.wait(("w", 0))
    a("s_waitcnt lgkmcnt(0)")
    a("s_add_u32 %s, %s, 0x%x" % (sr(sTAG), sr(sTAG), EPOCH_INC))
    if cfg.bst == 3:
        stamp(9, True)
    a("s_barrier")
    stamp(3)
    if cfg.bst == 3:
        stamp(10, True)
    for g in range(LA):
        reads(g)
    for g in range(192):
        kk, seg, ab = item(g)
        if g == 96:
            stamp(4)
            shadow.extend(qkv_epi)
            run_shadow(1000)
            stamp(5)
            a("s_barrier")
            for n in range(96, 96 + LA):
                reads(n)
        lg.wait(g)
        w = WB + 4 * (g % NBUF)
        n = g + LA
        more = n < 192 and not g < 96 <= n
        shadow.extend(sched.get(g, ()))
        for h, t in enumerate((1, 0)):
            x = XF + 8 * kk + 4 * t
            if g < 96 and seg == 2:
                d = ACC[seg] + 8 * ab + 4 * t
                mfma16(d, x, w, None if kk == 0 else d)
            else:
                d = ACC[seg] + 8 * t + 4 * ab
                mfma16(d, w, x, d if kk else (None if g < 96 else ACC[seg] + 4 * ab))
            if more and h == 0 and n % 12 == 0:
                vm.wait(("w", n // 12))
                if n // 12 == cfg.flag_chunk:
                    vm.wait("st")
                a("s_barrier")
                if n // 12 == cfg.flag_chunk:
                    a("s_cmp_lg_u32 s60, 0")
                    a("s_cselect_b32 s79, 0x40000000, s79")
                    set_flag(7, "s79")
                    stamp(6)
            if more:
                reads(n, h)
            run_shadow((1 - h if g < 96 else 1) if more else 2)
        if g == cfg.b1at:
            b1loads()
    run_shadow(1000)
    stamp(7)
    hmath, hst = [], []
    for seg in range(3):
        pk = PK + 8 * seg
        hmath.append(relu2(ACC[seg]) + pack(ACC[seg], pk))
        hst.append((["s_add_u32 s78, s78, 0x40000"] if seg == 1 else []) + st2(pk, 127, "s78" if seg < 2 else "s88", 0, "hst", (0, 256)))
    for seg in range(cfg.hbar):
        shadow.extend(hmath[seg])
    run_shadow(1000)
    a("s_barrier")
    stamp(8)
    if cfg.bst == 4:
        stamp(1, True)
    a("s_setprio 2")
    for seg in range(cfg.hbar, cfg.hpre):
        shadow.extend(hmath[seg])
    run_shadow(1000)
    att_loads("a")
    if cfg.xt:
        for r in XKV:
            for q in range(8):
                a("v_mov_b32 %s, v7" % vr(r + 4 + q))
    hlist = [[hst[0][0]], [hst[0][1]], hst[1][:2], [hst[1][2]], [hst[2][0]], [hst[2][1]]]
    for seg in range(3):
        shadow.extend(hmath[seg] if seg >= max(cfg.hpre, cfg.hbar) else [])
        for n in (2 * seg, 2 * seg + 1):
            if n < cfg.hnow:
                shadow.extend(hlist[n])
    run_shadow(1000)
    stamp(9)


    def w2dma(i):
        if cfg.abl & 129:
            return
        a("s_add_u32 m0, s84, %d" % ((i & 3) * 2048))
        a("s_add_u32 s72, s85, %d" % (i * 65536))
        dma(4, SW2, "s72", 0, ("w2", i))
        a("s_add_u32 s72, s72, 7168")
        dma(4, SW2, "s72", 1024, ("w2", i))

    hreg = lambda i, tt: HB + 8 * (i % 3) + 4 * tt

    def hload(i):
        if cfg.abl & 257:
            return
        if i > 0:
            a("s_add_u32 s86, s86, 0x40000")
        for tt in range(2):
            bload(hreg(i, tt), 4, 1, SWS, "s86", tt * 1024, "sc1", ("h", i))

    def w2read(i, nt):
        if cfg.abl & 2:
            return
        vm.wait(("w2", i))
        trread(WF + 4 * nt, 5 + nt, (i & 3) * 2048, 1024, ("wf", i, nt))

    def fslot(f):
        i, m = divmod(f, 4)
        nt, tt = ((0, 0), (0, 1), (1, 1), (1, 0))[m]
        vm.wait(("h", i))
        lg.wait(("wf", i, nt))
        d = FA + 16 * (2 * tt + nt)
        if not cfg.abl & 4:
            mfma32(d, WF + 4 * nt, hreg(i, tt), None if i == 0 else d)
        if m == 1 and i + 1 < NS:
            deferred.append(lambda: w2read(i + 1, 0))
        if m == cfg.dmam and i + 4 < NS:
            deferred.append(lambda: w2dma(i + 4))
        if m == 3:
            if i + 1 < NS:
                deferred.append(lambda: w2read(i + 1, 1))
            if i + 3 < NS:
                deferred.append(lambda: hload(i + 3))

    def park(tt, nt):
        d = FA + 16 * (2 * tt + nt)
        for q in range(8):
            a("v_cvt_pk_bf16_f32 %s, %s, %s" % (vr(d + q), vr(d + 2 * q), vr(d + 2 * q + 1)))
        for q in range(2):
            dsw("ds_write_b128", 4, d + 4 * q, 4, tt * 32 * PART_STRIDE + nt * 64 + q * 32)

    def park_addr():
        a("v_and_b32 v4, 31, v0")
        a("v_mul_u32_u24 v4, %d, v4" % PART_STRIDE)
        a("v_lshrrev_b32 v5, 5, v0")
        a("v_lshl_add_u32 v4, v5, 4, v4")
        a("v_add_u32 v4, s84, v4")

    hooks = {}

    def hook(j, t, i, f):
        hooks.setdefault((j, t, i), []).append(f)

    n1 = cfg.n1
    for n in range(cfg.hnow, 6):
        tl = (n - cfg.hnow) * cfg.hgap + cfg.hoff
        hook(tl >> 2, tl & 3, 9, lambda n=n: (shadow.extend(hlist[n]), run_shadow(1000)))
    assert (5 - cfg.hnow) * cfg.hgap + cfg.hoff <= cfg.hflag < 4 * (n1 - 2)
    hook(cfg.hflag >> 2, cfg.hflag & 3, 12, lambda: (vm.wait("hst"), set_flag(7, "s80"), stamp(1) if cfg.hst else None))
    hook(n1 - 2, cfg.hpoll, 8, lambda: flag_load(7, cfg.fsh, "s87", "hf"))
    hook(n1 - 2, 3, 12, lambda: (vm.wait("hf"), stamp(2) if cfg.hst else None, check_flags("h", 7, cfg.fsh, "s87"), stamp(3) if cfg.hst else None))
    for i in range(4):
        hook(n1 - 3 + (i >> 1), 1 + (i & 1), 7, lambda i=i: w2dma(i))
    for i in range(3):
        hook(n1 - 1, i, 7, lambda i=i: hload(i))
    hook(n1 - 1, 3, 7, lambda: (w2read(0, 0), w2read(0, 1)))
    pat = [int(ch) for ch in str(cfg.fpat)]
    slots = [(j, t, pos) for j in range(n1, nA) for t in range(4) for pos in ((13,), (7, 13))[pat[t] - 1]]
    for f in range(4 * NS):
        hook(*slots[f], lambda f=f: fslot(f))
    rest = [jt for jt in tiles_of(nA) if jt > slots[4 * NS - 1][:2]]
    hook(*rest[0], 6, park_addr)
    for n, (nt, tt) in enumerate(((0, 0), (0, 1), (1, 1), (1, 0))):
        hook(*rest[n], 7, lambda tt=tt, nt=nt: park(tt, nt))
    if cfg.hst:
        for n in range(4):
            hook(n1 + 4 * n, 0, 1, lambda n=n: stamp(4 + n))
    if cfg.alow:
        hook(*tiles_of(nA)[-cfg.alow], 0, lambda: a("s_setprio 0"))
    if cfg.bst == 4:
        for n, j in enumerate(range(0, nA, 2)):
            hook(j, 2 if cfg.half and j == nA - 1 else 0, 0, lambda n=n: stamp(2 + n, True))
    def a_pf():
        a("; memory-side prefetch of w2 and wo")
        bload(255, 1, 125, SW2, "s100", 0, "", "pf")
        bload(255, 1, 125, SWO, "s100", 0, "", "pf")

    def a_wo(lo):
        if lo == 0:
            a("; wo tile -> LDS [0, 64K), a few rows per score tile")
            a("s_lshl_b32 s76, s60, 17")
            a("s_lshl_b32 s73, s67, 7")
            a("s_add_u32 s76, s76, s73")
            a("s_lshl_b32 s77, s60, 14")
        a("s_add_u32 m0, s77, %d" % (lo * 1024))
        for i in range(cfg.awn):
            a("s_add_u32 s73, s76, %d" % ((lo + i) * 8192 - i * 1024))
            dma(126, SWO, "s73", i * 1024, "wo")

    if cfg.apf:
        hook(cfg.apf >> 2, cfg.apf & 3, 9, a_pf)
    if cfg.awo:
        for n, lo in enumerate(range(0, 16, cfg.awn)):
            assert cfg.awo + n < 4 * n1
            hook((cfg.awo + n) >> 2, (cfg.awo + n) & 3, 9, lambda lo=lo: a_wo(lo))
    kvplan["xt"] = cfg.xt or None
    assert cfg.xt + 2 <= n1
    att_run(nA, hooks)
    kvplan["xt"] = None
    vm.drain()
    a("s_branch L_att_done")

    a.label("L_loader")
    vm.items = []
    lg.items = []

    def b_setup():
        a("; waves 4-7: W1 DMA offsets v56-v59 (sixth tile out of range where the next group owns it), flagQ row s79")
        a("""
        v_mul_u32_u24 v56, 2752, v4
        v_add_u32 v56, v56, v6
        s_lshr_b32 s72, 0xf8, s61
        s_and_b32 s72, s72, 1
        s_lshl_b32 s72, s72, 23
        v_and_b32 v57, 64, v6
        v_mad_u32_u24 v57, v57, s72, v56
        v_xor_b32 v58, 16, v56
        v_xor_b32 v59, 16, v57
        s_lshr_b32 s79, s64, 1
        s_lshl_b32 s79, s79, 10
        s_add_u32 s79, s79, %d
        s_and_b32 s73, s60, 3
        s_lshl_b32 s72, s69, 6
        s_mul_i32 s80, s73, %d
        s_add_u32 s80, s80, s72
        """ % (WS_FLAGQ, 16 * 2752))

        a("v_mov_b32 v3, 0xdddddddd")

    issued = cfg.lead
    setup1()
    state = {"issued": issued}

    def b_step(c):
        vm.wait(("w", c))
        if cfg.bst == 2:
            stamp(c, True)
        if cfg.bst == 3 and c == 0:
            stamp(9, True)
        a("s_barrier")
        if cfg.bst == 1:
            stamp(c, True)
        if c in (0, 8, 12, 15):
            stamp({0: 3, 8: 4, 12: 5, 15: 6}[c])
        if c == 14:
            flag_load(7, 4, "s79", "qf")
        if c == 15:
            vm.wait("qf")
            check_flags("q", 7, 4, "s79")
            stamp(7)
            att_loads("b")
        while state["issued"] < min(15, max(3, c + 2)):
            state["issued"] += 1
            issue_chunk(state["issued"])
        if c == 0:
            setup_pf((SW1,))
        if c == cfg.sA:
            setup2()
        if cfg.pf1_at == 12 + c:
            pf1()
        if c == cfg.sB:
            b_setup()
        if c == cfg.sC:
            setup3()
        if c == cfg.sC:
            for op in init1 + init2:
                a(op)
        if c == 7:
            a("s_waitcnt lgkmcnt(0)")
            a("s_add_u32 %s, %s, 0x%x" % (sr(sTAG), sr(sTAG), EPOCH_INC))

    def b_att():
        a("s_barrier")
        stamp(8)
        a("s_setprio 1")
        kvload(2)

    bhooks = {}
    for c in range(16):
        b_step(c)
    b_att()
    if cfg.bst == 4:
        for j in range(nB):
            bhooks.setdefault((j, 2 if cfg.half and j == nB - 1 else 0, 0), []).append(lambda j=j: stamp(2 + j, True))
    kvplan["jump"] = nB - 2 if cfg.half else None
    att_run(nB, bhooks)
    kvplan["jump"] = None
    vm.drain()

    OW = OA + 48
    WOF, OFR, AC, G, Z, X, SR = 128, 24, 8, 64, 96, 104, 112
    a.label("L_att_done")
    stamp(10)
    if cfg.bst == 4:
        stamp(14, True)
    a("s_setprio 0")
    a("s_and_b32 s73, s60, 1")
    a("s_lshl_b32 s73, s73, 9")
    a("s_sub_u32 s76, s95, s73")
    a("""
    s_and_b32 s74, s60, 3
    s_lshr_b32 s75, s60, 2
    v_lshrrev_b32 v14, 3, v0
    v_and_b32 v7, 7, v0
    v_lshlrev_b32 v7, 4, v7
    v_lshl_add_u32 v14, v14, 10, v7
    s_lshl3_add_u32 s78, s66, s60
    s_lshl_b32 s78, s78, 13
    s_lshl_b32 s79, s67, 7
    s_add_u32 s78, s78, s79
    """)
    bload(60, 4, 7, SB2, "s79", 0, "", "xb")
    bload(56, 4, 14, SX, "s78", 0, "", "xb")
    lg.drain()
    a("s_barrier")
    for src in range(3):
        d = SB + 10 * src
        dsr("ds_read_b128", d, 4, 9, src * 2304, src)
        dsr("ds_read_b128", d + 4, 4, 9, src * 2304 + 1024, src)
        dsr("ds_read_b32", d + 8, 1, 10, src * 2304 + 2048, src)
    for src in range(3):
        lg.wait(src)
        for i in range(0, 8, 2):
            a("v_pk_add_f32 %s, %s, %s" % (vr(OW + i, 2), vr(OW + i, 2), vr(SB + 10 * src + i, 2)))
        a("v_add_f32 %s, %s, %s" % (vr(OW + 8), vr(OW + 8), vr(SB + 10 * src + 8)))
    a("v_pk_mul_f32 v[12:13], %s, 0 op_sel_hi:[1,0]" % vr(OW, 2))
    for i in range(2, 8, 2):
        a("v_pk_fma_f32 v[12:13], %s, 0, v[12:13] op_sel_hi:[1,0,1]" % vr(OW + i, 2))
    a("""
    v_add_f32 v12, v12, %s
    v_add_f32 v12, v12, v13
    v_cmp_nle_f32 vcc, 0x30800000, v12
    s_mov_b64 s[72:73], vcc
    v_cmp_nge_f32 vcc, 0x5d800000, v12
    s_or_b64 s[72:73], s[72:73], vcc
    """ % vr(OW + 8))
    a("s_branch L_slow" if cfg.force_slow else "s_cbranch_scc1 L_slow")
    a.label("L_norm")
    a("v_rcp_f32 v12, %s" % vr(OW + 8))
    for i in range(0, 8, 2):
        a("v_pk_mul_f32 %s, %s, v[12:13] op_sel_hi:[1,0]" % (vr(OW + i, 2), vr(OW + i, 2)))
    for q in range(4):
        a("v_cvt_pk_bf16_f32 %s, %s, %s" % (vr(16 + q), vr(OW + 2 * q), vr(OW + 2 * q + 1)))
    a("v_and_b32 v16, -2, v16")
    bstore(16, 4, 11, SWS, "s76", 0, "sc1", "ost")
    stamp(11)
    a("v_mov_b32 v2, v14")
    a("v_lshrrev_b32 v3, 3, v0")
    a("""
    v_mul_u32_u24 v4, %d, v3
    s_mul_i32 s72, s60, %d
    s_add_u32 s72, s72, %d
    v_add3_u32 v4, v4, v7, s72
    """ % (PART_STRIDE, 8 * PART_STRIDE, L_W2))
    for j in range(4):
        dsr("ds_read_b128", G + 4 * j, 4, 4, j * W2_REGION, "g")
    a("""
    v_bfe_u32 v4, v0, 2, 2
    v_bfe_u32 v5, v0, 4, 1
    v_lshl_add_u32 v4, v5, 2, v4
    v_lshrrev_b32 v5, 1, v4
    v_lshlrev_b32 v92, 7, v4
    v_lshl_add_u32 v92, v5, 5, v92
    v_lshrrev_b32 v6, 5, v0
    v_lshl_add_u32 v92, v6, 11, v92
    v_and_b32 v4, 3, v0
    v_lshl_add_u32 v92, v4, 3, v92
    s_lshl_b32 s72, s75, 15
    v_add_u32 v92, s72, v92
    v_xor_b32 v93, 32, v92
    v_xor_b32 v94, 64, v92
    v_xor_b32 v95, 0x60, v92
    s_barrier
    """)

    def oloads(first=0):
        for ks in range(first, 8):
            bload(OFR + 4 * ks, 4, 1, SWS, ("s76", "s77", "s80", "s81")[ks >> 1], (ks & 1) * 2048, "sc1", ("o", ks))

    fill = ("""
    s_lshl2_add_u32 s72, s66, s74
    s_lshr_b32 s76, s72, 1
    s_lshl1_add_u32 s76, s76, s75
    s_lshl_b32 s76, s76, 14
    s_and_b32 s72, s72, 1
    s_lshl_b32 s72, s72, 10
    s_add_u32 s76, s76, s72
    s_add_u32 s76, s76, %d
    s_add_u32 s77, s76, 0x1000
    s_add_u32 s80, s76, 0x2000
    s_add_u32 s81, s76, 0x3000
    v_mul_u32_u24 v3, %d, v3
    v_lshl_add_u32 v3, v7, 1, v3
    s_mul_i32 s72, s60, %d
    s_add_u32 s72, s72, %d
    v_add_u32 v3, s72, v3
    v_and_b32 v5, 15, v0
    v_mul_u32_u24 v5, %d, v5
    v_and_b32 v4, 48, v0
    s_mul_i32 s72, s60, %d
    s_add_u32 s72, s72, %d
    v_add3_u32 v5, v5, v4, s72
    s_mov_b32 s82, 0x3f80
    s_mov_b32 s83, 0x3f800000
    """ % (WS_QO, SUM_STRIDE, 8 * SUM_STRIDE, L_SUM, SUM_STRIDE, 16 * SUM_STRIDE, L_SUM)).strip().split("\n")
    gate = ["v_mov_b32 %s, 0" % vr(Z + i) for i in range(8)]
    gate.append(lambda: lg.wait("g"))
    for j in range(5):
        if j == 4:
            gate.append(lambda: vm.wait("xb"))
        for q in range(4):
            src = G + 4 * j + q if j < 4 else 60 + q
            gate.append("v_dot2c_f32_bf16 %s, s82, %s" % (vr(Z + 2 * q), vr(src)))
            gate.append("v_dot2c_f32_bf16 %s, s83, %s" % (vr(Z + 2 * q + 1), vr(src)))
    for q in range(4):
        gate.append("v_lshlrev_b32 %s, 16, %s" % (vr(X + 2 * q), vr(56 + q)))
        gate.append("v_and_b32 %s, s89, %s" % (vr(X + 1 + 2 * q), vr(56 + q)))
    gate += ["v_mul_f32 %s, 0x%x, %s" % (vr(G + i), NLOG2E, vr(Z + i)) for i in range(8)]
    gate += ["v_exp_f32 %s, %s" % (vr(G + i), vr(G + i)) for i in range(8)]
    gate += ["v_add_f32 %s, 1.0, %s" % (vr(G + i), vr(G + i)) for i in range(8)]
    gate += ["v_rcp_f32 %s, %s" % (vr(G + i), vr(G + i)) for i in range(8)]
    gate += ["v_mul_f32 %s, %s, %s" % (vr(Z + i), vr(Z + i), vr(G + i)) for i in range(8)]

    def wo_reads(oat, per):
        for ks in range(8):
            for ct in range(4):
                trread(WOF + (ks * 4 + ct) * 4, 92 + ct, ks * 4096, 1024, ("wo", ks))
                run_shadow(per)
            if ks == oat:
                run_shadow(1000)
                vm.wait("ost")
                oloads()

    vm_t, lg_t = list(vm.items), list(lg.items)
    a("s_cmp_eq_u32 s63, 1")
    a("s_cbranch_scc1 L_tail_b")
    shadow.extend(fill)
    wo_reads(7, 1)
    shadow.extend(gate)
    run_shadow(1000)
    a("s_branch L_tail_j")
    a.label("L_tail_b")
    vm.items, lg.items = vm_t, lg_t
    shadow.extend(fill + gate)
    run_shadow(1000)
    wo_reads(cfg.oat, 0)
    a.label("L_tail_j")
    stamp(12)
    a("s_mov_b32 s73, 0")
    lg.drain()
    for ks in range(8):
        a.label("L_wo_%d" % ks)
        vm.wait(("o", ks))
        a("v_and_b32 v6, 1, %s" % vr(OFR + 4 * ks))
        a("v_cmp_ne_u32 vcc, 0, v6")
        a("s_cbranch_vccnz L_oretry_%d" % ks)
        a.label("L_ogo_%d" % ks)
        for ct in range(4):
            d = AC + 4 * ct
            mfma16(d, WOF + (ks * 4 + ct) * 4, OFR + 4 * ks, None if ks == 0 else d)
    stamp(13)
    for ct in range(4):
        dsw("ds_write_b128", 5, AC + 4 * ct, 4, ct * 64)
    lg.drain()
    a("s_barrier")
    stamp(14)
    dsr("ds_read_b128", SR, 4, 3, 0, 0)
    dsr("ds_read_b128", SR + 8, 4, 3, SUM_SIZE, 0)
    dsr("ds_read_b128", SR + 4, 4, 3, 16, 1)
    dsr("ds_read_b128", SR + 12, 4, 3, SUM_SIZE + 16, 1)
    for h in range(2):
        lg.wait(h)
        for i in range(4 * h, 4 * h + 4, 2):
            a("v_pk_add_f32 %s, %s, %s" % (vr(SR + i, 2), vr(SR + i, 2), vr(SR + 8 + i, 2)))
        for i in range(4 * h, 4 * h + 4, 2):
            a("v_pk_fma_f32 %s, %s, %s, %s" % (vr(SR + i, 2), vr(SR + i, 2), vr(Z + i, 2), vr(X + i, 2)))
        for q in range(2 * h, 2 * h + 2):
            a("v_cvt_pk_bf16_f32 %s, %s, %s" % (vr(G + q), vr(SR + 2 * q), vr(SR + 2 * q + 1)))
    bstore(G, 4, 2, SOUT, "s78", 0, ("", "sc1", "nt", "sc0 sc1", "sc0 sc1 nt")[cfg.omod])
    a("s_or_b32 s72, s2, s60")
    a("s_cmp_lg_u32 s72, 0")
    a("s_cbranch_scc1 L_noepoch")
    set_flag(7, "0")
    a.label("L_noepoch")
    if cfg.stamps:
        a("s_waitcnt vmcnt(0)")
        stamp(15)
        if cfg.probe is not None:
            a("s_sub_u32 s72, %s, s4" % sr(sSTAMP + cfg.probe))
            if cfg.stamps == 2:
                a("s_lshr_b32 s72, s72, 3")
            else:
                a("s_lshl_b32 s72, s72, %d" % cfg.probesh)
            a("s_cmp_lg_u32 s2, %d" % cfg.probewg)
            a("s_cselect_b32 s72, 0, s72")
            a("s_cmp_lg_u32 s60, %d" % cfg.probew)
            a("s_cselect_b32 s72, 0, s72")
            a("s_memrealtime s[22:23]")
            a("s_waitcnt lgkmcnt(0)")
            a("s_mov_b32 s73, s22")
            a.label("L_probe")
            a("s_memrealtime s[22:23]")
            a("s_waitcnt lgkmcnt(0)")
            a("s_sub_u32 s22, s22, s73")
            a("s_cmp_lt_u32 s22, s72")
            a("s_cbranch_scc1 L_probe")
        a("s_lshl3_add_u32 s72, s2, s60")
        a("s_lshl_b32 s72, s72, 6")
        a("s_add_u32 s72, s72, %d" % WS_STAMP)
        for i in range(16):
            a("v_mov_b32 %s, %s" % (vr(80 + i), sr(sSTAMP + i)))
        a("s_mov_b64 exec, 1")
        for i in range(4):
            bstore(80 + 4 * i, 4, 1, SWS, "s72", 16 * i)
    a.label("L_end")
    a("s_endpgm")

    for ks in range(8):
        a.label("L_oretry_%d" % ks)
        a("s_add_u32 s73, s73, 1")
        a("s_cmp_ge_u32 s73, %d" % SPIN_MAX)
        a("s_cbranch_scc1 L_ogo_%d" % ks)
        a("s_waitcnt vmcnt(0)")
        oloads(ks)
        a("s_branch L_wo_%d" % ks)

    for tag, vt, lanes, soff in stubs:
        a.label("L_poll_" + tag)
        a("s_mov_b32 s73, 0")
        a.label("L_poll2_" + tag)
        a("s_sleep %d" % cfg.sleep)
        flag_load(vt, lanes, soff, None)
        a("s_add_u32 s73, s73, 1")
        a("s_waitcnt vmcnt(0)")
        a("s_cmp_ge_u32 s73, %d" % SPIN_MAX)
        a("s_cbranch_scc1 L_polled_" + tag)
        a("v_cmp_ne_u32 vcc, %s, %s" % (sr(sTAG), vr(vt)))
        a("s_cbranch_vccnz L_poll2_" + tag)
        a("s_branch L_polled_" + tag)

    a.label("L_slow")
    CN = SB + 16
    a("s_waitcnt vmcnt(0)")
    a("v_mov_b32 v13, 0xff800000")
    a("s_mov_b32 s82, s83")
    a("s_mov_b32 s81, 64")
    a.label("L_slow1")
    bload(KV, 4, 252, SWS, "s82", 0, "sc1")
    a("s_add_u32 s82, s82, 2048")
    a("s_waitcnt vmcnt(0)")
    mfma32(SB, KV, QR + 12, None)
    for i in range(0, 16, 2):
        a("v_max3_f32 v13, v13, %s, %s" % (vr(SB + i), vr(SB + i + 1)))
    a("s_sub_u32 s81, s81, 1")
    a("s_cmp_lg_u32 s81, 0")
    a("s_cbranch_scc1 L_slow1")
    a("v_mov_b32 v15, v13")
    a("v_permlane32_swap_b32 v15, v13")
    a("v_max_f32 v13, v15, v13")
    for i in range(16):
        a("v_sub_f32 %s, 0, v13" % vr(CN + i))
        a("v_mov_b32 %s, 0" % vr(OW + i))
    a("s_mov_b32 s82, s83")
    a("s_mov_b32 s81, 64")
    a.label("L_slow2")
    kvload(0)
    a("s_waitcnt vmcnt(0)")
    mfma32(SB, KV, QR + 12, CN)
    for i in range(16):
        a("v_exp_f32 %s, %s" % (vr(SB + i), vr(SB + i)))
    smf(OW, KV + 4, SB)
    smf(OW, KV + 8, SB + 8)
    a("s_sub_u32 s81, s81, 1")
    a("s_cmp_lg_u32 s81, 0")
    a("s_cbranch_scc1 L_slow2")
    a("s_branch L_norm")
    a.label("L_code_end")
    a("s_endpgm")

    added = a.fix()
    return a.text().replace('FSH', str(cfg.fsh)).replace('FROW', str(cfg.fsh + 5)), added


HEADER = """; Kernarg layout for this problem (88 bytes, ptrs only, base s[0:1]):
; @launch grid=(256,1,1) block=(512,1,1) lds=163840
.amdgcn_target "amdgcn-amd-amdhsa--gfx950"
.text
.globl {k}
.p2align 8
.type {k},@function
{k}:
"""

FOOTER = """.section .rodata,"a"
.p2align 6
.amdhsa_kernel {k}
  .amdhsa_next_free_vgpr 256
  .amdhsa_next_free_sgpr 102
  .amdhsa_accum_offset 256
  .amdhsa_group_segment_fixed_size 0
  .amdhsa_kernarg_size 88
  .amdhsa_user_sgpr_count 2
  .amdhsa_user_sgpr_kernarg_segment_ptr 1
  .amdhsa_system_sgpr_workgroup_id_x 1
.end_amdhsa_kernel
"""


def build(**kw):
    cfg = Cfg()
    for k, v in kw.items():
        setattr(cfg, k, v)
    body, added = gen(cfg)
    return HEADER.format(k=KERNEL) + body + FOOTER.format(k=KERNEL), added


if __name__ == "__main__":
    out = sys.argv[1] if len(sys.argv) > 1 else "cdna_kernels/%s.s" % NAME
    kw = {}
    for arg in sys.argv[2:]:
        k, v = arg.split("=")
        kw[k] = int(v)
    text, added = build(**kw)
    open(out, "w").write(text)
    print("wrote", out, "lines", text.count("\n"), "nops added", added)
```

```python
import sys
import os
sys.path.insert(0, os.path.dirname(os.path.abspath(__file__)))
from asmlib import Asm, vr, sr

NAME = "recurrent_scan__softmax_full_mha__dense_activation_squared_relu__prompt"
KERNEL = NAME + "_kernel"

WS_FLAGQ = 0x1200
WS_FLAGH = 0x60000
WS_STAMP = 0x10000
WS_QO = 0x100000
WS_KV = 0x300000
WS_HF = 0x700000
WS_END = WS_HF + 86 * 65536
EPOCH_INC = 0x9E3779B9
SPIN_MAX = 1 << 18

L_RING = 65536
L_OPART = 65536
L_W2 = L_OPART + 55296
W2_REGION = 10240
PART_STRIDE = 144
SUM_STRIDE = 272
SUM_SIZE = 64 * SUM_STRIDE
L_SUM = L_OPART

SX, SWQ, SWO, SW1, SB1, SW2, SB2, SOUT, SWS = 24, 28, 32, 36, 40, 44, 48, 52, 56
sW, sCG, sTB, sRW, sP, sQB, sTBF, sCB, sTAG, sCT0 = 60, 61, 62, 63, 64, 65, 66, 67, 68, 69
sVM = 70
sSTAMP = 4

QSCALE = 0x3EB8AA3B
NLOG2E = 0xBFB8AA3B
NS = 22


class Cfg:
    abl = 0
    bst = 0
    n1 = 8
    nA = 21
    gap = 1
    kvi = 4
    dmam = 2
    fpat = 2222
    pf1_at = 12
    w2_at = 10
    stamps = 0
    force_slow = 0
    flag_chunk = 10
    lead = 1
    look = 5
    sleep = 6
    w0_at = 7
    w1_at = 10
    hpre = 2
    hbar = 0
    hnow = 2
    hgap = 2
    hoff = 0
    fsh = 4
    b1at = -10
    sA = 3
    sB = 3
    sC = 7
    alow = 1
    xt = 5
    pfeven = 1
    pmap = 1
    pfo = 1
    hpoll = 0
    half = 1
    dlag = 1
    apf = 13
    awo = 20
    awn = 2
    hflag = 11
    probe = None
    omod = 1
    oat = 4
    probewg = 100
    probew = 0
    probesh = 4
    hst = 0


def srd(s):
    return sr(s, 4)


class Queue:
    def __init__(self, a, name, maxn):
        self.a, self.name, self.maxn, self.items = a, name, maxn, []

    def push(self, tag):
        self.items.append(tag)

    def wait(self, *tags):
        last = max((i for i, t in enumerate(self.items) if t in tags), default=-1)
        if last < 0:
            return
        n = len(self.items) - 1 - last
        self.a("s_waitcnt %s(%d)" % (self.name, min(n, self.maxn)))
        self.items = self.items[last + 1:]

    def drain(self):
        self.a("s_waitcnt %s(0)" % self.name)
        self.items = []


def gen(cfg):
    a = Asm()
    nA = cfg.nA
    nB = 32 - nA + cfg.half
    vm = Queue(a, "vmcnt", 63)
    lg = Queue(a, "lgkmcnt", 15)

    def stamp(i, force=False):
        if cfg.bst and not force and i != 0:
            return
        if cfg.stamps and (cfg.probe is None or i in (0, cfg.probe)):
            a("%s s[22:23]" % ("s_memtime" if cfg.stamps == 2 else "s_memrealtime"))
            a("s_waitcnt lgkmcnt(0)")
            a("s_mov_b32 %s, s22" % sr(sSTAMP + i))

    def mfma32(d, x, y, c):
        a("v_mfma_f32_32x32x16_bf16 %s, %s, %s, %s" % (vr(d, 16), vr(x, 4), vr(y, 4), "0" if c is None else vr(c, 16)))

    def mfma16(d, x, y, c):
        a("v_mfma_f32_16x16x32_bf16 %s, %s, %s, %s" % (vr(d, 4), vr(x, 4), vr(y, 4), "0" if c is None else vr(c, 4)))

    def smf(d, x, y):
        a("v_smfmac_f32_32x32x32_bf16 %s, %s, %s, v3" % (vr(d, 16), vr(x, 4), vr(y, 8)))

    def bload(d, n, va, s, so, off=0, mod="", tag=None):
        op = {1: "dword", 2: "dwordx2", 4: "dwordx4"}[n]
        a("buffer_load_%s %s, %s, %s, %s offen offset:%d %s" % (op, vr(d, n), vr(va), srd(s), so, off, mod))
        vm.push(tag)

    def bstore(d, n, va, s, so, off=0, mod="", tag=None):
        op = {1: "dword", 2: "dwordx2", 4: "dwordx4"}[n]
        a("buffer_store_%s %s, %s, %s, %s offen offset:%d %s" % (op, vr(d, n), vr(va), srd(s), so, off, mod))
        vm.push(tag)

    def dma(va, s, so, off=0, tag=None):
        a("buffer_load_dwordx4 %s, %s, %s offen offset:%d lds" % (vr(va), srd(s), so, off))
        vm.push(tag)

    def dsr(op, d, n, va, off, tag=None):
        a("%s %s, %s offset:%d" % (op, vr(d, n), vr(va), off))
        lg.push(tag)

    def dsw(op, va, d, n, off, tag=None):
        a("%s %s, %s offset:%d" % (op, vr(va), vr(d, n), off))
        lg.push(tag)

    def trread(d, va, off, second, tag=None):
        dsr("ds_read_b64_tr_b16", d, 2, va, off, tag)
        dsr("ds_read_b64_tr_b16", d + 2, 2, va, off + second, tag)

    def set_flag(vt, soff):
        a("v_mov_b32 %s, %s" % (vr(vt), sr(sTAG)))
        a("s_mov_b64 exec, 1")
        bstore(vt, 1, 1, SWS, soff, 0, "sc0 sc1")
        a("s_mov_b64 exec, -1")

    stubs = []

    def check_flags(tag, vt, lanes, soff):
        a("v_cmp_ne_u32 vcc, %s, %s" % (sr(sTAG), vr(vt)))
        a("s_cbranch_vccnz L_poll_" + tag)
        a.label("L_polled_" + tag)
        stubs.append((tag, vt, lanes, soff))

    def flag_load(vt, shift, soff, tag):
        a("v_and_b32 %s, 31, v0" % vr(vt))
        a("v_lshlrev_b32 %s, %d, %s" % (vr(vt), shift, vr(vt)))
        bload(vt, 1, vt, SWS, soff, 0, "sc0 sc1", tag)

    sizes = {SX: 2048 * 1024, SWQ: 512 * 3072, SWS: WS_END, SW1: 512 * 2752, SB1: 2752,
             SWO: 512 * 1024, SW2: 1376 * 1024, SB2: 1024, SOUT: 2048 * 1024}
    RAW = 128

    def xloads():
        for j in range(8):
            bload(RAW + j * 4, 4, 14, SX, "s101", j * 128, "", ("x", j))

    stamp(0)
    a("""
    s_load_dwordx2 s[24:25], s[0:1], 0
    s_getpc_b64 s[72:73]
    L_pc:
    s_cmpk_ge_u32 s2, 256
    s_cbranch_scc1 L_end
    s_lshr_b32 s74, s2, 3
    s_lshl_b32 s74, s74, 11
    v_lshrrev_b32 v8, 5, v0
    v_lshl_add_u32 v8, v8, 7, s74
    v_min_u32 v8, L_code_end-L_pc, v8
    v_mov_b32 v9, 0
    v_lshl_add_u64 v[8:9], v[8:9], 0, s[72:73]
    global_load_dword v7, v[8:9], off
    s_lshl_b32 s72, s2, 4
    s_and_b32 s72, s72, 0x180
    v_add_u32 v4, s72, v0
    v_bfe_u32 v4, v4, 3, 6
    v_and_b32 v5, 7, v0
    v_lshlrev_b32 v14, 10, v4
    v_lshl_add_u32 v14, v5, 4, v14
    s_lshr_b32 s67, s2, 5
    s_and_b32 s73, s2, 6
    s_lshl2_add_u32 s62, s73, s67
    s_lshl_b32 s101, s62, 16
    s_mov_b32 s26, %d
    s_mov_b32 s27, 0x20000
    v_bfe_u32 v24, v4, 1, 3
    v_xor_b32 v24, v24, v5
    v_lshlrev_b32 v15, 7, v4
    v_lshl_add_u32 v15, v24, 4, v15
    v_readfirstlane_b32 s60, v0
    v_and_b32 v0, 63, v0
    v_and_b32 v26, 3, v0
    v_mov_b32 v29, 0
    s_lshr_b32 s60, s60, 6
    s_cmp_ge_u32 s60, 4
    s_waitcnt lgkmcnt(0)
    """ % sizes[SX])
    vm.push("pf")
    if cfg.bst == 3:
        stamp(1, True)
    xloads()
    if cfg.bst == 3:
        stamp(2, True)
    if cfg.stamps:
        for i in range(3 if cfg.bst == 3 else 1, 16):
            a("s_mov_b32 %s, s4" % sr(sSTAMP + i))
    a("s_mov_b32 s63, 1")
    a("s_cbranch_scc1 L_ln")
    a("s_mov_b32 s63, 0")

    def setup1():
        for s, off in ((SWQ, 8), (SWS, 80), (SW1, 32), (SB1, 40), (SWO, 16), (SW2, 48), (SB2, 56), (SOUT, 64)):
            a("s_load_dwordx2 %s, s[0:1], %d" % (sr(s, 2), off))
        a("""
        s_mov_b32 s30, %d
        s_mov_b32 s31, 0x20000
        s_bfe_u32 s72, s2, 0x20003
        s_and_b32 s73, s2, 1
        s_lshl2_add_u32 s61, s73, s72
        s_and_b32 s74, s60, 3
        s_lshl_b32 s72, s61, 7
        s_mul_i32 s85, s74, %d
        s_add_u32 s85, s85, s72
        s_mul_i32 s87, s74, 6144
        s_add_u32 s87, s87, %d
        v_lshrrev_b32 v4, 3, v0
        v_bfe_u32 v6, v4, 1, 1
        v_lshlrev_b32 v6, 2, v6
        v_xor_b32 v6, v6, v5
        v_lshlrev_b32 v6, 4, v6
        v_mul_u32_u24 v13, 3072, v4
        v_add_u32 v13, v13, v6
        v_xor_b32 v33, 16, v13
        s_waitcnt lgkmcnt(0)
        """ % (sizes[SWQ], 16 * 3072, L_RING))

    def setup_pf(srds):
        for s in srds:
            a("s_mov_b32 %s, %d" % (sr(s + 2), sizes[s]))
            a("s_mov_b32 %s, 0x20000" % sr(s + 3))
        if cfg.pfeven:
            a("; memory-side prefetches are issued by even workgroups only, 22 lines per wave")
            a("""
            s_and_b32 s73, s60, 3
            s_lshl1_add_u32 s100, s2, s73
            s_mul_i32 s100, s100, 2816
            s_bitcmp1_b32 s2, 0
            s_cselect_b32 s100, 0x40000000, s100
            v_min_u32 v31, 21, v0
            v_lshlrev_b32 v31, 7, v31
            """)
        else:
            a("""
            s_and_b32 s73, s60, 3
            s_lshl2_add_u32 s100, s2, s73
            s_mul_i32 s100, s100, 1536
            v_min_u32 v31, 11, v0
            v_lshlrev_b32 v31, 7, v31
            """)

    def setup2():
        a("s_load_dword %s, %s, 0" % (sr(sTAG), sr(SWS, 2)))
        for s in (SWS, SB1, SB2, SOUT):
            a("s_mov_b32 %s, %d" % (sr(s + 2), sizes[s]))
            a("s_mov_b32 %s, 0x20000" % sr(s + 3))
        a("""
        s_bfe_u32 s72, s2, 0x20003
        s_and_b32 s73, s2, 7
        s_lshl2_add_u32 s66, s73, s72
        s_and_b32 s72, s72, 1
        PMAP
        s_lshr_b32 s65, s2, 4
        s_mul_i32 s69, s61, 6
        s_mul_i32 s73, s61, 5
        s_add_u32 s73, s73, 3
        s_min_u32 s69, s69, s73
        s_mov_b32 s70, 0xffff
        s_mov_b32 s71, 0xffff
        v_lshlrev_b32 v1, 4, v0
        v_and_b32 v2, 15, v0
        v_lshrrev_b32 v3, 5, v0
        v_lshl_add_u32 v2, v3, 4, v2
        v_lshlrev_b32 v2, 4, v2
        """.replace("PMAP", "s_and_b32 s64, s2, 6\ns_add_u32 s72, s72, s64\ns_and_b32 s64, s2, 1\ns_lshl3_add_u32 s64, s64, s72"
                    if cfg.pmap else "s_lshl1_add_u32 s64, s73, s72"))

    def setup3():
        a("; attention offsets: s82 = next K/V tile, s83 = head base, s92-s95 = Q tiles, s96-s99 = O partial slots")
        a("""
        s_and_b32 s74, s60, 1
        s_lshr_b32 s75, s60, 1
        s_lshl1_add_u32 s72, s64, s74
        s_lshl_b32 s83, s72, 17
        s_add_u32 s83, s83, %d
        s_and_b32 s73, s75, 1
        s_lshl_b32 s73, s73, 16
        s_add_u32 s82, s83, s73
        s_lshl_b32 s72, s65, 6
        s_add_u32 s72, s72, s64
        s_lshl1_add_u32 s72, s72, s74
        s_lshl_b32 s72, s72, 10
        s_add_u32 s72, s72, %d
        s_mul_i32 s84, s74, %d
        s_add_u32 s84, s84, %d
        """ % (WS_KV, WS_QO, 12 * 2304, L_OPART))
        for t in range(4):
            a("s_xor_b32 s73, s75, %d" % (t ^ 3))
            a("s_mul_i32 %s, s73, %d" % (sr(96 + t), 3 * 2304))
            a("s_lshl_b32 s73, s73, 15")
            a("s_add_u32 %s, s72, s73" % sr(92 + t))
            a("s_add_u32 %s, %s, s84" % (sr(96 + t), sr(96 + t)))

    setup1()
    if cfg.pfo:
        a("; even workgroups start the memory-side fetch of the columns the odd ones need, one row per wave")
        a("""
        s_lshl1_add_u32 s72, s2, s60
        s_mul_i32 s72, s72, 3072
        s_bitcmp1_b32 s2, 0
        s_cselect_b32 s72, 0x40000000, s72
        v_min_u32 v20, 11, v0
        v_and_b32 v21, 12, v20
        v_add_u32 v20, v20, v21
        v_lshlrev_b32 v20, 7, v20
        """)
        keep = list(vm.items)
        bload(7, 1, 20, SWQ, "s72", 512, "", "pf")
        vm.items = keep
    setup_pf((SWO, SW2))
    setup2()
    a("s_and_b32 s74, s60, 1")
    a("s_lshr_b32 s75, s60, 1")
    a("""
    v_bfe_u32 v9, v0, 4, 1
    v_and_b32 v16, 15, v0
    v_lshlrev_b32 v8, 4, v16
    v_lshl_add_u32 v8, v9, 9, v8
    v_lshl_add_u32 v11, v3, 17, v8
    v_lshl_add_u32 v14, v3, 10, v8
    v_lshl_add_u32 v127, v3, 16, v8
    v_lshrrev_b32 v17, 4, v0
    v_bfe_u32 v8, v0, 3, 1
    v_lshlrev_b32 v12, 4, v5
    v_lshl_add_u32 v12, v17, 8, v12
    v_lshl_add_u32 v12, v8, 17, v12
    v_lshrrev_b32 v8, 1, v16
    v_xor_b32 v8, v8, v17
    v_lshlrev_b32 v16, 7, v16
    v_lshl_add_u32 v16, v8, 4, v16
    s_lshl_b32 s72, s74, 12
    v_add_u32 v16, s72, v16
    v_xor_b32 v17, 64, v16
    v_mov_b32 v125, v31
    v_and_b32 v126, 6, v4
    v_xor_b32 v126, v126, v5
    v_lshlrev_b32 v126, 4, v126
    v_lshl_add_u32 v126, v4, 10, v126
    v_lshl_add_u32 v4, v4, 10, v6
    v_bfe_u32 v10, v0, 2, 2
    v_lshrrev_b32 v6, 1, v10
    v_xor_b32 v8, s75, v6
    v_and_b32 v18, 2, v0
    v_lshl_add_u32 v8, v8, 2, v18
    v_add_u32 v8, v8, v9
    v_lshlrev_b32 v8, 1, v8
    v_and_or_b32 v8, v0, 1, v8
    v_lshlrev_b32 v8, 3, v8
    v_lshl_add_u32 v8, v10, 7, v8
    v_lshl_add_u32 v8, v9, 10, v8
    v_mul_u32_u24 v18, 6144, v3
    v_add_u32 v8, v8, v18
    v_add_u32 v8, %d, v8
    v_xor_b32 v18, 16, v8
    v_add_u32 v19, %d, v18
    v_lshlrev_b32 v5, 5, v9
    v_lshl_add_u32 v5, v10, 7, v5
    v_and_b32 v10, 3, v0
    v_lshl_add_u32 v5, v10, 3, v5
    v_lshl_add_u32 v5, v3, 9, v5
    v_lshl_add_u32 v5, v6, 6, v5
    v_lshrrev_b32 v10, 1, v0
    v_xor_b32 v10, v10, v0
    v_and_b32 v10, 1, v10
    v_mul_u32_u24 v10, 24, v10
    v_xor_b32 v5, v5, v10
    s_mul_i32 s84, s60, %d
    s_add_u32 s84, s84, %d
    v_add_u32 v5, s84, v5
    v_xor_b32 v6, 64, v5
    v_lshlrev_b32 v10, 3, v9
    v_lshl_add_u32 v10, v3, 5, v10
    v_xor_b32 v9, 16, v19
    v_mov_b32 v3, 0xdddddddd
    """ % (L_RING, 2 * 24576, W2_REGION, L_W2))

    def setup_a():
        setup3()
        a("s_add_u32 s82, s82, %d" % ((32 - nA) * 2048))
        a("s_mul_i32 s84, s60, %d" % W2_REGION)
        a("s_add_u32 s84, s84, %d" % L_W2)
        a("""
        s_lshl1_add_u32 s72, s62, s74
        s_lshl1_add_u32 s73, s61, s75
        s_lshl_b32 s76, s73, 7
        s_add_u32 s76, s76, s72
        s_lshl_b32 s77, s76, 11
        s_lshl4_add_u32 s76, s72, s73
        s_lshl_b32 s76, s76, 11
        s_add_u32 s76, s76, %d
        s_add_u32 s77, s77, %d
        s_add_u32 s81, s69, s75
        s_lshl_b32 s78, s81, 7
        s_add_u32 s78, s78, s72
        s_lshl_b32 s78, s78, 10
        s_add_u32 s78, s78, %d
        s_lshl_b32 s79, s61, 6
        s_add_u32 s79, s79, s62
        s_lshl_b32 s79, s79, 4
        s_add_u32 s79, s79, %d
        s_lshl_b32 s80, s62, 3
        s_add_u32 s80, s80, s61
        s_lshl2_add_u32 s80, s80, s60
        s_lshl_b32 s80, s80, FSH
        s_add_u32 s80, s80, %d
        s_mul_i32 s73, s61, s75
        s_add_u32 s88, s78, %d
        s_cmp_lt_u32 s73, 3
        s_cselect_b32 s88, s88, 0x40000000
        """ % (WS_QO, WS_KV, WS_HF, WS_FLAGQ, WS_FLAGH, 8 * 65536))


    def slot_of(c):
        return (c & 3) * 24576

    def issue_chunk(c):
        stride = 3072 if c < 8 else 2752
        a("s_xor_b32 s73, s67, %d" % (c & 7))
        a("s_mul_i32 s73, s73, %d" % (64 * stride))
        a("s_add_u32 s73, s73, %s" % ("s85" if c < 8 else "s80"))
        for m in range(6):
            blk, seg = divmod(m, 3)
            a("s_add_u32 m0, s87, %d" % (slot_of(c) + seg * 2048 + blk * 1024))
            a("s_add_u32 s72, s73, %d" % (blk * 8 * stride + seg * (1024 if c < 8 else 128)))
            if c < 8:
                dma(33 if blk else 13, SWQ, "s72", 0, ("w", c))
            else:
                dma(56 + (seg == 2) + 2 * blk, SW1, "s72", 0, ("w", c))

    def layernorm(acts):
        def act(p):
            if acts.get(p):
                assert p >= 7
                a("s_cmp_eq_u32 s63, 1")
                a("s_cbranch_scc1 L_ln_%d" % p)
                for f in acts[p]:
                    f()
                a.label("L_ln_%d" % p)
        a.label("L_ln")
        a("""
        v_mov_b32 v232, 0x3f803f80
        v_mov_b32 v233, 0x3f803f80
        v_lshlrev_b32 v26, 4, v26
        v_mov_b32 v28, 0xffff
        v_lshlrev_b64 v[28:29], v26, v[28:29]
        """)
        a("s_mov_b32 s89, 0xffff0000")
        a("s_lshl_b32 s72, s67, 13")
        a("v_or_b32 v15, s72, v15")

        def xwrite(j):
            a("v_xor_b32 v23, 0x%x, v15" % (j << 13))
            a("ds_write_b128 v23, %s" % vr(RAW + j * 4, 4))

        def m4(d, x, y, c):
            a("v_mfma_f32_4x4x4_16b_bf16 %s, %s, %s, %s" % (vr(d, 4), vr(x, 2), vr(y, 2), "0" if c is None else vr(c, 4)))

        S, GM, T, CN, AH = 208, 216, 192, 224, 228
        for j in range(8):
            vm.wait(("x", j))
            if cfg.bst == 3 and j in (0, 3, 7):
                stamp({0: 4, 3: 5, 7: 6}[j], True)
            if j == 7:
                act(7)
            for h in range(2):
                x = RAW + j * 4 + 2 * h
                m4(S + 4 * h, 232, x, S + 4 * h if j else None)
                m4(GM + 4 * h, x, x, GM + 4 * h if j else None)
        act(8)
        stamp(1)
        a("v_add_f32 v24, %s, %s" % (vr(S), vr(S + 4)))
        for r in range(4):
            a("v_add_f32 %s, %s, %s" % (vr(GM + r), vr(GM + r), vr(GM + 4 + r)))
        dpp = "row_mask:0xf bank_mask:0xf"
        a("v_add_f32_dpp v24, v24, v24 quad_perm:[1,0,3,2] " + dpp)
        a("v_mov_b32_dpp v25, %s quad_perm:[0,0,0,0] %s" % (vr(GM), dpp))
        a("v_add_f32_dpp v25, %s, v25 quad_perm:[1,1,1,1] %s" % (vr(GM + 1), dpp))
        a("v_add_f32_dpp v24, v24, v24 quad_perm:[2,3,0,1] " + dpp)
        a("v_add_f32_dpp v25, %s, v25 quad_perm:[2,2,2,2] %s" % (vr(GM + 2), dpp))
        a("v_add_f32_dpp v25, %s, v25 quad_perm:[3,3,3,3] %s" % (vr(GM + 3), dpp))
        a("v_add_f32_dpp v24, v24, v24 row_half_mirror " + dpp)
        a("v_add_f32_dpp v25, v25, v25 row_half_mirror " + dpp)
        a("""
        v_mul_f32 v24, 0x3b000000, v24
        v_mul_f32 v25, 0x3b000000, v25
        v_fma_f32 v25, -v24, v24, v25
        v_max_f32 v25, 0, v25
        v_cvt_pk_bf16_f32 v24, v24, v25
        v_and_b32 v25, s89, v24
        v_add_f32 v25, 0x3727c5ac, v25
        v_cvt_pk_bf16_f32 v25, v25, v25
        v_and_b32 v25, s89, v25
        v_sqrt_f32 v25, v25
        v_lshlrev_b32 v24, 16, v24
        v_cvt_pk_bf16_f32 v25, v25, v25
        v_and_b32 v25, s89, v25
        v_rcp_f32 v26, v25
        v_cvt_pk_bf16_f32 v27, v26, v26
        v_and_b32 v25, s89, v27
        v_sub_f32 v25, v26, v25
        v_cvt_pk_bf16_f32 v25, v25, v25
        v_and_b32 v228, v27, v28
        v_and_b32 v229, v27, v29
        v_and_b32 v230, v25, v28
        v_and_b32 v231, v25, v29
        """)
        for r in range(4):
            a("v_mul_f32_e64 %s, -v24, v26" % vr(CN + r))

        def finish(j, q):
            t = T + 8 * (j & 1)
            a("v_cvt_pk_bf16_f32 %s, %s, %s" % (vr(RAW + 4 * j + q), vr(t + 2 * q), vr(t + 2 * q + 1)))
            if q == 3:
                xwrite(j)

        for j in range(9):
            for q in range(4):
                if j < 8:
                    t = T + 8 * (j & 1) + 4 * (q & 1)
                    m4(t, AH + 2 * (q >> 1), RAW + 4 * j + 2 * (q & 1), CN if q < 2 else t)
                if j:
                    finish(j - 1, q)
        if cfg.bst == 3:
            stamp(7, True)
        act(9)
        act(10)
        stamp(2)
        if cfg.bst == 3:
            stamp(8, True)

    def pf1():
        a("; memory-side prefetch of W1")
        bload(32, 1, 31, SW1, "s100", 0, "", "pf")

    def b1loads():
        a("s_lshr_b32 s3, s60, 1")
        a("s_add_u32 s3, s3, s69")
        a("s_lshl_b32 s3, s3, 6")
        for q in range(6):
            bload(112 + 2 * q, 2, 10, SB1, "s3", (q >> 1) * 128 + (q & 1) * 16, "", "b1")

    acts = {}
    for c, p in enumerate((cfg.w0_at, cfg.w1_at, cfg.w2_at, 10)[:cfg.lead + 1]):
        acts.setdefault(p, []).append(lambda c=c: issue_chunk(c))
    if cfg.b1at < 0:
        acts.setdefault(-cfg.b1at, []).insert(0, b1loads)
    layernorm(acts)
    a("s_cmp_eq_u32 s63, 1")
    a("s_cbranch_scc1 L_loader")

    QR, SB, WF, FA, OA, KV, HB = 8, 24, 56, 64, 128, 192, 228
    NKV = 3

    def att_init_ops():
        ops = ["v_mov_b32 %s, 0" % vr(OA + 16 * t + i) for t in range(4) for i in range(16)]
        ops2 = ["v_and_b32 v7, 27, v0", "v_cmp_eq_u32 vcc, 16, v7", "v_mov_b32 v7, 0x3f803f80", "v_cndmask_b32 v7, 0, v7, vcc"]
        ops2 += ["v_mov_b32 %s, v7" % vr(KV + 12 * b + 4 + q) for b in range(NKV) for q in range(8)]
        return ops, ops2

    XKV = (72, 84)
    kvplan = {"xt": None}

    def kvreg(j):
        xt = kvplan["xt"]
        if xt is not None and j in (xt, xt + 1):
            return XKV[j - xt]
        return KV + 12 * ((j - 2 if xt is not None and j > xt else j) % NKV)

    def kvsched(n):
        at, pos = {}, 0
        for j in range(NKV, n):
            prev = [p for p in range(j) if kvreg(p) == kvreg(j)]
            pos = max(pos + 1, 4 * (prev[-1] + 1) if prev else 0)
            at[(pos >> 2, pos & 3)] = j
        return at

    def kvload(j):
        r = kvreg(j)
        bload(r, 4, 252, SWS, "s82", 0, "sc1", ("kv", j))
        a("s_mov_b64 exec, %s" % sr(sVM, 2))
        bload(r + 4, 4, 2, SWS, "s82", 1024, "sc1", ("kv", j))
        bload(r + 8, 4, 2, SWS, "s82", 1536, "sc1", ("kv", j))
        a("s_mov_b64 exec, -1")
        a("s_add_u32 s82, s82, %d" % (2048 * (nA if j == kvplan.get("jump") else 1)))

    def att_loads(role):
        a("; key slot 8a+4b+c holds token 16b+4a+c, matching the order of the V fragments")
        a("v_and_b32 v252, 0x230, v1")
        a("v_and_b32 v253, 0x180, v1")
        a("v_lshrrev_b32 v253, 1, v253")
        a("v_and_b32 v254, 64, v1")
        a("v_lshlrev_b32 v254, 2, v254")
        a("v_or3_b32 v252, v252, v253, v254")
        bload(QR, 4, 1, SWS, "s92", 0, "sc1", "q")
        kvload(0)
        for t in range(1, 4):
            bload(QR + 4 * t, 4, 1, SWS, sr(92 + t), 0, "sc1", "q")
        kvload(1)
        if role == "a":
            kvload(2)

    def dump_addr():
        a("v_lshlrev_b32 v8, 2, v0")
        a("v_add_u32 v9, s99, v1")
        a("v_add_u32 v10, s99, v8")
        a("v_bfe_u32 v11, v0, 4, 1")
        a("v_lshl_add_u32 v11, v11, 10, v2")

    def dump(t):
        a("v_add_u32 v12, %s, v1" % sr(96 + t))
        a("v_add_u32 v13, %s, v8" % sr(96 + t))
        dsw("ds_write_b128", 12, OA + 16 * t, 4, t * 2304)
        dsw("ds_write_b128", 12, OA + 16 * t + 4, 4, t * 2304 + 1024)
        dsw("ds_write_b32", 13, OA + 16 * t + 8, 1, t * 2304 + 2048)

    deferred = []
    cfg_gap = {0: range(16), 1: (1, 10), 2: (0, 9), 3: (4, 10), 4: (1,), 5: (4,), 6: (15, 9)}[cfg.gap]

    def tiles_of(n):
        return [(j, t) for j in range(n) for t in range(4) if not (cfg.half and j == n - 1 and t < 2)]

    def att_run(n, hooks):
        tiles = tiles_of(n)
        last = {t: max(p for p, jt in enumerate(tiles) if jt[1] == t) for t in range(4)}
        hooks.setdefault(tiles[last[0]] + (11,), []).append(dump_addr)
        for t in range(3):
            hooks.setdefault(tiles[last[t] + (cfg.dlag if t < 2 and cfg.half else 1)] + (12,), []).append(lambda t=t: dump(t))
        assert all(k[:2] in tiles for k in hooks)
        vm.wait("q", ("kv", 0))
        mfma32(SB, KV, QR, None)
        loads = kvsched(n)
        for p, (j, t) in enumerate(tiles):
            cur, oth = SB + 16 * (p & 1), SB + 16 * ((p + 1) & 1)
            for i in range(16):
                a("v_exp_f32 %s, %s" % (vr(cur + i), vr(cur + i)))
                if i in cfg_gap:
                    while deferred:
                        deferred.pop(0)()
                if i == cfg.kvi and (j, t) in loads and not cfg.abl & 32:
                    kvload(loads[(j, t)])
                if i == 1 and p:
                    smf(OA + 16 * tiles[p - 1][1], kvreg(tiles[p - 1][0]) + 8, oth + 8)
                if i == 4 and p + 1 < len(tiles):
                    nj, nt = tiles[p + 1]
                    vm.wait(("kv", nj))
                    mfma32(oth, kvreg(nj), QR + 4 * nt, None)
                if i == 10:
                    smf(OA + 16 * t, kvreg(j) + 4, cur)
                for h in hooks.get((j, t, i), ()):
                    h()
        smf(OA + 48, kvreg(n - 1) + 8, SB + 16 + 8)

    ACC = (24, 40, 56)
    WB, NBUF, LA = 72, 6, cfg.look
    XF, PK, XA = 128, 96, 16
    init1, init2 = att_init_ops()

    def item(g):
        kk, m = divmod(g % 96, 6)
        return kk, m >> 1, m & 1

    def reads(g, part=None):
        kk, seg, ab = item(g)
        so = slot_of(g // 12)
        base = (8, 18)[ab] + so // 49152
        off = so % 49152 + (kk & 1) * 12288 + seg * 2048
        for h in range(2):
            if part in (None, h):
                if g < 96 and seg == 0 and ab == 0:
                    dsr("ds_read_b128", XF + 8 * kk + 4 * h, 4, XA + (kk & 1), (kk >> 1) * 8192 + h * 2048, g)
                dsr("ds_read_b64_tr_b16", WB + 4 * (g % NBUF) + 2 * h, 2, base, off + 512 * h, g)

    def pack(acc, pk):
        return ["v_cvt_pk_bf16_f32 %s, %s, %s" % (vr(pk + q), vr(acc + 2 * q), vr(acc + 2 * q + 1)) for q in range(8)]

    def st2(pk, va, base, delta, tag, imm=(0, 0), vb=None):
        def first():
            bstore(pk, 4, va, SWS, base, imm[0], "sc1", tag)

        def second():
            if delta:
                a("s_add_u32 s72, %s, %d" % (base, delta))
            bstore(pk + 4, 4, vb or va, SWS, "s72" if delta else base, imm[1], "sc1", tag)
        return [first, second]

    def relu2(acc):
        return (["v_max_f32 %s, 0, %s" % (vr(acc + i), vr(acc + i)) for i in range(16)]
                + ["v_mul_f32 %s, %s, %s" % (vr(acc + i), vr(acc + i), vr(acc + i)) for i in range(16)])

    def bias(seg):
        ops = [lambda: vm.wait("b1")]
        for q in range(4):
            ops.append("v_lshlrev_b32 %s, 16, %s" % (vr(ACC[seg] + 2 * q), vr(112 + 4 * seg + q)))
            ops.append("v_and_b32 %s, s89, %s" % (vr(ACC[seg] + 2 * q + 1), vr(112 + 4 * seg + q)))
        return ops

    tagq = ["v_or_b32 %s, 1, %s" % (vr(PK + 4 * q), vr(PK + 4 * q)) for q in range(2)]
    qkv_epi = (["v_mul_f32 %s, 0x%x, %s" % (vr(ACC[0] + i), QSCALE, vr(ACC[0] + i)) for i in range(16)]
               + pack(ACC[0], PK) + tagq + st2(PK, 14, "s76", 0, "st", (0, 256))
               + pack(ACC[1], PK + 8) + st2(PK + 8, 11, "s77", 0, "st", (0, 256))
               + pack(ACC[2], PK) + st2(PK, 12, "s77", 0, "st", (1024, 1152))
               + bias(0) + bias(1) + bias(2))
    sched = {108 + 12 * t: init1[16 * t:16 * t + 16] for t in range(4)}
    sched[174] = init2
    shadow = []

    def run_shadow(budget):
        while shadow and budget > 0:
            op = shadow.pop(0)
            if isinstance(op, str):
                a(op)
                budget -= 1
            else:
                op()
                budget -= 3

    mark = len(a.items)
    setup_a()
    a("""
    s_lshl_b32 s85, s60, 14
    s_lshl_b32 s72, s67, 7
    s_add_u32 s85, s85, s72
    s_lshl_b32 s86, s60, 6
    s_lshl1_add_u32 s86, s66, s86
    s_lshl_b32 s86, s86, 10
    s_add_u32 s86, s86, %d
    s_lshl_b32 s87, s66, FROW
    s_add_u32 s87, s87, %d
    """ % (WS_HF, WS_FLAGH))
    sched[0] = [v.text for k, v in a.items[mark:] if k == "ins"]
    del a.items[mark:]
    vm.wait(("w", 0))
    a("s_waitcnt lgkmcnt(0)")
    a("s_add_u32 %s, %s, 0x%x" % (sr(sTAG), sr(sTAG), EPOCH_INC))
    if cfg.bst == 3:
        stamp(9, True)
    a("s_barrier")
    stamp(3)
    if cfg.bst == 3:
        stamp(10, True)
    for g in range(LA):
        reads(g)
    for g in range(192):
        kk, seg, ab = item(g)
        if g == 96:
            stamp(4)
            shadow.extend(qkv_epi)
            run_shadow(1000)
            stamp(5)
            a("s_barrier")
            for n in range(96, 96 + LA):
                reads(n)
        lg.wait(g)
        w = WB + 4 * (g % NBUF)
        n = g + LA
        more = n < 192 and not g < 96 <= n
        shadow.extend(sched.get(g, ()))
        for h, t in enumerate((1, 0)):
            x = XF + 8 * kk + 4 * t
            if g < 96 and seg == 2:
                d = ACC[seg] + 8 * ab + 4 * t
                mfma16(d, x, w, None if kk == 0 else d)
            else:
                d = ACC[seg] + 8 * t + 4 * ab
                mfma16(d, w, x, d if kk else (None if g < 96 else ACC[seg] + 4 * ab))
            if more and h == 0 and n % 12 == 0:
                vm.wait(("w", n // 12))
                if n // 12 == cfg.flag_chunk:
                    vm.wait("st")
                a("s_barrier")
                if n // 12 == cfg.flag_chunk:
                    a("s_cmp_lg_u32 s60, 0")
                    a("s_cselect_b32 s79, 0x40000000, s79")
                    set_flag(7, "s79")
                    stamp(6)
            if more:
                reads(n, h)
            run_shadow((1 - h if g < 96 else 1) if more else 2)
        if g == cfg.b1at:
            b1loads()
    run_shadow(1000)
    stamp(7)
    hmath, hst = [], []
    for seg in range(3):
        pk = PK + 8 * seg
        hmath.append(relu2(ACC[seg]) + pack(ACC[seg], pk))
        hst.append((["s_add_u32 s78, s78, 0x40000"] if seg == 1 else []) + st2(pk, 127, "s78" if seg < 2 else "s88", 0, "hst", (0, 256)))
    for seg in range(cfg.hbar):
        shadow.extend(hmath[seg])
    run_shadow(1000)
    a("s_barrier")
    stamp(8)
    if cfg.bst == 4:
        stamp(1, True)
    a("s_setprio 2")
    for seg in range(cfg.hbar, cfg.hpre):
        shadow.extend(hmath[seg])
    run_shadow(1000)
    att_loads("a")
    if cfg.xt:
        for r in XKV:
            for q in range(8):
                a("v_mov_b32 %s, v7" % vr(r + 4 + q))
    hlist = [[hst[0][0]], [hst[0][1]], hst[1][:2], [hst[1][2]], [hst[2][0]], [hst[2][1]]]
    for seg in range(3):
        shadow.extend(hmath[seg] if seg >= max(cfg.hpre, cfg.hbar) else [])
        for n in (2 * seg, 2 * seg + 1):
            if n < cfg.hnow:
                shadow.extend(hlist[n])
    run_shadow(1000)
    stamp(9)


    def w2dma(i):
        if cfg.abl & 129:
            return
        a("s_add_u32 m0, s84, %d" % ((i & 3) * 2048))
        a("s_add_u32 s72, s85, %d" % (i * 65536))
        dma(4, SW2, "s72", 0, ("w2", i))
        a("s_add_u32 s72, s72, 7168")
        dma(4, SW2, "s72", 1024, ("w2", i))

    hreg = lambda i, tt: HB + 8 * (i % 3) + 4 * tt

    def hload(i):
        if cfg.abl & 257:
            return
        if i > 0:
            a("s_add_u32 s86, s86, 0x40000")
        for tt in range(2):
            bload(hreg(i, tt), 4, 1, SWS, "s86", tt * 1024, "sc1", ("h", i))

    def w2read(i, nt):
        if cfg.abl & 2:
            return
        vm.wait(("w2", i))
        trread(WF + 4 * nt, 5 + nt, (i & 3) * 2048, 1024, ("wf", i, nt))

    def fslot(f):
        i, m = divmod(f, 4)
        nt, tt = ((0, 0), (0, 1), (1, 1), (1, 0))[m]
        vm.wait(("h", i))
        lg.wait(("wf", i, nt))
        d = FA + 16 * (2 * tt + nt)
        if not cfg.abl & 4:
            mfma32(d, WF + 4 * nt, hreg(i, tt), None if i == 0 else d)
        if m == 1 and i + 1 < NS:
            deferred.append(lambda: w2read(i + 1, 0))
        if m == cfg.dmam and i + 4 < NS:
            deferred.append(lambda: w2dma(i + 4))
        if m == 3:
            if i + 1 < NS:
                deferred.append(lambda: w2read(i + 1, 1))
            if i + 3 < NS:
                deferred.append(lambda: hload(i + 3))

    def park(tt, nt):
        d = FA + 16 * (2 * tt + nt)
        for q in range(8):
            a("v_cvt_pk_bf16_f32 %s, %s, %s" % (vr(d + q), vr(d + 2 * q), vr(d + 2 * q + 1)))
        for q in range(2):
            dsw("ds_write_b128", 4, d + 4 * q, 4, tt * 32 * PART_STRIDE + nt * 64 + q * 32)

    def park_addr():
        a("v_and_b32 v4, 31, v0")
        a("v_mul_u32_u24 v4, %d, v4" % PART_STRIDE)
        a("v_lshrrev_b32 v5, 5, v0")
        a("v_lshl_add_u32 v4, v5, 4, v4")
        a("v_add_u32 v4, s84, v4")

    hooks = {}

    def hook(j, t, i, f):
        hooks.setdefault((j, t, i), []).append(f)

    n1 = cfg.n1
    for n in range(cfg.hnow, 6):
        tl = (n - cfg.hnow) * cfg.hgap + cfg.hoff
        hook(tl >> 2, tl & 3, 9, lambda n=n: (shadow.extend(hlist[n]), run_shadow(1000)))
    assert (5 - cfg.hnow) * cfg.hgap + cfg.hoff <= cfg.hflag < 4 * (n1 - 2)
    hook(cfg.hflag >> 2, cfg.hflag & 3, 12, lambda: (vm.wait("hst"), set_flag(7, "s80"), stamp(1) if cfg.hst else None))
    hook(n1 - 2, cfg.hpoll, 8, lambda: flag_load(7, cfg.fsh, "s87", "hf"))
    hook(n1 - 2, 3, 12, lambda: (vm.wait("hf"), stamp(2) if cfg.hst else None, check_flags("h", 7, cfg.fsh, "s87"), stamp(3) if cfg.hst else None))
    for i in range(4):
        hook(n1 - 3 + (i >> 1), 1 + (i & 1), 7, lambda i=i: w2dma(i))
    for i in range(3):
        hook(n1 - 1, i, 7, lambda i=i: hload(i))
    hook(n1 - 1, 3, 7, lambda: (w2read(0, 0), w2read(0, 1)))
    pat = [int(ch) for ch in str(cfg.fpat)]
    slots = [(j, t, pos) for j in range(n1, nA) for t in range(4) for pos in ((13,), (7, 13))[pat[t] - 1]]
    for f in range(4 * NS):
        hook(*slots[f], lambda f=f: fslot(f))
    rest = [jt for jt in tiles_of(nA) if jt > slots[4 * NS - 1][:2]]
    hook(*rest[0], 6, park_addr)
    for n, (nt, tt) in enumerate(((0, 0), (0, 1), (1, 1), (1, 0))):
        hook(*rest[n], 7, lambda tt=tt, nt=nt: park(tt, nt))
    if cfg.hst:
        for n in range(4):
            hook(n1 + 4 * n, 0, 1, lambda n=n: stamp(4 + n))
    if cfg.alow:
        hook(*tiles_of(nA)[-cfg.alow], 0, lambda: a("s_setprio 0"))
    if cfg.bst == 4:
        for n, j in enumerate(range(0, nA, 2)):
            hook(j, 2 if cfg.half and j == nA - 1 else 0, 0, lambda n=n: stamp(2 + n, True))
    def a_pf():
        a("; memory-side prefetch of w2 and wo")
        bload(255, 1, 125, SW2, "s100", 0, "", "pf")
        bload(255, 1, 125, SWO, "s100", 0, "", "pf")

    def a_wo(lo):
        if lo == 0:
            a("; wo tile -> LDS [0, 64K), a few rows per score tile")
            a("s_lshl_b32 s76, s60, 17")
            a("s_lshl_b32 s73, s67, 7")
            a("s_add_u32 s76, s76, s73")
            a("s_lshl_b32 s77, s60, 14")
        a("s_add_u32 m0, s77, %d" % (lo * 1024))
        for i in range(cfg.awn):
            a("s_add_u32 s73, s76, %d" % ((lo + i) * 8192 - i * 1024))
            dma(126, SWO, "s73", i * 1024, "wo")

    if cfg.apf:
        hook(cfg.apf >> 2, cfg.apf & 3, 9, a_pf)
    if cfg.awo:
        for n, lo in enumerate(range(0, 16, cfg.awn)):
            assert cfg.awo + n < 4 * n1
            hook((cfg.awo + n) >> 2, (cfg.awo + n) & 3, 9, lambda lo=lo: a_wo(lo))
    kvplan["xt"] = cfg.xt or None
    assert cfg.xt + 2 <= n1
    att_run(nA, hooks)
    kvplan["xt"] = None
    vm.drain()
    a("s_branch L_att_done")

    a.label("L_loader")
    vm.items = []
    lg.items = []

    def b_setup():
        a("; waves 4-7: W1 DMA offsets v56-v59 (sixth tile out of range where the next group owns it), flagQ row s79")
        a("""
        v_mul_u32_u24 v56, 2752, v4
        v_add_u32 v56, v56, v6
        s_lshr_b32 s72, 0xf8, s61
        s_and_b32 s72, s72, 1
        s_lshl_b32 s72, s72, 23
        v_and_b32 v57, 64, v6
        v_mad_u32_u24 v57, v57, s72, v56
        v_xor_b32 v58, 16, v56
        v_xor_b32 v59, 16, v57
        s_lshr_b32 s79, s64, 1
        s_lshl_b32 s79, s79, 10
        s_add_u32 s79, s79, %d
        s_and_b32 s73, s60, 3
        s_lshl_b32 s72, s69, 6
        s_mul_i32 s80, s73, %d
        s_add_u32 s80, s80, s72
        """ % (WS_FLAGQ, 16 * 2752))

        a("v_mov_b32 v3, 0xdddddddd")

    issued = cfg.lead
    setup1()
    state = {"issued": issued}

    def b_step(c):
        vm.wait(("w", c))
        if cfg.bst == 2:
            stamp(c, True)
        if cfg.bst == 3 and c == 0:
            stamp(9, True)
        a("s_barrier")
        if cfg.bst == 1:
            stamp(c, True)
        if c in (0, 8, 12, 15):
            stamp({0: 3, 8: 4, 12: 5, 15: 6}[c])
        if c == 14:
            flag_load(7, 4, "s79", "qf")
        if c == 15:
            vm.wait("qf")
            check_flags("q", 7, 4, "s79")
            stamp(7)
            att_loads("b")
        while state["issued"] < min(15, max(3, c + 2)):
            state["issued"] += 1
            issue_chunk(state["issued"])
        if c == 0:
            setup_pf((SW1,))
        if c == cfg.sA:
            setup2()
        if cfg.pf1_at == 12 + c:
            pf1()
        if c == cfg.sB:
            b_setup()
        if c == cfg.sC:
            setup3()
        if c == cfg.sC:
            for op in init1 + init2:
                a(op)
        if c == 7:
            a("s_waitcnt lgkmcnt(0)")
            a("s_add_u32 %s, %s, 0x%x" % (sr(sTAG), sr(sTAG), EPOCH_INC))

    def b_att():
        a("s_barrier")
        stamp(8)
        a("s_setprio 1")
        kvload(2)

    bhooks = {}
    for c in range(16):
        b_step(c)
    b_att()
    if cfg.bst == 4:
        for j in range(nB):
            bhooks.setdefault((j, 2 if cfg.half and j == nB - 1 else 0, 0), []).append(lambda j=j: stamp(2 + j, True))
    kvplan["jump"] = nB - 2 if cfg.half else None
    att_run(nB, bhooks)
    kvplan["jump"] = None
    vm.drain()

    OW = OA + 48
    WOF, OFR, AC, G, Z, X, SR = 128, 24, 8, 64, 96, 104, 112
    a.label("L_att_done")
    stamp(10)
    if cfg.bst == 4:
        stamp(14, True)
    a("s_setprio 0")
    a("s_and_b32 s73, s60, 1")
    a("s_lshl_b32 s73, s73, 9")
    a("s_sub_u32 s76, s95, s73")
    a("""
    s_and_b32 s74, s60, 3
    s_lshr_b32 s75, s60, 2
    v_lshrrev_b32 v14, 3, v0
    v_and_b32 v7, 7, v0
    v_lshlrev_b32 v7, 4, v7
    v_lshl_add_u32 v14, v14, 10, v7
    s_lshl3_add_u32 s78, s66, s60
    s_lshl_b32 s78, s78, 13
    s_lshl_b32 s79, s67, 7
    s_add_u32 s78, s78, s79
    """)
    bload(60, 4, 7, SB2, "s79", 0, "", "xb")
    bload(56, 4, 14, SX, "s78", 0, "", "xb")
    lg.drain()
    a("s_barrier")
    for src in range(3):
        d = SB + 10 * src
        dsr("ds_read_b128", d, 4, 9, src * 2304, src)
        dsr("ds_read_b128", d + 4, 4, 9, src * 2304 + 1024, src)
        dsr("ds_read_b32", d + 8, 1, 10, src * 2304 + 2048, src)
    for src in range(3):
        lg.wait(src)
        for i in range(0, 8, 2):
            a("v_pk_add_f32 %s, %s, %s" % (vr(OW + i, 2), vr(OW + i, 2), vr(SB + 10 * src + i, 2)))
        a("v_add_f32 %s, %s, %s" % (vr(OW + 8), vr(OW + 8), vr(SB + 10 * src + 8)))
    a("v_pk_mul_f32 v[12:13], %s, 0 op_sel_hi:[1,0]" % vr(OW, 2))
    for i in range(2, 8, 2):
        a("v_pk_fma_f32 v[12:13], %s, 0, v[12:13] op_sel_hi:[1,0,1]" % vr(OW + i, 2))
    a("""
    v_add_f32 v12, v12, %s
    v_add_f32 v12, v12, v13
    v_cmp_nle_f32 vcc, 0x30800000, v12
    s_mov_b64 s[72:73], vcc
    v_cmp_nge_f32 vcc, 0x5d800000, v12
    s_or_b64 s[72:73], s[72:73], vcc
    """ % vr(OW + 8))
    a("s_branch L_slow" if cfg.force_slow else "s_cbranch_scc1 L_slow")
    a.label("L_norm")
    a("v_rcp_f32 v12, %s" % vr(OW + 8))
    for i in range(0, 8, 2):
        a("v_pk_mul_f32 %s, %s, v[12:13] op_sel_hi:[1,0]" % (vr(OW + i, 2), vr(OW + i, 2)))
    for q in range(4):
        a("v_cvt_pk_bf16_f32 %s, %s, %s" % (vr(16 + q), vr(OW + 2 * q), vr(OW + 2 * q + 1)))
    a("v_and_b32 v16, -2, v16")
    bstore(16, 4, 11, SWS, "s76", 0, "sc1", "ost")
    stamp(11)
    a("v_mov_b32 v2, v14")
    a("v_lshrrev_b32 v3, 3, v0")
    a("""
    v_mul_u32_u24 v4, %d, v3
    s_mul_i32 s72, s60, %d
    s_add_u32 s72, s72, %d
    v_add3_u32 v4, v4, v7, s72
    """ % (PART_STRIDE, 8 * PART_STRIDE, L_W2))
    for j in range(4):
        dsr("ds_read_b128", G + 4 * j, 4, 4, j * W2_REGION, "g")
    a("""
    v_bfe_u32 v4, v0, 2, 2
    v_bfe_u32 v5, v0, 4, 1
    v_lshl_add_u32 v4, v5, 2, v4
    v_lshrrev_b32 v5, 1, v4
    v_lshlrev_b32 v92, 7, v4
    v_lshl_add_u32 v92, v5, 5, v92
    v_lshrrev_b32 v6, 5, v0
    v_lshl_add_u32 v92, v6, 11, v92
    v_and_b32 v4, 3, v0
    v_lshl_add_u32 v92, v4, 3, v92
    s_lshl_b32 s72, s75, 15
    v_add_u32 v92, s72, v92
    v_xor_b32 v93, 32, v92
    v_xor_b32 v94, 64, v92
    v_xor_b32 v95, 0x60, v92
    s_barrier
    """)

    def oloads(first=0):
        for ks in range(first, 8):
            bload(OFR + 4 * ks, 4, 1, SWS, ("s76", "s77", "s80", "s81")[ks >> 1], (ks & 1) * 2048, "sc1", ("o", ks))

    fill = ("""
    s_lshl2_add_u32 s72, s66, s74
    s_lshr_b32 s76, s72, 1
    s_lshl1_add_u32 s76, s76, s75
    s_lshl_b32 s76, s76, 14
    s_and_b32 s72, s72, 1
    s_lshl_b32 s72, s72, 10
    s_add_u32 s76, s76, s72
    s_add_u32 s76, s76, %d
    s_add_u32 s77, s76, 0x1000
    s_add_u32 s80, s76, 0x2000
    s_add_u32 s81, s76, 0x3000
    v_mul_u32_u24 v3, %d, v3
    v_lshl_add_u32 v3, v7, 1, v3
    s_mul_i32 s72, s60, %d
    s_add_u32 s72, s72, %d
    v_add_u32 v3, s72, v3
    v_and_b32 v5, 15, v0
    v_mul_u32_u24 v5, %d, v5
    v_and_b32 v4, 48, v0
    s_mul_i32 s72, s60, %d
    s_add_u32 s72, s72, %d
    v_add3_u32 v5, v5, v4, s72
    s_mov_b32 s82, 0x3f80
    s_mov_b32 s83, 0x3f800000
    """ % (WS_QO, SUM_STRIDE, 8 * SUM_STRIDE, L_SUM, SUM_STRIDE, 16 * SUM_STRIDE, L_SUM)).strip().split("\n")
    gate = ["v_mov_b32 %s, 0" % vr(Z + i) for i in range(8)]
    gate.append(lambda: lg.wait("g"))
    for j in range(5):
        if j == 4:
            gate.append(lambda: vm.wait("xb"))
        for q in range(4):
            src = G + 4 * j + q if j < 4 else 60 + q
            gate.append("v_dot2c_f32_bf16 %s, s82, %s" % (vr(Z + 2 * q), vr(src)))
            gate.append("v_dot2c_f32_bf16 %s, s83, %s" % (vr(Z + 2 * q + 1), vr(src)))
    for q in range(4):
        gate.append("v_lshlrev_b32 %s, 16, %s" % (vr(X + 2 * q), vr(56 + q)))
        gate.append("v_and_b32 %s, s89, %s" % (vr(X + 1 + 2 * q), vr(56 + q)))
    gate += ["v_mul_f32 %s, 0x%x, %s" % (vr(G + i), NLOG2E, vr(Z + i)) for i in range(8)]
    gate += ["v_exp_f32 %s, %s" % (vr(G + i), vr(G + i)) for i in range(8)]
    gate += ["v_add_f32 %s, 1.0, %s" % (vr(G + i), vr(G + i)) for i in range(8)]
    gate += ["v_rcp_f32 %s, %s" % (vr(G + i), vr(G + i)) for i in range(8)]
    gate += ["v_mul_f32 %s, %s, %s" % (vr(Z + i), vr(Z + i), vr(G + i)) for i in range(8)]

    def wo_reads(oat, per):
        for ks in range(8):
            for ct in range(4):
                trread(WOF + (ks * 4 + ct) * 4, 92 + ct, ks * 4096, 1024, ("wo", ks))
                run_shadow(per)
            if ks == oat:
                run_shadow(1000)
                vm.wait("ost")
                oloads()

    vm_t, lg_t = list(vm.items), list(lg.items)
    a("s_cmp_eq_u32 s63, 1")
    a("s_cbranch_scc1 L_tail_b")
    shadow.extend(fill)
    wo_reads(7, 1)
    shadow.extend(gate)
    run_shadow(1000)
    a("s_branch L_tail_j")
    a.label("L_tail_b")
    vm.items, lg.items = vm_t, lg_t
    shadow.extend(fill + gate)
    run_shadow(1000)
    wo_reads(cfg.oat, 0)
    a.label("L_tail_j")
    stamp(12)
    a("s_mov_b32 s73, 0")
    lg.drain()
    for ks in range(8):
        a.label("L_wo_%d" % ks)
        vm.wait(("o", ks))
        a("v_and_b32 v6, 1, %s" % vr(OFR + 4 * ks))
        a("v_cmp_ne_u32 vcc, 0, v6")
        a("s_cbranch_vccnz L_oretry_%d" % ks)
        a.label("L_ogo_%d" % ks)
        for ct in range(4):
            d = AC + 4 * ct
            mfma16(d, WOF + (ks * 4 + ct) * 4, OFR + 4 * ks, None if ks == 0 else d)
    stamp(13)
    for ct in range(4):
        dsw("ds_write_b128", 5, AC + 4 * ct, 4, ct * 64)
    lg.drain()
    a("s_barrier")
    stamp(14)
    dsr("ds_read_b128", SR, 4, 3, 0, 0)
    dsr("ds_read_b128", SR + 8, 4, 3, SUM_SIZE, 0)
    dsr("ds_read_b128", SR + 4, 4, 3, 16, 1)
    dsr("ds_read_b128", SR + 12, 4, 3, SUM_SIZE + 16, 1)
    for h in range(2):
        lg.wait(h)
        for i in range(4 * h, 4 * h + 4, 2):
            a("v_pk_add_f32 %s, %s, %s" % (vr(SR + i, 2), vr(SR + i, 2), vr(SR + 8 + i, 2)))
        for i in range(4 * h, 4 * h + 4, 2):
            a("v_pk_fma_f32 %s, %s, %s, %s" % (vr(SR + i, 2), vr(SR + i, 2), vr(Z + i, 2), vr(X + i, 2)))
        for q in range(2 * h, 2 * h + 2):
            a("v_cvt_pk_bf16_f32 %s, %s, %s" % (vr(G + q), vr(SR + 2 * q), vr(SR + 2 * q + 1)))
    bstore(G, 4, 2, SOUT, "s78", 0, ("", "sc1", "nt", "sc0 sc1", "sc0 sc1 nt")[cfg.omod])
    a("s_or_b32 s72, s2, s60")
    a("s_cmp_lg_u32 s72, 0")
    a("s_cbranch_scc1 L_noepoch")
    set_flag(7, "0")
    a.label("L_noepoch")
    if cfg.stamps:
        a("s_waitcnt vmcnt(0)")
        stamp(15)
        if cfg.probe is not None:
            a("s_sub_u32 s72, %s, s4" % sr(sSTAMP + cfg.probe))
            if cfg.stamps == 2:
                a("s_lshr_b32 s72, s72, 3")
            else:
                a("s_lshl_b32 s72, s72, %d" % cfg.probesh)
            a("s_cmp_lg_u32 s2, %d" % cfg.probewg)
            a("s_cselect_b32 s72, 0, s72")
            a("s_cmp_lg_u32 s60, %d" % cfg.probew)
            a("s_cselect_b32 s72, 0, s72")
            a("s_memrealtime s[22:23]")
            a("s_waitcnt lgkmcnt(0)")
            a("s_mov_b32 s73, s22")
            a.label("L_probe")
            a("s_memrealtime s[22:23]")
            a("s_waitcnt lgkmcnt(0)")
            a("s_sub_u32 s22, s22, s73")
            a("s_cmp_lt_u32 s22, s72")
            a("s_cbranch_scc1 L_probe")
        a("s_lshl3_add_u32 s72, s2, s60")
        a("s_lshl_b32 s72, s72, 6")
        a("s_add_u32 s72, s72, %d" % WS_STAMP)
        for i in range(16):
            a("v_mov_b32 %s, %s" % (vr(80 + i), sr(sSTAMP + i)))
        a("s_mov_b64 exec, 1")
        for i in range(4):
            bstore(80 + 4 * i, 4, 1, SWS, "s72", 16 * i)
    a.label("L_end")
    a("s_endpgm")

    for ks in range(8):
        a.label("L_oretry_%d" % ks)
        a("s_add_u32 s73, s73, 1")
        a("s_cmp_ge_u32 s73, %d" % SPIN_MAX)
        a("s_cbranch_scc1 L_ogo_%d" % ks)
        a("s_waitcnt vmcnt(0)")
        oloads(ks)
        a("s_branch L_wo_%d" % ks)

    for tag, vt, lanes, soff in stubs:
        a.label("L_poll_" + tag)
        a("s_mov_b32 s73, 0")
        a.label("L_poll2_" + tag)
        a("s_sleep %d" % cfg.sleep)
        flag_load(vt, lanes, soff, None)
        a("s_add_u32 s73, s73, 1")
        a("s_waitcnt vmcnt(0)")
        a("s_cmp_ge_u32 s73, %d" % SPIN_MAX)
        a("s_cbranch_scc1 L_polled_" + tag)
        a("v_cmp_ne_u32 vcc, %s, %s" % (sr(sTAG), vr(vt)))
        a("s_cbranch_vccnz L_poll2_" + tag)
        a("s_branch L_polled_" + tag)

    a.label("L_slow")
    CN = SB + 16
    a("s_waitcnt vmcnt(0)")
    a("v_mov_b32 v13, 0xff800000")
    a("s_mov_b32 s82, s83")
    a("s_mov_b32 s81, 64")
    a.label("L_slow1")
    bload(KV, 4, 252, SWS, "s82", 0, "sc1")
    a("s_add_u32 s82, s82, 2048")
    a("s_waitcnt vmcnt(0)")
    mfma32(SB, KV, QR + 12, None)
    for i in range(0, 16, 2):
        a("v_max3_f32 v13, v13, %s, %s" % (vr(SB + i), vr(SB + i + 1)))
    a("s_sub_u32 s81, s81, 1")
    a("s_cmp_lg_u32 s81, 0")
    a("s_cbranch_scc1 L_slow1")
    a("v_mov_b32 v15, v13")
    a("v_permlane32_swap_b32 v15, v13")
    a("v_max_f32 v13, v15, v13")
    for i in range(16):
        a("v_sub_f32 %s, 0, v13" % vr(CN + i))
        a("v_mov_b32 %s, 0" % vr(OW + i))
    a("s_mov_b32 s82, s83")
    a("s_mov_b32 s81, 64")
    a.label("L_slow2")
    kvload(0)
    a("s_waitcnt vmcnt(0)")
    mfma32(SB, KV, QR + 12, CN)
    for i in range(16):
        a("v_exp_f32 %s, %s" % (vr(SB + i), vr(SB + i)))
    smf(OW, KV + 4, SB)
    smf(OW, KV + 8, SB + 8)
    a("s_sub_u32 s81, s81, 1")
    a("s_cmp_lg_u32 s81, 0")
    a("s_cbranch_scc1 L_slow2")
    a("s_branch L_norm")
    a.label("L_code_end")
    a("s_endpgm")

    added = a.fix()
    return a.text().replace('FSH', str(cfg.fsh)).replace('FROW', str(cfg.fsh + 5)), added


HEADER = """; Kernarg layout for this problem (88 bytes, ptrs only, base s[0:1]):
; @launch grid=(256,1,1) block=(512,1,1) lds=163840
.amdgcn_target "amdgcn-amd-amdhsa--gfx950"
.text
.globl {k}
.p2align 8
.type {k},@function
{k}:
"""

FOOTER = """.section .rodata,"a"
.p2align 6
.amdhsa_kernel {k}
  .amdhsa_next_free_vgpr 256
  .amdhsa_next_free_sgpr 102
  .amdhsa_accum_offset 256
  .amdhsa_group_segment_fixed_size 0
  .amdhsa_kernarg_size 88
  .amdhsa_user_sgpr_count 2
  .amdhsa_user_sgpr_kernarg_segment_ptr 1
  .amdhsa_system_sgpr_workgroup_id_x 1
.end_amdhsa_kernel
"""


def build(**kw):
    cfg = Cfg()
    for k, v in kw.items():
        setattr(cfg, k, v)
    body, added = gen(cfg)
    return HEADER.format(k=KERNEL) + body + FOOTER.format(k=KERNEL), added


if __name__ == "__main__":
    out = sys.argv[1] if len(sys.argv) > 1 else "cdna_kernels/%s.s" % NAME
    kw = {}
    for arg in sys.argv[2:]:
        k, v = arg.split("=")
        kw[k] = int(v)
    text, added = build(**kw)
    open(out, "w").write(text)
    print("wrote", out, "lines", text.count("\n"), "nops added", added)
```

```python
import sys
import os
sys.path.insert(0, os.path.dirname(os.path.abspath(__file__)))
from asmlib import Asm, vr, sr

NAME = "recurrent_scan__softmax_full_mha__dense_activation_squared_relu__prompt"
KERNEL = NAME + "_kernel"

WS_FLAGQ = 0x1200
WS_FLAGH = 0x60000
WS_STAMP = 0x10000
WS_QO = 0x100000
WS_KV = 0x300000
WS_HF = 0x700000
WS_END = WS_HF + 86 * 65536
EPOCH_INC = 0x9E3779B9
SPIN_MAX = 1 << 18

L_RING = 65536
L_OPART = 65536
L_W2 = L_OPART + 55296
W2_REGION = 10240
PART_STRIDE = 144
SUM_STRIDE = 272
SUM_SIZE = 64 * SUM_STRIDE
L_SUM = L_OPART

SX, SWQ, SWO, SW1, SB1, SW2, SB2, SOUT, SWS = 24, 28, 32, 36, 40, 44, 48, 52, 56
sW, sCG, sTB, sRW, sP, sQB, sTBF, sCB, sTAG, sCT0 = 60, 61, 62, 63, 64, 65, 66, 67, 68, 69
sVM = 70
sSTAMP = 4

QSCALE = 0x3EB8AA3B
NLOG2E = 0xBFB8AA3B
NS = 22


class Cfg:
    abl = 0
    bst = 0
    n1 = 8
    nA = 21
    gap = 1
    kvi = 4
    dmam = 2
    fpat = 2222
    pf1_at = 13
    w2_at = 10
    stamps = 0
    force_slow = 0
    flag_chunk = 9
    lead = 1
    look = 5
    sleep = 6
    w0_at = 7
    w1_at = 10
    hpre = 2
    hbar = 0
    hnow = 2
    hgap = 2
    hoff = 0
    fsh = 4
    b1at = -10
    sA = 3
    sB = 3
    sC = 7
    alow = 1
    xt = 5
    pfeven = 1
    pmap = 1
    bload = 15
    hpoll = 0
    half = 1
    dlag = 1
    apf = 13
    awo = 20
    awn = 2
    hflag = 11
    probe = None
    omod = 1
    oat = 4
    probewg = 100
    probew = 0
    probesh = 4
    hst = 0


def srd(s):
    return sr(s, 4)


class Queue:
    def __init__(self, a, name, maxn):
        self.a, self.name, self.maxn, self.items = a, name, maxn, []

    def push(self, tag):
        self.items.append(tag)

    def wait(self, *tags):
        last = max((i for i, t in enumerate(self.items) if t in tags), default=-1)
        if last < 0:
            return
        n = len(self.items) - 1 - last
        self.a("s_waitcnt %s(%d)" % (self.name, min(n, self.maxn)))
        self.items = self.items[last + 1:]

    def drain(self):
        self.a("s_waitcnt %s(0)" % self.name)
        self.items = []


def gen(cfg):
    a = Asm()
    nA = cfg.nA
    nB = 32 - nA + cfg.half
    vm = Queue(a, "vmcnt", 63)
    lg = Queue(a, "lgkmcnt", 15)

    def stamp(i, force=False):
        if cfg.bst and not force and i != 0:
            return
        if cfg.stamps and (cfg.probe is None or i in (0, cfg.probe)):
            a("%s s[22:23]" % ("s_memtime" if cfg.stamps == 2 else "s_memrealtime"))
            a("s_waitcnt lgkmcnt(0)")
            a("s_mov_b32 %s, s22" % sr(sSTAMP + i))

    def mfma32(d, x, y, c):
        a("v_mfma_f32_32x32x16_bf16 %s, %s, %s, %s" % (vr(d, 16), vr(x, 4), vr(y, 4), "0" if c is None else vr(c, 16)))

    def mfma16(d, x, y, c):
        a("v_mfma_f32_16x16x32_bf16 %s, %s, %s, %s" % (vr(d, 4), vr(x, 4), vr(y, 4), "0" if c is None else vr(c, 4)))

    def smf(d, x, y):
        a("v_smfmac_f32_32x32x32_bf16 %s, %s, %s, v3" % (vr(d, 16), vr(x, 4), vr(y, 8)))

    def bload(d, n, va, s, so, off=0, mod="", tag=None):
        op = {1: "dword", 2: "dwordx2", 4: "dwordx4"}[n]
        a("buffer_load_%s %s, %s, %s, %s offen offset:%d %s" % (op, vr(d, n), vr(va), srd(s), so, off, mod))
        vm.push(tag)

    def bstore(d, n, va, s, so, off=0, mod="", tag=None):
        op = {1: "dword", 2: "dwordx2", 4: "dwordx4"}[n]
        a("buffer_store_%s %s, %s, %s, %s offen offset:%d %s" % (op, vr(d, n), vr(va), srd(s), so, off, mod))
        vm.push(tag)

    def dma(va, s, so, off=0, tag=None):
        a("buffer_load_dwordx4 %s, %s, %s offen offset:%d lds" % (vr(va), srd(s), so, off))
        vm.push(tag)

    def dsr(op, d, n, va, off, tag=None):
        a("%s %s, %s offset:%d" % (op, vr(d, n), vr(va), off))
        lg.push(tag)

    def dsw(op, va, d, n, off, tag=None):
        a("%s %s, %s offset:%d" % (op, vr(va), vr(d, n), off))
        lg.push(tag)

    def trread(d, va, off, second, tag=None):
        dsr("ds_read_b64_tr_b16", d, 2, va, off, tag)
        dsr("ds_read_b64_tr_b16", d + 2, 2, va, off + second, tag)

    def set_flag(vt, soff):
        a("v_mov_b32 %s, %s" % (vr(vt), sr(sTAG)))
        a("s_mov_b64 exec, 1")
        bstore(vt, 1, 1, SWS, soff, 0, "sc0 sc1")
        a("s_mov_b64 exec, -1")

    stubs = []

    def check_flags(tag, vt, lanes, soff):
        a("v_cmp_ne_u32 vcc, %s, %s" % (sr(sTAG), vr(vt)))
        a("s_cbranch_vccnz L_poll_" + tag)
        a.label("L_polled_" + tag)
        stubs.append((tag, vt, lanes, soff))

    def flag_load(vt, shift, soff, tag):
        a("v_and_b32 %s, 31, v0" % vr(vt))
        a("v_lshlrev_b32 %s, %d, %s" % (vr(vt), shift, vr(vt)))
        bload(vt, 1, vt, SWS, soff, 0, "sc0 sc1", tag)

    sizes = {SX: 2048 * 1024, SWQ: 512 * 3072, SWS: WS_END, SW1: 512 * 2752, SB1: 2752,
             SWO: 512 * 1024, SW2: 1376 * 1024, SB2: 1024, SOUT: 2048 * 1024}
    RAW = 128

    def xloads():
        for j in range(8):
            bload(RAW + j * 4, 4, 14, SX, "s101", j * 128, "", ("x", j))

    stamp(0)
    a("""
    s_load_dwordx2 s[24:25], s[0:1], 0
    s_getpc_b64 s[72:73]
    L_pc:
    s_cmpk_ge_u32 s2, 256
    s_cbranch_scc1 L_end
    s_lshr_b32 s74, s2, 3
    s_lshl_b32 s74, s74, 11
    v_lshrrev_b32 v8, 5, v0
    v_lshl_add_u32 v8, v8, 7, s74
    v_min_u32 v8, L_code_end-L_pc, v8
    v_mov_b32 v9, 0
    v_lshl_add_u64 v[8:9], v[8:9], 0, s[72:73]
    global_load_dword v7, v[8:9], off
    s_lshl_b32 s72, s2, 4
    s_and_b32 s72, s72, 0x180
    v_add_u32 v4, s72, v0
    v_bfe_u32 v4, v4, 3, 6
    v_and_b32 v5, 7, v0
    v_lshlrev_b32 v14, 10, v4
    v_lshl_add_u32 v14, v5, 4, v14
    s_lshr_b32 s67, s2, 5
    s_and_b32 s73, s2, 6
    s_lshl2_add_u32 s62, s73, s67
    s_lshl_b32 s101, s62, 16
    s_mov_b32 s26, %d
    s_mov_b32 s27, 0x20000
    v_bfe_u32 v24, v4, 1, 3
    v_xor_b32 v24, v24, v5
    v_lshlrev_b32 v15, 7, v4
    v_lshl_add_u32 v15, v24, 4, v15
    v_readfirstlane_b32 s60, v0
    v_and_b32 v0, 63, v0
    v_and_b32 v26, 3, v0
    v_mov_b32 v29, 0
    s_lshr_b32 s60, s60, 6
    s_cmp_ge_u32 s60, 4
    s_waitcnt lgkmcnt(0)
    """ % sizes[SX])
    vm.push("pf")
    if cfg.bst == 3:
        stamp(1, True)
    xloads()
    if cfg.bst == 3:
        stamp(2, True)
    if cfg.stamps:
        for i in range(3 if cfg.bst == 3 else 1, 16):
            a("s_mov_b32 %s, s4" % sr(sSTAMP + i))
    a("s_mov_b32 s63, 1")
    a("s_cbranch_scc1 L_ln")
    a("s_mov_b32 s63, 0")

    def setup1():
        for s, off in ((SWQ, 8), (SWS, 80), (SW1, 32), (SB1, 40), (SWO, 16), (SW2, 48), (SB2, 56), (SOUT, 64)):
            a("s_load_dwordx2 %s, s[0:1], %d" % (sr(s, 2), off))
        a("""
        s_mov_b32 s30, %d
        s_mov_b32 s31, 0x20000
        s_bfe_u32 s72, s2, 0x20003
        s_and_b32 s73, s2, 1
        s_lshl2_add_u32 s61, s73, s72
        s_and_b32 s74, s60, 3
        s_lshl_b32 s72, s61, 7
        s_mul_i32 s85, s74, %d
        s_add_u32 s85, s85, s72
        s_mul_i32 s87, s74, 6144
        s_add_u32 s87, s87, %d
        v_lshrrev_b32 v4, 3, v0
        v_bfe_u32 v6, v4, 1, 1
        v_lshlrev_b32 v6, 2, v6
        v_xor_b32 v6, v6, v5
        v_lshlrev_b32 v6, 4, v6
        v_mul_u32_u24 v13, 3072, v4
        v_add_u32 v13, v13, v6
        v_xor_b32 v33, 16, v13
        s_waitcnt lgkmcnt(0)
        """ % (sizes[SWQ], 16 * 3072, L_RING))

    def setup_pf(srds):
        for s in srds:
            a("s_mov_b32 %s, %d" % (sr(s + 2), sizes[s]))
            a("s_mov_b32 %s, 0x20000" % sr(s + 3))
        if cfg.pfeven:
            a("; memory-side prefetches are issued by even workgroups only, 22 lines per wave")
            a("""
            s_and_b32 s73, s60, 3
            s_lshl1_add_u32 s100, s2, s73
            s_mul_i32 s100, s100, 2816
            s_bitcmp1_b32 s2, 0
            s_cselect_b32 s100, 0x40000000, s100
            v_min_u32 v31, 21, v0
            v_lshlrev_b32 v31, 7, v31
            """)
        else:
            a("""
            s_and_b32 s73, s60, 3
            s_lshl2_add_u32 s100, s2, s73
            s_mul_i32 s100, s100, 1536
            v_min_u32 v31, 11, v0
            v_lshlrev_b32 v31, 7, v31
            """)

    def setup2():
        a("s_load_dword %s, %s, 0" % (sr(sTAG), sr(SWS, 2)))
        for s in (SWS, SB1, SB2, SOUT):
            a("s_mov_b32 %s, %d" % (sr(s + 2), sizes[s]))
            a("s_mov_b32 %s, 0x20000" % sr(s + 3))
        a("""
        s_bfe_u32 s72, s2, 0x20003
        s_and_b32 s73, s2, 7
        s_lshl2_add_u32 s66, s73, s72
        s_and_b32 s72, s72, 1
        PMAP
        s_lshr_b32 s65, s2, 4
        s_mul_i32 s69, s61, 6
        s_mul_i32 s73, s61, 5
        s_add_u32 s73, s73, 3
        s_min_u32 s69, s69, s73
        s_mov_b32 s70, 0xffff
        s_mov_b32 s71, 0xffff
        v_lshlrev_b32 v1, 4, v0
        v_and_b32 v2, 15, v0
        v_lshrrev_b32 v3, 5, v0
        v_lshl_add_u32 v2, v3, 4, v2
        v_lshlrev_b32 v2, 4, v2
        """.replace("PMAP", "s_and_b32 s64, s2, 6\ns_add_u32 s72, s72, s64\ns_and_b32 s64, s2, 1\ns_lshl3_add_u32 s64, s64, s72"
                    if cfg.pmap else "s_lshl1_add_u32 s64, s73, s72"))

    def setup3():
        a("; attention offsets: s82 = next K/V tile, s83 = head base, s92-s95 = Q tiles, s96-s99 = O partial slots")
        a("""
        s_and_b32 s74, s60, 1
        s_lshr_b32 s75, s60, 1
        s_lshl1_add_u32 s72, s64, s74
        s_lshl_b32 s83, s72, 17
        s_add_u32 s83, s83, %d
        s_and_b32 s73, s75, 1
        s_lshl_b32 s73, s73, 16
        s_add_u32 s82, s83, s73
        s_lshl_b32 s72, s65, 6
        s_add_u32 s72, s72, s64
        s_lshl1_add_u32 s72, s72, s74
        s_lshl_b32 s72, s72, 10
        s_add_u32 s72, s72, %d
        s_mul_i32 s84, s74, %d
        s_add_u32 s84, s84, %d
        """ % (WS_KV, WS_QO, 12 * 2304, L_OPART))
        for t in range(4):
            a("s_xor_b32 s73, s75, %d" % (t ^ 3))
            a("s_mul_i32 %s, s73, %d" % (sr(96 + t), 3 * 2304))
            a("s_lshl_b32 s73, s73, 15")
            a("s_add_u32 %s, s72, s73" % sr(92 + t))
            a("s_add_u32 %s, %s, s84" % (sr(96 + t), sr(96 + t)))

    setup1()
    setup_pf((SWO, SW2))
    setup2()
    a("s_and_b32 s74, s60, 1")
    a("s_lshr_b32 s75, s60, 1")
    a("""
    v_bfe_u32 v9, v0, 4, 1
    v_and_b32 v16, 15, v0
    v_lshlrev_b32 v8, 4, v16
    v_lshl_add_u32 v8, v9, 9, v8
    v_lshl_add_u32 v11, v3, 17, v8
    v_lshl_add_u32 v14, v3, 10, v8
    v_lshl_add_u32 v127, v3, 16, v8
    v_lshrrev_b32 v17, 4, v0
    v_bfe_u32 v8, v0, 3, 1
    v_lshlrev_b32 v12, 4, v5
    v_lshl_add_u32 v12, v17, 8, v12
    v_lshl_add_u32 v12, v8, 17, v12
    v_lshrrev_b32 v8, 1, v16
    v_xor_b32 v8, v8, v17
    v_lshlrev_b32 v16, 7, v16
    v_lshl_add_u32 v16, v8, 4, v16
    s_lshl_b32 s72, s74, 12
    v_add_u32 v16, s72, v16
    v_xor_b32 v17, 64, v16
    v_mov_b32 v125, v31
    v_and_b32 v126, 6, v4
    v_xor_b32 v126, v126, v5
    v_lshlrev_b32 v126, 4, v126
    v_lshl_add_u32 v126, v4, 10, v126
    v_lshl_add_u32 v4, v4, 10, v6
    v_bfe_u32 v10, v0, 2, 2
    v_lshrrev_b32 v6, 1, v10
    v_xor_b32 v8, s75, v6
    v_and_b32 v18, 2, v0
    v_lshl_add_u32 v8, v8, 2, v18
    v_add_u32 v8, v8, v9
    v_lshlrev_b32 v8, 1, v8
    v_and_or_b32 v8, v0, 1, v8
    v_lshlrev_b32 v8, 3, v8
    v_lshl_add_u32 v8, v10, 7, v8
    v_lshl_add_u32 v8, v9, 10, v8
    v_mul_u32_u24 v18, 6144, v3
    v_add_u32 v8, v8, v18
    v_add_u32 v8, %d, v8
    v_xor_b32 v18, 16, v8
    v_add_u32 v19, %d, v18
    v_lshlrev_b32 v5, 5, v9
    v_lshl_add_u32 v5, v10, 7, v5
    v_and_b32 v10, 3, v0
    v_lshl_add_u32 v5, v10, 3, v5
    v_lshl_add_u32 v5, v3, 9, v5
    v_lshl_add_u32 v5, v6, 6, v5
    v_lshrrev_b32 v10, 1, v0
    v_xor_b32 v10, v10, v0
    v_and_b32 v10, 1, v10
    v_mul_u32_u24 v10, 24, v10
    v_xor_b32 v5, v5, v10
    s_mul_i32 s84, s60, %d
    s_add_u32 s84, s84, %d
    v_add_u32 v5, s84, v5
    v_xor_b32 v6, 64, v5
    v_lshlrev_b32 v10, 3, v9
    v_lshl_add_u32 v10, v3, 5, v10
    v_xor_b32 v9, 16, v19
    v_mov_b32 v3, 0xdddddddd
    """ % (L_RING, 2 * 24576, W2_REGION, L_W2))

    def setup_a():
        setup3()
        a("s_add_u32 s82, s82, %d" % ((32 - nA) * 2048))
        a("s_mul_i32 s84, s60, %d" % W2_REGION)
        a("s_add_u32 s84, s84, %d" % L_W2)
        a("""
        s_lshl1_add_u32 s72, s62, s74
        s_lshl1_add_u32 s73, s61, s75
        s_lshl_b32 s76, s73, 7
        s_add_u32 s76, s76, s72
        s_lshl_b32 s77, s76, 11
        s_lshl4_add_u32 s76, s72, s73
        s_lshl_b32 s76, s76, 11
        s_add_u32 s76, s76, %d
        s_add_u32 s77, s77, %d
        s_add_u32 s81, s69, s75
        s_lshl_b32 s78, s81, 7
        s_add_u32 s78, s78, s72
        s_lshl_b32 s78, s78, 10
        s_add_u32 s78, s78, %d
        s_lshl_b32 s79, s61, 6
        s_add_u32 s79, s79, s62
        s_lshl_b32 s79, s79, 4
        s_add_u32 s79, s79, %d
        s_lshl_b32 s80, s62, 3
        s_add_u32 s80, s80, s61
        s_lshl2_add_u32 s80, s80, s60
        s_lshl_b32 s80, s80, FSH
        s_add_u32 s80, s80, %d
        s_mul_i32 s73, s61, s75
        s_add_u32 s88, s78, %d
        s_cmp_lt_u32 s73, 3
        s_cselect_b32 s88, s88, 0x40000000
        """ % (WS_QO, WS_KV, WS_HF, WS_FLAGQ, WS_FLAGH, 8 * 65536))


    def slot_of(c):
        return (c & 3) * 24576

    def issue_chunk(c):
        stride = 3072 if c < 8 else 2752
        a("s_xor_b32 s73, s67, %d" % (c & 7))
        a("s_mul_i32 s73, s73, %d" % (64 * stride))
        a("s_add_u32 s73, s73, %s" % ("s85" if c < 8 else "s80"))
        for m in range(6):
            blk, seg = divmod(m, 3)
            a("s_add_u32 m0, s87, %d" % (slot_of(c) + seg * 2048 + blk * 1024))
            a("s_add_u32 s72, s73, %d" % (blk * 8 * stride + seg * (1024 if c < 8 else 128)))
            if c < 8:
                dma(33 if blk else 13, SWQ, "s72", 0, ("w", c))
            else:
                dma(56 + (seg == 2) + 2 * blk, SW1, "s72", 0, ("w", c))

    def layernorm(acts):
        def act(p):
            if acts.get(p):
                assert p >= 7
                a("s_cmp_eq_u32 s63, 1")
                a("s_cbranch_scc1 L_ln_%d" % p)
                for f in acts[p]:
                    f()
                a.label("L_ln_%d" % p)
        a.label("L_ln")
        a("""
        v_mov_b32 v232, 0x3f803f80
        v_mov_b32 v233, 0x3f803f80
        v_lshlrev_b32 v26, 4, v26
        v_mov_b32 v28, 0xffff
        v_lshlrev_b64 v[28:29], v26, v[28:29]
        """)
        a("s_mov_b32 s89, 0xffff0000")
        a("s_lshl_b32 s72, s67, 13")
        a("v_or_b32 v15, s72, v15")

        def xwrite(j):
            a("v_xor_b32 v23, 0x%x, v15" % (j << 13))
            a("ds_write_b128 v23, %s" % vr(RAW + j * 4, 4))

        def m4(d, x, y, c):
            a("v_mfma_f32_4x4x4_16b_bf16 %s, %s, %s, %s" % (vr(d, 4), vr(x, 2), vr(y, 2), "0" if c is None else vr(c, 4)))

        S, GM, T, CN, AH = 208, 216, 192, 224, 228
        for j in range(8):
            vm.wait(("x", j))
            if cfg.bst == 3 and j in (0, 3, 7):
                stamp({0: 4, 3: 5, 7: 6}[j], True)
            if j == 7:
                act(7)
            for h in range(2):
                x = RAW + j * 4 + 2 * h
                m4(S + 4 * h, 232, x, S + 4 * h if j else None)
                m4(GM + 4 * h, x, x, GM + 4 * h if j else None)
        act(8)
        stamp(1)
        a("v_add_f32 v24, %s, %s" % (vr(S), vr(S + 4)))
        for r in range(4):
            a("v_add_f32 %s, %s, %s" % (vr(GM + r), vr(GM + r), vr(GM + 4 + r)))
        dpp = "row_mask:0xf bank_mask:0xf"
        a("v_add_f32_dpp v24, v24, v24 quad_perm:[1,0,3,2] " + dpp)
        a("v_mov_b32_dpp v25, %s quad_perm:[0,0,0,0] %s" % (vr(GM), dpp))
        a("v_add_f32_dpp v25, %s, v25 quad_perm:[1,1,1,1] %s" % (vr(GM + 1), dpp))
        a("v_add_f32_dpp v24, v24, v24 quad_perm:[2,3,0,1] " + dpp)
        a("v_add_f32_dpp v25, %s, v25 quad_perm:[2,2,2,2] %s" % (vr(GM + 2), dpp))
        a("v_add_f32_dpp v25, %s, v25 quad_perm:[3,3,3,3] %s" % (vr(GM + 3), dpp))
        a("v_add_f32_dpp v24, v24, v24 row_half_mirror " + dpp)
        a("v_add_f32_dpp v25, v25, v25 row_half_mirror " + dpp)
        a("""
        v_mul_f32 v24, 0x3b000000, v24
        v_mul_f32 v25, 0x3b000000, v25
        v_fma_f32 v25, -v24, v24, v25
        v_max_f32 v25, 0, v25
        v_cvt_pk_bf16_f32 v24, v24, v25
        v_and_b32 v25, s89, v24
        v_add_f32 v25, 0x3727c5ac, v25
        v_cvt_pk_bf16_f32 v25, v25, v25
        v_and_b32 v25, s89, v25
        v_sqrt_f32 v25, v25
        v_lshlrev_b32 v24, 16, v24
        v_cvt_pk_bf16_f32 v25, v25, v25
        v_and_b32 v25, s89, v25
        v_rcp_f32 v26, v25
        v_cvt_pk_bf16_f32 v27, v26, v26
        v_and_b32 v25, s89, v27
        v_sub_f32 v25, v26, v25
        v_cvt_pk_bf16_f32 v25, v25, v25
        v_and_b32 v228, v27, v28
        v_and_b32 v229, v27, v29
        v_and_b32 v230, v25, v28
        v_and_b32 v231, v25, v29
        """)
        for r in range(4):
            a("v_mul_f32_e64 %s, -v24, v26" % vr(CN + r))

        def finish(j, q):
            t = T + 8 * (j & 1)
            a("v_cvt_pk_bf16_f32 %s, %s, %s" % (vr(RAW + 4 * j + q), vr(t + 2 * q), vr(t + 2 * q + 1)))
            if q == 3:
                xwrite(j)

        for j in range(9):
            for q in range(4):
                if j < 8:
                    t = T + 8 * (j & 1) + 4 * (q & 1)
                    m4(t, AH + 2 * (q >> 1), RAW + 4 * j + 2 * (q & 1), CN if q < 2 else t)
                if j:
                    finish(j - 1, q)
        if cfg.bst == 3:
            stamp(7, True)
        act(9)
        act(10)
        stamp(2)
        if cfg.bst == 3:
            stamp(8, True)

    def pf1():
        a("; memory-side prefetch of W1")
        bload(32, 1, 31, SW1, "s100", 0, "", "pf")

    def b1loads():
        a("s_lshr_b32 s3, s60, 1")
        a("s_add_u32 s3, s3, s69")
        a("s_lshl_b32 s3, s3, 6")
        for q in range(6):
            bload(112 + 2 * q, 2, 10, SB1, "s3", (q >> 1) * 128 + (q & 1) * 16, "", "b1")

    acts = {}
    for c, p in enumerate((cfg.w0_at, cfg.w1_at, cfg.w2_at, 10)[:cfg.lead + 1]):
        acts.setdefault(p, []).append(lambda c=c: issue_chunk(c))
    if cfg.b1at < 0:
        acts.setdefault(-cfg.b1at, []).insert(0, b1loads)
    layernorm(acts)
    a("s_cmp_eq_u32 s63, 1")
    a("s_cbranch_scc1 L_loader")

    QR, SB, WF, FA, OA, KV, HB = 8, 24, 56, 64, 128, 192, 228
    NKV = 3

    def att_init_ops():
        ops = ["v_mov_b32 %s, 0" % vr(OA + 16 * t + i) for t in range(4) for i in range(16)]
        ops2 = ["v_and_b32 v7, 27, v0", "v_cmp_eq_u32 vcc, 16, v7", "v_mov_b32 v7, 0x3f803f80", "v_cndmask_b32 v7, 0, v7, vcc"]
        ops2 += ["v_mov_b32 %s, v7" % vr(KV + 12 * b + 4 + q) for b in range(NKV) for q in range(8)]
        return ops, ops2

    XKV = (72, 84)
    kvplan = {"xt": None}

    def kvreg(j):
        xt = kvplan["xt"]
        if xt is not None and j in (xt, xt + 1):
            return XKV[j - xt]
        return KV + 12 * ((j - 2 if xt is not None and j > xt else j) % NKV)

    def kvsched(n):
        at, pos = {}, 0
        for j in range(NKV, n):
            prev = [p for p in range(j) if kvreg(p) == kvreg(j)]
            pos = max(pos + 1, 4 * (prev[-1] + 1) if prev else 0)
            at[(pos >> 2, pos & 3)] = j
        return at

    def kvload(j):
        r = kvreg(j)
        bload(r, 4, 252, SWS, "s82", 0, "sc1", ("kv", j))
        a("s_mov_b64 exec, %s" % sr(sVM, 2))
        bload(r + 4, 4, 2, SWS, "s82", 1024, "sc1", ("kv", j))
        bload(r + 8, 4, 2, SWS, "s82", 1536, "sc1", ("kv", j))
        a("s_mov_b64 exec, -1")
        a("s_add_u32 s82, s82, %d" % (2048 * (nA if j == kvplan.get("jump") else 1)))

    def att_loads(role):
        a("; key slot 8a+4b+c holds token 16b+4a+c, matching the order of the V fragments")
        a("v_and_b32 v252, 0x230, v1")
        a("v_and_b32 v253, 0x180, v1")
        a("v_lshrrev_b32 v253, 1, v253")
        a("v_and_b32 v254, 64, v1")
        a("v_lshlrev_b32 v254, 2, v254")
        a("v_or3_b32 v252, v252, v253, v254")
        bload(QR, 4, 1, SWS, "s92", 0, "sc1", "q")
        kvload(0)
        for t in range(1, 4):
            bload(QR + 4 * t, 4, 1, SWS, sr(92 + t), 0, "sc1", "q")
        kvload(1)
        if role == "a":
            kvload(2)

    def dump_addr():
        a("v_lshlrev_b32 v8, 2, v0")
        a("v_add_u32 v9, s99, v1")
        a("v_add_u32 v10, s99, v8")
        a("v_bfe_u32 v11, v0, 4, 1")
        a("v_lshl_add_u32 v11, v11, 10, v2")

    def dump(t):
        a("v_add_u32 v12, %s, v1" % sr(96 + t))
        a("v_add_u32 v13, %s, v8" % sr(96 + t))
        dsw("ds_write_b128", 12, OA + 16 * t, 4, t * 2304)
        dsw("ds_write_b128", 12, OA + 16 * t + 4, 4, t * 2304 + 1024)
        dsw("ds_write_b32", 13, OA + 16 * t + 8, 1, t * 2304 + 2048)

    deferred = []
    cfg_gap = {0: range(16), 1: (1, 10), 2: (0, 9), 3: (4, 10), 4: (1,), 5: (4,), 6: (15, 9)}[cfg.gap]

    def tiles_of(n):
        return [(j, t) for j in range(n) for t in range(4) if not (cfg.half and j == n - 1 and t < 2)]

    def att_run(n, hooks):
        tiles = tiles_of(n)
        last = {t: max(p for p, jt in enumerate(tiles) if jt[1] == t) for t in range(4)}
        hooks.setdefault(tiles[last[0]] + (11,), []).append(dump_addr)
        for t in range(3):
            hooks.setdefault(tiles[last[t] + (cfg.dlag if t < 2 and cfg.half else 1)] + (12,), []).append(lambda t=t: dump(t))
        assert all(k[:2] in tiles for k in hooks)
        vm.wait("q", ("kv", 0))
        mfma32(SB, KV, QR, None)
        loads = kvsched(n)
        for p, (j, t) in enumerate(tiles):
            cur, oth = SB + 16 * (p & 1), SB + 16 * ((p + 1) & 1)
            for i in range(16):
                a("v_exp_f32 %s, %s" % (vr(cur + i), vr(cur + i)))
                if i in cfg_gap:
                    while deferred:
                        deferred.pop(0)()
                if i == cfg.kvi and (j, t) in loads and not cfg.abl & 32:
                    kvload(loads[(j, t)])
                if i == 1 and p:
                    smf(OA + 16 * tiles[p - 1][1], kvreg(tiles[p - 1][0]) + 8, oth + 8)
                if i == 4 and p + 1 < len(tiles):
                    nj, nt = tiles[p + 1]
                    vm.wait(("kv", nj))
                    mfma32(oth, kvreg(nj), QR + 4 * nt, None)
                if i == 10:
                    smf(OA + 16 * t, kvreg(j) + 4, cur)
                for h in hooks.get((j, t, i), ()):
                    h()
        smf(OA + 48, kvreg(n - 1) + 8, SB + 16 + 8)

    ACC = (24, 40, 56)
    WB, NBUF, LA = 72, 6, cfg.look
    XF, PK, XA = 128, 96, 16
    init1, init2 = att_init_ops()

    def item(g):
        kk, m = divmod(g % 96, 6)
        return kk, m >> 1, m & 1

    def reads(g, part=None):
        kk, seg, ab = item(g)
        so = slot_of(g // 12)
        base = (8, 18)[ab] + so // 49152
        off = so % 49152 + (kk & 1) * 12288 + seg * 2048
        for h in range(2):
            if part in (None, h):
                if g < 96 and seg == 0 and ab == 0:
                    dsr("ds_read_b128", XF + 8 * kk + 4 * h, 4, XA + (kk & 1), (kk >> 1) * 8192 + h * 2048, g)
                dsr("ds_read_b64_tr_b16", WB + 4 * (g % NBUF) + 2 * h, 2, base, off + 512 * h, g)

    def pack(acc, pk):
        return ["v_cvt_pk_bf16_f32 %s, %s, %s" % (vr(pk + q), vr(acc + 2 * q), vr(acc + 2 * q + 1)) for q in range(8)]

    def st2(pk, va, base, delta, tag, imm=(0, 0), vb=None):
        def first():
            bstore(pk, 4, va, SWS, base, imm[0], "sc1", tag)

        def second():
            if delta:
                a("s_add_u32 s72, %s, %d" % (base, delta))
            bstore(pk + 4, 4, vb or va, SWS, "s72" if delta else base, imm[1], "sc1", tag)
        return [first, second]

    def relu2(acc):
        return (["v_max_f32 %s, 0, %s" % (vr(acc + i), vr(acc + i)) for i in range(16)]
                + ["v_mul_f32 %s, %s, %s" % (vr(acc + i), vr(acc + i), vr(acc + i)) for i in range(16)])

    def bias(seg):
        ops = [lambda: vm.wait("b1")]
        for q in range(4):
            ops.append("v_lshlrev_b32 %s, 16, %s" % (vr(ACC[seg] + 2 * q), vr(112 + 4 * seg + q)))
            ops.append("v_and_b32 %s, s89, %s" % (vr(ACC[seg] + 2 * q + 1), vr(112 + 4 * seg + q)))
        return ops

    tagq = ["v_or_b32 %s, 1, %s" % (vr(PK + 4 * q), vr(PK + 4 * q)) for q in range(2)]
    qkv_epi = (["v_mul_f32 %s, 0x%x, %s" % (vr(ACC[0] + i), QSCALE, vr(ACC[0] + i)) for i in range(16)]
               + pack(ACC[0], PK) + tagq + st2(PK, 14, "s76", 0, "st", (0, 256))
               + pack(ACC[1], PK + 8) + st2(PK + 8, 11, "s77", 0, "st", (0, 256))
               + pack(ACC[2], PK) + st2(PK, 12, "s77", 0, "st", (1024, 1152))
               + bias(0) + bias(1) + bias(2))
    sched = {108 + 12 * t: init1[16 * t:16 * t + 16] for t in range(4)}
    sched[174] = init2
    shadow = []

    def run_shadow(budget):
        while shadow and budget > 0:
            op = shadow.pop(0)
            if isinstance(op, str):
                a(op)
                budget -= 1
            else:
                op()
                budget -= 3

    mark = len(a.items)
    setup_a()
    a("""
    s_lshl_b32 s85, s60, 14
    s_lshl_b32 s72, s67, 7
    s_add_u32 s85, s85, s72
    s_lshl_b32 s86, s60, 6
    s_lshl1_add_u32 s86, s66, s86
    s_lshl_b32 s86, s86, 10
    s_add_u32 s86, s86, %d
    s_lshl_b32 s87, s66, FROW
    s_add_u32 s87, s87, %d
    """ % (WS_HF, WS_FLAGH))
    sched[0] = [v.text for k, v in a.items[mark:] if k == "ins"]
    del a.items[mark:]
    vm.wait(("w", 0))
    a("s_waitcnt lgkmcnt(0)")
    a("s_add_u32 %s, %s, 0x%x" % (sr(sTAG), sr(sTAG), EPOCH_INC))
    if cfg.bst == 3:
        stamp(9, True)
    a("s_barrier")
    stamp(3)
    if cfg.bst == 3:
        stamp(10, True)
    for g in range(LA):
        reads(g)
    for g in range(192):
        kk, seg, ab = item(g)
        if g == 96:
            stamp(4)
            shadow.extend(qkv_epi)
            run_shadow(1000)
            stamp(5)
            a("s_barrier")
            for n in range(96, 96 + LA):
                reads(n)
        lg.wait(g)
        w = WB + 4 * (g % NBUF)
        n = g + LA
        more = n < 192 and not g < 96 <= n
        shadow.extend(sched.get(g, ()))
        for h, t in enumerate((1, 0)):
            x = XF + 8 * kk + 4 * t
            if g < 96 and seg == 2:
                d = ACC[seg] + 8 * ab + 4 * t
                mfma16(d, x, w, None if kk == 0 else d)
            else:
                d = ACC[seg] + 8 * t + 4 * ab
                mfma16(d, w, x, d if kk else (None if g < 96 else ACC[seg] + 4 * ab))
            if more and h == 0 and n % 12 == 0:
                vm.wait(("w", n // 12))
                if n // 12 == cfg.flag_chunk:
                    vm.wait("st")
                a("s_barrier")
                if n // 12 == cfg.flag_chunk:
                    a("s_cmp_lg_u32 s60, 0")
                    a("s_cselect_b32 s79, 0x40000000, s79")
                    set_flag(7, "s79")
                    stamp(6)
            if more:
                reads(n, h)
            run_shadow((1 - h if g < 96 else 1) if more else 2)
        if g == cfg.b1at:
            b1loads()
    run_shadow(1000)
    stamp(7)
    hmath, hst = [], []
    for seg in range(3):
        pk = PK + 8 * seg
        hmath.append(relu2(ACC[seg]) + pack(ACC[seg], pk))
        hst.append((["s_add_u32 s78, s78, 0x40000"] if seg == 1 else []) + st2(pk, 127, "s78" if seg < 2 else "s88", 0, "hst", (0, 256)))
    for seg in range(cfg.hbar):
        shadow.extend(hmath[seg])
    run_shadow(1000)
    a("s_barrier")
    stamp(8)
    if cfg.bst == 4:
        stamp(1, True)
    a("s_setprio 2")
    for seg in range(cfg.hbar, cfg.hpre):
        shadow.extend(hmath[seg])
    run_shadow(1000)
    att_loads("a")
    if cfg.xt:
        for r in XKV:
            for q in range(8):
                a("v_mov_b32 %s, v7" % vr(r + 4 + q))
    hlist = [[hst[0][0]], [hst[0][1]], hst[1][:2], [hst[1][2]], [hst[2][0]], [hst[2][1]]]
    for seg in range(3):
        shadow.extend(hmath[seg] if seg >= max(cfg.hpre, cfg.hbar) else [])
        for n in (2 * seg, 2 * seg + 1):
            if n < cfg.hnow:
                shadow.extend(hlist[n])
    run_shadow(1000)
    stamp(9)


    def w2dma(i):
        if cfg.abl & 129:
            return
        a("s_add_u32 m0, s84, %d" % ((i & 3) * 2048))
        a("s_add_u32 s72, s85, %d" % (i * 65536))
        dma(4, SW2, "s72", 0, ("w2", i))
        a("s_add_u32 s72, s72, 7168")
        dma(4, SW2, "s72", 1024, ("w2", i))

    hreg = lambda i, tt: HB + 8 * (i % 3) + 4 * tt

    def hload(i):
        if cfg.abl & 257:
            return
        if i > 0:
            a("s_add_u32 s86, s86, 0x40000")
        for tt in range(2):
            bload(hreg(i, tt), 4, 1, SWS, "s86", tt * 1024, "sc1", ("h", i))

    def w2read(i, nt):
        if cfg.abl & 2:
            return
        vm.wait(("w2", i))
        trread(WF + 4 * nt, 5 + nt, (i & 3) * 2048, 1024, ("wf", i, nt))

    def fslot(f):
        i, m = divmod(f, 4)
        nt, tt = ((0, 0), (0, 1), (1, 1), (1, 0))[m]
        vm.wait(("h", i))
        lg.wait(("wf", i, nt))
        d = FA + 16 * (2 * tt + nt)
        if not cfg.abl & 4:
            mfma32(d, WF + 4 * nt, hreg(i, tt), None if i == 0 else d)
        if m == 1 and i + 1 < NS:
            deferred.append(lambda: w2read(i + 1, 0))
        if m == cfg.dmam and i + 4 < NS:
            deferred.append(lambda: w2dma(i + 4))
        if m == 3:
            if i + 1 < NS:
                deferred.append(lambda: w2read(i + 1, 1))
            if i + 3 < NS:
                deferred.append(lambda: hload(i + 3))

    def park(tt, nt):
        d = FA + 16 * (2 * tt + nt)
        for q in range(8):
            a("v_cvt_pk_bf16_f32 %s, %s, %s" % (vr(d + q), vr(d + 2 * q), vr(d + 2 * q + 1)))
        for q in range(2):
            dsw("ds_write_b128", 4, d + 4 * q, 4, tt * 32 * PART_STRIDE + nt * 64 + q * 32)

    def park_addr():
        a("v_and_b32 v4, 31, v0")
        a("v_mul_u32_u24 v4, %d, v4" % PART_STRIDE)
        a("v_lshrrev_b32 v5, 5, v0")
        a("v_lshl_add_u32 v4, v5, 4, v4")
        a("v_add_u32 v4, s84, v4")

    hooks = {}

    def hook(j, t, i, f):
        hooks.setdefault((j, t, i), []).append(f)

    n1 = cfg.n1
    for n in range(cfg.hnow, 6):
        tl = (n - cfg.hnow) * cfg.hgap + cfg.hoff
        hook(tl >> 2, tl & 3, 9, lambda n=n: (shadow.extend(hlist[n]), run_shadow(1000)))
    assert (5 - cfg.hnow) * cfg.hgap + cfg.hoff <= cfg.hflag < 4 * (n1 - 2)
    hook(cfg.hflag >> 2, cfg.hflag & 3, 12, lambda: (vm.wait("hst"), set_flag(7, "s80"), stamp(1) if cfg.hst else None))
    hook(n1 - 2, cfg.hpoll, 8, lambda: flag_load(7, cfg.fsh, "s87", "hf"))
    hook(n1 - 2, 3, 12, lambda: (vm.wait("hf"), stamp(2) if cfg.hst else None, check_flags("h", 7, cfg.fsh, "s87"), stamp(3) if cfg.hst else None))
    for i in range(4):
        hook(n1 - 3 + (i >> 1), 1 + (i & 1), 7, lambda i=i: w2dma(i))
    for i in range(3):
        hook(n1 - 1, i, 7, lambda i=i: hload(i))
    hook(n1 - 1, 3, 7, lambda: (w2read(0, 0), w2read(0, 1)))
    pat = [int(ch) for ch in str(cfg.fpat)]
    slots = [(j, t, pos) for j in range(n1, nA) for t in range(4) for pos in ((13,), (7, 13))[pat[t] - 1]]
    for f in range(4 * NS):
        hook(*slots[f], lambda f=f: fslot(f))
    rest = [jt for jt in tiles_of(nA) if jt > slots[4 * NS - 1][:2]]
    hook(*rest[0], 6, park_addr)
    for n, (nt, tt) in enumerate(((0, 0), (0, 1), (1, 1), (1, 0))):
        hook(*rest[n], 7, lambda tt=tt, nt=nt: park(tt, nt))
    if cfg.hst:
        for n in range(4):
            hook(n1 + 4 * n, 0, 1, lambda n=n: stamp(4 + n))
    if cfg.alow:
        hook(*tiles_of(nA)[-cfg.alow], 0, lambda: a("s_setprio 0"))
    if cfg.bst == 4:
        for n, j in enumerate(range(0, nA, 2)):
            hook(j, 2 if cfg.half and j == nA - 1 else 0, 0, lambda n=n: stamp(2 + n, True))
    def a_pf():
        a("; memory-side prefetch of w2 and wo")
        bload(255, 1, 125, SW2, "s100", 0, "", "pf")
        bload(255, 1, 125, SWO, "s100", 0, "", "pf")

    def a_wo(lo):
        if lo == 0:
            a("; wo tile -> LDS [0, 64K), a few rows per score tile")
            a("s_lshl_b32 s76, s60, 17")
            a("s_lshl_b32 s73, s67, 7")
            a("s_add_u32 s76, s76, s73")
            a("s_lshl_b32 s77, s60, 14")
        a("s_add_u32 m0, s77, %d" % (lo * 1024))
        for i in range(cfg.awn):
            a("s_add_u32 s73, s76, %d" % ((lo + i) * 8192 - i * 1024))
            dma(126, SWO, "s73", i * 1024, "wo")

    if cfg.apf:
        hook(cfg.apf >> 2, cfg.apf & 3, 9, a_pf)
    if cfg.awo:
        for n, lo in enumerate(range(0, 16, cfg.awn)):
            assert cfg.awo + n < 4 * n1
            hook((cfg.awo + n) >> 2, (cfg.awo + n) & 3, 9, lambda lo=lo: a_wo(lo))
    kvplan["xt"] = cfg.xt or None
    assert cfg.xt + 2 <= n1
    att_run(nA, hooks)
    kvplan["xt"] = None
    vm.drain()
    a("s_branch L_att_done")

    a.label("L_loader")
    vm.items = []
    lg.items = []

    def b_setup():
        a("; waves 4-7: W1 DMA offsets v56-v59 (sixth tile out of range where the next group owns it), flagQ row s79")
        a("""
        v_mul_u32_u24 v56, 2752, v4
        v_add_u32 v56, v56, v6
        s_lshr_b32 s72, 0xf8, s61
        s_and_b32 s72, s72, 1
        s_lshl_b32 s72, s72, 23
        v_and_b32 v57, 64, v6
        v_mad_u32_u24 v57, v57, s72, v56
        v_xor_b32 v58, 16, v56
        v_xor_b32 v59, 16, v57
        s_lshr_b32 s79, s64, 1
        s_lshl_b32 s79, s79, 10
        s_add_u32 s79, s79, %d
        s_and_b32 s73, s60, 3
        s_lshl_b32 s72, s69, 6
        s_mul_i32 s80, s73, %d
        s_add_u32 s80, s80, s72
        """ % (WS_FLAGQ, 16 * 2752))

        a("v_mov_b32 v3, 0xdddddddd")

    issued = cfg.lead
    setup1()
    state = {"issued": issued}

    def b_step(c):
        vm.wait(("w", c))
        if cfg.bst == 2:
            stamp(c, True)
        if cfg.bst == 3 and c == 0:
            stamp(9, True)
        a("s_barrier")
        if cfg.bst == 1:
            stamp(c, True)
        if c in (0, 8, 12, 15):
            stamp({0: 3, 8: 4, 12: 5, 15: 6}[c])
        if c == cfg.bload - 1:
            flag_load(7, 4, "s79", "qf")
        if c == cfg.bload:
            vm.wait("qf")
            check_flags("q", 7, 4, "s79")
            stamp(7)
            att_loads("b")
        while state["issued"] < min(15, max(3, c + 2)):
            state["issued"] += 1
            issue_chunk(state["issued"])
        if c == 0:
            setup_pf((SW1,))
        if c == cfg.sA:
            setup2()
        if cfg.pf1_at == 12 + c:
            pf1()
        if c == cfg.sB:
            b_setup()
        if c == cfg.sC:
            setup3()
        if c == cfg.sC:
            for op in init1 + init2:
                a(op)
        if c == 7:
            a("s_waitcnt lgkmcnt(0)")
            a("s_add_u32 %s, %s, 0x%x" % (sr(sTAG), sr(sTAG), EPOCH_INC))

    def b_att():
        a("s_barrier")
        stamp(8)
        a("s_setprio 1")
        kvload(2)

    bhooks = {}
    for c in range(16):
        b_step(c)
    b_att()
    if cfg.bst == 4:
        for j in range(nB):
            bhooks.setdefault((j, 2 if cfg.half and j == nB - 1 else 0, 0), []).append(lambda j=j: stamp(2 + j, True))
    kvplan["jump"] = nB - 2 if cfg.half else None
    att_run(nB, bhooks)
    kvplan["jump"] = None
    vm.drain()

    OW = OA + 48
    WOF, OFR, AC, G, Z, X, SR = 128, 24, 8, 64, 96, 104, 112
    a.label("L_att_done")
    stamp(10)
    if cfg.bst == 4:
        stamp(14, True)
    a("s_setprio 0")
    a("s_and_b32 s73, s60, 1")
    a("s_lshl_b32 s73, s73, 9")
    a("s_sub_u32 s76, s95, s73")
    a("""
    s_and_b32 s74, s60, 3
    s_lshr_b32 s75, s60, 2
    v_lshrrev_b32 v14, 3, v0
    v_and_b32 v7, 7, v0
    v_lshlrev_b32 v7, 4, v7
    v_lshl_add_u32 v14, v14, 10, v7
    s_lshl3_add_u32 s78, s66, s60
    s_lshl_b32 s78, s78, 13
    s_lshl_b32 s79, s67, 7
    s_add_u32 s78, s78, s79
    """)
    bload(60, 4, 7, SB2, "s79", 0, "", "xb")
    bload(56, 4, 14, SX, "s78", 0, "", "xb")
    lg.drain()
    a("s_barrier")
    for src in range(3):
        d = SB + 10 * src
        dsr("ds_read_b128", d, 4, 9, src * 2304, src)
        dsr("ds_read_b128", d + 4, 4, 9, src * 2304 + 1024, src)
        dsr("ds_read_b32", d + 8, 1, 10, src * 2304 + 2048, src)
    for src in range(3):
        lg.wait(src)
        for i in range(0, 8, 2):
            a("v_pk_add_f32 %s, %s, %s" % (vr(OW + i, 2), vr(OW + i, 2), vr(SB + 10 * src + i, 2)))
        a("v_add_f32 %s, %s, %s" % (vr(OW + 8), vr(OW + 8), vr(SB + 10 * src + 8)))
    a("v_pk_mul_f32 v[12:13], %s, 0 op_sel_hi:[1,0]" % vr(OW, 2))
    for i in range(2, 8, 2):
        a("v_pk_fma_f32 v[12:13], %s, 0, v[12:13] op_sel_hi:[1,0,1]" % vr(OW + i, 2))
    a("""
    v_add_f32 v12, v12, %s
    v_add_f32 v12, v12, v13
    v_cmp_nle_f32 vcc, 0x30800000, v12
    s_mov_b64 s[72:73], vcc
    v_cmp_nge_f32 vcc, 0x5d800000, v12
    s_or_b64 s[72:73], s[72:73], vcc
    """ % vr(OW + 8))
    a("s_branch L_slow" if cfg.force_slow else "s_cbranch_scc1 L_slow")
    a.label("L_norm")
    a("v_rcp_f32 v12, %s" % vr(OW + 8))
    for i in range(0, 8, 2):
        a("v_pk_mul_f32 %s, %s, v[12:13] op_sel_hi:[1,0]" % (vr(OW + i, 2), vr(OW + i, 2)))
    for q in range(4):
        a("v_cvt_pk_bf16_f32 %s, %s, %s" % (vr(16 + q), vr(OW + 2 * q), vr(OW + 2 * q + 1)))
    a("v_and_b32 v16, -2, v16")
    bstore(16, 4, 11, SWS, "s76", 0, "sc1", "ost")
    stamp(11)
    a("v_mov_b32 v2, v14")
    a("v_lshrrev_b32 v3, 3, v0")
    a("""
    v_mul_u32_u24 v4, %d, v3
    s_mul_i32 s72, s60, %d
    s_add_u32 s72, s72, %d
    v_add3_u32 v4, v4, v7, s72
    """ % (PART_STRIDE, 8 * PART_STRIDE, L_W2))
    for j in range(4):
        dsr("ds_read_b128", G + 4 * j, 4, 4, j * W2_REGION, "g")
    a("""
    v_bfe_u32 v4, v0, 2, 2
    v_bfe_u32 v5, v0, 4, 1
    v_lshl_add_u32 v4, v5, 2, v4
    v_lshrrev_b32 v5, 1, v4
    v_lshlrev_b32 v92, 7, v4
    v_lshl_add_u32 v92, v5, 5, v92
    v_lshrrev_b32 v6, 5, v0
    v_lshl_add_u32 v92, v6, 11, v92
    v_and_b32 v4, 3, v0
    v_lshl_add_u32 v92, v4, 3, v92
    s_lshl_b32 s72, s75, 15
    v_add_u32 v92, s72, v92
    v_xor_b32 v93, 32, v92
    v_xor_b32 v94, 64, v92
    v_xor_b32 v95, 0x60, v92
    s_barrier
    """)

    def oloads(first=0):
        for ks in range(first, 8):
            bload(OFR + 4 * ks, 4, 1, SWS, ("s76", "s77", "s80", "s81")[ks >> 1], (ks & 1) * 2048, "sc1", ("o", ks))

    fill = ("""
    s_lshl2_add_u32 s72, s66, s74
    s_lshr_b32 s76, s72, 1
    s_lshl1_add_u32 s76, s76, s75
    s_lshl_b32 s76, s76, 14
    s_and_b32 s72, s72, 1
    s_lshl_b32 s72, s72, 10
    s_add_u32 s76, s76, s72
    s_add_u32 s76, s76, %d
    s_add_u32 s77, s76, 0x1000
    s_add_u32 s80, s76, 0x2000
    s_add_u32 s81, s76, 0x3000
    v_mul_u32_u24 v3, %d, v3
    v_lshl_add_u32 v3, v7, 1, v3
    s_mul_i32 s72, s60, %d
    s_add_u32 s72, s72, %d
    v_add_u32 v3, s72, v3
    v_and_b32 v5, 15, v0
    v_mul_u32_u24 v5, %d, v5
    v_and_b32 v4, 48, v0
    s_mul_i32 s72, s60, %d
    s_add_u32 s72, s72, %d
    v_add3_u32 v5, v5, v4, s72
    s_mov_b32 s82, 0x3f80
    s_mov_b32 s83, 0x3f800000
    """ % (WS_QO, SUM_STRIDE, 8 * SUM_STRIDE, L_SUM, SUM_STRIDE, 16 * SUM_STRIDE, L_SUM)).strip().split("\n")
    gate = ["v_mov_b32 %s, 0" % vr(Z + i) for i in range(8)]
    gate.append(lambda: lg.wait("g"))
    for j in range(5):
        if j == 4:
            gate.append(lambda: vm.wait("xb"))
        for q in range(4):
            src = G + 4 * j + q if j < 4 else 60 + q
            gate.append("v_dot2c_f32_bf16 %s, s82, %s" % (vr(Z + 2 * q), vr(src)))
            gate.append("v_dot2c_f32_bf16 %s, s83, %s" % (vr(Z + 2 * q + 1), vr(src)))
    for q in range(4):
        gate.append("v_lshlrev_b32 %s, 16, %s" % (vr(X + 2 * q), vr(56 + q)))
        gate.append("v_and_b32 %s, s89, %s" % (vr(X + 1 + 2 * q), vr(56 + q)))
    gate += ["v_mul_f32 %s, 0x%x, %s" % (vr(G + i), NLOG2E, vr(Z + i)) for i in range(8)]
    gate += ["v_exp_f32 %s, %s" % (vr(G + i), vr(G + i)) for i in range(8)]
    gate += ["v_add_f32 %s, 1.0, %s" % (vr(G + i), vr(G + i)) for i in range(8)]
    gate += ["v_rcp_f32 %s, %s" % (vr(G + i), vr(G + i)) for i in range(8)]
    gate += ["v_mul_f32 %s, %s, %s" % (vr(Z + i), vr(Z + i), vr(G + i)) for i in range(8)]

    def wo_reads(oat, per):
        for ks in range(8):
            for ct in range(4):
                trread(WOF + (ks * 4 + ct) * 4, 92 + ct, ks * 4096, 1024, ("wo", ks))
                run_shadow(per)
            if ks == oat:
                run_shadow(1000)
                vm.wait("ost")
                oloads()

    vm_t, lg_t = list(vm.items), list(lg.items)
    a("s_cmp_eq_u32 s63, 1")
    a("s_cbranch_scc1 L_tail_b")
    shadow.extend(fill)
    wo_reads(7, 1)
    shadow.extend(gate)
    run_shadow(1000)
    a("s_branch L_tail_j")
    a.label("L_tail_b")
    vm.items, lg.items = vm_t, lg_t
    shadow.extend(fill + gate)
    run_shadow(1000)
    wo_reads(cfg.oat, 0)
    a.label("L_tail_j")
    stamp(12)
    a("s_mov_b32 s73, 0")
    lg.drain()
    for ks in range(8):
        a.label("L_wo_%d" % ks)
        vm.wait(("o", ks))
        a("v_and_b32 v6, 1, %s" % vr(OFR + 4 * ks))
        a("v_cmp_ne_u32 vcc, 0, v6")
        a("s_cbranch_vccnz L_oretry_%d" % ks)
        a.label("L_ogo_%d" % ks)
        for ct in range(4):
            d = AC + 4 * ct
            mfma16(d, WOF + (ks * 4 + ct) * 4, OFR + 4 * ks, None if ks == 0 else d)
    stamp(13)
    for ct in range(4):
        dsw("ds_write_b128", 5, AC + 4 * ct, 4, ct * 64)
    lg.drain()
    a("s_barrier")
    stamp(14)
    dsr("ds_read_b128", SR, 4, 3, 0, 0)
    dsr("ds_read_b128", SR + 8, 4, 3, SUM_SIZE, 0)
    dsr("ds_read_b128", SR + 4, 4, 3, 16, 1)
    dsr("ds_read_b128", SR + 12, 4, 3, SUM_SIZE + 16, 1)
    for h in range(2):
        lg.wait(h)
        for i in range(4 * h, 4 * h + 4, 2):
            a("v_pk_add_f32 %s, %s, %s" % (vr(SR + i, 2), vr(SR + i, 2), vr(SR + 8 + i, 2)))
        for i in range(4 * h, 4 * h + 4, 2):
            a("v_pk_fma_f32 %s, %s, %s, %s" % (vr(SR + i, 2), vr(SR + i, 2), vr(Z + i, 2), vr(X + i, 2)))
        for q in range(2 * h, 2 * h + 2):
            a("v_cvt_pk_bf16_f32 %s, %s, %s" % (vr(G + q), vr(SR + 2 * q), vr(SR + 2 * q + 1)))
    bstore(G, 4, 2, SOUT, "s78", 0, ("", "sc1", "nt", "sc0 sc1", "sc0 sc1 nt")[cfg.omod])
    a("s_or_b32 s72, s2, s60")
    a("s_cmp_lg_u32 s72, 0")
    a("s_cbranch_scc1 L_noepoch")
    set_flag(7, "0")
    a.label("L_noepoch")
    if cfg.stamps:
        a("s_waitcnt vmcnt(0)")
        stamp(15)
        if cfg.probe is not None:
            a("s_sub_u32 s72, %s, s4" % sr(sSTAMP + cfg.probe))
            if cfg.stamps == 2:
                a("s_lshr_b32 s72, s72, 3")
            else:
                a("s_lshl_b32 s72, s72, %d" % cfg.probesh)
            a("s_cmp_lg_u32 s2, %d" % cfg.probewg)
            a("s_cselect_b32 s72, 0, s72")
            a("s_cmp_lg_u32 s60, %d" % cfg.probew)
            a("s_cselect_b32 s72, 0, s72")
            a("s_memrealtime s[22:23]")
            a("s_waitcnt lgkmcnt(0)")
            a("s_mov_b32 s73, s22")
            a.label("L_probe")
            a("s_memrealtime s[22:23]")
            a("s_waitcnt lgkmcnt(0)")
            a("s_sub_u32 s22, s22, s73")
            a("s_cmp_lt_u32 s22, s72")
            a("s_cbranch_scc1 L_probe")
        a("s_lshl3_add_u32 s72, s2, s60")
        a("s_lshl_b32 s72, s72, 6")
        a("s_add_u32 s72, s72, %d" % WS_STAMP)
        for i in range(16):
            a("v_mov_b32 %s, %s" % (vr(80 + i), sr(sSTAMP + i)))
        a("s_mov_b64 exec, 1")
        for i in range(4):
            bstore(80 + 4 * i, 4, 1, SWS, "s72", 16 * i)
    a.label("L_end")
    a("s_endpgm")

    for ks in range(8):
        a.label("L_oretry_%d" % ks)
        a("s_add_u32 s73, s73, 1")
        a("s_cmp_ge_u32 s73, %d" % SPIN_MAX)
        a("s_cbranch_scc1 L_ogo_%d" % ks)
        a("s_waitcnt vmcnt(0)")
        oloads(ks)
        a("s_branch L_wo_%d" % ks)

    for tag, vt, lanes, soff in stubs:
        a.label("L_poll_" + tag)
        a("s_mov_b32 s73, 0")
        a.label("L_poll2_" + tag)
        a("s_sleep %d" % cfg.sleep)
        flag_load(vt, lanes, soff, None)
        a("s_add_u32 s73, s73, 1")
        a("s_waitcnt vmcnt(0)")
        a("s_cmp_ge_u32 s73, %d" % SPIN_MAX)
        a("s_cbranch_scc1 L_polled_" + tag)
        a("v_cmp_ne_u32 vcc, %s, %s" % (sr(sTAG), vr(vt)))
        a("s_cbranch_vccnz L_poll2_" + tag)
        a("s_branch L_polled_" + tag)

    a.label("L_slow")
    CN = SB + 16
    a("s_waitcnt vmcnt(0)")
    a("v_mov_b32 v13, 0xff800000")
    a("s_mov_b32 s82, s83")
    a("s_mov_b32 s81, 64")
    a.label("L_slow1")
    bload(KV, 4, 252, SWS, "s82", 0, "sc1")
    a("s_add_u32 s82, s82, 2048")
    a("s_waitcnt vmcnt(0)")
    mfma32(SB, KV, QR + 12, None)
    for i in range(0, 16, 2):
        a("v_max3_f32 v13, v13, %s, %s" % (vr(SB + i), vr(SB + i + 1)))
    a("s_sub_u32 s81, s81, 1")
    a("s_cmp_lg_u32 s81, 0")
    a("s_cbranch_scc1 L_slow1")
    a("v_mov_b32 v15, v13")
    a("v_permlane32_swap_b32 v15, v13")
    a("v_max_f32 v13, v15, v13")
    for i in range(16):
        a("v_sub_f32 %s, 0, v13" % vr(CN + i))
        a("v_mov_b32 %s, 0" % vr(OW + i))
    a("s_mov_b32 s82, s83")
    a("s_mov_b32 s81, 64")
    a.label("L_slow2")
    kvload(0)
    a("s_waitcnt vmcnt(0)")
    mfma32(SB, KV, QR + 12, CN)
    for i in range(16):
        a("v_exp_f32 %s, %s" % (vr(SB + i), vr(SB + i)))
    smf(OW, KV + 4, SB)
    smf(OW, KV + 8, SB + 8)
    a("s_sub_u32 s81, s81, 1")
    a("s_cmp_lg_u32 s81, 0")
    a("s_cbranch_scc1 L_slow2")
    a("s_branch L_norm")
    a.label("L_code_end")
    a("s_endpgm")

    added = a.fix()
    return a.text().replace('FSH', str(cfg.fsh)).replace('FROW', str(cfg.fsh + 5)), added


HEADER = """; Kernarg layout for this problem (88 bytes, ptrs only, base s[0:1]):
; @launch grid=(256,1,1) block=(512,1,1) lds=163840
.amdgcn_target "amdgcn-amd-amdhsa--gfx950"
.text
.globl {k}
.p2align 8
.type {k},@function
{k}:
"""

FOOTER = """.section .rodata,"a"
.p2align 6
.amdhsa_kernel {k}
  .amdhsa_next_free_vgpr 256
  .amdhsa_next_free_sgpr 102
  .amdhsa_accum_offset 256
  .amdhsa_group_segment_fixed_size 0
  .amdhsa_kernarg_size 88
  .amdhsa_user_sgpr_count 2
  .amdhsa_user_sgpr_kernarg_segment_ptr 1
  .amdhsa_system_sgpr_workgroup_id_x 1
.end_amdhsa_kernel
"""


def build(**kw):
    cfg = Cfg()
    for k, v in kw.items():
        setattr(cfg, k, v)
    body, added = gen(cfg)
    return HEADER.format(k=KERNEL) + body + FOOTER.format(k=KERNEL), added


if __name__ == "__main__":
    out = sys.argv[1] if len(sys.argv) > 1 else "cdna_kernels/%s.s" % NAME
    kw = {}
    for arg in sys.argv[2:]:
        k, v = arg.split("=")
        kw[k] = int(v)
    text, added = build(**kw)
    open(out, "w").write(text)
    print("wrote", out, "lines", text.count("\n"), "nops added", added)
```

```python
import sys
import os
sys.path.insert(0, os.path.dirname(os.path.abspath(__file__)))
from asmlib import Asm, vr, sr

NAME = "recurrent_scan__softmax_full_mha__dense_activation_squared_relu__prompt"
KERNEL = NAME + "_kernel"

WS_FLAGQ = 0x1200
WS_FLAGH = 0x60000
WS_STAMP = 0x10000
WS_QO = 0x100000
WS_KV = 0x300000
WS_HF = 0x700000
WS_END = WS_HF + 86 * 65536
EPOCH_INC = 0x9E3779B9
SPIN_MAX = 1 << 18

L_RING = 65536
L_OPART = 65536
L_W2 = L_OPART + 55296
W2_REGION = 10240
PART_STRIDE = 144
SUM_STRIDE = 272
SUM_SIZE = 64 * SUM_STRIDE
L_SUM = L_OPART

SX, SWQ, SWO, SW1, SB1, SW2, SB2, SOUT, SWS = 24, 28, 32, 36, 40, 44, 48, 52, 56
sW, sCG, sTB, sRW, sP, sQB, sTBF, sCB, sTAG, sCT0 = 60, 61, 62, 63, 64, 65, 66, 67, 68, 69
sVM = 70
sSTAMP = 4

QSCALE = 0x3EB8AA3B
NLOG2E = 0xBFB8AA3B
NS = 22


class Cfg:
    abl = 0
    bst = 0
    n1 = 8
    nA = 21
    gap = 1
    kvi = 4
    dmam = 2
    fpat = 2222
    pf1_at = 13
    w2_at = 10
    stamps = 0
    force_slow = 0
    flag_chunk = 9
    lead = 1
    look = 5
    sleep = 6
    w0_at = 7
    w1_at = 10
    hpre = 2
    hbar = 0
    hnow = 2
    hgap = 2
    hoff = 0
    fsh = 4
    b1at = -10
    sA = 3
    sB = 3
    sC = 7
    alow = 1
    xt = 5
    pfeven = 1
    pmap = 1
    bload = 15
    hpoll = 0
    half = 1
    dlag = 1
    apf = 13
    awo = 20
    awn = 2
    hflag = 11
    probe = None
    omod = 1
    oat = 2
    oata = 2
    noack = 1
    obg = 0
    probewg = 100
    probew = 0
    probesh = 4
    hst = 0


def srd(s):
    return sr(s, 4)


class Queue:
    def __init__(self, a, name, maxn):
        self.a, self.name, self.maxn, self.items = a, name, maxn, []

    def push(self, tag):
        self.items.append(tag)

    def wait(self, *tags):
        last = max((i for i, t in enumerate(self.items) if t in tags), default=-1)
        if last < 0:
            return
        n = len(self.items) - 1 - last
        self.a("s_waitcnt %s(%d)" % (self.name, min(n, self.maxn)))
        self.items = self.items[last + 1:]

    def drain(self):
        self.a("s_waitcnt %s(0)" % self.name)
        self.items = []


def gen(cfg):
    a = Asm()
    nA = cfg.nA
    nB = 32 - nA + cfg.half
    vm = Queue(a, "vmcnt", 63)
    lg = Queue(a, "lgkmcnt", 15)

    def stamp(i, force=False):
        if cfg.bst and not force and i != 0:
            return
        if cfg.stamps and (cfg.probe is None or i in (0, cfg.probe)):
            a("%s s[22:23]" % ("s_memtime" if cfg.stamps == 2 else "s_memrealtime"))
            a("s_waitcnt lgkmcnt(0)")
            a("s_mov_b32 %s, s22" % sr(sSTAMP + i))

    def mfma32(d, x, y, c):
        a("v_mfma_f32_32x32x16_bf16 %s, %s, %s, %s" % (vr(d, 16), vr(x, 4), vr(y, 4), "0" if c is None else vr(c, 16)))

    def mfma16(d, x, y, c):
        a("v_mfma_f32_16x16x32_bf16 %s, %s, %s, %s" % (vr(d, 4), vr(x, 4), vr(y, 4), "0" if c is None else vr(c, 4)))

    def smf(d, x, y):
        a("v_smfmac_f32_32x32x32_bf16 %s, %s, %s, v3" % (vr(d, 16), vr(x, 4), vr(y, 8)))

    def bload(d, n, va, s, so, off=0, mod="", tag=None):
        op = {1: "dword", 2: "dwordx2", 4: "dwordx4"}[n]
        a("buffer_load_%s %s, %s, %s, %s offen offset:%d %s" % (op, vr(d, n), vr(va), srd(s), so, off, mod))
        vm.push(tag)

    def bstore(d, n, va, s, so, off=0, mod="", tag=None):
        op = {1: "dword", 2: "dwordx2", 4: "dwordx4"}[n]
        a("buffer_store_%s %s, %s, %s, %s offen offset:%d %s" % (op, vr(d, n), vr(va), srd(s), so, off, mod))
        vm.push(tag)

    def dma(va, s, so, off=0, tag=None):
        a("buffer_load_dwordx4 %s, %s, %s offen offset:%d lds" % (vr(va), srd(s), so, off))
        vm.push(tag)

    def dsr(op, d, n, va, off, tag=None):
        a("%s %s, %s offset:%d" % (op, vr(d, n), vr(va), off))
        lg.push(tag)

    def dsw(op, va, d, n, off, tag=None):
        a("%s %s, %s offset:%d" % (op, vr(va), vr(d, n), off))
        lg.push(tag)

    def trread(d, va, off, second, tag=None):
        dsr("ds_read_b64_tr_b16", d, 2, va, off, tag)
        dsr("ds_read_b64_tr_b16", d + 2, 2, va, off + second, tag)

    def set_flag(vt, soff):
        a("v_mov_b32 %s, %s" % (vr(vt), sr(sTAG)))
        a("s_mov_b64 exec, 1")
        bstore(vt, 1, 1, SWS, soff, 0, "sc0 sc1")
        a("s_mov_b64 exec, -1")

    stubs = []

    def check_flags(tag, vt, lanes, soff):
        a("v_cmp_ne_u32 vcc, %s, %s" % (sr(sTAG), vr(vt)))
        a("s_cbranch_vccnz L_poll_" + tag)
        a.label("L_polled_" + tag)
        stubs.append((tag, vt, lanes, soff))

    def flag_load(vt, shift, soff, tag):
        a("v_and_b32 %s, 31, v0" % vr(vt))
        a("v_lshlrev_b32 %s, %d, %s" % (vr(vt), shift, vr(vt)))
        bload(vt, 1, vt, SWS, soff, 0, "sc0 sc1", tag)

    sizes = {SX: 2048 * 1024, SWQ: 512 * 3072, SWS: WS_END, SW1: 512 * 2752, SB1: 2752,
             SWO: 512 * 1024, SW2: 1376 * 1024, SB2: 1024, SOUT: 2048 * 1024}
    RAW = 128

    def xloads():
        for j in range(8):
            bload(RAW + j * 4, 4, 14, SX, "s101", j * 128, "", ("x", j))

    stamp(0)
    a("""
    s_load_dwordx2 s[24:25], s[0:1], 0
    s_getpc_b64 s[72:73]
    L_pc:
    s_cmpk_ge_u32 s2, 256
    s_cbranch_scc1 L_end
    s_lshr_b32 s74, s2, 3
    s_lshl_b32 s74, s74, 11
    v_lshrrev_b32 v8, 5, v0
    v_lshl_add_u32 v8, v8, 7, s74
    v_min_u32 v8, L_code_end-L_pc, v8
    v_mov_b32 v9, 0
    v_lshl_add_u64 v[8:9], v[8:9], 0, s[72:73]
    global_load_dword v7, v[8:9], off
    s_lshl_b32 s72, s2, 4
    s_and_b32 s72, s72, 0x180
    v_add_u32 v4, s72, v0
    v_bfe_u32 v4, v4, 3, 6
    v_and_b32 v5, 7, v0
    v_lshlrev_b32 v14, 10, v4
    v_lshl_add_u32 v14, v5, 4, v14
    s_lshr_b32 s67, s2, 5
    s_and_b32 s73, s2, 6
    s_lshl2_add_u32 s62, s73, s67
    s_lshl_b32 s101, s62, 16
    s_mov_b32 s26, %d
    s_mov_b32 s27, 0x20000
    v_bfe_u32 v24, v4, 1, 3
    v_xor_b32 v24, v24, v5
    v_lshlrev_b32 v15, 7, v4
    v_lshl_add_u32 v15, v24, 4, v15
    v_readfirstlane_b32 s60, v0
    v_and_b32 v0, 63, v0
    v_and_b32 v26, 3, v0
    v_mov_b32 v29, 0
    s_lshr_b32 s60, s60, 6
    s_cmp_ge_u32 s60, 4
    s_waitcnt lgkmcnt(0)
    """ % sizes[SX])
    vm.push("pf")
    if cfg.bst == 3:
        stamp(1, True)
    xloads()
    if cfg.bst == 3:
        stamp(2, True)
    if cfg.stamps:
        for i in range(3 if cfg.bst == 3 else 1, 16):
            a("s_mov_b32 %s, s4" % sr(sSTAMP + i))
    a("s_mov_b32 s63, 1")
    a("s_cbranch_scc1 L_ln")
    a("s_mov_b32 s63, 0")

    def setup1():
        for s, off in ((SWQ, 8), (SWS, 80), (SW1, 32), (SB1, 40), (SWO, 16), (SW2, 48), (SB2, 56), (SOUT, 64)):
            a("s_load_dwordx2 %s, s[0:1], %d" % (sr(s, 2), off))
        a("""
        s_mov_b32 s30, %d
        s_mov_b32 s31, 0x20000
        s_bfe_u32 s72, s2, 0x20003
        s_and_b32 s73, s2, 1
        s_lshl2_add_u32 s61, s73, s72
        s_and_b32 s74, s60, 3
        s_lshl_b32 s72, s61, 7
        s_mul_i32 s85, s74, %d
        s_add_u32 s85, s85, s72
        s_mul_i32 s87, s74, 6144
        s_add_u32 s87, s87, %d
        v_lshrrev_b32 v4, 3, v0
        v_bfe_u32 v6, v4, 1, 1
        v_lshlrev_b32 v6, 2, v6
        v_xor_b32 v6, v6, v5
        v_lshlrev_b32 v6, 4, v6
        v_mul_u32_u24 v13, 3072, v4
        v_add_u32 v13, v13, v6
        v_xor_b32 v33, 16, v13
        s_waitcnt lgkmcnt(0)
        """ % (sizes[SWQ], 16 * 3072, L_RING))

    def setup_pf(srds):
        for s in srds:
            a("s_mov_b32 %s, %d" % (sr(s + 2), sizes[s]))
            a("s_mov_b32 %s, 0x20000" % sr(s + 3))
        if cfg.pfeven:
            a("; memory-side prefetches are issued by even workgroups only, 22 lines per wave")
            a("""
            s_and_b32 s73, s60, 3
            s_lshl1_add_u32 s100, s2, s73
            s_mul_i32 s100, s100, 2816
            s_bitcmp1_b32 s2, 0
            s_cselect_b32 s100, 0x40000000, s100
            v_min_u32 v31, 21, v0
            v_lshlrev_b32 v31, 7, v31
            """)
        else:
            a("""
            s_and_b32 s73, s60, 3
            s_lshl2_add_u32 s100, s2, s73
            s_mul_i32 s100, s100, 1536
            v_min_u32 v31, 11, v0
            v_lshlrev_b32 v31, 7, v31
            """)

    def setup2():
        a("s_load_dword %s, %s, 0" % (sr(sTAG), sr(SWS, 2)))
        for s in (SWS, SB1, SB2, SOUT):
            a("s_mov_b32 %s, %d" % (sr(s + 2), sizes[s]))
            a("s_mov_b32 %s, 0x20000" % sr(s + 3))
        a("""
        s_bfe_u32 s72, s2, 0x20003
        s_and_b32 s73, s2, 7
        s_lshl2_add_u32 s66, s73, s72
        s_and_b32 s72, s72, 1
        PMAP
        s_lshr_b32 s65, s2, 4
        s_mul_i32 s69, s61, 6
        s_mul_i32 s73, s61, 5
        s_add_u32 s73, s73, 3
        s_min_u32 s69, s69, s73
        s_mov_b32 s70, 0xffff
        s_mov_b32 s71, 0xffff
        v_lshlrev_b32 v1, 4, v0
        v_and_b32 v2, 15, v0
        v_lshrrev_b32 v3, 5, v0
        v_lshl_add_u32 v2, v3, 4, v2
        v_lshlrev_b32 v2, 4, v2
        """.replace("PMAP", "s_and_b32 s64, s2, 6\ns_add_u32 s72, s72, s64\ns_and_b32 s64, s2, 1\ns_lshl3_add_u32 s64, s64, s72"
                    if cfg.pmap else "s_lshl1_add_u32 s64, s73, s72"))

    def setup3():
        a("; attention offsets: s82 = next K/V tile, s83 = head base, s92-s95 = Q tiles, s96-s99 = O partial slots")
        a("""
        s_and_b32 s74, s60, 1
        s_lshr_b32 s75, s60, 1
        s_lshl1_add_u32 s72, s64, s74
        s_lshl_b32 s83, s72, 17
        s_add_u32 s83, s83, %d
        s_and_b32 s73, s75, 1
        s_lshl_b32 s73, s73, 16
        s_add_u32 s82, s83, s73
        s_lshl_b32 s72, s65, 6
        s_add_u32 s72, s72, s64
        s_lshl1_add_u32 s72, s72, s74
        s_lshl_b32 s72, s72, 10
        s_add_u32 s72, s72, %d
        s_mul_i32 s84, s74, %d
        s_add_u32 s84, s84, %d
        """ % (WS_KV, WS_QO, 12 * 2304, L_OPART))
        for t in range(4):
            a("s_xor_b32 s73, s75, %d" % (t ^ 3))
            a("s_mul_i32 %s, s73, %d" % (sr(96 + t), 3 * 2304))
            a("s_lshl_b32 s73, s73, 15")
            a("s_add_u32 %s, s72, s73" % sr(92 + t))
            a("s_add_u32 %s, %s, s84" % (sr(96 + t), sr(96 + t)))

    setup1()
    setup_pf((SWO, SW2))
    setup2()
    a("s_and_b32 s74, s60, 1")
    a("s_lshr_b32 s75, s60, 1")
    a("""
    v_bfe_u32 v9, v0, 4, 1
    v_and_b32 v16, 15, v0
    v_lshlrev_b32 v8, 4, v16
    v_lshl_add_u32 v8, v9, 9, v8
    v_lshl_add_u32 v11, v3, 17, v8
    v_lshl_add_u32 v14, v3, 10, v8
    v_lshl_add_u32 v127, v3, 16, v8
    v_lshrrev_b32 v17, 4, v0
    v_bfe_u32 v8, v0, 3, 1
    v_lshlrev_b32 v12, 4, v5
    v_lshl_add_u32 v12, v17, 8, v12
    v_lshl_add_u32 v12, v8, 17, v12
    v_lshrrev_b32 v8, 1, v16
    v_xor_b32 v8, v8, v17
    v_lshlrev_b32 v16, 7, v16
    v_lshl_add_u32 v16, v8, 4, v16
    s_lshl_b32 s72, s74, 12
    v_add_u32 v16, s72, v16
    v_xor_b32 v17, 64, v16
    v_mov_b32 v125, v31
    v_and_b32 v126, 6, v4
    v_xor_b32 v126, v126, v5
    v_lshlrev_b32 v126, 4, v126
    v_lshl_add_u32 v126, v4, 10, v126
    v_lshl_add_u32 v4, v4, 10, v6
    v_bfe_u32 v10, v0, 2, 2
    v_lshrrev_b32 v6, 1, v10
    v_xor_b32 v8, s75, v6
    v_and_b32 v18, 2, v0
    v_lshl_add_u32 v8, v8, 2, v18
    v_add_u32 v8, v8, v9
    v_lshlrev_b32 v8, 1, v8
    v_and_or_b32 v8, v0, 1, v8
    v_lshlrev_b32 v8, 3, v8
    v_lshl_add_u32 v8, v10, 7, v8
    v_lshl_add_u32 v8, v9, 10, v8
    v_mul_u32_u24 v18, 6144, v3
    v_add_u32 v8, v8, v18
    v_add_u32 v8, %d, v8
    v_xor_b32 v18, 16, v8
    v_add_u32 v19, %d, v18
    v_lshlrev_b32 v5, 5, v9
    v_lshl_add_u32 v5, v10, 7, v5
    v_and_b32 v10, 3, v0
    v_lshl_add_u32 v5, v10, 3, v5
    v_lshl_add_u32 v5, v3, 9, v5
    v_lshl_add_u32 v5, v6, 6, v5
    v_lshrrev_b32 v10, 1, v0
    v_xor_b32 v10, v10, v0
    v_and_b32 v10, 1, v10
    v_mul_u32_u24 v10, 24, v10
    v_xor_b32 v5, v5, v10
    s_mul_i32 s84, s60, %d
    s_add_u32 s84, s84, %d
    v_add_u32 v5, s84, v5
    v_xor_b32 v6, 64, v5
    v_lshlrev_b32 v10, 3, v9
    v_lshl_add_u32 v10, v3, 5, v10
    v_xor_b32 v9, 16, v19
    v_mov_b32 v3, 0xdddddddd
    """ % (L_RING, 2 * 24576, W2_REGION, L_W2))

    def setup_a():
        setup3()
        a("s_add_u32 s82, s82, %d" % ((32 - nA) * 2048))
        a("s_mul_i32 s84, s60, %d" % W2_REGION)
        a("s_add_u32 s84, s84, %d" % L_W2)
        a("""
        s_lshl1_add_u32 s72, s62, s74
        s_lshl1_add_u32 s73, s61, s75
        s_lshl_b32 s76, s73, 7
        s_add_u32 s76, s76, s72
        s_lshl_b32 s77, s76, 11
        s_lshl4_add_u32 s76, s72, s73
        s_lshl_b32 s76, s76, 11
        s_add_u32 s76, s76, %d
        s_add_u32 s77, s77, %d
        s_add_u32 s81, s69, s75
        s_lshl_b32 s78, s81, 7
        s_add_u32 s78, s78, s72
        s_lshl_b32 s78, s78, 10
        s_add_u32 s78, s78, %d
        s_lshl_b32 s79, s61, 6
        s_add_u32 s79, s79, s62
        s_lshl_b32 s79, s79, 4
        s_add_u32 s79, s79, %d
        s_lshl_b32 s80, s62, 3
        s_add_u32 s80, s80, s61
        s_lshl2_add_u32 s80, s80, s60
        s_lshl_b32 s80, s80, FSH
        s_add_u32 s80, s80, %d
        s_mul_i32 s73, s61, s75
        s_add_u32 s88, s78, %d
        s_cmp_lt_u32 s73, 3
        s_cselect_b32 s88, s88, 0x40000000
        """ % (WS_QO, WS_KV, WS_HF, WS_FLAGQ, WS_FLAGH, 8 * 65536))


    def slot_of(c):
        return (c & 3) * 24576

    def issue_chunk(c):
        stride = 3072 if c < 8 else 2752
        a("s_xor_b32 s73, s67, %d" % (c & 7))
        a("s_mul_i32 s73, s73, %d" % (64 * stride))
        a("s_add_u32 s73, s73, %s" % ("s85" if c < 8 else "s80"))
        for m in range(6):
            blk, seg = divmod(m, 3)
            a("s_add_u32 m0, s87, %d" % (slot_of(c) + seg * 2048 + blk * 1024))
            a("s_add_u32 s72, s73, %d" % (blk * 8 * stride + seg * (1024 if c < 8 else 128)))
            if c < 8:
                dma(33 if blk else 13, SWQ, "s72", 0, ("w", c))
            else:
                dma(56 + (seg == 2) + 2 * blk, SW1, "s72", 0, ("w", c))

    def layernorm(acts):
        def act(p):
            if acts.get(p):
                assert p >= 7
                a("s_cmp_eq_u32 s63, 1")
                a("s_cbranch_scc1 L_ln_%d" % p)
                for f in acts[p]:
                    f()
                a.label("L_ln_%d" % p)
        a.label("L_ln")
        a("""
        v_mov_b32 v232, 0x3f803f80
        v_mov_b32 v233, 0x3f803f80
        v_lshlrev_b32 v26, 4, v26
        v_mov_b32 v28, 0xffff
        v_lshlrev_b64 v[28:29], v26, v[28:29]
        """)
        a("s_mov_b32 s89, 0xffff0000")
        a("s_lshl_b32 s72, s67, 13")
        a("v_or_b32 v15, s72, v15")

        def xwrite(j):
            a("v_xor_b32 v23, 0x%x, v15" % (j << 13))
            a("ds_write_b128 v23, %s" % vr(RAW + j * 4, 4))

        def m4(d, x, y, c):
            a("v_mfma_f32_4x4x4_16b_bf16 %s, %s, %s, %s" % (vr(d, 4), vr(x, 2), vr(y, 2), "0" if c is None else vr(c, 4)))

        S, GM, T, CN, AH = 208, 216, 192, 224, 228
        for j in range(8):
            vm.wait(("x", j))
            if cfg.bst == 3 and j in (0, 3, 7):
                stamp({0: 4, 3: 5, 7: 6}[j], True)
            if j == 7:
                act(7)
            for h in range(2):
                x = RAW + j * 4 + 2 * h
                m4(S + 4 * h, 232, x, S + 4 * h if j else None)
                m4(GM + 4 * h, x, x, GM + 4 * h if j else None)
        act(8)
        stamp(1)
        a("v_add_f32 v24, %s, %s" % (vr(S), vr(S + 4)))
        for r in range(4):
            a("v_add_f32 %s, %s, %s" % (vr(GM + r), vr(GM + r), vr(GM + 4 + r)))
        dpp = "row_mask:0xf bank_mask:0xf"
        a("v_add_f32_dpp v24, v24, v24 quad_perm:[1,0,3,2] " + dpp)
        a("v_mov_b32_dpp v25, %s quad_perm:[0,0,0,0] %s" % (vr(GM), dpp))
        a("v_add_f32_dpp v25, %s, v25 quad_perm:[1,1,1,1] %s" % (vr(GM + 1), dpp))
        a("v_add_f32_dpp v24, v24, v24 quad_perm:[2,3,0,1] " + dpp)
        a("v_add_f32_dpp v25, %s, v25 quad_perm:[2,2,2,2] %s" % (vr(GM + 2), dpp))
        a("v_add_f32_dpp v25, %s, v25 quad_perm:[3,3,3,3] %s" % (vr(GM + 3), dpp))
        a("v_add_f32_dpp v24, v24, v24 row_half_mirror " + dpp)
        a("v_add_f32_dpp v25, v25, v25 row_half_mirror " + dpp)
        a("""
        v_mul_f32 v24, 0x3b000000, v24
        v_mul_f32 v25, 0x3b000000, v25
        v_fma_f32 v25, -v24, v24, v25
        v_max_f32 v25, 0, v25
        v_cvt_pk_bf16_f32 v24, v24, v25
        v_and_b32 v25, s89, v24
        v_add_f32 v25, 0x3727c5ac, v25
        v_cvt_pk_bf16_f32 v25, v25, v25
        v_and_b32 v25, s89, v25
        v_sqrt_f32 v25, v25
        v_lshlrev_b32 v24, 16, v24
        v_cvt_pk_bf16_f32 v25, v25, v25
        v_and_b32 v25, s89, v25
        v_rcp_f32 v26, v25
        v_cvt_pk_bf16_f32 v27, v26, v26
        v_and_b32 v25, s89, v27
        v_sub_f32 v25, v26, v25
        v_cvt_pk_bf16_f32 v25, v25, v25
        v_and_b32 v228, v27, v28
        v_and_b32 v229, v27, v29
        v_and_b32 v230, v25, v28
        v_and_b32 v231, v25, v29
        """)
        for r in range(4):
            a("v_mul_f32_e64 %s, -v24, v26" % vr(CN + r))

        def finish(j, q):
            t = T + 8 * (j & 1)
            a("v_cvt_pk_bf16_f32 %s, %s, %s" % (vr(RAW + 4 * j + q), vr(t + 2 * q), vr(t + 2 * q + 1)))
            if q == 3:
                xwrite(j)

        for j in range(9):
            for q in range(4):
                if j < 8:
                    t = T + 8 * (j & 1) + 4 * (q & 1)
                    m4(t, AH + 2 * (q >> 1), RAW + 4 * j + 2 * (q & 1), CN if q < 2 else t)
                if j:
                    finish(j - 1, q)
        if cfg.bst == 3:
            stamp(7, True)
        act(9)
        act(10)
        stamp(2)
        if cfg.bst == 3:
            stamp(8, True)

    def pf1():
        a("; memory-side prefetch of W1")
        bload(32, 1, 31, SW1, "s100", 0, "", "pf")

    def b1loads():
        a("s_lshr_b32 s3, s60, 1")
        a("s_add_u32 s3, s3, s69")
        a("s_lshl_b32 s3, s3, 6")
        for q in range(6):
            bload(112 + 2 * q, 2, 10, SB1, "s3", (q >> 1) * 128 + (q & 1) * 16, "", "b1")

    acts = {}
    for c, p in enumerate((cfg.w0_at, cfg.w1_at, cfg.w2_at, 10)[:cfg.lead + 1]):
        acts.setdefault(p, []).append(lambda c=c: issue_chunk(c))
    if cfg.b1at < 0:
        acts.setdefault(-cfg.b1at, []).insert(0, b1loads)
    layernorm(acts)
    a("s_cmp_eq_u32 s63, 1")
    a("s_cbranch_scc1 L_loader")

    QR, SB, WF, FA, OA, KV, HB = 8, 24, 56, 64, 128, 192, 228
    NKV = 3

    def att_init_ops():
        ops = ["v_mov_b32 %s, 0" % vr(OA + 16 * t + i) for t in range(4) for i in range(16)]
        ops2 = ["v_and_b32 v7, 27, v0", "v_cmp_eq_u32 vcc, 16, v7", "v_mov_b32 v7, 0x3f803f80", "v_cndmask_b32 v7, 0, v7, vcc"]
        ops2 += ["v_mov_b32 %s, v7" % vr(KV + 12 * b + 4 + q) for b in range(NKV) for q in range(8)]
        return ops, ops2

    XKV = (72, 84)
    kvplan = {"xt": None}

    def kvreg(j):
        xt = kvplan["xt"]
        if xt is not None and j in (xt, xt + 1):
            return XKV[j - xt]
        return KV + 12 * ((j - 2 if xt is not None and j > xt else j) % NKV)

    def kvsched(n):
        at, pos = {}, 0
        for j in range(NKV, n):
            prev = [p for p in range(j) if kvreg(p) == kvreg(j)]
            pos = max(pos + 1, 4 * (prev[-1] + 1) if prev else 0)
            at[(pos >> 2, pos & 3)] = j
        return at

    def kvload(j):
        r = kvreg(j)
        bload(r, 4, 252, SWS, "s82", 0, "sc1", ("kv", j))
        a("s_mov_b64 exec, %s" % sr(sVM, 2))
        bload(r + 4, 4, 2, SWS, "s82", 1024, "sc1", ("kv", j))
        bload(r + 8, 4, 2, SWS, "s82", 1536, "sc1", ("kv", j))
        a("s_mov_b64 exec, -1")
        a("s_add_u32 s82, s82, %d" % (2048 * (nA if j == kvplan.get("jump") else 1)))

    def att_loads(role):
        a("; key slot 8a+4b+c holds token 16b+4a+c, matching the order of the V fragments")
        a("v_and_b32 v252, 0x230, v1")
        a("v_and_b32 v253, 0x180, v1")
        a("v_lshrrev_b32 v253, 1, v253")
        a("v_and_b32 v254, 64, v1")
        a("v_lshlrev_b32 v254, 2, v254")
        a("v_or3_b32 v252, v252, v253, v254")
        bload(QR, 4, 1, SWS, "s92", 0, "sc1", "q")
        kvload(0)
        for t in range(1, 4):
            bload(QR + 4 * t, 4, 1, SWS, sr(92 + t), 0, "sc1", "q")
        kvload(1)
        if role == "a":
            kvload(2)

    def dump_addr():
        a("v_lshlrev_b32 v8, 2, v0")
        a("v_add_u32 v9, s99, v1")
        a("v_add_u32 v10, s99, v8")
        a("v_bfe_u32 v11, v0, 4, 1")
        a("v_lshl_add_u32 v11, v11, 10, v2")

    def dump(t):
        a("v_add_u32 v12, %s, v1" % sr(96 + t))
        a("v_add_u32 v13, %s, v8" % sr(96 + t))
        dsw("ds_write_b128", 12, OA + 16 * t, 4, t * 2304)
        dsw("ds_write_b128", 12, OA + 16 * t + 4, 4, t * 2304 + 1024)
        dsw("ds_write_b32", 13, OA + 16 * t + 8, 1, t * 2304 + 2048)

    deferred = []
    cfg_gap = {0: range(16), 1: (1, 10), 2: (0, 9), 3: (4, 10), 4: (1,), 5: (4,), 6: (15, 9)}[cfg.gap]

    def tiles_of(n):
        return [(j, t) for j in range(n) for t in range(4) if not (cfg.half and j == n - 1 and t < 2)]

    def att_run(n, hooks):
        tiles = tiles_of(n)
        last = {t: max(p for p, jt in enumerate(tiles) if jt[1] == t) for t in range(4)}
        hooks.setdefault(tiles[last[0]] + (11,), []).append(dump_addr)
        for t in range(3):
            hooks.setdefault(tiles[last[t] + (cfg.dlag if t < 2 and cfg.half else 1)] + (12,), []).append(lambda t=t: dump(t))
        assert all(k[:2] in tiles for k in hooks)
        vm.wait("q", ("kv", 0))
        mfma32(SB, KV, QR, None)
        loads = kvsched(n)
        for p, (j, t) in enumerate(tiles):
            cur, oth = SB + 16 * (p & 1), SB + 16 * ((p + 1) & 1)
            for i in range(16):
                a("v_exp_f32 %s, %s" % (vr(cur + i), vr(cur + i)))
                if i in cfg_gap:
                    while deferred:
                        deferred.pop(0)()
                if i == cfg.kvi and (j, t) in loads and not cfg.abl & 32:
                    kvload(loads[(j, t)])
                if i == 1 and p:
                    smf(OA + 16 * tiles[p - 1][1], kvreg(tiles[p - 1][0]) + 8, oth + 8)
                if i == 4 and p + 1 < len(tiles):
                    nj, nt = tiles[p + 1]
                    vm.wait(("kv", nj))
                    mfma32(oth, kvreg(nj), QR + 4 * nt, None)
                if i == 10:
                    smf(OA + 16 * t, kvreg(j) + 4, cur)
                for h in hooks.get((j, t, i), ()):
                    h()
        smf(OA + 48, kvreg(n - 1) + 8, SB + 16 + 8)

    ACC = (24, 40, 56)
    WB, NBUF, LA = 72, 6, cfg.look
    XF, PK, XA = 128, 96, 16
    init1, init2 = att_init_ops()

    def item(g):
        kk, m = divmod(g % 96, 6)
        return kk, m >> 1, m & 1

    def reads(g, part=None):
        kk, seg, ab = item(g)
        so = slot_of(g // 12)
        base = (8, 18)[ab] + so // 49152
        off = so % 49152 + (kk & 1) * 12288 + seg * 2048
        for h in range(2):
            if part in (None, h):
                if g < 96 and seg == 0 and ab == 0:
                    dsr("ds_read_b128", XF + 8 * kk + 4 * h, 4, XA + (kk & 1), (kk >> 1) * 8192 + h * 2048, g)
                dsr("ds_read_b64_tr_b16", WB + 4 * (g % NBUF) + 2 * h, 2, base, off + 512 * h, g)

    def pack(acc, pk):
        return ["v_cvt_pk_bf16_f32 %s, %s, %s" % (vr(pk + q), vr(acc + 2 * q), vr(acc + 2 * q + 1)) for q in range(8)]

    def st2(pk, va, base, delta, tag, imm=(0, 0), vb=None):
        def first():
            bstore(pk, 4, va, SWS, base, imm[0], "sc1", tag)

        def second():
            if delta:
                a("s_add_u32 s72, %s, %d" % (base, delta))
            bstore(pk + 4, 4, vb or va, SWS, "s72" if delta else base, imm[1], "sc1", tag)
        return [first, second]

    def relu2(acc):
        return (["v_max_f32 %s, 0, %s" % (vr(acc + i), vr(acc + i)) for i in range(16)]
                + ["v_mul_f32 %s, %s, %s" % (vr(acc + i), vr(acc + i), vr(acc + i)) for i in range(16)])

    def bias(seg):
        ops = [lambda: vm.wait("b1")]
        for q in range(4):
            ops.append("v_lshlrev_b32 %s, 16, %s" % (vr(ACC[seg] + 2 * q), vr(112 + 4 * seg + q)))
            ops.append("v_and_b32 %s, s89, %s" % (vr(ACC[seg] + 2 * q + 1), vr(112 + 4 * seg + q)))
        return ops

    tagq = ["v_or_b32 %s, 1, %s" % (vr(PK + 4 * q), vr(PK + 4 * q)) for q in range(2)]
    qkv_epi = (["v_mul_f32 %s, 0x%x, %s" % (vr(ACC[0] + i), QSCALE, vr(ACC[0] + i)) for i in range(16)]
               + pack(ACC[0], PK) + tagq + st2(PK, 14, "s76", 0, "st", (0, 256))
               + pack(ACC[1], PK + 8) + st2(PK + 8, 11, "s77", 0, "st", (0, 256))
               + pack(ACC[2], PK) + st2(PK, 12, "s77", 0, "st", (1024, 1152))
               + bias(0) + bias(1) + bias(2))
    sched = {108 + 12 * t: init1[16 * t:16 * t + 16] for t in range(4)}
    sched[174] = init2
    shadow = []

    def run_shadow(budget):
        while shadow and budget > 0:
            op = shadow.pop(0)
            if isinstance(op, str):
                a(op)
                budget -= 1
            else:
                op()
                budget -= 3

    mark = len(a.items)
    setup_a()
    a("""
    s_lshl_b32 s85, s60, 14
    s_lshl_b32 s72, s67, 7
    s_add_u32 s85, s85, s72
    s_lshl_b32 s86, s60, 6
    s_lshl1_add_u32 s86, s66, s86
    s_lshl_b32 s86, s86, 10
    s_add_u32 s86, s86, %d
    s_lshl_b32 s87, s66, FROW
    s_add_u32 s87, s87, %d
    """ % (WS_HF, WS_FLAGH))
    sched[0] = [v.text for k, v in a.items[mark:] if k == "ins"]
    del a.items[mark:]
    vm.wait(("w", 0))
    a("s_waitcnt lgkmcnt(0)")
    a("s_add_u32 %s, %s, 0x%x" % (sr(sTAG), sr(sTAG), EPOCH_INC))
    if cfg.bst == 3:
        stamp(9, True)
    a("s_barrier")
    stamp(3)
    if cfg.bst == 3:
        stamp(10, True)
    for g in range(LA):
        reads(g)
    for g in range(192):
        kk, seg, ab = item(g)
        if g == 96:
            stamp(4)
            shadow.extend(qkv_epi)
            run_shadow(1000)
            stamp(5)
            a("s_barrier")
            for n in range(96, 96 + LA):
                reads(n)
        lg.wait(g)
        w = WB + 4 * (g % NBUF)
        n = g + LA
        more = n < 192 and not g < 96 <= n
        shadow.extend(sched.get(g, ()))
        for h, t in enumerate((1, 0)):
            x = XF + 8 * kk + 4 * t
            if g < 96 and seg == 2:
                d = ACC[seg] + 8 * ab + 4 * t
                mfma16(d, x, w, None if kk == 0 else d)
            else:
                d = ACC[seg] + 8 * t + 4 * ab
                mfma16(d, w, x, d if kk else (None if g < 96 else ACC[seg] + 4 * ab))
            if more and h == 0 and n % 12 == 0:
                vm.wait(("w", n // 12))
                if n // 12 == cfg.flag_chunk:
                    vm.wait("st")
                a("s_barrier")
                if n // 12 == cfg.flag_chunk:
                    a("s_cmp_lg_u32 s60, 0")
                    a("s_cselect_b32 s79, 0x40000000, s79")
                    set_flag(7, "s79")
                    stamp(6)
            if more:
                reads(n, h)
            run_shadow((1 - h if g < 96 else 1) if more else 2)
        if g == cfg.b1at:
            b1loads()
    run_shadow(1000)
    stamp(7)
    hmath, hst = [], []
    for seg in range(3):
        pk = PK + 8 * seg
        hmath.append(relu2(ACC[seg]) + pack(ACC[seg], pk))
        hst.append((["s_add_u32 s78, s78, 0x40000"] if seg == 1 else []) + st2(pk, 127, "s78" if seg < 2 else "s88", 0, "hst", (0, 256)))
    for seg in range(cfg.hbar):
        shadow.extend(hmath[seg])
    run_shadow(1000)
    a("s_barrier")
    stamp(8)
    if cfg.bst == 4:
        stamp(1, True)
    a("s_setprio 2")
    for seg in range(cfg.hbar, cfg.hpre):
        shadow.extend(hmath[seg])
    run_shadow(1000)
    att_loads("a")
    if cfg.xt:
        for r in XKV:
            for q in range(8):
                a("v_mov_b32 %s, v7" % vr(r + 4 + q))
    hlist = [[hst[0][0]], [hst[0][1]], hst[1][:2], [hst[1][2]], [hst[2][0]], [hst[2][1]]]
    for seg in range(3):
        shadow.extend(hmath[seg] if seg >= max(cfg.hpre, cfg.hbar) else [])
        for n in (2 * seg, 2 * seg + 1):
            if n < cfg.hnow:
                shadow.extend(hlist[n])
    run_shadow(1000)
    stamp(9)


    def w2dma(i):
        if cfg.abl & 129:
            return
        a("s_add_u32 m0, s84, %d" % ((i & 3) * 2048))
        a("s_add_u32 s72, s85, %d" % (i * 65536))
        dma(4, SW2, "s72", 0, ("w2", i))
        a("s_add_u32 s72, s72, 7168")
        dma(4, SW2, "s72", 1024, ("w2", i))

    hreg = lambda i, tt: HB + 8 * (i % 3) + 4 * tt

    def hload(i):
        if cfg.abl & 257:
            return
        if i > 0:
            a("s_add_u32 s86, s86, 0x40000")
        for tt in range(2):
            bload(hreg(i, tt), 4, 1, SWS, "s86", tt * 1024, "sc1", ("h", i))

    def w2read(i, nt):
        if cfg.abl & 2:
            return
        vm.wait(("w2", i))
        trread(WF + 4 * nt, 5 + nt, (i & 3) * 2048, 1024, ("wf", i, nt))

    def fslot(f):
        i, m = divmod(f, 4)
        nt, tt = ((0, 0), (0, 1), (1, 1), (1, 0))[m]
        vm.wait(("h", i))
        lg.wait(("wf", i, nt))
        d = FA + 16 * (2 * tt + nt)
        if not cfg.abl & 4:
            mfma32(d, WF + 4 * nt, hreg(i, tt), None if i == 0 else d)
        if m == 1 and i + 1 < NS:
            deferred.append(lambda: w2read(i + 1, 0))
        if m == cfg.dmam and i + 4 < NS:
            deferred.append(lambda: w2dma(i + 4))
        if m == 3:
            if i + 1 < NS:
                deferred.append(lambda: w2read(i + 1, 1))
            if i + 3 < NS:
                deferred.append(lambda: hload(i + 3))

    def park(tt, nt):
        d = FA + 16 * (2 * tt + nt)
        for q in range(8):
            a("v_cvt_pk_bf16_f32 %s, %s, %s" % (vr(d + q), vr(d + 2 * q), vr(d + 2 * q + 1)))
        for q in range(2):
            dsw("ds_write_b128", 4, d + 4 * q, 4, tt * 32 * PART_STRIDE + nt * 64 + q * 32)

    def park_addr():
        a("v_and_b32 v4, 31, v0")
        a("v_mul_u32_u24 v4, %d, v4" % PART_STRIDE)
        a("v_lshrrev_b32 v5, 5, v0")
        a("v_lshl_add_u32 v4, v5, 4, v4")
        a("v_add_u32 v4, s84, v4")

    hooks = {}

    def hook(j, t, i, f):
        hooks.setdefault((j, t, i), []).append(f)

    n1 = cfg.n1
    for n in range(cfg.hnow, 6):
        tl = (n - cfg.hnow) * cfg.hgap + cfg.hoff
        hook(tl >> 2, tl & 3, 9, lambda n=n: (shadow.extend(hlist[n]), run_shadow(1000)))
    assert (5 - cfg.hnow) * cfg.hgap + cfg.hoff <= cfg.hflag < 4 * (n1 - 2)
    hook(cfg.hflag >> 2, cfg.hflag & 3, 12, lambda: (vm.wait("hst"), set_flag(7, "s80"), stamp(1) if cfg.hst else None))
    hook(n1 - 2, cfg.hpoll, 8, lambda: flag_load(7, cfg.fsh, "s87", "hf"))
    hook(n1 - 2, 3, 12, lambda: (vm.wait("hf"), stamp(2) if cfg.hst else None, check_flags("h", 7, cfg.fsh, "s87"), stamp(3) if cfg.hst else None))
    for i in range(4):
        hook(n1 - 3 + (i >> 1), 1 + (i & 1), 7, lambda i=i: w2dma(i))
    for i in range(3):
        hook(n1 - 1, i, 7, lambda i=i: hload(i))
    hook(n1 - 1, 3, 7, lambda: (w2read(0, 0), w2read(0, 1)))
    pat = [int(ch) for ch in str(cfg.fpat)]
    slots = [(j, t, pos) for j in range(n1, nA) for t in range(4) for pos in ((13,), (7, 13))[pat[t] - 1]]
    for f in range(4 * NS):
        hook(*slots[f], lambda f=f: fslot(f))
    rest = [jt for jt in tiles_of(nA) if jt > slots[4 * NS - 1][:2]]
    hook(*rest[0], 6, park_addr)
    for n, (nt, tt) in enumerate(((0, 0), (0, 1), (1, 1), (1, 0))):
        hook(*rest[n], 7, lambda tt=tt, nt=nt: park(tt, nt))
    if cfg.hst:
        for n in range(4):
            hook(n1 + 4 * n, 0, 1, lambda n=n: stamp(4 + n))
    if cfg.alow:
        hook(*tiles_of(nA)[-cfg.alow], 0, lambda: a("s_setprio 0"))
    if cfg.bst == 4:
        for n, j in enumerate(range(0, nA, 2)):
            hook(j, 2 if cfg.half and j == nA - 1 else 0, 0, lambda n=n: stamp(2 + n, True))
    def a_pf():
        a("; memory-side prefetch of w2 and wo")
        bload(255, 1, 125, SW2, "s100", 0, "", "pf")
        bload(255, 1, 125, SWO, "s100", 0, "", "pf")

    def a_wo(lo):
        if lo == 0:
            a("; wo tile -> LDS [0, 64K), a few rows per score tile")
            a("s_lshl_b32 s76, s60, 17")
            a("s_lshl_b32 s73, s67, 7")
            a("s_add_u32 s76, s76, s73")
            a("s_lshl_b32 s77, s60, 14")
        a("s_add_u32 m0, s77, %d" % (lo * 1024))
        for i in range(cfg.awn):
            a("s_add_u32 s73, s76, %d" % ((lo + i) * 8192 - i * 1024))
            dma(126, SWO, "s73", i * 1024, "wo")

    if cfg.apf:
        hook(cfg.apf >> 2, cfg.apf & 3, 9, a_pf)
    if cfg.awo:
        for n, lo in enumerate(range(0, 16, cfg.awn)):
            assert cfg.awo + n < 4 * n1
            hook((cfg.awo + n) >> 2, (cfg.awo + n) & 3, 9, lambda lo=lo: a_wo(lo))
    kvplan["xt"] = cfg.xt or None
    assert cfg.xt + 2 <= n1
    att_run(nA, hooks)
    kvplan["xt"] = None
    vm.drain()
    a("s_branch L_att_done")

    a.label("L_loader")
    vm.items = []
    lg.items = []

    def b_setup():
        a("; waves 4-7: W1 DMA offsets v56-v59 (sixth tile out of range where the next group owns it), flagQ row s79")
        a("""
        v_mul_u32_u24 v56, 2752, v4
        v_add_u32 v56, v56, v6
        s_lshr_b32 s72, 0xf8, s61
        s_and_b32 s72, s72, 1
        s_lshl_b32 s72, s72, 23
        v_and_b32 v57, 64, v6
        v_mad_u32_u24 v57, v57, s72, v56
        v_xor_b32 v58, 16, v56
        v_xor_b32 v59, 16, v57
        s_lshr_b32 s79, s64, 1
        s_lshl_b32 s79, s79, 10
        s_add_u32 s79, s79, %d
        s_and_b32 s73, s60, 3
        s_lshl_b32 s72, s69, 6
        s_mul_i32 s80, s73, %d
        s_add_u32 s80, s80, s72
        """ % (WS_FLAGQ, 16 * 2752))

        a("v_mov_b32 v3, 0xdddddddd")

    issued = cfg.lead
    setup1()
    state = {"issued": issued}

    def b_step(c):
        vm.wait(("w", c))
        if cfg.bst == 2:
            stamp(c, True)
        if cfg.bst == 3 and c == 0:
            stamp(9, True)
        a("s_barrier")
        if cfg.bst == 1:
            stamp(c, True)
        if c in (0, 8, 12, 15):
            stamp({0: 3, 8: 4, 12: 5, 15: 6}[c])
        if c == cfg.bload - 1:
            flag_load(7, 4, "s79", "qf")
        if c == cfg.bload:
            vm.wait("qf")
            check_flags("q", 7, 4, "s79")
            stamp(7)
            att_loads("b")
        while state["issued"] < min(15, max(3, c + 2)):
            state["issued"] += 1
            issue_chunk(state["issued"])
        if c == 0:
            setup_pf((SW1,))
        if c == cfg.sA:
            setup2()
        if cfg.pf1_at == 12 + c:
            pf1()
        if c == cfg.sB:
            b_setup()
        if c == cfg.sC:
            setup3()
        if c == cfg.sC:
            for op in init1 + init2:
                a(op)
        if c == 7:
            a("s_waitcnt lgkmcnt(0)")
            a("s_add_u32 %s, %s, 0x%x" % (sr(sTAG), sr(sTAG), EPOCH_INC))

    def b_att():
        a("s_barrier")
        stamp(8)
        a("s_setprio 1")
        kvload(2)

    bhooks = {}
    for c in range(16):
        b_step(c)
    b_att()
    if cfg.bst == 4:
        for j in range(nB):
            bhooks.setdefault((j, 2 if cfg.half and j == nB - 1 else 0, 0), []).append(lambda j=j: stamp(2 + j, True))
    kvplan["jump"] = nB - 2 if cfg.half else None
    att_run(nB, bhooks)
    kvplan["jump"] = None
    vm.drain()

    OW = OA + 48
    WOF, OFR, AC, G, Z, X, SR = 128, 24, 8, 64, 96, 104, 112
    a.label("L_att_done")
    stamp(10)
    if cfg.bst == 4:
        stamp(14, True)
    a("s_setprio 0")
    a("s_and_b32 s73, s60, 1")
    a("s_lshl_b32 s73, s73, 9")
    a("s_sub_u32 s76, s95, s73")
    a("""
    s_and_b32 s74, s60, 3
    s_lshr_b32 s75, s60, 2
    v_lshrrev_b32 v14, 3, v0
    v_and_b32 v7, 7, v0
    v_lshlrev_b32 v7, 4, v7
    v_lshl_add_u32 v14, v14, 10, v7
    s_lshl3_add_u32 s78, s66, s60
    s_lshl_b32 s78, s78, 13
    s_lshl_b32 s79, s67, 7
    s_add_u32 s78, s78, s79
    """)
    bload(60, 4, 7, SB2, "s79", 0, "", "xb")
    bload(56, 4, 14, SX, "s78", 0, "", "xb")
    lg.drain()
    a("s_barrier")
    for src in range(3):
        d = SB + 10 * src
        dsr("ds_read_b128", d, 4, 9, src * 2304, src)
        dsr("ds_read_b128", d + 4, 4, 9, src * 2304 + 1024, src)
        dsr("ds_read_b32", d + 8, 1, 10, src * 2304 + 2048, src)
    for src in range(3):
        lg.wait(src)
        for i in range(0, 8, 2):
            a("v_pk_add_f32 %s, %s, %s" % (vr(OW + i, 2), vr(OW + i, 2), vr(SB + 10 * src + i, 2)))
        a("v_add_f32 %s, %s, %s" % (vr(OW + 8), vr(OW + 8), vr(SB + 10 * src + 8)))
    a("v_pk_mul_f32 v[12:13], %s, 0 op_sel_hi:[1,0]" % vr(OW, 2))
    for i in range(2, 8, 2):
        a("v_pk_fma_f32 v[12:13], %s, 0, v[12:13] op_sel_hi:[1,0,1]" % vr(OW + i, 2))
    a("""
    v_add_f32 v12, v12, %s
    v_add_f32 v12, v12, v13
    v_cmp_nle_f32 vcc, 0x30800000, v12
    s_mov_b64 s[72:73], vcc
    v_cmp_nge_f32 vcc, 0x5d800000, v12
    s_or_b64 s[72:73], s[72:73], vcc
    """ % vr(OW + 8))
    a("s_branch L_slow" if cfg.force_slow else "s_cbranch_scc1 L_slow")
    a.label("L_norm")
    a("v_rcp_f32 v12, %s" % vr(OW + 8))
    for i in range(0, 8, 2):
        a("v_pk_mul_f32 %s, %s, v[12:13] op_sel_hi:[1,0]" % (vr(OW + i, 2), vr(OW + i, 2)))
    for q in range(4):
        a("v_cvt_pk_bf16_f32 %s, %s, %s" % (vr(16 + q), vr(OW + 2 * q), vr(OW + 2 * q + 1)))
    a("v_and_b32 v16, -2, v16")
    bstore(16, 4, 11, SWS, "s76", 0, "sc1", "ost")
    stamp(11)
    a("v_mov_b32 v2, v14")
    a("v_lshrrev_b32 v3, 3, v0")
    a("""
    v_mul_u32_u24 v4, %d, v3
    s_mul_i32 s72, s60, %d
    s_add_u32 s72, s72, %d
    v_add3_u32 v4, v4, v7, s72
    """ % (PART_STRIDE, 8 * PART_STRIDE, L_W2))
    for j in range(4):
        dsr("ds_read_b128", G + 4 * j, 4, 4, j * W2_REGION, "g")
    a("""
    v_bfe_u32 v4, v0, 2, 2
    v_bfe_u32 v5, v0, 4, 1
    v_lshl_add_u32 v4, v5, 2, v4
    v_lshrrev_b32 v5, 1, v4
    v_lshlrev_b32 v92, 7, v4
    v_lshl_add_u32 v92, v5, 5, v92
    v_lshrrev_b32 v6, 5, v0
    v_lshl_add_u32 v92, v6, 11, v92
    v_and_b32 v4, 3, v0
    v_lshl_add_u32 v92, v4, 3, v92
    s_lshl_b32 s72, s75, 15
    v_add_u32 v92, s72, v92
    v_xor_b32 v93, 32, v92
    v_xor_b32 v94, 64, v92
    v_xor_b32 v95, 0x60, v92
    s_barrier
    """)

    def oloads(first=0):
        for ks in range(first, 8):
            bload(OFR + 4 * ks, 4, 1, SWS, ("s76", "s77", "s80", "s81")[ks >> 1], (ks & 1) * 2048, "sc1", ("o", ks))

    fill = ("""
    s_lshl2_add_u32 s72, s66, s74
    s_lshr_b32 s76, s72, 1
    s_lshl1_add_u32 s76, s76, s75
    s_lshl_b32 s76, s76, 14
    s_and_b32 s72, s72, 1
    s_lshl_b32 s72, s72, 10
    s_add_u32 s76, s76, s72
    s_add_u32 s76, s76, %d
    s_add_u32 s77, s76, 0x1000
    s_add_u32 s80, s76, 0x2000
    s_add_u32 s81, s76, 0x3000
    v_mul_u32_u24 v3, %d, v3
    v_lshl_add_u32 v3, v7, 1, v3
    s_mul_i32 s72, s60, %d
    s_add_u32 s72, s72, %d
    v_add_u32 v3, s72, v3
    v_and_b32 v5, 15, v0
    v_mul_u32_u24 v5, %d, v5
    v_and_b32 v4, 48, v0
    s_mul_i32 s72, s60, %d
    s_add_u32 s72, s72, %d
    v_add3_u32 v5, v5, v4, s72
    s_mov_b32 s82, 0x3f80
    s_mov_b32 s83, 0x3f800000
    """ % (WS_QO, SUM_STRIDE, 8 * SUM_STRIDE, L_SUM, SUM_STRIDE, 16 * SUM_STRIDE, L_SUM)).strip().split("\n")
    gate = ["v_mov_b32 %s, 0" % vr(Z + i) for i in range(8)]
    gate.append(lambda: lg.wait("g"))
    for j in range(5):
        if j == 4:
            gate.append(lambda: vm.wait("xb"))
        for q in range(4):
            src = G + 4 * j + q if j < 4 else 60 + q
            gate.append("v_dot2c_f32_bf16 %s, s82, %s" % (vr(Z + 2 * q), vr(src)))
            gate.append("v_dot2c_f32_bf16 %s, s83, %s" % (vr(Z + 2 * q + 1), vr(src)))
    for q in range(4):
        gate.append("v_lshlrev_b32 %s, 16, %s" % (vr(X + 2 * q), vr(56 + q)))
        gate.append("v_and_b32 %s, s89, %s" % (vr(X + 1 + 2 * q), vr(56 + q)))
    gate += ["v_mul_f32 %s, 0x%x, %s" % (vr(G + i), NLOG2E, vr(Z + i)) for i in range(8)]
    gate += ["v_exp_f32 %s, %s" % (vr(G + i), vr(G + i)) for i in range(8)]
    gate += ["v_add_f32 %s, 1.0, %s" % (vr(G + i), vr(G + i)) for i in range(8)]
    gate += ["v_rcp_f32 %s, %s" % (vr(G + i), vr(G + i)) for i in range(8)]
    gate += ["v_mul_f32 %s, %s, %s" % (vr(Z + i), vr(Z + i), vr(G + i)) for i in range(8)]

    def wo_reads(oat, per):
        for ks in range(8):
            for ct in range(4):
                trread(WOF + (ks * 4 + ct) * 4, 92 + ct, ks * 4096, 1024, ("wo", ks))
                run_shadow(per)
            if ks == oat:
                run_shadow(1000)
                if not cfg.noack:
                    vm.wait("ost")
                oloads()

    vm_t, lg_t = list(vm.items), list(lg.items)
    a("s_cmp_eq_u32 s63, 1")
    a("s_cbranch_scc1 L_tail_b")
    shadow.extend(fill)
    wo_reads(cfg.oata, 1)
    shadow.extend(gate)
    run_shadow(1000)
    a("s_branch L_tail_j")
    a.label("L_tail_b")
    vm.items, lg.items = vm_t, lg_t
    shadow.extend(fill + gate)
    if cfg.obg:
        run_shadow(cfg.obg)
        oloads()
    run_shadow(1000)
    wo_reads(99 if cfg.obg else cfg.oat, 0)
    a.label("L_tail_j")
    stamp(12)
    a("s_mov_b32 s73, 0")
    lg.drain()
    for ks in range(8):
        a.label("L_wo_%d" % ks)
        vm.wait(("o", ks))
        a("v_and_b32 v6, 1, %s" % vr(OFR + 4 * ks))
        a("v_cmp_ne_u32 vcc, 0, v6")
        a("s_cbranch_vccnz L_oretry_%d" % ks)
        a.label("L_ogo_%d" % ks)
        for ct in range(4):
            d = AC + 4 * ct
            mfma16(d, WOF + (ks * 4 + ct) * 4, OFR + 4 * ks, None if ks == 0 else d)
    stamp(13)
    for ct in range(4):
        dsw("ds_write_b128", 5, AC + 4 * ct, 4, ct * 64)
    lg.drain()
    a("s_barrier")
    stamp(14)
    dsr("ds_read_b128", SR, 4, 3, 0, 0)
    dsr("ds_read_b128", SR + 8, 4, 3, SUM_SIZE, 0)
    dsr("ds_read_b128", SR + 4, 4, 3, 16, 1)
    dsr("ds_read_b128", SR + 12, 4, 3, SUM_SIZE + 16, 1)
    for h in range(2):
        lg.wait(h)
        for i in range(4 * h, 4 * h + 4, 2):
            a("v_pk_add_f32 %s, %s, %s" % (vr(SR + i, 2), vr(SR + i, 2), vr(SR + 8 + i, 2)))
        for i in range(4 * h, 4 * h + 4, 2):
            a("v_pk_fma_f32 %s, %s, %s, %s" % (vr(SR + i, 2), vr(SR + i, 2), vr(Z + i, 2), vr(X + i, 2)))
        for q in range(2 * h, 2 * h + 2):
            a("v_cvt_pk_bf16_f32 %s, %s, %s" % (vr(G + q), vr(SR + 2 * q), vr(SR + 2 * q + 1)))
    bstore(G, 4, 2, SOUT, "s78", 0, ("", "sc1", "nt", "sc0 sc1", "sc0 sc1 nt")[cfg.omod])
    a("s_or_b32 s72, s2, s60")
    a("s_cmp_lg_u32 s72, 0")
    a("s_cbranch_scc1 L_noepoch")
    set_flag(7, "0")
    a.label("L_noepoch")
    if cfg.stamps:
        a("s_waitcnt vmcnt(0)")
        stamp(15)
        if cfg.probe is not None:
            a("s_sub_u32 s72, %s, s4" % sr(sSTAMP + cfg.probe))
            if cfg.stamps == 2:
                a("s_lshr_b32 s72, s72, 3")
            else:
                a("s_lshl_b32 s72, s72, %d" % cfg.probesh)
            a("s_cmp_lg_u32 s2, %d" % cfg.probewg)
            a("s_cselect_b32 s72, 0, s72")
            a("s_cmp_lg_u32 s60, %d" % cfg.probew)
            a("s_cselect_b32 s72, 0, s72")
            a("s_memrealtime s[22:23]")
            a("s_waitcnt lgkmcnt(0)")
            a("s_mov_b32 s73, s22")
            a.label("L_probe")
            a("s_memrealtime s[22:23]")
            a("s_waitcnt lgkmcnt(0)")
            a("s_sub_u32 s22, s22, s73")
            a("s_cmp_lt_u32 s22, s72")
            a("s_cbranch_scc1 L_probe")
        a("s_lshl3_add_u32 s72, s2, s60")
        a("s_lshl_b32 s72, s72, 6")
        a("s_add_u32 s72, s72, %d" % WS_STAMP)
        for i in range(16):
            a("v_mov_b32 %s, %s" % (vr(80 + i), sr(sSTAMP + i)))
        a("s_mov_b64 exec, 1")
        for i in range(4):
            bstore(80 + 4 * i, 4, 1, SWS, "s72", 16 * i)
    a.label("L_end")
    a("s_endpgm")

    for ks in range(8):
        a.label("L_oretry_%d" % ks)
        a("s_add_u32 s73, s73, 1")
        a("s_cmp_ge_u32 s73, %d" % SPIN_MAX)
        a("s_cbranch_scc1 L_ogo_%d" % ks)
        a("s_waitcnt vmcnt(0)")
        oloads(ks)
        a("s_branch L_wo_%d" % ks)

    for tag, vt, lanes, soff in stubs:
        a.label("L_poll_" + tag)
        a("s_mov_b32 s73, 0")
        a.label("L_poll2_" + tag)
        a("s_sleep %d" % cfg.sleep)
        flag_load(vt, lanes, soff, None)
        a("s_add_u32 s73, s73, 1")
        a("s_waitcnt vmcnt(0)")
        a("s_cmp_ge_u32 s73, %d" % SPIN_MAX)
        a("s_cbranch_scc1 L_polled_" + tag)
        a("v_cmp_ne_u32 vcc, %s, %s" % (sr(sTAG), vr(vt)))
        a("s_cbranch_vccnz L_poll2_" + tag)
        a("s_branch L_polled_" + tag)

    a.label("L_slow")
    CN = SB + 16
    a("s_waitcnt vmcnt(0)")
    a("v_mov_b32 v13, 0xff800000")
    a("s_mov_b32 s82, s83")
    a("s_mov_b32 s81, 64")
    a.label("L_slow1")
    bload(KV, 4, 252, SWS, "s82", 0, "sc1")
    a("s_add_u32 s82, s82, 2048")
    a("s_waitcnt vmcnt(0)")
    mfma32(SB, KV, QR + 12, None)
    for i in range(0, 16, 2):
        a("v_max3_f32 v13, v13, %s, %s" % (vr(SB + i), vr(SB + i + 1)))
    a("s_sub_u32 s81, s81, 1")
    a("s_cmp_lg_u32 s81, 0")
    a("s_cbranch_scc1 L_slow1")
    a("v_mov_b32 v15, v13")
    a("v_permlane32_swap_b32 v15, v13")
    a("v_max_f32 v13, v15, v13")
    for i in range(16):
        a("v_sub_f32 %s, 0, v13" % vr(CN + i))
        a("v_mov_b32 %s, 0" % vr(OW + i))
    a("s_mov_b32 s82, s83")
    a("s_mov_b32 s81, 64")
    a.label("L_slow2")
    kvload(0)
    a("s_waitcnt vmcnt(0)")
    mfma32(SB, KV, QR + 12, CN)
    for i in range(16):
        a("v_exp_f32 %s, %s" % (vr(SB + i), vr(SB + i)))
    smf(OW, KV + 4, SB)
    smf(OW, KV + 8, SB + 8)
    a("s_sub_u32 s81, s81, 1")
    a("s_cmp_lg_u32 s81, 0")
    a("s_cbranch_scc1 L_slow2")
    a("s_branch L_norm")
    a.label("L_code_end")
    a("s_endpgm")

    added = a.fix()
    return a.text().replace('FSH', str(cfg.fsh)).replace('FROW', str(cfg.fsh + 5)), added


HEADER = """; Kernarg layout for this problem (88 bytes, ptrs only, base s[0:1]):
; @launch grid=(256,1,1) block=(512,1,1) lds=163840
.amdgcn_target "amdgcn-amd-amdhsa--gfx950"
.text
.globl {k}
.p2align 8
.type {k},@function
{k}:
"""

FOOTER = """.section .rodata,"a"
.p2align 6
.amdhsa_kernel {k}
  .amdhsa_next_free_vgpr 256
  .amdhsa_next_free_sgpr 102
  .amdhsa_accum_offset 256
  .amdhsa_group_segment_fixed_size 0
  .amdhsa_kernarg_size 88
  .amdhsa_user_sgpr_count 2
  .amdhsa_user_sgpr_kernarg_segment_ptr 1
  .amdhsa_system_sgpr_workgroup_id_x 1
.end_amdhsa_kernel
"""


def build(**kw):
    cfg = Cfg()
    for k, v in kw.items():
        setattr(cfg, k, v)
    body, added = gen(cfg)
    return HEADER.format(k=KERNEL) + body + FOOTER.format(k=KERNEL), added


if __name__ == "__main__":
    out = sys.argv[1] if len(sys.argv) > 1 else "cdna_kernels/%s.s" % NAME
    kw = {}
    for arg in sys.argv[2:]:
        k, v = arg.split("=")
        kw[k] = int(v)
    text, added = build(**kw)
    open(out, "w").write(text)
    print("wrote", out, "lines", text.count("\n"), "nops added", added)
```

```python
import sys
import os
sys.path.insert(0, os.path.dirname(os.path.abspath(__file__)))
from asmlib import Asm, vr, sr

NAME = "recurrent_scan__softmax_full_mha__dense_activation_squared_relu__prompt"
KERNEL = NAME + "_kernel"

WS_FLAGQ = 0x1200
WS_FLAGH = 0x60000
WS_STAMP = 0x10000
WS_QO = 0x100000
WS_KV = 0x300000
WS_HF = 0x700000
WS_END = WS_HF + 86 * 65536
EPOCH_INC = 0x9E3779B9
SPIN_MAX = 1 << 18

L_RING = 65536
L_OPART = 65536
L_W2 = L_OPART + 55296
W2_REGION = 10240
PART_STRIDE = 144
SUM_STRIDE = 272
SUM_SIZE = 64 * SUM_STRIDE
L_SUM = L_OPART

SX, SWQ, SWO, SW1, SB1, SW2, SB2, SOUT, SWS = 24, 28, 32, 36, 40, 44, 48, 52, 56
sW, sCG, sTB, sRW, sP, sQB, sTBF, sCB, sTAG, sCT0 = 60, 61, 62, 63, 64, 65, 66, 67, 68, 69
sVM = 70
sSTAMP = 4

QSCALE = 0x3EB8AA3B
NLOG2E = 0xBFB8AA3B
NS = 22


class Cfg:
    abl = 0
    bst = 0
    n1 = 8
    nA = 21
    gap = 1
    kvi = 4
    dmam = 2
    fpat = 2222
    pf1_at = 13
    w2_at = 10
    stamps = 0
    force_slow = 0
    flag_chunk = 9
    lead = 1
    look = 5
    sleep = 6
    w0_at = 7
    w1_at = 10
    hpre = 2
    hbar = 0
    hnow = 2
    hgap = 2
    hoff = 0
    fsh = 4
    b1at = -10
    sA = 3
    sB = 3
    sC = 7
    alow = 1
    xt = 5
    pfeven = 1
    pmap = 1
    bload = 15
    hpoll = 0
    half = 1
    dlag = 1
    apf = 13
    awo = 20
    awn = 2
    hflag = 11
    probe = None
    omod = 1
    oat = 2
    oata = 2
    noack = 1
    obg = 0
    probewg = 100
    probew = 0
    probesh = 4
    hst = 0


def srd(s):
    return sr(s, 4)


class Queue:
    def __init__(self, a, name, maxn):
        self.a, self.name, self.maxn, self.items = a, name, maxn, []

    def push(self, tag):
        self.items.append(tag)

    def wait(self, *tags):
        last = max((i for i, t in enumerate(self.items) if t in tags), default=-1)
        if last < 0:
            return
        n = len(self.items) - 1 - last
        self.a("s_waitcnt %s(%d)" % (self.name, min(n, self.maxn)))
        self.items = self.items[last + 1:]

    def drain(self):
        self.a("s_waitcnt %s(0)" % self.name)
        self.items = []


def gen(cfg):
    a = Asm()
    nA = cfg.nA
    nB = 32 - nA + cfg.half
    vm = Queue(a, "vmcnt", 63)
    lg = Queue(a, "lgkmcnt", 15)

    def stamp(i, force=False):
        if cfg.bst and not force and i != 0:
            return
        if cfg.stamps and (cfg.probe is None or i in (0, cfg.probe)):
            a("%s s[22:23]" % ("s_memtime" if cfg.stamps == 2 else "s_memrealtime"))
            a("s_waitcnt lgkmcnt(0)")
            a("s_mov_b32 %s, s22" % sr(sSTAMP + i))

    def mfma32(d, x, y, c):
        a("v_mfma_f32_32x32x16_bf16 %s, %s, %s, %s" % (vr(d, 16), vr(x, 4), vr(y, 4), "0" if c is None else vr(c, 16)))

    def mfma16(d, x, y, c):
        a("v_mfma_f32_16x16x32_bf16 %s, %s, %s, %s" % (vr(d, 4), vr(x, 4), vr(y, 4), "0" if c is None else vr(c, 4)))

    def smf(d, x, y):
        a("v_smfmac_f32_32x32x32_bf16 %s, %s, %s, v3" % (vr(d, 16), vr(x, 4), vr(y, 8)))

    def bload(d, n, va, s, so, off=0, mod="", tag=None):
        op = {1: "dword", 2: "dwordx2", 4: "dwordx4"}[n]
        a("buffer_load_%s %s, %s, %s, %s offen offset:%d %s" % (op, vr(d, n), vr(va), srd(s), so, off, mod))
        vm.push(tag)

    def bstore(d, n, va, s, so, off=0, mod="", tag=None):
        op = {1: "dword", 2: "dwordx2", 4: "dwordx4"}[n]
        a("buffer_store_%s %s, %s, %s, %s offen offset:%d %s" % (op, vr(d, n), vr(va), srd(s), so, off, mod))
        vm.push(tag)

    def dma(va, s, so, off=0, tag=None):
        a("buffer_load_dwordx4 %s, %s, %s offen offset:%d lds" % (vr(va), srd(s), so, off))
        vm.push(tag)

    def dsr(op, d, n, va, off, tag=None):
        a("%s %s, %s offset:%d" % (op, vr(d, n), vr(va), off))
        lg.push(tag)

    def dsw(op, va, d, n, off, tag=None):
        a("%s %s, %s offset:%d" % (op, vr(va), vr(d, n), off))
        lg.push(tag)

    def trread(d, va, off, second, tag=None):
        dsr("ds_read_b64_tr_b16", d, 2, va, off, tag)
        dsr("ds_read_b64_tr_b16", d + 2, 2, va, off + second, tag)

    def set_flag(vt, soff):
        a("v_mov_b32 %s, %s" % (vr(vt), sr(sTAG)))
        a("s_mov_b64 exec, 1")
        bstore(vt, 1, 1, SWS, soff, 0, "sc0 sc1")
        a("s_mov_b64 exec, -1")

    stubs = []

    def check_flags(tag, vt, lanes, soff):
        a("v_cmp_ne_u32 vcc, %s, %s" % (sr(sTAG), vr(vt)))
        a("s_cbranch_vccnz L_poll_" + tag)
        a.label("L_polled_" + tag)
        stubs.append((tag, vt, lanes, soff))

    def flag_load(vt, shift, soff, tag):
        a("v_and_b32 %s, 31, v0" % vr(vt))
        a("v_lshlrev_b32 %s, %d, %s" % (vr(vt), shift, vr(vt)))
        bload(vt, 1, vt, SWS, soff, 0, "sc0 sc1", tag)

    sizes = {SX: 2048 * 1024, SWQ: 512 * 3072, SWS: WS_END, SW1: 512 * 2752, SB1: 2752,
             SWO: 512 * 1024, SW2: 1376 * 1024, SB2: 1024, SOUT: 2048 * 1024}
    RAW = 128

    def xloads():
        for j in range(8):
            bload(RAW + j * 4, 4, 14, SX, "s101", j * 128, "", ("x", j))

    stamp(0)
    a("""
    s_load_dwordx2 s[24:25], s[0:1], 0
    s_getpc_b64 s[72:73]
    L_pc:
    s_cmpk_ge_u32 s2, 256
    s_cbranch_scc1 L_end
    s_lshr_b32 s74, s2, 3
    s_lshl_b32 s74, s74, 11
    v_lshrrev_b32 v8, 5, v0
    v_lshl_add_u32 v8, v8, 7, s74
    v_min_u32 v8, L_code_end-L_pc, v8
    v_mov_b32 v9, 0
    v_lshl_add_u64 v[8:9], v[8:9], 0, s[72:73]
    global_load_dword v7, v[8:9], off
    s_lshl_b32 s72, s2, 4
    s_and_b32 s72, s72, 0x180
    v_add_u32 v4, s72, v0
    v_bfe_u32 v4, v4, 3, 6
    v_and_b32 v5, 7, v0
    v_lshlrev_b32 v14, 10, v4
    v_lshl_add_u32 v14, v5, 4, v14
    s_lshr_b32 s67, s2, 5
    s_and_b32 s73, s2, 6
    s_lshl2_add_u32 s62, s73, s67
    s_lshl_b32 s101, s62, 16
    s_mov_b32 s26, %d
    s_mov_b32 s27, 0x20000
    v_bfe_u32 v24, v4, 1, 3
    v_xor_b32 v24, v24, v5
    v_lshlrev_b32 v15, 7, v4
    v_lshl_add_u32 v15, v24, 4, v15
    v_readfirstlane_b32 s60, v0
    v_and_b32 v0, 63, v0
    v_and_b32 v26, 3, v0
    v_mov_b32 v29, 0
    s_lshr_b32 s60, s60, 6
    s_cmp_ge_u32 s60, 4
    s_waitcnt lgkmcnt(0)
    """ % sizes[SX])
    vm.push("pf")
    if cfg.bst == 3:
        stamp(1, True)
    xloads()
    if cfg.bst == 3:
        stamp(2, True)
    if cfg.stamps:
        for i in range(3 if cfg.bst == 3 else 1, 16):
            a("s_mov_b32 %s, s4" % sr(sSTAMP + i))
    a("s_mov_b32 s63, 1")
    a("s_cbranch_scc1 L_ln")
    a("s_mov_b32 s63, 0")

    def setup1():
        for s, off in ((SWQ, 8), (SWS, 80), (SW1, 32), (SB1, 40), (SWO, 16), (SW2, 48), (SB2, 56), (SOUT, 64)):
            a("s_load_dwordx2 %s, s[0:1], %d" % (sr(s, 2), off))
        a("""
        s_mov_b32 s30, %d
        s_mov_b32 s31, 0x20000
        s_bfe_u32 s72, s2, 0x20003
        s_and_b32 s73, s2, 1
        s_lshl2_add_u32 s61, s73, s72
        s_and_b32 s74, s60, 3
        s_lshl_b32 s72, s61, 7
        s_mul_i32 s85, s74, %d
        s_add_u32 s85, s85, s72
        s_mul_i32 s87, s74, 6144
        s_add_u32 s87, s87, %d
        v_lshrrev_b32 v4, 3, v0
        v_bfe_u32 v6, v4, 1, 1
        v_lshlrev_b32 v6, 2, v6
        v_xor_b32 v6, v6, v5
        v_lshlrev_b32 v6, 4, v6
        v_mul_u32_u24 v13, 3072, v4
        v_add_u32 v13, v13, v6
        v_xor_b32 v33, 16, v13
        s_waitcnt lgkmcnt(0)
        """ % (sizes[SWQ], 16 * 3072, L_RING))

    def setup_pf(srds):
        for s in srds:
            a("s_mov_b32 %s, %d" % (sr(s + 2), sizes[s]))
            a("s_mov_b32 %s, 0x20000" % sr(s + 3))
        if cfg.pfeven:
            a("; memory-side prefetches are issued by even workgroups only, 22 lines per wave")
            a("""
            s_and_b32 s73, s60, 3
            s_lshl1_add_u32 s100, s2, s73
            s_mul_i32 s100, s100, 2816
            s_bitcmp1_b32 s2, 0
            s_cselect_b32 s100, 0x40000000, s100
            v_min_u32 v31, 21, v0
            v_lshlrev_b32 v31, 7, v31
            """)
        else:
            a("""
            s_and_b32 s73, s60, 3
            s_lshl2_add_u32 s100, s2, s73
            s_mul_i32 s100, s100, 1536
            v_min_u32 v31, 11, v0
            v_lshlrev_b32 v31, 7, v31
            """)

    def setup2():
        a("s_load_dword %s, %s, 0" % (sr(sTAG), sr(SWS, 2)))
        for s in (SWS, SB1, SB2, SOUT):
            a("s_mov_b32 %s, %d" % (sr(s + 2), sizes[s]))
            a("s_mov_b32 %s, 0x20000" % sr(s + 3))
        a("""
        s_bfe_u32 s72, s2, 0x20003
        s_and_b32 s73, s2, 7
        s_lshl2_add_u32 s66, s73, s72
        s_and_b32 s72, s72, 1
        PMAP
        s_lshr_b32 s65, s2, 4
        s_mul_i32 s69, s61, 6
        s_mul_i32 s73, s61, 5
        s_add_u32 s73, s73, 3
        s_min_u32 s69, s69, s73
        s_mov_b32 s70, 0xffff
        s_mov_b32 s71, 0xffff
        v_lshlrev_b32 v1, 4, v0
        v_and_b32 v2, 15, v0
        v_lshrrev_b32 v3, 5, v0
        v_lshl_add_u32 v2, v3, 4, v2
        v_lshlrev_b32 v2, 4, v2
        """.replace("PMAP", "s_and_b32 s64, s2, 6\ns_add_u32 s72, s72, s64\ns_and_b32 s64, s2, 1\ns_lshl3_add_u32 s64, s64, s72"
                    if cfg.pmap else "s_lshl1_add_u32 s64, s73, s72"))

    def setup3():
        a("; attention offsets: s82 = next K/V tile, s83 = head base, s92-s95 = Q tiles, s96-s99 = O partial slots")
        a("""
        s_and_b32 s74, s60, 1
        s_lshr_b32 s75, s60, 1
        s_lshl1_add_u32 s72, s64, s74
        s_lshl_b32 s83, s72, 17
        s_add_u32 s83, s83, %d
        s_and_b32 s73, s75, 1
        s_lshl_b32 s73, s73, 16
        s_add_u32 s82, s83, s73
        s_lshl_b32 s72, s65, 6
        s_add_u32 s72, s72, s64
        s_lshl1_add_u32 s72, s72, s74
        s_lshl_b32 s72, s72, 10
        s_add_u32 s72, s72, %d
        s_mul_i32 s84, s74, %d
        s_add_u32 s84, s84, %d
        """ % (WS_KV, WS_QO, 12 * 2304, L_OPART))
        for t in range(4):
            a("s_xor_b32 s73, s75, %d" % (t ^ 3))
            a("s_mul_i32 %s, s73, %d" % (sr(96 + t), 3 * 2304))
            a("s_lshl_b32 s73, s73, 15")
            a("s_add_u32 %s, s72, s73" % sr(92 + t))
            a("s_add_u32 %s, %s, s84" % (sr(96 + t), sr(96 + t)))

    setup1()
    setup_pf((SWO, SW2))
    setup2()
    a("s_and_b32 s74, s60, 1")
    a("s_lshr_b32 s75, s60, 1")
    a("""
    v_bfe_u32 v9, v0, 4, 1
    v_and_b32 v16, 15, v0
    v_lshlrev_b32 v8, 4, v16
    v_lshl_add_u32 v8, v9, 9, v8
    v_lshl_add_u32 v11, v3, 17, v8
    v_lshl_add_u32 v14, v3, 10, v8
    v_lshl_add_u32 v127, v3, 16, v8
    v_lshrrev_b32 v17, 4, v0
    v_bfe_u32 v8, v0, 3, 1
    v_lshlrev_b32 v12, 4, v5
    v_lshl_add_u32 v12, v17, 8, v12
    v_lshl_add_u32 v12, v8, 17, v12
    v_lshrrev_b32 v8, 1, v16
    v_xor_b32 v8, v8, v17
    v_lshlrev_b32 v16, 7, v16
    v_lshl_add_u32 v16, v8, 4, v16
    s_lshl_b32 s72, s74, 12
    v_add_u32 v16, s72, v16
    v_xor_b32 v17, 64, v16
    v_mov_b32 v125, v31
    v_and_b32 v126, 6, v4
    v_xor_b32 v126, v126, v5
    v_lshlrev_b32 v126, 4, v126
    v_lshl_add_u32 v126, v4, 10, v126
    v_lshl_add_u32 v4, v4, 10, v6
    v_bfe_u32 v10, v0, 2, 2
    v_lshrrev_b32 v6, 1, v10
    v_xor_b32 v8, s75, v6
    v_and_b32 v18, 2, v0
    v_lshl_add_u32 v8, v8, 2, v18
    v_add_u32 v8, v8, v9
    v_lshlrev_b32 v8, 1, v8
    v_and_or_b32 v8, v0, 1, v8
    v_lshlrev_b32 v8, 3, v8
    v_lshl_add_u32 v8, v10, 7, v8
    v_lshl_add_u32 v8, v9, 10, v8
    v_mul_u32_u24 v18, 6144, v3
    v_add_u32 v8, v8, v18
    v_add_u32 v8, %d, v8
    v_xor_b32 v18, 16, v8
    v_add_u32 v19, %d, v18
    v_lshlrev_b32 v5, 5, v9
    v_lshl_add_u32 v5, v10, 7, v5
    v_and_b32 v10, 3, v0
    v_lshl_add_u32 v5, v10, 3, v5
    v_lshl_add_u32 v5, v3, 9, v5
    v_lshl_add_u32 v5, v6, 6, v5
    v_lshrrev_b32 v10, 1, v0
    v_xor_b32 v10, v10, v0
    v_and_b32 v10, 1, v10
    v_mul_u32_u24 v10, 24, v10
    v_xor_b32 v5, v5, v10
    s_mul_i32 s84, s60, %d
    s_add_u32 s84, s84, %d
    v_add_u32 v5, s84, v5
    v_xor_b32 v6, 64, v5
    v_lshlrev_b32 v10, 3, v9
    v_lshl_add_u32 v10, v3, 5, v10
    v_xor_b32 v9, 16, v19
    v_mov_b32 v3, 0xdddddddd
    """ % (L_RING, 2 * 24576, W2_REGION, L_W2))

    def setup_a():
        setup3()
        a("s_add_u32 s82, s82, %d" % ((32 - nA) * 2048))
        a("s_mul_i32 s84, s60, %d" % W2_REGION)
        a("s_add_u32 s84, s84, %d" % L_W2)
        a("""
        s_lshl1_add_u32 s72, s62, s74
        s_lshl1_add_u32 s73, s61, s75
        s_lshl_b32 s76, s73, 7
        s_add_u32 s76, s76, s72
        s_lshl_b32 s77, s76, 11
        s_lshl4_add_u32 s76, s72, s73
        s_lshl_b32 s76, s76, 11
        s_add_u32 s76, s76, %d
        s_add_u32 s77, s77, %d
        s_add_u32 s81, s69, s75
        s_lshl_b32 s78, s81, 7
        s_add_u32 s78, s78, s72
        s_lshl_b32 s78, s78, 10
        s_add_u32 s78, s78, %d
        s_lshl_b32 s79, s61, 6
        s_add_u32 s79, s79, s62
        s_lshl_b32 s79, s79, 4
        s_add_u32 s79, s79, %d
        s_lshl_b32 s80, s62, 3
        s_add_u32 s80, s80, s61
        s_lshl2_add_u32 s80, s80, s60
        s_lshl_b32 s80, s80, FSH
        s_add_u32 s80, s80, %d
        s_mul_i32 s73, s61, s75
        s_add_u32 s88, s78, %d
        s_cmp_lt_u32 s73, 3
        s_cselect_b32 s88, s88, 0x40000000
        """ % (WS_QO, WS_KV, WS_HF, WS_FLAGQ, WS_FLAGH, 8 * 65536))


    def slot_of(c):
        return (c & 3) * 24576

    def issue_chunk(c):
        stride = 3072 if c < 8 else 2752
        a("s_xor_b32 s73, s67, %d" % (c & 7))
        a("s_mul_i32 s73, s73, %d" % (64 * stride))
        a("s_add_u32 s73, s73, %s" % ("s85" if c < 8 else "s80"))
        for m in range(6):
            blk, seg = divmod(m, 3)
            a("s_add_u32 m0, s87, %d" % (slot_of(c) + seg * 2048 + blk * 1024))
            a("s_add_u32 s72, s73, %d" % (blk * 8 * stride + seg * (1024 if c < 8 else 128)))
            if c < 8:
                dma(33 if blk else 13, SWQ, "s72", 0, ("w", c))
            else:
                dma(56 + (seg == 2) + 2 * blk, SW1, "s72", 0, ("w", c))

    def layernorm(acts):
        def act(p):
            if acts.get(p):
                assert p >= 7
                a("s_cmp_eq_u32 s63, 1")
                a("s_cbranch_scc1 L_ln_%d" % p)
                for f in acts[p]:
                    f()
                a.label("L_ln_%d" % p)
        a.label("L_ln")
        a("""
        v_mov_b32 v232, 0x3f803f80
        v_mov_b32 v233, 0x3f803f80
        v_lshlrev_b32 v26, 4, v26
        v_mov_b32 v28, 0xffff
        v_lshlrev_b64 v[28:29], v26, v[28:29]
        """)
        a("s_mov_b32 s89, 0xffff0000")
        a("s_lshl_b32 s72, s67, 13")
        a("v_or_b32 v15, s72, v15")

        def xwrite(j):
            a("v_xor_b32 v23, 0x%x, v15" % (j << 13))
            a("ds_write_b128 v23, %s" % vr(RAW + j * 4, 4))

        def m4(d, x, y, c):
            a("v_mfma_f32_4x4x4_16b_bf16 %s, %s, %s, %s" % (vr(d, 4), vr(x, 2), vr(y, 2), "0" if c is None else vr(c, 4)))

        S, GM, T, CN, AH = 208, 216, 192, 224, 228
        for j in range(8):
            vm.wait(("x", j))
            if cfg.bst == 3 and j in (0, 3, 7):
                stamp({0: 4, 3: 5, 7: 6}[j], True)
            if j == 7:
                act(7)
            for h in range(2):
                x = RAW + j * 4 + 2 * h
                m4(S + 4 * h, 232, x, S + 4 * h if j else None)
                m4(GM + 4 * h, x, x, GM + 4 * h if j else None)
        act(8)
        stamp(1)
        a("v_add_f32 v24, %s, %s" % (vr(S), vr(S + 4)))
        for r in range(4):
            a("v_add_f32 %s, %s, %s" % (vr(GM + r), vr(GM + r), vr(GM + 4 + r)))
        dpp = "row_mask:0xf bank_mask:0xf"
        a("v_add_f32_dpp v24, v24, v24 quad_perm:[1,0,3,2] " + dpp)
        a("v_mov_b32_dpp v25, %s quad_perm:[0,0,0,0] %s" % (vr(GM), dpp))
        a("v_add_f32_dpp v25, %s, v25 quad_perm:[1,1,1,1] %s" % (vr(GM + 1), dpp))
        a("v_add_f32_dpp v24, v24, v24 quad_perm:[2,3,0,1] " + dpp)
        a("v_add_f32_dpp v25, %s, v25 quad_perm:[2,2,2,2] %s" % (vr(GM + 2), dpp))
        a("v_add_f32_dpp v25, %s, v25 quad_perm:[3,3,3,3] %s" % (vr(GM + 3), dpp))
        a("v_add_f32_dpp v24, v24, v24 row_half_mirror " + dpp)
        a("v_add_f32_dpp v25, v25, v25 row_half_mirror " + dpp)
        a("""
        v_mul_f32 v24, 0x3b000000, v24
        v_mul_f32 v25, 0x3b000000, v25
        v_fma_f32 v25, -v24, v24, v25
        v_max_f32 v25, 0, v25
        v_cvt_pk_bf16_f32 v24, v24, v25
        v_and_b32 v25, s89, v24
        v_add_f32 v25, 0x3727c5ac, v25
        v_cvt_pk_bf16_f32 v25, v25, v25
        v_and_b32 v25, s89, v25
        v_sqrt_f32 v25, v25
        v_lshlrev_b32 v24, 16, v24
        v_cvt_pk_bf16_f32 v25, v25, v25
        v_and_b32 v25, s89, v25
        v_rcp_f32 v26, v25
        v_cvt_pk_bf16_f32 v27, v26, v26
        v_and_b32 v25, s89, v27
        v_sub_f32 v25, v26, v25
        v_cvt_pk_bf16_f32 v25, v25, v25
        v_and_b32 v228, v27, v28
        v_and_b32 v229, v27, v29
        v_and_b32 v230, v25, v28
        v_and_b32 v231, v25, v29
        """)
        for r in range(4):
            a("v_mul_f32_e64 %s, -v24, v26" % vr(CN + r))

        def finish(j, q):
            t = T + 8 * (j & 1)
            a("v_cvt_pk_bf16_f32 %s, %s, %s" % (vr(RAW + 4 * j + q), vr(t + 2 * q), vr(t + 2 * q + 1)))
            if q == 3:
                xwrite(j)

        for j in range(9):
            for q in range(4):
                if j < 8:
                    t = T + 8 * (j & 1) + 4 * (q & 1)
                    m4(t, AH + 2 * (q >> 1), RAW + 4 * j + 2 * (q & 1), CN if q < 2 else t)
                if j:
                    finish(j - 1, q)
        if cfg.bst == 3:
            stamp(7, True)
        act(9)
        act(10)
        stamp(2)
        if cfg.bst == 3:
            stamp(8, True)

    def pf1():
        a("; memory-side prefetch of W1")
        bload(32, 1, 31, SW1, "s100", 0, "", "pf")

    def b1loads():
        a("s_lshr_b32 s3, s60, 1")
        a("s_add_u32 s3, s3, s69")
        a("s_lshl_b32 s3, s3, 6")
        for q in range(6):
            bload(112 + 2 * q, 2, 10, SB1, "s3", (q >> 1) * 128 + (q & 1) * 16, "", "b1")

    acts = {}
    for c, p in enumerate((cfg.w0_at, cfg.w1_at, cfg.w2_at, 10)[:cfg.lead + 1]):
        acts.setdefault(p, []).append(lambda c=c: issue_chunk(c))
    if cfg.b1at < 0:
        acts.setdefault(-cfg.b1at, []).insert(0, b1loads)
    layernorm(acts)
    a("s_cmp_eq_u32 s63, 1")
    a("s_cbranch_scc1 L_loader")

    QR, SB, WF, FA, OA, KV, HB = 8, 24, 56, 64, 128, 192, 228
    NKV = 3

    def att_init_ops():
        ops = ["v_mov_b32 %s, 0" % vr(OA + 16 * t + i) for t in range(4) for i in range(16)]
        ops2 = ["v_and_b32 v7, 27, v0", "v_cmp_eq_u32 vcc, 16, v7", "v_mov_b32 v7, 0x3f803f80", "v_cndmask_b32 v7, 0, v7, vcc"]
        ops2 += ["v_mov_b32 %s, v7" % vr(KV + 12 * b + 4 + q) for b in range(NKV) for q in range(8)]
        return ops, ops2

    XKV = (72, 84)
    kvplan = {"xt": None}

    def kvreg(j):
        xt = kvplan["xt"]
        if xt is not None and j in (xt, xt + 1):
            return XKV[j - xt]
        return KV + 12 * ((j - 2 if xt is not None and j > xt else j) % NKV)

    def kvsched(n):
        at, pos = {}, 0
        for j in range(NKV, n):
            prev = [p for p in range(j) if kvreg(p) == kvreg(j)]
            pos = max(pos + 1, 4 * (prev[-1] + 1) if prev else 0)
            at[(pos >> 2, pos & 3)] = j
        return at

    def kvload(j):
        r = kvreg(j)
        bload(r, 4, 252, SWS, "s82", 0, "sc1", ("kv", j))
        a("s_mov_b64 exec, %s" % sr(sVM, 2))
        bload(r + 4, 4, 2, SWS, "s82", 1024, "sc1", ("kv", j))
        bload(r + 8, 4, 2, SWS, "s82", 1536, "sc1", ("kv", j))
        a("s_mov_b64 exec, -1")
        a("s_add_u32 s82, s82, %d" % (2048 * (nA if j == kvplan.get("jump") else 1)))

    def att_loads(role):
        a("; key slot 8a+4b+c holds token 16b+4a+c, matching the order of the V fragments")
        a("v_and_b32 v252, 0x230, v1")
        a("v_and_b32 v253, 0x180, v1")
        a("v_lshrrev_b32 v253, 1, v253")
        a("v_and_b32 v254, 64, v1")
        a("v_lshlrev_b32 v254, 2, v254")
        a("v_or3_b32 v252, v252, v253, v254")
        bload(QR, 4, 1, SWS, "s92", 0, "sc1", "q")
        kvload(0)
        for t in range(1, 4):
            bload(QR + 4 * t, 4, 1, SWS, sr(92 + t), 0, "sc1", "q")
        kvload(1)
        if role == "a":
            kvload(2)

    def dump_addr():
        a("v_lshlrev_b32 v8, 2, v0")
        a("v_add_u32 v9, s99, v1")
        a("v_add_u32 v10, s99, v8")
        a("v_bfe_u32 v11, v0, 4, 1")
        a("v_lshl_add_u32 v11, v11, 10, v2")

    def tail_pre():
        a("s_and_b32 s73, s60, 1")
        a("s_lshl_b32 s73, s73, 9")
        a("s_sub_u32 s76, s95, s73")
        a("""
        s_and_b32 s74, s60, 3
        s_lshr_b32 s75, s60, 2
        v_lshrrev_b32 v14, 3, v0
        v_and_b32 v7, 7, v0
        v_lshlrev_b32 v7, 4, v7
        v_lshl_add_u32 v14, v14, 10, v7
        s_lshl3_add_u32 s78, s66, s60
        s_lshl_b32 s78, s78, 13
        s_lshl_b32 s79, s67, 7
        s_add_u32 s78, s78, s79
        """)
        bload(60, 4, 7, SB2, "s79", 0, "", "xb")
        bload(56, 4, 14, SX, "s78", 0, "", "xb")

    def dump(t):
        a("v_add_u32 v12, %s, v1" % sr(96 + t))
        a("v_add_u32 v13, %s, v8" % sr(96 + t))
        dsw("ds_write_b128", 12, OA + 16 * t, 4, t * 2304)
        dsw("ds_write_b128", 12, OA + 16 * t + 4, 4, t * 2304 + 1024)
        dsw("ds_write_b32", 13, OA + 16 * t + 8, 1, t * 2304 + 2048)

    deferred = []
    cfg_gap = {0: range(16), 1: (1, 10), 2: (0, 9), 3: (4, 10), 4: (1,), 5: (4,), 6: (15, 9)}[cfg.gap]

    def tiles_of(n):
        return [(j, t) for j in range(n) for t in range(4) if not (cfg.half and j == n - 1 and t < 2)]

    def att_run(n, hooks):
        tiles = tiles_of(n)
        last = {t: max(p for p, jt in enumerate(tiles) if jt[1] == t) for t in range(4)}
        hooks.setdefault(tiles[last[0]] + (11,), []).append(dump_addr)
        for t in range(3):
            hooks.setdefault(tiles[last[t] + (cfg.dlag if t < 2 and cfg.half else 1)] + (12,), []).append(lambda t=t: dump(t))
        hooks.setdefault(tiles[last[0]] + (9,), []).append(tail_pre)
        assert all(k[:2] in tiles for k in hooks)
        vm.wait("q", ("kv", 0))
        mfma32(SB, KV, QR, None)
        loads = kvsched(n)
        for p, (j, t) in enumerate(tiles):
            cur, oth = SB + 16 * (p & 1), SB + 16 * ((p + 1) & 1)
            for i in range(16):
                a("v_exp_f32 %s, %s" % (vr(cur + i), vr(cur + i)))
                if i in cfg_gap:
                    while deferred:
                        deferred.pop(0)()
                if i == cfg.kvi and (j, t) in loads and not cfg.abl & 32:
                    kvload(loads[(j, t)])
                if i == 1 and p:
                    smf(OA + 16 * tiles[p - 1][1], kvreg(tiles[p - 1][0]) + 8, oth + 8)
                if i == 4 and p + 1 < len(tiles):
                    nj, nt = tiles[p + 1]
                    vm.wait(("kv", nj))
                    mfma32(oth, kvreg(nj), QR + 4 * nt, None)
                if i == 10:
                    smf(OA + 16 * t, kvreg(j) + 4, cur)
                for h in hooks.get((j, t, i), ()):
                    h()
        smf(OA + 48, kvreg(n - 1) + 8, SB + 16 + 8)

    ACC = (24, 40, 56)
    WB, NBUF, LA = 72, 6, cfg.look
    XF, PK, XA = 128, 96, 16
    init1, init2 = att_init_ops()

    def item(g):
        kk, m = divmod(g % 96, 6)
        return kk, m >> 1, m & 1

    def reads(g, part=None):
        kk, seg, ab = item(g)
        so = slot_of(g // 12)
        base = (8, 18)[ab] + so // 49152
        off = so % 49152 + (kk & 1) * 12288 + seg * 2048
        for h in range(2):
            if part in (None, h):
                if g < 96 and seg == 0 and ab == 0:
                    dsr("ds_read_b128", XF + 8 * kk + 4 * h, 4, XA + (kk & 1), (kk >> 1) * 8192 + h * 2048, g)
                dsr("ds_read_b64_tr_b16", WB + 4 * (g % NBUF) + 2 * h, 2, base, off + 512 * h, g)

    def pack(acc, pk):
        return ["v_cvt_pk_bf16_f32 %s, %s, %s" % (vr(pk + q), vr(acc + 2 * q), vr(acc + 2 * q + 1)) for q in range(8)]

    def st2(pk, va, base, delta, tag, imm=(0, 0), vb=None):
        def first():
            bstore(pk, 4, va, SWS, base, imm[0], "sc1", tag)

        def second():
            if delta:
                a("s_add_u32 s72, %s, %d" % (base, delta))
            bstore(pk + 4, 4, vb or va, SWS, "s72" if delta else base, imm[1], "sc1", tag)
        return [first, second]

    def relu2(acc):
        return (["v_max_f32 %s, 0, %s" % (vr(acc + i), vr(acc + i)) for i in range(16)]
                + ["v_mul_f32 %s, %s, %s" % (vr(acc + i), vr(acc + i), vr(acc + i)) for i in range(16)])

    def bias(seg):
        ops = [lambda: vm.wait("b1")]
        for q in range(4):
            ops.append("v_lshlrev_b32 %s, 16, %s" % (vr(ACC[seg] + 2 * q), vr(112 + 4 * seg + q)))
            ops.append("v_and_b32 %s, s89, %s" % (vr(ACC[seg] + 2 * q + 1), vr(112 + 4 * seg + q)))
        return ops

    tagq = ["v_or_b32 %s, 1, %s" % (vr(PK + 4 * q), vr(PK + 4 * q)) for q in range(2)]
    qkv_epi = (["v_mul_f32 %s, 0x%x, %s" % (vr(ACC[0] + i), QSCALE, vr(ACC[0] + i)) for i in range(16)]
               + pack(ACC[0], PK) + tagq + st2(PK, 14, "s76", 0, "st", (0, 256))
               + pack(ACC[1], PK + 8) + st2(PK + 8, 11, "s77", 0, "st", (0, 256))
               + pack(ACC[2], PK) + st2(PK, 12, "s77", 0, "st", (1024, 1152))
               + bias(0) + bias(1) + bias(2))
    sched = {108 + 12 * t: init1[16 * t:16 * t + 16] for t in range(4)}
    sched[174] = init2
    shadow = []

    def run_shadow(budget):
        while shadow and budget > 0:
            op = shadow.pop(0)
            if isinstance(op, str):
                a(op)
                budget -= 1
            else:
                op()
                budget -= 3

    mark = len(a.items)
    setup_a()
    a("""
    s_lshl_b32 s85, s60, 14
    s_lshl_b32 s72, s67, 7
    s_add_u32 s85, s85, s72
    s_lshl_b32 s86, s60, 6
    s_lshl1_add_u32 s86, s66, s86
    s_lshl_b32 s86, s86, 10
    s_add_u32 s86, s86, %d
    s_lshl_b32 s87, s66, FROW
    s_add_u32 s87, s87, %d
    """ % (WS_HF, WS_FLAGH))
    sched[0] = [v.text for k, v in a.items[mark:] if k == "ins"]
    del a.items[mark:]
    vm.wait(("w", 0))
    a("s_waitcnt lgkmcnt(0)")
    a("s_add_u32 %s, %s, 0x%x" % (sr(sTAG), sr(sTAG), EPOCH_INC))
    if cfg.bst == 3:
        stamp(9, True)
    a("s_barrier")
    stamp(3)
    if cfg.bst == 3:
        stamp(10, True)
    for g in range(LA):
        reads(g)
    for g in range(192):
        kk, seg, ab = item(g)
        if g == 96:
            stamp(4)
            shadow.extend(qkv_epi)
            run_shadow(1000)
            stamp(5)
            a("s_barrier")
            for n in range(96, 96 + LA):
                reads(n)
        lg.wait(g)
        w = WB + 4 * (g % NBUF)
        n = g + LA
        more = n < 192 and not g < 96 <= n
        shadow.extend(sched.get(g, ()))
        for h, t in enumerate((1, 0)):
            x = XF + 8 * kk + 4 * t
            if g < 96 and seg == 2:
                d = ACC[seg] + 8 * ab + 4 * t
                mfma16(d, x, w, None if kk == 0 else d)
            else:
                d = ACC[seg] + 8 * t + 4 * ab
                mfma16(d, w, x, d if kk else (None if g < 96 else ACC[seg] + 4 * ab))
            if more and h == 0 and n % 12 == 0:
                vm.wait(("w", n // 12))
                if n // 12 == cfg.flag_chunk:
                    vm.wait("st")
                a("s_barrier")
                if n // 12 == cfg.flag_chunk:
                    a("s_cmp_lg_u32 s60, 0")
                    a("s_cselect_b32 s79, 0x40000000, s79")
                    set_flag(7, "s79")
                    stamp(6)
            if more:
                reads(n, h)
            run_shadow((1 - h if g < 96 else 1) if more else 2)
        if g == cfg.b1at:
            b1loads()
    run_shadow(1000)
    stamp(7)
    hmath, hst = [], []
    for seg in range(3):
        pk = PK + 8 * seg
        hmath.append(relu2(ACC[seg]) + pack(ACC[seg], pk))
        hst.append((["s_add_u32 s78, s78, 0x40000"] if seg == 1 else []) + st2(pk, 127, "s78" if seg < 2 else "s88", 0, "hst", (0, 256)))
    for seg in range(cfg.hbar):
        shadow.extend(hmath[seg])
    run_shadow(1000)
    a("s_barrier")
    stamp(8)
    if cfg.bst == 4:
        stamp(1, True)
    a("s_setprio 2")
    for seg in range(cfg.hbar, cfg.hpre):
        shadow.extend(hmath[seg])
    run_shadow(1000)
    att_loads("a")
    if cfg.xt:
        for r in XKV:
            for q in range(8):
                a("v_mov_b32 %s, v7" % vr(r + 4 + q))
    hlist = [[hst[0][0]], [hst[0][1]], hst[1][:2], [hst[1][2]], [hst[2][0]], [hst[2][1]]]
    for seg in range(3):
        shadow.extend(hmath[seg] if seg >= max(cfg.hpre, cfg.hbar) else [])
        for n in (2 * seg, 2 * seg + 1):
            if n < cfg.hnow:
                shadow.extend(hlist[n])
    run_shadow(1000)
    stamp(9)


    def w2dma(i):
        if cfg.abl & 129:
            return
        a("s_add_u32 m0, s84, %d" % ((i & 3) * 2048))
        a("s_add_u32 s72, s85, %d" % (i * 65536))
        dma(4, SW2, "s72", 0, ("w2", i))
        a("s_add_u32 s72, s72, 7168")
        dma(4, SW2, "s72", 1024, ("w2", i))

    hreg = lambda i, tt: HB + 8 * (i % 3) + 4 * tt

    def hload(i):
        if cfg.abl & 257:
            return
        if i > 0:
            a("s_add_u32 s86, s86, 0x40000")
        for tt in range(2):
            bload(hreg(i, tt), 4, 1, SWS, "s86", tt * 1024, "sc1", ("h", i))

    def w2read(i, nt):
        if cfg.abl & 2:
            return
        vm.wait(("w2", i))
        trread(WF + 4 * nt, 5 + nt, (i & 3) * 2048, 1024, ("wf", i, nt))

    def fslot(f):
        i, m = divmod(f, 4)
        nt, tt = ((0, 0), (0, 1), (1, 1), (1, 0))[m]
        vm.wait(("h", i))
        lg.wait(("wf", i, nt))
        d = FA + 16 * (2 * tt + nt)
        if not cfg.abl & 4:
            mfma32(d, WF + 4 * nt, hreg(i, tt), None if i == 0 else d)
        if m == 1 and i + 1 < NS:
            deferred.append(lambda: w2read(i + 1, 0))
        if m == cfg.dmam and i + 4 < NS:
            deferred.append(lambda: w2dma(i + 4))
        if m == 3:
            if i + 1 < NS:
                deferred.append(lambda: w2read(i + 1, 1))
            if i + 3 < NS:
                deferred.append(lambda: hload(i + 3))

    def park(tt, nt):
        d = FA + 16 * (2 * tt + nt)
        for q in range(8):
            a("v_cvt_pk_bf16_f32 %s, %s, %s" % (vr(d + q), vr(d + 2 * q), vr(d + 2 * q + 1)))
        for q in range(2):
            dsw("ds_write_b128", 4, d + 4 * q, 4, tt * 32 * PART_STRIDE + nt * 64 + q * 32)

    def park_addr():
        a("v_and_b32 v4, 31, v0")
        a("v_mul_u32_u24 v4, %d, v4" % PART_STRIDE)
        a("v_lshrrev_b32 v5, 5, v0")
        a("v_lshl_add_u32 v4, v5, 4, v4")
        a("v_add_u32 v4, s84, v4")

    hooks = {}

    def hook(j, t, i, f):
        hooks.setdefault((j, t, i), []).append(f)

    n1 = cfg.n1
    for n in range(cfg.hnow, 6):
        tl = (n - cfg.hnow) * cfg.hgap + cfg.hoff
        hook(tl >> 2, tl & 3, 9, lambda n=n: (shadow.extend(hlist[n]), run_shadow(1000)))
    assert (5 - cfg.hnow) * cfg.hgap + cfg.hoff <= cfg.hflag < 4 * (n1 - 2)
    hook(cfg.hflag >> 2, cfg.hflag & 3, 12, lambda: (vm.wait("hst"), set_flag(7, "s80"), stamp(1) if cfg.hst else None))
    hook(n1 - 2, cfg.hpoll, 8, lambda: flag_load(7, cfg.fsh, "s87", "hf"))
    hook(n1 - 2, 3, 12, lambda: (vm.wait("hf"), stamp(2) if cfg.hst else None, check_flags("h", 7, cfg.fsh, "s87"), stamp(3) if cfg.hst else None))
    for i in range(4):
        hook(n1 - 3 + (i >> 1), 1 + (i & 1), 7, lambda i=i: w2dma(i))
    for i in range(3):
        hook(n1 - 1, i, 7, lambda i=i: hload(i))
    hook(n1 - 1, 3, 7, lambda: (w2read(0, 0), w2read(0, 1)))
    pat = [int(ch) for ch in str(cfg.fpat)]
    slots = [(j, t, pos) for j in range(n1, nA) for t in range(4) for pos in ((13,), (7, 13))[pat[t] - 1]]
    for f in range(4 * NS):
        hook(*slots[f], lambda f=f: fslot(f))
    rest = [jt for jt in tiles_of(nA) if jt > slots[4 * NS - 1][:2]]
    assert len(rest) >= 4 + 2 * cfg.half
    hook(*rest[0], 6, park_addr)
    for n, (nt, tt) in enumerate(((0, 0), (0, 1), (1, 1), (1, 0))):
        hook(*rest[n], 7, lambda tt=tt, nt=nt: park(tt, nt))
    if cfg.hst:
        for n in range(4):
            hook(n1 + 4 * n, 0, 1, lambda n=n: stamp(4 + n))
    if cfg.alow:
        hook(*tiles_of(nA)[-cfg.alow], 0, lambda: a("s_setprio 0"))
    if cfg.bst == 4:
        for n, j in enumerate(range(0, nA, 2)):
            hook(j, 2 if cfg.half and j == nA - 1 else 0, 0, lambda n=n: stamp(2 + n, True))
    def a_pf():
        a("; memory-side prefetch of w2 and wo")
        bload(255, 1, 125, SW2, "s100", 0, "", "pf")
        bload(255, 1, 125, SWO, "s100", 0, "", "pf")

    def a_wo(lo):
        if lo == 0:
            a("; wo tile -> LDS [0, 64K), a few rows per score tile")
            a("s_lshl_b32 s76, s60, 17")
            a("s_lshl_b32 s73, s67, 7")
            a("s_add_u32 s76, s76, s73")
            a("s_lshl_b32 s77, s60, 14")
        a("s_add_u32 m0, s77, %d" % (lo * 1024))
        for i in range(cfg.awn):
            a("s_add_u32 s73, s76, %d" % ((lo + i) * 8192 - i * 1024))
            dma(126, SWO, "s73", i * 1024, "wo")

    if cfg.apf:
        hook(cfg.apf >> 2, cfg.apf & 3, 9, a_pf)
    if cfg.awo:
        for n, lo in enumerate(range(0, 16, cfg.awn)):
            assert cfg.awo + n < 4 * n1
            hook((cfg.awo + n) >> 2, (cfg.awo + n) & 3, 9, lambda lo=lo: a_wo(lo))
    kvplan["xt"] = cfg.xt or None
    assert cfg.xt + 2 <= n1
    att_run(nA, hooks)
    kvplan["xt"] = None
    vm.drain()
    a("s_branch L_att_done")

    a.label("L_loader")
    vm.items = []
    lg.items = []

    def b_setup():
        a("; waves 4-7: W1 DMA offsets v56-v59 (sixth tile out of range where the next group owns it), flagQ row s79")
        a("""
        v_mul_u32_u24 v56, 2752, v4
        v_add_u32 v56, v56, v6
        s_lshr_b32 s72, 0xf8, s61
        s_and_b32 s72, s72, 1
        s_lshl_b32 s72, s72, 23
        v_and_b32 v57, 64, v6
        v_mad_u32_u24 v57, v57, s72, v56
        v_xor_b32 v58, 16, v56
        v_xor_b32 v59, 16, v57
        s_lshr_b32 s79, s64, 1
        s_lshl_b32 s79, s79, 10
        s_add_u32 s79, s79, %d
        s_and_b32 s73, s60, 3
        s_lshl_b32 s72, s69, 6
        s_mul_i32 s80, s73, %d
        s_add_u32 s80, s80, s72
        """ % (WS_FLAGQ, 16 * 2752))

        a("v_mov_b32 v3, 0xdddddddd")

    issued = cfg.lead
    setup1()
    state = {"issued": issued}

    def b_step(c):
        vm.wait(("w", c))
        if cfg.bst == 2:
            stamp(c, True)
        if cfg.bst == 3 and c == 0:
            stamp(9, True)
        a("s_barrier")
        if cfg.bst == 1:
            stamp(c, True)
        if c in (0, 8, 12, 15):
            stamp({0: 3, 8: 4, 12: 5, 15: 6}[c])
        if c == cfg.bload - 1:
            flag_load(7, 4, "s79", "qf")
        if c == cfg.bload:
            vm.wait("qf")
            check_flags("q", 7, 4, "s79")
            stamp(7)
            att_loads("b")
        while state["issued"] < min(15, max(3, c + 2)):
            state["issued"] += 1
            issue_chunk(state["issued"])
        if c == 0:
            setup_pf((SW1,))
        if c == cfg.sA:
            setup2()
        if cfg.pf1_at == 12 + c:
            pf1()
        if c == cfg.sB:
            b_setup()
        if c == cfg.sC:
            setup3()
        if c == cfg.sC:
            for op in init1 + init2:
                a(op)
        if c == 7:
            a("s_waitcnt lgkmcnt(0)")
            a("s_add_u32 %s, %s, 0x%x" % (sr(sTAG), sr(sTAG), EPOCH_INC))

    def b_att():
        a("s_barrier")
        stamp(8)
        a("s_setprio 1")
        kvload(2)

    bhooks = {}
    for c in range(16):
        b_step(c)
    b_att()
    if cfg.bst == 4:
        for j in range(nB):
            bhooks.setdefault((j, 2 if cfg.half and j == nB - 1 else 0, 0), []).append(lambda j=j: stamp(2 + j, True))
    kvplan["jump"] = nB - 2 if cfg.half else None
    att_run(nB, bhooks)
    kvplan["jump"] = None
    vm.drain()

    OW = OA + 48
    WOF, OFR, AC, G, Z, X, SR = 128, 24, 8, 64, 96, 104, 112
    a.label("L_att_done")
    stamp(10)
    if cfg.bst == 4:
        stamp(14, True)
    a("s_setprio 0")
    lg.drain()
    a("s_barrier")
    for src in range(3):
        d = SB + 10 * src
        dsr("ds_read_b128", d, 4, 9, src * 2304, src)
        dsr("ds_read_b128", d + 4, 4, 9, src * 2304 + 1024, src)
        dsr("ds_read_b32", d + 8, 1, 10, src * 2304 + 2048, src)
    for src in range(3):
        lg.wait(src)
        for i in range(0, 8, 2):
            a("v_pk_add_f32 %s, %s, %s" % (vr(OW + i, 2), vr(OW + i, 2), vr(SB + 10 * src + i, 2)))
        a("v_add_f32 %s, %s, %s" % (vr(OW + 8), vr(OW + 8), vr(SB + 10 * src + 8)))
    a("v_pk_mul_f32 v[12:13], %s, 0 op_sel_hi:[1,0]" % vr(OW, 2))
    for i in range(2, 8, 2):
        a("v_pk_fma_f32 v[12:13], %s, 0, v[12:13] op_sel_hi:[1,0,1]" % vr(OW + i, 2))
    a("""
    v_add_f32 v12, v12, %s
    v_add_f32 v12, v12, v13
    v_cmp_nle_f32 vcc, 0x30800000, v12
    s_mov_b64 s[72:73], vcc
    v_cmp_nge_f32 vcc, 0x5d800000, v12
    s_or_b64 s[72:73], s[72:73], vcc
    """ % vr(OW + 8))
    a("s_branch L_slow" if cfg.force_slow else "s_cbranch_scc1 L_slow")
    a.label("L_norm")
    a("v_rcp_f32 v12, %s" % vr(OW + 8))
    for i in range(0, 8, 2):
        a("v_pk_mul_f32 %s, %s, v[12:13] op_sel_hi:[1,0]" % (vr(OW + i, 2), vr(OW + i, 2)))
    for q in range(4):
        a("v_cvt_pk_bf16_f32 %s, %s, %s" % (vr(16 + q), vr(OW + 2 * q), vr(OW + 2 * q + 1)))
    a("v_and_b32 v16, -2, v16")
    bstore(16, 4, 11, SWS, "s76", 0, "sc1", "ost")
    stamp(11)
    a("v_mov_b32 v2, v14")
    a("v_lshrrev_b32 v3, 3, v0")
    a("""
    v_mul_u32_u24 v4, %d, v3
    s_mul_i32 s72, s60, %d
    s_add_u32 s72, s72, %d
    v_add3_u32 v4, v4, v7, s72
    """ % (PART_STRIDE, 8 * PART_STRIDE, L_W2))
    for j in range(4):
        dsr("ds_read_b128", G + 4 * j, 4, 4, j * W2_REGION, "g")
    a("""
    v_bfe_u32 v4, v0, 2, 2
    v_bfe_u32 v5, v0, 4, 1
    v_lshl_add_u32 v4, v5, 2, v4
    v_lshrrev_b32 v5, 1, v4
    v_lshlrev_b32 v92, 7, v4
    v_lshl_add_u32 v92, v5, 5, v92
    v_lshrrev_b32 v6, 5, v0
    v_lshl_add_u32 v92, v6, 11, v92
    v_and_b32 v4, 3, v0
    v_lshl_add_u32 v92, v4, 3, v92
    s_lshl_b32 s72, s75, 15
    v_add_u32 v92, s72, v92
    v_xor_b32 v93, 32, v92
    v_xor_b32 v94, 64, v92
    v_xor_b32 v95, 0x60, v92
    s_barrier
    """)

    def oloads(first=0):
        for ks in range(first, 8):
            bload(OFR + 4 * ks, 4, 1, SWS, ("s76", "s77", "s80", "s81")[ks >> 1], (ks & 1) * 2048, "sc1", ("o", ks))

    fill = ("""
    s_lshl2_add_u32 s72, s66, s74
    s_lshr_b32 s76, s72, 1
    s_lshl1_add_u32 s76, s76, s75
    s_lshl_b32 s76, s76, 14
    s_and_b32 s72, s72, 1
    s_lshl_b32 s72, s72, 10
    s_add_u32 s76, s76, s72
    s_add_u32 s76, s76, %d
    s_add_u32 s77, s76, 0x1000
    s_add_u32 s80, s76, 0x2000
    s_add_u32 s81, s76, 0x3000
    v_mul_u32_u24 v3, %d, v3
    v_lshl_add_u32 v3, v7, 1, v3
    s_mul_i32 s72, s60, %d
    s_add_u32 s72, s72, %d
    v_add_u32 v3, s72, v3
    v_and_b32 v5, 15, v0
    v_mul_u32_u24 v5, %d, v5
    v_and_b32 v4, 48, v0
    s_mul_i32 s72, s60, %d
    s_add_u32 s72, s72, %d
    v_add3_u32 v5, v5, v4, s72
    s_mov_b32 s82, 0x3f80
    s_mov_b32 s83, 0x3f800000
    """ % (WS_QO, SUM_STRIDE, 8 * SUM_STRIDE, L_SUM, SUM_STRIDE, 16 * SUM_STRIDE, L_SUM)).strip().split("\n")
    gate = ["v_mov_b32 %s, 0" % vr(Z + i) for i in range(8)]
    gate.append(lambda: lg.wait("g"))
    for j in range(5):
        if j == 4:
            gate.append(lambda: vm.wait("xb"))
        for q in range(4):
            src = G + 4 * j + q if j < 4 else 60 + q
            gate.append("v_dot2c_f32_bf16 %s, s82, %s" % (vr(Z + 2 * q), vr(src)))
            gate.append("v_dot2c_f32_bf16 %s, s83, %s" % (vr(Z + 2 * q + 1), vr(src)))
    for q in range(4):
        gate.append("v_lshlrev_b32 %s, 16, %s" % (vr(X + 2 * q), vr(56 + q)))
        gate.append("v_and_b32 %s, s89, %s" % (vr(X + 1 + 2 * q), vr(56 + q)))
    gate += ["v_mul_f32 %s, 0x%x, %s" % (vr(G + i), NLOG2E, vr(Z + i)) for i in range(8)]
    gate += ["v_exp_f32 %s, %s" % (vr(G + i), vr(G + i)) for i in range(8)]
    gate += ["v_add_f32 %s, 1.0, %s" % (vr(G + i), vr(G + i)) for i in range(8)]
    gate += ["v_rcp_f32 %s, %s" % (vr(G + i), vr(G + i)) for i in range(8)]
    gate += ["v_mul_f32 %s, %s, %s" % (vr(Z + i), vr(Z + i), vr(G + i)) for i in range(8)]

    def wo_reads(oat, per):
        for ks in range(8):
            for ct in range(4):
                trread(WOF + (ks * 4 + ct) * 4, 92 + ct, ks * 4096, 1024, ("wo", ks))
                run_shadow(per)
            if ks == oat:
                run_shadow(1000)
                if not cfg.noack:
                    vm.wait("ost")
                oloads()

    vm_t, lg_t = list(vm.items), list(lg.items)
    a("s_cmp_eq_u32 s63, 1")
    a("s_cbranch_scc1 L_tail_b")
    shadow.extend(fill)
    wo_reads(cfg.oata, 1)
    shadow.extend(gate)
    run_shadow(1000)
    a("s_branch L_tail_j")
    a.label("L_tail_b")
    vm.items, lg.items = vm_t, lg_t
    shadow.extend(fill + gate)
    if cfg.obg:
        run_shadow(cfg.obg)
        oloads()
    run_shadow(1000)
    wo_reads(99 if cfg.obg else cfg.oat, 0)
    a.label("L_tail_j")
    stamp(12)
    a("s_mov_b32 s73, 0")
    lg.drain()
    for ks in range(8):
        a.label("L_wo_%d" % ks)
        vm.wait(("o", ks))
        a("v_and_b32 v6, 1, %s" % vr(OFR + 4 * ks))
        a("v_cmp_ne_u32 vcc, 0, v6")
        a("s_cbranch_vccnz L_oretry_%d" % ks)
        a.label("L_ogo_%d" % ks)
        for ct in range(4):
            d = AC + 4 * ct
            mfma16(d, WOF + (ks * 4 + ct) * 4, OFR + 4 * ks, None if ks == 0 else d)
    stamp(13)
    for ct in range(4):
        dsw("ds_write_b128", 5, AC + 4 * ct, 4, ct * 64)
    lg.drain()
    a("s_barrier")
    stamp(14)
    dsr("ds_read_b128", SR, 4, 3, 0, 0)
    dsr("ds_read_b128", SR + 8, 4, 3, SUM_SIZE, 0)
    dsr("ds_read_b128", SR + 4, 4, 3, 16, 1)
    dsr("ds_read_b128", SR + 12, 4, 3, SUM_SIZE + 16, 1)
    for h in range(2):
        lg.wait(h)
        for i in range(4 * h, 4 * h + 4, 2):
            a("v_pk_add_f32 %s, %s, %s" % (vr(SR + i, 2), vr(SR + i, 2), vr(SR + 8 + i, 2)))
        for i in range(4 * h, 4 * h + 4, 2):
            a("v_pk_fma_f32 %s, %s, %s, %s" % (vr(SR + i, 2), vr(SR + i, 2), vr(Z + i, 2), vr(X + i, 2)))
        for q in range(2 * h, 2 * h + 2):
            a("v_cvt_pk_bf16_f32 %s, %s, %s" % (vr(G + q), vr(SR + 2 * q), vr(SR + 2 * q + 1)))
    bstore(G, 4, 2, SOUT, "s78", 0, ("", "sc1", "nt", "sc0 sc1", "sc0 sc1 nt")[cfg.omod])
    a("s_or_b32 s72, s2, s60")
    a("s_cmp_lg_u32 s72, 0")
    a("s_cbranch_scc1 L_noepoch")
    set_flag(7, "0")
    a.label("L_noepoch")
    if cfg.stamps:
        a("s_waitcnt vmcnt(0)")
        stamp(15)
        if cfg.probe is not None:
            a("s_sub_u32 s72, %s, s4" % sr(sSTAMP + cfg.probe))
            if cfg.stamps == 2:
                a("s_lshr_b32 s72, s72, 3")
            else:
                a("s_lshl_b32 s72, s72, %d" % cfg.probesh)
            a("s_cmp_lg_u32 s2, %d" % cfg.probewg)
            a("s_cselect_b32 s72, 0, s72")
            a("s_cmp_lg_u32 s60, %d" % cfg.probew)
            a("s_cselect_b32 s72, 0, s72")
            a("s_memrealtime s[22:23]")
            a("s_waitcnt lgkmcnt(0)")
            a("s_mov_b32 s73, s22")
            a.label("L_probe")
            a("s_memrealtime s[22:23]")
            a("s_waitcnt lgkmcnt(0)")
            a("s_sub_u32 s22, s22, s73")
            a("s_cmp_lt_u32 s22, s72")
            a("s_cbranch_scc1 L_probe")
        a("s_lshl3_add_u32 s72, s2, s60")
        a("s_lshl_b32 s72, s72, 6")
        a("s_add_u32 s72, s72, %d" % WS_STAMP)
        for i in range(16):
            a("v_mov_b32 %s, %s" % (vr(80 + i), sr(sSTAMP + i)))
        a("s_mov_b64 exec, 1")
        for i in range(4):
            bstore(80 + 4 * i, 4, 1, SWS, "s72", 16 * i)
    a.label("L_end")
    a("s_endpgm")

    for ks in range(8):
        a.label("L_oretry_%d" % ks)
        a("s_add_u32 s73, s73, 1")
        a("s_cmp_ge_u32 s73, %d" % SPIN_MAX)
        a("s_cbranch_scc1 L_ogo_%d" % ks)
        a("s_waitcnt vmcnt(0)")
        oloads(ks)
        a("s_branch L_wo_%d" % ks)

    for tag, vt, lanes, soff in stubs:
        a.label("L_poll_" + tag)
        a("s_mov_b32 s73, 0")
        a.label("L_poll2_" + tag)
        a("s_sleep %d" % cfg.sleep)
        flag_load(vt, lanes, soff, None)
        a("s_add_u32 s73, s73, 1")
        a("s_waitcnt vmcnt(0)")
        a("s_cmp_ge_u32 s73, %d" % SPIN_MAX)
        a("s_cbranch_scc1 L_polled_" + tag)
        a("v_cmp_ne_u32 vcc, %s, %s" % (sr(sTAG), vr(vt)))
        a("s_cbranch_vccnz L_poll2_" + tag)
        a("s_branch L_polled_" + tag)

    a.label("L_slow")
    CN = SB + 16
    a("s_waitcnt vmcnt(0)")
    a("v_mov_b32 v13, 0xff800000")
    a("s_mov_b32 s82, s83")
    a("s_mov_b32 s81, 64")
    a.label("L_slow1")
    bload(KV, 4, 252, SWS, "s82", 0, "sc1")
    a("s_add_u32 s82, s82, 2048")
    a("s_waitcnt vmcnt(0)")
    mfma32(SB, KV, QR + 12, None)
    for i in range(0, 16, 2):
        a("v_max3_f32 v13, v13, %s, %s" % (vr(SB + i), vr(SB + i + 1)))
    a("s_sub_u32 s81, s81, 1")
    a("s_cmp_lg_u32 s81, 0")
    a("s_cbranch_scc1 L_slow1")
    a("v_mov_b32 v15, v13")
    a("v_permlane32_swap_b32 v15, v13")
    a("v_max_f32 v13, v15, v13")
    for i in range(16):
        a("v_sub_f32 %s, 0, v13" % vr(CN + i))
        a("v_mov_b32 %s, 0" % vr(OW + i))
    a("s_mov_b32 s82, s83")
    a("s_mov_b32 s81, 64")
    a.label("L_slow2")
    kvload(0)
    a("s_waitcnt vmcnt(0)")
    mfma32(SB, KV, QR + 12, CN)
    for i in range(16):
        a("v_exp_f32 %s, %s" % (vr(SB + i), vr(SB + i)))
    smf(OW, KV + 4, SB)
    smf(OW, KV + 8, SB + 8)
    a("s_sub_u32 s81, s81, 1")
    a("s_cmp_lg_u32 s81, 0")
    a("s_cbranch_scc1 L_slow2")
    a("s_branch L_norm")
    a.label("L_code_end")
    a("s_endpgm")

    added = a.fix()
    return a.text().replace('FSH', str(cfg.fsh)).replace('FROW', str(cfg.fsh + 5)), added


HEADER = """; Kernarg layout for this problem (88 bytes, ptrs only, base s[0:1]):
; @launch grid=(256,1,1) block=(512,1,1) lds=163840
.amdgcn_target "amdgcn-amd-amdhsa--gfx950"
.text
.globl {k}
.p2align 8
.type {k},@function
{k}:
"""

FOOTER = """.section .rodata,"a"
.p2align 6
.amdhsa_kernel {k}
  .amdhsa_next_free_vgpr 256
  .amdhsa_next_free_sgpr 102
  .amdhsa_accum_offset 256
  .amdhsa_group_segment_fixed_size 0
  .amdhsa_kernarg_size 88
  .amdhsa_user_sgpr_count 2
  .amdhsa_user_sgpr_kernarg_segment_ptr 1
  .amdhsa_system_sgpr_workgroup_id_x 1
.end_amdhsa_kernel
"""


def build(**kw):
    cfg = Cfg()
    for k, v in kw.items():
        setattr(cfg, k, v)
    body, added = gen(cfg)
    return HEADER.format(k=KERNEL) + body + FOOTER.format(k=KERNEL), added


if __name__ == "__main__":
    out = sys.argv[1] if len(sys.argv) > 1 else "cdna_kernels/%s.s" % NAME
    kw = {}
    for arg in sys.argv[2:]:
        k, v = arg.split("=")
        kw[k] = int(v)
    text, added = build(**kw)
    open(out, "w").write(text)
    print("wrote", out, "lines", text.count("\n"), "nops added", added)
```
